```python
import torch

def _softmax(x, axis=-1):
    return torch.softmax(x, dim=axis)
def _gelu(x):
    return torch.nn.functional.gelu(x, approximate="tanh")
def _silu(x):
    return torch.nn.functional.silu(x)
def _sigmoid(x):
    return torch.sigmoid(x)
def _layernorm(x, axis=-1, eps=1e-5):
    m = x.mean(dim=axis, keepdim=True)
    v = x.var(dim=axis, keepdim=True, unbiased=False)
    return (x - m) / torch.sqrt(v + eps)
def _scatter_add(tgt, idx, src, axis=0):
    return tgt.clone().index_add_(axis, idx, src)
def _segment_sum(src, seg, n):
    out = torch.zeros((n,) + src.shape[1:], dtype=src.dtype)
    return out.index_add_(0, seg, src)
def _pad(x, pw):
    flat = tuple(v for pair in reversed(pw) for v in pair)
    return torch.nn.functional.pad(x, flat)

kernel_name = 'interleave_layers__linear_attn_block__linear_kernel_hedgehog__prompt'

def setup_inputs():

    _w = (lambda a: (lambda t: t.to(torch.bfloat16) if t.is_floating_point() else t)(torch.as_tensor(a)))
    def _A_setup():
        B, S, D = 1, 2048, 512
        return {
            "x": _w((lambda *s: torch.randn(*s, dtype=torch.bfloat16) * 0.1)(B, S, D)),
            "wqkv": _w((lambda *s: torch.randn(*s, dtype=torch.bfloat16) * 0.2)(D, 3 * D)),
            "wo": _w((lambda *s: torch.randn(*s, dtype=torch.bfloat16) * 0.2)(D, D)),
        }
    _A_in = _A_setup()

    def _B_setup():
        B, S, D, H = 1, 2048, 512, 32
        Dh = D // H
        return {
            "x": _w((lambda *s: torch.randn(*s, dtype=torch.bfloat16) * 0.1)(B, S, D)),
            "wqkv": _w((lambda *s: torch.randn(*s, dtype=torch.bfloat16) * 0.8)(D, 3 * D)),
            "w_phi": _w((lambda *s: torch.randn(*s, dtype=torch.bfloat16) * 0.8)(H, Dh, Dh) * (Dh ** -0.5)),
            "wo": _w((lambda *s: torch.randn(*s, dtype=torch.bfloat16) * 0.1)(D, D)),
        }
    _B_in = _B_setup()

    return {
        "A_x": _A_in["x"],
        "A_wqkv": _A_in["wqkv"],
        "A_wo": _A_in["wo"],
        "B_x": _B_in["x"],
        "B_wqkv": _B_in["wqkv"],
        "B_w_phi": _B_in["w_phi"],
        "B_wo": _B_in["wo"],
    }

def reference(A_x, A_wqkv, A_wo, B_x, B_wqkv, B_w_phi, B_wo):
    def _A_ref(x, wqkv, wo):
        B, S, D = x.shape
        H = 32; Dh = D // H
        qkv = (lambda x, *d: x.permute(*d))((x @ wqkv).reshape(B, S, 3, H, Dh), 2, 0, 3, 1, 4)
        q, k, v = qkv[0], qkv[1], qkv[2]
        phi = lambda t: torch.where(t > 0, t + 1, torch.exp(t)) + 1e-6
        pq, pk = phi(q), phi(k)
        kv = torch.einsum("bhsd,bhse->bhde", pk, v)
        z = torch.einsum("bhsd->bhd", pk)
        num = torch.einsum("bhqd,bhde->bhqe", pq, kv)
        den = torch.einsum("bhqd,bhd->bhq", pq, z)[..., None] + 1e-6
        o = num / den
        return (lambda x, *d: x.permute(*d))(o, 0, 2, 1, 3).reshape(B, S, D) @ wo

    def _B_ref(x, wqkv, w_phi, wo):
        B, S, D = x.shape
        H = 32; Dh = D // H
        qkv = (lambda x, *d: x.permute(*d))((x @ wqkv).reshape(B, S, 3, H, Dh), 2, 0, 3, 1, 4)
        q, k, v = qkv[0], qkv[1], qkv[2]
        pq = torch.einsum("bhsd,hdf->bhsf", q, w_phi)
        pk = torch.einsum("bhsd,hdf->bhsf", k, w_phi)
        phi_q = torch.concatenate([_softmax(pq, axis=-1), _softmax(-pq, axis=-1)], axis=-1)
        phi_k = torch.concatenate([_softmax(pk, axis=-1), _softmax(-pk, axis=-1)], axis=-1)
        kv = torch.einsum("bhsf,bhsd->bhfd", phi_k, v)
        z  = torch.einsum("bhsf->bhf", phi_k)
        num = torch.einsum("bhqf,bhfd->bhqd", phi_q, kv)
        den = torch.einsum("bhqf,bhf->bhq", phi_q, z)[..., None] + 1e-6
        o = num / den
        return (lambda x, *d: x.permute(*d))(o, 0, 2, 1, 3).reshape(B, S, D) @ wo

    x = A_x
    x = x + _A_ref(_layernorm(x, axis=-1), A_wqkv, A_wo)
    x = x + _B_ref(_layernorm(x, axis=-1), B_wqkv, B_w_phi, B_wo)
    x = x + _A_ref(_layernorm(x, axis=-1), A_wqkv, A_wo)
    x = x + _B_ref(_layernorm(x, axis=-1), B_wqkv, B_w_phi, B_wo)
    return x
```

```python
import re

REG_RE = re.compile(r"^-?(?:abs\()?([vas])(?:(\d+)|\[(\d+):(\d+)\])\)?$")


def regs_of(op):
    op = op.strip()
    m = REG_RE.match(op)
    if m:
        k = m.group(1)
        if m.group(2) is not None:
            return {(k, int(m.group(2)))}
        return {(k, i) for i in range(int(m.group(3)), int(m.group(4)) + 1)}
    if op in ("vcc", "vcc_lo", "vcc_hi"):
        return {("x", "vcc")}
    if op in ("exec", "exec_lo", "exec_hi"):
        return {("x", "exec")}
    if op == "m0":
        return {("x", "m0")}
    return set()


TRANS = ("v_exp_f32", "v_log_f32", "v_rcp_f32", "v_rsq_f32", "v_sqrt_f32", "v_sin_f32", "v_cos_f32")


class Ins:
    def __init__(self, text):
        self.text = text
        self.label = None
        t = text.split(";")[0].strip()
        if t.endswith(":"):
            self.label = t[:-1]
            self.op = None
            return
        if t.startswith(".") or not t:
            self.op = None
            return
        parts = t.split(None, 1)
        self.op = op = parts[0]
        rest = parts[1] if len(parts) > 1 else ""
        ops = [o.strip() for o in re.split(r",(?![^\[]*\])(?![^(]*\))", rest)] if rest else []
        self.mods = ""
        if ops:
            last = ops[-1].split(None, 1)
            ops[-1] = last[0]
            self.mods = last[1] if len(last) > 1 else ""
        self.ops = ops
        R = [regs_of(o) for o in ops]
        self.w, self.r = set(), set()
        self.kind = "other"
        self.A = self.B = self.C = set()
        self.passes = 0
        self.store_data = set()
        U = lambda l: set().union(*l) if l else set()
        if op.startswith("v_mfma"):
            self.kind = "mfma"
            self.w = R[0]
            self.A, self.B, self.C = R[1], R[2], R[3]
            self.r = R[1] | R[2] | R[3]
            self.passes = 8 if "32x32" in op else 4
        elif op.startswith("v_"):
            self.kind = "valu"
            self.w = set(R[0])
            self.r = U(R[1:])
            if op.startswith(("v_dot2c", "v_fmac", "v_writelane")):
                self.r |= R[0]
            if op.startswith("v_permlane"):
                self.w = R[0] | R[1]
                self.r = R[0] | R[1]
            if op.startswith("v_cndmask") and len(ops) == 3:
                self.r.add(("x", "vcc"))
        elif op.startswith("ds_"):
            self.kind = "ds"
            if op.startswith("ds_read"):
                self.w = R[0]
                self.r = U(R[1:])
            else:
                self.r = U(R)
        elif op.startswith(("buffer_", "global_")):
            self.kind = "vmem"
            if "load" in op and " lds" not in " " + self.mods and "_lds_" not in op:
                self.w = R[0]
                self.r = U(R[1:])
            else:
                self.r = U(R)
                if "load" in op:
                    self.r.add(("x", "m0"))
                    self.kind = "vmem"
                    self.ldsdma = True
                elif op.endswith(("x3", "x4")):
                    self.store_data = R[0] if op.startswith("buffer_") else R[1]
        elif op.startswith("s_"):
            self.kind = "salu"
            if op.startswith(("s_cmp", "s_bitcmp", "s_cbranch", "s_branch", "s_waitcnt", "s_nop", "s_barrier", "s_endpgm", "s_sleep", "s_setprio")):
                self.r = U(R)
            else:
                self.w = set(R[0]) if R else set()
                self.r = U(R[1:])
                if "saveexec" in op:
                    self.w.add(("x", "exec"))
        self.trans = op.startswith(TRANS)
        self.dpp = "row_" in self.mods or "quad_perm" in self.mods or op.endswith("_dpp")
        self.dot = op.startswith("v_dot")

    def states(self):
        if self.op is None:
            return 0
        if self.op == "s_nop":
            return int(self.ops[0], 0) + 1
        return 1


def need(p, c):
    n = 0
    vw = {x for x in p.w if x[0] in "va"}
    sw = {x for x in p.w if x[0] == "s" or x == ("x", "vcc")}
    if p.kind == "valu":
        if c.kind == "mfma" and vw & c.r:
            n = max(n, 3 if p.dot else 2)
        if c.kind == "valu":
            if p.trans and not c.trans and vw & c.r:
                n = max(n, 1)
            if p.trans and c.trans and vw & c.r:
                n = max(n, 1)
            if (c.op.startswith("v_permlane") or c.dpp) and vw & c.r:
                n = max(n, 2)
            if c.op.startswith(("v_readlane", "v_readfirstlane")) and vw & c.r:
                n = max(n, 1)
            if sw & c.r:
                n = max(n, 4 if c.op.startswith(("v_readlane", "v_writelane")) else 2)
            if p.dot and (vw & (c.r | c.w)):
                same_c = c.op == p.op and not (vw & set().union(*[regs_of(o) for o in c.ops[1:3]]))
                if not same_c:
                    n = max(n, 3)
        if p.dot and c.kind in ("ds", "vmem") and vw & c.r:
            n = max(n, 3)
        if p.trans and c.kind in ("ds", "vmem") and vw & c.r:
            n = max(n, 1)
        if c.kind == "vmem" and sw & c.r:
            n = max(n, 5)
        if c.kind == "salu" and sw & c.r:
            n = max(n, 1)
        if c.op in ("s_cbranch_vccz", "s_cbranch_vccnz") and ("x", "vcc") in p.w:
            n = max(n, 1)
    if p.kind == "mfma":
        big = {4: 8, 8: 12}[p.passes]
        if c.kind == "mfma":
            if p.w & (c.A | c.B):
                n = max(n, big)
            if p.w & c.C:
                if not (p.w == c.C and p.passes == c.passes):
                    n = max(n, {4: 6, 8: 10}[p.passes])
            elif p.w & c.w:
                n = max(n, {4: 6, 8: 10}[p.passes])
        elif c.kind in ("valu", "ds", "vmem"):
            if p.w & (c.r | c.w):
                n = max(n, big)
            if c.kind == "valu" and p.C & c.w:
                n = max(n, {4: 3, 8: 7}[p.passes])
    if p.store_data and c.kind in ("valu", "ds", "vmem", "mfma") and p.store_data & c.w:
        n = max(n, 2)
    if p.kind == "salu" and ("x", "m0") in p.w and getattr(c, "ldsdma", False):
        n = max(n, 1)
    return n


class Asm:
    def __init__(self):
        self.ins = []
        self.tail = []
        self.vm = []
        self.lg = []
        self.nlab = 0

    def __call__(self, text, vm=None, lg=None):
        for line in text.strip().split("\n"):
            line = line.strip()
            if not line:
                continue
            i = Ins(line)
            self.ins.append(i)
            if i.op is None:
                continue
            if i.kind == "vmem":
                self.vm.append(vm)
            elif i.kind == "ds":
                self.lg.append(lg)
        return self

    def label(self, name):
        self.ins.append(Ins(name + ":"))

    def newlabel(self, base):
        self.nlab += 1
        return f"L_{base}_{self.nlab}"

    @staticmethod
    def _cnt(q, tag, mx):
        idx = [i for i, t in enumerate(q) if t == tag]
        if not idx:
            return None
        n = len(q) - 1 - idx[-1]
        n = min(n, mx)
        del q[: len(q) - n]
        return n

    def wait(self, vm=None, lg=None):
        parts = []
        if vm is not None:
            if vm == 0:
                self.vm.clear()
                parts.append("vmcnt(0)")
            else:
                n = self._cnt(self.vm, vm, 63)
                if n is not None:
                    parts.append(f"vmcnt({n})")
        if lg is not None:
            if lg == 0:
                self.lg.clear()
                parts.append("lgkmcnt(0)")
            else:
                n = self._cnt(self.lg, lg, 15)
                if n is not None:
                    parts.append(f"lgkmcnt({n})")
        if parts:
            self.ins.append(Ins("s_waitcnt " + " ".join(parts)))

    def raw(self, ins_list):
        self.ins.extend(ins_list)

    def pad_hazards(self):
        added = 0
        while True:
            ins = self.ins
            labels = {x.label: i for i, x in enumerate(ins) if x.label}
            jumps = {}
            for i, x in enumerate(ins):
                if x.op and x.op.startswith(("s_cbranch", "s_branch")):
                    jumps.setdefault(labels[x.ops[0]], []).append(i)
            fix = None
            for ci, c in enumerate(ins):
                if c.op is None or c.kind == "other":
                    continue
                short = 0
                stack = [(ci, 0)]
                seen = {}
                while stack:
                    i, d = stack.pop()
                    preds = []
                    if i > 0 and not (ins[i - 1].op in ("s_branch", "s_endpgm")):
                        preds.append(i - 1)
                    if ins[i].label:
                        preds += jumps.get(i, [])
                    for pi in preds:
                        p = ins[pi]
                        if p.op is not None:
                            k = need(p, c)
                            if k > d:
                                short = max(short, k - d)
                        nd = d + p.states()
                        if nd < 12 and seen.get(pi, 99) > nd:
                            seen[pi] = nd
                            stack.append((pi, nd))
                if short:
                    fix = (ci, short)
                    ins.insert(ci, Ins(f"s_nop {short - 1}"))
                    added += short
                    break
            if fix is None:
                return added

    def text(self):
        out = []
        for x in self.ins:
            out.append(x.text if (x.label or x.op is None) else "    " + x.text)
        return "\n".join(out) + "\n"
```

```python
import sys
import contextlib
from asmlib import Asm, Ins

NAME = "interleave_layers__linear_attn_block__linear_kernel_hedgehog__prompt"

CFG = dict(
    ts=0,
    dump=None,
    n1=8,
    wb=(0, 8, 8),
    pl_step=32,
    force_global=0,
    stop=None,
)

FLAGX, FLAGO, HELLO, STATS = 0x1000, 0x3000, 0x5000, 0x10000
KVP = [0x30000, 0x78000, 0x108000, 0x150000]
TILE = 0x24000
OBUF = 0x200000
DBG = 0x400000
WS_SIZE = 0x8000000
L_P, L_WQ, L_STG = 0x0, [0x10000, 0x18000], 0x20000
L_KVF = 0x26000
L_WPF = L_KVF + 4 * 528
L_ZB = L_WPF + 2 * 528
L_CSP = 0x26D00
L_SEL = 0x27900
LDS_SIZE = 0x28000
XF, AK, AV, RG, LG, XR, PK = 0, 128, 144, 160, 192, 208, 224
vSTR, vSTR2, vPST, vZST, vKFW, vZW, vZR, vOST = range(184, 192)
vL16, vWRD, vSTW, vKFR, vS, vRS, vM, vXST, vSST, vSLD, vPOLL, vWOR, vWOW, vWKW, vCSR, vTS = range(240, 256)
A_WKV, A_WO = [0, 64], [128, 192]
sID = 2
sPX, sPWA, sPWOA, sPBX, sPWB, sPPHI, sPWOB, sPOUT, sPDBG, sPWS = range(4, 24, 2)
sWS, sOUT, sTMP = 24, 28, 32
(sW, sC, sR, sXLD, sSTLD, sFXP, sOST, sFOS, sOLD, sFOP, sXST, sSTST, sFXS, sKVT, sTAG, sMODE, sPASS,
 sEP, sXCC, sT0, sT1, sT2, sT3, sCNT, sWOFF, sQOFF, sOOFF, sHEL, sLN2, sLN2b, sDELTA, sFIN) = range(36, 68)
sHI = 68
sSAVE = 70
sTSA = 72
sTSI = 74
sGW = 75
sLAY = 76
assert sLN2 % 2 == 0

LOG2E = 0x3FB8AA3B
LN2 = 0x3F317218
DELTA = 0x35C1A4C3
import struct
def f2u(x): return struct.unpack("<I", struct.pack("<f", x))[0]
DELTA = f2u(1e-6 * 1.4426950408889634)


def v(a, n=1): return f"v{a}" if n == 1 else f"v[{a}:{a + n - 1}]"
def ar(a, n=1): return f"a{a}" if n == 1 else f"a[{a}:{a + n - 1}]"
def s(a, n=1): return f"s{a}" if n == 1 else f"s[{a}:{a + n - 1}]"


class Gen:
    def __init__(self, **kw):
        self.cfg = dict(CFG)
        self.cfg.update(kw)
        self.a = Asm()
        self.tail = []
        self.nts = 0
        self.tsnames = []

    @contextlib.contextmanager
    def uncounted(self):
        a = self.a
        vm, lg = list(a.vm), list(a.lg)
        yield
        a.vm, a.lg = vm, lg

    @contextlib.contextmanager
    def only_if(self, cmp):
        a = self.a
        l = a.newlabel("skip")
        a(cmp)
        a(f"s_cbranch_scc0 {l}")
        with self.uncounted():
            yield
        a.label(l)

    def pass1(self):
        return self.only_if(f"s_cmp_eq_u32 {s(sPASS)}, 0")

    def moded(self, lines, tag=None):
        a = self.a
        lg, lj = a.newlabel("glob"), a.newlabel("join")
        a(f"s_cmp_eq_u32 {s(sMODE)}, 0")
        a(f"s_cbranch_scc0 {lg}")
        for l in lines:
            a(l, vm=tag)
        a.label(lj)
        t = [Ins(lg + ":")] + [Ins(l + (" sc1" if l.startswith("buffer_store") else "")) for l in lines] + [Ins(f"s_branch {lj}")]
        self.tail += t

    def srd_tmp(self, ptr, size):
        a = self.a
        a(f"s_mov_b32 {s(sTMP)}, {s(ptr)}")
        a(f"s_mov_b32 {s(sTMP + 1)}, {s(ptr + 1)}")
        a(f"s_mov_b32 {s(sTMP + 2)}, {size}")

    def ts(self, name):
        if not self.cfg["ts"]:
            return
        a = self.a
        self.tsnames.append(name)
        a(f"s_memtime {s(sTSA, 2)}")
        a("s_waitcnt lgkmcnt(0)")
        a.lg.clear()
        a(f"s_mov_b32 m0, {s(sTSI)}")
        a(f"v_writelane_b32 {v(vTS)}, {s(sTSA)}, m0")
        a(f"s_add_u32 {s(sTSI)}, {s(sTSI)}, 1")

    def dump(self, point, regs, tmp):
        d = self.cfg["dump"]
        if not d or d[0] != point:
            return
        a = self.a
        with self.only_if(f"s_cmp_eq_u32 {s(sLAY)}, {d[1]}"):
            a("s_waitcnt vmcnt(0) lgkmcnt(0)")
            a("s_nop 15")
            a(f"v_lshrrev_b32 {v(tmp)}, 2, {v(vL16)}")
            a(f"s_mul_i32 {s(sT0)}, {s(sGW)}, {64 * 256}")
            a(f"s_add_u32 {s(sT0)}, {s(sT0)}, {DBG}")
            for i, r in enumerate(regs):
                a(f"buffer_store_dword {v(r)}, {v(tmp)}, {s(sWS, 4)}, {s(sT0)} offen")
                a(f"s_add_u32 {s(sT0)}, {s(sT0)}, 256")
            a("s_waitcnt vmcnt(0)")

    def poll(self, voff, soff, tmp):
        a = self.a
        l = a.newlabel("poll")
        a(f"s_mov_b32 {s(sCNT)}, 0x400000")
        a.label(l)
        a(f"buffer_load_dword {v(tmp)}, {v(voff)}, {s(sWS, 4)}, {s(soff)} offen sc1")
        a(f"s_sub_u32 {s(sCNT)}, {s(sCNT)}, 1")
        a("s_cbranch_scc1 L_timeout")
        a.wait(vm=0)
        a(f"v_cmp_ne_u32 vcc, {s(sTAG)}, {v(tmp)}")
        a(f"s_cbranch_vccnz {l}")

    def flag(self, soff, tmp):
        a = self.a
        a(f"v_mov_b32 {v(tmp)}, {s(sTAG)}")
        a.wait(vm=0)
        a("s_mov_b64 exec, 1")
        self.moded([f"buffer_store_dword {v(tmp)}, off, {s(sWS, 4)}, {s(soff)}"])
        a("s_mov_b64 exec, -1")

    def w_voff(self, t):
        a = self.a
        a(f"v_lshrrev_b32 {v(t)}, 6, {v(vL16)}")
        a(f"v_mul_u32_u24 {v(t)}, {3072 - 64}, {v(t)}")
        a(f"v_add_u32 {v(t)}, {v(t)}, {v(vL16)}")

    def load_wkv(self, T, lo, hi, t, setup=True):
        a = self.a
        if lo >= hi:
            return
        if setup:
            self.srd_tmp([sPWA, sPWB][T], 512 * 3072)
            self.w_voff(t)
        for i in range(lo, hi):
            a(f"s_add_u32 {s(sT0)}, {s(sWOFF)}, {i * 16 * 3072}")
            a(f"buffer_load_dwordx4 {ar(A_WKV[T] + 4 * i, 4)}, {v(t)}, {s(sTMP, 4)}, {s(sT0)} offen", vm=f"wkv{i}")

    def load_wq(self, T, t):
        a = self.a
        self.srd_tmp([sPWA, sPWB][T], 512 * 3072)
        self.w_voff(t)
        a(f"s_lshl_b32 {s(sT1)}, {s(sW)}, 13")
        for i in range(8):
            a(f"s_add_u32 m0, {s(sT1)}, {L_WQ[T] + i * 1024}")
            a(f"s_add_u32 {s(sT0)}, {s(sQOFF)}, {i * 16 * 3072}")
            a(f"buffer_load_dwordx4 {v(t)}, {s(sTMP, 4)}, {s(sT0)} offen lds", vm="wq")

    def load_wo(self, T, t):
        a = self.a
        self.srd_tmp([sPWOA, sPWOB][T], 512 * 1024)
        a(f"v_lshrrev_b32 {v(t)}, 7, {v(vL16)}")
        a(f"v_mul_u32_u24 {v(t)}, {1024 - 128}, {v(t)}")
        a(f"v_add_u32 {v(t)}, {v(t)}, {v(vL16)}")
        for i in range(16):
            a(f"s_add_u32 {s(sT0)}, {s(sOOFF)}, {i * 8 * 1024}")
            a(f"buffer_load_dwordx4 {ar(A_WO[T] + 4 * i, 4)}, {v(t)}, {s(sTMP, 4)}, {s(sT0)} offen", vm="wo")

    def put_wkv(self, T, lo, hi, waits=False):
        for i in range(lo, hi):
            if waits:
                self.a.wait(vm=f"wkv{i}")
            self.a(f"ds_write_b128 {v(vWKW)}, {ar(A_WKV[T] + 4 * i, 4)} offset:{i * 1024}")

    def put_wo(self, T):
        for i in range(16):
            self.a(f"ds_write_b128 {v(vWOW)}, {ar(A_WO[T] + 4 * i, 4)} offset:{(i >> 2) * 1024 + (i & 3) * 128}")

    @staticmethod
    def woff(j, u):
        return (j >> 2) * 4096 + u * 1024 + (j & 3) * 256

    def colsum(self, addr, nsteps, regs, acc):
        a = self.a
        a(f"v_mov_b32 {v(acc)}, 0")
        for j in range(nsteps):
            for u in range(2):
                a(f"ds_read_b64_tr_b16 {v(regs[j] + 2 * u, 2)}, {v(addr)} offset:{self.woff(j, u)}", lg=f"cs{j}")
        for j in range(nsteps):
            a.wait(lg=f"cs{j}")
            for d in range(4):
                a(f"v_dot2c_f32_bf16 {v(acc)}, {s(sT3)}, {v(regs[j] + d)}")

    def cs_kv(self, T):
        a = self.a
        t, acc = PK, PK + 1
        a(f"s_mov_b32 {s(sT3)}, 0x3f803f80")
        a(f"v_sub_u32 {v(t)}, {v(vWKW)}, {v(vL16)}")
        a(f"v_add_u32 {v(t)}, {v(t)}, {v(vWRD)}")
        a.wait(lg=0)
        regs = [AK + 4 * i for i in range(14)] + [PK + 4, PK + 8]
        self.colsum(t, 16, regs, acc)
        a(f"s_and_b32 {s(sT0)}, {s(sW)}, 1")
        a(f"s_lshl_b32 {s(sT0)}, {s(sT0)}, 9")
        a(f"s_and_b32 {s(sT1)}, {s(sW)}, 2")
        a(f"s_lshl_b32 {s(sT1)}, {s(sT1)}, 2")
        a(f"s_add_u32 {s(sT0)}, {s(sT0)}, {s(sT1)}")
        a(f"v_lshrrev_b32 {v(t)}, 9, {v(vL16)}")
        a(f"v_lshl_add_u32 {v(t)}, {v(t)}, 2, {v(vCSR)}")
        a(f"v_add_u32 {v(t)}, {s(sT0)}, {v(t)}")
        a(f"ds_write_b32 {v(t)}, {v(acc)} offset:{T * 1536}")

    def cs_q(self, T):
        a = self.a
        t, acc = AV, AV + 1
        a(f"s_mov_b32 {s(sT3)}, 0x3f803f80")
        a(f"s_lshl_b32 {s(sT0)}, {s(sW)}, 13")
        a(f"s_add_u32 {s(sT0)}, {s(sT0)}, {L_WQ[T]}")
        a(f"v_add_u32 {v(t)}, {s(sT0)}, {v(vWRD)}")
        regs = [LG + 4 * i for i in range(4)] + [PK + 4 * i for i in range(4)]
        self.colsum(t, 8, regs, acc)
        a(f"v_mov_b32 {v(t)}, {v(acc)}")
        a(f"v_permlane32_swap_b32 {v(t)}, {v(acc)}")
        a(f"v_add_f32 {v(acc)}, {v(acc)}, {v(t)}")
        a(f"s_lshl_b32 {s(sT0)}, {s(sW)}, 2")
        a(f"v_add_u32 {v(t)}, {s(sT0)}, {v(vCSR)}")
        a(f"ds_write_b32 {v(t)}, {v(acc)} offset:{T * 1536 + 1024}")

    @staticmethod
    def cs_pack(src, dst):
        return [
            f"v_pk_add_f32 {v(src, 2)}, {v(src, 2)}, {v(src + 2, 2)}",
            f"v_add_f32 {v(src)}, {v(src)}, {v(src + 1)}",
            f"v_cvt_pk_bf16_f32 {v(src + 1)}, {v(src)}, {v(src)}",
            f"v_and_b32 {v(src + 1)}, 0xffff0000, {v(src + 1)}",
            f"v_sub_f32 {v(src)}, {v(src)}, {v(src + 1)}",
            f"v_cvt_pk_bf16_f32 {v(dst)}, {v(src + 1)}, {v(src)}",
        ]

    def x_publish(self):
        a = self.a
        X, t = LG, LG + 8
        for i in range(8):
            a(f"v_cvt_pk_bf16_f32 {v(X + i)}, {v(XR + 2 * i)}, {v(XR + 2 * i + 1)}")
        self.moded([f"buffer_store_dwordx4 {v(X + 4 * sidx, 4)}, {v(vXST)}, {s(sOUT, 4)}, {s(sXST)} offen offset:{sidx * 512}" for sidx in range(2)], tag="xst")
        a(f"v_pk_add_f32 {v(t, 2)}, {v(XR, 2)}, {v(XR + 2, 2)}")
        a(f"v_pk_mul_f32 {v(t + 2, 2)}, {v(XR, 2)}, {v(XR, 2)}")
        a(f"v_pk_fma_f32 {v(t + 2, 2)}, {v(XR + 2, 2)}, {v(XR + 2, 2)}, {v(t + 2, 2)}")
        for i in range(2, 8):
            a(f"v_pk_add_f32 {v(t, 2)}, {v(t, 2)}, {v(XR + 2 * i, 2)}")
            a(f"v_pk_fma_f32 {v(t + 2, 2)}, {v(XR + 2 * i, 2)}, {v(XR + 2 * i, 2)}, {v(t + 2, 2)}")
        a(f"v_add_f32 {v(t)}, {v(t)}, {v(t + 1)}")
        a(f"v_add_f32 {v(t + 2)}, {v(t + 2)}, {v(t + 3)}")
        a(f"v_permlane32_swap_b32 {v(t)}, {v(t + 2)}")
        a(f"v_add_f32 {v(t)}, {v(t)}, {v(t + 2)}")
        a(f"v_mov_b32 {v(t + 1)}, {v(t)}")
        a(f"v_permlane16_swap_b32 {v(t)}, {v(t + 1)}")
        a(f"v_add_f32 {v(t)}, {v(t)}, {v(t + 1)}")
        a("s_mov_b32 exec_lo, 0xffff")
        a("s_mov_b32 exec_hi, 0xffff")
        self.moded([f"buffer_store_dword {v(t)}, {v(vSST)}, {s(sWS, 4)}, {s(sSTST)} offen"], tag="xst")
        a("s_mov_b64 exec, -1")

    def phi_a(self, acc, tmp):
        a = self.a
        for i in range(8):
            a(f"v_pk_mul_f32 {v(acc + 2 * i, 2)}, {v(acc + 2 * i, 2)}, {v(vS, 2)} op_sel_hi:[1,0]")
        for i in range(16):
            a(f"v_exp_f32_e64 {v(tmp + i)}, {v(acc + i)} clamp")
            a(f"v_max_f32 {v(acc + i)}, {s(sDELTA)}, {v(acc + i)}")
        for i in range(8):
            a(f"v_pk_fma_f32 {v(acc + 2 * i, 2)}, {v(acc + 2 * i, 2)}, {s(sLN2, 2)}, {v(tmp + 2 * i, 2)}")
        for i in range(8):
            a(f"v_cvt_pk_bf16_f32 {v(PK + i)}, {v(acc + 2 * i)}, {v(acc + 2 * i + 1)}")

    def logits(self):
        a = self.a
        for i in range(8):
            a(f"v_cvt_pk_bf16_f32 {v(PK + i)}, {v(AK + 2 * i)}, {v(AK + 2 * i + 1)}")
        a.wait(lg="wp")
        a(f"v_mfma_f32_32x32x16_bf16 {v(LG, 16)}, {v(PK + 8, 4)}, {v(PK, 4)}, 0")
        a(f"v_mfma_f32_32x32x16_bf16 {v(LG, 16)}, {v(PK + 12, 4)}, {v(PK + 4, 4)}, {v(LG, 16)}")

    def softmax2(self, t, isq, after_plus=None, after_minus=None):
        a = self.a
        a(f"v_max3_f32 {v(t)}, {v(LG)}, {v(LG + 1)}, {v(LG + 2)}")
        a(f"v_min3_f32 {v(t + 1)}, {v(LG)}, {v(LG + 1)}, {v(LG + 2)}")
        for i in range(3, 15, 2):
            a(f"v_max3_f32 {v(t)}, {v(t)}, {v(LG + i)}, {v(LG + i + 1)}")
            a(f"v_min3_f32 {v(t + 1)}, {v(t + 1)}, {v(LG + i)}, {v(LG + i + 1)}")
        a(f"v_max_f32 {v(t)}, {v(t)}, {v(LG + 15)}")
        a(f"v_min_f32 {v(t + 1)}, {v(t + 1)}, {v(LG + 15)}")
        a(f"v_pk_mul_f32 {v(t, 2)}, {v(t, 2)}, {v(vS, 2)} op_sel_hi:[1,0]")
        for sg, E in ((0, AK), (1, LG)):
            for i in range(8):
                if sg == 0:
                    a(f"v_pk_fma_f32 {v(E + 2 * i, 2)}, {v(LG + 2 * i, 2)}, {v(vS, 2)}, {v(t, 2)} op_sel_hi:[1,0,0] neg_lo:[0,0,1] neg_hi:[0,0,1]")
                else:
                    a(f"v_pk_fma_f32 {v(E + 2 * i, 2)}, {v(LG + 2 * i, 2)}, {v(vS, 2)}, {v(t, 2)} op_sel:[0,0,1] op_sel_hi:[1,0,1] neg_lo:[1,0,0] neg_hi:[1,0,0]")
            for i in range(16):
                a(f"v_exp_f32 {v(E + i)}, {v(E + i)}")
            S = t + 2 + 2 * sg
            a(f"v_pk_add_f32 {v(S, 2)}, {v(E, 2)}, {v(E + 2, 2)}")
            for i in range(2, 8):
                a(f"v_pk_add_f32 {v(S, 2)}, {v(S, 2)}, {v(E + 2 * i, 2)}")
            a(f"v_add_f32 {v(S)}, {v(S)}, {v(S + 1)}")
            if not (isq and sg == 0):
                a(f"v_rcp_f32 {v(S)}, {v(S)}")
                if isq:
                    a(f"v_mul_f32 {v(t + 6)}, {f2u(1e-6):#x}, {v(t + 2)}")
                    a(f"v_mul_f32 {v(S)}, {v(S)}, {v(t + 2)}")
                for i in range(8):
                    a(f"v_pk_mul_f32 {v(E + 2 * i, 2)}, {v(E + 2 * i, 2)}, {v(S, 2)} op_sel_hi:[1,0]")
            for i in range(8):
                a(f"v_cvt_pk_bf16_f32 {v(PK + 8 * sg + i)}, {v(E + 2 * i)}, {v(E + 2 * i + 1)}")
            cb = (after_plus, after_minus)[sg]
            if cb:
                cb()

    def layer(self, T):
        a, cfg = self.a, self.cfg
        NT = 2 if T == 0 else 4
        NJ = NT
        skip23 = (lambda: self.only_if(f"s_cmp_lt_u32 {s(sW)}, 2")) if T == 0 else (lambda: self.uncounted())
        a.label(f"L_layer{T}")
        a.vm.clear(); a.lg.clear()
        self.poll(vPOLL, sFXP, LG)
        if T == 0:
            a.label("L_enter")
        self.ts(f"{T}:xpoll")
        ST = LG
        a(f"buffer_load_dwordx4 {v(ST, 4)}, {v(vSLD)}, {s(sWS, 4)}, {s(sSTLD)} offen sc1", vm="st")
        a(f"buffer_load_dwordx4 {v(ST + 4, 4)}, {v(vSLD)}, {s(sWS, 4)}, {s(sSTLD)} offen offset:512 sc1", vm="st")
        for j in range(32):
            if j % 4 == 0:
                a(f"s_add_u32 {s(sT0)}, {s(sXLD)}, {j * 1024}")
            a(f"buffer_load_dwordx4 {v(XF + 4 * j, 4)}, {v(vL16)}, {s(sOUT, 4)}, {s(sT0)} offen offset:{(j % 4) * 1024} sc1", vm=f"x{j}")
        with self.pass1():
            self.cs_kv(T)
        a.wait(lg=0)
        a("s_barrier")
        self.ts(f"{T}:bar1")
        CS = LG + 8
        CSA, MB = PK, PK + 2
        a(f"ds_read_b128 {v(CS, 4)}, {v(vCSR)} offset:{T * 1536}", lg="cs")
        a(f"ds_read_b128 {v(CS + 4, 4)}, {v(vCSR)} offset:{T * 1536 + 512}", lg="cs")
        if T == 1:
            for i in range(2):
                a(f"ds_read_b128 {v(PK + 8 + 4 * i, 4)}, {v(vKFR)} offset:{L_WPF - L_KVF + 528 * i}", lg="wp")
        D = 3

        def rd(j, p):
            for u in range(2):
                a(f"ds_read_b64_tr_b16 {v(RG + (j % D) * 8 + 4 * p + 2 * u, 2)}, {v(vWRD)} offset:{p * 32768 + self.woff(j, u)}", lg=f"w{j}")
        for j in range(D):
            rd(j, 0); rd(j, 1)
        t, u_ = ST, ST + 1
        fill = [
            f"v_pk_add_f32 {v(ST, 2)}, {v(ST, 2)}, {v(ST + 2, 2)}",
            f"v_pk_add_f32 {v(ST + 4, 2)}, {v(ST + 4, 2)}, {v(ST + 6, 2)}",
            f"v_pk_add_f32 {v(ST, 2)}, {v(ST, 2)}, {v(ST + 4, 2)}",
            f"v_add_f32 {v(t)}, {v(ST)}, {v(ST + 1)}",
            f"v_mul_f32 {v(t)}, {f2u(1 / 512):#x}, {v(t)}",
            f"v_mov_b32 {v(u_)}, {v(t)}",
            f"v_permlane32_swap_b32 {v(t)}, {v(u_)}",
            f"v_fma_f32 {v(u_)}, -{v(t)}, {v(t)}, {v(u_)}",
            f"v_max_f32 {v(u_)}, 0, {v(u_)}",
            f"v_cvt_pk_bf16_f32 {v(vM)}, -{v(t)}, -{v(t)}",
            f"v_cvt_pk_bf16_f32 {v(u_)}, {v(u_)}, {v(u_)}",
            f"v_and_b32 {v(u_)}, 0xffff0000, {v(u_)}",
            f"v_add_f32 {v(u_)}, {f2u(1e-5):#x}, {v(u_)}",
            f"v_cvt_pk_bf16_f32 {v(u_)}, {v(u_)}, {v(u_)}",
            f"v_and_b32 {v(u_)}, 0xffff0000, {v(u_)}",
            f"v_sqrt_f32 {v(u_)}, {v(u_)}",
            f"v_cndmask_b32 {v(vM)}, {v(vM)}, 0, {s(sHI, 2)}",
            f"v_cvt_pk_bf16_f32 {v(u_)}, {v(u_)}, {v(u_)}",
            f"v_and_b32 {v(u_)}, 0xffff0000, {v(u_)}",
            f"v_rcp_f32 {v(vRS)}, {v(u_)}",
            f"v_mov_b32 {v(MB)}, {v(vM)}",
            f"v_mul_f32 {v(vS)}, {LOG2E:#x}, {v(vRS)}",
            f"v_mov_b32 {v(MB + 1)}, 0",
            f"v_mov_b32 {v(MB + 2)}, 0",
            f"v_mov_b32 {v(MB + 3)}, {v(vM)}",
        ] + self.cs_pack(CS, CSA) + self.cs_pack(CS + 4, CSA + 1)
        for j in range(32):
            a.wait(vm=f"x{j}", lg=f"w{j}")
            for p, acc in ((0, AK), (1, AV)):
                c = v(acc, 16) if j else "0"
                a(f"v_mfma_f32_32x32x16_bf16 {v(acc, 16)}, {v(RG + (j % D) * 8 + 4 * p, 4)}, {v(XF + 4 * j, 4)}, {c}")
                if j + D < 32:
                    rd(j + D, p)
                if fill:
                    a(fill.pop(0))
        assert not fill
        a(f"v_mfma_f32_32x32x8_bf16 {v(AK, 16)}, {v(CSA, 2)}, {v(MB, 2)}, {v(AK, 16)}")
        a(f"v_mfma_f32_32x32x8_bf16 {v(AV, 16)}, {v(CSA, 2)}, {v(MB + 2, 2)}, {v(AV, 16)}")
        HL = RG + 23
        with self.pass1():
            if T == 0:
                a(f"buffer_load_dword {v(HL)}, {v(vPOLL)}, {s(sWS, 4)}, {s(sHEL)} offen sc1")
            self.load_wq(T, RG + 22)
            self.load_wo(T, RG + 22)
            if T == 0:
                self.load_wkv(1, 0, cfg["wb"][0], RG + 22)
        self.ts(f"{T}:kvgemm")
        self.dump("kv", list(range(AK, AK + 32)) + [vS, vRS, vM], RG)

        def v_path():
            for i in range(8):
                a(f"v_pk_mul_f32 {v(AV + 2 * i, 2)}, {v(AV + 2 * i, 2)}, {v(vS, 2)} op_sel:[0,1]")
            for i in range(8):
                a(f"v_cvt_pk_bf16_f32 {v(AV + i)}, {v(AV + 2 * i)}, {v(AV + 2 * i + 1)}")
            for i in range(2):
                a(f"ds_write_b128 {v(vSTW)}, {v(AV + 4 * i, 4)} offset:{0x4000 + 128 * i}")

        def stage(sg):
            for i in range(2):
                a(f"ds_write_b128 {v(vSTW)}, {v(PK + 8 * sg + 4 * i, 4)} offset:{sg * 8192 + 128 * i}")
        if T == 0:
            self.phi_a(AK, LG)
            stage(0)
            v_path()
        else:
            self.logits()
            v_path()
            self.softmax2(RG, False, lambda: stage(0), lambda: stage(1))
        self.dump("pk", list(range(PK, PK + 16)) + list(range(AV, AV + 8)), RG)
        a.wait(lg=0)
        a("s_barrier")
        self.ts(f"{T}:bar2")
        with skip23():
            ONE, DK, DZ, PB = AV, AV + 4, AV + 8, AV + 12
            for st in range(4):
                for u in range(2):
                    a(f"ds_read_b64_tr_b16 {v(LG + 4 * st + 2 * u, 2)}, {v(vSTR)} offset:{st * 1024 + u * 512}", lg=f"p{st}")
                for u in range(2):
                    a(f"ds_read_b64_tr_b16 {v(PK + 4 * st + 2 * u, 2)}, {v(vSTR2)} offset:{st * 1024 + u * 512}", lg=f"p{st}")
            for i in range(4):
                a(f"v_mov_b32 {v(ONE + i)}, 0x3f803f80")
            for st in range(4):
                a.wait(lg=f"p{st}")
                a(f"v_mfma_f32_16x16x32_bf16 {v(DK, 4)}, {v(LG + 4 * st, 4)}, {v(PK + 4 * st, 4)}, {v(DK, 4) if st else 0}")
                a(f"v_mfma_f32_16x16x32_bf16 {v(DZ, 4)}, {v(LG + 4 * st, 4)}, {v(ONE, 4)}, {v(DZ, 4) if st else 0}")
            for i in range(2):
                a(f"v_cvt_pk_bf16_f32 {v(PB + i)}, {v(DK + 2 * i)}, {v(DK + 2 * i + 1)}")
            for i in range(2):
                a(f"v_min_u32 {v(PB + 2 + i)}, -2, {v(PB + i)}")
                a(f"v_min_u32 {v(PB + i)}, -2, {v(PB + i)}")
            for i in range(4):
                a(f"v_min_u32 {v(DZ + i)}, -2, {v(DZ + i)}")
            for i in range(2):
                a(f"v_permlane16_swap_b32 {v(PB + i)}, {v(PB + 2 + i)}")
            a("s_mov_b32 exec_lo, 0xffff")
            a("s_mov_b32 exec_hi, 0xffff")
            a(f"buffer_store_dwordx4 {v(PB, 4)}, {v(vPST)}, {s(sWS, 4)}, {s(sKVT)} offen sc1")
            a("s_mov_b32 exec_lo, 0x10001")
            a("s_mov_b32 exec_hi, 0x10001")
            a(f"buffer_store_dwordx4 {v(DZ, 4)}, {v(vZST)}, {s(sWS, 4)}, {s(sKVT)} offen sc1")
            a("s_mov_b64 exec, -1")
        self.ts(f"{T}:publish")
        with self.pass1():
            a(f"s_waitcnt vmcnt({16 + (cfg['wb'][0] if T == 0 else 0)})")
            self.cs_q(T)
            if T == 0:
                l = a.newlabel("hello")
                a(f"s_or_b32 {s(sT2)}, {s(sTAG)}, 0xf0")
                a(f"v_cmp_ne_u32 vcc, {s(sT2)}, {v(HL)}")
                a(f"s_cbranch_vccz {l}")
                a(f"s_mov_b32 {s(sT1)}, {s(sTAG)}")
                a(f"s_mov_b32 {s(sTAG)}, {s(sT2)}")
                self.poll(vPOLL, sHEL, HL)
                a(f"s_mov_b32 {s(sTAG)}, {s(sT1)}")
                a.label(l)
            a("s_waitcnt lgkmcnt(0)")
            a("s_barrier")
        QA = LG
        CS, CSA, MB = LG + 4, LG + 8, LG + 10
        a(f"v_add_u32 {v(QA)}, {L_WQ[T]:#x}, {v(vWRD)}")
        a(f"ds_read_b128 {v(CS, 4)}, {v(vCSR)} offset:{T * 1536 + 1024}", lg="cs")
        if T == 1:
            for i in range(2):
                a(f"ds_read_b128 {v(PK + 8 + 4 * i, 4)}, {v(vKFR)} offset:{L_WPF - L_KVF + 528 * i}", lg="wp")
        D = 6

        def rq(j):
            for u in range(2):
                a(f"ds_read_b64_tr_b16 {v(RG + (j % D) * 4 + 2 * u, 2)}, {v(QA)} offset:{self.woff(j, u)}", lg=f"q{j}")

        PL, SEL, DR = 0, 36, 40

        def partial_loads():
            for i in range(8):
                if i % 4 == 0:
                    a(f"s_add_u32 {s(sT0)}, {s(sKVT)}, {i * 1024}")
                a(f"buffer_load_dwordx4 {v(PL + 4 * i, 4)}, {v(vL16)}, {s(sWS, 4)}, {s(sT0)} offen offset:{(i % 4) * 1024} sc1")
            a(f"s_add_u32 {s(sT0)}, {s(sKVT)}, 8192")
            a(f"buffer_load_dwordx4 {v(PL + 32, 4)}, {v(vL16)}, {s(sWS, 4)}, {s(sT0)} offen sc1")
        for j in range(D):
            rq(j)
        fill = self.cs_pack(CS, CSA) + [f"v_mov_b32 {v(CSA + 1)}, 0", f"v_mov_b32 {v(MB)}, {v(vM)}", f"v_mov_b32 {v(MB + 1)}, 0"]
        for j in range(32):
            if j == cfg["pl_step"]:
                with skip23():
                    partial_loads()
            a.wait(lg=f"q{j}")
            a(f"v_mfma_f32_32x32x16_bf16 {v(AK, 16)}, {v(RG + (j % D) * 4, 4)}, {v(XF + 4 * j, 4)}, {v(AK, 16) if j else 0}")
            if j + D < 32:
                rq(j + D)
            if fill:
                a(fill.pop(0))
        a(f"v_mfma_f32_32x32x8_bf16 {v(AK, 16)}, {v(CSA, 2)}, {v(MB, 2)}, {v(AK, 16)}")
        if cfg["pl_step"] >= 32:
            with skip23():
                partial_loads()
        a(f"v_and_b32 {v(SEL)}, 0x1f0, {v(vL16)}")
        a(f"v_add_u32 {v(SEL)}, {L_SEL:#x}, {v(SEL)}")
        a(f"ds_read_b128 {v(SEL, 4)}, {v(SEL)}", lg="sel")
        self.ts(f"{T}:qgemm")
        self.dump("q", list(range(AK, AK + 16)), RG)
        EPS = RG + 6
        if T == 0:
            self.phi_a(AK, LG)
            a(f"v_mov_b32 {v(EPS)}, {f2u(1e-6):#x}")
        else:
            self.logits()
            self.softmax2(RG, True)
        self.dump("pq", list(range(PK, PK + 16)), AV)
        with self.pass1():
            if T == 0:
                l = a.newlabel("w")
                a(f"s_cmp_lt_u32 {s(sW)}, 2")
                a(f"s_cbranch_scc1 {l}")
                a(f"s_waitcnt vmcnt({cfg['wb'][0]})")
                a.label(l)
            a(f"s_waitcnt vmcnt({9 + (cfg['wb'][0] if T == 0 else 0)})")
        self.put_wo(T)
        self.ts(f"{T}:phiq")
        with skip23():
            lchk, lok = a.newlabel("chk"), a.newlabel("ok")
            a(f"s_mov_b32 {s(sCNT)}, 0x100000")
            a.label(lchk)
            a.wait(vm=0)
            m = 44
            a(f"v_max3_u32 {v(m)}, {v(PL)}, {v(PL + 1)}, {v(PL + 2)}")
            for i in range(3, 35, 2):
                a(f"v_max3_u32 {v(m)}, {v(m)}, {v(PL + i)}, {v(PL + i + 1)}")
            a(f"v_max_u32 {v(m)}, {v(m)}, {v(PL + 35)}")
            a(f"v_cmp_eq_u32 vcc, -1, {v(m)}")
            a(f"s_cbranch_vccz {lok}")
            a(f"s_sub_u32 {s(sCNT)}, {s(sCNT)}, 1")
            a("s_cbranch_scc1 L_timeout")
            partial_loads()
            a(f"s_branch {lchk}")
            a.label(lok)
            a.wait(lg="sel")
            for i in range(8):
                a(f"v_mfma_f32_16x16x32_bf16 {v(DR, 4)}, {v(SEL, 4)}, {v(PL + 4 * i, 4)}, {v(DR, 4) if i else 0}")
            Z = PL + 32
            a(f"v_permlane16_swap_b32 {v(Z)}, {v(Z + 1)}")
            a(f"v_permlane16_swap_b32 {v(Z + 2)}, {v(Z + 3)}")
            a(f"v_add_f32 {v(Z)}, {v(Z)}, {v(Z + 1)}")
            a(f"v_add_f32 {v(Z + 2)}, {v(Z + 2)}, {v(Z + 3)}")
            a(f"v_permlane32_swap_b32 {v(Z)}, {v(Z + 2)}")
            a(f"v_add_f32 {v(Z)}, {v(Z)}, {v(Z + 2)}")
            a(f"v_add_f32 {v(Z)}, {v(Z)}, {v(Z)} row_ror:4")
            a(f"v_add_f32 {v(Z)}, {v(Z)}, {v(Z)} row_ror:8")
            a(f"v_cvt_pk_bf16_f32 {v(Z)}, {v(Z)}, {v(Z)}")
            a(f"ds_write_b16 {v(vZW)}, {v(Z)}")
            for i in range(2):
                a(f"v_cvt_pk_bf16_f32 {v(DR + i)}, {v(DR + 2 * i)}, {v(DR + 2 * i + 1)}")
            a(f"ds_write_b64 {v(vKFW)}, {v(DR, 2)}")
        if T == 0:
            with self.pass1():
                self.load_wkv(1, cfg["wb"][0], cfg["wb"][0] + cfg["wb"][1], 44)
        a.wait(lg=0)
        a("s_barrier")
        self.ts(f"{T}:bar3")
        KF, ZF, DEN, O = 0, 16, RG + 6, LG
        for j in range(NJ):
            a(f"ds_read_b128 {v(KF + 4 * j, 4)}, {v(vKFR)} offset:{528 * j}", lg=f"kf{j}")
        for j in range(NJ):
            a(f"ds_read_b128 {v(ZF + 4 * j, 4)}, {v(vZR)} offset:{(j >> 1) * 64 + (j & 1) * 16}", lg=f"zf{j}")
        for j in range(NJ):
            a.wait(lg=f"kf{j}")
            a(f"v_mfma_f32_32x32x16_bf16 {v(AV, 16)}, {v(KF + 4 * j, 4)}, {v(PK + 4 * j, 4)}, {v(AV, 16) if j else 0}")
        for j in range(NJ):
            a.wait(lg=f"zf{j}")
            for d in range(4):
                a(f"v_dot2c_f32_bf16 {v(DEN)}, {v(ZF + 4 * j + d)}, {v(PK + 4 * j + d)}")
        a(f"v_rcp_f32 {v(DEN)}, {v(DEN)}")
        for i in range(8):
            a(f"v_pk_mul_f32 {v(AV + 2 * i, 2)}, {v(AV + 2 * i, 2)}, {v(DEN, 2)} op_sel_hi:[1,0]")
        for i in range(8):
            a(f"v_cvt_pk_bf16_f32 {v(O + i)}, {v(AV + 2 * i)}, {v(AV + 2 * i + 1)}")
        self.moded([f"buffer_store_dwordx4 {v(O + 4 * i, 4)}, {v(vOST)}, {s(sWS, 4)}, {s(sOST)} offen offset:{256 * i}" for i in range(2)])
        self.dump("o", list(range(O, O + 8)), PK)
        WR, DW = 64, 7
        WA = [vWOR, PK, PK + 1, PK + 2]
        for t_ in range(1, 4):
            a(f"v_xor_b32 {v(WA[t_])}, {32 * t_}, {v(vWOR)}")

        def rw(i, t_):
            for u in range(2):
                a(f"ds_read_b64_tr_b16 {v(WR + (i % DW) * 16 + 4 * t_ + 2 * u, 2)}, {v(WA[t_])} offset:{t_ * 16384 + i * 1024 + u * 512}", lg=f"wo{i}_{t_}")
        for i in range(4):
            for t_ in range(4):
                rw(i, t_)
        self.flag(sFOS, PK + 4)
        self.ts(f"{T}:oflag")
        for i in range(4, DW):
            for t_ in range(4):
                rw(i, t_)
        self.poll(vPOLL, sFOP, PK + 5)
        self.ts(f"{T}:opoll")
        for i in range(16):
            if i % 4 == 0:
                a(f"s_add_u32 {s(sT0)}, {s(sOLD)}, {i * 1024}")
            a(f"buffer_load_dwordx4 {v(4 * i, 4)}, {v(vL16)}, {s(sWS, 4)}, {s(sT0)} offen offset:{(i % 4) * 1024} sc1", vm=f"o{i}")
        for i in range(16):
            for t_ in range(4):
                a.wait(vm=f"o{i}", lg=f"wo{i}_{t_}")
                a(f"v_mfma_f32_16x16x32_bf16 {v(XR + 4 * t_, 4)}, {v(WR + (i % DW) * 16 + 4 * t_, 4)}, {v(4 * i, 4)}, {v(XR + 4 * t_, 4)}")
                if i + DW < 16:
                    rw(i + DW, t_)
        if T == 0:
            with self.pass1():
                self.load_wkv(1, cfg["wb"][0] + cfg["wb"][1], 16, PK + 6)
        self.ts(f"{T}:ogemm")
        self.dump("x", list(range(XR, XR + 16)), PK)
        if cfg["stop"] is not None and cfg["stop"] % 2 == T:
            a(f"s_cmp_eq_u32 {s(sLAY)}, {cfg['stop']}")
            a("s_cbranch_scc1 L_final")
        if T == 1:
            a(f"s_cmp_eq_u32 {s(sPASS)}, 1")
            a("s_cbranch_scc1 L_final")
        self.x_publish()
        a("s_barrier")
        n0 = min(8, cfg["wb"][0] + cfg["wb"][1])
        self.put_wkv(1 - T, 0, n0)
        a(f"s_add_u32 {s(sTAG)}, {s(sTAG)}, 16")
        a(f"s_add_u32 {s(sKVT)}, {s(sKVT)}, {KVP[T + 1] - KVP[T]}")
        a(f"s_add_u32 {s(sLAY)}, {s(sLAY)}, 1")
        self.flag(sFXS, PK + 4)
        self.put_wkv(1 - T, n0, 16)
        self.ts(f"{T}:xflag")
        if T == 1:
            a(f"s_mov_b32 {s(sPASS)}, 1")
            a("s_branch L_layer0")

    def prologue(self):
        a, cfg = self.a, self.cfg
        a(f"s_cmp_ge_u32 {s(sID)}, 256")
        a("s_cbranch_scc1 L_end")
        a(f"s_load_dwordx16 {s(4, 16)}, s[0:1], 0")
        a(f"s_load_dwordx4 {s(20, 4)}, s[0:1], 64")
        a(f"s_getpc_b64 {s(sSAVE, 2)}")
        a.label("L_pc")
        a(f"v_min_u32 v1, (L_codeend-L_pc)/128, v0")
        a("v_lshlrev_b32 v1, 7, v1")
        a(f"global_load_dword v2, v1, {s(sSAVE, 2)}")
        if cfg["ts"]:
            a(f"s_mov_b32 {s(sTSI)}, 0")
            a(f"v_mov_b32 {v(vTS)}, 0")
            a(f"s_memrealtime s[78:79]")
        L = 3
        a(f"v_lshrrev_b32 v1, 6, v0")
        a(f"v_and_b32 {v(L)}, 63, v0")
        a(f"v_readfirstlane_b32 {s(sW)}, v1")
        a(f"v_lshlrev_b32 {v(vL16)}, 4, {v(L)}")
        a(f"s_getreg_b32 {s(sXCC)}, hwreg(HW_REG_XCC_ID, 0, 4)")
        a(f"s_lshr_b32 {s(sT0)}, {s(sID)}, 3")
        a(f"s_and_b32 {s(sC)}, {s(sT0)}, 15")
        a(f"s_lshr_b32 {s(sT0)}, {s(sT0)}, 4")
        a(f"s_and_b32 {s(sR)}, {s(sID)}, 7")
        a(f"s_lshl_b32 {s(sR)}, {s(sR)}, 1")
        a(f"s_add_u32 {s(sR)}, {s(sR)}, {s(sT0)}")
        sBP, sSUB, sCG, sB = 80, 81, 82, 83
        a(f"s_lshl_b32 {s(sB)}, {s(sR)}, 2")
        a(f"s_lshr_b32 {s(sT0)}, {s(sC)}, 3")
        a(f"s_lshl_b32 {s(sT0)}, {s(sT0)}, 1")
        a(f"s_lshr_b32 {s(sT1)}, {s(sW)}, 1")
        a(f"s_add_u32 {s(sT0)}, {s(sT0)}, {s(sT1)}")
        a(f"s_add_u32 {s(sBP)}, {s(sB)}, {s(sT0)}")
        a(f"s_add_u32 {s(sB)}, {s(sB)}, {s(sW)}")
        a(f"s_and_b32 {s(sSUB)}, {s(sW)}, 1")
        a(f"s_and_b32 {s(sCG)}, {s(sC)}, 7")
        a(f"s_lshl_b32 {s(sFIN)}, {s(sBP)}, 15")
        a(f"s_lshl_b32 {s(sT0)}, {s(sSUB)}, 14")
        a(f"s_add_u32 {s(sFIN)}, {s(sFIN)}, {s(sT0)}")
        a(f"s_add_u32 {s(sOLD)}, {s(sFIN)}, {OBUF}")
        a(f"s_lshl_b32 {s(sT0)}, {s(sCG)}, 7")
        a(f"s_add_u32 {s(sFIN)}, {s(sFIN)}, {s(sT0)}")
        self.rowmajor_voff(4, 5)
        a(f"s_lshl_b32 {s(sT0)}, {s(sC)}, 6")
        a(f"s_mul_i32 {s(sQOFF)}, {s(sW)}, {128 * 3072}")
        a(f"s_add_u32 {s(sQOFF)}, {s(sQOFF)}, {s(sT0)}")
        a(f"s_mul_i32 {s(sWOFF)}, {s(sT1)}, {256 * 3072}")
        a(f"s_add_u32 {s(sWOFF)}, {s(sWOFF)}, {s(sT0)}")
        a(f"s_lshl_b32 {s(sT0)}, {s(sSUB)}, 10")
        a(f"s_add_u32 {s(sWOFF)}, {s(sWOFF)}, {s(sT0)}")
        a(f"s_add_u32 {s(sWOFF)}, {s(sWOFF)}, 1024")
        self.w_voff(5)
        a(f"s_mov_b32 {s(sTMP + 3)}, 0x20000")
        a(f"s_mov_b32 {s(sWS + 3)}, 0x20000")
        a(f"s_mov_b32 {s(sOUT + 3)}, 0x20000")
        a(f"s_mov_b32 {s(sWS + 2)}, {WS_SIZE:#x}")
        a(f"s_mov_b32 {s(sOUT + 2)}, 0x200000")
        a("s_waitcnt lgkmcnt(0)")
        self.ts("kernarg")
        a(f"s_load_dword {s(sEP)}, {s(sPWS, 2)}, 0")
        self.srd_tmp(sPX, 0x200000)
        for i in range(2):
            a(f"buffer_load_dwordx4 {v(8 + 4 * i, 4)}, v4, {s(sTMP, 4)}, {s(sFIN)} offen offset:{64 * i}", vm="x0")
        self.srd_tmp(sPPHI, 16384)
        a(f"s_lshl_b32 {s(sT0)}, {s(sC)}, 10")
        a(f"buffer_load_dwordx4 v[16:19], {v(vL16)}, {s(sTMP, 4)}, {s(sT0)} offen", vm="phi")
        self.srd_tmp(sPWA, 512 * 3072)
        self.load_wkv(0, 0, cfg["n1"], 5, setup=False)
        a(f"s_mov_b32 {s(sWS)}, {s(sPWS)}")
        a(f"s_mov_b32 {s(sWS + 1)}, {s(sPWS + 1)}")
        a(f"s_mov_b32 {s(sOUT)}, {s(sPOUT)}")
        a(f"s_mov_b32 {s(sOUT + 1)}, {s(sPOUT + 1)}")
        a(f"s_lshl_b32 {s(sXLD)}, {s(sB)}, 15")
        a(f"s_lshl_b32 {s(sT0)}, {s(sC)}, 10")
        a(f"s_add_u32 {s(sOST)}, {s(sXLD)}, {s(sT0)}")
        a(f"s_add_u32 {s(sOST)}, {s(sOST)}, {OBUF}")
        a(f"s_lshl_b32 {s(sSTLD)}, {s(sB)}, 11")
        a(f"s_add_u32 {s(sSTLD)}, {s(sSTLD)}, {STATS}")
        a(f"s_lshl_b32 {s(sT0)}, {s(sB)}, 7")
        a(f"s_add_u32 {s(sFXP)}, {s(sT0)}, {FLAGX}")
        a(f"s_lshl_b32 {s(sT1)}, {s(sC)}, 2")
        a(f"s_add_u32 {s(sFOS)}, {s(sT0)}, {s(sT1)}")
        a(f"s_add_u32 {s(sFOS)}, {s(sFOS)}, {FLAGO}")
        a(f"s_lshl_b32 {s(sT0)}, {s(sBP)}, 7")
        a(f"s_add_u32 {s(sFOP)}, {s(sT0)}, {FLAGO}")
        a(f"s_lshl_b32 {s(sT1)}, {s(sCG)}, 1")
        a(f"s_add_u32 {s(sT1)}, {s(sT1)}, {s(sSUB)}")
        a(f"s_lshl_b32 {s(sT1)}, {s(sT1)}, 2")
        a(f"s_add_u32 {s(sFXS)}, {s(sT0)}, {s(sT1)}")
        a(f"s_add_u32 {s(sFXS)}, {s(sFXS)}, {FLAGX}")
        a(f"s_lshl_b32 {s(sT2)}, {s(sSUB)}, 8")
        a(f"s_lshl_b32 {s(sXST)}, {s(sBP)}, 15")
        a(f"s_lshl_b32 {s(sT0)}, {s(sCG)}, 12")
        a(f"s_add_u32 {s(sXST)}, {s(sXST)}, {s(sT0)}")
        a(f"s_add_u32 {s(sXST)}, {s(sXST)}, {s(sT2)}")
        a(f"s_lshl_b32 {s(sSTST)}, {s(sBP)}, 11")
        a(f"s_lshr_b32 {s(sT0)}, {s(sCG)}, 2")
        a(f"s_lshl_b32 {s(sT0)}, {s(sT0)}, 9")
        a(f"s_and_b32 {s(sT1)}, {s(sCG)}, 3")
        a(f"s_lshl_b32 {s(sT1)}, {s(sT1)}, 2")
        a(f"s_add_u32 {s(sSTST)}, {s(sSTST)}, {s(sT0)}")
        a(f"s_add_u32 {s(sSTST)}, {s(sSTST)}, {s(sT1)}")
        a(f"s_add_u32 {s(sSTST)}, {s(sSTST)}, {s(sT2)}")
        a(f"s_add_u32 {s(sSTST)}, {s(sSTST)}, {STATS}")
        a(f"s_mul_i32 {s(sKVT)}, {s(sW)}, {TILE}")
        a(f"s_mul_i32 {s(sT0)}, {s(sC)}, 9216")
        a(f"s_add_u32 {s(sKVT)}, {s(sKVT)}, {s(sT0)}")
        a(f"s_add_u32 {s(sKVT)}, {s(sKVT)}, {KVP[0]}")
        a(f"s_lshl_b32 {s(sHEL)}, {s(sC)}, 2")
        a(f"s_add_u32 {s(sHEL)}, {s(sHEL)}, {s(sW)}")
        a(f"s_lshl_b32 {s(sHEL)}, {s(sHEL)}, 7")
        a(f"s_add_u32 {s(sHEL)}, {s(sHEL)}, {HELLO}")
        a(f"s_lshl_b32 {s(sOOFF)}, {s(sW)}, 17")
        a(f"s_lshl_b32 {s(sT0)}, {s(sCG)}, 7")
        a(f"s_add_u32 {s(sOOFF)}, {s(sOOFF)}, {s(sT0)}")
        a(f"s_mov_b32 {s(sLN2)}, {LN2:#x}")
        a(f"s_mov_b32 {s(sLN2b)}, {LN2:#x}")
        a(f"s_mov_b32 {s(sDELTA)}, {DELTA:#x}")
        a(f"s_mov_b32 {s(sHI)}, 0")
        a(f"s_mov_b32 {s(sHI + 1)}, -1")
        a(f"s_mov_b32 {s(sPASS)}, 0")
        a(f"s_mov_b32 {s(sLAY)}, 0")
        a(f"s_mov_b32 {s(sMODE)}, 1")
        a(f"s_lshl_b32 {s(sGW)}, {s(sR)}, 4")
        a(f"s_add_u32 {s(sGW)}, {s(sGW)}, {s(sC)}")
        a(f"s_lshl_b32 {s(sGW)}, {s(sGW)}, 2")
        a(f"s_add_u32 {s(sGW)}, {s(sGW)}, {s(sW)}")
        i16, g, half, q, jj, t0, t1 = 20, 21, 22, 23, 24, 25, 26
        a(f"v_and_b32 {v(i16)}, 15, {v(L)}")
        a(f"v_lshrrev_b32 {v(g)}, 4, {v(L)}")
        a(f"v_lshrrev_b32 {v(half)}, 5, {v(L)}")
        a(f"v_and_b32 {v(q)}, 3, {v(L)}")
        a(f"v_bfe_u32 {v(jj)}, {v(L)}, 2, 2")
        a(f"v_lshlrev_b32 {v(vPOLL)}, 2, {v(i16)}")
        a(f"v_lshlrev_b32 {v(t0)}, 4, {v(i16)}")
        a(f"v_lshl_add_u32 {v(vXST)}, {v(g)}, 10, {v(t0)}")
        a(f"v_lshl_add_u32 {v(vSST)}, {v(half)}, 10, {v(t0)}")
        a(f"v_lshl_add_u32 {v(vSLD)}, {v(half)}, 9, {v(vL16)}")
        a(f"s_lshl_b32 {s(sT0)}, {s(sR)}, 9")
        a(f"v_lshl_add_u32 {v(vPST)}, {v(half)}, 8, {v(t0)}")
        a(f"v_add_u32 {v(vPST)}, {s(sT0)}, {v(vPST)}")
        a(f"s_lshl_b32 {s(sT1)}, {s(sR)}, 6")
        a(f"s_add_u32 {s(sT1)}, {s(sT1)}, 8192")
        a(f"v_lshl_add_u32 {v(vZST)}, {v(g)}, 4, {s(sT1)}")
        a(f"v_add_u32 {v(t1)}, {s(sT0)}, {v(vL16)}")
        a(f"v_lshl_add_u32 v27, {v(q)}, 4, {s(sT1)}")
        a(f"v_cndmask_b32 {v(t1)}, {v(t1)}, v27, {s(sHI, 2)}")
        for i in range(4):
            a(f"v_mov_b32 {v(28 + i)}, -1")
        a("s_mov_b32 exec_hi, 15")
        for l in (1, 3):
            a(f"s_add_u32 {s(sT0)}, {s(sKVT)}, {KVP[l] - KVP[0]}")
            a(f"buffer_store_dwordx4 v[28:31], {v(t1)}, {s(sWS, 4)}, {s(sT0)} offen sc1")
        with self.only_if(f"s_cmp_lt_u32 {s(sW)}, 2"):
            for l in (0, 2):
                a(f"s_add_u32 {s(sT0)}, {s(sKVT)}, {KVP[l] - KVP[0]}")
                a(f"buffer_store_dwordx4 v[28:31], {v(t1)}, {s(sWS, 4)}, {s(sT0)} offen sc1")
        a("s_mov_b32 exec_hi, -1")
        a(f"v_and_b32 {v(t1)}, 1, {v(g)}")
        a(f"v_lshl_add_u32 {v(vOST)}, {v(t1)}, 14, {v(t0)}")
        a(f"v_lshl_add_u32 {v(vOST)}, {v(half)}, 9, {v(vOST)}")
        a(f"v_lshlrev_b32 {v(vWRD)}, 11, {v(half)}")
        a(f"v_lshl_add_u32 {v(vWRD)}, {v(jj)}, 6, {v(vWRD)}")
        a(f"v_lshl_add_u32 {v(vWRD)}, {v(t1)}, 4, {v(vWRD)}")
        a(f"v_and_b32 v27, 1, {v(q)}")
        a(f"v_lshrrev_b32 v32, 1, {v(q)}")
        a(f"v_lshl_add_u32 {v(vWRD)}, v27, 5, {v(vWRD)}")
        a(f"v_lshl_add_u32 {v(vWRD)}, v32, 3, {v(vWRD)}")
        a(f"v_lshlrev_b32 {v(vSTR)}, 8, {v(half)}")
        a(f"v_lshl_add_u32 {v(vSTR)}, v32, 7, {v(vSTR)}")
        a(f"v_lshl_add_u32 {v(vSTR)}, {v(t1)}, 6, {v(vSTR)}")
        a(f"v_lshl_add_u32 {v(vSTR)}, {v(jj)}, 4, {v(vSTR)}")
        a(f"v_lshl_add_u32 {v(vSTR)}, v27, 3, {v(vSTR)}")
        a(f"s_lshl_b32 {s(sT0)}, {s(sSUB)}, 12")
        a(f"s_add_u32 {s(sT0)}, {s(sT0)}, {L_STG + 0x4000}")
        a(f"v_add_u32 {v(vSTR2)}, {s(sT0)}, {v(vSTR)}")
        a(f"s_lshl_b32 {s(sT0)}, {s(sW)}, 12")
        a(f"s_add_u32 {s(sT0)}, {s(sT0)}, {L_STG}")
        a(f"v_add_u32 {v(vSTR)}, {s(sT0)}, {v(vSTR)}")
        a(f"v_bfe_u32 v33, {v(L)}, 3, 2")
        a(f"v_and_b32 {v(vSTW)}, 0x70, {v(vL16)}")
        a(f"v_lshl_add_u32 {v(vSTW)}, v33, 8, {v(vSTW)}")
        a(f"v_lshl_add_u32 {v(vSTW)}, {v(half)}, 12, {v(vSTW)}")
        a(f"s_lshl_b32 {s(sT0)}, {s(sW)}, 10")
        a(f"s_add_u32 {s(sT0)}, {s(sT0)}, {L_STG}")
        a(f"v_add_u32 {v(vSTW)}, {s(sT0)}, {v(vSTW)}")
        a(f"v_bfe_u32 v34, {v(L)}, 1, 2")
        a(f"v_xor_b32 v33, v33, v34")
        a(f"v_lshlrev_b32 {v(vWOW)}, 14, v34")
        a(f"v_lshl_add_u32 {v(vWOW)}, v33, 5, {v(vWOW)}")
        a(f"v_lshl_add_u32 {v(vWOW)}, {v(half)}, 9, {v(vWOW)}")
        a(f"v_lshl_add_u32 {v(vWOW)}, v27, 4, {v(vWOW)}")
        a(f"s_lshl_b32 {s(sT0)}, {s(sW)}, 12")
        a(f"v_add_u32 {v(vWOW)}, {s(sT0)}, {v(vWOW)}")
        a(f"v_lshlrev_b32 {v(vWOR)}, 3, {v(L)}")
        a(f"s_lshl_b32 {s(sT0)}, {s(sSUB)}, 15")
        a(f"s_and_b32 {s(sT1)}, {s(sW)}, 2")
        a(f"s_lshl_b32 {s(sT2)}, {s(sT1)}, 13")
        a(f"s_add_u32 {s(sT0)}, {s(sT0)}, {s(sT2)}")
        a(f"v_add_u32 {v(vWKW)}, {s(sT0)}, {v(vL16)}")
        a(f"v_and_b32 v33, 0x1f0, {v(vL16)}")
        a(f"v_add_u32 {v(vCSR)}, {L_CSP:#x}, v33")
        a(f"v_and_b32 v34, 1, {v(jj)}")
        a(f"v_cmp_eq_u32 vcc, v34, {v(half)}")
        a(f"v_mov_b32 v35, 512")
        a(f"v_cndmask_b32 {v(vKFR)}, v35, v33, vcc")
        a(f"v_add_u32 {v(vKFR)}, {L_KVF:#x}, {v(vKFR)}")
        a(f"s_mul_i32 {s(sT0)}, {s(sT1)}, 528")
        a(f"s_lshl_b32 {s(sT2)}, {s(sSUB)}, 6")
        a(f"s_add_u32 {s(sT0)}, {s(sT0)}, {s(sT2)}")
        a(f"s_add_u32 {s(sT0)}, {s(sT0)}, {L_KVF}")
        a(f"v_mul_u32_u24 {v(vKFW)}, 528, {v(half)}")
        a(f"v_lshl_add_u32 {v(vKFW)}, {v(q)}, 4, {v(vKFW)}")
        a(f"v_lshl_add_u32 {v(vKFW)}, {v(jj)}, 7, {v(vKFW)}")
        a(f"v_lshl_add_u32 {v(vKFW)}, {v(t1)}, 3, {v(vKFW)}")
        a(f"v_add_u32 {v(vKFW)}, {s(sT0)}, {v(vKFW)}")
        a(f"s_lshl_b32 {s(sT0)}, {s(sW)}, 5")
        a(f"s_add_u32 {s(sT0)}, {s(sT0)}, {L_ZB}")
        a(f"v_lshl_add_u32 {v(vZW)}, {v(q)}, 2, {v(g)}")
        a(f"v_lshl_add_u32 {v(vZW)}, {v(vZW)}, 1, {s(sT0)}")
        a(f"v_mov_b32 v35, {L_ZB:#x}")
        a(f"v_lshl_add_u32 {v(vZR)}, {v(half)}, 5, v35")
        a(f"v_mov_b32 v36, 0x3f80")
        a(f"v_lshlrev_b32 v37, 4, v27")
        a(f"v_lshlrev_b32 v36, v37, v36")
        a(f"v_lshrrev_b32 v37, 1, {v(i16)}")
        a(f"v_lshlrev_b32 v38, 2, {v(t1)}")
        a(f"v_sub_u32 v37, v37, v38")
        for d in range(4):
            a(f"v_cmp_eq_u32 vcc, {d}, v37")
            a(f"v_cndmask_b32 {v(40 + d)}, 0, v36, vcc")
        a(f"v_add_u32 v33, {L_SEL:#x}, v33")
        a(f"ds_write_b128 v33, v[40:43]")
        for i in range(4):
            a(f"v_mov_b32 {v(44 + i)}, 0")
        a(f"v_min_u32 v33, 5, {v(L)}")
        a(f"v_mul_u32_u24 v33, 528, v33")
        a(f"v_add_u32 v33, {L_KVF + 512:#x}, v33")
        a(f"ds_write_b128 v33, v[44:47]")
        a.wait(vm="x0")
        self.ts("x0")
        for i in range(2):
            for d in range(2):
                a(f"v_permlane16_swap_b32 {v(8 + 4 * i + d)}, {v(8 + 4 * i + 2 + d)}")
        for i in range(8):
            a(f"v_lshlrev_b32 {v(XR + 2 * i)}, 16, {v(8 + i)}")
            a(f"v_and_b32 {v(XR + 2 * i + 1)}, 0xffff0000, {v(8 + i)}")
        self.x_publish()
        self.load_wkv(0, cfg["n1"], 16, 5, setup=False)
        a(f"s_lshl_b32 {s(sT0)}, {s(sW)}, 10")
        a(f"s_add_u32 {s(sT0)}, {s(sT0)}, {L_STG}")
        a(f"v_add_u32 v33, {s(sT0)}, {v(vL16)}")
        a.wait(vm="phi")
        a(f"ds_write_b128 v33, v[16:19]")
        a(f"v_lshlrev_b32 v33, 9, v27")
        a(f"v_lshl_add_u32 v33, {v(half)}, 8, v33")
        a(f"v_lshl_add_u32 v33, {v(jj)}, 5, v33")
        a(f"v_lshl_add_u32 v33, {v(t1)}, 4, v33")
        a(f"v_lshl_add_u32 v33, v32, 3, v33")
        a(f"v_add_u32 v33, {s(sT0)}, v33")
        a("s_waitcnt lgkmcnt(0)")
        a(f"ds_read_b64_tr_b16 v[16:17], v33")
        a(f"ds_read_b64_tr_b16 v[18:19], v33 offset:128")
        a(f"v_lshl_add_u32 v33, {v(half)}, 4, {v(vL16)}")
        a(f"v_add_u32 v33, {L_WPF:#x}, v33")
        a(f"s_mul_i32 {s(sTAG)}, {s(sEP)}, 0x9e3779b1")
        a(f"s_add_u32 {s(sTAG)}, {s(sTAG)}, 0x7f4a7c15")
        a(f"s_and_b32 {s(sTAG)}, {s(sTAG)}, 0xffffff00")
        a(f"s_or_b32 {s(sT1)}, {s(sTAG)}, 0xf0")
        a(f"s_or_b32 {s(sT2)}, {s(sTAG)}, {s(sXCC)}")
        a(f"v_mov_b32 v34, {s(sT2)}")
        a(f"v_mov_b32 v35, {s(sT1)}")
        a(f"s_lshl_b32 {s(sT0)}, {s(sR)}, 2")
        a(f"s_add_u32 {s(sT0)}, {s(sT0)}, {s(sHEL)}")
        a("s_waitcnt lgkmcnt(0)")
        a.lg.clear()
        a(f"ds_write_b128 v33, v[16:19]")
        self.put_wkv(0, 0, cfg["n1"], waits=True)
        a.wait(vm="xst")
        a("s_mov_b64 exec, 1")
        a(f"buffer_store_dword v34, off, {s(sWS, 4)}, {s(sFXS)} sc1")
        a(f"buffer_store_dword v35, off, {s(sWS, 4)}, {s(sT0)} sc1")
        a("s_mov_b64 exec, -1")
        self.ts("flag0")
        self.put_wkv(0, cfg["n1"], 16, waits=True)
        self.ts("wkv0")
        a(f"v_lshl_add_u32 v33, {v(t1)}, 8, {v(vPOLL)}")
        a(f"s_and_b32 {s(sT0)}, {s(sFXP)}, 0xfffffeff")
        l = a.newlabel("poll0")
        a(f"s_mov_b32 {s(sCNT)}, 0x400000")
        a.label(l)
        a(f"buffer_load_dword v34, v33, {s(sWS, 4)}, {s(sT0)} offen sc1")
        a(f"s_sub_u32 {s(sCNT)}, {s(sCNT)}, 1")
        a("s_cbranch_scc1 L_timeout")
        a.wait(vm=0)
        a(f"v_and_b32 v35, 0xfffffff0, v34")
        a(f"v_cmp_ne_u32 vcc, {s(sTAG)}, v35")
        a(f"s_cbranch_vccnz {l}")
        a(f"v_cmp_ne_u32 vcc, {s(sT2)}, v34")
        a("s_cbranch_vccnz L_enter")
        if not cfg["force_global"]:
            a(f"s_mov_b32 {s(sMODE)}, 0")
        a("s_branch L_enter")

    def rowmajor_voff(self, d, t):
        a = self.a
        a(f"v_and_b32 {v(d)}, 0xf0, {v(vL16)}")
        a(f"v_lshlrev_b32 {v(d)}, 6, {v(d)}")
        a(f"v_bfe_u32 {v(t)}, {v(vL16)}, 8, 1")
        a(f"v_lshl_add_u32 {v(d)}, {v(t)}, 5, {v(d)}")
        a(f"v_lshrrev_b32 {v(t)}, 9, {v(vL16)}")
        a(f"v_lshl_add_u32 {v(d)}, {v(t)}, 4, {v(d)}")

    def final(self):
        a = self.a
        a.label("L_final")
        X = LG
        self.rowmajor_voff(PK, PK + 1)
        for i in range(8):
            a(f"v_cvt_pk_bf16_f32 {v(X + i)}, {v(XR + 2 * i)}, {v(XR + 2 * i + 1)}")
        for i in range(2):
            for d in range(2):
                a(f"v_permlane16_swap_b32 {v(X + 4 * i + d)}, {v(X + 4 * i + 2 + d)}")
        for i in range(2):
            a(f"buffer_store_dwordx4 {v(X + 4 * i, 4)}, {v(PK)}, {s(sOUT, 4)}, {s(sFIN)} offen offset:{64 * i}")
        with self.only_if(f"s_cmp_eq_u32 {s(sGW)}, 0"):
            a(f"s_add_u32 {s(sEP)}, {s(sEP)}, 1")
            a(f"v_mov_b32 v0, {s(sEP)}")
            a("s_mov_b64 exec, 1")
            a(f"buffer_store_dword v0, off, {s(sWS, 4)}, 0 sc1")
            a("s_mov_b64 exec, -1")
        if self.cfg["ts"]:
            a("s_waitcnt vmcnt(0)")
            self.ts("end")
            a("s_memrealtime s[72:73]")
            a("s_waitcnt lgkmcnt(0)")
            a(f"v_writelane_b32 {v(vTS)}, s78, 61")
            a(f"v_writelane_b32 {v(vTS)}, s72, 62")
            a(f"v_writelane_b32 {v(vTS)}, {s(sMODE)}, 63")
            a(f"s_lshl_b32 {s(sT0)}, {s(sGW)}, 8")
            a(f"s_add_u32 {s(sT0)}, {s(sT0)}, {DBG + 0x2000000}")
            a(f"v_lshrrev_b32 v0, 2, {v(vL16)}")
            a(f"buffer_store_dword {v(vTS)}, v0, {s(sWS, 4)}, {s(sT0)} offen")
        a.label("L_timeout")
        a.label("L_end")
        a("s_endpgm")

    def build(self):
        a = self.a
        self.prologue()
        self.layer(0)
        self.layer(1)
        self.final()
        a.raw(self.tail)
        a.label("L_codeend")
        a("s_endpgm")
        nops = a.pad_hazards()
        head = open(f"cdna_kernels/{NAME}.s.ref").read().split("; Override launch")[0]
        out = head + f"; @launch grid=(256,1,1) block=(256,1,1) lds={LDS_SIZE}\n"
        out += f""".amdgcn_target "amdgcn-amd-amdhsa--gfx950"
.text
.globl {NAME}_kernel
.p2align 8
.type {NAME}_kernel,@function
{NAME}_kernel:
"""
        out += a.text()
        out += f""".section .rodata,"a"
.p2align 6
.amdhsa_kernel {NAME}_kernel
  .amdhsa_next_free_vgpr 512
  .amdhsa_next_free_sgpr 96
  .amdhsa_accum_offset 256
  .amdhsa_group_segment_fixed_size 0
  .amdhsa_kernarg_size 80
  .amdhsa_user_sgpr_count 2
  .amdhsa_user_sgpr_kernarg_segment_ptr 1
  .amdhsa_system_sgpr_workgroup_id_x 1
.end_amdhsa_kernel
"""
        self.nops = nops
        return out


if __name__ == "__main__":
    import ast
    kw = {}
    out = sys.argv[1]
    for x in sys.argv[2:]:
        k, val = x.split("=", 1)
        kw[k] = ast.literal_eval(val)
    g = Gen(**kw)
    txt = g.build()
    open(out, "w").write(txt)
    print(f"wrote {out}: {len(g.a.ins)} lines, {g.nops} pad states", file=sys.stderr)
```

```python
import re

REG_RE = re.compile(r"^-?(?:abs\()?([vas])(?:(\d+)|\[(\d+):(\d+)\])\)?$")


def regs_of(op):
    op = op.strip()
    m = REG_RE.match(op)
    if m:
        k = m.group(1)
        if m.group(2) is not None:
            return {(k, int(m.group(2)))}
        return {(k, i) for i in range(int(m.group(3)), int(m.group(4)) + 1)}
    if op in ("vcc", "vcc_lo", "vcc_hi"):
        return {("x", "vcc")}
    if op in ("exec", "exec_lo", "exec_hi"):
        return {("x", "exec")}
    if op == "m0":
        return {("x", "m0")}
    return set()


TRANS = ("v_exp_f32", "v_log_f32", "v_rcp_f32", "v_rsq_f32", "v_sqrt_f32", "v_sin_f32", "v_cos_f32")


class Ins:
    def __init__(self, text):
        self.text = text
        self.label = None
        t = text.split(";")[0].strip()
        if t.endswith(":"):
            self.label = t[:-1]
            self.op = None
            return
        if t.startswith(".") or not t:
            self.op = None
            return
        parts = t.split(None, 1)
        self.op = op = parts[0]
        rest = parts[1] if len(parts) > 1 else ""
        ops = [o.strip() for o in re.split(r",(?![^\[]*\])(?![^(]*\))", rest)] if rest else []
        self.mods = ""
        if ops:
            last = ops[-1].split(None, 1)
            ops[-1] = last[0]
            self.mods = last[1] if len(last) > 1 else ""
        self.ops = ops
        R = [regs_of(o) for o in ops]
        self.w, self.r = set(), set()
        self.kind = "other"
        self.A = self.B = self.C = set()
        self.passes = 0
        self.store_data = set()
        U = lambda l: set().union(*l) if l else set()
        if op.startswith("v_mfma"):
            self.kind = "mfma"
            self.w = R[0]
            self.A, self.B, self.C = R[1], R[2], R[3]
            self.r = R[1] | R[2] | R[3]
            self.passes = 8 if "32x32" in op else 4
        elif op.startswith("v_"):
            self.kind = "valu"
            self.w = set(R[0])
            self.r = U(R[1:])
            if op.startswith(("v_dot2c", "v_fmac", "v_writelane")):
                self.r |= R[0]
            if op.startswith("v_permlane"):
                self.w = R[0] | R[1]
                self.r = R[0] | R[1]
            if op.startswith("v_cndmask") and len(ops) == 3:
                self.r.add(("x", "vcc"))
        elif op.startswith("ds_"):
            self.kind = "ds"
            if op.startswith("ds_read"):
                self.w = R[0]
                self.r = U(R[1:])
            else:
                self.r = U(R)
        elif op.startswith(("buffer_", "global_")):
            self.kind = "vmem"
            if "load" in op and " lds" not in " " + self.mods and "_lds_" not in op:
                self.w = R[0]
                self.r = U(R[1:])
            else:
                self.r = U(R)
                if "load" in op:
                    self.r.add(("x", "m0"))
                    self.kind = "vmem"
                    self.ldsdma = True
                elif op.endswith(("x3", "x4")):
                    self.store_data = R[0] if op.startswith("buffer_") else R[1]
        elif op.startswith("s_"):
            self.kind = "salu"
            if op.startswith(("s_cmp", "s_bitcmp", "s_cbranch", "s_branch", "s_waitcnt", "s_nop", "s_barrier", "s_endpgm", "s_sleep", "s_setprio")):
                self.r = U(R)
            else:
                self.w = set(R[0]) if R else set()
                self.r = U(R[1:])
                if "saveexec" in op:
                    self.w.add(("x", "exec"))
        self.trans = op.startswith(TRANS)
        self.dpp = "row_" in self.mods or "quad_perm" in self.mods or op.endswith("_dpp")
        self.dot = op.startswith("v_dot")

    def states(self):
        if self.op is None:
            return 0
        if self.op == "s_nop":
            return int(self.ops[0], 0) + 1
        return 1


def need(p, c):
    n = 0
    vw = {x for x in p.w if x[0] in "va"}
    sw = {x for x in p.w if x[0] == "s" or x == ("x", "vcc")}
    if p.kind == "valu":
        if c.kind == "mfma" and vw & c.r:
            n = max(n, 3 if p.dot else 2)
        if c.kind == "valu":
            if p.trans and not c.trans and vw & c.r:
                n = max(n, 1)
            if p.trans and c.trans and vw & c.r:
                n = max(n, 1)
            if (c.op.startswith("v_permlane") or c.dpp) and vw & c.r:
                n = max(n, 2)
            if c.op.startswith(("v_readlane", "v_readfirstlane")) and vw & c.r:
                n = max(n, 1)
            if sw & c.r:
                n = max(n, 4 if c.op.startswith(("v_readlane", "v_writelane")) else 2)
            if p.dot and (vw & (c.r | c.w)):
                same_c = c.op == p.op and not (vw & set().union(*[regs_of(o) for o in c.ops[1:3]]))
                if not same_c:
                    n = max(n, 3)
        if p.dot and c.kind in ("ds", "vmem") and vw & c.r:
            n = max(n, 3)
        if p.trans and c.kind in ("ds", "vmem") and vw & c.r:
            n = max(n, 1)
        if c.kind == "vmem" and sw & c.r:
            n = max(n, 5)
        if c.kind == "salu" and sw & c.r:
            n = max(n, 1)
        if c.op in ("s_cbranch_vccz", "s_cbranch_vccnz") and ("x", "vcc") in p.w:
            n = max(n, 1)
    if p.kind == "mfma":
        big = {4: 8, 8: 12}[p.passes]
        if c.kind == "mfma":
            if p.w & (c.A | c.B):
                n = max(n, big)
            if p.w & c.C:
                if not (p.w == c.C and p.passes == c.passes):
                    n = max(n, {4: 6, 8: 10}[p.passes])
            elif p.w & c.w:
                n = max(n, {4: 6, 8: 10}[p.passes])
        elif c.kind in ("valu", "ds", "vmem"):
            if p.w & (c.r | c.w):
                n = max(n, big)
            if c.kind == "valu" and p.C & c.w:
                n = max(n, {4: 3, 8: 7}[p.passes])
    if p.store_data and c.kind in ("valu", "ds", "vmem", "mfma") and p.store_data & c.w:
        n = max(n, 2)
    if p.kind == "salu" and ("x", "m0") in p.w and getattr(c, "ldsdma", False):
        n = max(n, 1)
    return n


class Asm:
    def __init__(self):
        self.ins = []
        self.tail = []
        self.vm = []
        self.lg = []
        self.vm1 = []
        self.count1 = True
        self.nlab = 0

    def __call__(self, text, vm=None, lg=None):
        for line in text.strip().split("\n"):
            line = line.strip()
            if not line:
                continue
            i = Ins(line)
            self.ins.append(i)
            if i.op is None:
                continue
            if i.kind == "vmem":
                self.vm.append(vm)
                if self.count1:
                    self.vm1.append(vm)
            elif i.kind == "ds":
                self.lg.append(lg)
        return self

    def label(self, name):
        self.ins.append(Ins(name + ":"))

    def newlabel(self, base):
        self.nlab += 1
        return f"L_{base}_{self.nlab}"

    @staticmethod
    def _cnt(q, tag, mx):
        idx = [i for i, t in enumerate(q) if t == tag]
        if not idx:
            return None
        n = len(q) - 1 - idx[-1]
        n = min(n, mx)
        del q[: len(q) - n]
        return n

    def wait(self, vm=None, lg=None):
        parts = []
        if vm is not None:
            if vm == 0:
                self.vm.clear()
                if self.count1:
                    self.vm1.clear()
                parts.append("vmcnt(0)")
            else:
                n = self._cnt(self.vm, vm, 63)
                if n is not None:
                    parts.append(f"vmcnt({n})")
        if lg is not None:
            if lg == 0:
                self.lg.clear()
                parts.append("lgkmcnt(0)")
            else:
                n = self._cnt(self.lg, lg, 15)
                if n is not None:
                    parts.append(f"lgkmcnt({n})")
        if parts:
            self.ins.append(Ins("s_waitcnt " + " ".join(parts)))

    def wait1(self, tag):
        n = self._cnt(self.vm1, tag, 63)
        if n is not None:
            self.ins.append(Ins(f"s_waitcnt vmcnt({n})"))

    def raw(self, ins_list):
        self.ins.extend(ins_list)

    def pad_hazards(self):
        added = 0
        start = 0
        while True:
            ins = self.ins
            labels = {x.label: i for i, x in enumerate(ins) if x.label}
            jumps = {}
            for i, x in enumerate(ins):
                if x.op and x.op.startswith(("s_cbranch", "s_branch")):
                    jumps.setdefault(labels[x.ops[0]], []).append(i)
            fix = None
            for ci in range(start, len(ins)):
                c = ins[ci]
                if c.op is None or c.kind == "other":
                    continue
                short = 0
                stack = [(ci, 0)]
                seen = {}
                while stack:
                    i, d = stack.pop()
                    preds = []
                    if i > 0 and not (ins[i - 1].op in ("s_branch", "s_endpgm")):
                        preds.append(i - 1)
                    if ins[i].label:
                        preds += jumps.get(i, [])
                    for pi in preds:
                        p = ins[pi]
                        if p.op is not None:
                            k = need(p, c)
                            if k > d:
                                short = max(short, k - d)
                        nd = d + p.states()
                        if nd < 12 and seen.get(pi, 99) > nd:
                            seen[pi] = nd
                            stack.append((pi, nd))
                if short:
                    fix = (ci, short)
                    ins.insert(ci, Ins(f"s_nop {short - 1}"))
                    added += short
                    start = ci
                    break
            if fix is None:
                return added

    def text(self):
        out = []
        for x in self.ins:
            out.append(x.text if (x.label or x.op is None) else "    " + x.text)
        return "\n".join(out) + "\n"
```

```python
import sys
import contextlib
from asmlib import Asm, Ins

NAME = "interleave_layers__linear_attn_block__linear_kernel_hedgehog__prompt"

CFG = dict(
    ts=0,
    dump=None,
    n1=8,
    bg0=(10, 14, 8, 0, 0, 8),
    bg1=(14, 10, 0, 0, 0, 0),
    bgg=2,
    pl_step=22,
    nx0=8, no0=8,
    mallpf=1,
    force_global=0,
    stop=None,
)

FLAGX, FLAGO, HELLO, FLAGX2, ANN, STATS, STATS2 = 0x1000, 0x3000, 0x5000, 0x7000, 0x9000, 0x10000, 0x1E0000
KVP = [0x30000, 0x78000, 0x108000, 0x150000]
TILE = 0x24000
OBUF = 0x200000
DBG = 0x400000
WS_SIZE = 0x8000000
L_P, L_WQ, L_STG = 0x0, [0x10000, 0x18000], 0x20000
L_KVF = 0x26000
L_WPF = L_KVF + 4 * 528
L_ZB = L_WPF + 2 * 528
L_CSP = 0x26D00
L_SEL = 0x27900
LDS_SIZE = 0x28000
XF, AK, AV, RG, LG, XR, PK = 0, 128, 144, 160, 192, 208, 224
vSTR, vSTR2, vPST, vZST, vKFW, vZW, vZR, vOST = range(184, 192)
vL16, vWRD, vSTW, vKFR, vS, vRS, vM, vXST, vSST, vSLD, vPOLL, vWOR, vWOW, vWKW, vCSR, vTS = range(240, 256)
A_WKV, A_WO = [0, 64], [128, 192]
sID = 2
sPX, sPWA, sPWOA, sPBX, sPWB, sPPHI, sPWOB, sPOUT, sPDBG, sPWS = range(4, 24, 2)
sWS, sOUT, sTMP = 24, 28, 32
(sW, sC, sR, sXLD, sSTLD, sFXP, sOST, sFOS, sOLD, sFOP, sXST, sSTST, sFXS, sKVT, sTAG, sMODE, sPASS,
 sEP, sXCC, sT0, sT1, sT2, sT3, sCNT, sWOFF, sQOFF, sOOFF, sHEL, sLN2, sLN2b, sDELTA, sFIN) = range(36, 68)
sHI = 68
sSAVE = 70
sTSA = 72
sTSI = 74
sGW = 75
sLAY = 76
sANN = 77
sW13 = 98
sPM = 96
sSW, sSO = [80, 84], [88, 92]
vBW, vBO, vHL = RG + 20, RG + 21, RG + 22
assert sLN2 % 2 == 0

LOG2E = 0x3FB8AA3B
LN2 = 0x3F317218
DELTA = 0x35C1A4C3
import struct
def f2u(x): return struct.unpack("<I", struct.pack("<f", x))[0]
DELTA = f2u(1e-6 * 1.4426950408889634)


def v(a, n=1): return f"v{a}" if n == 1 else f"v[{a}:{a + n - 1}]"
def ar(a, n=1): return f"a{a}" if n == 1 else f"a[{a}:{a + n - 1}]"
def s(a, n=1): return f"s{a}" if n == 1 else f"s[{a}:{a + n - 1}]"


class Gen:
    def __init__(self, **kw):
        self.cfg = dict(CFG)
        self.cfg.update(kw)
        self.a = Asm()
        self.tail = []
        self.nts = 0
        self.tsnames = []

    @contextlib.contextmanager
    def uncounted(self, first=False):
        a = self.a
        vm, lg, c1 = list(a.vm), list(a.lg), a.count1
        a.count1 = c1 and first
        yield
        a.vm, a.lg, a.count1 = vm, lg, c1

    @contextlib.contextmanager
    def only_if(self, cmp, first=False):
        a = self.a
        l = a.newlabel("skip")
        a(cmp)
        a(f"s_cbranch_scc0 {l}")
        with self.uncounted(first):
            yield
        a.label(l)

    def pass1(self):
        return self.only_if(f"s_cmp_eq_u32 {s(sPASS)}, 0", True)

    def bg_region(self, n, slots):
        self.bg_left = min(n, len(self.bg))
        groups = -(-self.bg_left // self.cfg["bgg"])
        self.bg_slot = 0
        self.bg_at = {(k * slots) // groups for k in range(groups)} if groups else set()
        assert len(self.bg_at) == groups
        if groups:
            self.a(f"s_mov_b64 vcc, {s(sPM, 2)}")

    def bg_tick(self):
        a = self.a
        if self.bg_slot in self.bg_at:
            l = a.newlabel("bg")
            a(f"s_cbranch_vccnz {l}")
            with self.uncounted(True):
                for _ in range(min(self.cfg["bgg"], self.bg_left)):
                    self.bg.pop(0)()
                    self.bg_left -= 1
            a.label(l)
        self.bg_slot += 1

    def bg_now(self, n):
        n = min(n, len(self.bg))
        if n:
            with self.pass1():
                for _ in range(n):
                    self.bg.pop(0)()

    def ticker(self):
        def e(text, **kw):
            self.bg_tick()
            self.a(text, **kw)
        return e

    def moded(self, lines, tag=None):
        a = self.a
        lg, lj = a.newlabel("glob"), a.newlabel("join")
        a(f"s_cmp_eq_u32 {s(sMODE)}, 0")
        a(f"s_cbranch_scc0 {lg}")
        for l in lines:
            a(l, vm=tag)
        a.label(lj)
        t = [Ins(lg + ":")] + [Ins(l + (" sc1" if l.startswith("buffer_store") else "")) for l in lines] + [Ins(f"s_branch {lj}")]
        self.tail += t

    def srd_tmp(self, ptr, size):
        a = self.a
        a(f"s_mov_b32 {s(sTMP)}, {s(ptr)}")
        a(f"s_mov_b32 {s(sTMP + 1)}, {s(ptr + 1)}")
        a(f"s_mov_b32 {s(sTMP + 2)}, {size}")

    def ts(self, name):
        if not self.cfg["ts"]:
            return
        a = self.a
        self.tsnames.append(name)
        a(f"s_memtime {s(sTSA, 2)}")
        a("s_waitcnt lgkmcnt(0)")
        a.lg.clear()
        a(f"s_mov_b32 m0, {s(sTSI)}")
        a(f"v_writelane_b32 {v(vTS)}, {s(sTSA)}, m0")
        a(f"s_add_u32 {s(sTSI)}, {s(sTSI)}, 1")

    def dump(self, point, regs, tmp):
        d = self.cfg["dump"]
        if not d or d[0] != point:
            return
        a = self.a
        with self.only_if(f"s_cmp_eq_u32 {s(sLAY)}, {d[1]}"):
            a("s_waitcnt vmcnt(0) lgkmcnt(0)")
            a("s_nop 15")
            a(f"v_lshrrev_b32 {v(tmp)}, 2, {v(vL16)}")
            a(f"s_mul_i32 {s(sT0)}, {s(sGW)}, {64 * 256}")
            a(f"s_add_u32 {s(sT0)}, {s(sT0)}, {DBG}")
            for i, r in enumerate(regs):
                a(f"buffer_store_dword {v(r)}, {v(tmp)}, {s(sWS, 4)}, {s(sT0)} offen")
                a(f"s_add_u32 {s(sT0)}, {s(sT0)}, 256")
            a("s_waitcnt vmcnt(0)")

    def poll(self, voff, soff, tmp):
        a = self.a
        l = a.newlabel("poll")
        a(f"s_mov_b32 {s(sCNT)}, 0x40000")
        a.label(l)
        a(f"buffer_load_dword {v(tmp)}, {v(voff)}, {s(sWS, 4)}, {s(soff)} offen sc1")
        a(f"s_sub_u32 {s(sCNT)}, {s(sCNT)}, 1")
        a("s_cbranch_scc1 L_timeout")
        a.wait(vm=0)
        a(f"v_cmp_ne_u32 vcc, {s(sTAG)}, {v(tmp)}")
        a(f"s_cbranch_vccnz {l}")

    def flag(self, soff, tmp):
        a = self.a
        a(f"v_mov_b32 {v(tmp)}, {s(sTAG)}")
        a.wait(vm=0)
        a("s_mov_b64 exec, 1")
        self.moded([f"buffer_store_dword {v(tmp)}, off, {s(sWS, 4)}, {s(soff)}"])
        a("s_mov_b64 exec, -1")

    def w_voff(self, t):
        a = self.a
        a(f"v_lshrrev_b32 {v(t)}, 6, {v(vL16)}")
        a(f"v_mul_u32_u24 {v(t)}, {3072 - 64}, {v(t)}")
        a(f"v_add_u32 {v(t)}, {v(t)}, {v(vL16)}")

    def ld_wkv(self, T, i, t):
        a = self.a
        a(f"s_add_u32 {s(sT0)}, {s(sWOFF)}, {i * 16 * 3072}")
        a(f"buffer_load_dwordx4 {ar(A_WKV[T] + 4 * i, 4)}, {v(t)}, {s(sSW[T], 4)}, {s(sT0)} offen", vm=f"wkv{i}")

    def ld_wq(self, T, i):
        a = self.a
        a(f"s_add_u32 m0, {s(sW13)}, {L_WQ[T] + i * 1024}")
        a(f"s_add_u32 {s(sT0)}, {s(sQOFF)}, {i * 16 * 3072}")
        a(f"buffer_load_dwordx4 {v(vBW)}, {s(sSW[T], 4)}, {s(sT0)} offen lds", vm="wq")

    def ld_wo(self, T, i):
        a = self.a
        a(f"s_add_u32 {s(sT0)}, {s(sOOFF)}, {i * 8 * 1024}")
        a(f"buffer_load_dwordx4 {ar(A_WO[T] + 4 * i, 4)}, {v(vBO)}, {s(sSO[T], 4)}, {s(sT0)} offen", vm="wo")

    def bg_setup(self, T):
        a = self.a
        self.w_voff(vBW)
        a(f"v_lshrrev_b32 {v(vBO)}, 7, {v(vL16)}")
        a(f"v_mul_u32_u24 {v(vBO)}, {1024 - 128}, {v(vBO)}")
        a(f"v_add_u32 {v(vBO)}, {v(vBO)}, {v(vL16)}")
        self.bg = [(lambda i=i: self.ld_wq(T, i)) for i in range(8)] + [(lambda i=i: self.ld_wo(T, i)) for i in range(16)]
        if T == 0:
            self.bg += [(lambda i=i: self.ld_wkv(1, i, vBW)) for i in range(16)]

    def put_wkv(self, T, lo, hi, waits=False):
        for i in range(lo, hi):
            if waits:
                self.a.wait(vm=f"wkv{i}")
            self.a(f"ds_write_b128 {v(vWKW)}, {ar(A_WKV[T] + 4 * i, 4)} offset:{i * 1024}")

    def put_wo(self, T):
        for i in range(16):
            self.a(f"ds_write_b128 {v(vWOW)}, {ar(A_WO[T] + 4 * i, 4)} offset:{(i >> 2) * 1024 + (i & 3) * 128}")

    @staticmethod
    def woff(j, u):
        return (j >> 2) * 4096 + u * 1024 + (j & 3) * 256

    def colsum(self, addr, nsteps, regs, acc):
        a = self.a
        a(f"v_mov_b32 {v(acc)}, 0")
        for j in range(nsteps):
            for u in range(2):
                a(f"ds_read_b64_tr_b16 {v(regs[j] + 2 * u, 2)}, {v(addr)} offset:{self.woff(j, u)}", lg=f"cs{j}")
        for j in range(nsteps):
            a.wait(lg=f"cs{j}")
            for d in range(4):
                a(f"v_dot2c_f32_bf16 {v(acc)}, {s(sT3)}, {v(regs[j] + d)}")

    def cs_kv(self, T):
        a = self.a
        t, acc = PK, PK + 1
        a(f"s_mov_b32 {s(sT3)}, 0x3f803f80")
        a(f"v_sub_u32 {v(t)}, {v(vWKW)}, {v(vL16)}")
        a(f"v_add_u32 {v(t)}, {v(t)}, {v(vWRD)}")
        a.wait(lg=0)
        regs = [AK + 4 * i for i in range(14)] + [PK + 4, PK + 8]
        self.colsum(t, 16, regs, acc)
        a(f"s_and_b32 {s(sT0)}, {s(sW)}, 1")
        a(f"s_lshl_b32 {s(sT0)}, {s(sT0)}, 9")
        a(f"s_and_b32 {s(sT1)}, {s(sW)}, 2")
        a(f"s_lshl_b32 {s(sT1)}, {s(sT1)}, 2")
        a(f"s_add_u32 {s(sT0)}, {s(sT0)}, {s(sT1)}")
        a(f"v_lshrrev_b32 {v(t)}, 9, {v(vL16)}")
        a(f"v_lshl_add_u32 {v(t)}, {v(t)}, 2, {v(vCSR)}")
        a(f"v_add_u32 {v(t)}, {s(sT0)}, {v(t)}")
        a(f"ds_write_b32 {v(t)}, {v(acc)} offset:{T * 1536}")

    def cs_q(self, T):
        a = self.a
        t, acc = AV, AV + 1
        a(f"s_mov_b32 {s(sT3)}, 0x3f803f80")
        a(f"s_add_u32 {s(sT0)}, {s(sW13)}, {L_WQ[T]}")
        a(f"v_add_u32 {v(t)}, {s(sT0)}, {v(vWRD)}")
        regs = [LG + 4 * i for i in range(4)] + [PK + 4 * i for i in range(4)]
        self.colsum(t, 8, regs, acc)
        a(f"v_mov_b32 {v(t)}, {v(acc)}")
        a(f"v_permlane32_swap_b32 {v(t)}, {v(acc)}")
        a(f"v_add_f32 {v(acc)}, {v(acc)}, {v(t)}")
        a(f"s_lshl_b32 {s(sT0)}, {s(sW)}, 2")
        a(f"v_add_u32 {v(t)}, {s(sT0)}, {v(vCSR)}")
        a(f"ds_write_b32 {v(t)}, {v(acc)} offset:{T * 1536 + 1024}")

    @staticmethod
    def cs_pack(src, dst):
        return [
            f"v_pk_add_f32 {v(src, 2)}, {v(src, 2)}, {v(src + 2, 2)}",
            f"v_add_f32 {v(src)}, {v(src)}, {v(src + 1)}",
            f"v_cvt_pk_bf16_f32 {v(src + 1)}, {v(src)}, {v(src)}",
            f"v_and_b32 {v(src + 1)}, 0xffff0000, {v(src + 1)}",
            f"v_sub_f32 {v(src)}, {v(src)}, {v(src + 1)}",
            f"v_cvt_pk_bf16_f32 {v(dst)}, {v(src + 1)}, {v(src)}",
        ]

    def x_publish(self, X=LG):
        a = self.a
        t = X + 8
        for i in range(8):
            a(f"v_cvt_pk_bf16_f32 {v(X + i)}, {v(XR + 2 * i)}, {v(XR + 2 * i + 1)}")
        self.moded([f"buffer_store_dwordx4 {v(X + 4 * sidx, 4)}, {v(vXST)}, {s(sOUT, 4)}, {s(sXST)} offen offset:{sidx * 512}" for sidx in range(2)], tag="xst")
        a(f"v_pk_add_f32 {v(t, 2)}, {v(XR, 2)}, {v(XR + 2, 2)}")
        a(f"v_pk_mul_f32 {v(t + 2, 2)}, {v(XR, 2)}, {v(XR, 2)}")
        a(f"v_pk_fma_f32 {v(t + 2, 2)}, {v(XR + 2, 2)}, {v(XR + 2, 2)}, {v(t + 2, 2)}")
        for i in range(2, 8):
            a(f"v_pk_add_f32 {v(t, 2)}, {v(t, 2)}, {v(XR + 2 * i, 2)}")
            a(f"v_pk_fma_f32 {v(t + 2, 2)}, {v(XR + 2 * i, 2)}, {v(XR + 2 * i, 2)}, {v(t + 2, 2)}")
        a(f"v_add_f32 {v(t)}, {v(t)}, {v(t + 1)}")
        a(f"v_add_f32 {v(t + 2)}, {v(t + 2)}, {v(t + 3)}")
        a(f"v_permlane32_swap_b32 {v(t)}, {v(t + 2)}")
        a(f"v_add_f32 {v(t)}, {v(t)}, {v(t + 2)}")
        a(f"v_mov_b32 {v(t + 1)}, {v(t)}")
        a(f"v_permlane16_swap_b32 {v(t)}, {v(t + 1)}")
        a(f"v_add_f32 {v(t)}, {v(t)}, {v(t + 1)}")
        a("s_mov_b32 exec_lo, 0xffff")
        a("s_mov_b32 exec_hi, 0xffff")
        self.moded([f"buffer_store_dword {v(t)}, {v(vSST)}, {s(sWS, 4)}, {s(sSTST)} offen"], tag="xst")
        a("s_mov_b64 exec, -1")

    def phi_a(self, acc, tmp):
        a = self.ticker()
        for i in range(8):
            a(f"v_pk_mul_f32 {v(acc + 2 * i, 2)}, {v(acc + 2 * i, 2)}, {v(vS, 2)} op_sel_hi:[1,0]")
        for i in range(16):
            a(f"v_exp_f32_e64 {v(tmp + i)}, {v(acc + i)} clamp")
            a(f"v_max_f32 {v(acc + i)}, {s(sDELTA)}, {v(acc + i)}")
        for i in range(8):
            a(f"v_pk_fma_f32 {v(acc + 2 * i, 2)}, {v(acc + 2 * i, 2)}, {s(sLN2, 2)}, {v(tmp + 2 * i, 2)}")
        for i in range(8):
            a(f"v_cvt_pk_bf16_f32 {v(PK + i)}, {v(acc + 2 * i)}, {v(acc + 2 * i + 1)}")

    def logits(self):
        a = self.a
        for i in range(8):
            a(f"v_cvt_pk_bf16_f32 {v(PK + i)}, {v(AK + 2 * i)}, {v(AK + 2 * i + 1)}")
        a.wait(lg="wp")
        a(f"v_mfma_f32_32x32x16_bf16 {v(LG, 16)}, {v(PK + 8, 4)}, {v(PK, 4)}, 0")
        a(f"v_mfma_f32_32x32x16_bf16 {v(LG, 16)}, {v(PK + 12, 4)}, {v(PK + 4, 4)}, {v(LG, 16)}")

    def softmax2(self, t, isq, after_plus=None, after_minus=None):
        a = self.ticker()
        a(f"v_max3_f32 {v(t)}, {v(LG)}, {v(LG + 1)}, {v(LG + 2)}")
        a(f"v_min3_f32 {v(t + 1)}, {v(LG)}, {v(LG + 1)}, {v(LG + 2)}")
        for i in range(3, 15, 2):
            a(f"v_max3_f32 {v(t)}, {v(t)}, {v(LG + i)}, {v(LG + i + 1)}")
            a(f"v_min3_f32 {v(t + 1)}, {v(t + 1)}, {v(LG + i)}, {v(LG + i + 1)}")
        a(f"v_max_f32 {v(t)}, {v(t)}, {v(LG + 15)}")
        a(f"v_min_f32 {v(t + 1)}, {v(t + 1)}, {v(LG + 15)}")
        a(f"v_pk_mul_f32 {v(t, 2)}, {v(t, 2)}, {v(vS, 2)} op_sel_hi:[1,0]")
        for sg, E in ((0, AK), (1, LG)):
            for i in range(8):
                if sg == 0:
                    a(f"v_pk_fma_f32 {v(E + 2 * i, 2)}, {v(LG + 2 * i, 2)}, {v(vS, 2)}, {v(t, 2)} op_sel_hi:[1,0,0] neg_lo:[0,0,1] neg_hi:[0,0,1]")
                else:
                    a(f"v_pk_fma_f32 {v(E + 2 * i, 2)}, {v(LG + 2 * i, 2)}, {v(vS, 2)}, {v(t, 2)} op_sel:[0,0,1] op_sel_hi:[1,0,1] neg_lo:[1,0,0] neg_hi:[1,0,0]")
            for i in range(16):
                a(f"v_exp_f32 {v(E + i)}, {v(E + i)}")
            S = t + 2 + 2 * sg
            a(f"v_pk_add_f32 {v(S, 2)}, {v(E, 2)}, {v(E + 2, 2)}")
            for i in range(2, 8):
                a(f"v_pk_add_f32 {v(S, 2)}, {v(S, 2)}, {v(E + 2 * i, 2)}")
            a(f"v_add_f32 {v(S)}, {v(S)}, {v(S + 1)}")
            if not (isq and sg == 0):
                a(f"v_rcp_f32 {v(S)}, {v(S)}")
                if isq:
                    a(f"v_mul_f32 {v(t + 6)}, {f2u(1e-6):#x}, {v(t + 2)}")
                    a(f"v_mul_f32 {v(S)}, {v(S)}, {v(t + 2)}")
                for i in range(8):
                    a(f"v_pk_mul_f32 {v(E + 2 * i, 2)}, {v(E + 2 * i, 2)}, {v(S, 2)} op_sel_hi:[1,0]")
            for i in range(8):
                a(f"v_cvt_pk_bf16_f32 {v(PK + 8 * sg + i)}, {v(E + 2 * i)}, {v(E + 2 * i + 1)}")
            cb = (after_plus, after_minus)[sg]
            if cb:
                cb()

    def layer(self, T):
        a, cfg = self.a, self.cfg
        NT = 2 if T == 0 else 4
        NJ = NT
        skip23 = (lambda: self.only_if(f"s_cmp_lt_u32 {s(sW)}, 2")) if T == 0 else (lambda: self.uncounted())
        bgn = cfg["bg0"] if T == 0 else cfg["bg1"]
        a.label(f"L_layer{T}")
        a.vm.clear(); a.lg.clear(); a.vm1.clear()
        with self.pass1():
            self.cs_kv(T)
        a.wait(lg=0)
        a("s_barrier")
        self.ts(f"{T}:bar1")
        ST = LG
        CS = LG + 8
        CSA, MB = PK, PK + 2
        a(f"ds_read_b128 {v(CS, 4)}, {v(vCSR)} offset:{T * 1536}", lg="cs")
        a(f"ds_read_b128 {v(CS + 4, 4)}, {v(vCSR)} offset:{T * 1536 + 512}", lg="cs")
        if T == 1:
            for i in range(2):
                a(f"ds_read_b128 {v(PK + 8 + 4 * i, 4)}, {v(vKFR)} offset:{L_WPF - L_KVF + 528 * i}", lg="wp")
        D = 3

        def rd(j, p):
            for u in range(2):
                a(f"ds_read_b64_tr_b16 {v(RG + (j % D) * 8 + 4 * p + 2 * u, 2)}, {v(vWRD)} offset:{p * 32768 + self.woff(j, u)}", lg=f"w{j}")
        for j in range(D):
            rd(j, 0); rd(j, 1)
        if T == 0:
            a(f"s_cmp_eq_u32 {s(sPASS)}, 0")
            a("s_cbranch_scc1 L_poll0")
            a.label("L_npoll")
        self.poll(vPOLL, sFXP, LG)
        if T == 0:
            a.label("L_enter")
        self.ts(f"{T}:xpoll")

        def ldx(j):
            if j % 4 == 0:
                a(f"s_add_u32 {s(sT0)}, {s(sXLD)}, {j * 1024}")
            a(f"buffer_load_dwordx4 {v(XF + 4 * j, 4)}, {v(vL16)}, {s(sOUT, 4)}, {s(sT0)} offen offset:{(j % 4) * 1024} sc1", vm=f"x{j}")
            if j == 9:
                a(f"buffer_load_dwordx4 {v(ST, 4)}, {v(vSLD)}, {s(sWS, 4)}, {s(sSTLD)} offen sc1", vm="st")
            if j == 11:
                a(f"buffer_load_dwordx4 {v(ST + 4, 4)}, {v(vSLD)}, {s(sWS, 4)}, {s(sSTLD)} offen offset:512 sc1", vm="st")
        NX = cfg["nx0"]
        for j in range(NX):
            ldx(j)
        t, u_ = ST, ST + 1
        fill = [
            f"v_pk_add_f32 {v(ST, 2)}, {v(ST, 2)}, {v(ST + 2, 2)}",
            f"v_pk_add_f32 {v(ST + 4, 2)}, {v(ST + 4, 2)}, {v(ST + 6, 2)}",
            f"v_pk_add_f32 {v(ST, 2)}, {v(ST, 2)}, {v(ST + 4, 2)}",
            f"v_add_f32 {v(t)}, {v(ST)}, {v(ST + 1)}",
            f"v_mul_f32 {v(t)}, {f2u(1 / 512):#x}, {v(t)}",
            f"v_mov_b32 {v(u_)}, {v(t)}",
            f"v_permlane32_swap_b32 {v(t)}, {v(u_)}",
            f"v_fma_f32 {v(u_)}, -{v(t)}, {v(t)}, {v(u_)}",
            f"v_max_f32 {v(u_)}, 0, {v(u_)}",
            f"v_cvt_pk_bf16_f32 {v(vM)}, -{v(t)}, -{v(t)}",
            f"v_cvt_pk_bf16_f32 {v(u_)}, {v(u_)}, {v(u_)}",
            f"v_and_b32 {v(u_)}, 0xffff0000, {v(u_)}",
            f"v_add_f32 {v(u_)}, {f2u(1e-5):#x}, {v(u_)}",
            f"v_cvt_pk_bf16_f32 {v(u_)}, {v(u_)}, {v(u_)}",
            f"v_and_b32 {v(u_)}, 0xffff0000, {v(u_)}",
            f"v_sqrt_f32 {v(u_)}, {v(u_)}",
            f"v_cndmask_b32 {v(vM)}, {v(vM)}, 0, {s(sHI, 2)}",
            f"v_cvt_pk_bf16_f32 {v(u_)}, {v(u_)}, {v(u_)}",
            f"v_and_b32 {v(u_)}, 0xffff0000, {v(u_)}",
            f"v_rcp_f32 {v(vRS)}, {v(u_)}",
            f"v_mov_b32 {v(MB)}, {v(vM)}",
            f"v_mul_f32 {v(vS)}, {LOG2E:#x}, {v(vRS)}",
            f"v_mov_b32 {v(MB + 1)}, 0",
            f"v_mov_b32 {v(MB + 2)}, 0",
            f"v_mov_b32 {v(MB + 3)}, {v(vM)}",
        ]
        fill = self.cs_pack(CS, CSA) + self.cs_pack(CS + 4, CSA + 1) + [None] * 12 + fill
        for j in range(32):
            a.wait(vm=f"x{j}", lg=f"w{j}")
            for p, acc in ((0, AK), (1, AV)):
                c = v(acc, 16) if j else "0"
                a(f"v_mfma_f32_32x32x16_bf16 {v(acc, 16)}, {v(RG + (j % D) * 8 + 4 * p, 4)}, {v(XF + 4 * j, 4)}, {c}")
                if p == 0 and j + NX < 32:
                    ldx(j + NX)
                if j + D < 32:
                    rd(j + D, p)
                if fill:
                    f_ = fill.pop(0)
                    if f_:
                        a(f_)
        assert not fill
        a(f"v_mfma_f32_32x32x8_bf16 {v(AK, 16)}, {v(CSA, 2)}, {v(MB, 2)}, {v(AK, 16)}")
        a(f"v_mfma_f32_32x32x8_bf16 {v(AV, 16)}, {v(CSA, 2)}, {v(MB + 2, 2)}, {v(AV, 16)}")
        with self.pass1():
            if T == 0:
                a(f"buffer_load_dword {v(vHL)}, {v(vPOLL)}, {s(sWS, 4)}, {s(sHEL)} offen sc1")
            self.bg_setup(T)
        self.ts(f"{T}:kvgemm")
        self.dump("kv", list(range(AK, AK + 32)) + [vS, vRS, vM], RG)

        def v_path():
            for i in range(8):
                a(f"v_pk_mul_f32 {v(AV + 2 * i, 2)}, {v(AV + 2 * i, 2)}, {v(vS, 2)} op_sel:[0,1]")
            for i in range(8):
                a(f"v_cvt_pk_bf16_f32 {v(AV + i)}, {v(AV + 2 * i)}, {v(AV + 2 * i + 1)}")
            for i in range(2):
                a(f"ds_write_b128 {v(vSTW)}, {v(AV + 4 * i, 4)} offset:{0x4000 + 128 * i}")

        def stage(sg):
            for i in range(2):
                a(f"ds_write_b128 {v(vSTW)}, {v(PK + 8 * sg + 4 * i, 4)} offset:{sg * 8192 + 128 * i}")
        self.bg_region(bgn[0], 56 if T == 0 else 110)
        if T == 0:
            self.phi_a(AK, LG)
            stage(0)
            v_path()
        else:
            self.logits()
            v_path()
            self.softmax2(RG, False, lambda: stage(0), lambda: stage(1))
        self.dump("pk", list(range(PK, PK + 16)) + list(range(AV, AV + 8)), RG)
        a.wait(lg=0)
        a("s_barrier")
        self.ts(f"{T}:bar2")
        with skip23():
            ONE, DK, DZ, PB = AV, AV + 4, AV + 8, AV + 12
            for st in range(4):
                for u in range(2):
                    a(f"ds_read_b64_tr_b16 {v(LG + 4 * st + 2 * u, 2)}, {v(vSTR)} offset:{st * 1024 + u * 512}", lg=f"p{st}")
                for u in range(2):
                    a(f"ds_read_b64_tr_b16 {v(PK + 4 * st + 2 * u, 2)}, {v(vSTR2)} offset:{st * 1024 + u * 512}", lg=f"p{st}")
            for i in range(4):
                a(f"v_mov_b32 {v(ONE + i)}, 0x3f803f80")
            for st in range(4):
                a.wait(lg=f"p{st}")
                a(f"v_mfma_f32_16x16x32_bf16 {v(DK, 4)}, {v(LG + 4 * st, 4)}, {v(PK + 4 * st, 4)}, {v(DK, 4) if st else 0}")
                a(f"v_mfma_f32_16x16x32_bf16 {v(DZ, 4)}, {v(LG + 4 * st, 4)}, {v(ONE, 4)}, {v(DZ, 4) if st else 0}")
            for i in range(2):
                a(f"v_cvt_pk_bf16_f32 {v(PB + i)}, {v(DK + 2 * i)}, {v(DK + 2 * i + 1)}")
            for i in range(2):
                a(f"v_min_u32 {v(PB + 2 + i)}, -2, {v(PB + i)}")
                a(f"v_min_u32 {v(PB + i)}, -2, {v(PB + i)}")
            for i in range(4):
                a(f"v_min_u32 {v(DZ + i)}, -2, {v(DZ + i)}")
            for i in range(2):
                a(f"v_permlane16_swap_b32 {v(PB + i)}, {v(PB + 2 + i)}")
            a("s_mov_b32 exec_lo, 0xffff")
            a("s_mov_b32 exec_hi, 0xffff")
            a(f"buffer_store_dwordx4 {v(PB, 4)}, {v(vPST)}, {s(sWS, 4)}, {s(sKVT)} offen sc1")
            a("s_mov_b32 exec_lo, 0x10001")
            a("s_mov_b32 exec_hi, 0x10001")
            a(f"buffer_store_dwordx4 {v(DZ, 4)}, {v(vZST)}, {s(sWS, 4)}, {s(sKVT)} offen sc1")
            a("s_mov_b64 exec, -1")
        self.ts(f"{T}:publish")
        with self.pass1():
            a.wait1("wq")
            self.cs_q(T)
            if T == 0:
                l = a.newlabel("hello")
                a(f"s_or_b32 {s(sT2)}, {s(sTAG)}, 0xf0")
                a(f"v_cmp_ne_u32 vcc, {s(sT2)}, {v(vHL)}")
                a(f"s_cbranch_vccz {l}")
                a(f"s_mov_b32 {s(sT1)}, {s(sTAG)}")
                a(f"s_mov_b32 {s(sTAG)}, {s(sT2)}")
                with self.uncounted():
                    self.poll(vPOLL, sHEL, vHL)
                a(f"s_mov_b32 {s(sTAG)}, {s(sT1)}")
                a.label(l)
            a("s_waitcnt lgkmcnt(0)")
            a("s_barrier")
        QA = LG
        CS, CSA, MB = LG + 4, LG + 8, LG + 10
        a(f"v_add_u32 {v(QA)}, {L_WQ[T]:#x}, {v(vWRD)}")
        a(f"ds_read_b128 {v(CS, 4)}, {v(vCSR)} offset:{T * 1536 + 1024}", lg="cs")
        if T == 1:
            for i in range(2):
                a(f"ds_read_b128 {v(PK + 8 + 4 * i, 4)}, {v(vKFR)} offset:{L_WPF - L_KVF + 528 * i}", lg="wp")
        D = 5

        def rq(j):
            for u in range(2):
                a(f"ds_read_b64_tr_b16 {v(RG + (j % D) * 4 + 2 * u, 2)}, {v(QA)} offset:{self.woff(j, u)}", lg=f"q{j}")

        PL, SEL, DR = 0, 36, 40

        def partial_load(i):
            if i % 4 == 0:
                a(f"s_add_u32 {s(sT1)}, {s(sKVT)}, {i * 1024}")
            a(f"buffer_load_dwordx4 {v(PL + 4 * i, 4)}, {v(vL16)}, {s(sWS, 4)}, {s(sT1)} offen offset:{(i % 4) * 1024} sc1", vm="pl")

        def partial_loads():
            for i in range(9):
                partial_load(i)
        for j in range(D):
            rq(j)
        fill = self.cs_pack(CS, CSA) + [f"v_mov_b32 {v(CSA + 1)}, 0", f"v_mov_b32 {v(MB)}, {v(vM)}", f"v_mov_b32 {v(MB + 1)}, 0"]
        PS = cfg["pl_step"]
        self.bg_region(bgn[1], PS)
        npl = 0
        for j in range(32):
            a.wait(lg=f"q{j}")
            a(f"v_mfma_f32_32x32x16_bf16 {v(AK, 16)}, {v(RG + (j % D) * 4, 4)}, {v(XF + 4 * j, 4)}, {v(AK, 16) if j else 0}")
            self.bg_tick()
            if j >= PS and npl < 9:
                if T == 1:
                    partial_load(npl); npl += 1
                elif (j - PS) % 3 == 0:
                    with skip23():
                        for _ in range(3):
                            partial_load(npl); npl += 1
            if j + D < 32:
                rq(j + D)
            if fill:
                a(fill.pop(0))
        a(f"v_mfma_f32_32x32x8_bf16 {v(AK, 16)}, {v(CSA, 2)}, {v(MB, 2)}, {v(AK, 16)}")
        if npl < 9:
            with skip23():
                while npl < 9:
                    partial_load(npl); npl += 1
        a(f"v_and_b32 {v(SEL)}, 0x1f0, {v(vL16)}")
        a(f"v_add_u32 {v(SEL)}, {L_SEL:#x}, {v(SEL)}")
        a(f"ds_read_b128 {v(SEL, 4)}, {v(SEL)}", lg="sel")
        self.ts(f"{T}:qgemm")
        self.dump("q", list(range(AK, AK + 16)), RG)
        EPS = RG + 6
        nbg3 = min(bgn[2], len(self.bg))
        self.bg_region(bgn[2], 56 if T == 0 else 100)
        if T == 0:
            self.phi_a(AK, LG)
            a(f"v_mov_b32 {v(EPS)}, {f2u(1e-6):#x}")
        else:
            self.logits()
            self.softmax2(RG, True)
        self.dump("pq", list(range(PK, PK + 16)), AV)
        with self.pass1():
            if T == 0:
                l, l2 = a.newlabel("w"), a.newlabel("w")
                n = len(a.vm1) - 1 - max(i for i, t_ in enumerate(a.vm1) if t_ == "wo")
                assert n >= nbg3
                a(f"s_waitcnt vmcnt({n + 9})")
                a(f"s_cmp_lt_u32 {s(sW)}, 2")
                a(f"s_cbranch_scc1 {l}")
                a.wait1("wo")
                a.label(l)
            else:
                a.wait1("wo")
        self.put_wo(T)
        self.ts(f"{T}:phiq")
        with skip23():
            lchk, lok = a.newlabel("chk"), a.newlabel("ok")
            a(f"s_mov_b32 {s(sCNT)}, 0x10000")
            if nbg3:
                l = a.newlabel("w")
                a(f"s_waitcnt vmcnt({nbg3})")
                a(f"s_cmp_eq_u32 {s(sPASS)}, 0")
                a(f"s_cbranch_scc1 {l}")
            a.label(lchk)
            a.wait(vm=0)
            if nbg3:
                a.label(l)
            m = 44
            a(f"v_max3_u32 {v(m)}, {v(PL)}, {v(PL + 1)}, {v(PL + 2)}")
            for i in range(3, 35, 2):
                a(f"v_max3_u32 {v(m)}, {v(m)}, {v(PL + i)}, {v(PL + i + 1)}")
            a(f"v_max_u32 {v(m)}, {v(m)}, {v(PL + 35)}")
            a(f"v_cmp_eq_u32 vcc, -1, {v(m)}")
            a(f"s_cbranch_vccz {lok}")
            a(f"s_sub_u32 {s(sCNT)}, {s(sCNT)}, 1")
            a("s_cbranch_scc1 L_timeout")
            partial_loads()
            a(f"s_branch {lchk}")
            a.label(lok)
            a.wait(lg="sel")
            for i in range(8):
                a(f"v_mfma_f32_16x16x32_bf16 {v(DR, 4)}, {v(SEL, 4)}, {v(PL + 4 * i, 4)}, {v(DR, 4) if i else 0}")
            Z = PL + 32
            a(f"v_permlane16_swap_b32 {v(Z)}, {v(Z + 1)}")
            a(f"v_permlane16_swap_b32 {v(Z + 2)}, {v(Z + 3)}")
            a(f"v_add_f32 {v(Z)}, {v(Z)}, {v(Z + 1)}")
            a(f"v_add_f32 {v(Z + 2)}, {v(Z + 2)}, {v(Z + 3)}")
            a(f"v_permlane32_swap_b32 {v(Z)}, {v(Z + 2)}")
            a(f"v_add_f32 {v(Z)}, {v(Z)}, {v(Z + 2)}")
            a(f"v_add_f32 {v(Z)}, {v(Z)}, {v(Z)} row_ror:4")
            a(f"v_add_f32 {v(Z)}, {v(Z)}, {v(Z)} row_ror:8")
            a(f"v_cvt_pk_bf16_f32 {v(Z)}, {v(Z)}, {v(Z)}")
            a(f"ds_write_b16 {v(vZW)}, {v(Z)}")
            for i in range(2):
                a(f"v_cvt_pk_bf16_f32 {v(DR + i)}, {v(DR + 2 * i)}, {v(DR + 2 * i + 1)}")
            a(f"ds_write_b64 {v(vKFW)}, {v(DR, 2)}")
        self.bg_now(bgn[3])
        a.wait(lg=0)
        a("s_barrier")
        self.ts(f"{T}:bar3")
        KF, ZF, DEN, O = 0, 16, RG + 6, LG
        for j in range(NJ):
            a(f"ds_read_b128 {v(KF + 4 * j, 4)}, {v(vKFR)} offset:{528 * j}", lg=f"kf{j}")
        for j in range(NJ):
            a(f"ds_read_b128 {v(ZF + 4 * j, 4)}, {v(vZR)} offset:{(j >> 1) * 64 + (j & 1) * 16}", lg=f"zf{j}")
        for j in range(NJ):
            a.wait(lg=f"kf{j}")
            a(f"v_mfma_f32_32x32x16_bf16 {v(AV, 16)}, {v(KF + 4 * j, 4)}, {v(PK + 4 * j, 4)}, {v(AV, 16) if j else 0}")
        for j in range(NJ):
            a.wait(lg=f"zf{j}")
            for d in range(4):
                a(f"v_dot2c_f32_bf16 {v(DEN)}, {v(ZF + 4 * j + d)}, {v(PK + 4 * j + d)}")
        a(f"v_rcp_f32 {v(DEN)}, {v(DEN)}")
        for i in range(8):
            a(f"v_pk_mul_f32 {v(AV + 2 * i, 2)}, {v(AV + 2 * i, 2)}, {v(DEN, 2)} op_sel_hi:[1,0]")
        for i in range(8):
            a(f"v_cvt_pk_bf16_f32 {v(O + i)}, {v(AV + 2 * i)}, {v(AV + 2 * i + 1)}")
        self.moded([f"buffer_store_dwordx4 {v(O + 4 * i, 4)}, {v(vOST)}, {s(sWS, 4)}, {s(sOST)} offen offset:{256 * i}" for i in range(2)])
        self.dump("o", list(range(O, O + 8)), PK)
        WR, DW = 64, 7
        WA = [vWOR, PK, PK + 1, PK + 2]
        for t_ in range(1, 4):
            a(f"v_xor_b32 {v(WA[t_])}, {32 * t_}, {v(vWOR)}")

        def rw(i, t_):
            for u in range(2):
                a(f"ds_read_b64_tr_b16 {v(WR + (i % DW) * 16 + 4 * t_ + 2 * u, 2)}, {v(WA[t_])} offset:{t_ * 16384 + i * 1024 + u * 512}", lg=f"wo{i}_{t_}")
        for i in range(4):
            for t_ in range(4):
                rw(i, t_)
        self.flag(sFOS, PK + 4)
        self.ts(f"{T}:oflag")
        self.bg_now(bgn[4])
        for i in range(4, DW):
            for t_ in range(4):
                rw(i, t_)
        self.poll(vPOLL, sFOP, PK + 5)
        self.ts(f"{T}:opoll")

        def ldo(i):
            if i % 4 == 0:
                a(f"s_add_u32 {s(sT0)}, {s(sOLD)}, {i * 1024}")
            a(f"buffer_load_dwordx4 {v(4 * i, 4)}, {v(vL16)}, {s(sWS, 4)}, {s(sT0)} offen offset:{(i % 4) * 1024} sc1", vm=f"o{i}")
        NO = cfg["no0"]
        for i in range(NO):
            ldo(i)
        for i in range(16):
            for t_ in range(4):
                a.wait(vm=f"o{i}", lg=f"wo{i}_{t_}")
                a(f"v_mfma_f32_16x16x32_bf16 {v(XR + 4 * t_, 4)}, {v(WR + (i % DW) * 16 + 4 * t_, 4)}, {v(4 * i, 4)}, {v(XR + 4 * t_, 4)}")
                if t_ == 0 and i + NO < 16:
                    ldo(i + NO)
                if i + DW < 16:
                    rw(i + DW, t_)
        nlate = len(self.bg)
        self.bg_now(99)
        self.ts(f"{T}:ogemm")
        self.dump("x", list(range(XR, XR + 16)), PK)
        if cfg["stop"] is not None and cfg["stop"] % 2 == T:
            a(f"s_cmp_eq_u32 {s(sLAY)}, {cfg['stop']}")
            a("s_cbranch_scc1 L_final")
        if T == 1:
            a(f"s_cmp_eq_u32 {s(sPASS)}, 1")
            a("s_cbranch_scc1 L_final")
        self.x_publish()
        a("s_barrier")
        n0 = min(8, 16 - nlate)
        self.put_wkv(1 - T, 0, n0)
        a(f"s_add_u32 {s(sTAG)}, {s(sTAG)}, 16")
        a(f"s_add_u32 {s(sKVT)}, {s(sKVT)}, {KVP[T + 1] - KVP[T]}")
        a(f"s_add_u32 {s(sLAY)}, {s(sLAY)}, 1")
        self.flag(sFXS, PK + 4)
        self.put_wkv(1 - T, n0, 16)
        self.ts(f"{T}:xflag")
        if T == 1:
            a(f"s_mov_b32 {s(sPASS)}, 1")
            a(f"s_mov_b64 {s(sPM, 2)}, -1")
            a("s_branch L_layer0")

    def prologue(self):
        a, cfg = self.a, self.cfg
        a(f"s_cmp_ge_u32 {s(sID)}, 256")
        a("s_cbranch_scc1 L_end")
        a(f"s_load_dwordx16 {s(4, 16)}, s[0:1], 0")
        a(f"s_load_dwordx4 {s(20, 4)}, s[0:1], 64")
        a(f"s_getpc_b64 {s(sSAVE, 2)}")
        a.label("L_pc")
        a(f"v_min_u32 v1, (L_codeend-L_pc)/128, v0")
        a("v_lshlrev_b32 v1, 7, v1")
        a(f"global_load_dword v2, v1, {s(sSAVE, 2)}")
        if cfg["ts"]:
            a(f"s_mov_b32 {s(sTSI)}, 0")
            a(f"v_mov_b32 {v(vTS)}, 0")
            a(f"s_memrealtime s[78:79]")
        L = 3
        a(f"v_lshrrev_b32 v1, 6, v0")
        a(f"v_and_b32 {v(L)}, 63, v0")
        a(f"v_readfirstlane_b32 {s(sW)}, v1")
        a(f"v_lshlrev_b32 {v(vL16)}, 4, {v(L)}")
        a(f"s_getreg_b32 {s(sXCC)}, hwreg(HW_REG_XCC_ID, 0, 4)")
        a(f"s_lshr_b32 {s(sT0)}, {s(sID)}, 3")
        a(f"s_and_b32 {s(sC)}, {s(sT0)}, 15")
        a(f"s_lshr_b32 {s(sT0)}, {s(sT0)}, 4")
        a(f"s_and_b32 {s(sR)}, {s(sID)}, 7")
        a(f"s_lshl_b32 {s(sR)}, {s(sR)}, 1")
        a(f"s_add_u32 {s(sR)}, {s(sR)}, {s(sT0)}")
        sBP, sSUB, sCG, sB = 99, 100, 101, sCNT
        a(f"s_lshl_b32 {s(sB)}, {s(sR)}, 2")
        a(f"s_lshr_b32 {s(sT0)}, {s(sC)}, 3")
        a(f"s_lshl_b32 {s(sT0)}, {s(sT0)}, 1")
        a(f"s_lshr_b32 {s(sT1)}, {s(sW)}, 1")
        a(f"s_add_u32 {s(sT0)}, {s(sT0)}, {s(sT1)}")
        a(f"s_add_u32 {s(sBP)}, {s(sB)}, {s(sT0)}")
        a(f"s_add_u32 {s(sB)}, {s(sB)}, {s(sW)}")
        a(f"s_and_b32 {s(sSUB)}, {s(sW)}, 1")
        a(f"s_and_b32 {s(sCG)}, {s(sC)}, 7")
        a(f"s_lshl_b32 {s(sFIN)}, {s(sBP)}, 15")
        a(f"s_lshl_b32 {s(sT0)}, {s(sSUB)}, 14")
        a(f"s_add_u32 {s(sFIN)}, {s(sFIN)}, {s(sT0)}")
        a(f"s_add_u32 {s(sOLD)}, {s(sFIN)}, {OBUF}")
        a(f"s_lshl_b32 {s(sT0)}, {s(sCG)}, 7")
        a(f"s_add_u32 {s(sFIN)}, {s(sFIN)}, {s(sT0)}")
        self.rowmajor_voff(4, 5)
        a(f"s_lshl_b32 {s(sT0)}, {s(sC)}, 6")
        a(f"s_mul_i32 {s(sQOFF)}, {s(sW)}, {128 * 3072}")
        a(f"s_add_u32 {s(sQOFF)}, {s(sQOFF)}, {s(sT0)}")
        a(f"s_mul_i32 {s(sWOFF)}, {s(sT1)}, {256 * 3072}")
        a(f"s_add_u32 {s(sWOFF)}, {s(sWOFF)}, {s(sT0)}")
        a(f"s_lshl_b32 {s(sT0)}, {s(sSUB)}, 10")
        a(f"s_add_u32 {s(sWOFF)}, {s(sWOFF)}, {s(sT0)}")
        a(f"s_add_u32 {s(sWOFF)}, {s(sWOFF)}, 1024")
        self.w_voff(5)
        a(f"s_mov_b32 {s(sTMP + 3)}, 0x20000")
        a(f"s_mov_b32 {s(sWS + 3)}, 0x20000")
        a(f"s_mov_b32 {s(sOUT + 3)}, 0x20000")
        a(f"s_mov_b32 {s(sWS + 2)}, {WS_SIZE:#x}")
        a(f"s_mov_b32 {s(sOUT + 2)}, 0x200000")
        for T in range(2):
            a(f"s_mov_b32 {s(sSW[T] + 2)}, {512 * 3072}")
            a(f"s_mov_b32 {s(sSW[T] + 3)}, 0x20000")
            a(f"s_mov_b32 {s(sSO[T] + 2)}, {512 * 1024}")
            a(f"s_mov_b32 {s(sSO[T] + 3)}, 0x20000")
        a("s_waitcnt lgkmcnt(0)")
        self.ts("kernarg")
        a(f"s_load_dword {s(sEP)}, {s(sPWS, 2)}, 0")
        self.srd_tmp(sPX, 0x200000)
        for i in range(2):
            a(f"buffer_load_dwordx4 {v(8 + 4 * i, 4)}, v4, {s(sTMP, 4)}, {s(sFIN)} offen offset:{64 * i}", vm="x0")
        self.srd_tmp(sPPHI, 16384)
        a(f"s_lshl_b32 {s(sT0)}, {s(sC)}, 10")
        a(f"buffer_load_dwordx4 v[16:19], {v(vL16)}, {s(sTMP, 4)}, {s(sT0)} offen", vm="phi")
        a(f"s_mov_b64 {s(sSW[0], 2)}, {s(sPWA, 2)}")
        for i in range(cfg["n1"]):
            self.ld_wkv(0, i, 5)
        a(f"s_mov_b64 {s(sSW[1], 2)}, {s(sPWB, 2)}")
        a(f"s_mov_b64 {s(sSO[0], 2)}, {s(sPWOA, 2)}")
        a(f"s_mov_b64 {s(sSO[1], 2)}, {s(sPWOB, 2)}")
        if cfg["mallpf"]:
            a(f"v_lshlrev_b32 v6, 3, {v(vL16)}")
            a(f"s_mul_i32 {s(sT0)}, {s(sID)}, 6144")
            a(f"s_lshl_b32 {s(sT1)}, {s(sID)}, 11")
            for w_, (srd, so, lanes) in enumerate(((sSW[1], sT0, 48), (sSO[0], sT1, 16), (sSO[1], sT1, 16), (sSW[0], sT0, 32))):
                with self.only_if(f"s_cmp_eq_u32 {s(sW)}, {w_}"):
                    a(f"v_min_u32 v6, {(lanes - 1) * 128}, v6")
                    a(f"buffer_load_dword v7, v6, {s(srd, 4)}, {s(so)} offen")
        a(f"s_lshl_b32 {s(sW13)}, {s(sW)}, 13")
        a(f"s_mov_b64 {s(sPM, 2)}, 0")
        a(f"s_mov_b32 {s(sWS)}, {s(sPWS)}")
        a(f"s_mov_b32 {s(sWS + 1)}, {s(sPWS + 1)}")
        a(f"s_mov_b32 {s(sOUT)}, {s(sPOUT)}")
        a(f"s_mov_b32 {s(sOUT + 1)}, {s(sPOUT + 1)}")
        a(f"s_lshl_b32 {s(sXLD)}, {s(sB)}, 15")
        a(f"s_lshl_b32 {s(sT0)}, {s(sC)}, 10")
        a(f"s_add_u32 {s(sOST)}, {s(sXLD)}, {s(sT0)}")
        a(f"s_add_u32 {s(sOST)}, {s(sOST)}, {OBUF}")
        a(f"s_lshl_b32 {s(sSTLD)}, {s(sB)}, 11")
        a(f"s_add_u32 {s(sSTLD)}, {s(sSTLD)}, {STATS}")
        a(f"s_lshl_b32 {s(sT0)}, {s(sB)}, 7")
        a(f"s_add_u32 {s(sFXP)}, {s(sT0)}, {FLAGX}")
        a(f"s_lshl_b32 {s(sT1)}, {s(sC)}, 2")
        a(f"s_add_u32 {s(sFOS)}, {s(sT0)}, {s(sT1)}")
        a(f"s_add_u32 {s(sFOS)}, {s(sFOS)}, {FLAGO}")
        a(f"s_lshl_b32 {s(sT0)}, {s(sBP)}, 7")
        a(f"s_add_u32 {s(sFOP)}, {s(sT0)}, {FLAGO}")
        a(f"s_lshl_b32 {s(sT1)}, {s(sCG)}, 1")
        a(f"s_add_u32 {s(sT1)}, {s(sT1)}, {s(sSUB)}")
        a(f"s_lshl_b32 {s(sT1)}, {s(sT1)}, 2")
        a(f"s_add_u32 {s(sFXS)}, {s(sT0)}, {s(sT1)}")
        a(f"s_add_u32 {s(sFXS)}, {s(sFXS)}, {FLAGX}")
        a(f"s_lshl_b32 {s(sT2)}, {s(sSUB)}, 8")
        a(f"s_lshl_b32 {s(sXST)}, {s(sBP)}, 15")
        a(f"s_lshl_b32 {s(sT0)}, {s(sCG)}, 12")
        a(f"s_add_u32 {s(sXST)}, {s(sXST)}, {s(sT0)}")
        a(f"s_add_u32 {s(sXST)}, {s(sXST)}, {s(sT2)}")
        a(f"s_lshl_b32 {s(sSTST)}, {s(sBP)}, 11")
        a(f"s_lshr_b32 {s(sT0)}, {s(sCG)}, 2")
        a(f"s_lshl_b32 {s(sT0)}, {s(sT0)}, 9")
        a(f"s_and_b32 {s(sT1)}, {s(sCG)}, 3")
        a(f"s_lshl_b32 {s(sT1)}, {s(sT1)}, 2")
        a(f"s_add_u32 {s(sSTST)}, {s(sSTST)}, {s(sT0)}")
        a(f"s_add_u32 {s(sSTST)}, {s(sSTST)}, {s(sT1)}")
        a(f"s_add_u32 {s(sSTST)}, {s(sSTST)}, {s(sT2)}")
        a(f"s_add_u32 {s(sSTST)}, {s(sSTST)}, {STATS}")
        a(f"s_mul_i32 {s(sKVT)}, {s(sW)}, {TILE}")
        a(f"s_mul_i32 {s(sT0)}, {s(sC)}, 9216")
        a(f"s_add_u32 {s(sKVT)}, {s(sKVT)}, {s(sT0)}")
        a(f"s_add_u32 {s(sKVT)}, {s(sKVT)}, {KVP[0]}")
        a(f"s_lshl_b32 {s(sHEL)}, {s(sC)}, 2")
        a(f"s_add_u32 {s(sHEL)}, {s(sHEL)}, {s(sW)}")
        a(f"s_lshl_b32 {s(sHEL)}, {s(sHEL)}, 7")
        a(f"s_add_u32 {s(sHEL)}, {s(sHEL)}, {HELLO}")
        a(f"s_lshl_b32 {s(sOOFF)}, {s(sW)}, 17")
        a(f"s_lshl_b32 {s(sT0)}, {s(sCG)}, 7")
        a(f"s_add_u32 {s(sOOFF)}, {s(sOOFF)}, {s(sT0)}")
        a(f"s_mov_b32 {s(sLN2)}, {LN2:#x}")
        a(f"s_mov_b32 {s(sLN2b)}, {LN2:#x}")
        a(f"s_mov_b32 {s(sDELTA)}, {DELTA:#x}")
        a(f"s_mov_b32 {s(sHI)}, 0")
        a(f"s_mov_b32 {s(sHI + 1)}, -1")
        a(f"s_mov_b32 {s(sPASS)}, 0")
        a(f"s_mov_b32 {s(sLAY)}, 0")
        a(f"s_mov_b32 {s(sMODE)}, 0")
        a(f"s_lshl_b32 {s(sANN)}, {s(sR)}, 7")
        a(f"s_add_u32 {s(sANN)}, {s(sANN)}, {ANN}")
        a(f"s_lshl_b32 {s(sGW)}, {s(sR)}, 4")
        a(f"s_add_u32 {s(sGW)}, {s(sGW)}, {s(sC)}")
        a(f"s_lshl_b32 {s(sGW)}, {s(sGW)}, 2")
        a(f"s_add_u32 {s(sGW)}, {s(sGW)}, {s(sW)}")
        i16, g, half, q, jj, t0, t1 = 20, 21, 22, 23, 24, 25, 26
        a(f"v_and_b32 {v(i16)}, 15, {v(L)}")
        a(f"v_lshrrev_b32 {v(g)}, 4, {v(L)}")
        a(f"v_lshrrev_b32 {v(half)}, 5, {v(L)}")
        a(f"v_and_b32 {v(q)}, 3, {v(L)}")
        a(f"v_bfe_u32 {v(jj)}, {v(L)}, 2, 2")
        a(f"v_lshlrev_b32 {v(vPOLL)}, 2, {v(i16)}")
        a(f"v_lshlrev_b32 {v(t0)}, 4, {v(i16)}")
        a(f"v_lshl_add_u32 {v(vXST)}, {v(g)}, 10, {v(t0)}")
        a(f"v_lshl_add_u32 {v(vSST)}, {v(half)}, 10, {v(t0)}")
        a(f"v_lshl_add_u32 {v(vSLD)}, {v(half)}, 9, {v(vL16)}")
        a(f"s_lshl_b32 {s(sT0)}, {s(sR)}, 9")
        a(f"v_lshl_add_u32 {v(vPST)}, {v(half)}, 8, {v(t0)}")
        a(f"v_add_u32 {v(vPST)}, {s(sT0)}, {v(vPST)}")
        a(f"s_lshl_b32 {s(sT1)}, {s(sR)}, 6")
        a(f"s_add_u32 {s(sT1)}, {s(sT1)}, 8192")
        a(f"v_lshl_add_u32 {v(vZST)}, {v(g)}, 4, {s(sT1)}")
        a(f"v_add_u32 {v(t1)}, {s(sT0)}, {v(vL16)}")
        a(f"v_lshl_add_u32 v27, {v(q)}, 4, {s(sT1)}")
        a(f"v_cndmask_b32 {v(t1)}, {v(t1)}, v27, {s(sHI, 2)}")
        for i in range(4):
            a(f"v_mov_b32 {v(28 + i)}, -1")
        a("s_mov_b32 exec_hi, 15")
        for l in (1, 3):
            a(f"s_add_u32 {s(sT0)}, {s(sKVT)}, {KVP[l] - KVP[0]}")
            a(f"buffer_store_dwordx4 v[28:31], {v(t1)}, {s(sWS, 4)}, {s(sT0)} offen sc1")
        with self.only_if(f"s_cmp_lt_u32 {s(sW)}, 2"):
            for l in (0, 2):
                a(f"s_add_u32 {s(sT0)}, {s(sKVT)}, {KVP[l] - KVP[0]}")
                a(f"buffer_store_dwordx4 v[28:31], {v(t1)}, {s(sWS, 4)}, {s(sT0)} offen sc1")
        a("s_mov_b32 exec_hi, -1")
        a(f"v_and_b32 {v(t1)}, 1, {v(g)}")
        a(f"v_lshl_add_u32 {v(vOST)}, {v(t1)}, 14, {v(t0)}")
        a(f"v_lshl_add_u32 {v(vOST)}, {v(half)}, 9, {v(vOST)}")
        a(f"v_lshlrev_b32 {v(vWRD)}, 11, {v(half)}")
        a(f"v_lshl_add_u32 {v(vWRD)}, {v(jj)}, 6, {v(vWRD)}")
        a(f"v_lshl_add_u32 {v(vWRD)}, {v(t1)}, 4, {v(vWRD)}")
        a(f"v_and_b32 v27, 1, {v(q)}")
        a(f"v_lshrrev_b32 v32, 1, {v(q)}")
        a(f"v_lshl_add_u32 {v(vWRD)}, v27, 5, {v(vWRD)}")
        a(f"v_lshl_add_u32 {v(vWRD)}, v32, 3, {v(vWRD)}")
        a(f"v_lshlrev_b32 {v(vSTR)}, 8, {v(half)}")
        a(f"v_lshl_add_u32 {v(vSTR)}, v32, 7, {v(vSTR)}")
        a(f"v_lshl_add_u32 {v(vSTR)}, {v(t1)}, 6, {v(vSTR)}")
        a(f"v_lshl_add_u32 {v(vSTR)}, {v(jj)}, 4, {v(vSTR)}")
        a(f"v_lshl_add_u32 {v(vSTR)}, v27, 3, {v(vSTR)}")
        a(f"s_lshl_b32 {s(sT0)}, {s(sSUB)}, 12")
        a(f"s_add_u32 {s(sT0)}, {s(sT0)}, {L_STG + 0x4000}")
        a(f"v_add_u32 {v(vSTR2)}, {s(sT0)}, {v(vSTR)}")
        a(f"s_lshl_b32 {s(sT0)}, {s(sW)}, 12")
        a(f"s_add_u32 {s(sT0)}, {s(sT0)}, {L_STG}")
        a(f"v_add_u32 {v(vSTR)}, {s(sT0)}, {v(vSTR)}")
        a(f"v_bfe_u32 v33, {v(L)}, 3, 2")
        a(f"v_and_b32 {v(vSTW)}, 0x70, {v(vL16)}")
        a(f"v_lshl_add_u32 {v(vSTW)}, v33, 8, {v(vSTW)}")
        a(f"v_lshl_add_u32 {v(vSTW)}, {v(half)}, 12, {v(vSTW)}")
        a(f"s_lshl_b32 {s(sT0)}, {s(sW)}, 10")
        a(f"s_add_u32 {s(sT0)}, {s(sT0)}, {L_STG}")
        a(f"v_add_u32 {v(vSTW)}, {s(sT0)}, {v(vSTW)}")
        a(f"v_bfe_u32 v34, {v(L)}, 1, 2")
        a(f"v_xor_b32 v33, v33, v34")
        a(f"v_lshlrev_b32 {v(vWOW)}, 14, v34")
        a(f"v_lshl_add_u32 {v(vWOW)}, v33, 5, {v(vWOW)}")
        a(f"v_lshl_add_u32 {v(vWOW)}, {v(half)}, 9, {v(vWOW)}")
        a(f"v_lshl_add_u32 {v(vWOW)}, v27, 4, {v(vWOW)}")
        a(f"s_lshl_b32 {s(sT0)}, {s(sW)}, 12")
        a(f"v_add_u32 {v(vWOW)}, {s(sT0)}, {v(vWOW)}")
        a(f"v_lshlrev_b32 {v(vWOR)}, 3, {v(L)}")
        a(f"s_lshl_b32 {s(sT0)}, {s(sSUB)}, 15")
        a(f"s_and_b32 {s(sT1)}, {s(sW)}, 2")
        a(f"s_lshl_b32 {s(sT2)}, {s(sT1)}, 13")
        a(f"s_add_u32 {s(sT0)}, {s(sT0)}, {s(sT2)}")
        a(f"v_add_u32 {v(vWKW)}, {s(sT0)}, {v(vL16)}")
        a(f"v_and_b32 v33, 0x1f0, {v(vL16)}")
        a(f"v_add_u32 {v(vCSR)}, {L_CSP:#x}, v33")
        a(f"v_and_b32 v34, 1, {v(jj)}")
        a(f"v_cmp_eq_u32 vcc, v34, {v(half)}")
        a(f"v_mov_b32 v35, 512")
        a(f"v_cndmask_b32 {v(vKFR)}, v35, v33, vcc")
        a(f"v_add_u32 {v(vKFR)}, {L_KVF:#x}, {v(vKFR)}")
        a(f"s_mul_i32 {s(sT0)}, {s(sT1)}, 528")
        a(f"s_lshl_b32 {s(sT2)}, {s(sSUB)}, 6")
        a(f"s_add_u32 {s(sT0)}, {s(sT0)}, {s(sT2)}")
        a(f"s_add_u32 {s(sT0)}, {s(sT0)}, {L_KVF}")
        a(f"v_mul_u32_u24 {v(vKFW)}, 528, {v(half)}")
        a(f"v_lshl_add_u32 {v(vKFW)}, {v(q)}, 4, {v(vKFW)}")
        a(f"v_lshl_add_u32 {v(vKFW)}, {v(jj)}, 7, {v(vKFW)}")
        a(f"v_lshl_add_u32 {v(vKFW)}, {v(t1)}, 3, {v(vKFW)}")
        a(f"v_add_u32 {v(vKFW)}, {s(sT0)}, {v(vKFW)}")
        a(f"s_lshl_b32 {s(sT0)}, {s(sW)}, 5")
        a(f"s_add_u32 {s(sT0)}, {s(sT0)}, {L_ZB}")
        a(f"v_lshl_add_u32 {v(vZW)}, {v(q)}, 2, {v(g)}")
        a(f"v_lshl_add_u32 {v(vZW)}, {v(vZW)}, 1, {s(sT0)}")
        a(f"v_mov_b32 v35, {L_ZB:#x}")
        a(f"v_lshl_add_u32 {v(vZR)}, {v(half)}, 5, v35")
        a(f"v_mov_b32 v36, 0x3f80")
        a(f"v_lshlrev_b32 v37, 4, v27")
        a(f"v_lshlrev_b32 v36, v37, v36")
        a(f"v_lshrrev_b32 v37, 1, {v(i16)}")
        a(f"v_lshlrev_b32 v38, 2, {v(t1)}")
        a(f"v_sub_u32 v37, v37, v38")
        for d in range(4):
            a(f"v_cmp_eq_u32 vcc, {d}, v37")
            a(f"v_cndmask_b32 {v(40 + d)}, 0, v36, vcc")
        a(f"v_add_u32 v33, {L_SEL:#x}, v33")
        a(f"ds_write_b128 v33, v[40:43]")
        for i in range(4):
            a(f"v_mov_b32 {v(44 + i)}, 0")
        a(f"v_min_u32 v33, 5, {v(L)}")
        a(f"v_mul_u32_u24 v33, 528, v33")
        a(f"v_add_u32 v33, {L_KVF + 512:#x}, v33")
        a(f"ds_write_b128 v33, v[44:47]")
        a.wait(vm="x0")
        self.ts("x0")
        for i in range(2):
            for d in range(2):
                a(f"v_permlane16_swap_b32 {v(8 + 4 * i + d)}, {v(8 + 4 * i + 2 + d)}")
        for i in range(8):
            a(f"v_lshlrev_b32 {v(XR + 2 * i)}, 16, {v(8 + i)}")
            a(f"v_and_b32 {v(XR + 2 * i + 1)}, 0xffff0000, {v(8 + i)}")
        self.x_publish()
        for i in range(cfg["n1"], 16):
            self.ld_wkv(0, i, 5)
        a(f"s_lshl_b32 {s(sT0)}, {s(sW)}, 10")
        a(f"s_add_u32 {s(sT0)}, {s(sT0)}, {L_STG}")
        a(f"v_add_u32 v33, {s(sT0)}, {v(vL16)}")
        a.wait(vm="phi")
        a(f"ds_write_b128 v33, v[16:19]")
        a(f"v_lshlrev_b32 v33, 9, v27")
        a(f"v_lshl_add_u32 v33, {v(half)}, 8, v33")
        a(f"v_lshl_add_u32 v33, {v(jj)}, 5, v33")
        a(f"v_lshl_add_u32 v33, {v(t1)}, 4, v33")
        a(f"v_lshl_add_u32 v33, v32, 3, v33")
        a(f"v_add_u32 v33, {s(sT0)}, v33")
        a("s_waitcnt lgkmcnt(0)")
        a(f"ds_read_b64_tr_b16 v[16:17], v33")
        a(f"ds_read_b64_tr_b16 v[18:19], v33 offset:128")
        a(f"v_lshl_add_u32 v33, {v(half)}, 4, {v(vL16)}")
        a(f"v_add_u32 v33, {L_WPF:#x}, v33")
        a(f"s_mul_i32 {s(sTAG)}, {s(sEP)}, 0x9e3779b1")
        a(f"s_add_u32 {s(sTAG)}, {s(sTAG)}, 0x7f4a7c15")
        a(f"s_and_b32 {s(sTAG)}, {s(sTAG)}, 0xffffff00")
        a(f"s_or_b32 {s(sT1)}, {s(sTAG)}, 0xf0")
        a(f"s_or_b32 {s(sXCC)}, {s(sTAG)}, {s(sXCC)}")
        a(f"v_mov_b32 v34, {s(sXCC)}")
        a(f"v_mov_b32 v35, {s(sT1)}")
        a(f"s_lshl_b32 {s(sT0)}, {s(sR)}, 2")
        a(f"s_add_u32 {s(sT0)}, {s(sT0)}, {s(sHEL)}")
        a("s_waitcnt lgkmcnt(0)")
        a.lg.clear()
        a(f"ds_write_b128 v33, v[16:19]")
        self.put_wkv(0, 0, cfg["n1"], waits=True)
        a.wait(vm="xst")
        a("s_mov_b64 exec, 1")
        a(f"buffer_store_dword v34, off, {s(sWS, 4)}, {s(sFXS)}")
        a(f"buffer_store_dword v35, off, {s(sWS, 4)}, {s(sT0)} sc1")
        with self.only_if(f"s_cmp_eq_u32 {s(sW)}, 0"):
            a(f"s_lshl_b32 {s(sT0)}, {s(sC)}, 2")
            a(f"s_add_u32 {s(sT0)}, {s(sT0)}, {s(sANN)}")
            a(f"buffer_store_dword v34, off, {s(sWS, 4)}, {s(sT0)} sc1")
        a("s_mov_b64 exec, -1")
        self.ts("flag0")
        self.put_wkv(0, cfg["n1"], 16, waits=True)
        self.ts("wkv0")

    def poll0(self):
        a = self.a
        a.label("L_poll0")
        a(f"v_and_b32 v33, 0x100, {v(vL16)}")
        a(f"v_add_u32 v33, v33, {v(vPOLL)}")
        a(f"s_and_b32 {s(sT0)}, {s(sFXP)}, 0xfffffeff")
        a(f"s_mov_b32 {s(sCNT)}, 0x40000")
        a.label("L_poll0a")
        if not self.cfg["force_global"]:
            a(f"buffer_load_dword v34, v33, {s(sWS, 4)}, {s(sT0)} offen sc1")
            a(f"s_sub_u32 {s(sCNT)}, {s(sCNT)}, 1")
            a("s_cbranch_scc1 L_timeout")
            a("s_waitcnt vmcnt(0)")
            a(f"v_cmp_ne_u32 vcc, {s(sXCC)}, v34")
            a("s_cbranch_vccz L_enter")
            a(f"s_and_b32 {s(sT1)}, {s(sCNT)}, 15")
            a("s_cbranch_scc1 L_poll0a")
            a(f"buffer_load_dword v34, {v(vPOLL)}, {s(sWS, 4)}, {s(sANN)} offen sc1")
            a("s_waitcnt vmcnt(0)")
            a(f"v_xor_b32 v34, {s(sXCC)}, v34")
            a(f"v_add_u32 v34, -1, v34")
            a(f"v_cmp_gt_u32 vcc, 15, v34")
            a("s_cbranch_vccz L_poll0a")
        a(f"s_mov_b32 {s(sMODE)}, 1")
        for r_ in (sFXS, sFXP):
            a(f"s_add_u32 {s(r_)}, {s(r_)}, {FLAGX2 - FLAGX}")
        for r_ in (sSTST, sSTLD):
            a(f"s_add_u32 {s(r_)}, {s(r_)}, {STATS2 - STATS}")
        self.x_publish(0)
        self.flag(sFXS, 16)
        a("s_branch L_npoll")

    def rowmajor_voff(self, d, t):
        a = self.a
        a(f"v_and_b32 {v(d)}, 0xf0, {v(vL16)}")
        a(f"v_lshlrev_b32 {v(d)}, 6, {v(d)}")
        a(f"v_bfe_u32 {v(t)}, {v(vL16)}, 8, 1")
        a(f"v_lshl_add_u32 {v(d)}, {v(t)}, 5, {v(d)}")
        a(f"v_lshrrev_b32 {v(t)}, 9, {v(vL16)}")
        a(f"v_lshl_add_u32 {v(d)}, {v(t)}, 4, {v(d)}")

    def final(self):
        a = self.a
        a.label("L_final")
        X = LG
        self.rowmajor_voff(PK, PK + 1)
        for i in range(8):
            a(f"v_cvt_pk_bf16_f32 {v(X + i)}, {v(XR + 2 * i)}, {v(XR + 2 * i + 1)}")
        for i in range(2):
            for d in range(2):
                a(f"v_permlane16_swap_b32 {v(X + 4 * i + d)}, {v(X + 4 * i + 2 + d)}")
        for i in range(2):
            a(f"buffer_store_dwordx4 {v(X + 4 * i, 4)}, {v(PK)}, {s(sOUT, 4)}, {s(sFIN)} offen offset:{64 * i}")
        with self.only_if(f"s_cmp_eq_u32 {s(sGW)}, 0"):
            a(f"s_add_u32 {s(sEP)}, {s(sEP)}, 1")
            a(f"v_mov_b32 v0, {s(sEP)}")
            a("s_mov_b64 exec, 1")
            a(f"buffer_store_dword v0, off, {s(sWS, 4)}, 0 sc1")
            a("s_mov_b64 exec, -1")
        if self.cfg["ts"]:
            a("s_waitcnt vmcnt(0)")
            self.ts("end")
            a("s_memrealtime s[72:73]")
            a("s_waitcnt lgkmcnt(0)")
            a(f"v_writelane_b32 {v(vTS)}, s78, 61")
            a(f"v_writelane_b32 {v(vTS)}, s72, 62")
            a(f"v_writelane_b32 {v(vTS)}, {s(sMODE)}, 63")
            a(f"s_lshl_b32 {s(sT0)}, {s(sGW)}, 8")
            a(f"s_add_u32 {s(sT0)}, {s(sT0)}, {DBG + 0x2000000}")
            a(f"v_lshrrev_b32 v0, 2, {v(vL16)}")
            a(f"buffer_store_dword {v(vTS)}, v0, {s(sWS, 4)}, {s(sT0)} offen")
        a.label("L_timeout")
        a.label("L_end")
        a("s_endpgm")

    def build(self):
        a = self.a
        self.prologue()
        self.layer(0)
        self.layer(1)
        self.final()
        self.poll0()
        a.raw(self.tail)
        a.label("L_codeend")
        a("s_endpgm")
        nops = a.pad_hazards()
        head = open(f"cdna_kernels/{NAME}.s.ref").read().split("; Override launch")[0]
        out = head + f"; @launch grid=(256,1,1) block=(256,1,1) lds={LDS_SIZE}\n"
        out += f""".amdgcn_target "amdgcn-amd-amdhsa--gfx950"
.text
.globl {NAME}_kernel
.p2align 8
.type {NAME}_kernel,@function
{NAME}_kernel:
"""
        out += a.text()
        out += f""".section .rodata,"a"
.p2align 6
.amdhsa_kernel {NAME}_kernel
  .amdhsa_next_free_vgpr 512
  .amdhsa_next_free_sgpr 102
  .amdhsa_accum_offset 256
  .amdhsa_group_segment_fixed_size 0
  .amdhsa_kernarg_size 80
  .amdhsa_user_sgpr_count 2
  .amdhsa_user_sgpr_kernarg_segment_ptr 1
  .amdhsa_system_sgpr_workgroup_id_x 1
.end_amdhsa_kernel
"""
        self.nops = nops
        return out


if __name__ == "__main__":
    import ast
    kw = {}
    out = sys.argv[1]
    for x in sys.argv[2:]:
        k, val = x.split("=", 1)
        kw[k] = ast.literal_eval(val)
    g = Gen(**kw)
    txt = g.build()
    open(out, "w").write(txt)
    print(f"wrote {out}: {len(g.a.ins)} lines, {g.nops} pad states", file=sys.stderr)
```

```python
import sys
import contextlib
from asmlib import Asm, Ins

NAME = "interleave_layers__linear_attn_block__linear_kernel_hedgehog__prompt"

CFG = dict(
    ts=0,
    dump=None,
    n1=8,
    bg0=(10, 14, 8, 0, 0, 8),
    bg1=(14, 10, 0, 0, 0, 0),
    bgg=2,
    pl_step=22,
    nx0=8, no0=8,
    mallpf=1,
    force_global=0,
    stop=None,
    amp=None,
)

FLAGX, FLAGO, HELLO, FLAGX2, ANN, STATS, STATS2 = 0x1000, 0x3000, 0x5000, 0x7000, 0x9000, 0x10000, 0x1E0000
KVP = [0x30000, 0x78000, 0x108000, 0x150000]
TILE = 0x24000
OBUF = 0x200000
DBG = 0x400000
WS_SIZE = 0x8000000
L_P, L_WQ, L_STG = 0x0, [0x10000, 0x18000], 0x20000
L_KVF = 0x26000
L_WPF = L_KVF + 4 * 528
L_ZB = L_WPF + 2 * 528
L_CSP = 0x26D00
L_SEL = 0x27900
LDS_SIZE = 0x28000
XF, AK, AV, RG, LG, XR, PK = 0, 128, 144, 160, 192, 208, 224
vSTR, vSTR2, vPST, vZST, vKFW, vZW, vZR, vOST = range(184, 192)
vL16, vWRD, vSTW, vKFR, vS, vRS, vM, vXST, vSST, vSLD, vPOLL, vWOR, vWOW, vWKW, vCSR, vTS = range(240, 256)
A_WKV, A_WO = [0, 64], [128, 192]
sID = 2
sPX, sPWA, sPWOA, sPBX, sPWB, sPPHI, sPWOB, sPOUT, sPDBG, sPWS = range(4, 24, 2)
sWS, sOUT, sTMP = 24, 28, 32
(sW, sC, sR, sXLD, sSTLD, sFXP, sOST, sFOS, sOLD, sFOP, sXST, sSTST, sFXS, sKVT, sTAG, sMODE, sPASS,
 sEP, sXCC, sT0, sT1, sT2, sT3, sCNT, sWOFF, sQOFF, sOOFF, sHEL, sLN2, sLN2b, sDELTA, sFIN) = range(36, 68)
sHI = 68
sSAVE = 70
sTSA = 72
sTSI = 74
sGW = 75
sLAY = 76
sANN = 77
sW13 = 98
sPM = 96
sSW, sSO = [80, 84], [88, 92]
vBW, vBO, vHL = RG + 20, RG + 21, RG + 22
assert sLN2 % 2 == 0

LOG2E = 0x3FB8AA3B
LN2 = 0x3F317218
DELTA = 0x35C1A4C3
import struct
def f2u(x): return struct.unpack("<I", struct.pack("<f", x))[0]
DELTA = f2u(1e-6 * 1.4426950408889634)


def v(a, n=1): return f"v{a}" if n == 1 else f"v[{a}:{a + n - 1}]"
def ar(a, n=1): return f"a{a}" if n == 1 else f"a[{a}:{a + n - 1}]"
def s(a, n=1): return f"s{a}" if n == 1 else f"s[{a}:{a + n - 1}]"


class Gen:
    def __init__(self, **kw):
        self.cfg = dict(CFG)
        self.cfg.update(kw)
        self.a = Asm()
        self.tail = []
        self.nts = 0
        self.tsnames = []

    @contextlib.contextmanager
    def uncounted(self, first=False):
        a = self.a
        vm, lg, c1 = list(a.vm), list(a.lg), a.count1
        a.count1 = c1 and first
        yield
        a.vm, a.lg, a.count1 = vm, lg, c1

    @contextlib.contextmanager
    def only_if(self, cmp, first=False):
        a = self.a
        l = a.newlabel("skip")
        a(cmp)
        a(f"s_cbranch_scc0 {l}")
        with self.uncounted(first):
            yield
        a.label(l)

    def pass1(self):
        return self.only_if(f"s_cmp_eq_u32 {s(sPASS)}, 0", True)

    def bg_region(self, n, slots):
        self.bg_left = min(n, len(self.bg))
        groups = -(-self.bg_left // self.cfg["bgg"])
        self.bg_slot = 0
        self.bg_at = {(k * slots) // groups for k in range(groups)} if groups else set()
        assert len(self.bg_at) == groups
        if groups:
            self.a(f"s_mov_b64 vcc, {s(sPM, 2)}")

    def bg_tick(self):
        a = self.a
        if self.bg_slot in self.bg_at:
            l = a.newlabel("bg")
            a(f"s_cbranch_vccnz {l}")
            with self.uncounted(True):
                for _ in range(min(self.cfg["bgg"], self.bg_left)):
                    self.bg.pop(0)()
                    self.bg_left -= 1
            a.label(l)
        self.bg_slot += 1

    def bg_now(self, n):
        n = min(n, len(self.bg))
        if n:
            with self.pass1():
                for _ in range(n):
                    self.bg.pop(0)()

    def ticker(self):
        def e(text, **kw):
            self.bg_tick()
            self.a(text, **kw)
        return e

    def moded(self, lines, tag=None):
        a = self.a
        lg, lj = a.newlabel("glob"), a.newlabel("join")
        a(f"s_cmp_eq_u32 {s(sMODE)}, 0")
        a(f"s_cbranch_scc0 {lg}")
        for l in lines:
            a(l, vm=tag)
        a.label(lj)
        t = [Ins(lg + ":")] + [Ins(l + (" sc1" if l.startswith("buffer_store") else "")) for l in lines] + [Ins(f"s_branch {lj}")]
        self.tail += t

    def srd_tmp(self, ptr, size):
        a = self.a
        a(f"s_mov_b32 {s(sTMP)}, {s(ptr)}")
        a(f"s_mov_b32 {s(sTMP + 1)}, {s(ptr + 1)}")
        a(f"s_mov_b32 {s(sTMP + 2)}, {size}")

    def ts(self, name):
        amp = self.cfg["amp"]
        if amp:
            for k in range(2):
                if amp[2 * k] == name:
                    a = self.a
                    op = "s_memtime" if amp[5] else "s_memrealtime"
                    if ":" in name:
                        with self.only_if(f"s_cmp_eq_u32 {s(sLAY)}, {amp[2 * k + 1]}"):
                            a(f"{op} {s(72 + 6 * k, 2)}")
                            a("s_waitcnt lgkmcnt(0)")
                    else:
                        a(f"{op} {s(72 + 6 * k, 2)}")
                        if name != "start":
                            a("s_waitcnt lgkmcnt(0)")
        if not self.cfg["ts"] or name == "start":
            return
        a = self.a
        self.tsnames.append(name)
        a(f"s_memtime {s(sTSA, 2)}")
        a("s_waitcnt lgkmcnt(0)")
        a.lg.clear()
        a(f"s_mov_b32 m0, {s(sTSI)}")
        a(f"v_writelane_b32 {v(vTS)}, {s(sTSA)}, m0")
        a(f"s_add_u32 {s(sTSI)}, {s(sTSI)}, 1")

    def dump(self, point, regs, tmp):
        d = self.cfg["dump"]
        if not d or d[0] != point:
            return
        a = self.a
        with self.only_if(f"s_cmp_eq_u32 {s(sLAY)}, {d[1]}"):
            a("s_waitcnt vmcnt(0) lgkmcnt(0)")
            a("s_nop 15")
            a(f"v_lshrrev_b32 {v(tmp)}, 2, {v(vL16)}")
            a(f"s_mul_i32 {s(sT0)}, {s(sGW)}, {64 * 256}")
            a(f"s_add_u32 {s(sT0)}, {s(sT0)}, {DBG}")
            for i, r in enumerate(regs):
                a(f"buffer_store_dword {v(r)}, {v(tmp)}, {s(sWS, 4)}, {s(sT0)} offen")
                a(f"s_add_u32 {s(sT0)}, {s(sT0)}, 256")
            a("s_waitcnt vmcnt(0)")

    def poll(self, voff, soff, tmp):
        a = self.a
        l = a.newlabel("poll")
        a(f"s_mov_b32 {s(sCNT)}, 0x40000")
        a.label(l)
        a(f"buffer_load_dword {v(tmp)}, {v(voff)}, {s(sWS, 4)}, {s(soff)} offen sc1")
        a(f"s_sub_u32 {s(sCNT)}, {s(sCNT)}, 1")
        a("s_cbranch_scc1 L_timeout")
        a.wait(vm=0)
        a(f"v_cmp_ne_u32 vcc, {s(sTAG)}, {v(tmp)}")
        a(f"s_cbranch_vccnz {l}")

    def flag(self, soff, tmp):
        a = self.a
        a(f"v_mov_b32 {v(tmp)}, {s(sTAG)}")
        a.wait(vm=0)
        a("s_mov_b64 exec, 1")
        self.moded([f"buffer_store_dword {v(tmp)}, off, {s(sWS, 4)}, {s(soff)}"])
        a("s_mov_b64 exec, -1")

    def w_voff(self, t):
        a = self.a
        a(f"v_lshrrev_b32 {v(t)}, 6, {v(vL16)}")
        a(f"v_mul_u32_u24 {v(t)}, {3072 - 64}, {v(t)}")
        a(f"v_add_u32 {v(t)}, {v(t)}, {v(vL16)}")

    def ld_wkv(self, T, i, t):
        a = self.a
        a(f"s_add_u32 {s(sT0)}, {s(sWOFF)}, {i * 16 * 3072}")
        a(f"buffer_load_dwordx4 {ar(A_WKV[T] + 4 * i, 4)}, {v(t)}, {s(sSW[T], 4)}, {s(sT0)} offen", vm=f"wkv{i}")

    def ld_wq(self, T, i):
        a = self.a
        a(f"s_add_u32 m0, {s(sW13)}, {L_WQ[T] + i * 1024}")
        a(f"s_add_u32 {s(sT0)}, {s(sQOFF)}, {i * 16 * 3072}")
        a(f"buffer_load_dwordx4 {v(vBW)}, {s(sSW[T], 4)}, {s(sT0)} offen lds", vm="wq")

    def ld_wo(self, T, i):
        a = self.a
        a(f"s_add_u32 {s(sT0)}, {s(sOOFF)}, {i * 8 * 1024}")
        a(f"buffer_load_dwordx4 {ar(A_WO[T] + 4 * i, 4)}, {v(vBO)}, {s(sSO[T], 4)}, {s(sT0)} offen", vm="wo")

    def bg_setup(self, T):
        a = self.a
        self.w_voff(vBW)
        a(f"v_lshrrev_b32 {v(vBO)}, 7, {v(vL16)}")
        a(f"v_mul_u32_u24 {v(vBO)}, {1024 - 128}, {v(vBO)}")
        a(f"v_add_u32 {v(vBO)}, {v(vBO)}, {v(vL16)}")
        self.bg = [(lambda i=i: self.ld_wq(T, i)) for i in range(8)] + [(lambda i=i: self.ld_wo(T, i)) for i in range(16)]
        if T == 0:
            self.bg += [(lambda i=i: self.ld_wkv(1, i, vBW)) for i in range(16)]

    def put_wkv(self, T, lo, hi, waits=False):
        for i in range(lo, hi):
            if waits:
                self.a.wait(vm=f"wkv{i}")
            self.a(f"ds_write_b128 {v(vWKW)}, {ar(A_WKV[T] + 4 * i, 4)} offset:{i * 1024}")

    def put_wo(self, T):
        for i in range(16):
            self.a(f"ds_write_b128 {v(vWOW)}, {ar(A_WO[T] + 4 * i, 4)} offset:{(i >> 2) * 1024 + (i & 3) * 128}")

    @staticmethod
    def woff(j, u):
        return (j >> 2) * 4096 + u * 1024 + (j & 3) * 256

    def colsum(self, addr, nsteps, regs, acc):
        a = self.a
        a(f"v_mov_b32 {v(acc)}, 0")
        for j in range(nsteps):
            for u in range(2):
                a(f"ds_read_b64_tr_b16 {v(regs[j] + 2 * u, 2)}, {v(addr)} offset:{self.woff(j, u)}", lg=f"cs{j}")
        for j in range(nsteps):
            a.wait(lg=f"cs{j}")
            for d in range(4):
                a(f"v_dot2c_f32_bf16 {v(acc)}, {s(sT3)}, {v(regs[j] + d)}")

    def cs_kv(self, T):
        a = self.a
        t, acc = PK, PK + 1
        a(f"s_mov_b32 {s(sT3)}, 0x3f803f80")
        a(f"v_sub_u32 {v(t)}, {v(vWKW)}, {v(vL16)}")
        a(f"v_add_u32 {v(t)}, {v(t)}, {v(vWRD)}")
        a.wait(lg=0)
        regs = [AK + 4 * i for i in range(14)] + [PK + 4, PK + 8]
        self.colsum(t, 16, regs, acc)
        a(f"s_and_b32 {s(sT0)}, {s(sW)}, 1")
        a(f"s_lshl_b32 {s(sT0)}, {s(sT0)}, 9")
        a(f"s_and_b32 {s(sT1)}, {s(sW)}, 2")
        a(f"s_lshl_b32 {s(sT1)}, {s(sT1)}, 2")
        a(f"s_add_u32 {s(sT0)}, {s(sT0)}, {s(sT1)}")
        a(f"v_lshrrev_b32 {v(t)}, 9, {v(vL16)}")
        a(f"v_lshl_add_u32 {v(t)}, {v(t)}, 2, {v(vCSR)}")
        a(f"v_add_u32 {v(t)}, {s(sT0)}, {v(t)}")
        a(f"ds_write_b32 {v(t)}, {v(acc)} offset:{T * 1536}")

    def cs_q(self, T):
        a = self.a
        t, acc = AV, AV + 1
        a(f"s_mov_b32 {s(sT3)}, 0x3f803f80")
        a(f"s_add_u32 {s(sT0)}, {s(sW13)}, {L_WQ[T]}")
        a(f"v_add_u32 {v(t)}, {s(sT0)}, {v(vWRD)}")
        regs = [LG + 4 * i for i in range(4)] + [PK + 4 * i for i in range(4)]
        self.colsum(t, 8, regs, acc)
        a(f"v_mov_b32 {v(t)}, {v(acc)}")
        a(f"v_permlane32_swap_b32 {v(t)}, {v(acc)}")
        a(f"v_add_f32 {v(acc)}, {v(acc)}, {v(t)}")
        a(f"s_lshl_b32 {s(sT0)}, {s(sW)}, 2")
        a(f"v_add_u32 {v(t)}, {s(sT0)}, {v(vCSR)}")
        a(f"ds_write_b32 {v(t)}, {v(acc)} offset:{T * 1536 + 1024}")

    @staticmethod
    def cs_pack(src, dst):
        return [
            f"v_pk_add_f32 {v(src, 2)}, {v(src, 2)}, {v(src + 2, 2)}",
            f"v_add_f32 {v(src)}, {v(src)}, {v(src + 1)}",
            f"v_cvt_pk_bf16_f32 {v(src + 1)}, {v(src)}, {v(src)}",
            f"v_and_b32 {v(src + 1)}, 0xffff0000, {v(src + 1)}",
            f"v_sub_f32 {v(src)}, {v(src)}, {v(src + 1)}",
            f"v_cvt_pk_bf16_f32 {v(dst)}, {v(src + 1)}, {v(src)}",
        ]

    def x_publish(self, X=LG):
        a = self.a
        t = X + 8
        for i in range(8):
            a(f"v_cvt_pk_bf16_f32 {v(X + i)}, {v(XR + 2 * i)}, {v(XR + 2 * i + 1)}")
        self.moded([f"buffer_store_dwordx4 {v(X + 4 * sidx, 4)}, {v(vXST)}, {s(sOUT, 4)}, {s(sXST)} offen offset:{sidx * 512}" for sidx in range(2)], tag="xst")
        a(f"v_pk_add_f32 {v(t, 2)}, {v(XR, 2)}, {v(XR + 2, 2)}")
        a(f"v_pk_mul_f32 {v(t + 2, 2)}, {v(XR, 2)}, {v(XR, 2)}")
        a(f"v_pk_fma_f32 {v(t + 2, 2)}, {v(XR + 2, 2)}, {v(XR + 2, 2)}, {v(t + 2, 2)}")
        for i in range(2, 8):
            a(f"v_pk_add_f32 {v(t, 2)}, {v(t, 2)}, {v(XR + 2 * i, 2)}")
            a(f"v_pk_fma_f32 {v(t + 2, 2)}, {v(XR + 2 * i, 2)}, {v(XR + 2 * i, 2)}, {v(t + 2, 2)}")
        a(f"v_add_f32 {v(t)}, {v(t)}, {v(t + 1)}")
        a(f"v_add_f32 {v(t + 2)}, {v(t + 2)}, {v(t + 3)}")
        a(f"v_permlane32_swap_b32 {v(t)}, {v(t + 2)}")
        a(f"v_add_f32 {v(t)}, {v(t)}, {v(t + 2)}")
        a(f"v_mov_b32 {v(t + 1)}, {v(t)}")
        a(f"v_permlane16_swap_b32 {v(t)}, {v(t + 1)}")
        a(f"v_add_f32 {v(t)}, {v(t)}, {v(t + 1)}")
        a("s_mov_b32 exec_lo, 0xffff")
        a("s_mov_b32 exec_hi, 0xffff")
        self.moded([f"buffer_store_dword {v(t)}, {v(vSST)}, {s(sWS, 4)}, {s(sSTST)} offen"], tag="xst")
        a("s_mov_b64 exec, -1")

    def phi_a(self, acc, tmp):
        a = self.ticker()
        for i in range(8):
            a(f"v_pk_mul_f32 {v(acc + 2 * i, 2)}, {v(acc + 2 * i, 2)}, {v(vS, 2)} op_sel_hi:[1,0]")
        for i in range(16):
            a(f"v_exp_f32_e64 {v(tmp + i)}, {v(acc + i)} clamp")
            a(f"v_max_f32 {v(acc + i)}, {s(sDELTA)}, {v(acc + i)}")
        for i in range(8):
            a(f"v_pk_fma_f32 {v(acc + 2 * i, 2)}, {v(acc + 2 * i, 2)}, {s(sLN2, 2)}, {v(tmp + 2 * i, 2)}")
        for i in range(8):
            a(f"v_cvt_pk_bf16_f32 {v(PK + i)}, {v(acc + 2 * i)}, {v(acc + 2 * i + 1)}")

    def logits(self):
        a = self.a
        for i in range(8):
            a(f"v_cvt_pk_bf16_f32 {v(PK + i)}, {v(AK + 2 * i)}, {v(AK + 2 * i + 1)}")
        a.wait(lg="wp")
        a(f"v_mfma_f32_32x32x16_bf16 {v(LG, 16)}, {v(PK + 8, 4)}, {v(PK, 4)}, 0")
        a(f"v_mfma_f32_32x32x16_bf16 {v(LG, 16)}, {v(PK + 12, 4)}, {v(PK + 4, 4)}, {v(LG, 16)}")

    def softmax2(self, t, isq, after_plus=None, after_minus=None):
        a = self.ticker()
        a(f"v_max3_f32 {v(t)}, {v(LG)}, {v(LG + 1)}, {v(LG + 2)}")
        a(f"v_min3_f32 {v(t + 1)}, {v(LG)}, {v(LG + 1)}, {v(LG + 2)}")
        for i in range(3, 15, 2):
            a(f"v_max3_f32 {v(t)}, {v(t)}, {v(LG + i)}, {v(LG + i + 1)}")
            a(f"v_min3_f32 {v(t + 1)}, {v(t + 1)}, {v(LG + i)}, {v(LG + i + 1)}")
        a(f"v_max_f32 {v(t)}, {v(t)}, {v(LG + 15)}")
        a(f"v_min_f32 {v(t + 1)}, {v(t + 1)}, {v(LG + 15)}")
        a(f"v_pk_mul_f32 {v(t, 2)}, {v(t, 2)}, {v(vS, 2)} op_sel_hi:[1,0]")
        for sg, E in ((0, AK), (1, LG)):
            for i in range(8):
                if sg == 0:
                    a(f"v_pk_fma_f32 {v(E + 2 * i, 2)}, {v(LG + 2 * i, 2)}, {v(vS, 2)}, {v(t, 2)} op_sel_hi:[1,0,0] neg_lo:[0,0,1] neg_hi:[0,0,1]")
                else:
                    a(f"v_pk_fma_f32 {v(E + 2 * i, 2)}, {v(LG + 2 * i, 2)}, {v(vS, 2)}, {v(t, 2)} op_sel:[0,0,1] op_sel_hi:[1,0,1] neg_lo:[1,0,0] neg_hi:[1,0,0]")
            for i in range(16):
                a(f"v_exp_f32 {v(E + i)}, {v(E + i)}")
            S = t + 2 + 2 * sg
            a(f"v_pk_add_f32 {v(S, 2)}, {v(E, 2)}, {v(E + 2, 2)}")
            for i in range(2, 8):
                a(f"v_pk_add_f32 {v(S, 2)}, {v(S, 2)}, {v(E + 2 * i, 2)}")
            a(f"v_add_f32 {v(S)}, {v(S)}, {v(S + 1)}")
            if not (isq and sg == 0):
                a(f"v_rcp_f32 {v(S)}, {v(S)}")
                if isq:
                    a(f"v_mul_f32 {v(t + 6)}, {f2u(1e-6):#x}, {v(t + 2)}")
                    a(f"v_mul_f32 {v(S)}, {v(S)}, {v(t + 2)}")
                for i in range(8):
                    a(f"v_pk_mul_f32 {v(E + 2 * i, 2)}, {v(E + 2 * i, 2)}, {v(S, 2)} op_sel_hi:[1,0]")
            for i in range(8):
                a(f"v_cvt_pk_bf16_f32 {v(PK + 8 * sg + i)}, {v(E + 2 * i)}, {v(E + 2 * i + 1)}")
            cb = (after_plus, after_minus)[sg]
            if cb:
                cb()

    def layer(self, T):
        a, cfg = self.a, self.cfg
        NT = 2 if T == 0 else 4
        NJ = NT
        skip23 = (lambda: self.only_if(f"s_cmp_lt_u32 {s(sW)}, 2")) if T == 0 else (lambda: self.uncounted())
        bgn = cfg["bg0"] if T == 0 else cfg["bg1"]
        a.label(f"L_layer{T}")
        a.vm.clear(); a.lg.clear(); a.vm1.clear()
        with self.pass1():
            self.cs_kv(T)
        a.wait(lg=0)
        a("s_barrier")
        self.ts(f"{T}:bar1")
        ST = LG
        CS = LG + 8
        CSA, MB = PK, PK + 2
        a(f"ds_read_b128 {v(CS, 4)}, {v(vCSR)} offset:{T * 1536}", lg="cs")
        a(f"ds_read_b128 {v(CS + 4, 4)}, {v(vCSR)} offset:{T * 1536 + 512}", lg="cs")
        if T == 1:
            for i in range(2):
                a(f"ds_read_b128 {v(PK + 8 + 4 * i, 4)}, {v(vKFR)} offset:{L_WPF - L_KVF + 528 * i}", lg="wp")
        D = 3

        def rd(j, p):
            for u in range(2):
                a(f"ds_read_b64_tr_b16 {v(RG + (j % D) * 8 + 4 * p + 2 * u, 2)}, {v(vWRD)} offset:{p * 32768 + self.woff(j, u)}", lg=f"w{j}")
        for j in range(D):
            rd(j, 0); rd(j, 1)
        if T == 0:
            a(f"s_cmp_eq_u32 {s(sPASS)}, 0")
            a("s_cbranch_scc1 L_poll0")
            a.label("L_npoll")
        self.poll(vPOLL, sFXP, LG)
        if T == 0:
            a.label("L_enter")
        self.ts(f"{T}:xpoll")

        def ldx(j):
            if j % 4 == 0:
                a(f"s_add_u32 {s(sT0)}, {s(sXLD)}, {j * 1024}")
            a(f"buffer_load_dwordx4 {v(XF + 4 * j, 4)}, {v(vL16)}, {s(sOUT, 4)}, {s(sT0)} offen offset:{(j % 4) * 1024} sc1", vm=f"x{j}")
            if j == 9:
                a(f"buffer_load_dwordx4 {v(ST, 4)}, {v(vSLD)}, {s(sWS, 4)}, {s(sSTLD)} offen sc1", vm="st")
            if j == 11:
                a(f"buffer_load_dwordx4 {v(ST + 4, 4)}, {v(vSLD)}, {s(sWS, 4)}, {s(sSTLD)} offen offset:512 sc1", vm="st")
        NX = cfg["nx0"]
        for j in range(NX):
            ldx(j)
        t, u_ = ST, ST + 1
        fill = [
            f"v_pk_add_f32 {v(ST, 2)}, {v(ST, 2)}, {v(ST + 2, 2)}",
            f"v_pk_add_f32 {v(ST + 4, 2)}, {v(ST + 4, 2)}, {v(ST + 6, 2)}",
            f"v_pk_add_f32 {v(ST, 2)}, {v(ST, 2)}, {v(ST + 4, 2)}",
            f"v_add_f32 {v(t)}, {v(ST)}, {v(ST + 1)}",
            f"v_mul_f32 {v(t)}, {f2u(1 / 512):#x}, {v(t)}",
            f"v_mov_b32 {v(u_)}, {v(t)}",
            f"v_permlane32_swap_b32 {v(t)}, {v(u_)}",
            f"v_fma_f32 {v(u_)}, -{v(t)}, {v(t)}, {v(u_)}",
            f"v_max_f32 {v(u_)}, 0, {v(u_)}",
            f"v_cvt_pk_bf16_f32 {v(vM)}, -{v(t)}, -{v(t)}",
            f"v_cvt_pk_bf16_f32 {v(u_)}, {v(u_)}, {v(u_)}",
            f"v_and_b32 {v(u_)}, 0xffff0000, {v(u_)}",
            f"v_add_f32 {v(u_)}, {f2u(1e-5):#x}, {v(u_)}",
            f"v_cvt_pk_bf16_f32 {v(u_)}, {v(u_)}, {v(u_)}",
            f"v_and_b32 {v(u_)}, 0xffff0000, {v(u_)}",
            f"v_sqrt_f32 {v(u_)}, {v(u_)}",
            f"v_cndmask_b32 {v(vM)}, {v(vM)}, 0, {s(sHI, 2)}",
            f"v_cvt_pk_bf16_f32 {v(u_)}, {v(u_)}, {v(u_)}",
            f"v_and_b32 {v(u_)}, 0xffff0000, {v(u_)}",
            f"v_rcp_f32 {v(vRS)}, {v(u_)}",
            f"v_mov_b32 {v(MB)}, {v(vM)}",
            f"v_mul_f32 {v(vS)}, {LOG2E:#x}, {v(vRS)}",
            f"v_mov_b32 {v(MB + 1)}, 0",
            f"v_mov_b32 {v(MB + 2)}, 0",
            f"v_mov_b32 {v(MB + 3)}, {v(vM)}",
        ]
        fill = self.cs_pack(CS, CSA) + self.cs_pack(CS + 4, CSA + 1) + [None] * 12 + fill
        for j in range(32):
            a.wait(vm=f"x{j}", lg=f"w{j}")
            for p, acc in ((0, AK), (1, AV)):
                c = v(acc, 16) if j else "0"
                a(f"v_mfma_f32_32x32x16_bf16 {v(acc, 16)}, {v(RG + (j % D) * 8 + 4 * p, 4)}, {v(XF + 4 * j, 4)}, {c}")
                if p == 0 and j + NX < 32:
                    ldx(j + NX)
                if j + D < 32:
                    rd(j + D, p)
                if fill:
                    f_ = fill.pop(0)
                    if f_:
                        a(f_)
        assert not fill
        a(f"v_mfma_f32_32x32x8_bf16 {v(AK, 16)}, {v(CSA, 2)}, {v(MB, 2)}, {v(AK, 16)}")
        a(f"v_mfma_f32_32x32x8_bf16 {v(AV, 16)}, {v(CSA, 2)}, {v(MB + 2, 2)}, {v(AV, 16)}")
        with self.pass1():
            if T == 0:
                a(f"buffer_load_dword {v(vHL)}, {v(vPOLL)}, {s(sWS, 4)}, {s(sHEL)} offen sc1")
            self.bg_setup(T)
        self.ts(f"{T}:kvgemm")
        self.dump("kv", list(range(AK, AK + 32)) + [vS, vRS, vM], RG)

        def v_path():
            for i in range(8):
                a(f"v_pk_mul_f32 {v(AV + 2 * i, 2)}, {v(AV + 2 * i, 2)}, {v(vS, 2)} op_sel:[0,1]")
            for i in range(8):
                a(f"v_cvt_pk_bf16_f32 {v(AV + i)}, {v(AV + 2 * i)}, {v(AV + 2 * i + 1)}")
            for i in range(2):
                a(f"ds_write_b128 {v(vSTW)}, {v(AV + 4 * i, 4)} offset:{0x4000 + 128 * i}")

        def stage(sg):
            for i in range(2):
                a(f"ds_write_b128 {v(vSTW)}, {v(PK + 8 * sg + 4 * i, 4)} offset:{sg * 8192 + 128 * i}")
        self.bg_region(bgn[0], 56 if T == 0 else 110)
        if T == 0:
            self.phi_a(AK, LG)
            stage(0)
            v_path()
        else:
            self.logits()
            v_path()
            self.softmax2(RG, False, lambda: stage(0), lambda: stage(1))
        self.dump("pk", list(range(PK, PK + 16)) + list(range(AV, AV + 8)), RG)
        a.wait(lg=0)
        a("s_barrier")
        self.ts(f"{T}:bar2")
        with skip23():
            ONE, DK, DZ, PB = AV, AV + 4, AV + 8, AV + 12
            for st in range(4):
                for u in range(2):
                    a(f"ds_read_b64_tr_b16 {v(LG + 4 * st + 2 * u, 2)}, {v(vSTR)} offset:{st * 1024 + u * 512}", lg=f"p{st}")
                for u in range(2):
                    a(f"ds_read_b64_tr_b16 {v(PK + 4 * st + 2 * u, 2)}, {v(vSTR2)} offset:{st * 1024 + u * 512}", lg=f"p{st}")
            for i in range(4):
                a(f"v_mov_b32 {v(ONE + i)}, 0x3f803f80")
            for st in range(4):
                a.wait(lg=f"p{st}")
                a(f"v_mfma_f32_16x16x32_bf16 {v(DK, 4)}, {v(LG + 4 * st, 4)}, {v(PK + 4 * st, 4)}, {v(DK, 4) if st else 0}")
                a(f"v_mfma_f32_16x16x32_bf16 {v(DZ, 4)}, {v(LG + 4 * st, 4)}, {v(ONE, 4)}, {v(DZ, 4) if st else 0}")
            for i in range(2):
                a(f"v_cvt_pk_bf16_f32 {v(PB + i)}, {v(DK + 2 * i)}, {v(DK + 2 * i + 1)}")
            for i in range(2):
                a(f"v_min_u32 {v(PB + 2 + i)}, -2, {v(PB + i)}")
                a(f"v_min_u32 {v(PB + i)}, -2, {v(PB + i)}")
            for i in range(4):
                a(f"v_min_u32 {v(DZ + i)}, -2, {v(DZ + i)}")
            for i in range(2):
                a(f"v_permlane16_swap_b32 {v(PB + i)}, {v(PB + 2 + i)}")
            a("s_mov_b32 exec_lo, 0xffff")
            a("s_mov_b32 exec_hi, 0xffff")
            a(f"buffer_store_dwordx4 {v(PB, 4)}, {v(vPST)}, {s(sWS, 4)}, {s(sKVT)} offen sc1")
            a("s_mov_b32 exec_lo, 0x10001")
            a("s_mov_b32 exec_hi, 0x10001")
            a(f"buffer_store_dwordx4 {v(DZ, 4)}, {v(vZST)}, {s(sWS, 4)}, {s(sKVT)} offen sc1")
            a("s_mov_b64 exec, -1")
        self.ts(f"{T}:publish")
        with self.pass1():
            a.wait1("wq")
            self.cs_q(T)
            if T == 0:
                l = a.newlabel("hello")
                a(f"s_or_b32 {s(sT2)}, {s(sTAG)}, 0xf0")
                a(f"v_cmp_ne_u32 vcc, {s(sT2)}, {v(vHL)}")
                a(f"s_cbranch_vccz {l}")
                a(f"s_mov_b32 {s(sT1)}, {s(sTAG)}")
                a(f"s_mov_b32 {s(sTAG)}, {s(sT2)}")
                with self.uncounted():
                    self.poll(vPOLL, sHEL, vHL)
                a(f"s_mov_b32 {s(sTAG)}, {s(sT1)}")
                a.label(l)
            a("s_waitcnt lgkmcnt(0)")
            a("s_barrier")
        QA = LG
        CS, CSA, MB = LG + 4, LG + 8, LG + 10
        a(f"v_add_u32 {v(QA)}, {L_WQ[T]:#x}, {v(vWRD)}")
        a(f"ds_read_b128 {v(CS, 4)}, {v(vCSR)} offset:{T * 1536 + 1024}", lg="cs")
        if T == 1:
            for i in range(2):
                a(f"ds_read_b128 {v(PK + 8 + 4 * i, 4)}, {v(vKFR)} offset:{L_WPF - L_KVF + 528 * i}", lg="wp")
        D = 5

        def rq(j):
            for u in range(2):
                a(f"ds_read_b64_tr_b16 {v(RG + (j % D) * 4 + 2 * u, 2)}, {v(QA)} offset:{self.woff(j, u)}", lg=f"q{j}")

        PL, SEL, DR = 0, 36, 40

        def partial_load(i):
            if i % 4 == 0:
                a(f"s_add_u32 {s(sT1)}, {s(sKVT)}, {i * 1024}")
            a(f"buffer_load_dwordx4 {v(PL + 4 * i, 4)}, {v(vL16)}, {s(sWS, 4)}, {s(sT1)} offen offset:{(i % 4) * 1024} sc1", vm="pl")

        def partial_loads():
            for i in range(9):
                partial_load(i)
        for j in range(D):
            rq(j)
        fill = self.cs_pack(CS, CSA) + [f"v_mov_b32 {v(CSA + 1)}, 0", f"v_mov_b32 {v(MB)}, {v(vM)}", f"v_mov_b32 {v(MB + 1)}, 0"]
        PS = cfg["pl_step"]
        self.bg_region(bgn[1], PS)
        npl = 0
        for j in range(32):
            a.wait(lg=f"q{j}")
            a(f"v_mfma_f32_32x32x16_bf16 {v(AK, 16)}, {v(RG + (j % D) * 4, 4)}, {v(XF + 4 * j, 4)}, {v(AK, 16) if j else 0}")
            self.bg_tick()
            if j >= PS and npl < 9:
                if T == 1:
                    partial_load(npl); npl += 1
                elif (j - PS) % 3 == 0:
                    with skip23():
                        for _ in range(3):
                            partial_load(npl); npl += 1
            if j + D < 32:
                rq(j + D)
            if fill:
                a(fill.pop(0))
        a(f"v_mfma_f32_32x32x8_bf16 {v(AK, 16)}, {v(CSA, 2)}, {v(MB, 2)}, {v(AK, 16)}")
        if npl < 9:
            with skip23():
                while npl < 9:
                    partial_load(npl); npl += 1
        a(f"v_and_b32 {v(SEL)}, 0x1f0, {v(vL16)}")
        a(f"v_add_u32 {v(SEL)}, {L_SEL:#x}, {v(SEL)}")
        a(f"ds_read_b128 {v(SEL, 4)}, {v(SEL)}", lg="sel")
        self.ts(f"{T}:qgemm")
        self.dump("q", list(range(AK, AK + 16)), RG)
        EPS = RG + 6
        nbg3 = min(bgn[2], len(self.bg))
        self.bg_region(bgn[2], 56 if T == 0 else 100)
        if T == 0:
            self.phi_a(AK, LG)
            a(f"v_mov_b32 {v(EPS)}, {f2u(1e-6):#x}")
        else:
            self.logits()
            self.softmax2(RG, True)
        self.dump("pq", list(range(PK, PK + 16)), AV)
        with self.pass1():
            if T == 0:
                l, l2 = a.newlabel("w"), a.newlabel("w")
                n = len(a.vm1) - 1 - max(i for i, t_ in enumerate(a.vm1) if t_ == "wo")
                assert n >= nbg3
                a(f"s_waitcnt vmcnt({n + 9})")
                a(f"s_cmp_lt_u32 {s(sW)}, 2")
                a(f"s_cbranch_scc1 {l}")
                a.wait1("wo")
                a.label(l)
            else:
                a.wait1("wo")
        self.put_wo(T)
        self.ts(f"{T}:phiq")
        with skip23():
            lchk, lok = a.newlabel("chk"), a.newlabel("ok")
            a(f"s_mov_b32 {s(sCNT)}, 0x10000")
            if nbg3:
                l = a.newlabel("w")
                a(f"s_waitcnt vmcnt({nbg3})")
                a(f"s_cmp_eq_u32 {s(sPASS)}, 0")
                a(f"s_cbranch_scc1 {l}")
            a.label(lchk)
            a.wait(vm=0)
            if nbg3:
                a.label(l)
            m = 44
            a(f"v_max3_u32 {v(m)}, {v(PL)}, {v(PL + 1)}, {v(PL + 2)}")
            for i in range(3, 35, 2):
                a(f"v_max3_u32 {v(m)}, {v(m)}, {v(PL + i)}, {v(PL + i + 1)}")
            a(f"v_max_u32 {v(m)}, {v(m)}, {v(PL + 35)}")
            a(f"v_cmp_eq_u32 vcc, -1, {v(m)}")
            a(f"s_cbranch_vccz {lok}")
            a(f"s_sub_u32 {s(sCNT)}, {s(sCNT)}, 1")
            a("s_cbranch_scc1 L_timeout")
            partial_loads()
            a(f"s_branch {lchk}")
            a.label(lok)
            a.wait(lg="sel")
            for i in range(8):
                a(f"v_mfma_f32_16x16x32_bf16 {v(DR, 4)}, {v(SEL, 4)}, {v(PL + 4 * i, 4)}, {v(DR, 4) if i else 0}")
            Z = PL + 32
            a(f"v_permlane16_swap_b32 {v(Z)}, {v(Z + 1)}")
            a(f"v_permlane16_swap_b32 {v(Z + 2)}, {v(Z + 3)}")
            a(f"v_add_f32 {v(Z)}, {v(Z)}, {v(Z + 1)}")
            a(f"v_add_f32 {v(Z + 2)}, {v(Z + 2)}, {v(Z + 3)}")
            a(f"v_permlane32_swap_b32 {v(Z)}, {v(Z + 2)}")
            a(f"v_add_f32 {v(Z)}, {v(Z)}, {v(Z + 2)}")
            a(f"v_add_f32 {v(Z)}, {v(Z)}, {v(Z)} row_ror:4")
            a(f"v_add_f32 {v(Z)}, {v(Z)}, {v(Z)} row_ror:8")
            a(f"v_cvt_pk_bf16_f32 {v(Z)}, {v(Z)}, {v(Z)}")
            a(f"ds_write_b16 {v(vZW)}, {v(Z)}")
            for i in range(2):
                a(f"v_cvt_pk_bf16_f32 {v(DR + i)}, {v(DR + 2 * i)}, {v(DR + 2 * i + 1)}")
            a(f"ds_write_b64 {v(vKFW)}, {v(DR, 2)}")
        self.bg_now(bgn[3])
        a.wait(lg=0)
        a("s_barrier")
        self.ts(f"{T}:bar3")
        KF, ZF, DEN, O = 0, 16, RG + 6, LG
        for j in range(NJ):
            a(f"ds_read_b128 {v(KF + 4 * j, 4)}, {v(vKFR)} offset:{528 * j}", lg=f"kf{j}")
        for j in range(NJ):
            a(f"ds_read_b128 {v(ZF + 4 * j, 4)}, {v(vZR)} offset:{(j >> 1) * 64 + (j & 1) * 16}", lg=f"zf{j}")
        for j in range(NJ):
            a.wait(lg=f"kf{j}")
            a(f"v_mfma_f32_32x32x16_bf16 {v(AV, 16)}, {v(KF + 4 * j, 4)}, {v(PK + 4 * j, 4)}, {v(AV, 16) if j else 0}")
        for j in range(NJ):
            a.wait(lg=f"zf{j}")
            for d in range(4):
                a(f"v_dot2c_f32_bf16 {v(DEN)}, {v(ZF + 4 * j + d)}, {v(PK + 4 * j + d)}")
        a(f"v_rcp_f32 {v(DEN)}, {v(DEN)}")
        for i in range(8):
            a(f"v_pk_mul_f32 {v(AV + 2 * i, 2)}, {v(AV + 2 * i, 2)}, {v(DEN, 2)} op_sel_hi:[1,0]")
        for i in range(8):
            a(f"v_cvt_pk_bf16_f32 {v(O + i)}, {v(AV + 2 * i)}, {v(AV + 2 * i + 1)}")
        self.moded([f"buffer_store_dwordx4 {v(O + 4 * i, 4)}, {v(vOST)}, {s(sWS, 4)}, {s(sOST)} offen offset:{256 * i}" for i in range(2)])
        self.dump("o", list(range(O, O + 8)), PK)
        WR, DW = 64, 7
        WA = [vWOR, PK, PK + 1, PK + 2]
        for t_ in range(1, 4):
            a(f"v_xor_b32 {v(WA[t_])}, {32 * t_}, {v(vWOR)}")

        def rw(i, t_):
            for u in range(2):
                a(f"ds_read_b64_tr_b16 {v(WR + (i % DW) * 16 + 4 * t_ + 2 * u, 2)}, {v(WA[t_])} offset:{t_ * 16384 + i * 1024 + u * 512}", lg=f"wo{i}_{t_}")
        for i in range(4):
            for t_ in range(4):
                rw(i, t_)
        self.flag(sFOS, PK + 4)
        self.ts(f"{T}:oflag")
        self.bg_now(bgn[4])
        for i in range(4, DW):
            for t_ in range(4):
                rw(i, t_)
        self.poll(vPOLL, sFOP, PK + 5)
        self.ts(f"{T}:opoll")

        def ldo(i):
            if i % 4 == 0:
                a(f"s_add_u32 {s(sT0)}, {s(sOLD)}, {i * 1024}")
            a(f"buffer_load_dwordx4 {v(4 * i, 4)}, {v(vL16)}, {s(sWS, 4)}, {s(sT0)} offen offset:{(i % 4) * 1024} sc1", vm=f"o{i}")
        NO = cfg["no0"]
        for i in range(NO):
            ldo(i)
        for i in range(16):
            for t_ in range(4):
                a.wait(vm=f"o{i}", lg=f"wo{i}_{t_}")
                a(f"v_mfma_f32_16x16x32_bf16 {v(XR + 4 * t_, 4)}, {v(WR + (i % DW) * 16 + 4 * t_, 4)}, {v(4 * i, 4)}, {v(XR + 4 * t_, 4)}")
                if t_ == 0 and i + NO < 16:
                    ldo(i + NO)
                if i + DW < 16:
                    rw(i + DW, t_)
        nlate = len(self.bg)
        self.bg_now(99)
        self.ts(f"{T}:ogemm")
        self.dump("x", list(range(XR, XR + 16)), PK)
        if cfg["stop"] is not None and cfg["stop"] % 2 == T:
            a(f"s_cmp_eq_u32 {s(sLAY)}, {cfg['stop']}")
            a("s_cbranch_scc1 L_final")
        if T == 1:
            a(f"s_cmp_eq_u32 {s(sPASS)}, 1")
            a("s_cbranch_scc1 L_final")
        self.x_publish()
        a("s_barrier")
        n0 = min(8, 16 - nlate)
        self.put_wkv(1 - T, 0, n0)
        a(f"s_add_u32 {s(sTAG)}, {s(sTAG)}, 16")
        a(f"s_add_u32 {s(sKVT)}, {s(sKVT)}, {KVP[T + 1] - KVP[T]}")
        a(f"s_add_u32 {s(sLAY)}, {s(sLAY)}, 1")
        self.flag(sFXS, PK + 4)
        self.put_wkv(1 - T, n0, 16)
        self.ts(f"{T}:xflag")
        if T == 1:
            a(f"s_mov_b32 {s(sPASS)}, 1")
            a(f"s_mov_b64 {s(sPM, 2)}, -1")
            a("s_branch L_layer0")

    def prologue(self):
        a, cfg = self.a, self.cfg
        a(f"s_cmp_ge_u32 {s(sID)}, 256")
        a("s_cbranch_scc1 L_end")
        self.ts("start")
        a(f"s_load_dwordx16 {s(4, 16)}, s[0:1], 0")
        a(f"s_load_dwordx4 {s(20, 4)}, s[0:1], 64")
        a(f"s_getpc_b64 {s(sSAVE, 2)}")
        a.label("L_pc")
        a(f"v_min_u32 v1, (L_codeend-L_pc)/128, v0")
        a("v_lshlrev_b32 v1, 7, v1")
        a(f"global_load_dword v2, v1, {s(sSAVE, 2)}")
        if cfg["ts"]:
            a(f"s_mov_b32 {s(sTSI)}, 0")
            a(f"v_mov_b32 {v(vTS)}, 0")
            a(f"s_memrealtime s[78:79]")
        L = 3
        a(f"v_lshrrev_b32 v1, 6, v0")
        a(f"v_and_b32 {v(L)}, 63, v0")
        a(f"v_readfirstlane_b32 {s(sW)}, v1")
        a(f"v_lshlrev_b32 {v(vL16)}, 4, {v(L)}")
        a(f"s_getreg_b32 {s(sXCC)}, hwreg(HW_REG_XCC_ID, 0, 4)")
        a(f"s_lshr_b32 {s(sT0)}, {s(sID)}, 3")
        a(f"s_and_b32 {s(sC)}, {s(sT0)}, 15")
        a(f"s_lshr_b32 {s(sT0)}, {s(sT0)}, 4")
        a(f"s_and_b32 {s(sR)}, {s(sID)}, 7")
        a(f"s_lshl_b32 {s(sR)}, {s(sR)}, 1")
        a(f"s_add_u32 {s(sR)}, {s(sR)}, {s(sT0)}")
        sBP, sSUB, sCG, sB = 99, 100, 101, sCNT
        a(f"s_lshl_b32 {s(sB)}, {s(sR)}, 2")
        a(f"s_lshr_b32 {s(sT0)}, {s(sC)}, 3")
        a(f"s_lshl_b32 {s(sT0)}, {s(sT0)}, 1")
        a(f"s_lshr_b32 {s(sT1)}, {s(sW)}, 1")
        a(f"s_add_u32 {s(sT0)}, {s(sT0)}, {s(sT1)}")
        a(f"s_add_u32 {s(sBP)}, {s(sB)}, {s(sT0)}")
        a(f"s_add_u32 {s(sB)}, {s(sB)}, {s(sW)}")
        a(f"s_and_b32 {s(sSUB)}, {s(sW)}, 1")
        a(f"s_and_b32 {s(sCG)}, {s(sC)}, 7")
        a(f"s_lshl_b32 {s(sFIN)}, {s(sBP)}, 15")
        a(f"s_lshl_b32 {s(sT0)}, {s(sSUB)}, 14")
        a(f"s_add_u32 {s(sFIN)}, {s(sFIN)}, {s(sT0)}")
        a(f"s_add_u32 {s(sOLD)}, {s(sFIN)}, {OBUF}")
        a(f"s_lshl_b32 {s(sT0)}, {s(sCG)}, 7")
        a(f"s_add_u32 {s(sFIN)}, {s(sFIN)}, {s(sT0)}")
        self.rowmajor_voff(4, 5)
        a(f"s_lshl_b32 {s(sT0)}, {s(sC)}, 6")
        a(f"s_mul_i32 {s(sQOFF)}, {s(sW)}, {128 * 3072}")
        a(f"s_add_u32 {s(sQOFF)}, {s(sQOFF)}, {s(sT0)}")
        a(f"s_mul_i32 {s(sWOFF)}, {s(sT1)}, {256 * 3072}")
        a(f"s_add_u32 {s(sWOFF)}, {s(sWOFF)}, {s(sT0)}")
        a(f"s_lshl_b32 {s(sT0)}, {s(sSUB)}, 10")
        a(f"s_add_u32 {s(sWOFF)}, {s(sWOFF)}, {s(sT0)}")
        a(f"s_add_u32 {s(sWOFF)}, {s(sWOFF)}, 1024")
        self.w_voff(5)
        a(f"s_mov_b32 {s(sTMP + 3)}, 0x20000")
        a(f"s_mov_b32 {s(sWS + 3)}, 0x20000")
        a(f"s_mov_b32 {s(sOUT + 3)}, 0x20000")
        a(f"s_mov_b32 {s(sWS + 2)}, {WS_SIZE:#x}")
        a(f"s_mov_b32 {s(sOUT + 2)}, 0x200000")
        for T in range(2):
            a(f"s_mov_b32 {s(sSW[T] + 2)}, {512 * 3072}")
            a(f"s_mov_b32 {s(sSW[T] + 3)}, 0x20000")
            a(f"s_mov_b32 {s(sSO[T] + 2)}, {512 * 1024}")
            a(f"s_mov_b32 {s(sSO[T] + 3)}, 0x20000")
        a("s_waitcnt lgkmcnt(0)")
        self.ts("kernarg")
        a(f"s_load_dword {s(sEP)}, {s(sPWS, 2)}, 0")
        self.srd_tmp(sPX, 0x200000)
        for i in range(2):
            a(f"buffer_load_dwordx4 {v(8 + 4 * i, 4)}, v4, {s(sTMP, 4)}, {s(sFIN)} offen offset:{64 * i}", vm="x0")
        self.srd_tmp(sPPHI, 16384)
        a(f"s_lshl_b32 {s(sT0)}, {s(sC)}, 10")
        a(f"buffer_load_dwordx4 v[16:19], {v(vL16)}, {s(sTMP, 4)}, {s(sT0)} offen", vm="phi")
        a(f"s_mov_b64 {s(sSW[0], 2)}, {s(sPWA, 2)}")
        for i in range(cfg["n1"]):
            self.ld_wkv(0, i, 5)
        a(f"s_mov_b64 {s(sSW[1], 2)}, {s(sPWB, 2)}")
        a(f"s_mov_b64 {s(sSO[0], 2)}, {s(sPWOA, 2)}")
        a(f"s_mov_b64 {s(sSO[1], 2)}, {s(sPWOB, 2)}")
        if cfg["mallpf"]:
            a(f"v_lshlrev_b32 v6, 3, {v(vL16)}")
            a(f"s_mul_i32 {s(sT0)}, {s(sID)}, 6144")
            a(f"s_lshl_b32 {s(sT1)}, {s(sID)}, 11")
            for w_, (srd, so, lanes) in enumerate(((sSW[1], sT0, 48), (sSO[0], sT1, 16), (sSO[1], sT1, 16), (sSW[0], sT0, 32))):
                with self.only_if(f"s_cmp_eq_u32 {s(sW)}, {w_}"):
                    a(f"v_min_u32 v6, {(lanes - 1) * 128}, v6")
                    a(f"buffer_load_dword v7, v6, {s(srd, 4)}, {s(so)} offen")
        a(f"s_lshl_b32 {s(sW13)}, {s(sW)}, 13")
        a(f"s_mov_b64 {s(sPM, 2)}, 0")
        a(f"s_mov_b32 {s(sWS)}, {s(sPWS)}")
        a(f"s_mov_b32 {s(sWS + 1)}, {s(sPWS + 1)}")
        a(f"s_mov_b32 {s(sOUT)}, {s(sPOUT)}")
        a(f"s_mov_b32 {s(sOUT + 1)}, {s(sPOUT + 1)}")
        a(f"s_lshl_b32 {s(sXLD)}, {s(sB)}, 15")
        a(f"s_lshl_b32 {s(sT0)}, {s(sC)}, 10")
        a(f"s_add_u32 {s(sOST)}, {s(sXLD)}, {s(sT0)}")
        a(f"s_add_u32 {s(sOST)}, {s(sOST)}, {OBUF}")
        a(f"s_lshl_b32 {s(sSTLD)}, {s(sB)}, 11")
        a(f"s_add_u32 {s(sSTLD)}, {s(sSTLD)}, {STATS}")
        a(f"s_lshl_b32 {s(sT0)}, {s(sB)}, 7")
        a(f"s_add_u32 {s(sFXP)}, {s(sT0)}, {FLAGX}")
        a(f"s_lshl_b32 {s(sT1)}, {s(sC)}, 2")
        a(f"s_add_u32 {s(sFOS)}, {s(sT0)}, {s(sT1)}")
        a(f"s_add_u32 {s(sFOS)}, {s(sFOS)}, {FLAGO}")
        a(f"s_lshl_b32 {s(sT0)}, {s(sBP)}, 7")
        a(f"s_add_u32 {s(sFOP)}, {s(sT0)}, {FLAGO}")
        a(f"s_lshl_b32 {s(sT1)}, {s(sCG)}, 1")
        a(f"s_add_u32 {s(sT1)}, {s(sT1)}, {s(sSUB)}")
        a(f"s_lshl_b32 {s(sT1)}, {s(sT1)}, 2")
        a(f"s_add_u32 {s(sFXS)}, {s(sT0)}, {s(sT1)}")
        a(f"s_add_u32 {s(sFXS)}, {s(sFXS)}, {FLAGX}")
        a(f"s_lshl_b32 {s(sT2)}, {s(sSUB)}, 8")
        a(f"s_lshl_b32 {s(sXST)}, {s(sBP)}, 15")
        a(f"s_lshl_b32 {s(sT0)}, {s(sCG)}, 12")
        a(f"s_add_u32 {s(sXST)}, {s(sXST)}, {s(sT0)}")
        a(f"s_add_u32 {s(sXST)}, {s(sXST)}, {s(sT2)}")
        a(f"s_lshl_b32 {s(sSTST)}, {s(sBP)}, 11")
        a(f"s_lshr_b32 {s(sT0)}, {s(sCG)}, 2")
        a(f"s_lshl_b32 {s(sT0)}, {s(sT0)}, 9")
        a(f"s_and_b32 {s(sT1)}, {s(sCG)}, 3")
        a(f"s_lshl_b32 {s(sT1)}, {s(sT1)}, 2")
        a(f"s_add_u32 {s(sSTST)}, {s(sSTST)}, {s(sT0)}")
        a(f"s_add_u32 {s(sSTST)}, {s(sSTST)}, {s(sT1)}")
        a(f"s_add_u32 {s(sSTST)}, {s(sSTST)}, {s(sT2)}")
        a(f"s_add_u32 {s(sSTST)}, {s(sSTST)}, {STATS}")
        a(f"s_mul_i32 {s(sKVT)}, {s(sW)}, {TILE}")
        a(f"s_mul_i32 {s(sT0)}, {s(sC)}, 9216")
        a(f"s_add_u32 {s(sKVT)}, {s(sKVT)}, {s(sT0)}")
        a(f"s_add_u32 {s(sKVT)}, {s(sKVT)}, {KVP[0]}")
        a(f"s_lshl_b32 {s(sHEL)}, {s(sC)}, 2")
        a(f"s_add_u32 {s(sHEL)}, {s(sHEL)}, {s(sW)}")
        a(f"s_lshl_b32 {s(sHEL)}, {s(sHEL)}, 7")
        a(f"s_add_u32 {s(sHEL)}, {s(sHEL)}, {HELLO}")
        a(f"s_lshl_b32 {s(sOOFF)}, {s(sW)}, 17")
        a(f"s_lshl_b32 {s(sT0)}, {s(sCG)}, 7")
        a(f"s_add_u32 {s(sOOFF)}, {s(sOOFF)}, {s(sT0)}")
        a(f"s_mov_b32 {s(sLN2)}, {LN2:#x}")
        a(f"s_mov_b32 {s(sLN2b)}, {LN2:#x}")
        a(f"s_mov_b32 {s(sDELTA)}, {DELTA:#x}")
        a(f"s_mov_b32 {s(sHI)}, 0")
        a(f"s_mov_b32 {s(sHI + 1)}, -1")
        a(f"s_mov_b32 {s(sPASS)}, 0")
        a(f"s_mov_b32 {s(sLAY)}, 0")
        a(f"s_mov_b32 {s(sMODE)}, 0")
        a(f"s_lshl_b32 {s(sANN)}, {s(sR)}, 7")
        a(f"s_add_u32 {s(sANN)}, {s(sANN)}, {ANN}")
        a(f"s_lshl_b32 {s(sGW)}, {s(sR)}, 4")
        a(f"s_add_u32 {s(sGW)}, {s(sGW)}, {s(sC)}")
        a(f"s_lshl_b32 {s(sGW)}, {s(sGW)}, 2")
        a(f"s_add_u32 {s(sGW)}, {s(sGW)}, {s(sW)}")
        i16, g, half, q, jj, t0, t1 = 20, 21, 22, 23, 24, 25, 26
        a(f"v_and_b32 {v(i16)}, 15, {v(L)}")
        a(f"v_lshrrev_b32 {v(g)}, 4, {v(L)}")
        a(f"v_lshrrev_b32 {v(half)}, 5, {v(L)}")
        a(f"v_and_b32 {v(q)}, 3, {v(L)}")
        a(f"v_bfe_u32 {v(jj)}, {v(L)}, 2, 2")
        a(f"v_lshlrev_b32 {v(vPOLL)}, 2, {v(i16)}")
        a(f"v_lshlrev_b32 {v(t0)}, 4, {v(i16)}")
        a(f"v_lshl_add_u32 {v(vXST)}, {v(g)}, 10, {v(t0)}")
        a(f"v_lshl_add_u32 {v(vSST)}, {v(half)}, 10, {v(t0)}")
        a(f"v_lshl_add_u32 {v(vSLD)}, {v(half)}, 9, {v(vL16)}")
        a(f"s_lshl_b32 {s(sT0)}, {s(sR)}, 9")
        a(f"v_lshl_add_u32 {v(vPST)}, {v(half)}, 8, {v(t0)}")
        a(f"v_add_u32 {v(vPST)}, {s(sT0)}, {v(vPST)}")
        a(f"s_lshl_b32 {s(sT1)}, {s(sR)}, 6")
        a(f"s_add_u32 {s(sT1)}, {s(sT1)}, 8192")
        a(f"v_lshl_add_u32 {v(vZST)}, {v(g)}, 4, {s(sT1)}")
        a(f"v_add_u32 {v(t1)}, {s(sT0)}, {v(vL16)}")
        a(f"v_lshl_add_u32 v27, {v(q)}, 4, {s(sT1)}")
        a(f"v_cndmask_b32 {v(t1)}, {v(t1)}, v27, {s(sHI, 2)}")
        for i in range(4):
            a(f"v_mov_b32 {v(28 + i)}, -1")
        a("s_mov_b32 exec_hi, 15")
        for l in (1, 3):
            a(f"s_add_u32 {s(sT0)}, {s(sKVT)}, {KVP[l] - KVP[0]}")
            a(f"buffer_store_dwordx4 v[28:31], {v(t1)}, {s(sWS, 4)}, {s(sT0)} offen sc1")
        with self.only_if(f"s_cmp_lt_u32 {s(sW)}, 2"):
            for l in (0, 2):
                a(f"s_add_u32 {s(sT0)}, {s(sKVT)}, {KVP[l] - KVP[0]}")
                a(f"buffer_store_dwordx4 v[28:31], {v(t1)}, {s(sWS, 4)}, {s(sT0)} offen sc1")
        a("s_mov_b32 exec_hi, -1")
        a(f"v_and_b32 {v(t1)}, 1, {v(g)}")
        a(f"v_lshl_add_u32 {v(vOST)}, {v(t1)}, 14, {v(t0)}")
        a(f"v_lshl_add_u32 {v(vOST)}, {v(half)}, 9, {v(vOST)}")
        a(f"v_lshlrev_b32 {v(vWRD)}, 11, {v(half)}")
        a(f"v_lshl_add_u32 {v(vWRD)}, {v(jj)}, 6, {v(vWRD)}")
        a(f"v_lshl_add_u32 {v(vWRD)}, {v(t1)}, 4, {v(vWRD)}")
        a(f"v_and_b32 v27, 1, {v(q)}")
        a(f"v_lshrrev_b32 v32, 1, {v(q)}")
        a(f"v_lshl_add_u32 {v(vWRD)}, v27, 5, {v(vWRD)}")
        a(f"v_lshl_add_u32 {v(vWRD)}, v32, 3, {v(vWRD)}")
        a(f"v_lshlrev_b32 {v(vSTR)}, 8, {v(half)}")
        a(f"v_lshl_add_u32 {v(vSTR)}, v32, 7, {v(vSTR)}")
        a(f"v_lshl_add_u32 {v(vSTR)}, {v(t1)}, 6, {v(vSTR)}")
        a(f"v_lshl_add_u32 {v(vSTR)}, {v(jj)}, 4, {v(vSTR)}")
        a(f"v_lshl_add_u32 {v(vSTR)}, v27, 3, {v(vSTR)}")
        a(f"s_lshl_b32 {s(sT0)}, {s(sSUB)}, 12")
        a(f"s_add_u32 {s(sT0)}, {s(sT0)}, {L_STG + 0x4000}")
        a(f"v_add_u32 {v(vSTR2)}, {s(sT0)}, {v(vSTR)}")
        a(f"s_lshl_b32 {s(sT0)}, {s(sW)}, 12")
        a(f"s_add_u32 {s(sT0)}, {s(sT0)}, {L_STG}")
        a(f"v_add_u32 {v(vSTR)}, {s(sT0)}, {v(vSTR)}")
        a(f"v_bfe_u32 v33, {v(L)}, 3, 2")
        a(f"v_and_b32 {v(vSTW)}, 0x70, {v(vL16)}")
        a(f"v_lshl_add_u32 {v(vSTW)}, v33, 8, {v(vSTW)}")
        a(f"v_lshl_add_u32 {v(vSTW)}, {v(half)}, 12, {v(vSTW)}")
        a(f"s_lshl_b32 {s(sT0)}, {s(sW)}, 10")
        a(f"s_add_u32 {s(sT0)}, {s(sT0)}, {L_STG}")
        a(f"v_add_u32 {v(vSTW)}, {s(sT0)}, {v(vSTW)}")
        a(f"v_bfe_u32 v34, {v(L)}, 1, 2")
        a(f"v_xor_b32 v33, v33, v34")
        a(f"v_lshlrev_b32 {v(vWOW)}, 14, v34")
        a(f"v_lshl_add_u32 {v(vWOW)}, v33, 5, {v(vWOW)}")
        a(f"v_lshl_add_u32 {v(vWOW)}, {v(half)}, 9, {v(vWOW)}")
        a(f"v_lshl_add_u32 {v(vWOW)}, v27, 4, {v(vWOW)}")
        a(f"s_lshl_b32 {s(sT0)}, {s(sW)}, 12")
        a(f"v_add_u32 {v(vWOW)}, {s(sT0)}, {v(vWOW)}")
        a(f"v_lshlrev_b32 {v(vWOR)}, 3, {v(L)}")
        a(f"s_lshl_b32 {s(sT0)}, {s(sSUB)}, 15")
        a(f"s_and_b32 {s(sT1)}, {s(sW)}, 2")
        a(f"s_lshl_b32 {s(sT2)}, {s(sT1)}, 13")
        a(f"s_add_u32 {s(sT0)}, {s(sT0)}, {s(sT2)}")
        a(f"v_add_u32 {v(vWKW)}, {s(sT0)}, {v(vL16)}")
        a(f"v_and_b32 v33, 0x1f0, {v(vL16)}")
        a(f"v_add_u32 {v(vCSR)}, {L_CSP:#x}, v33")
        a(f"v_and_b32 v34, 1, {v(jj)}")
        a(f"v_cmp_eq_u32 vcc, v34, {v(half)}")
        a(f"v_mov_b32 v35, 512")
        a(f"v_cndmask_b32 {v(vKFR)}, v35, v33, vcc")
        a(f"v_add_u32 {v(vKFR)}, {L_KVF:#x}, {v(vKFR)}")
        a(f"s_mul_i32 {s(sT0)}, {s(sT1)}, 528")
        a(f"s_lshl_b32 {s(sT2)}, {s(sSUB)}, 6")
        a(f"s_add_u32 {s(sT0)}, {s(sT0)}, {s(sT2)}")
        a(f"s_add_u32 {s(sT0)}, {s(sT0)}, {L_KVF}")
        a(f"v_mul_u32_u24 {v(vKFW)}, 528, {v(half)}")
        a(f"v_lshl_add_u32 {v(vKFW)}, {v(q)}, 4, {v(vKFW)}")
        a(f"v_lshl_add_u32 {v(vKFW)}, {v(jj)}, 7, {v(vKFW)}")
        a(f"v_lshl_add_u32 {v(vKFW)}, {v(t1)}, 3, {v(vKFW)}")
        a(f"v_add_u32 {v(vKFW)}, {s(sT0)}, {v(vKFW)}")
        a(f"s_lshl_b32 {s(sT0)}, {s(sW)}, 5")
        a(f"s_add_u32 {s(sT0)}, {s(sT0)}, {L_ZB}")
        a(f"v_lshl_add_u32 {v(vZW)}, {v(q)}, 2, {v(g)}")
        a(f"v_lshl_add_u32 {v(vZW)}, {v(vZW)}, 1, {s(sT0)}")
        a(f"v_mov_b32 v35, {L_ZB:#x}")
        a(f"v_lshl_add_u32 {v(vZR)}, {v(half)}, 5, v35")
        a(f"v_mov_b32 v36, 0x3f80")
        a(f"v_lshlrev_b32 v37, 4, v27")
        a(f"v_lshlrev_b32 v36, v37, v36")
        a(f"v_lshrrev_b32 v37, 1, {v(i16)}")
        a(f"v_lshlrev_b32 v38, 2, {v(t1)}")
        a(f"v_sub_u32 v37, v37, v38")
        for d in range(4):
            a(f"v_cmp_eq_u32 vcc, {d}, v37")
            a(f"v_cndmask_b32 {v(40 + d)}, 0, v36, vcc")
        a(f"v_add_u32 v33, {L_SEL:#x}, v33")
        a(f"ds_write_b128 v33, v[40:43]")
        for i in range(4):
            a(f"v_mov_b32 {v(44 + i)}, 0")
        a(f"v_min_u32 v33, 5, {v(L)}")
        a(f"v_mul_u32_u24 v33, 528, v33")
        a(f"v_add_u32 v33, {L_KVF + 512:#x}, v33")
        a(f"ds_write_b128 v33, v[44:47]")
        a.wait(vm="x0")
        self.ts("x0")
        for i in range(2):
            for d in range(2):
                a(f"v_permlane16_swap_b32 {v(8 + 4 * i + d)}, {v(8 + 4 * i + 2 + d)}")
        for i in range(8):
            a(f"v_lshlrev_b32 {v(XR + 2 * i)}, 16, {v(8 + i)}")
            a(f"v_and_b32 {v(XR + 2 * i + 1)}, 0xffff0000, {v(8 + i)}")
        self.x_publish()
        for i in range(cfg["n1"], 16):
            self.ld_wkv(0, i, 5)
        a(f"s_lshl_b32 {s(sT0)}, {s(sW)}, 10")
        a(f"s_add_u32 {s(sT0)}, {s(sT0)}, {L_STG}")
        a(f"v_add_u32 v33, {s(sT0)}, {v(vL16)}")
        a.wait(vm="phi")
        a(f"ds_write_b128 v33, v[16:19]")
        a(f"v_lshlrev_b32 v33, 9, v27")
        a(f"v_lshl_add_u32 v33, {v(half)}, 8, v33")
        a(f"v_lshl_add_u32 v33, {v(jj)}, 5, v33")
        a(f"v_lshl_add_u32 v33, {v(t1)}, 4, v33")
        a(f"v_lshl_add_u32 v33, v32, 3, v33")
        a(f"v_add_u32 v33, {s(sT0)}, v33")
        a("s_waitcnt lgkmcnt(0)")
        a(f"ds_read_b64_tr_b16 v[16:17], v33")
        a(f"ds_read_b64_tr_b16 v[18:19], v33 offset:128")
        a(f"v_lshl_add_u32 v33, {v(half)}, 4, {v(vL16)}")
        a(f"v_add_u32 v33, {L_WPF:#x}, v33")
        a(f"s_mul_i32 {s(sTAG)}, {s(sEP)}, 0x9e3779b1")
        a(f"s_add_u32 {s(sTAG)}, {s(sTAG)}, 0x7f4a7c15")
        a(f"s_and_b32 {s(sTAG)}, {s(sTAG)}, 0xffffff00")
        a(f"s_or_b32 {s(sT1)}, {s(sTAG)}, 0xf0")
        a(f"s_or_b32 {s(sXCC)}, {s(sTAG)}, {s(sXCC)}")
        a(f"v_mov_b32 v34, {s(sXCC)}")
        a(f"v_mov_b32 v35, {s(sT1)}")
        a(f"s_lshl_b32 {s(sT0)}, {s(sR)}, 2")
        a(f"s_add_u32 {s(sT0)}, {s(sT0)}, {s(sHEL)}")
        a("s_waitcnt lgkmcnt(0)")
        a.lg.clear()
        a(f"ds_write_b128 v33, v[16:19]")
        self.put_wkv(0, 0, cfg["n1"], waits=True)
        a.wait(vm="xst")
        a("s_mov_b64 exec, 1")
        a(f"buffer_store_dword v34, off, {s(sWS, 4)}, {s(sFXS)}")
        a(f"buffer_store_dword v35, off, {s(sWS, 4)}, {s(sT0)} sc1")
        with self.only_if(f"s_cmp_eq_u32 {s(sW)}, 0"):
            a(f"s_lshl_b32 {s(sT0)}, {s(sC)}, 2")
            a(f"s_add_u32 {s(sT0)}, {s(sT0)}, {s(sANN)}")
            a(f"buffer_store_dword v34, off, {s(sWS, 4)}, {s(sT0)} sc1")
        a("s_mov_b64 exec, -1")
        self.ts("flag0")
        self.put_wkv(0, cfg["n1"], 16, waits=True)
        self.ts("wkv0")

    def poll0(self):
        a = self.a
        a.label("L_poll0")
        a(f"v_and_b32 v33, 0x100, {v(vL16)}")
        a(f"v_add_u32 v33, v33, {v(vPOLL)}")
        a(f"s_and_b32 {s(sT0)}, {s(sFXP)}, 0xfffffeff")
        a(f"s_mov_b32 {s(sCNT)}, 0x40000")
        a.label("L_poll0a")
        if not self.cfg["force_global"]:
            a(f"buffer_load_dword v34, v33, {s(sWS, 4)}, {s(sT0)} offen sc1")
            a(f"s_sub_u32 {s(sCNT)}, {s(sCNT)}, 1")
            a("s_cbranch_scc1 L_timeout")
            a("s_waitcnt vmcnt(0)")
            a(f"v_cmp_ne_u32 vcc, {s(sXCC)}, v34")
            a("s_cbranch_vccz L_enter")
            a(f"s_and_b32 {s(sT1)}, {s(sCNT)}, 15")
            a("s_cbranch_scc1 L_poll0a")
            a(f"buffer_load_dword v34, {v(vPOLL)}, {s(sWS, 4)}, {s(sANN)} offen sc1")
            a("s_waitcnt vmcnt(0)")
            a(f"v_xor_b32 v34, {s(sXCC)}, v34")
            a(f"v_add_u32 v34, -1, v34")
            a(f"v_cmp_gt_u32 vcc, 15, v34")
            a("s_cbranch_vccz L_poll0a")
        a(f"s_mov_b32 {s(sMODE)}, 1")
        for r_ in (sFXS, sFXP):
            a(f"s_add_u32 {s(r_)}, {s(r_)}, {FLAGX2 - FLAGX}")
        for r_ in (sSTST, sSTLD):
            a(f"s_add_u32 {s(r_)}, {s(r_)}, {STATS2 - STATS}")
        self.x_publish(0)
        self.flag(sFXS, 16)
        a("s_branch L_npoll")

    def rowmajor_voff(self, d, t):
        a = self.a
        a(f"v_and_b32 {v(d)}, 0xf0, {v(vL16)}")
        a(f"v_lshlrev_b32 {v(d)}, 6, {v(d)}")
        a(f"v_bfe_u32 {v(t)}, {v(vL16)}, 8, 1")
        a(f"v_lshl_add_u32 {v(d)}, {v(t)}, 5, {v(d)}")
        a(f"v_lshrrev_b32 {v(t)}, 9, {v(vL16)}")
        a(f"v_lshl_add_u32 {v(d)}, {v(t)}, 4, {v(d)}")

    def final(self):
        a = self.a
        a.label("L_final")
        X = LG
        self.rowmajor_voff(PK, PK + 1)
        for i in range(8):
            a(f"v_cvt_pk_bf16_f32 {v(X + i)}, {v(XR + 2 * i)}, {v(XR + 2 * i + 1)}")
        for i in range(2):
            for d in range(2):
                a(f"v_permlane16_swap_b32 {v(X + 4 * i + d)}, {v(X + 4 * i + 2 + d)}")
        for i in range(2):
            a(f"buffer_store_dwordx4 {v(X + 4 * i, 4)}, {v(PK)}, {s(sOUT, 4)}, {s(sFIN)} offen offset:{64 * i}")
        with self.only_if(f"s_cmp_eq_u32 {s(sGW)}, 0"):
            a(f"s_add_u32 {s(sEP)}, {s(sEP)}, 1")
            a(f"v_mov_b32 v0, {s(sEP)}")
            a("s_mov_b64 exec, 1")
            a(f"buffer_store_dword v0, off, {s(sWS, 4)}, 0 sc1")
            a("s_mov_b64 exec, -1")
        if self.cfg["amp"]:
            amp = self.cfg["amp"]
            self.ts("end")
            a("s_sub_u32 s72, s78, s72")
            a(f"s_mul_i32 s72, s72, {amp[4]}")
            if amp[5]:
                a("s_lshr_b32 s72, s72, 5")
            a("s_min_u32 s72, s72, 100000")
            a("s_memrealtime s[78:79]")
            a("s_waitcnt lgkmcnt(0)")
            a("s_mov_b32 s73, s78")
            a.label("L_amp")
            a("s_memrealtime s[78:79]")
            a("s_waitcnt lgkmcnt(0)")
            a("s_sub_u32 s78, s78, s73")
            a("s_cmp_lt_u32 s78, s72")
            a("s_cbranch_scc1 L_amp")
        if self.cfg["ts"]:
            a("s_waitcnt vmcnt(0)")
            self.ts("end")
            a("s_memrealtime s[72:73]")
            a("s_waitcnt lgkmcnt(0)")
            a(f"v_writelane_b32 {v(vTS)}, s78, 61")
            a(f"v_writelane_b32 {v(vTS)}, s72, 62")
            a(f"v_writelane_b32 {v(vTS)}, {s(sMODE)}, 63")
            a(f"s_lshl_b32 {s(sT0)}, {s(sGW)}, 8")
            a(f"s_add_u32 {s(sT0)}, {s(sT0)}, {DBG + 0x2000000}")
            a(f"v_lshrrev_b32 v0, 2, {v(vL16)}")
            a(f"buffer_store_dword {v(vTS)}, v0, {s(sWS, 4)}, {s(sT0)} offen")
        a.label("L_timeout")
        a.label("L_end")
        a("s_endpgm")

    def build(self):
        a = self.a
        self.prologue()
        self.layer(0)
        self.layer(1)
        self.final()
        self.poll0()
        a.raw(self.tail)
        a.label("L_codeend")
        a("s_endpgm")
        nops = a.pad_hazards()
        head = open(f"cdna_kernels/{NAME}.s.ref").read().split("; Override launch")[0]
        out = head + f"; @launch grid=(256,1,1) block=(256,1,1) lds={LDS_SIZE}\n"
        out += f""".amdgcn_target "amdgcn-amd-amdhsa--gfx950"
.text
.globl {NAME}_kernel
.p2align 8
.type {NAME}_kernel,@function
{NAME}_kernel:
"""
        out += a.text()
        out += f""".section .rodata,"a"
.p2align 6
.amdhsa_kernel {NAME}_kernel
  .amdhsa_next_free_vgpr 512
  .amdhsa_next_free_sgpr 102
  .amdhsa_accum_offset 256
  .amdhsa_group_segment_fixed_size 0
  .amdhsa_kernarg_size 80
  .amdhsa_user_sgpr_count 2
  .amdhsa_user_sgpr_kernarg_segment_ptr 1
  .amdhsa_system_sgpr_workgroup_id_x 1
.end_amdhsa_kernel
"""
        self.nops = nops
        return out


if __name__ == "__main__":
    import ast
    kw = {}
    out = sys.argv[1]
    for x in sys.argv[2:]:
        k, val = x.split("=", 1)
        kw[k] = ast.literal_eval(val)
    g = Gen(**kw)
    txt = g.build()
    open(out, "w").write(txt)
    print(f"wrote {out}: {len(g.a.ins)} lines, {g.nops} pad states", file=sys.stderr)
```

```python
import sys
import contextlib
from asmlib import Asm, Ins

NAME = "interleave_layers__linear_attn_block__linear_kernel_hedgehog__prompt"

CFG = dict(
    ts=0,
    dump=None,
    n0=0, nw=6, codepf=24,
    n1=4,
    bg0=(10, 14, 8, 0, 0, 8),
    bg1=(14, 10, 0, 0, 0, 0),
    bgg=2,
    pl_step=22,
    nx0=8, no0=8,
    mallpf=1, wo_every=(8, 10),
    touch=1, stflag='',
    force_global=0,
    stop=None,
    amp=None,
)

FLAGX, FLAGO, HELLO, FLAGX2, ANN, STATS, STATS2 = 0x1000, 0x3000, 0x5000, 0x7000, 0x9000, 0x10000, 0x1E0000
KVP = [0x30000, 0x78000, 0x108000, 0x150000]
TILE = 0x24000
OBUF = 0x200000
DBG = 0x400000
WS_SIZE = 0x8000000
L_P, L_WQ, L_STG = 0x0, [0x10000, 0x18000], 0x20000
L_KVF = 0x26000
L_WPF = L_KVF + 4 * 528
L_ZB = L_WPF + 2 * 528
L_CSP = 0x26D00
L_SEL = 0x27900
LDS_SIZE = 0x28000
XF, AK, AV, RG, LG, XR, PK = 0, 128, 144, 160, 192, 208, 224
vSTR, vSTR2, vPST, vZST, vKFW, vZW, vZR, vOST = range(184, 192)
vL16, vWRD, vSTW, vKFR, vS, vRS, vM, vXST, vSST, vSLD, vPOLL, vWOR, vWOW, vWKW, vCSR, vTS = range(240, 256)
A_WKV, A_WO = [0, 64], [128, 192]
sID = 2
sPX, sPWA, sPWOA, sPBX, sPWB, sPPHI, sPWOB, sPOUT, sPDBG, sPWS = range(4, 24, 2)
sWS, sOUT, sTMP = 24, 28, 32
(sW, sC, sR, sXLD, sSTLD, sFXP, sOST, sFOS, sOLD, sFOP, sXST, sSTST, sFXS, sKVT, sTAG, sMODE, sPASS,
 sEP, sXCC, sT0, sT1, sT2, sT3, sCNT, sWOFF, sQOFF, sOOFF, sHEL, sLN2, sLN2b, sDELTA, sFIN) = range(36, 68)
sHI = 68
sSAVE = 70
sTSA = 72
sTSI = 74
sGW = 75
sLAY = 76
sANN = 77
sW13 = 98
sPM = 96
sSW, sSO = [80, 84], [88, 92]
vBW, vBO, vHL = RG + 20, RG + 21, RG + 22
assert sLN2 % 2 == 0

LOG2E = 0x3FB8AA3B
LN2 = 0x3F317218
DELTA = 0x35C1A4C3
import struct
def f2u(x): return struct.unpack("<I", struct.pack("<f", x))[0]
DELTA = f2u(1e-6 * 1.4426950408889634)


def v(a, n=1): return f"v{a}" if n == 1 else f"v[{a}:{a + n - 1}]"
def ar(a, n=1): return f"a{a}" if n == 1 else f"a[{a}:{a + n - 1}]"
def s(a, n=1): return f"s{a}" if n == 1 else f"s[{a}:{a + n - 1}]"


class Gen:
    def __init__(self, **kw):
        self.cfg = dict(CFG)
        self.cfg.update(kw)
        self.a = Asm()
        self.tail = []
        self.nts = 0
        self.tsnames = []
        self.side = []
        self.side_every = 1

    @contextlib.contextmanager
    def uncounted(self, first=False):
        a = self.a
        vm, lg, c1 = list(a.vm), list(a.lg), a.count1
        a.count1 = c1 and first
        yield
        a.vm, a.lg, a.count1 = vm, lg, c1

    @contextlib.contextmanager
    def only_if(self, cmp, first=False):
        a = self.a
        l = a.newlabel("skip")
        a(cmp)
        a(f"s_cbranch_scc0 {l}")
        with self.uncounted(first):
            yield
        a.label(l)

    def pass1(self):
        return self.only_if(f"s_cmp_eq_u32 {s(sPASS)}, 0", True)

    def bg_region(self, n, slots):
        self.bg_left = min(n, len(self.bg))
        groups = -(-self.bg_left // self.cfg["bgg"])
        self.bg_slot = 0
        self.bg_at = {(k * slots) // groups for k in range(groups)} if groups else set()
        assert len(self.bg_at) == groups
        if groups:
            self.a(f"s_mov_b64 vcc, {s(sPM, 2)}")

    def bg_tick(self):
        a = self.a
        if self.bg_slot in self.bg_at:
            l = a.newlabel("bg")
            a(f"s_cbranch_vccnz {l}")
            with self.uncounted(True):
                for _ in range(min(self.cfg["bgg"], self.bg_left)):
                    self.bg.pop(0)()
                    self.bg_left -= 1
            a.label(l)
        self.bg_slot += 1

    def bg_now(self, n):
        n = min(n, len(self.bg))
        if n:
            with self.pass1():
                for _ in range(n):
                    self.bg.pop(0)()

    def ticker(self):
        def e(text, **kw):
            if self.side and self.bg_slot % self.side_every == 0:
                self.side.pop(0)()
            self.bg_tick()
            self.a(text, **kw)
        return e

    def moded(self, lines, tag=None):
        a = self.a
        lg, lj = a.newlabel("glob"), a.newlabel("join")
        a(f"s_cmp_eq_u32 {s(sMODE)}, 0")
        a(f"s_cbranch_scc0 {lg}")
        for l in lines:
            a(l + (self.cfg["stflag"] if "x4" in l else ""), vm=tag)
        a.label(lj)
        t = [Ins(lg + ":")] + [Ins(l + (" sc1" if l.startswith("buffer_store") else "")) for l in lines] + [Ins(f"s_branch {lj}")]
        self.tail += t

    def srd_tmp(self, ptr, size):
        a = self.a
        a(f"s_mov_b32 {s(sTMP)}, {s(ptr)}")
        a(f"s_mov_b32 {s(sTMP + 1)}, {s(ptr + 1)}")
        a(f"s_mov_b32 {s(sTMP + 2)}, {size}")

    def ts(self, name):
        amp = self.cfg["amp"]
        if amp:
            for k in range(2):
                if amp[2 * k] == name:
                    a = self.a
                    op = "s_memtime" if amp[5] else "s_memrealtime"
                    if ":" in name:
                        with self.only_if(f"s_cmp_eq_u32 {s(sLAY)}, {amp[2 * k + 1]}"):
                            a(f"{op} {s(72 + 6 * k, 2)}")
                            a("s_waitcnt lgkmcnt(0)")
                    else:
                        a(f"{op} {s(72 + 6 * k, 2)}")
                        if name != "start":
                            a("s_waitcnt lgkmcnt(0)")
        if not self.cfg["ts"] or name == "start":
            return
        if self.cfg["ts"] == 1 and name.startswith("p_"):
            return
        if self.cfg["ts"] == 2 and ":" in name and name[2:] not in ("bar1", "xpoll", "kvgemm", "xflag"):
            return
        a = self.a
        self.tsnames.append(name)
        a(f"s_memtime {s(sTSA, 2)}")
        a("s_waitcnt lgkmcnt(0)")
        a.lg.clear()
        a(f"s_mov_b32 m0, {s(sTSI)}")
        a(f"v_writelane_b32 {v(vTS)}, {s(sTSA)}, m0")
        a(f"s_add_u32 {s(sTSI)}, {s(sTSI)}, 1")

    def dump(self, point, regs, tmp):
        d = self.cfg["dump"]
        if not d or d[0] != point:
            return
        a = self.a
        with self.only_if(f"s_cmp_eq_u32 {s(sLAY)}, {d[1]}"):
            a("s_waitcnt vmcnt(0) lgkmcnt(0)")
            a("s_nop 15")
            a(f"v_lshrrev_b32 {v(tmp)}, 2, {v(vL16)}")
            a(f"s_mul_i32 {s(sT0)}, {s(sGW)}, {64 * 256}")
            a(f"s_add_u32 {s(sT0)}, {s(sT0)}, {DBG}")
            for i, r in enumerate(regs):
                a(f"buffer_store_dword {v(r)}, {v(tmp)}, {s(sWS, 4)}, {s(sT0)} offen")
                a(f"s_add_u32 {s(sT0)}, {s(sT0)}, 256")
            a("s_waitcnt vmcnt(0)")

    def poll(self, voff, soff, tmp):
        a = self.a
        l = a.newlabel("poll")
        a(f"s_mov_b32 {s(sCNT)}, 0x40000")
        a.label(l)
        a(f"buffer_load_dword {v(tmp)}, {v(voff)}, {s(sWS, 4)}, {s(soff)} offen sc1")
        a(f"s_sub_u32 {s(sCNT)}, {s(sCNT)}, 1")
        a("s_cbranch_scc1 L_timeout")
        a.wait(vm=0)
        a(f"v_cmp_ne_u32 vcc, {s(sTAG)}, {v(tmp)}")
        a(f"s_cbranch_vccnz {l}")

    def flag(self, soff, tmp):
        a = self.a
        a(f"v_mov_b32 {v(tmp)}, {s(sTAG)}")
        a.wait(vm=0)
        a("s_mov_b64 exec, 1")
        self.moded([f"buffer_store_dword {v(tmp)}, off, {s(sWS, 4)}, {s(soff)}"])
        a("s_mov_b64 exec, -1")

    def w_voff(self, t):
        a = self.a
        a(f"v_lshrrev_b32 {v(t)}, 6, {v(vL16)}")
        a(f"v_mul_u32_u24 {v(t)}, {3072 - 64}, {v(t)}")
        a(f"v_add_u32 {v(t)}, {v(t)}, {v(vL16)}")

    def ld_wkv(self, T, i, t):
        a = self.a
        a(f"s_add_u32 {s(sT0)}, {s(sWOFF)}, {i * 32 * 3072}")
        a(f"buffer_load_dwordx4 {ar(A_WKV[T] + 4 * i, 4)}, {v(t)}, {s(sSW[T], 4)}, {s(sT0)} offen", vm=f"wkv{i}")

    def ld_wq(self, T, i):
        a = self.a
        a(f"s_add_u32 m0, {s(sW13)}, {L_WQ[T] + i * 1024}")
        a(f"s_add_u32 {s(sT0)}, {s(sQOFF)}, {i * 16 * 3072}")
        a(f"buffer_load_dwordx4 {v(vBW)}, {s(sSW[T], 4)}, {s(sT0)} offen lds", vm="wq")

    def ld_wo(self, T, i):
        a = self.a
        a(f"s_add_u32 {s(sT0)}, {s(sOOFF)}, {i * 8 * 1024}")
        a(f"buffer_load_dwordx4 {ar(A_WO[T] + 4 * i, 4)}, {v(vBO)}, {s(sSO[T], 4)}, {s(sT0)} offen", vm="wo")

    def bg_setup(self, T):
        a = self.a
        self.w_voff(vBW)
        a(f"v_lshrrev_b32 {v(vBO)}, 7, {v(vL16)}")
        a(f"v_mul_u32_u24 {v(vBO)}, {1024 - 128}, {v(vBO)}")
        a(f"v_add_u32 {v(vBO)}, {v(vBO)}, {v(vL16)}")
        self.bg = [(lambda i=i: self.ld_wq(T, i)) for i in range(8)] + [(lambda i=i: self.ld_wo(T, i)) for i in range(16)]
        if T == 0:
            self.bg += [(lambda i=i: self.ld_wkv(1, i, vBW)) for i in range(16)]

    def put_wkv(self, T, lo, hi, waits=False):
        for i in range(lo, hi):
            if waits:
                self.a.wait(vm=f"wkv{i}")
            self.a(f"ds_write_b128 {v(vWKW)}, {ar(A_WKV[T] + 4 * i, 4)} offset:{i * 2048}")

    def put_wo(self, T, i):
        self.a(f"ds_write_b128 {v(vWOW)}, {ar(A_WO[T] + 4 * i, 4)} offset:{(i >> 2) * 1024 + (i & 3) * 128}")

    @staticmethod
    def woff(j, u):
        return (j >> 2) * 4096 + u * 1024 + (j & 3) * 256

    def colsum(self, addr, nsteps, regs, acc):
        a = self.a
        a(f"v_mov_b32 {v(acc)}, 0")
        for j in range(nsteps):
            for u in range(2):
                a(f"ds_read_b64_tr_b16 {v(regs[j] + 2 * u, 2)}, {v(addr)} offset:{self.woff(j, u)}", lg=f"cs{j}")
        for j in range(nsteps):
            a.wait(lg=f"cs{j}")
            for d in range(4):
                a(f"v_dot2c_f32_bf16 {v(acc)}, {s(sT3)}, {v(regs[j] + d)}")

    def cs_kv_step(self, T, i, sel, d):
        self.a(f"v_mfma_f32_16x16x32_bf16 {v(d, 4)}, {v(sel, 4)}, {ar(A_WKV[T] + 4 * i, 4)}, {v(d, 4) if i else 0}")

    def cs_kv_fin(self, T, d, t):
        a = self.a
        a(f"s_and_b32 {s(sT0)}, {s(sW)}, 1")
        a(f"s_lshl_b32 {s(sT0)}, {s(sT0)}, 9")
        a(f"s_and_b32 {s(sT1)}, {s(sW)}, 2")
        a(f"s_lshl_b32 {s(sT1)}, {s(sT1)}, 2")
        a(f"s_add_u32 {s(sT0)}, {s(sT0)}, {s(sT1)}")
        a(f"s_add_u32 {s(sT0)}, {s(sT0)}, {L_CSP + T * 1536}")
        a(f"v_lshrrev_b32 {v(t)}, 9, {v(vL16)}")
        a(f"v_lshl_add_u32 {v(t)}, {v(t)}, 2, {s(sT0)}")
        a(f"v_bfe_u32 {v(t + 1)}, {v(vL16)}, 4, 1")
        a(f"v_lshl_add_u32 {v(t)}, {v(t + 1)}, 8, {v(t)}")
        a(f"v_bfe_u32 {v(t + 1)}, {v(vL16)}, 8, 1")
        a(f"v_lshl_add_u32 {v(t)}, {v(t + 1)}, 7, {v(t)}")
        a(f"v_bfe_u32 {v(t + 1)}, {v(vL16)}, 5, 1")
        a(f"v_lshl_add_u32 {v(t)}, {v(t + 1)}, 6, {v(t)}")
        for ror in (4, 8):
            for i in range(4):
                a(f"v_add_f32 {v(d + i)}, {v(d + i)}, {v(d + i)} row_ror:{ror}")
        a(f"ds_write2_b32 {v(t)}, {v(d)}, {v(d + 1)} offset0:0 offset1:4")
        a(f"ds_write2_b32 {v(t)}, {v(d + 2)}, {v(d + 3)} offset0:8 offset1:12")

    def sel_read(self, sel):
        a = self.a
        a(f"v_and_b32 {v(sel)}, 0x1f0, {v(vL16)}")
        a(f"v_add_u32 {v(sel)}, {L_SEL:#x}, {v(sel)}")
        a(f"ds_read_b128 {v(sel, 4)}, {v(sel)}", lg="sel")

    def cs_q(self, T):
        a = self.a
        t, acc = AV, AV + 1
        a(f"s_mov_b32 {s(sT3)}, 0x3f803f80")
        a(f"s_add_u32 {s(sT0)}, {s(sW13)}, {L_WQ[T]}")
        a(f"v_add_u32 {v(t)}, {s(sT0)}, {v(vWRD)}")
        regs = [LG + 4 * i for i in range(4)] + [PK + 4 * i for i in range(4)]
        self.colsum(t, 8, regs, acc)
        a(f"v_mov_b32 {v(t)}, {v(acc)}")
        a(f"v_permlane32_swap_b32 {v(t)}, {v(acc)}")
        a(f"v_add_f32 {v(acc)}, {v(acc)}, {v(t)}")
        a(f"s_lshl_b32 {s(sT0)}, {s(sW)}, 2")
        a(f"v_add_u32 {v(t)}, {s(sT0)}, {v(vCSR)}")
        a(f"ds_write_b32 {v(t)}, {v(acc)} offset:{T * 1536 + 1024}")

    @staticmethod
    def cs_pack(src, dst):
        return [
            f"v_pk_add_f32 {v(src, 2)}, {v(src, 2)}, {v(src + 2, 2)}",
            f"v_add_f32 {v(src)}, {v(src)}, {v(src + 1)}",
            f"v_cvt_pk_bf16_f32 {v(src + 1)}, {v(src)}, {v(src)}",
            f"v_and_b32 {v(src + 1)}, 0xffff0000, {v(src + 1)}",
            f"v_sub_f32 {v(src)}, {v(src)}, {v(src + 1)}",
            f"v_cvt_pk_bf16_f32 {v(dst)}, {v(src + 1)}, {v(src)}",
        ]

    def x_publish(self, X=LG):
        a = self.a
        t = X + 8
        for i in range(8):
            a(f"v_cvt_pk_bf16_f32 {v(X + i)}, {v(XR + 2 * i)}, {v(XR + 2 * i + 1)}")
        self.moded([f"buffer_store_dwordx4 {v(X + 4 * sidx, 4)}, {v(vXST)}, {s(sOUT, 4)}, {s(sXST)} offen offset:{sidx * 512}" for sidx in range(2)], tag="xst")
        a(f"v_pk_add_f32 {v(t, 2)}, {v(XR, 2)}, {v(XR + 2, 2)}")
        a(f"v_pk_mul_f32 {v(t + 2, 2)}, {v(XR, 2)}, {v(XR, 2)}")
        a(f"v_pk_fma_f32 {v(t + 2, 2)}, {v(XR + 2, 2)}, {v(XR + 2, 2)}, {v(t + 2, 2)}")
        for i in range(2, 8):
            a(f"v_pk_add_f32 {v(t, 2)}, {v(t, 2)}, {v(XR + 2 * i, 2)}")
            a(f"v_pk_fma_f32 {v(t + 2, 2)}, {v(XR + 2 * i, 2)}, {v(XR + 2 * i, 2)}, {v(t + 2, 2)}")
        a(f"v_add_f32 {v(t)}, {v(t)}, {v(t + 1)}")
        a(f"v_add_f32 {v(t + 2)}, {v(t + 2)}, {v(t + 3)}")
        a(f"v_permlane32_swap_b32 {v(t)}, {v(t + 2)}")
        a(f"v_add_f32 {v(t)}, {v(t)}, {v(t + 2)}")
        a(f"v_mov_b32 {v(t + 1)}, {v(t)}")
        a(f"v_permlane16_swap_b32 {v(t)}, {v(t + 1)}")
        a(f"v_add_f32 {v(t)}, {v(t)}, {v(t + 1)}")
        a("s_mov_b32 exec_lo, 0xffff")
        a("s_mov_b32 exec_hi, 0xffff")
        self.moded([f"buffer_store_dword {v(t)}, {v(vSST)}, {s(sWS, 4)}, {s(sSTST)} offen"], tag="xst")
        a("s_mov_b64 exec, -1")

    def phi_a(self, acc, tmp):
        a = self.ticker()
        for i in range(8):
            a(f"v_pk_mul_f32 {v(acc + 2 * i, 2)}, {v(acc + 2 * i, 2)}, {v(vS, 2)} op_sel_hi:[1,0]")
        for i in range(16):
            a(f"v_exp_f32_e64 {v(tmp + i)}, {v(acc + i)} clamp")
            a(f"v_max_f32 {v(acc + i)}, {s(sDELTA)}, {v(acc + i)}")
        for i in range(8):
            a(f"v_pk_fma_f32 {v(acc + 2 * i, 2)}, {v(acc + 2 * i, 2)}, {s(sLN2, 2)}, {v(tmp + 2 * i, 2)}")
        for i in range(8):
            a(f"v_cvt_pk_bf16_f32 {v(PK + i)}, {v(acc + 2 * i)}, {v(acc + 2 * i + 1)}")

    def logits(self):
        a = self.a
        for i in range(8):
            a(f"v_cvt_pk_bf16_f32 {v(PK + i)}, {v(AK + 2 * i)}, {v(AK + 2 * i + 1)}")
        a.wait(lg="wp")
        a(f"v_mfma_f32_32x32x16_bf16 {v(LG, 16)}, {v(PK + 8, 4)}, {v(PK, 4)}, 0")
        a(f"v_mfma_f32_32x32x16_bf16 {v(LG, 16)}, {v(PK + 12, 4)}, {v(PK + 4, 4)}, {v(LG, 16)}")

    def softmax2(self, t, isq, after_plus=None, after_minus=None):
        a = self.ticker()
        a(f"v_max3_f32 {v(t)}, {v(LG)}, {v(LG + 1)}, {v(LG + 2)}")
        a(f"v_min3_f32 {v(t + 1)}, {v(LG)}, {v(LG + 1)}, {v(LG + 2)}")
        for i in range(3, 15, 2):
            a(f"v_max3_f32 {v(t)}, {v(t)}, {v(LG + i)}, {v(LG + i + 1)}")
            a(f"v_min3_f32 {v(t + 1)}, {v(t + 1)}, {v(LG + i)}, {v(LG + i + 1)}")
        a(f"v_max_f32 {v(t)}, {v(t)}, {v(LG + 15)}")
        a(f"v_min_f32 {v(t + 1)}, {v(t + 1)}, {v(LG + 15)}")
        a(f"v_pk_mul_f32 {v(t, 2)}, {v(t, 2)}, {v(vS, 2)} op_sel_hi:[1,0]")
        for sg, E in ((0, AK), (1, LG)):
            for i in range(8):
                if sg == 0:
                    a(f"v_pk_fma_f32 {v(E + 2 * i, 2)}, {v(LG + 2 * i, 2)}, {v(vS, 2)}, {v(t, 2)} op_sel_hi:[1,0,0] neg_lo:[0,0,1] neg_hi:[0,0,1]")
                else:
                    a(f"v_pk_fma_f32 {v(E + 2 * i, 2)}, {v(LG + 2 * i, 2)}, {v(vS, 2)}, {v(t, 2)} op_sel:[0,0,1] op_sel_hi:[1,0,1] neg_lo:[1,0,0] neg_hi:[1,0,0]")
            for i in range(16):
                a(f"v_exp_f32 {v(E + i)}, {v(E + i)}")
            S = t + 2 + 2 * sg
            a(f"v_pk_add_f32 {v(S, 2)}, {v(E, 2)}, {v(E + 2, 2)}")
            for i in range(2, 8):
                a(f"v_pk_add_f32 {v(S, 2)}, {v(S, 2)}, {v(E + 2 * i, 2)}")
            a(f"v_add_f32 {v(S)}, {v(S)}, {v(S + 1)}")
            if not (isq and sg == 0):
                a(f"v_rcp_f32 {v(S)}, {v(S)}")
                if isq:
                    a(f"v_mul_f32 {v(t + 6)}, {f2u(1e-6):#x}, {v(t + 2)}")
                    a(f"v_mul_f32 {v(S)}, {v(S)}, {v(t + 2)}")
                for i in range(8):
                    a(f"v_pk_mul_f32 {v(E + 2 * i, 2)}, {v(E + 2 * i, 2)}, {v(S, 2)} op_sel_hi:[1,0]")
            for i in range(8):
                a(f"v_cvt_pk_bf16_f32 {v(PK + 8 * sg + i)}, {v(E + 2 * i)}, {v(E + 2 * i + 1)}")
            cb = (after_plus, after_minus)[sg]
            if cb:
                cb()

    def layer(self, T):
        a, cfg = self.a, self.cfg
        NT = 2 if T == 0 else 4
        NJ = NT
        skip23 = (lambda: self.only_if(f"s_cmp_lt_u32 {s(sW)}, 2")) if T == 0 else (lambda: self.uncounted())
        bgn = cfg["bg0"] if T == 0 else cfg["bg1"]
        a.label(f"L_layer{T}")
        a.vm.clear(); a.lg.clear(); a.vm1.clear()
        a.wait(lg=0)
        a("s_barrier")
        self.ts(f"{T}:bar1")
        ST = LG
        CS = LG + 8
        CSA, MB = PK, PK + 2
        a(f"ds_read_b128 {v(CS, 4)}, {v(vCSR)} offset:{T * 1536}", lg="cs")
        a(f"ds_read_b128 {v(CS + 4, 4)}, {v(vCSR)} offset:{T * 1536 + 512}", lg="cs")
        if T == 1:
            for i in range(2):
                a(f"ds_read_b128 {v(PK + 8 + 4 * i, 4)}, {v(vKFR)} offset:{L_WPF - L_KVF + 528 * i}", lg="wp")
        D = 3

        def rd(j, p):
            for u in range(2):
                a(f"ds_read_b64_tr_b16 {v(RG + (j % D) * 8 + 4 * p + 2 * u, 2)}, {v(vWRD)} offset:{p * 32768 + self.woff(j, u)}", lg=f"w{j}")
        for j in range(D):
            rd(j, 0); rd(j, 1)
        if T == 0:
            a(f"s_cmp_eq_u32 {s(sPASS)}, 0")
            a("s_cbranch_scc1 L_poll0")
            a.label("L_npoll")
        self.poll(vPOLL, sFXP, LG)
        if T == 0:
            a.label("L_enter")
        self.ts(f"{T}:xpoll")

        def ldx(j):
            if j % 4 == 0:
                a(f"s_add_u32 {s(sT0)}, {s(sXLD)}, {j * 1024}")
            a(f"buffer_load_dwordx4 {v(XF + 4 * j, 4)}, {v(vL16)}, {s(sOUT, 4)}, {s(sT0)} offen offset:{(j % 4) * 1024} sc1", vm=f"x{j}")
            if j == 9:
                a(f"buffer_load_dwordx4 {v(ST, 4)}, {v(vSLD)}, {s(sWS, 4)}, {s(sSTLD)} offen sc1", vm="st")
            if j == 11:
                a(f"buffer_load_dwordx4 {v(ST + 4, 4)}, {v(vSLD)}, {s(sWS, 4)}, {s(sSTLD)} offen offset:512 sc1", vm="st")
        NX = cfg["nx0"]
        for j in range(max(NX, 8)):
            if j < NX:
                ldx(j)
            if j < 8:
                self.put_wkv(T, 8 + j, 9 + j)
        t, u_ = ST, ST + 1
        fill = [
            f"v_pk_add_f32 {v(ST, 2)}, {v(ST, 2)}, {v(ST + 2, 2)}",
            f"v_pk_add_f32 {v(ST + 4, 2)}, {v(ST + 4, 2)}, {v(ST + 6, 2)}",
            f"v_pk_add_f32 {v(ST, 2)}, {v(ST, 2)}, {v(ST + 4, 2)}",
            f"v_add_f32 {v(t)}, {v(ST)}, {v(ST + 1)}",
            f"v_mul_f32 {v(t)}, {f2u(1 / 512):#x}, {v(t)}",
            f"v_mov_b32 {v(u_)}, {v(t)}",
            f"v_permlane32_swap_b32 {v(t)}, {v(u_)}",
            f"v_fma_f32 {v(u_)}, -{v(t)}, {v(t)}, {v(u_)}",
            f"v_max_f32 {v(u_)}, 0, {v(u_)}",
            f"v_cvt_pk_bf16_f32 {v(vM)}, -{v(t)}, -{v(t)}",
            f"v_cvt_pk_bf16_f32 {v(u_)}, {v(u_)}, {v(u_)}",
            f"v_and_b32 {v(u_)}, 0xffff0000, {v(u_)}",
            f"v_add_f32 {v(u_)}, {f2u(1e-5):#x}, {v(u_)}",
            f"v_cvt_pk_bf16_f32 {v(u_)}, {v(u_)}, {v(u_)}",
            f"v_and_b32 {v(u_)}, 0xffff0000, {v(u_)}",
            f"v_sqrt_f32 {v(u_)}, {v(u_)}",
            f"v_cndmask_b32 {v(vM)}, {v(vM)}, 0, {s(sHI, 2)}",
            f"v_cvt_pk_bf16_f32 {v(u_)}, {v(u_)}, {v(u_)}",
            f"v_and_b32 {v(u_)}, 0xffff0000, {v(u_)}",
            f"v_rcp_f32 {v(vRS)}, {v(u_)}",
            f"v_mov_b32 {v(MB)}, {v(vM)}",
            f"v_mul_f32 {v(vS)}, {LOG2E:#x}, {v(vRS)}",
            f"v_mov_b32 {v(MB + 1)}, 0",
            f"v_mov_b32 {v(MB + 2)}, 0",
            f"v_mov_b32 {v(MB + 3)}, {v(vM)}",
        ]
        fill = self.cs_pack(CS, CSA) + self.cs_pack(CS + 4, CSA + 1) + [None] * 12 + fill
        for j in range(32):
            a.wait(vm=f"x{j}", lg=f"w{j}")
            if j == 16 - D:
                a("s_barrier")
            if j == 28:
                assert not fill
                a(f"v_mfma_f32_32x32x8_bf16 {v(AK, 16)}, {v(CSA, 2)}, {v(MB, 2)}, {v(AK, 16)}")
                a(f"v_mfma_f32_32x32x8_bf16 {v(AV, 16)}, {v(CSA, 2)}, {v(MB + 2, 2)}, {v(AV, 16)}")
            for p, acc in ((0, AK), (1, AV)):
                c = v(acc, 16) if j else "0"
                a(f"v_mfma_f32_32x32x16_bf16 {v(acc, 16)}, {v(RG + (j % D) * 8 + 4 * p, 4)}, {v(XF + 4 * j, 4)}, {c}")
                if p == 0 and j + NX < 32:
                    ldx(j + NX)
                if j + D < 32:
                    rd(j + D, p)
                if fill:
                    f_ = fill.pop(0)
                    if f_:
                        a(f_)
        with self.pass1():
            if T == 0:
                a(f"buffer_load_dword {v(vHL)}, {v(vPOLL)}, {s(sWS, 4)}, {s(sHEL)} offen sc1")
            self.bg_setup(T)
        self.ts(f"{T}:kvgemm")
        self.dump("kv", list(range(AK, AK + 32)) + [vS, vRS, vM], RG)

        def v_path():
            for i in range(8):
                a(f"v_pk_mul_f32 {v(AV + 2 * i, 2)}, {v(AV + 2 * i, 2)}, {v(vS, 2)} op_sel:[0,1]")
            for i in range(8):
                a(f"v_cvt_pk_bf16_f32 {v(AV + i)}, {v(AV + 2 * i)}, {v(AV + 2 * i + 1)}")
            for i in range(2):
                a(f"ds_write_b128 {v(vSTW)}, {v(AV + 4 * i, 4)} offset:{0x4000 + 128 * i}")

        def stage(sg):
            for i in range(2):
                a(f"ds_write_b128 {v(vSTW)}, {v(PK + 8 * sg + 4 * i, 4)} offset:{sg * 8192 + 128 * i}")
        self.bg_region(bgn[0], 56 if T == 0 else 110)
        if T == 0:
            self.phi_a(AK, LG)
            stage(0)
            v_path()
        else:
            self.logits()
            v_path()
            self.softmax2(RG, False, lambda: stage(0), lambda: stage(1))
        self.dump("pk", list(range(PK, PK + 16)) + list(range(AV, AV + 8)), RG)
        a.wait(lg=0)
        a("s_barrier")
        self.ts(f"{T}:bar2")
        with skip23():
            ONE, DK, DZ, PB = AV, AV + 4, AV + 8, AV + 12
            for st in range(4):
                for u in range(2):
                    a(f"ds_read_b64_tr_b16 {v(LG + 4 * st + 2 * u, 2)}, {v(vSTR)} offset:{st * 1024 + u * 512}", lg=f"p{st}")
                for u in range(2):
                    a(f"ds_read_b64_tr_b16 {v(PK + 4 * st + 2 * u, 2)}, {v(vSTR2)} offset:{st * 1024 + u * 512}", lg=f"p{st}")
            for i in range(4):
                a(f"v_mov_b32 {v(ONE + i)}, 0x3f803f80")
            for st in range(4):
                a.wait(lg=f"p{st}")
                a(f"v_mfma_f32_16x16x32_bf16 {v(DK, 4)}, {v(LG + 4 * st, 4)}, {v(PK + 4 * st, 4)}, {v(DK, 4) if st else 0}")
                a(f"v_mfma_f32_16x16x32_bf16 {v(DZ, 4)}, {v(LG + 4 * st, 4)}, {v(ONE, 4)}, {v(DZ, 4) if st else 0}")
            for i in range(2):
                a(f"v_cvt_pk_bf16_f32 {v(PB + i)}, {v(DK + 2 * i)}, {v(DK + 2 * i + 1)}")
            for i in range(2):
                a(f"v_min_u32 {v(PB + 2 + i)}, -2, {v(PB + i)}")
                a(f"v_min_u32 {v(PB + i)}, -2, {v(PB + i)}")
            for i in range(4):
                a(f"v_min_u32 {v(DZ + i)}, -2, {v(DZ + i)}")
            for i in range(2):
                a(f"v_permlane16_swap_b32 {v(PB + i)}, {v(PB + 2 + i)}")
            a("s_mov_b32 exec_lo, 0xffff")
            a("s_mov_b32 exec_hi, 0xffff")
            a(f"buffer_store_dwordx4 {v(PB, 4)}, {v(vPST)}, {s(sWS, 4)}, {s(sKVT)} offen sc1")
            a("s_mov_b32 exec_lo, 0x10001")
            a("s_mov_b32 exec_hi, 0x10001")
            a(f"buffer_store_dwordx4 {v(DZ, 4)}, {v(vZST)}, {s(sWS, 4)}, {s(sKVT)} offen sc1")
            a("s_mov_b64 exec, -1")
        self.ts(f"{T}:publish")
        with self.pass1():
            a.wait1("wq")
            self.cs_q(T)
            if T == 0:
                l = a.newlabel("hello")
                a(f"s_or_b32 {s(sT2)}, {s(sTAG)}, 0xf0")
                a(f"v_cmp_ne_u32 vcc, {s(sT2)}, {v(vHL)}")
                a(f"s_cbranch_vccz {l}")
                a(f"s_mov_b32 {s(sT1)}, {s(sTAG)}")
                a(f"s_mov_b32 {s(sTAG)}, {s(sT2)}")
                with self.uncounted():
                    self.poll(vPOLL, sHEL, vHL)
                a(f"s_mov_b32 {s(sTAG)}, {s(sT1)}")
                a.label(l)
            a("s_waitcnt lgkmcnt(0)")
            a("s_barrier")
        QA = LG
        CS, CSA, MB = LG + 4, LG + 8, LG + 10
        a(f"v_add_u32 {v(QA)}, {L_WQ[T]:#x}, {v(vWRD)}")
        a(f"ds_read_b128 {v(CS, 4)}, {v(vCSR)} offset:{T * 1536 + 1024}", lg="cs")
        if T == 1:
            for i in range(2):
                a(f"ds_read_b128 {v(PK + 8 + 4 * i, 4)}, {v(vKFR)} offset:{L_WPF - L_KVF + 528 * i}", lg="wp")
        D = 5

        def rq(j):
            for u in range(2):
                a(f"ds_read_b64_tr_b16 {v(RG + (j % D) * 4 + 2 * u, 2)}, {v(QA)} offset:{self.woff(j, u)}", lg=f"q{j}")

        PL, SEL, DR = 0, 36, 40

        def partial_load(i):
            if i % 4 == 0:
                a(f"s_add_u32 {s(sT1)}, {s(sKVT)}, {i * 1024}")
            a(f"buffer_load_dwordx4 {v(PL + 4 * i, 4)}, {v(vL16)}, {s(sWS, 4)}, {s(sT1)} offen offset:{(i % 4) * 1024} sc1", vm="pl")

        def partial_loads():
            for i in range(9):
                partial_load(i)
        for j in range(D):
            rq(j)
        fill = self.cs_pack(CS, CSA) + [f"v_mov_b32 {v(CSA + 1)}, 0", f"v_mov_b32 {v(MB)}, {v(vM)}", f"v_mov_b32 {v(MB + 1)}, 0"]
        PS = cfg["pl_step"]
        self.bg_region(bgn[1], PS)
        npl = 0
        for j in range(32):
            a.wait(lg=f"q{j}")
            a(f"v_mfma_f32_32x32x16_bf16 {v(AK, 16)}, {v(RG + (j % D) * 4, 4)}, {v(XF + 4 * j, 4)}, {v(AK, 16) if j else 0}")
            self.bg_tick()
            if j >= PS and npl < 9:
                if T == 1:
                    partial_load(npl); npl += 1
                elif (j - PS) % 3 == 0:
                    with skip23():
                        for _ in range(3):
                            partial_load(npl); npl += 1
            if j + D < 32:
                rq(j + D)
            if fill:
                a(fill.pop(0))
        a(f"v_mfma_f32_32x32x8_bf16 {v(AK, 16)}, {v(CSA, 2)}, {v(MB, 2)}, {v(AK, 16)}")
        if npl < 9:
            with skip23():
                while npl < 9:
                    partial_load(npl); npl += 1
        self.sel_read(SEL)
        self.ts(f"{T}:qgemm")
        self.dump("q", list(range(AK, AK + 16)), RG)
        EPS = RG + 6
        with self.pass1():
            assert len(self.bg) <= (16 if T == 0 else 0)
            if T == 0:
                l = a.newlabel("w")
                n = len(a.vm1) - 1 - max(i for i, t_ in enumerate(a.vm1) if t_ == "wo")
                a(f"s_waitcnt vmcnt({n + 9})")
                a(f"s_cmp_lt_u32 {s(sW)}, 2")
                a(f"s_cbranch_scc1 {l}")
                a.wait1("wo")
                a.label(l)
            else:
                a.wait1("wo")
        nbg3 = min(bgn[2], len(self.bg))
        self.bg_region(bgn[2], 56 if T == 0 else 100)
        self.side = [(lambda i=i: self.put_wo(T, i)) for i in range(16)]
        self.side_every = cfg["wo_every"][T]
        if T == 0:
            self.phi_a(AK, LG)
            a(f"v_mov_b32 {v(EPS)}, {f2u(1e-6):#x}")
        else:
            self.side.pop(0)()
            self.logits()
            self.side.pop(0)()
            self.side.pop(0)()
            self.softmax2(RG, True)
        while self.side:
            self.side.pop(0)()
        self.dump("pq", list(range(PK, PK + 16)), AV)
        self.ts(f"{T}:phiq")
        with skip23():
            lchk, lok = a.newlabel("chk"), a.newlabel("ok")
            a(f"s_mov_b32 {s(sCNT)}, 0x10000")
            a.wait(lg="sel")
            if nbg3:
                l = a.newlabel("w")
                a(f"s_waitcnt vmcnt({nbg3})")
                a(f"s_cmp_eq_u32 {s(sPASS)}, 0")
                a(f"s_cbranch_scc1 {l}")
            a.label(lchk)
            a.wait(vm=0)
            if nbg3:
                a.label(l)
            m = 44
            chk = [f"v_max3_u32 {v(m)}, {v(PL)}, {v(PL + 1)}, {v(PL + 2)}"]
            chk += [f"v_max3_u32 {v(m)}, {v(m)}, {v(PL + i)}, {v(PL + i + 1)}" for i in range(3, 35, 2)]
            chk += [f"v_max_u32 {v(m)}, {v(m)}, {v(PL + 35)}"]
            for i in range(8):
                a(f"v_mfma_f32_16x16x32_bf16 {v(DR, 4)}, {v(SEL, 4)}, {v(PL + 4 * i, 4)}, {v(DR, 4) if i else 0}")
                a(chk.pop(0)); a(chk.pop(0))
            a(chk.pop(0)); a(chk.pop(0))
            a(f"v_cmp_eq_u32 vcc, -1, {v(m)}")
            a(f"s_cbranch_vccnz {lok}")
            n0 = len(a.ins)
            a.label(lok)
            a(f"s_sub_u32 {s(sCNT)}, {s(sCNT)}, 1")
            a("s_cbranch_scc1 L_timeout")
            partial_loads()
            a(f"s_branch {lchk}")
            self.tail += a.ins[n0:]
            del a.ins[n0:]
            Z = PL + 32
            a(f"v_permlane16_swap_b32 {v(Z)}, {v(Z + 1)}")
            a(f"v_permlane16_swap_b32 {v(Z + 2)}, {v(Z + 3)}")
            a(f"v_add_f32 {v(Z)}, {v(Z)}, {v(Z + 1)}")
            a(f"v_add_f32 {v(Z + 2)}, {v(Z + 2)}, {v(Z + 3)}")
            a(f"v_permlane32_swap_b32 {v(Z)}, {v(Z + 2)}")
            a(f"v_add_f32 {v(Z)}, {v(Z)}, {v(Z + 2)}")
            a(f"v_add_f32 {v(Z)}, {v(Z)}, {v(Z)} row_ror:4")
            a(f"v_add_f32 {v(Z)}, {v(Z)}, {v(Z)} row_ror:8")
            a(f"v_cvt_pk_bf16_f32 {v(Z)}, {v(Z)}, {v(Z)}")
            a(f"ds_write_b16 {v(vZW)}, {v(Z)}")
            for i in range(2):
                a(f"v_cvt_pk_bf16_f32 {v(DR + i)}, {v(DR + 2 * i)}, {v(DR + 2 * i + 1)}")
            a(f"ds_write_b64 {v(vKFW)}, {v(DR, 2)}")
        self.bg_now(bgn[3])
        a.wait(lg=0)
        a("s_barrier")
        self.ts(f"{T}:bar3")
        KF, ZF, DEN, O = 0, 16, RG + 6, LG
        for j in range(NJ):
            a(f"ds_read_b128 {v(KF + 4 * j, 4)}, {v(vKFR)} offset:{528 * j}", lg=f"kf{j}")
        for j in range(NJ):
            a(f"ds_read_b128 {v(ZF + 4 * j, 4)}, {v(vZR)} offset:{(j >> 1) * 64 + (j & 1) * 16}", lg=f"zf{j}")
        for j in range(NJ):
            a.wait(lg=f"kf{j}")
            a(f"v_mfma_f32_32x32x16_bf16 {v(AV, 16)}, {v(KF + 4 * j, 4)}, {v(PK + 4 * j, 4)}, {v(AV, 16) if j else 0}")
        for j in range(NJ):
            a.wait(lg=f"zf{j}")
            for d in range(4):
                a(f"v_dot2c_f32_bf16 {v(DEN)}, {v(ZF + 4 * j + d)}, {v(PK + 4 * j + d)}")
        a(f"v_rcp_f32 {v(DEN)}, {v(DEN)}")
        for i in range(8):
            a(f"v_pk_mul_f32 {v(AV + 2 * i, 2)}, {v(AV + 2 * i, 2)}, {v(DEN, 2)} op_sel_hi:[1,0]")
        for i in range(8):
            a(f"v_cvt_pk_bf16_f32 {v(O + i)}, {v(AV + 2 * i)}, {v(AV + 2 * i + 1)}")
        self.moded([f"buffer_store_dwordx4 {v(O + 4 * i, 4)}, {v(vOST)}, {s(sWS, 4)}, {s(sOST)} offen offset:{256 * i}" for i in range(2)])
        self.dump("o", list(range(O, O + 8)), PK)
        WR, DW = 64, 7
        WA = [vWOR, PK, PK + 1, PK + 2]
        for t_ in range(1, 4):
            a(f"v_xor_b32 {v(WA[t_])}, {32 * t_}, {v(vWOR)}")

        def rw(i, t_):
            for u in range(2):
                a(f"ds_read_b64_tr_b16 {v(WR + (i % DW) * 16 + 4 * t_ + 2 * u, 2)}, {v(WA[t_])} offset:{t_ * 16384 + i * 1024 + u * 512}", lg=f"wo{i}_{t_}")
        for i in range(4):
            for t_ in range(4):
                rw(i, t_)
        self.flag(sFOS, PK + 4)
        self.ts(f"{T}:oflag")
        self.bg_now(bgn[4])
        for i in range(4, DW):
            for t_ in range(4):
                rw(i, t_)
        self.poll(vPOLL, sFOP, PK + 5)
        self.ts(f"{T}:opoll")

        def ldo(i):
            if i % 4 == 0:
                a(f"s_add_u32 {s(sT0)}, {s(sOLD)}, {i * 1024}")
            a(f"buffer_load_dwordx4 {v(4 * i, 4)}, {v(vL16)}, {s(sWS, 4)}, {s(sT0)} offen offset:{(i % 4) * 1024} sc1", vm=f"o{i}")
        NO = cfg["no0"]
        for i in range(NO):
            ldo(i)
        for i in range(16):
            for t_ in range(4):
                a.wait(vm=f"o{i}", lg=f"wo{i}_{t_}")
                a(f"v_mfma_f32_16x16x32_bf16 {v(XR + 4 * t_, 4)}, {v(WR + (i % DW) * 16 + 4 * t_, 4)}, {v(4 * i, 4)}, {v(XR + 4 * t_, 4)}")
                if t_ == 0 and i + NO < 16:
                    ldo(i + NO)
                if i + DW < 16:
                    rw(i + DW, t_)
        nlate = len(self.bg)
        self.bg_now(99)
        self.ts(f"{T}:ogemm")
        self.dump("x", list(range(XR, XR + 16)), PK)
        if cfg["stop"] is not None and cfg["stop"] % 2 == T:
            a(f"s_cmp_eq_u32 {s(sLAY)}, {cfg['stop']}")
            a("s_cbranch_scc1 L_final")
        if T == 1:
            a(f"s_cmp_eq_u32 {s(sPASS)}, 1")
            a("s_cbranch_scc1 L_final")
        self.x_publish()
        a("s_barrier")
        assert nlate <= 8
        if T == 0:
            self.sel_read(0)
        self.put_wkv(1 - T, 0, 8)
        a(f"s_add_u32 {s(sTAG)}, {s(sTAG)}, 16")
        a(f"s_add_u32 {s(sKVT)}, {s(sKVT)}, {KVP[T + 1] - KVP[T]}")
        a(f"s_add_u32 {s(sLAY)}, {s(sLAY)}, 1")
        self.flag(sFXS, PK + 4)
        if T == 0:
            with self.pass1():
                a.wait(lg="sel")
                for i in range(16):
                    self.cs_kv_step(1, i, 0, 4)
                self.cs_kv_fin(1, 4, 8)
        self.ts(f"{T}:xflag")
        if T == 1:
            a(f"s_mov_b32 {s(sPASS)}, 1")
            a(f"s_mov_b64 {s(sPM, 2)}, -1")
            a("s_branch L_layer0")

    def prologue(self):
        a, cfg = self.a, self.cfg
        a(f"s_cmp_ge_u32 {s(sID)}, 256")
        a("s_cbranch_scc1 L_end")
        self.ts("start")
        a(f"s_load_dwordx16 {s(4, 16)}, s[0:1], 0")
        a(f"s_load_dwordx4 {s(20, 4)}, s[0:1], 64")
        a(f"s_getpc_b64 {s(sSAVE, 2)}")
        a.label("L_pc")
        NCL = cfg["codepf"]
        a(f"s_bfe_u32 {s(sT0)}, {s(sID)}, {3 | (3 << 16)}")
        a(f"s_mul_i32 {s(sT0)}, {s(sT0)}, {NCL}")
        a(f"v_min_u32 v1, {NCL - 1}, v0")
        a(f"v_add_u32 v1, {s(sT0)}, v1")
        a(f"v_min_u32 v1, (L_codeend-L_pc)/128, v1")
        a("v_lshlrev_b32 v1, 7, v1")
        a(f"global_load_dword v2, v1, {s(sSAVE, 2)}")
        if cfg["ts"]:
            a(f"s_mov_b32 {s(sTSI)}, 0")
            a(f"v_mov_b32 {v(vTS)}, 0")
            a(f"s_memrealtime s[78:79]")
        L = 3
        a(f"v_lshrrev_b32 v1, 6, v0")
        a(f"v_and_b32 {v(L)}, 63, v0")
        a(f"v_readfirstlane_b32 {s(sW)}, v1")
        a(f"v_lshlrev_b32 {v(vL16)}, 4, {v(L)}")
        a(f"s_bfe_u32 {s(sC)}, {s(sID)}, {3 | (4 << 16)}")
        a(f"s_lshr_b32 {s(sT0)}, {s(sID)}, 7")
        a(f"s_and_b32 {s(sR)}, {s(sID)}, 7")
        a(f"s_lshl1_add_u32 {s(sR)}, {s(sR)}, {s(sT0)}")
        sBP, sSUB, sCG, sB = 99, 100, 101, sCNT
        a(f"s_lshr_b32 {s(sT0)}, {s(sC)}, 3")
        a(f"s_lshr_b32 {s(sT3)}, {s(sW)}, 1")
        a(f"s_lshl1_add_u32 {s(sT0)}, {s(sT0)}, {s(sT3)}")
        a(f"s_lshl2_add_u32 {s(sBP)}, {s(sR)}, {s(sT0)}")
        a(f"s_lshl2_add_u32 {s(sB)}, {s(sR)}, {s(sW)}")
        a(f"s_and_b32 {s(sSUB)}, {s(sW)}, 1")
        a(f"s_and_b32 {s(sCG)}, {s(sC)}, 7")
        a(f"s_lshl1_add_u32 {s(sT0)}, {s(sBP)}, {s(sSUB)}")
        a(f"s_lshl_b32 {s(sOLD)}, {s(sT0)}, 14")
        a(f"s_lshl_b32 {s(sT0)}, {s(sCG)}, 7")
        a(f"s_add_u32 {s(sFIN)}, {s(sOLD)}, {s(sT0)}")
        a(f"s_lshl3_add_u32 {s(sT0)}, {s(sBP)}, {s(sCG)}")
        a(f"s_lshl4_add_u32 {s(sT0)}, {s(sT0)}, {s(sSUB)}")
        a(f"s_lshl_b32 {s(sXST)}, {s(sT0)}, 8")
        self.rowmajor_voff(4, 5)
        a(f"s_lshl_b32 {s(sXLD)}, {s(sB)}, 15")
        a(f"s_lshl_b32 {s(sT0)}, {s(sC)}, 10")
        a(f"s_add_u32 {s(sOST)}, {s(sXLD)}, {s(sT0)}")
        a(f"s_add_u32 {s(sOST)}, {s(sOST)}, {OBUF}")
        a(f"s_lshl_b32 {s(sSTLD)}, {s(sB)}, 11")
        a(f"s_add_u32 {s(sSTLD)}, {s(sSTLD)}, {STATS}")
        a(f"s_lshl_b32 {s(sT0)}, {s(sB)}, 7")
        a(f"s_add_u32 {s(sFXP)}, {s(sT0)}, {FLAGX}")
        a(f"s_add_u32 {s(sFOS)}, {s(sT0)}, {FLAGO}")
        a(f"s_lshl_b32 {s(sT0)}, {s(sC)}, 7")
        a(f"s_add_u32 {s(sT0)}, {s(sT0)}, {s(sSTLD)}")
        a(f"v_lshlrev_b32 v6, 7, {v(L)}")
        a(f"v_and_b32 v7, 0x700, v6")
        a(f"v_add_u32 v7, v7, v6")
        a(f"v_bfe_u32 v48, {v(L)}, 3, 1")
        a(f"v_mul_u32_u24 v48, {16384 - 1024}, v48")
        a(f"v_add3_u32 v48, v48, v6, {s(sOST)}")
        a(f"v_writelane_b32 v48, {s(sT0)}, 16")
        a(f"v_writelane_b32 v48, {s(sFXP)}, 17")
        a(f"v_writelane_b32 v48, {s(sFOS)}, 18")
        for r_ in (sTMP, sWS, sOUT, sSW[0], sSW[1], sSO[0], sSO[1]):
            a(f"s_mov_b32 {s(r_ + 3)}, 0x20000")
        a(f"s_mov_b32 {s(sWS + 2)}, {WS_SIZE:#x}")
        a(f"s_mov_b32 {s(sOUT + 2)}, 0x200000")
        a(f"s_mov_b32 {s(sTMP + 2)}, 0x200000")
        a(f"s_cmp_lt_u32 {s(sW)}, 2")
        a(f"s_cselect_b32 {s(sT1)}, 3, 1")
        a(f"s_lshl_b32 {s(sT1)}, {s(sT1)}, 11")
        a(f"s_mul_i32 {s(sT2)}, {s(sID)}, {s(sT1)}")
        a(f"s_sub_u32 {s(sT0)}, {s(sT1)}, 128")
        a(f"v_min_u32 v6, {s(sT0)}, v6")
        a("s_waitcnt lgkmcnt(0)")
        self.ts("kernarg")
        a(f"s_mov_b64 {s(sTMP, 2)}, {s(sPX, 2)}")
        for i in range(2):
            a(f"buffer_load_dwordx4 {v(8 + 4 * i, 4)}, v4, {s(sTMP, 4)}, {s(sFIN)} offen offset:{64 * i}", vm="x0")
        a(f"s_load_dword {s(sEP)}, {s(sPWS, 2)}, 0")
        a(f"s_mov_b64 {s(sWS, 2)}, {s(sPWS, 2)}")
        a(f"s_mov_b64 {s(sOUT, 2)}, {s(sPOUT, 2)}")
        if cfg["mallpf"]:
            a(f"s_cmp_eq_u32 {s(sSUB)}, 0")
            a(f"s_cselect_b64 {s(sTMP, 2)}, {s(sPWA, 2)}, {s(sPWB, 2)}")
            a(f"s_cselect_b64 {s(sSAVE, 2)}, {s(sPWOA, 2)}, {s(sPWOB, 2)}")
            a(f"s_cmp_lt_u32 {s(sW)}, 2")
            a(f"s_cselect_b64 {s(sTMP, 2)}, {s(sTMP, 2)}, {s(sSAVE, 2)}")
            a(f"s_lshl_b32 {s(sTMP + 2)}, {s(sT1)}, 8")
            a(f"buffer_load_dword v2, v6, {s(sTMP, 4)}, {s(sT2)} offen")
        if cfg["touch"]:
            a("s_mov_b64 exec, 0xffff")
            a(f"buffer_load_dword v2, v7, {s(sOUT, 4)}, {s(sXST)} offen")
            a("s_mov_b64 exec, 0x7ffff")
            a(f"buffer_load_dword v2, v48, {s(sWS, 4)}, 0 offen")
            a("s_mov_b64 exec, -1")
        self.srd_tmp(sPPHI, 16384)
        a(f"s_lshl_b32 {s(sT0)}, {s(sC)}, 10")
        a(f"buffer_load_dwordx4 v[16:19], {v(vL16)}, {s(sTMP, 4)}, {s(sT0)} offen", vm="phi")
        self.ts("p_issue")
        for T in range(2):
            a(f"s_mov_b64 {s(sSW[T], 2)}, {s([sPWA, sPWB][T], 2)}")
            a(f"s_mov_b64 {s(sSO[T], 2)}, {s([sPWOA, sPWOB][T], 2)}")
            a(f"s_mov_b32 {s(sSW[T] + 2)}, {512 * 3072}")
            a(f"s_mov_b32 {s(sSO[T] + 2)}, {512 * 1024}")
        a(f"s_lshl_b32 {s(sT0)}, {s(sC)}, 6")
        a(f"s_mul_i32 {s(sQOFF)}, {s(sW)}, {128 * 3072}")
        a(f"s_add_u32 {s(sQOFF)}, {s(sQOFF)}, {s(sT0)}")
        a(f"s_mul_i32 {s(sWOFF)}, {s(sT3)}, {16 * 3072}")
        a(f"s_add_u32 {s(sWOFF)}, {s(sWOFF)}, {s(sT0)}")
        a(f"s_lshl_b32 {s(sT0)}, {s(sSUB)}, 10")
        a(f"s_add_u32 {s(sWOFF)}, {s(sWOFF)}, {s(sT0)}")
        a(f"s_add_u32 {s(sWOFF)}, {s(sWOFF)}, 1024")
        self.w_voff(5)
        for i in range(cfg["n0"]):
            self.ld_wkv(0, i, 5)
        self.ts("p_w0")
        a(f"s_getreg_b32 {s(sXCC)}, hwreg(HW_REG_XCC_ID, 0, 4)")
        a(f"s_lshl_b32 {s(sW13)}, {s(sW)}, 13")
        a(f"s_mov_b64 {s(sPM, 2)}, 0")
        a(f"s_add_u32 {s(sOLD)}, {s(sOLD)}, {OBUF}")
        a(f"s_lshl2_add_u32 {s(sFOS)}, {s(sC)}, {s(sFOS)}")
        a(f"s_lshl_b32 {s(sT0)}, {s(sBP)}, 7")
        a(f"s_add_u32 {s(sFOP)}, {s(sT0)}, {FLAGO}")
        a(f"s_lshl1_add_u32 {s(sT1)}, {s(sCG)}, {s(sSUB)}")
        a(f"s_lshl2_add_u32 {s(sFXS)}, {s(sT1)}, {s(sT0)}")
        a(f"s_add_u32 {s(sFXS)}, {s(sFXS)}, {FLAGX}")
        a(f"s_lshr_b32 {s(sT0)}, {s(sCG)}, 2")
        a(f"s_lshl2_add_u32 {s(sT0)}, {s(sBP)}, {s(sT0)}")
        a(f"s_lshl1_add_u32 {s(sT0)}, {s(sT0)}, {s(sSUB)}")
        a(f"s_lshl_b32 {s(sT0)}, {s(sT0)}, 8")
        a(f"s_and_b32 {s(sT1)}, {s(sCG)}, 3")
        a(f"s_lshl2_add_u32 {s(sSTST)}, {s(sT1)}, {s(sT0)}")
        a(f"s_add_u32 {s(sSTST)}, {s(sSTST)}, {STATS}")
        a(f"s_lshl4_add_u32 {s(sT0)}, {s(sW)}, {s(sC)}")
        a(f"s_mul_i32 {s(sKVT)}, {s(sT0)}, 9216")
        a(f"s_add_u32 {s(sKVT)}, {s(sKVT)}, {KVP[0]}")
        a(f"s_lshl_b32 {s(sHEL)}, {s(sT0)}, 7")
        a(f"s_add_u32 {s(sHEL)}, {s(sHEL)}, {HELLO}")
        a(f"s_lshl_b32 {s(sOOFF)}, {s(sW)}, 17")
        a(f"s_lshl_b32 {s(sT0)}, {s(sCG)}, 7")
        a(f"s_add_u32 {s(sOOFF)}, {s(sOOFF)}, {s(sT0)}")
        a(f"s_mov_b32 {s(sLN2)}, {LN2:#x}")
        a(f"s_mov_b32 {s(sLN2b)}, {LN2:#x}")
        a(f"s_mov_b32 {s(sDELTA)}, {DELTA:#x}")
        a(f"s_mov_b32 {s(sHI)}, 0")
        a(f"s_mov_b32 {s(sHI + 1)}, -1")
        a(f"s_mov_b32 {s(sPASS)}, 0")
        a(f"s_mov_b32 {s(sLAY)}, 0")
        a(f"s_mov_b32 {s(sMODE)}, 0")
        a(f"s_lshl_b32 {s(sANN)}, {s(sR)}, 7")
        a(f"s_add_u32 {s(sANN)}, {s(sANN)}, {ANN}")
        a(f"s_lshl4_add_u32 {s(sGW)}, {s(sR)}, {s(sC)}")
        a(f"s_lshl2_add_u32 {s(sGW)}, {s(sGW)}, {s(sW)}")
        self.ts("p_scal")
        i16, g, half, q, jj, t0, t1 = 20, 21, 22, 23, 24, 25, 26
        a(f"v_and_b32 {v(i16)}, 15, {v(L)}")
        a(f"v_lshrrev_b32 {v(g)}, 4, {v(L)}")
        a(f"v_lshrrev_b32 {v(half)}, 5, {v(L)}")
        a(f"v_and_b32 {v(q)}, 3, {v(L)}")
        a(f"v_bfe_u32 {v(jj)}, {v(L)}, 2, 2")
        a(f"v_lshlrev_b32 {v(vPOLL)}, 2, {v(i16)}")
        a(f"v_lshlrev_b32 {v(t0)}, 4, {v(i16)}")
        a(f"v_lshl_add_u32 {v(vXST)}, {v(g)}, 10, {v(t0)}")
        a(f"v_lshl_add_u32 {v(vSST)}, {v(half)}, 10, {v(t0)}")
        a(f"v_lshl_add_u32 {v(vSLD)}, {v(half)}, 9, {v(vL16)}")
        a(f"s_lshl_b32 {s(sT0)}, {s(sR)}, 9")
        a(f"v_lshl_add_u32 {v(vPST)}, {v(half)}, 8, {v(t0)}")
        a(f"v_add_u32 {v(vPST)}, {s(sT0)}, {v(vPST)}")
        a(f"s_lshl_b32 {s(sT1)}, {s(sR)}, 6")
        a(f"s_add_u32 {s(sT1)}, {s(sT1)}, 8192")
        a(f"v_lshl_add_u32 {v(vZST)}, {v(g)}, 4, {s(sT1)}")
        a(f"v_add_u32 v49, {s(sT0)}, {v(vL16)}")
        a(f"v_lshl_add_u32 v27, {v(q)}, 4, {s(sT1)}")
        a(f"v_cndmask_b32 v49, v49, v27, {s(sHI, 2)}")
        for i in range(4):
            a(f"v_mov_b32 {v(28 + i)}, -1")
        a(f"v_and_b32 {v(t1)}, 1, {v(g)}")
        a(f"v_lshl_add_u32 {v(vOST)}, {v(t1)}, 14, {v(t0)}")
        a(f"v_lshl_add_u32 {v(vOST)}, {v(half)}, 9, {v(vOST)}")
        a(f"v_lshlrev_b32 {v(vWRD)}, 11, {v(half)}")
        a(f"v_lshl_add_u32 {v(vWRD)}, {v(jj)}, 6, {v(vWRD)}")
        a(f"v_lshl_add_u32 {v(vWRD)}, {v(t1)}, 4, {v(vWRD)}")
        a(f"v_and_b32 v27, 1, {v(q)}")
        a(f"v_lshrrev_b32 v32, 1, {v(q)}")
        a(f"v_lshl_add_u32 {v(vWRD)}, v27, 5, {v(vWRD)}")
        a(f"v_lshl_add_u32 {v(vWRD)}, v32, 3, {v(vWRD)}")
        a(f"v_lshlrev_b32 {v(vSTR)}, 8, {v(half)}")
        a(f"v_lshl_add_u32 {v(vSTR)}, v32, 7, {v(vSTR)}")
        a(f"v_lshl_add_u32 {v(vSTR)}, {v(t1)}, 6, {v(vSTR)}")
        a(f"v_lshl_add_u32 {v(vSTR)}, {v(jj)}, 4, {v(vSTR)}")
        a(f"v_lshl_add_u32 {v(vSTR)}, v27, 3, {v(vSTR)}")
        a(f"s_lshl_b32 {s(sT0)}, {s(sSUB)}, 12")
        a(f"s_add_u32 {s(sT0)}, {s(sT0)}, {L_STG + 0x4000}")
        a(f"v_add_u32 {v(vSTR2)}, {s(sT0)}, {v(vSTR)}")
        a(f"s_lshl_b32 {s(sT0)}, {s(sW)}, 12")
        a(f"s_add_u32 {s(sT0)}, {s(sT0)}, {L_STG}")
        a(f"v_add_u32 {v(vSTR)}, {s(sT0)}, {v(vSTR)}")
        a(f"v_bfe_u32 v33, {v(L)}, 3, 2")
        a(f"v_and_b32 {v(vSTW)}, 0x70, {v(vL16)}")
        a(f"v_lshl_add_u32 {v(vSTW)}, v33, 8, {v(vSTW)}")
        a(f"v_lshl_add_u32 {v(vSTW)}, {v(half)}, 12, {v(vSTW)}")
        a(f"s_lshl_b32 {s(sT0)}, {s(sW)}, 10")
        a(f"s_add_u32 {s(sT0)}, {s(sT0)}, {L_STG}")
        a(f"v_add_u32 {v(vSTW)}, {s(sT0)}, {v(vSTW)}")
        a(f"v_bfe_u32 v34, {v(L)}, 1, 2")
        a(f"v_xor_b32 v33, v33, v34")
        a(f"v_lshlrev_b32 {v(vWOW)}, 14, v34")
        a(f"v_lshl_add_u32 {v(vWOW)}, v33, 5, {v(vWOW)}")
        a(f"v_lshl_add_u32 {v(vWOW)}, {v(half)}, 9, {v(vWOW)}")
        a(f"v_lshl_add_u32 {v(vWOW)}, v27, 4, {v(vWOW)}")
        a(f"s_lshl_b32 {s(sT0)}, {s(sW)}, 12")
        a(f"v_add_u32 {v(vWOW)}, {s(sT0)}, {v(vWOW)}")
        a(f"v_lshlrev_b32 {v(vWOR)}, 3, {v(L)}")
        a(f"s_lshl_b32 {s(sT0)}, {s(sSUB)}, 15")
        a(f"s_and_b32 {s(sT1)}, {s(sW)}, 2")
        a(f"s_lshl_b32 {s(sT2)}, {s(sT1)}, 9")
        a(f"s_add_u32 {s(sT0)}, {s(sT0)}, {s(sT2)}")
        a(f"v_add_u32 {v(vWKW)}, {s(sT0)}, {v(vL16)}")
        a(f"v_and_b32 v33, 0x1f0, {v(vL16)}")
        a(f"v_add_u32 {v(vCSR)}, {L_CSP:#x}, v33")
        a(f"v_and_b32 v34, 1, {v(jj)}")
        a(f"v_cmp_eq_u32 vcc, v34, {v(half)}")
        a(f"v_mov_b32 v35, 512")
        a(f"v_cndmask_b32 {v(vKFR)}, v35, v33, vcc")
        a(f"v_add_u32 {v(vKFR)}, {L_KVF:#x}, {v(vKFR)}")
        a(f"s_mul_i32 {s(sT0)}, {s(sT1)}, 528")
        a(f"s_lshl_b32 {s(sT2)}, {s(sSUB)}, 6")
        a(f"s_add_u32 {s(sT0)}, {s(sT0)}, {s(sT2)}")
        a(f"s_add_u32 {s(sT0)}, {s(sT0)}, {L_KVF}")
        a(f"v_mul_u32_u24 {v(vKFW)}, 528, {v(half)}")
        a(f"v_lshl_add_u32 {v(vKFW)}, {v(q)}, 4, {v(vKFW)}")
        a(f"v_lshl_add_u32 {v(vKFW)}, {v(jj)}, 7, {v(vKFW)}")
        a(f"v_lshl_add_u32 {v(vKFW)}, {v(t1)}, 3, {v(vKFW)}")
        a(f"v_add_u32 {v(vKFW)}, {s(sT0)}, {v(vKFW)}")
        a(f"s_lshl_b32 {s(sT0)}, {s(sW)}, 5")
        a(f"s_add_u32 {s(sT0)}, {s(sT0)}, {L_ZB}")
        a(f"v_lshl_add_u32 {v(vZW)}, {v(q)}, 2, {v(g)}")
        a(f"v_lshl_add_u32 {v(vZW)}, {v(vZW)}, 1, {s(sT0)}")
        a(f"v_mov_b32 v35, {L_ZB:#x}")
        a(f"v_lshl_add_u32 {v(vZR)}, {v(half)}, 5, v35")
        a(f"v_mov_b32 v36, 0x3f80")
        a(f"v_lshlrev_b32 v37, 4, v27")
        a(f"v_lshlrev_b32 v36, v37, v36")
        a(f"v_lshrrev_b32 v37, 1, {v(i16)}")
        a(f"v_lshlrev_b32 v38, 2, {v(t1)}")
        a(f"v_sub_u32 v37, v37, v38")
        for d in range(4):
            a(f"v_cmp_eq_u32 vcc, {d}, v37")
            a(f"v_cndmask_b32 {v(40 + d)}, 0, v36, vcc")
        a(f"v_add_u32 v33, {L_SEL:#x}, v33")
        a(f"ds_write_b128 v33, v[40:43]")
        for i in range(4):
            a(f"v_mov_b32 {v(44 + i)}, 0")
        a(f"v_min_u32 v33, 5, {v(L)}")
        a(f"v_mul_u32_u24 v33, 528, v33")
        a(f"v_add_u32 v33, {L_KVF + 512:#x}, v33")
        a(f"ds_write_b128 v33, v[44:47]")
        self.ts("p_lane")
        a.wait(vm="x0")
        self.ts("x0")
        for i in range(2):
            for d in range(2):
                a(f"v_permlane16_swap_b32 {v(8 + 4 * i + d)}, {v(8 + 4 * i + 2 + d)}")
        for i in range(8):
            a(f"v_lshlrev_b32 {v(XR + 2 * i)}, 16, {v(8 + i)}")
            a(f"v_and_b32 {v(XR + 2 * i + 1)}, 0xffff0000, {v(8 + i)}")
        self.x_publish()
        self.ts("p_xpub")
        for i in range(cfg["n0"], cfg["n1"]):
            self.ld_wkv(0, i, 5)
        self.ts("p_w1")
        a(f"s_lshl_b32 {s(sT0)}, {s(sW)}, 10")
        a(f"s_add_u32 {s(sT0)}, {s(sT0)}, {L_STG}")
        a(f"v_add_u32 v33, {s(sT0)}, {v(vL16)}")
        a.wait(vm="phi")
        a(f"ds_write_b128 v33, v[16:19]")
        a(f"v_lshlrev_b32 v33, 9, v27")
        a(f"v_lshl_add_u32 v33, {v(half)}, 8, v33")
        a(f"v_lshl_add_u32 v33, {v(jj)}, 5, v33")
        a(f"v_lshl_add_u32 v33, {v(t1)}, 4, v33")
        a(f"v_lshl_add_u32 v33, v32, 3, v33")
        a(f"v_add_u32 v33, {s(sT0)}, v33")
        a("s_waitcnt lgkmcnt(0)")
        a(f"ds_read_b64_tr_b16 v[16:17], v33")
        a(f"ds_read_b64_tr_b16 v[18:19], v33 offset:128")
        a(f"v_lshl_add_u32 v33, {v(half)}, 4, {v(vL16)}")
        a(f"v_add_u32 v33, {L_WPF:#x}, v33")
        a(f"s_mul_i32 {s(sTAG)}, {s(sEP)}, 0x9e3779b1")
        a(f"s_add_u32 {s(sTAG)}, {s(sTAG)}, 0x7f4a7c15")
        a(f"s_and_b32 {s(sTAG)}, {s(sTAG)}, 0xffffff00")
        a(f"s_or_b32 {s(sT1)}, {s(sTAG)}, 0xf0")
        a(f"s_or_b32 {s(sXCC)}, {s(sTAG)}, {s(sXCC)}")
        a(f"v_mov_b32 v34, {s(sXCC)}")
        a(f"v_mov_b32 v35, {s(sT1)}")
        a("s_waitcnt lgkmcnt(0)")
        a.lg.clear()
        a(f"ds_write_b128 v33, v[16:19]")
        self.ts("p_phi")
        a.wait(vm="xst")
        a("s_mov_b64 exec, 1")
        a(f"buffer_store_dword v34, off, {s(sWS, 4)}, {s(sFXS)}")
        with self.only_if(f"s_cmp_eq_u32 {s(sW)}, 0"):
            a(f"s_lshl2_add_u32 {s(sT0)}, {s(sC)}, {s(sANN)}")
            a(f"buffer_store_dword v34, off, {s(sWS, 4)}, {s(sT0)} sc1")
        self.ts("flag0")
        a("s_mov_b32 exec_lo, -1")
        a("s_mov_b32 exec_hi, 15")
        with self.only_if(f"s_cmp_lt_u32 {s(sW)}, 2"):
            for l in (0, 2):
                a(f"s_add_u32 {s(sT0)}, {s(sKVT)}, {KVP[l] - KVP[0]}")
                a(f"buffer_store_dwordx4 v[28:31], v49, {s(sWS, 4)}, {s(sT0)} offen sc1")
        for l in (1, 3):
            a(f"s_add_u32 {s(sT0)}, {s(sKVT)}, {KVP[l] - KVP[0]}")
            a(f"buffer_store_dwordx4 v[28:31], v49, {s(sWS, 4)}, {s(sT0)} offen sc1", vm="pre")
        a("s_mov_b32 exec_hi, -1")
        self.ts("p_prefill")
        nxt = cfg["n1"]
        for i in range(16):
            while nxt < min(16, i + cfg["nw"]):
                self.ld_wkv(0, nxt, 5)
                nxt += 1
            a.wait(vm=f"wkv{i}")
            if i < 8:
                self.put_wkv(0, i, i + 1)
            self.cs_kv_step(0, i, 40, 44)
        a.wait(vm="pre")
        a("s_mov_b64 exec, 1")
        a(f"s_lshl2_add_u32 {s(sT0)}, {s(sR)}, {s(sHEL)}")
        a(f"buffer_store_dword v35, off, {s(sWS, 4)}, {s(sT0)} sc1")
        a("s_mov_b64 exec, -1")
        self.cs_kv_fin(0, 44, 50)
        self.ts("wkv0")

    def poll0(self):
        a = self.a
        a.label("L_poll0")
        a(f"v_and_b32 v33, 0x100, {v(vL16)}")
        a(f"v_add_u32 v33, v33, {v(vPOLL)}")
        a(f"s_and_b32 {s(sT0)}, {s(sFXP)}, 0xfffffeff")
        a(f"s_mov_b32 {s(sCNT)}, 0x40000")
        a.label("L_poll0a")
        if not self.cfg["force_global"]:
            a(f"buffer_load_dword v34, v33, {s(sWS, 4)}, {s(sT0)} offen sc1")
            a(f"s_sub_u32 {s(sCNT)}, {s(sCNT)}, 1")
            a("s_cbranch_scc1 L_timeout")
            a("s_waitcnt vmcnt(0)")
            a(f"v_cmp_ne_u32 vcc, {s(sXCC)}, v34")
            a("s_cbranch_vccz L_enter")
            a(f"s_and_b32 {s(sT1)}, {s(sCNT)}, 15")
            a("s_cbranch_scc1 L_poll0a")
            a(f"buffer_load_dword v34, {v(vPOLL)}, {s(sWS, 4)}, {s(sANN)} offen sc1")
            a("s_waitcnt vmcnt(0)")
            a(f"v_xor_b32 v34, {s(sXCC)}, v34")
            a(f"v_add_u32 v34, -1, v34")
            a(f"v_cmp_gt_u32 vcc, 15, v34")
            a("s_cbranch_vccz L_poll0a")
        a(f"s_mov_b32 {s(sMODE)}, 1")
        for r_ in (sFXS, sFXP):
            a(f"s_add_u32 {s(r_)}, {s(r_)}, {FLAGX2 - FLAGX}")
        for r_ in (sSTST, sSTLD):
            a(f"s_add_u32 {s(r_)}, {s(r_)}, {STATS2 - STATS}")
        self.x_publish(0)
        self.flag(sFXS, 16)
        a("s_branch L_npoll")

    def rowmajor_voff(self, d, t):
        a = self.a
        a(f"v_and_b32 {v(d)}, 0xf0, {v(vL16)}")
        a(f"v_lshlrev_b32 {v(d)}, 6, {v(d)}")
        a(f"v_bfe_u32 {v(t)}, {v(vL16)}, 8, 1")
        a(f"v_lshl_add_u32 {v(d)}, {v(t)}, 5, {v(d)}")
        a(f"v_lshrrev_b32 {v(t)}, 9, {v(vL16)}")
        a(f"v_lshl_add_u32 {v(d)}, {v(t)}, 4, {v(d)}")

    def final(self):
        a = self.a
        a.label("L_final")
        X = LG
        self.rowmajor_voff(PK, PK + 1)
        for i in range(8):
            a(f"v_cvt_pk_bf16_f32 {v(X + i)}, {v(XR + 2 * i)}, {v(XR + 2 * i + 1)}")
        for i in range(2):
            for d in range(2):
                a(f"v_permlane16_swap_b32 {v(X + 4 * i + d)}, {v(X + 4 * i + 2 + d)}")
        for i in range(2):
            a(f"buffer_store_dwordx4 {v(X + 4 * i, 4)}, {v(PK)}, {s(sOUT, 4)}, {s(sFIN)} offen offset:{64 * i}")
        with self.only_if(f"s_cmp_eq_u32 {s(sGW)}, 0"):
            a(f"s_add_u32 {s(sEP)}, {s(sEP)}, 1")
            a(f"v_mov_b32 v0, {s(sEP)}")
            a("s_mov_b64 exec, 1")
            a(f"buffer_store_dword v0, off, {s(sWS, 4)}, 0 sc1")
            a("s_mov_b64 exec, -1")
        if self.cfg["amp"]:
            amp = self.cfg["amp"]
            self.ts("end")
            a("s_sub_u32 s72, s78, s72")
            a(f"s_mul_i32 s72, s72, {amp[4]}")
            if amp[5]:
                a("s_lshr_b32 s72, s72, 5")
            a("s_min_u32 s72, s72, 100000")
            a("s_memrealtime s[78:79]")
            a("s_waitcnt lgkmcnt(0)")
            a("s_mov_b32 s73, s78")
            a.label("L_amp")
            a("s_memrealtime s[78:79]")
            a("s_waitcnt lgkmcnt(0)")
            a("s_sub_u32 s78, s78, s73")
            a("s_cmp_lt_u32 s78, s72")
            a("s_cbranch_scc1 L_amp")
        if self.cfg["ts"]:
            a("s_waitcnt vmcnt(0)")
            self.ts("end")
            a("s_memrealtime s[72:73]")
            a("s_waitcnt lgkmcnt(0)")
            a(f"v_writelane_b32 {v(vTS)}, s78, 61")
            a(f"v_writelane_b32 {v(vTS)}, s72, 62")
            a(f"v_writelane_b32 {v(vTS)}, {s(sMODE)}, 63")
            a(f"s_lshl_b32 {s(sT0)}, {s(sGW)}, 8")
            a(f"s_add_u32 {s(sT0)}, {s(sT0)}, {DBG + 0x2000000}")
            a(f"v_lshrrev_b32 v0, 2, {v(vL16)}")
            a(f"buffer_store_dword {v(vTS)}, v0, {s(sWS, 4)}, {s(sT0)} offen")
        a.label("L_timeout")
        a.label("L_end")
        a("s_endpgm")

    def build(self):
        a = self.a
        self.prologue()
        self.layer(0)
        self.layer(1)
        self.final()
        self.poll0()
        a.raw(self.tail)
        a.label("L_codeend")
        a("s_endpgm")
        nops = a.pad_hazards()
        head = open(f"cdna_kernels/{NAME}.s.ref").read().split("; Override launch")[0]
        out = head + f"; @launch grid=(256,1,1) block=(256,1,1) lds={LDS_SIZE}\n"
        out += f""".amdgcn_target "amdgcn-amd-amdhsa--gfx950"
.text
.globl {NAME}_kernel
.p2align 8
.type {NAME}_kernel,@function
{NAME}_kernel:
"""
        out += a.text()
        out += f""".section .rodata,"a"
.p2align 6
.amdhsa_kernel {NAME}_kernel
  .amdhsa_next_free_vgpr 512
  .amdhsa_next_free_sgpr 102
  .amdhsa_accum_offset 256
  .amdhsa_group_segment_fixed_size 0
  .amdhsa_kernarg_size 80
  .amdhsa_user_sgpr_count 2
  .amdhsa_user_sgpr_kernarg_segment_ptr 1
  .amdhsa_system_sgpr_workgroup_id_x 1
.end_amdhsa_kernel
"""
        self.nops = nops
        return out


if __name__ == "__main__":
    import ast
    kw = {}
    out = sys.argv[1]
    for x in sys.argv[2:]:
        k, val = x.split("=", 1)
        kw[k] = ast.literal_eval(val)
    g = Gen(**kw)
    txt = g.build()
    open(out, "w").write(txt)
    print(f"wrote {out}: {len(g.a.ins)} lines, {g.nops} pad states", file=sys.stderr)
```

```python
import sys
import contextlib
from asmlib import Asm, Ins

NAME = "interleave_layers__linear_attn_block__linear_kernel_hedgehog__prompt"

CFG = dict(
    ts=0,
    dump=None,
    n0=0, nw=6, codepf=24,
    n1=4,
    bg0=(10, 14, 8, 0, 0, 8),
    bg1=(14, 10, 0, 0, 0, 0),
    bgg=2,
    pl_step=22,
    nx0=8, no0=8,
    mallpf=2, wo_every=(8, 10),
    l2pf=1, rp_at=0, hl_at=16, rt=0, xdirty=0, finflag='', lastowt=0, owt=1, stflag='',
    force_global=0,
    stop=None,
    amp=None,
)

FLAGX, FLAGO, HELLO, FLAGX2, ANN, STATS, STATS2 = 0x1000, 0x3000, 0x60000, 0x7000, 0x9000, 0x10000, 0x30000
KVP = [0x700000 + 0x90000 * l for l in range(4)]
OBUF = 0x200000
PKV, PQ, PO = 0x400000, 0x500000, 0x600000
DBG = 0xA00000
WS_SIZE = 0x8000000
L_P, L_WQ, L_STG = 0x0, [0x10000, 0x18000], 0x20000
L_KVF = 0x26000
L_WPF = L_KVF + 4 * 528
L_ZB = L_WPF + 2 * 528
L_CSP = 0x26D00
L_SEL = 0x27900
LDS_SIZE = 0x28000
XF, AK, AV, RG, LG, XR, PK = 0, 128, 144, 160, 192, 208, 224
vSTR, vSTR2, vPST, vZST, vKFW, vZW, vZR, vOST = range(184, 192)
vL16, vWRD, vSTW, vKFR, vS, vRS, vM, vXST, vSST, vSLD, vPOLL, vWOR, vWOW, vWKW, vCSR, vTS = range(240, 256)
A_WKV, A_WO = [0, 64], [128, 192]
sID = 2
sPX, sPWA, sPWOA, sPBX, sPWB, sPPHI, sPWOB, sPOUT, sPDBG, sPWS = range(4, 24, 2)
sWS, sOUT, sTMP = 24, 28, 32
(sW, sC, sR, sXLD, sSTLD, sFXP, sOST, sFOS, sOLD, sFOP, sXST, sSTST, sFXS, sKVT, sTAG, sMODE, sPASS,
 sEP, sXCC, sT0, sT1, sT2, sT3, sCNT, sWOFF, sQOFF, sOOFF, sHEL, sLN2, sLN2b, sDELTA, sFIN) = range(36, 68)
sHI = 68
sSAVE = 70
sTSA = 72
sTSI = 74
sGW = 75
sLAY = 76
sANN = 77
sW13 = 98
sMODEO = 3
sPK = 0
sPM = 96
sSW, sSO = [80, 84], [88, 92]
vBW, vBO, vHL = RG + 20, RG + 21, RG + 22
assert sLN2 % 2 == 0

LOG2E = 0x3FB8AA3B
LN2 = 0x3F317218
DELTA = 0x35C1A4C3
import struct
def f2u(x): return struct.unpack("<I", struct.pack("<f", x))[0]
DELTA = f2u(1e-6 * 1.4426950408889634)


def v(a, n=1): return f"v{a}" if n == 1 else f"v[{a}:{a + n - 1}]"
def ar(a, n=1): return f"a{a}" if n == 1 else f"a[{a}:{a + n - 1}]"
def s(a, n=1): return f"s{a}" if n == 1 else f"s[{a}:{a + n - 1}]"


class Gen:
    def __init__(self, **kw):
        self.cfg = dict(CFG)
        self.cfg.update(kw)
        self.a = Asm()
        self.tail = []
        self.nts = 0
        self.tsnames = []
        self.side = []
        self.side_every = 1

    @contextlib.contextmanager
    def uncounted(self, first=False):
        a = self.a
        vm, lg, c1 = list(a.vm), list(a.lg), a.count1
        a.count1 = c1 and first
        yield
        a.vm, a.lg, a.count1 = vm, lg, c1

    @contextlib.contextmanager
    def only_if(self, cmp, first=False):
        a = self.a
        l = a.newlabel("skip")
        a(cmp)
        a(f"s_cbranch_scc0 {l}")
        with self.uncounted(first):
            yield
        a.label(l)

    def pass1(self):
        return self.only_if(f"s_cmp_eq_u32 {s(sPASS)}, 0", True)

    def bg_region(self, n, slots):
        self.bg_left = min(n, len(self.bg))
        groups = -(-self.bg_left // self.cfg["bgg"])
        self.bg_slot = 0
        self.bg_at = {(k * slots) // groups for k in range(groups)} if groups else set()
        assert len(self.bg_at) == groups
        if groups:
            self.a(f"s_mov_b64 vcc, {s(sPM, 2)}")

    def bg_tick(self):
        a = self.a
        if self.bg_slot in self.bg_at:
            l = a.newlabel("bg")
            a(f"s_cbranch_vccnz {l}")
            with self.uncounted(True):
                for _ in range(min(self.cfg["bgg"], self.bg_left)):
                    self.bg.pop(0)()
                    self.bg_left -= 1
            a.label(l)
        self.bg_slot += 1

    def bg_now(self, n):
        n = min(n, len(self.bg))
        if n:
            with self.pass1():
                for _ in range(n):
                    self.bg.pop(0)()

    def ticker(self):
        def e(text, **kw):
            if self.side and self.bg_slot % self.side_every == 0:
                self.side.pop(0)()
            self.bg_tick()
            self.a(text, **kw)
        return e

    def moded(self, lines, tag=None, reg=sMODE):
        a = self.a
        lg, lj = a.newlabel("glob"), a.newlabel("join")
        a(f"s_cmp_eq_u32 {s(reg)}, 0")
        a(f"s_cbranch_scc0 {lg}")
        for l in lines:
            a(l + (self.cfg["stflag"] if "x4" in l else ""), vm=tag)
        a.label(lj)
        t = [Ins(lg + ":")] + [Ins(l + (" sc1" if l.startswith("buffer_store") else "")) for l in lines] + [Ins(f"s_branch {lj}")]
        self.tail += t

    def srd_tmp(self, ptr, size):
        a = self.a
        a(f"s_mov_b32 {s(sTMP)}, {s(ptr)}")
        a(f"s_mov_b32 {s(sTMP + 1)}, {s(ptr + 1)}")
        a(f"s_mov_b32 {s(sTMP + 2)}, {size}")

    def ts(self, name):
        amp = self.cfg["amp"]
        if amp:
            for k in range(2):
                if amp[2 * k] == name:
                    a = self.a
                    op = "s_memtime" if amp[5] else "s_memrealtime"
                    if ":" in name:
                        with self.only_if(f"s_cmp_eq_u32 {s(sLAY)}, {amp[2 * k + 1]}"):
                            a(f"{op} {s(72 + 6 * k, 2)}")
                            a("s_waitcnt lgkmcnt(0)")
                    else:
                        a(f"{op} {s(72 + 6 * k, 2)}")
                        if name != "start":
                            a("s_waitcnt lgkmcnt(0)")
        if not self.cfg["ts"] or name == "start":
            return
        if self.cfg["ts"] == 1 and name.startswith("p_"):
            return
        if self.cfg["ts"] == 2 and ":" in name and name[2:] not in ("bar1", "xpoll", "kvgemm", "xflag"):
            return
        a = self.a
        self.tsnames.append(name)
        a(f"{'s_memrealtime' if self.cfg['rt'] else 's_memtime'} {s(sTSA, 2)}")
        a("s_waitcnt lgkmcnt(0)")
        a.lg.clear()
        a(f"s_mov_b32 m0, {s(sTSI)}")
        a(f"v_writelane_b32 {v(vTS)}, {s(sTSA)}, m0")
        a(f"s_add_u32 {s(sTSI)}, {s(sTSI)}, 1")

    def dump(self, point, regs, tmp):
        d = self.cfg["dump"]
        if not d or d[0] != point:
            return
        a = self.a
        with self.only_if(f"s_cmp_eq_u32 {s(sLAY)}, {d[1]}"):
            a("s_waitcnt vmcnt(0) lgkmcnt(0)")
            a("s_nop 15")
            a(f"v_lshrrev_b32 {v(tmp)}, 2, {v(vL16)}")
            a(f"s_mul_i32 {s(sT0)}, {s(sGW)}, {64 * 256}")
            a(f"s_add_u32 {s(sT0)}, {s(sT0)}, {DBG}")
            for i, r in enumerate(regs):
                a(f"buffer_store_dword {v(r)}, {v(tmp)}, {s(sWS, 4)}, {s(sT0)} offen")
                a(f"s_add_u32 {s(sT0)}, {s(sT0)}, 256")
            a("s_waitcnt vmcnt(0)")

    def poll(self, voff, soff, tmp):
        a = self.a
        l = a.newlabel("poll")
        a(f"s_mov_b32 {s(sCNT)}, 0x40000")
        a.label(l)
        a(f"buffer_load_dword {v(tmp)}, {v(voff)}, {s(sWS, 4)}, {s(soff)} offen sc1")
        a(f"s_sub_u32 {s(sCNT)}, {s(sCNT)}, 1")
        a("s_cbranch_scc1 L_timeout")
        a.wait(vm=0)
        a(f"v_cmp_ne_u32 vcc, {s(sTAG)}, {v(tmp)}")
        a(f"s_cbranch_vccnz {l}")

    def flag(self, soff, tmp):
        a = self.a
        a(f"v_mov_b32 {v(tmp)}, {s(sTAG)}")
        a.wait(vm=0)
        a("s_mov_b64 exec, 1")
        self.moded([f"buffer_store_dword {v(tmp)}, off, {s(sWS, 4)}, {s(soff)}"])
        a("s_mov_b64 exec, -1")

    def w_voff(self, t):
        a = self.a
        a(f"v_lshrrev_b32 {v(t)}, 6, {v(vL16)}")
        a(f"v_mul_u32_u24 {v(t)}, {3072 - 64}, {v(t)}")
        a(f"v_add_u32 {v(t)}, {v(t)}, {v(vL16)}")

    def ld_wkv(self, T, i, t):
        a = self.a
        a(f"s_add_u32 {s(sT0)}, {s(sWOFF)}, {i * 32 * 3072}")
        a(f"buffer_load_dwordx4 {ar(A_WKV[T] + 4 * i, 4)}, {v(t)}, {s(sSW[T], 4)}, {s(sT0)} offen", vm=f"wkv{i}")

    def ld_pk(self, what, T, i):
        a = self.a
        if what == "wq":
            a(f"s_add_u32 m0, {s(sW13)}, {L_WQ[T] + i * 1024}")
            a(f"s_add_u32 {s(sT0)}, {s(sPK)}, {PQ + (8 * T + i) * 65536}")
            a(f"buffer_load_dwordx4 {v(vL16)}, {s(sWS, 4)}, {s(sT0)} offen sc1 lds", vm="wq")
        elif what == "wo":
            a(f"s_add_u32 {s(sT0)}, {s(sOOFF)}, {PO + T * 0x8000 + i * 65536}")
            a(f"buffer_load_dwordx4 {ar(A_WO[T] + 4 * i, 4)}, {v(vL16)}, {s(sWS, 4)}, {s(sT0)} offen sc1", vm="wo")
        else:
            a(f"s_add_u32 {s(sT0)}, {s(sPK)}, {PKV + i * 65536}")
            a(f"buffer_load_dwordx4 {ar(A_WKV[1] + 4 * i, 4)}, {v(vL16)}, {s(sWS, 4)}, {s(sT0)} offen sc1", vm=f"wkv{i}")

    def bg_setup(self, T):
        self.bg = [(lambda i=i: self.ld_pk("wq", T, i)) for i in range(8)] + [(lambda i=i: self.ld_pk("wo", T, i)) for i in range(16)]
        if T == 0:
            self.bg += [(lambda i=i: self.ld_pk("wkv", 1, i)) for i in range(16)]

    def put_wkv(self, T, lo, hi, waits=False):
        for i in range(lo, hi):
            if waits:
                self.a.wait(vm=f"wkv{i}")
            self.a(f"ds_write_b128 {v(vWKW)}, {ar(A_WKV[T] + 4 * i, 4)} offset:{i * 2048}")

    def put_wo(self, T, i):
        self.a(f"ds_write_b128 {v(vWOW)}, {ar(A_WO[T] + 4 * i, 4)} offset:{(i >> 2) * 1024 + (i & 3) * 128}")

    @staticmethod
    def woff(j, u):
        return (j >> 2) * 4096 + u * 1024 + (j & 3) * 256

    def colsum(self, addr, nsteps, regs, acc):
        a = self.a
        a(f"v_mov_b32 {v(acc)}, 0")
        for j in range(nsteps):
            for u in range(2):
                a(f"ds_read_b64_tr_b16 {v(regs[j] + 2 * u, 2)}, {v(addr)} offset:{self.woff(j, u)}", lg=f"cs{j}")
        for j in range(nsteps):
            a.wait(lg=f"cs{j}")
            for d in range(4):
                a(f"v_dot2c_f32_bf16 {v(acc)}, {s(sT3)}, {v(regs[j] + d)}")

    def cs_kv_step(self, T, i, sel, d):
        self.a(f"v_mfma_f32_16x16x32_bf16 {v(d, 4)}, {v(sel, 4)}, {ar(A_WKV[T] + 4 * i, 4)}, {v(d, 4) if i else 0}")

    def cs_kv_fin(self, T, d, t):
        a = self.a
        a(f"s_and_b32 {s(sT0)}, {s(sW)}, 1")
        a(f"s_lshl_b32 {s(sT0)}, {s(sT0)}, 9")
        a(f"s_and_b32 {s(sT1)}, {s(sW)}, 2")
        a(f"s_lshl_b32 {s(sT1)}, {s(sT1)}, 2")
        a(f"s_add_u32 {s(sT0)}, {s(sT0)}, {s(sT1)}")
        a(f"s_add_u32 {s(sT0)}, {s(sT0)}, {L_CSP + T * 1536}")
        a(f"v_lshrrev_b32 {v(t)}, 9, {v(vL16)}")
        a(f"v_lshl_add_u32 {v(t)}, {v(t)}, 2, {s(sT0)}")
        a(f"v_bfe_u32 {v(t + 1)}, {v(vL16)}, 4, 1")
        a(f"v_lshl_add_u32 {v(t)}, {v(t + 1)}, 8, {v(t)}")
        a(f"v_bfe_u32 {v(t + 1)}, {v(vL16)}, 8, 1")
        a(f"v_lshl_add_u32 {v(t)}, {v(t + 1)}, 7, {v(t)}")
        a(f"v_bfe_u32 {v(t + 1)}, {v(vL16)}, 5, 1")
        a(f"v_lshl_add_u32 {v(t)}, {v(t + 1)}, 6, {v(t)}")
        for ror in (4, 8):
            for i in range(4):
                a(f"v_add_f32 {v(d + i)}, {v(d + i)}, {v(d + i)} row_ror:{ror}")
        a(f"ds_write2_b32 {v(t)}, {v(d)}, {v(d + 1)} offset0:0 offset1:4")
        a(f"ds_write2_b32 {v(t)}, {v(d + 2)}, {v(d + 3)} offset0:8 offset1:12")

    def sel_read(self, sel):
        a = self.a
        a(f"v_and_b32 {v(sel)}, 0x1f0, {v(vL16)}")
        a(f"v_add_u32 {v(sel)}, {L_SEL:#x}, {v(sel)}")
        a(f"ds_read_b128 {v(sel, 4)}, {v(sel)}", lg="sel")

    def cs_q(self, T):
        a = self.a
        t, acc = AV, AV + 1
        a(f"s_mov_b32 {s(sT3)}, 0x3f803f80")
        a(f"s_add_u32 {s(sT0)}, {s(sW13)}, {L_WQ[T]}")
        a(f"v_add_u32 {v(t)}, {s(sT0)}, {v(vWRD)}")
        regs = [LG + 4 * i for i in range(4)] + [PK + 4 * i for i in range(4)]
        self.colsum(t, 8, regs, acc)
        a(f"v_mov_b32 {v(t)}, {v(acc)}")
        a(f"v_permlane32_swap_b32 {v(t)}, {v(acc)}")
        a(f"v_add_f32 {v(acc)}, {v(acc)}, {v(t)}")
        a(f"s_lshl_b32 {s(sT0)}, {s(sW)}, 2")
        a(f"v_add_u32 {v(t)}, {s(sT0)}, {v(vCSR)}")
        a(f"ds_write_b32 {v(t)}, {v(acc)} offset:{T * 1536 + 1024}")

    @staticmethod
    def cs_pack(src, dst):
        return [
            f"v_pk_add_f32 {v(src, 2)}, {v(src, 2)}, {v(src + 2, 2)}",
            f"v_add_f32 {v(src)}, {v(src)}, {v(src + 1)}",
            f"v_cvt_pk_bf16_f32 {v(src + 1)}, {v(src)}, {v(src)}",
            f"v_and_b32 {v(src + 1)}, 0xffff0000, {v(src + 1)}",
            f"v_sub_f32 {v(src)}, {v(src)}, {v(src + 1)}",
            f"v_cvt_pk_bf16_f32 {v(dst)}, {v(src + 1)}, {v(src)}",
        ]

    def x_publish(self, X=LG, wt=False):
        a = self.a
        t = X + 8
        for i in range(8):
            a(f"v_cvt_pk_bf16_f32 {v(X + i)}, {v(XR + 2 * i)}, {v(XR + 2 * i + 1)}")
        st = [f"buffer_store_dwordx4 {v(X + 4 * sidx, 4)}, {v(vXST)}, {s(sOUT, 4)}, {s(sXST)} offen offset:{sidx * 512}" for sidx in range(2)]
        if wt:
            for l in st:
                a(l + " sc1", vm="xst")
        else:
            self.moded(st, tag="xst")
        a(f"v_pk_add_f32 {v(t, 2)}, {v(XR, 2)}, {v(XR + 2, 2)}")
        a(f"v_pk_mul_f32 {v(t + 2, 2)}, {v(XR, 2)}, {v(XR, 2)}")
        a(f"v_pk_fma_f32 {v(t + 2, 2)}, {v(XR + 2, 2)}, {v(XR + 2, 2)}, {v(t + 2, 2)}")
        for i in range(2, 8):
            a(f"v_pk_add_f32 {v(t, 2)}, {v(t, 2)}, {v(XR + 2 * i, 2)}")
            a(f"v_pk_fma_f32 {v(t + 2, 2)}, {v(XR + 2 * i, 2)}, {v(XR + 2 * i, 2)}, {v(t + 2, 2)}")
        a(f"v_add_f32 {v(t)}, {v(t)}, {v(t + 1)}")
        a(f"v_add_f32 {v(t + 2)}, {v(t + 2)}, {v(t + 3)}")
        a(f"v_permlane32_swap_b32 {v(t)}, {v(t + 2)}")
        a(f"v_add_f32 {v(t)}, {v(t)}, {v(t + 2)}")
        a(f"v_mov_b32 {v(t + 1)}, {v(t)}")
        a(f"v_permlane16_swap_b32 {v(t)}, {v(t + 1)}")
        a(f"v_add_f32 {v(t)}, {v(t)}, {v(t + 1)}")
        a("s_mov_b32 exec_lo, 0xffff")
        a("s_mov_b32 exec_hi, 0xffff")
        self.moded([f"buffer_store_dword {v(t)}, {v(vSST)}, {s(sWS, 4)}, {s(sSTST)} offen"], tag="xst")
        a("s_mov_b64 exec, -1")

    def phi_a(self, acc, tmp):
        a = self.ticker()
        for i in range(8):
            a(f"v_pk_mul_f32 {v(acc + 2 * i, 2)}, {v(acc + 2 * i, 2)}, {v(vS, 2)} op_sel_hi:[1,0]")
        for i in range(16):
            a(f"v_exp_f32_e64 {v(tmp + i)}, {v(acc + i)} clamp")
            a(f"v_max_f32 {v(acc + i)}, {s(sDELTA)}, {v(acc + i)}")
        for i in range(8):
            a(f"v_pk_fma_f32 {v(acc + 2 * i, 2)}, {v(acc + 2 * i, 2)}, {s(sLN2, 2)}, {v(tmp + 2 * i, 2)}")
        for i in range(8):
            a(f"v_cvt_pk_bf16_f32 {v(PK + i)}, {v(acc + 2 * i)}, {v(acc + 2 * i + 1)}")

    def logits(self):
        a = self.a
        for i in range(8):
            a(f"v_cvt_pk_bf16_f32 {v(PK + i)}, {v(AK + 2 * i)}, {v(AK + 2 * i + 1)}")
        a.wait(lg="wp")
        a(f"v_mfma_f32_32x32x16_bf16 {v(LG, 16)}, {v(PK + 8, 4)}, {v(PK, 4)}, 0")
        a(f"v_mfma_f32_32x32x16_bf16 {v(LG, 16)}, {v(PK + 12, 4)}, {v(PK + 4, 4)}, {v(LG, 16)}")

    def softmax2(self, t, isq, after_plus=None, after_minus=None):
        a = self.ticker()
        a(f"v_max3_f32 {v(t)}, {v(LG)}, {v(LG + 1)}, {v(LG + 2)}")
        a(f"v_min3_f32 {v(t + 1)}, {v(LG)}, {v(LG + 1)}, {v(LG + 2)}")
        for i in range(3, 15, 2):
            a(f"v_max3_f32 {v(t)}, {v(t)}, {v(LG + i)}, {v(LG + i + 1)}")
            a(f"v_min3_f32 {v(t + 1)}, {v(t + 1)}, {v(LG + i)}, {v(LG + i + 1)}")
        a(f"v_max_f32 {v(t)}, {v(t)}, {v(LG + 15)}")
        a(f"v_min_f32 {v(t + 1)}, {v(t + 1)}, {v(LG + 15)}")
        a(f"v_pk_mul_f32 {v(t, 2)}, {v(t, 2)}, {v(vS, 2)} op_sel_hi:[1,0]")
        for sg, E in ((0, AK), (1, LG)):
            for i in range(8):
                if sg == 0:
                    a(f"v_pk_fma_f32 {v(E + 2 * i, 2)}, {v(LG + 2 * i, 2)}, {v(vS, 2)}, {v(t, 2)} op_sel_hi:[1,0,0] neg_lo:[0,0,1] neg_hi:[0,0,1]")
                else:
                    a(f"v_pk_fma_f32 {v(E + 2 * i, 2)}, {v(LG + 2 * i, 2)}, {v(vS, 2)}, {v(t, 2)} op_sel:[0,0,1] op_sel_hi:[1,0,1] neg_lo:[1,0,0] neg_hi:[1,0,0]")
            for i in range(16):
                a(f"v_exp_f32 {v(E + i)}, {v(E + i)}")
            S = t + 2 + 2 * sg
            a(f"v_pk_add_f32 {v(S, 2)}, {v(E, 2)}, {v(E + 2, 2)}")
            for i in range(2, 8):
                a(f"v_pk_add_f32 {v(S, 2)}, {v(S, 2)}, {v(E + 2 * i, 2)}")
            a(f"v_add_f32 {v(S)}, {v(S)}, {v(S + 1)}")
            if not (isq and sg == 0):
                a(f"v_rcp_f32 {v(S)}, {v(S)}")
                if isq:
                    a(f"v_mul_f32 {v(t + 6)}, {f2u(1e-6):#x}, {v(t + 2)}")
                    a(f"v_mul_f32 {v(S)}, {v(S)}, {v(t + 2)}")
                for i in range(8):
                    a(f"v_pk_mul_f32 {v(E + 2 * i, 2)}, {v(E + 2 * i, 2)}, {v(S, 2)} op_sel_hi:[1,0]")
            for i in range(8):
                a(f"v_cvt_pk_bf16_f32 {v(PK + 8 * sg + i)}, {v(E + 2 * i)}, {v(E + 2 * i + 1)}")
            cb = (after_plus, after_minus)[sg]
            if cb:
                cb()

    def layer(self, T):
        a, cfg = self.a, self.cfg
        NT = 2 if T == 0 else 4
        NJ = NT
        skip23 = (lambda: self.only_if(f"s_cmp_lt_u32 {s(sW)}, 2")) if T == 0 else (lambda: self.uncounted())
        bgn = cfg["bg0"] if T == 0 else cfg["bg1"]
        a.label(f"L_layer{T}")
        a.vm.clear(); a.lg.clear(); a.vm1.clear()
        a.wait(lg=0)
        a("s_barrier")
        self.ts(f"{T}:bar1")
        ST = LG
        CS = LG + 8
        CSA, MB = PK, PK + 2
        a(f"ds_read_b128 {v(CS, 4)}, {v(vCSR)} offset:{T * 1536}", lg="cs")
        a(f"ds_read_b128 {v(CS + 4, 4)}, {v(vCSR)} offset:{T * 1536 + 512}", lg="cs")
        if T == 1:
            for i in range(2):
                a(f"ds_read_b128 {v(PK + 8 + 4 * i, 4)}, {v(vKFR)} offset:{L_WPF - L_KVF + 528 * i}", lg="wp")
        D = 3

        def rd(j, p):
            for u in range(2):
                a(f"ds_read_b64_tr_b16 {v(RG + (j % D) * 8 + 4 * p + 2 * u, 2)}, {v(vWRD)} offset:{p * 32768 + self.woff(j, u)}", lg=f"w{j}")
        for j in range(D):
            rd(j, 0); rd(j, 1)
        if T == 0:
            a(f"s_cmp_eq_u32 {s(sPASS)}, 0")
            a("s_cbranch_scc1 L_poll0")
            a.label("L_npoll")
        self.poll(vPOLL, sFXP, LG)
        if T == 0:
            a.label("L_enter")
        self.ts(f"{T}:xpoll")

        def ldx(j):
            if j % 4 == 0:
                a(f"s_add_u32 {s(sT0)}, {s(sXLD)}, {j * 1024}")
            a(f"buffer_load_dwordx4 {v(XF + 4 * j, 4)}, {v(vL16)}, {s(sOUT, 4)}, {s(sT0)} offen offset:{(j % 4) * 1024} sc1", vm=f"x{j}")
            if j == 9:
                a(f"buffer_load_dwordx4 {v(ST, 4)}, {v(vSLD)}, {s(sWS, 4)}, {s(sSTLD)} offen sc1", vm="st")
            if j == 11:
                a(f"buffer_load_dwordx4 {v(ST + 4, 4)}, {v(vSLD)}, {s(sWS, 4)}, {s(sSTLD)} offen offset:512 sc1", vm="st")
        NX = cfg["nx0"]
        for j in range(max(NX, 8)):
            if j < NX:
                ldx(j)
            if j < 8:
                self.put_wkv(T, 8 + j, 9 + j)
        t, u_ = ST, ST + 1
        fill = [
            f"v_pk_add_f32 {v(ST, 2)}, {v(ST, 2)}, {v(ST + 2, 2)}",
            f"v_pk_add_f32 {v(ST + 4, 2)}, {v(ST + 4, 2)}, {v(ST + 6, 2)}",
            f"v_pk_add_f32 {v(ST, 2)}, {v(ST, 2)}, {v(ST + 4, 2)}",
            f"v_add_f32 {v(t)}, {v(ST)}, {v(ST + 1)}",
            f"v_mul_f32 {v(t)}, {f2u(1 / 512):#x}, {v(t)}",
            f"v_mov_b32 {v(u_)}, {v(t)}",
            f"v_permlane32_swap_b32 {v(t)}, {v(u_)}",
            f"v_fma_f32 {v(u_)}, -{v(t)}, {v(t)}, {v(u_)}",
            f"v_max_f32 {v(u_)}, 0, {v(u_)}",
            f"v_cvt_pk_bf16_f32 {v(vM)}, -{v(t)}, -{v(t)}",
            f"v_cvt_pk_bf16_f32 {v(u_)}, {v(u_)}, {v(u_)}",
            f"v_and_b32 {v(u_)}, 0xffff0000, {v(u_)}",
            f"v_add_f32 {v(u_)}, {f2u(1e-5):#x}, {v(u_)}",
            f"v_cvt_pk_bf16_f32 {v(u_)}, {v(u_)}, {v(u_)}",
            f"v_and_b32 {v(u_)}, 0xffff0000, {v(u_)}",
            f"v_sqrt_f32 {v(u_)}, {v(u_)}",
            f"v_cndmask_b32 {v(vM)}, {v(vM)}, 0, {s(sHI, 2)}",
            f"v_cvt_pk_bf16_f32 {v(u_)}, {v(u_)}, {v(u_)}",
            f"v_and_b32 {v(u_)}, 0xffff0000, {v(u_)}",
            f"v_rcp_f32 {v(vRS)}, {v(u_)}",
            f"v_mov_b32 {v(MB)}, {v(vM)}",
            f"v_mul_f32 {v(vS)}, {LOG2E:#x}, {v(vRS)}",
            f"v_mov_b32 {v(MB + 1)}, 0",
            f"v_mov_b32 {v(MB + 2)}, 0",
            f"v_mov_b32 {v(MB + 3)}, {v(vM)}",
        ]
        fill = self.cs_pack(CS, CSA) + self.cs_pack(CS + 4, CSA + 1) + [None] * 12 + fill
        for j in range(32):
            a.wait(vm=f"x{j}", lg=f"w{j}")
            if j == 16 - D:
                a("s_barrier")
            if j == 28:
                assert not fill
                a(f"v_mfma_f32_32x32x8_bf16 {v(AK, 16)}, {v(CSA, 2)}, {v(MB, 2)}, {v(AK, 16)}")
                a(f"v_mfma_f32_32x32x8_bf16 {v(AV, 16)}, {v(CSA, 2)}, {v(MB + 2, 2)}, {v(AV, 16)}")
            for p, acc in ((0, AK), (1, AV)):
                c = v(acc, 16) if j else "0"
                a(f"v_mfma_f32_32x32x16_bf16 {v(acc, 16)}, {v(RG + (j % D) * 8 + 4 * p, 4)}, {v(XF + 4 * j, 4)}, {c}")
                if p == 0 and j + NX < 32:
                    ldx(j + NX)
                if j + D < 32:
                    rd(j + D, p)
                if fill:
                    f_ = fill.pop(0)
                    if f_:
                        a(f_)
        self.bg_setup(T)
        if T == 0 and cfg["xdirty"]:
            with self.only_if(f"s_cmp_eq_u32 {s(sPASS)}, 1"):
                a(f"s_lshl_b32 {s(sT0)}, {s(sGW)}, 10")
                for i in range(cfg["xdirty"]):
                    a(f"s_add_u32 {s(sT0)}, {s(sT0)}, {(DBG if i == 0 else 0x100000)}")
                    a(f"buffer_store_dwordx4 v[0:3], {v(vL16)}, {s(sWS, 4)}, {s(sT0)} offen")
        if T == 0:
            with self.only_if(f"s_cmp_lg_u32 {s(sHEL)}, 0"):
                a(f"v_and_b32 {v(vHL)}, 0x100, {v(vL16)}")
                a(f"v_lshl_add_u32 {v(vHL)}, {v(vHL)}, 1, {v(vPOLL)}")
                a(f"v_lshlrev_b32 {v(vHL)}, 5, {v(vHL)}")
                a(f"s_or_b32 {s(sTAG)}, {s(sTAG)}, 0xf0")
                self.poll(vHL, sHEL, vHL + 1)
                a(f"s_and_b32 {s(sTAG)}, {s(sTAG)}, 0xffffff00")
                a(f"s_mov_b32 {s(sHEL)}, 0")
        self.ts(f"{T}:kvgemm")
        self.dump("kv", list(range(AK, AK + 32)) + [vS, vRS, vM], RG)

        def v_path():
            for i in range(8):
                a(f"v_pk_mul_f32 {v(AV + 2 * i, 2)}, {v(AV + 2 * i, 2)}, {v(vS, 2)} op_sel:[0,1]")
            for i in range(8):
                a(f"v_cvt_pk_bf16_f32 {v(AV + i)}, {v(AV + 2 * i)}, {v(AV + 2 * i + 1)}")
            for i in range(2):
                a(f"ds_write_b128 {v(vSTW)}, {v(AV + 4 * i, 4)} offset:{0x4000 + 128 * i}")

        def stage(sg):
            for i in range(2):
                a(f"ds_write_b128 {v(vSTW)}, {v(PK + 8 * sg + 4 * i, 4)} offset:{sg * 8192 + 128 * i}")
        self.bg_region(bgn[0], 56 if T == 0 else 110)
        if T == 0:
            self.phi_a(AK, LG)
            stage(0)
            v_path()
        else:
            self.logits()
            v_path()
            self.softmax2(RG, False, lambda: stage(0), lambda: stage(1))
        self.dump("pk", list(range(PK, PK + 16)) + list(range(AV, AV + 8)), RG)
        a.wait(lg=0)
        a("s_barrier")
        self.ts(f"{T}:bar2")
        with skip23():
            ONE, DK, DZ, PB = AV, AV + 4, AV + 8, AV + 12
            for st in range(4):
                for u in range(2):
                    a(f"ds_read_b64_tr_b16 {v(LG + 4 * st + 2 * u, 2)}, {v(vSTR)} offset:{st * 1024 + u * 512}", lg=f"p{st}")
                for u in range(2):
                    a(f"ds_read_b64_tr_b16 {v(PK + 4 * st + 2 * u, 2)}, {v(vSTR2)} offset:{st * 1024 + u * 512}", lg=f"p{st}")
            for i in range(4):
                a(f"v_mov_b32 {v(ONE + i)}, 0x3f803f80")
            for st in range(4):
                a.wait(lg=f"p{st}")
                a(f"v_mfma_f32_16x16x32_bf16 {v(DK, 4)}, {v(LG + 4 * st, 4)}, {v(PK + 4 * st, 4)}, {v(DK, 4) if st else 0}")
                a(f"v_mfma_f32_16x16x32_bf16 {v(DZ, 4)}, {v(LG + 4 * st, 4)}, {v(ONE, 4)}, {v(DZ, 4) if st else 0}")
            for i in range(2):
                a(f"v_cvt_pk_bf16_f32 {v(PB + i)}, {v(DK + 2 * i)}, {v(DK + 2 * i + 1)}")
            for i in range(2):
                a(f"v_min_u32 {v(PB + 2 + i)}, -2, {v(PB + i)}")
                a(f"v_min_u32 {v(PB + i)}, -2, {v(PB + i)}")
            for i in range(4):
                a(f"v_min_u32 {v(DZ + i)}, -2, {v(DZ + i)}")
            for i in range(2):
                a(f"v_permlane16_swap_b32 {v(PB + i)}, {v(PB + 2 + i)}")
            a("s_mov_b32 exec_lo, 0xffff")
            a("s_mov_b32 exec_hi, 0xffff")
            a(f"buffer_store_dwordx4 {v(PB, 4)}, {v(vPST)}, {s(sWS, 4)}, {s(sKVT)} offen sc1")
            a("s_mov_b32 exec_lo, 0x10001")
            a("s_mov_b32 exec_hi, 0x10001")
            a(f"buffer_store_dwordx4 {v(DZ, 4)}, {v(vZST)}, {s(sWS, 4)}, {s(sKVT)} offen sc1")
            a("s_mov_b64 exec, -1")
        self.ts(f"{T}:publish")
        with self.pass1():
            a.wait1("wq")
            self.cs_q(T)
            a("s_waitcnt lgkmcnt(0)")
            a("s_barrier")
        QA = LG
        CS, CSA, MB = LG + 4, LG + 8, LG + 10
        a(f"v_add_u32 {v(QA)}, {L_WQ[T]:#x}, {v(vWRD)}")
        a(f"ds_read_b128 {v(CS, 4)}, {v(vCSR)} offset:{T * 1536 + 1024}", lg="cs")
        if T == 1:
            for i in range(2):
                a(f"ds_read_b128 {v(PK + 8 + 4 * i, 4)}, {v(vKFR)} offset:{L_WPF - L_KVF + 528 * i}", lg="wp")
        D = 6

        def rq(j):
            for u in range(2):
                a(f"ds_read_b64_tr_b16 {v(RG + (j % D) * 4 + 2 * u, 2)}, {v(QA)} offset:{self.woff(j, u)}", lg=f"q{j}")

        PL, SEL, DR = 0, 36, 40

        def partial_load(i):
            a(f"s_add_u32 {s(sT1)}, {s(sKVT)}, {i * 65536}")
            a(f"buffer_load_dwordx4 {v(PL + 4 * i, 4)}, {v(vL16)}, {s(sWS, 4)}, {s(sT1)} offen sc1", vm="pl")

        def partial_loads():
            for i in range(9):
                partial_load(i)
        for j in range(D):
            rq(j)
        fill = self.cs_pack(CS, CSA) + [f"v_mov_b32 {v(CSA + 1)}, 0", f"v_mov_b32 {v(MB)}, {v(vM)}", f"v_mov_b32 {v(MB + 1)}, 0"]
        PS = cfg["pl_step"]
        self.bg_region(bgn[1], PS)
        npl = 0
        for j in range(32):
            a.wait(lg=f"q{j}")
            a(f"v_mfma_f32_32x32x16_bf16 {v(AK, 16)}, {v(RG + (j % D) * 4, 4)}, {v(XF + 4 * j, 4)}, {v(AK, 16) if j else 0}")
            self.bg_tick()
            if j >= PS and npl < 9:
                if T == 1:
                    partial_load(npl); npl += 1
                elif (j - PS) % 3 == 0:
                    with skip23():
                        for _ in range(3):
                            partial_load(npl); npl += 1
            if j + D < 32:
                rq(j + D)
            if fill:
                a(fill.pop(0))
        a(f"v_mfma_f32_32x32x8_bf16 {v(AK, 16)}, {v(CSA, 2)}, {v(MB, 2)}, {v(AK, 16)}")
        if npl < 9:
            with skip23():
                while npl < 9:
                    partial_load(npl); npl += 1
        self.sel_read(SEL)
        self.ts(f"{T}:qgemm")
        self.dump("q", list(range(AK, AK + 16)), RG)
        EPS = RG + 6
        with self.pass1():
            assert len(self.bg) <= (16 if T == 0 else 0)
            if T == 0:
                l = a.newlabel("w")
                n = len(a.vm1) - 1 - max(i for i, t_ in enumerate(a.vm1) if t_ == "wo")
                a(f"s_waitcnt vmcnt({n + 9})")
                a(f"s_cmp_lt_u32 {s(sW)}, 2")
                a(f"s_cbranch_scc1 {l}")
                a.wait1("wo")
                a.label(l)
            else:
                a.wait1("wo")
        nbg3 = min(bgn[2], len(self.bg))
        self.bg_region(bgn[2], 56 if T == 0 else 100)
        self.side = [(lambda i=i: self.put_wo(T, i)) for i in range(16)]
        self.side_every = cfg["wo_every"][T]
        if T == 0:
            self.phi_a(AK, LG)
            a(f"v_mov_b32 {v(EPS)}, {f2u(1e-6):#x}")
        else:
            self.side.pop(0)()
            self.logits()
            self.side.pop(0)()
            self.side.pop(0)()
            self.softmax2(RG, True)
        while self.side:
            self.side.pop(0)()
        self.dump("pq", list(range(PK, PK + 16)), AV)
        self.ts(f"{T}:phiq")
        with skip23():
            lchk, lok = a.newlabel("chk"), a.newlabel("ok")
            a(f"s_mov_b32 {s(sCNT)}, 0x10000")
            a.wait(lg="sel")
            if nbg3:
                l = a.newlabel("w")
                a(f"s_waitcnt vmcnt({nbg3})")
                a(f"s_cmp_eq_u32 {s(sPASS)}, 0")
                a(f"s_cbranch_scc1 {l}")
            a.label(lchk)
            a.wait(vm=0)
            if nbg3:
                a.label(l)
            m = 44
            chk = [f"v_max3_u32 {v(m)}, {v(PL)}, {v(PL + 1)}, {v(PL + 2)}"]
            chk += [f"v_max3_u32 {v(m)}, {v(m)}, {v(PL + i)}, {v(PL + i + 1)}" for i in range(3, 35, 2)]
            chk += [f"v_max_u32 {v(m)}, {v(m)}, {v(PL + 35)}"]
            for i in range(8):
                a(f"v_mfma_f32_16x16x32_bf16 {v(DR, 4)}, {v(SEL, 4)}, {v(PL + 4 * i, 4)}, {v(DR, 4) if i else 0}")
                a(chk.pop(0)); a(chk.pop(0))
            a(chk.pop(0)); a(chk.pop(0))
            a(f"v_cmp_eq_u32 vcc, -1, {v(m)}")
            a(f"s_cbranch_vccnz {lok}")
            n0 = len(a.ins)
            a.label(lok)
            a(f"s_sub_u32 {s(sCNT)}, {s(sCNT)}, 1")
            a("s_cbranch_scc1 L_timeout")
            partial_loads()
            a(f"s_branch {lchk}")
            self.tail += a.ins[n0:]
            del a.ins[n0:]
            Z = PL + 32
            a(f"v_permlane16_swap_b32 {v(Z)}, {v(Z + 1)}")
            a(f"v_permlane16_swap_b32 {v(Z + 2)}, {v(Z + 3)}")
            a(f"v_add_f32 {v(Z)}, {v(Z)}, {v(Z + 1)}")
            a(f"v_add_f32 {v(Z + 2)}, {v(Z + 2)}, {v(Z + 3)}")
            a(f"v_permlane32_swap_b32 {v(Z)}, {v(Z + 2)}")
            a(f"v_add_f32 {v(Z)}, {v(Z)}, {v(Z + 2)}")
            a(f"v_add_f32 {v(Z)}, {v(Z)}, {v(Z)} row_ror:4")
            a(f"v_add_f32 {v(Z)}, {v(Z)}, {v(Z)} row_ror:8")
            a(f"v_cvt_pk_bf16_f32 {v(Z)}, {v(Z)}, {v(Z)}")
            a(f"ds_write_b16 {v(vZW)}, {v(Z)}")
            for i in range(2):
                a(f"v_cvt_pk_bf16_f32 {v(DR + i)}, {v(DR + 2 * i)}, {v(DR + 2 * i + 1)}")
            a(f"ds_write_b64 {v(vKFW)}, {v(DR, 2)}")
        self.bg_now(bgn[3])
        a.wait(lg=0)
        a("s_barrier")
        self.ts(f"{T}:bar3")
        KF, ZF, DEN, O = 0, 16, RG + 6, LG
        for j in range(NJ):
            a(f"ds_read_b128 {v(KF + 4 * j, 4)}, {v(vKFR)} offset:{528 * j}", lg=f"kf{j}")
        for j in range(NJ):
            a(f"ds_read_b128 {v(ZF + 4 * j, 4)}, {v(vZR)} offset:{(j >> 1) * 64 + (j & 1) * 16}", lg=f"zf{j}")
        for j in range(NJ):
            a.wait(lg=f"kf{j}")
            a(f"v_mfma_f32_32x32x16_bf16 {v(AV, 16)}, {v(KF + 4 * j, 4)}, {v(PK + 4 * j, 4)}, {v(AV, 16) if j else 0}")
        for j in range(NJ):
            a.wait(lg=f"zf{j}")
            for d in range(4):
                a(f"v_dot2c_f32_bf16 {v(DEN)}, {v(ZF + 4 * j + d)}, {v(PK + 4 * j + d)}")
        a(f"v_rcp_f32 {v(DEN)}, {v(DEN)}")
        for i in range(8):
            a(f"v_pk_mul_f32 {v(AV + 2 * i, 2)}, {v(AV + 2 * i, 2)}, {v(DEN, 2)} op_sel_hi:[1,0]")
        for i in range(8):
            a(f"v_cvt_pk_bf16_f32 {v(O + i)}, {v(AV + 2 * i)}, {v(AV + 2 * i + 1)}")
        self.moded([f"buffer_store_dwordx4 {v(O + 4 * i, 4)}, {v(vOST)}, {s(sWS, 4)}, {s(sOST)} offen offset:{256 * i}" for i in range(2)], reg=sMODEO)
        if T == 0:
            a(f"s_mov_b32 {s(sMODEO)}, {s(sMODE)}")
            if cfg["lastowt"]:
                a(f"s_or_b32 {s(sMODEO)}, {s(sMODE)}, {s(sPASS)}")
        self.dump("o", list(range(O, O + 8)), PK)
        WR, DW = 64, 7
        WA = [vWOR, PK, PK + 1, PK + 2]
        for t_ in range(1, 4):
            a(f"v_xor_b32 {v(WA[t_])}, {32 * t_}, {v(vWOR)}")

        def rw(i, t_):
            for u in range(2):
                a(f"ds_read_b64_tr_b16 {v(WR + (i % DW) * 16 + 4 * t_ + 2 * u, 2)}, {v(WA[t_])} offset:{t_ * 16384 + i * 1024 + u * 512}", lg=f"wo{i}_{t_}")
        for i in range(4):
            for t_ in range(4):
                rw(i, t_)
        self.flag(sFOS, PK + 4)
        self.ts(f"{T}:oflag")
        self.bg_now(bgn[4])
        for i in range(4, DW):
            for t_ in range(4):
                rw(i, t_)
        self.poll(vPOLL, sFOP, PK + 5)
        self.ts(f"{T}:opoll")

        def ldo(i):
            if i % 4 == 0:
                a(f"s_add_u32 {s(sT0)}, {s(sOLD)}, {i * 1024}")
            a(f"buffer_load_dwordx4 {v(4 * i, 4)}, {v(vL16)}, {s(sWS, 4)}, {s(sT0)} offen offset:{(i % 4) * 1024} sc1", vm=f"o{i}")
        NO = cfg["no0"]
        for i in range(NO):
            ldo(i)
        for i in range(16):
            for t_ in range(4):
                a.wait(vm=f"o{i}", lg=f"wo{i}_{t_}")
                a(f"v_mfma_f32_16x16x32_bf16 {v(XR + 4 * t_, 4)}, {v(WR + (i % DW) * 16 + 4 * t_, 4)}, {v(4 * i, 4)}, {v(XR + 4 * t_, 4)}")
                if t_ == 0 and i + NO < 16:
                    ldo(i + NO)
                if i + DW < 16:
                    rw(i + DW, t_)
        nlate = len(self.bg)
        self.bg_now(99)
        self.ts(f"{T}:ogemm")
        self.dump("x", list(range(XR, XR + 16)), PK)
        if cfg["stop"] is not None and cfg["stop"] % 2 == T:
            a(f"s_cmp_eq_u32 {s(sLAY)}, {cfg['stop']}")
            a("s_cbranch_scc1 L_final")
        if T == 1:
            a(f"s_cmp_eq_u32 {s(sPASS)}, 1")
            a("s_cbranch_scc1 L_final")
        self.x_publish()
        a("s_barrier")
        assert nlate <= 8
        if T == 0:
            self.sel_read(0)
        self.put_wkv(1 - T, 0, 8)
        a(f"s_add_u32 {s(sTAG)}, {s(sTAG)}, 16")
        a(f"s_add_u32 {s(sKVT)}, {s(sKVT)}, {KVP[T + 1] - KVP[T]}")
        a(f"s_add_u32 {s(sLAY)}, {s(sLAY)}, 1")
        self.flag(sFXS, PK + 4)
        if T == 0:
            with self.pass1():
                a.wait(lg="sel")
                for i in range(16):
                    self.cs_kv_step(1, i, 0, 4)
                self.cs_kv_fin(1, 4, 8)
        self.ts(f"{T}:xflag")
        if T == 1:
            a(f"s_mov_b32 {s(sPASS)}, 1")
            a(f"s_mov_b64 {s(sPM, 2)}, -1")
            a("s_branch L_layer0")

    def prologue(self):
        a, cfg = self.a, self.cfg
        a(f"s_cmp_ge_u32 {s(sID)}, 256")
        a("s_cbranch_scc1 L_end")
        self.ts("start")
        a(f"s_load_dwordx16 {s(4, 16)}, s[0:1], 0")
        a(f"s_load_dwordx4 {s(20, 4)}, s[0:1], 64")
        a(f"s_getpc_b64 {s(sSAVE, 2)}")
        a.label("L_pc")
        NCL = cfg["codepf"]
        a(f"s_bfe_u32 {s(sT0)}, {s(sID)}, {3 | (3 << 16)}")
        a(f"s_mul_i32 {s(sT0)}, {s(sT0)}, {NCL}")
        a(f"v_min_u32 v1, {NCL - 1}, v0")
        a(f"v_add_u32 v1, {s(sT0)}, v1")
        a(f"v_min_u32 v1, (L_codeend-L_pc)/128, v1")
        a("v_lshlrev_b32 v1, 7, v1")
        a(f"global_load_dword v2, v1, {s(sSAVE, 2)}")
        if cfg["ts"]:
            a(f"s_mov_b32 {s(sTSI)}, 0")
            a(f"v_mov_b32 {v(vTS)}, 0")
            a(f"s_memrealtime s[78:79]")
        L = 3
        a(f"v_lshrrev_b32 v1, 6, v0")
        a(f"v_and_b32 {v(L)}, 63, v0")
        a(f"v_readfirstlane_b32 {s(sW)}, v1")
        a(f"v_lshlrev_b32 {v(vL16)}, 4, {v(L)}")
        a(f"s_bfe_u32 {s(sC)}, {s(sID)}, {3 | (4 << 16)}")
        a(f"s_lshr_b32 {s(sT0)}, {s(sID)}, 7")
        a(f"s_and_b32 {s(sR)}, {s(sID)}, 7")
        a(f"s_lshl1_add_u32 {s(sR)}, {s(sR)}, {s(sT0)}")
        sBP, sSUB, sCG, sB = 99, 100, 101, sCNT
        a(f"s_lshr_b32 {s(sT0)}, {s(sC)}, 3")
        a(f"s_lshr_b32 {s(sT3)}, {s(sW)}, 1")
        a(f"s_lshl1_add_u32 {s(sT0)}, {s(sT0)}, {s(sT3)}")
        a(f"s_lshl2_add_u32 {s(sBP)}, {s(sR)}, {s(sT0)}")
        a(f"s_lshl2_add_u32 {s(sB)}, {s(sR)}, {s(sW)}")
        a(f"s_and_b32 {s(sSUB)}, {s(sW)}, 1")
        a(f"s_and_b32 {s(sCG)}, {s(sC)}, 7")
        a(f"s_lshl1_add_u32 {s(sT0)}, {s(sBP)}, {s(sSUB)}")
        a(f"s_lshl_b32 {s(sOLD)}, {s(sT0)}, 14")
        a(f"s_lshl_b32 {s(sT0)}, {s(sCG)}, 7")
        a(f"s_add_u32 {s(sFIN)}, {s(sOLD)}, {s(sT0)}")
        a(f"s_lshl3_add_u32 {s(sT0)}, {s(sBP)}, {s(sCG)}")
        a(f"s_lshl4_add_u32 {s(sT0)}, {s(sT0)}, {s(sSUB)}")
        a(f"s_lshl_b32 {s(sXST)}, {s(sT0)}, 8")
        self.rowmajor_voff(4, 5)
        a(f"s_lshl_b32 {s(sXLD)}, {s(sB)}, 15")
        a(f"s_lshl_b32 {s(sT0)}, {s(sC)}, 10")
        a(f"s_add_u32 {s(sOST)}, {s(sXLD)}, {s(sT0)}")
        a(f"s_add_u32 {s(sOST)}, {s(sOST)}, {OBUF}")
        a(f"s_lshl_b32 {s(sSTLD)}, {s(sB)}, 11")
        a(f"s_add_u32 {s(sSTLD)}, {s(sSTLD)}, {STATS}")
        a(f"s_lshl_b32 {s(sT0)}, {s(sB)}, 7")
        a(f"s_add_u32 {s(sFXP)}, {s(sT0)}, {FLAGX}")
        a(f"s_add_u32 {s(sFOS)}, {s(sT0)}, {FLAGO}")
        a(f"s_lshl_b32 {s(sT0)}, {s(sC)}, 7")
        a(f"s_add_u32 {s(sT0)}, {s(sT0)}, {s(sSTLD)}")
        a(f"v_mov_b32 v48, {s(sT0)}")
        a(f"v_writelane_b32 v48, {s(sFXP)}, 1")
        a(f"v_writelane_b32 v48, {s(sFOS)}, 2")
        a(f"v_lshrrev_b32 v6, 4, {v(L)}")
        a(f"v_lshlrev_b32 v6, 10, v6")
        a(f"v_lshl_add_u32 v6, {v(L)}, 7, v6")
        for r_ in (sTMP, sWS, sOUT, sSW[0], sSW[1], sSO[0], sSO[1]):
            a(f"s_mov_b32 {s(r_ + 3)}, 0x20000")
        a(f"s_mov_b32 {s(sWS + 2)}, {WS_SIZE:#x}")
        a(f"s_mov_b32 {s(sOUT + 2)}, 0x200000")
        a(f"s_mov_b32 {s(sTMP + 2)}, 0x200000")
        a(f"s_lshr_b32 {s(sT2)}, {s(sID)}, 3")
        a(f"s_lshl2_add_u32 {s(sT2)}, {s(sT2)}, {s(sW)}")
        a(f"s_mul_i32 {s(sT2)}, {s(sT2)}, {4 * 3072}")
        for T in range(2):
            a(f"s_mov_b32 {s(sSW[T] + 2)}, {512 * 3072}")
        a(f"s_mov_b32 {s(sSO[0] + 2)}, {512 * 3072}")
        a(f"s_mov_b32 {s(sSO[1] + 2)}, {512 * 1024}")
        a("s_waitcnt lgkmcnt(0)")
        self.ts("kernarg")
        a(f"s_mov_b64 {s(sTMP, 2)}, {s(sPX, 2)}")
        a(f"s_mov_b64 {s(sSW[0], 2)}, {s(sPWA, 2)}")
        for i in range(2):
            a(f"buffer_load_dwordx4 {v(8 + 4 * i, 4)}, v4, {s(sTMP, 4)}, {s(sFIN)} offen offset:{64 * i}", vm="x0")
        a(f"s_load_dword {s(sEP)}, {s(sPWS, 2)}, 0")
        a(f"s_mov_b64 {s(sWS, 2)}, {s(sPWS, 2)}")
        a(f"s_mov_b64 {s(sOUT, 2)}, {s(sPOUT, 2)}")

        def l2pf():
            a(f"buffer_load_dword v2, v6, {s(sSW[0], 4)}, {s(sT2)} offen offset:1024")
        if cfg["l2pf"] == 1:
            l2pf()
        a(f"s_mov_b64 exec, 7")
        a(f"buffer_load_dword v2, v48, {s(sWS, 4)}, 0 offen")
        a("s_mov_b64 exec, -1")
        self.srd_tmp(sPPHI, 16384)
        a(f"s_lshl_b32 {s(sT0)}, {s(sC)}, 10")
        a(f"buffer_load_dwordx4 v[16:19], {v(vL16)}, {s(sTMP, 4)}, {s(sT0)} offen", vm="phi")
        self.ts("p_issue")
        a(f"s_lshl_b32 {s(sT0)}, {s(sC)}, 6")
        a(f"s_and_b32 {s(sT1)}, {s(sR)}, 7")
        a(f"s_lshl3_add_u32 {s(sT1)}, {s(sW)}, {s(sT1)}")
        a(f"s_mul_i32 {s(sQOFF)}, {s(sT1)}, {16 * 3072}")
        a(f"s_add_u32 {s(sQOFF)}, {s(sQOFF)}, {s(sT0)}")
        a(f"s_mul_i32 {s(sWOFF)}, {s(sT3)}, {16 * 3072}")
        a(f"s_add_u32 {s(sWOFF)}, {s(sWOFF)}, {s(sT0)}")
        a(f"s_lshl_b32 {s(sT0)}, {s(sSUB)}, 10")
        a(f"s_add_u32 {s(sWOFF)}, {s(sWOFF)}, {s(sT0)}")
        a(f"s_add_u32 {s(sWOFF)}, {s(sWOFF)}, 1024")
        self.w_voff(5)
        a(f"v_lshrrev_b32 v7, 7, {v(vL16)}")
        a(f"v_mul_u32_u24 v7, {1024 - 128}, v7")
        a(f"v_add_u32 v7, v7, {v(vL16)}")

        def repack_loads():
            a(f"s_mov_b64 {s(sSW[1], 2)}, {s(sPWB, 2)}")
            a(f"s_cmp_lt_u32 {s(sR)}, 8")
            a(f"s_cselect_b64 {s(sSO[0], 2)}, {s(sPWA, 2)}, {s(sPWB, 2)}")
            a(f"s_cmp_lt_u32 {s(sC)}, 8")
            a(f"s_cselect_b64 {s(sSO[1], 2)}, {s(sPWOA, 2)}, {s(sPWOB, 2)}")
            a(f"buffer_load_dwordx4 v[52:55], v5, {s(sSO[0], 4)}, {s(sQOFF)} offen", vm="rp")
            a(f"s_lshl4_add_u32 {s(sT0)}, {s(sW)}, {s(sR)}")
            a(f"s_lshl_b32 {s(sT0)}, {s(sT0)}, 6")
            a(f"s_add_u32 {s(sT0)}, {s(sT0)}, {s(sCG)}")
            a(f"s_lshl_b32 {s(sT0)}, {s(sT0)}, 7")
            a(f"buffer_load_dwordx4 v[56:59], v7, {s(sSO[1], 4)}, {s(sT0)} offen", vm="rp")
            a(f"s_mul_i32 {s(sT0)}, {s(sR)}, {32 * 3072}")
            a(f"s_add_u32 {s(sT0)}, {s(sT0)}, {s(sWOFF)}")
            a(f"buffer_load_dwordx4 v[60:63], v5, {s(sSW[1], 4)}, {s(sT0)} offen", vm="rp")
        if cfg["rp_at"] == 0:
            repack_loads()
        if cfg["l2pf"] == 2:
            l2pf()
        self.ts("p_w0")
        a(f"s_getreg_b32 {s(sXCC)}, hwreg(HW_REG_XCC_ID, 0, 4)")
        a(f"s_lshl_b32 {s(sW13)}, {s(sW)}, 13")
        a(f"s_mov_b64 {s(sPM, 2)}, 0")
        a(f"s_add_u32 {s(sOLD)}, {s(sOLD)}, {OBUF}")
        a(f"s_lshl2_add_u32 {s(sFOS)}, {s(sC)}, {s(sFOS)}")
        a(f"s_lshl_b32 {s(sT0)}, {s(sBP)}, 7")
        a(f"s_add_u32 {s(sFOP)}, {s(sT0)}, {FLAGO}")
        a(f"s_lshl1_add_u32 {s(sT1)}, {s(sCG)}, {s(sSUB)}")
        a(f"s_lshl2_add_u32 {s(sFXS)}, {s(sT1)}, {s(sT0)}")
        a(f"s_add_u32 {s(sFXS)}, {s(sFXS)}, {FLAGX}")
        a(f"s_lshr_b32 {s(sT0)}, {s(sCG)}, 2")
        a(f"s_lshl2_add_u32 {s(sT0)}, {s(sBP)}, {s(sT0)}")
        a(f"s_lshl1_add_u32 {s(sT0)}, {s(sT0)}, {s(sSUB)}")
        a(f"s_lshl_b32 {s(sT0)}, {s(sT0)}, 8")
        a(f"s_and_b32 {s(sT1)}, {s(sCG)}, 3")
        a(f"s_lshl2_add_u32 {s(sSTST)}, {s(sT1)}, {s(sT0)}")
        a(f"s_add_u32 {s(sSTST)}, {s(sSTST)}, {STATS}")
        a(f"s_lshl4_add_u32 {s(sT0)}, {s(sW)}, {s(sC)}")
        a(f"s_lshl_b32 {s(sKVT)}, {s(sT0)}, 10")
        a(f"s_add_u32 {s(sKVT)}, {s(sKVT)}, {KVP[0]}")
        a(f"s_lshl_b32 {s(sHEL)}, {s(sT0)}, 11")
        a(f"s_add_u32 {s(sHEL)}, {s(sHEL)}, {HELLO}")
        a(f"s_lshl2_add_u32 {s(sPK)}, {s(sC)}, {s(sW)}")
        a(f"s_lshl_b32 {s(sPK)}, {s(sPK)}, 10")
        a(f"s_and_b32 {s(sOOFF)}, {s(sPK)}, 0x7fff")
        a(f"s_mov_b32 {s(sMODEO)}, {cfg['owt']}")
        a(f"s_mov_b32 {s(sLN2)}, {LN2:#x}")
        a(f"s_mov_b32 {s(sLN2b)}, {LN2:#x}")
        a(f"s_mov_b32 {s(sDELTA)}, {DELTA:#x}")
        a(f"s_mov_b32 {s(sHI)}, 0")
        a(f"s_mov_b32 {s(sHI + 1)}, -1")
        a(f"s_mov_b32 {s(sPASS)}, 0")
        a(f"s_mov_b32 {s(sLAY)}, 0")
        a(f"s_mov_b32 {s(sMODE)}, 0")
        a(f"s_lshl_b32 {s(sANN)}, {s(sR)}, 7")
        a(f"s_add_u32 {s(sANN)}, {s(sANN)}, {ANN}")
        a(f"s_lshl4_add_u32 {s(sGW)}, {s(sR)}, {s(sC)}")
        a(f"s_lshl2_add_u32 {s(sGW)}, {s(sGW)}, {s(sW)}")
        self.ts("p_scal")
        i16, g, half, q, jj, t0, t1 = 20, 21, 22, 23, 24, 25, 26
        a(f"v_and_b32 {v(i16)}, 15, {v(L)}")
        a(f"v_lshrrev_b32 {v(g)}, 4, {v(L)}")
        a(f"v_lshrrev_b32 {v(half)}, 5, {v(L)}")
        a(f"v_and_b32 {v(q)}, 3, {v(L)}")
        a(f"v_bfe_u32 {v(jj)}, {v(L)}, 2, 2")
        a(f"v_lshlrev_b32 {v(vPOLL)}, 2, {v(i16)}")
        a(f"v_lshlrev_b32 {v(t0)}, 4, {v(i16)}")
        a(f"v_lshl_add_u32 {v(vXST)}, {v(g)}, 10, {v(t0)}")
        a(f"v_lshl_add_u32 {v(vSST)}, {v(half)}, 10, {v(t0)}")
        a(f"v_lshl_add_u32 {v(vSLD)}, {v(half)}, 9, {v(vL16)}")
        a(f"s_lshr_b32 {s(sT0)}, {s(sR)}, 1")
        a(f"s_lshl_b32 {s(sT0)}, {s(sT0)}, 7")
        a(f"s_and_b32 {s(sT1)}, {s(sR)}, 1")
        a(f"s_add_u32 {s(sT0)}, {s(sT0)}, {s(sT1)}")
        a(f"s_lshl_b32 {s(sT0)}, {s(sT0)}, 9")
        a(f"v_lshl_add_u32 {v(vPST)}, {v(half)}, 8, {v(t0)}")
        a(f"v_add_u32 {v(vPST)}, {s(sT0)}, {v(vPST)}")
        a(f"s_lshl_b32 {s(sT1)}, {s(sR)}, 6")
        a(f"s_add_u32 {s(sT1)}, {s(sT1)}, {8 * 65536}")
        a(f"v_lshl_add_u32 {v(vZST)}, {v(g)}, 4, {s(sT1)}")
        a(f"v_add_u32 v49, {s(sT0)}, {v(vL16)}")
        a(f"v_lshl_add_u32 v27, {v(q)}, 4, {s(sT1)}")
        a(f"v_cndmask_b32 v49, v49, v27, {s(sHI, 2)}")
        for i in range(4):
            a(f"v_mov_b32 {v(28 + i)}, -1")
        a(f"v_and_b32 {v(t1)}, 1, {v(g)}")
        a(f"v_lshl_add_u32 {v(vOST)}, {v(t1)}, 14, {v(t0)}")
        a(f"v_lshl_add_u32 {v(vOST)}, {v(half)}, 9, {v(vOST)}")
        a(f"v_lshlrev_b32 {v(vWRD)}, 11, {v(half)}")
        a(f"v_lshl_add_u32 {v(vWRD)}, {v(jj)}, 6, {v(vWRD)}")
        a(f"v_lshl_add_u32 {v(vWRD)}, {v(t1)}, 4, {v(vWRD)}")
        a(f"v_and_b32 v27, 1, {v(q)}")
        a(f"v_lshrrev_b32 v32, 1, {v(q)}")
        a(f"v_lshl_add_u32 {v(vWRD)}, v27, 5, {v(vWRD)}")
        a(f"v_lshl_add_u32 {v(vWRD)}, v32, 3, {v(vWRD)}")
        a(f"v_lshlrev_b32 {v(vSTR)}, 8, {v(half)}")
        a(f"v_lshl_add_u32 {v(vSTR)}, v32, 7, {v(vSTR)}")
        a(f"v_lshl_add_u32 {v(vSTR)}, {v(t1)}, 6, {v(vSTR)}")
        a(f"v_lshl_add_u32 {v(vSTR)}, {v(jj)}, 4, {v(vSTR)}")
        a(f"v_lshl_add_u32 {v(vSTR)}, v27, 3, {v(vSTR)}")
        a(f"s_lshl_b32 {s(sT0)}, {s(sSUB)}, 12")
        a(f"s_add_u32 {s(sT0)}, {s(sT0)}, {L_STG + 0x4000}")
        a(f"v_add_u32 {v(vSTR2)}, {s(sT0)}, {v(vSTR)}")
        a(f"s_lshl_b32 {s(sT0)}, {s(sW)}, 12")
        a(f"s_add_u32 {s(sT0)}, {s(sT0)}, {L_STG}")
        a(f"v_add_u32 {v(vSTR)}, {s(sT0)}, {v(vSTR)}")
        a(f"v_bfe_u32 v33, {v(L)}, 3, 2")
        a(f"v_and_b32 {v(vSTW)}, 0x70, {v(vL16)}")
        a(f"v_lshl_add_u32 {v(vSTW)}, v33, 8, {v(vSTW)}")
        a(f"v_lshl_add_u32 {v(vSTW)}, {v(half)}, 12, {v(vSTW)}")
        a(f"s_lshl_b32 {s(sT0)}, {s(sW)}, 10")
        a(f"s_add_u32 {s(sT0)}, {s(sT0)}, {L_STG}")
        a(f"v_add_u32 {v(vSTW)}, {s(sT0)}, {v(vSTW)}")
        a(f"v_bfe_u32 v34, {v(L)}, 1, 2")
        a(f"v_xor_b32 v33, v33, v34")
        a(f"v_lshlrev_b32 {v(vWOW)}, 14, v34")
        a(f"v_lshl_add_u32 {v(vWOW)}, v33, 5, {v(vWOW)}")
        a(f"v_lshl_add_u32 {v(vWOW)}, {v(half)}, 9, {v(vWOW)}")
        a(f"v_lshl_add_u32 {v(vWOW)}, v27, 4, {v(vWOW)}")
        a(f"s_lshl_b32 {s(sT0)}, {s(sW)}, 12")
        a(f"v_add_u32 {v(vWOW)}, {s(sT0)}, {v(vWOW)}")
        a(f"v_lshlrev_b32 {v(vWOR)}, 3, {v(L)}")
        a(f"s_lshl_b32 {s(sT0)}, {s(sSUB)}, 15")
        a(f"s_and_b32 {s(sT1)}, {s(sW)}, 2")
        a(f"s_lshl_b32 {s(sT2)}, {s(sT1)}, 9")
        a(f"s_add_u32 {s(sT0)}, {s(sT0)}, {s(sT2)}")
        a(f"v_add_u32 {v(vWKW)}, {s(sT0)}, {v(vL16)}")
        a(f"v_and_b32 v33, 0x1f0, {v(vL16)}")
        a(f"v_add_u32 {v(vCSR)}, {L_CSP:#x}, v33")
        a(f"v_and_b32 v34, 1, {v(jj)}")
        a(f"v_cmp_eq_u32 vcc, v34, {v(half)}")
        a(f"v_mov_b32 v35, 512")
        a(f"v_cndmask_b32 {v(vKFR)}, v35, v33, vcc")
        a(f"v_add_u32 {v(vKFR)}, {L_KVF:#x}, {v(vKFR)}")
        a(f"s_mul_i32 {s(sT0)}, {s(sT1)}, 528")
        a(f"s_lshl_b32 {s(sT2)}, {s(sSUB)}, 6")
        a(f"s_add_u32 {s(sT0)}, {s(sT0)}, {s(sT2)}")
        a(f"s_add_u32 {s(sT0)}, {s(sT0)}, {L_KVF}")
        a(f"v_mul_u32_u24 {v(vKFW)}, 528, {v(half)}")
        a(f"v_lshl_add_u32 {v(vKFW)}, {v(q)}, 4, {v(vKFW)}")
        a(f"v_lshl_add_u32 {v(vKFW)}, {v(jj)}, 7, {v(vKFW)}")
        a(f"v_lshl_add_u32 {v(vKFW)}, {v(t1)}, 3, {v(vKFW)}")
        a(f"v_add_u32 {v(vKFW)}, {s(sT0)}, {v(vKFW)}")
        a(f"s_lshl_b32 {s(sT0)}, {s(sW)}, 5")
        a(f"s_add_u32 {s(sT0)}, {s(sT0)}, {L_ZB}")
        a(f"v_lshl_add_u32 {v(vZW)}, {v(q)}, 2, {v(g)}")
        a(f"v_lshl_add_u32 {v(vZW)}, {v(vZW)}, 1, {s(sT0)}")
        a(f"v_mov_b32 v35, {L_ZB:#x}")
        a(f"v_lshl_add_u32 {v(vZR)}, {v(half)}, 5, v35")
        a(f"v_mov_b32 v36, 0x3f80")
        a(f"v_lshlrev_b32 v37, 4, v27")
        a(f"v_lshlrev_b32 v36, v37, v36")
        a(f"v_lshrrev_b32 v37, 1, {v(i16)}")
        a(f"v_lshlrev_b32 v38, 2, {v(t1)}")
        a(f"v_sub_u32 v37, v37, v38")
        for d in range(4):
            a(f"v_cmp_eq_u32 vcc, {d}, v37")
            a(f"v_cndmask_b32 {v(40 + d)}, 0, v36, vcc")
        a(f"v_add_u32 v33, {L_SEL:#x}, v33")
        a(f"ds_write_b128 v33, v[40:43]")
        for i in range(4):
            a(f"v_mov_b32 {v(44 + i)}, 0")
        a(f"v_min_u32 v33, 5, {v(L)}")
        a(f"v_mul_u32_u24 v33, 528, v33")
        a(f"v_add_u32 v33, {L_KVF + 512:#x}, v33")
        a(f"ds_write_b128 v33, v[44:47]")
        self.ts("p_lane")
        a.wait(vm="x0")
        self.ts("x0")
        for i in range(2):
            for d in range(2):
                a(f"v_permlane16_swap_b32 {v(8 + 4 * i + d)}, {v(8 + 4 * i + 2 + d)}")
        for i in range(8):
            a(f"v_lshlrev_b32 {v(XR + 2 * i)}, 16, {v(8 + i)}")
            a(f"v_and_b32 {v(XR + 2 * i + 1)}, 0xffff0000, {v(8 + i)}")
        self.x_publish(wt=True)
        if cfg["rp_at"] == 1:
            repack_loads()
        self.ts("p_xpub")
        for i in range(cfg["n1"]):
            self.ld_wkv(0, i, 5)
        self.ts("p_w1")
        a(f"s_lshl_b32 {s(sT0)}, {s(sW)}, 10")
        a(f"s_add_u32 {s(sT0)}, {s(sT0)}, {L_STG}")
        a(f"v_add_u32 v33, {s(sT0)}, {v(vL16)}")
        a.wait(vm="phi")
        a(f"ds_write_b128 v33, v[16:19]")
        a(f"v_lshlrev_b32 v33, 9, v27")
        a(f"v_lshl_add_u32 v33, {v(half)}, 8, v33")
        a(f"v_lshl_add_u32 v33, {v(jj)}, 5, v33")
        a(f"v_lshl_add_u32 v33, {v(t1)}, 4, v33")
        a(f"v_lshl_add_u32 v33, v32, 3, v33")
        a(f"v_add_u32 v33, {s(sT0)}, v33")
        a("s_waitcnt lgkmcnt(0)")
        a(f"ds_read_b64_tr_b16 v[16:17], v33")
        a(f"ds_read_b64_tr_b16 v[18:19], v33 offset:128")
        a(f"v_lshl_add_u32 v33, {v(half)}, 4, {v(vL16)}")
        a(f"v_add_u32 v33, {L_WPF:#x}, v33")
        a(f"s_mul_i32 {s(sTAG)}, {s(sEP)}, 0x9e3779b1")
        a(f"s_add_u32 {s(sTAG)}, {s(sTAG)}, 0x7f4a7c15")
        a(f"s_and_b32 {s(sTAG)}, {s(sTAG)}, 0xffffff00")
        a(f"s_or_b32 {s(sT1)}, {s(sTAG)}, 0xf0")
        a(f"s_or_b32 {s(sXCC)}, {s(sTAG)}, {s(sXCC)}")
        a(f"v_mov_b32 v34, {s(sXCC)}")
        a(f"v_mov_b32 v35, {s(sT1)}")
        a("s_waitcnt lgkmcnt(0)")
        a.lg.clear()
        a(f"ds_write_b128 v33, v[16:19]")
        self.ts("p_phi")
        a.wait(vm="xst")
        a("s_mov_b64 exec, 1")
        a(f"buffer_store_dword v34, off, {s(sWS, 4)}, {s(sFXS)}")
        with self.only_if(f"s_cmp_eq_u32 {s(sW)}, 0"):
            a(f"s_lshl2_add_u32 {s(sT0)}, {s(sC)}, {s(sANN)}")
            a(f"buffer_store_dword v34, off, {s(sWS, 4)}, {s(sT0)} sc1")
        self.ts("flag0")
        a("s_mov_b32 exec_lo, -1")
        a("s_mov_b32 exec_hi, 15")
        with self.only_if(f"s_cmp_lt_u32 {s(sW)}, 2"):
            for l in (0, 2):
                a(f"s_add_u32 {s(sT0)}, {s(sKVT)}, {KVP[l] - KVP[0]}")
                a(f"buffer_store_dwordx4 v[28:31], v49, {s(sWS, 4)}, {s(sT0)} offen sc1")
        for l in (1, 3):
            a(f"s_add_u32 {s(sT0)}, {s(sKVT)}, {KVP[l] - KVP[0]}")
            a(f"buffer_store_dwordx4 v[28:31], v49, {s(sWS, 4)}, {s(sT0)} offen sc1", vm="pre")
        a("s_mov_b32 exec_hi, -1")
        a(f"s_lshl_b32 {s(sT1)}, {s(sR)}, 16")
        a(f"s_add_u32 {s(sT1)}, {s(sT1)}, {s(sPK)}")
        a.wait(vm="rp")
        for i, base in enumerate((PQ, PO, PKV)):
            a(f"s_add_u32 {s(sT0)}, {s(sT1)}, {base}")
            a(f"buffer_store_dwordx4 {v(52 + 4 * i, 4)}, {v(vL16)}, {s(sWS, 4)}, {s(sT0)} offen sc1", vm="pre")
        self.ts("p_prefill")
        a(f"v_and_b32 v33, 0x100, {v(vL16)}")
        a(f"v_lshl_add_u32 v33, v33, 1, {v(vPOLL)}")
        a(f"v_lshlrev_b32 v33, 5, v33")
        a(f"v_lshrrev_b32 v37, 2, {v(vL16)}")
        nxt = cfg["n1"]
        for i in range(16):
            while nxt < min(16, i + cfg["nw"]):
                if nxt == cfg["hl_at"]:
                    a(f"buffer_load_dword v36, v33, {s(sWS, 4)}, {s(sHEL)} offen sc1", vm="hl")
                self.ld_wkv(0, nxt, 5)
                nxt += 1
            if i == cfg["n1"]:
                a.wait(vm="pre")
                a("s_mov_b32 exec_hi, 0")
                a(f"s_lshl_b32 {s(sT0)}, {s(sR)}, 7")
                a(f"s_add_u32 {s(sT0)}, {s(sT0)}, {s(sHEL)}")
                a(f"buffer_store_dword v35, v37, {s(sWS, 4)}, {s(sT0)} offen sc1")
                a("s_mov_b32 exec_hi, -1")
                a(f"s_and_b32 {s(sHEL)}, {s(sHEL)}, 0xffffbfff")
                assert nxt <= cfg["hl_at"]
            a.wait(vm=f"wkv{i}")
            if i < 8:
                self.put_wkv(0, i, i + 1)
            self.cs_kv_step(0, i, 40, 44)
        if cfg["hl_at"] < 16:
            a(f"v_cmp_ne_u32 vcc, v35, v36")
            a(f"s_cmp_eq_u64 vcc, 0")
            a(f"s_cselect_b32 {s(sHEL)}, 0, {s(sHEL)}")
        self.cs_kv_fin(0, 44, 50)
        self.ts("wkv0")

    def poll0(self):
        a = self.a
        a.label("L_poll0")
        a(f"v_and_b32 v33, 0x100, {v(vL16)}")
        a(f"v_add_u32 v33, v33, {v(vPOLL)}")
        a(f"s_and_b32 {s(sT0)}, {s(sFXP)}, 0xfffffeff")
        a(f"s_mov_b32 {s(sCNT)}, 0x40000")
        a.label("L_poll0a")
        if not self.cfg["force_global"]:
            a(f"buffer_load_dword v34, v33, {s(sWS, 4)}, {s(sT0)} offen sc1")
            a(f"s_sub_u32 {s(sCNT)}, {s(sCNT)}, 1")
            a("s_cbranch_scc1 L_timeout")
            a("s_waitcnt vmcnt(0)")
            a(f"v_cmp_ne_u32 vcc, {s(sXCC)}, v34")
            a("s_cbranch_vccz L_enter")
            a(f"s_and_b32 {s(sT1)}, {s(sCNT)}, 15")
            a("s_cbranch_scc1 L_poll0a")
            a(f"buffer_load_dword v34, {v(vPOLL)}, {s(sWS, 4)}, {s(sANN)} offen sc1")
            a("s_waitcnt vmcnt(0)")
            a(f"v_xor_b32 v34, {s(sXCC)}, v34")
            a(f"v_add_u32 v34, -1, v34")
            a(f"v_cmp_gt_u32 vcc, 15, v34")
            a("s_cbranch_vccz L_poll0a")
        a(f"s_mov_b32 {s(sMODE)}, 1")
        for r_ in (sFXS, sFXP):
            a(f"s_add_u32 {s(r_)}, {s(r_)}, {FLAGX2 - FLAGX}")
        for r_ in (sSTST, sSTLD):
            a(f"s_add_u32 {s(r_)}, {s(r_)}, {STATS2 - STATS}")
        self.x_publish(0)
        self.flag(sFXS, 16)
        a("s_branch L_npoll")

    def rowmajor_voff(self, d, t):
        a = self.a
        a(f"v_and_b32 {v(d)}, 0xf0, {v(vL16)}")
        a(f"v_lshlrev_b32 {v(d)}, 6, {v(d)}")
        a(f"v_bfe_u32 {v(t)}, {v(vL16)}, 8, 1")
        a(f"v_lshl_add_u32 {v(d)}, {v(t)}, 5, {v(d)}")
        a(f"v_lshrrev_b32 {v(t)}, 9, {v(vL16)}")
        a(f"v_lshl_add_u32 {v(d)}, {v(t)}, 4, {v(d)}")

    def final(self):
        a = self.a
        a.label("L_final")
        X = LG
        self.rowmajor_voff(PK, PK + 1)
        for i in range(8):
            a(f"v_cvt_pk_bf16_f32 {v(X + i)}, {v(XR + 2 * i)}, {v(XR + 2 * i + 1)}")
        for i in range(2):
            for d in range(2):
                a(f"v_permlane16_swap_b32 {v(X + 4 * i + d)}, {v(X + 4 * i + 2 + d)}")
        for i in range(2):
            a(f"buffer_store_dwordx4 {v(X + 4 * i, 4)}, {v(PK)}, {s(sOUT, 4)}, {s(sFIN)} offen offset:{64 * i}{self.cfg['finflag']}")
        with self.only_if(f"s_cmp_eq_u32 {s(sGW)}, 0"):
            a(f"s_add_u32 {s(sEP)}, {s(sEP)}, 1")
            a(f"v_mov_b32 v0, {s(sEP)}")
            a("s_mov_b64 exec, 1")
            a(f"buffer_store_dword v0, off, {s(sWS, 4)}, 0 sc1")
            a("s_mov_b64 exec, -1")
        if self.cfg["amp"]:
            amp = self.cfg["amp"]
            self.ts("end")
            a("s_sub_u32 s72, s78, s72")
            a(f"s_mul_i32 s72, s72, {amp[4]}")
            if amp[5]:
                a("s_lshr_b32 s72, s72, 5")
            a("s_min_u32 s72, s72, 100000")
            a("s_memrealtime s[78:79]")
            a("s_waitcnt lgkmcnt(0)")
            a("s_mov_b32 s73, s78")
            a.label("L_amp")
            a("s_memrealtime s[78:79]")
            a("s_waitcnt lgkmcnt(0)")
            a("s_sub_u32 s78, s78, s73")
            a("s_cmp_lt_u32 s78, s72")
            a("s_cbranch_scc1 L_amp")
        if self.cfg["ts"]:
            a("s_waitcnt vmcnt(0)")
            self.ts("end")
            a("s_memrealtime s[72:73]")
            a("s_waitcnt lgkmcnt(0)")
            a(f"v_writelane_b32 {v(vTS)}, s78, 61")
            a(f"v_writelane_b32 {v(vTS)}, s72, 62")
            a(f"v_writelane_b32 {v(vTS)}, {s(sMODE)}, 63")
            a(f"s_lshl_b32 {s(sT0)}, {s(sGW)}, 8")
            a(f"s_add_u32 {s(sT0)}, {s(sT0)}, {DBG + 0x2000000}")
            a(f"v_lshrrev_b32 v0, 2, {v(vL16)}")
            a(f"buffer_store_dword {v(vTS)}, v0, {s(sWS, 4)}, {s(sT0)} offen")
        a.label("L_timeout")
        a.label("L_end")
        a("s_endpgm")

    def build(self):
        a = self.a
        self.prologue()
        self.layer(0)
        self.layer(1)
        self.final()
        self.poll0()
        a.raw(self.tail)
        a.label("L_codeend")
        a("s_endpgm")
        nops = a.pad_hazards()
        head = open(f"cdna_kernels/{NAME}.s.ref").read().split("; Override launch")[0]
        out = head + f"; @launch grid=(256,1,1) block=(256,1,1) lds={LDS_SIZE}\n"
        out += f""".amdgcn_target "amdgcn-amd-amdhsa--gfx950"
.text
.globl {NAME}_kernel
.p2align 8
.type {NAME}_kernel,@function
{NAME}_kernel:
"""
        out += a.text()
        out += f""".section .rodata,"a"
.p2align 6
.amdhsa_kernel {NAME}_kernel
  .amdhsa_next_free_vgpr 512
  .amdhsa_next_free_sgpr 102
  .amdhsa_accum_offset 256
  .amdhsa_group_segment_fixed_size 0
  .amdhsa_kernarg_size 80
  .amdhsa_user_sgpr_count 2
  .amdhsa_user_sgpr_kernarg_segment_ptr 1
  .amdhsa_system_sgpr_workgroup_id_x 1
.end_amdhsa_kernel
"""
        self.nops = nops
        return out


if __name__ == "__main__":
    import ast
    kw = {}
    out = sys.argv[1]
    for x in sys.argv[2:]:
        k, val = x.split("=", 1)
        kw[k] = ast.literal_eval(val)
    g = Gen(**kw)
    txt = g.build()
    open(out, "w").write(txt)
    print(f"wrote {out}: {len(g.a.ins)} lines, {g.nops} pad states", file=sys.stderr)
```

```python
import sys
import contextlib
from asmlib import Asm, Ins

NAME = "interleave_layers__linear_attn_block__linear_kernel_hedgehog__prompt"

CFG = dict(
    ts=0, rt=0,
    dump=None,
    amp=None,
    force_global=0,
    n1=4, nw=6, codepf=44, l2pf=1, rp_at=0,
    bg=((0, 10, 14, 10, 6, 0), (4, 10, 10, 0, 0, 0)),
    pl_step=(22, 22, 22, 22),
    nx0=8, no0=8,
    wo_every=(8, 10),
    opre=(8, 12),
    xprobe_at=99,
    put_every=1, put_pre=8, xput_every=6, wo_spread=1.5, hl_slot=24,
    finflag="", jit=1,
)

FLAGX, FLAGX2, ANN, HELLO = 0x1000, 0x7000, 0x9000, 0xA0000
STATS, STATS_G = [0x10000, 0x30000], 0x40000
XB = [0x200000, 0]
OB = [0x400000, 0x600000]
PKV, PQ, PO = 0x800000, 0x900000, 0xA00000
KVP = [0xB00000 + 0x90000 * l for l in range(4)]
DBG = 0x1000000
WS_SIZE = 0x8000000
L_P, L_WQ, L_STG = 0x0, [0x10000, 0x18000], 0x20000
L_KVF = 0x26000
L_WPF = L_KVF + 4 * 528
L_ZB = L_WPF + 2 * 528
L_CSP = 0x26D00
L_SEL = 0x27900
LDS_SIZE = 0x28000
XF, AK, AV, RG, LG, XR, PK = 0, 128, 144, 160, 192, 208, 224
vSTR, vSTR2, vPST, vZST, vKFW, vZW, vZR, vOST = range(184, 192)
vL16, vWRD, vSTW, vKFR, vS, vRS, vM, vXST, vSST, vSLD, vPOLL, vWOR, vWOW, vWKW, vCSR, vTS = range(240, 256)
A_WKV, A_WO = [0, 64], [128, 192]
sID = 2
sPX, sPWA, sPWOA, sPBX, sPWB, sPPHI, sPWOB, sPOUT, sPDBG, sPWS = range(4, 24, 2)
sWS, sOUT, sTMP = 24, 28, 32
XS = [sWS, sOUT]
(sW, sC, sR, sXLD, sSTLD, sFXP, sOST, sFOS, sOLD, sFOP, sXST, sSTST, sFXS, sKVT, sTAG, sMODE, sPASS,
 sEP, sXCC, sT0, sT1, sT2, sT3, sCNT, sWOFF, sQOFF, sOOFF, sHEL, sLN2, sLN2b, sDELTA, sFIN) = range(36, 68)
sHI = 68
sSAVE = 70
sTSA = 72
sTSI = 74
sGW = 75
sLAY = 76
sANN = 77
sW13 = 98
sSKIP = 3
sPK = 0
sPM = 96
sSW, sSO = [80, 84], [88, 92]
vHL = PK + 8
vPR, vPB, vPA, vCK = PK + 10, PK + 11, PK + 7, PK + 6
sROW = sPM
assert sLN2 % 2 == 0

LOG2E = 0x3FB8AA3B
LN2 = 0x3F317218
DELTA = 0x35C1A4C3
import struct
def f2u(x): return struct.unpack("<I", struct.pack("<f", x))[0]
DELTA = f2u(1e-6 * 1.4426950408889634)


def v(a, n=1): return f"v{a}" if n == 1 else f"v[{a}:{a + n - 1}]"
def ar(a, n=1): return f"a{a}" if n == 1 else f"a[{a}:{a + n - 1}]"
def s(a, n=1): return f"s{a}" if n == 1 else f"s[{a}:{a + n - 1}]"


class Gen:
    def __init__(self, **kw):
        self.cfg = dict(CFG)
        self.cfg.update(kw)
        self.a = Asm()
        self.tail = []
        self.nts = 0
        self.tsnames = []
        self.side = []
        self.side_every = 1

    @contextlib.contextmanager
    def uncounted(self):
        a = self.a
        vm, lg = list(a.vm), list(a.lg)
        yield
        a.vm, a.lg = vm, lg

    @contextlib.contextmanager
    def only_if(self, cmp):
        a = self.a
        l = a.newlabel("skip")
        a(cmp)
        a(f"s_cbranch_scc0 {l}")
        with self.uncounted():
            yield
        a.label(l)

    @contextlib.contextmanager
    def outofline(self):
        a = self.a
        n0 = len(a.ins)
        with self.uncounted():
            yield
        self.tail += a.ins[n0:]
        del a.ins[n0:]

    def code_pf(self, lo, hi, t):
        a = self.a
        n = f"(({hi}-{lo})/1024+1)"
        a(f"s_bfe_u32 {s(sT0)}, {s(sID)}, {3 | (3 << 16)}")
        a(f"s_mul_i32 {s(sT0)}, {s(sT0)}, {n}*128")
        a(f"s_add_u32 {s(sT0)}, {s(sT0)}, {lo}-L_pc")
        a(f"v_lshlrev_b32 {v(t)}, 3, {v(vL16)}")
        a(f"v_min_u32 {v(t)}, ({n}-1)*128, {v(t)}")
        a(f"v_add_u32 {v(t)}, {s(sT0)}, {v(t)}")
        a(f"v_min_u32 {v(t)}, L_codeend-L_pc, {v(t)}")
        a(f"global_load_dword {v(t)}, {v(t)}, {s(sSAVE, 2)}")

    def countdown(self):
        self.a(f"s_sub_u32 {s(sCNT)}, {s(sCNT)}, 1")
        self.a("s_cbranch_scc1 L_timeout")

    def bg_region(self, n, slots):
        n = min(n, len(self.bg))
        self.bg_slot = 0
        self.bg_at = [(k * slots) // n for k in range(n)]

    def bg_tick(self):
        for _ in range(self.bg_at.count(self.bg_slot)):
            self.bg.pop(0)()
        self.bg_slot += 1

    def bg_now(self, n):
        for _ in range(min(n, len(self.bg))):
            self.bg.pop(0)()

    def ticker(self):
        def e(text, **kw):
            if self.side and self.bg_slot % self.side_every == 0:
                self.side.pop(0)()
            self.bg_tick()
            self.a(text, **kw)
        return e

    def moded(self, lines, tag=None, reg=sMODE, wt=False):
        a = self.a
        if wt:
            for l in lines:
                a(l + (" sc1" if l.startswith("buffer_store") else ""), vm=tag)
            return
        lg, lj = a.newlabel("glob"), a.newlabel("join")
        a(f"s_cmp_eq_u32 {s(reg)}, 0")
        a(f"s_cbranch_scc0 {lg}")
        for l in lines:
            a(l, vm=tag)
        a.label(lj)
        t = [Ins(lg + ":")] + [Ins(l + (" sc1" if l.startswith("buffer_store") else "")) for l in lines] + [Ins(f"s_branch {lj}")]
        self.tail += t

    def srd_tmp(self, ptr, size):
        a = self.a
        a(f"s_mov_b32 {s(sTMP)}, {s(ptr)}")
        a(f"s_mov_b32 {s(sTMP + 1)}, {s(ptr + 1)}")
        a(f"s_mov_b32 {s(sTMP + 2)}, {size}")

    def ts(self, name):
        a = self.a
        amp = self.cfg["amp"]
        if amp:
            for k in range(2):
                if amp[k] == name:
                    a(f"{'s_memtime' if amp[3] else 's_memrealtime'} {s(72 + 6 * k, 2)}")
                    if name != "start":
                        a("s_waitcnt lgkmcnt(0)")
        if not self.cfg["ts"] or name == "start":
            return
        if self.cfg["ts"] == 1 and name.startswith("p_"):
            return
        if self.cfg["ts"] == 3 and name not in ("x0", "flag0", "poll0", "end") and name[2:] not in ("kvgemm", "ogemm"):
            return
        if self.cfg["ts"] == 2 and ":" in name and name[2:] not in ("kvgemm", "bar3", "ogemm"):
            return
        a(f"{'s_memrealtime' if self.cfg['rt'] else 's_memtime'} {s(sTSA, 2)}")
        a("s_waitcnt lgkmcnt(0)")
        a.lg.clear()
        a(f"v_writelane_b32 {v(vTS)}, {s(sTSA)}, {len(self.tsnames)}")
        self.tsnames.append(name)
        assert len(self.tsnames) <= 56

    def dump(self, point, l, regs, tmp):
        if self.cfg["dump"] != (point, l):
            return
        a = self.a
        with self.uncounted():
            a("s_waitcnt vmcnt(0) lgkmcnt(0)")
            a("s_nop 15")
            a(f"v_lshrrev_b32 {v(tmp)}, 2, {v(vL16)}")
            a(f"s_mul_i32 {s(sT0)}, {s(sGW)}, {64 * 256}")
            a(f"s_add_u32 {s(sT0)}, {s(sT0)}, {DBG}")
            for i, r in enumerate(regs):
                a(f"buffer_store_dword {v(r)}, {v(tmp)}, {s(sWS, 4)}, {s(sT0)} offen")
                a(f"s_add_u32 {s(sT0)}, {s(sT0)}, 256")
            a("s_waitcnt vmcnt(0)")

    def poll(self, voff, soff, tmp, tag=sTAG):
        a = self.a
        l = a.newlabel("poll")
        a.label(l)
        a(f"buffer_load_dword {v(tmp)}, {v(voff)}, {s(sWS, 4)}, {s(soff)} offen sc1")
        self.countdown()
        a.wait(vm=0)
        a(f"v_cmp_ne_u32 vcc, {s(tag)}, {v(tmp)}")
        a(f"s_cbranch_vccnz {l}")

    def flag(self, soff, tmp):
        a = self.a
        a(f"v_mov_b32 {v(tmp)}, {s(sTAG)}")
        a.wait(vm=0)
        a("s_mov_b64 exec, 1")
        self.moded([f"buffer_store_dword {v(tmp)}, off, {s(sWS, 4)}, {s(soff)}"])
        a("s_mov_b64 exec, -1")

    def w_voff(self, t):
        a = self.a
        a(f"v_lshrrev_b32 {v(t)}, 6, {v(vL16)}")
        a(f"v_mul_u32_u24 {v(t)}, {3072 - 64}, {v(t)}")
        a(f"v_add_u32 {v(t)}, {v(t)}, {v(vL16)}")

    def ld_wkv(self, T, i, t):
        a = self.a
        a(f"s_add_u32 {s(sT0)}, {s(sWOFF)}, {i * 32 * 3072}")
        a(f"buffer_load_dwordx4 {ar(A_WKV[T] + 4 * i, 4)}, {v(t)}, {s(sSW[T], 4)}, {s(sT0)} offen", vm=f"wkv{i}")

    def ld_pk(self, what, T, i):
        a = self.a
        if what == "wq":
            a(f"s_add_u32 m0, {s(sW13)}, {L_WQ[T] + i * 1024}")
            a(f"s_add_u32 {s(sT0)}, {s(sPK)}, {PQ + (8 * T + i) * 65536}")
            a(f"buffer_load_dwordx4 {v(vL16)}, {s(sWS, 4)}, {s(sT0)} offen sc1 lds", vm="wq")
        elif what == "wo":
            a(f"s_add_u32 {s(sT0)}, {s(sOOFF)}, {PO + T * 0x8000 + i * 65536}")
            a(f"buffer_load_dwordx4 {ar(A_WO[T] + 4 * i, 4)}, {v(vL16)}, {s(sWS, 4)}, {s(sT0)} offen sc1", vm="wo")
        else:
            a(f"s_add_u32 {s(sT0)}, {s(sPK)}, {PKV + i * 65536}")
            a(f"buffer_load_dwordx4 {ar(A_WKV[1] + 4 * i, 4)}, {v(vL16)}, {s(sWS, 4)}, {s(sT0)} offen sc1", vm=f"wkv{i}")

    def bg_setup(self, T):
        self.bg = [(lambda i=i: self.ld_pk("wq", T, i)) for i in range(8)] + [(lambda i=i: self.ld_pk("wo", T, i)) for i in range(16)]
        if T == 0:
            self.bg += [(lambda i=i: self.ld_pk("wkv", 1, i)) for i in range(16)]

    def put_wkv(self, T, lo, hi, waits=False):
        for i in range(lo, hi):
            if waits:
                self.a.wait(vm=f"wkv{i}")
            self.a(f"ds_write_b128 {v(vWKW)}, {ar(A_WKV[T] + 4 * i, 4)} offset:{i * 2048}", lg="put")

    def put_wo(self, T, i):
        self.a(f"ds_write_b128 {v(vWOW)}, {ar(A_WO[T] + 4 * i, 4)} offset:{(i >> 2) * 1024 + (i & 3) * 128}")

    @staticmethod
    def woff(j, u):
        return (j >> 2) * 4096 + u * 1024 + (j & 3) * 256

    def colsum(self, addr, nsteps, regs, acc):
        a = self.a
        a(f"v_mov_b32 {v(acc)}, 0")
        for j in range(nsteps):
            for u in range(2):
                a(f"ds_read_b64_tr_b16 {v(regs[j] + 2 * u, 2)}, {v(addr)} offset:{self.woff(j, u)}", lg=f"cs{j}")
        for j in range(nsteps):
            a.wait(lg=f"cs{j}")
            for d in range(4):
                a(f"v_dot2c_f32_bf16 {v(acc)}, {s(sT3)}, {v(regs[j] + d)}")

    def cs_kv_step(self, T, i, sel, d):
        self.a(f"v_mfma_f32_16x16x32_bf16 {v(d, 4)}, {v(sel, 4)}, {ar(A_WKV[T] + 4 * i, 4)}, {v(d, 4) if i else 0}")

    def cs_kv_fin(self, T, d, t):
        a = self.a
        a(f"s_and_b32 {s(sT0)}, {s(sW)}, 1")
        a(f"s_lshl_b32 {s(sT0)}, {s(sT0)}, 9")
        a(f"s_and_b32 {s(sT1)}, {s(sW)}, 2")
        a(f"s_lshl_b32 {s(sT1)}, {s(sT1)}, 2")
        a(f"s_add_u32 {s(sT0)}, {s(sT0)}, {s(sT1)}")
        a(f"s_add_u32 {s(sT0)}, {s(sT0)}, {L_CSP + T * 1536}")
        a(f"v_lshrrev_b32 {v(t)}, 9, {v(vL16)}")
        a(f"v_lshl_add_u32 {v(t)}, {v(t)}, 2, {s(sT0)}")
        a(f"v_bfe_u32 {v(t + 1)}, {v(vL16)}, 4, 1")
        a(f"v_lshl_add_u32 {v(t)}, {v(t + 1)}, 8, {v(t)}")
        a(f"v_bfe_u32 {v(t + 1)}, {v(vL16)}, 8, 1")
        a(f"v_lshl_add_u32 {v(t)}, {v(t + 1)}, 7, {v(t)}")
        a(f"v_bfe_u32 {v(t + 1)}, {v(vL16)}, 5, 1")
        a(f"v_lshl_add_u32 {v(t)}, {v(t + 1)}, 6, {v(t)}")
        for ror in (4, 8):
            for i in range(4):
                a(f"v_add_f32 {v(d + i)}, {v(d + i)}, {v(d + i)} row_ror:{ror}")
        a(f"ds_write2_b32 {v(t)}, {v(d)}, {v(d + 1)} offset0:0 offset1:4")
        a(f"ds_write2_b32 {v(t)}, {v(d + 2)}, {v(d + 3)} offset0:8 offset1:12")

    def sel_read(self, sel):
        a = self.a
        a(f"v_and_b32 {v(sel)}, 0x1f0, {v(vL16)}")
        a(f"v_add_u32 {v(sel)}, {L_SEL:#x}, {v(sel)}")
        a(f"ds_read_b128 {v(sel, 4)}, {v(sel)}", lg="sel")

    def cs_q(self, T):
        a = self.a
        t, acc = AV, AV + 1
        a(f"s_mov_b32 {s(sT3)}, 0x3f803f80")
        a(f"s_add_u32 {s(sT0)}, {s(sW13)}, {L_WQ[T]}")
        a(f"v_add_u32 {v(t)}, {s(sT0)}, {v(vWRD)}")
        regs = [LG + 4 * i for i in range(4)] + [PK + 4 * i for i in range(4)]
        self.colsum(t, 8, regs, acc)
        a(f"v_mov_b32 {v(t)}, {v(acc)}")
        a(f"v_permlane32_swap_b32 {v(t)}, {v(acc)}")
        a(f"v_add_f32 {v(acc)}, {v(acc)}, {v(t)}")
        a(f"s_lshl_b32 {s(sT0)}, {s(sW)}, 2")
        a(f"v_add_u32 {v(t)}, {s(sT0)}, {v(vCSR)}")
        a(f"ds_write_b32 {v(t)}, {v(acc)} offset:{T * 1536 + 1024}")

    @staticmethod
    def cs_pack(src, dst):
        return [
            f"v_pk_add_f32 {v(src, 2)}, {v(src, 2)}, {v(src + 2, 2)}",
            f"v_add_f32 {v(src)}, {v(src)}, {v(src + 1)}",
            f"v_cvt_pk_bf16_f32 {v(src + 1)}, {v(src)}, {v(src)}",
            f"v_and_b32 {v(src + 1)}, 0xffff0000, {v(src + 1)}",
            f"v_sub_f32 {v(src)}, {v(src)}, {v(src + 1)}",
            f"v_cvt_pk_bf16_f32 {v(dst)}, {v(src + 1)}, {v(src)}",
        ]

    def x_steps(self, B, src, X, wt=False):
        a = self.a
        t = X + 8
        st = []
        E = lambda txt: st.append(lambda: a(txt))
        E(f"s_add_u32 {s(sT2)}, {s(sXST)}, {XB[B]}")
        for i in range(8):
            E(f"v_cvt_pk_bf16_f32 {v(X + i)}, {v(src + 2 * i)}, {v(src + 2 * i + 1)}")
        E(f"v_min_u32 {v(X)}, -2, {v(X)}")
        E(f"v_min_u32 {v(X + 4)}, -2, {v(X + 4)}")
        st.append(lambda: self.moded([f"buffer_store_dwordx4 {v(X + 4 * i, 4)}, {v(vXST)}, {s(XS[B], 4)}, {s(sT2)} offen offset:{i * 512}" for i in range(2)], tag="xst", wt=wt))
        E(f"v_pk_add_f32 {v(t, 2)}, {v(src, 2)}, {v(src + 2, 2)}")
        E(f"v_pk_mul_f32 {v(t + 2, 2)}, {v(src, 2)}, {v(src, 2)}")
        E(f"v_pk_fma_f32 {v(t + 2, 2)}, {v(src + 2, 2)}, {v(src + 2, 2)}, {v(t + 2, 2)}")
        for i in range(2, 8):
            E(f"v_pk_add_f32 {v(t, 2)}, {v(t, 2)}, {v(src + 2 * i, 2)}")
            E(f"v_pk_fma_f32 {v(t + 2, 2)}, {v(src + 2 * i, 2)}, {v(src + 2 * i, 2)}, {v(t + 2, 2)}")
        E(f"v_add_f32 {v(t)}, {v(t)}, {v(t + 1)}")
        E(f"v_add_f32 {v(t + 2)}, {v(t + 2)}, {v(t + 3)}")
        E(f"s_add_u32 {s(sT2)}, {s(sSTST)}, {STATS[B]}")
        E(f"v_permlane32_swap_b32 {v(t)}, {v(t + 2)}")
        E(f"v_add_f32 {v(t)}, {v(t)}, {v(t + 2)}")
        E(f"v_mov_b32 {v(t + 1)}, {v(t)}")
        E(f"v_permlane16_swap_b32 {v(t)}, {v(t + 1)}")
        E(f"v_add_f32 {v(t)}, {v(t)}, {v(t + 1)}")
        E(f"v_min_u32 {v(t)}, -2, {v(t)}")

        def stat():
            a(f"s_mov_b64 exec, {s(sROW, 2)}")
            self.moded([f"buffer_store_dword {v(t)}, {v(vSST)}, {s(sWS, 4)}, {s(sT2)} offen"], tag="xst")
            a("s_mov_b64 exec, -1")
        st.append(stat)
        return st

    def ldx(self, B, j):
        a = self.a
        if j % 4 == 0 and j:
            a(f"s_add_u32 {s(sT3)}, {s(sXLD)}, {XB[B] + j * 1024}")
        a(f"buffer_load_dwordx4 {v(XF + 4 * j, 4)}, {v(vL16)}, {s(XS[B], 4)}, {s(sT3)} offen offset:{(j % 4) * 1024} sc1", vm=f"x{j}")

    def probe(self, what, reg, setexec=True):
        a = self.a
        srd, off = what
        if setexec:
            a("s_mov_b64 exec, 0xffff")
        a(f"buffer_load_dword {v(reg)}, {v(vPA)}, {s(srd, 4)}, {s(sT3)} offen offset:{off} sc1", vm="probe")
        if setexec:
            a("s_mov_b64 exec, -1")

    def spin(self, what, name):
        a = self.a
        a("s_mov_b64 exec, 0xffff")
        a.label(f"L_spin{name}")
        self.probe(what, vPB, False)
        a("s_waitcnt vmcnt(1)")
        a(f"v_cmp_eq_u32 vcc, -1, {v(vPR)}")
        a(f"s_cbranch_vccz L_go{name}")
        self.probe(what, vPR, False)
        self.countdown()
        a("s_waitcnt vmcnt(1)")
        a(f"v_cmp_eq_u32 vcc, -1, {v(vPB)}")
        a(f"s_cbranch_vccnz L_spin{name}")
        a.label(f"L_go{name}")
        a("s_mov_b64 exec, -1")
        a.vm.clear()

    def x_probe_addr(self):
        return [f"v_and_b32 {v(vPR)}, 4, {v(vPOLL)}",
                f"v_mul_u32_u24 {v(vPR)}, 448, {v(vPR)}",
                f"v_lshlrev_b32 {v(vPA)}, 9, {v(vPOLL)}",
                f"v_sub_u32 {v(vPA)}, {v(vPA)}, {v(vPR)}"]

    def phi_a(self, acc, tmp):
        a = self.ticker()
        for i in range(8):
            a(f"v_pk_mul_f32 {v(acc + 2 * i, 2)}, {v(acc + 2 * i, 2)}, {v(vS, 2)} op_sel_hi:[1,0]")
        for i in range(16):
            a(f"v_exp_f32_e64 {v(tmp + i)}, {v(acc + i)} clamp")
            a(f"v_max_f32 {v(acc + i)}, {s(sDELTA)}, {v(acc + i)}")
        for i in range(8):
            a(f"v_pk_fma_f32 {v(acc + 2 * i, 2)}, {v(acc + 2 * i, 2)}, {s(sLN2, 2)}, {v(tmp + 2 * i, 2)}")
        for i in range(8):
            a(f"v_cvt_pk_bf16_f32 {v(PK + i)}, {v(acc + 2 * i)}, {v(acc + 2 * i + 1)}")

    def logits(self):
        a = self.a
        for i in range(8):
            a(f"v_cvt_pk_bf16_f32 {v(PK + i)}, {v(AK + 2 * i)}, {v(AK + 2 * i + 1)}")
        a.wait(lg="wp")
        a(f"v_mfma_f32_32x32x16_bf16 {v(LG, 16)}, {v(PK + 8, 4)}, {v(PK, 4)}, 0")
        a(f"v_mfma_f32_32x32x16_bf16 {v(LG, 16)}, {v(PK + 12, 4)}, {v(PK + 4, 4)}, {v(LG, 16)}")

    def softmax2(self, t, isq, after_plus=None, after_minus=None):
        a = self.ticker()
        a(f"v_max3_f32 {v(t)}, {v(LG)}, {v(LG + 1)}, {v(LG + 2)}")
        a(f"v_min3_f32 {v(t + 1)}, {v(LG)}, {v(LG + 1)}, {v(LG + 2)}")
        for i in range(3, 15, 2):
            a(f"v_max3_f32 {v(t)}, {v(t)}, {v(LG + i)}, {v(LG + i + 1)}")
            a(f"v_min3_f32 {v(t + 1)}, {v(t + 1)}, {v(LG + i)}, {v(LG + i + 1)}")
        a(f"v_max_f32 {v(t)}, {v(t)}, {v(LG + 15)}")
        a(f"v_min_f32 {v(t + 1)}, {v(t + 1)}, {v(LG + 15)}")
        a(f"v_pk_mul_f32 {v(t, 2)}, {v(t, 2)}, {v(vS, 2)} op_sel_hi:[1,0]")
        for sg, E in ((0, AK), (1, LG)):
            for i in range(8):
                if sg == 0:
                    a(f"v_pk_fma_f32 {v(E + 2 * i, 2)}, {v(LG + 2 * i, 2)}, {v(vS, 2)}, {v(t, 2)} op_sel_hi:[1,0,0] neg_lo:[0,0,1] neg_hi:[0,0,1]")
                else:
                    a(f"v_pk_fma_f32 {v(E + 2 * i, 2)}, {v(LG + 2 * i, 2)}, {v(vS, 2)}, {v(t, 2)} op_sel:[0,0,1] op_sel_hi:[1,0,1] neg_lo:[1,0,0] neg_hi:[1,0,0]")
            for i in range(16):
                a(f"v_exp_f32 {v(E + i)}, {v(E + i)}")
            S = t + 2 + 2 * sg
            a(f"v_pk_add_f32 {v(S, 2)}, {v(E, 2)}, {v(E + 2, 2)}")
            for i in range(2, 8):
                a(f"v_pk_add_f32 {v(S, 2)}, {v(S, 2)}, {v(E + 2 * i, 2)}")
            a(f"v_add_f32 {v(S)}, {v(S)}, {v(S + 1)}")
            if not (isq and sg == 0):
                a(f"v_rcp_f32 {v(S)}, {v(S)}")
                if isq:
                    a(f"v_mul_f32 {v(t + 6)}, {f2u(1e-6):#x}, {v(t + 2)}")
                    a(f"v_mul_f32 {v(S)}, {v(S)}, {v(t + 2)}")
                for i in range(8):
                    a(f"v_pk_mul_f32 {v(E + 2 * i, 2)}, {v(E + 2 * i, 2)}, {v(S, 2)} op_sel_hi:[1,0]")
            for i in range(8):
                a(f"v_cvt_pk_bf16_f32 {v(PK + 8 * sg + i)}, {v(E + 2 * i)}, {v(E + 2 * i + 1)}")
            cb = (after_plus, after_minus)[sg]
            if cb:
                cb()

    def layer(self, l):
        a, cfg = self.a, self.cfg
        T, first, last = l & 1, l < 2, l == 3
        NJ = 2 if T == 0 else 4
        skip23 = (lambda: self.only_if(f"s_cmp_lt_u32 {s(sW)}, 2")) if T == 0 else contextlib.nullcontext
        bgn = cfg["bg"][l] if first else (0,) * 6
        self.bg = []
        if first:
            self.bg_setup(T)
            assert sum(bgn) >= len(self.bg) and bgn[0] + bgn[1] >= 8 and sum(bgn[:3]) >= 24
        NX = cfg["nx0"]
        a.label(f"L_layer{l}")
        a(f"s_mov_b32 {s(sSKIP)}, 0")
        a.wait(lg=0)
        a("s_barrier")
        self.ts(f"{l}:bar1")
        a.label(f"L_xre{l}")
        ST = LG
        CS = LG + 8
        CSA, MB = PK, PK + 2
        D = 3

        def rd(j, p):
            for u in range(2):
                a(f"ds_read_b64_tr_b16 {v(RG + (j % D) * 8 + 4 * p + 2 * u, 2)}, {v(vWRD)} offset:{p * 32768 + self.woff(j, u)}", lg=f"w{j}")
        for j in range(D):
            rd(j, 0); rd(j, 1)
        a(f"ds_read_b128 {v(CS, 4)}, {v(vCSR)} offset:{T * 1536}", lg="cs")
        a(f"ds_read_b128 {v(CS + 4, 4)}, {v(vCSR)} offset:{T * 1536 + 512}", lg="cs")
        a(f"v_mov_b32 {v(vCK)}, 0")
        if l:
            self.spin((XS[T], 3824), f"x{l}")
        a.vm.clear()
        with self.outofline():
            a.label(f"L_xfail{l}")
            a(f"s_mov_b32 {s(sSKIP)}, 1")
            self.countdown()
            if cfg["ts"]:
                a(f"s_add_u32 {s(sLAY)}, {s(sLAY)}, 1")
            a(f"s_add_u32 {s(sT3)}, {s(sXLD)}, {XB[T]}")
            a("s_waitcnt vmcnt(0) lgkmcnt(0)")
            self.probe((XS[T], 3824), vPR)
            a(f"s_branch L_xre{l}")
        self.ts(f"{l}:xpoll")

        def ldx(j):
            self.ldx(T, j)
            if j == max(NX, 9):
                a(f"s_add_u32 {s(sT1)}, {s(sSTLD)}, {STATS[T]}")
                a(f"buffer_load_dwordx4 {v(ST, 4)}, {v(vSLD)}, {s(sWS, 4)}, {s(sT1)} offen sc1", vm="st")
            if j == max(NX, 9) + 2:
                a(f"buffer_load_dwordx4 {v(ST + 4, 4)}, {v(vSLD)}, {s(sWS, 4)}, {s(sT1)} offen offset:512 sc1", vm="st")
        put_at = [int(k * cfg["put_every"]) - cfg["put_pre"] for k in range(8)]
        for j in range(NX):
            ldx(j)
            for k in range(8):
                if put_at[k] == j - NX or (j == 0 and put_at[k] < -NX):
                    self.put_wkv(T, 8 + k, 9 + k)
        t, u_ = ST, ST + 1
        stat = [f"v_max3_u32 {v(vCK)}, {v(vCK)}, {v(ST + 2 * i)}, {v(ST + 2 * i + 1)}" for i in range(4)] + [
            f"v_pk_add_f32 {v(ST, 2)}, {v(ST, 2)}, {v(ST + 2, 2)}",
            f"v_pk_add_f32 {v(ST + 4, 2)}, {v(ST + 4, 2)}, {v(ST + 6, 2)}",
            f"v_pk_add_f32 {v(ST, 2)}, {v(ST, 2)}, {v(ST + 4, 2)}",
            f"v_add_f32 {v(t)}, {v(ST)}, {v(ST + 1)}",
            f"v_mul_f32 {v(t)}, {f2u(1 / 512):#x}, {v(t)}",
            f"v_mov_b32 {v(u_)}, {v(t)}",
            f"v_permlane32_swap_b32 {v(t)}, {v(u_)}",
            f"v_fma_f32 {v(u_)}, -{v(t)}, {v(t)}, {v(u_)}",
            f"v_max_f32 {v(u_)}, 0, {v(u_)}",
            f"v_cvt_pk_bf16_f32 {v(vM)}, -{v(t)}, -{v(t)}",
            f"v_cvt_pk_bf16_f32 {v(u_)}, {v(u_)}, {v(u_)}",
            f"v_and_b32 {v(u_)}, 0xffff0000, {v(u_)}",
            f"v_add_f32 {v(u_)}, {f2u(1e-5):#x}, {v(u_)}",
            f"v_cvt_pk_bf16_f32 {v(u_)}, {v(u_)}, {v(u_)}",
            f"v_and_b32 {v(u_)}, 0xffff0000, {v(u_)}",
            f"v_sqrt_f32 {v(u_)}, {v(u_)}",
            f"v_cndmask_b32 {v(vM)}, {v(vM)}, 0, {s(sHI, 2)}",
            f"v_cvt_pk_bf16_f32 {v(u_)}, {v(u_)}, {v(u_)}",
            f"v_and_b32 {v(u_)}, 0xffff0000, {v(u_)}",
            f"v_rcp_f32 {v(vRS)}, {v(u_)}",
            f"v_mov_b32 {v(MB)}, {v(vM)}",
            f"v_mul_f32 {v(vS)}, {LOG2E:#x}, {v(vRS)}",
            f"v_mov_b32 {v(MB + 3)}, {v(vM)}",
        ]
        js = max(NX, 9) + 3
        fill = [f"v_mov_b32 {v(MB + 1)}, 0", f"v_mov_b32 {v(MB + 2)}, 0"]
        if l == 0:
            fill += [f"v_and_b32 {v(vHL)}, 0x100, {v(vL16)}",
                     f"v_lshl_add_u32 {v(vHL)}, {v(vHL)}, 1, {v(vPOLL)}",
                     f"v_lshlrev_b32 {v(vHL)}, 5, {v(vHL)}"]
        fill += [None] * (2 * D - len(fill)) + self.cs_pack(CS, CSA) + self.cs_pack(CS + 4, CSA + 1)
        fill += [None] * (2 * js - len(fill)) + stat
        jc = (len(fill) + 1) // 2 + 1
        assert jc <= 31
        assert put_at[-1] < 16 - D
        self.bg_region(bgn[0], NX)
        for j in range(32):
            a.wait(vm=f"x{j}", lg=f"w{j}")
            if j == 16 - D:
                a.wait(lg="put")
                with self.only_if(f"s_cmp_eq_u32 {s(sSKIP)}, 0"):
                    a("s_barrier")
            if j == jc:
                a(f"v_mfma_f32_32x32x8_bf16 {v(AK, 16)}, {v(CSA, 2)}, {v(MB, 2)}, {v(AK, 16)}")
                a(f"v_mfma_f32_32x32x8_bf16 {v(AV, 16)}, {v(CSA, 2)}, {v(MB + 2, 2)}, {v(AV, 16)}")
            for p, acc in ((0, AK), (1, AV)):
                c = v(acc, 16) if j else "0"
                a(f"v_mfma_f32_32x32x16_bf16 {v(acc, 16)}, {v(RG + (j % D) * 8 + 4 * p, 4)}, {v(XF + 4 * j, 4)}, {c}")
                if p == 0:
                    if j + NX < 32:
                        ldx(j + NX)
                    elif l == 0 and j + NX == 32:
                        a(f"buffer_load_dword {v(vHL + 1)}, {v(vHL)}, {s(sWS, 4)}, {s(sHEL)} offen sc1", vm="hl")
                    if j + NX >= 32:
                        self.bg_tick()
                    for k in range(8):
                        if put_at[k] == j:
                            self.put_wkv(T, 8 + k, 9 + k)
                    if j & 1:
                        a(f"v_max3_u32 {v(vCK)}, {v(vCK)}, {v(XF + 4 * j - 4)}, {v(XF + 4 * j)}")
                    if j == 31:
                        a(f"v_cmp_eq_u32 vcc, -1, {v(vCK)}")
                if j + D < 32:
                    rd(j + D, p)
                if T == 1 and j == 29:
                    a(f"ds_read_b128 {v(PK + 8 + 4 * p, 4)}, {v(vKFR)} offset:{L_WPF - L_KVF + 528 * p}", lg="wp")
                if fill:
                    f_ = fill.pop(0)
                    if f_:
                        a(f_)
        a(f"s_cbranch_vccnz L_xfail{l}")
        self.ts(f"{l}:kvgemm")
        self.dump("kv", l, list(range(AK, AK + 32)) + [vS, vRS, vM], RG)
        if l == 0:
            assert bgn[0] == 0
            old = self.bg[0]

            def hello():
                a.wait(vm="hl")
                a(f"v_cmp_ne_u32 vcc, {s(sTAG)}, {v(vHL + 1)}")
                a("s_cbranch_vccnz L_hello")
                a.label("L_hello_ok")
                with self.outofline():
                    a.label("L_hello")
                    self.poll(vHL, sHEL, vHL + 1)
                    a("s_branch L_hello_ok")
                old()
            self.bg[0] = hello

        def v_path(e):
            for i in range(8):
                e(f"v_pk_mul_f32 {v(AV + 2 * i, 2)}, {v(AV + 2 * i, 2)}, {v(vS, 2)} op_sel:[0,1]")
            for i in range(8):
                e(f"v_cvt_pk_bf16_f32 {v(AV + i)}, {v(AV + 2 * i)}, {v(AV + 2 * i + 1)}")
            for i in range(2):
                a(f"ds_write_b128 {v(vSTW)}, {v(AV + 4 * i, 4)} offset:{0x4000 + 128 * i}")

        def stage(sg):
            for i in range(2):
                a(f"ds_write_b128 {v(vSTW)}, {v(PK + 8 * sg + 4 * i, 4)} offset:{sg * 8192 + 128 * i}")
        if T == 0:
            self.bg_region(bgn[1], 72 - cfg["hl_slot"])
            self.bg_slot = -cfg["hl_slot"] if l == 0 else 0
            self.phi_a(AK, LG)
            stage(0)
            v_path(self.ticker())
        else:
            self.bg_region(bgn[1], 125)
            self.logits()
            v_path(self.ticker())
            self.softmax2(RG, False, lambda: stage(0), lambda: stage(1))
        self.dump("pk", l, list(range(PK, PK + 16)) + list(range(AV, AV + 8)), RG)
        ONE, DK, DZ, PB = RG + 8, AV + 8, AV + 12, AV + 4
        for i in range(4):
            a(f"v_mov_b32 {v(ONE + i)}, 0x3f803f80")
        a.wait(lg=0)
        a("s_barrier")
        self.ts(f"{l}:bar2")
        with skip23():
            for st in range(4):
                for u in range(2):
                    a(f"ds_read_b64_tr_b16 {v(LG + 4 * st + 2 * u, 2)}, {v(vSTR)} offset:{st * 1024 + u * 512}", lg=f"pa{st}")
                for u in range(2):
                    a(f"ds_read_b64_tr_b16 {v(PK + 4 * st + 2 * u, 2)}, {v(vSTR2)} offset:{st * 1024 + u * 512}", lg=f"p{st}")
            for st in range(4):
                a.wait(lg=f"pa{st}")
                a(f"v_mfma_f32_16x16x32_bf16 {v(DZ, 4)}, {v(LG + 4 * st, 4)}, {v(ONE, 4)}, {v(DZ, 4) if st else 0}")
                a.wait(lg=f"p{st}")
                a(f"v_mfma_f32_16x16x32_bf16 {v(DK, 4)}, {v(LG + 4 * st, 4)}, {v(PK + 4 * st, 4)}, {v(DK, 4) if st else 0}")
            a("s_mov_b32 exec_lo, 0x10001")
            a("s_mov_b32 exec_hi, 0x10001")
            for i in range(4):
                a(f"v_min_u32 {v(DZ + i)}, -2, {v(DZ + i)}")
            a(f"buffer_store_dwordx4 {v(DZ, 4)}, {v(vZST)}, {s(sWS, 4)}, {s(sKVT)} offen sc1")
            a("s_mov_b64 exec, -1")
            for i in range(2):
                a(f"v_cvt_pk_bf16_f32 {v(PB + i)}, {v(DK + 2 * i)}, {v(DK + 2 * i + 1)}")
            for i in range(2):
                a(f"v_min_u32 {v(PB + 2 + i)}, -2, {v(PB + i)}")
                a(f"v_min_u32 {v(PB + i)}, -2, {v(PB + i)}")
            for i in range(2):
                a(f"v_permlane16_swap_b32 {v(PB + i)}, {v(PB + 2 + i)}")
            a(f"s_mov_b64 exec, {s(sROW, 2)}")
            a(f"buffer_store_dwordx4 {v(PB, 4)}, {v(vPST)}, {s(sWS, 4)}, {s(sKVT)} offen sc1")
            a("s_mov_b64 exec, -1")
        if cfg["jit"] and l < 3:
            with self.only_if(f"s_cmp_eq_u32 {s(sW)}, 3"):
                self.code_pf(f"L_layer{l + 1}", f"L_layer{l + 2}" if l < 2 else "L_end", AV + 8)
        self.ts(f"{l}:publish")
        if first:
            a.wait(vm="wq")
            self.cs_q(T)
            a.wait(lg=0)
            a("s_barrier")
        QA = LG
        CS, CSA, MB = LG + 4, LG + 8, LG + 10
        a(f"v_add_u32 {v(QA)}, {L_WQ[T]:#x}, {v(vWRD)}")
        D = 6

        def rq(j):
            for u in range(2):
                a(f"ds_read_b64_tr_b16 {v(RG + (j % D) * 4 + 2 * u, 2)}, {v(QA)} offset:{self.woff(j, u)}", lg=f"q{j}")

        PL, SEL, DR = 0, 36, 40

        def partial_load(i):
            a(f"s_add_u32 {s(sT1)}, {s(sKVT)}, {i * 65536}")
            a(f"buffer_load_dwordx4 {v(PL + 4 * i, 4)}, {v(vL16)}, {s(sWS, 4)}, {s(sT1)} offen sc1", vm="pl")
        for j in range(D):
            rq(j)
        a(f"ds_read_b128 {v(CS, 4)}, {v(vCSR)} offset:{T * 1536 + 1024}", lg="cs")
        fill = []
        if not last:
            N = 1 - T
            fill += [f"v_mov_b32 {v(AV)}, -1\nv_mov_b32 {v(AV + 1)}, -1", f"v_mov_b32 {v(AV + 2)}, -1\nv_mov_b32 {v(AV + 3)}, -1"]
            fill.append(lambda: self.moded([f"s_add_u32 {s(sT2)}, {s(sXST)}, {XB[N]}"] + [
                f"buffer_store_dwordx4 {v(AV, 4)}, {v(vXST)}, {s(XS[N], 4)}, {s(sT2)} offen offset:{i * 512}" for i in range(2)], tag="rst", wt=l == 0))
            fill.append(None)
            fill.append(lambda: self.moded([f"s_add_u32 {s(sT2)}, {s(sOST)}, {OB[N]}"] + [
                f"buffer_store_dwordx4 {v(AV, 4)}, {v(vOST)}, {s(sWS, 4)}, {s(sT2)} offen offset:{i * 256}" for i in range(2)], tag="rst", wt=l == 0))
            fill.append(None)
            fill.append(lambda: self.moded([f"s_add_u32 {s(sT2)}, {s(sSTST)}, {STATS[N]}", f"s_mov_b64 exec, {s(sROW, 2)}",
                f"buffer_store_dword {v(AV)}, {v(vSST)}, {s(sWS, 4)}, {s(sT2)} offen", "s_mov_b64 exec, -1"], tag="rst"))
        fill += [None] * (D - len(fill))
        fill += self.cs_pack(CS, CSA) + [f"v_mov_b32 {v(CSA + 1)}, 0", f"v_mov_b32 {v(MB)}, {v(vM)}", f"v_mov_b32 {v(MB + 1)}, 0"]
        jc = len(fill) + 1
        PS = cfg["pl_step"][l]
        assert PS >= 10
        self.bg_region(bgn[2], min(PS, 32))
        npl = 0
        for j in range(32):
            a.wait(lg=f"q{j}")
            if j == jc:
                a(f"v_mfma_f32_32x32x8_bf16 {v(AK, 16)}, {v(CSA, 2)}, {v(MB, 2)}, {v(AK, 16)}")
            a(f"v_mfma_f32_32x32x16_bf16 {v(AK, 16)}, {v(RG + (j % D) * 4, 4)}, {v(XF + 4 * j, 4)}, {v(AK, 16) if j else 0}")
            self.bg_tick()
            if j >= PS and npl < 9:
                if T == 1:
                    partial_load(npl); npl += 1
                elif (j - PS) % 3 == 0:
                    with skip23():
                        for _ in range(3):
                            partial_load(npl); npl += 1
            if j + D < 32:
                rq(j + D)
            if j == 27:
                self.sel_read(SEL)
            if T == 1 and j in (28, 29):
                a(f"ds_read_b128 {v(PK + 8 + 4 * (j - 28), 4)}, {v(vKFR)} offset:{L_WPF - L_KVF + 528 * (j - 28)}", lg="wp")
            if fill:
                f_ = fill.pop(0)
                if callable(f_):
                    f_()
                elif f_:
                    a(f_)
        def rest_pl():
            with skip23():
                for i in range(npl, 9):
                    partial_load(i)
        if npl < 9 and PS <= 32:
            rest_pl()
        self.ts(f"{l}:qgemm")
        self.dump("q", l, list(range(AK, AK + 16)), RG)
        EPS = RG + 6
        if first:
            if T == 0:
                n = len(a.vm) - 1 - max(i for i, t_ in enumerate(a.vm) if t_ == "wo")
                a(f"s_waitcnt vmcnt({n + 9})")
                with self.only_if(f"s_cmp_ge_u32 {s(sW)}, 2"):
                    a.wait(vm="wo")
            else:
                a.wait(vm="wo")
        nbg3 = min(bgn[3], len(self.bg))
        self.bg_region(bgn[3], 56 if T == 0 else 100)
        self.side = [(lambda i=i: self.put_wo(T, i)) for i in range(16)]
        self.side_every = cfg["wo_every"][T]
        if PS > 32:
            assert not nbg3 and not (first and T == 0)
            self.bg, self.bg_at = [rest_pl], [PS - 33]
        if T == 0:
            self.phi_a(AK, LG)
            a(f"v_mov_b32 {v(EPS)}, {f2u(1e-6):#x}")
        else:
            self.side.pop(0)()
            self.logits()
            self.side.pop(0)()
            self.side.pop(0)()
            self.softmax2(RG, True)
        while self.side:
            self.side.pop(0)()
        self.dump("pq", l, list(range(PK, PK + 16)), AV)
        self.ts(f"{l}:phiq")
        with skip23():
            a.wait(lg="sel")
            a(f"s_waitcnt vmcnt({nbg3})")
            a.label(f"L_chk{l}")
            m = 44
            chk = [f"v_max3_u32 {v(m)}, {v(PL)}, {v(PL + 1)}, {v(PL + 2)}"]
            chk += [f"v_max3_u32 {v(m)}, {v(m)}, {v(PL + i)}, {v(PL + i + 1)}" for i in range(3, 35, 2)]
            chk += [f"v_max_u32 {v(m)}, {v(m)}, {v(PL + 35)}"]
            for i in range(8):
                a(f"v_mfma_f32_16x16x32_bf16 {v(DR, 4)}, {v(SEL, 4)}, {v(PL + 4 * i, 4)}, {v(DR, 4) if i else 0}")
                a(chk.pop(0)); a(chk.pop(0))
            a(chk.pop(0)); a(chk.pop(0))
            a(f"v_cmp_eq_u32 vcc, -1, {v(m)}")
            Z = PL + 32
            a(f"v_permlane16_swap_b32 {v(Z)}, {v(Z + 1)}")
            a(f"v_permlane16_swap_b32 {v(Z + 2)}, {v(Z + 3)}")
            a(f"s_cbranch_vccnz L_again{l}")
            with self.outofline():
                a.label(f"L_again{l}")
                self.countdown()
                if cfg["ts"]:
                    a(f"s_add_u32 {s(sTSI)}, {s(sTSI)}, {1 << (8 * l)}")
                for i in range(9):
                    partial_load(i)
                a("s_waitcnt vmcnt(0)")
                a(f"s_branch L_chk{l}")
            a(f"v_add_f32 {v(Z)}, {v(Z)}, {v(Z + 1)}")
            a(f"v_add_f32 {v(Z + 2)}, {v(Z + 2)}, {v(Z + 3)}")
            for i in range(2):
                a(f"v_cvt_pk_bf16_f32 {v(DR + i)}, {v(DR + 2 * i)}, {v(DR + 2 * i + 1)}")
            a(f"v_permlane32_swap_b32 {v(Z)}, {v(Z + 2)}")
            a(f"v_add_f32 {v(Z)}, {v(Z)}, {v(Z + 2)}")
            a(f"ds_write_b64 {v(vKFW)}, {v(DR, 2)}")
            a(f"v_add_f32 {v(Z)}, {v(Z)}, {v(Z)} row_ror:4")
            a(f"v_add_f32 {v(Z)}, {v(Z)}, {v(Z)} row_ror:8")
            a(f"v_cvt_pk_bf16_f32 {v(Z)}, {v(Z)}, {v(Z)}")
            a(f"ds_write_b16 {v(vZW)}, {v(Z)}")
        a.wait(vm="rst")
        self.bg_now(bgn[4])
        a(f"s_add_u32 {s(sT2)}, {s(sOST)}, {OB[T]}")
        a.wait(lg=0)
        a("s_barrier")
        self.ts(f"{l}:bar3")
        KF, ZF, DEN, O = 0, 16, RG + 6, LG
        for j in range(NJ):
            a(f"ds_read_b128 {v(KF + 4 * j, 4)}, {v(vKFR)} offset:{528 * j}", lg=f"kf{j}")
            a(f"ds_read_b128 {v(ZF + 4 * j, 4)}, {v(vZR)} offset:{(j >> 1) * 64 + (j & 1) * 16}", lg=f"zf{j}")
        WR, DW = 64, 7
        WA = [vWOR, RG + 16, RG + 17, RG + 18]
        for t_ in range(1, 4):
            a(f"v_xor_b32 {v(WA[t_])}, {32 * t_}, {v(vWOR)}")
        for j in range(NJ):
            a.wait(lg=f"kf{j}")
            a(f"v_mfma_f32_32x32x16_bf16 {v(AV, 16)}, {v(KF + 4 * j, 4)}, {v(PK + 4 * j, 4)}, {v(AV, 16) if j else 0}")
            a.wait(lg=f"zf{j}")
            for d in range(4):
                a(f"v_dot2c_f32_bf16 {v(DEN)}, {v(ZF + 4 * j + d)}, {v(PK + 4 * j + d)}")

        def rw(i, t_):
            for u in range(2):
                a(f"ds_read_b64_tr_b16 {v(WR + (i % DW) * 16 + 4 * t_ + 2 * u, 2)}, {v(WA[t_])} offset:{t_ * 16384 + i * 1024 + u * 512}", lg=f"wo{i}_{t_}")
        a(f"v_lshlrev_b32 {v(vPA)}, 8, {v(vPOLL)}")
        a(f"v_rcp_f32 {v(DEN)}, {v(DEN)}")
        for h in range(2):
            for i in range(4 * h, 4 * h + 4):
                a(f"v_pk_mul_f32 {v(AV + 2 * i, 2)}, {v(AV + 2 * i, 2)}, {v(DEN, 2)} op_sel_hi:[1,0]")
            for i in range(4 * h, 4 * h + 4):
                a(f"v_cvt_pk_bf16_f32 {v(O + i)}, {v(AV + 2 * i)}, {v(AV + 2 * i + 1)}")
            a(f"v_min_u32 {v(O + 4 * h)}, -2, {v(O + 4 * h)}")
        self.moded([f"buffer_store_dwordx4 {v(O + 4 * i, 4)}, {v(vOST)}, {s(sWS, 4)}, {s(sT2)} offen offset:{256 * i}" for i in range(2)])
        self.dump("o", l, list(range(O, O + 8)), PK)
        self.ts(f"{l}:ostore")
        self.bg_now(bgn[5])
        assert not self.bg
        NO = cfg["no0"]
        XN = LG

        def ldo(i):
            if i % 4 == 0 and i:
                a(f"s_add_u32 {s(sT3)}, {s(sOLD)}, {OB[T] + i * 1024}")
            a(f"buffer_load_dwordx4 {v(4 * i, 4)}, {v(vL16)}, {s(sWS, 4)}, {s(sT3)} offen offset:{(i % 4) * 1024} sc1", vm=f"o{i}")
        a.label(f"L_ore{l}")
        a.lg.clear()
        a(f"s_add_u32 {s(sT3)}, {s(sOLD)}, {OB[T]}")
        a(f"v_mov_b32 {v(vCK)}, 0")
        rest = [(i, t_) for i in range(DW) for t_ in range(4)]
        for _ in range(cfg["opre"][0]):
            rw(*rest.pop(0))
        self.probe((sWS, 1008), vPR)
        for _ in range(cfg["opre"][1]):
            rw(*rest.pop(0))
        self.spin((sWS, 1008), f"o{l}")
        self.ts(f"{l}:opoll")
        per = -(-len(rest) // NO)
        for i in range(NO):
            ldo(i)
            for _ in range(min(per, len(rest))):
                rw(*rest.pop(0))
        with self.outofline():
            a.label(f"L_ofail{l}")
            self.countdown()
            if cfg["ts"]:
                a(f"s_add_u32 {s(sLAY)}, {s(sLAY)}, 0x10000")
            a(f"s_branch L_ore{l}")
        todo = [(i, t_) for i in range(DW, 16) for t_ in range(4)]
        done = 0
        for i in range(16):
            for t_ in range(4):
                a.wait(vm=f"o{i}", lg=f"wo{i}_{t_}")
                c = XN if i else XR
                a(f"v_mfma_f32_16x16x32_bf16 {v(XN + 4 * t_, 4)}, {v(WR + (i % DW) * 16 + 4 * t_, 4)}, {v(4 * i, 4)}, {v(c + 4 * t_, 4)}")
                if t_ == 0 and i + NO < 16:
                    ldo(i + NO)
                if t_ == 1 and i & 1:
                    a(f"v_max3_u32 {v(vCK)}, {v(vCK)}, {v(4 * i - 4)}, {v(4 * i)}")
                if t_ == 2 and i == 15:
                    a(f"v_cmp_eq_u32 vcc, -1, {v(vCK)}")
                if done < len(todo) and done * cfg["wo_spread"] <= 4 * i + t_:
                    rw(*todo[done]); done += 1
        assert done == len(todo)
        a(f"s_cbranch_vccnz L_ofail{l}")
        if last:
            self.ts(f"{l}:ogemm")
            return
        a("s_barrier")
        self.ts(f"{l}:ogemm")
        self.dump("x", l, list(range(XN, XN + 16)), PK)
        N = 1 - T
        steps = [(lambda t_=t_: a(t_)) for t_ in self.x_probe_addr()] + self.x_steps(N, XN, AK)
        steps += [(lambda i=i: a(f"v_mov_b64 {v(XR + 2 * i, 2)}, {v(XN + 2 * i, 2)}")) for i in range(8)]
        steps.append(lambda: a(f"s_add_u32 {s(sT3)}, {s(sXLD)}, {XB[N]}"))
        puts = list(range(8))
        if l == 0:
            self.sel_read(AV)
        for k, st in enumerate(steps):
            if puts and k % cfg["xput_every"] == 0:
                i = puts.pop(0)
                self.put_wkv(N, i, i + 1)
            st()
        assert not puts
        a(f"s_add_u32 {s(sKVT)}, {s(sKVT)}, {KVP[l + 1] - KVP[l]}")
        if l == 0:
            a.wait(lg="sel")
            for i in range(16):
                self.cs_kv_step(1, i, AV, AV + 4)
            self.cs_kv_fin(1, AV + 4, AV + 8)
        self.probe((XS[N], 3824), vPR)
        self.ts(f"{l}:xissue")

    def prologue(self):
        a, cfg = self.a, self.cfg
        a(f"s_cmp_ge_u32 {s(sID)}, 256")
        a("s_cbranch_scc1 L_end")
        self.ts("start")
        a(f"s_load_dwordx16 {s(4, 16)}, s[0:1], 0")
        a(f"s_load_dwordx4 {s(20, 4)}, s[0:1], 64")
        a(f"s_getpc_b64 {s(sSAVE, 2)}")
        a.label("L_pc")
        NCL = cfg["codepf"]
        a(f"s_bfe_u32 {s(sT0)}, {s(sID)}, {3 | (3 << 16)}")
        a(f"s_mul_i32 {s(sT0)}, {s(sT0)}, {NCL}")
        a(f"v_min_u32 v1, {NCL - 1}, v0")
        a(f"v_add_u32 v1, {s(sT0)}, v1")
        a(f"v_min_u32 v1, (L_codeend-L_pc)/128, v1")
        a("v_lshlrev_b32 v1, 7, v1")
        a(f"global_load_dword v2, v1, {s(sSAVE, 2)}")
        if cfg["ts"]:
            a(f"s_mov_b32 {s(sTSI)}, 0")
            a(f"s_mov_b32 {s(sLAY)}, 0")
            a(f"v_mov_b32 {v(vTS)}, 0")
            a(f"s_memrealtime s[78:79]")
        L = 3
        a(f"v_lshrrev_b32 v1, 6, v0")
        a(f"v_and_b32 {v(L)}, 63, v0")
        a(f"v_readfirstlane_b32 {s(sW)}, v1")
        a(f"v_lshlrev_b32 {v(vL16)}, 4, {v(L)}")
        a(f"s_bfe_u32 {s(sC)}, {s(sID)}, {3 | (4 << 16)}")
        a(f"s_lshr_b32 {s(sT0)}, {s(sID)}, 7")
        a(f"s_and_b32 {s(sR)}, {s(sID)}, 7")
        a(f"s_lshl1_add_u32 {s(sR)}, {s(sR)}, {s(sT0)}")
        sBP, sSUB, sCG, sB = 99, 100, 101, sCNT
        a(f"s_lshr_b32 {s(sT0)}, {s(sC)}, 3")
        a(f"s_lshr_b32 {s(sT3)}, {s(sW)}, 1")
        a(f"s_lshl1_add_u32 {s(sT0)}, {s(sT0)}, {s(sT3)}")
        a(f"s_lshl2_add_u32 {s(sBP)}, {s(sR)}, {s(sT0)}")
        a(f"s_lshl2_add_u32 {s(sB)}, {s(sR)}, {s(sW)}")
        a(f"s_and_b32 {s(sSUB)}, {s(sW)}, 1")
        a(f"s_and_b32 {s(sCG)}, {s(sC)}, 7")
        a(f"s_lshl1_add_u32 {s(sT0)}, {s(sBP)}, {s(sSUB)}")
        a(f"s_lshl_b32 {s(sOLD)}, {s(sT0)}, 14")
        a(f"s_lshl_b32 {s(sT0)}, {s(sCG)}, 7")
        a(f"s_add_u32 {s(sFIN)}, {s(sOLD)}, {s(sT0)}")
        a(f"s_lshl3_add_u32 {s(sT0)}, {s(sBP)}, {s(sCG)}")
        a(f"s_lshl4_add_u32 {s(sT0)}, {s(sT0)}, {s(sSUB)}")
        a(f"s_lshl_b32 {s(sXST)}, {s(sT0)}, 8")
        self.rowmajor_voff(4, 5)
        a(f"s_lshl_b32 {s(sXLD)}, {s(sB)}, 15")
        a(f"s_lshl_b32 {s(sT0)}, {s(sC)}, 10")
        a(f"s_add_u32 {s(sOST)}, {s(sXLD)}, {s(sT0)}")
        a(f"s_lshl_b32 {s(sSTLD)}, {s(sB)}, 11")
        a(f"s_lshl_b32 {s(sT0)}, {s(sB)}, 7")
        a(f"s_add_u32 {s(sFXP)}, {s(sT0)}, {FLAGX}")
        a(f"s_lshl_b32 {s(sT0)}, {s(sC)}, 7")
        a(f"s_add_u32 {s(sT0)}, {s(sT0)}, {s(sSTLD)}")
        a(f"s_add_u32 {s(sT0)}, {s(sT0)}, {STATS[0]}")
        a(f"v_lshl_add_u32 v48, {v(L)}, 17, {s(sT0)}")
        a(f"v_writelane_b32 v48, {s(sFXP)}, 2")
        a(f"v_lshrrev_b32 v6, 4, {v(L)}")
        a(f"v_lshlrev_b32 v6, 10, v6")
        a(f"v_lshl_add_u32 v6, {v(L)}, 7, v6")
        for r_ in (sTMP, sWS, sOUT, sSW[0], sSW[1], sSO[0], sSO[1]):
            a(f"s_mov_b32 {s(r_ + 3)}, 0x20000")
        a(f"s_mov_b32 {s(sWS + 2)}, {WS_SIZE:#x}")
        a(f"s_mov_b32 {s(sOUT + 2)}, 0x200000")
        a(f"s_mov_b32 {s(sTMP + 2)}, 0x200000")
        a(f"s_lshr_b32 {s(sT2)}, {s(sID)}, 3")
        a(f"s_lshl2_add_u32 {s(sT2)}, {s(sT2)}, {s(sW)}")
        a(f"s_mul_i32 {s(sT2)}, {s(sT2)}, {4 * 3072}")
        for T in range(2):
            a(f"s_mov_b32 {s(sSW[T] + 2)}, {512 * 3072}")
        a(f"s_mov_b32 {s(sSO[0] + 2)}, {512 * 3072}")
        a(f"s_mov_b32 {s(sSO[1] + 2)}, {512 * 1024}")
        a("s_waitcnt lgkmcnt(0)")
        self.ts("kernarg")
        a(f"s_mov_b64 {s(sTMP, 2)}, {s(sPX, 2)}")
        a(f"s_mov_b64 {s(sSW[0], 2)}, {s(sPWA, 2)}")
        for i in range(2):
            a(f"buffer_load_dwordx4 {v(8 + 4 * i, 4)}, v4, {s(sTMP, 4)}, {s(sFIN)} offen offset:{64 * i}", vm="x0")
        a(f"s_load_dword {s(sEP)}, {s(sPWS, 2)}, 0")
        a(f"s_mov_b64 {s(sWS, 2)}, {s(sPWS, 2)}")
        a(f"s_mov_b64 {s(sOUT, 2)}, {s(sPOUT, 2)}")

        def l2pf():
            a(f"buffer_load_dword v2, v6, {s(sSW[0], 4)}, {s(sT2)} offen offset:1024")
        if cfg["l2pf"] == 1:
            l2pf()
        a(f"s_mov_b64 exec, 7")
        a(f"buffer_load_dword v2, v48, {s(sWS, 4)}, 0 offen")
        a("s_mov_b64 exec, -1")
        self.srd_tmp(sPPHI, 16384)
        a(f"s_lshl_b32 {s(sT0)}, {s(sC)}, 10")
        a(f"buffer_load_dwordx4 v[16:19], {v(vL16)}, {s(sTMP, 4)}, {s(sT0)} offen", vm="phi")
        self.ts("p_issue")
        a(f"s_lshl_b32 {s(sT0)}, {s(sC)}, 6")
        a(f"s_and_b32 {s(sT1)}, {s(sR)}, 7")
        a(f"s_lshl3_add_u32 {s(sT1)}, {s(sW)}, {s(sT1)}")
        a(f"s_mul_i32 {s(sQOFF)}, {s(sT1)}, {16 * 3072}")
        a(f"s_add_u32 {s(sQOFF)}, {s(sQOFF)}, {s(sT0)}")
        a(f"s_mul_i32 {s(sWOFF)}, {s(sT3)}, {16 * 3072}")
        a(f"s_add_u32 {s(sWOFF)}, {s(sWOFF)}, {s(sT0)}")
        a(f"s_lshl_b32 {s(sT0)}, {s(sSUB)}, 10")
        a(f"s_add_u32 {s(sWOFF)}, {s(sWOFF)}, {s(sT0)}")
        a(f"s_add_u32 {s(sWOFF)}, {s(sWOFF)}, 1024")
        self.w_voff(5)
        a(f"v_lshrrev_b32 v7, 7, {v(vL16)}")
        a(f"v_mul_u32_u24 v7, {1024 - 128}, v7")
        a(f"v_add_u32 v7, v7, {v(vL16)}")

        def repack_loads():
            a(f"s_mov_b64 {s(sSW[1], 2)}, {s(sPWB, 2)}")
            a(f"s_cmp_lt_u32 {s(sR)}, 8")
            a(f"s_cselect_b64 {s(sSO[0], 2)}, {s(sPWA, 2)}, {s(sPWB, 2)}")
            a(f"s_cmp_lt_u32 {s(sC)}, 8")
            a(f"s_cselect_b64 {s(sSO[1], 2)}, {s(sPWOA, 2)}, {s(sPWOB, 2)}")
            a(f"buffer_load_dwordx4 v[52:55], v5, {s(sSO[0], 4)}, {s(sQOFF)} offen", vm="rp")
            a(f"s_lshl4_add_u32 {s(sT0)}, {s(sW)}, {s(sR)}")
            a(f"s_lshl_b32 {s(sT0)}, {s(sT0)}, 6")
            a(f"s_add_u32 {s(sT0)}, {s(sT0)}, {s(sCG)}")
            a(f"s_lshl_b32 {s(sT0)}, {s(sT0)}, 7")
            a(f"buffer_load_dwordx4 v[56:59], v7, {s(sSO[1], 4)}, {s(sT0)} offen", vm="rp")
            a(f"s_mul_i32 {s(sT0)}, {s(sR)}, {32 * 3072}")
            a(f"s_add_u32 {s(sT0)}, {s(sT0)}, {s(sWOFF)}")
            a(f"buffer_load_dwordx4 v[60:63], v5, {s(sSW[1], 4)}, {s(sT0)} offen", vm="rp")
        if cfg["rp_at"] == 0:
            repack_loads()
        if cfg["l2pf"] == 2:
            l2pf()
        self.ts("p_w0")
        a(f"s_getreg_b32 {s(sXCC)}, hwreg(HW_REG_XCC_ID, 0, 4)")
        a(f"s_lshl_b32 {s(sW13)}, {s(sW)}, 13")
        a(f"s_mov_b32 {s(sROW)}, 0xffff")
        a(f"s_mov_b32 {s(sROW + 1)}, 0xffff")
        a(f"s_mov_b32 {s(sCNT)}, 0x40000")
        a(f"s_lshl_b32 {s(sT0)}, {s(sBP)}, 7")
        a(f"s_lshl1_add_u32 {s(sT1)}, {s(sCG)}, {s(sSUB)}")
        a(f"s_lshl2_add_u32 {s(sFXS)}, {s(sT1)}, {s(sT0)}")
        a(f"s_add_u32 {s(sFXS)}, {s(sFXS)}, {FLAGX}")
        a(f"s_lshr_b32 {s(sT0)}, {s(sCG)}, 2")
        a(f"s_lshl2_add_u32 {s(sT0)}, {s(sBP)}, {s(sT0)}")
        a(f"s_lshl1_add_u32 {s(sT0)}, {s(sT0)}, {s(sSUB)}")
        a(f"s_lshl_b32 {s(sT0)}, {s(sT0)}, 8")
        a(f"s_and_b32 {s(sT1)}, {s(sCG)}, 3")
        a(f"s_lshl2_add_u32 {s(sSTST)}, {s(sT1)}, {s(sT0)}")
        a(f"s_lshl4_add_u32 {s(sT0)}, {s(sW)}, {s(sC)}")
        a(f"s_lshl_b32 {s(sKVT)}, {s(sT0)}, 10")
        a(f"s_add_u32 {s(sKVT)}, {s(sKVT)}, {KVP[0]}")
        a(f"s_lshl_b32 {s(sHEL)}, {s(sT0)}, 11")
        a(f"s_add_u32 {s(sHEL)}, {s(sHEL)}, {HELLO}")
        a(f"s_lshl2_add_u32 {s(sPK)}, {s(sC)}, {s(sW)}")
        a(f"s_lshl_b32 {s(sPK)}, {s(sPK)}, 10")
        a(f"s_and_b32 {s(sOOFF)}, {s(sPK)}, 0x7fff")
        a(f"s_mov_b32 {s(sLN2)}, {LN2:#x}")
        a(f"s_mov_b32 {s(sLN2b)}, {LN2:#x}")
        a(f"s_mov_b32 {s(sDELTA)}, {DELTA:#x}")
        a(f"s_mov_b32 {s(sHI)}, 0")
        a(f"s_mov_b32 {s(sHI + 1)}, -1")
        a(f"s_mov_b32 {s(sMODE)}, 0")
        a(f"s_lshl_b32 {s(sANN)}, {s(sR)}, 7")
        a(f"s_add_u32 {s(sANN)}, {s(sANN)}, {ANN}")
        a(f"s_lshl4_add_u32 {s(sGW)}, {s(sR)}, {s(sC)}")
        a(f"s_lshl2_add_u32 {s(sGW)}, {s(sGW)}, {s(sW)}")
        self.ts("p_scal")
        i16, g, half, q, jj, t0, t1 = 20, 21, 22, 23, 24, 25, 26
        a(f"v_and_b32 {v(i16)}, 15, {v(L)}")
        a(f"v_lshrrev_b32 {v(g)}, 4, {v(L)}")
        a(f"v_lshrrev_b32 {v(half)}, 5, {v(L)}")
        a(f"v_and_b32 {v(q)}, 3, {v(L)}")
        a(f"v_bfe_u32 {v(jj)}, {v(L)}, 2, 2")
        a(f"v_lshlrev_b32 {v(vPOLL)}, 2, {v(i16)}")
        a(f"v_lshlrev_b32 {v(t0)}, 4, {v(i16)}")
        a(f"v_lshl_add_u32 {v(vXST)}, {v(g)}, 10, {v(t0)}")
        a(f"v_lshl_add_u32 {v(vSST)}, {v(half)}, 10, {v(t0)}")
        a(f"v_lshl_add_u32 {v(vSLD)}, {v(half)}, 9, {v(vL16)}")
        a(f"s_lshr_b32 {s(sT0)}, {s(sR)}, 1")
        a(f"s_lshl_b32 {s(sT0)}, {s(sT0)}, 7")
        a(f"s_and_b32 {s(sT1)}, {s(sR)}, 1")
        a(f"s_add_u32 {s(sT0)}, {s(sT0)}, {s(sT1)}")
        a(f"s_lshl_b32 {s(sT0)}, {s(sT0)}, 9")
        a(f"v_lshl_add_u32 {v(vPST)}, {v(half)}, 8, {v(t0)}")
        a(f"v_add_u32 {v(vPST)}, {s(sT0)}, {v(vPST)}")
        a(f"s_lshl_b32 {s(sT1)}, {s(sR)}, 6")
        a(f"s_add_u32 {s(sT1)}, {s(sT1)}, {8 * 65536}")
        a(f"v_lshl_add_u32 {v(vZST)}, {v(g)}, 4, {s(sT1)}")
        a(f"v_add_u32 v49, {s(sT0)}, {v(vL16)}")
        a(f"v_lshl_add_u32 v27, {v(q)}, 4, {s(sT1)}")
        a(f"v_cndmask_b32 v49, v49, v27, {s(sHI, 2)}")
        for i in range(4):
            a(f"v_mov_b32 {v(28 + i)}, -1")
        a(f"v_and_b32 {v(t1)}, 1, {v(g)}")
        a(f"v_lshl_add_u32 {v(vOST)}, {v(t1)}, 14, {v(t0)}")
        a(f"v_lshl_add_u32 {v(vOST)}, {v(half)}, 9, {v(vOST)}")
        a(f"v_lshlrev_b32 {v(vWRD)}, 11, {v(half)}")
        a(f"v_lshl_add_u32 {v(vWRD)}, {v(jj)}, 6, {v(vWRD)}")
        a(f"v_lshl_add_u32 {v(vWRD)}, {v(t1)}, 4, {v(vWRD)}")
        a(f"v_and_b32 v27, 1, {v(q)}")
        a(f"v_lshrrev_b32 v32, 1, {v(q)}")
        a(f"v_lshl_add_u32 {v(vWRD)}, v27, 5, {v(vWRD)}")
        a(f"v_lshl_add_u32 {v(vWRD)}, v32, 3, {v(vWRD)}")
        a(f"v_lshlrev_b32 {v(vSTR)}, 8, {v(half)}")
        a(f"v_lshl_add_u32 {v(vSTR)}, v32, 7, {v(vSTR)}")
        a(f"v_lshl_add_u32 {v(vSTR)}, {v(t1)}, 6, {v(vSTR)}")
        a(f"v_lshl_add_u32 {v(vSTR)}, {v(jj)}, 4, {v(vSTR)}")
        a(f"v_lshl_add_u32 {v(vSTR)}, v27, 3, {v(vSTR)}")
        a(f"s_lshl_b32 {s(sT0)}, {s(sSUB)}, 12")
        a(f"s_add_u32 {s(sT0)}, {s(sT0)}, {L_STG + 0x4000}")
        a(f"v_add_u32 {v(vSTR2)}, {s(sT0)}, {v(vSTR)}")
        a(f"s_lshl_b32 {s(sT0)}, {s(sW)}, 12")
        a(f"s_add_u32 {s(sT0)}, {s(sT0)}, {L_STG}")
        a(f"v_add_u32 {v(vSTR)}, {s(sT0)}, {v(vSTR)}")
        a(f"v_bfe_u32 v33, {v(L)}, 3, 2")
        a(f"v_and_b32 {v(vSTW)}, 0x70, {v(vL16)}")
        a(f"v_lshl_add_u32 {v(vSTW)}, v33, 8, {v(vSTW)}")
        a(f"v_lshl_add_u32 {v(vSTW)}, {v(half)}, 12, {v(vSTW)}")
        a(f"s_lshl_b32 {s(sT0)}, {s(sW)}, 10")
        a(f"s_add_u32 {s(sT0)}, {s(sT0)}, {L_STG}")
        a(f"v_add_u32 {v(vSTW)}, {s(sT0)}, {v(vSTW)}")
        a(f"v_bfe_u32 v34, {v(L)}, 1, 2")
        a(f"v_xor_b32 v33, v33, v34")
        a(f"v_lshlrev_b32 {v(vWOW)}, 14, v34")
        a(f"v_lshl_add_u32 {v(vWOW)}, v33, 5, {v(vWOW)}")
        a(f"v_lshl_add_u32 {v(vWOW)}, {v(half)}, 9, {v(vWOW)}")
        a(f"v_lshl_add_u32 {v(vWOW)}, v27, 4, {v(vWOW)}")
        a(f"s_lshl_b32 {s(sT0)}, {s(sW)}, 12")
        a(f"v_add_u32 {v(vWOW)}, {s(sT0)}, {v(vWOW)}")
        a(f"v_lshlrev_b32 {v(vWOR)}, 3, {v(L)}")
        a(f"s_lshl_b32 {s(sT0)}, {s(sSUB)}, 15")
        a(f"s_and_b32 {s(sT1)}, {s(sW)}, 2")
        a(f"s_lshl_b32 {s(sT2)}, {s(sT1)}, 9")
        a(f"s_add_u32 {s(sT0)}, {s(sT0)}, {s(sT2)}")
        a(f"v_add_u32 {v(vWKW)}, {s(sT0)}, {v(vL16)}")
        a(f"v_and_b32 v33, 0x1f0, {v(vL16)}")
        a(f"v_add_u32 {v(vCSR)}, {L_CSP:#x}, v33")
        a(f"v_and_b32 v34, 1, {v(jj)}")
        a(f"v_cmp_eq_u32 vcc, v34, {v(half)}")
        a(f"v_mov_b32 v35, 512")
        a(f"v_cndmask_b32 {v(vKFR)}, v35, v33, vcc")
        a(f"v_add_u32 {v(vKFR)}, {L_KVF:#x}, {v(vKFR)}")
        a(f"s_mul_i32 {s(sT0)}, {s(sT1)}, 528")
        a(f"s_lshl_b32 {s(sT2)}, {s(sSUB)}, 6")
        a(f"s_add_u32 {s(sT0)}, {s(sT0)}, {s(sT2)}")
        a(f"s_add_u32 {s(sT0)}, {s(sT0)}, {L_KVF}")
        a(f"v_mul_u32_u24 {v(vKFW)}, 528, {v(half)}")
        a(f"v_lshl_add_u32 {v(vKFW)}, {v(q)}, 4, {v(vKFW)}")
        a(f"v_lshl_add_u32 {v(vKFW)}, {v(jj)}, 7, {v(vKFW)}")
        a(f"v_lshl_add_u32 {v(vKFW)}, {v(t1)}, 3, {v(vKFW)}")
        a(f"v_add_u32 {v(vKFW)}, {s(sT0)}, {v(vKFW)}")
        a(f"s_lshl_b32 {s(sT0)}, {s(sW)}, 5")
        a(f"s_add_u32 {s(sT0)}, {s(sT0)}, {L_ZB}")
        a(f"v_lshl_add_u32 {v(vZW)}, {v(q)}, 2, {v(g)}")
        a(f"v_lshl_add_u32 {v(vZW)}, {v(vZW)}, 1, {s(sT0)}")
        a(f"v_mov_b32 v35, {L_ZB:#x}")
        a(f"v_lshl_add_u32 {v(vZR)}, {v(half)}, 5, v35")
        a(f"v_mov_b32 v36, 0x3f80")
        a(f"v_lshlrev_b32 v37, 4, v27")
        a(f"v_lshlrev_b32 v36, v37, v36")
        a(f"v_lshrrev_b32 v37, 1, {v(i16)}")
        a(f"v_lshlrev_b32 v38, 2, {v(t1)}")
        a(f"v_sub_u32 v37, v37, v38")
        for d in range(4):
            a(f"v_cmp_eq_u32 vcc, {d}, v37")
            a(f"v_cndmask_b32 {v(40 + d)}, 0, v36, vcc")
        a(f"v_add_u32 v33, {L_SEL:#x}, v33")
        a(f"ds_write_b128 v33, v[40:43]")
        for i in range(4):
            a(f"v_mov_b32 {v(44 + i)}, 0")
        a(f"v_min_u32 v33, 5, {v(L)}")
        a(f"v_mul_u32_u24 v33, 528, v33")
        a(f"v_add_u32 v33, {L_KVF + 512:#x}, v33")
        a(f"ds_write_b128 v33, v[44:47]")
        self.ts("p_lane")
        a.wait(vm="x0")
        self.ts("x0")
        for i in range(2):
            for d in range(2):
                a(f"v_permlane16_swap_b32 {v(8 + 4 * i + d)}, {v(8 + 4 * i + 2 + d)}")
        for i in range(8):
            a(f"v_lshlrev_b32 {v(XR + 2 * i)}, 16, {v(8 + i)}")
            a(f"v_and_b32 {v(XR + 2 * i + 1)}, 0xffff0000, {v(8 + i)}")
        for st in self.x_steps(0, XR, AK, wt=True):
            st()
        a(f"s_add_u32 {s(sT2)}, {s(sOST)}, {OB[0]}")
        for i in range(2):
            a(f"buffer_store_dwordx4 v[28:31], {v(vOST)}, {s(sWS, 4)}, {s(sT2)} offen offset:{256 * i} sc1", vm="xst")
        if cfg["rp_at"] == 1:
            repack_loads()
        self.ts("p_xpub")
        for i in range(cfg["n1"]):
            self.ld_wkv(0, i, 5)
        self.ts("p_w1")
        a(f"s_lshl_b32 {s(sT0)}, {s(sW)}, 10")
        a(f"s_add_u32 {s(sT0)}, {s(sT0)}, {L_STG}")
        a(f"v_add_u32 v33, {s(sT0)}, {v(vL16)}")
        a.wait(vm="phi")
        a(f"ds_write_b128 v33, v[16:19]")
        a(f"v_lshlrev_b32 v33, 9, v27")
        a(f"v_lshl_add_u32 v33, {v(half)}, 8, v33")
        a(f"v_lshl_add_u32 v33, {v(jj)}, 5, v33")
        a(f"v_lshl_add_u32 v33, {v(t1)}, 4, v33")
        a(f"v_lshl_add_u32 v33, v32, 3, v33")
        a(f"v_add_u32 v33, {s(sT0)}, v33")
        a("s_waitcnt lgkmcnt(0)")
        a(f"ds_read_b64_tr_b16 v[16:17], v33")
        a(f"ds_read_b64_tr_b16 v[18:19], v33 offset:128")
        a(f"v_lshl_add_u32 v33, {v(half)}, 4, {v(vL16)}")
        a(f"v_add_u32 v33, {L_WPF:#x}, v33")
        a(f"s_mul_i32 {s(sTAG)}, {s(sEP)}, 0x9e3779b1")
        a(f"s_add_u32 {s(sTAG)}, {s(sTAG)}, 0x7f4a7c15")
        a(f"s_and_b32 {s(sTAG)}, {s(sTAG)}, 0xffffff00")
        a(f"s_or_b32 {s(sT1)}, {s(sTAG)}, 0xf0")
        a(f"s_or_b32 {s(sXCC)}, {s(sTAG)}, {s(sXCC)}")
        a(f"v_mov_b32 v34, {s(sXCC)}")
        a(f"v_mov_b32 v35, {s(sT1)}")
        a("s_waitcnt lgkmcnt(0)")
        a.lg.clear()
        a(f"ds_write_b128 v33, v[16:19]")
        self.ts("p_phi")
        a.wait(vm="xst")
        a("s_mov_b64 exec, 1")
        a(f"buffer_store_dword v34, off, {s(sWS, 4)}, {s(sFXS)}")
        with self.only_if(f"s_cmp_eq_u32 {s(sW)}, 0"):
            a(f"s_lshl2_add_u32 {s(sT0)}, {s(sC)}, {s(sANN)}")
            a(f"buffer_store_dword v34, off, {s(sWS, 4)}, {s(sT0)} sc1")
        self.ts("flag0")
        a("s_mov_b32 exec_lo, -1")
        a("s_mov_b32 exec_hi, 15")
        with self.only_if(f"s_cmp_lt_u32 {s(sW)}, 2"):
            for l in (0, 2):
                a(f"s_add_u32 {s(sT0)}, {s(sKVT)}, {KVP[l] - KVP[0]}")
                a(f"buffer_store_dwordx4 v[28:31], v49, {s(sWS, 4)}, {s(sT0)} offen sc1")
        for l in (1, 3):
            a(f"s_add_u32 {s(sT0)}, {s(sKVT)}, {KVP[l] - KVP[0]}")
            a(f"buffer_store_dwordx4 v[28:31], v49, {s(sWS, 4)}, {s(sT0)} offen sc1", vm="pre")
        a("s_mov_b32 exec_hi, -1")
        a(f"s_lshl_b32 {s(sT1)}, {s(sR)}, 16")
        a(f"s_add_u32 {s(sT1)}, {s(sT1)}, {s(sPK)}")
        a.wait(vm="rp")
        for i, base in enumerate((PQ, PO, PKV)):
            a(f"s_add_u32 {s(sT0)}, {s(sT1)}, {base}")
            a(f"buffer_store_dwordx4 {v(52 + 4 * i, 4)}, {v(vL16)}, {s(sWS, 4)}, {s(sT0)} offen sc1", vm="pre")
        self.ts("p_prefill")
        a(f"v_lshrrev_b32 v37, 2, {v(vL16)}")
        a(f"v_and_b32 v33, 0x100, {v(vL16)}")
        a(f"v_add_u32 v33, v33, {v(vPOLL)}")
        a(f"s_and_b32 {s(sT2)}, {s(sFXP)}, 0xfffffeff")
        for t_ in self.x_probe_addr():
            a(t_)
        nxt = cfg["n1"]
        for i in range(16):
            while nxt < min(16, i + cfg["nw"]):
                self.ld_wkv(0, nxt, 5)
                nxt += 1
                if nxt == 16:
                    a(f"buffer_load_dword v34, v33, {s(sWS, 4)}, {s(sT2)} offen sc1", vm="f0")
            if i == cfg["n1"]:
                a.wait(vm="pre")
                a("s_mov_b32 exec_hi, 0")
                a(f"s_lshl_b32 {s(sT0)}, {s(sR)}, 7")
                a(f"s_add_u32 {s(sT0)}, {s(sT0)}, {s(sHEL)}")
                a(f"buffer_store_dword v35, v37, {s(sWS, 4)}, {s(sT0)} offen sc1")
                a("s_mov_b32 exec_hi, -1")
                a(f"s_and_b32 {s(sHEL)}, {s(sHEL)}, 0xffffbfff")
            a.wait(vm=f"wkv{i}")
            if i < 8:
                self.put_wkv(0, i, i + 1)
            self.cs_kv_step(0, i, 40, 44)
        self.cs_kv_fin(0, 44, 50)
        self.ts("wkv0")
        a.wait(vm="f0")
        a(f"v_cmp_ne_u32 vcc, {s(sXCC)}, v34")
        a("s_branch L_global" if cfg["force_global"] else "s_cbranch_vccnz L_poll0")
        a.label("L_enter")
        a(f"s_or_b32 {s(sTAG)}, {s(sTAG)}, 0xf0")
        with self.outofline():
            a.label("L_poll0")
            a(f"buffer_load_dword v34, v33, {s(sWS, 4)}, {s(sT2)} offen sc1")
            self.countdown()
            a("s_waitcnt vmcnt(0)")
            a(f"v_cmp_ne_u32 vcc, {s(sXCC)}, v34")
            a("s_cbranch_vccz L_enter")
            a(f"s_and_b32 {s(sT1)}, {s(sCNT)}, 15")
            a("s_cbranch_scc1 L_poll0")
            a(f"buffer_load_dword v34, {v(vPOLL)}, {s(sWS, 4)}, {s(sANN)} offen sc1")
            a("s_waitcnt vmcnt(0)")
            a(f"v_xor_b32 v34, {s(sXCC)}, v34")
            a(f"v_add_u32 v34, -1, v34")
            a(f"v_cmp_gt_u32 vcc, 15, v34")
            a("s_cbranch_vccz L_poll0")
            a.label("L_global")
            a(f"s_mov_b32 {s(sMODE)}, 1")
            a(f"s_add_u32 {s(sFXS)}, {s(sFXS)}, {FLAGX2 - FLAGX}")
            a(f"s_add_u32 {s(sFXP)}, {s(sT2)}, {FLAGX2 - FLAGX}")
            for r_ in (sSTST, sSTLD):
                a(f"s_add_u32 {s(r_)}, {s(r_)}, {STATS_G}")
            for st in self.x_steps(0, XR, AK, wt=True):
                st()
            self.flag(sFXS, 16)
            self.poll(33, sFXP, 34)
            a("s_branch L_enter")
        self.ts("poll0")
        a(f"s_add_u32 {s(sT3)}, {s(sXLD)}, {XB[0]}")

    def rowmajor_voff(self, d, t):
        a = self.a
        a(f"v_and_b32 {v(d)}, 0xf0, {v(vL16)}")
        a(f"v_lshlrev_b32 {v(d)}, 6, {v(d)}")
        a(f"v_bfe_u32 {v(t)}, {v(vL16)}, 8, 1")
        a(f"v_lshl_add_u32 {v(d)}, {v(t)}, 5, {v(d)}")
        a(f"v_lshrrev_b32 {v(t)}, 9, {v(vL16)}")
        a(f"v_lshl_add_u32 {v(d)}, {v(t)}, 4, {v(d)}")

    def final(self):
        a = self.a
        X = AK
        self.rowmajor_voff(PK, PK + 1)
        for i in range(8):
            a(f"v_cvt_pk_bf16_f32 {v(X + i)}, {v(LG + 2 * i)}, {v(LG + 2 * i + 1)}")
        for i in range(2):
            for d in range(2):
                a(f"v_permlane16_swap_b32 {v(X + 4 * i + d)}, {v(X + 4 * i + 2 + d)}")
        for i in range(2):
            a(f"buffer_store_dwordx4 {v(X + 4 * i, 4)}, {v(PK)}, {s(sOUT, 4)}, {s(sFIN)} offen offset:{64 * i}{self.cfg['finflag']}")
        with self.only_if(f"s_cmp_eq_u32 {s(sGW)}, 0"):
            a(f"s_add_u32 {s(sEP)}, {s(sEP)}, 1")
            a(f"v_mov_b32 v0, {s(sEP)}")
            a("s_mov_b64 exec, 1")
            a(f"buffer_store_dword v0, off, {s(sWS, 4)}, 0 sc1")
            a("s_mov_b64 exec, -1")
        if self.cfg["amp"]:
            amp = self.cfg["amp"]
            self.ts("end")
            a("s_sub_u32 s72, s78, s72")
            a(f"s_mul_i32 s72, s72, {amp[2]}")
            if amp[3]:
                a("s_lshr_b32 s72, s72, 5")
            a("s_min_u32 s72, s72, 100000")
            a("s_memrealtime s[78:79]")
            a("s_waitcnt lgkmcnt(0)")
            a("s_mov_b32 s73, s78")
            a.label("L_amp")
            a("s_memrealtime s[78:79]")
            a("s_waitcnt lgkmcnt(0)")
            a("s_sub_u32 s78, s78, s73")
            a("s_cmp_lt_u32 s78, s72")
            a("s_cbranch_scc1 L_amp")
        if self.cfg["ts"]:
            a("s_waitcnt vmcnt(0)")
            self.ts("end")
            a("s_memrealtime s[72:73]")
            a("s_waitcnt lgkmcnt(0)")
            a(f"v_writelane_b32 {v(vTS)}, {s(sLAY)}, 58")
            a(f"v_writelane_b32 {v(vTS)}, {s(sTSI)}, 59")
            a(f"v_writelane_b32 {v(vTS)}, {s(sCNT)}, 60")
            a(f"v_writelane_b32 {v(vTS)}, s78, 61")
            a(f"v_writelane_b32 {v(vTS)}, s72, 62")
            a(f"v_writelane_b32 {v(vTS)}, {s(sMODE)}, 63")
            a(f"s_lshl_b32 {s(sT0)}, {s(sGW)}, 8")
            a(f"s_add_u32 {s(sT0)}, {s(sT0)}, {DBG + 0x2000000}")
            a(f"v_lshrrev_b32 v0, 2, {v(vL16)}")
            a(f"buffer_store_dword {v(vTS)}, v0, {s(sWS, 4)}, {s(sT0)} offen")
        a.label("L_timeout")
        a.label("L_end")
        a("s_endpgm")

    def build(self):
        a = self.a
        self.prologue()
        for l in range(4):
            self.layer(l)
        self.final()
        a.raw(self.tail)
        a.label("L_codeend")
        a("s_endpgm")
        nops = a.pad_hazards()
        head = open(f"cdna_kernels/{NAME}.s.ref").read().split("; Override launch")[0]
        out = head + f"; @launch grid=(256,1,1) block=(256,1,1) lds={LDS_SIZE}\n"
        out += f""".amdgcn_target "amdgcn-amd-amdhsa--gfx950"
.text
.globl {NAME}_kernel
.p2align 8
.type {NAME}_kernel,@function
{NAME}_kernel:
"""
        out += a.text()
        out += f""".section .rodata,"a"
.p2align 6
.amdhsa_kernel {NAME}_kernel
  .amdhsa_next_free_vgpr 512
  .amdhsa_next_free_sgpr 102
  .amdhsa_accum_offset 256
  .amdhsa_group_segment_fixed_size 0
  .amdhsa_kernarg_size 80
  .amdhsa_user_sgpr_count 2
  .amdhsa_user_sgpr_kernarg_segment_ptr 1
  .amdhsa_system_sgpr_workgroup_id_x 1
.end_amdhsa_kernel
"""
        self.nops = nops
        return out


if __name__ == "__main__":
    import ast
    kw = {}
    out = sys.argv[1]
    for x in sys.argv[2:]:
        k, val = x.split("=", 1)
        kw[k] = ast.literal_eval(val)
    g = Gen(**kw)
    txt = g.build()
    open(out, "w").write(txt)
    print(f"wrote {out}: {len(g.a.ins)} lines, {g.nops} pad states", file=sys.stderr)
```

```python
import sys
import contextlib
from asmlib import Asm, Ins

NAME = "interleave_layers__linear_attn_block__linear_kernel_hedgehog__prompt"

CFG = dict(
    ts=0,
    dump=None,
    n0=0, nw=6, codepf=24,
    n1=4,
    bg0=(10, 14, 8, 0, 0, 8),
    bg1=(14, 10, 0, 0, 0, 0),
    bgg=2,
    pl_step=22,
    nx0=8, no0=8,
    mallpf=2, wo_every=(8, 10),
    l2pf=1, rp_at=0, hl_at=16, rt=0, xdirty=0, finflag='', lastowt=0, owt=1, stflag='',
    force_global=0,
    stop=None,
    amp=None,
)

FLAGX, FLAGO, HELLO, FLAGX2, ANN, STATS, STATS2 = 0x1000, 0x3000, 0x60000, 0x7000, 0x9000, 0x10000, 0x30000
KVP = [0x700000 + 0x90000 * l for l in range(4)]
OBUF = 0x200000
PKV, PQ, PO = 0x400000, 0x500000, 0x600000
DBG = 0xA00000
WS_SIZE = 0x8000000
L_P, L_WQ, L_STG = 0x0, [0x10000, 0x18000], 0x20000
L_KVF = 0x26000
L_WPF = L_KVF + 4 * 528
L_ZB = L_WPF + 2 * 528
L_CSP = 0x26D00
L_SEL = 0x27900
LDS_SIZE = 0x28000
XF, AK, AV, RG, LG, XR, PK = 0, 128, 144, 160, 192, 208, 224
vSTR, vSTR2, vPST, vZST, vKFW, vZW, vZR, vOST = range(184, 192)
vL16, vWRD, vSTW, vKFR, vS, vRS, vM, vXST, vSST, vSLD, vPOLL, vWOR, vWOW, vWKW, vCSR, vTS = range(240, 256)
A_WKV, A_WO = [0, 64], [128, 192]
sID = 2
sPX, sPWA, sPWOA, sPBX, sPWB, sPPHI, sPWOB, sPOUT, sPDBG, sPWS = range(4, 24, 2)
sWS, sOUT, sTMP = 24, 28, 32
(sW, sC, sR, sXLD, sSTLD, sFXP, sOST, sFOS, sOLD, sFOP, sXST, sSTST, sFXS, sKVT, sTAG, sMODE, sPASS,
 sEP, sXCC, sT0, sT1, sT2, sT3, sCNT, sWOFF, sQOFF, sOOFF, sHEL, sLN2, sLN2b, sDELTA, sFIN) = range(36, 68)
sHI = 68
sSAVE = 70
sTSA = 72
sTSI = 74
sGW = 75
sLAY = 76
sANN = 77
sW13 = 98
sMODEO = 3
sPK = 0
sPM = 96
sSW, sSO = [80, 84], [88, 92]
vBW, vBO, vHL = RG + 20, RG + 21, RG + 22
assert sLN2 % 2 == 0

LOG2E = 0x3FB8AA3B
LN2 = 0x3F317218
DELTA = 0x35C1A4C3
import struct
def f2u(x): return struct.unpack("<I", struct.pack("<f", x))[0]
DELTA = f2u(1e-6 * 1.4426950408889634)


def v(a, n=1): return f"v{a}" if n == 1 else f"v[{a}:{a + n - 1}]"
def ar(a, n=1): return f"a{a}" if n == 1 else f"a[{a}:{a + n - 1}]"
def s(a, n=1): return f"s{a}" if n == 1 else f"s[{a}:{a + n - 1}]"


class Gen:
    def __init__(self, **kw):
        self.cfg = dict(CFG)
        self.cfg.update(kw)
        self.a = Asm()
        self.tail = []
        self.nts = 0
        self.tsnames = []
        self.side = []
        self.side_every = 1

    @contextlib.contextmanager
    def uncounted(self, first=False):
        a = self.a
        vm, lg, c1 = list(a.vm), list(a.lg), a.count1
        a.count1 = c1 and first
        yield
        a.vm, a.lg, a.count1 = vm, lg, c1

    @contextlib.contextmanager
    def only_if(self, cmp, first=False):
        a = self.a
        l = a.newlabel("skip")
        a(cmp)
        a(f"s_cbranch_scc0 {l}")
        with self.uncounted(first):
            yield
        a.label(l)

    def pass1(self):
        return self.only_if(f"s_cmp_eq_u32 {s(sPASS)}, 0", True)

    def bg_region(self, n, slots):
        self.bg_left = min(n, len(self.bg))
        groups = -(-self.bg_left // self.cfg["bgg"])
        self.bg_slot = 0
        self.bg_at = {(k * slots) // groups for k in range(groups)} if groups else set()
        assert len(self.bg_at) == groups
        if groups:
            self.a(f"s_mov_b64 vcc, {s(sPM, 2)}")

    def bg_tick(self):
        a = self.a
        if self.bg_slot in self.bg_at:
            l = a.newlabel("bg")
            a(f"s_cbranch_vccnz {l}")
            with self.uncounted(True):
                for _ in range(min(self.cfg["bgg"], self.bg_left)):
                    self.bg.pop(0)()
                    self.bg_left -= 1
            a.label(l)
        self.bg_slot += 1

    def bg_now(self, n):
        n = min(n, len(self.bg))
        if n:
            with self.pass1():
                for _ in range(n):
                    self.bg.pop(0)()

    def ticker(self):
        def e(text, **kw):
            if self.side and self.bg_slot % self.side_every == 0:
                self.side.pop(0)()
            self.bg_tick()
            self.a(text, **kw)
        return e

    def moded(self, lines, tag=None, reg=sMODE):
        a = self.a
        lg, lj = a.newlabel("glob"), a.newlabel("join")
        a(f"s_cmp_eq_u32 {s(reg)}, 0")
        a(f"s_cbranch_scc0 {lg}")
        for l in lines:
            a(l + (self.cfg["stflag"] if "x4" in l else ""), vm=tag)
        a.label(lj)
        t = [Ins(lg + ":")] + [Ins(l + (" sc1" if l.startswith("buffer_store") else "")) for l in lines] + [Ins(f"s_branch {lj}")]
        self.tail += t

    def srd_tmp(self, ptr, size):
        a = self.a
        a(f"s_mov_b32 {s(sTMP)}, {s(ptr)}")
        a(f"s_mov_b32 {s(sTMP + 1)}, {s(ptr + 1)}")
        a(f"s_mov_b32 {s(sTMP + 2)}, {size}")

    def ts(self, name):
        amp = self.cfg["amp"]
        if amp:
            for k in range(2):
                if amp[2 * k] == name:
                    a = self.a
                    op = "s_memtime" if amp[5] else "s_memrealtime"
                    if ":" in name:
                        with self.only_if(f"s_cmp_eq_u32 {s(sLAY)}, {amp[2 * k + 1]}"):
                            a(f"{op} {s(72 + 6 * k, 2)}")
                            a("s_waitcnt lgkmcnt(0)")
                    else:
                        a(f"{op} {s(72 + 6 * k, 2)}")
                        if name != "start":
                            a("s_waitcnt lgkmcnt(0)")
        if not self.cfg["ts"] or name == "start":
            return
        if self.cfg["ts"] == 1 and name.startswith("p_"):
            return
        if self.cfg["ts"] == 2 and ":" in name and name[2:] not in ("bar1", "xpoll", "kvgemm", "xflag"):
            return
        a = self.a
        self.tsnames.append(name)
        a(f"{'s_memrealtime' if self.cfg['rt'] else 's_memtime'} {s(sTSA, 2)}")
        a("s_waitcnt lgkmcnt(0)")
        a.lg.clear()
        a(f"s_mov_b32 m0, {s(sTSI)}")
        a(f"v_writelane_b32 {v(vTS)}, {s(sTSA)}, m0")
        a(f"s_add_u32 {s(sTSI)}, {s(sTSI)}, 1")

    def dump(self, point, regs, tmp):
        d = self.cfg["dump"]
        if not d or d[0] != point:
            return
        a = self.a
        with self.only_if(f"s_cmp_eq_u32 {s(sLAY)}, {d[1]}"):
            a("s_waitcnt vmcnt(0) lgkmcnt(0)")
            a("s_nop 15")
            a(f"v_lshrrev_b32 {v(tmp)}, 2, {v(vL16)}")
            a(f"s_mul_i32 {s(sT0)}, {s(sGW)}, {64 * 256}")
            a(f"s_add_u32 {s(sT0)}, {s(sT0)}, {DBG}")
            for i, r in enumerate(regs):
                a(f"buffer_store_dword {v(r)}, {v(tmp)}, {s(sWS, 4)}, {s(sT0)} offen")
                a(f"s_add_u32 {s(sT0)}, {s(sT0)}, 256")
            a("s_waitcnt vmcnt(0)")

    def poll(self, voff, soff, tmp):
        a = self.a
        l = a.newlabel("poll")
        a(f"s_mov_b32 {s(sCNT)}, 0x40000")
        a.label(l)
        a(f"buffer_load_dword {v(tmp)}, {v(voff)}, {s(sWS, 4)}, {s(soff)} offen sc1")
        a(f"s_sub_u32 {s(sCNT)}, {s(sCNT)}, 1")
        a("s_cbranch_scc1 L_timeout")
        a.wait(vm=0)
        a(f"v_cmp_ne_u32 vcc, {s(sTAG)}, {v(tmp)}")
        a(f"s_cbranch_vccnz {l}")

    def flag(self, soff, tmp):
        a = self.a
        a(f"v_mov_b32 {v(tmp)}, {s(sTAG)}")
        a.wait(vm=0)
        a("s_mov_b64 exec, 1")
        self.moded([f"buffer_store_dword {v(tmp)}, off, {s(sWS, 4)}, {s(soff)}"])
        a("s_mov_b64 exec, -1")

    def w_voff(self, t):
        a = self.a
        a(f"v_lshrrev_b32 {v(t)}, 6, {v(vL16)}")
        a(f"v_mul_u32_u24 {v(t)}, {3072 - 64}, {v(t)}")
        a(f"v_add_u32 {v(t)}, {v(t)}, {v(vL16)}")

    def ld_wkv(self, T, i, t):
        a = self.a
        a(f"s_add_u32 {s(sT0)}, {s(sWOFF)}, {i * 32 * 3072}")
        a(f"buffer_load_dwordx4 {ar(A_WKV[T] + 4 * i, 4)}, {v(t)}, {s(sSW[T], 4)}, {s(sT0)} offen", vm=f"wkv{i}")

    def ld_pk(self, what, T, i):
        a = self.a
        if what == "wq":
            a(f"s_add_u32 m0, {s(sW13)}, {L_WQ[T] + i * 1024}")
            a(f"s_add_u32 {s(sT0)}, {s(sPK)}, {PQ + (8 * T + i) * 65536}")
            a(f"buffer_load_dwordx4 {v(vL16)}, {s(sWS, 4)}, {s(sT0)} offen sc1 lds", vm="wq")
        elif what == "wo":
            a(f"s_add_u32 {s(sT0)}, {s(sOOFF)}, {PO + T * 0x8000 + i * 65536}")
            a(f"buffer_load_dwordx4 {ar(A_WO[T] + 4 * i, 4)}, {v(vL16)}, {s(sWS, 4)}, {s(sT0)} offen sc1", vm="wo")
        else:
            a(f"s_add_u32 {s(sT0)}, {s(sPK)}, {PKV + i * 65536}")
            a(f"buffer_load_dwordx4 {ar(A_WKV[1] + 4 * i, 4)}, {v(vL16)}, {s(sWS, 4)}, {s(sT0)} offen sc1", vm=f"wkv{i}")

    def bg_setup(self, T):
        self.bg = [(lambda i=i: self.ld_pk("wq", T, i)) for i in range(8)] + [(lambda i=i: self.ld_pk("wo", T, i)) for i in range(16)]
        if T == 0:
            self.bg += [(lambda i=i: self.ld_pk("wkv", 1, i)) for i in range(16)]

    def put_wkv(self, T, lo, hi, waits=False):
        for i in range(lo, hi):
            if waits:
                self.a.wait(vm=f"wkv{i}")
            self.a(f"ds_write_b128 {v(vWKW)}, {ar(A_WKV[T] + 4 * i, 4)} offset:{i * 2048}")

    def put_wo(self, T, i):
        self.a(f"ds_write_b128 {v(vWOW)}, {ar(A_WO[T] + 4 * i, 4)} offset:{(i >> 2) * 1024 + (i & 3) * 128}")

    @staticmethod
    def woff(j, u):
        return (j >> 2) * 4096 + u * 1024 + (j & 3) * 256

    def colsum(self, addr, nsteps, regs, acc):
        a = self.a
        a(f"v_mov_b32 {v(acc)}, 0")
        for j in range(nsteps):
            for u in range(2):
                a(f"ds_read_b64_tr_b16 {v(regs[j] + 2 * u, 2)}, {v(addr)} offset:{self.woff(j, u)}", lg=f"cs{j}")
        for j in range(nsteps):
            a.wait(lg=f"cs{j}")
            for d in range(4):
                a(f"v_dot2c_f32_bf16 {v(acc)}, {s(sT3)}, {v(regs[j] + d)}")

    def cs_kv_step(self, T, i, sel, d):
        self.a(f"v_mfma_f32_16x16x32_bf16 {v(d, 4)}, {v(sel, 4)}, {ar(A_WKV[T] + 4 * i, 4)}, {v(d, 4) if i else 0}")

    def cs_kv_fin(self, T, d, t):
        a = self.a
        a(f"s_and_b32 {s(sT0)}, {s(sW)}, 1")
        a(f"s_lshl_b32 {s(sT0)}, {s(sT0)}, 9")
        a(f"s_and_b32 {s(sT1)}, {s(sW)}, 2")
        a(f"s_lshl_b32 {s(sT1)}, {s(sT1)}, 2")
        a(f"s_add_u32 {s(sT0)}, {s(sT0)}, {s(sT1)}")
        a(f"s_add_u32 {s(sT0)}, {s(sT0)}, {L_CSP + T * 1536}")
        a(f"v_lshrrev_b32 {v(t)}, 9, {v(vL16)}")
        a(f"v_lshl_add_u32 {v(t)}, {v(t)}, 2, {s(sT0)}")
        a(f"v_bfe_u32 {v(t + 1)}, {v(vL16)}, 4, 1")
        a(f"v_lshl_add_u32 {v(t)}, {v(t + 1)}, 8, {v(t)}")
        a(f"v_bfe_u32 {v(t + 1)}, {v(vL16)}, 8, 1")
        a(f"v_lshl_add_u32 {v(t)}, {v(t + 1)}, 7, {v(t)}")
        a(f"v_bfe_u32 {v(t + 1)}, {v(vL16)}, 5, 1")
        a(f"v_lshl_add_u32 {v(t)}, {v(t + 1)}, 6, {v(t)}")
        for ror in (4, 8):
            for i in range(4):
                a(f"v_add_f32 {v(d + i)}, {v(d + i)}, {v(d + i)} row_ror:{ror}")
        a(f"ds_write2_b32 {v(t)}, {v(d)}, {v(d + 1)} offset0:0 offset1:4")
        a(f"ds_write2_b32 {v(t)}, {v(d + 2)}, {v(d + 3)} offset0:8 offset1:12")

    def sel_read(self, sel):
        a = self.a
        a(f"v_and_b32 {v(sel)}, 0x1f0, {v(vL16)}")
        a(f"v_add_u32 {v(sel)}, {L_SEL:#x}, {v(sel)}")
        a(f"ds_read_b128 {v(sel, 4)}, {v(sel)}", lg="sel")

    def cs_q(self, T):
        a = self.a
        t, acc = AV, AV + 1
        a(f"s_mov_b32 {s(sT3)}, 0x3f803f80")
        a(f"s_add_u32 {s(sT0)}, {s(sW13)}, {L_WQ[T]}")
        a(f"v_add_u32 {v(t)}, {s(sT0)}, {v(vWRD)}")
        regs = [LG + 4 * i for i in range(4)] + [PK + 4 * i for i in range(4)]
        self.colsum(t, 8, regs, acc)
        a(f"v_mov_b32 {v(t)}, {v(acc)}")
        a(f"v_permlane32_swap_b32 {v(t)}, {v(acc)}")
        a(f"v_add_f32 {v(acc)}, {v(acc)}, {v(t)}")
        a(f"s_lshl_b32 {s(sT0)}, {s(sW)}, 2")
        a(f"v_add_u32 {v(t)}, {s(sT0)}, {v(vCSR)}")
        a(f"ds_write_b32 {v(t)}, {v(acc)} offset:{T * 1536 + 1024}")

    @staticmethod
    def cs_pack(src, dst):
        return [
            f"v_pk_add_f32 {v(src, 2)}, {v(src, 2)}, {v(src + 2, 2)}",
            f"v_add_f32 {v(src)}, {v(src)}, {v(src + 1)}",
            f"v_cvt_pk_bf16_f32 {v(src + 1)}, {v(src)}, {v(src)}",
            f"v_and_b32 {v(src + 1)}, 0xffff0000, {v(src + 1)}",
            f"v_sub_f32 {v(src)}, {v(src)}, {v(src + 1)}",
            f"v_cvt_pk_bf16_f32 {v(dst)}, {v(src + 1)}, {v(src)}",
        ]

    def x_publish(self, X=LG, wt=False):
        a = self.a
        t = X + 8
        for i in range(8):
            a(f"v_cvt_pk_bf16_f32 {v(X + i)}, {v(XR + 2 * i)}, {v(XR + 2 * i + 1)}")
        st = [f"buffer_store_dwordx4 {v(X + 4 * sidx, 4)}, {v(vXST)}, {s(sOUT, 4)}, {s(sXST)} offen offset:{sidx * 512}" for sidx in range(2)]
        if wt:
            for l in st:
                a(l + " sc1", vm="xst")
        else:
            self.moded(st, tag="xst")
        a(f"v_pk_add_f32 {v(t, 2)}, {v(XR, 2)}, {v(XR + 2, 2)}")
        a(f"v_pk_mul_f32 {v(t + 2, 2)}, {v(XR, 2)}, {v(XR, 2)}")
        a(f"v_pk_fma_f32 {v(t + 2, 2)}, {v(XR + 2, 2)}, {v(XR + 2, 2)}, {v(t + 2, 2)}")
        for i in range(2, 8):
            a(f"v_pk_add_f32 {v(t, 2)}, {v(t, 2)}, {v(XR + 2 * i, 2)}")
            a(f"v_pk_fma_f32 {v(t + 2, 2)}, {v(XR + 2 * i, 2)}, {v(XR + 2 * i, 2)}, {v(t + 2, 2)}")
        a(f"v_add_f32 {v(t)}, {v(t)}, {v(t + 1)}")
        a(f"v_add_f32 {v(t + 2)}, {v(t + 2)}, {v(t + 3)}")
        a(f"v_permlane32_swap_b32 {v(t)}, {v(t + 2)}")
        a(f"v_add_f32 {v(t)}, {v(t)}, {v(t + 2)}")
        a(f"v_mov_b32 {v(t + 1)}, {v(t)}")
        a(f"v_permlane16_swap_b32 {v(t)}, {v(t + 1)}")
        a(f"v_add_f32 {v(t)}, {v(t)}, {v(t + 1)}")
        a("s_mov_b32 exec_lo, 0xffff")
        a("s_mov_b32 exec_hi, 0xffff")
        self.moded([f"buffer_store_dword {v(t)}, {v(vSST)}, {s(sWS, 4)}, {s(sSTST)} offen"], tag="xst")
        a("s_mov_b64 exec, -1")

    def phi_a(self, acc, tmp):
        a = self.ticker()
        for i in range(8):
            a(f"v_pk_mul_f32 {v(acc + 2 * i, 2)}, {v(acc + 2 * i, 2)}, {v(vS, 2)} op_sel_hi:[1,0]")
        for i in range(16):
            a(f"v_exp_f32_e64 {v(tmp + i)}, {v(acc + i)} clamp")
            a(f"v_max_f32 {v(acc + i)}, {s(sDELTA)}, {v(acc + i)}")
        for i in range(8):
            a(f"v_pk_fma_f32 {v(acc + 2 * i, 2)}, {v(acc + 2 * i, 2)}, {s(sLN2, 2)}, {v(tmp + 2 * i, 2)}")
        for i in range(8):
            a(f"v_cvt_pk_bf16_f32 {v(PK + i)}, {v(acc + 2 * i)}, {v(acc + 2 * i + 1)}")

    def logits(self):
        a = self.a
        for i in range(8):
            a(f"v_cvt_pk_bf16_f32 {v(PK + i)}, {v(AK + 2 * i)}, {v(AK + 2 * i + 1)}")
        a.wait(lg="wp")
        a(f"v_mfma_f32_32x32x16_bf16 {v(LG, 16)}, {v(PK + 8, 4)}, {v(PK, 4)}, 0")
        a(f"v_mfma_f32_32x32x16_bf16 {v(LG, 16)}, {v(PK + 12, 4)}, {v(PK + 4, 4)}, {v(LG, 16)}")

    def softmax2(self, t, isq, after_plus=None, after_minus=None):
        a = self.ticker()
        a(f"v_max3_f32 {v(t)}, {v(LG)}, {v(LG + 1)}, {v(LG + 2)}")
        a(f"v_min3_f32 {v(t + 1)}, {v(LG)}, {v(LG + 1)}, {v(LG + 2)}")
        for i in range(3, 15, 2):
            a(f"v_max3_f32 {v(t)}, {v(t)}, {v(LG + i)}, {v(LG + i + 1)}")
            a(f"v_min3_f32 {v(t + 1)}, {v(t + 1)}, {v(LG + i)}, {v(LG + i + 1)}")
        a(f"v_max_f32 {v(t)}, {v(t)}, {v(LG + 15)}")
        a(f"v_min_f32 {v(t + 1)}, {v(t + 1)}, {v(LG + 15)}")
        a(f"v_pk_mul_f32 {v(t, 2)}, {v(t, 2)}, {v(vS, 2)} op_sel_hi:[1,0]")
        for sg, E in ((0, AK), (1, LG)):
            for i in range(8):
                if sg == 0:
                    a(f"v_pk_fma_f32 {v(E + 2 * i, 2)}, {v(LG + 2 * i, 2)}, {v(vS, 2)}, {v(t, 2)} op_sel_hi:[1,0,0] neg_lo:[0,0,1] neg_hi:[0,0,1]")
                else:
                    a(f"v_pk_fma_f32 {v(E + 2 * i, 2)}, {v(LG + 2 * i, 2)}, {v(vS, 2)}, {v(t, 2)} op_sel:[0,0,1] op_sel_hi:[1,0,1] neg_lo:[1,0,0] neg_hi:[1,0,0]")
            for i in range(16):
                a(f"v_exp_f32 {v(E + i)}, {v(E + i)}")
            S = t + 2 + 2 * sg
            a(f"v_pk_add_f32 {v(S, 2)}, {v(E, 2)}, {v(E + 2, 2)}")
            for i in range(2, 8):
                a(f"v_pk_add_f32 {v(S, 2)}, {v(S, 2)}, {v(E + 2 * i, 2)}")
            a(f"v_add_f32 {v(S)}, {v(S)}, {v(S + 1)}")
            if not (isq and sg == 0):
                a(f"v_rcp_f32 {v(S)}, {v(S)}")
                if isq:
                    a(f"v_mul_f32 {v(t + 6)}, {f2u(1e-6):#x}, {v(t + 2)}")
                    a(f"v_mul_f32 {v(S)}, {v(S)}, {v(t + 2)}")
                for i in range(8):
                    a(f"v_pk_mul_f32 {v(E + 2 * i, 2)}, {v(E + 2 * i, 2)}, {v(S, 2)} op_sel_hi:[1,0]")
            for i in range(8):
                a(f"v_cvt_pk_bf16_f32 {v(PK + 8 * sg + i)}, {v(E + 2 * i)}, {v(E + 2 * i + 1)}")
            cb = (after_plus, after_minus)[sg]
            if cb:
                cb()

    def layer(self, T):
        a, cfg = self.a, self.cfg
        NT = 2 if T == 0 else 4
        NJ = NT
        skip23 = (lambda: self.only_if(f"s_cmp_lt_u32 {s(sW)}, 2")) if T == 0 else (lambda: self.uncounted())
        bgn = cfg["bg0"] if T == 0 else cfg["bg1"]
        a.label(f"L_layer{T}")
        a.vm.clear(); a.lg.clear(); a.vm1.clear()
        a.wait(lg=0)
        a("s_barrier")
        self.ts(f"{T}:bar1")
        ST = LG
        CS = LG + 8
        CSA, MB = PK, PK + 2
        a(f"ds_read_b128 {v(CS, 4)}, {v(vCSR)} offset:{T * 1536}", lg="cs")
        a(f"ds_read_b128 {v(CS + 4, 4)}, {v(vCSR)} offset:{T * 1536 + 512}", lg="cs")
        if T == 1:
            for i in range(2):
                a(f"ds_read_b128 {v(PK + 8 + 4 * i, 4)}, {v(vKFR)} offset:{L_WPF - L_KVF + 528 * i}", lg="wp")
        D = 3

        def rd(j, p):
            for u in range(2):
                a(f"ds_read_b64_tr_b16 {v(RG + (j % D) * 8 + 4 * p + 2 * u, 2)}, {v(vWRD)} offset:{p * 32768 + self.woff(j, u)}", lg=f"w{j}")
        for j in range(D):
            rd(j, 0); rd(j, 1)
        if T == 0:
            a(f"s_cmp_eq_u32 {s(sPASS)}, 0")
            a("s_cbranch_scc1 L_poll0")
            a.label("L_npoll")
        self.poll(vPOLL, sFXP, LG)
        if T == 0:
            a.label("L_enter")
        self.ts(f"{T}:xpoll")

        def ldx(j):
            if j % 4 == 0:
                a(f"s_add_u32 {s(sT0)}, {s(sXLD)}, {j * 1024}")
            a(f"buffer_load_dwordx4 {v(XF + 4 * j, 4)}, {v(vL16)}, {s(sOUT, 4)}, {s(sT0)} offen offset:{(j % 4) * 1024} sc1", vm=f"x{j}")
            if j == 9:
                a(f"buffer_load_dwordx4 {v(ST, 4)}, {v(vSLD)}, {s(sWS, 4)}, {s(sSTLD)} offen sc1", vm="st")
            if j == 11:
                a(f"buffer_load_dwordx4 {v(ST + 4, 4)}, {v(vSLD)}, {s(sWS, 4)}, {s(sSTLD)} offen offset:512 sc1", vm="st")
        NX = cfg["nx0"]
        for j in range(max(NX, 8)):
            if j < NX:
                ldx(j)
            if j < 8:
                self.put_wkv(T, 8 + j, 9 + j)
        t, u_ = ST, ST + 1
        fill = [
            f"v_pk_add_f32 {v(ST, 2)}, {v(ST, 2)}, {v(ST + 2, 2)}",
            f"v_pk_add_f32 {v(ST + 4, 2)}, {v(ST + 4, 2)}, {v(ST + 6, 2)}",
            f"v_pk_add_f32 {v(ST, 2)}, {v(ST, 2)}, {v(ST + 4, 2)}",
            f"v_add_f32 {v(t)}, {v(ST)}, {v(ST + 1)}",
            f"v_mul_f32 {v(t)}, {f2u(1 / 512):#x}, {v(t)}",
            f"v_mov_b32 {v(u_)}, {v(t)}",
            f"v_permlane32_swap_b32 {v(t)}, {v(u_)}",
            f"v_fma_f32 {v(u_)}, -{v(t)}, {v(t)}, {v(u_)}",
            f"v_max_f32 {v(u_)}, 0, {v(u_)}",
            f"v_cvt_pk_bf16_f32 {v(vM)}, -{v(t)}, -{v(t)}",
            f"v_cvt_pk_bf16_f32 {v(u_)}, {v(u_)}, {v(u_)}",
            f"v_and_b32 {v(u_)}, 0xffff0000, {v(u_)}",
            f"v_add_f32 {v(u_)}, {f2u(1e-5):#x}, {v(u_)}",
            f"v_cvt_pk_bf16_f32 {v(u_)}, {v(u_)}, {v(u_)}",
            f"v_and_b32 {v(u_)}, 0xffff0000, {v(u_)}",
            f"v_sqrt_f32 {v(u_)}, {v(u_)}",
            f"v_cndmask_b32 {v(vM)}, {v(vM)}, 0, {s(sHI, 2)}",
            f"v_cvt_pk_bf16_f32 {v(u_)}, {v(u_)}, {v(u_)}",
            f"v_and_b32 {v(u_)}, 0xffff0000, {v(u_)}",
            f"v_rcp_f32 {v(vRS)}, {v(u_)}",
            f"v_mov_b32 {v(MB)}, {v(vM)}",
            f"v_mul_f32 {v(vS)}, {LOG2E:#x}, {v(vRS)}",
            f"v_mov_b32 {v(MB + 1)}, 0",
            f"v_mov_b32 {v(MB + 2)}, 0",
            f"v_mov_b32 {v(MB + 3)}, {v(vM)}",
        ]
        fill = self.cs_pack(CS, CSA) + self.cs_pack(CS + 4, CSA + 1) + [None] * 12 + fill
        for j in range(32):
            a.wait(vm=f"x{j}", lg=f"w{j}")
            if j == 16 - D:
                a("s_barrier")
            if j == 28:
                assert not fill
                a(f"v_mfma_f32_32x32x8_bf16 {v(AK, 16)}, {v(CSA, 2)}, {v(MB, 2)}, {v(AK, 16)}")
                a(f"v_mfma_f32_32x32x8_bf16 {v(AV, 16)}, {v(CSA, 2)}, {v(MB + 2, 2)}, {v(AV, 16)}")
            for p, acc in ((0, AK), (1, AV)):
                c = v(acc, 16) if j else "0"
                a(f"v_mfma_f32_32x32x16_bf16 {v(acc, 16)}, {v(RG + (j % D) * 8 + 4 * p, 4)}, {v(XF + 4 * j, 4)}, {c}")
                if p == 0 and j + NX < 32:
                    ldx(j + NX)
                if j + D < 32:
                    rd(j + D, p)
                if fill:
                    f_ = fill.pop(0)
                    if f_:
                        a(f_)
        self.bg_setup(T)
        if T == 0 and cfg["xdirty"]:
            with self.only_if(f"s_cmp_eq_u32 {s(sPASS)}, 1"):
                a(f"s_lshl_b32 {s(sT0)}, {s(sGW)}, 10")
                for i in range(cfg["xdirty"]):
                    a(f"s_add_u32 {s(sT0)}, {s(sT0)}, {(DBG if i == 0 else 0x100000)}")
                    a(f"buffer_store_dwordx4 v[0:3], {v(vL16)}, {s(sWS, 4)}, {s(sT0)} offen")
        if T == 0:
            with self.only_if(f"s_cmp_lg_u32 {s(sHEL)}, 0"):
                a(f"v_and_b32 {v(vHL)}, 0x100, {v(vL16)}")
                a(f"v_lshl_add_u32 {v(vHL)}, {v(vHL)}, 1, {v(vPOLL)}")
                a(f"v_lshlrev_b32 {v(vHL)}, 5, {v(vHL)}")
                a(f"s_or_b32 {s(sTAG)}, {s(sTAG)}, 0xf0")
                self.poll(vHL, sHEL, vHL + 1)
                a(f"s_and_b32 {s(sTAG)}, {s(sTAG)}, 0xffffff00")
                a(f"s_mov_b32 {s(sHEL)}, 0")
        self.ts(f"{T}:kvgemm")
        self.dump("kv", list(range(AK, AK + 32)) + [vS, vRS, vM], RG)

        def v_path():
            for i in range(8):
                a(f"v_pk_mul_f32 {v(AV + 2 * i, 2)}, {v(AV + 2 * i, 2)}, {v(vS, 2)} op_sel:[0,1]")
            for i in range(8):
                a(f"v_cvt_pk_bf16_f32 {v(AV + i)}, {v(AV + 2 * i)}, {v(AV + 2 * i + 1)}")
            for i in range(2):
                a(f"ds_write_b128 {v(vSTW)}, {v(AV + 4 * i, 4)} offset:{0x4000 + 128 * i}")

        def stage(sg):
            for i in range(2):
                a(f"ds_write_b128 {v(vSTW)}, {v(PK + 8 * sg + 4 * i, 4)} offset:{sg * 8192 + 128 * i}")
        self.bg_region(bgn[0], 56 if T == 0 else 110)
        if T == 0:
            self.phi_a(AK, LG)
            stage(0)
            v_path()
        else:
            self.logits()
            v_path()
            self.softmax2(RG, False, lambda: stage(0), lambda: stage(1))
        self.dump("pk", list(range(PK, PK + 16)) + list(range(AV, AV + 8)), RG)
        a.wait(lg=0)
        a("s_barrier")
        self.ts(f"{T}:bar2")
        with skip23():
            ONE, DK, DZ, PB = AV, AV + 4, AV + 8, AV + 12
            for st in range(4):
                for u in range(2):
                    a(f"ds_read_b64_tr_b16 {v(LG + 4 * st + 2 * u, 2)}, {v(vSTR)} offset:{st * 1024 + u * 512}", lg=f"p{st}")
                for u in range(2):
                    a(f"ds_read_b64_tr_b16 {v(PK + 4 * st + 2 * u, 2)}, {v(vSTR2)} offset:{st * 1024 + u * 512}", lg=f"p{st}")
            for i in range(4):
                a(f"v_mov_b32 {v(ONE + i)}, 0x3f803f80")
            for st in range(4):
                a.wait(lg=f"p{st}")
                a(f"v_mfma_f32_16x16x32_bf16 {v(DK, 4)}, {v(LG + 4 * st, 4)}, {v(PK + 4 * st, 4)}, {v(DK, 4) if st else 0}")
                a(f"v_mfma_f32_16x16x32_bf16 {v(DZ, 4)}, {v(LG + 4 * st, 4)}, {v(ONE, 4)}, {v(DZ, 4) if st else 0}")
            for i in range(2):
                a(f"v_cvt_pk_bf16_f32 {v(PB + i)}, {v(DK + 2 * i)}, {v(DK + 2 * i + 1)}")
            for i in range(2):
                a(f"v_min_u32 {v(PB + 2 + i)}, -2, {v(PB + i)}")
                a(f"v_min_u32 {v(PB + i)}, -2, {v(PB + i)}")
            for i in range(4):
                a(f"v_min_u32 {v(DZ + i)}, -2, {v(DZ + i)}")
            for i in range(2):
                a(f"v_permlane16_swap_b32 {v(PB + i)}, {v(PB + 2 + i)}")
            a("s_mov_b32 exec_lo, 0xffff")
            a("s_mov_b32 exec_hi, 0xffff")
            a(f"buffer_store_dwordx4 {v(PB, 4)}, {v(vPST)}, {s(sWS, 4)}, {s(sKVT)} offen sc1")
            a("s_mov_b32 exec_lo, 0x10001")
            a("s_mov_b32 exec_hi, 0x10001")
            a(f"buffer_store_dwordx4 {v(DZ, 4)}, {v(vZST)}, {s(sWS, 4)}, {s(sKVT)} offen sc1")
            a("s_mov_b64 exec, -1")
        self.ts(f"{T}:publish")
        with self.pass1():
            a.wait1("wq")
            self.cs_q(T)
            a("s_waitcnt lgkmcnt(0)")
            a("s_barrier")
        QA = LG
        CS, CSA, MB = LG + 4, LG + 8, LG + 10
        a(f"v_add_u32 {v(QA)}, {L_WQ[T]:#x}, {v(vWRD)}")
        a(f"ds_read_b128 {v(CS, 4)}, {v(vCSR)} offset:{T * 1536 + 1024}", lg="cs")
        if T == 1:
            for i in range(2):
                a(f"ds_read_b128 {v(PK + 8 + 4 * i, 4)}, {v(vKFR)} offset:{L_WPF - L_KVF + 528 * i}", lg="wp")
        D = 6

        def rq(j):
            for u in range(2):
                a(f"ds_read_b64_tr_b16 {v(RG + (j % D) * 4 + 2 * u, 2)}, {v(QA)} offset:{self.woff(j, u)}", lg=f"q{j}")

        PL, SEL, DR = 0, 36, 40

        def partial_load(i):
            a(f"s_add_u32 {s(sT1)}, {s(sKVT)}, {i * 65536}")
            a(f"buffer_load_dwordx4 {v(PL + 4 * i, 4)}, {v(vL16)}, {s(sWS, 4)}, {s(sT1)} offen sc1", vm="pl")

        def partial_loads():
            for i in range(9):
                partial_load(i)
        for j in range(D):
            rq(j)
        fill = self.cs_pack(CS, CSA) + [f"v_mov_b32 {v(CSA + 1)}, 0", f"v_mov_b32 {v(MB)}, {v(vM)}", f"v_mov_b32 {v(MB + 1)}, 0"]
        PS = cfg["pl_step"]
        self.bg_region(bgn[1], PS)
        npl = 0
        for j in range(32):
            a.wait(lg=f"q{j}")
            a(f"v_mfma_f32_32x32x16_bf16 {v(AK, 16)}, {v(RG + (j % D) * 4, 4)}, {v(XF + 4 * j, 4)}, {v(AK, 16) if j else 0}")
            self.bg_tick()
            if j >= PS and npl < 9:
                if T == 1:
                    partial_load(npl); npl += 1
                elif (j - PS) % 3 == 0:
                    with skip23():
                        for _ in range(3):
                            partial_load(npl); npl += 1
            if j + D < 32:
                rq(j + D)
            if fill:
                a(fill.pop(0))
        a(f"v_mfma_f32_32x32x8_bf16 {v(AK, 16)}, {v(CSA, 2)}, {v(MB, 2)}, {v(AK, 16)}")
        if npl < 9:
            with skip23():
                while npl < 9:
                    partial_load(npl); npl += 1
        self.sel_read(SEL)
        self.ts(f"{T}:qgemm")
        self.dump("q", list(range(AK, AK + 16)), RG)
        EPS = RG + 6
        with self.pass1():
            assert len(self.bg) <= (16 if T == 0 else 0)
            if T == 0:
                l = a.newlabel("w")
                n = len(a.vm1) - 1 - max(i for i, t_ in enumerate(a.vm1) if t_ == "wo")
                a(f"s_waitcnt vmcnt({n + 9})")
                a(f"s_cmp_lt_u32 {s(sW)}, 2")
                a(f"s_cbranch_scc1 {l}")
                a.wait1("wo")
                a.label(l)
            else:
                a.wait1("wo")
        nbg3 = min(bgn[2], len(self.bg))
        self.bg_region(bgn[2], 56 if T == 0 else 100)
        self.side = [(lambda i=i: self.put_wo(T, i)) for i in range(16)]
        self.side_every = cfg["wo_every"][T]
        if T == 0:
            self.phi_a(AK, LG)
            a(f"v_mov_b32 {v(EPS)}, {f2u(1e-6):#x}")
        else:
            self.side.pop(0)()
            self.logits()
            self.side.pop(0)()
            self.side.pop(0)()
            self.softmax2(RG, True)
        while self.side:
            self.side.pop(0)()
        self.dump("pq", list(range(PK, PK + 16)), AV)
        self.ts(f"{T}:phiq")
        with skip23():
            lchk, lok = a.newlabel("chk"), a.newlabel("ok")
            a(f"s_mov_b32 {s(sCNT)}, 0x10000")
            a.wait(lg="sel")
            if nbg3:
                l = a.newlabel("w")
                a(f"s_waitcnt vmcnt({nbg3})")
                a(f"s_cmp_eq_u32 {s(sPASS)}, 0")
                a(f"s_cbranch_scc1 {l}")
            a.label(lchk)
            a.wait(vm=0)
            if nbg3:
                a.label(l)
            m = 44
            chk = [f"v_max3_u32 {v(m)}, {v(PL)}, {v(PL + 1)}, {v(PL + 2)}"]
            chk += [f"v_max3_u32 {v(m)}, {v(m)}, {v(PL + i)}, {v(PL + i + 1)}" for i in range(3, 35, 2)]
            chk += [f"v_max_u32 {v(m)}, {v(m)}, {v(PL + 35)}"]
            for i in range(8):
                a(f"v_mfma_f32_16x16x32_bf16 {v(DR, 4)}, {v(SEL, 4)}, {v(PL + 4 * i, 4)}, {v(DR, 4) if i else 0}")
                a(chk.pop(0)); a(chk.pop(0))
            a(chk.pop(0)); a(chk.pop(0))
            a(f"v_cmp_eq_u32 vcc, -1, {v(m)}")
            a(f"s_cbranch_vccnz {lok}")
            n0 = len(a.ins)
            a.label(lok)
            a(f"s_sub_u32 {s(sCNT)}, {s(sCNT)}, 1")
            a("s_cbranch_scc1 L_timeout")
            partial_loads()
            a(f"s_branch {lchk}")
            self.tail += a.ins[n0:]
            del a.ins[n0:]
            Z = PL + 32
            a(f"v_permlane16_swap_b32 {v(Z)}, {v(Z + 1)}")
            a(f"v_permlane16_swap_b32 {v(Z + 2)}, {v(Z + 3)}")
            a(f"v_add_f32 {v(Z)}, {v(Z)}, {v(Z + 1)}")
            a(f"v_add_f32 {v(Z + 2)}, {v(Z + 2)}, {v(Z + 3)}")
            a(f"v_permlane32_swap_b32 {v(Z)}, {v(Z + 2)}")
            a(f"v_add_f32 {v(Z)}, {v(Z)}, {v(Z + 2)}")
            a(f"v_add_f32 {v(Z)}, {v(Z)}, {v(Z)} row_ror:4")
            a(f"v_add_f32 {v(Z)}, {v(Z)}, {v(Z)} row_ror:8")
            a(f"v_cvt_pk_bf16_f32 {v(Z)}, {v(Z)}, {v(Z)}")
            a(f"ds_write_b16 {v(vZW)}, {v(Z)}")
            for i in range(2):
                a(f"v_cvt_pk_bf16_f32 {v(DR + i)}, {v(DR + 2 * i)}, {v(DR + 2 * i + 1)}")
            a(f"ds_write_b64 {v(vKFW)}, {v(DR, 2)}")
        self.bg_now(bgn[3])
        a.wait(lg=0)
        a("s_barrier")
        self.ts(f"{T}:bar3")
        KF, ZF, DEN, O = 0, 16, RG + 6, LG
        for j in range(NJ):
            a(f"ds_read_b128 {v(KF + 4 * j, 4)}, {v(vKFR)} offset:{528 * j}", lg=f"kf{j}")
        for j in range(NJ):
            a(f"ds_read_b128 {v(ZF + 4 * j, 4)}, {v(vZR)} offset:{(j >> 1) * 64 + (j & 1) * 16}", lg=f"zf{j}")
        for j in range(NJ):
            a.wait(lg=f"kf{j}")
            a(f"v_mfma_f32_32x32x16_bf16 {v(AV, 16)}, {v(KF + 4 * j, 4)}, {v(PK + 4 * j, 4)}, {v(AV, 16) if j else 0}")
        for j in range(NJ):
            a.wait(lg=f"zf{j}")
            for d in range(4):
                a(f"v_dot2c_f32_bf16 {v(DEN)}, {v(ZF + 4 * j + d)}, {v(PK + 4 * j + d)}")
        a(f"v_rcp_f32 {v(DEN)}, {v(DEN)}")
        for i in range(8):
            a(f"v_pk_mul_f32 {v(AV + 2 * i, 2)}, {v(AV + 2 * i, 2)}, {v(DEN, 2)} op_sel_hi:[1,0]")
        for i in range(8):
            a(f"v_cvt_pk_bf16_f32 {v(O + i)}, {v(AV + 2 * i)}, {v(AV + 2 * i + 1)}")
        self.moded([f"buffer_store_dwordx4 {v(O + 4 * i, 4)}, {v(vOST)}, {s(sWS, 4)}, {s(sOST)} offen offset:{256 * i}" for i in range(2)], reg=sMODEO)
        if T == 0:
            a(f"s_mov_b32 {s(sMODEO)}, {s(sMODE)}")
            if cfg["lastowt"]:
                a(f"s_or_b32 {s(sMODEO)}, {s(sMODE)}, {s(sPASS)}")
        self.dump("o", list(range(O, O + 8)), PK)
        WR, DW = 64, 7
        WA = [vWOR, PK, PK + 1, PK + 2]
        for t_ in range(1, 4):
            a(f"v_xor_b32 {v(WA[t_])}, {32 * t_}, {v(vWOR)}")

        def rw(i, t_):
            for u in range(2):
                a(f"ds_read_b64_tr_b16 {v(WR + (i % DW) * 16 + 4 * t_ + 2 * u, 2)}, {v(WA[t_])} offset:{t_ * 16384 + i * 1024 + u * 512}", lg=f"wo{i}_{t_}")
        for i in range(4):
            for t_ in range(4):
                rw(i, t_)
        self.flag(sFOS, PK + 4)
        self.ts(f"{T}:oflag")
        self.bg_now(bgn[4])
        for i in range(4, DW):
            for t_ in range(4):
                rw(i, t_)
        self.poll(vPOLL, sFOP, PK + 5)
        self.ts(f"{T}:opoll")

        def ldo(i):
            if i % 4 == 0:
                a(f"s_add_u32 {s(sT0)}, {s(sOLD)}, {i * 1024}")
            a(f"buffer_load_dwordx4 {v(4 * i, 4)}, {v(vL16)}, {s(sWS, 4)}, {s(sT0)} offen offset:{(i % 4) * 1024} sc1", vm=f"o{i}")
        NO = cfg["no0"]
        for i in range(NO):
            ldo(i)
        for i in range(16):
            for t_ in range(4):
                a.wait(vm=f"o{i}", lg=f"wo{i}_{t_}")
                a(f"v_mfma_f32_16x16x32_bf16 {v(XR + 4 * t_, 4)}, {v(WR + (i % DW) * 16 + 4 * t_, 4)}, {v(4 * i, 4)}, {v(XR + 4 * t_, 4)}")
                if t_ == 0 and i + NO < 16:
                    ldo(i + NO)
                if i + DW < 16:
                    rw(i + DW, t_)
        nlate = len(self.bg)
        self.bg_now(99)
        self.ts(f"{T}:ogemm")
        self.dump("x", list(range(XR, XR + 16)), PK)
        if cfg["stop"] is not None and cfg["stop"] % 2 == T:
            a(f"s_cmp_eq_u32 {s(sLAY)}, {cfg['stop']}")
            a("s_cbranch_scc1 L_final")
        if T == 1:
            a(f"s_cmp_eq_u32 {s(sPASS)}, 1")
            a("s_cbranch_scc1 L_final")
        self.x_publish()
        a("s_barrier")
        assert nlate <= 8
        if T == 0:
            self.sel_read(0)
        self.put_wkv(1 - T, 0, 8)
        a(f"s_add_u32 {s(sTAG)}, {s(sTAG)}, 16")
        a(f"s_add_u32 {s(sKVT)}, {s(sKVT)}, {KVP[T + 1] - KVP[T]}")
        a(f"s_add_u32 {s(sLAY)}, {s(sLAY)}, 1")
        self.flag(sFXS, PK + 4)
        if T == 0:
            with self.pass1():
                a.wait(lg="sel")
                for i in range(16):
                    self.cs_kv_step(1, i, 0, 4)
                self.cs_kv_fin(1, 4, 8)
        self.ts(f"{T}:xflag")
        if T == 1:
            a(f"s_mov_b32 {s(sPASS)}, 1")
            a(f"s_mov_b64 {s(sPM, 2)}, -1")
            a("s_branch L_layer0")

    def prologue(self):
        a, cfg = self.a, self.cfg
        a(f"s_cmp_ge_u32 {s(sID)}, 256")
        a("s_cbranch_scc1 L_end")
        self.ts("start")
        a(f"s_load_dwordx16 {s(4, 16)}, s[0:1], 0")
        a(f"s_load_dwordx4 {s(20, 4)}, s[0:1], 64")
        a(f"s_getpc_b64 {s(sSAVE, 2)}")
        a.label("L_pc")
        NCL = cfg["codepf"]
        a(f"s_bfe_u32 {s(sT0)}, {s(sID)}, {3 | (3 << 16)}")
        a(f"s_mul_i32 {s(sT0)}, {s(sT0)}, {NCL}")
        a(f"v_min_u32 v1, {NCL - 1}, v0")
        a(f"v_add_u32 v1, {s(sT0)}, v1")
        a(f"v_min_u32 v1, (L_codeend-L_pc)/128, v1")
        a("v_lshlrev_b32 v1, 7, v1")
        a(f"global_load_dword v2, v1, {s(sSAVE, 2)}")
        if cfg["ts"]:
            a(f"s_mov_b32 {s(sTSI)}, 0")
            a(f"v_mov_b32 {v(vTS)}, 0")
            a(f"s_memrealtime s[78:79]")
        L = 3
        a(f"v_lshrrev_b32 v1, 6, v0")
        a(f"v_and_b32 {v(L)}, 63, v0")
        a(f"v_readfirstlane_b32 {s(sW)}, v1")
        a(f"v_lshlrev_b32 {v(vL16)}, 4, {v(L)}")
        a(f"s_bfe_u32 {s(sC)}, {s(sID)}, {3 | (4 << 16)}")
        a(f"s_lshr_b32 {s(sT0)}, {s(sID)}, 7")
        a(f"s_and_b32 {s(sR)}, {s(sID)}, 7")
        a(f"s_lshl1_add_u32 {s(sR)}, {s(sR)}, {s(sT0)}")
        sBP, sSUB, sCG, sB = 99, 100, 101, sCNT
        a(f"s_lshr_b32 {s(sT0)}, {s(sC)}, 3")
        a(f"s_lshr_b32 {s(sT3)}, {s(sW)}, 1")
        a(f"s_lshl1_add_u32 {s(sT0)}, {s(sT0)}, {s(sT3)}")
        a(f"s_lshl2_add_u32 {s(sBP)}, {s(sR)}, {s(sT0)}")
        a(f"s_lshl2_add_u32 {s(sB)}, {s(sR)}, {s(sW)}")
        a(f"s_and_b32 {s(sSUB)}, {s(sW)}, 1")
        a(f"s_and_b32 {s(sCG)}, {s(sC)}, 7")
        a(f"s_lshl1_add_u32 {s(sT0)}, {s(sBP)}, {s(sSUB)}")
        a(f"s_lshl_b32 {s(sOLD)}, {s(sT0)}, 14")
        a(f"s_lshl_b32 {s(sT0)}, {s(sCG)}, 7")
        a(f"s_add_u32 {s(sFIN)}, {s(sOLD)}, {s(sT0)}")
        a(f"s_lshl3_add_u32 {s(sT0)}, {s(sBP)}, {s(sCG)}")
        a(f"s_lshl4_add_u32 {s(sT0)}, {s(sT0)}, {s(sSUB)}")
        a(f"s_lshl_b32 {s(sXST)}, {s(sT0)}, 8")
        self.rowmajor_voff(4, 5)
        a(f"s_lshl_b32 {s(sXLD)}, {s(sB)}, 15")
        a(f"s_lshl_b32 {s(sT0)}, {s(sC)}, 10")
        a(f"s_add_u32 {s(sOST)}, {s(sXLD)}, {s(sT0)}")
        a(f"s_add_u32 {s(sOST)}, {s(sOST)}, {OBUF}")
        a(f"s_lshl_b32 {s(sSTLD)}, {s(sB)}, 11")
        a(f"s_add_u32 {s(sSTLD)}, {s(sSTLD)}, {STATS}")
        a(f"s_lshl_b32 {s(sT0)}, {s(sB)}, 7")
        a(f"s_add_u32 {s(sFXP)}, {s(sT0)}, {FLAGX}")
        a(f"s_add_u32 {s(sFOS)}, {s(sT0)}, {FLAGO}")
        a(f"s_lshl_b32 {s(sT0)}, {s(sC)}, 7")
        a(f"s_add_u32 {s(sT0)}, {s(sT0)}, {s(sSTLD)}")
        a(f"v_mov_b32 v48, {s(sT0)}")
        a(f"v_writelane_b32 v48, {s(sFXP)}, 1")
        a(f"v_writelane_b32 v48, {s(sFOS)}, 2")
        a(f"v_lshrrev_b32 v6, 4, {v(L)}")
        a(f"v_lshlrev_b32 v6, 10, v6")
        a(f"v_lshl_add_u32 v6, {v(L)}, 7, v6")
        for r_ in (sTMP, sWS, sOUT, sSW[0], sSW[1], sSO[0], sSO[1]):
            a(f"s_mov_b32 {s(r_ + 3)}, 0x20000")
        a(f"s_mov_b32 {s(sWS + 2)}, {WS_SIZE:#x}")
        a(f"s_mov_b32 {s(sOUT + 2)}, 0x200000")
        a(f"s_mov_b32 {s(sTMP + 2)}, 0x200000")
        a(f"s_lshr_b32 {s(sT2)}, {s(sID)}, 3")
        a(f"s_lshl2_add_u32 {s(sT2)}, {s(sT2)}, {s(sW)}")
        a(f"s_mul_i32 {s(sT2)}, {s(sT2)}, {4 * 3072}")
        for T in range(2):
            a(f"s_mov_b32 {s(sSW[T] + 2)}, {512 * 3072}")
        a(f"s_mov_b32 {s(sSO[0] + 2)}, {512 * 3072}")
        a(f"s_mov_b32 {s(sSO[1] + 2)}, {512 * 1024}")
        a("s_waitcnt lgkmcnt(0)")
        self.ts("kernarg")
        a(f"s_mov_b64 {s(sTMP, 2)}, {s(sPX, 2)}")
        a(f"s_mov_b64 {s(sSW[0], 2)}, {s(sPWA, 2)}")
        for i in range(2):
            a(f"buffer_load_dwordx4 {v(8 + 4 * i, 4)}, v4, {s(sTMP, 4)}, {s(sFIN)} offen offset:{64 * i}", vm="x0")
        a(f"s_load_dword {s(sEP)}, {s(sPWS, 2)}, 0")
        a(f"s_mov_b64 {s(sWS, 2)}, {s(sPWS, 2)}")
        a(f"s_mov_b64 {s(sOUT, 2)}, {s(sPOUT, 2)}")

        def l2pf():
            a(f"buffer_load_dword v2, v6, {s(sSW[0], 4)}, {s(sT2)} offen offset:1024")
        if cfg["l2pf"] == 1:
            l2pf()
        a(f"s_mov_b64 exec, 7")
        a(f"buffer_load_dword v2, v48, {s(sWS, 4)}, 0 offen")
        a("s_mov_b64 exec, -1")
        self.srd_tmp(sPPHI, 16384)
        a(f"s_lshl_b32 {s(sT0)}, {s(sC)}, 10")
        a(f"buffer_load_dwordx4 v[16:19], {v(vL16)}, {s(sTMP, 4)}, {s(sT0)} offen", vm="phi")
        self.ts("p_issue")
        a(f"s_lshl_b32 {s(sT0)}, {s(sC)}, 6")
        a(f"s_and_b32 {s(sT1)}, {s(sR)}, 7")
        a(f"s_lshl3_add_u32 {s(sT1)}, {s(sW)}, {s(sT1)}")
        a(f"s_mul_i32 {s(sQOFF)}, {s(sT1)}, {16 * 3072}")
        a(f"s_add_u32 {s(sQOFF)}, {s(sQOFF)}, {s(sT0)}")
        a(f"s_mul_i32 {s(sWOFF)}, {s(sT3)}, {16 * 3072}")
        a(f"s_add_u32 {s(sWOFF)}, {s(sWOFF)}, {s(sT0)}")
        a(f"s_lshl_b32 {s(sT0)}, {s(sSUB)}, 10")
        a(f"s_add_u32 {s(sWOFF)}, {s(sWOFF)}, {s(sT0)}")
        a(f"s_add_u32 {s(sWOFF)}, {s(sWOFF)}, 1024")
        self.w_voff(5)
        a(f"v_lshrrev_b32 v7, 7, {v(vL16)}")
        a(f"v_mul_u32_u24 v7, {1024 - 128}, v7")
        a(f"v_add_u32 v7, v7, {v(vL16)}")

        def repack_loads():
            a(f"s_mov_b64 {s(sSW[1], 2)}, {s(sPWB, 2)}")
            a(f"s_cmp_lt_u32 {s(sR)}, 8")
            a(f"s_cselect_b64 {s(sSO[0], 2)}, {s(sPWA, 2)}, {s(sPWB, 2)}")
            a(f"s_cmp_lt_u32 {s(sC)}, 8")
            a(f"s_cselect_b64 {s(sSO[1], 2)}, {s(sPWOA, 2)}, {s(sPWOB, 2)}")
            a(f"buffer_load_dwordx4 v[52:55], v5, {s(sSO[0], 4)}, {s(sQOFF)} offen", vm="rp")
            a(f"s_lshl4_add_u32 {s(sT0)}, {s(sW)}, {s(sR)}")
            a(f"s_lshl_b32 {s(sT0)}, {s(sT0)}, 6")
            a(f"s_add_u32 {s(sT0)}, {s(sT0)}, {s(sCG)}")
            a(f"s_lshl_b32 {s(sT0)}, {s(sT0)}, 7")
            a(f"buffer_load_dwordx4 v[56:59], v7, {s(sSO[1], 4)}, {s(sT0)} offen", vm="rp")
            a(f"s_mul_i32 {s(sT0)}, {s(sR)}, {32 * 3072}")
            a(f"s_add_u32 {s(sT0)}, {s(sT0)}, {s(sWOFF)}")
            a(f"buffer_load_dwordx4 v[60:63], v5, {s(sSW[1], 4)}, {s(sT0)} offen", vm="rp")
        if cfg["rp_at"] == 0:
            repack_loads()
        if cfg["l2pf"] == 2:
            l2pf()
        self.ts("p_w0")
        a(f"s_getreg_b32 {s(sXCC)}, hwreg(HW_REG_XCC_ID, 0, 4)")
        a(f"s_lshl_b32 {s(sW13)}, {s(sW)}, 13")
        a(f"s_mov_b64 {s(sPM, 2)}, 0")
        a(f"s_add_u32 {s(sOLD)}, {s(sOLD)}, {OBUF}")
        a(f"s_lshl2_add_u32 {s(sFOS)}, {s(sC)}, {s(sFOS)}")
        a(f"s_lshl_b32 {s(sT0)}, {s(sBP)}, 7")
        a(f"s_add_u32 {s(sFOP)}, {s(sT0)}, {FLAGO}")
        a(f"s_lshl1_add_u32 {s(sT1)}, {s(sCG)}, {s(sSUB)}")
        a(f"s_lshl2_add_u32 {s(sFXS)}, {s(sT1)}, {s(sT0)}")
        a(f"s_add_u32 {s(sFXS)}, {s(sFXS)}, {FLAGX}")
        a(f"s_lshr_b32 {s(sT0)}, {s(sCG)}, 2")
        a(f"s_lshl2_add_u32 {s(sT0)}, {s(sBP)}, {s(sT0)}")
        a(f"s_lshl1_add_u32 {s(sT0)}, {s(sT0)}, {s(sSUB)}")
        a(f"s_lshl_b32 {s(sT0)}, {s(sT0)}, 8")
        a(f"s_and_b32 {s(sT1)}, {s(sCG)}, 3")
        a(f"s_lshl2_add_u32 {s(sSTST)}, {s(sT1)}, {s(sT0)}")
        a(f"s_add_u32 {s(sSTST)}, {s(sSTST)}, {STATS}")
        a(f"s_lshl4_add_u32 {s(sT0)}, {s(sW)}, {s(sC)}")
        a(f"s_lshl_b32 {s(sKVT)}, {s(sT0)}, 10")
        a(f"s_add_u32 {s(sKVT)}, {s(sKVT)}, {KVP[0]}")
        a(f"s_lshl_b32 {s(sHEL)}, {s(sT0)}, 11")
        a(f"s_add_u32 {s(sHEL)}, {s(sHEL)}, {HELLO}")
        a(f"s_lshl2_add_u32 {s(sPK)}, {s(sC)}, {s(sW)}")
        a(f"s_lshl_b32 {s(sPK)}, {s(sPK)}, 10")
        a(f"s_and_b32 {s(sOOFF)}, {s(sPK)}, 0x7fff")
        a(f"s_mov_b32 {s(sMODEO)}, {cfg['owt']}")
        a(f"s_mov_b32 {s(sLN2)}, {LN2:#x}")
        a(f"s_mov_b32 {s(sLN2b)}, {LN2:#x}")
        a(f"s_mov_b32 {s(sDELTA)}, {DELTA:#x}")
        a(f"s_mov_b32 {s(sHI)}, 0")
        a(f"s_mov_b32 {s(sHI + 1)}, -1")
        a(f"s_mov_b32 {s(sPASS)}, 0")
        a(f"s_mov_b32 {s(sLAY)}, 0")
        a(f"s_mov_b32 {s(sMODE)}, 0")
        a(f"s_lshl_b32 {s(sANN)}, {s(sR)}, 7")
        a(f"s_add_u32 {s(sANN)}, {s(sANN)}, {ANN}")
        a(f"s_lshl4_add_u32 {s(sGW)}, {s(sR)}, {s(sC)}")
        a(f"s_lshl2_add_u32 {s(sGW)}, {s(sGW)}, {s(sW)}")
        self.ts("p_scal")
        i16, g, half, q, jj, t0, t1 = 20, 21, 22, 23, 24, 25, 26
        a(f"v_and_b32 {v(i16)}, 15, {v(L)}")
        a(f"v_lshrrev_b32 {v(g)}, 4, {v(L)}")
        a(f"v_lshrrev_b32 {v(half)}, 5, {v(L)}")
        a(f"v_and_b32 {v(q)}, 3, {v(L)}")
        a(f"v_bfe_u32 {v(jj)}, {v(L)}, 2, 2")
        a(f"v_lshlrev_b32 {v(vPOLL)}, 2, {v(i16)}")
        a(f"v_lshlrev_b32 {v(t0)}, 4, {v(i16)}")
        a(f"v_lshl_add_u32 {v(vXST)}, {v(g)}, 10, {v(t0)}")
        a(f"v_lshl_add_u32 {v(vSST)}, {v(half)}, 10, {v(t0)}")
        a(f"v_lshl_add_u32 {v(vSLD)}, {v(half)}, 9, {v(vL16)}")
        a(f"s_lshr_b32 {s(sT0)}, {s(sR)}, 1")
        a(f"s_lshl_b32 {s(sT0)}, {s(sT0)}, 7")
        a(f"s_and_b32 {s(sT1)}, {s(sR)}, 1")
        a(f"s_add_u32 {s(sT0)}, {s(sT0)}, {s(sT1)}")
        a(f"s_lshl_b32 {s(sT0)}, {s(sT0)}, 9")
        a(f"v_lshl_add_u32 {v(vPST)}, {v(half)}, 8, {v(t0)}")
        a(f"v_add_u32 {v(vPST)}, {s(sT0)}, {v(vPST)}")
        a(f"s_lshl_b32 {s(sT1)}, {s(sR)}, 6")
        a(f"s_add_u32 {s(sT1)}, {s(sT1)}, {8 * 65536}")
        a(f"v_lshl_add_u32 {v(vZST)}, {v(g)}, 4, {s(sT1)}")
        a(f"v_add_u32 v49, {s(sT0)}, {v(vL16)}")
        a(f"v_lshl_add_u32 v27, {v(q)}, 4, {s(sT1)}")
        a(f"v_cndmask_b32 v49, v49, v27, {s(sHI, 2)}")
        for i in range(4):
            a(f"v_mov_b32 {v(28 + i)}, -1")
        a(f"v_and_b32 {v(t1)}, 1, {v(g)}")
        a(f"v_lshl_add_u32 {v(vOST)}, {v(t1)}, 14, {v(t0)}")
        a(f"v_lshl_add_u32 {v(vOST)}, {v(half)}, 9, {v(vOST)}")
        a(f"v_lshlrev_b32 {v(vWRD)}, 11, {v(half)}")
        a(f"v_lshl_add_u32 {v(vWRD)}, {v(jj)}, 6, {v(vWRD)}")
        a(f"v_lshl_add_u32 {v(vWRD)}, {v(t1)}, 4, {v(vWRD)}")
        a(f"v_and_b32 v27, 1, {v(q)}")
        a(f"v_lshrrev_b32 v32, 1, {v(q)}")
        a(f"v_lshl_add_u32 {v(vWRD)}, v27, 5, {v(vWRD)}")
        a(f"v_lshl_add_u32 {v(vWRD)}, v32, 3, {v(vWRD)}")
        a(f"v_lshlrev_b32 {v(vSTR)}, 8, {v(half)}")
        a(f"v_lshl_add_u32 {v(vSTR)}, v32, 7, {v(vSTR)}")
        a(f"v_lshl_add_u32 {v(vSTR)}, {v(t1)}, 6, {v(vSTR)}")
        a(f"v_lshl_add_u32 {v(vSTR)}, {v(jj)}, 4, {v(vSTR)}")
        a(f"v_lshl_add_u32 {v(vSTR)}, v27, 3, {v(vSTR)}")
        a(f"s_lshl_b32 {s(sT0)}, {s(sSUB)}, 12")
        a(f"s_add_u32 {s(sT0)}, {s(sT0)}, {L_STG + 0x4000}")
        a(f"v_add_u32 {v(vSTR2)}, {s(sT0)}, {v(vSTR)}")
        a(f"s_lshl_b32 {s(sT0)}, {s(sW)}, 12")
        a(f"s_add_u32 {s(sT0)}, {s(sT0)}, {L_STG}")
        a(f"v_add_u32 {v(vSTR)}, {s(sT0)}, {v(vSTR)}")
        a(f"v_bfe_u32 v33, {v(L)}, 3, 2")
        a(f"v_and_b32 {v(vSTW)}, 0x70, {v(vL16)}")
        a(f"v_lshl_add_u32 {v(vSTW)}, v33, 8, {v(vSTW)}")
        a(f"v_lshl_add_u32 {v(vSTW)}, {v(half)}, 12, {v(vSTW)}")
        a(f"s_lshl_b32 {s(sT0)}, {s(sW)}, 10")
        a(f"s_add_u32 {s(sT0)}, {s(sT0)}, {L_STG}")
        a(f"v_add_u32 {v(vSTW)}, {s(sT0)}, {v(vSTW)}")
        a(f"v_bfe_u32 v34, {v(L)}, 1, 2")
        a(f"v_xor_b32 v33, v33, v34")
        a(f"v_lshlrev_b32 {v(vWOW)}, 14, v34")
        a(f"v_lshl_add_u32 {v(vWOW)}, v33, 5, {v(vWOW)}")
        a(f"v_lshl_add_u32 {v(vWOW)}, {v(half)}, 9, {v(vWOW)}")
        a(f"v_lshl_add_u32 {v(vWOW)}, v27, 4, {v(vWOW)}")
        a(f"s_lshl_b32 {s(sT0)}, {s(sW)}, 12")
        a(f"v_add_u32 {v(vWOW)}, {s(sT0)}, {v(vWOW)}")
        a(f"v_lshlrev_b32 {v(vWOR)}, 3, {v(L)}")
        a(f"s_lshl_b32 {s(sT0)}, {s(sSUB)}, 15")
        a(f"s_and_b32 {s(sT1)}, {s(sW)}, 2")
        a(f"s_lshl_b32 {s(sT2)}, {s(sT1)}, 9")
        a(f"s_add_u32 {s(sT0)}, {s(sT0)}, {s(sT2)}")
        a(f"v_add_u32 {v(vWKW)}, {s(sT0)}, {v(vL16)}")
        a(f"v_and_b32 v33, 0x1f0, {v(vL16)}")
        a(f"v_add_u32 {v(vCSR)}, {L_CSP:#x}, v33")
        a(f"v_and_b32 v34, 1, {v(jj)}")
        a(f"v_cmp_eq_u32 vcc, v34, {v(half)}")
        a(f"v_mov_b32 v35, 512")
        a(f"v_cndmask_b32 {v(vKFR)}, v35, v33, vcc")
        a(f"v_add_u32 {v(vKFR)}, {L_KVF:#x}, {v(vKFR)}")
        a(f"s_mul_i32 {s(sT0)}, {s(sT1)}, 528")
        a(f"s_lshl_b32 {s(sT2)}, {s(sSUB)}, 6")
        a(f"s_add_u32 {s(sT0)}, {s(sT0)}, {s(sT2)}")
        a(f"s_add_u32 {s(sT0)}, {s(sT0)}, {L_KVF}")
        a(f"v_mul_u32_u24 {v(vKFW)}, 528, {v(half)}")
        a(f"v_lshl_add_u32 {v(vKFW)}, {v(q)}, 4, {v(vKFW)}")
        a(f"v_lshl_add_u32 {v(vKFW)}, {v(jj)}, 7, {v(vKFW)}")
        a(f"v_lshl_add_u32 {v(vKFW)}, {v(t1)}, 3, {v(vKFW)}")
        a(f"v_add_u32 {v(vKFW)}, {s(sT0)}, {v(vKFW)}")
        a(f"s_lshl_b32 {s(sT0)}, {s(sW)}, 5")
        a(f"s_add_u32 {s(sT0)}, {s(sT0)}, {L_ZB}")
        a(f"v_lshl_add_u32 {v(vZW)}, {v(q)}, 2, {v(g)}")
        a(f"v_lshl_add_u32 {v(vZW)}, {v(vZW)}, 1, {s(sT0)}")
        a(f"v_mov_b32 v35, {L_ZB:#x}")
        a(f"v_lshl_add_u32 {v(vZR)}, {v(half)}, 5, v35")
        a(f"v_mov_b32 v36, 0x3f80")
        a(f"v_lshlrev_b32 v37, 4, v27")
        a(f"v_lshlrev_b32 v36, v37, v36")
        a(f"v_lshrrev_b32 v37, 1, {v(i16)}")
        a(f"v_lshlrev_b32 v38, 2, {v(t1)}")
        a(f"v_sub_u32 v37, v37, v38")
        for d in range(4):
            a(f"v_cmp_eq_u32 vcc, {d}, v37")
            a(f"v_cndmask_b32 {v(40 + d)}, 0, v36, vcc")
        a(f"v_add_u32 v33, {L_SEL:#x}, v33")
        a(f"ds_write_b128 v33, v[40:43]")
        for i in range(4):
            a(f"v_mov_b32 {v(44 + i)}, 0")
        a(f"v_min_u32 v33, 5, {v(L)}")
        a(f"v_mul_u32_u24 v33, 528, v33")
        a(f"v_add_u32 v33, {L_KVF + 512:#x}, v33")
        a(f"ds_write_b128 v33, v[44:47]")
        self.ts("p_lane")
        a.wait(vm="x0")
        self.ts("x0")
        for i in range(2):
            for d in range(2):
                a(f"v_permlane16_swap_b32 {v(8 + 4 * i + d)}, {v(8 + 4 * i + 2 + d)}")
        for i in range(8):
            a(f"v_lshlrev_b32 {v(XR + 2 * i)}, 16, {v(8 + i)}")
            a(f"v_and_b32 {v(XR + 2 * i + 1)}, 0xffff0000, {v(8 + i)}")
        self.x_publish(wt=True)
        if cfg["rp_at"] == 1:
            repack_loads()
        self.ts("p_xpub")
        for i in range(cfg["n1"]):
            self.ld_wkv(0, i, 5)
        self.ts("p_w1")
        a(f"s_lshl_b32 {s(sT0)}, {s(sW)}, 10")
        a(f"s_add_u32 {s(sT0)}, {s(sT0)}, {L_STG}")
        a(f"v_add_u32 v33, {s(sT0)}, {v(vL16)}")
        a.wait(vm="phi")
        a(f"ds_write_b128 v33, v[16:19]")
        a(f"v_lshlrev_b32 v33, 9, v27")
        a(f"v_lshl_add_u32 v33, {v(half)}, 8, v33")
        a(f"v_lshl_add_u32 v33, {v(jj)}, 5, v33")
        a(f"v_lshl_add_u32 v33, {v(t1)}, 4, v33")
        a(f"v_lshl_add_u32 v33, v32, 3, v33")
        a(f"v_add_u32 v33, {s(sT0)}, v33")
        a("s_waitcnt lgkmcnt(0)")
        a(f"ds_read_b64_tr_b16 v[16:17], v33")
        a(f"ds_read_b64_tr_b16 v[18:19], v33 offset:128")
        a(f"v_lshl_add_u32 v33, {v(half)}, 4, {v(vL16)}")
        a(f"v_add_u32 v33, {L_WPF:#x}, v33")
        a(f"s_mul_i32 {s(sTAG)}, {s(sEP)}, 0x9e3779b1")
        a(f"s_add_u32 {s(sTAG)}, {s(sTAG)}, 0x7f4a7c15")
        a(f"s_and_b32 {s(sTAG)}, {s(sTAG)}, 0xffffff00")
        a(f"s_or_b32 {s(sT1)}, {s(sTAG)}, 0xf0")
        a(f"s_or_b32 {s(sXCC)}, {s(sTAG)}, {s(sXCC)}")
        a(f"v_mov_b32 v34, {s(sXCC)}")
        a(f"v_mov_b32 v35, {s(sT1)}")
        a("s_waitcnt lgkmcnt(0)")
        a.lg.clear()
        a(f"ds_write_b128 v33, v[16:19]")
        self.ts("p_phi")
        a.wait(vm="xst")
        a("s_mov_b64 exec, 1")
        a(f"buffer_store_dword v34, off, {s(sWS, 4)}, {s(sFXS)}")
        with self.only_if(f"s_cmp_eq_u32 {s(sW)}, 0"):
            a(f"s_lshl2_add_u32 {s(sT0)}, {s(sC)}, {s(sANN)}")
            a(f"buffer_store_dword v34, off, {s(sWS, 4)}, {s(sT0)} sc1")
        self.ts("flag0")
        a("s_mov_b32 exec_lo, -1")
        a("s_mov_b32 exec_hi, 15")
        with self.only_if(f"s_cmp_lt_u32 {s(sW)}, 2"):
            for l in (0, 2):
                a(f"s_add_u32 {s(sT0)}, {s(sKVT)}, {KVP[l] - KVP[0]}")
                a(f"buffer_store_dwordx4 v[28:31], v49, {s(sWS, 4)}, {s(sT0)} offen sc1")
        for l in (1, 3):
            a(f"s_add_u32 {s(sT0)}, {s(sKVT)}, {KVP[l] - KVP[0]}")
            a(f"buffer_store_dwordx4 v[28:31], v49, {s(sWS, 4)}, {s(sT0)} offen sc1", vm="pre")
        a("s_mov_b32 exec_hi, -1")
        a(f"s_lshl_b32 {s(sT1)}, {s(sR)}, 16")
        a(f"s_add_u32 {s(sT1)}, {s(sT1)}, {s(sPK)}")
        a.wait(vm="rp")
        for i, base in enumerate((PQ, PO, PKV)):
            a(f"s_add_u32 {s(sT0)}, {s(sT1)}, {base}")
            a(f"buffer_store_dwordx4 {v(52 + 4 * i, 4)}, {v(vL16)}, {s(sWS, 4)}, {s(sT0)} offen sc1", vm="pre")
        self.ts("p_prefill")
        a(f"v_and_b32 v33, 0x100, {v(vL16)}")
        a(f"v_lshl_add_u32 v33, v33, 1, {v(vPOLL)}")
        a(f"v_lshlrev_b32 v33, 5, v33")
        a(f"v_lshrrev_b32 v37, 2, {v(vL16)}")
        nxt = cfg["n1"]
        for i in range(16):
            while nxt < min(16, i + cfg["nw"]):
                if nxt == cfg["hl_at"]:
                    a(f"buffer_load_dword v36, v33, {s(sWS, 4)}, {s(sHEL)} offen sc1", vm="hl")
                self.ld_wkv(0, nxt, 5)
                nxt += 1
            if i == cfg["n1"]:
                a.wait(vm="pre")
                a("s_mov_b32 exec_hi, 0")
                a(f"s_lshl_b32 {s(sT0)}, {s(sR)}, 7")
                a(f"s_add_u32 {s(sT0)}, {s(sT0)}, {s(sHEL)}")
                a(f"buffer_store_dword v35, v37, {s(sWS, 4)}, {s(sT0)} offen sc1")
                a("s_mov_b32 exec_hi, -1")
                a(f"s_and_b32 {s(sHEL)}, {s(sHEL)}, 0xffffbfff")
                assert nxt <= cfg["hl_at"]
            a.wait(vm=f"wkv{i}")
            if i < 8:
                self.put_wkv(0, i, i + 1)
            self.cs_kv_step(0, i, 40, 44)
        if cfg["hl_at"] < 16:
            a(f"v_cmp_ne_u32 vcc, v35, v36")
            a(f"s_cmp_eq_u64 vcc, 0")
            a(f"s_cselect_b32 {s(sHEL)}, 0, {s(sHEL)}")
        self.cs_kv_fin(0, 44, 50)
        self.ts("wkv0")

    def poll0(self):
        a = self.a
        a.label("L_poll0")
        a(f"v_and_b32 v33, 0x100, {v(vL16)}")
        a(f"v_add_u32 v33, v33, {v(vPOLL)}")
        a(f"s_and_b32 {s(sT0)}, {s(sFXP)}, 0xfffffeff")
        a(f"s_mov_b32 {s(sCNT)}, 0x40000")
        a.label("L_poll0a")
        if not self.cfg["force_global"]:
            a(f"buffer_load_dword v34, v33, {s(sWS, 4)}, {s(sT0)} offen sc1")
            a(f"s_sub_u32 {s(sCNT)}, {s(sCNT)}, 1")
            a("s_cbranch_scc1 L_timeout")
            a("s_waitcnt vmcnt(0)")
            a(f"v_cmp_ne_u32 vcc, {s(sXCC)}, v34")
            a("s_cbranch_vccz L_enter")
            a(f"s_and_b32 {s(sT1)}, {s(sCNT)}, 15")
            a("s_cbranch_scc1 L_poll0a")
            a(f"buffer_load_dword v34, {v(vPOLL)}, {s(sWS, 4)}, {s(sANN)} offen sc1")
            a("s_waitcnt vmcnt(0)")
            a(f"v_xor_b32 v34, {s(sXCC)}, v34")
            a(f"v_add_u32 v34, -1, v34")
            a(f"v_cmp_gt_u32 vcc, 15, v34")
            a("s_cbranch_vccz L_poll0a")
        a(f"s_mov_b32 {s(sMODE)}, 1")
        for r_ in (sFXS, sFXP):
            a(f"s_add_u32 {s(r_)}, {s(r_)}, {FLAGX2 - FLAGX}")
        for r_ in (sSTST, sSTLD):
            a(f"s_add_u32 {s(r_)}, {s(r_)}, {STATS2 - STATS}")
        self.x_publish(0)
        self.flag(sFXS, 16)
        a("s_branch L_npoll")

    def rowmajor_voff(self, d, t):
        a = self.a
        a(f"v_and_b32 {v(d)}, 0xf0, {v(vL16)}")
        a(f"v_lshlrev_b32 {v(d)}, 6, {v(d)}")
        a(f"v_bfe_u32 {v(t)}, {v(vL16)}, 8, 1")
        a(f"v_lshl_add_u32 {v(d)}, {v(t)}, 5, {v(d)}")
        a(f"v_lshrrev_b32 {v(t)}, 9, {v(vL16)}")
        a(f"v_lshl_add_u32 {v(d)}, {v(t)}, 4, {v(d)}")

    def final(self):
        a = self.a
        a.label("L_final")
        X = LG
        self.rowmajor_voff(PK, PK + 1)
        for i in range(8):
            a(f"v_cvt_pk_bf16_f32 {v(X + i)}, {v(XR + 2 * i)}, {v(XR + 2 * i + 1)}")
        for i in range(2):
            for d in range(2):
                a(f"v_permlane16_swap_b32 {v(X + 4 * i + d)}, {v(X + 4 * i + 2 + d)}")
        for i in range(2):
            a(f"buffer_store_dwordx4 {v(X + 4 * i, 4)}, {v(PK)}, {s(sOUT, 4)}, {s(sFIN)} offen offset:{64 * i}{self.cfg['finflag']}")
        with self.only_if(f"s_cmp_eq_u32 {s(sGW)}, 0"):
            a(f"s_add_u32 {s(sEP)}, {s(sEP)}, 1")
            a(f"v_mov_b32 v0, {s(sEP)}")
            a("s_mov_b64 exec, 1")
            a(f"buffer_store_dword v0, off, {s(sWS, 4)}, 0 sc1")
            a("s_mov_b64 exec, -1")
        if self.cfg["amp"]:
            amp = self.cfg["amp"]
            self.ts("end")
            a("s_sub_u32 s72, s78, s72")
            a(f"s_mul_i32 s72, s72, {amp[4]}")
            if amp[5]:
                a("s_lshr_b32 s72, s72, 5")
            a("s_min_u32 s72, s72, 100000")
            if self.cfg.get("amp_one") is not None:
                a(f"s_cmp_eq_u32 {s(sGW)}, {self.cfg['amp_one']}")
                a("s_cselect_b32 s72, s72, 0")
            a("s_memrealtime s[78:79]")
            a("s_waitcnt lgkmcnt(0)")
            a("s_mov_b32 s73, s78")
            a.label("L_amp")
            a("s_memrealtime s[78:79]")
            a("s_waitcnt lgkmcnt(0)")
            a("s_sub_u32 s78, s78, s73")
            a("s_cmp_lt_u32 s78, s72")
            a("s_cbranch_scc1 L_amp")
        if self.cfg["ts"]:
            a("s_waitcnt vmcnt(0)")
            self.ts("end")
            a("s_memrealtime s[72:73]")
            a("s_waitcnt lgkmcnt(0)")
            a(f"v_writelane_b32 {v(vTS)}, s78, 61")
            a(f"v_writelane_b32 {v(vTS)}, s72, 62")
            a(f"v_writelane_b32 {v(vTS)}, {s(sMODE)}, 63")
            a(f"s_lshl_b32 {s(sT0)}, {s(sGW)}, 8")
            a(f"s_add_u32 {s(sT0)}, {s(sT0)}, {DBG + 0x2000000}")
            a(f"v_lshrrev_b32 v0, 2, {v(vL16)}")
            a(f"buffer_store_dword {v(vTS)}, v0, {s(sWS, 4)}, {s(sT0)} offen")
        a.label("L_timeout")
        a.label("L_end")
        a("s_endpgm")

    def build(self):
        a = self.a
        self.prologue()
        self.layer(0)
        self.layer(1)
        self.final()
        self.poll0()
        a.raw(self.tail)
        a.label("L_codeend")
        a("s_endpgm")
        nops = a.pad_hazards()
        head = open(f"cdna_kernels/{NAME}.s.ref").read().split("; Override launch")[0]
        out = head + f"; @launch grid=(256,1,1) block=(256,1,1) lds={LDS_SIZE}\n"
        out += f""".amdgcn_target "amdgcn-amd-amdhsa--gfx950"
.text
.globl {NAME}_kernel
.p2align 8
.type {NAME}_kernel,@function
{NAME}_kernel:
"""
        out += a.text()
        out += f""".section .rodata,"a"
.p2align 6
.amdhsa_kernel {NAME}_kernel
  .amdhsa_next_free_vgpr 512
  .amdhsa_next_free_sgpr 102
  .amdhsa_accum_offset 256
  .amdhsa_group_segment_fixed_size 0
  .amdhsa_kernarg_size 80
  .amdhsa_user_sgpr_count 2
  .amdhsa_user_sgpr_kernarg_segment_ptr 1
  .amdhsa_system_sgpr_workgroup_id_x 1
.end_amdhsa_kernel
"""
        self.nops = nops
        return out


if __name__ == "__main__":
    import ast
    kw = {}
    out = sys.argv[1]
    for x in sys.argv[2:]:
        k, val = x.split("=", 1)
        kw[k] = ast.literal_eval(val)
    g = Gen(**kw)
    txt = g.build()
    open(out, "w").write(txt)
    print(f"wrote {out}: {len(g.a.ins)} lines, {g.nops} pad states", file=sys.stderr)
```

```python
import re

REG_RE = re.compile(r"^-?(?:abs\()?([vas])(?:(\d+)|\[(\d+):(\d+)\])\)?$")


def regs_of(op):
    op = op.strip()
    m = REG_RE.match(op)
    if m:
        k = m.group(1)
        if m.group(2) is not None:
            return {(k, int(m.group(2)))}
        return {(k, i) for i in range(int(m.group(3)), int(m.group(4)) + 1)}
    if op in ("vcc", "vcc_lo", "vcc_hi"):
        return {("x", "vcc")}
    if op in ("exec", "exec_lo", "exec_hi"):
        return {("x", "exec")}
    if op == "m0":
        return {("x", "m0")}
    return set()


TRANS = ("v_exp_f32", "v_log_f32", "v_rcp_f32", "v_rsq_f32", "v_sqrt_f32", "v_sin_f32", "v_cos_f32")


class Ins:
    def __init__(self, text):
        self.text = text
        self.label = None
        t = text.split(";")[0].strip()
        if t.endswith(":"):
            self.label = t[:-1]
            self.op = None
            return
        if t.startswith(".") or not t:
            self.op = None
            return
        parts = t.split(None, 1)
        self.op = op = parts[0]
        rest = parts[1] if len(parts) > 1 else ""
        ops = [o.strip() for o in re.split(r",(?![^\[]*\])(?![^(]*\))", rest)] if rest else []
        self.mods = ""
        if ops:
            last = ops[-1].split(None, 1)
            ops[-1] = last[0]
            self.mods = last[1] if len(last) > 1 else ""
        self.ops = ops
        R = [regs_of(o) for o in ops]
        self.w, self.r = set(), set()
        self.kind = "other"
        self.A = self.B = self.C = set()
        self.passes = 0
        self.store_data = set()
        U = lambda l: set().union(*l) if l else set()
        if op.startswith("v_mfma"):
            self.kind = "mfma"
            self.w = R[0]
            self.A, self.B, self.C = R[1], R[2], R[3]
            self.r = R[1] | R[2] | R[3]
            self.passes = 8 if "32x32" in op else 4
        elif op.startswith("v_"):
            self.kind = "valu"
            self.w = set(R[0])
            self.r = U(R[1:])
            if op.startswith(("v_dot2c", "v_fmac", "v_writelane")):
                self.r |= R[0]
            if op.startswith("v_permlane"):
                self.w = R[0] | R[1]
                self.r = R[0] | R[1]
            if op.startswith("v_cndmask") and len(ops) == 3:
                self.r.add(("x", "vcc"))
        elif op.startswith("ds_"):
            self.kind = "ds"
            if op.startswith("ds_read"):
                self.w = R[0]
                self.r = U(R[1:])
            else:
                self.r = U(R)
        elif op.startswith(("buffer_", "global_")):
            self.kind = "vmem"
            if "load" in op and " lds" not in " " + self.mods and "_lds_" not in op:
                self.w = R[0]
                self.r = U(R[1:])
            else:
                self.r = U(R)
                if "load" in op:
                    self.r.add(("x", "m0"))
                    self.kind = "vmem"
                    self.ldsdma = True
                elif op.endswith(("x3", "x4")):
                    self.store_data = R[0] if op.startswith("buffer_") else R[1]
        elif op.startswith("s_"):
            self.kind = "salu"
            if op.startswith(("s_cmp", "s_bitcmp", "s_cbranch", "s_branch", "s_waitcnt", "s_nop", "s_barrier", "s_endpgm", "s_sleep", "s_setprio")):
                self.r = U(R)
            else:
                self.w = set(R[0]) if R else set()
                self.r = U(R[1:])
                if "saveexec" in op:
                    self.w.add(("x", "exec"))
        self.trans = op.startswith(TRANS)
        self.dpp = "row_" in self.mods or "quad_perm" in self.mods or op.endswith("_dpp")
        self.dot = op.startswith("v_dot")

    def states(self):
        if self.op is None:
            return 0
        if self.op == "s_nop":
            return int(self.ops[0], 0) + 1
        return 1


def need(p, c):
    n = 0
    vw = {x for x in p.w if x[0] in "va"}
    sw = {x for x in p.w if x[0] == "s" or x == ("x", "vcc")}
    if p.kind == "valu":
        if c.kind == "mfma" and vw & c.r:
            n = max(n, 3 if p.dot else 2)
        if c.kind == "valu":
            if p.trans and not c.trans and vw & c.r:
                n = max(n, 1)
            if p.trans and c.trans and vw & c.r:
                n = max(n, 1)
            if (c.op.startswith("v_permlane") or c.dpp) and vw & c.r:
                n = max(n, 2)
            if c.op.startswith(("v_readlane", "v_readfirstlane")) and vw & c.r:
                n = max(n, 1)
            if sw & c.r:
                n = max(n, 4 if c.op.startswith(("v_readlane", "v_writelane")) else 2)
            if p.dot and (vw & (c.r | c.w)):
                same_c = c.op == p.op and not (vw & set().union(*[regs_of(o) for o in c.ops[1:3]]))
                if not same_c:
                    n = max(n, 3)
        if p.dot and c.kind in ("ds", "vmem") and vw & c.r:
            n = max(n, 3)
        if p.trans and c.kind in ("ds", "vmem") and vw & c.r:
            n = max(n, 1)
        if c.kind == "vmem" and sw & c.r:
            n = max(n, 5)
        if c.kind == "salu" and sw & c.r:
            n = max(n, 1)
        if c.op in ("s_cbranch_vccz", "s_cbranch_vccnz") and ("x", "vcc") in p.w:
            n = max(n, 1)
    if p.kind == "mfma":
        big = {4: 8, 8: 12}[p.passes]
        if c.kind == "mfma":
            if p.w & (c.A | c.B):
                n = max(n, big)
            if p.w & c.C:
                if not (p.w == c.C and p.passes == c.passes):
                    n = max(n, {4: 6, 8: 10}[p.passes])
            elif p.w & c.w:
                n = max(n, {4: 6, 8: 10}[p.passes])
        elif c.kind in ("valu", "ds", "vmem"):
            if p.w & (c.r | c.w):
                n = max(n, big)
            if c.kind == "valu" and p.C & c.w:
                n = max(n, {4: 3, 8: 7}[p.passes])
    if p.store_data and c.kind in ("valu", "ds", "vmem", "mfma") and p.store_data & c.w:
        n = max(n, 2)
    if p.kind == "salu" and ("x", "m0") in p.w and getattr(c, "ldsdma", False):
        n = max(n, 1)
    return n


class Asm:
    def __init__(self):
        self.ins = []
        self.tail = []
        self.vm = []
        self.lg = []
        self.vm1 = []
        self.count1 = True
        self.nlab = 0

    def __call__(self, text, vm=None, lg=None):
        for line in text.strip().split("\n"):
            line = line.strip()
            if not line:
                continue
            i = Ins(line)
            self.ins.append(i)
            if i.op is None:
                continue
            if i.kind == "vmem":
                self.vm.append(vm)
                if self.count1:
                    self.vm1.append(vm)
            elif i.kind == "ds":
                self.lg.append(lg)
        return self

    def label(self, name):
        self.ins.append(Ins(name + ":"))

    def newlabel(self, base):
        self.nlab += 1
        return f"L_{base}_{self.nlab}"

    @staticmethod
    def _cnt(q, tag, mx):
        idx = [i for i, t in enumerate(q) if t == tag]
        if not idx:
            return None
        n = len(q) - 1 - idx[-1]
        n = min(n, mx)
        del q[: len(q) - n]
        return n

    def wait(self, vm=None, lg=None):
        parts = []
        if vm is not None:
            if vm == 0:
                self.vm.clear()
                if self.count1:
                    self.vm1.clear()
                parts.append("vmcnt(0)")
            else:
                n = self._cnt(self.vm, vm, 63)
                if n is not None:
                    parts.append(f"vmcnt({n})")
        if lg is not None:
            if lg == 0:
                self.lg.clear()
                parts.append("lgkmcnt(0)")
            else:
                n = self._cnt(self.lg, lg, 15)
                if n is not None:
                    parts.append(f"lgkmcnt({n})")
        if parts:
            self.ins.append(Ins("s_waitcnt " + " ".join(parts)))

    def wait1(self, tag):
        n = self._cnt(self.vm1, tag, 63)
        if n is not None:
            self.ins.append(Ins(f"s_waitcnt vmcnt({n})"))

    def raw(self, ins_list):
        self.ins.extend(ins_list)

    def pad_hazards(self):
        added = 0
        start = 0
        while True:
            ins = self.ins
            labels = {x.label: i for i, x in enumerate(ins) if x.label}
            jumps = {}
            for i, x in enumerate(ins):
                if x.op and x.op.startswith(("s_cbranch", "s_branch")):
                    if x.ops[0] in labels:
                        jumps.setdefault(labels[x.ops[0]], []).append(i)
            fix = None
            for ci in range(start, len(ins)):
                c = ins[ci]
                if c.op is None or c.kind == "other":
                    continue
                short = 0
                stack = [(ci, 0)]
                seen = {}
                while stack:
                    i, d = stack.pop()
                    preds = []
                    if i > 0 and not (ins[i - 1].op in ("s_branch", "s_endpgm")):
                        preds.append(i - 1)
                    if ins[i].label:
                        preds += jumps.get(i, [])
                    for pi in preds:
                        p = ins[pi]
                        if p.op is not None:
                            k = need(p, c)
                            if k > d:
                                short = max(short, k - d)
                        nd = d + p.states()
                        if nd < 12 and seen.get(pi, 99) > nd:
                            seen[pi] = nd
                            stack.append((pi, nd))
                if short:
                    fix = (ci, short)
                    ins.insert(ci, Ins(f"s_nop {short - 1}"))
                    added += short
                    start = ci
                    break
            if fix is None:
                return added

    def sizes(self):
        import subprocess, tempfile, os
        d = tempfile.mkdtemp()
        body = "\n".join(x.text for x in self.ins if not x.text.startswith(".p2align"))
        open(d + "/t.s", "w").write('.amdgcn_target "amdgcn-amd-amdhsa--gfx950"\n.text\n' + body + "\n")
        L = "bin/"
        r = subprocess.run([L + "clang", "-x", "assembler", "-target", "amdgcn-amd-amdhsa", "-mcpu=gfx950", "-c", d + "/t.s", "-o", d + "/t.o"], capture_output=True, text=True)
        assert r.returncode == 0, r.stderr
        out = subprocess.run([L + "llvm-objdump", "-d", "--mcpu=gfx950", d + "/t.o"], capture_output=True, text=True).stdout
        sz = [4 * len(m.group(1).split()) for m in re.finditer(r"// [0-9A-F]{12}: ([0-9A-F ]+?)(?: <.*)?$", out, re.M)]
        real = [x for x in self.ins if x.op is not None]
        assert len(sz) == len(real), (len(sz), len(real))
        for x, n in zip(real, sz):
            x.size = n

    def layout(self, align=True, pads=None):
        self.sizes()
        WIDE = ("v_mov_b32", "v_add_f32", "v_sub_f32", "v_mul_f32", "v_max_f32", "v_min_f32", "v_exp_f32", "v_rcp_f32", "v_sqrt_f32",
                "v_and_b32", "v_or_b32", "v_xor_b32", "v_lshlrev_b32", "v_lshrrev_b32", "v_add_u32", "v_sub_u32", "v_min_u32", "v_max_u32",
                "v_mul_u32_u24", "v_cmp_eq_u32", "v_cmp_ne_u32", "v_cmp_gt_u32")
        out, addr, paged, npad, stat = [], 0, False, 0, [0, 0, 0]
        ins = self.ins
        for i, x in enumerate(ins):
            if x.op is None:
                if x.text.startswith(".p2align 12"):
                    addr, paged = 0, True
                out.append(x)
                continue
            if paged and pads and (addr >= npad * 4096 or getattr(x, "pad_here", False)):
                lab, txt = pads(npad)
                npad += addr >= npad * 4096
                out.append(Ins(lab + ":"))
                p = Ins(txt); p.size = 4
                out.append(p)
                addr += 4
            if align and x.size == 8 and addr % 8 == 4:
                run = 0
                for y in ins[i:]:
                    if y.op is None:
                        continue
                    if y.size != 8 or (y.kind == "mfma" and y.passes == 8):
                        break
                    run += 1
                if run >= 2:
                    k = len(out) - 1
                    while k >= 0 and (out[k].op is None or (out[k].size == 4 and out[k].op not in WIDE)) and not out[k].text.startswith("."):
                        k -= 1
                    if k >= 0 and out[k].op in WIDE and out[k].size == 4:
                        w = Ins(out[k].text.replace(out[k].op, out[k].op + "_e64", 1)); w.size = 8
                        out[k] = w
                        addr += 4
                        stat[0] += 1
                    elif run >= align:
                        p = Ins("s_nop 0"); p.size = 4
                        out.append(p)
                        addr += 4
                        stat[1] += 1
                    else:
                        stat[2] += 1
            out.append(x)
            addr += x.size
        self.ins = out
        return npad, stat

    def text(self):
        out = []
        for x in self.ins:
            out.append(x.text if (x.label or x.op is None) else "    " + x.text)
        return "\n".join(out) + "\n"
```

```python
import sys
import contextlib
from asmlib import Asm, Ins

NAME = "interleave_layers__linear_attn_block__linear_kernel_hedgehog__prompt"

CFG = dict(
    ts=0, rt=0,
    dump=None,
    amp=None,
    force_global=0,
    n0=5, w_every=25, nw=6, codepf=14, slowpf=1, align=6, pads=1, x_pre=1, x_wt=1, x_ann=1,
    hx='ffff', ho='ffff', touch=1,
    bg=((4, 6, 14, 10, 6, 0), (4, 10, 10, 0, 0, 0)),
    pl_step=(26, 26, 26, 26),
    nx0=8, no0=8,
    wo_every=(8, 10),
    opre=(10, 8, 8),
    xprobe_at=99,
    put_every=1, put_pre=8, xput_every=6, wo_spread=1.5, owait=4,
    finflag="", jit=1,
)

FLAGX, FLAGO, FLAGX2, ANN, HELLO = 0x1000, 0x3000, 0x7000, 0x9000, 0xA0000
STATS, STATS_G = [0x10000, 0x30000], 0x40000
XB = [0, 0x800000]
OB = [0x400000, 0x600000]
KVP = [0xC0000 + 0x90000 * l for l in range(4)]
DBG = 0x1000000
WS_SIZE = 0x8000000
L_P, L_WQ, L_STG = 0x0, [0x10000, 0x18000], 0x20000
L_KVF = 0x26000
L_WPF = L_KVF + 4 * 528
L_ZB = L_WPF + 2 * 528
L_CSP = 0x26D00
L_SEL = 0x27900
LDS_SIZE = 0x28000
XF, AK, AV, RG, LG, XR, PK = 0, 128, 144, 160, 192, 208, 224
vSTR, vSTR2, vPST, vZST, vKFW, vZW, vZR, vOST = range(184, 192)
vL16, vWRD, vSTW, vKFR, vS, vRS, vM, vXST, vSST, vSLD, vPOLL, vWOR, vWOW, vWKW, vCSR, vTS = range(240, 256)
A_WKV, A_WO = [0, 64], [128, 192]
sID = 2
sPX, sPWA, sPWOA, sPBX, sPWB, sPPHI, sPWOB, sPOUT, sPDBG, sPWS = range(4, 24, 2)
sWS, sOUT, sTMP = 24, 28, 32
XS = [sOUT, sWS]
(sW, sC, sR, sXLD, sSTLD, sFXP, sOST, sFOS, sOLD, sFOP, sXST, sSTST, sFXS, sKVT, sTAG, sMODE, sPASS,
 sEP, sXCC, sT0, sT1, sT2, sT3, sCNT, sWOFF, sQOFF, sOOFF, sHEL, sLN2, sLN2b, sDELTA, sFIN) = range(36, 68)
sHI = 68
sSAVE = 70
sTSA = 72
sTSI = 74
sGW = 75
sLAY = 76
sANN = 77
sW13 = 98
sSKIP = 3
sPF = 0
sTG = 1
sPM = 96
sSW, sSO = [80, 84], [88, 92]
vBW, vBO, vHL = RG + 20, RG + 21, RG + 22
vPR, vPB, vPA, vCK = PK + 10, PK + 11, PK + 7, PK + 6
sROW = sPM
sCOL = sPBX
assert sLN2 % 2 == 0

LOG2E = 0x3FB8AA3B
LN2 = 0x3F317218
DELTA = 0x35C1A4C3
import struct
def f2u(x): return struct.unpack("<I", struct.pack("<f", x))[0]
DELTA = f2u(1e-6 * 1.4426950408889634)


def v(a, n=1): return f"v{a}" if n == 1 else f"v[{a}:{a + n - 1}]"
def ar(a, n=1): return f"a{a}" if n == 1 else f"a[{a}:{a + n - 1}]"
def s(a, n=1): return f"s{a}" if n == 1 else f"s[{a}:{a + n - 1}]"


class Gen:
    def __init__(self, **kw):
        self.cfg = dict(CFG)
        self.cfg.update(kw)
        self.a = Asm()
        self.tail = []
        self.nts = 0
        self.tsnames = []
        self.side = []
        self.side_every = 1
        self.xb, self.ob = [0], [0]
        assert self.cfg["hx"][0] == "f" and self.cfg["ho"][0] == "f"
        for l in range(1, 4):
            self.xb.append(self.xb[-1] ^ (self.cfg["hx"][l] == "s"))
            self.ob.append(self.ob[-1] ^ (self.cfg["ho"][l] == "s"))

    @contextlib.contextmanager
    def uncounted(self):
        a = self.a
        vm, lg = list(a.vm), list(a.lg)
        yield
        a.vm, a.lg = vm, lg

    @contextlib.contextmanager
    def only_if(self, cmp):
        a = self.a
        l = a.newlabel("skip")
        a(cmp)
        a(f"s_cbranch_scc0 {l}")
        with self.uncounted():
            yield
        a.label(l)

    @contextlib.contextmanager
    def outofline(self):
        a = self.a
        n0 = len(a.ins)
        with self.uncounted():
            yield
        self.tail += a.ins[n0:]
        del a.ins[n0:]

    def code_pf(self, lo, hi, t):
        a = self.a
        n = f"(({hi}-{lo})/1024+1)"
        a(f"s_bfe_u32 {s(sT0)}, {s(sID)}, {3 | (3 << 16)}")
        a(f"s_mul_i32 {s(sT0)}, {s(sT0)}, {n}*128")
        a(f"s_add_u32 {s(sT0)}, {s(sT0)}, {lo}-L_pc")
        a(f"v_lshlrev_b32 {v(t)}, 3, {v(vL16)}")
        a(f"v_min_u32 {v(t)}, ({n}-1)*128, {v(t)}")
        a(f"v_add_u32 {v(t)}, {s(sT0)}, {v(t)}")
        a(f"v_min_u32 {v(t)}, L_codeend-L_pc, {v(t)}")
        a(f"global_load_dword {v(t)}, {v(t)}, {s(sSAVE, 2)}")

    def warm(self, g):
        a = self.a
        if not self.cfg["pads"]:
            return
        a("s_mov_b64 exec, 0")
        for k in range(3):
            a(f"s_cmp_eq_u32 {s(sW)}, {k}")
            a(f"s_cbranch_scc1 L_pad{4 * g + k}")
        a(f"s_branch L_pad{4 * g + 3}")
        a.label(f"L_warmed{g}")
        a("s_mov_b64 exec, -1")

    def countdown(self):
        self.a(f"s_sub_u32 {s(sCNT)}, {s(sCNT)}, 1")
        self.a("s_cbranch_scc1 L_timeout")

    def bg_region(self, n, slots):
        n = min(n, len(self.bg))
        self.bg_slot = 0
        self.bg_at = [(k * slots) // n for k in range(n)]

    def bg_tick(self):
        for _ in range(self.bg_at.count(self.bg_slot)):
            self.bg.pop(0)()
        self.bg_slot += 1

    def bg_now(self, n):
        for _ in range(min(n, len(self.bg))):
            self.bg.pop(0)()

    def ticker(self):
        def e(text, **kw):
            if self.side and self.bg_slot % self.side_every == 0:
                self.side.pop(0)()
            self.bg_tick()
            self.a(text, **kw)
        return e

    def moded(self, lines, tag=None, reg=sMODE, wt=False):
        a = self.a
        if wt:
            for l in lines:
                a(l + (" sc1" if l.startswith("buffer_store") else ""), vm=tag)
            return
        lg, lj = a.newlabel("glob"), a.newlabel("join")
        a(f"s_cmp_eq_u32 {s(reg)}, 0")
        a(f"s_cbranch_scc0 {lg}")
        for l in lines:
            a(l, vm=tag)
        a.label(lj)
        t = [Ins(lg + ":")] + [Ins(l + (" sc1" if l.startswith("buffer_store") else "")) for l in lines] + [Ins(f"s_branch {lj}")]
        self.tail += t

    def srd_tmp(self, ptr, size):
        a = self.a
        a(f"s_mov_b32 {s(sTMP)}, {s(ptr)}")
        a(f"s_mov_b32 {s(sTMP + 1)}, {s(ptr + 1)}")
        a(f"s_mov_b32 {s(sTMP + 2)}, {size}")

    def ts(self, name):
        a = self.a
        amp = self.cfg["amp"]
        if amp:
            for k in range(2):
                if amp[k] == name:
                    a(f"{'s_memtime' if amp[3] else 's_memrealtime'} {s(72 + 6 * k, 2)}")
                    if name != "start":
                        a("s_waitcnt lgkmcnt(0)")
        if not self.cfg["ts"] or name == "start":
            return
        if self.cfg["ts"] == 1 and name.startswith("p_"):
            return
        if self.cfg["ts"] == 3 and name not in ("x0", "flag0", "poll0", "end") and name[2:] not in ("kvgemm", "ogemm"):
            return
        if self.cfg["ts"] == 2 and ":" in name and name[2:] not in ("kvgemm", "bar3", "ogemm"):
            return
        a(f"{'s_memrealtime' if self.cfg['rt'] else 's_memtime'} {s(sTSA, 2)}")
        a("s_waitcnt lgkmcnt(0)")
        a.lg.clear()
        a(f"v_writelane_b32 {v(vTS)}, {s(sTSA)}, {len(self.tsnames)}")
        self.tsnames.append(name)
        assert len(self.tsnames) <= 56

    def dump(self, point, l, regs, tmp):
        if self.cfg["dump"] != (point, l):
            return
        a = self.a
        with self.uncounted():
            a("s_waitcnt vmcnt(0) lgkmcnt(0)")
            a("s_nop 15")
            a(f"v_lshrrev_b32 {v(tmp)}, 2, {v(vL16)}")
            a(f"s_mul_i32 {s(sT0)}, {s(sGW)}, {64 * 256}")
            a(f"s_add_u32 {s(sT0)}, {s(sT0)}, {DBG}")
            for i, r in enumerate(regs):
                a(f"buffer_store_dword {v(r)}, {v(tmp)}, {s(sWS, 4)}, {s(sT0)} offen")
                a(f"s_add_u32 {s(sT0)}, {s(sT0)}, 256")
            a("s_waitcnt vmcnt(0)")

    def poll(self, voff, soff, tmp, tag=sTG):
        a = self.a
        l = a.newlabel("poll")
        a.label(l)
        a(f"buffer_load_dword {v(tmp)}, {v(voff)}, {s(sWS, 4)}, {s(soff)} offen sc1")
        self.countdown()
        a.wait(vm=0)
        a(f"v_cmp_ne_u32 vcc, {s(tag)}, {v(tmp)}")
        a(f"s_cbranch_vccnz {l}")

    def flag(self, soff, tmp, after=0):
        a = self.a
        a(f"v_mov_b32 {v(tmp)}, {s(sTG)}")
        a.wait(vm=after)
        a("s_mov_b64 exec, 1")
        self.moded([f"buffer_store_dword {v(tmp)}, off, {s(sWS, 4)}, {s(soff)}"])
        a("s_mov_b64 exec, -1")

    def w_voff(self, t):
        a = self.a
        a(f"v_lshrrev_b32 {v(t)}, 6, {v(vL16)}")
        a(f"v_mul_u32_u24 {v(t)}, {3072 - 64}, {v(t)}")
        a(f"v_add_u32 {v(t)}, {v(t)}, {v(vL16)}")

    def ld_wkv(self, T, i, t, st=sT0):
        a = self.a
        a(f"s_add_u32 {s(st)}, {s(sWOFF)}, {i * 32 * 3072}")
        a(f"buffer_load_dwordx4 {ar(A_WKV[T] + 4 * i, 4)}, {v(t)}, {s(sSW[T], 4)}, {s(st)} offen", vm=f"wkv{i}")

    def ld_wq(self, T, i):
        a = self.a
        a(f"s_add_u32 m0, {s(sW13)}, {L_WQ[T] + i * 1024}")
        a(f"s_add_u32 {s(sT0)}, {s(sQOFF)}, {i * 16 * 3072}")
        a(f"buffer_load_dwordx4 {v(self.bw)}, {s(sSW[T], 4)}, {s(sT0)} offen lds", vm="wq")

    def ld_wo(self, T, i):
        a = self.a
        a(f"s_add_u32 {s(sT0)}, {s(sOOFF)}, {i * 8 * 1024}")
        a(f"buffer_load_dwordx4 {ar(A_WO[T] + 4 * i, 4)}, {v(vBO)}, {s(sSO[T], 4)}, {s(sT0)} offen", vm="wo")

    def slow_pf(self, srd, n, t):
        a = self.a
        if not self.cfg["slowpf"]:
            return
        a(f"s_sub_u32 {s(sT0)}, 0x180, {s(srd)}")
        a(f"s_and_b32 {s(sT0)}, {s(sT0)}, 0x380")
        a(f"s_mul_i32 {s(sT1)}, {s(sPF)}, {n * 1024}")
        a(f"s_add_u32 {s(sT0)}, {s(sT0)}, {s(sT1)}")
        a(f"v_lshlrev_b32 {v(t)}, 6, {v(vL16)}")
        a(f"s_mov_b64 exec, {(1 << n) - 1:#x}")
        a(f"buffer_load_dword {v(t)}, {v(t)}, {s(srd, 4)}, {s(sT0)} offen")
        a("s_mov_b64 exec, -1")

    def bg_setup(self, T):
        self.bg = [(lambda i=i: self.ld_wq(T, i)) for i in range(8)] + [(lambda i=i: self.ld_wo(T, i)) for i in range(16)]
        if T == 0:
            self.bg += [(lambda i=i: self.ld_wkv(1, i, vBW)) for i in range(16)]

    def put_wkv(self, T, lo, hi, waits=False):
        for i in range(lo, hi):
            if waits:
                self.a.wait(vm=f"wkv{i}")
            self.a(f"ds_write_b128 {v(vWKW)}, {ar(A_WKV[T] + 4 * i, 4)} offset:{i * 2048}", lg="put")

    def put_wo(self, T, i):
        self.a(f"ds_write_b128 {v(vWOW)}, {ar(A_WO[T] + 4 * i, 4)} offset:{(i >> 2) * 1024 + (i & 3) * 128}")

    @staticmethod
    def woff(j, u):
        return (j >> 2) * 4096 + u * 1024 + (j & 3) * 256

    def colsum(self, addr, nsteps, regs, acc):
        a = self.a
        a(f"v_mov_b32 {v(acc)}, 0")
        for j in range(nsteps):
            for u in range(2):
                a(f"ds_read_b64_tr_b16 {v(regs[j] + 2 * u, 2)}, {v(addr)} offset:{self.woff(j, u)}", lg=f"cs{j}")
        for j in range(nsteps):
            a.wait(lg=f"cs{j}")
            for d in range(4):
                a(f"v_dot2c_f32_bf16 {v(acc)}, {s(sT3)}, {v(regs[j] + d)}")

    def cs_kv_step(self, T, i, sel, d):
        self.a(f"v_mfma_f32_16x16x32_bf16 {v(d, 4)}, {v(sel, 4)}, {ar(A_WKV[T] + 4 * i, 4)}, {v(d, 4) if i else 0}")

    def cs_kv_fin(self, T, d, t):
        a = self.a
        a(f"s_and_b32 {s(sT0)}, {s(sW)}, 1")
        a(f"s_lshl_b32 {s(sT0)}, {s(sT0)}, 9")
        a(f"s_and_b32 {s(sT1)}, {s(sW)}, 2")
        a(f"s_lshl_b32 {s(sT1)}, {s(sT1)}, 2")
        a(f"s_add_u32 {s(sT0)}, {s(sT0)}, {s(sT1)}")
        a(f"s_add_u32 {s(sT0)}, {s(sT0)}, {L_CSP + T * 1536}")
        a(f"v_lshrrev_b32 {v(t)}, 9, {v(vL16)}")
        a(f"v_lshl_add_u32 {v(t)}, {v(t)}, 2, {s(sT0)}")
        a(f"v_bfe_u32 {v(t + 1)}, {v(vL16)}, 4, 1")
        a(f"v_lshl_add_u32 {v(t)}, {v(t + 1)}, 8, {v(t)}")
        a(f"v_bfe_u32 {v(t + 1)}, {v(vL16)}, 8, 1")
        a(f"v_lshl_add_u32 {v(t)}, {v(t + 1)}, 7, {v(t)}")
        a(f"v_bfe_u32 {v(t + 1)}, {v(vL16)}, 5, 1")
        a(f"v_lshl_add_u32 {v(t)}, {v(t + 1)}, 6, {v(t)}")
        for ror in (4, 8):
            for i in range(4):
                a(f"v_add_f32 {v(d + i)}, {v(d + i)}, {v(d + i)} row_ror:{ror}")
        a(f"ds_write2_b32 {v(t)}, {v(d)}, {v(d + 1)} offset0:0 offset1:4")
        a(f"ds_write2_b32 {v(t)}, {v(d + 2)}, {v(d + 3)} offset0:8 offset1:12")

    def mark_slot(self, delta, ones):
        a = self.a
        a(f"s_add_u32 {s(sT2)}, {s(sKVT)}, {delta}")
        a(f"s_mov_b64 exec, {s(sROW, 2)}")
        a(f"buffer_store_dwordx4 {v(ones, 4)}, {v(vPST)}, {s(sWS, 4)}, {s(sT2)} offen sc1", vm="mark")
        a(f"s_mov_b64 exec, {s(sCOL, 2)}")
        a(f"buffer_store_dwordx4 {v(ones, 4)}, {v(vZST)}, {s(sWS, 4)}, {s(sT2)} offen sc1", vm="mark")
        a("s_mov_b64 exec, -1")

    def sel_read(self, sel):
        a = self.a
        a(f"v_and_b32 {v(sel)}, 0x1f0, {v(vL16)}")
        a(f"v_add_u32 {v(sel)}, {L_SEL:#x}, {v(sel)}")
        a(f"ds_read_b128 {v(sel, 4)}, {v(sel)}", lg="sel")

    def cs_q(self, T):
        a = self.a
        t, acc = AV, AV + 1
        a(f"s_mov_b32 {s(sT3)}, 0x3f803f80")
        a(f"s_add_u32 {s(sT0)}, {s(sW13)}, {L_WQ[T]}")
        a(f"v_add_u32 {v(t)}, {s(sT0)}, {v(vWRD)}")
        regs = [LG + 4 * i for i in range(4)] + [PK + 4 * i for i in range(4)]
        self.colsum(t, 8, regs, acc)
        a(f"v_mov_b32 {v(t)}, {v(acc)}")
        a(f"v_permlane32_swap_b32 {v(t)}, {v(acc)}")
        a(f"v_add_f32 {v(acc)}, {v(acc)}, {v(t)}")
        a(f"s_lshl_b32 {s(sT0)}, {s(sW)}, 2")
        a(f"v_add_u32 {v(t)}, {s(sT0)}, {v(vCSR)}")
        a(f"ds_write_b32 {v(t)}, {v(acc)} offset:{T * 1536 + 1024}")

    @staticmethod
    def cs_pack(src, dst):
        return [
            f"v_pk_add_f32 {v(src, 2)}, {v(src, 2)}, {v(src + 2, 2)}",
            f"v_add_f32 {v(src)}, {v(src)}, {v(src + 1)}",
            f"v_cvt_pk_bf16_f32 {v(src + 1)}, {v(src)}, {v(src)}",
            f"v_and_b32 {v(src + 1)}, 0xffff0000, {v(src + 1)}",
            f"v_sub_f32 {v(src)}, {v(src)}, {v(src + 1)}",
            f"v_cvt_pk_bf16_f32 {v(dst)}, {v(src + 1)}, {v(src)}",
        ]

    def x_steps(self, B, src, X, wt=False, mark=False):
        a = self.a
        t = X + 8
        st = []
        E = lambda txt: st.append(lambda: a(txt))
        E(f"s_add_u32 {s(sT2)}, {s(sXST)}, {XB[B]}")
        for i in range(8):
            E(f"v_cvt_pk_bf16_f32 {v(X + i)}, {v(src + 2 * i)}, {v(src + 2 * i + 1)}")
        if mark:
            E(f"v_min_u32 {v(X)}, -2, {v(X)}")
            E(f"v_min_u32 {v(X + 4)}, -2, {v(X + 4)}")
        st.append(lambda: self.moded([f"buffer_store_dwordx4 {v(X + 4 * i, 4)}, {v(vXST)}, {s(XS[B], 4)}, {s(sT2)} offen offset:{i * 512}" for i in range(2)], tag="xst", wt=wt))
        E(f"v_pk_add_f32 {v(t, 2)}, {v(src, 2)}, {v(src + 2, 2)}")
        E(f"v_pk_mul_f32 {v(t + 2, 2)}, {v(src, 2)}, {v(src, 2)}")
        E(f"v_pk_fma_f32 {v(t + 2, 2)}, {v(src + 2, 2)}, {v(src + 2, 2)}, {v(t + 2, 2)}")
        for i in range(2, 8):
            E(f"v_pk_add_f32 {v(t, 2)}, {v(t, 2)}, {v(src + 2 * i, 2)}")
            E(f"v_pk_fma_f32 {v(t + 2, 2)}, {v(src + 2 * i, 2)}, {v(src + 2 * i, 2)}, {v(t + 2, 2)}")
        E(f"v_add_f32 {v(t)}, {v(t)}, {v(t + 1)}")
        E(f"v_add_f32 {v(t + 2)}, {v(t + 2)}, {v(t + 3)}")
        E(f"s_add_u32 {s(sT2)}, {s(sSTST)}, {STATS[B]}")
        E(f"v_permlane32_swap_b32 {v(t)}, {v(t + 2)}")
        E(f"v_add_f32 {v(t)}, {v(t)}, {v(t + 2)}")
        E(f"v_mov_b32 {v(t + 1)}, {v(t)}")
        E(f"v_permlane16_swap_b32 {v(t)}, {v(t + 1)}")
        E(f"v_add_f32 {v(t)}, {v(t)}, {v(t + 1)}")
        if mark:
            E(f"v_min_u32 {v(t)}, -2, {v(t)}")

        def stat():
            a(f"s_mov_b64 exec, {s(sROW, 2)}")
            self.moded([f"buffer_store_dword {v(t)}, {v(vSST)}, {s(sWS, 4)}, {s(sT2)} offen"], tag="xst")
            a("s_mov_b64 exec, -1")
        st.append(stat)
        return st

    def ldx(self, B, j):
        a = self.a
        if j % 4 == 0 and j:
            a(f"s_add_u32 {s(sT3)}, {s(sXLD)}, {XB[B] + j * 1024}")
        a(f"buffer_load_dwordx4 {v(XF + 4 * j, 4)}, {v(vL16)}, {s(XS[B], 4)}, {s(sT3)} offen offset:{(j % 4) * 1024} sc1", vm=f"x{j}")

    def probe(self, what, reg, setexec=True):
        a = self.a
        voff, srd, soff, off, _ = what
        if setexec:
            a("s_mov_b64 exec, 0xffff")
        a(f"buffer_load_dword {v(reg)}, {v(voff)}, {s(srd, 4)}, {s(soff)} offen offset:{off} sc1", vm="probe")
        if setexec:
            a("s_mov_b64 exec, -1")

    def spin(self, what, name):
        a = self.a
        a("s_mov_b64 exec, 0xffff")
        a.label(f"L_spin{name}")
        self.probe(what, vPB, False)
        a("s_waitcnt vmcnt(1)")
        a(f"{what[4]}, {v(vPR)}")
        a(f"s_cbranch_vccz L_go{name}")
        self.probe(what, vPR, False)
        self.countdown()
        a("s_waitcnt vmcnt(1)")
        a(f"{what[4]}, {v(vPB)}")
        a(f"s_cbranch_vccnz L_spin{name}")
        a.label(f"L_go{name}")
        a("s_mov_b64 exec, -1")
        a.vm.clear()

    def what_x(self, l):
        if self.cfg["hx"][l] == "s":
            return (vPA, XS[self.xb[l]], sT3, 3824, "v_cmp_eq_u32 vcc, -1")
        return (vPOLL, sWS, sFXP, 0, f"v_cmp_ne_u32 vcc, {s(sTG)}")

    def what_o(self, l):
        if self.cfg["ho"][l] == "s":
            return (vPA, sWS, sT3, 1008, "v_cmp_eq_u32 vcc, -1")
        return (vPOLL, sWS, sFOP, 0, f"v_cmp_ne_u32 vcc, {s(sTG)}")

    def x_probe_addr(self):
        return [f"v_and_b32 {v(vPR)}, 4, {v(vPOLL)}",
                f"v_mul_u32_u24 {v(vPR)}, 448, {v(vPR)}",
                f"v_lshlrev_b32 {v(vPA)}, 9, {v(vPOLL)}",
                f"v_sub_u32 {v(vPA)}, {v(vPA)}, {v(vPR)}"]

    def phi_a(self, acc, tmp):
        a = self.ticker()
        for i in range(8):
            a(f"v_pk_mul_f32 {v(acc + 2 * i, 2)}, {v(acc + 2 * i, 2)}, {v(vS, 2)} op_sel_hi:[1,0]")
        for i in range(16):
            a(f"v_exp_f32_e64 {v(tmp + i)}, {v(acc + i)} clamp")
            a(f"v_max_f32 {v(acc + i)}, {s(sDELTA)}, {v(acc + i)}")
        for i in range(8):
            a(f"v_pk_fma_f32 {v(acc + 2 * i, 2)}, {v(acc + 2 * i, 2)}, {s(sLN2, 2)}, {v(tmp + 2 * i, 2)}")
        for i in range(8):
            a(f"v_cvt_pk_bf16_f32 {v(PK + i)}, {v(acc + 2 * i)}, {v(acc + 2 * i + 1)}")

    def logits(self):
        a = self.a
        for i in range(8):
            a(f"v_cvt_pk_bf16_f32 {v(PK + i)}, {v(AK + 2 * i)}, {v(AK + 2 * i + 1)}")
        a.wait(lg="wp")
        a(f"v_mfma_f32_32x32x16_bf16 {v(LG, 16)}, {v(PK + 8, 4)}, {v(PK, 4)}, 0")
        a(f"v_mfma_f32_32x32x16_bf16 {v(LG, 16)}, {v(PK + 12, 4)}, {v(PK + 4, 4)}, {v(LG, 16)}")

    def softmax2(self, t, isq, after_plus=None, after_minus=None):
        a = self.ticker()
        a(f"v_max3_f32 {v(t)}, {v(LG)}, {v(LG + 1)}, {v(LG + 2)}")
        a(f"v_min3_f32 {v(t + 1)}, {v(LG)}, {v(LG + 1)}, {v(LG + 2)}")
        for i in range(3, 15, 2):
            a(f"v_max3_f32 {v(t)}, {v(t)}, {v(LG + i)}, {v(LG + i + 1)}")
            a(f"v_min3_f32 {v(t + 1)}, {v(t + 1)}, {v(LG + i)}, {v(LG + i + 1)}")
        a(f"v_max_f32 {v(t)}, {v(t)}, {v(LG + 15)}")
        a(f"v_min_f32 {v(t + 1)}, {v(t + 1)}, {v(LG + 15)}")
        a(f"v_pk_mul_f32 {v(t, 2)}, {v(t, 2)}, {v(vS, 2)} op_sel_hi:[1,0]")
        for sg, E in ((0, AK), (1, LG)):
            for i in range(8):
                if sg == 0:
                    a(f"v_pk_fma_f32 {v(E + 2 * i, 2)}, {v(LG + 2 * i, 2)}, {v(vS, 2)}, {v(t, 2)} op_sel_hi:[1,0,0] neg_lo:[0,0,1] neg_hi:[0,0,1]")
                else:
                    a(f"v_pk_fma_f32 {v(E + 2 * i, 2)}, {v(LG + 2 * i, 2)}, {v(vS, 2)}, {v(t, 2)} op_sel:[0,0,1] op_sel_hi:[1,0,1] neg_lo:[1,0,0] neg_hi:[1,0,0]")
            for i in range(16):
                a(f"v_exp_f32 {v(E + i)}, {v(E + i)}")
            S = t + 2 + 2 * sg
            a(f"v_pk_add_f32 {v(S, 2)}, {v(E, 2)}, {v(E + 2, 2)}")
            for i in range(2, 8):
                a(f"v_pk_add_f32 {v(S, 2)}, {v(S, 2)}, {v(E + 2 * i, 2)}")
            a(f"v_add_f32 {v(S)}, {v(S)}, {v(S + 1)}")
            if not (isq and sg == 0):
                a(f"v_rcp_f32 {v(S)}, {v(S)}")
                if isq:
                    a(f"v_mul_f32 {v(t + 6)}, {f2u(1e-6):#x}, {v(t + 2)}")
                    a(f"v_mul_f32 {v(S)}, {v(S)}, {v(t + 2)}")
                for i in range(8):
                    a(f"v_pk_mul_f32 {v(E + 2 * i, 2)}, {v(E + 2 * i, 2)}, {v(S, 2)} op_sel_hi:[1,0]")
            for i in range(8):
                a(f"v_cvt_pk_bf16_f32 {v(PK + 8 * sg + i)}, {v(E + 2 * i)}, {v(E + 2 * i + 1)}")
            cb = (after_plus, after_minus)[sg]
            if cb:
                cb()

    def layer(self, l):
        a, cfg = self.a, self.cfg
        T, first, last = l & 1, l < 2, l == 3
        NJ = 2 if T == 0 else 4
        skip23 = (lambda: self.only_if(f"s_cmp_lt_u32 {s(sW)}, 2")) if T == 0 else contextlib.nullcontext
        bgn = cfg["bg"][l] if first else (0,) * 6
        self.bg = []
        if first:
            self.bg_setup(T)
            assert sum(bgn) >= len(self.bg) and bgn[0] + bgn[1] >= 8 and sum(bgn[:3]) >= 24
        NX = cfg["nx0"]
        xs, os_ = cfg["hx"][l] == "s", cfg["ho"][l] == "s"
        XI, OI = self.xb[l], self.ob[l]
        a.label(f"L_layer{l}")
        if xs:
            a(f"s_mov_b32 {s(sSKIP)}, 0")
        a.wait(lg=0)
        a("s_barrier")
        self.ts(f"{l}:bar1")
        a.label(f"L_xre{l}")
        ST = LG
        CS = LG + 8
        CSA, MB = PK, PK + 2
        D = 3

        def rd(j, p):
            for u in range(2):
                a(f"ds_read_b64_tr_b16 {v(RG + (j % D) * 8 + 4 * p + 2 * u, 2)}, {v(vWRD)} offset:{p * 32768 + self.woff(j, u)}", lg=f"w{j}")
        for j in range(D):
            rd(j, 0); rd(j, 1)
        a(f"ds_read_b128 {v(CS, 4)}, {v(vCSR)} offset:{T * 1536}", lg="cs")
        a(f"ds_read_b128 {v(CS + 4, 4)}, {v(vCSR)} offset:{T * 1536 + 512}", lg="cs")
        if xs:
            a(f"v_mov_b32 {v(vCK)}, 0")
        if l:
            self.spin(self.what_x(l), f"x{l}")
        a.vm.clear()
        if xs:
            with self.outofline():
                a.label(f"L_xfail{l}")
                a(f"s_mov_b32 {s(sSKIP)}, 1")
                self.countdown()
                if cfg["ts"]:
                    a(f"s_add_u32 {s(sLAY)}, {s(sLAY)}, 1")
                a(f"s_add_u32 {s(sT3)}, {s(sXLD)}, {XB[XI]}")
                a("s_waitcnt vmcnt(0) lgkmcnt(0)")
                self.probe(self.what_x(l), vPR)
                a(f"s_branch L_xre{l}")
        self.ts(f"{l}:xpoll")

        def ldx(j):
            self.ldx(XI, j)
            if j == max(NX, 9):
                a(f"s_add_u32 {s(sT1)}, {s(sSTLD)}, {STATS[XI]}")
                a(f"buffer_load_dwordx4 {v(ST, 4)}, {v(vSLD)}, {s(sWS, 4)}, {s(sT1)} offen sc1", vm="st")
            if j == max(NX, 9) + 2:
                a(f"buffer_load_dwordx4 {v(ST + 4, 4)}, {v(vSLD)}, {s(sWS, 4)}, {s(sT1)} offen offset:512 sc1", vm="st")
        put_at = [int(k * cfg["put_every"]) - cfg["put_pre"] for k in range(8)]
        for j in range(NX):
            ldx(j)
            for k in range(8):
                if put_at[k] == j - NX or (j == 0 and put_at[k] < -NX):
                    self.put_wkv(T, 8 + k, 9 + k)
        t, u_ = ST, ST + 1
        stat = [f"v_max3_u32 {v(vCK)}, {v(vCK)}, {v(ST + 2 * i)}, {v(ST + 2 * i + 1)}" for i in range(4 * xs)] + [
            f"v_pk_add_f32 {v(ST, 2)}, {v(ST, 2)}, {v(ST + 2, 2)}",
            f"v_pk_add_f32 {v(ST + 4, 2)}, {v(ST + 4, 2)}, {v(ST + 6, 2)}",
            f"v_pk_add_f32 {v(ST, 2)}, {v(ST, 2)}, {v(ST + 4, 2)}",
            f"v_add_f32 {v(t)}, {v(ST)}, {v(ST + 1)}",
            f"v_mul_f32 {v(t)}, {f2u(1 / 512):#x}, {v(t)}",
            f"v_mov_b32 {v(u_)}, {v(t)}",
            f"v_permlane32_swap_b32 {v(t)}, {v(u_)}",
            f"v_fma_f32 {v(u_)}, -{v(t)}, {v(t)}, {v(u_)}",
            f"v_max_f32 {v(u_)}, 0, {v(u_)}",
            f"v_cvt_pk_bf16_f32 {v(vM)}, -{v(t)}, -{v(t)}",
            f"v_cvt_pk_bf16_f32 {v(u_)}, {v(u_)}, {v(u_)}",
            f"v_and_b32 {v(u_)}, 0xffff0000, {v(u_)}",
            f"v_add_f32 {v(u_)}, {f2u(1e-5):#x}, {v(u_)}",
            f"v_cvt_pk_bf16_f32 {v(u_)}, {v(u_)}, {v(u_)}",
            f"v_and_b32 {v(u_)}, 0xffff0000, {v(u_)}",
            f"v_sqrt_f32 {v(u_)}, {v(u_)}",
            f"v_cndmask_b32 {v(vM)}, {v(vM)}, 0, {s(sHI, 2)}",
            f"v_cvt_pk_bf16_f32 {v(u_)}, {v(u_)}, {v(u_)}",
            f"v_and_b32 {v(u_)}, 0xffff0000, {v(u_)}",
            f"v_rcp_f32 {v(vRS)}, {v(u_)}",
            f"v_mov_b32 {v(MB)}, {v(vM)}",
            f"v_mul_f32 {v(vS)}, {LOG2E:#x}, {v(vRS)}",
            f"v_mov_b32 {v(MB + 3)}, {v(vM)}",
        ]
        js = max(NX, 9) + 3
        fill = [f"v_mov_b32 {v(MB + 1)}, 0", f"v_mov_b32 {v(MB + 2)}, 0"]
        if l == 0:
            fill += [f"v_mov_b32 {v(PK + 12 + i)}, -1" for i in range(4)]
        fill += [None] * (2 * D - len(fill)) + self.cs_pack(CS, CSA) + self.cs_pack(CS + 4, CSA + 1)
        self.bw = CS + 2
        if first:
            fill += [f"v_lshrrev_b32 {v(self.bw)}, 6, {v(vL16)}", f"v_mul_u32_u24 {v(self.bw)}, {3072 - 64}, {v(self.bw)}",
                     f"v_add_u32 {v(self.bw)}, {v(self.bw)}, {v(vL16)}"]
            assert bgn[0] <= 8
        fill += [None] * (2 * js - len(fill)) + stat
        jc = (len(fill) + 1) // 2 + 1
        assert jc <= 31
        assert put_at[-1] < 16 - D
        self.bg_region(bgn[0], NX)
        for j in range(32):
            a.wait(vm=f"x{j}", lg=f"w{j}")
            if j == 16 - D:
                a.wait(lg="put")
                with self.only_if(f"s_cmp_eq_u32 {s(sSKIP)}, 0") if xs else contextlib.nullcontext():
                    a("s_barrier")
            if j == jc:
                a(f"v_mfma_f32_32x32x8_bf16 {v(AK, 16)}, {v(CSA, 2)}, {v(MB, 2)}, {v(AK, 16)}")
                a(f"v_mfma_f32_32x32x8_bf16 {v(AV, 16)}, {v(CSA, 2)}, {v(MB + 2, 2)}, {v(AV, 16)}")
            for p, acc in ((0, AK), (1, AV)):
                c = v(acc, 16) if j else "0"
                a(f"v_mfma_f32_32x32x16_bf16 {v(acc, 16)}, {v(RG + (j % D) * 8 + 4 * p, 4)}, {v(XF + 4 * j, 4)}, {c}")
                if p == 0:
                    if j + NX < 32:
                        ldx(j + NX)
                    if l == 0 and j + NX == 32:
                        self.mark_slot(KVP[1] - KVP[0], PK + 12)
                    if j + NX >= 32:
                        self.bg_tick()
                    for k in range(8):
                        if put_at[k] == j:
                            self.put_wkv(T, 8 + k, 9 + k)
                    if xs and j & 1:
                        a(f"v_max3_u32 {v(vCK)}, {v(vCK)}, {v(XF + 4 * j - 4)}, {v(XF + 4 * j)}")
                    if xs and j == 31:
                        a(f"v_cmp_eq_u32 vcc, -1, {v(vCK)}")
                    if first and j == 30:
                        a(f"v_mov_b32 {v(vBW)}, {v(self.bw)}")
                        a(f"v_lshrrev_b32 {v(vBO)}, 7, {v(vL16)}")
                        a(f"v_mul_u32_u24 {v(vBO)}, {1024 - 128}, {v(vBO)}")
                        a(f"v_add_u32 {v(vBO)}, {v(vBO)}, {v(vL16)}")
                if j + D < 32:
                    rd(j + D, p)
                if T == 1 and j == 29:
                    a(f"ds_read_b128 {v(PK + 8 + 4 * p, 4)}, {v(vKFR)} offset:{L_WPF - L_KVF + 528 * p}", lg="wp")
                if fill:
                    f_ = fill.pop(0)
                    if f_:
                        a(f_)
        if xs:
            a(f"s_cbranch_vccnz L_xfail{l}")
        self.bw = vBW
        if first:
            self.slow_pf(sSO[T], 4, RG + 23)
        self.ts(f"{l}:kvgemm")
        self.dump("kv", l, list(range(AK, AK + 32)) + [vS, vRS, vM], RG)

        def v_path(e):
            for i in range(8):
                e(f"v_pk_mul_f32 {v(AV + 2 * i, 2)}, {v(AV + 2 * i, 2)}, {v(vS, 2)} op_sel:[0,1]")
            for i in range(8):
                e(f"v_cvt_pk_bf16_f32 {v(AV + i)}, {v(AV + 2 * i)}, {v(AV + 2 * i + 1)}")
            for i in range(2):
                a(f"ds_write_b128 {v(vSTW)}, {v(AV + 4 * i, 4)} offset:{0x4000 + 128 * i}")

        def stage(sg):
            for i in range(2):
                a(f"ds_write_b128 {v(vSTW)}, {v(PK + 8 * sg + 4 * i, 4)} offset:{sg * 8192 + 128 * i}")
        if T == 0:
            self.bg_region(bgn[1], 72)
            self.phi_a(AK, LG)
            stage(0)
            v_path(self.ticker())
        else:
            self.bg_region(bgn[1], 125)
            self.logits()
            v_path(self.ticker())
            self.softmax2(RG, False, lambda: stage(0), lambda: stage(1))
        self.dump("pk", l, list(range(PK, PK + 16)) + list(range(AV, AV + 8)), RG)
        ONE, DK, DZ, PB = RG + 8, AV + 8, AV + 12, AV + 4
        for i in range(4):
            a(f"v_mov_b32 {v(ONE + i)}, 0x3f803f80")
        a.wait(vm="mark", lg=0)
        a("s_barrier")
        self.ts(f"{l}:bar2")
        with skip23():
            for st in range(4):
                for u in range(2):
                    a(f"ds_read_b64_tr_b16 {v(LG + 4 * st + 2 * u, 2)}, {v(vSTR)} offset:{st * 1024 + u * 512}", lg=f"pa{st}")
                for u in range(2):
                    a(f"ds_read_b64_tr_b16 {v(PK + 4 * st + 2 * u, 2)}, {v(vSTR2)} offset:{st * 1024 + u * 512}", lg=f"p{st}")
            for st in range(4):
                a.wait(lg=f"pa{st}")
                a(f"v_mfma_f32_16x16x32_bf16 {v(DZ, 4)}, {v(LG + 4 * st, 4)}, {v(ONE, 4)}, {v(DZ, 4) if st else 0}")
                a.wait(lg=f"p{st}")
                a(f"v_mfma_f32_16x16x32_bf16 {v(DK, 4)}, {v(LG + 4 * st, 4)}, {v(PK + 4 * st, 4)}, {v(DK, 4) if st else 0}")
            a(f"s_mov_b64 exec, {s(sCOL, 2)}")
            for i in range(4):
                a(f"v_min_u32 {v(DZ + i)}, -2, {v(DZ + i)}")
            a(f"buffer_store_dwordx4 {v(DZ, 4)}, {v(vZST)}, {s(sWS, 4)}, {s(sKVT)} offen sc1")
            a("s_mov_b64 exec, -1")
            for i in range(2):
                a(f"v_cvt_pk_bf16_f32 {v(PB + i)}, {v(DK + 2 * i)}, {v(DK + 2 * i + 1)}")
            for i in range(2):
                a(f"v_min_u32 {v(PB + 2 + i)}, -2, {v(PB + i)}")
                a(f"v_min_u32 {v(PB + i)}, -2, {v(PB + i)}")
            for i in range(2):
                a(f"v_permlane16_swap_b32 {v(PB + i)}, {v(PB + 2 + i)}")
            a(f"s_mov_b64 exec, {s(sROW, 2)}")
            a(f"buffer_store_dwordx4 {v(PB, 4)}, {v(vPST)}, {s(sWS, 4)}, {s(sKVT)} offen sc1")
            a("s_mov_b64 exec, -1")
        if cfg["jit"] and l < 3:
            with self.only_if(f"s_cmp_eq_u32 {s(sW)}, 3"):
                self.code_pf(f"L_layer{l + 1}", f"L_layer{l + 2}" if l < 2 else "L_end", AV + 8)
        self.ts(f"{l}:publish")
        if l == 0:
            a(f"v_lshlrev_b32 {v(vHL)}, 5, {v(vPOLL)}")
            a(f"s_or_b32 {s(sTG)}, {s(sTAG)}, 0xf0")
            hello = (vHL, sWS, sHEL, 0, None)
            a(f"buffer_load_dword {v(AV + 9)}, {v(vHL)}, {s(sWS, 4)}, {s(sHEL)} offen sc1", vm="hl")
            self.slow_pf(sSW[1], 12, AV + 10)
        if first:
            a.wait(vm="wq")
            self.cs_q(T)
            a.wait(lg=0)
            a("s_barrier")
        QA = LG
        CS, CSA, MB = LG + 4, LG + 8, LG + 10
        a(f"v_add_u32 {v(QA)}, {L_WQ[T]:#x}, {v(vWRD)}")
        D = 5 if first else 6

        def rq(j):
            for u in range(2):
                a(f"ds_read_b64_tr_b16 {v(RG + (j % D) * 4 + 2 * u, 2)}, {v(QA)} offset:{self.woff(j, u)}", lg=f"q{j}")

        PL, SEL, DR = 0, 36, 40

        def partial_load(i):
            a(f"s_add_u32 {s(sT1)}, {s(sKVT)}, {i * 65536}")
            a(f"buffer_load_dwordx4 {v(PL + 4 * i, 4)}, {v(vL16)}, {s(sWS, 4)}, {s(sT1)} offen sc1", vm="pl")
        for j in range(D):
            rq(j)
        a(f"ds_read_b128 {v(CS, 4)}, {v(vCSR)} offset:{T * 1536 + 1024}", lg="cs")
        fill = []
        rx, ro = not last and cfg["hx"][l + 1] == "s", not last and cfg["ho"][l + 1] == "s"
        if rx or ro or first:
            fill += [f"v_mov_b32 {v(AV)}, -1\nv_mov_b32 {v(AV + 1)}, -1", f"v_mov_b32 {v(AV + 2)}, -1\nv_mov_b32 {v(AV + 3)}, -1"]
        if first:
            def mark():
                with skip23():
                    self.mark_slot(KVP[l + 2] - KVP[l], AV)
            fill += [mark, None]
        if rx:
            N = self.xb[l + 1]
            fill.append(lambda N=N: self.moded([f"s_add_u32 {s(sT2)}, {s(sXST)}, {XB[N]}"] + [
                f"buffer_store_dwordx4 {v(AV, 4)}, {v(vXST)}, {s(XS[N], 4)}, {s(sT2)} offen offset:{i * 512}" for i in range(2)], tag="rst", wt=N not in self.xb[:l + 1]))
            fill.append(None)
            fill.append(lambda N=N: self.moded([f"s_add_u32 {s(sT2)}, {s(sSTST)}, {STATS[N]}", f"s_mov_b64 exec, {s(sROW, 2)}",
                f"buffer_store_dword {v(AV)}, {v(vSST)}, {s(sWS, 4)}, {s(sT2)} offen", "s_mov_b64 exec, -1"], tag="rst"))
            fill.append(None)
        if ro:
            N = self.ob[l + 1]
            fill.append(lambda N=N: self.moded([f"s_add_u32 {s(sT2)}, {s(sOST)}, {OB[N]}"] + [
                f"buffer_store_dwordx4 {v(AV, 4)}, {v(vOST)}, {s(sWS, 4)}, {s(sT2)} offen offset:{i * 256}" for i in range(2)], tag="rst", wt=N not in self.ob[:l + 1]))
        fill += [None] * (D - len(fill))
        fill += self.cs_pack(CS, CSA) + [f"v_mov_b32 {v(CSA + 1)}, 0", f"v_mov_b32 {v(MB)}, {v(vM)}", f"v_mov_b32 {v(MB + 1)}, 0"]
        jc = len(fill) + 1
        PS = cfg["pl_step"][l]
        assert PS >= 10
        self.bg_region(bgn[2], min(PS, 32))
        npl = 0
        for j in range(32):
            a.wait(lg=f"q{j}")
            if j == jc:
                a(f"v_mfma_f32_32x32x8_bf16 {v(AK, 16)}, {v(CSA, 2)}, {v(MB, 2)}, {v(AK, 16)}")
            a(f"v_mfma_f32_32x32x16_bf16 {v(AK, 16)}, {v(RG + (j % D) * 4, 4)}, {v(XF + 4 * j, 4)}, {v(AK, 16) if j else 0}")
            self.bg_tick()
            if l == 0 and j == min(PS, 32) - 1:
                a.wait(vm="hl")
                a(f"v_cmp_ne_u32 vcc, {s(sTG)}, {v(AV + 9)}")
                a("s_cbranch_vccnz L_hello")
                a.label("L_hello_ok")
                with self.outofline():
                    a.label("L_hello")
                    self.poll(vHL, sHEL, AV + 9)
                    a("s_branch L_hello_ok")
            if j >= PS and npl < 9:
                if T == 1:
                    partial_load(npl); npl += 1
                elif (j - PS) % 3 == 0:
                    with skip23():
                        for _ in range(3):
                            partial_load(npl); npl += 1
            if j + D < 32:
                rq(j + D)
            if j == 27:
                self.sel_read(SEL)
            if T == 1 and j in (28, 29):
                a(f"ds_read_b128 {v(PK + 8 + 4 * (j - 28), 4)}, {v(vKFR)} offset:{L_WPF - L_KVF + 528 * (j - 28)}", lg="wp")
            if fill:
                f_ = fill.pop(0)
                if callable(f_):
                    f_()
                elif f_:
                    a(f_)
        def rest_pl():
            with skip23():
                for i in range(npl, 9):
                    partial_load(i)
        if npl < 9 and PS <= 32:
            rest_pl()
        self.ts(f"{l}:qgemm")
        self.dump("q", l, list(range(AK, AK + 16)), RG)
        EPS = RG + 6
        if first:
            if T == 0:
                n = len(a.vm) - 1 - max(i for i, t_ in enumerate(a.vm) if t_ == "wo")
                a(f"s_waitcnt vmcnt({n + 9})")
                with self.only_if(f"s_cmp_ge_u32 {s(sW)}, 2"):
                    a.wait(vm="wo")
            else:
                a.wait(vm="wo")
        nbg3 = min(bgn[3], len(self.bg))
        self.bg_region(bgn[3], 56 if T == 0 else 100)
        self.side = [(lambda i=i: self.put_wo(T, i)) for i in range(16)]
        self.side_every = cfg["wo_every"][T]
        if PS > 32:
            assert not nbg3 and not (first and T == 0)
            self.bg, self.bg_at = [rest_pl], [PS - 33]
        if T == 0:
            self.phi_a(AK, LG)
            a(f"v_mov_b32 {v(EPS)}, {f2u(1e-6):#x}")
        else:
            self.side.pop(0)()
            self.logits()
            self.side.pop(0)()
            self.side.pop(0)()
            self.softmax2(RG, True)
        while self.side:
            self.side.pop(0)()
        self.dump("pq", l, list(range(PK, PK + 16)), AV)
        self.ts(f"{l}:phiq")
        with skip23():
            a.wait(lg="sel")
            a(f"s_waitcnt vmcnt({nbg3})")
            a.label(f"L_chk{l}")
            m = 44
            chk = [f"v_max3_u32 {v(m)}, {v(PL)}, {v(PL + 1)}, {v(PL + 2)}"]
            chk += [f"v_max3_u32 {v(m)}, {v(m)}, {v(PL + i)}, {v(PL + i + 1)}" for i in range(3, 35, 2)]
            chk += [f"v_max_u32 {v(m)}, {v(m)}, {v(PL + 35)}"]
            for i in range(8):
                a(f"v_mfma_f32_16x16x32_bf16 {v(DR, 4)}, {v(SEL, 4)}, {v(PL + 4 * i, 4)}, {v(DR, 4) if i else 0}")
                a(chk.pop(0)); a(chk.pop(0))
            a(chk.pop(0)); a(chk.pop(0))
            a(f"v_cmp_eq_u32 vcc, -1, {v(m)}")
            Z = PL + 32
            a(f"v_permlane16_swap_b32 {v(Z)}, {v(Z + 1)}")
            a(f"v_permlane16_swap_b32 {v(Z + 2)}, {v(Z + 3)}")
            a(f"s_cbranch_vccnz L_again{l}")
            with self.outofline():
                a.label(f"L_again{l}")
                self.countdown()
                if cfg["ts"]:
                    a(f"s_add_u32 {s(sTSI)}, {s(sTSI)}, {1 << (8 * l)}")
                for i in range(9):
                    partial_load(i)
                a("s_waitcnt vmcnt(0)")
                a(f"s_branch L_chk{l}")
            a(f"v_add_f32 {v(Z)}, {v(Z)}, {v(Z + 1)}")
            a(f"v_add_f32 {v(Z + 2)}, {v(Z + 2)}, {v(Z + 3)}")
            for i in range(2):
                a(f"v_cvt_pk_bf16_f32 {v(DR + i)}, {v(DR + 2 * i)}, {v(DR + 2 * i + 1)}")
            a(f"v_permlane32_swap_b32 {v(Z)}, {v(Z + 2)}")
            a(f"v_add_f32 {v(Z)}, {v(Z)}, {v(Z + 2)}")
            a(f"ds_write_b64 {v(vKFW)}, {v(DR, 2)}")
            a(f"v_add_f32 {v(Z)}, {v(Z)}, {v(Z)} row_ror:4")
            a(f"v_add_f32 {v(Z)}, {v(Z)}, {v(Z)} row_ror:8")
            a(f"v_cvt_pk_bf16_f32 {v(Z)}, {v(Z)}, {v(Z)}")
            a(f"ds_write_b16 {v(vZW)}, {v(Z)}")
        if T == 0:
            a(f"s_waitcnt vmcnt({nbg3})")
        self.bg_now(bgn[4])
        a(f"s_add_u32 {s(sT2)}, {s(sOST)}, {OB[OI]}")
        a.wait(lg=0)
        a("s_barrier")
        self.ts(f"{l}:bar3")
        KF, ZF, DEN, O = 0, 16, RG + 6, LG
        for j in range(NJ):
            a(f"ds_read_b128 {v(KF + 4 * j, 4)}, {v(vKFR)} offset:{528 * j}", lg=f"kf{j}")
            a(f"ds_read_b128 {v(ZF + 4 * j, 4)}, {v(vZR)} offset:{(j >> 1) * 64 + (j & 1) * 16}", lg=f"zf{j}")
        WR, DW = 64, 7
        WA = [vWOR, RG + 16, RG + 17, RG + 18]
        for t_ in range(1, 4):
            a(f"v_xor_b32 {v(WA[t_])}, {32 * t_}, {v(vWOR)}")
        for j in range(NJ):
            a.wait(lg=f"kf{j}")
            a(f"v_mfma_f32_32x32x16_bf16 {v(AV, 16)}, {v(KF + 4 * j, 4)}, {v(PK + 4 * j, 4)}, {v(AV, 16) if j else 0}")
            a.wait(lg=f"zf{j}")
            for d in range(4):
                a(f"v_dot2c_f32_bf16 {v(DEN)}, {v(ZF + 4 * j + d)}, {v(PK + 4 * j + d)}")

        def rw(i, t_):
            for u in range(2):
                a(f"ds_read_b64_tr_b16 {v(WR + (i % DW) * 16 + 4 * t_ + 2 * u, 2)}, {v(WA[t_])} offset:{t_ * 16384 + i * 1024 + u * 512}", lg=f"wo{i}_{t_}")
        if os_:
            a(f"v_lshlrev_b32 {v(vPA)}, 8, {v(vPOLL)}")
        else:
            a(f"s_add_u32 {s(sTG)}, {s(sTAG)}, {16 * (l + 1)}")
        a(f"v_rcp_f32 {v(DEN)}, {v(DEN)}")
        for h in range(2):
            for i in range(4 * h, 4 * h + 4):
                a(f"v_pk_mul_f32 {v(AV + 2 * i, 2)}, {v(AV + 2 * i, 2)}, {v(DEN, 2)} op_sel_hi:[1,0]")
            for i in range(4 * h, 4 * h + 4):
                a(f"v_cvt_pk_bf16_f32 {v(O + i)}, {v(AV + 2 * i)}, {v(AV + 2 * i + 1)}")
            if os_:
                a(f"v_min_u32 {v(O + 4 * h)}, -2, {v(O + 4 * h)}")
        self.moded([f"buffer_store_dwordx4 {v(O + 4 * i, 4)}, {v(vOST)}, {s(sWS, 4)}, {s(sT2)} offen offset:{256 * i}" for i in range(2)], tag="ost", wt=l == 0)
        self.dump("o", l, list(range(O, O + 8)), PK)
        self.ts(f"{l}:ostore")
        if first:
            self.warm(l + 1)
        self.bg_now(bgn[5])
        assert not self.bg
        NO = cfg["no0"]
        XN = LG if os_ else XR
        self.xn = XN

        def ldo(i):
            if i % 4 == 0 and i:
                a(f"s_add_u32 {s(sT3)}, {s(sOLD)}, {OB[OI] + i * 1024}")
            a(f"buffer_load_dwordx4 {v(4 * i, 4)}, {v(vL16)}, {s(sWS, 4)}, {s(sT3)} offen offset:{(i % 4) * 1024} sc1", vm=f"o{i}")
        a.label(f"L_ore{l}")
        a.lg.clear()
        a(f"s_add_u32 {s(sT3)}, {s(sOLD)}, {OB[OI]}")
        if os_:
            a(f"v_mov_b32 {v(vCK)}, 0")
        rest = [(i, t_) for i in range(DW) for t_ in range(4)]
        for _ in range(cfg["opre"][0]):
            rw(*rest.pop(0))
        if not os_:
            self.flag(sFOS, PK + 4, "ost")
            for _ in range(cfg["opre"][2]):
                rw(*rest.pop(0))
        self.probe(self.what_o(l), vPR)
        for _ in range(cfg["opre"][1]):
            rw(*rest.pop(0))
        self.spin(self.what_o(l), f"o{l}")
        self.ts(f"{l}:opoll")
        per = -(-len(rest) // NO)
        for i in range(NO):
            ldo(i)
            for _ in range(min(per, len(rest))):
                rw(*rest.pop(0))
        if os_:
            with self.outofline():
                a.label(f"L_ofail{l}")
                self.countdown()
                if cfg["ts"]:
                    a(f"s_add_u32 {s(sLAY)}, {s(sLAY)}, 0x10000")
                a(f"s_branch L_ore{l}")
        todo = [(i, t_) for i in range(DW, 16) for t_ in range(4)]
        done = 0
        for i in range(16):
            for t_ in range(4):
                if t_ % cfg["owait"] == 0:
                    a.wait(vm=f"o{i}", lg=f"wo{i}_{t_ + cfg['owait'] - 1}")
                c = XN if i else XR
                a(f"v_mfma_f32_16x16x32_bf16 {v(XN + 4 * t_, 4)}, {v(WR + (i % DW) * 16 + 4 * t_, 4)}, {v(4 * i, 4)}, {v(c + 4 * t_, 4)}")
                if t_ == 0 and i + NO < 16:
                    ldo(i + NO)
                if os_ and t_ == 1 and i & 1:
                    a(f"v_max3_u32 {v(vCK)}, {v(vCK)}, {v(4 * i - 4)}, {v(4 * i)}")
                if os_ and t_ == 2 and i == 15:
                    a(f"v_cmp_eq_u32 vcc, -1, {v(vCK)}")
                if done < len(todo) and done * cfg["wo_spread"] <= 4 * i + t_:
                    rw(*todo[done]); done += 1
        assert done == len(todo)
        if os_:
            a(f"s_cbranch_vccnz L_ofail{l}")
        if last:
            self.ts(f"{l}:ogemm")
            return
        a("s_barrier")
        self.ts(f"{l}:ogemm")
        self.dump("x", l, list(range(XN, XN + 16)), PK)
        N, XO = 1 - T, self.xb[l + 1]
        steps = self.x_steps(XO, XN, AK, mark=rx)
        if rx:
            steps = [(lambda t_=t_: a(t_)) for t_ in self.x_probe_addr()] + steps
        if os_:
            steps += [(lambda i=i: a(f"v_mov_b64 {v(XR + 2 * i, 2)}, {v(XN + 2 * i, 2)}")) for i in range(8)]
        steps.append(lambda: a(f"s_add_u32 {s(sT3)}, {s(sXLD)}, {XB[XO]}"))
        puts = list(range(8))
        if l == 0:
            self.sel_read(AV)
        for k, st in enumerate(steps):
            if puts and k % cfg["xput_every"] == 0:
                i = puts.pop(0)
                self.put_wkv(N, i, i + 1)
            st()
        for i in puts:
            self.put_wkv(N, i, i + 1)
        a(f"s_add_u32 {s(sKVT)}, {s(sKVT)}, {KVP[l + 1] - KVP[l]}")
        if not rx:
            a(f"s_add_u32 {s(sTG)}, {s(sTAG)}, {16 * (l + 1)}")
            self.flag(sFXS, PK + 4, "xst")
        if l == 0:
            a.wait(lg="sel")
            for i in range(16):
                self.cs_kv_step(1, i, AV, AV + 4)
            self.cs_kv_fin(1, AV + 4, AV + 8)
        self.probe(self.what_x(l + 1), vPR)
        self.ts(f"{l}:xissue")

    def prologue(self):
        cfg = self.cfg
        a = self.a
        a(f"s_cmp_ge_u32 {s(sID)}, 256")
        a("s_cbranch_scc1 L_end")
        self.ts("start")
        a(f"s_load_dwordx16 {s(4, 16)}, s[0:1], 0")
        a(f"s_load_dwordx4 {s(20, 4)}, s[0:1], 64")
        a(f"s_getpc_b64 {s(sSAVE, 2)}")
        a.label("L_pc")
        NCL = cfg["codepf"]
        a(f"s_bfe_u32 {s(sT0)}, {s(sID)}, {3 | (3 << 16)}")
        a(f"s_mul_i32 {s(sT0)}, {s(sT0)}, {NCL}")
        a(f"v_min_u32 v1, {NCL - 1}, v0")
        a(f"v_add_u32 v1, {s(sT0)}, v1")
        a("v_lshlrev_b32 v1, 7, v1")
        if cfg["pads"]:
            a("v_lshlrev_b32 v2, 12, v0")
            a("v_add_u32 v2, L_layer0-L_pc-64*4096, v2")
            a("v_cmp_le_u32 vcc, 64, v0")
            a("v_cndmask_b32 v1, v1, v2, vcc")
        a(f"v_min_u32 v1, L_codeend-L_pc, v1")
        a(f"global_load_dword v2, v1, {s(sSAVE, 2)}")
        if cfg["ts"]:
            a(f"s_mov_b32 {s(sTSI)}, 0")
            a(f"s_mov_b32 {s(sLAY)}, 0")
            a(f"v_mov_b32 {v(vTS)}, 0")
            a(f"s_memrealtime s[78:79]")
        L = 3
        a(f"v_lshrrev_b32 v1, 6, v0")
        a(f"v_and_b32 {v(L)}, 63, v0")
        a(f"v_readfirstlane_b32 {s(sW)}, v1")
        a(f"v_lshlrev_b32 {v(vL16)}, 4, {v(L)}")
        a(f"s_bfe_u32 {s(sC)}, {s(sID)}, {3 | (4 << 16)}")
        a(f"s_lshr_b32 {s(sT0)}, {s(sID)}, 7")
        a(f"s_and_b32 {s(sR)}, {s(sID)}, 7")
        a(f"s_lshl1_add_u32 {s(sR)}, {s(sR)}, {s(sT0)}")
        sBP, sSUB, sCG, sB = 99, 100, 101, sCNT
        a(f"s_lshr_b32 {s(sT0)}, {s(sC)}, 3")
        a(f"s_lshr_b32 {s(sT3)}, {s(sW)}, 1")
        a(f"s_lshl1_add_u32 {s(sT0)}, {s(sT0)}, {s(sT3)}")
        a(f"s_lshl2_add_u32 {s(sBP)}, {s(sR)}, {s(sT0)}")
        a(f"s_lshl2_add_u32 {s(sB)}, {s(sR)}, {s(sW)}")
        a(f"s_and_b32 {s(sSUB)}, {s(sW)}, 1")
        a(f"s_and_b32 {s(sCG)}, {s(sC)}, 7")
        a(f"s_lshl1_add_u32 {s(sT0)}, {s(sBP)}, {s(sSUB)}")
        a(f"s_lshl_b32 {s(sOLD)}, {s(sT0)}, 14")
        a(f"s_lshl_b32 {s(sT0)}, {s(sCG)}, 7")
        a(f"s_add_u32 {s(sFIN)}, {s(sOLD)}, {s(sT0)}")
        a(f"s_lshl3_add_u32 {s(sT0)}, {s(sBP)}, {s(sCG)}")
        a(f"s_lshl4_add_u32 {s(sT0)}, {s(sT0)}, {s(sSUB)}")
        a(f"s_lshl_b32 {s(sXST)}, {s(sT0)}, 8")
        self.rowmajor_voff(4, 5)
        a(f"s_lshl_b32 {s(sT0)}, {s(sC)}, 6")
        a(f"s_mul_i32 {s(sWOFF)}, {s(sT3)}, {16 * 3072}")
        a(f"s_add_u32 {s(sWOFF)}, {s(sWOFF)}, {s(sT0)}")
        a(f"s_lshl_b32 {s(sT0)}, {s(sSUB)}, 10")
        a(f"s_add_u32 {s(sWOFF)}, {s(sWOFF)}, {s(sT0)}")
        a(f"s_add_u32 {s(sWOFF)}, {s(sWOFF)}, 1024")
        self.w_voff(5)
        a(f"s_mov_b32 {s(sTMP + 3)}, 0x20000")
        a(f"s_mov_b32 {s(sSW[0] + 3)}, 0x20000")
        a(f"s_mov_b32 {s(sTMP + 2)}, 0x200000")
        a(f"s_mov_b32 {s(sSW[0] + 2)}, {512 * 3072}")
        a(f"s_lshr_b32 {s(sT2)}, {s(sID)}, 3")
        a(f"s_lshl_b32 {s(sSTLD)}, {s(sB)}, 11")
        a(f"s_lshl_b32 {s(sT0)}, {s(sB)}, 7")
        a(f"s_add_u32 {s(sFXP)}, {s(sT0)}, {FLAGX}")
        a(f"s_add_u32 {s(sFOS)}, {s(sT0)}, {FLAGO}")
        a(f"s_lshl_b32 {s(sHEL)}, {s(sC)}, 7")
        a(f"s_add_u32 {s(sHEL)}, {s(sHEL)}, {s(sSTLD)}")
        a("s_waitcnt lgkmcnt(0)")
        self.ts("kernarg")
        a(f"s_mov_b64 {s(sTMP, 2)}, {s(sPX, 2)}")
        a(f"s_mov_b64 {s(sSW[0], 2)}, {s(sPWA, 2)}")
        for i in range(2):
            a(f"buffer_load_dwordx4 {v(8 + 4 * i, 4)}, v4, {s(sTMP, 4)}, {s(sFIN)} offen offset:{64 * i}", vm="x0")
        a(f"s_lshl2_add_u32 {s(sPF)}, {s(sT2)}, {s(sW)}")
        self.slow_pf(sSW[0], 12, 6)
        for i in range(cfg["n0"]):
            self.ld_wkv(0, i, 5)
        a(f"s_load_dword {s(sEP)}, {s(sPWS, 2)}, 0")
        if cfg["touch"]:
            a(f"s_add_u32 {s(sPBX)}, {s(sPWS)}, {s(sHEL)}")
            a(f"s_addc_u32 {s(sPBX + 1)}, {s(sPWS + 1)}, 0")
            a(f"s_load_dword {s(sTG)}, {s(sPWS, 2)}, {s(sFXP)}")
            a(f"s_load_dword {s(sTG)}, {s(sPWS, 2)}, {s(sFOS)}")
            for b_ in sorted(set(self.xb)):
                a(f"s_load_dword {s(sTG)}, {s(sPBX, 2)}, {STATS[b_]}")
                a(f"s_load_dword {s(sTG)}, {s(sPBX, 2)}, {STATS[b_] + 64}")
        self.ts("p_issue")
        a(f"s_mov_b64 {s(sWS, 2)}, {s(sPWS, 2)}")
        a(f"s_mov_b64 {s(sOUT, 2)}, {s(sPOUT, 2)}")
        for r_ in (sWS, sOUT):
            a(f"s_mov_b32 {s(r_ + 3)}, 0x20000")
        a(f"s_mov_b32 {s(sWS + 2)}, {WS_SIZE:#x}")
        a(f"s_mov_b32 {s(sOUT + 2)}, 0x200000")
        a(f"s_mov_b32 {s(sROW)}, 0xffff")
        a(f"s_mov_b32 {s(sROW + 1)}, 0xffff")
        a(f"s_mov_b32 {s(sMODE)}, 0")
        a(f"s_lshr_b32 {s(sT0)}, {s(sCG)}, 2")
        a(f"s_lshl2_add_u32 {s(sT0)}, {s(sBP)}, {s(sT0)}")
        a(f"s_lshl1_add_u32 {s(sT0)}, {s(sT0)}, {s(sSUB)}")
        a(f"s_lshl_b32 {s(sT0)}, {s(sT0)}, 8")
        a(f"s_and_b32 {s(sT1)}, {s(sCG)}, 3")
        a(f"s_lshl2_add_u32 {s(sSTST)}, {s(sT1)}, {s(sT0)}")
        a(f"s_lshl4_add_u32 {s(sT0)}, {s(sW)}, {s(sC)}")
        a(f"s_lshl_b32 {s(sKVT)}, {s(sT0)}, 10")
        a(f"s_add_u32 {s(sKVT)}, {s(sKVT)}, {KVP[0]}")
        a(f"s_lshl_b32 {s(sHEL)}, {s(sT0)}, 11")
        a(f"s_add_u32 {s(sHEL)}, {s(sHEL)}, {HELLO}")
        a(f"s_mov_b32 {s(sHI)}, 0")
        a(f"s_mov_b32 {s(sHI + 1)}, -1")
        a(f"s_lshl_b32 {s(sXLD)}, {s(sB)}, 15")
        i16, g, half, q, jj, t0, t1 = 20, 21, 22, 23, 24, 25, 26
        a(f"v_and_b32 {v(i16)}, 15, {v(L)}")
        a(f"v_lshrrev_b32 {v(g)}, 4, {v(L)}")
        a(f"v_lshrrev_b32 {v(half)}, 5, {v(L)}")
        a(f"v_and_b32 {v(q)}, 3, {v(L)}")
        a(f"v_bfe_u32 {v(jj)}, {v(L)}, 2, 2")
        a(f"v_lshlrev_b32 {v(vPOLL)}, 2, {v(i16)}")
        a(f"v_lshlrev_b32 {v(t0)}, 4, {v(i16)}")
        a(f"v_lshl_add_u32 {v(vXST)}, {v(g)}, 10, {v(t0)}")
        a(f"v_lshl_add_u32 {v(vSST)}, {v(half)}, 10, {v(t0)}")
        a(f"v_lshl_add_u32 {v(vSLD)}, {v(half)}, 9, {v(vL16)}")
        a(f"s_lshr_b32 {s(sT0)}, {s(sR)}, 1")
        a(f"s_lshl_b32 {s(sT0)}, {s(sT0)}, 7")
        a(f"s_and_b32 {s(sT1)}, {s(sR)}, 1")
        a(f"s_add_u32 {s(sT0)}, {s(sT0)}, {s(sT1)}")
        a(f"s_lshl_b32 {s(sT0)}, {s(sT0)}, 9")
        a(f"v_lshl_add_u32 {v(vPST)}, {v(half)}, 8, {v(t0)}")
        a(f"v_add_u32 {v(vPST)}, {s(sT0)}, {v(vPST)}")
        a(f"s_lshl_b32 {s(sT1)}, {s(sR)}, 6")
        a(f"s_add_u32 {s(sT1)}, {s(sT1)}, {8 * 65536}")
        a(f"v_lshl_add_u32 {v(vZST)}, {v(g)}, 4, {s(sT1)}")
        a(f"v_add_u32 v49, {s(sT0)}, {v(vL16)}")
        a(f"v_lshl_add_u32 v27, {v(q)}, 4, {s(sT1)}")
        a(f"v_cndmask_b32 v49, v49, v27, {s(sHI, 2)}")
        for i in range(4):
            a(f"v_mov_b32 {v(28 + i)}, -1")
        self.warm(0)
        self.ts("p_lane")
        a.wait(vm="x0")
        self.ts("x0")
        for i in range(2):
            for d in range(2):
                a(f"v_permlane16_swap_b32 {v(8 + 4 * i + d)}, {v(8 + 4 * i + 2 + d)}")
        for i in range(8):
            a(f"v_lshlrev_b32 {v(XR + 2 * i)}, 16, {v(8 + i)}")
            a(f"v_and_b32 {v(XR + 2 * i + 1)}, 0xffff0000, {v(8 + i)}")
        for st in self.x_steps(0, XR, AK, wt=cfg["x_wt"]):
            st()
        with self.only_if(f"s_cmp_lt_u32 {s(sW)}, 2"):
            a("s_mov_b32 exec_hi, 15")
            a(f"buffer_store_dwordx4 v[28:31], v49, {s(sWS, 4)}, {s(sKVT)} offen sc1")
            a("s_mov_b32 exec_hi, -1")
        self.srd_tmp(sPPHI, 16384)
        a(f"s_lshl_b32 {s(sT0)}, {s(sC)}, 10")
        a(f"buffer_load_dwordx4 v[16:19], {v(vL16)}, {s(sTMP, 4)}, {s(sT0)} offen", vm="phi")
        self.ts("p_xpub")
        self.nw, cnt, a0 = cfg["n0"], [0], a

        def a(text, **kw):
            if cnt[0] % cfg["w_every"] == 0 and self.nw < 15:
                self.ld_wkv(0, self.nw, 5, sT3)
                self.nw += 1
            cnt[0] += 1
            a0(text, **kw)
        a(f"s_getreg_b32 {s(sXCC)}, hwreg(HW_REG_XCC_ID, 0, 4)")
        a(f"s_lshl_b32 {s(sW13)}, {s(sW)}, 13")
        a(f"s_mov_b32 {s(sCNT)}, 0x40000")
        a(f"s_lshl_b32 {s(sT0)}, {s(sC)}, 10")
        a(f"s_add_u32 {s(sOST)}, {s(sXLD)}, {s(sT0)}")
        a(f"s_lshl2_add_u32 {s(sFOS)}, {s(sC)}, {s(sFOS)}")
        a(f"s_lshl_b32 {s(sT0)}, {s(sBP)}, 7")
        a(f"s_add_u32 {s(sFOP)}, {s(sT0)}, {FLAGO}")
        a(f"s_lshl1_add_u32 {s(sT1)}, {s(sCG)}, {s(sSUB)}")
        a(f"s_lshl2_add_u32 {s(sFXS)}, {s(sT1)}, {s(sT0)}")
        a(f"s_add_u32 {s(sFXS)}, {s(sFXS)}, {FLAGX}")
        a(f"s_lshl_b32 {s(sT0)}, {s(sC)}, 6")
        a(f"s_mul_i32 {s(sQOFF)}, {s(sW)}, {128 * 3072}")
        a(f"s_add_u32 {s(sQOFF)}, {s(sQOFF)}, {s(sT0)}")
        a(f"s_lshl_b32 {s(sOOFF)}, {s(sW)}, 17")
        a(f"s_lshl_b32 {s(sT0)}, {s(sCG)}, 7")
        a(f"s_add_u32 {s(sOOFF)}, {s(sOOFF)}, {s(sT0)}")
        a(f"s_mov_b64 {s(sSW[1], 2)}, {s(sPWB, 2)}")
        a(f"s_mov_b32 {s(sSW[1] + 2)}, {512 * 3072}")
        a(f"s_mov_b32 {s(sSW[1] + 3)}, 0x20000")
        for T in range(2):
            a(f"s_mov_b64 {s(sSO[T], 2)}, {s([sPWOA, sPWOB][T], 2)}")
            a(f"s_mov_b32 {s(sSO[T] + 2)}, {512 * 1024}")
            a(f"s_mov_b32 {s(sSO[T] + 3)}, 0x20000")
        a(f"s_mov_b32 {s(sCOL)}, 0x10001")
        a(f"s_mov_b32 {s(sCOL + 1)}, 0x10001")
        a(f"s_mov_b32 {s(sLN2)}, {LN2:#x}")
        a(f"s_mov_b32 {s(sLN2b)}, {LN2:#x}")
        a(f"s_mov_b32 {s(sDELTA)}, {DELTA:#x}")
        a(f"s_lshl_b32 {s(sANN)}, {s(sR)}, 7")
        a(f"s_add_u32 {s(sANN)}, {s(sANN)}, {ANN}")
        a(f"s_lshl4_add_u32 {s(sGW)}, {s(sR)}, {s(sC)}")
        a(f"s_lshl2_add_u32 {s(sGW)}, {s(sGW)}, {s(sW)}")
        a(f"v_and_b32 {v(t1)}, 1, {v(g)}")
        a(f"v_lshl_add_u32 {v(vOST)}, {v(t1)}, 14, {v(t0)}")
        a(f"v_lshl_add_u32 {v(vOST)}, {v(half)}, 9, {v(vOST)}")
        a(f"v_lshlrev_b32 {v(vWRD)}, 11, {v(half)}")
        a(f"v_lshl_add_u32 {v(vWRD)}, {v(jj)}, 6, {v(vWRD)}")
        a(f"v_lshl_add_u32 {v(vWRD)}, {v(t1)}, 4, {v(vWRD)}")
        a(f"v_and_b32 v27, 1, {v(q)}")
        a(f"v_lshrrev_b32 v32, 1, {v(q)}")
        a(f"v_lshl_add_u32 {v(vWRD)}, v27, 5, {v(vWRD)}")
        a(f"v_lshl_add_u32 {v(vWRD)}, v32, 3, {v(vWRD)}")
        a(f"v_lshlrev_b32 {v(vSTR)}, 8, {v(half)}")
        a(f"v_lshl_add_u32 {v(vSTR)}, v32, 7, {v(vSTR)}")
        a(f"v_lshl_add_u32 {v(vSTR)}, {v(t1)}, 6, {v(vSTR)}")
        a(f"v_lshl_add_u32 {v(vSTR)}, {v(jj)}, 4, {v(vSTR)}")
        a(f"v_lshl_add_u32 {v(vSTR)}, v27, 3, {v(vSTR)}")
        a(f"s_lshl_b32 {s(sT0)}, {s(sSUB)}, 12")
        a(f"s_add_u32 {s(sT0)}, {s(sT0)}, {L_STG + 0x4000}")
        a(f"v_add_u32 {v(vSTR2)}, {s(sT0)}, {v(vSTR)}")
        a(f"s_lshl_b32 {s(sT0)}, {s(sW)}, 12")
        a(f"s_add_u32 {s(sT0)}, {s(sT0)}, {L_STG}")
        a(f"v_add_u32 {v(vSTR)}, {s(sT0)}, {v(vSTR)}")
        a(f"v_bfe_u32 v33, {v(L)}, 3, 2")
        a(f"v_and_b32 {v(vSTW)}, 0x70, {v(vL16)}")
        a(f"v_lshl_add_u32 {v(vSTW)}, v33, 8, {v(vSTW)}")
        a(f"v_lshl_add_u32 {v(vSTW)}, {v(half)}, 12, {v(vSTW)}")
        a(f"s_lshl_b32 {s(sT0)}, {s(sW)}, 10")
        a(f"s_add_u32 {s(sT0)}, {s(sT0)}, {L_STG}")
        a(f"v_add_u32 {v(vSTW)}, {s(sT0)}, {v(vSTW)}")
        a(f"v_bfe_u32 v34, {v(L)}, 1, 2")
        a(f"v_xor_b32 v33, v33, v34")
        a(f"v_lshlrev_b32 {v(vWOW)}, 14, v34")
        a(f"v_lshl_add_u32 {v(vWOW)}, v33, 5, {v(vWOW)}")
        a(f"v_lshl_add_u32 {v(vWOW)}, {v(half)}, 9, {v(vWOW)}")
        a(f"v_lshl_add_u32 {v(vWOW)}, v27, 4, {v(vWOW)}")
        a(f"s_lshl_b32 {s(sT0)}, {s(sW)}, 12")
        a(f"v_add_u32 {v(vWOW)}, {s(sT0)}, {v(vWOW)}")
        a(f"v_lshlrev_b32 {v(vWOR)}, 3, {v(L)}")
        a(f"s_lshl_b32 {s(sT0)}, {s(sSUB)}, 15")
        a(f"s_and_b32 {s(sT1)}, {s(sW)}, 2")
        a(f"s_lshl_b32 {s(sT2)}, {s(sT1)}, 9")
        a(f"s_add_u32 {s(sT0)}, {s(sT0)}, {s(sT2)}")
        a(f"v_add_u32 {v(vWKW)}, {s(sT0)}, {v(vL16)}")
        a(f"v_and_b32 v33, 0x1f0, {v(vL16)}")
        a(f"v_add_u32 {v(vCSR)}, {L_CSP:#x}, v33")
        a(f"v_and_b32 v34, 1, {v(jj)}")
        a(f"v_cmp_eq_u32 vcc, v34, {v(half)}")
        a(f"v_mov_b32 v35, 512")
        a(f"v_cndmask_b32 {v(vKFR)}, v35, v33, vcc")
        a(f"v_add_u32 {v(vKFR)}, {L_KVF:#x}, {v(vKFR)}")
        a(f"s_mul_i32 {s(sT0)}, {s(sT1)}, 528")
        a(f"s_lshl_b32 {s(sT2)}, {s(sSUB)}, 6")
        a(f"s_add_u32 {s(sT0)}, {s(sT0)}, {s(sT2)}")
        a(f"s_add_u32 {s(sT0)}, {s(sT0)}, {L_KVF}")
        a(f"v_mul_u32_u24 {v(vKFW)}, 528, {v(half)}")
        a(f"v_lshl_add_u32 {v(vKFW)}, {v(q)}, 4, {v(vKFW)}")
        a(f"v_lshl_add_u32 {v(vKFW)}, {v(jj)}, 7, {v(vKFW)}")
        a(f"v_lshl_add_u32 {v(vKFW)}, {v(t1)}, 3, {v(vKFW)}")
        a(f"v_add_u32 {v(vKFW)}, {s(sT0)}, {v(vKFW)}")
        a(f"s_lshl_b32 {s(sT0)}, {s(sW)}, 5")
        a(f"s_add_u32 {s(sT0)}, {s(sT0)}, {L_ZB}")
        a(f"v_lshl_add_u32 {v(vZW)}, {v(q)}, 2, {v(g)}")
        a(f"v_lshl_add_u32 {v(vZW)}, {v(vZW)}, 1, {s(sT0)}")
        a(f"v_mov_b32 v35, {L_ZB:#x}")
        a(f"v_lshl_add_u32 {v(vZR)}, {v(half)}, 5, v35")
        a(f"v_mov_b32 v36, 0x3f80")
        a(f"v_lshlrev_b32 v37, 4, v27")
        a(f"v_lshlrev_b32 v36, v37, v36")
        a(f"v_lshrrev_b32 v37, 1, {v(i16)}")
        a(f"v_lshlrev_b32 v38, 2, {v(t1)}")
        a(f"v_sub_u32 v37, v37, v38")
        for d in range(4):
            a(f"v_cmp_eq_u32 vcc, {d}, v37")
            a(f"v_cndmask_b32 {v(40 + d)}, 0, v36, vcc")
        a(f"v_add_u32 v33, {L_SEL:#x}, v33")
        a(f"ds_write_b128 v33, v[40:43]")
        for i in range(4):
            a(f"v_mov_b32 {v(44 + i)}, 0")
        a(f"v_min_u32 v33, 5, {v(L)}")
        a(f"v_mul_u32_u24 v33, 528, v33")
        a(f"v_add_u32 v33, {L_KVF + 512:#x}, v33")
        a(f"ds_write_b128 v33, v[44:47]")
        a = a0
        self.ts("p_setup")
        a(f"s_lshl_b32 {s(sT0)}, {s(sW)}, 10")
        a(f"s_add_u32 {s(sT0)}, {s(sT0)}, {L_STG}")
        a(f"v_add_u32 v33, {s(sT0)}, {v(vL16)}")
        a.wait(vm="phi")
        a(f"ds_write_b128 v33, v[16:19]")
        a(f"v_lshlrev_b32 v33, 9, v27")
        a(f"v_lshl_add_u32 v33, {v(half)}, 8, v33")
        a(f"v_lshl_add_u32 v33, {v(jj)}, 5, v33")
        a(f"v_lshl_add_u32 v33, {v(t1)}, 4, v33")
        a(f"v_lshl_add_u32 v33, v32, 3, v33")
        a(f"v_add_u32 v33, {s(sT0)}, v33")
        a("s_waitcnt lgkmcnt(0)")
        a(f"ds_read_b64_tr_b16 v[16:17], v33")
        a(f"ds_read_b64_tr_b16 v[18:19], v33 offset:128")
        a(f"v_lshl_add_u32 v33, {v(half)}, 4, {v(vL16)}")
        a(f"v_add_u32 v33, {L_WPF:#x}, v33")
        a(f"s_mul_i32 {s(sTAG)}, {s(sEP)}, 0x9e3779b1")
        a(f"s_add_u32 {s(sTAG)}, {s(sTAG)}, 0x7f4a7c15")
        a(f"s_and_b32 {s(sTAG)}, {s(sTAG)}, 0xffffff00")
        a(f"s_or_b32 {s(sT1)}, {s(sTAG)}, 0xf0")
        a(f"s_or_b32 {s(sXCC)}, {s(sTAG)}, {s(sXCC)}")
        a(f"v_mov_b32 v34, {s(sXCC)}")
        a(f"v_mov_b32 v35, {s(sT1)}")
        a("s_waitcnt lgkmcnt(0)")
        a.lg.clear()
        a(f"ds_write_b128 v33, v[16:19]")
        self.ts("p_phi")
        a(f"v_lshrrev_b32 v37, 2, {v(vL16)}")
        a("s_mov_b64 exec, 1")
        a(f"buffer_store_dword v34, off, {s(sWS, 4)}, {s(sFXS)}")
        with self.only_if(f"s_cmp_eq_u32 {s(sW)}, {0 if cfg['x_ann'] else 9}"):
            a(f"s_lshl2_add_u32 {s(sT0)}, {s(sC)}, {s(sANN)}")
            a(f"buffer_store_dword v34, off, {s(sWS, 4)}, {s(sT0)} sc1")
        a("s_mov_b32 exec_lo, -1")
        with self.only_if(f"s_cmp_lt_u32 {s(sW)}, 2"):
            a(f"s_lshl_b32 {s(sT0)}, {s(sR)}, 7")
            a(f"s_add_u32 {s(sT0)}, {s(sT0)}, {s(sHEL)}")
            a(f"buffer_store_dword v35, v37, {s(sWS, 4)}, {s(sT0)} offen sc1")
        a("s_mov_b32 exec_hi, -1")
        a(f"s_and_b32 {s(sHEL)}, {s(sHEL)}, 0xfffeffff")
        self.ts("flag0")
        a(f"v_and_b32 v33, 0x100, {v(vL16)}")
        a(f"v_add_u32 v33, v33, {v(vPOLL)}")
        a(f"s_and_b32 {s(sT2)}, {s(sFXP)}, 0xfffffeff")
        nxt = self.nw
        for i in range(16):
            while nxt < min(16, max(i, cfg["n0"]) + cfg["nw"]):
                self.ld_wkv(0, nxt, 5)
                nxt += 1
                if nxt == 16:
                    a(f"buffer_load_dword v34, v33, {s(sWS, 4)}, {s(sT2)} offen sc1", vm="f0")
            a.wait(vm=f"wkv{i}")
            if i < 8:
                self.put_wkv(0, i, i + 1)
            self.cs_kv_step(0, i, 40, 44)
        self.cs_kv_fin(0, 44, 50)
        self.ts("wkv0")
        a.wait(vm="f0")
        a(f"v_cmp_ne_u32 vcc, {s(sXCC)}, v34")
        a("s_branch L_global" if cfg["force_global"] else "s_cbranch_vccnz L_poll0")
        a.label("L_enter")
        with self.outofline():
            a.label("L_poll0")
            a(f"buffer_load_dword v34, v33, {s(sWS, 4)}, {s(sT2)} offen sc1")
            self.countdown()
            a("s_waitcnt vmcnt(0)")
            a(f"v_cmp_ne_u32 vcc, {s(sXCC)}, v34")
            a("s_cbranch_vccz L_enter")
            a(f"s_and_b32 {s(sT1)}, {s(sCNT)}, 15")
            a("s_cbranch_scc1 L_poll0")
            a(f"buffer_load_dword v34, {v(vPOLL)}, {s(sWS, 4)}, {s(sANN)} offen sc1")
            a("s_waitcnt vmcnt(0)")
            a(f"v_xor_b32 v34, {s(sXCC)}, v34")
            a(f"v_add_u32 v34, -1, v34")
            a(f"v_cmp_gt_u32 vcc, 15, v34")
            a("s_cbranch_vccz L_poll0")
            a.label("L_global")
            a(f"s_mov_b32 {s(sMODE)}, 1")
            a(f"s_add_u32 {s(sFXS)}, {s(sFXS)}, {FLAGX2 - FLAGX}")
            a(f"s_add_u32 {s(sFXP)}, {s(sFXP)}, {FLAGX2 - FLAGX}")
            a(f"s_mov_b32 {s(sTG)}, {s(sTAG)}")
            for r_ in (sSTST, sSTLD):
                a(f"s_add_u32 {s(r_)}, {s(r_)}, {STATS_G}")
            for st in self.x_steps(0, XR, AK, wt=True):
                st()
            self.flag(sFXS, 16)
            self.poll(vPOLL, sFXP, 34)
            a("s_branch L_enter")
        self.ts("poll0")
        a(f"s_add_u32 {s(sT3)}, {s(sXLD)}, {XB[0]}")

    def rowmajor_voff(self, d, t):
        a = self.a
        a(f"v_and_b32 {v(d)}, 0xf0, {v(vL16)}")
        a(f"v_lshlrev_b32 {v(d)}, 6, {v(d)}")
        a(f"v_bfe_u32 {v(t)}, {v(vL16)}, 8, 1")
        a(f"v_lshl_add_u32 {v(d)}, {v(t)}, 5, {v(d)}")
        a(f"v_lshrrev_b32 {v(t)}, 9, {v(vL16)}")
        a(f"v_lshl_add_u32 {v(d)}, {v(t)}, 4, {v(d)}")

    def final(self):
        a = self.a
        X = AK
        self.rowmajor_voff(PK, PK + 1)
        for i in range(8):
            a(f"v_cvt_pk_bf16_f32 {v(X + i)}, {v(self.xn + 2 * i)}, {v(self.xn + 2 * i + 1)}")
        for i in range(2):
            for d in range(2):
                a(f"v_permlane16_swap_b32 {v(X + 4 * i + d)}, {v(X + 4 * i + 2 + d)}")
        for i in range(2):
            a(f"buffer_store_dwordx4 {v(X + 4 * i, 4)}, {v(PK)}, {s(sOUT, 4)}, {s(sFIN)} offen offset:{64 * i}{self.cfg['finflag']}")
        with self.only_if(f"s_cmp_eq_u32 {s(sGW)}, 0"):
            a(f"s_add_u32 {s(sEP)}, {s(sEP)}, 1")
            a(f"v_mov_b32 v0, {s(sEP)}")
            a("s_mov_b64 exec, 1")
            a(f"buffer_store_dword v0, off, {s(sWS, 4)}, 0 sc1")
            a("s_mov_b64 exec, -1")
        if self.cfg["amp"]:
            amp = self.cfg["amp"]
            self.ts("end")
            a("s_sub_u32 s72, s78, s72")
            a(f"s_mul_i32 s72, s72, {amp[2]}")
            if amp[3]:
                a("s_lshr_b32 s72, s72, 5")
            a("s_min_u32 s72, s72, 100000")
            if self.cfg.get("amp_one") is not None:
                a(f"s_cmp_eq_u32 {s(sGW)}, {self.cfg['amp_one']}")
                a("s_cselect_b32 s72, s72, 0")
            a("s_memrealtime s[78:79]")
            a("s_waitcnt lgkmcnt(0)")
            a("s_mov_b32 s73, s78")
            a.label("L_amp")
            a("s_memrealtime s[78:79]")
            a("s_waitcnt lgkmcnt(0)")
            a("s_sub_u32 s78, s78, s73")
            a("s_cmp_lt_u32 s78, s72")
            a("s_cbranch_scc1 L_amp")
        if self.cfg["ts"]:
            a("s_waitcnt vmcnt(0)")
            self.ts("end")
            a("s_memrealtime s[72:73]")
            a("s_waitcnt lgkmcnt(0)")
            a(f"v_writelane_b32 {v(vTS)}, {s(sLAY)}, 58")
            a(f"v_writelane_b32 {v(vTS)}, {s(sTSI)}, 59")
            a(f"v_writelane_b32 {v(vTS)}, {s(sCNT)}, 60")
            a(f"v_writelane_b32 {v(vTS)}, s78, 61")
            a(f"v_writelane_b32 {v(vTS)}, s72, 62")
            a(f"v_writelane_b32 {v(vTS)}, {s(sMODE)}, 63")
            a(f"s_lshl_b32 {s(sT0)}, {s(sGW)}, 8")
            a(f"s_add_u32 {s(sT0)}, {s(sT0)}, {DBG + 0x2000000}")
            a(f"v_lshrrev_b32 v0, 2, {v(vL16)}")
            a(f"buffer_store_dword {v(vTS)}, v0, {s(sWS, 4)}, {s(sT0)} offen")
        a.label("L_timeout")
        a.label("L_end")
        a("s_endpgm")

    def place(self):
        a = self.a
        if not self.cfg["pads"]:
            self.stat = a.layout(self.cfg["align"])
            return
        keep = list(a.ins)
        for k in range(12):
            a.ins.append(Ins(f"L_pad{k}:"))
        cnt = [0]

        def probe(k):
            cnt[0] += 1
            return f"L_tmp{cnt[0]}", "s_nop 0"
        a.layout(self.cfg["align"], probe)
        n = cnt[0]
        a.ins = keep + [Ins(f"L_pad{k}:") for k in range(12)]
        cnt[0] = 0

        def pad(_):
            k = cnt[0]
            cnt[0] += 1
            return f"L_pad{k}", f"s_cbranch_execz L_warmed{k // 4}"
        self.stat = a.layout(self.cfg["align"], pad)
        del a.ins[-12:]
        assert cnt[0] == n <= 12
        for k in range(n, 12):
            i = [x.label for x in a.ins].index(f"L_warmed{k // 4}")
            a.ins.insert(i, Ins(f"L_pad{k}:"))

    def build(self):
        a = self.a
        self.prologue()
        if self.cfg["pads"]:
            a("s_branch L_layer0")
            a(".p2align 12")
        for l in range(4):
            self.layer(l)
        self.final()
        hot = [k for k, x in enumerate(self.tail) if x.label and x.label.startswith("L_again")]
        blocks, rest_, k = [], [], 0
        while k < len(self.tail):
            e = k
            while self.tail[e].op != "s_branch":
                e += 1
            (blocks if k in hot else rest_).extend(self.tail[k:e + 1])
            k = e + 1
        blocks[1].pad_here = True
        a.raw(blocks + rest_)
        a.label("L_codeend")
        a("s_endpgm")
        nops = a.pad_hazards()
        self.place()
        head = open(f"cdna_kernels/{NAME}.s.ref").read().split("; Override launch")[0]
        out = head + f"; @launch grid=(256,1,1) block=(256,1,1) lds={LDS_SIZE}\n"
        out += f""".amdgcn_target "amdgcn-amd-amdhsa--gfx950"
.text
.globl {NAME}_kernel
.p2align 8
.type {NAME}_kernel,@function
{NAME}_kernel:
"""
        out += a.text()
        out += f""".section .rodata,"a"
.p2align 6
.amdhsa_kernel {NAME}_kernel
  .amdhsa_next_free_vgpr 512
  .amdhsa_next_free_sgpr 102
  .amdhsa_accum_offset 256
  .amdhsa_group_segment_fixed_size 0
  .amdhsa_kernarg_size 80
  .amdhsa_user_sgpr_count 2
  .amdhsa_user_sgpr_kernarg_segment_ptr 1
  .amdhsa_system_sgpr_workgroup_id_x 1
.end_amdhsa_kernel
"""
        self.nops = nops
        return out


if __name__ == "__main__":
    import ast
    kw = {}
    out = sys.argv[1]
    for x in sys.argv[2:]:
        k, val = x.split("=", 1)
        kw[k] = ast.literal_eval(val)
    g = Gen(**kw)
    txt = g.build()
    open(out, "w").write(txt)
    print(f"wrote {out}: {len(g.a.ins)} lines, {g.nops} pad states, layout {g.stat}", file=sys.stderr)
```

```python
import sys
import contextlib
from asmlib import Asm, Ins

NAME = "interleave_layers__linear_attn_block__linear_kernel_hedgehog__prompt"

CFG = dict(
    ts=0, rt=0,
    dump=None,
    amp=None,
    force_global=0,
    n1=4, nw=6, codepf=44, l2pf=1, rp_at=0,
    bg=((0, 10, 14, 10, 6, 0), (4, 10, 10, 0, 0, 0)),
    pl_step=(22, 22, 22, 22),
    nx0=8, no0=8,
    wo_every=(8, 10),
    opre=(8, 12),
    xprobe_at=99,
    put_every=1, put_pre=8, xput_every=6, wo_spread=1.5, hl_slot=24,
    finflag="", jit=1,
)

FLAGX, FLAGX2, ANN, HELLO = 0x1000, 0x7000, 0x9000, 0xA0000
STATS, STATS_G = [0x10000, 0x30000], 0x40000
XB = [0x200000, 0]
OB = [0x400000, 0x600000]
PKV, PQ, PO = 0x800000, 0x900000, 0xA00000
KVP = [0xB00000 + 0x90000 * l for l in range(4)]
DBG = 0x1000000
WS_SIZE = 0x8000000
L_P, L_WQ, L_STG = 0x0, [0x10000, 0x18000], 0x20000
L_KVF = 0x26000
L_WPF = L_KVF + 4 * 528
L_ZB = L_WPF + 2 * 528
L_CSP = 0x26D00
L_SEL = 0x27900
LDS_SIZE = 0x28000
XF, AK, AV, RG, LG, XR, PK = 0, 128, 144, 160, 192, 208, 224
vSTR, vSTR2, vPST, vZST, vKFW, vZW, vZR, vOST = range(184, 192)
vL16, vWRD, vSTW, vKFR, vS, vRS, vM, vXST, vSST, vSLD, vPOLL, vWOR, vWOW, vWKW, vCSR, vTS = range(240, 256)
A_WKV, A_WO = [0, 64], [128, 192]
sID = 2
sPX, sPWA, sPWOA, sPBX, sPWB, sPPHI, sPWOB, sPOUT, sPDBG, sPWS = range(4, 24, 2)
sWS, sOUT, sTMP = 24, 28, 32
XS = [sWS, sOUT]
(sW, sC, sR, sXLD, sSTLD, sFXP, sOST, sFOS, sOLD, sFOP, sXST, sSTST, sFXS, sKVT, sTAG, sMODE, sPASS,
 sEP, sXCC, sT0, sT1, sT2, sT3, sCNT, sWOFF, sQOFF, sOOFF, sHEL, sLN2, sLN2b, sDELTA, sFIN) = range(36, 68)
sHI = 68
sSAVE = 70
sTSA = 72
sTSI = 74
sGW = 75
sLAY = 76
sANN = 77
sW13 = 98
sSKIP = 3
sPK = 0
sPM = 96
sSW, sSO = [80, 84], [88, 92]
vHL = PK + 8
vPR, vPB, vPA, vCK = PK + 10, PK + 11, PK + 7, PK + 6
sROW = sPM
assert sLN2 % 2 == 0

LOG2E = 0x3FB8AA3B
LN2 = 0x3F317218
DELTA = 0x35C1A4C3
import struct
def f2u(x): return struct.unpack("<I", struct.pack("<f", x))[0]
DELTA = f2u(1e-6 * 1.4426950408889634)


def v(a, n=1): return f"v{a}" if n == 1 else f"v[{a}:{a + n - 1}]"
def ar(a, n=1): return f"a{a}" if n == 1 else f"a[{a}:{a + n - 1}]"
def s(a, n=1): return f"s{a}" if n == 1 else f"s[{a}:{a + n - 1}]"


class Gen:
    def __init__(self, **kw):
        self.cfg = dict(CFG)
        self.cfg.update(kw)
        self.a = Asm()
        self.tail = []
        self.nts = 0
        self.tsnames = []
        self.side = []
        self.side_every = 1

    @contextlib.contextmanager
    def uncounted(self):
        a = self.a
        vm, lg = list(a.vm), list(a.lg)
        yield
        a.vm, a.lg = vm, lg

    @contextlib.contextmanager
    def only_if(self, cmp):
        a = self.a
        l = a.newlabel("skip")
        a(cmp)
        a(f"s_cbranch_scc0 {l}")
        with self.uncounted():
            yield
        a.label(l)

    @contextlib.contextmanager
    def outofline(self):
        a = self.a
        n0 = len(a.ins)
        with self.uncounted():
            yield
        self.tail += a.ins[n0:]
        del a.ins[n0:]

    def code_pf(self, lo, hi, t):
        a = self.a
        n = f"(({hi}-{lo})/1024+1)"
        a(f"s_bfe_u32 {s(sT0)}, {s(sID)}, {3 | (3 << 16)}")
        a(f"s_mul_i32 {s(sT0)}, {s(sT0)}, {n}*128")
        a(f"s_add_u32 {s(sT0)}, {s(sT0)}, {lo}-L_pc")
        a(f"v_lshlrev_b32 {v(t)}, 3, {v(vL16)}")
        a(f"v_min_u32 {v(t)}, ({n}-1)*128, {v(t)}")
        a(f"v_add_u32 {v(t)}, {s(sT0)}, {v(t)}")
        a(f"v_min_u32 {v(t)}, L_codeend-L_pc, {v(t)}")
        a(f"global_load_dword {v(t)}, {v(t)}, {s(sSAVE, 2)}")

    def countdown(self):
        self.a(f"s_sub_u32 {s(sCNT)}, {s(sCNT)}, 1")
        self.a("s_cbranch_scc1 L_timeout")

    def bg_region(self, n, slots):
        n = min(n, len(self.bg))
        self.bg_slot = 0
        self.bg_at = [(k * slots) // n for k in range(n)]

    def bg_tick(self):
        for _ in range(self.bg_at.count(self.bg_slot)):
            self.bg.pop(0)()
        self.bg_slot += 1

    def bg_now(self, n):
        for _ in range(min(n, len(self.bg))):
            self.bg.pop(0)()

    def ticker(self):
        def e(text, **kw):
            if self.side and self.bg_slot % self.side_every == 0:
                self.side.pop(0)()
            self.bg_tick()
            self.a(text, **kw)
        return e

    def moded(self, lines, tag=None, reg=sMODE, wt=False):
        a = self.a
        if wt:
            for l in lines:
                a(l + (" sc1" if l.startswith("buffer_store") else ""), vm=tag)
            return
        lg, lj = a.newlabel("glob"), a.newlabel("join")
        a(f"s_cmp_eq_u32 {s(reg)}, 0")
        a(f"s_cbranch_scc0 {lg}")
        for l in lines:
            a(l, vm=tag)
        a.label(lj)
        t = [Ins(lg + ":")] + [Ins(l + (" sc1" if l.startswith("buffer_store") else "")) for l in lines] + [Ins(f"s_branch {lj}")]
        self.tail += t

    def srd_tmp(self, ptr, size):
        a = self.a
        a(f"s_mov_b32 {s(sTMP)}, {s(ptr)}")
        a(f"s_mov_b32 {s(sTMP + 1)}, {s(ptr + 1)}")
        a(f"s_mov_b32 {s(sTMP + 2)}, {size}")

    def ts(self, name):
        a = self.a
        amp = self.cfg["amp"]
        if amp:
            for k in range(2):
                if amp[k] == name:
                    a(f"{'s_memtime' if amp[3] else 's_memrealtime'} {s(72 + 6 * k, 2)}")
                    if name != "start":
                        a("s_waitcnt lgkmcnt(0)")
        if not self.cfg["ts"] or name == "start":
            return
        if self.cfg["ts"] == 1 and name.startswith("p_"):
            return
        if self.cfg["ts"] == 3 and name not in ("x0", "flag0", "poll0", "end") and name[2:] not in ("kvgemm", "ogemm"):
            return
        if self.cfg["ts"] == 2 and ":" in name and name[2:] not in ("kvgemm", "bar3", "ogemm"):
            return
        a(f"{'s_memrealtime' if self.cfg['rt'] else 's_memtime'} {s(sTSA, 2)}")
        a("s_waitcnt lgkmcnt(0)")
        a.lg.clear()
        a(f"v_writelane_b32 {v(vTS)}, {s(sTSA)}, {len(self.tsnames)}")
        self.tsnames.append(name)
        assert len(self.tsnames) <= 56

    def dump(self, point, l, regs, tmp):
        if self.cfg["dump"] != (point, l):
            return
        a = self.a
        with self.uncounted():
            a("s_waitcnt vmcnt(0) lgkmcnt(0)")
            a("s_nop 15")
            a(f"v_lshrrev_b32 {v(tmp)}, 2, {v(vL16)}")
            a(f"s_mul_i32 {s(sT0)}, {s(sGW)}, {64 * 256}")
            a(f"s_add_u32 {s(sT0)}, {s(sT0)}, {DBG}")
            for i, r in enumerate(regs):
                a(f"buffer_store_dword {v(r)}, {v(tmp)}, {s(sWS, 4)}, {s(sT0)} offen")
                a(f"s_add_u32 {s(sT0)}, {s(sT0)}, 256")
            a("s_waitcnt vmcnt(0)")

    def poll(self, voff, soff, tmp, tag=sTAG):
        a = self.a
        l = a.newlabel("poll")
        a.label(l)
        a(f"buffer_load_dword {v(tmp)}, {v(voff)}, {s(sWS, 4)}, {s(soff)} offen sc1")
        self.countdown()
        a.wait(vm=0)
        a(f"v_cmp_ne_u32 vcc, {s(tag)}, {v(tmp)}")
        a(f"s_cbranch_vccnz {l}")

    def flag(self, soff, tmp):
        a = self.a
        a(f"v_mov_b32 {v(tmp)}, {s(sTAG)}")
        a.wait(vm=0)
        a("s_mov_b64 exec, 1")
        self.moded([f"buffer_store_dword {v(tmp)}, off, {s(sWS, 4)}, {s(soff)}"])
        a("s_mov_b64 exec, -1")

    def w_voff(self, t):
        a = self.a
        a(f"v_lshrrev_b32 {v(t)}, 6, {v(vL16)}")
        a(f"v_mul_u32_u24 {v(t)}, {3072 - 64}, {v(t)}")
        a(f"v_add_u32 {v(t)}, {v(t)}, {v(vL16)}")

    def ld_wkv(self, T, i, t):
        a = self.a
        a(f"s_add_u32 {s(sT0)}, {s(sWOFF)}, {i * 32 * 3072}")
        a(f"buffer_load_dwordx4 {ar(A_WKV[T] + 4 * i, 4)}, {v(t)}, {s(sSW[T], 4)}, {s(sT0)} offen", vm=f"wkv{i}")

    def ld_pk(self, what, T, i):
        a = self.a
        if what == "wq":
            a(f"s_add_u32 m0, {s(sW13)}, {L_WQ[T] + i * 1024}")
            a(f"s_add_u32 {s(sT0)}, {s(sPK)}, {PQ + (8 * T + i) * 65536}")
            a(f"buffer_load_dwordx4 {v(vL16)}, {s(sWS, 4)}, {s(sT0)} offen sc1 lds", vm="wq")
        elif what == "wo":
            a(f"s_add_u32 {s(sT0)}, {s(sOOFF)}, {PO + T * 0x8000 + i * 65536}")
            a(f"buffer_load_dwordx4 {ar(A_WO[T] + 4 * i, 4)}, {v(vL16)}, {s(sWS, 4)}, {s(sT0)} offen sc1", vm="wo")
        else:
            a(f"s_add_u32 {s(sT0)}, {s(sPK)}, {PKV + i * 65536}")
            a(f"buffer_load_dwordx4 {ar(A_WKV[1] + 4 * i, 4)}, {v(vL16)}, {s(sWS, 4)}, {s(sT0)} offen sc1", vm=f"wkv{i}")

    def bg_setup(self, T):
        self.bg = [(lambda i=i: self.ld_pk("wq", T, i)) for i in range(8)] + [(lambda i=i: self.ld_pk("wo", T, i)) for i in range(16)]
        if T == 0:
            self.bg += [(lambda i=i: self.ld_pk("wkv", 1, i)) for i in range(16)]

    def put_wkv(self, T, lo, hi, waits=False):
        for i in range(lo, hi):
            if waits:
                self.a.wait(vm=f"wkv{i}")
            self.a(f"ds_write_b128 {v(vWKW)}, {ar(A_WKV[T] + 4 * i, 4)} offset:{i * 2048}", lg="put")

    def put_wo(self, T, i):
        self.a(f"ds_write_b128 {v(vWOW)}, {ar(A_WO[T] + 4 * i, 4)} offset:{(i >> 2) * 1024 + (i & 3) * 128}")

    @staticmethod
    def woff(j, u):
        return (j >> 2) * 4096 + u * 1024 + (j & 3) * 256

    def colsum(self, addr, nsteps, regs, acc):
        a = self.a
        a(f"v_mov_b32 {v(acc)}, 0")
        for j in range(nsteps):
            for u in range(2):
                a(f"ds_read_b64_tr_b16 {v(regs[j] + 2 * u, 2)}, {v(addr)} offset:{self.woff(j, u)}", lg=f"cs{j}")
        for j in range(nsteps):
            a.wait(lg=f"cs{j}")
            for d in range(4):
                a(f"v_dot2c_f32_bf16 {v(acc)}, {s(sT3)}, {v(regs[j] + d)}")

    def cs_kv_step(self, T, i, sel, d):
        self.a(f"v_mfma_f32_16x16x32_bf16 {v(d, 4)}, {v(sel, 4)}, {ar(A_WKV[T] + 4 * i, 4)}, {v(d, 4) if i else 0}")

    def cs_kv_fin(self, T, d, t):
        a = self.a
        a(f"s_and_b32 {s(sT0)}, {s(sW)}, 1")
        a(f"s_lshl_b32 {s(sT0)}, {s(sT0)}, 9")
        a(f"s_and_b32 {s(sT1)}, {s(sW)}, 2")
        a(f"s_lshl_b32 {s(sT1)}, {s(sT1)}, 2")
        a(f"s_add_u32 {s(sT0)}, {s(sT0)}, {s(sT1)}")
        a(f"s_add_u32 {s(sT0)}, {s(sT0)}, {L_CSP + T * 1536}")
        a(f"v_lshrrev_b32 {v(t)}, 9, {v(vL16)}")
        a(f"v_lshl_add_u32 {v(t)}, {v(t)}, 2, {s(sT0)}")
        a(f"v_bfe_u32 {v(t + 1)}, {v(vL16)}, 4, 1")
        a(f"v_lshl_add_u32 {v(t)}, {v(t + 1)}, 8, {v(t)}")
        a(f"v_bfe_u32 {v(t + 1)}, {v(vL16)}, 8, 1")
        a(f"v_lshl_add_u32 {v(t)}, {v(t + 1)}, 7, {v(t)}")
        a(f"v_bfe_u32 {v(t + 1)}, {v(vL16)}, 5, 1")
        a(f"v_lshl_add_u32 {v(t)}, {v(t + 1)}, 6, {v(t)}")
        for ror in (4, 8):
            for i in range(4):
                a(f"v_add_f32 {v(d + i)}, {v(d + i)}, {v(d + i)} row_ror:{ror}")
        a(f"ds_write2_b32 {v(t)}, {v(d)}, {v(d + 1)} offset0:0 offset1:4")
        a(f"ds_write2_b32 {v(t)}, {v(d + 2)}, {v(d + 3)} offset0:8 offset1:12")

    def sel_read(self, sel):
        a = self.a
        a(f"v_and_b32 {v(sel)}, 0x1f0, {v(vL16)}")
        a(f"v_add_u32 {v(sel)}, {L_SEL:#x}, {v(sel)}")
        a(f"ds_read_b128 {v(sel, 4)}, {v(sel)}", lg="sel")

    def cs_q(self, T):
        a = self.a
        t, acc = AV, AV + 1
        a(f"s_mov_b32 {s(sT3)}, 0x3f803f80")
        a(f"s_add_u32 {s(sT0)}, {s(sW13)}, {L_WQ[T]}")
        a(f"v_add_u32 {v(t)}, {s(sT0)}, {v(vWRD)}")
        regs = [LG + 4 * i for i in range(4)] + [PK + 4 * i for i in range(4)]
        self.colsum(t, 8, regs, acc)
        a(f"v_mov_b32 {v(t)}, {v(acc)}")
        a(f"v_permlane32_swap_b32 {v(t)}, {v(acc)}")
        a(f"v_add_f32 {v(acc)}, {v(acc)}, {v(t)}")
        a(f"s_lshl_b32 {s(sT0)}, {s(sW)}, 2")
        a(f"v_add_u32 {v(t)}, {s(sT0)}, {v(vCSR)}")
        a(f"ds_write_b32 {v(t)}, {v(acc)} offset:{T * 1536 + 1024}")

    @staticmethod
    def cs_pack(src, dst):
        return [
            f"v_pk_add_f32 {v(src, 2)}, {v(src, 2)}, {v(src + 2, 2)}",
            f"v_add_f32 {v(src)}, {v(src)}, {v(src + 1)}",
            f"v_cvt_pk_bf16_f32 {v(src + 1)}, {v(src)}, {v(src)}",
            f"v_and_b32 {v(src + 1)}, 0xffff0000, {v(src + 1)}",
            f"v_sub_f32 {v(src)}, {v(src)}, {v(src + 1)}",
            f"v_cvt_pk_bf16_f32 {v(dst)}, {v(src + 1)}, {v(src)}",
        ]

    def x_steps(self, B, src, X, wt=False):
        a = self.a
        t = X + 8
        st = []
        E = lambda txt: st.append(lambda: a(txt))
        E(f"s_add_u32 {s(sT2)}, {s(sXST)}, {XB[B]}")
        for i in range(8):
            E(f"v_cvt_pk_bf16_f32 {v(X + i)}, {v(src + 2 * i)}, {v(src + 2 * i + 1)}")
        E(f"v_min_u32 {v(X)}, -2, {v(X)}")
        E(f"v_min_u32 {v(X + 4)}, -2, {v(X + 4)}")
        st.append(lambda: self.moded([f"buffer_store_dwordx4 {v(X + 4 * i, 4)}, {v(vXST)}, {s(XS[B], 4)}, {s(sT2)} offen offset:{i * 512}" for i in range(2)], tag="xst", wt=wt))
        E(f"v_pk_add_f32 {v(t, 2)}, {v(src, 2)}, {v(src + 2, 2)}")
        E(f"v_pk_mul_f32 {v(t + 2, 2)}, {v(src, 2)}, {v(src, 2)}")
        E(f"v_pk_fma_f32 {v(t + 2, 2)}, {v(src + 2, 2)}, {v(src + 2, 2)}, {v(t + 2, 2)}")
        for i in range(2, 8):
            E(f"v_pk_add_f32 {v(t, 2)}, {v(t, 2)}, {v(src + 2 * i, 2)}")
            E(f"v_pk_fma_f32 {v(t + 2, 2)}, {v(src + 2 * i, 2)}, {v(src + 2 * i, 2)}, {v(t + 2, 2)}")
        E(f"v_add_f32 {v(t)}, {v(t)}, {v(t + 1)}")
        E(f"v_add_f32 {v(t + 2)}, {v(t + 2)}, {v(t + 3)}")
        E(f"s_add_u32 {s(sT2)}, {s(sSTST)}, {STATS[B]}")
        E(f"v_permlane32_swap_b32 {v(t)}, {v(t + 2)}")
        E(f"v_add_f32 {v(t)}, {v(t)}, {v(t + 2)}")
        E(f"v_mov_b32 {v(t + 1)}, {v(t)}")
        E(f"v_permlane16_swap_b32 {v(t)}, {v(t + 1)}")
        E(f"v_add_f32 {v(t)}, {v(t)}, {v(t + 1)}")
        E(f"v_min_u32 {v(t)}, -2, {v(t)}")

        def stat():
            a(f"s_mov_b64 exec, {s(sROW, 2)}")
            self.moded([f"buffer_store_dword {v(t)}, {v(vSST)}, {s(sWS, 4)}, {s(sT2)} offen"], tag="xst")
            a("s_mov_b64 exec, -1")
        st.append(stat)
        return st

    def ldx(self, B, j):
        a = self.a
        if j % 4 == 0 and j:
            a(f"s_add_u32 {s(sT3)}, {s(sXLD)}, {XB[B] + j * 1024}")
        a(f"buffer_load_dwordx4 {v(XF + 4 * j, 4)}, {v(vL16)}, {s(XS[B], 4)}, {s(sT3)} offen offset:{(j % 4) * 1024} sc1", vm=f"x{j}")

    def probe(self, what, reg, setexec=True):
        a = self.a
        srd, off = what
        if setexec:
            a("s_mov_b64 exec, 0xffff")
        a(f"buffer_load_dword {v(reg)}, {v(vPA)}, {s(srd, 4)}, {s(sT3)} offen offset:{off} sc1", vm="probe")
        if setexec:
            a("s_mov_b64 exec, -1")

    def spin(self, what, name):
        a = self.a
        a("s_mov_b64 exec, 0xffff")
        a.label(f"L_spin{name}")
        self.probe(what, vPB, False)
        a("s_waitcnt vmcnt(1)")
        a(f"v_cmp_eq_u32 vcc, -1, {v(vPR)}")
        a(f"s_cbranch_vccz L_go{name}")
        self.probe(what, vPR, False)
        self.countdown()
        a("s_waitcnt vmcnt(1)")
        a(f"v_cmp_eq_u32 vcc, -1, {v(vPB)}")
        a(f"s_cbranch_vccnz L_spin{name}")
        a.label(f"L_go{name}")
        a("s_mov_b64 exec, -1")
        a.vm.clear()

    def x_probe_addr(self):
        return [f"v_and_b32 {v(vPR)}, 4, {v(vPOLL)}",
                f"v_mul_u32_u24 {v(vPR)}, 448, {v(vPR)}",
                f"v_lshlrev_b32 {v(vPA)}, 9, {v(vPOLL)}",
                f"v_sub_u32 {v(vPA)}, {v(vPA)}, {v(vPR)}"]

    def phi_a(self, acc, tmp):
        a = self.ticker()
        for i in range(8):
            a(f"v_pk_mul_f32 {v(acc + 2 * i, 2)}, {v(acc + 2 * i, 2)}, {v(vS, 2)} op_sel_hi:[1,0]")
        for i in range(16):
            a(f"v_exp_f32_e64 {v(tmp + i)}, {v(acc + i)} clamp")
            a(f"v_max_f32 {v(acc + i)}, {s(sDELTA)}, {v(acc + i)}")
        for i in range(8):
            a(f"v_pk_fma_f32 {v(acc + 2 * i, 2)}, {v(acc + 2 * i, 2)}, {s(sLN2, 2)}, {v(tmp + 2 * i, 2)}")
        for i in range(8):
            a(f"v_cvt_pk_bf16_f32 {v(PK + i)}, {v(acc + 2 * i)}, {v(acc + 2 * i + 1)}")

    def logits(self):
        a = self.a
        for i in range(8):
            a(f"v_cvt_pk_bf16_f32 {v(PK + i)}, {v(AK + 2 * i)}, {v(AK + 2 * i + 1)}")
        a.wait(lg="wp")
        a(f"v_mfma_f32_32x32x16_bf16 {v(LG, 16)}, {v(PK + 8, 4)}, {v(PK, 4)}, 0")
        a(f"v_mfma_f32_32x32x16_bf16 {v(LG, 16)}, {v(PK + 12, 4)}, {v(PK + 4, 4)}, {v(LG, 16)}")

    def softmax2(self, t, isq, after_plus=None, after_minus=None):
        a = self.ticker()
        a(f"v_max3_f32 {v(t)}, {v(LG)}, {v(LG + 1)}, {v(LG + 2)}")
        a(f"v_min3_f32 {v(t + 1)}, {v(LG)}, {v(LG + 1)}, {v(LG + 2)}")
        for i in range(3, 15, 2):
            a(f"v_max3_f32 {v(t)}, {v(t)}, {v(LG + i)}, {v(LG + i + 1)}")
            a(f"v_min3_f32 {v(t + 1)}, {v(t + 1)}, {v(LG + i)}, {v(LG + i + 1)}")
        a(f"v_max_f32 {v(t)}, {v(t)}, {v(LG + 15)}")
        a(f"v_min_f32 {v(t + 1)}, {v(t + 1)}, {v(LG + 15)}")
        a(f"v_pk_mul_f32 {v(t, 2)}, {v(t, 2)}, {v(vS, 2)} op_sel_hi:[1,0]")
        for sg, E in ((0, AK), (1, LG)):
            for i in range(8):
                if sg == 0:
                    a(f"v_pk_fma_f32 {v(E + 2 * i, 2)}, {v(LG + 2 * i, 2)}, {v(vS, 2)}, {v(t, 2)} op_sel_hi:[1,0,0] neg_lo:[0,0,1] neg_hi:[0,0,1]")
                else:
                    a(f"v_pk_fma_f32 {v(E + 2 * i, 2)}, {v(LG + 2 * i, 2)}, {v(vS, 2)}, {v(t, 2)} op_sel:[0,0,1] op_sel_hi:[1,0,1] neg_lo:[1,0,0] neg_hi:[1,0,0]")
            for i in range(16):
                a(f"v_exp_f32 {v(E + i)}, {v(E + i)}")
            S = t + 2 + 2 * sg
            a(f"v_pk_add_f32 {v(S, 2)}, {v(E, 2)}, {v(E + 2, 2)}")
            for i in range(2, 8):
                a(f"v_pk_add_f32 {v(S, 2)}, {v(S, 2)}, {v(E + 2 * i, 2)}")
            a(f"v_add_f32 {v(S)}, {v(S)}, {v(S + 1)}")
            if not (isq and sg == 0):
                a(f"v_rcp_f32 {v(S)}, {v(S)}")
                if isq:
                    a(f"v_mul_f32 {v(t + 6)}, {f2u(1e-6):#x}, {v(t + 2)}")
                    a(f"v_mul_f32 {v(S)}, {v(S)}, {v(t + 2)}")
                for i in range(8):
                    a(f"v_pk_mul_f32 {v(E + 2 * i, 2)}, {v(E + 2 * i, 2)}, {v(S, 2)} op_sel_hi:[1,0]")
            for i in range(8):
                a(f"v_cvt_pk_bf16_f32 {v(PK + 8 * sg + i)}, {v(E + 2 * i)}, {v(E + 2 * i + 1)}")
            cb = (after_plus, after_minus)[sg]
            if cb:
                cb()

    def layer(self, l):
        a, cfg = self.a, self.cfg
        T, first, last = l & 1, l < 2, l == 3
        NJ = 2 if T == 0 else 4
        skip23 = (lambda: self.only_if(f"s_cmp_lt_u32 {s(sW)}, 2")) if T == 0 else contextlib.nullcontext
        bgn = cfg["bg"][l] if first else (0,) * 6
        self.bg = []
        if first:
            self.bg_setup(T)
            assert sum(bgn) >= len(self.bg) and bgn[0] + bgn[1] >= 8 and sum(bgn[:3]) >= 24
        NX = cfg["nx0"]
        a.label(f"L_layer{l}")
        a(f"s_mov_b32 {s(sSKIP)}, 0")
        a.wait(lg=0)
        a("s_barrier")
        self.ts(f"{l}:bar1")
        a.label(f"L_xre{l}")
        ST = LG
        CS = LG + 8
        CSA, MB = PK, PK + 2
        D = 3

        def rd(j, p):
            for u in range(2):
                a(f"ds_read_b64_tr_b16 {v(RG + (j % D) * 8 + 4 * p + 2 * u, 2)}, {v(vWRD)} offset:{p * 32768 + self.woff(j, u)}", lg=f"w{j}")
        for j in range(D):
            rd(j, 0); rd(j, 1)
        a(f"ds_read_b128 {v(CS, 4)}, {v(vCSR)} offset:{T * 1536}", lg="cs")
        a(f"ds_read_b128 {v(CS + 4, 4)}, {v(vCSR)} offset:{T * 1536 + 512}", lg="cs")
        a(f"v_mov_b32 {v(vCK)}, 0")
        if l:
            self.spin((XS[T], 3824), f"x{l}")
        a.vm.clear()
        with self.outofline():
            a.label(f"L_xfail{l}")
            a(f"s_mov_b32 {s(sSKIP)}, 1")
            self.countdown()
            if cfg["ts"]:
                a(f"s_add_u32 {s(sLAY)}, {s(sLAY)}, 1")
            a(f"s_add_u32 {s(sT3)}, {s(sXLD)}, {XB[T]}")
            a("s_waitcnt vmcnt(0) lgkmcnt(0)")
            self.probe((XS[T], 3824), vPR)
            a(f"s_branch L_xre{l}")
        self.ts(f"{l}:xpoll")

        def ldx(j):
            self.ldx(T, j)
            if j == max(NX, 9):
                a(f"s_add_u32 {s(sT1)}, {s(sSTLD)}, {STATS[T]}")
                a(f"buffer_load_dwordx4 {v(ST, 4)}, {v(vSLD)}, {s(sWS, 4)}, {s(sT1)} offen sc1", vm="st")
            if j == max(NX, 9) + 2:
                a(f"buffer_load_dwordx4 {v(ST + 4, 4)}, {v(vSLD)}, {s(sWS, 4)}, {s(sT1)} offen offset:512 sc1", vm="st")
        put_at = [int(k * cfg["put_every"]) - cfg["put_pre"] for k in range(8)]
        for j in range(NX):
            ldx(j)
            for k in range(8):
                if put_at[k] == j - NX or (j == 0 and put_at[k] < -NX):
                    self.put_wkv(T, 8 + k, 9 + k)
        t, u_ = ST, ST + 1
        stat = [f"v_max3_u32 {v(vCK)}, {v(vCK)}, {v(ST + 2 * i)}, {v(ST + 2 * i + 1)}" for i in range(4)] + [
            f"v_pk_add_f32 {v(ST, 2)}, {v(ST, 2)}, {v(ST + 2, 2)}",
            f"v_pk_add_f32 {v(ST + 4, 2)}, {v(ST + 4, 2)}, {v(ST + 6, 2)}",
            f"v_pk_add_f32 {v(ST, 2)}, {v(ST, 2)}, {v(ST + 4, 2)}",
            f"v_add_f32 {v(t)}, {v(ST)}, {v(ST + 1)}",
            f"v_mul_f32 {v(t)}, {f2u(1 / 512):#x}, {v(t)}",
            f"v_mov_b32 {v(u_)}, {v(t)}",
            f"v_permlane32_swap_b32 {v(t)}, {v(u_)}",
            f"v_fma_f32 {v(u_)}, -{v(t)}, {v(t)}, {v(u_)}",
            f"v_max_f32 {v(u_)}, 0, {v(u_)}",
            f"v_cvt_pk_bf16_f32 {v(vM)}, -{v(t)}, -{v(t)}",
            f"v_cvt_pk_bf16_f32 {v(u_)}, {v(u_)}, {v(u_)}",
            f"v_and_b32 {v(u_)}, 0xffff0000, {v(u_)}",
            f"v_add_f32 {v(u_)}, {f2u(1e-5):#x}, {v(u_)}",
            f"v_cvt_pk_bf16_f32 {v(u_)}, {v(u_)}, {v(u_)}",
            f"v_and_b32 {v(u_)}, 0xffff0000, {v(u_)}",
            f"v_sqrt_f32 {v(u_)}, {v(u_)}",
            f"v_cndmask_b32 {v(vM)}, {v(vM)}, 0, {s(sHI, 2)}",
            f"v_cvt_pk_bf16_f32 {v(u_)}, {v(u_)}, {v(u_)}",
            f"v_and_b32 {v(u_)}, 0xffff0000, {v(u_)}",
            f"v_rcp_f32 {v(vRS)}, {v(u_)}",
            f"v_mov_b32 {v(MB)}, {v(vM)}",
            f"v_mul_f32 {v(vS)}, {LOG2E:#x}, {v(vRS)}",
            f"v_mov_b32 {v(MB + 3)}, {v(vM)}",
        ]
        js = max(NX, 9) + 3
        fill = [f"v_mov_b32 {v(MB + 1)}, 0", f"v_mov_b32 {v(MB + 2)}, 0"]
        if l == 0:
            fill += [f"v_and_b32 {v(vHL)}, 0x100, {v(vL16)}",
                     f"v_lshl_add_u32 {v(vHL)}, {v(vHL)}, 1, {v(vPOLL)}",
                     f"v_lshlrev_b32 {v(vHL)}, 5, {v(vHL)}"]
        fill += [None] * (2 * D - len(fill)) + self.cs_pack(CS, CSA) + self.cs_pack(CS + 4, CSA + 1)
        fill += [None] * (2 * js - len(fill)) + stat
        jc = (len(fill) + 1) // 2 + 1
        assert jc <= 31
        assert put_at[-1] < 16 - D
        self.bg_region(bgn[0], NX)
        for j in range(32):
            a.wait(vm=f"x{j}", lg=f"w{j}")
            if j == 16 - D:
                a.wait(lg="put")
                with self.only_if(f"s_cmp_eq_u32 {s(sSKIP)}, 0"):
                    a("s_barrier")
            if j == jc:
                a(f"v_mfma_f32_32x32x8_bf16 {v(AK, 16)}, {v(CSA, 2)}, {v(MB, 2)}, {v(AK, 16)}")
                a(f"v_mfma_f32_32x32x8_bf16 {v(AV, 16)}, {v(CSA, 2)}, {v(MB + 2, 2)}, {v(AV, 16)}")
            for p, acc in ((0, AK), (1, AV)):
                c = v(acc, 16) if j else "0"
                a(f"v_mfma_f32_32x32x16_bf16 {v(acc, 16)}, {v(RG + (j % D) * 8 + 4 * p, 4)}, {v(XF + 4 * j, 4)}, {c}")
                if p == 0:
                    if j + NX < 32:
                        ldx(j + NX)
                    elif l == 0 and j + NX == 32:
                        a(f"buffer_load_dword {v(vHL + 1)}, {v(vHL)}, {s(sWS, 4)}, {s(sHEL)} offen sc1", vm="hl")
                    if j + NX >= 32:
                        self.bg_tick()
                    for k in range(8):
                        if put_at[k] == j:
                            self.put_wkv(T, 8 + k, 9 + k)
                    if j & 1:
                        a(f"v_max3_u32 {v(vCK)}, {v(vCK)}, {v(XF + 4 * j - 4)}, {v(XF + 4 * j)}")
                    if j == 31:
                        a(f"v_cmp_eq_u32 vcc, -1, {v(vCK)}")
                if j + D < 32:
                    rd(j + D, p)
                if T == 1 and j == 29:
                    a(f"ds_read_b128 {v(PK + 8 + 4 * p, 4)}, {v(vKFR)} offset:{L_WPF - L_KVF + 528 * p}", lg="wp")
                if fill:
                    f_ = fill.pop(0)
                    if f_:
                        a(f_)
        a(f"s_cbranch_vccnz L_xfail{l}")
        self.ts(f"{l}:kvgemm")
        self.dump("kv", l, list(range(AK, AK + 32)) + [vS, vRS, vM], RG)
        if l == 0:
            assert bgn[0] == 0
            old = self.bg[0]

            def hello():
                a.wait(vm="hl")
                a(f"v_cmp_ne_u32 vcc, {s(sTAG)}, {v(vHL + 1)}")
                a("s_cbranch_vccnz L_hello")
                a.label("L_hello_ok")
                with self.outofline():
                    a.label("L_hello")
                    self.poll(vHL, sHEL, vHL + 1)
                    a("s_branch L_hello_ok")
                old()
            self.bg[0] = hello

        def v_path(e):
            for i in range(8):
                e(f"v_pk_mul_f32 {v(AV + 2 * i, 2)}, {v(AV + 2 * i, 2)}, {v(vS, 2)} op_sel:[0,1]")
            for i in range(8):
                e(f"v_cvt_pk_bf16_f32 {v(AV + i)}, {v(AV + 2 * i)}, {v(AV + 2 * i + 1)}")
            for i in range(2):
                a(f"ds_write_b128 {v(vSTW)}, {v(AV + 4 * i, 4)} offset:{0x4000 + 128 * i}")

        def stage(sg):
            for i in range(2):
                a(f"ds_write_b128 {v(vSTW)}, {v(PK + 8 * sg + 4 * i, 4)} offset:{sg * 8192 + 128 * i}")
        if T == 0:
            self.bg_region(bgn[1], 72 - cfg["hl_slot"])
            self.bg_slot = -cfg["hl_slot"] if l == 0 else 0
            self.phi_a(AK, LG)
            stage(0)
            v_path(self.ticker())
        else:
            self.bg_region(bgn[1], 125)
            self.logits()
            v_path(self.ticker())
            self.softmax2(RG, False, lambda: stage(0), lambda: stage(1))
        self.dump("pk", l, list(range(PK, PK + 16)) + list(range(AV, AV + 8)), RG)
        ONE, DK, DZ, PB = RG + 8, AV + 8, AV + 12, AV + 4
        for i in range(4):
            a(f"v_mov_b32 {v(ONE + i)}, 0x3f803f80")
        a.wait(lg=0)
        a("s_barrier")
        self.ts(f"{l}:bar2")
        with skip23():
            for st in range(4):
                for u in range(2):
                    a(f"ds_read_b64_tr_b16 {v(LG + 4 * st + 2 * u, 2)}, {v(vSTR)} offset:{st * 1024 + u * 512}", lg=f"pa{st}")
                for u in range(2):
                    a(f"ds_read_b64_tr_b16 {v(PK + 4 * st + 2 * u, 2)}, {v(vSTR2)} offset:{st * 1024 + u * 512}", lg=f"p{st}")
            for st in range(4):
                a.wait(lg=f"pa{st}")
                a(f"v_mfma_f32_16x16x32_bf16 {v(DZ, 4)}, {v(LG + 4 * st, 4)}, {v(ONE, 4)}, {v(DZ, 4) if st else 0}")
                a.wait(lg=f"p{st}")
                a(f"v_mfma_f32_16x16x32_bf16 {v(DK, 4)}, {v(LG + 4 * st, 4)}, {v(PK + 4 * st, 4)}, {v(DK, 4) if st else 0}")
            a("s_mov_b32 exec_lo, 0x10001")
            a("s_mov_b32 exec_hi, 0x10001")
            for i in range(4):
                a(f"v_min_u32 {v(DZ + i)}, -2, {v(DZ + i)}")
            a(f"buffer_store_dwordx4 {v(DZ, 4)}, {v(vZST)}, {s(sWS, 4)}, {s(sKVT)} offen sc1")
            a("s_mov_b64 exec, -1")
            for i in range(2):
                a(f"v_cvt_pk_bf16_f32 {v(PB + i)}, {v(DK + 2 * i)}, {v(DK + 2 * i + 1)}")
            for i in range(2):
                a(f"v_min_u32 {v(PB + 2 + i)}, -2, {v(PB + i)}")
                a(f"v_min_u32 {v(PB + i)}, -2, {v(PB + i)}")
            for i in range(2):
                a(f"v_permlane16_swap_b32 {v(PB + i)}, {v(PB + 2 + i)}")
            a(f"s_mov_b64 exec, {s(sROW, 2)}")
            a(f"buffer_store_dwordx4 {v(PB, 4)}, {v(vPST)}, {s(sWS, 4)}, {s(sKVT)} offen sc1")
            a("s_mov_b64 exec, -1")
        if cfg["jit"] and l < 3:
            with self.only_if(f"s_cmp_eq_u32 {s(sW)}, 3"):
                self.code_pf(f"L_layer{l + 1}", f"L_layer{l + 2}" if l < 2 else "L_end", AV + 8)
        self.ts(f"{l}:publish")
        if first:
            a.wait(vm="wq")
            self.cs_q(T)
            a.wait(lg=0)
            a("s_barrier")
        QA = LG
        CS, CSA, MB = LG + 4, LG + 8, LG + 10
        a(f"v_add_u32 {v(QA)}, {L_WQ[T]:#x}, {v(vWRD)}")
        D = 6

        def rq(j):
            for u in range(2):
                a(f"ds_read_b64_tr_b16 {v(RG + (j % D) * 4 + 2 * u, 2)}, {v(QA)} offset:{self.woff(j, u)}", lg=f"q{j}")

        PL, SEL, DR = 0, 36, 40

        def partial_load(i):
            a(f"s_add_u32 {s(sT1)}, {s(sKVT)}, {i * 65536}")
            a(f"buffer_load_dwordx4 {v(PL + 4 * i, 4)}, {v(vL16)}, {s(sWS, 4)}, {s(sT1)} offen sc1", vm="pl")
        for j in range(D):
            rq(j)
        a(f"ds_read_b128 {v(CS, 4)}, {v(vCSR)} offset:{T * 1536 + 1024}", lg="cs")
        fill = []
        if not last:
            N = 1 - T
            fill += [f"v_mov_b32 {v(AV)}, -1\nv_mov_b32 {v(AV + 1)}, -1", f"v_mov_b32 {v(AV + 2)}, -1\nv_mov_b32 {v(AV + 3)}, -1"]
            fill.append(lambda: self.moded([f"s_add_u32 {s(sT2)}, {s(sXST)}, {XB[N]}"] + [
                f"buffer_store_dwordx4 {v(AV, 4)}, {v(vXST)}, {s(XS[N], 4)}, {s(sT2)} offen offset:{i * 512}" for i in range(2)], tag="rst", wt=l == 0))
            fill.append(None)
            fill.append(lambda: self.moded([f"s_add_u32 {s(sT2)}, {s(sOST)}, {OB[N]}"] + [
                f"buffer_store_dwordx4 {v(AV, 4)}, {v(vOST)}, {s(sWS, 4)}, {s(sT2)} offen offset:{i * 256}" for i in range(2)], tag="rst", wt=l == 0))
            fill.append(None)
            fill.append(lambda: self.moded([f"s_add_u32 {s(sT2)}, {s(sSTST)}, {STATS[N]}", f"s_mov_b64 exec, {s(sROW, 2)}",
                f"buffer_store_dword {v(AV)}, {v(vSST)}, {s(sWS, 4)}, {s(sT2)} offen", "s_mov_b64 exec, -1"], tag="rst"))
        fill += [None] * (D - len(fill))
        fill += self.cs_pack(CS, CSA) + [f"v_mov_b32 {v(CSA + 1)}, 0", f"v_mov_b32 {v(MB)}, {v(vM)}", f"v_mov_b32 {v(MB + 1)}, 0"]
        jc = len(fill) + 1
        PS = cfg["pl_step"][l]
        assert PS >= 10
        self.bg_region(bgn[2], min(PS, 32))
        npl = 0
        for j in range(32):
            a.wait(lg=f"q{j}")
            if j == jc:
                a(f"v_mfma_f32_32x32x8_bf16 {v(AK, 16)}, {v(CSA, 2)}, {v(MB, 2)}, {v(AK, 16)}")
            a(f"v_mfma_f32_32x32x16_bf16 {v(AK, 16)}, {v(RG + (j % D) * 4, 4)}, {v(XF + 4 * j, 4)}, {v(AK, 16) if j else 0}")
            self.bg_tick()
            if j >= PS and npl < 9:
                if T == 1:
                    partial_load(npl); npl += 1
                elif (j - PS) % 3 == 0:
                    with skip23():
                        for _ in range(3):
                            partial_load(npl); npl += 1
            if j + D < 32:
                rq(j + D)
            if j == 27:
                self.sel_read(SEL)
            if T == 1 and j in (28, 29):
                a(f"ds_read_b128 {v(PK + 8 + 4 * (j - 28), 4)}, {v(vKFR)} offset:{L_WPF - L_KVF + 528 * (j - 28)}", lg="wp")
            if fill:
                f_ = fill.pop(0)
                if callable(f_):
                    f_()
                elif f_:
                    a(f_)
        def rest_pl():
            with skip23():
                for i in range(npl, 9):
                    partial_load(i)
        if npl < 9 and PS <= 32:
            rest_pl()
        self.ts(f"{l}:qgemm")
        self.dump("q", l, list(range(AK, AK + 16)), RG)
        EPS = RG + 6
        if first:
            if T == 0:
                n = len(a.vm) - 1 - max(i for i, t_ in enumerate(a.vm) if t_ == "wo")
                a(f"s_waitcnt vmcnt({n + 9})")
                with self.only_if(f"s_cmp_ge_u32 {s(sW)}, 2"):
                    a.wait(vm="wo")
            else:
                a.wait(vm="wo")
        nbg3 = min(bgn[3], len(self.bg))
        self.bg_region(bgn[3], 56 if T == 0 else 100)
        self.side = [(lambda i=i: self.put_wo(T, i)) for i in range(16)]
        self.side_every = cfg["wo_every"][T]
        if PS > 32:
            assert not nbg3 and not (first and T == 0)
            self.bg, self.bg_at = [rest_pl], [PS - 33]
        if T == 0:
            self.phi_a(AK, LG)
            a(f"v_mov_b32 {v(EPS)}, {f2u(1e-6):#x}")
        else:
            self.side.pop(0)()
            self.logits()
            self.side.pop(0)()
            self.side.pop(0)()
            self.softmax2(RG, True)
        while self.side:
            self.side.pop(0)()
        self.dump("pq", l, list(range(PK, PK + 16)), AV)
        self.ts(f"{l}:phiq")
        with skip23():
            a.wait(lg="sel")
            a(f"s_waitcnt vmcnt({nbg3})")
            a.label(f"L_chk{l}")
            m = 44
            chk = [f"v_max3_u32 {v(m)}, {v(PL)}, {v(PL + 1)}, {v(PL + 2)}"]
            chk += [f"v_max3_u32 {v(m)}, {v(m)}, {v(PL + i)}, {v(PL + i + 1)}" for i in range(3, 35, 2)]
            chk += [f"v_max_u32 {v(m)}, {v(m)}, {v(PL + 35)}"]
            for i in range(8):
                a(f"v_mfma_f32_16x16x32_bf16 {v(DR, 4)}, {v(SEL, 4)}, {v(PL + 4 * i, 4)}, {v(DR, 4) if i else 0}")
                a(chk.pop(0)); a(chk.pop(0))
            a(chk.pop(0)); a(chk.pop(0))
            a(f"v_cmp_eq_u32 vcc, -1, {v(m)}")
            Z = PL + 32
            a(f"v_permlane16_swap_b32 {v(Z)}, {v(Z + 1)}")
            a(f"v_permlane16_swap_b32 {v(Z + 2)}, {v(Z + 3)}")
            a(f"s_cbranch_vccnz L_again{l}")
            with self.outofline():
                a.label(f"L_again{l}")
                self.countdown()
                if cfg["ts"]:
                    a(f"s_add_u32 {s(sTSI)}, {s(sTSI)}, {1 << (8 * l)}")
                for i in range(9):
                    partial_load(i)
                a("s_waitcnt vmcnt(0)")
                a(f"s_branch L_chk{l}")
            a(f"v_add_f32 {v(Z)}, {v(Z)}, {v(Z + 1)}")
            a(f"v_add_f32 {v(Z + 2)}, {v(Z + 2)}, {v(Z + 3)}")
            for i in range(2):
                a(f"v_cvt_pk_bf16_f32 {v(DR + i)}, {v(DR + 2 * i)}, {v(DR + 2 * i + 1)}")
            a(f"v_permlane32_swap_b32 {v(Z)}, {v(Z + 2)}")
            a(f"v_add_f32 {v(Z)}, {v(Z)}, {v(Z + 2)}")
            a(f"ds_write_b64 {v(vKFW)}, {v(DR, 2)}")
            a(f"v_add_f32 {v(Z)}, {v(Z)}, {v(Z)} row_ror:4")
            a(f"v_add_f32 {v(Z)}, {v(Z)}, {v(Z)} row_ror:8")
            a(f"v_cvt_pk_bf16_f32 {v(Z)}, {v(Z)}, {v(Z)}")
            a(f"ds_write_b16 {v(vZW)}, {v(Z)}")
        a.wait(vm="rst")
        self.bg_now(bgn[4])
        a(f"s_add_u32 {s(sT2)}, {s(sOST)}, {OB[T]}")
        a.wait(lg=0)
        a("s_barrier")
        self.ts(f"{l}:bar3")
        KF, ZF, DEN, O = 0, 16, RG + 6, LG
        for j in range(NJ):
            a(f"ds_read_b128 {v(KF + 4 * j, 4)}, {v(vKFR)} offset:{528 * j}", lg=f"kf{j}")
            a(f"ds_read_b128 {v(ZF + 4 * j, 4)}, {v(vZR)} offset:{(j >> 1) * 64 + (j & 1) * 16}", lg=f"zf{j}")
        WR, DW = 64, 7
        WA = [vWOR, RG + 16, RG + 17, RG + 18]
        for t_ in range(1, 4):
            a(f"v_xor_b32 {v(WA[t_])}, {32 * t_}, {v(vWOR)}")
        for j in range(NJ):
            a.wait(lg=f"kf{j}")
            a(f"v_mfma_f32_32x32x16_bf16 {v(AV, 16)}, {v(KF + 4 * j, 4)}, {v(PK + 4 * j, 4)}, {v(AV, 16) if j else 0}")
            a.wait(lg=f"zf{j}")
            for d in range(4):
                a(f"v_dot2c_f32_bf16 {v(DEN)}, {v(ZF + 4 * j + d)}, {v(PK + 4 * j + d)}")

        def rw(i, t_):
            for u in range(2):
                a(f"ds_read_b64_tr_b16 {v(WR + (i % DW) * 16 + 4 * t_ + 2 * u, 2)}, {v(WA[t_])} offset:{t_ * 16384 + i * 1024 + u * 512}", lg=f"wo{i}_{t_}")
        a(f"v_lshlrev_b32 {v(vPA)}, 8, {v(vPOLL)}")
        a(f"v_rcp_f32 {v(DEN)}, {v(DEN)}")
        for h in range(2):
            for i in range(4 * h, 4 * h + 4):
                a(f"v_pk_mul_f32 {v(AV + 2 * i, 2)}, {v(AV + 2 * i, 2)}, {v(DEN, 2)} op_sel_hi:[1,0]")
            for i in range(4 * h, 4 * h + 4):
                a(f"v_cvt_pk_bf16_f32 {v(O + i)}, {v(AV + 2 * i)}, {v(AV + 2 * i + 1)}")
            a(f"v_min_u32 {v(O + 4 * h)}, -2, {v(O + 4 * h)}")
        self.moded([f"buffer_store_dwordx4 {v(O + 4 * i, 4)}, {v(vOST)}, {s(sWS, 4)}, {s(sT2)} offen offset:{256 * i}" for i in range(2)])
        self.dump("o", l, list(range(O, O + 8)), PK)
        self.ts(f"{l}:ostore")
        self.bg_now(bgn[5])
        assert not self.bg
        NO = cfg["no0"]
        XN = LG

        def ldo(i):
            if i % 4 == 0 and i:
                a(f"s_add_u32 {s(sT3)}, {s(sOLD)}, {OB[T] + i * 1024}")
            a(f"buffer_load_dwordx4 {v(4 * i, 4)}, {v(vL16)}, {s(sWS, 4)}, {s(sT3)} offen offset:{(i % 4) * 1024} sc1", vm=f"o{i}")
        a.label(f"L_ore{l}")
        a.lg.clear()
        a(f"s_add_u32 {s(sT3)}, {s(sOLD)}, {OB[T]}")
        a(f"v_mov_b32 {v(vCK)}, 0")
        rest = [(i, t_) for i in range(DW) for t_ in range(4)]
        for _ in range(cfg["opre"][0]):
            rw(*rest.pop(0))
        self.probe((sWS, 1008), vPR)
        for _ in range(cfg["opre"][1]):
            rw(*rest.pop(0))
        self.spin((sWS, 1008), f"o{l}")
        self.ts(f"{l}:opoll")
        per = -(-len(rest) // NO)
        for i in range(NO):
            ldo(i)
            for _ in range(min(per, len(rest))):
                rw(*rest.pop(0))
        with self.outofline():
            a.label(f"L_ofail{l}")
            self.countdown()
            if cfg["ts"]:
                a(f"s_add_u32 {s(sLAY)}, {s(sLAY)}, 0x10000")
            a(f"s_branch L_ore{l}")
        todo = [(i, t_) for i in range(DW, 16) for t_ in range(4)]
        done = 0
        for i in range(16):
            for t_ in range(4):
                a.wait(vm=f"o{i}", lg=f"wo{i}_{t_}")
                c = XN if i else XR
                a(f"v_mfma_f32_16x16x32_bf16 {v(XN + 4 * t_, 4)}, {v(WR + (i % DW) * 16 + 4 * t_, 4)}, {v(4 * i, 4)}, {v(c + 4 * t_, 4)}")
                if t_ == 0 and i + NO < 16:
                    ldo(i + NO)
                if t_ == 1 and i & 1:
                    a(f"v_max3_u32 {v(vCK)}, {v(vCK)}, {v(4 * i - 4)}, {v(4 * i)}")
                if t_ == 2 and i == 15:
                    a(f"v_cmp_eq_u32 vcc, -1, {v(vCK)}")
                if done < len(todo) and done * cfg["wo_spread"] <= 4 * i + t_:
                    rw(*todo[done]); done += 1
        assert done == len(todo)
        a(f"s_cbranch_vccnz L_ofail{l}")
        if last:
            self.ts(f"{l}:ogemm")
            return
        a("s_barrier")
        self.ts(f"{l}:ogemm")
        self.dump("x", l, list(range(XN, XN + 16)), PK)
        N = 1 - T
        steps = [(lambda t_=t_: a(t_)) for t_ in self.x_probe_addr()] + self.x_steps(N, XN, AK)
        steps += [(lambda i=i: a(f"v_mov_b64 {v(XR + 2 * i, 2)}, {v(XN + 2 * i, 2)}")) for i in range(8)]
        steps.append(lambda: a(f"s_add_u32 {s(sT3)}, {s(sXLD)}, {XB[N]}"))
        puts = list(range(8))
        if l == 0:
            self.sel_read(AV)
        for k, st in enumerate(steps):
            if puts and k % cfg["xput_every"] == 0:
                i = puts.pop(0)
                self.put_wkv(N, i, i + 1)
            st()
        assert not puts
        a(f"s_add_u32 {s(sKVT)}, {s(sKVT)}, {KVP[l + 1] - KVP[l]}")
        if l == 0:
            a.wait(lg="sel")
            for i in range(16):
                self.cs_kv_step(1, i, AV, AV + 4)
            self.cs_kv_fin(1, AV + 4, AV + 8)
        self.probe((XS[N], 3824), vPR)
        self.ts(f"{l}:xissue")

    def prologue(self):
        a, cfg = self.a, self.cfg
        a(f"s_cmp_ge_u32 {s(sID)}, 256")
        a("s_cbranch_scc1 L_end")
        self.ts("start")
        a(f"s_load_dwordx16 {s(4, 16)}, s[0:1], 0")
        a(f"s_load_dwordx4 {s(20, 4)}, s[0:1], 64")
        a(f"s_getpc_b64 {s(sSAVE, 2)}")
        a.label("L_pc")
        NCL = cfg["codepf"]
        a(f"s_bfe_u32 {s(sT0)}, {s(sID)}, {3 | (3 << 16)}")
        a(f"s_mul_i32 {s(sT0)}, {s(sT0)}, {NCL}")
        a(f"v_min_u32 v1, {NCL - 1}, v0")
        a(f"v_add_u32 v1, {s(sT0)}, v1")
        a(f"v_min_u32 v1, (L_codeend-L_pc)/128, v1")
        a("v_lshlrev_b32 v1, 7, v1")
        a(f"global_load_dword v2, v1, {s(sSAVE, 2)}")
        if cfg["ts"]:
            a(f"s_mov_b32 {s(sTSI)}, 0")
            a(f"s_mov_b32 {s(sLAY)}, 0")
            a(f"v_mov_b32 {v(vTS)}, 0")
            a(f"s_memrealtime s[78:79]")
        L = 3
        a(f"v_lshrrev_b32 v1, 6, v0")
        a(f"v_and_b32 {v(L)}, 63, v0")
        a(f"v_readfirstlane_b32 {s(sW)}, v1")
        a(f"v_lshlrev_b32 {v(vL16)}, 4, {v(L)}")
        a(f"s_bfe_u32 {s(sC)}, {s(sID)}, {3 | (4 << 16)}")
        a(f"s_lshr_b32 {s(sT0)}, {s(sID)}, 7")
        a(f"s_and_b32 {s(sR)}, {s(sID)}, 7")
        a(f"s_lshl1_add_u32 {s(sR)}, {s(sR)}, {s(sT0)}")
        sBP, sSUB, sCG, sB = 99, 100, 101, sCNT
        a(f"s_lshr_b32 {s(sT0)}, {s(sC)}, 3")
        a(f"s_lshr_b32 {s(sT3)}, {s(sW)}, 1")
        a(f"s_lshl1_add_u32 {s(sT0)}, {s(sT0)}, {s(sT3)}")
        a(f"s_lshl2_add_u32 {s(sBP)}, {s(sR)}, {s(sT0)}")
        a(f"s_lshl2_add_u32 {s(sB)}, {s(sR)}, {s(sW)}")
        a(f"s_and_b32 {s(sSUB)}, {s(sW)}, 1")
        a(f"s_and_b32 {s(sCG)}, {s(sC)}, 7")
        a(f"s_lshl1_add_u32 {s(sT0)}, {s(sBP)}, {s(sSUB)}")
        a(f"s_lshl_b32 {s(sOLD)}, {s(sT0)}, 14")
        a(f"s_lshl_b32 {s(sT0)}, {s(sCG)}, 7")
        a(f"s_add_u32 {s(sFIN)}, {s(sOLD)}, {s(sT0)}")
        a(f"s_lshl3_add_u32 {s(sT0)}, {s(sBP)}, {s(sCG)}")
        a(f"s_lshl4_add_u32 {s(sT0)}, {s(sT0)}, {s(sSUB)}")
        a(f"s_lshl_b32 {s(sXST)}, {s(sT0)}, 8")
        self.rowmajor_voff(4, 5)
        a(f"s_lshl_b32 {s(sXLD)}, {s(sB)}, 15")
        a(f"s_lshl_b32 {s(sT0)}, {s(sC)}, 10")
        a(f"s_add_u32 {s(sOST)}, {s(sXLD)}, {s(sT0)}")
        a(f"s_lshl_b32 {s(sSTLD)}, {s(sB)}, 11")
        a(f"s_lshl_b32 {s(sT0)}, {s(sB)}, 7")
        a(f"s_add_u32 {s(sFXP)}, {s(sT0)}, {FLAGX}")
        a(f"s_lshl_b32 {s(sT0)}, {s(sC)}, 7")
        a(f"s_add_u32 {s(sT0)}, {s(sT0)}, {s(sSTLD)}")
        a(f"s_add_u32 {s(sT0)}, {s(sT0)}, {STATS[0]}")
        a(f"v_lshl_add_u32 v48, {v(L)}, 17, {s(sT0)}")
        a(f"v_writelane_b32 v48, {s(sFXP)}, 2")
        a(f"v_lshrrev_b32 v6, 4, {v(L)}")
        a(f"v_lshlrev_b32 v6, 10, v6")
        a(f"v_lshl_add_u32 v6, {v(L)}, 7, v6")
        for r_ in (sTMP, sWS, sOUT, sSW[0], sSW[1], sSO[0], sSO[1]):
            a(f"s_mov_b32 {s(r_ + 3)}, 0x20000")
        a(f"s_mov_b32 {s(sWS + 2)}, {WS_SIZE:#x}")
        a(f"s_mov_b32 {s(sOUT + 2)}, 0x200000")
        a(f"s_mov_b32 {s(sTMP + 2)}, 0x200000")
        a(f"s_lshr_b32 {s(sT2)}, {s(sID)}, 3")
        a(f"s_lshl2_add_u32 {s(sT2)}, {s(sT2)}, {s(sW)}")
        a(f"s_mul_i32 {s(sT2)}, {s(sT2)}, {4 * 3072}")
        for T in range(2):
            a(f"s_mov_b32 {s(sSW[T] + 2)}, {512 * 3072}")
        a(f"s_mov_b32 {s(sSO[0] + 2)}, {512 * 3072}")
        a(f"s_mov_b32 {s(sSO[1] + 2)}, {512 * 1024}")
        a("s_waitcnt lgkmcnt(0)")
        self.ts("kernarg")
        a(f"s_mov_b64 {s(sTMP, 2)}, {s(sPX, 2)}")
        a(f"s_mov_b64 {s(sSW[0], 2)}, {s(sPWA, 2)}")
        for i in range(2):
            a(f"buffer_load_dwordx4 {v(8 + 4 * i, 4)}, v4, {s(sTMP, 4)}, {s(sFIN)} offen offset:{64 * i}", vm="x0")
        a(f"s_load_dword {s(sEP)}, {s(sPWS, 2)}, 0")
        a(f"s_mov_b64 {s(sWS, 2)}, {s(sPWS, 2)}")
        a(f"s_mov_b64 {s(sOUT, 2)}, {s(sPOUT, 2)}")

        def l2pf():
            a(f"buffer_load_dword v2, v6, {s(sSW[0], 4)}, {s(sT2)} offen offset:1024")
        if cfg["l2pf"] == 1:
            l2pf()
        a(f"s_mov_b64 exec, 7")
        a(f"buffer_load_dword v2, v48, {s(sWS, 4)}, 0 offen")
        a("s_mov_b64 exec, -1")
        self.srd_tmp(sPPHI, 16384)
        a(f"s_lshl_b32 {s(sT0)}, {s(sC)}, 10")
        a(f"buffer_load_dwordx4 v[16:19], {v(vL16)}, {s(sTMP, 4)}, {s(sT0)} offen", vm="phi")
        self.ts("p_issue")
        a(f"s_lshl_b32 {s(sT0)}, {s(sC)}, 6")
        a(f"s_and_b32 {s(sT1)}, {s(sR)}, 7")
        a(f"s_lshl3_add_u32 {s(sT1)}, {s(sW)}, {s(sT1)}")
        a(f"s_mul_i32 {s(sQOFF)}, {s(sT1)}, {16 * 3072}")
        a(f"s_add_u32 {s(sQOFF)}, {s(sQOFF)}, {s(sT0)}")
        a(f"s_mul_i32 {s(sWOFF)}, {s(sT3)}, {16 * 3072}")
        a(f"s_add_u32 {s(sWOFF)}, {s(sWOFF)}, {s(sT0)}")
        a(f"s_lshl_b32 {s(sT0)}, {s(sSUB)}, 10")
        a(f"s_add_u32 {s(sWOFF)}, {s(sWOFF)}, {s(sT0)}")
        a(f"s_add_u32 {s(sWOFF)}, {s(sWOFF)}, 1024")
        self.w_voff(5)
        a(f"v_lshrrev_b32 v7, 7, {v(vL16)}")
        a(f"v_mul_u32_u24 v7, {1024 - 128}, v7")
        a(f"v_add_u32 v7, v7, {v(vL16)}")

        def repack_loads():
            a(f"s_mov_b64 {s(sSW[1], 2)}, {s(sPWB, 2)}")
            a(f"s_cmp_lt_u32 {s(sR)}, 8")
            a(f"s_cselect_b64 {s(sSO[0], 2)}, {s(sPWA, 2)}, {s(sPWB, 2)}")
            a(f"s_cmp_lt_u32 {s(sC)}, 8")
            a(f"s_cselect_b64 {s(sSO[1], 2)}, {s(sPWOA, 2)}, {s(sPWOB, 2)}")
            a(f"buffer_load_dwordx4 v[52:55], v5, {s(sSO[0], 4)}, {s(sQOFF)} offen", vm="rp")
            a(f"s_lshl4_add_u32 {s(sT0)}, {s(sW)}, {s(sR)}")
            a(f"s_lshl_b32 {s(sT0)}, {s(sT0)}, 6")
            a(f"s_add_u32 {s(sT0)}, {s(sT0)}, {s(sCG)}")
            a(f"s_lshl_b32 {s(sT0)}, {s(sT0)}, 7")
            a(f"buffer_load_dwordx4 v[56:59], v7, {s(sSO[1], 4)}, {s(sT0)} offen", vm="rp")
            a(f"s_mul_i32 {s(sT0)}, {s(sR)}, {32 * 3072}")
            a(f"s_add_u32 {s(sT0)}, {s(sT0)}, {s(sWOFF)}")
            a(f"buffer_load_dwordx4 v[60:63], v5, {s(sSW[1], 4)}, {s(sT0)} offen", vm="rp")
        if cfg["rp_at"] == 0:
            repack_loads()
        if cfg["l2pf"] == 2:
            l2pf()
        self.ts("p_w0")
        a(f"s_getreg_b32 {s(sXCC)}, hwreg(HW_REG_XCC_ID, 0, 4)")
        a(f"s_lshl_b32 {s(sW13)}, {s(sW)}, 13")
        a(f"s_mov_b32 {s(sROW)}, 0xffff")
        a(f"s_mov_b32 {s(sROW + 1)}, 0xffff")
        a(f"s_mov_b32 {s(sCNT)}, 0x40000")
        a(f"s_lshl_b32 {s(sT0)}, {s(sBP)}, 7")
        a(f"s_lshl1_add_u32 {s(sT1)}, {s(sCG)}, {s(sSUB)}")
        a(f"s_lshl2_add_u32 {s(sFXS)}, {s(sT1)}, {s(sT0)}")
        a(f"s_add_u32 {s(sFXS)}, {s(sFXS)}, {FLAGX}")
        a(f"s_lshr_b32 {s(sT0)}, {s(sCG)}, 2")
        a(f"s_lshl2_add_u32 {s(sT0)}, {s(sBP)}, {s(sT0)}")
        a(f"s_lshl1_add_u32 {s(sT0)}, {s(sT0)}, {s(sSUB)}")
        a(f"s_lshl_b32 {s(sT0)}, {s(sT0)}, 8")
        a(f"s_and_b32 {s(sT1)}, {s(sCG)}, 3")
        a(f"s_lshl2_add_u32 {s(sSTST)}, {s(sT1)}, {s(sT0)}")
        a(f"s_lshl4_add_u32 {s(sT0)}, {s(sW)}, {s(sC)}")
        a(f"s_lshl_b32 {s(sKVT)}, {s(sT0)}, 10")
        a(f"s_add_u32 {s(sKVT)}, {s(sKVT)}, {KVP[0]}")
        a(f"s_lshl_b32 {s(sHEL)}, {s(sT0)}, 11")
        a(f"s_add_u32 {s(sHEL)}, {s(sHEL)}, {HELLO}")
        a(f"s_lshl2_add_u32 {s(sPK)}, {s(sC)}, {s(sW)}")
        a(f"s_lshl_b32 {s(sPK)}, {s(sPK)}, 10")
        a(f"s_and_b32 {s(sOOFF)}, {s(sPK)}, 0x7fff")
        a(f"s_mov_b32 {s(sLN2)}, {LN2:#x}")
        a(f"s_mov_b32 {s(sLN2b)}, {LN2:#x}")
        a(f"s_mov_b32 {s(sDELTA)}, {DELTA:#x}")
        a(f"s_mov_b32 {s(sHI)}, 0")
        a(f"s_mov_b32 {s(sHI + 1)}, -1")
        a(f"s_mov_b32 {s(sMODE)}, 0")
        a(f"s_lshl_b32 {s(sANN)}, {s(sR)}, 7")
        a(f"s_add_u32 {s(sANN)}, {s(sANN)}, {ANN}")
        a(f"s_lshl4_add_u32 {s(sGW)}, {s(sR)}, {s(sC)}")
        a(f"s_lshl2_add_u32 {s(sGW)}, {s(sGW)}, {s(sW)}")
        self.ts("p_scal")
        i16, g, half, q, jj, t0, t1 = 20, 21, 22, 23, 24, 25, 26
        a(f"v_and_b32 {v(i16)}, 15, {v(L)}")
        a(f"v_lshrrev_b32 {v(g)}, 4, {v(L)}")
        a(f"v_lshrrev_b32 {v(half)}, 5, {v(L)}")
        a(f"v_and_b32 {v(q)}, 3, {v(L)}")
        a(f"v_bfe_u32 {v(jj)}, {v(L)}, 2, 2")
        a(f"v_lshlrev_b32 {v(vPOLL)}, 2, {v(i16)}")
        a(f"v_lshlrev_b32 {v(t0)}, 4, {v(i16)}")
        a(f"v_lshl_add_u32 {v(vXST)}, {v(g)}, 10, {v(t0)}")
        a(f"v_lshl_add_u32 {v(vSST)}, {v(half)}, 10, {v(t0)}")
        a(f"v_lshl_add_u32 {v(vSLD)}, {v(half)}, 9, {v(vL16)}")
        a(f"s_lshr_b32 {s(sT0)}, {s(sR)}, 1")
        a(f"s_lshl_b32 {s(sT0)}, {s(sT0)}, 7")
        a(f"s_and_b32 {s(sT1)}, {s(sR)}, 1")
        a(f"s_add_u32 {s(sT0)}, {s(sT0)}, {s(sT1)}")
        a(f"s_lshl_b32 {s(sT0)}, {s(sT0)}, 9")
        a(f"v_lshl_add_u32 {v(vPST)}, {v(half)}, 8, {v(t0)}")
        a(f"v_add_u32 {v(vPST)}, {s(sT0)}, {v(vPST)}")
        a(f"s_lshl_b32 {s(sT1)}, {s(sR)}, 6")
        a(f"s_add_u32 {s(sT1)}, {s(sT1)}, {8 * 65536}")
        a(f"v_lshl_add_u32 {v(vZST)}, {v(g)}, 4, {s(sT1)}")
        a(f"v_add_u32 v49, {s(sT0)}, {v(vL16)}")
        a(f"v_lshl_add_u32 v27, {v(q)}, 4, {s(sT1)}")
        a(f"v_cndmask_b32 v49, v49, v27, {s(sHI, 2)}")
        for i in range(4):
            a(f"v_mov_b32 {v(28 + i)}, -1")
        a(f"v_and_b32 {v(t1)}, 1, {v(g)}")
        a(f"v_lshl_add_u32 {v(vOST)}, {v(t1)}, 14, {v(t0)}")
        a(f"v_lshl_add_u32 {v(vOST)}, {v(half)}, 9, {v(vOST)}")
        a(f"v_lshlrev_b32 {v(vWRD)}, 11, {v(half)}")
        a(f"v_lshl_add_u32 {v(vWRD)}, {v(jj)}, 6, {v(vWRD)}")
        a(f"v_lshl_add_u32 {v(vWRD)}, {v(t1)}, 4, {v(vWRD)}")
        a(f"v_and_b32 v27, 1, {v(q)}")
        a(f"v_lshrrev_b32 v32, 1, {v(q)}")
        a(f"v_lshl_add_u32 {v(vWRD)}, v27, 5, {v(vWRD)}")
        a(f"v_lshl_add_u32 {v(vWRD)}, v32, 3, {v(vWRD)}")
        a(f"v_lshlrev_b32 {v(vSTR)}, 8, {v(half)}")
        a(f"v_lshl_add_u32 {v(vSTR)}, v32, 7, {v(vSTR)}")
        a(f"v_lshl_add_u32 {v(vSTR)}, {v(t1)}, 6, {v(vSTR)}")
        a(f"v_lshl_add_u32 {v(vSTR)}, {v(jj)}, 4, {v(vSTR)}")
        a(f"v_lshl_add_u32 {v(vSTR)}, v27, 3, {v(vSTR)}")
        a(f"s_lshl_b32 {s(sT0)}, {s(sSUB)}, 12")
        a(f"s_add_u32 {s(sT0)}, {s(sT0)}, {L_STG + 0x4000}")
        a(f"v_add_u32 {v(vSTR2)}, {s(sT0)}, {v(vSTR)}")
        a(f"s_lshl_b32 {s(sT0)}, {s(sW)}, 12")
        a(f"s_add_u32 {s(sT0)}, {s(sT0)}, {L_STG}")
        a(f"v_add_u32 {v(vSTR)}, {s(sT0)}, {v(vSTR)}")
        a(f"v_bfe_u32 v33, {v(L)}, 3, 2")
        a(f"v_and_b32 {v(vSTW)}, 0x70, {v(vL16)}")
        a(f"v_lshl_add_u32 {v(vSTW)}, v33, 8, {v(vSTW)}")
        a(f"v_lshl_add_u32 {v(vSTW)}, {v(half)}, 12, {v(vSTW)}")
        a(f"s_lshl_b32 {s(sT0)}, {s(sW)}, 10")
        a(f"s_add_u32 {s(sT0)}, {s(sT0)}, {L_STG}")
        a(f"v_add_u32 {v(vSTW)}, {s(sT0)}, {v(vSTW)}")
        a(f"v_bfe_u32 v34, {v(L)}, 1, 2")
        a(f"v_xor_b32 v33, v33, v34")
        a(f"v_lshlrev_b32 {v(vWOW)}, 14, v34")
        a(f"v_lshl_add_u32 {v(vWOW)}, v33, 5, {v(vWOW)}")
        a(f"v_lshl_add_u32 {v(vWOW)}, {v(half)}, 9, {v(vWOW)}")
        a(f"v_lshl_add_u32 {v(vWOW)}, v27, 4, {v(vWOW)}")
        a(f"s_lshl_b32 {s(sT0)}, {s(sW)}, 12")
        a(f"v_add_u32 {v(vWOW)}, {s(sT0)}, {v(vWOW)}")
        a(f"v_lshlrev_b32 {v(vWOR)}, 3, {v(L)}")
        a(f"s_lshl_b32 {s(sT0)}, {s(sSUB)}, 15")
        a(f"s_and_b32 {s(sT1)}, {s(sW)}, 2")
        a(f"s_lshl_b32 {s(sT2)}, {s(sT1)}, 9")
        a(f"s_add_u32 {s(sT0)}, {s(sT0)}, {s(sT2)}")
        a(f"v_add_u32 {v(vWKW)}, {s(sT0)}, {v(vL16)}")
        a(f"v_and_b32 v33, 0x1f0, {v(vL16)}")
        a(f"v_add_u32 {v(vCSR)}, {L_CSP:#x}, v33")
        a(f"v_and_b32 v34, 1, {v(jj)}")
        a(f"v_cmp_eq_u32 vcc, v34, {v(half)}")
        a(f"v_mov_b32 v35, 512")
        a(f"v_cndmask_b32 {v(vKFR)}, v35, v33, vcc")
        a(f"v_add_u32 {v(vKFR)}, {L_KVF:#x}, {v(vKFR)}")
        a(f"s_mul_i32 {s(sT0)}, {s(sT1)}, 528")
        a(f"s_lshl_b32 {s(sT2)}, {s(sSUB)}, 6")
        a(f"s_add_u32 {s(sT0)}, {s(sT0)}, {s(sT2)}")
        a(f"s_add_u32 {s(sT0)}, {s(sT0)}, {L_KVF}")
        a(f"v_mul_u32_u24 {v(vKFW)}, 528, {v(half)}")
        a(f"v_lshl_add_u32 {v(vKFW)}, {v(q)}, 4, {v(vKFW)}")
        a(f"v_lshl_add_u32 {v(vKFW)}, {v(jj)}, 7, {v(vKFW)}")
        a(f"v_lshl_add_u32 {v(vKFW)}, {v(t1)}, 3, {v(vKFW)}")
        a(f"v_add_u32 {v(vKFW)}, {s(sT0)}, {v(vKFW)}")
        a(f"s_lshl_b32 {s(sT0)}, {s(sW)}, 5")
        a(f"s_add_u32 {s(sT0)}, {s(sT0)}, {L_ZB}")
        a(f"v_lshl_add_u32 {v(vZW)}, {v(q)}, 2, {v(g)}")
        a(f"v_lshl_add_u32 {v(vZW)}, {v(vZW)}, 1, {s(sT0)}")
        a(f"v_mov_b32 v35, {L_ZB:#x}")
        a(f"v_lshl_add_u32 {v(vZR)}, {v(half)}, 5, v35")
        a(f"v_mov_b32 v36, 0x3f80")
        a(f"v_lshlrev_b32 v37, 4, v27")
        a(f"v_lshlrev_b32 v36, v37, v36")
        a(f"v_lshrrev_b32 v37, 1, {v(i16)}")
        a(f"v_lshlrev_b32 v38, 2, {v(t1)}")
        a(f"v_sub_u32 v37, v37, v38")
        for d in range(4):
            a(f"v_cmp_eq_u32 vcc, {d}, v37")
            a(f"v_cndmask_b32 {v(40 + d)}, 0, v36, vcc")
        a(f"v_add_u32 v33, {L_SEL:#x}, v33")
        a(f"ds_write_b128 v33, v[40:43]")
        for i in range(4):
            a(f"v_mov_b32 {v(44 + i)}, 0")
        a(f"v_min_u32 v33, 5, {v(L)}")
        a(f"v_mul_u32_u24 v33, 528, v33")
        a(f"v_add_u32 v33, {L_KVF + 512:#x}, v33")
        a(f"ds_write_b128 v33, v[44:47]")
        self.ts("p_lane")
        a.wait(vm="x0")
        self.ts("x0")
        for i in range(2):
            for d in range(2):
                a(f"v_permlane16_swap_b32 {v(8 + 4 * i + d)}, {v(8 + 4 * i + 2 + d)}")
        for i in range(8):
            a(f"v_lshlrev_b32 {v(XR + 2 * i)}, 16, {v(8 + i)}")
            a(f"v_and_b32 {v(XR + 2 * i + 1)}, 0xffff0000, {v(8 + i)}")
        for st in self.x_steps(0, XR, AK, wt=True):
            st()
        a(f"s_add_u32 {s(sT2)}, {s(sOST)}, {OB[0]}")
        for i in range(2):
            a(f"buffer_store_dwordx4 v[28:31], {v(vOST)}, {s(sWS, 4)}, {s(sT2)} offen offset:{256 * i} sc1", vm="xst")
        if cfg["rp_at"] == 1:
            repack_loads()
        self.ts("p_xpub")
        for i in range(cfg["n1"]):
            self.ld_wkv(0, i, 5)
        self.ts("p_w1")
        a(f"s_lshl_b32 {s(sT0)}, {s(sW)}, 10")
        a(f"s_add_u32 {s(sT0)}, {s(sT0)}, {L_STG}")
        a(f"v_add_u32 v33, {s(sT0)}, {v(vL16)}")
        a.wait(vm="phi")
        a(f"ds_write_b128 v33, v[16:19]")
        a(f"v_lshlrev_b32 v33, 9, v27")
        a(f"v_lshl_add_u32 v33, {v(half)}, 8, v33")
        a(f"v_lshl_add_u32 v33, {v(jj)}, 5, v33")
        a(f"v_lshl_add_u32 v33, {v(t1)}, 4, v33")
        a(f"v_lshl_add_u32 v33, v32, 3, v33")
        a(f"v_add_u32 v33, {s(sT0)}, v33")
        a("s_waitcnt lgkmcnt(0)")
        a(f"ds_read_b64_tr_b16 v[16:17], v33")
        a(f"ds_read_b64_tr_b16 v[18:19], v33 offset:128")
        a(f"v_lshl_add_u32 v33, {v(half)}, 4, {v(vL16)}")
        a(f"v_add_u32 v33, {L_WPF:#x}, v33")
        a(f"s_mul_i32 {s(sTAG)}, {s(sEP)}, 0x9e3779b1")
        a(f"s_add_u32 {s(sTAG)}, {s(sTAG)}, 0x7f4a7c15")
        a(f"s_and_b32 {s(sTAG)}, {s(sTAG)}, 0xffffff00")
        a(f"s_or_b32 {s(sT1)}, {s(sTAG)}, 0xf0")
        a(f"s_or_b32 {s(sXCC)}, {s(sTAG)}, {s(sXCC)}")
        a(f"v_mov_b32 v34, {s(sXCC)}")
        a(f"v_mov_b32 v35, {s(sT1)}")
        a("s_waitcnt lgkmcnt(0)")
        a.lg.clear()
        a(f"ds_write_b128 v33, v[16:19]")
        self.ts("p_phi")
        a.wait(vm="xst")
        a("s_mov_b64 exec, 1")
        a(f"buffer_store_dword v34, off, {s(sWS, 4)}, {s(sFXS)}")
        with self.only_if(f"s_cmp_eq_u32 {s(sW)}, 0"):
            a(f"s_lshl2_add_u32 {s(sT0)}, {s(sC)}, {s(sANN)}")
            a(f"buffer_store_dword v34, off, {s(sWS, 4)}, {s(sT0)} sc1")
        self.ts("flag0")
        a("s_mov_b32 exec_lo, -1")
        a("s_mov_b32 exec_hi, 15")
        with self.only_if(f"s_cmp_lt_u32 {s(sW)}, 2"):
            for l in (0, 2):
                a(f"s_add_u32 {s(sT0)}, {s(sKVT)}, {KVP[l] - KVP[0]}")
                a(f"buffer_store_dwordx4 v[28:31], v49, {s(sWS, 4)}, {s(sT0)} offen sc1")
        for l in (1, 3):
            a(f"s_add_u32 {s(sT0)}, {s(sKVT)}, {KVP[l] - KVP[0]}")
            a(f"buffer_store_dwordx4 v[28:31], v49, {s(sWS, 4)}, {s(sT0)} offen sc1", vm="pre")
        a("s_mov_b32 exec_hi, -1")
        a(f"s_lshl_b32 {s(sT1)}, {s(sR)}, 16")
        a(f"s_add_u32 {s(sT1)}, {s(sT1)}, {s(sPK)}")
        a.wait(vm="rp")
        for i, base in enumerate((PQ, PO, PKV)):
            a(f"s_add_u32 {s(sT0)}, {s(sT1)}, {base}")
            a(f"buffer_store_dwordx4 {v(52 + 4 * i, 4)}, {v(vL16)}, {s(sWS, 4)}, {s(sT0)} offen sc1", vm="pre")
        self.ts("p_prefill")
        a(f"v_lshrrev_b32 v37, 2, {v(vL16)}")
        a(f"v_and_b32 v33, 0x100, {v(vL16)}")
        a(f"v_add_u32 v33, v33, {v(vPOLL)}")
        a(f"s_and_b32 {s(sT2)}, {s(sFXP)}, 0xfffffeff")
        for t_ in self.x_probe_addr():
            a(t_)
        nxt = cfg["n1"]
        for i in range(16):
            while nxt < min(16, i + cfg["nw"]):
                self.ld_wkv(0, nxt, 5)
                nxt += 1
                if nxt == 16:
                    a(f"buffer_load_dword v34, v33, {s(sWS, 4)}, {s(sT2)} offen sc1", vm="f0")
            if i == cfg["n1"]:
                a.wait(vm="pre")
                a("s_mov_b32 exec_hi, 0")
                a(f"s_lshl_b32 {s(sT0)}, {s(sR)}, 7")
                a(f"s_add_u32 {s(sT0)}, {s(sT0)}, {s(sHEL)}")
                a(f"buffer_store_dword v35, v37, {s(sWS, 4)}, {s(sT0)} offen sc1")
                a("s_mov_b32 exec_hi, -1")
                a(f"s_and_b32 {s(sHEL)}, {s(sHEL)}, 0xffffbfff")
            a.wait(vm=f"wkv{i}")
            if i < 8:
                self.put_wkv(0, i, i + 1)
            self.cs_kv_step(0, i, 40, 44)
        self.cs_kv_fin(0, 44, 50)
        self.ts("wkv0")
        a.wait(vm="f0")
        a(f"v_cmp_ne_u32 vcc, {s(sXCC)}, v34")
        a("s_branch L_global" if cfg["force_global"] else "s_cbranch_vccnz L_poll0")
        a.label("L_enter")
        a(f"s_or_b32 {s(sTAG)}, {s(sTAG)}, 0xf0")
        with self.outofline():
            a.label("L_poll0")
            a(f"buffer_load_dword v34, v33, {s(sWS, 4)}, {s(sT2)} offen sc1")
            self.countdown()
            a("s_waitcnt vmcnt(0)")
            a(f"v_cmp_ne_u32 vcc, {s(sXCC)}, v34")
            a("s_cbranch_vccz L_enter")
            a(f"s_and_b32 {s(sT1)}, {s(sCNT)}, 15")
            a("s_cbranch_scc1 L_poll0")
            a(f"buffer_load_dword v34, {v(vPOLL)}, {s(sWS, 4)}, {s(sANN)} offen sc1")
            a("s_waitcnt vmcnt(0)")
            a(f"v_xor_b32 v34, {s(sXCC)}, v34")
            a(f"v_add_u32 v34, -1, v34")
            a(f"v_cmp_gt_u32 vcc, 15, v34")
            a("s_cbranch_vccz L_poll0")
            a.label("L_global")
            a(f"s_mov_b32 {s(sMODE)}, 1")
            a(f"s_add_u32 {s(sFXS)}, {s(sFXS)}, {FLAGX2 - FLAGX}")
            a(f"s_add_u32 {s(sFXP)}, {s(sT2)}, {FLAGX2 - FLAGX}")
            for r_ in (sSTST, sSTLD):
                a(f"s_add_u32 {s(r_)}, {s(r_)}, {STATS_G}")
            for st in self.x_steps(0, XR, AK, wt=True):
                st()
            self.flag(sFXS, 16)
            self.poll(33, sFXP, 34)
            a("s_branch L_enter")
        self.ts("poll0")
        a(f"s_add_u32 {s(sT3)}, {s(sXLD)}, {XB[0]}")

    def rowmajor_voff(self, d, t):
        a = self.a
        a(f"v_and_b32 {v(d)}, 0xf0, {v(vL16)}")
        a(f"v_lshlrev_b32 {v(d)}, 6, {v(d)}")
        a(f"v_bfe_u32 {v(t)}, {v(vL16)}, 8, 1")
        a(f"v_lshl_add_u32 {v(d)}, {v(t)}, 5, {v(d)}")
        a(f"v_lshrrev_b32 {v(t)}, 9, {v(vL16)}")
        a(f"v_lshl_add_u32 {v(d)}, {v(t)}, 4, {v(d)}")

    def final(self):
        a = self.a
        X = AK
        self.rowmajor_voff(PK, PK + 1)
        for i in range(8):
            a(f"v_cvt_pk_bf16_f32 {v(X + i)}, {v(LG + 2 * i)}, {v(LG + 2 * i + 1)}")
        for i in range(2):
            for d in range(2):
                a(f"v_permlane16_swap_b32 {v(X + 4 * i + d)}, {v(X + 4 * i + 2 + d)}")
        for i in range(2):
            a(f"buffer_store_dwordx4 {v(X + 4 * i, 4)}, {v(PK)}, {s(sOUT, 4)}, {s(sFIN)} offen offset:{64 * i}{self.cfg['finflag']}")
        with self.only_if(f"s_cmp_eq_u32 {s(sGW)}, 0"):
            a(f"s_add_u32 {s(sEP)}, {s(sEP)}, 1")
            a(f"v_mov_b32 v0, {s(sEP)}")
            a("s_mov_b64 exec, 1")
            a(f"buffer_store_dword v0, off, {s(sWS, 4)}, 0 sc1")
            a("s_mov_b64 exec, -1")
        if self.cfg["amp"]:
            amp = self.cfg["amp"]
            self.ts("end")
            a("s_sub_u32 s72, s78, s72")
            a(f"s_mul_i32 s72, s72, {amp[2]}")
            if amp[3]:
                a("s_lshr_b32 s72, s72, 5")
            a("s_min_u32 s72, s72, 100000")
            if self.cfg.get("amp_one") is not None:
                a(f"s_cmp_eq_u32 {s(sGW)}, {self.cfg['amp_one']}")
                a("s_cselect_b32 s72, s72, 0")
            a("s_memrealtime s[78:79]")
            a("s_waitcnt lgkmcnt(0)")
            a("s_mov_b32 s73, s78")
            a.label("L_amp")
            a("s_memrealtime s[78:79]")
            a("s_waitcnt lgkmcnt(0)")
            a("s_sub_u32 s78, s78, s73")
            a("s_cmp_lt_u32 s78, s72")
            a("s_cbranch_scc1 L_amp")
        if self.cfg["ts"]:
            a("s_waitcnt vmcnt(0)")
            self.ts("end")
            a("s_memrealtime s[72:73]")
            a("s_waitcnt lgkmcnt(0)")
            a(f"v_writelane_b32 {v(vTS)}, {s(sLAY)}, 58")
            a(f"v_writelane_b32 {v(vTS)}, {s(sTSI)}, 59")
            a(f"v_writelane_b32 {v(vTS)}, {s(sCNT)}, 60")
            a(f"v_writelane_b32 {v(vTS)}, s78, 61")
            a(f"v_writelane_b32 {v(vTS)}, s72, 62")
            a(f"v_writelane_b32 {v(vTS)}, {s(sMODE)}, 63")
            a(f"s_lshl_b32 {s(sT0)}, {s(sGW)}, 8")
            a(f"s_add_u32 {s(sT0)}, {s(sT0)}, {DBG + 0x2000000}")
            a(f"v_lshrrev_b32 v0, 2, {v(vL16)}")
            a(f"buffer_store_dword {v(vTS)}, v0, {s(sWS, 4)}, {s(sT0)} offen")
        a.label("L_timeout")
        a.label("L_end")
        a("s_endpgm")

    def build(self):
        a = self.a
        self.prologue()
        for l in range(4):
            self.layer(l)
        self.final()
        a.raw(self.tail)
        a.label("L_codeend")
        a("s_endpgm")
        nops = a.pad_hazards()
        head = open(f"cdna_kernels/{NAME}.s.ref").read().split("; Override launch")[0]
        out = head + f"; @launch grid=(256,1,1) block=(256,1,1) lds={LDS_SIZE}\n"
        out += f""".amdgcn_target "amdgcn-amd-amdhsa--gfx950"
.text
.globl {NAME}_kernel
.p2align 8
.type {NAME}_kernel,@function
{NAME}_kernel:
"""
        out += a.text()
        out += f""".section .rodata,"a"
.p2align 6
.amdhsa_kernel {NAME}_kernel
  .amdhsa_next_free_vgpr 512
  .amdhsa_next_free_sgpr 102
  .amdhsa_accum_offset 256
  .amdhsa_group_segment_fixed_size 0
  .amdhsa_kernarg_size 80
  .amdhsa_user_sgpr_count 2
  .amdhsa_user_sgpr_kernarg_segment_ptr 1
  .amdhsa_system_sgpr_workgroup_id_x 1
.end_amdhsa_kernel
"""
        self.nops = nops
        return out


if __name__ == "__main__":
    import ast
    kw = {}
    out = sys.argv[1]
    for x in sys.argv[2:]:
        k, val = x.split("=", 1)
        kw[k] = ast.literal_eval(val)
    g = Gen(**kw)
    txt = g.build()
    open(out, "w").write(txt)
    print(f"wrote {out}: {len(g.a.ins)} lines, {g.nops} pad states", file=sys.stderr)
```

```python
import sys
import contextlib
from asmlib import Asm, Ins

NAME = "interleave_layers__linear_attn_block__linear_kernel_hedgehog__prompt"

CFG = dict(
    ts=0, rt=0,
    dump=None,
    amp=None,
    force_global=0,
    n0=5, w_every=25, nw=6, codepf=14, slowpf=1, align=6, pads=1, mallpf=1, x_wt=1, x_ann=1,
    hx='ffff', ho='ffff', touch=1,
    bg=((4, 6, 14, 10, 6, 0), (4, 10, 10, 0, 0, 0)),
    pl_step=(26, 26, 26, 26),
    nx0=8, no0=8,
    wo_every=(8, 10),
    opre=(10, 8, 8),
    xprobe_at=99,
    put_every=1, put_pre=8, xput_every=6, wo_spread=1.5, owait=4,
    finflag="", jit=1,
)

FLAGX, FLAGO, FLAGX2, ANN, HELLO = 0x1000, 0x3000, 0x7000, 0x9000, 0xA0000
STATS, STATS_G = [0x10000, 0x30000], 0x40000
XB = [0, 0x800000]
OB = [0x400000, 0x600000]
KVP = [0xC0000 + 0x90000 * l for l in range(4)]
DBG = 0x1000000
WS_SIZE = 0x8000000
L_P, L_WQ, L_STG = 0x0, [0x10000, 0x18000], 0x20000
L_KVF = 0x26000
L_WPF = L_KVF + 4 * 528
L_ZB = L_WPF + 2 * 528
L_CSP = 0x26D00
L_SEL = 0x27900
LDS_SIZE = 0x28000
XF, AK, AV, RG, LG, XR, PK = 0, 128, 144, 160, 192, 208, 224
vSTR, vSTR2, vPST, vZST, vKFW, vZW, vZR, vOST = range(184, 192)
vL16, vWRD, vSTW, vKFR, vS, vRS, vM, vXST, vSST, vSLD, vPOLL, vWOR, vWOW, vWKW, vCSR, vTS = range(240, 256)
A_WKV, A_WO = [0, 64], [128, 192]
sID = 2
sPX, sPWA, sPWOA, sPBX, sPWB, sPPHI, sPWOB, sPOUT, sPDBG, sPWS = range(4, 24, 2)
sWS, sOUT, sTMP = 24, 28, 32
XS = [sOUT, sWS]
(sW, sC, sR, sXLD, sSTLD, sFXP, sOST, sFOS, sOLD, sFOP, sXST, sSTST, sFXS, sKVT, sTAG, sMODE, sPASS,
 sEP, sXCC, sT0, sT1, sT2, sT3, sCNT, sWOFF, sQOFF, sOOFF, sHEL, sLN2, sLN2b, sDELTA, sFIN) = range(36, 68)
sHI = 68
sSAVE = 70
sTSA = 72
sTSI = 74
sGW = 75
sLAY = 76
sANN = 77
sW13 = 98
sSKIP = 3
sPF = 0
sTG = 1
sPM = 96
sSW, sSO = [80, 84], [88, 92]
vBW, vBO, vHL = RG + 20, RG + 21, RG + 22
vPR, vPB, vPA, vCK = PK + 10, PK + 11, PK + 7, PK + 6
sROW = sPM
sCOL = sPBX
assert sLN2 % 2 == 0

LOG2E = 0x3FB8AA3B
LN2 = 0x3F317218
DELTA = 0x35C1A4C3
import struct
def f2u(x): return struct.unpack("<I", struct.pack("<f", x))[0]
DELTA = f2u(1e-6 * 1.4426950408889634)


def v(a, n=1): return f"v{a}" if n == 1 else f"v[{a}:{a + n - 1}]"
def ar(a, n=1): return f"a{a}" if n == 1 else f"a[{a}:{a + n - 1}]"
def s(a, n=1): return f"s{a}" if n == 1 else f"s[{a}:{a + n - 1}]"


class Gen:
    def __init__(self, **kw):
        self.cfg = dict(CFG)
        self.cfg.update(kw)
        self.a = Asm()
        self.tail = []
        self.nts = 0
        self.tsnames = []
        self.side = []
        self.side_every = 1
        self.xb, self.ob = [0], [0]
        assert self.cfg["hx"][0] == "f" and self.cfg["ho"][0] == "f"
        for l in range(1, 4):
            self.xb.append(self.xb[-1] ^ (self.cfg["hx"][l] == "s"))
            self.ob.append(self.ob[-1] ^ (self.cfg["ho"][l] == "s"))

    @contextlib.contextmanager
    def uncounted(self):
        a = self.a
        vm, lg = list(a.vm), list(a.lg)
        yield
        a.vm, a.lg = vm, lg

    @contextlib.contextmanager
    def only_if(self, cmp):
        a = self.a
        l = a.newlabel("skip")
        a(cmp)
        a(f"s_cbranch_scc0 {l}")
        with self.uncounted():
            yield
        a.label(l)

    @contextlib.contextmanager
    def outofline(self):
        a = self.a
        n0 = len(a.ins)
        with self.uncounted():
            yield
        self.tail += a.ins[n0:]
        del a.ins[n0:]

    def code_pf(self, lo, hi, t):
        a = self.a
        n = f"(({hi}-{lo})/1024+1)"
        a(f"s_bfe_u32 {s(sT0)}, {s(sID)}, {3 | (3 << 16)}")
        a(f"s_mul_i32 {s(sT0)}, {s(sT0)}, {n}*128")
        a(f"s_add_u32 {s(sT0)}, {s(sT0)}, {lo}-L_pc")
        a(f"v_lshlrev_b32 {v(t)}, 3, {v(vL16)}")
        a(f"v_min_u32 {v(t)}, ({n}-1)*128, {v(t)}")
        a(f"v_add_u32 {v(t)}, {s(sT0)}, {v(t)}")
        a(f"v_min_u32 {v(t)}, L_codeend-L_pc, {v(t)}")
        a(f"global_load_dword {v(t)}, {v(t)}, {s(sSAVE, 2)}")

    def warm(self, g):
        a = self.a
        if not self.cfg["pads"]:
            return
        a("s_mov_b64 exec, 0")
        for k in range(3):
            a(f"s_cmp_eq_u32 {s(sW)}, {k}")
            a(f"s_cbranch_scc1 L_pad{4 * g + k}")
        a(f"s_branch L_pad{4 * g + 3}")
        a.label(f"L_warmed{g}")
        a("s_mov_b64 exec, -1")

    def countdown(self):
        self.a(f"s_sub_u32 {s(sCNT)}, {s(sCNT)}, 1")
        self.a("s_cbranch_scc1 L_timeout")

    def bg_region(self, n, slots):
        n = min(n, len(self.bg))
        self.bg_slot = 0
        self.bg_at = [(k * slots) // n for k in range(n)]

    def bg_tick(self):
        for _ in range(self.bg_at.count(self.bg_slot)):
            self.bg.pop(0)()
        self.bg_slot += 1

    def bg_now(self, n):
        for _ in range(min(n, len(self.bg))):
            self.bg.pop(0)()

    def ticker(self):
        def e(text, **kw):
            if self.side and self.bg_slot % self.side_every == 0:
                self.side.pop(0)()
            self.bg_tick()
            self.a(text, **kw)
        return e

    def moded(self, lines, tag=None, reg=sMODE, wt=False):
        a = self.a
        if wt:
            for l in lines:
                a(l + (" sc1" if l.startswith("buffer_store") else ""), vm=tag)
            return
        lg, lj = a.newlabel("glob"), a.newlabel("join")
        a(f"s_cmp_eq_u32 {s(reg)}, 0")
        a(f"s_cbranch_scc0 {lg}")
        for l in lines:
            a(l, vm=tag)
        a.label(lj)
        t = [Ins(lg + ":")] + [Ins(l + (" sc1" if l.startswith("buffer_store") else "")) for l in lines] + [Ins(f"s_branch {lj}")]
        self.tail += t

    def srd_tmp(self, ptr, size):
        a = self.a
        a(f"s_mov_b32 {s(sTMP)}, {s(ptr)}")
        a(f"s_mov_b32 {s(sTMP + 1)}, {s(ptr + 1)}")
        a(f"s_mov_b32 {s(sTMP + 2)}, {size}")

    def ts(self, name):
        a = self.a
        amp = self.cfg["amp"]
        if amp:
            for k in range(2):
                if amp[k] == name:
                    a(f"{'s_memtime' if amp[3] else 's_memrealtime'} {s(72 + 6 * k, 2)}")
                    if name != "start":
                        a("s_waitcnt lgkmcnt(0)")
        if not self.cfg["ts"] or name == "start":
            return
        if self.cfg["ts"] == 1 and name.startswith("p_"):
            return
        if self.cfg["ts"] == 3 and name not in ("x0", "flag0", "poll0", "end") and name[2:] not in ("kvgemm", "ogemm"):
            return
        if self.cfg["ts"] == 2 and ":" in name and name[2:] not in ("kvgemm", "bar3", "ogemm"):
            return
        a(f"{'s_memrealtime' if self.cfg['rt'] else 's_memtime'} {s(sTSA, 2)}")
        a("s_waitcnt lgkmcnt(0)")
        a.lg.clear()
        a(f"v_writelane_b32 {v(vTS)}, {s(sTSA)}, {len(self.tsnames)}")
        self.tsnames.append(name)
        assert len(self.tsnames) <= 56

    def dump(self, point, l, regs, tmp):
        if self.cfg["dump"] != (point, l):
            return
        a = self.a
        with self.uncounted():
            a("s_waitcnt vmcnt(0) lgkmcnt(0)")
            a("s_nop 15")
            a(f"v_lshrrev_b32 {v(tmp)}, 2, {v(vL16)}")
            a(f"s_mul_i32 {s(sT0)}, {s(sGW)}, {64 * 256}")
            a(f"s_add_u32 {s(sT0)}, {s(sT0)}, {DBG}")
            for i, r in enumerate(regs):
                a(f"buffer_store_dword {v(r)}, {v(tmp)}, {s(sWS, 4)}, {s(sT0)} offen")
                a(f"s_add_u32 {s(sT0)}, {s(sT0)}, 256")
            a("s_waitcnt vmcnt(0)")

    def poll(self, voff, soff, tmp, tag=sTG):
        a = self.a
        l = a.newlabel("poll")
        a.label(l)
        a(f"buffer_load_dword {v(tmp)}, {v(voff)}, {s(sWS, 4)}, {s(soff)} offen sc1")
        self.countdown()
        a.wait(vm=0)
        a(f"v_cmp_ne_u32 vcc, {s(tag)}, {v(tmp)}")
        a(f"s_cbranch_vccnz {l}")

    def flag(self, soff, tmp, after=0):
        a = self.a
        a(f"v_mov_b32 {v(tmp)}, {s(sTG)}")
        a.wait(vm=after)
        a("s_mov_b64 exec, 1")
        self.moded([f"buffer_store_dword {v(tmp)}, off, {s(sWS, 4)}, {s(soff)}"])
        a("s_mov_b64 exec, -1")

    def w_voff(self, t):
        a = self.a
        a(f"v_lshrrev_b32 {v(t)}, 6, {v(vL16)}")
        a(f"v_mul_u32_u24 {v(t)}, {3072 - 64}, {v(t)}")
        a(f"v_add_u32 {v(t)}, {v(t)}, {v(vL16)}")

    def ld_wkv(self, T, i, t, st=sT0):
        a = self.a
        a(f"s_add_u32 {s(st)}, {s(sWOFF)}, {i * 32 * 3072}")
        a(f"buffer_load_dwordx4 {ar(A_WKV[T] + 4 * i, 4)}, {v(t)}, {s(sSW[T], 4)}, {s(st)} offen", vm=f"wkv{i}")

    def ld_wq(self, T, i):
        a = self.a
        a(f"s_add_u32 m0, {s(sW13)}, {L_WQ[T] + i * 1024}")
        a(f"s_add_u32 {s(sT0)}, {s(sQOFF)}, {i * 16 * 3072}")
        a(f"buffer_load_dwordx4 {v(self.bw)}, {s(sSW[T], 4)}, {s(sT0)} offen lds", vm="wq")

    def ld_wo(self, T, i):
        a = self.a
        a(f"s_add_u32 {s(sT0)}, {s(sOOFF)}, {i * 8 * 1024}")
        a(f"buffer_load_dwordx4 {ar(A_WO[T] + 4 * i, 4)}, {v(vBO)}, {s(sSO[T], 4)}, {s(sT0)} offen", vm="wo")

    def slow_pf(self, srd, n, t):
        a = self.a
        if not self.cfg["slowpf"]:
            return
        a(f"s_sub_u32 {s(sT0)}, 0x180, {s(srd)}")
        a(f"s_and_b32 {s(sT0)}, {s(sT0)}, 0x380")
        a(f"s_mul_i32 {s(sT1)}, {s(sPF)}, {n * 1024}")
        a(f"s_add_u32 {s(sT0)}, {s(sT0)}, {s(sT1)}")
        a(f"v_lshlrev_b32 {v(t)}, 6, {v(vL16)}")
        a(f"s_mov_b64 exec, {(1 << n) - 1:#x}")
        a(f"buffer_load_dword {v(t)}, {v(t)}, {s(srd, 4)}, {s(sT0)} offen")
        a("s_mov_b64 exec, -1")

    def bg_setup(self, T):
        self.bg = [(lambda i=i: self.ld_wq(T, i)) for i in range(8)] + [(lambda i=i: self.ld_wo(T, i)) for i in range(16)]
        if T == 0:
            self.bg += [(lambda i=i: self.ld_wkv(1, i, vBW)) for i in range(16)]

    def put_wkv(self, T, lo, hi, waits=False):
        for i in range(lo, hi):
            if waits:
                self.a.wait(vm=f"wkv{i}")
            self.a(f"ds_write_b128 {v(vWKW)}, {ar(A_WKV[T] + 4 * i, 4)} offset:{i * 2048}", lg="put")

    def put_wo(self, T, i):
        self.a(f"ds_write_b128 {v(vWOW)}, {ar(A_WO[T] + 4 * i, 4)} offset:{(i >> 2) * 1024 + (i & 3) * 128}")

    @staticmethod
    def woff(j, u):
        return (j >> 2) * 4096 + u * 1024 + (j & 3) * 256

    def colsum(self, addr, nsteps, regs, acc):
        a = self.a
        a(f"v_mov_b32 {v(acc)}, 0")
        for j in range(nsteps):
            for u in range(2):
                a(f"ds_read_b64_tr_b16 {v(regs[j] + 2 * u, 2)}, {v(addr)} offset:{self.woff(j, u)}", lg=f"cs{j}")
        for j in range(nsteps):
            a.wait(lg=f"cs{j}")
            for d in range(4):
                a(f"v_dot2c_f32_bf16 {v(acc)}, {s(sT3)}, {v(regs[j] + d)}")

    def cs_kv_step(self, T, i, sel, d):
        self.a(f"v_mfma_f32_16x16x32_bf16 {v(d, 4)}, {v(sel, 4)}, {ar(A_WKV[T] + 4 * i, 4)}, {v(d, 4) if i else 0}")

    def cs_kv_fin(self, T, d, t):
        a = self.a
        a(f"s_and_b32 {s(sT0)}, {s(sW)}, 1")
        a(f"s_lshl_b32 {s(sT0)}, {s(sT0)}, 9")
        a(f"s_and_b32 {s(sT1)}, {s(sW)}, 2")
        a(f"s_lshl_b32 {s(sT1)}, {s(sT1)}, 2")
        a(f"s_add_u32 {s(sT0)}, {s(sT0)}, {s(sT1)}")
        a(f"s_add_u32 {s(sT0)}, {s(sT0)}, {L_CSP + T * 1536}")
        a(f"v_lshrrev_b32 {v(t)}, 9, {v(vL16)}")
        a(f"v_lshl_add_u32 {v(t)}, {v(t)}, 2, {s(sT0)}")
        a(f"v_bfe_u32 {v(t + 1)}, {v(vL16)}, 4, 1")
        a(f"v_lshl_add_u32 {v(t)}, {v(t + 1)}, 8, {v(t)}")
        a(f"v_bfe_u32 {v(t + 1)}, {v(vL16)}, 8, 1")
        a(f"v_lshl_add_u32 {v(t)}, {v(t + 1)}, 7, {v(t)}")
        a(f"v_bfe_u32 {v(t + 1)}, {v(vL16)}, 5, 1")
        a(f"v_lshl_add_u32 {v(t)}, {v(t + 1)}, 6, {v(t)}")
        for ror in (4, 8):
            for i in range(4):
                a(f"v_add_f32 {v(d + i)}, {v(d + i)}, {v(d + i)} row_ror:{ror}")
        a(f"ds_write2_b32 {v(t)}, {v(d)}, {v(d + 1)} offset0:0 offset1:4")
        a(f"ds_write2_b32 {v(t)}, {v(d + 2)}, {v(d + 3)} offset0:8 offset1:12")

    def mark_slot(self, delta, ones):
        a = self.a
        a(f"s_add_u32 {s(sT2)}, {s(sKVT)}, {delta}")
        a(f"s_mov_b64 exec, {s(sROW, 2)}")
        a(f"buffer_store_dwordx4 {v(ones, 4)}, {v(vPST)}, {s(sWS, 4)}, {s(sT2)} offen sc1", vm="mark")
        a(f"s_mov_b64 exec, {s(sCOL, 2)}")
        a(f"buffer_store_dwordx4 {v(ones, 4)}, {v(vZST)}, {s(sWS, 4)}, {s(sT2)} offen sc1", vm="mark")
        a("s_mov_b64 exec, -1")

    def sel_read(self, sel):
        a = self.a
        a(f"v_and_b32 {v(sel)}, 0x1f0, {v(vL16)}")
        a(f"v_add_u32 {v(sel)}, {L_SEL:#x}, {v(sel)}")
        a(f"ds_read_b128 {v(sel, 4)}, {v(sel)}", lg="sel")

    def cs_q(self, T):
        a = self.a
        t, acc = AV, AV + 1
        a(f"s_mov_b32 {s(sT3)}, 0x3f803f80")
        a(f"s_add_u32 {s(sT0)}, {s(sW13)}, {L_WQ[T]}")
        a(f"v_add_u32 {v(t)}, {s(sT0)}, {v(vWRD)}")
        regs = [LG + 4 * i for i in range(4)] + [PK + 4 * i for i in range(4)]
        self.colsum(t, 8, regs, acc)
        a(f"v_mov_b32 {v(t)}, {v(acc)}")
        a(f"v_permlane32_swap_b32 {v(t)}, {v(acc)}")
        a(f"v_add_f32 {v(acc)}, {v(acc)}, {v(t)}")
        a(f"s_lshl_b32 {s(sT0)}, {s(sW)}, 2")
        a(f"v_add_u32 {v(t)}, {s(sT0)}, {v(vCSR)}")
        a(f"ds_write_b32 {v(t)}, {v(acc)} offset:{T * 1536 + 1024}")

    @staticmethod
    def cs_pack(src, dst):
        return [
            f"v_pk_add_f32 {v(src, 2)}, {v(src, 2)}, {v(src + 2, 2)}",
            f"v_add_f32 {v(src)}, {v(src)}, {v(src + 1)}",
            f"v_cvt_pk_bf16_f32 {v(src + 1)}, {v(src)}, {v(src)}",
            f"v_and_b32 {v(src + 1)}, 0xffff0000, {v(src + 1)}",
            f"v_sub_f32 {v(src)}, {v(src)}, {v(src + 1)}",
            f"v_cvt_pk_bf16_f32 {v(dst)}, {v(src + 1)}, {v(src)}",
        ]

    def x_steps(self, B, src, X, wt=False, mark=False):
        a = self.a
        t = X + 8
        st = []
        E = lambda txt: st.append(lambda: a(txt))
        E(f"s_add_u32 {s(sT2)}, {s(sXST)}, {XB[B]}")
        for i in range(8):
            E(f"v_cvt_pk_bf16_f32 {v(X + i)}, {v(src + 2 * i)}, {v(src + 2 * i + 1)}")
        if mark:
            E(f"v_min_u32 {v(X)}, -2, {v(X)}")
            E(f"v_min_u32 {v(X + 4)}, -2, {v(X + 4)}")
        st.append(lambda: self.moded([f"buffer_store_dwordx4 {v(X + 4 * i, 4)}, {v(vXST)}, {s(XS[B], 4)}, {s(sT2)} offen offset:{i * 512}" for i in range(2)], tag="xst", wt=wt))
        E(f"v_pk_add_f32 {v(t, 2)}, {v(src, 2)}, {v(src + 2, 2)}")
        E(f"v_pk_mul_f32 {v(t + 2, 2)}, {v(src, 2)}, {v(src, 2)}")
        E(f"v_pk_fma_f32 {v(t + 2, 2)}, {v(src + 2, 2)}, {v(src + 2, 2)}, {v(t + 2, 2)}")
        for i in range(2, 8):
            E(f"v_pk_add_f32 {v(t, 2)}, {v(t, 2)}, {v(src + 2 * i, 2)}")
            E(f"v_pk_fma_f32 {v(t + 2, 2)}, {v(src + 2 * i, 2)}, {v(src + 2 * i, 2)}, {v(t + 2, 2)}")
        E(f"v_add_f32 {v(t)}, {v(t)}, {v(t + 1)}")
        E(f"v_add_f32 {v(t + 2)}, {v(t + 2)}, {v(t + 3)}")
        E(f"s_add_u32 {s(sT2)}, {s(sSTST)}, {STATS[B]}")
        E(f"v_permlane32_swap_b32 {v(t)}, {v(t + 2)}")
        E(f"v_add_f32 {v(t)}, {v(t)}, {v(t + 2)}")
        E(f"v_mov_b32 {v(t + 1)}, {v(t)}")
        E(f"v_permlane16_swap_b32 {v(t)}, {v(t + 1)}")
        E(f"v_add_f32 {v(t)}, {v(t)}, {v(t + 1)}")
        if mark:
            E(f"v_min_u32 {v(t)}, -2, {v(t)}")

        def stat():
            a(f"s_mov_b64 exec, {s(sROW, 2)}")
            self.moded([f"buffer_store_dword {v(t)}, {v(vSST)}, {s(sWS, 4)}, {s(sT2)} offen"], tag="xst")
            a("s_mov_b64 exec, -1")
        st.append(stat)
        return st

    def ldx(self, B, j):
        a = self.a
        if j % 4 == 0 and j:
            a(f"s_add_u32 {s(sT3)}, {s(sXLD)}, {XB[B] + j * 1024}")
        a(f"buffer_load_dwordx4 {v(XF + 4 * j, 4)}, {v(vL16)}, {s(XS[B], 4)}, {s(sT3)} offen offset:{(j % 4) * 1024} sc1", vm=f"x{j}")

    def probe(self, what, reg, setexec=True):
        a = self.a
        voff, srd, soff, off, _ = what
        if setexec:
            a("s_mov_b64 exec, 0xffff")
        a(f"buffer_load_dword {v(reg)}, {v(voff)}, {s(srd, 4)}, {s(soff)} offen offset:{off} sc1", vm="probe")
        if setexec:
            a("s_mov_b64 exec, -1")

    def spin(self, what, name):
        a = self.a
        a("s_mov_b64 exec, 0xffff")
        a.label(f"L_spin{name}")
        self.probe(what, vPB, False)
        a("s_waitcnt vmcnt(1)")
        a(f"{what[4]}, {v(vPR)}")
        a(f"s_cbranch_vccz L_go{name}")
        self.probe(what, vPR, False)
        self.countdown()
        a("s_waitcnt vmcnt(1)")
        a(f"{what[4]}, {v(vPB)}")
        a(f"s_cbranch_vccnz L_spin{name}")
        a.label(f"L_go{name}")
        a("s_mov_b64 exec, -1")
        a.vm.clear()

    def what_x(self, l):
        if self.cfg["hx"][l] == "s":
            return (vPA, XS[self.xb[l]], sT3, 3824, "v_cmp_eq_u32 vcc, -1")
        return (vPOLL, sWS, sFXP, 0, f"v_cmp_ne_u32 vcc, {s(sTG)}")

    def what_o(self, l):
        if self.cfg["ho"][l] == "s":
            return (vPA, sWS, sT3, 1008, "v_cmp_eq_u32 vcc, -1")
        return (vPOLL, sWS, sFOP, 0, f"v_cmp_ne_u32 vcc, {s(sTG)}")

    def x_probe_addr(self):
        return [f"v_and_b32 {v(vPR)}, 4, {v(vPOLL)}",
                f"v_mul_u32_u24 {v(vPR)}, 448, {v(vPR)}",
                f"v_lshlrev_b32 {v(vPA)}, 9, {v(vPOLL)}",
                f"v_sub_u32 {v(vPA)}, {v(vPA)}, {v(vPR)}"]

    def phi_a(self, acc, tmp):
        a = self.ticker()
        for i in range(8):
            a(f"v_pk_mul_f32 {v(acc + 2 * i, 2)}, {v(acc + 2 * i, 2)}, {v(vS, 2)} op_sel_hi:[1,0]")
        for i in range(16):
            a(f"v_exp_f32_e64 {v(tmp + i)}, {v(acc + i)} clamp")
            a(f"v_max_f32 {v(acc + i)}, {s(sDELTA)}, {v(acc + i)}")
        for i in range(8):
            a(f"v_pk_fma_f32 {v(acc + 2 * i, 2)}, {v(acc + 2 * i, 2)}, {s(sLN2, 2)}, {v(tmp + 2 * i, 2)}")
        for i in range(8):
            a(f"v_cvt_pk_bf16_f32 {v(PK + i)}, {v(acc + 2 * i)}, {v(acc + 2 * i + 1)}")

    def logits(self):
        a = self.a
        for i in range(8):
            a(f"v_cvt_pk_bf16_f32 {v(PK + i)}, {v(AK + 2 * i)}, {v(AK + 2 * i + 1)}")
        a.wait(lg="wp")
        a(f"v_mfma_f32_32x32x16_bf16 {v(LG, 16)}, {v(PK + 8, 4)}, {v(PK, 4)}, 0")
        a(f"v_mfma_f32_32x32x16_bf16 {v(LG, 16)}, {v(PK + 12, 4)}, {v(PK + 4, 4)}, {v(LG, 16)}")

    def softmax2(self, t, isq, after_plus=None, after_minus=None):
        a = self.ticker()
        a(f"v_max3_f32 {v(t)}, {v(LG)}, {v(LG + 1)}, {v(LG + 2)}")
        a(f"v_min3_f32 {v(t + 1)}, {v(LG)}, {v(LG + 1)}, {v(LG + 2)}")
        for i in range(3, 15, 2):
            a(f"v_max3_f32 {v(t)}, {v(t)}, {v(LG + i)}, {v(LG + i + 1)}")
            a(f"v_min3_f32 {v(t + 1)}, {v(t + 1)}, {v(LG + i)}, {v(LG + i + 1)}")
        a(f"v_max_f32 {v(t)}, {v(t)}, {v(LG + 15)}")
        a(f"v_min_f32 {v(t + 1)}, {v(t + 1)}, {v(LG + 15)}")
        a(f"v_pk_mul_f32 {v(t, 2)}, {v(t, 2)}, {v(vS, 2)} op_sel_hi:[1,0]")
        for sg, E in ((0, AK), (1, LG)):
            for i in range(8):
                if sg == 0:
                    a(f"v_pk_fma_f32 {v(E + 2 * i, 2)}, {v(LG + 2 * i, 2)}, {v(vS, 2)}, {v(t, 2)} op_sel_hi:[1,0,0] neg_lo:[0,0,1] neg_hi:[0,0,1]")
                else:
                    a(f"v_pk_fma_f32 {v(E + 2 * i, 2)}, {v(LG + 2 * i, 2)}, {v(vS, 2)}, {v(t, 2)} op_sel:[0,0,1] op_sel_hi:[1,0,1] neg_lo:[1,0,0] neg_hi:[1,0,0]")
            for i in range(16):
                a(f"v_exp_f32 {v(E + i)}, {v(E + i)}")
            S = t + 2 + 2 * sg
            a(f"v_pk_add_f32 {v(S, 2)}, {v(E, 2)}, {v(E + 2, 2)}")
            for i in range(2, 8):
                a(f"v_pk_add_f32 {v(S, 2)}, {v(S, 2)}, {v(E + 2 * i, 2)}")
            a(f"v_add_f32 {v(S)}, {v(S)}, {v(S + 1)}")
            if not (isq and sg == 0):
                a(f"v_rcp_f32 {v(S)}, {v(S)}")
                if isq:
                    a(f"v_mul_f32 {v(t + 6)}, {f2u(1e-6):#x}, {v(t + 2)}")
                    a(f"v_mul_f32 {v(S)}, {v(S)}, {v(t + 2)}")
                for i in range(8):
                    a(f"v_pk_mul_f32 {v(E + 2 * i, 2)}, {v(E + 2 * i, 2)}, {v(S, 2)} op_sel_hi:[1,0]")
            for i in range(8):
                a(f"v_cvt_pk_bf16_f32 {v(PK + 8 * sg + i)}, {v(E + 2 * i)}, {v(E + 2 * i + 1)}")
            cb = (after_plus, after_minus)[sg]
            if cb:
                cb()

    def layer(self, l):
        a, cfg = self.a, self.cfg
        T, first, last = l & 1, l < 2, l == 3
        NJ = 2 if T == 0 else 4
        skip23 = (lambda: self.only_if(f"s_cmp_lt_u32 {s(sW)}, 2")) if T == 0 else contextlib.nullcontext
        bgn = cfg["bg"][l] if first else (0,) * 6
        self.bg = []
        if first:
            self.bg_setup(T)
            assert sum(bgn) >= len(self.bg) and bgn[0] + bgn[1] >= 8 and sum(bgn[:3]) >= 24
        NX = cfg["nx0"]
        xs, os_ = cfg["hx"][l] == "s", cfg["ho"][l] == "s"
        XI, OI = self.xb[l], self.ob[l]
        a.label(f"L_layer{l}")
        if xs:
            a(f"s_mov_b32 {s(sSKIP)}, 0")
        a.wait(lg=0)
        a("s_barrier")
        self.ts(f"{l}:bar1")
        a.label(f"L_xre{l}")
        ST = LG
        CS = LG + 8
        CSA, MB = PK, PK + 2
        D = 3

        def rd(j, p):
            for u in range(2):
                a(f"ds_read_b64_tr_b16 {v(RG + (j % D) * 8 + 4 * p + 2 * u, 2)}, {v(vWRD)} offset:{p * 32768 + self.woff(j, u)}", lg=f"w{j}")
        for j in range(D):
            rd(j, 0); rd(j, 1)
        a(f"ds_read_b128 {v(CS, 4)}, {v(vCSR)} offset:{T * 1536}", lg="cs")
        a(f"ds_read_b128 {v(CS + 4, 4)}, {v(vCSR)} offset:{T * 1536 + 512}", lg="cs")
        if xs:
            a(f"v_mov_b32 {v(vCK)}, 0")
        if l:
            self.spin(self.what_x(l), f"x{l}")
        a.vm.clear()
        if xs:
            with self.outofline():
                a.label(f"L_xfail{l}")
                a(f"s_mov_b32 {s(sSKIP)}, 1")
                self.countdown()
                if cfg["ts"]:
                    a(f"s_add_u32 {s(sLAY)}, {s(sLAY)}, 1")
                a(f"s_add_u32 {s(sT3)}, {s(sXLD)}, {XB[XI]}")
                a("s_waitcnt vmcnt(0) lgkmcnt(0)")
                self.probe(self.what_x(l), vPR)
                a(f"s_branch L_xre{l}")
        self.ts(f"{l}:xpoll")

        def ldx(j):
            self.ldx(XI, j)
            if j == max(NX, 9):
                a(f"s_add_u32 {s(sT1)}, {s(sSTLD)}, {STATS[XI]}")
                a(f"buffer_load_dwordx4 {v(ST, 4)}, {v(vSLD)}, {s(sWS, 4)}, {s(sT1)} offen sc1", vm="st")
            if j == max(NX, 9) + 2:
                a(f"buffer_load_dwordx4 {v(ST + 4, 4)}, {v(vSLD)}, {s(sWS, 4)}, {s(sT1)} offen offset:512 sc1", vm="st")
        put_at = [int(k * cfg["put_every"]) - cfg["put_pre"] for k in range(8)]
        for j in range(NX):
            ldx(j)
            for k in range(8):
                if put_at[k] == j - NX or (j == 0 and put_at[k] < -NX):
                    self.put_wkv(T, 8 + k, 9 + k)
        t, u_ = ST, ST + 1
        stat = [f"v_max3_u32 {v(vCK)}, {v(vCK)}, {v(ST + 2 * i)}, {v(ST + 2 * i + 1)}" for i in range(4 * xs)] + [
            f"v_pk_add_f32 {v(ST, 2)}, {v(ST, 2)}, {v(ST + 2, 2)}",
            f"v_pk_add_f32 {v(ST + 4, 2)}, {v(ST + 4, 2)}, {v(ST + 6, 2)}",
            f"v_pk_add_f32 {v(ST, 2)}, {v(ST, 2)}, {v(ST + 4, 2)}",
            f"v_add_f32 {v(t)}, {v(ST)}, {v(ST + 1)}",
            f"v_mul_f32 {v(t)}, {f2u(1 / 512):#x}, {v(t)}",
            f"v_mov_b32 {v(u_)}, {v(t)}",
            f"v_permlane32_swap_b32 {v(t)}, {v(u_)}",
            f"v_fma_f32 {v(u_)}, -{v(t)}, {v(t)}, {v(u_)}",
            f"v_max_f32 {v(u_)}, 0, {v(u_)}",
            f"v_cvt_pk_bf16_f32 {v(vM)}, -{v(t)}, -{v(t)}",
            f"v_cvt_pk_bf16_f32 {v(u_)}, {v(u_)}, {v(u_)}",
            f"v_and_b32 {v(u_)}, 0xffff0000, {v(u_)}",
            f"v_add_f32 {v(u_)}, {f2u(1e-5):#x}, {v(u_)}",
            f"v_cvt_pk_bf16_f32 {v(u_)}, {v(u_)}, {v(u_)}",
            f"v_and_b32 {v(u_)}, 0xffff0000, {v(u_)}",
            f"v_sqrt_f32 {v(u_)}, {v(u_)}",
            f"v_cndmask_b32 {v(vM)}, {v(vM)}, 0, {s(sHI, 2)}",
            f"v_cvt_pk_bf16_f32 {v(u_)}, {v(u_)}, {v(u_)}",
            f"v_and_b32 {v(u_)}, 0xffff0000, {v(u_)}",
            f"v_rcp_f32 {v(vRS)}, {v(u_)}",
            f"v_mov_b32 {v(MB)}, {v(vM)}",
            f"v_mul_f32 {v(vS)}, {LOG2E:#x}, {v(vRS)}",
            f"v_mov_b32 {v(MB + 3)}, {v(vM)}",
        ]
        js = max(NX, 9) + 3
        fill = [f"v_mov_b32 {v(MB + 1)}, 0", f"v_mov_b32 {v(MB + 2)}, 0"]
        if l == 0:
            fill += [f"v_mov_b32 {v(PK + 12 + i)}, -1" for i in range(4)]
        fill += [None] * (2 * D - len(fill)) + self.cs_pack(CS, CSA) + self.cs_pack(CS + 4, CSA + 1)
        self.bw = CS + 2
        if first:
            fill += [f"v_lshrrev_b32 {v(self.bw)}, 6, {v(vL16)}", f"v_mul_u32_u24 {v(self.bw)}, {3072 - 64}, {v(self.bw)}",
                     f"v_add_u32 {v(self.bw)}, {v(self.bw)}, {v(vL16)}"]
            assert bgn[0] <= 8
        fill += [None] * (2 * js - len(fill)) + stat
        jc = (len(fill) + 1) // 2 + 1
        assert jc <= 31
        assert put_at[-1] < 16 - D
        self.bg_region(bgn[0], NX)
        for j in range(32):
            a.wait(vm=f"x{j}", lg=f"w{j}")
            if j == 16 - D:
                a.wait(lg="put")
                with self.only_if(f"s_cmp_eq_u32 {s(sSKIP)}, 0") if xs else contextlib.nullcontext():
                    a("s_barrier")
            if j == jc:
                a(f"v_mfma_f32_32x32x8_bf16 {v(AK, 16)}, {v(CSA, 2)}, {v(MB, 2)}, {v(AK, 16)}")
                a(f"v_mfma_f32_32x32x8_bf16 {v(AV, 16)}, {v(CSA, 2)}, {v(MB + 2, 2)}, {v(AV, 16)}")
            for p, acc in ((0, AK), (1, AV)):
                c = v(acc, 16) if j else "0"
                a(f"v_mfma_f32_32x32x16_bf16 {v(acc, 16)}, {v(RG + (j % D) * 8 + 4 * p, 4)}, {v(XF + 4 * j, 4)}, {c}")
                if p == 0:
                    if j + NX < 32:
                        ldx(j + NX)
                    if l == 0 and j + NX == 32:
                        self.mark_slot(KVP[1] - KVP[0], PK + 12)
                    if j + NX >= 32:
                        self.bg_tick()
                    for k in range(8):
                        if put_at[k] == j:
                            self.put_wkv(T, 8 + k, 9 + k)
                    if xs and j & 1:
                        a(f"v_max3_u32 {v(vCK)}, {v(vCK)}, {v(XF + 4 * j - 4)}, {v(XF + 4 * j)}")
                    if xs and j == 31:
                        a(f"v_cmp_eq_u32 vcc, -1, {v(vCK)}")
                    if first and j == 30:
                        a(f"v_mov_b32 {v(vBW)}, {v(self.bw)}")
                        a(f"v_lshrrev_b32 {v(vBO)}, 7, {v(vL16)}")
                        a(f"v_mul_u32_u24 {v(vBO)}, {1024 - 128}, {v(vBO)}")
                        a(f"v_add_u32 {v(vBO)}, {v(vBO)}, {v(vL16)}")
                if j + D < 32:
                    rd(j + D, p)
                if T == 1 and j == 29:
                    a(f"ds_read_b128 {v(PK + 8 + 4 * p, 4)}, {v(vKFR)} offset:{L_WPF - L_KVF + 528 * p}", lg="wp")
                if fill:
                    f_ = fill.pop(0)
                    if f_:
                        a(f_)
        if xs:
            a(f"s_cbranch_vccnz L_xfail{l}")
        self.bw = vBW
        if first:
            self.slow_pf(sSO[T], 4, RG + 23)
        self.ts(f"{l}:kvgemm")
        self.dump("kv", l, list(range(AK, AK + 32)) + [vS, vRS, vM], RG)

        def v_path(e):
            for i in range(8):
                e(f"v_pk_mul_f32 {v(AV + 2 * i, 2)}, {v(AV + 2 * i, 2)}, {v(vS, 2)} op_sel:[0,1]")
            for i in range(8):
                e(f"v_cvt_pk_bf16_f32 {v(AV + i)}, {v(AV + 2 * i)}, {v(AV + 2 * i + 1)}")
            for i in range(2):
                a(f"ds_write_b128 {v(vSTW)}, {v(AV + 4 * i, 4)} offset:{0x4000 + 128 * i}")

        def stage(sg):
            for i in range(2):
                a(f"ds_write_b128 {v(vSTW)}, {v(PK + 8 * sg + 4 * i, 4)} offset:{sg * 8192 + 128 * i}")
        if T == 0:
            self.bg_region(bgn[1], 72)
            self.phi_a(AK, LG)
            stage(0)
            v_path(self.ticker())
        else:
            self.bg_region(bgn[1], 125)
            self.logits()
            v_path(self.ticker())
            self.softmax2(RG, False, lambda: stage(0), lambda: stage(1))
        self.dump("pk", l, list(range(PK, PK + 16)) + list(range(AV, AV + 8)), RG)
        ONE, DK, DZ, PB = RG + 8, AV + 8, AV + 12, AV + 4
        for i in range(4):
            a(f"v_mov_b32 {v(ONE + i)}, 0x3f803f80")
        a.wait(vm="mark", lg=0)
        a("s_barrier")
        self.ts(f"{l}:bar2")
        with skip23():
            for st in range(4):
                for u in range(2):
                    a(f"ds_read_b64_tr_b16 {v(LG + 4 * st + 2 * u, 2)}, {v(vSTR)} offset:{st * 1024 + u * 512}", lg=f"pa{st}")
                for u in range(2):
                    a(f"ds_read_b64_tr_b16 {v(PK + 4 * st + 2 * u, 2)}, {v(vSTR2)} offset:{st * 1024 + u * 512}", lg=f"p{st}")
            for st in range(4):
                a.wait(lg=f"pa{st}")
                a(f"v_mfma_f32_16x16x32_bf16 {v(DZ, 4)}, {v(LG + 4 * st, 4)}, {v(ONE, 4)}, {v(DZ, 4) if st else 0}")
                a.wait(lg=f"p{st}")
                a(f"v_mfma_f32_16x16x32_bf16 {v(DK, 4)}, {v(LG + 4 * st, 4)}, {v(PK + 4 * st, 4)}, {v(DK, 4) if st else 0}")
            a(f"s_mov_b64 exec, {s(sCOL, 2)}")
            for i in range(4):
                a(f"v_min_u32 {v(DZ + i)}, -2, {v(DZ + i)}")
            a(f"buffer_store_dwordx4 {v(DZ, 4)}, {v(vZST)}, {s(sWS, 4)}, {s(sKVT)} offen sc1")
            a("s_mov_b64 exec, -1")
            for i in range(2):
                a(f"v_cvt_pk_bf16_f32 {v(PB + i)}, {v(DK + 2 * i)}, {v(DK + 2 * i + 1)}")
            for i in range(2):
                a(f"v_min_u32 {v(PB + 2 + i)}, -2, {v(PB + i)}")
                a(f"v_min_u32 {v(PB + i)}, -2, {v(PB + i)}")
            for i in range(2):
                a(f"v_permlane16_swap_b32 {v(PB + i)}, {v(PB + 2 + i)}")
            a(f"s_mov_b64 exec, {s(sROW, 2)}")
            a(f"buffer_store_dwordx4 {v(PB, 4)}, {v(vPST)}, {s(sWS, 4)}, {s(sKVT)} offen sc1")
            a("s_mov_b64 exec, -1")
        if cfg["jit"] and l < 3:
            with self.only_if(f"s_cmp_eq_u32 {s(sW)}, 3"):
                self.code_pf(f"L_layer{l + 1}", f"L_layer{l + 2}" if l < 2 else "L_end", AV + 8)
        self.ts(f"{l}:publish")
        if l == 0:
            a(f"v_lshlrev_b32 {v(vHL)}, 5, {v(vPOLL)}")
            a(f"s_or_b32 {s(sTG)}, {s(sTAG)}, 0xf0")
            hello = (vHL, sWS, sHEL, 0, None)
            a(f"buffer_load_dword {v(AV + 9)}, {v(vHL)}, {s(sWS, 4)}, {s(sHEL)} offen sc1", vm="hl")
            self.slow_pf(sSW[1], 12, AV + 10)
        if first:
            a.wait(vm="wq")
            self.cs_q(T)
            a.wait(lg=0)
            a("s_barrier")
        QA = LG
        CS, CSA, MB = LG + 4, LG + 8, LG + 10
        a(f"v_add_u32 {v(QA)}, {L_WQ[T]:#x}, {v(vWRD)}")
        D = 5 if first else 6

        def rq(j):
            for u in range(2):
                a(f"ds_read_b64_tr_b16 {v(RG + (j % D) * 4 + 2 * u, 2)}, {v(QA)} offset:{self.woff(j, u)}", lg=f"q{j}")

        PL, SEL, DR = 0, 36, 40

        def partial_load(i):
            a(f"s_add_u32 {s(sT1)}, {s(sKVT)}, {i * 65536}")
            a(f"buffer_load_dwordx4 {v(PL + 4 * i, 4)}, {v(vL16)}, {s(sWS, 4)}, {s(sT1)} offen sc1", vm="pl")
        for j in range(D):
            rq(j)
        a(f"ds_read_b128 {v(CS, 4)}, {v(vCSR)} offset:{T * 1536 + 1024}", lg="cs")
        fill = []
        rx, ro = not last and cfg["hx"][l + 1] == "s", not last and cfg["ho"][l + 1] == "s"
        if rx or ro or first:
            fill += [f"v_mov_b32 {v(AV)}, -1\nv_mov_b32 {v(AV + 1)}, -1", f"v_mov_b32 {v(AV + 2)}, -1\nv_mov_b32 {v(AV + 3)}, -1"]
        if first:
            def mark():
                with skip23():
                    self.mark_slot(KVP[l + 2] - KVP[l], AV)
            fill += [mark, None]
        if rx:
            N = self.xb[l + 1]
            fill.append(lambda N=N: self.moded([f"s_add_u32 {s(sT2)}, {s(sXST)}, {XB[N]}"] + [
                f"buffer_store_dwordx4 {v(AV, 4)}, {v(vXST)}, {s(XS[N], 4)}, {s(sT2)} offen offset:{i * 512}" for i in range(2)], tag="rst", wt=N not in self.xb[:l + 1]))
            fill.append(None)
            fill.append(lambda N=N: self.moded([f"s_add_u32 {s(sT2)}, {s(sSTST)}, {STATS[N]}", f"s_mov_b64 exec, {s(sROW, 2)}",
                f"buffer_store_dword {v(AV)}, {v(vSST)}, {s(sWS, 4)}, {s(sT2)} offen", "s_mov_b64 exec, -1"], tag="rst"))
            fill.append(None)
        if ro:
            N = self.ob[l + 1]
            fill.append(lambda N=N: self.moded([f"s_add_u32 {s(sT2)}, {s(sOST)}, {OB[N]}"] + [
                f"buffer_store_dwordx4 {v(AV, 4)}, {v(vOST)}, {s(sWS, 4)}, {s(sT2)} offen offset:{i * 256}" for i in range(2)], tag="rst", wt=N not in self.ob[:l + 1]))
        fill += [None] * (D - len(fill))
        fill += self.cs_pack(CS, CSA) + [f"v_mov_b32 {v(CSA + 1)}, 0", f"v_mov_b32 {v(MB)}, {v(vM)}", f"v_mov_b32 {v(MB + 1)}, 0"]
        jc = len(fill) + 1
        PS = cfg["pl_step"][l]
        assert PS >= 10
        self.bg_region(bgn[2], min(PS, 32))
        npl = 0
        for j in range(32):
            a.wait(lg=f"q{j}")
            if j == jc:
                a(f"v_mfma_f32_32x32x8_bf16 {v(AK, 16)}, {v(CSA, 2)}, {v(MB, 2)}, {v(AK, 16)}")
            a(f"v_mfma_f32_32x32x16_bf16 {v(AK, 16)}, {v(RG + (j % D) * 4, 4)}, {v(XF + 4 * j, 4)}, {v(AK, 16) if j else 0}")
            self.bg_tick()
            if l == 0 and j == min(PS, 32) - 1:
                a.wait(vm="hl")
                a(f"v_cmp_ne_u32 vcc, {s(sTG)}, {v(AV + 9)}")
                a("s_cbranch_vccnz L_hello")
                a.label("L_hello_ok")
                with self.outofline():
                    a.label("L_hello")
                    self.poll(vHL, sHEL, AV + 9)
                    a("s_branch L_hello_ok")
            if j >= PS and npl < 9:
                if T == 1:
                    partial_load(npl); npl += 1
                elif (j - PS) % 3 == 0:
                    with skip23():
                        for _ in range(3):
                            partial_load(npl); npl += 1
            if j + D < 32:
                rq(j + D)
            if j == 27:
                self.sel_read(SEL)
            if T == 1 and j in (28, 29):
                a(f"ds_read_b128 {v(PK + 8 + 4 * (j - 28), 4)}, {v(vKFR)} offset:{L_WPF - L_KVF + 528 * (j - 28)}", lg="wp")
            if fill:
                f_ = fill.pop(0)
                if callable(f_):
                    f_()
                elif f_:
                    a(f_)
        def rest_pl():
            with skip23():
                for i in range(npl, 9):
                    partial_load(i)
        if npl < 9 and PS <= 32:
            rest_pl()
        self.ts(f"{l}:qgemm")
        self.dump("q", l, list(range(AK, AK + 16)), RG)
        EPS = RG + 6
        if first:
            if T == 0:
                n = len(a.vm) - 1 - max(i for i, t_ in enumerate(a.vm) if t_ == "wo")
                a(f"s_waitcnt vmcnt({n + 9})")
                with self.only_if(f"s_cmp_ge_u32 {s(sW)}, 2"):
                    a.wait(vm="wo")
            else:
                a.wait(vm="wo")
        nbg3 = min(bgn[3], len(self.bg))
        self.bg_region(bgn[3], 56 if T == 0 else 100)
        self.side = [(lambda i=i: self.put_wo(T, i)) for i in range(16)]
        self.side_every = cfg["wo_every"][T]
        if PS > 32:
            assert not nbg3 and not (first and T == 0)
            self.bg, self.bg_at = [rest_pl], [PS - 33]
        if T == 0:
            self.phi_a(AK, LG)
            a(f"v_mov_b32 {v(EPS)}, {f2u(1e-6):#x}")
        else:
            self.side.pop(0)()
            self.logits()
            self.side.pop(0)()
            self.side.pop(0)()
            self.softmax2(RG, True)
        while self.side:
            self.side.pop(0)()
        self.dump("pq", l, list(range(PK, PK + 16)), AV)
        self.ts(f"{l}:phiq")
        with skip23():
            a.wait(lg="sel")
            a(f"s_waitcnt vmcnt({nbg3})")
            a.label(f"L_chk{l}")
            m = 44
            chk = [f"v_max3_u32 {v(m)}, {v(PL)}, {v(PL + 1)}, {v(PL + 2)}"]
            chk += [f"v_max3_u32 {v(m)}, {v(m)}, {v(PL + i)}, {v(PL + i + 1)}" for i in range(3, 35, 2)]
            chk += [f"v_max_u32 {v(m)}, {v(m)}, {v(PL + 35)}"]
            for i in range(8):
                a(f"v_mfma_f32_16x16x32_bf16 {v(DR, 4)}, {v(SEL, 4)}, {v(PL + 4 * i, 4)}, {v(DR, 4) if i else 0}")
                a(chk.pop(0)); a(chk.pop(0))
            a(chk.pop(0)); a(chk.pop(0))
            a(f"v_cmp_eq_u32 vcc, -1, {v(m)}")
            Z = PL + 32
            a(f"v_permlane16_swap_b32 {v(Z)}, {v(Z + 1)}")
            a(f"v_permlane16_swap_b32 {v(Z + 2)}, {v(Z + 3)}")
            a(f"s_cbranch_vccnz L_again{l}")
            with self.outofline():
                a.label(f"L_again{l}")
                self.countdown()
                if cfg["ts"]:
                    a(f"s_add_u32 {s(sTSI)}, {s(sTSI)}, {1 << (8 * l)}")
                for i in range(9):
                    partial_load(i)
                a("s_waitcnt vmcnt(0)")
                a(f"s_branch L_chk{l}")
            a(f"v_add_f32 {v(Z)}, {v(Z)}, {v(Z + 1)}")
            a(f"v_add_f32 {v(Z + 2)}, {v(Z + 2)}, {v(Z + 3)}")
            for i in range(2):
                a(f"v_cvt_pk_bf16_f32 {v(DR + i)}, {v(DR + 2 * i)}, {v(DR + 2 * i + 1)}")
            a(f"v_permlane32_swap_b32 {v(Z)}, {v(Z + 2)}")
            a(f"v_add_f32 {v(Z)}, {v(Z)}, {v(Z + 2)}")
            a(f"ds_write_b64 {v(vKFW)}, {v(DR, 2)}")
            a(f"v_add_f32 {v(Z)}, {v(Z)}, {v(Z)} row_ror:4")
            a(f"v_add_f32 {v(Z)}, {v(Z)}, {v(Z)} row_ror:8")
            a(f"v_cvt_pk_bf16_f32 {v(Z)}, {v(Z)}, {v(Z)}")
            a(f"ds_write_b16 {v(vZW)}, {v(Z)}")
        if T == 0:
            a(f"s_waitcnt vmcnt({nbg3})")
        self.bg_now(bgn[4])
        a(f"s_add_u32 {s(sT2)}, {s(sOST)}, {OB[OI]}")
        a.wait(lg=0)
        a("s_barrier")
        self.ts(f"{l}:bar3")
        KF, ZF, DEN, O = 0, 16, RG + 6, LG
        for j in range(NJ):
            a(f"ds_read_b128 {v(KF + 4 * j, 4)}, {v(vKFR)} offset:{528 * j}", lg=f"kf{j}")
            a(f"ds_read_b128 {v(ZF + 4 * j, 4)}, {v(vZR)} offset:{(j >> 1) * 64 + (j & 1) * 16}", lg=f"zf{j}")
        WR, DW = 64, 7
        WA = [vWOR, RG + 16, RG + 17, RG + 18]
        for t_ in range(1, 4):
            a(f"v_xor_b32 {v(WA[t_])}, {32 * t_}, {v(vWOR)}")
        for j in range(NJ):
            a.wait(lg=f"kf{j}")
            a(f"v_mfma_f32_32x32x16_bf16 {v(AV, 16)}, {v(KF + 4 * j, 4)}, {v(PK + 4 * j, 4)}, {v(AV, 16) if j else 0}")
            a.wait(lg=f"zf{j}")
            for d in range(4):
                a(f"v_dot2c_f32_bf16 {v(DEN)}, {v(ZF + 4 * j + d)}, {v(PK + 4 * j + d)}")

        def rw(i, t_):
            for u in range(2):
                a(f"ds_read_b64_tr_b16 {v(WR + (i % DW) * 16 + 4 * t_ + 2 * u, 2)}, {v(WA[t_])} offset:{t_ * 16384 + i * 1024 + u * 512}", lg=f"wo{i}_{t_}")
        if os_:
            a(f"v_lshlrev_b32 {v(vPA)}, 8, {v(vPOLL)}")
        else:
            a(f"s_add_u32 {s(sTG)}, {s(sTAG)}, {16 * (l + 1)}")
        a(f"v_rcp_f32 {v(DEN)}, {v(DEN)}")
        for h in range(2):
            for i in range(4 * h, 4 * h + 4):
                a(f"v_pk_mul_f32 {v(AV + 2 * i, 2)}, {v(AV + 2 * i, 2)}, {v(DEN, 2)} op_sel_hi:[1,0]")
            for i in range(4 * h, 4 * h + 4):
                a(f"v_cvt_pk_bf16_f32 {v(O + i)}, {v(AV + 2 * i)}, {v(AV + 2 * i + 1)}")
            if os_:
                a(f"v_min_u32 {v(O + 4 * h)}, -2, {v(O + 4 * h)}")
        self.moded([f"buffer_store_dwordx4 {v(O + 4 * i, 4)}, {v(vOST)}, {s(sWS, 4)}, {s(sT2)} offen offset:{256 * i}" for i in range(2)], tag="ost", wt=l == 0)
        self.dump("o", l, list(range(O, O + 8)), PK)
        self.ts(f"{l}:ostore")
        if first:
            self.warm(l + 1)
        self.bg_now(bgn[5])
        assert not self.bg
        NO = cfg["no0"]
        XN = LG if os_ else XR
        self.xn = XN

        def ldo(i):
            if i % 4 == 0 and i:
                a(f"s_add_u32 {s(sT3)}, {s(sOLD)}, {OB[OI] + i * 1024}")
            a(f"buffer_load_dwordx4 {v(4 * i, 4)}, {v(vL16)}, {s(sWS, 4)}, {s(sT3)} offen offset:{(i % 4) * 1024} sc1", vm=f"o{i}")
        a.label(f"L_ore{l}")
        a.lg.clear()
        a(f"s_add_u32 {s(sT3)}, {s(sOLD)}, {OB[OI]}")
        if os_:
            a(f"v_mov_b32 {v(vCK)}, 0")
        rest = [(i, t_) for i in range(DW) for t_ in range(4)]
        for _ in range(cfg["opre"][0]):
            rw(*rest.pop(0))
        if not os_:
            self.flag(sFOS, PK + 4, "ost")
            for _ in range(cfg["opre"][2]):
                rw(*rest.pop(0))
        self.probe(self.what_o(l), vPR)
        for _ in range(cfg["opre"][1]):
            rw(*rest.pop(0))
        self.spin(self.what_o(l), f"o{l}")
        self.ts(f"{l}:opoll")
        per = -(-len(rest) // NO)
        for i in range(NO):
            ldo(i)
            for _ in range(min(per, len(rest))):
                rw(*rest.pop(0))
        if os_:
            with self.outofline():
                a.label(f"L_ofail{l}")
                self.countdown()
                if cfg["ts"]:
                    a(f"s_add_u32 {s(sLAY)}, {s(sLAY)}, 0x10000")
                a(f"s_branch L_ore{l}")
        todo = [(i, t_) for i in range(DW, 16) for t_ in range(4)]
        done = 0
        for i in range(16):
            for t_ in range(4):
                if t_ % cfg["owait"] == 0:
                    a.wait(vm=f"o{i}", lg=f"wo{i}_{t_ + cfg['owait'] - 1}")
                c = XN if i else XR
                a(f"v_mfma_f32_16x16x32_bf16 {v(XN + 4 * t_, 4)}, {v(WR + (i % DW) * 16 + 4 * t_, 4)}, {v(4 * i, 4)}, {v(c + 4 * t_, 4)}")
                if t_ == 0 and i + NO < 16:
                    ldo(i + NO)
                if os_ and t_ == 1 and i & 1:
                    a(f"v_max3_u32 {v(vCK)}, {v(vCK)}, {v(4 * i - 4)}, {v(4 * i)}")
                if os_ and t_ == 2 and i == 15:
                    a(f"v_cmp_eq_u32 vcc, -1, {v(vCK)}")
                if done < len(todo) and done * cfg["wo_spread"] <= 4 * i + t_:
                    rw(*todo[done]); done += 1
        assert done == len(todo)
        if os_:
            a(f"s_cbranch_vccnz L_ofail{l}")
        if last:
            self.ts(f"{l}:ogemm")
            return
        a("s_barrier")
        self.ts(f"{l}:ogemm")
        self.dump("x", l, list(range(XN, XN + 16)), PK)
        N, XO = 1 - T, self.xb[l + 1]
        steps = self.x_steps(XO, XN, AK, mark=rx)
        if rx:
            steps = [(lambda t_=t_: a(t_)) for t_ in self.x_probe_addr()] + steps
        if os_:
            steps += [(lambda i=i: a(f"v_mov_b64 {v(XR + 2 * i, 2)}, {v(XN + 2 * i, 2)}")) for i in range(8)]
        steps.append(lambda: a(f"s_add_u32 {s(sT3)}, {s(sXLD)}, {XB[XO]}"))
        puts = list(range(8))
        if l == 0:
            self.sel_read(AV)
        for k, st in enumerate(steps):
            if puts and k % cfg["xput_every"] == 0:
                i = puts.pop(0)
                self.put_wkv(N, i, i + 1)
            st()
        for i in puts:
            self.put_wkv(N, i, i + 1)
        a(f"s_add_u32 {s(sKVT)}, {s(sKVT)}, {KVP[l + 1] - KVP[l]}")
        if not rx:
            a(f"s_add_u32 {s(sTG)}, {s(sTAG)}, {16 * (l + 1)}")
            self.flag(sFXS, PK + 4, "xst")
        if l == 0:
            a.wait(lg="sel")
            for i in range(16):
                self.cs_kv_step(1, i, AV, AV + 4)
            self.cs_kv_fin(1, AV + 4, AV + 8)
        self.probe(self.what_x(l + 1), vPR)
        self.ts(f"{l}:xissue")

    def prologue(self):
        cfg = self.cfg
        a = self.a
        a(f"s_cmp_ge_u32 {s(sID)}, 256")
        a("s_cbranch_scc1 L_end")
        self.ts("start")
        a(f"s_load_dwordx16 {s(4, 16)}, s[0:1], 0")
        a(f"s_load_dwordx4 {s(20, 4)}, s[0:1], 64")
        a(f"s_getpc_b64 {s(sSAVE, 2)}")
        a.label("L_pc")
        NCL = cfg["codepf"]
        a(f"s_bfe_u32 {s(sT0)}, {s(sID)}, {3 | (3 << 16)}")
        a(f"s_mul_i32 {s(sT0)}, {s(sT0)}, {NCL}")
        a(f"v_min_u32 v1, {NCL - 1}, v0")
        a(f"v_add_u32 v1, {s(sT0)}, v1")
        a("v_lshlrev_b32 v1, 7, v1")
        if cfg["pads"]:
            a("v_lshlrev_b32 v2, 12, v0")
            a("v_add_u32 v2, L_layer0-L_pc-64*4096, v2")
            a("v_cmp_le_u32 vcc, 64, v0")
            a("v_cndmask_b32 v1, v1, v2, vcc")
        a(f"v_min_u32 v1, L_codeend-L_pc, v1")
        a(f"global_load_dword v2, v1, {s(sSAVE, 2)}")
        if cfg["ts"]:
            a(f"s_mov_b32 {s(sTSI)}, 0")
            a(f"s_mov_b32 {s(sLAY)}, 0")
            a(f"v_mov_b32 {v(vTS)}, 0")
            a(f"s_memrealtime s[78:79]")
        L = 3
        a(f"v_lshrrev_b32 v1, 6, v0")
        a(f"v_and_b32 {v(L)}, 63, v0")
        a(f"v_readfirstlane_b32 {s(sW)}, v1")
        a(f"v_lshlrev_b32 {v(vL16)}, 4, {v(L)}")
        a(f"s_bfe_u32 {s(sC)}, {s(sID)}, {3 | (4 << 16)}")
        a(f"s_lshr_b32 {s(sT0)}, {s(sID)}, 7")
        a(f"s_and_b32 {s(sR)}, {s(sID)}, 7")
        a(f"s_lshl1_add_u32 {s(sR)}, {s(sR)}, {s(sT0)}")
        sBP, sSUB, sCG, sB = 99, 100, 101, sCNT
        a(f"s_lshr_b32 {s(sT0)}, {s(sC)}, 3")
        a(f"s_lshr_b32 {s(sT3)}, {s(sW)}, 1")
        a(f"s_lshl1_add_u32 {s(sT0)}, {s(sT0)}, {s(sT3)}")
        a(f"s_lshl2_add_u32 {s(sBP)}, {s(sR)}, {s(sT0)}")
        a(f"s_lshl2_add_u32 {s(sB)}, {s(sR)}, {s(sW)}")
        a(f"s_and_b32 {s(sSUB)}, {s(sW)}, 1")
        a(f"s_and_b32 {s(sCG)}, {s(sC)}, 7")
        a(f"s_lshl1_add_u32 {s(sT0)}, {s(sBP)}, {s(sSUB)}")
        a(f"s_lshl_b32 {s(sOLD)}, {s(sT0)}, 14")
        a(f"s_lshl_b32 {s(sT0)}, {s(sCG)}, 7")
        a(f"s_add_u32 {s(sFIN)}, {s(sOLD)}, {s(sT0)}")
        a(f"s_lshl3_add_u32 {s(sT0)}, {s(sBP)}, {s(sCG)}")
        a(f"s_lshl4_add_u32 {s(sT0)}, {s(sT0)}, {s(sSUB)}")
        a(f"s_lshl_b32 {s(sXST)}, {s(sT0)}, 8")
        self.rowmajor_voff(4, 5)
        a(f"s_lshl_b32 {s(sT0)}, {s(sC)}, 6")
        a(f"s_mul_i32 {s(sWOFF)}, {s(sT3)}, {16 * 3072}")
        a(f"s_add_u32 {s(sWOFF)}, {s(sWOFF)}, {s(sT0)}")
        a(f"s_lshl_b32 {s(sT0)}, {s(sSUB)}, 10")
        a(f"s_add_u32 {s(sWOFF)}, {s(sWOFF)}, {s(sT0)}")
        a(f"s_add_u32 {s(sWOFF)}, {s(sWOFF)}, 1024")
        self.w_voff(5)
        a(f"s_mov_b32 {s(sTMP + 3)}, 0x20000")
        a(f"s_mov_b32 {s(sSW[0] + 3)}, 0x20000")
        a(f"s_mov_b32 {s(sTMP + 2)}, 0x200000")
        a(f"s_mov_b32 {s(sSW[0] + 2)}, {512 * 3072}")
        a(f"s_lshr_b32 {s(sT2)}, {s(sID)}, 3")
        a(f"s_lshl_b32 {s(sSTLD)}, {s(sB)}, 11")
        a(f"s_lshl_b32 {s(sT0)}, {s(sB)}, 7")
        a(f"s_add_u32 {s(sFXP)}, {s(sT0)}, {FLAGX}")
        a(f"s_add_u32 {s(sFOS)}, {s(sT0)}, {FLAGO}")
        a(f"s_lshl_b32 {s(sHEL)}, {s(sC)}, 7")
        a(f"s_add_u32 {s(sHEL)}, {s(sHEL)}, {s(sSTLD)}")
        a("s_waitcnt lgkmcnt(0)")
        self.ts("kernarg")
        a(f"s_mov_b64 {s(sTMP, 2)}, {s(sPX, 2)}")
        a(f"s_mov_b64 {s(sSW[0], 2)}, {s(sPWA, 2)}")
        for i in range(2):
            a(f"buffer_load_dwordx4 {v(8 + 4 * i, 4)}, v4, {s(sTMP, 4)}, {s(sFIN)} offen offset:{64 * i}", vm="x0")
        a(f"s_lshl2_add_u32 {s(sPF)}, {s(sT2)}, {s(sW)}")

        def mall_pf():
            a0 = self.a
            a0(f"s_cmp_eq_u32 {s(sSUB)}, 0")
            a0(f"s_cselect_b64 {s(sTMP, 2)}, {s(sPWA, 2)}, {s(sPWB, 2)}")
            a0(f"s_cselect_b64 {s(sSO[0], 2)}, {s(sPWOA, 2)}, {s(sPWOB, 2)}")
            a0(f"s_cmp_lt_u32 {s(sW)}, 2")
            a0(f"s_cselect_b64 {s(sTMP, 2)}, {s(sTMP, 2)}, {s(sSO[0], 2)}")
            a0(f"s_cselect_b32 {s(sT1)}, 3, 1")
            a0(f"s_lshl_b32 {s(sT1)}, {s(sT1)}, 11")
            a0(f"s_mul_i32 {s(sT2)}, {s(sID)}, {s(sT1)}")
            a0(f"s_sub_u32 {s(sT0)}, {s(sT1)}, 128")
            a0(f"v_lshlrev_b32 v7, 3, {v(vL16)}")
            a0(f"v_min_u32 v7, {s(sT0)}, v7")
            a0(f"s_lshl_b32 {s(sTMP + 2)}, {s(sT1)}, 8")
            a0(f"buffer_load_dword v7, v7, {s(sTMP, 4)}, {s(sT2)} offen")
        if cfg["mallpf"] == 1:
            mall_pf()
        self.slow_pf(sSW[0], 12, 6)
        for i in range(cfg["n0"]):
            self.ld_wkv(0, i, 5)
        if cfg["mallpf"] == 2:
            mall_pf()
        a(f"s_load_dword {s(sEP)}, {s(sPWS, 2)}, 0")
        if cfg["touch"]:
            a(f"s_add_u32 {s(sPBX)}, {s(sPWS)}, {s(sHEL)}")
            a(f"s_addc_u32 {s(sPBX + 1)}, {s(sPWS + 1)}, 0")
            a(f"s_load_dword {s(sTG)}, {s(sPWS, 2)}, {s(sFXP)}")
            a(f"s_load_dword {s(sTG)}, {s(sPWS, 2)}, {s(sFOS)}")
            for b_ in sorted(set(self.xb)):
                a(f"s_load_dword {s(sTG)}, {s(sPBX, 2)}, {STATS[b_]}")
                a(f"s_load_dword {s(sTG)}, {s(sPBX, 2)}, {STATS[b_] + 64}")
        self.ts("p_issue")
        a(f"s_mov_b64 {s(sWS, 2)}, {s(sPWS, 2)}")
        a(f"s_mov_b64 {s(sOUT, 2)}, {s(sPOUT, 2)}")
        for r_ in (sWS, sOUT):
            a(f"s_mov_b32 {s(r_ + 3)}, 0x20000")
        a(f"s_mov_b32 {s(sWS + 2)}, {WS_SIZE:#x}")
        a(f"s_mov_b32 {s(sOUT + 2)}, 0x200000")
        a(f"s_mov_b32 {s(sROW)}, 0xffff")
        a(f"s_mov_b32 {s(sROW + 1)}, 0xffff")
        a(f"s_mov_b32 {s(sMODE)}, 0")
        a(f"s_lshr_b32 {s(sT0)}, {s(sCG)}, 2")
        a(f"s_lshl2_add_u32 {s(sT0)}, {s(sBP)}, {s(sT0)}")
        a(f"s_lshl1_add_u32 {s(sT0)}, {s(sT0)}, {s(sSUB)}")
        a(f"s_lshl_b32 {s(sT0)}, {s(sT0)}, 8")
        a(f"s_and_b32 {s(sT1)}, {s(sCG)}, 3")
        a(f"s_lshl2_add_u32 {s(sSTST)}, {s(sT1)}, {s(sT0)}")
        a(f"s_lshl4_add_u32 {s(sT0)}, {s(sW)}, {s(sC)}")
        a(f"s_lshl_b32 {s(sKVT)}, {s(sT0)}, 10")
        a(f"s_add_u32 {s(sKVT)}, {s(sKVT)}, {KVP[0]}")
        a(f"s_lshl_b32 {s(sHEL)}, {s(sT0)}, 11")
        a(f"s_add_u32 {s(sHEL)}, {s(sHEL)}, {HELLO}")
        a(f"s_mov_b32 {s(sHI)}, 0")
        a(f"s_mov_b32 {s(sHI + 1)}, -1")
        a(f"s_lshl_b32 {s(sXLD)}, {s(sB)}, 15")
        i16, g, half, q, jj, t0, t1 = 20, 21, 22, 23, 24, 25, 26
        a(f"v_and_b32 {v(i16)}, 15, {v(L)}")
        a(f"v_lshrrev_b32 {v(g)}, 4, {v(L)}")
        a(f"v_lshrrev_b32 {v(half)}, 5, {v(L)}")
        a(f"v_and_b32 {v(q)}, 3, {v(L)}")
        a(f"v_bfe_u32 {v(jj)}, {v(L)}, 2, 2")
        a(f"v_lshlrev_b32 {v(vPOLL)}, 2, {v(i16)}")
        a(f"v_lshlrev_b32 {v(t0)}, 4, {v(i16)}")
        a(f"v_lshl_add_u32 {v(vXST)}, {v(g)}, 10, {v(t0)}")
        a(f"v_lshl_add_u32 {v(vSST)}, {v(half)}, 10, {v(t0)}")
        a(f"v_lshl_add_u32 {v(vSLD)}, {v(half)}, 9, {v(vL16)}")
        a(f"s_lshr_b32 {s(sT0)}, {s(sR)}, 1")
        a(f"s_lshl_b32 {s(sT0)}, {s(sT0)}, 7")
        a(f"s_and_b32 {s(sT1)}, {s(sR)}, 1")
        a(f"s_add_u32 {s(sT0)}, {s(sT0)}, {s(sT1)}")
        a(f"s_lshl_b32 {s(sT0)}, {s(sT0)}, 9")
        a(f"v_lshl_add_u32 {v(vPST)}, {v(half)}, 8, {v(t0)}")
        a(f"v_add_u32 {v(vPST)}, {s(sT0)}, {v(vPST)}")
        a(f"s_lshl_b32 {s(sT1)}, {s(sR)}, 6")
        a(f"s_add_u32 {s(sT1)}, {s(sT1)}, {8 * 65536}")
        a(f"v_lshl_add_u32 {v(vZST)}, {v(g)}, 4, {s(sT1)}")
        a(f"v_add_u32 v49, {s(sT0)}, {v(vL16)}")
        a(f"v_lshl_add_u32 v27, {v(q)}, 4, {s(sT1)}")
        a(f"v_cndmask_b32 v49, v49, v27, {s(sHI, 2)}")
        for i in range(4):
            a(f"v_mov_b32 {v(28 + i)}, -1")
        self.warm(0)
        self.ts("p_lane")
        a.wait(vm="x0")
        self.ts("x0")
        for i in range(2):
            for d in range(2):
                a(f"v_permlane16_swap_b32 {v(8 + 4 * i + d)}, {v(8 + 4 * i + 2 + d)}")
        for i in range(8):
            a(f"v_lshlrev_b32 {v(XR + 2 * i)}, 16, {v(8 + i)}")
            a(f"v_and_b32 {v(XR + 2 * i + 1)}, 0xffff0000, {v(8 + i)}")
        for st in self.x_steps(0, XR, AK, wt=cfg["x_wt"]):
            st()
        with self.only_if(f"s_cmp_lt_u32 {s(sW)}, 2"):
            a("s_mov_b32 exec_hi, 15")
            a(f"buffer_store_dwordx4 v[28:31], v49, {s(sWS, 4)}, {s(sKVT)} offen sc1")
            a("s_mov_b32 exec_hi, -1")
        self.srd_tmp(sPPHI, 16384)
        a(f"s_lshl_b32 {s(sT0)}, {s(sC)}, 10")
        a(f"buffer_load_dwordx4 v[16:19], {v(vL16)}, {s(sTMP, 4)}, {s(sT0)} offen", vm="phi")
        if cfg["mallpf"] == 3:
            mall_pf()
        self.ts("p_xpub")
        self.nw, cnt, a0 = cfg["n0"], [0], a

        def a(text, **kw):
            if cnt[0] % cfg["w_every"] == 0 and self.nw < 15:
                self.ld_wkv(0, self.nw, 5, sT3)
                self.nw += 1
            cnt[0] += 1
            a0(text, **kw)
        a(f"s_getreg_b32 {s(sXCC)}, hwreg(HW_REG_XCC_ID, 0, 4)")
        a(f"s_lshl_b32 {s(sW13)}, {s(sW)}, 13")
        a(f"s_mov_b32 {s(sCNT)}, 0x40000")
        a(f"s_lshl_b32 {s(sT0)}, {s(sC)}, 10")
        a(f"s_add_u32 {s(sOST)}, {s(sXLD)}, {s(sT0)}")
        a(f"s_lshl2_add_u32 {s(sFOS)}, {s(sC)}, {s(sFOS)}")
        a(f"s_lshl_b32 {s(sT0)}, {s(sBP)}, 7")
        a(f"s_add_u32 {s(sFOP)}, {s(sT0)}, {FLAGO}")
        a(f"s_lshl1_add_u32 {s(sT1)}, {s(sCG)}, {s(sSUB)}")
        a(f"s_lshl2_add_u32 {s(sFXS)}, {s(sT1)}, {s(sT0)}")
        a(f"s_add_u32 {s(sFXS)}, {s(sFXS)}, {FLAGX}")
        a(f"s_lshl_b32 {s(sT0)}, {s(sC)}, 6")
        a(f"s_mul_i32 {s(sQOFF)}, {s(sW)}, {128 * 3072}")
        a(f"s_add_u32 {s(sQOFF)}, {s(sQOFF)}, {s(sT0)}")
        a(f"s_lshl_b32 {s(sOOFF)}, {s(sW)}, 17")
        a(f"s_lshl_b32 {s(sT0)}, {s(sCG)}, 7")
        a(f"s_add_u32 {s(sOOFF)}, {s(sOOFF)}, {s(sT0)}")
        a(f"s_mov_b64 {s(sSW[1], 2)}, {s(sPWB, 2)}")
        a(f"s_mov_b32 {s(sSW[1] + 2)}, {512 * 3072}")
        a(f"s_mov_b32 {s(sSW[1] + 3)}, 0x20000")
        for T in range(2):
            a(f"s_mov_b64 {s(sSO[T], 2)}, {s([sPWOA, sPWOB][T], 2)}")
            a(f"s_mov_b32 {s(sSO[T] + 2)}, {512 * 1024}")
            a(f"s_mov_b32 {s(sSO[T] + 3)}, 0x20000")
        a(f"s_mov_b32 {s(sCOL)}, 0x10001")
        a(f"s_mov_b32 {s(sCOL + 1)}, 0x10001")
        a(f"s_mov_b32 {s(sLN2)}, {LN2:#x}")
        a(f"s_mov_b32 {s(sLN2b)}, {LN2:#x}")
        a(f"s_mov_b32 {s(sDELTA)}, {DELTA:#x}")
        a(f"s_lshl_b32 {s(sANN)}, {s(sR)}, 7")
        a(f"s_add_u32 {s(sANN)}, {s(sANN)}, {ANN}")
        a(f"s_lshl4_add_u32 {s(sGW)}, {s(sR)}, {s(sC)}")
        a(f"s_lshl2_add_u32 {s(sGW)}, {s(sGW)}, {s(sW)}")
        a(f"v_and_b32 {v(t1)}, 1, {v(g)}")
        a(f"v_lshl_add_u32 {v(vOST)}, {v(t1)}, 14, {v(t0)}")
        a(f"v_lshl_add_u32 {v(vOST)}, {v(half)}, 9, {v(vOST)}")
        a(f"v_lshlrev_b32 {v(vWRD)}, 11, {v(half)}")
        a(f"v_lshl_add_u32 {v(vWRD)}, {v(jj)}, 6, {v(vWRD)}")
        a(f"v_lshl_add_u32 {v(vWRD)}, {v(t1)}, 4, {v(vWRD)}")
        a(f"v_and_b32 v27, 1, {v(q)}")
        a(f"v_lshrrev_b32 v32, 1, {v(q)}")
        a(f"v_lshl_add_u32 {v(vWRD)}, v27, 5, {v(vWRD)}")
        a(f"v_lshl_add_u32 {v(vWRD)}, v32, 3, {v(vWRD)}")
        a(f"v_lshlrev_b32 {v(vSTR)}, 8, {v(half)}")
        a(f"v_lshl_add_u32 {v(vSTR)}, v32, 7, {v(vSTR)}")
        a(f"v_lshl_add_u32 {v(vSTR)}, {v(t1)}, 6, {v(vSTR)}")
        a(f"v_lshl_add_u32 {v(vSTR)}, {v(jj)}, 4, {v(vSTR)}")
        a(f"v_lshl_add_u32 {v(vSTR)}, v27, 3, {v(vSTR)}")
        a(f"s_lshl_b32 {s(sT0)}, {s(sSUB)}, 12")
        a(f"s_add_u32 {s(sT0)}, {s(sT0)}, {L_STG + 0x4000}")
        a(f"v_add_u32 {v(vSTR2)}, {s(sT0)}, {v(vSTR)}")
        a(f"s_lshl_b32 {s(sT0)}, {s(sW)}, 12")
        a(f"s_add_u32 {s(sT0)}, {s(sT0)}, {L_STG}")
        a(f"v_add_u32 {v(vSTR)}, {s(sT0)}, {v(vSTR)}")
        a(f"v_bfe_u32 v33, {v(L)}, 3, 2")
        a(f"v_and_b32 {v(vSTW)}, 0x70, {v(vL16)}")
        a(f"v_lshl_add_u32 {v(vSTW)}, v33, 8, {v(vSTW)}")
        a(f"v_lshl_add_u32 {v(vSTW)}, {v(half)}, 12, {v(vSTW)}")
        a(f"s_lshl_b32 {s(sT0)}, {s(sW)}, 10")
        a(f"s_add_u32 {s(sT0)}, {s(sT0)}, {L_STG}")
        a(f"v_add_u32 {v(vSTW)}, {s(sT0)}, {v(vSTW)}")
        a(f"v_bfe_u32 v34, {v(L)}, 1, 2")
        a(f"v_xor_b32 v33, v33, v34")
        a(f"v_lshlrev_b32 {v(vWOW)}, 14, v34")
        a(f"v_lshl_add_u32 {v(vWOW)}, v33, 5, {v(vWOW)}")
        a(f"v_lshl_add_u32 {v(vWOW)}, {v(half)}, 9, {v(vWOW)}")
        a(f"v_lshl_add_u32 {v(vWOW)}, v27, 4, {v(vWOW)}")
        a(f"s_lshl_b32 {s(sT0)}, {s(sW)}, 12")
        a(f"v_add_u32 {v(vWOW)}, {s(sT0)}, {v(vWOW)}")
        a(f"v_lshlrev_b32 {v(vWOR)}, 3, {v(L)}")
        a(f"s_lshl_b32 {s(sT0)}, {s(sSUB)}, 15")
        a(f"s_and_b32 {s(sT1)}, {s(sW)}, 2")
        a(f"s_lshl_b32 {s(sT2)}, {s(sT1)}, 9")
        a(f"s_add_u32 {s(sT0)}, {s(sT0)}, {s(sT2)}")
        a(f"v_add_u32 {v(vWKW)}, {s(sT0)}, {v(vL16)}")
        a(f"v_and_b32 v33, 0x1f0, {v(vL16)}")
        a(f"v_add_u32 {v(vCSR)}, {L_CSP:#x}, v33")
        a(f"v_and_b32 v34, 1, {v(jj)}")
        a(f"v_cmp_eq_u32 vcc, v34, {v(half)}")
        a(f"v_mov_b32 v35, 512")
        a(f"v_cndmask_b32 {v(vKFR)}, v35, v33, vcc")
        a(f"v_add_u32 {v(vKFR)}, {L_KVF:#x}, {v(vKFR)}")
        a(f"s_mul_i32 {s(sT0)}, {s(sT1)}, 528")
        a(f"s_lshl_b32 {s(sT2)}, {s(sSUB)}, 6")
        a(f"s_add_u32 {s(sT0)}, {s(sT0)}, {s(sT2)}")
        a(f"s_add_u32 {s(sT0)}, {s(sT0)}, {L_KVF}")
        a(f"v_mul_u32_u24 {v(vKFW)}, 528, {v(half)}")
        a(f"v_lshl_add_u32 {v(vKFW)}, {v(q)}, 4, {v(vKFW)}")
        a(f"v_lshl_add_u32 {v(vKFW)}, {v(jj)}, 7, {v(vKFW)}")
        a(f"v_lshl_add_u32 {v(vKFW)}, {v(t1)}, 3, {v(vKFW)}")
        a(f"v_add_u32 {v(vKFW)}, {s(sT0)}, {v(vKFW)}")
        a(f"s_lshl_b32 {s(sT0)}, {s(sW)}, 5")
        a(f"s_add_u32 {s(sT0)}, {s(sT0)}, {L_ZB}")
        a(f"v_lshl_add_u32 {v(vZW)}, {v(q)}, 2, {v(g)}")
        a(f"v_lshl_add_u32 {v(vZW)}, {v(vZW)}, 1, {s(sT0)}")
        a(f"v_mov_b32 v35, {L_ZB:#x}")
        a(f"v_lshl_add_u32 {v(vZR)}, {v(half)}, 5, v35")
        a(f"v_mov_b32 v36, 0x3f80")
        a(f"v_lshlrev_b32 v37, 4, v27")
        a(f"v_lshlrev_b32 v36, v37, v36")
        a(f"v_lshrrev_b32 v37, 1, {v(i16)}")
        a(f"v_lshlrev_b32 v38, 2, {v(t1)}")
        a(f"v_sub_u32 v37, v37, v38")
        for d in range(4):
            a(f"v_cmp_eq_u32 vcc, {d}, v37")
            a(f"v_cndmask_b32 {v(40 + d)}, 0, v36, vcc")
        a(f"v_add_u32 v33, {L_SEL:#x}, v33")
        a(f"ds_write_b128 v33, v[40:43]")
        for i in range(4):
            a(f"v_mov_b32 {v(44 + i)}, 0")
        a(f"v_min_u32 v33, 5, {v(L)}")
        a(f"v_mul_u32_u24 v33, 528, v33")
        a(f"v_add_u32 v33, {L_KVF + 512:#x}, v33")
        a(f"ds_write_b128 v33, v[44:47]")
        a = a0
        self.ts("p_setup")
        a(f"s_lshl_b32 {s(sT0)}, {s(sW)}, 10")
        a(f"s_add_u32 {s(sT0)}, {s(sT0)}, {L_STG}")
        a(f"v_add_u32 v33, {s(sT0)}, {v(vL16)}")
        a.wait(vm="phi")
        a(f"ds_write_b128 v33, v[16:19]")
        a(f"v_lshlrev_b32 v33, 9, v27")
        a(f"v_lshl_add_u32 v33, {v(half)}, 8, v33")
        a(f"v_lshl_add_u32 v33, {v(jj)}, 5, v33")
        a(f"v_lshl_add_u32 v33, {v(t1)}, 4, v33")
        a(f"v_lshl_add_u32 v33, v32, 3, v33")
        a(f"v_add_u32 v33, {s(sT0)}, v33")
        a("s_waitcnt lgkmcnt(0)")
        a(f"ds_read_b64_tr_b16 v[16:17], v33")
        a(f"ds_read_b64_tr_b16 v[18:19], v33 offset:128")
        a(f"v_lshl_add_u32 v33, {v(half)}, 4, {v(vL16)}")
        a(f"v_add_u32 v33, {L_WPF:#x}, v33")
        a(f"s_mul_i32 {s(sTAG)}, {s(sEP)}, 0x9e3779b1")
        a(f"s_add_u32 {s(sTAG)}, {s(sTAG)}, 0x7f4a7c15")
        a(f"s_and_b32 {s(sTAG)}, {s(sTAG)}, 0xffffff00")
        a(f"s_or_b32 {s(sT1)}, {s(sTAG)}, 0xf0")
        a(f"s_or_b32 {s(sXCC)}, {s(sTAG)}, {s(sXCC)}")
        a(f"v_mov_b32 v34, {s(sXCC)}")
        a(f"v_mov_b32 v35, {s(sT1)}")
        a("s_waitcnt lgkmcnt(0)")
        a.lg.clear()
        a(f"ds_write_b128 v33, v[16:19]")
        self.ts("p_phi")
        a(f"v_lshrrev_b32 v37, 2, {v(vL16)}")
        a("s_mov_b64 exec, 1")
        a(f"buffer_store_dword v34, off, {s(sWS, 4)}, {s(sFXS)}")
        with self.only_if(f"s_cmp_eq_u32 {s(sW)}, {0 if cfg['x_ann'] else 9}"):
            a(f"s_lshl2_add_u32 {s(sT0)}, {s(sC)}, {s(sANN)}")
            a(f"buffer_store_dword v34, off, {s(sWS, 4)}, {s(sT0)} sc1")
        a("s_mov_b32 exec_lo, -1")
        with self.only_if(f"s_cmp_lt_u32 {s(sW)}, 2"):
            a(f"s_lshl_b32 {s(sT0)}, {s(sR)}, 7")
            a(f"s_add_u32 {s(sT0)}, {s(sT0)}, {s(sHEL)}")
            a(f"buffer_store_dword v35, v37, {s(sWS, 4)}, {s(sT0)} offen sc1")
        a("s_mov_b32 exec_hi, -1")
        a(f"s_and_b32 {s(sHEL)}, {s(sHEL)}, 0xfffeffff")
        self.ts("flag0")
        a(f"v_and_b32 v33, 0x100, {v(vL16)}")
        a(f"v_add_u32 v33, v33, {v(vPOLL)}")
        a(f"s_and_b32 {s(sT2)}, {s(sFXP)}, 0xfffffeff")
        nxt = self.nw
        for i in range(16):
            while nxt < min(16, max(i, cfg["n0"]) + cfg["nw"]):
                self.ld_wkv(0, nxt, 5)
                nxt += 1
                if nxt == 16:
                    a(f"buffer_load_dword v34, v33, {s(sWS, 4)}, {s(sT2)} offen sc1", vm="f0")
            a.wait(vm=f"wkv{i}")
            if i < 8:
                self.put_wkv(0, i, i + 1)
            self.cs_kv_step(0, i, 40, 44)
        self.cs_kv_fin(0, 44, 50)
        self.ts("wkv0")
        a.wait(vm="f0")
        a(f"v_cmp_ne_u32 vcc, {s(sXCC)}, v34")
        a("s_branch L_global" if cfg["force_global"] else "s_cbranch_vccnz L_poll0")
        a.label("L_enter")
        with self.outofline():
            a.label("L_poll0")
            a(f"buffer_load_dword v34, v33, {s(sWS, 4)}, {s(sT2)} offen sc1")
            self.countdown()
            a("s_waitcnt vmcnt(0)")
            a(f"v_cmp_ne_u32 vcc, {s(sXCC)}, v34")
            a("s_cbranch_vccz L_enter")
            a(f"s_and_b32 {s(sT1)}, {s(sCNT)}, 15")
            a("s_cbranch_scc1 L_poll0")
            a(f"buffer_load_dword v34, {v(vPOLL)}, {s(sWS, 4)}, {s(sANN)} offen sc1")
            a("s_waitcnt vmcnt(0)")
            a(f"v_xor_b32 v34, {s(sXCC)}, v34")
            a(f"v_add_u32 v34, -1, v34")
            a(f"v_cmp_gt_u32 vcc, 15, v34")
            a("s_cbranch_vccz L_poll0")
            a.label("L_global")
            a(f"s_mov_b32 {s(sMODE)}, 1")
            a(f"s_add_u32 {s(sFXS)}, {s(sFXS)}, {FLAGX2 - FLAGX}")
            a(f"s_add_u32 {s(sFXP)}, {s(sFXP)}, {FLAGX2 - FLAGX}")
            a(f"s_mov_b32 {s(sTG)}, {s(sTAG)}")
            for r_ in (sSTST, sSTLD):
                a(f"s_add_u32 {s(r_)}, {s(r_)}, {STATS_G}")
            for st in self.x_steps(0, XR, AK, wt=True):
                st()
            self.flag(sFXS, 16)
            self.poll(vPOLL, sFXP, 34)
            a("s_branch L_enter")
        self.ts("poll0")
        a(f"s_add_u32 {s(sT3)}, {s(sXLD)}, {XB[0]}")

    def rowmajor_voff(self, d, t):
        a = self.a
        a(f"v_and_b32 {v(d)}, 0xf0, {v(vL16)}")
        a(f"v_lshlrev_b32 {v(d)}, 6, {v(d)}")
        a(f"v_bfe_u32 {v(t)}, {v(vL16)}, 8, 1")
        a(f"v_lshl_add_u32 {v(d)}, {v(t)}, 5, {v(d)}")
        a(f"v_lshrrev_b32 {v(t)}, 9, {v(vL16)}")
        a(f"v_lshl_add_u32 {v(d)}, {v(t)}, 4, {v(d)}")

    def final(self):
        a = self.a
        X = AK
        self.rowmajor_voff(PK, PK + 1)
        for i in range(8):
            a(f"v_cvt_pk_bf16_f32 {v(X + i)}, {v(self.xn + 2 * i)}, {v(self.xn + 2 * i + 1)}")
        for i in range(2):
            for d in range(2):
                a(f"v_permlane16_swap_b32 {v(X + 4 * i + d)}, {v(X + 4 * i + 2 + d)}")
        for i in range(2):
            a(f"buffer_store_dwordx4 {v(X + 4 * i, 4)}, {v(PK)}, {s(sOUT, 4)}, {s(sFIN)} offen offset:{64 * i}{self.cfg['finflag']}")
        with self.only_if(f"s_cmp_eq_u32 {s(sGW)}, 0"):
            a(f"s_add_u32 {s(sEP)}, {s(sEP)}, 1")
            a(f"v_mov_b32 v0, {s(sEP)}")
            a("s_mov_b64 exec, 1")
            a(f"buffer_store_dword v0, off, {s(sWS, 4)}, 0 sc1")
            a("s_mov_b64 exec, -1")
        if self.cfg["amp"]:
            amp = self.cfg["amp"]
            self.ts("end")
            a("s_sub_u32 s72, s78, s72")
            a(f"s_mul_i32 s72, s72, {amp[2]}")
            if amp[3]:
                a("s_lshr_b32 s72, s72, 5")
            a("s_min_u32 s72, s72, 100000")
            if self.cfg.get("amp_one") is not None:
                a(f"s_cmp_eq_u32 {s(sGW)}, {self.cfg['amp_one']}")
                a("s_cselect_b32 s72, s72, 0")
            a("s_memrealtime s[78:79]")
            a("s_waitcnt lgkmcnt(0)")
            a("s_mov_b32 s73, s78")
            a.label("L_amp")
            a("s_memrealtime s[78:79]")
            a("s_waitcnt lgkmcnt(0)")
            a("s_sub_u32 s78, s78, s73")
            a("s_cmp_lt_u32 s78, s72")
            a("s_cbranch_scc1 L_amp")
        if self.cfg["ts"]:
            a("s_waitcnt vmcnt(0)")
            self.ts("end")
            a("s_memrealtime s[72:73]")
            a("s_waitcnt lgkmcnt(0)")
            a(f"v_writelane_b32 {v(vTS)}, {s(sLAY)}, 58")
            a(f"v_writelane_b32 {v(vTS)}, {s(sTSI)}, 59")
            a(f"v_writelane_b32 {v(vTS)}, {s(sCNT)}, 60")
            a(f"v_writelane_b32 {v(vTS)}, s78, 61")
            a(f"v_writelane_b32 {v(vTS)}, s72, 62")
            a(f"v_writelane_b32 {v(vTS)}, {s(sMODE)}, 63")
            a(f"s_lshl_b32 {s(sT0)}, {s(sGW)}, 8")
            a(f"s_add_u32 {s(sT0)}, {s(sT0)}, {DBG + 0x2000000}")
            a(f"v_lshrrev_b32 v0, 2, {v(vL16)}")
            a(f"buffer_store_dword {v(vTS)}, v0, {s(sWS, 4)}, {s(sT0)} offen")
        a.label("L_timeout")
        a.label("L_end")
        a("s_endpgm")

    def place(self):
        a = self.a
        if not self.cfg["pads"]:
            self.stat = a.layout(self.cfg["align"])
            return
        keep = list(a.ins)
        for k in range(12):
            a.ins.append(Ins(f"L_pad{k}:"))
        cnt = [0]

        def probe(k):
            cnt[0] += 1
            return f"L_tmp{cnt[0]}", "s_nop 0"
        a.layout(self.cfg["align"], probe)
        n = cnt[0]
        a.ins = keep + [Ins(f"L_pad{k}:") for k in range(12)]
        cnt[0] = 0

        def pad(_):
            k = cnt[0]
            cnt[0] += 1
            return f"L_pad{k}", f"s_cbranch_execz L_warmed{k // 4}"
        self.stat = a.layout(self.cfg["align"], pad)
        del a.ins[-12:]
        assert cnt[0] == n <= 12
        for k in range(n, 12):
            i = [x.label for x in a.ins].index(f"L_warmed{k // 4}")
            a.ins.insert(i, Ins(f"L_pad{k}:"))

    def build(self):
        a = self.a
        self.prologue()
        if self.cfg["pads"]:
            a("s_branch L_layer0")
            a(".p2align 12")
        for l in range(4):
            self.layer(l)
        self.final()
        hot = [k for k, x in enumerate(self.tail) if x.label and x.label.startswith("L_again")]
        blocks, rest_, k = [], [], 0
        while k < len(self.tail):
            e = k
            while self.tail[e].op != "s_branch":
                e += 1
            (blocks if k in hot else rest_).extend(self.tail[k:e + 1])
            k = e + 1
        blocks[1].pad_here = True
        a.raw(blocks + rest_)
        a.label("L_codeend")
        a("s_endpgm")
        nops = a.pad_hazards()
        self.place()
        head = open(f"cdna_kernels/{NAME}.s.ref").read().split("; Override launch")[0]
        out = head + f"; @launch grid=(256,1,1) block=(256,1,1) lds={LDS_SIZE}\n"
        out += f""".amdgcn_target "amdgcn-amd-amdhsa--gfx950"
.text
.globl {NAME}_kernel
.p2align 8
.type {NAME}_kernel,@function
{NAME}_kernel:
"""
        out += a.text()
        out += f""".section .rodata,"a"
.p2align 6
.amdhsa_kernel {NAME}_kernel
  .amdhsa_next_free_vgpr 512
  .amdhsa_next_free_sgpr 102
  .amdhsa_accum_offset 256
  .amdhsa_group_segment_fixed_size 0
  .amdhsa_kernarg_size 80
  .amdhsa_user_sgpr_count 2
  .amdhsa_user_sgpr_kernarg_segment_ptr 1
  .amdhsa_system_sgpr_workgroup_id_x 1
.end_amdhsa_kernel
"""
        self.nops = nops
        return out


if __name__ == "__main__":
    import ast
    kw = {}
    out = sys.argv[1]
    for x in sys.argv[2:]:
        k, val = x.split("=", 1)
        kw[k] = ast.literal_eval(val)
    g = Gen(**kw)
    txt = g.build()
    open(out, "w").write(txt)
    print(f"wrote {out}: {len(g.a.ins)} lines, {g.nops} pad states, layout {g.stat}", file=sys.stderr)
```

```python
import re

REG_RE = re.compile(r"^-?(?:abs\()?([vas])(?:(\d+)|\[(\d+):(\d+)\])\)?$")


def regs_of(op):
    op = op.strip()
    m = REG_RE.match(op)
    if m:
        k = m.group(1)
        if m.group(2) is not None:
            return {(k, int(m.group(2)))}
        return {(k, i) for i in range(int(m.group(3)), int(m.group(4)) + 1)}
    if op in ("vcc", "vcc_lo", "vcc_hi"):
        return {("x", "vcc")}
    if op in ("exec", "exec_lo", "exec_hi"):
        return {("x", "exec")}
    if op == "m0":
        return {("x", "m0")}
    return set()


TRANS = ("v_exp_f32", "v_log_f32", "v_rcp_f32", "v_rsq_f32", "v_sqrt_f32", "v_sin_f32", "v_cos_f32")


class Ins:
    def __init__(self, text):
        self.text = text
        self.label = None
        t = text.split(";")[0].strip()
        if t.endswith(":"):
            self.label = t[:-1]
            self.op = None
            return
        if t.startswith(".") or not t:
            self.op = None
            return
        parts = t.split(None, 1)
        self.op = op = parts[0]
        rest = parts[1] if len(parts) > 1 else ""
        ops = [o.strip() for o in re.split(r",(?![^\[]*\])(?![^(]*\))", rest)] if rest else []
        self.mods = ""
        if ops:
            last = ops[-1].split(None, 1)
            ops[-1] = last[0]
            self.mods = last[1] if len(last) > 1 else ""
        self.ops = ops
        R = [regs_of(o) for o in ops]
        self.w, self.r = set(), set()
        self.kind = "other"
        self.A = self.B = self.C = set()
        self.passes = 0
        self.store_data = set()
        U = lambda l: set().union(*l) if l else set()
        if op.startswith("v_mfma"):
            self.kind = "mfma"
            self.w = R[0]
            self.A, self.B, self.C = R[1], R[2], R[3]
            self.r = R[1] | R[2] | R[3]
            self.passes = 8 if "32x32" in op else 4
        elif op.startswith("v_"):
            self.kind = "valu"
            self.w = set(R[0])
            self.r = U(R[1:])
            if op.startswith(("v_dot2c", "v_fmac", "v_writelane")):
                self.r |= R[0]
            if op.startswith("v_permlane"):
                self.w = R[0] | R[1]
                self.r = R[0] | R[1]
            if op.startswith("v_cndmask") and len(ops) == 3:
                self.r.add(("x", "vcc"))
        elif op.startswith("ds_"):
            self.kind = "ds"
            if op.startswith("ds_read"):
                self.w = R[0]
                self.r = U(R[1:])
            else:
                self.r = U(R)
        elif op.startswith(("buffer_", "global_")):
            self.kind = "vmem"
            if "load" in op and " lds" not in " " + self.mods and "_lds_" not in op:
                self.w = R[0]
                self.r = U(R[1:])
            else:
                self.r = U(R)
                if "load" in op:
                    self.r.add(("x", "m0"))
                    self.kind = "vmem"
                    self.ldsdma = True
                elif op.endswith(("x3", "x4")):
                    self.store_data = R[0] if op.startswith("buffer_") else R[1]
        elif op.startswith("s_"):
            self.kind = "salu"
            if op.startswith(("s_cmp", "s_bitcmp", "s_cbranch", "s_branch", "s_waitcnt", "s_nop", "s_barrier", "s_endpgm", "s_sleep", "s_setprio")):
                self.r = U(R)
            else:
                self.w = set(R[0]) if R else set()
                self.r = U(R[1:])
                if "saveexec" in op:
                    self.w.add(("x", "exec"))
        self.trans = op.startswith(TRANS)
        self.dpp = "row_" in self.mods or "quad_perm" in self.mods or op.endswith("_dpp")
        self.dot = op.startswith("v_dot")

    def states(self):
        if self.op is None:
            return 0
        if self.op == "s_nop":
            return int(self.ops[0], 0) + 1
        return 1


def need(p, c):
    n = 0
    vw = {x for x in p.w if x[0] in "va"}
    sw = {x for x in p.w if x[0] == "s" or x == ("x", "vcc")}
    if p.kind == "valu":
        if c.kind == "mfma" and vw & c.r:
            n = max(n, 3 if p.dot else 2)
        if c.kind == "valu":
            if p.trans and not c.trans and vw & c.r:
                n = max(n, 1)
            if p.trans and c.trans and vw & c.r:
                n = max(n, 1)
            if (c.op.startswith("v_permlane") or c.dpp) and vw & c.r:
                n = max(n, 2)
            if c.op.startswith(("v_readlane", "v_readfirstlane")) and vw & c.r:
                n = max(n, 1)
            if sw & c.r:
                n = max(n, 4 if c.op.startswith(("v_readlane", "v_writelane")) else 2)
            if p.dot and (vw & (c.r | c.w)):
                same_c = c.op == p.op and not (vw & set().union(*[regs_of(o) for o in c.ops[1:3]]))
                if not same_c:
                    n = max(n, 3)
        if p.dot and c.kind in ("ds", "vmem") and vw & c.r:
            n = max(n, 3)
        if p.trans and c.kind in ("ds", "vmem") and vw & c.r:
            n = max(n, 1)
        if c.kind == "vmem" and sw & c.r:
            n = max(n, 5)
        if c.kind == "salu" and sw & c.r:
            n = max(n, 1)
        if c.op in ("s_cbranch_vccz", "s_cbranch_vccnz") and ("x", "vcc") in p.w:
            n = max(n, 1)
    if p.kind == "mfma":
        big = {4: 8, 8: 12}[p.passes]
        if c.kind == "mfma":
            if p.w & (c.A | c.B):
                n = max(n, big)
            if p.w & c.C:
                if not (p.w == c.C and p.passes == c.passes):
                    n = max(n, {4: 6, 8: 10}[p.passes])
            elif p.w & c.w:
                n = max(n, {4: 6, 8: 10}[p.passes])
        elif c.kind in ("valu", "ds", "vmem"):
            if p.w & (c.r | c.w):
                n = max(n, big)
            if c.kind == "valu" and p.C & c.w:
                n = max(n, {4: 3, 8: 7}[p.passes])
    if p.store_data and c.kind in ("valu", "ds", "vmem", "mfma") and p.store_data & c.w:
        n = max(n, 2)
    if p.kind == "salu" and ("x", "m0") in p.w and getattr(c, "ldsdma", False):
        n = max(n, 1)
    return n


class Asm:
    def __init__(self):
        self.ins = []
        self.tail = []
        self.vm = []
        self.lg = []
        self.vm1 = []
        self.count1 = True
        self.nlab = 0

    def __call__(self, text, vm=None, lg=None):
        for line in text.strip().split("\n"):
            line = line.strip()
            if not line:
                continue
            i = Ins(line)
            self.ins.append(i)
            if i.op is None:
                continue
            if i.kind == "vmem":
                self.vm.append(vm)
                if self.count1:
                    self.vm1.append(vm)
            elif i.kind == "ds":
                self.lg.append(lg)
        return self

    def label(self, name):
        self.ins.append(Ins(name + ":"))

    def newlabel(self, base):
        self.nlab += 1
        return f"L_{base}_{self.nlab}"

    @staticmethod
    def _cnt(q, tag, mx):
        idx = [i for i, t in enumerate(q) if t == tag]
        if not idx:
            return None
        n = len(q) - 1 - idx[-1]
        n = min(n, mx)
        del q[: len(q) - n]
        return n

    def wait_text(self, vm=None, lg=None):
        n = len(self.ins)
        self.wait(vm, lg)
        return [self.ins.pop().text] if len(self.ins) > n else []

    def wait(self, vm=None, lg=None):
        parts = []
        if vm is not None:
            if vm == 0:
                self.vm.clear()
                if self.count1:
                    self.vm1.clear()
                parts.append("vmcnt(0)")
            else:
                n = self._cnt(self.vm, vm, 63)
                if n is not None:
                    parts.append(f"vmcnt({n})")
        if lg is not None:
            if lg == 0:
                self.lg.clear()
                parts.append("lgkmcnt(0)")
            else:
                n = self._cnt(self.lg, lg, 15)
                if n is not None:
                    parts.append(f"lgkmcnt({n})")
        if parts:
            self.ins.append(Ins("s_waitcnt " + " ".join(parts)))

    def wait1(self, tag):
        n = self._cnt(self.vm1, tag, 63)
        if n is not None:
            self.ins.append(Ins(f"s_waitcnt vmcnt({n})"))

    def raw(self, ins_list):
        self.ins.extend(ins_list)

    def pad_hazards(self):
        added = 0
        start = 0
        while True:
            ins = self.ins
            labels = {x.label: i for i, x in enumerate(ins) if x.label}
            jumps = {}
            for i, x in enumerate(ins):
                if x.op and x.op.startswith(("s_cbranch", "s_branch")):
                    if x.ops[0] in labels:
                        jumps.setdefault(labels[x.ops[0]], []).append(i)
            fix = None
            for ci in range(start, len(ins)):
                c = ins[ci]
                if c.op is None or c.kind == "other":
                    continue
                short = 0
                stack = [(ci, 0)]
                seen = {}
                while stack:
                    i, d = stack.pop()
                    preds = []
                    if i > 0 and not (ins[i - 1].op in ("s_branch", "s_endpgm")):
                        preds.append(i - 1)
                    if ins[i].label:
                        preds += jumps.get(i, [])
                    for pi in preds:
                        p = ins[pi]
                        if p.op is not None:
                            k = need(p, c)
                            if k > d:
                                short = max(short, k - d)
                        nd = d + p.states()
                        if nd < 12 and seen.get(pi, 99) > nd:
                            seen[pi] = nd
                            stack.append((pi, nd))
                if short:
                    fix = (ci, short)
                    ins.insert(ci, Ins(f"s_nop {short - 1}"))
                    added += short
                    start = ci
                    break
            if fix is None:
                return added

    def sizes(self):
        import subprocess, tempfile, os
        d = tempfile.mkdtemp()
        body = "\n".join(x.text for x in self.ins if not x.text.startswith(".p2align"))
        open(d + "/t.s", "w").write('.amdgcn_target "amdgcn-amd-amdhsa--gfx950"\n.text\n' + body + "\n")
        L = "bin/"
        r = subprocess.run([L + "clang", "-x", "assembler", "-target", "amdgcn-amd-amdhsa", "-mcpu=gfx950", "-c", d + "/t.s", "-o", d + "/t.o"], capture_output=True, text=True)
        assert r.returncode == 0, r.stderr
        out = subprocess.run([L + "llvm-objdump", "-d", "--mcpu=gfx950", d + "/t.o"], capture_output=True, text=True).stdout
        sz = [4 * len(m.group(1).split()) for m in re.finditer(r"// [0-9A-F]{12}: ([0-9A-F ]+?)(?: <.*)?$", out, re.M)]
        real = [x for x in self.ins if x.op is not None]
        assert len(sz) == len(real), (len(sz), len(real))
        for x, n in zip(real, sz):
            x.size = n

    def layout(self, align=True, pads=None, first=0):
        self.sizes()
        WIDE = ("v_mov_b32", "v_add_f32", "v_sub_f32", "v_mul_f32", "v_max_f32", "v_min_f32", "v_exp_f32", "v_rcp_f32", "v_sqrt_f32",
                "v_and_b32", "v_or_b32", "v_xor_b32", "v_lshlrev_b32", "v_lshrrev_b32", "v_add_u32", "v_sub_u32", "v_min_u32", "v_max_u32",
                "v_mul_u32_u24", "v_cmp_eq_u32", "v_cmp_ne_u32", "v_cmp_gt_u32")
        out, addr, paged, npad, stat = [], 0, False, first, [0, 0, 0]
        ins = self.ins
        for i, x in enumerate(ins):
            if x.op is None:
                if x.text.startswith(".p2align 12"):
                    addr, paged = 0, True
                out.append(x)
                continue
            if paged and pads and not getattr(x, "nopad", False) and (addr >= npad * 4096 or getattr(x, "pad_here", False)):
                lab, txt = pads(npad)
                npad += addr >= npad * 4096
                out.append(Ins(lab + ":"))
                p = Ins(txt); p.size = 4
                out.append(p)
                addr += 4
            if align and x.size == 8 and addr % 8 == 4:
                run = 0
                for y in ins[i:]:
                    if y.op is None:
                        continue
                    if y.size != 8 or (y.kind == "mfma" and y.passes == 8):
                        break
                    run += 1
                if run >= 2:
                    k = len(out) - 1
                    while k >= 0 and (out[k].op is None or (out[k].size == 4 and out[k].op not in WIDE)) and not out[k].text.startswith("."):
                        k -= 1
                    if k >= 0 and out[k].op in WIDE and out[k].size == 4:
                        w = Ins(out[k].text.replace(out[k].op, out[k].op + "_e64", 1)); w.size = 8
                        out[k] = w
                        addr += 4
                        stat[0] += 1
                    elif out[-1].op == "s_nop" and out[-1].states() > 1:
                        n = out[-1].states()
                        out[-1] = Ins(f"s_nop {n - 2}"); out[-1].size = 4
                        p = Ins("s_nop 0"); p.size = 4
                        out.append(p)
                        addr += 4
                    elif run >= align:
                        p = Ins("s_nop 0"); p.size = 4
                        k = len(out)
                        while out[k - 1].op in ("s_waitcnt", "s_barrier"):
                            k -= 1
                        out.insert(k, p)
                        addr += 4
                        stat[1] += 1
                    else:
                        stat[2] += 1
            out.append(x)
            addr += x.size
        self.ins = out
        return npad, stat

    def text(self):
        out = []
        for x in self.ins:
            out.append(x.text if (x.label or x.op is None) else "    " + x.text)
        return "\n".join(out) + "\n"
```

```python
import sys
import contextlib
from asmlib import Asm, Ins

NAME = "interleave_layers__linear_attn_block__linear_kernel_hedgehog__prompt"

CFG = dict(
    ts=0, rt=0,
    dump=None,
    amp=None,
    force_global=0, fine=(),
    n0=5, w_every=25, nw=6, codepf=14, slowpf=1, align=6, pads=1, mallpf=1, x_wt=1, x_ann=1,
    hx='ffff', ho='ffff', touch=1,
    bg=((6, 8, 16, 6, 0, 0, 4), (6, 10, 8, 0, 0, 0, 0)),
    pl_step=(26, 24, 22, 20), pl_gap=(1, 1, 1, 2),
    nx0=8, nx1=4, xmix=1, nmode=1, no0=8,
    wo_every=(8, 10), qputs=(8, 8), qearly=0, pdepth=2,
    np=8, owin=(((6, 0), (2, 8), (0, 20)), ((0, 32), (4, 0), (4, 0))), ord=((0, 2, 1, 1), (2, 2, 2, 1)),
    xputs=(4, 12), spar=1, xprobe_at=5,
    finflag="", jit=0,
)

FLAGX, FLAGO, FLAGX2, ANN, HELLO = 0x1000, 0x3000, 0x7000, 0x9000, 0xA0000
STATS, STATS_G = [0x10000, 0x30000], 0x40000
XB = [0, 0x800000]
OB = [0x400000, 0x600000]
KVP = [0xC0000 + 0x90000 * l for l in range(4)]
DBG = 0x1000000
WS_SIZE = 0x8000000
L_P, L_WQ, L_STG = 0x0, [0x10000, 0x18000], 0x20000
L_KVF = 0x26000
KS = 592
L_WPF = L_KVF + 4 * KS
L_ZB = L_WPF + 2 * KS
L_CSP = L_ZB + 128
L_SEL = L_CSP + 3072
LDS_SIZE = 0x28000
XF, AK, AV, RG, LG, XR, PK = 0, 128, 144, 160, 192, 208, 224
vSTR, vSTR2, vPST, vZST, vKFW, vZW, vZR, vOST = range(184, 192)
vL16, vWRD, vSTW, vKFR, vS, vRS, vM, vXST, vSST, vSLD, vPOLL, vWOR, vWOW, vWKW, vCSR, vTS = range(240, 256)
A_WKV, A_WO = [0, 64], [128, 192]
sID = 2
sPX, sPWA, sPWOA, sPBX, sPWB, sPPHI, sPWOB, sPOUT, sPDBG, sPWS = range(4, 24, 2)
sWS, sOUT, sTMP = 24, 28, 32
XS = [sOUT, sWS]
(sW, sC, sR, sXLD, sSTLD, sFXP, sOST, sFOS, sOLD, sFOP, sXST, sSTST, sFXS, sKVT, sTAG, sMODE, sPASS,
 sEP, sXCC, sT0, sT1, sT2, sT3, sCNT, sWOFF, sQOFF, sOOFF, sHEL, sLN2, sLN2b, sDELTA, sFIN) = range(36, 68)
sHI = 68
sSAVE = 70
sTSA = 72
sTSI = 74
sGW = 75
sLAY = 76
sANN = 77
sW13 = 98
sSKIP = 3
sPF = 0
sTG = 1
sPM = 96
sSW, sSO = [80, 84], [88, 92]
vBW, vBO, vHL = RG + 20, RG + 21, RG + 22
vPR, vPB, vPA, vCK = PK + 10, PK + 11, PK + 7, PK + 6
sROW = sPM
sCOL = sPBX
assert sLN2 % 2 == 0

LOG2E = 0x3FB8AA3B
LN2 = 0x3F317218
DELTA = 0x35C1A4C3
import struct
def f2u(x): return struct.unpack("<I", struct.pack("<f", x))[0]
DELTA = f2u(1e-6 * 1.4426950408889634)


def v(a, n=1): return f"v{a}" if n == 1 else f"v[{a}:{a + n - 1}]"
def ar(a, n=1): return f"a{a}" if n == 1 else f"a[{a}:{a + n - 1}]"
def s(a, n=1): return f"s{a}" if n == 1 else f"s[{a}:{a + n - 1}]"


class Gen:
    def __init__(self, **kw):
        self.cfg = dict(CFG)
        self.cfg.update(kw)
        self.a = Asm()
        self.tail = []
        self.nts = 0
        self.tsnames = []
        self.side = []
        self.side_every = 1
        self.xb, self.ob = [0], [0]
        assert self.cfg["hx"][0] == "f" and self.cfg["ho"][0] == "f"
        for l in range(1, 4):
            self.xb.append(self.xb[-1] ^ (self.cfg["hx"][l] == "s"))
            self.ob.append(self.ob[-1] ^ (self.cfg["ho"][l] == "s"))

    @contextlib.contextmanager
    def uncounted(self):
        a = self.a
        vm, lg = list(a.vm), list(a.lg)
        yield
        a.vm, a.lg = vm, lg

    @contextlib.contextmanager
    def only_if(self, cmp):
        a = self.a
        l = a.newlabel("skip")
        a(cmp)
        a(f"s_cbranch_scc0 {l}")
        with self.uncounted():
            yield
        a.label(l)

    @contextlib.contextmanager
    def outofline(self):
        a = self.a
        n0 = len(a.ins)
        with self.uncounted():
            yield
        self.tail += a.ins[n0:]
        del a.ins[n0:]

    def code_pf(self, lo, hi, t):
        a = self.a
        n = f"(({hi}-{lo})/1024+1)"
        a(f"s_bfe_u32 {s(sT0)}, {s(sID)}, {3 | (3 << 16)}")
        a(f"s_mul_i32 {s(sT0)}, {s(sT0)}, {n}*128")
        a(f"s_add_u32 {s(sT0)}, {s(sT0)}, {lo}-L_pc")
        a(f"v_lshlrev_b32 {v(t)}, 3, {v(vL16)}")
        a(f"v_min_u32 {v(t)}, ({n}-1)*128, {v(t)}")
        a(f"v_add_u32 {v(t)}, {s(sT0)}, {v(t)}")
        a(f"v_min_u32 {v(t)}, L_codeend-L_pc, {v(t)}")
        a(f"global_load_dword {v(t)}, {v(t)}, {s(sSAVE, 2)}")

    def warm(self, g):
        a = self.a
        if not self.cfg["pads"]:
            return
        a("s_mov_b64 exec, 0")
        for k in range(3):
            a(f"s_cmp_eq_u32 {s(sW)}, {k}")
            a(f"s_cbranch_scc1 L_pad{4 * g + k}")
        a(f"s_branch L_pad{4 * g + 3}")
        a.label(f"L_warmed{g}")
        a("s_mov_b64 exec, -1")

    def countdown(self):
        self.a(f"s_sub_u32 {s(sCNT)}, {s(sCNT)}, 1")
        self.a("s_cbranch_scc1 L_timeout")

    def bg_region(self, n, slots):
        n = min(n, len(self.bg))
        self.bg_slot = 0
        self.bg_at = [(k * slots) // n for k in range(n)]

    def bg_tick(self):
        for _ in range(self.bg_at.count(self.bg_slot)):
            self.bg.pop(0)()
        self.bg_slot += 1

    def bg_now(self, n):
        for _ in range(min(n, len(self.bg))):
            self.bg.pop(0)()

    def ticker(self):
        def e(text, **kw):
            if self.side and self.bg_slot % self.side_every == 0:
                self.side.pop(0)()
            self.bg_tick()
            self.a(text, **kw)
        return e

    def moded(self, lines, tag=None, reg=sMODE, wt=False, cmp=True):
        a = self.a
        if wt:
            for l in lines:
                a(l + (" sc1" if l.startswith("buffer_store") else ""), vm=tag)
            return
        lg, lj = a.newlabel("glob"), a.newlabel("join")
        if cmp:
            a(f"s_cmp_eq_u32 {s(reg)}, 0")
        a(f"s_cbranch_scc0 {lg}")
        for l in lines:
            a(l, vm=tag)
        a.label(lj)
        t = [Ins(lg + ":")] + [Ins(l + (" sc1" if l.startswith("buffer_store") else "")) for l in lines] + [Ins(f"s_branch {lj}")]
        self.tail += t

    def srd_tmp(self, ptr, size):
        a = self.a
        a(f"s_mov_b32 {s(sTMP)}, {s(ptr)}")
        a(f"s_mov_b32 {s(sTMP + 1)}, {s(ptr + 1)}")
        a(f"s_mov_b32 {s(sTMP + 2)}, {size}")

    def ts(self, name):
        a = self.a
        self.fine(name)
        amp = self.cfg["amp"]
        if amp:
            for k in range(2):
                if amp[k] == name:
                    a(f"{'s_memtime' if amp[3] else 's_memrealtime'} {s(72 + 6 * k, 2)}")
                    if name != "start":
                        a("s_waitcnt lgkmcnt(0)")
        if not self.cfg["ts"] or name == "start":
            return
        if self.cfg["ts"] == 1 and name.startswith("p_"):
            return
        if self.cfg["ts"] == 4 and name not in ("kernarg", "end"):
            return
        if self.cfg["ts"] == 3 and name not in ("x0", "flag0", "poll0", "end") and name[2:] not in ("kvgemm", "ogemm"):
            return
        if self.cfg["ts"] == 2 and ":" in name and name[2:] not in ("kvgemm", "bar3", "ogemm"):
            return
        a(f"{'s_memrealtime' if self.cfg['rt'] else 's_memtime'} {s(sTSA, 2)}")
        a("s_waitcnt lgkmcnt(0)")
        a.lg.clear()
        a(f"v_writelane_b32 {v(vTS)}, {s(sTSA)}, {len(self.tsnames)}")
        self.tsnames.append(name)
        assert len(self.tsnames) <= 56

    def fine(self, name):
        if name in self.cfg["fine"]:
            self.a(f"s_memtime {s(80 + 2 * list(self.cfg['fine']).index(name), 2)}")

    def dump(self, point, l, regs, tmp):
        if self.cfg["dump"] != (point, l):
            return
        a = self.a
        with self.uncounted():
            a("s_waitcnt vmcnt(0) lgkmcnt(0)")
            a("s_nop 15")
            a(f"v_lshrrev_b32 {v(tmp)}, 2, {v(vL16)}")
            a(f"s_mul_i32 {s(sT0)}, {s(sGW)}, {64 * 256}")
            a(f"s_add_u32 {s(sT0)}, {s(sT0)}, {DBG}")
            for i, r in enumerate(regs):
                a(f"buffer_store_dword {v(r)}, {v(tmp)}, {s(sWS, 4)}, {s(sT0)} offen")
                a(f"s_add_u32 {s(sT0)}, {s(sT0)}, 256")
            a("s_waitcnt vmcnt(0)")

    def poll(self, voff, soff, tmp, tag=sTG):
        a = self.a
        l = a.newlabel("poll")
        a.label(l)
        a(f"buffer_load_dword {v(tmp)}, {v(voff)}, {s(sWS, 4)}, {s(soff)} offen sc1")
        self.countdown()
        a.wait(vm=0)
        a(f"v_cmp_ne_u32 vcc, {s(tag)}, {v(tmp)}")
        a(f"s_cbranch_vccnz {l}")

    def flag(self, soff, tmp, after=0):
        a = self.a
        a("s_mov_b64 exec, 1")
        self.moded(a.wait_text(vm=after) + [f"buffer_store_dword {v(tmp)}, off, {s(sWS, 4)}, {s(soff)}"])
        a("s_mov_b64 exec, -1")

    def w_voff(self, t):
        a = self.a
        a(f"v_lshrrev_b32 {v(t)}, 6, {v(vL16)}")
        a(f"v_mul_u32_u24 {v(t)}, {3072 - 64}, {v(t)}")
        a(f"v_add_u32 {v(t)}, {v(t)}, {v(vL16)}")

    def ld_wkv(self, T, i, t, st=sT0):
        a = self.a
        a(f"s_add_u32 {s(st)}, {s(sWOFF)}, {i * 32 * 3072}")
        a(f"buffer_load_dwordx4 {ar(A_WKV[T] + 4 * i, 4)}, {v(t)}, {s(sSW[T], 4)}, {s(st)} offen", vm=f"wkv{i}")

    def ld_wq(self, T, i):
        a = self.a
        a(f"s_add_u32 m0, {s(sW13)}, {L_WQ[T] + i * 1024}")
        a(f"s_add_u32 {s(sT0)}, {s(sQOFF)}, {i * 16 * 3072}")
        a(f"buffer_load_dwordx4 {v(self.bw)}, {s(sSW[T], 4)}, {s(sT0)} offen lds", vm="wq")

    def ld_wo(self, T, i):
        a = self.a
        a(f"s_add_u32 {s(sT0)}, {s(sOOFF)}, {i * 32 * 1024}")
        a(f"buffer_load_dwordx4 {ar(A_WO[T] + 4 * i, 4)}, {v(vBO)}, {s(sSO[T], 4)}, {s(sT0)} offen", vm=f"wo{i}")

    def slow_pf(self, srd, n, t):
        a = self.a
        if not self.cfg["slowpf"]:
            return
        a(f"s_sub_u32 {s(sT0)}, 0x180, {s(srd)}")
        a(f"s_and_b32 {s(sT0)}, {s(sT0)}, 0x380")
        a(f"s_mul_i32 {s(sT1)}, {s(sPF)}, {n * 1024}")
        a(f"s_add_u32 {s(sT0)}, {s(sT0)}, {s(sT1)}")
        a(f"v_lshlrev_b32 {v(t)}, 6, {v(vL16)}")
        a(f"s_mov_b64 exec, {(1 << n) - 1:#x}")
        a(f"buffer_load_dword {v(t)}, {v(t)}, {s(srd, 4)}, {s(sT0)} offen")
        a("s_mov_b64 exec, -1")

    def bg_setup(self, T):
        self.bg = [(lambda i=i: self.ld_wq(T, i)) for i in range(8)] + [(lambda i=i: self.ld_wo(T, i)) for i in range(16)]
        if T == 0:
            self.bg += [(lambda i=i: self.ld_wkv(1, i, vBW)) for i in range(16)]

    def put_wkv(self, T, lo, hi, waits=False):
        for i in range(lo, hi):
            if waits:
                self.a.wait(vm=f"wkv{i}")
            self.a(f"ds_write_b128 {v(vWKW)}, {ar(A_WKV[T] + 4 * i, 4)} offset:{i * 2048}", lg="put")

    def put_wo(self, T, i):
        self.a(f"ds_write_b128 {v(vWOW)}, {ar(A_WO[T] + 4 * i, 4)} offset:{i * 1024}", lg="putwo")

    @staticmethod
    def woff(j, u):
        return (j >> 2) * 4096 + u * 1024 + (j & 3) * 256

    def colsum(self, addr, nsteps, regs, acc):
        a = self.a
        a(f"v_mov_b32 {v(acc)}, 0")
        for j in range(nsteps):
            for u in range(2):
                a(f"ds_read_b64_tr_b16 {v(regs[j] + 2 * u, 2)}, {v(addr)} offset:{self.woff(j, u)}", lg=f"cs{j}")
        for j in range(nsteps):
            a.wait(lg=f"cs{j}")
            for d in range(4):
                a(f"v_dot2c_f32_bf16 {v(acc)}, {s(sT3)}, {v(regs[j] + d)}")

    def cs_kv_step(self, T, i, sel, d):
        self.a(f"v_mfma_f32_16x16x32_bf16 {v(d, 4)}, {v(sel, 4)}, {ar(A_WKV[T] + 4 * i, 4)}, {v(d, 4) if i else 0}")

    def cs_kv_fin(self, T, d, t):
        a = self.a
        a(f"s_and_b32 {s(sT0)}, {s(sW)}, 1")
        a(f"s_lshl_b32 {s(sT0)}, {s(sT0)}, 9")
        a(f"s_and_b32 {s(sT1)}, {s(sW)}, 2")
        a(f"s_lshl_b32 {s(sT1)}, {s(sT1)}, 2")
        a(f"s_add_u32 {s(sT0)}, {s(sT0)}, {s(sT1)}")
        a(f"s_add_u32 {s(sT0)}, {s(sT0)}, {L_CSP + T * 1536}")
        a(f"v_lshrrev_b32 {v(t)}, 9, {v(vL16)}")
        a(f"v_lshl_add_u32 {v(t)}, {v(t)}, 2, {s(sT0)}")
        a(f"v_bfe_u32 {v(t + 1)}, {v(vL16)}, 4, 1")
        a(f"v_lshl_add_u32 {v(t)}, {v(t + 1)}, 8, {v(t)}")
        a(f"v_bfe_u32 {v(t + 1)}, {v(vL16)}, 8, 1")
        a(f"v_lshl_add_u32 {v(t)}, {v(t + 1)}, 7, {v(t)}")
        a(f"v_bfe_u32 {v(t + 1)}, {v(vL16)}, 5, 1")
        a(f"v_lshl_add_u32 {v(t)}, {v(t + 1)}, 6, {v(t)}")
        for ror in (4, 8):
            for i in range(4):
                a(f"v_add_f32 {v(d + i)}, {v(d + i)}, {v(d + i)} row_ror:{ror}")
        a(f"ds_write2_b32 {v(t)}, {v(d)}, {v(d + 1)} offset0:0 offset1:4")
        a(f"ds_write2_b32 {v(t)}, {v(d + 2)}, {v(d + 3)} offset0:8 offset1:12")

    def mark_slot(self, delta, ones):
        a = self.a
        a(f"s_add_u32 {s(sT2)}, {s(sKVT)}, {delta}")
        a(f"s_mov_b64 exec, {s(sROW, 2)}")
        a(f"buffer_store_dwordx4 {v(ones, 4)}, {v(vPST)}, {s(sWS, 4)}, {s(sT2)} offen sc1", vm="mark")
        a(f"s_mov_b64 exec, {s(sCOL, 2)}")
        a(f"buffer_store_dwordx4 {v(ones, 4)}, {v(vZST)}, {s(sWS, 4)}, {s(sT2)} offen sc1", vm="mark")
        a("s_mov_b64 exec, -1")

    def sel_read(self, sel):
        a = self.a
        a(f"v_and_b32 {v(sel)}, 0x1f0, {v(vL16)}")
        a(f"v_add_u32 {v(sel)}, {L_SEL:#x}, {v(sel)}")
        a(f"ds_read_b128 {v(sel, 4)}, {v(sel)}", lg="sel")

    def cs_q(self, T):
        a = self.a
        t, acc = AV, AV + 1
        a(f"s_mov_b32 {s(sT3)}, 0x3f803f80")
        a(f"s_add_u32 {s(sT0)}, {s(sW13)}, {L_WQ[T]}")
        a(f"v_add_u32 {v(t)}, {s(sT0)}, {v(vWRD)}")
        regs = [LG + 4 * i for i in range(4)] + [PK + 4 * i for i in range(4)]
        self.colsum(t, 8, regs, acc)
        a(f"v_mov_b32 {v(t)}, {v(acc)}")
        a(f"v_permlane32_swap_b32 {v(t)}, {v(acc)}")
        a(f"v_add_f32 {v(acc)}, {v(acc)}, {v(t)}")
        a(f"s_lshl_b32 {s(sT0)}, {s(sW)}, 2")
        a(f"v_add_u32 {v(t)}, {s(sT0)}, {v(vCSR)}")
        a(f"ds_write_b32 {v(t)}, {v(acc)} offset:{T * 1536 + 1024}")

    @staticmethod
    def cs_pack(src, dst):
        return [
            f"v_add_f32 {v(src)}, {v(src)}, {v(src + 2)}",
            f"v_add_f32 {v(src + 1)}, {v(src + 1)}, {v(src + 3)}",
            f"v_add_f32 {v(src)}, {v(src)}, {v(src + 1)}",
            f"v_cvt_pk_bf16_f32 {v(src + 1)}, {v(src)}, {v(src)}",
            f"v_and_b32 {v(src + 1)}, 0xffff0000, {v(src + 1)}",
            f"v_sub_f32 {v(src)}, {v(src)}, {v(src + 1)}",
            f"v_cvt_pk_bf16_f32 {v(dst)}, {v(src + 1)}, {v(src)}",
        ]

    def x_steps(self, B, src, X, wt=False, par=0):
        a = self.a
        t = X + 8
        st = []
        E = lambda txt: st.append(lambda: a(txt))
        xl = []
        for h in range(2):
            xl += [f"v_cvt_pk_bf16_f32 {v(X + i)}, {v(src + 2 * i)}, {v(src + 2 * i + 1)}" for i in range(4 * h, 4 * h + 4)]
            xl += [f"buffer_store_dwordx4 {v(X + 4 * h, 4)}, {v(vXST)}, {s(XS[B], 4)}, {s(sXST)} offen offset:{h * 512}"]
        st.append(lambda: self.moded(xl, tag="xst", wt=wt))
        E(f"v_pk_add_f32 {v(t, 2)}, {v(src, 2)}, {v(src + 2, 2)}")
        E(f"v_pk_mul_f32 {v(t + 2, 2)}, {v(src, 2)}, {v(src, 2)}")
        E(f"v_pk_fma_f32 {v(t + 2, 2)}, {v(src + 2, 2)}, {v(src + 2, 2)}, {v(t + 2, 2)}")
        for i in range(2, 8):
            E(f"v_pk_add_f32 {v(t, 2)}, {v(t, 2)}, {v(src + 2 * i, 2)}")
            E(f"v_pk_fma_f32 {v(t + 2, 2)}, {v(src + 2 * i, 2)}, {v(src + 2 * i, 2)}, {v(t + 2, 2)}")
        E(f"v_add_f32 {v(t)}, {v(t)}, {v(t + 1)}")
        E(f"v_add_f32 {v(t + 2)}, {v(t + 2)}, {v(t + 3)}")
        E(f"v_permlane32_swap_b32 {v(t)}, {v(t + 2)}")
        E(f"v_add_f32 {v(t)}, {v(t)}, {v(t + 2)}")
        E(f"v_mov_b32 {v(t + 1)}, {v(t)}")

        def stat():
            self.moded([f"v_permlane16_swap_b32 {v(t)}, {v(t + 1)}", f"s_mov_b64 exec, {s(sROW, 2)}", f"v_add_f32 {v(t)}, {v(t)}, {v(t + 1)}",
                        f"v_or_b32 {v(t)}, 1, {v(t)}" if par else f"v_and_b32 {v(t)}, -2, {v(t)}",
                        f"buffer_store_dword {v(t)}, {v(vSST)}, {s(sWS, 4)}, {s(sSTST)} offen"], tag="sst")
            a("s_mov_b64 exec, -1")
        st.append(stat)
        return st

    def ldx(self, B, j):
        a = self.a
        if j % 4 == 0 and j:
            a(f"s_add_u32 {s(sT3)}, {s(sXLD)}, {XB[B] + j * 1024}")
        a(f"buffer_load_dwordx4 {v(XF + 4 * j, 4)}, {v(vL16)}, {s(XS[B], 4)}, {s(sT3 if j >= 4 else sXLD)} offen offset:{(j % 4) * 1024} sc1", vm=f"x{j}")

    def probe(self, what, reg, setexec=True):
        a = self.a
        voff, srd, soff, off, _ = what
        if setexec:
            a("s_mov_b64 exec, 0xffff")
        a(f"buffer_load_dword {v(reg)}, {v(voff)}, {s(srd, 4)}, {s(soff)} offen offset:{off} sc1", vm="probe")
        if setexec:
            a("s_mov_b64 exec, -1")

    def spin_more(self, what, name):
        a = self.a
        a(f"s_branch L_over{name}")
        a.label(f"L_more{name}")
        with self.uncounted():
            self.probe(what, vPR, False)
            self.countdown()
            a("s_waitcnt vmcnt(1)")
            a(f"{what[4]}, {v(vPB)}")
            a(f"s_cbranch_vccz L_go{name}")
            a(f"s_branch L_spin{name}")
        a.label(f"L_over{name}")

    def spin(self, what, name):
        a = self.a
        a("s_mov_b64 exec, 0xffff")
        a.label(f"L_spin{name}")
        self.probe(what, vPB, False)
        a("s_waitcnt vmcnt(1)")
        a(f"{what[4]}, {v(vPR)}")
        a(f"s_cbranch_vccnz L_more{name}")
        a.label(f"L_go{name}")
        a("s_mov_b64 exec, -1")
        a.vm.clear()

    def what_x(self, l):
        if self.cfg["hx"][l] == "s":
            return (vPA, XS[self.xb[l]], sT3, 3824, "v_cmp_eq_u32 vcc, -1")
        return (vPOLL, sWS, sFXP, 0, f"v_cmp_ne_u32 vcc, {s(sTG)}")

    def what_o(self, l):
        if self.cfg["ho"][l] == "s":
            return (vPA, sWS, sT3, 1008, "v_cmp_eq_u32 vcc, -1")
        return (vPOLL, sWS, sFOP, 0, f"v_cmp_ne_u32 vcc, {s(sTG)}")

    def x_probe_addr(self):
        return [f"v_and_b32 {v(vPR)}, 4, {v(vPOLL)}",
                f"v_mul_u32_u24 {v(vPR)}, 448, {v(vPR)}",
                f"v_lshlrev_b32 {v(vPA)}, 9, {v(vPOLL)}",
                f"v_sub_u32 {v(vPA)}, {v(vPA)}, {v(vPR)}"]

    def phi_a(self, acc, tmp, after=None):
        a = self.ticker()
        for i in range(8):
            a(f"v_pk_mul_f32 {v(acc + 2 * i, 2)}, {v(acc + 2 * i, 2)}, {v(vS, 2)} op_sel_hi:[1,0]")
        for i in range(16):
            a(f"v_exp_f32_e64 {v(tmp + i)}, {v(acc + i)} clamp")
            a(f"v_max_f32 {v(acc + i)}, {s(sDELTA)}, {v(acc + i)}")
        for h in range(2):
            for i in range(4 * h, 4 * h + 4):
                a(f"v_pk_fma_f32 {v(acc + 2 * i, 2)}, {v(acc + 2 * i, 2)}, {s(sLN2, 2)}, {v(tmp + 2 * i, 2)}")
            for i in range(4 * h, 4 * h + 4):
                a(f"v_cvt_pk_bf16_f32 {v(PK + i)}, {v(acc + 2 * i)}, {v(acc + 2 * i + 1)}")
            if after:
                after(h)

    def logits(self, between=None):
        a = self.a
        a.wait(lg="wp")
        for i in range(6):
            a(f"v_cvt_pk_bf16_f32 {v(PK + i)}, {v(AK + 2 * i)}, {v(AK + 2 * i + 1)}")
        a(f"v_mfma_f32_32x32x16_bf16 {v(LG, 16)}, {v(PK + 8, 4)}, {v(PK, 4)}, 0")
        for i in range(6, 8):
            a(f"v_cvt_pk_bf16_f32 {v(PK + i)}, {v(AK + 2 * i)}, {v(AK + 2 * i + 1)}")
        if between:
            between()
        a(f"v_mfma_f32_32x32x16_bf16 {v(LG, 16)}, {v(PK + 12, 4)}, {v(PK + 4, 4)}, {v(LG, 16)}")

    def softmax2(self, t, isq, after=None):
        a = self.ticker()
        a(f"v_max3_f32 {v(t)}, {v(LG)}, {v(LG + 1)}, {v(LG + 2)}")
        a(f"v_min3_f32 {v(t + 1)}, {v(LG)}, {v(LG + 1)}, {v(LG + 2)}")
        for i in range(3, 15, 2):
            a(f"v_max3_f32 {v(t)}, {v(t)}, {v(LG + i)}, {v(LG + i + 1)}")
            a(f"v_min3_f32 {v(t + 1)}, {v(t + 1)}, {v(LG + i)}, {v(LG + i + 1)}")
        a(f"v_max_f32 {v(t)}, {v(t)}, {v(LG + 15)}")
        a(f"v_min_f32 {v(t + 1)}, {v(t + 1)}, {v(LG + 15)}")
        a(f"v_pk_mul_f32 {v(t, 2)}, {v(t, 2)}, {v(vS, 2)} op_sel_hi:[1,0]")
        for sg, E in ((0, AK), (1, LG)):
            for i in range(8):
                if sg == 0:
                    a(f"v_pk_fma_f32 {v(E + 2 * i, 2)}, {v(LG + 2 * i, 2)}, {v(vS, 2)}, {v(t, 2)} op_sel_hi:[1,0,0] neg_lo:[0,0,1] neg_hi:[0,0,1]")
                else:
                    a(f"v_pk_fma_f32 {v(E + 2 * i, 2)}, {v(LG + 2 * i, 2)}, {v(vS, 2)}, {v(t, 2)} op_sel:[0,0,1] op_sel_hi:[1,0,1] neg_lo:[1,0,0] neg_hi:[1,0,0]")
            for i in range(16):
                a(f"v_exp_f32 {v(E + i)}, {v(E + i)}")
            S = t + 2 + 2 * sg
            a(f"v_pk_add_f32 {v(S, 2)}, {v(E, 2)}, {v(E + 2, 2)}")
            for i in range(2, 8):
                a(f"v_pk_add_f32 {v(S, 2)}, {v(S, 2)}, {v(E + 2 * i, 2)}")
            a(f"v_add_f32 {v(S)}, {v(S)}, {v(S + 1)}")
            if not (isq and sg == 0):
                a(f"v_rcp_f32 {v(S)}, {v(S)}")
                if isq:
                    a(f"v_mul_f32 {v(t + 6)}, {f2u(1e-6):#x}, {v(t + 2)}")
                    a(f"v_mul_f32 {v(S)}, {v(S)}, {v(t + 2)}")
            for h in range(2):
                for i in range(4 * h, 4 * h + 4):
                    if not (isq and sg == 0):
                        a(f"v_pk_mul_f32 {v(E + 2 * i, 2)}, {v(E + 2 * i, 2)}, {v(S, 2)} op_sel_hi:[1,0]")
                for i in range(4 * h, 4 * h + 4):
                    a(f"v_cvt_pk_bf16_f32 {v(PK + 8 * sg + i)}, {v(E + 2 * i)}, {v(E + 2 * i + 1)}")
                if after:
                    after(2 * sg + h)

    def layer(self, l):
        a, cfg = self.a, self.cfg
        T, first, last = l & 1, l < 2, l == 3
        NJ = 2 if T == 0 else 4
        skip23 = (lambda: self.only_if(f"s_cmp_lt_u32 {s(sW)}, 2")) if T == 0 else contextlib.nullcontext
        bgn = cfg["bg"][l] if first else (0,) * 7
        self.bg = []
        if first:
            self.bg_setup(T)
            assert sum(bgn) >= len(self.bg) and bgn[0] + bgn[1] >= 8 and sum(bgn[:3]) >= 8 + cfg['np'] and sum(bgn[:5]) >= 24 and bgn[0] <= 8 and bgn[6] <= 8
        NX = cfg["nx0"]
        wx = (vPOLL, sWS, sFXP, 0, f"v_cmp_ne_u32 vcc, {s(sTG)}")
        wo_ = (vPOLL, sWS, sFOP, 0, f"v_cmp_ne_u32 vcc, {s(sTG)}")
        a.label(f"L_layer{l}")
        if l:
            self.spin(wx, f"x{l}")
        a.vm.clear()
        self.ts(f"{l}:xpoll")
        ST = LG
        CS = LG + 8
        CSA, MB = PK, PK + 2
        D = 3

        def rd(j, p):
            for u in range(2):
                a(f"ds_read_b64_tr_b16 {v(RG + (j % D) * 8 + 4 * p + 2 * u, 2)}, {v(vWRD)} offset:{p * 32768 + self.woff(j, u)}", lg=f"w{j}")

        def ldx(j):
            self.ldx(0, j)
            if j == max(NX, 9):
                a(f"buffer_load_dwordx4 {v(ST, 4)}, {v(vSLD)}, {s(sWS, 4)}, {s(sSTLD)} offen sc1", vm="st")
            if j == max(NX, 9) + 2:
                a(f"buffer_load_dwordx4 {v(ST + 4, 4)}, {v(vSLD)}, {s(sWS, 4)}, {s(sSTLD)} offen offset:512 sc1", vm="st")
        nx1 = cfg["nx1"]
        for j in range(nx1):
            ldx(j)
        for i in self.puts_left:
            self.put_wkv(T, i, i + 1)
            if nx1 < NX and cfg["xmix"]:
                ldx(nx1)
                nx1 += 1
        a.wait(lg=0)
        a("s_barrier")
        self.ts(f"{l}:bar1")
        pre = [(j, p) for j in range(D) for p in range(2)]
        for j in range(nx1, NX):
            for _ in range(2):
                if pre:
                    rd(*pre.pop(0))
            ldx(j)
        while pre:
            rd(*pre.pop(0))
        a(f"ds_read_b128 {v(CS, 4)}, {v(vCSR)} offset:{T * 1536}", lg="cs")
        a(f"ds_read_b128 {v(CS + 4, 4)}, {v(vCSR)} offset:{T * 1536 + 512}", lg="cs")
        t, u_ = ST, ST + 1
        stat = []
        if l and cfg["spar"]:
            CK = PK + 6
            op = "0x80" if T else "0xfe"
            stat = [f"L_sums{l}:\nv_bitop3_b32 {v(CK)}, {v(ST)}, {v(ST + 1)}, {v(ST + 2)} bitop3:{op}",
                    f"v_bitop3_b32 {v(CK)}, {v(CK)}, {v(ST + 3)}, {v(ST + 4)} bitop3:{op}\n"
                    f"v_bitop3_b32 {v(CK)}, {v(CK)}, {v(ST + 5)}, {v(ST + 6)} bitop3:{op}\n"
                    f"v_bitop3_b32 {v(CK)}, {v(CK)}, {v(ST + 7)}, 1 bitop3:{'0x80' if T else '0xa8'}\n"
                    f"v_cmp_ne_u32 vcc, {T}, {v(CK)}\n"
                    f"s_cbranch_vccnz L_sumsre{l}"]
            stat = [None, stat[0] + "\n" + stat[1]]
            with self.outofline():
                a.label(f"L_sumsre{l}")
                self.countdown()
                for i in range(2):
                    a(f"buffer_load_dwordx4 {v(ST + 4 * i, 4)}, {v(vSLD)}, {s(sWS, 4)}, {s(sSTLD)} offen offset:{512 * i} sc1")
                a("s_waitcnt vmcnt(0)")
                a(f"s_branch L_sums{l}")
        stat += [
            f"v_add_f32 {v(ST)}, {v(ST)}, {v(ST + 2)}",
            f"v_add_f32 {v(ST + 1)}, {v(ST + 1)}, {v(ST + 3)}",
            f"v_add_f32 {v(ST + 4)}, {v(ST + 4)}, {v(ST + 6)}",
            f"v_add_f32 {v(ST + 5)}, {v(ST + 5)}, {v(ST + 7)}",
            f"v_add_f32 {v(ST)}, {v(ST)}, {v(ST + 4)}",
            f"v_add_f32 {v(ST + 1)}, {v(ST + 1)}, {v(ST + 5)}",
            f"v_add_f32 {v(t)}, {v(ST)}, {v(ST + 1)}",
            f"v_mul_f32 {v(t)}, {f2u(1 / 512):#x}, {v(t)}",
            f"v_mov_b32 {v(u_)}, {v(t)}",
            f"v_permlane32_swap_b32 {v(t)}, {v(u_)}",
            f"v_fma_f32 {v(u_)}, -{v(t)}, {v(t)}, {v(u_)}",
            f"v_max_f32 {v(u_)}, 0, {v(u_)}",
            f"v_cvt_pk_bf16_f32 {v(vM)}, -{v(t)}, -{v(t)}",
            f"v_cvt_pk_bf16_f32 {v(u_)}, {v(u_)}, {v(u_)}",
            f"v_and_b32 {v(u_)}, 0xffff0000, {v(u_)}",
            f"v_add_f32 {v(u_)}, {f2u(1e-5):#x}, {v(u_)}",
            f"v_cvt_pk_bf16_f32 {v(u_)}, {v(u_)}, {v(u_)}",
            f"v_and_b32 {v(u_)}, 0xffff0000, {v(u_)}",
            f"v_sqrt_f32 {v(u_)}, {v(u_)}",
            f"v_cndmask_b32 {v(vM)}, {v(vM)}, 0, {s(sHI, 2)}",
            f"v_cvt_pk_bf16_f32 {v(u_)}, {v(u_)}, {v(u_)}",
            f"v_and_b32 {v(u_)}, 0xffff0000, {v(u_)}",
            f"v_rcp_f32 {v(vRS)}, {v(u_)}",
            f"v_mov_b32 {v(MB)}, {v(vM)}",
            f"v_mul_f32 {v(vS)}, {LOG2E:#x}, {v(vRS)}",
            f"v_mov_b32 {v(MB + 3)}, {v(vM)}",
        ]
        js = max(NX, 9) + 3
        fill = [f"v_mov_b32 {v(MB + 1)}, 0", f"v_mov_b32 {v(MB + 2)}, 0"]
        if l == 0:
            fill += [f"v_mov_b32 {v(PK + 12 + i)}, -1" for i in range(4)]
        fill += [None] * (2 * D - len(fill)) + self.cs_pack(CS, CSA) + self.cs_pack(CS + 4, CSA + 1)
        self.bw = CS + 2
        if first:
            fill += [f"v_lshrrev_b32 {v(self.bw)}, 6, {v(vL16)}", f"v_mul_u32_u24 {v(self.bw)}, {3072 - 64}, {v(self.bw)}",
                     f"v_add_u32 {v(self.bw)}, {v(self.bw)}, {v(vL16)}"]
        fill += [None] * (2 * js - len(fill)) + stat
        jc = (len(fill) + 1) // 2 + 1
        assert jc <= 31
        self.bg_region(bgn[0], NX)
        for j in range(32):
            a.wait(vm=f"x{j}", lg=f"w{j}")
            self.fine(f"{l}:x{j}")
            if j == jc:
                a(f"v_mfma_f32_32x32x8_bf16 {v(AK, 16)}, {v(CSA, 2)}, {v(MB, 2)}, {v(AK, 16)}")
                a(f"v_mfma_f32_32x32x8_bf16 {v(AV, 16)}, {v(CSA, 2)}, {v(MB + 2, 2)}, {v(AV, 16)}")
            for p, acc in ((0, AK), (1, AV)):
                c = v(acc, 16) if j else "0"
                a(f"v_mfma_f32_32x32x16_bf16 {v(acc, 16)}, {v(RG + (j % D) * 8 + 4 * p, 4)}, {v(XF + 4 * j, 4)}, {c}")
                if p == 0:
                    if j + NX < 32:
                        ldx(j + NX)
                    if l == 0 and j + NX == 32:
                        self.mark_slot(KVP[1] - KVP[0], PK + 12)
                    if j + NX >= 32:
                        self.bg_tick()
                    if j == 31 and not first:
                        a("s_nop 5")
                    if first and j == 30:
                        a(f"v_mov_b32 {v(vBW)}, {v(self.bw)}")
                        a(f"v_lshrrev_b32 {v(vBO)}, 7, {v(vL16)}")
                        a(f"v_mul_u32_u24 {v(vBO)}, {1024 - 128}, {v(vBO)}")
                        a(f"v_add_u32 {v(vBO)}, {v(vBO)}, {v(vL16)}")
                if p and fill and fill[0] and fill[1:] and fill[1]:
                    a(fill[0]); fill[0] = None
                if j + D < 32:
                    rd(j + D, p)
                if T == 1 and j == 29:
                    a(f"ds_read_b128 {v(PK + 8 + 4 * p, 4)}, {v(vKFR)} offset:{L_WPF - L_KVF + KS * p}", lg="wp")
                for _ in range(2 if p else 0):
                    f_ = fill.pop(0) if fill else None
                    if f_:
                        a(f_)
        self.bw = vBW
        if first:
            self.slow_pf(sSO[T], 4, RG + 23)
        self.ts(f"{l}:kvgemm")
        self.dump("kv", l, list(range(AK, AK + 32)) + [vS, vRS, vM], RG)

        def v_steps(e):
            st = []
            for h in range(2):
                for i in range(4 * h, 4 * h + 4):
                    if T == 0:
                        st.append(lambda i=i: e(f"v_pk_mul_f32 {v(AV + 2 * i, 2)}, {v(AV + 2 * i, 2)}, {v(vS, 2)} op_sel:[0,1]"))
                    else:
                        st.append(lambda i=i: e(f"v_mul_f32 {v(AV + 2 * i)}, {v(AV + 2 * i)}, {v(vRS)}"))
                        st.append(lambda i=i: e(f"v_mul_f32 {v(AV + 2 * i + 1)}, {v(AV + 2 * i + 1)}, {v(vRS)}"))
                for i in range(4 * h, 4 * h + 4):
                    st.append(lambda i=i: e(f"v_cvt_pk_bf16_f32 {v(AV + i)}, {v(AV + 2 * i)}, {v(AV + 2 * i + 1)}"))
                st.append(lambda h=h: a(f"ds_write_b128 {v(vSTW)}, {v(AV + 4 * h, 4)} offset:{0x4000 + 128 * h}"))
            return st

        def stage(k):
            a(f"ds_write_b128 {v(vSTW)}, {v(PK + 4 * k, 4)} offset:{(k >> 1) * 8192 + 128 * (k & 1)}")
        vst = v_steps(self.ticker())
        if T == 0:
            self.bg_region(bgn[1], 72)
            self.phi_a(AK, LG, stage)
            for st in vst:
                st()
        else:
            self.bg_region(bgn[1], 125)
            self.logits(lambda: [vst.pop(0)() for _ in range(4)])
            for st in vst:
                st()
            self.softmax2(RG, False, stage)
        self.dump("pk", l, list(range(PK, PK + 16)) + list(range(AV, AV + 8)), RG)
        ONE, DK, DZ, PB, QA = AK, AV + 8, AV + 12, AV + 4, AV + 3
        for i in range(4):
            a(f"v_mov_b32 {v(ONE + i)}, 0x3f803f80")
        D = 5 if first else 6

        def rq(j):
            for u in range(2):
                a(f"ds_read_b64_tr_b16 {v(RG + (j % D) * 4 + 2 * u, 2)}, {v(QA)} offset:{self.woff(j, u)}", lg=f"q{j}")
        a.wait(vm="mark", lg=0)
        a("s_barrier")
        a(f"v_add_u32 {v(QA)}, {L_WQ[T]:#x}, {v(vWRD)}")
        self.ts(f"{l}:bar2")
        early = False
        with skip23():
            def rp(st, k):
                for u in range(2):
                    a(f"ds_read_b64_tr_b16 {v((LG, PK)[k] + 4 * st + 2 * u, 2)}, {v((vSTR, vSTR2)[k])} offset:{st * 1024 + u * 512}", lg=f"p{st}")
            PD = cfg["pdepth"]
            for st in range(PD):
                rp(st, 0); rp(st, 1)
            for st in range(4):
                a.wait(lg=f"p{st}")
                a(f"v_mfma_f32_16x16x32_bf16 {v(DK, 4)}, {v(LG + 4 * st, 4)}, {v(PK + 4 * st, 4)}, {v(DK, 4) if st else 0}")
                if st + PD < 4:
                    rp(st + PD, 0)
                a(f"v_mfma_f32_16x16x32_bf16 {v(DZ, 4)}, {v(LG + 4 * st, 4)}, {v(ONE, 4)}, {v(DZ, 4) if st else 0}")
                if st + PD < 4:
                    rp(st + PD, 1)
            self.fine(f"{l}:p_mfma")
            for i in range(2):
                a(f"v_cvt_pk_bf16_f32 {v(PB + i)}, {v(DK + 2 * i)}, {v(DK + 2 * i + 1)}")
            for i in range(2):
                a(f"v_cvt_pk_bf16_f32 {v(PB + 2 + i)}, {v(DK + 2 * i)}, {v(DK + 2 * i + 1)}")
            a(f"v_min_u32 {v(DZ)}, -2, {v(DZ)}")
            for i in range(2):
                a(f"v_permlane16_swap_b32 {v(PB + i)}, {v(PB + 2 + i)}")
            a(f"v_min_u32 {v(PB)}, -2, {v(PB)}")
            a(f"s_mov_b64 exec, {s(sROW, 2)}")
            a(f"buffer_store_dwordx4 {v(PB, 4)}, {v(vPST)}, {s(sWS, 4)}, {s(sKVT)} offen sc1")
            a(f"s_mov_b64 exec, {s(sCOL, 2)}")
            a(f"buffer_store_dwordx4 {v(DZ, 4)}, {v(vZST)}, {s(sWS, 4)}, {s(sKVT)} offen sc1")
            a("s_mov_b64 exec, -1")
        if cfg["jit"] and l < 3:
            with self.only_if(f"s_cmp_eq_u32 {s(sW)}, 3"):
                self.code_pf(f"L_layer{l + 1}", f"L_layer{l + 2}" if l < 2 else "L_end", AV + 8)
        self.ts(f"{l}:publish")
        if l == 0:
            a(f"v_lshlrev_b32 {v(vHL)}, 5, {v(vPOLL)}")
            a(f"s_or_b32 {s(sTG)}, {s(sTAG)}, 0xf0")
            a(f"buffer_load_dword {v(AV + 9)}, {v(vHL)}, {s(sWS, 4)}, {s(sHEL)} offen sc1", vm="hl")
            self.slow_pf(sSW[1], 12, AV + 10)
        if first:
            a.wait(vm="wq")
            self.cs_q(T)
            a.wait(lg=0)
            a("s_barrier")
        CS, CSA, MB, M1 = LG + 4, LG + 8, LG + 10, LG + 12
        PL, SEL, DR = 0, 36, 40

        def partial_load(i):
            i = (i + 8) % 9
            a(f"s_add_u32 {s(sT1)}, {s(sKVT)}, {i * 65536}")
            a(f"buffer_load_dwordx4 {v(PL + 4 * i, 4)}, {v(vL16)}, {s(sWS, 4)}, {s(sT1)} offen sc1", vm="pl")
        if not early:
            for j in range(D):
                rq(j)
        a(f"ds_read_b128 {v(CS, 4)}, {v(vCSR)} offset:{T * 1536 + 1024}", lg="cs")
        fill = []
        if first:
            def mark():
                with skip23():
                    self.mark_slot(KVP[l + 2] - KVP[l], M1)
            fill += [f"v_mov_b32 {v(M1)}, -1\nv_mov_b32 {v(M1 + 1)}, -1", f"v_mov_b32 {v(M1 + 2)}, -1\nv_mov_b32 {v(M1 + 3)}, -1", mark, None]
        fill += [None] * (D - len(fill))
        fill += self.cs_pack(CS, CSA) + [f"v_mov_b32 {v(CSA + 1)}, 0", f"v_mov_b32 {v(MB)}, {v(vM)}", f"v_mov_b32 {v(MB + 1)}, 0"]
        jc = len(fill) + 1
        PS, PG = cfg["pl_step"][l], cfg["pl_gap"][l]
        assert PS >= 10
        G = 3 if T == 0 else 1

        def pl_group(k):
            with skip23():
                for i in range(G * k, G * k + G):
                    partial_load(i)
        pl_at = [PS + G * PG * k for k in range(9 // G)]
        if first:
            pl_at = [min(x, 31) for x in pl_at]
        self.bg_region(bgn[2], min(PS, 32))
        NP = cfg["np"]
        puts = list(range(NP))
        nq = 0 if first else min(NP, cfg["qputs"][T])
        put_at = [1 + (k * 30) // nq for k in range(nq)]
        for j in range(32):
            a.wait(lg=f"q{j}")
            if j == jc:
                a(f"v_mfma_f32_32x32x8_bf16 {v(AK, 16)}, {v(CSA, 2)}, {v(MB, 2)}, {v(AK, 16)}")
            a(f"v_mfma_f32_32x32x16_bf16 {v(AK, 16)}, {v(RG + (j % D) * 4, 4)}, {v(XF + 4 * j, 4)}, {v(AK, 16) if j else 0}")
            self.bg_tick()
            if l == 0 and j == pl_at[0] - 1:
                a.wait(vm="hl")
                a(f"v_cmp_ne_u32 vcc, {s(sTG)}, {v(AV + 9)}")
                a("s_cbranch_vccnz L_hello")
                a.label("L_hello_ok")
                with self.outofline():
                    a.label("L_hello")
                    self.poll(vHL, sHEL, AV + 9)
                    a("s_branch L_hello_ok")
            for k, x in enumerate(pl_at):
                if x == j:
                    pl_group(k)
            if j + D < 32:
                rq(j + D)
            if j in put_at:
                self.put_wo(T, puts.pop(0))
            if j == 27:
                self.sel_read(SEL)
            if T == 1 and j in (28, 29):
                a(f"ds_read_b128 {v(PK + 8 + 4 * (j - 28), 4)}, {v(vKFR)} offset:{L_WPF - L_KVF + KS * (j - 28)}", lg="wp")
            if fill:
                f_ = fill.pop(0)
                if callable(f_):
                    f_()
                elif f_:
                    a(f_)
        self.ts(f"{l}:qgemm")
        self.dump("q", l, list(range(AK, AK + 16)), RG)
        EPS = RG + 6
        if first:
            if T == 0:
                n = len(a.vm) - 1 - max(i for i, t_ in enumerate(a.vm) if t_ == f"wo{NP - 1}")
                a(f"s_waitcnt vmcnt({n + 9})")
                with self.only_if(f"s_cmp_ge_u32 {s(sW)}, 2"):
                    a.wait(vm=f"wo{NP - 1}")
            else:
                a.wait(vm=f"wo{NP - 1}")
        nbg3 = min(bgn[3], len(self.bg))
        slots = 56 if T == 0 else 100
        self.bg_region(bgn[3], slots)
        if not first:
            late = [k for k, x in enumerate(pl_at) if x >= 32]
            self.bg = [(lambda k=k: pl_group(k)) for k in late]
            self.bg_at = [min(slots - 1, (pl_at[k] - 32) * 6) for k in late]
        self.side = [(lambda i=i: self.put_wo(T, i)) for i in puts]
        self.side_every = cfg["wo_every"][T]
        pop = lambda: self.side.pop(0)() if self.side else None
        pop()
        if T == 0:
            self.phi_a(AK, LG)
            a(f"v_mov_b32 {v(EPS)}, {f2u(1e-6):#x}")
        else:
            self.logits(pop)
            pop()
            self.softmax2(RG, True)
        while self.side:
            pop()
        self.dump("pq", l, list(range(PK, PK + 16)), AV)
        self.ts(f"{l}:phiq")
        WR, DW = 64, 7
        WA = [vWOR, RG + 16, RG + 17, RG + 18]
        for t_ in range(1, 4):
            a(f"v_xor_b32 {v(WA[t_])}, {32 * t_}, {v(vWOR)}")
        a(f"s_add_u32 {s(sTG)}, {s(sTAG)}, {16 * (l + 1)}")
        a(f"v_mov_b32 {v(RG + 19)}, {s(sTG)}")
        a.wait(lg="sel")
        self.fine(f"{l}:r_wait")
        with skip23():
            a.label(f"L_chk{l}")
            m, Z = 44, PL + 32
            gaps = [[f"v_max3_u32 {v(m)}, {v(Z)}, {v(PL)}, {v(PL + 4)}", f"v_permlane16_swap_b32 {v(Z)}, {v(Z + 1)}"],
                    [f"v_permlane16_swap_b32 {v(Z + 2)}, {v(Z + 3)}"],
                    [f"v_add_f32 {v(Z)}, {v(Z)}, {v(Z + 1)}", f"v_add_f32 {v(Z + 2)}, {v(Z + 2)}, {v(Z + 3)}"],
                    [f"v_max3_u32 {v(m)}, {v(m)}, {v(PL + 8)}, {v(PL + 12)}", f"v_permlane32_swap_b32 {v(Z)}, {v(Z + 2)}"],
                    [f"v_add_f32 {v(Z)}, {v(Z)}, {v(Z + 2)}", f"v_max3_u32 {v(m)}, {v(m)}, {v(PL + 16)}, {v(PL + 20)}"],
                    [f"v_add_f32 {v(Z)}, {v(Z)}, {v(Z)} row_ror:4"],
                    [f"v_add_f32 {v(Z)}, {v(Z)}, {v(Z)} row_ror:8", f"v_max3_u32 {v(m)}, {v(m)}, {v(PL + 24)}, {v(PL + 28)}"],
                    [f"v_cmp_eq_u32 vcc, -1, {v(m)}", f"v_cvt_pk_bf16_f32 {v(Z)}, {v(Z)}, {v(Z)}", f"ds_write_b16 {v(vZW)}, {v(Z)}"]]
            for i in range(8):
                if i % 2 == 0:
                    a(f"s_waitcnt vmcnt({nbg3 + 6 - i})")
                a(f"v_mfma_f32_16x16x32_bf16 {v(DR, 4)}, {v(SEL, 4)}, {v(PL + 4 * i, 4)}, {v(DR, 4) if i else 0}")
                for g_ in gaps[i]:
                    a(g_)
            a(f"s_cbranch_vccnz L_again{l}")
            with self.outofline():
                a.label(f"L_again{l}")
                self.countdown()
                if cfg["ts"]:
                    a(f"s_add_u32 {s(sTSI)}, {s(sTSI)}, {1 << (8 * l)}")
                for i in range(9):
                    partial_load(i)
                if nbg3:
                    a("s_waitcnt vmcnt(0)")
                a(f"s_branch L_chk{l}")
            for i in range(2):
                a(f"v_cvt_pk_bf16_f32 {v(DR + i)}, {v(DR + 2 * i)}, {v(DR + 2 * i + 1)}")
            a(f"ds_write_b64 {v(vKFW)}, {v(DR, 2)}")
        if T == 0:
            a(f"s_waitcnt vmcnt({nbg3})")
        self.fine(f"{l}:r_done")
        self.bg_now(bgn[4])
        a.wait(lg=0)
        a("s_barrier")
        self.ts(f"{l}:bar3")
        KF, ZF, DEN, O = 0, 16, RG + 6, LG
        def rk(j):
            a(f"ds_read_b128 {v(KF + 4 * j, 4)}, {v(vKFR)} offset:{KS * j}", lg=f"kf{j}")
        def rz(j):
            a(f"ds_read_b128 {v(ZF + 4 * j, 4)}, {v(vZR)} offset:{(j >> 1) * 64 + (j & 1) * 16}", lg=f"zf{j}")

        def dots(j):
            for d in range(4):
                a(f"v_dot2c_f32_bf16 {v(DEN)}, {v(ZF + 4 * j + d)}, {v(PK + 4 * j + d)}")

        def num(j):
            a.wait(lg=f"kf{j}")
            a(f"v_mfma_f32_32x32x16_bf16 {v(AV, 16)}, {v(KF + 4 * j, 4)}, {v(PK + 4 * j, 4)}, {v(AV, 16) if j else 0}")

        def rw1(i, t_, u):
            a(f"ds_read_b64_tr_b16 {v(WR + (i % DW) * 16 + 4 * t_ + 2 * u, 2)}, {v(WA[t_])} offset:{t_ * 16384 + i * 1024 + u * 512}", lg=f"wo{i}")
        rest = [(i, t_, u) for i in range(DW) for t_ in range(4) for u in range(2)]
        if cfg["nmode"] == 0:
            for j in range(NJ):
                rz(j)
            if NJ == 2:
                rk(0); rk(1)
            for j in range(NJ):
                if j % 2 == 0:
                    a.wait(lg=f"zf{j + 1}")
                dots(j)
                if NJ == 4:
                    rk(j)
            self.fine(f"{l}:n_dot")
            for j in range(NJ):
                num(j)
        else:
            q_ = [(rk, j) for j in range(NJ)] + [(rz, j) for j in range(NJ)]
            for f_, j in q_[:3]:
                f_(j)
            del q_[:3]
            for j in range(NJ):
                num(j)
                for f_, k in q_[:2]:
                    f_(k)
                del q_[:2]
            self.fine(f"{l}:n_dot")
            a.wait(lg=0)
            for j in range(NJ):
                dots(j)
        a(f"v_rcp_f32 {v(DEN)}, {v(DEN)}")
        self.fine(f"{l}:n_mfma")
        ol = []
        for h in range(2):
            ol += [f"v_pk_mul_f32 {v(AV + 2 * i, 2)}, {v(AV + 2 * i, 2)}, {v(DEN, 2)} op_sel_hi:[1,0]" for i in range(4 * h, 4 * h + 4)]
            ol += [f"v_cvt_pk_bf16_f32 {v(O + i)}, {v(AV + 2 * i)}, {v(AV + 2 * i + 1)}" for i in range(4 * h, 4 * h + 4)]
            ol += [f"buffer_store_dwordx4 {v(O + 4 * h, 4)}, {v(vOST)}, {s(sWS, 4)}, {s(sOST)} offen offset:{256 * h}"]
        self.moded(ol, tag="ost", wt=l == 0)
        self.dump("o", l, list(range(O, O + 8)), PK)
        self.ts(f"{l}:ostore")
        if first:
            self.warm(l + 1)
        self.bg_now(bgn[5])
        NO = cfg["no0"]

        def ldo(i):
            if i % 4 == 0 and i:
                a(f"s_add_u32 {s(sT3)}, {s(sOLD)}, {i * 1024}")
            a(f"buffer_load_dwordx4 {v(4 * i, 4)}, {v(vL16)}, {s(sWS, 4)}, {s(sT3 if i >= 4 else sOLD)} offen offset:{(i % 4) * 1024} sc1", vm=f"o{i}")
        late = list(range(NP, 16))

        def window(np_, nr):
            for _ in range(min(len(late), np_)):
                self.put_wo(T, late.pop(0))
            for _ in range(min(len(rest), nr)):
                rw1(*rest.pop(0))
        ow = cfg["owin"][first]
        window(*ow[0])
        self.fine(f"{l}:o_pre")
        self.flag(sFOS, RG + 19, "ost")
        self.fine(f"{l}:oflag")
        self.spin_more(wo_, f"o{l}")
        window(*ow[1])
        self.probe(wo_, vPR)
        window(*ow[2])
        self.spin(wo_, f"o{l}")
        self.ts(f"{l}:opoll")
        for i in range(4):
            ldo(i)
        window(16, 0)
        if NP < 16:
            a.wait(lg="putwo")
            a("s_barrier")
        per = -(-len(rest) // (NO - 4))
        for i in range(4, NO):
            window(0, per)
            ldo(i)
        assert not rest
        self.fine(f"{l}:o_iss")
        todo = [(i, t_, u) for i in range(DW, 16) for t_ in range(4) for u in range(2)]
        done = 0
        self.bg_region(bgn[6], NO)
        for i in range(16):
            for t_ in range(4):
                if t_ == 0:
                    a.wait(vm=f"o{i}", lg=f"wo{i}")
                    self.fine(f"{l}:o{i}")
                a(f"v_mfma_f32_16x16x32_bf16 {v(XR + 4 * t_, 4)}, {v(WR + (i % DW) * 16 + 4 * t_, 4)}, {v(4 * i, 4)}, {v(XR + 4 * t_, 4)}")
                if t_ == 0:
                    if i + NO < 16:
                        ldo(i + NO)
                    else:
                        self.bg_tick()
                for _ in range(cfg["ord"][i + NO >= 16][t_]):
                    if done < len(todo) and done // 2 <= 4 * i + t_:
                        assert todo[done][0] > i
                        rw1(*todo[done]); done += 1
        assert done == len(todo) and not self.bg
        self.ts(f"{l}:ogemm")
        if last:
            return
        self.dump("x", l, list(range(XR, XR + 16)), PK)
        N = 1 - T
        for st in self.x_steps(0, XR, AK, par=N):
            st()
        self.fine(f"{l}:xst")
        a("s_barrier")
        self.fine(f"{l}:bar5")
        if l == 0:
            self.sel_read(AV)
        n1, n2 = cfg["xputs"]
        self.put_wkv(N, 0, n1)
        a(f"s_add_u32 {s(sKVT)}, {s(sKVT)}, {KVP[l + 1] - KVP[l]}")
        self.flag(sFXS, RG + 19, "xst" if cfg["spar"] else "sst")
        self.ts(f"{l}:xflag")
        self.spin_more(wx, f"x{l + 1}")
        if l == 0:
            a.wait(lg="sel")
        for i in range(n1, n2):
            if i == n1 + cfg["xprobe_at"]:
                self.probe(wx, vPR)
            self.put_wkv(N, i, i + 1)
            if l == 0:
                for k in range((i - n1) * 16 // (n2 - n1), (i - n1 + 1) * 16 // (n2 - n1)):
                    self.cs_kv_step(1, k, AV, AV + 4)
        if l == 0:
            self.cs_kv_fin(1, AV + 4, AV + 8)
        self.puts_left = list(range(n2, 16))

    def prologue(self):
        cfg = self.cfg
        a = self.a
        a(f"s_cmp_ge_u32 {s(sID)}, 256")
        a("s_cbranch_scc1 L_end")
        self.ts("start")
        a(f"s_load_dwordx16 {s(4, 16)}, s[0:1], 0")
        a(f"s_load_dwordx4 {s(20, 4)}, s[0:1], 64")
        a(f"s_getpc_b64 {s(sSAVE, 2)}")
        a.label("L_pc")
        NCL = cfg["codepf"]
        a(f"s_bfe_u32 {s(sT0)}, {s(sID)}, {3 | (3 << 16)}")
        a(f"s_mul_i32 {s(sT0)}, {s(sT0)}, {NCL}")
        a(f"v_min_u32 v1, {NCL - 1}, v0")
        a(f"v_add_u32 v1, {s(sT0)}, v1")
        a("v_lshlrev_b32 v1, 7, v1")
        if cfg["pads"]:
            a("v_lshlrev_b32 v2, 12, v0")
            a("v_add_u32 v2, L_layer0-L_pc-64*4096, v2")
            a("v_cmp_le_u32 vcc, 64, v0")
            a("v_cndmask_b32 v1, v1, v2, vcc")
        a(f"v_min_u32 v1, L_codeend-L_pc, v1")
        a(f"global_load_dword v2, v1, {s(sSAVE, 2)}")
        if cfg["ts"]:
            a(f"s_mov_b32 {s(sTSI)}, 0")
            a(f"s_mov_b32 {s(sLAY)}, 0")
            a(f"v_mov_b32 {v(vTS)}, 0")
            a(f"s_memrealtime s[78:79]")
        L = 3
        a(f"v_lshrrev_b32 v1, 6, v0")
        a(f"v_and_b32 {v(L)}, 63, v0")
        a(f"v_readfirstlane_b32 {s(sW)}, v1")
        a(f"v_lshlrev_b32 {v(vL16)}, 4, {v(L)}")
        a(f"s_bfe_u32 {s(sC)}, {s(sID)}, {3 | (4 << 16)}")
        a(f"s_lshr_b32 {s(sT0)}, {s(sID)}, 7")
        a(f"s_and_b32 {s(sR)}, {s(sID)}, 7")
        a(f"s_lshl1_add_u32 {s(sR)}, {s(sR)}, {s(sT0)}")
        sBP, sSUB, sCG, sB = 99, 100, 101, sCNT
        a(f"s_lshr_b32 {s(sT0)}, {s(sC)}, 3")
        a(f"s_lshr_b32 {s(sT3)}, {s(sW)}, 1")
        a(f"s_lshl1_add_u32 {s(sT0)}, {s(sT0)}, {s(sT3)}")
        a(f"s_lshl2_add_u32 {s(sBP)}, {s(sR)}, {s(sT0)}")
        a(f"s_lshl2_add_u32 {s(sB)}, {s(sR)}, {s(sW)}")
        a(f"s_and_b32 {s(sSUB)}, {s(sW)}, 1")
        a(f"s_and_b32 {s(sCG)}, {s(sC)}, 7")
        a(f"s_lshl1_add_u32 {s(sT0)}, {s(sBP)}, {s(sSUB)}")
        a(f"s_lshl_b32 {s(sOLD)}, {s(sT0)}, 14")
        a(f"s_lshl_b32 {s(sT0)}, {s(sCG)}, 7")
        a(f"s_add_u32 {s(sFIN)}, {s(sOLD)}, {s(sT0)}")
        a(f"s_lshl3_add_u32 {s(sT0)}, {s(sBP)}, {s(sCG)}")
        a(f"s_lshl4_add_u32 {s(sT0)}, {s(sT0)}, {s(sSUB)}")
        a(f"s_lshl_b32 {s(sXST)}, {s(sT0)}, 8")
        self.rowmajor_voff(4, 5)
        a(f"s_lshl_b32 {s(sT0)}, {s(sC)}, 6")
        a(f"s_mul_i32 {s(sWOFF)}, {s(sT3)}, {16 * 3072}")
        a(f"s_add_u32 {s(sWOFF)}, {s(sWOFF)}, {s(sT0)}")
        a(f"s_lshl_b32 {s(sT0)}, {s(sSUB)}, 10")
        a(f"s_add_u32 {s(sWOFF)}, {s(sWOFF)}, {s(sT0)}")
        a(f"s_add_u32 {s(sWOFF)}, {s(sWOFF)}, 1024")
        self.w_voff(5)
        a(f"s_mov_b32 {s(sTMP + 3)}, 0x20000")
        a(f"s_mov_b32 {s(sSW[0] + 3)}, 0x20000")
        a(f"s_mov_b32 {s(sTMP + 2)}, 0x200000")
        a(f"s_mov_b32 {s(sSW[0] + 2)}, {512 * 3072}")
        a(f"s_lshr_b32 {s(sT2)}, {s(sID)}, 3")
        a(f"s_lshl_b32 {s(sSTLD)}, {s(sB)}, 11")
        a(f"s_lshl_b32 {s(sT0)}, {s(sB)}, 7")
        a(f"s_add_u32 {s(sFXP)}, {s(sT0)}, {FLAGX}")
        a(f"s_add_u32 {s(sFOS)}, {s(sT0)}, {FLAGO}")
        a(f"s_lshl_b32 {s(sHEL)}, {s(sC)}, 7")
        a(f"s_add_u32 {s(sHEL)}, {s(sHEL)}, {s(sSTLD)}")
        a("s_waitcnt lgkmcnt(0)")
        self.ts("kernarg")
        a(f"s_mov_b64 {s(sTMP, 2)}, {s(sPX, 2)}")
        a(f"s_mov_b64 {s(sSW[0], 2)}, {s(sPWA, 2)}")
        for i in range(2):
            a(f"buffer_load_dwordx4 {v(8 + 4 * i, 4)}, v4, {s(sTMP, 4)}, {s(sFIN)} offen offset:{64 * i}", vm="x0")
        a(f"s_lshl2_add_u32 {s(sPF)}, {s(sT2)}, {s(sW)}")

        def mall_pf():
            a0 = self.a
            a0(f"s_cmp_eq_u32 {s(sSUB)}, 0")
            a0(f"s_cselect_b64 {s(sTMP, 2)}, {s(sPWA, 2)}, {s(sPWB, 2)}")
            a0(f"s_cselect_b64 {s(sSO[0], 2)}, {s(sPWOA, 2)}, {s(sPWOB, 2)}")
            a0(f"s_cmp_lt_u32 {s(sW)}, 2")
            a0(f"s_cselect_b64 {s(sTMP, 2)}, {s(sTMP, 2)}, {s(sSO[0], 2)}")
            a0(f"s_cselect_b32 {s(sT1)}, 3, 1")
            a0(f"s_lshl_b32 {s(sT1)}, {s(sT1)}, 11")
            a0(f"s_mul_i32 {s(sT2)}, {s(sID)}, {s(sT1)}")
            a0(f"s_sub_u32 {s(sT0)}, {s(sT1)}, 128")
            a0(f"v_lshlrev_b32 v7, 3, {v(vL16)}")
            a0(f"v_min_u32 v7, {s(sT0)}, v7")
            a0(f"s_lshl_b32 {s(sTMP + 2)}, {s(sT1)}, 8")
            a0(f"buffer_load_dword v7, v7, {s(sTMP, 4)}, {s(sT2)} offen")
        if cfg["mallpf"] == 1:
            mall_pf()
        self.slow_pf(sSW[0], 12, 6)
        for i in range(cfg["n0"]):
            self.ld_wkv(0, i, 5)
        if cfg["mallpf"] == 2:
            mall_pf()
        a(f"s_load_dword {s(sEP)}, {s(sPWS, 2)}, 0")
        if cfg["touch"]:
            a(f"s_add_u32 {s(sPBX)}, {s(sPWS)}, {s(sHEL)}")
            a(f"s_addc_u32 {s(sPBX + 1)}, {s(sPWS + 1)}, 0")
            a(f"s_load_dword {s(sTG)}, {s(sPWS, 2)}, {s(sFXP)}")
            a(f"s_load_dword {s(sTG)}, {s(sPWS, 2)}, {s(sFOS)}")
            for b_ in sorted(set(self.xb)):
                a(f"s_load_dword {s(sTG)}, {s(sPBX, 2)}, {STATS[b_]}")
                a(f"s_load_dword {s(sTG)}, {s(sPBX, 2)}, {STATS[b_] + 64}")
        self.ts("p_issue")
        a(f"s_mov_b64 {s(sWS, 2)}, {s(sPWS, 2)}")
        a(f"s_mov_b64 {s(sOUT, 2)}, {s(sPOUT, 2)}")
        for r_ in (sWS, sOUT):
            a(f"s_mov_b32 {s(r_ + 3)}, 0x20000")
        a(f"s_mov_b32 {s(sWS + 2)}, {WS_SIZE:#x}")
        a(f"s_mov_b32 {s(sOUT + 2)}, 0x200000")
        a(f"s_mov_b32 {s(sROW)}, 0xffff")
        a(f"s_mov_b32 {s(sROW + 1)}, 0xffff")
        a(f"s_mov_b32 {s(sMODE)}, 0")
        a(f"s_lshr_b32 {s(sT0)}, {s(sCG)}, 2")
        a(f"s_lshl2_add_u32 {s(sT0)}, {s(sBP)}, {s(sT0)}")
        a(f"s_lshl1_add_u32 {s(sT0)}, {s(sT0)}, {s(sSUB)}")
        a(f"s_lshl_b32 {s(sT0)}, {s(sT0)}, 8")
        a(f"s_and_b32 {s(sT1)}, {s(sCG)}, 3")
        a(f"s_lshl2_add_u32 {s(sSTST)}, {s(sT1)}, {s(sT0)}")
        a(f"s_add_u32 {s(sSTST)}, {s(sSTST)}, {STATS[0]}")
        a(f"s_lshl4_add_u32 {s(sT0)}, {s(sW)}, {s(sC)}")
        a(f"s_lshl_b32 {s(sKVT)}, {s(sT0)}, 10")
        a(f"s_add_u32 {s(sKVT)}, {s(sKVT)}, {KVP[0]}")
        a(f"s_lshl_b32 {s(sHEL)}, {s(sT0)}, 11")
        a(f"s_add_u32 {s(sHEL)}, {s(sHEL)}, {HELLO}")
        a(f"s_mov_b32 {s(sHI)}, 0")
        a(f"s_mov_b32 {s(sHI + 1)}, -1")
        a(f"s_lshl_b32 {s(sXLD)}, {s(sB)}, 15")
        i16, g, half, q, jj, t0, t1 = 20, 21, 22, 23, 24, 25, 26
        a(f"v_and_b32 {v(i16)}, 15, {v(L)}")
        a(f"v_lshrrev_b32 {v(g)}, 4, {v(L)}")
        a(f"v_lshrrev_b32 {v(half)}, 5, {v(L)}")
        a(f"v_and_b32 {v(q)}, 3, {v(L)}")
        a(f"v_bfe_u32 {v(jj)}, {v(L)}, 2, 2")
        a(f"v_lshlrev_b32 {v(vPOLL)}, 2, {v(i16)}")
        a(f"v_lshlrev_b32 {v(t0)}, 4, {v(i16)}")
        a(f"v_lshl_add_u32 {v(vXST)}, {v(g)}, 10, {v(t0)}")
        a(f"v_lshl_add_u32 {v(vSST)}, {v(half)}, 10, {v(t0)}")
        a(f"v_lshl_add_u32 {v(vSLD)}, {v(half)}, 9, {v(vL16)}")
        a(f"s_lshr_b32 {s(sT0)}, {s(sR)}, 1")
        a(f"s_lshl_b32 {s(sT0)}, {s(sT0)}, 7")
        a(f"s_and_b32 {s(sT1)}, {s(sR)}, 1")
        a(f"s_add_u32 {s(sT0)}, {s(sT0)}, {s(sT1)}")
        a(f"s_lshl_b32 {s(sT0)}, {s(sT0)}, 9")
        a(f"v_lshl_add_u32 {v(vPST)}, {v(half)}, 8, {v(t0)}")
        a(f"v_add_u32 {v(vPST)}, {s(sT0)}, {v(vPST)}")
        a(f"s_lshl_b32 {s(sT1)}, {s(sR)}, 6")
        a(f"s_add_u32 {s(sT1)}, {s(sT1)}, {8 * 65536}")
        a(f"v_lshl_add_u32 {v(vZST)}, {v(g)}, 4, {s(sT1)}")
        a(f"v_add_u32 v49, {s(sT0)}, {v(vL16)}")
        a(f"v_lshl_add_u32 v27, {v(q)}, 4, {s(sT1)}")
        a(f"v_cndmask_b32 v49, v49, v27, {s(sHI, 2)}")
        for i in range(4):
            a(f"v_mov_b32 {v(28 + i)}, -1")
        self.warm(0)
        self.ts("p_lane")
        a.wait(vm="x0")
        self.ts("x0")
        for i in range(2):
            for d in range(2):
                a(f"v_permlane16_swap_b32 {v(8 + 4 * i + d)}, {v(8 + 4 * i + 2 + d)}")
        for i in range(8):
            a(f"v_lshlrev_b32 {v(XR + 2 * i)}, 16, {v(8 + i)}")
            a(f"v_and_b32 {v(XR + 2 * i + 1)}, 0xffff0000, {v(8 + i)}")
        for st in self.x_steps(0, XR, AK, wt=cfg["x_wt"]):
            st()
        with self.only_if(f"s_cmp_lt_u32 {s(sW)}, 2"):
            a("s_mov_b32 exec_hi, 15")
            a(f"buffer_store_dwordx4 v[28:31], v49, {s(sWS, 4)}, {s(sKVT)} offen sc1")
            a("s_mov_b32 exec_hi, -1")
        self.srd_tmp(sPPHI, 16384)
        a(f"s_lshl_b32 {s(sT0)}, {s(sC)}, 10")
        a(f"buffer_load_dwordx4 v[16:19], {v(vL16)}, {s(sTMP, 4)}, {s(sT0)} offen", vm="phi")
        if cfg["mallpf"] == 3:
            mall_pf()
        self.ts("p_xpub")
        self.nw, cnt, a0 = cfg["n0"], [0], a

        def a(text, **kw):
            if cnt[0] % cfg["w_every"] == 0 and self.nw < 15:
                self.ld_wkv(0, self.nw, 5, sT3)
                self.nw += 1
            cnt[0] += 1
            a0(text, **kw)
        a(f"s_getreg_b32 {s(sXCC)}, hwreg(HW_REG_XCC_ID, 0, 4)")
        a(f"s_lshl_b32 {s(sW13)}, {s(sW)}, 13")
        a(f"s_mov_b32 {s(sCNT)}, 0x40000")
        a(f"s_lshl_b32 {s(sT0)}, {s(sC)}, 10")
        a(f"s_add_u32 {s(sOST)}, {s(sXLD)}, {s(sT0)}")
        a(f"s_add_u32 {s(sOST)}, {s(sOST)}, {OB[0]}")
        a(f"s_add_u32 {s(sOLD)}, {s(sOLD)}, {OB[0]}")
        a(f"s_add_u32 {s(sSTLD)}, {s(sSTLD)}, {STATS[0]}")
        a(f"s_lshl2_add_u32 {s(sFOS)}, {s(sC)}, {s(sFOS)}")
        a(f"s_lshl_b32 {s(sT0)}, {s(sBP)}, 7")
        a(f"s_add_u32 {s(sFOP)}, {s(sT0)}, {FLAGO}")
        a(f"s_lshl1_add_u32 {s(sT1)}, {s(sCG)}, {s(sSUB)}")
        a(f"s_lshl2_add_u32 {s(sFXS)}, {s(sT1)}, {s(sT0)}")
        a(f"s_add_u32 {s(sFXS)}, {s(sFXS)}, {FLAGX}")
        a(f"s_lshl_b32 {s(sT0)}, {s(sC)}, 6")
        a(f"s_mul_i32 {s(sQOFF)}, {s(sW)}, {128 * 3072}")
        a(f"s_add_u32 {s(sQOFF)}, {s(sQOFF)}, {s(sT0)}")
        a(f"s_lshl_b32 {s(sOOFF)}, {s(sW)}, 13")
        a(f"s_lshl_b32 {s(sT0)}, {s(sCG)}, 7")
        a(f"s_add_u32 {s(sOOFF)}, {s(sOOFF)}, {s(sT0)}")
        a(f"s_mov_b64 {s(sSW[1], 2)}, {s(sPWB, 2)}")
        a(f"s_mov_b32 {s(sSW[1] + 2)}, {512 * 3072}")
        a(f"s_mov_b32 {s(sSW[1] + 3)}, 0x20000")
        for T in range(2):
            a(f"s_mov_b64 {s(sSO[T], 2)}, {s([sPWOA, sPWOB][T], 2)}")
            a(f"s_mov_b32 {s(sSO[T] + 2)}, {512 * 1024}")
            a(f"s_mov_b32 {s(sSO[T] + 3)}, 0x20000")
        a(f"s_mov_b32 {s(sCOL)}, 0x10001")
        a(f"s_mov_b32 {s(sCOL + 1)}, 0x10001")
        a(f"s_mov_b32 {s(sLN2)}, {LN2:#x}")
        a(f"s_mov_b32 {s(sLN2b)}, {LN2:#x}")
        a(f"s_mov_b32 {s(sDELTA)}, {DELTA:#x}")
        a(f"s_lshl_b32 {s(sANN)}, {s(sR)}, 7")
        a(f"s_add_u32 {s(sANN)}, {s(sANN)}, {ANN}")
        a(f"s_lshl4_add_u32 {s(sGW)}, {s(sR)}, {s(sC)}")
        a(f"s_lshl2_add_u32 {s(sGW)}, {s(sGW)}, {s(sW)}")
        a(f"v_and_b32 {v(t1)}, 1, {v(g)}")
        a(f"v_lshl_add_u32 {v(vOST)}, {v(t1)}, 14, {v(t0)}")
        a(f"v_lshl_add_u32 {v(vOST)}, {v(half)}, 9, {v(vOST)}")
        a(f"v_lshlrev_b32 {v(vWRD)}, 11, {v(half)}")
        a(f"v_lshl_add_u32 {v(vWRD)}, {v(jj)}, 6, {v(vWRD)}")
        a(f"v_lshl_add_u32 {v(vWRD)}, {v(t1)}, 4, {v(vWRD)}")
        a(f"v_and_b32 v27, 1, {v(q)}")
        a(f"v_lshrrev_b32 v32, 1, {v(q)}")
        a(f"v_lshl_add_u32 {v(vWRD)}, v27, 5, {v(vWRD)}")
        a(f"v_lshl_add_u32 {v(vWRD)}, v32, 3, {v(vWRD)}")
        a(f"v_lshlrev_b32 {v(vSTR)}, 8, {v(half)}")
        a(f"v_lshl_add_u32 {v(vSTR)}, v32, 7, {v(vSTR)}")
        a(f"v_lshl_add_u32 {v(vSTR)}, {v(t1)}, 6, {v(vSTR)}")
        a(f"v_lshl_add_u32 {v(vSTR)}, {v(jj)}, 4, {v(vSTR)}")
        a(f"v_lshl_add_u32 {v(vSTR)}, v27, 3, {v(vSTR)}")
        a(f"s_lshl_b32 {s(sT0)}, {s(sSUB)}, 12")
        a(f"s_add_u32 {s(sT0)}, {s(sT0)}, {L_STG + 0x4000}")
        a(f"v_add_u32 {v(vSTR2)}, {s(sT0)}, {v(vSTR)}")
        a(f"s_lshl_b32 {s(sT0)}, {s(sW)}, 12")
        a(f"s_add_u32 {s(sT0)}, {s(sT0)}, {L_STG}")
        a(f"v_add_u32 {v(vSTR)}, {s(sT0)}, {v(vSTR)}")
        a(f"v_bfe_u32 v33, {v(L)}, 3, 2")
        a(f"v_and_b32 {v(vSTW)}, 0x70, {v(vL16)}")
        a(f"v_lshl_add_u32 {v(vSTW)}, v33, 8, {v(vSTW)}")
        a(f"v_lshl_add_u32 {v(vSTW)}, {v(half)}, 12, {v(vSTW)}")
        a(f"s_lshl_b32 {s(sT0)}, {s(sW)}, 10")
        a(f"s_add_u32 {s(sT0)}, {s(sT0)}, {L_STG}")
        a(f"v_add_u32 {v(vSTW)}, {s(sT0)}, {v(vSTW)}")
        a(f"v_bfe_u32 v34, {v(L)}, 1, 2")
        a(f"v_xor_b32 v33, v33, v34")
        a(f"v_lshlrev_b32 {v(vWOW)}, 14, v34")
        a(f"v_lshl_add_u32 {v(vWOW)}, v33, 5, {v(vWOW)}")
        a(f"v_lshl_add_u32 {v(vWOW)}, {v(half)}, 9, {v(vWOW)}")
        a(f"v_lshl_add_u32 {v(vWOW)}, v27, 4, {v(vWOW)}")
        a(f"s_lshl_b32 {s(sT0)}, {s(sW)}, 7")
        a(f"v_add_u32 {v(vWOW)}, {s(sT0)}, {v(vWOW)}")
        a(f"v_lshlrev_b32 {v(vWOR)}, 3, {v(L)}")
        a(f"s_lshl_b32 {s(sT0)}, {s(sSUB)}, 15")
        a(f"s_and_b32 {s(sT1)}, {s(sW)}, 2")
        a(f"s_lshl_b32 {s(sT2)}, {s(sT1)}, 9")
        a(f"s_add_u32 {s(sT0)}, {s(sT0)}, {s(sT2)}")
        a(f"v_add_u32 {v(vWKW)}, {s(sT0)}, {v(vL16)}")
        a(f"v_and_b32 v33, 0x1f0, {v(vL16)}")
        a(f"v_add_u32 {v(vCSR)}, {L_CSP:#x}, v33")
        a(f"v_and_b32 v34, 1, {v(jj)}")
        a(f"v_cmp_eq_u32 vcc, v34, {v(half)}")
        a(f"v_lshlrev_b32 v35, 6, {v(half)}")
        a(f"v_sub_u32 v35, 576, v35")
        a(f"v_cndmask_b32 {v(vKFR)}, v35, v33, vcc")
        a(f"v_add_u32 {v(vKFR)}, {L_KVF:#x}, {v(vKFR)}")
        a(f"s_mul_i32 {s(sT0)}, {s(sT1)}, {KS}")
        a(f"s_lshl_b32 {s(sT2)}, {s(sSUB)}, 6")
        a(f"s_add_u32 {s(sT0)}, {s(sT0)}, {s(sT2)}")
        a(f"s_add_u32 {s(sT0)}, {s(sT0)}, {L_KVF}")
        a(f"v_mul_u32_u24 {v(vKFW)}, {KS}, {v(half)}")
        a(f"v_lshl_add_u32 {v(vKFW)}, {v(q)}, 4, {v(vKFW)}")
        a(f"v_lshl_add_u32 {v(vKFW)}, {v(jj)}, 7, {v(vKFW)}")
        a(f"v_lshl_add_u32 {v(vKFW)}, {v(t1)}, 3, {v(vKFW)}")
        a(f"v_add_u32 {v(vKFW)}, {s(sT0)}, {v(vKFW)}")
        a(f"s_lshl_b32 {s(sT0)}, {s(sW)}, 5")
        a(f"s_add_u32 {s(sT0)}, {s(sT0)}, {L_ZB}")
        a(f"v_lshl_add_u32 {v(vZW)}, {v(q)}, 2, {v(g)}")
        a(f"v_lshl_add_u32 {v(vZW)}, {v(vZW)}, 1, {s(sT0)}")
        a(f"v_mov_b32 v35, {L_ZB:#x}")
        a(f"v_lshl_add_u32 {v(vZR)}, {v(half)}, 5, v35")
        a(f"v_mov_b32 v36, 0x3f80")
        a(f"v_lshlrev_b32 v37, 4, v27")
        a(f"v_lshlrev_b32 v36, v37, v36")
        a(f"v_lshrrev_b32 v37, 1, {v(i16)}")
        a(f"v_lshlrev_b32 v38, 2, {v(t1)}")
        a(f"v_sub_u32 v37, v37, v38")
        for d in range(4):
            a(f"v_cmp_eq_u32 vcc, {d}, v37")
            a(f"v_cndmask_b32 {v(40 + d)}, 0, v36, vcc")
        a(f"v_add_u32 v33, {L_SEL:#x}, v33")
        a(f"ds_write_b128 v33, v[40:43]")
        for i in range(4):
            a(f"v_mov_b32 {v(44 + i)}, 0")
        a(f"v_min_u32 v33, 5, {v(i16)}")
        a(f"v_mul_u32_u24 v33, {KS}, v33")
        a(f"v_lshl_add_u32 v33, {v(half)}, 6, v33")
        a(f"v_add_u32 v33, {L_KVF + 512:#x}, v33")
        a(f"ds_write_b128 v33, v[44:47]")
        a = a0
        self.ts("p_setup")
        a(f"s_lshl_b32 {s(sT0)}, {s(sW)}, 10")
        a(f"s_add_u32 {s(sT0)}, {s(sT0)}, {L_STG}")
        a(f"v_add_u32 v33, {s(sT0)}, {v(vL16)}")
        a.wait(vm="phi")
        a(f"ds_write_b128 v33, v[16:19]")
        a(f"v_lshlrev_b32 v33, 9, v27")
        a(f"v_lshl_add_u32 v33, {v(half)}, 8, v33")
        a(f"v_lshl_add_u32 v33, {v(jj)}, 5, v33")
        a(f"v_lshl_add_u32 v33, {v(t1)}, 4, v33")
        a(f"v_lshl_add_u32 v33, v32, 3, v33")
        a(f"v_add_u32 v33, {s(sT0)}, v33")
        a("s_waitcnt lgkmcnt(0)")
        a(f"ds_read_b64_tr_b16 v[16:17], v33")
        a(f"ds_read_b64_tr_b16 v[18:19], v33 offset:128")
        a(f"v_mul_u32_u24 v33, {KS - 512}, {v(half)}")
        a(f"v_add_u32 v33, v33, {v(vL16)}")
        a(f"v_add_u32 v33, {L_WPF:#x}, v33")
        a(f"s_mul_i32 {s(sTAG)}, {s(sEP)}, 0x9e3779b1")
        a(f"s_add_u32 {s(sTAG)}, {s(sTAG)}, 0x7f4a7c15")
        a(f"s_and_b32 {s(sTAG)}, {s(sTAG)}, 0xffffff00")
        a(f"s_or_b32 {s(sT1)}, {s(sTAG)}, 0xf0")
        a(f"s_or_b32 {s(sXCC)}, {s(sTAG)}, {s(sXCC)}")
        a(f"v_mov_b32 v34, {s(sXCC)}")
        a(f"v_mov_b32 v35, {s(sT1)}")
        a("s_waitcnt lgkmcnt(0)")
        a.lg.clear()
        a(f"ds_write_b128 v33, v[16:19]")
        self.ts("p_phi")
        a(f"v_lshrrev_b32 v37, 2, {v(vL16)}")
        a("s_mov_b64 exec, 1")
        a(f"buffer_store_dword v34, off, {s(sWS, 4)}, {s(sFXS)}")
        with self.only_if(f"s_cmp_eq_u32 {s(sW)}, {0 if cfg['x_ann'] else 9}"):
            a(f"s_lshl2_add_u32 {s(sT0)}, {s(sC)}, {s(sANN)}")
            a(f"buffer_store_dword v34, off, {s(sWS, 4)}, {s(sT0)} sc1")
        a("s_mov_b32 exec_lo, -1")
        with self.only_if(f"s_cmp_lt_u32 {s(sW)}, 2"):
            a(f"s_lshl_b32 {s(sT0)}, {s(sR)}, 7")
            a(f"s_add_u32 {s(sT0)}, {s(sT0)}, {s(sHEL)}")
            a(f"buffer_store_dword v35, v37, {s(sWS, 4)}, {s(sT0)} offen sc1")
        a("s_mov_b32 exec_hi, -1")
        a(f"s_and_b32 {s(sHEL)}, {s(sHEL)}, 0xfffeffff")
        self.ts("flag0")
        a(f"v_and_b32 v33, 0x100, {v(vL16)}")
        a(f"v_add_u32 v33, v33, {v(vPOLL)}")
        a(f"s_and_b32 {s(sT2)}, {s(sFXP)}, 0xfffffeff")
        nxt = self.nw
        for i in range(16):
            while nxt < min(16, max(i, cfg["n0"]) + cfg["nw"]):
                self.ld_wkv(0, nxt, 5)
                nxt += 1
                if nxt == 16:
                    a(f"buffer_load_dword v34, v33, {s(sWS, 4)}, {s(sT2)} offen sc1", vm="f0")
            a.wait(vm=f"wkv{i}")
            self.put_wkv(0, i, i + 1)
            self.cs_kv_step(0, i, 40, 44)
        self.puts_left = []
        self.cs_kv_fin(0, 44, 50)
        self.ts("wkv0")
        a.wait(vm="f0")
        a(f"v_cmp_ne_u32 vcc, {s(sXCC)}, v34")
        a("s_branch L_global" if cfg["force_global"] else "s_cbranch_vccnz L_poll0")
        a.label("L_enter")
        with self.outofline():
            a.label("L_poll0")
            a(f"buffer_load_dword v34, v33, {s(sWS, 4)}, {s(sT2)} offen sc1")
            self.countdown()
            a("s_waitcnt vmcnt(0)")
            a(f"v_cmp_ne_u32 vcc, {s(sXCC)}, v34")
            a("s_cbranch_vccz L_enter")
            a(f"s_and_b32 {s(sT1)}, {s(sCNT)}, 15")
            a("s_cbranch_scc1 L_poll0")
            a(f"buffer_load_dword v34, {v(vPOLL)}, {s(sWS, 4)}, {s(sANN)} offen sc1")
            a("s_waitcnt vmcnt(0)")
            a(f"v_xor_b32 v34, {s(sXCC)}, v34")
            a(f"v_add_u32 v34, -1, v34")
            a(f"v_cmp_gt_u32 vcc, 15, v34")
            a("s_cbranch_vccz L_poll0")
            a.label("L_global")
            a(f"s_mov_b32 {s(sMODE)}, 1")
            a(f"s_add_u32 {s(sFXS)}, {s(sFXS)}, {FLAGX2 - FLAGX}")
            a(f"s_add_u32 {s(sFXP)}, {s(sFXP)}, {FLAGX2 - FLAGX}")
            a(f"s_mov_b32 {s(sTG)}, {s(sTAG)}")
            for r_ in (sSTST, sSTLD):
                a(f"s_add_u32 {s(r_)}, {s(r_)}, {STATS_G}")
            for st in self.x_steps(0, XR, AK, wt=True):
                st()
            a(f"v_mov_b32 v16, {s(sTG)}")
            self.flag(sFXS, 16)
            self.poll(vPOLL, sFXP, 34)
            a("s_branch L_enter")
        self.ts("poll0")

    def rowmajor_voff(self, d, t):
        a = self.a
        a(f"v_and_b32 {v(d)}, 0xf0, {v(vL16)}")
        a(f"v_lshlrev_b32 {v(d)}, 6, {v(d)}")
        a(f"v_bfe_u32 {v(t)}, {v(vL16)}, 8, 1")
        a(f"v_lshl_add_u32 {v(d)}, {v(t)}, 5, {v(d)}")
        a(f"v_lshrrev_b32 {v(t)}, 9, {v(vL16)}")
        a(f"v_lshl_add_u32 {v(d)}, {v(t)}, 4, {v(d)}")

    def final(self):
        a = self.a
        X = AK
        self.rowmajor_voff(PK, PK + 1)
        for i in range(8):
            a(f"v_cvt_pk_bf16_f32 {v(X + i)}, {v(XR + 2 * i)}, {v(XR + 2 * i + 1)}")
        for i in range(2):
            for d in range(2):
                a(f"v_permlane16_swap_b32 {v(X + 4 * i + d)}, {v(X + 4 * i + 2 + d)}")
        for i in range(2):
            a(f"buffer_store_dwordx4 {v(X + 4 * i, 4)}, {v(PK)}, {s(sOUT, 4)}, {s(sFIN)} offen offset:{64 * i}{self.cfg['finflag']}")
        with self.only_if(f"s_cmp_eq_u32 {s(sGW)}, 0"):
            a(f"s_add_u32 {s(sEP)}, {s(sEP)}, 1")
            a(f"v_mov_b32 v0, {s(sEP)}")
            a("s_mov_b64 exec, 1")
            a(f"buffer_store_dword v0, off, {s(sWS, 4)}, 0 sc1")
            a("s_mov_b64 exec, -1")
        if self.cfg["amp"]:
            amp = self.cfg["amp"]
            self.ts("end")
            a("s_sub_u32 s72, s78, s72")
            a(f"s_mul_i32 s72, s72, {amp[2]}")
            if amp[3]:
                a("s_lshr_b32 s72, s72, 5")
            a("s_min_u32 s72, s72, 100000")
            if self.cfg.get("amp_one") is not None:
                a(f"s_cmp_eq_u32 {s(sGW)}, {self.cfg['amp_one']}")
                a("s_cselect_b32 s72, s72, 0")
            a("s_memrealtime s[78:79]")
            a("s_waitcnt lgkmcnt(0)")
            a("s_mov_b32 s73, s78")
            a.label("L_amp")
            a("s_memrealtime s[78:79]")
            a("s_waitcnt lgkmcnt(0)")
            a("s_sub_u32 s78, s78, s73")
            a("s_cmp_lt_u32 s78, s72")
            a("s_cbranch_scc1 L_amp")
        if self.cfg["ts"]:
            a("s_waitcnt vmcnt(0)")
            self.ts("end")
            a("s_memrealtime s[72:73]")
            a("s_waitcnt lgkmcnt(0)")
            for k in range(len(self.cfg["fine"])):
                a(f"v_writelane_b32 {v(vTS)}, {s(80 + 2 * k)}, {48 + k}")
            a(f"v_writelane_b32 {v(vTS)}, {s(sLAY)}, 58")
            a(f"v_writelane_b32 {v(vTS)}, {s(sTSI)}, 59")
            a(f"v_writelane_b32 {v(vTS)}, {s(sCNT)}, 60")
            a(f"v_writelane_b32 {v(vTS)}, s78, 61")
            a(f"v_writelane_b32 {v(vTS)}, s72, 62")
            a(f"v_writelane_b32 {v(vTS)}, {s(sMODE)}, 63")
            a(f"s_lshl_b32 {s(sT0)}, {s(sGW)}, 8")
            a(f"s_add_u32 {s(sT0)}, {s(sT0)}, {DBG + 0x2000000}")
            a(f"v_lshrrev_b32 v0, 2, {v(vL16)}")
            a(f"buffer_store_dword {v(vTS)}, v0, {s(sWS, 4)}, {s(sT0)} offen")
        a.label("L_timeout")
        a.label("L_end")
        a("s_endpgm")

    def place(self):
        a = self.a
        if not self.cfg["pads"]:
            self.stat = a.layout(self.cfg["align"])
            return
        keep = list(a.ins)
        for k in range(12):
            a.ins.append(Ins(f"L_pad{k}:"))
        cnt = [0]

        def probe(k):
            cnt[0] += 1
            return f"L_tmp{cnt[0]}", "s_nop 0"
        a.layout(self.cfg["align"], probe)
        n = cnt[0]
        a.ins = keep + [Ins(f"L_pad{k}:") for k in range(12)]
        cnt[0] = 0

        def pad(_):
            k = cnt[0]
            cnt[0] += 1
            return f"L_pad{k}", f"s_cbranch_execz L_warmed{k // 4}"
        self.stat = a.layout(self.cfg["align"], pad)
        del a.ins[-12:]
        assert cnt[0] == n <= 12
        for k in range(n, 12):
            i = [x.label for x in a.ins].index(f"L_warmed{k // 4}")
            a.ins.insert(i, Ins(f"L_pad{k}:"))

    def build(self):
        a = self.a
        self.prologue()
        if self.cfg["pads"]:
            a("s_branch L_layer0")
            a(".p2align 12")
        for l in range(4):
            self.layer(l)
        self.final()
        hot = [k for k, x in enumerate(self.tail) if x.label and x.label.startswith("L_again")]
        blocks, rest_, k = [], [], 0
        while k < len(self.tail):
            e = k
            while self.tail[e].op != "s_branch":
                e += 1
            (blocks if k in hot else rest_).extend(self.tail[k:e + 1])
            k = e + 1
        blocks[1].pad_here = True
        a.raw(blocks + rest_)
        a.label("L_codeend")
        a("s_endpgm")
        nops = a.pad_hazards()
        self.place()
        head = open(f"cdna_kernels/{NAME}.s.ref").read().split("; Override launch")[0]
        out = head + f"; @launch grid=(256,1,1) block=(256,1,1) lds={LDS_SIZE}\n"
        out += f""".amdgcn_target "amdgcn-amd-amdhsa--gfx950"
.text
.globl {NAME}_kernel
.p2align 8
.type {NAME}_kernel,@function
{NAME}_kernel:
"""
        out += a.text()
        out += f""".section .rodata,"a"
.p2align 6
.amdhsa_kernel {NAME}_kernel
  .amdhsa_next_free_vgpr 512
  .amdhsa_next_free_sgpr 102
  .amdhsa_accum_offset 256
  .amdhsa_group_segment_fixed_size 0
  .amdhsa_kernarg_size 80
  .amdhsa_user_sgpr_count 2
  .amdhsa_user_sgpr_kernarg_segment_ptr 1
  .amdhsa_system_sgpr_workgroup_id_x 1
.end_amdhsa_kernel
"""
        self.nops = nops
        return out


if __name__ == "__main__":
    import ast
    kw = {}
    out = sys.argv[1]
    for x in sys.argv[2:]:
        k, val = x.split("=", 1)
        kw[k] = ast.literal_eval(val)
    g = Gen(**kw)
    txt = g.build()
    open(out, "w").write(txt)
    print(f"wrote {out}: {len(g.a.ins)} lines, {g.nops} pad states, layout {g.stat}", file=sys.stderr)
```

```python
import sys
import contextlib
from asmlib import Asm, Ins

NAME = "interleave_layers__linear_attn_block__linear_kernel_hedgehog__prompt"

CFG = dict(
    ts=0, rt=0,
    dump=None,
    amp=None,
    force_global=0, fine=(), pfine=(),
    n0=3, w_every=20, n1=10, warm_at=2, latepf=(0, ''), fin_lds=1, x0_lds=2, l2pf=0, l2div=1, slow0=1, f0_at=10, codepf=14, slowpf=1, align=99, pads=1, mallpf=1, x_wt=1, x_ann=1,
    hx='ffff', ho='ffff', touch=1,
    bg=((4, 6, 14, 8, 0, 0, 8), (4, 10, 10, 0, 0, 0, 0)),
    pl_step=(26, 24, 22, 20), pl_gap=(1, 1, 1, 2),
    nx0=8, nx1=4, xmix=1, otouch=0, oinit=(0, -1), nmode=1, no0=8,
    wo_every=(8, 10), qputs=(8, 8), qearly=0, pdepth=2,
    np=8, owin=(((6, 0), (2, 8), (0, 20)), ((0, 32), (4, 0), (4, 0))), ord=((0, 2, 1, 1), (2, 2, 2, 1)),
    xputs=(4, 12), spar=1, xprobe_at=5,
    finflag="", jit=0,
)

FLAGX, FLAGO, FLAGX2, ANN, HELLO = 0x1000, 0x3000, 0x7000, 0x9000, 0xA0000
STATS, STATS_G = [0x10000, 0x30000], 0x40000
XB = [0, 0x800000]
OB = [0x400000, 0x600000]
KVP = [0xC0000 + 0x90000 * l for l in range(4)]
DBG = 0x1000000
WS_SIZE = 0x8000000
L_P, L_WQ, L_STG = 0x0, [0x10000, 0x18000], 0x20000
L_KVF = 0x26000
KS = 592
L_WPF = L_KVF + 4 * KS
L_ZB = L_WPF + 2 * KS
L_CSP = L_ZB + 128
L_SEL = L_CSP + 3072
LDS_SIZE = 0x28000
XF, AK, AV, RG, LG, XR, PK = 0, 128, 144, 160, 192, 208, 224
vSTR, vSTR2, vPST, vZST, vKFW, vZW, vZR, vOST = range(184, 192)
vL16, vWRD, vSTW, vKFR, vS, vRS, vM, vXST, vSST, vSLD, vPOLL, vWOR, vWOW, vWKW, vCSR, vTS = range(240, 256)
A_WKV, A_WO = [0, 64], [128, 192]
sID = 2
sPX, sPWA, sPWOA, sPBX, sPWB, sPPHI, sPWOB, sPOUT, sPDBG, sPWS = range(4, 24, 2)
sWS, sOUT, sTMP = 24, 28, 32
XS = [sOUT, sWS]
(sW, sC, sR, sXLD, sSTLD, sFXP, sOST, sFOS, sOLD, sFOP, sXST, sSTST, sFXS, sKVT, sTAG, sMODE, sPASS,
 sEP, sXCC, sT0, sT1, sT2, sT3, sCNT, sWOFF, sQOFF, sOOFF, sHEL, sLN2, sLN2b, sDELTA, sFIN) = range(36, 68)
sHI = 68
sSAVE = 70
sTSA = 72
sTSI = 74
sGW = 75
sLAY = 76
sANN = 77
sW13 = 98
sSKIP = 3
sPF = 0
sTG = 1
sPM = 96
sSW, sSO = [80, 84], [88, 92]
vBW, vBO, vHL = RG + 20, RG + 21, RG + 22
vPR, vPB, vPA, vCK = PK + 10, PK + 11, PK + 7, PK + 6
sROW = sPM
sCOL = sPBX
assert sLN2 % 2 == 0

FINE = [4, 6, 8, 12, 14, 16, 18, 20, 22, 32]
LOG2E = 0x3FB8AA3B
LN2 = 0x3F317218
DELTA = 0x35C1A4C3
import struct
def f2u(x): return struct.unpack("<I", struct.pack("<f", x))[0]
DELTA = f2u(1e-6 * 1.4426950408889634)


def v(a, n=1): return f"v{a}" if n == 1 else f"v[{a}:{a + n - 1}]"
def ar(a, n=1): return f"a{a}" if n == 1 else f"a[{a}:{a + n - 1}]"
def s(a, n=1): return f"s{a}" if n == 1 else f"s[{a}:{a + n - 1}]"


class Gen:
    def __init__(self, **kw):
        self.cfg = dict(CFG)
        self.cfg.update(kw)
        self.a = Asm()
        self.tail = []
        self.nts = 0
        self.tsnames = []
        self.side = []
        self.side_every = 1
        self.pad_back = {}
        self.xb, self.ob = [0], [0]
        assert self.cfg["hx"][0] == "f" and self.cfg["ho"][0] == "f"
        for l in range(1, 4):
            self.xb.append(self.xb[-1] ^ (self.cfg["hx"][l] == "s"))
            self.ob.append(self.ob[-1] ^ (self.cfg["ho"][l] == "s"))

    @contextlib.contextmanager
    def uncounted(self):
        a = self.a
        vm, lg = list(a.vm), list(a.lg)
        yield
        a.vm, a.lg = vm, lg

    @contextlib.contextmanager
    def only_if(self, cmp):
        a = self.a
        l = a.newlabel("skip")
        a(cmp)
        a(f"s_cbranch_scc0 {l}")
        with self.uncounted():
            yield
        a.label(l)

    @contextlib.contextmanager
    def outofline(self):
        a = self.a
        n0 = len(a.ins)
        with self.uncounted():
            yield
        self.tail += a.ins[n0:]
        del a.ins[n0:]

    def code_pf(self, lo, hi, t):
        a = self.a
        n = f"(({hi}-{lo})/1024+1)"
        a(f"s_bfe_u32 {s(sT0)}, {s(sID)}, {3 | (3 << 16)}")
        a(f"s_mul_i32 {s(sT0)}, {s(sT0)}, {n}*128")
        a(f"s_add_u32 {s(sT0)}, {s(sT0)}, {lo}-L_pc")
        a(f"v_lshlrev_b32 {v(t)}, 3, {v(vL16)}")
        a(f"v_min_u32 {v(t)}, ({n}-1)*128, {v(t)}")
        a(f"v_add_u32 {v(t)}, {s(sT0)}, {v(t)}")
        a(f"v_min_u32 {v(t)}, L_codeend-L_pc, {v(t)}")
        a(f"global_load_dword {v(t)}, {v(t)}, {s(sSAVE, 2)}")

    def warm(self, g):
        a = self.a
        if not self.cfg["pads"]:
            return
        a("s_mov_b64 exec, 0")
        for k in range(3):
            a(f"s_cmp_eq_u32 {s(sW)}, {k}")
            a(f"s_cbranch_scc1 L_pad{4 * g + k}")
        a(f"s_branch L_pad{4 * g + 3}")
        a.label(f"L_warmed{g}")
        a("s_mov_b64 exec, -1")
        for k in range(4):
            self.pad_back[4 * g + k] = f"L_warmed{g}"

    @contextlib.contextmanager
    def waves01(self, pads):
        a = self.a
        if not self.cfg["pads"]:
            with self.only_if(f"s_cmp_lt_u32 {s(sW)}, 2"):
                yield
                a("s_mov_b64 exec, -1")
            return
        st, back = a.newlabel("stub"), a.newlabel("back")
        a(f"s_cmp_lt_u32 {s(sW)}, 2")
        a(f"s_cbranch_scc0 {st}")
        with self.uncounted():
            yield
        a.label(back)
        a("s_mov_b64 exec, -1")
        i = a.ins.index(self.nook)
        a.ins[i:i] = [Ins(x) for x in (f"{st}:", "s_mov_b64 exec, 0", f"s_cmp_eq_u32 {s(sW)}, 2", f"s_cbranch_scc1 L_pad{pads[0]}", f"s_branch L_pad{pads[1]}")]
        for x in a.ins[i:i + 5] + a.ins[-1:]:
            x.nopad = True
        for k in pads:
            self.pad_back[k] = back

    def countdown(self):
        self.a(f"s_sub_u32 {s(sCNT)}, {s(sCNT)}, 1")
        self.a("s_cbranch_scc1 L_timeout")

    def bg_region(self, n, slots):
        n = min(n, len(self.bg))
        self.bg_slot = 0
        self.bg_at = [(k * slots) // n for k in range(n)]

    def bg_tick(self):
        for _ in range(self.bg_at.count(self.bg_slot)):
            self.bg.pop(0)()
        self.bg_slot += 1

    def bg_now(self, n):
        for _ in range(min(n, len(self.bg))):
            self.bg.pop(0)()

    def ticker(self):
        def e(text, **kw):
            if self.side and self.bg_slot % self.side_every == 0:
                self.side.pop(0)()
            self.bg_tick()
            self.a(text, **kw)
        return e

    def moded(self, lines, tag=None, reg=sMODE, wt=False, cmp=True):
        a = self.a
        if wt:
            for l in lines:
                a(l + (" sc1" if l.startswith("buffer_store") else ""), vm=tag)
            return
        lg, lj = a.newlabel("glob"), a.newlabel("join")
        if cmp:
            a(f"s_cmp_eq_u32 {s(reg)}, 0")
        a(f"s_cbranch_scc0 {lg}")
        for l in lines:
            a(l, vm=tag)
        a.label(lj)
        t = [Ins(lg + ":")] + [Ins(l + (" sc1" if l.startswith("buffer_store") else "")) for l in lines] + [Ins(f"s_branch {lj}")]
        self.tail += t

    def srd_tmp(self, ptr, size):
        a = self.a
        a(f"s_mov_b32 {s(sTMP)}, {s(ptr)}")
        a(f"s_mov_b32 {s(sTMP + 1)}, {s(ptr + 1)}")
        a(f"s_mov_b32 {s(sTMP + 2)}, {size}")

    def ts(self, name):
        a = self.a
        self.fine(name)
        amp = self.cfg["amp"]
        if amp:
            for k in range(2):
                if amp[k] == name:
                    a(f"{'s_memtime' if amp[3] else 's_memrealtime'} {s(72 + 6 * k, 2)}")
                    if name != "start":
                        a("s_waitcnt lgkmcnt(0)")
        if not self.cfg["ts"] or name == "start":
            return
        if self.cfg["ts"] == 1 and name.startswith("p_"):
            return
        if self.cfg["ts"] == 4 and name not in ("kernarg", "end"):
            return
        if self.cfg["ts"] == 3 and name not in ("x0", "flag0", "poll0", "end") and name[2:] not in ("kvgemm", "ogemm"):
            return
        if self.cfg["ts"] == 2 and ":" in name and name[2:] not in ("kvgemm", "bar3", "ogemm"):
            return
        a(f"{'s_memrealtime' if self.cfg['rt'] else 's_memtime'} {s(sTSA, 2)}")
        a("s_waitcnt lgkmcnt(0)")
        a.lg.clear()
        a(f"v_writelane_b32 {v(vTS)}, {s(sTSA)}, {len(self.tsnames)}")
        self.tsnames.append(name)
        assert len(self.tsnames) <= 56

    def fine(self, name):
        if name in self.cfg["pfine"]:
            self.a(f"s_memtime {s(84 + 2 * list(self.cfg['pfine']).index(name), 2)}")
        if name in self.cfg["fine"]:
            self.a(f"s_memtime {s(FINE[list(self.cfg['fine']).index(name)], 2)}")

    def dump(self, point, l, regs, tmp):
        if self.cfg["dump"] != (point, l):
            return
        a = self.a
        with self.uncounted():
            a("s_waitcnt vmcnt(0) lgkmcnt(0)")
            a("s_nop 15")
            a(f"v_lshrrev_b32 {v(tmp)}, 2, {v(vL16)}")
            a(f"s_mul_i32 {s(sT0)}, {s(sGW)}, {64 * 256}")
            a(f"s_add_u32 {s(sT0)}, {s(sT0)}, {DBG}")
            for i, r in enumerate(regs):
                a(f"buffer_store_dword {v(r)}, {v(tmp)}, {s(sWS, 4)}, {s(sT0)} offen")
                a(f"s_add_u32 {s(sT0)}, {s(sT0)}, 256")
            a("s_waitcnt vmcnt(0)")

    def poll(self, voff, soff, tmp, tag=sTG):
        a = self.a
        l = a.newlabel("poll")
        a.label(l)
        a(f"buffer_load_dword {v(tmp)}, {v(voff)}, {s(sWS, 4)}, {s(soff)} offen sc1")
        self.countdown()
        a.wait(vm=0)
        a(f"v_cmp_ne_u32 vcc, {s(tag)}, {v(tmp)}")
        a(f"s_cbranch_vccnz {l}")

    def flag(self, soff, tmp, after=0):
        a = self.a
        a("s_mov_b64 exec, 1")
        self.moded(a.wait_text(vm=after) + [f"buffer_store_dword {v(tmp)}, off, {s(sWS, 4)}, {s(soff)}"])
        a("s_mov_b64 exec, -1")

    def w_voff(self, t):
        a = self.a
        a(f"v_lshrrev_b32 {v(t)}, 6, {v(vL16)}")
        a(f"v_mul_u32_u24 {v(t)}, {3072 - 64}, {v(t)}")
        a(f"v_add_u32 {v(t)}, {v(t)}, {v(vL16)}")

    def ld_wkv(self, T, i, t, st=sT0):
        a = self.a
        a(f"s_add_u32 {s(st)}, {s(sWOFF)}, {i * 32 * 3072}")
        a(f"buffer_load_dwordx4 {ar(A_WKV[T] + 4 * i, 4)}, {v(t)}, {s(sSW[T], 4)}, {s(st)} offen", vm=f"wkv{i}")

    def ld_wq(self, T, i):
        a = self.a
        a(f"s_add_u32 m0, {s(sW13)}, {L_WQ[T] + i * 1024}")
        a(f"s_add_u32 {s(sT0)}, {s(sQOFF)}, {i * 16 * 3072}")
        a(f"buffer_load_dwordx4 {v(self.bw)}, {s(sSW[T], 4)}, {s(sT0)} offen lds", vm="wq")

    def ld_wo(self, T, i):
        a = self.a
        a(f"s_add_u32 {s(sT0)}, {s(sOOFF)}, {i * 32 * 1024}")
        a(f"buffer_load_dwordx4 {ar(A_WO[T] + 4 * i, 4)}, {v(vBO)}, {s(sSO[T], 4)}, {s(sT0)} offen", vm=f"wo{i}")

    def slow_pf(self, srd, n, t):
        a = self.a
        if not self.cfg["slowpf"]:
            return
        a(f"s_sub_u32 {s(sT0)}, 0x180, {s(srd)}")
        a(f"s_and_b32 {s(sT0)}, {s(sT0)}, 0x380")
        a(f"s_mul_i32 {s(sT1)}, {s(sPF)}, {n * 1024}")
        a(f"s_add_u32 {s(sT0)}, {s(sT0)}, {s(sT1)}")
        a(f"v_lshlrev_b32 {v(t)}, 6, {v(vL16)}")
        a(f"s_mov_b64 exec, {(1 << n) - 1:#x}")
        a(f"buffer_load_dword {v(t)}, {v(t)}, {s(srd, 4)}, {s(sT0)} offen")
        a("s_mov_b64 exec, -1")

    def chip_pf(self, srd, n, t):
        a = self.a
        a(f"s_lshl2_add_u32 {s(sT0)}, {s(sID)}, {s(sW)}")
        a(f"s_mul_i32 {s(sT0)}, {s(sT0)}, {n * 128}")
        a(f"v_lshlrev_b32 {v(t)}, 3, {v(vL16)}")
        a(f"s_mov_b64 exec, {(1 << n) - 1:#x}")
        a(f"buffer_load_dword a255, {v(t)}, {s(srd, 4)}, {s(sT0)} offen")
        a("s_mov_b64 exec, -1")

    def bg_setup(self, T):
        self.bg = [(lambda i=i: self.ld_wq(T, i)) for i in range(8)] + [(lambda i=i: self.ld_wo(T, i)) for i in range(16)]
        if T == 0:
            self.bg += [(lambda i=i: self.ld_wkv(1, i, vBW)) for i in range(16)]
            at, which = self.cfg["latepf"]
            old = self.bg[at]

            def both():
                t = RG + 23 if self.bw == vBW else PK + 8
                for c_ in which:
                    self.chip_pf(*{"a": (sSW[0], 12), "b": (sSW[1], 12), "A": (sSO[0], 4), "B": (sSO[1], 4)}[c_], t)
                old()
            self.bg[at] = both

    def put_wkv(self, T, lo, hi, waits=False):
        for i in range(lo, hi):
            if waits:
                self.a.wait(vm=f"wkv{i}")
            self.a(f"ds_write_b128 {v(vWKW)}, {ar(A_WKV[T] + 4 * i, 4)} offset:{i * 2048}", lg="put")

    def put_wo(self, T, i):
        self.a(f"ds_write_b128 {v(vWOW)}, {ar(A_WO[T] + 4 * i, 4)} offset:{i * 1024}", lg="putwo")

    @staticmethod
    def woff(j, u):
        return (j >> 2) * 4096 + u * 1024 + (j & 3) * 256

    def cs_kv_step(self, T, i, sel, d):
        self.a(f"v_mfma_f32_16x16x32_bf16 {v(d, 4)}, {v(sel, 4)}, {ar(A_WKV[T] + 4 * i, 4)}, {v(d, 4) if i else 0}")

    def cs_q_fin(self, T, d, t):
        o = [f"s_lshl_b32 {s(sT2)}, {s(sW)}, 2\ns_add_u32 {s(sT2)}, {s(sT2)}, {L_CSP + T * 1536 + 1024}",
             f"v_lshrrev_b32 {v(t)}, 9, {v(vL16)}\nv_lshl_add_u32 {v(t)}, {v(t)}, 5, {s(sT2)}"]
        for bit, sh in ((4, 8), (8, 7), (5, 6)):
            o.append(f"v_bfe_u32 {v(t + 1)}, {v(vL16)}, {bit}, 1\nv_lshl_add_u32 {v(t)}, {v(t + 1)}, {sh}, {v(t)}")
        f = [f"v_permlane32_swap_b32 {v(d)}, {v(d + 2)}", f"v_permlane32_swap_b32 {v(d + 1)}, {v(d + 3)}",
             f"v_add_f32 {v(d)}, {v(d)}, {v(d + 2)}\nv_add_f32 {v(d + 1)}, {v(d + 1)}, {v(d + 3)}"]
        for ror in (4, 8):
            f.append(f"v_add_f32 {v(d)}, {v(d)}, {v(d)} row_ror:{ror}\nv_add_f32 {v(d + 1)}, {v(d + 1)}, {v(d + 1)} row_ror:{ror}")
        f.append(lambda: self.a(f"ds_write2_b32 {v(t)}, {v(d)}, {v(d + 1)} offset0:0 offset1:4", lg="csw"))
        return o, f

    def cs_kv_fin(self, T, d, t):
        a = self.a
        a(f"s_and_b32 {s(sT0)}, {s(sW)}, 1")
        a(f"s_lshl_b32 {s(sT0)}, {s(sT0)}, 9")
        a(f"s_and_b32 {s(sT1)}, {s(sW)}, 2")
        a(f"s_lshl_b32 {s(sT1)}, {s(sT1)}, 2")
        a(f"s_add_u32 {s(sT0)}, {s(sT0)}, {s(sT1)}")
        a(f"s_add_u32 {s(sT0)}, {s(sT0)}, {L_CSP + T * 1536}")
        a(f"v_lshrrev_b32 {v(t)}, 9, {v(vL16)}")
        a(f"v_lshl_add_u32 {v(t)}, {v(t)}, 2, {s(sT0)}")
        a(f"v_bfe_u32 {v(t + 1)}, {v(vL16)}, 4, 1")
        a(f"v_lshl_add_u32 {v(t)}, {v(t + 1)}, 8, {v(t)}")
        a(f"v_bfe_u32 {v(t + 1)}, {v(vL16)}, 8, 1")
        a(f"v_lshl_add_u32 {v(t)}, {v(t + 1)}, 7, {v(t)}")
        a(f"v_bfe_u32 {v(t + 1)}, {v(vL16)}, 5, 1")
        a(f"v_lshl_add_u32 {v(t)}, {v(t + 1)}, 6, {v(t)}")
        for ror in (4, 8):
            for i in range(4):
                a(f"v_add_f32 {v(d + i)}, {v(d + i)}, {v(d + i)} row_ror:{ror}")
        a(f"ds_write2_b32 {v(t)}, {v(d)}, {v(d + 1)} offset0:0 offset1:4")
        a(f"ds_write2_b32 {v(t)}, {v(d + 2)}, {v(d + 3)} offset0:8 offset1:12")

    def mark_slot(self, delta, ones):
        a = self.a
        a(f"s_add_u32 {s(sT2)}, {s(sKVT)}, {delta}")
        a(f"s_mov_b64 exec, {s(sROW, 2)}")
        a(f"buffer_store_dwordx4 {v(ones, 4)}, {v(vPST)}, {s(sWS, 4)}, {s(sT2)} offen sc1", vm="mark")
        a(f"s_mov_b64 exec, {s(sCOL, 2)}")
        a(f"buffer_store_dwordx4 {v(ones, 4)}, {v(vZST)}, {s(sWS, 4)}, {s(sT2)} offen sc1", vm="mark")
        a("s_mov_b64 exec, -1")

    def sel_read(self, sel):
        a = self.a
        a(f"v_and_b32 {v(sel)}, 0x1f0, {v(vL16)}")
        a(f"v_add_u32 {v(sel)}, {L_SEL:#x}, {v(sel)}")
        a(f"ds_read_b128 {v(sel, 4)}, {v(sel)}", lg="sel")

    @staticmethod
    def cs_pack(src, dst):
        return [
            f"v_add_f32 {v(src)}, {v(src)}, {v(src + 2)}",
            f"v_add_f32 {v(src + 1)}, {v(src + 1)}, {v(src + 3)}",
            f"v_add_f32 {v(src)}, {v(src)}, {v(src + 1)}",
            f"v_cvt_pk_bf16_f32 {v(src + 1)}, {v(src)}, {v(src)}",
            f"v_and_b32 {v(src + 1)}, 0xffff0000, {v(src + 1)}",
            f"v_sub_f32 {v(src)}, {v(src)}, {v(src + 1)}",
            f"v_cvt_pk_bf16_f32 {v(dst)}, {v(src + 1)}, {v(src)}",
        ]

    def x_steps(self, B, src, X, wt=False, par=0):
        a = self.a
        t = X + 8
        st = []
        E = lambda txt: st.append(lambda: a(txt))
        xl = []
        for h in range(2):
            xl += [f"v_cvt_pk_bf16_f32 {v(X + i)}, {v(src + 2 * i)}, {v(src + 2 * i + 1)}" for i in range(4 * h, 4 * h + 4)]
            xl += [f"buffer_store_dwordx4 {v(X + 4 * h, 4)}, {v(vXST)}, {s(XS[B], 4)}, {s(sXST)} offen offset:{h * 512}"]
        st.append(lambda: self.moded(xl, tag="xst", wt=wt))
        E(f"v_pk_add_f32 {v(t, 2)}, {v(src, 2)}, {v(src + 2, 2)}")
        E(f"v_pk_mul_f32 {v(t + 2, 2)}, {v(src, 2)}, {v(src, 2)}")
        E(f"v_pk_fma_f32 {v(t + 2, 2)}, {v(src + 2, 2)}, {v(src + 2, 2)}, {v(t + 2, 2)}")
        for i in range(2, 8):
            E(f"v_pk_add_f32 {v(t, 2)}, {v(t, 2)}, {v(src + 2 * i, 2)}")
            E(f"v_pk_fma_f32 {v(t + 2, 2)}, {v(src + 2 * i, 2)}, {v(src + 2 * i, 2)}, {v(t + 2, 2)}")
        E(f"v_add_f32 {v(t)}, {v(t)}, {v(t + 1)}")
        E(f"v_add_f32 {v(t + 2)}, {v(t + 2)}, {v(t + 3)}")
        E(f"v_permlane32_swap_b32 {v(t)}, {v(t + 2)}")
        E(f"v_add_f32 {v(t)}, {v(t)}, {v(t + 2)}")
        E(f"v_mov_b32 {v(t + 1)}, {v(t)}")

        def stat():
            self.moded([f"v_permlane16_swap_b32 {v(t)}, {v(t + 1)}", f"s_mov_b64 exec, {s(sROW, 2)}", f"v_add_f32 {v(t)}, {v(t)}, {v(t + 1)}",
                        f"v_or_b32 {v(t)}, 1, {v(t)}" if par else f"v_and_b32 {v(t)}, -2, {v(t)}",
                        f"buffer_store_dword {v(t)}, {v(vSST)}, {s(sWS, 4)}, {s(sSTST)} offen"], tag="sst")
            a("s_mov_b64 exec, -1")
        st.append(stat)
        return st

    def ldx(self, B, j):
        a = self.a
        if j % 4 == 0 and j:
            a(f"s_add_u32 {s(sT3)}, {s(sXLD)}, {XB[B] + j * 1024}")
        a(f"buffer_load_dwordx4 {v(XF + 4 * j, 4)}, {v(vL16)}, {s(XS[B], 4)}, {s(sT3 if j >= 4 else sXLD)} offen offset:{(j % 4) * 1024} sc1", vm=f"x{j}")

    def probe(self, what, reg, setexec=True):
        a = self.a
        voff, srd, soff, off, _ = what
        if setexec:
            a("s_mov_b64 exec, 0xffff")
        a(f"buffer_load_dword {v(reg)}, {v(voff)}, {s(srd, 4)}, {s(soff)} offen offset:{off} sc1", vm="probe")
        if setexec:
            a("s_mov_b64 exec, -1")

    def spin_more(self, what, name):
        a = self.a
        a(f"s_branch L_over{name}")
        a.label(f"L_more{name}")
        with self.uncounted():
            self.probe(what, vPR, False)
            self.countdown()
            a("s_waitcnt vmcnt(1)")
            a(f"{what[4]}, {v(vPB)}")
            a(f"s_cbranch_vccz L_go{name}")
            a(f"s_branch L_spin{name}")
        a.label(f"L_over{name}")
        self.nook = a.ins[-1]

    def spin(self, what, name):
        a = self.a
        a("s_mov_b64 exec, 0xffff")
        a.label(f"L_spin{name}")
        self.probe(what, vPB, False)
        a("s_waitcnt vmcnt(1)")
        a(f"{what[4]}, {v(vPR)}")
        a(f"s_cbranch_vccnz L_more{name}")
        a.label(f"L_go{name}")
        a("s_mov_b64 exec, -1")
        a.vm.clear()

    def what_x(self, l):
        if self.cfg["hx"][l] == "s":
            return (vPA, XS[self.xb[l]], sT3, 3824, "v_cmp_eq_u32 vcc, -1")
        return (vPOLL, sWS, sFXP, 0, f"v_cmp_ne_u32 vcc, {s(sTG)}")

    def what_o(self, l):
        if self.cfg["ho"][l] == "s":
            return (vPA, sWS, sT3, 1008, "v_cmp_eq_u32 vcc, -1")
        return (vPOLL, sWS, sFOP, 0, f"v_cmp_ne_u32 vcc, {s(sTG)}")

    def x_probe_addr(self):
        return [f"v_and_b32 {v(vPR)}, 4, {v(vPOLL)}",
                f"v_mul_u32_u24 {v(vPR)}, 448, {v(vPR)}",
                f"v_lshlrev_b32 {v(vPA)}, 9, {v(vPOLL)}",
                f"v_sub_u32 {v(vPA)}, {v(vPA)}, {v(vPR)}"]

    def phi_a(self, acc, tmp, after=None):
        a = self.ticker()
        for i in range(8):
            a(f"v_pk_mul_f32 {v(acc + 2 * i, 2)}, {v(acc + 2 * i, 2)}, {v(vS, 2)} op_sel_hi:[1,0]")
        for i in range(16):
            a(f"v_exp_f32_e64 {v(tmp + i)}, {v(acc + i)} clamp")
            a(f"v_max_f32 {v(acc + i)}, {s(sDELTA)}, {v(acc + i)}")
        for h in range(2):
            for i in range(4 * h, 4 * h + 4):
                a(f"v_pk_fma_f32 {v(acc + 2 * i, 2)}, {v(acc + 2 * i, 2)}, {s(sLN2, 2)}, {v(tmp + 2 * i, 2)}")
            for i in range(4 * h, 4 * h + 4):
                a(f"v_cvt_pk_bf16_f32 {v(PK + i)}, {v(acc + 2 * i)}, {v(acc + 2 * i + 1)}")
            if after:
                after(h)

    def logits(self, between=None):
        a = self.a
        a.wait(lg="wp")
        for i in range(6):
            a(f"v_cvt_pk_bf16_f32 {v(PK + i)}, {v(AK + 2 * i)}, {v(AK + 2 * i + 1)}")
        a(f"v_mfma_f32_32x32x16_bf16 {v(LG, 16)}, {v(PK + 8, 4)}, {v(PK, 4)}, 0")
        for i in range(6, 8):
            a(f"v_cvt_pk_bf16_f32 {v(PK + i)}, {v(AK + 2 * i)}, {v(AK + 2 * i + 1)}")
        if between:
            between()
        a(f"v_mfma_f32_32x32x16_bf16 {v(LG, 16)}, {v(PK + 12, 4)}, {v(PK + 4, 4)}, {v(LG, 16)}")

    def softmax2(self, t, isq, after=None):
        a = self.ticker()
        a(f"v_max3_f32 {v(t)}, {v(LG)}, {v(LG + 1)}, {v(LG + 2)}")
        a(f"v_min3_f32 {v(t + 1)}, {v(LG)}, {v(LG + 1)}, {v(LG + 2)}")
        for i in range(3, 15, 2):
            a(f"v_max3_f32 {v(t)}, {v(t)}, {v(LG + i)}, {v(LG + i + 1)}")
            a(f"v_min3_f32 {v(t + 1)}, {v(t + 1)}, {v(LG + i)}, {v(LG + i + 1)}")
        a(f"v_max_f32 {v(t)}, {v(t)}, {v(LG + 15)}")
        a(f"v_min_f32 {v(t + 1)}, {v(t + 1)}, {v(LG + 15)}")
        a(f"v_pk_mul_f32 {v(t, 2)}, {v(t, 2)}, {v(vS, 2)} op_sel_hi:[1,0]")
        for sg, E in ((0, AK), (1, LG)):
            for i in range(8):
                if sg == 0:
                    a(f"v_pk_fma_f32 {v(E + 2 * i, 2)}, {v(LG + 2 * i, 2)}, {v(vS, 2)}, {v(t, 2)} op_sel_hi:[1,0,0] neg_lo:[0,0,1] neg_hi:[0,0,1]")
                else:
                    a(f"v_pk_fma_f32 {v(E + 2 * i, 2)}, {v(LG + 2 * i, 2)}, {v(vS, 2)}, {v(t, 2)} op_sel:[0,0,1] op_sel_hi:[1,0,1] neg_lo:[1,0,0] neg_hi:[1,0,0]")
            for i in range(16):
                a(f"v_exp_f32 {v(E + i)}, {v(E + i)}")
            S = t + 2 + 2 * sg
            a(f"v_pk_add_f32 {v(S, 2)}, {v(E, 2)}, {v(E + 2, 2)}")
            for i in range(2, 8):
                a(f"v_pk_add_f32 {v(S, 2)}, {v(S, 2)}, {v(E + 2 * i, 2)}")
            a(f"v_add_f32 {v(S)}, {v(S)}, {v(S + 1)}")
            if not (isq and sg == 0):
                a(f"v_rcp_f32 {v(S)}, {v(S)}")
                if isq:
                    a(f"v_mul_f32 {v(t + 6)}, {f2u(1e-6):#x}, {v(t + 2)}")
                    a(f"v_mul_f32 {v(S)}, {v(S)}, {v(t + 2)}")
            for h in range(2):
                for i in range(4 * h, 4 * h + 4):
                    if not (isq and sg == 0):
                        a(f"v_pk_mul_f32 {v(E + 2 * i, 2)}, {v(E + 2 * i, 2)}, {v(S, 2)} op_sel_hi:[1,0]")
                for i in range(4 * h, 4 * h + 4):
                    a(f"v_cvt_pk_bf16_f32 {v(PK + 8 * sg + i)}, {v(E + 2 * i)}, {v(E + 2 * i + 1)}")
                if after:
                    after(2 * sg + h)

    def layer(self, l):
        a, cfg = self.a, self.cfg
        T, first, last = l & 1, l < 2, l == 3
        NJ = 2 if T == 0 else 4
        skip23 = (lambda: self.only_if(f"s_cmp_lt_u32 {s(sW)}, 2")) if T == 0 else contextlib.nullcontext
        bgn = cfg["bg"][l] if first else (0,) * 7
        self.bg = []
        if first:
            self.bg_setup(T)
            assert sum(bgn) >= len(self.bg) and bgn[0] + bgn[1] >= 8 and sum(bgn[:3]) >= 8 + cfg['np'] and sum(bgn[:5]) >= 24 and bgn[0] <= 8 and bgn[6] <= 8
        NX = cfg["nx0"]
        wx = (vPOLL, sWS, sFXP, 0, f"v_cmp_ne_u32 vcc, {s(sTG)}")
        wo_ = (vPOLL, sWS, sFOP, 0, f"v_cmp_ne_u32 vcc, {s(sTG)}")
        a.label(f"L_layer{l}")
        if l:
            self.spin(wx, f"x{l}")
        a.vm.clear()
        self.ts(f"{l}:xpoll")
        ST = LG
        CS = LG + 8
        CSA, MB = PK, PK + 2
        D = 3

        def rd(j, p):
            for u in range(2):
                a(f"ds_read_b64_tr_b16 {v(RG + (j % D) * 8 + 4 * p + 2 * u, 2)}, {v(vWRD)} offset:{p * 32768 + self.woff(j, u)}", lg=f"w{j}")

        def ldx(j):
            self.ldx(0, j)
            if j == max(NX, 9):
                a(f"buffer_load_dwordx4 {v(ST, 4)}, {v(vSLD)}, {s(sWS, 4)}, {s(sSTLD)} offen sc1", vm="st")
            if j == max(NX, 9) + 2:
                a(f"buffer_load_dwordx4 {v(ST + 4, 4)}, {v(vSLD)}, {s(sWS, 4)}, {s(sSTLD)} offen offset:512 sc1", vm="st")
        nx1 = cfg["nx1"]
        for j in range(nx1):
            ldx(j)
        for i in self.puts_left:
            self.put_wkv(T, i, i + 1)
            if nx1 < NX and cfg["xmix"]:
                ldx(nx1)
                nx1 += 1
        a.wait(lg=0)
        a("s_barrier")
        self.ts(f"{l}:bar1")
        pre = [(j, p) for j in range(D) for p in range(2)]
        for j in range(nx1, NX):
            for _ in range(2):
                if pre:
                    rd(*pre.pop(0))
            ldx(j)
        while pre:
            rd(*pre.pop(0))
        a(f"ds_read_b128 {v(CS, 4)}, {v(vCSR)} offset:{T * 1536}", lg="cs")
        a(f"ds_read_b128 {v(CS + 4, 4)}, {v(vCSR)} offset:{T * 1536 + 512}", lg="cs")
        t, u_ = ST, ST + 1
        stat = []
        if l and cfg["spar"]:
            CK = PK + 6
            op = "0x80" if T else "0xfe"
            stat = [f"L_sums{l}:\nv_bitop3_b32 {v(CK)}, {v(ST)}, {v(ST + 1)}, {v(ST + 2)} bitop3:{op}",
                    f"v_bitop3_b32 {v(CK)}, {v(CK)}, {v(ST + 3)}, {v(ST + 4)} bitop3:{op}\n"
                    f"v_bitop3_b32 {v(CK)}, {v(CK)}, {v(ST + 5)}, {v(ST + 6)} bitop3:{op}\n"
                    f"v_bitop3_b32 {v(CK)}, {v(CK)}, {v(ST + 7)}, 1 bitop3:{'0x80' if T else '0xa8'}\n"
                    f"v_cmp_ne_u32 vcc, {T}, {v(CK)}\n"
                    f"s_cbranch_vccnz L_sumsre{l}"]
            stat = [None, stat[0] + "\n" + stat[1]]
            with self.outofline():
                a.label(f"L_sumsre{l}")
                self.countdown()
                for i in range(2):
                    a(f"buffer_load_dwordx4 {v(ST + 4 * i, 4)}, {v(vSLD)}, {s(sWS, 4)}, {s(sSTLD)} offen offset:{512 * i} sc1")
                a("s_waitcnt vmcnt(0)")
                a(f"s_branch L_sums{l}")
        stat += [
            f"v_add_f32 {v(ST)}, {v(ST)}, {v(ST + 2)}",
            f"v_add_f32 {v(ST + 1)}, {v(ST + 1)}, {v(ST + 3)}",
            f"v_add_f32 {v(ST + 4)}, {v(ST + 4)}, {v(ST + 6)}",
            f"v_add_f32 {v(ST + 5)}, {v(ST + 5)}, {v(ST + 7)}",
            f"v_add_f32 {v(ST)}, {v(ST)}, {v(ST + 4)}",
            f"v_add_f32 {v(ST + 1)}, {v(ST + 1)}, {v(ST + 5)}",
            f"v_add_f32 {v(t)}, {v(ST)}, {v(ST + 1)}",
            f"v_mul_f32 {v(t)}, {f2u(1 / 512):#x}, {v(t)}",
            f"v_mov_b32 {v(u_)}, {v(t)}",
            f"v_permlane32_swap_b32 {v(t)}, {v(u_)}",
            f"v_fma_f32 {v(u_)}, -{v(t)}, {v(t)}, {v(u_)}",
            f"v_max_f32 {v(u_)}, 0, {v(u_)}",
            f"v_cvt_pk_bf16_f32 {v(vM)}, -{v(t)}, -{v(t)}",
            f"v_cvt_pk_bf16_f32 {v(u_)}, {v(u_)}, {v(u_)}",
            f"v_and_b32 {v(u_)}, 0xffff0000, {v(u_)}",
            f"v_add_f32 {v(u_)}, {f2u(1e-5):#x}, {v(u_)}",
            f"v_cvt_pk_bf16_f32 {v(u_)}, {v(u_)}, {v(u_)}",
            f"v_and_b32 {v(u_)}, 0xffff0000, {v(u_)}",
            f"v_sqrt_f32 {v(u_)}, {v(u_)}",
            f"v_cndmask_b32 {v(vM)}, {v(vM)}, 0, {s(sHI, 2)}",
            f"v_cvt_pk_bf16_f32 {v(u_)}, {v(u_)}, {v(u_)}",
            f"v_and_b32 {v(u_)}, 0xffff0000, {v(u_)}",
            f"v_rcp_f32 {v(vRS)}, {v(u_)}",
            f"v_mov_b32 {v(MB)}, {v(vM)}",
            f"v_mul_f32 {v(vS)}, {LOG2E:#x}, {v(vRS)}",
            f"v_mov_b32 {v(MB + 3)}, {v(vM)}",
        ]
        js = max(NX, 9) + 3
        fill = [f"v_mov_b32 {v(MB + 1)}, 0", f"v_mov_b32 {v(MB + 2)}, 0"]
        if l == 0:
            fill += [f"v_mov_b32 {v(PK + 12 + i)}, -1" for i in range(4)]
        fill += [None] * (2 * D - len(fill)) + self.cs_pack(CS, CSA) + self.cs_pack(CS + 4, CSA + 1)
        self.bw = CS + 2
        if first:
            fill += [f"v_lshrrev_b32 {v(self.bw)}, 6, {v(vL16)}", f"v_mul_u32_u24 {v(self.bw)}, {3072 - 64}, {v(self.bw)}",
                     f"v_add_u32 {v(self.bw)}, {v(self.bw)}, {v(vL16)}"]
        fill += [None] * (2 * js - len(fill)) + stat
        jc = (len(fill) + 1) // 2 + 1
        assert jc <= 31
        self.bg_region(bgn[0], NX)
        for j in range(32):
            a.wait(vm=f"x{j}", lg=f"w{j}")
            self.fine(f"{l}:x{j}")
            if j == jc:
                a(f"v_mfma_f32_32x32x8_bf16 {v(AK, 16)}, {v(CSA, 2)}, {v(MB, 2)}, {v(AK, 16)}")
                a(f"v_mfma_f32_32x32x8_bf16 {v(AV, 16)}, {v(CSA, 2)}, {v(MB + 2, 2)}, {v(AV, 16)}")
            for p, acc in ((0, AK), (1, AV)):
                c = v(acc, 16) if j else "0"
                a(f"v_mfma_f32_32x32x16_bf16 {v(acc, 16)}, {v(RG + (j % D) * 8 + 4 * p, 4)}, {v(XF + 4 * j, 4)}, {c}")
                if p == 0:
                    if j + NX < 32:
                        ldx(j + NX)
                    if l == 0 and j + NX == 32:
                        self.mark_slot(KVP[1] - KVP[0], PK + 12)
                    if l == 0 and j == cfg["oinit"][0]:
                        for i in range(2):
                            a(f"buffer_store_dwordx4 {v(PK + 12, 4)}, {v(vOST)}, {s(sWS, 4)}, {s(sOST)} offen offset:{256 * i} sc1", vm="oinit")
                    if l == 0 and cfg["otouch"] and j == cfg["otouch"]:
                        t_ = PK + 8
                        a(f"v_bfe_u32 {v(t_)}, {v(vL16)}, 7, 1")
                        a(f"v_mul_u32_u24 {v(t_)}, {(16384 - 1024) // 8}, {v(t_)}")
                        a(f"v_add_lshl_u32 {v(t_)}, {v(t_)}, {v(vL16)}, 3")
                        a("s_mov_b64 exec, 0xffff")
                        a(f"buffer_load_dword {v(RG + 23)}, {v(t_)}, {s(sWS, 4)}, {s(sOST)} offen sc1")
                        a("s_mov_b64 exec, -1")
                    if j + NX >= 32:
                        self.bg_tick()
                    if j == 31 and not first:
                        a("s_nop 5")
                    if first and j == 30:
                        a(f"v_mov_b32 {v(vBW)}, {v(self.bw)}")
                        a(f"v_lshrrev_b32 {v(vBO)}, 7, {v(vL16)}")
                        a(f"v_mul_u32_u24 {v(vBO)}, {1024 - 128}, {v(vBO)}")
                        a(f"v_add_u32 {v(vBO)}, {v(vBO)}, {v(vL16)}")
                if p and fill and fill[0] and fill[1:] and fill[1]:
                    a(fill[0]); fill[0] = None
                if j + D < 32:
                    rd(j + D, p)
                if T == 1 and j == 29:
                    a(f"ds_read_b128 {v(PK + 8 + 4 * p, 4)}, {v(vKFR)} offset:{L_WPF - L_KVF + KS * p}", lg="wp")
                for _ in range(2 if p else 0):
                    f_ = fill.pop(0) if fill else None
                    if f_:
                        a(f_)
        self.bw = vBW
        if first:
            self.slow_pf(sSO[T], 4, RG + 23)
        self.ts(f"{l}:kvgemm")
        self.dump("kv", l, list(range(AK, AK + 32)) + [vS, vRS, vM], RG)

        def v_steps(e):
            st = []
            for h in range(2):
                for i in range(4 * h, 4 * h + 4):
                    if T == 0:
                        st.append(lambda i=i: e(f"v_pk_mul_f32 {v(AV + 2 * i, 2)}, {v(AV + 2 * i, 2)}, {v(vS, 2)} op_sel:[0,1]"))
                    else:
                        st.append(lambda i=i: e(f"v_mul_f32 {v(AV + 2 * i)}, {v(AV + 2 * i)}, {v(vRS)}"))
                        st.append(lambda i=i: e(f"v_mul_f32 {v(AV + 2 * i + 1)}, {v(AV + 2 * i + 1)}, {v(vRS)}"))
                for i in range(4 * h, 4 * h + 4):
                    st.append(lambda i=i: e(f"v_cvt_pk_bf16_f32 {v(AV + i)}, {v(AV + 2 * i)}, {v(AV + 2 * i + 1)}"))
                st.append(lambda h=h: a(f"ds_write_b128 {v(vSTW)}, {v(AV + 4 * h, 4)} offset:{0x4000 + 128 * h}"))
            return st

        def stage(k):
            a(f"ds_write_b128 {v(vSTW)}, {v(PK + 4 * k, 4)} offset:{(k >> 1) * 8192 + 128 * (k & 1)}")
        vst = v_steps(self.ticker())
        if T == 0:
            self.bg_region(bgn[1], 72)
            self.phi_a(AK, LG, stage)
            for st in vst:
                st()
        else:
            self.bg_region(bgn[1], 125)
            self.logits(lambda: [vst.pop(0)() for _ in range(4)])
            for st in vst:
                st()
            self.softmax2(RG, False, stage)
        self.dump("pk", l, list(range(PK, PK + 16)) + list(range(AV, AV + 8)), RG)
        ONE, DK, DZ, PB, QA = AK, AV + 8, AV + 12, AV + 4, AV + 3
        for i in range(4):
            a(f"v_mov_b32 {v(ONE + i)}, 0x3f803f80")
        D = 5 if first else 6

        def rq(j):
            for u in range(2):
                a(f"ds_read_b64_tr_b16 {v(RG + (j % D) * 4 + 2 * u, 2)}, {v(QA)} offset:{self.woff(j, u)}", lg=f"q{j}")
        a.wait(vm="mark", lg=0)
        a("s_barrier")
        a(f"v_add_u32 {v(QA)}, {L_WQ[T]:#x}, {v(vWRD)}")
        self.ts(f"{l}:bar2")
        early = False
        w01 = (lambda k: self.waves01(((4, 5), (6, 9), (7, 8), (10, 11))[l + k])) if T == 0 else (lambda k: contextlib.nullcontext())
        with w01(0):
            def rp(st, k):
                for u in range(2):
                    a(f"ds_read_b64_tr_b16 {v((LG, PK)[k] + 4 * st + 2 * u, 2)}, {v((vSTR, vSTR2)[k])} offset:{st * 1024 + u * 512}", lg=f"p{st}")
            PD = cfg["pdepth"]
            for st in range(PD):
                rp(st, 0); rp(st, 1)
            for st in range(4):
                a.wait(lg=f"p{st}")
                a(f"v_mfma_f32_16x16x32_bf16 {v(DK, 4)}, {v(LG + 4 * st, 4)}, {v(PK + 4 * st, 4)}, {v(DK, 4) if st else 0}")
                if st + PD < 4:
                    rp(st + PD, 0)
                a(f"v_mfma_f32_16x16x32_bf16 {v(DZ, 4)}, {v(LG + 4 * st, 4)}, {v(ONE, 4)}, {v(DZ, 4) if st else 0}")
                if st + PD < 4:
                    rp(st + PD, 1)
            self.fine(f"{l}:p_mfma")
            for i in range(2):
                a(f"v_cvt_pk_bf16_f32 {v(PB + i)}, {v(DK + 2 * i)}, {v(DK + 2 * i + 1)}")
            for i in range(2):
                a(f"v_cvt_pk_bf16_f32 {v(PB + 2 + i)}, {v(DK + 2 * i)}, {v(DK + 2 * i + 1)}")
            a(f"v_min_u32 {v(DZ)}, -2, {v(DZ)}")
            for i in range(2):
                a(f"v_permlane16_swap_b32 {v(PB + i)}, {v(PB + 2 + i)}")
            a(f"v_min_u32 {v(PB)}, -2, {v(PB)}")
            a(f"s_mov_b64 exec, {s(sROW, 2)}")
            a(f"buffer_store_dwordx4 {v(PB, 4)}, {v(vPST)}, {s(sWS, 4)}, {s(sKVT)} offen sc1")
            a(f"s_mov_b64 exec, {s(sCOL, 2)}")
            a(f"buffer_store_dwordx4 {v(DZ, 4)}, {v(vZST)}, {s(sWS, 4)}, {s(sKVT)} offen sc1")
            if T:
                a("s_mov_b64 exec, -1")
        if cfg["jit"] and l < 3:
            with self.only_if(f"s_cmp_eq_u32 {s(sW)}, 3"):
                self.code_pf(f"L_layer{l + 1}", f"L_layer{l + 2}" if l < 2 else "L_end", AV + 8)
        self.ts(f"{l}:publish")
        if l == 0:
            a(f"v_lshlrev_b32 {v(vHL)}, 5, {v(vPOLL)}")
            a(f"s_or_b32 {s(sTG)}, {s(sTAG)}, 0xf0")
            a(f"buffer_load_dword {v(AV + 9)}, {v(vHL)}, {s(sWS, 4)}, {s(sHEL)} offen sc1", vm="hl")
            self.slow_pf(sSW[1], 12, AV + 10)
        if first:
            a.wait(vm="wq")
            self.fine(f"{l}:wq")
            a("s_barrier")
            self.fine(f"{l}:barx")
        CS, CSA, MB, M1 = LG + 4, LG + 8, LG + 10, LG + 12
        PL, SEL, DR = 0, 36, 40

        def partial_load(i):
            i = (i + 8) % 9
            a(f"s_add_u32 {s(sT1)}, {s(sKVT)}, {i * 65536}")
            a(f"buffer_load_dwordx4 {v(PL + 4 * i, 4)}, {v(vL16)}, {s(sWS, 4)}, {s(sT1)} offen sc1", vm="pl")
        if not early:
            for j in range(D):
                rq(j)
        cs_read = lambda: a(f"ds_read_b128 {v(CS, 4)}, {v(vCSR)} offset:{T * 1536 + 1024}", lg="cs")
        fill = []
        if first:
            SQ, DQ, RQ, TQ = PK, PK + 4, PK + 8, LG
            self.sel_read(SQ)
            a(f"s_add_u32 {s(sT2)}, {s(sW13)}, {L_WQ[T]}")
            a(f"v_add_u32 {v(TQ + 2)}, {s(sT2)}, {v(vL16)}")
            rc = lambda i: a(f"ds_read_b128 {v(RQ + 4 * (i & 1), 4)}, {v(TQ + 2)} offset:{i * 1024}", lg=f"c{i}")
            rc(0); rc(1)
            addr, fin = self.cs_q_fin(T, DQ, TQ)

            def step(i):
                a.wait(lg=f"c{i}")
                a(f"v_mfma_f32_16x16x32_bf16 {v(DQ, 4)}, {v(SQ, 4)}, {v(RQ + 4 * (i & 1), 4)}, {v(DQ, 4) if i else 0}")
                if i + 2 < 8:
                    rc(i + 2)
                if addr:
                    a(addr.pop(0))

            def mark():
                with skip23():
                    self.mark_slot(KVP[l + 2] - KVP[l], M1)

            def sync():
                a.wait(lg="csw")
                a("s_barrier")
                cs_read()
            fill += [(lambda i=i: step(i)) for i in range(8)]
            fill += [f"v_mov_b32 {v(M1)}, -1\nv_mov_b32 {v(M1 + 1)}, -1\nv_mov_b32 {v(M1 + 2)}, -1\nv_mov_b32 {v(M1 + 3)}, -1", mark]
            fill += fin + [None, None, sync, None, None, lambda: a.wait(lg="cs")]
        else:
            cs_read()
            fill += [None] * D
        pk = self.cs_pack(CS, CSA) + [f"v_mov_b32 {v(CSA + 1)}, 0", f"v_mov_b32 {v(MB)}, {v(vM)}", f"v_mov_b32 {v(MB + 1)}, 0"]
        fill += [pk[i] + "\n" + pk[i + 1] for i in range(0, 10, 2)]
        jc = len(fill) + 1
        assert jc <= 31
        PS, PG = cfg["pl_step"][l], cfg["pl_gap"][l]
        assert PS >= 10
        G = 3 if T == 0 else 1

        def pl_group(k):
            with skip23():
                for i in range(G * k, G * k + G):
                    partial_load(i)
        pl_at = [PS + G * PG * k for k in range(9 // G)]
        if first:
            pl_at = [min(x, 31) for x in pl_at]
        self.bg_region(bgn[2], min(PS, 32))
        NP = cfg["np"]
        puts = list(range(NP))
        nq = 0 if first else min(NP, cfg["qputs"][T])
        put_at = [1 + (k * 30) // nq for k in range(nq)]
        for j in range(32):
            a.wait(lg=f"q{j}")
            if j == jc:
                a(f"v_mfma_f32_32x32x8_bf16 {v(AK, 16)}, {v(CSA, 2)}, {v(MB, 2)}, {v(AK, 16)}")
            a(f"v_mfma_f32_32x32x16_bf16 {v(AK, 16)}, {v(RG + (j % D) * 4, 4)}, {v(XF + 4 * j, 4)}, {v(AK, 16) if j else 0}")
            self.bg_tick()
            if l == 0 and j == cfg["oinit"][1]:
                t_ = RG + 23
                a(f"v_bfe_u32 {v(t_)}, {v(vL16)}, 7, 1")
                a(f"v_mul_u32_u24 {v(t_)}, {(16384 - 1024) // 8}, {v(t_)}")
                a(f"v_add_lshl_u32 {v(t_)}, {v(t_)}, {v(vL16)}, 3")
                a("s_mov_b64 exec, 0xffff")
                a(f"buffer_load_dword a255, {v(t_)}, {s(sWS, 4)}, {s(sOST)} offen sc1")
                a("s_mov_b64 exec, -1")
            if l == 0 and j == pl_at[0] - 1:
                a.wait(vm="hl")
                a(f"v_cmp_ne_u32 vcc, {s(sTG)}, {v(AV + 9)}")
                a("s_cbranch_vccnz L_hello")
                a.label("L_hello_ok")
                with self.outofline():
                    a.label("L_hello")
                    self.poll(vHL, sHEL, AV + 9)
                    a("s_branch L_hello_ok")
            for k, x in enumerate(pl_at):
                if x == j:
                    pl_group(k)
            if j + D < 32:
                rq(j + D)
            if j in put_at:
                self.put_wo(T, puts.pop(0))
            if j == 27:
                self.sel_read(SEL)
            if T == 1 and j in (28, 29):
                a(f"ds_read_b128 {v(PK + 8 + 4 * (j - 28), 4)}, {v(vKFR)} offset:{L_WPF - L_KVF + KS * (j - 28)}", lg="wp")
            if fill:
                f_ = fill.pop(0)
                if callable(f_):
                    f_()
                elif f_:
                    a(f_)
        self.ts(f"{l}:qgemm")
        self.dump("q", l, list(range(AK, AK + 16)), RG)
        EPS = RG + 6
        if first:
            if T == 0:
                n = len(a.vm) - 1 - max(i for i, t_ in enumerate(a.vm) if t_ == f"wo{NP - 1}")
                a(f"s_waitcnt vmcnt({n + 9})")
                with self.only_if(f"s_cmp_ge_u32 {s(sW)}, 2"):
                    a.wait(vm=f"wo{NP - 1}")
            else:
                a.wait(vm=f"wo{NP - 1}")
        nbg3 = min(bgn[3], len(self.bg))
        slots = 56 if T == 0 else 100
        self.bg_region(bgn[3], slots)
        if not first:
            late = [k for k, x in enumerate(pl_at) if x >= 32]
            self.bg = [(lambda k=k: pl_group(k)) for k in late]
            self.bg_at = [min(slots - 1, (pl_at[k] - 32) * 6) for k in late]
        self.side = [(lambda i=i: self.put_wo(T, i)) for i in puts]
        self.side_every = cfg["wo_every"][T]
        pop = lambda: self.side.pop(0)() if self.side else None
        pop()
        if T == 0:
            self.phi_a(AK, LG)
            a(f"v_mov_b32 {v(EPS)}, {f2u(1e-6):#x}")
        else:
            self.logits(pop)
            pop()
            self.softmax2(RG, True)
        while self.side:
            pop()
        self.dump("pq", l, list(range(PK, PK + 16)), AV)
        self.ts(f"{l}:phiq")
        WR, DW = 64, 7
        WA = [vWOR, RG + 16, RG + 17, RG + 18]
        for t_ in range(1, 4):
            a(f"v_xor_b32 {v(WA[t_])}, {32 * t_}, {v(vWOR)}")
        a(f"s_add_u32 {s(sTG)}, {s(sTAG)}, {16 * (l + 1)}")
        a(f"v_mov_b32 {v(RG + 19)}, {s(sTG)}")
        a.wait(lg="sel")
        self.fine(f"{l}:r_wait")
        with w01(1):
            a.label(f"L_chk{l}")
            m, Z = 44, PL + 32
            gaps = [[f"v_max3_u32 {v(m)}, {v(Z)}, {v(PL)}, {v(PL + 4)}", f"v_permlane16_swap_b32 {v(Z)}, {v(Z + 1)}"],
                    [f"v_permlane16_swap_b32 {v(Z + 2)}, {v(Z + 3)}"],
                    [f"v_add_f32 {v(Z)}, {v(Z)}, {v(Z + 1)}", f"v_add_f32 {v(Z + 2)}, {v(Z + 2)}, {v(Z + 3)}"],
                    [f"v_max3_u32 {v(m)}, {v(m)}, {v(PL + 8)}, {v(PL + 12)}", f"v_permlane32_swap_b32 {v(Z)}, {v(Z + 2)}"],
                    [f"v_add_f32 {v(Z)}, {v(Z)}, {v(Z + 2)}", f"v_max3_u32 {v(m)}, {v(m)}, {v(PL + 16)}, {v(PL + 20)}"],
                    [f"v_add_f32 {v(Z)}, {v(Z)}, {v(Z)} row_ror:4"],
                    [f"v_add_f32 {v(Z)}, {v(Z)}, {v(Z)} row_ror:8", f"v_max3_u32 {v(m)}, {v(m)}, {v(PL + 24)}, {v(PL + 28)}"],
                    [f"v_cmp_eq_u32 vcc, -1, {v(m)}", f"v_cvt_pk_bf16_f32 {v(Z)}, {v(Z)}, {v(Z)}", f"ds_write_b16 {v(vZW)}, {v(Z)}"]]
            for i in range(8):
                if i % 2 == 0:
                    a(f"s_waitcnt vmcnt({nbg3 + 6 - i})")
                a(f"v_mfma_f32_16x16x32_bf16 {v(DR, 4)}, {v(SEL, 4)}, {v(PL + 4 * i, 4)}, {v(DR, 4) if i else 0}")
                for g_ in gaps[i]:
                    a(g_)
            a(f"s_cbranch_vccnz L_again{l}")
            with self.outofline():
                a.label(f"L_again{l}")
                self.countdown()
                if cfg["ts"]:
                    a(f"s_add_u32 {s(sTSI)}, {s(sTSI)}, {1 << (8 * l)}")
                for i in range(9):
                    partial_load(i)
                if nbg3:
                    a("s_waitcnt vmcnt(0)")
                a(f"s_branch L_chk{l}")
            for i in range(2):
                a(f"v_cvt_pk_bf16_f32 {v(DR + i)}, {v(DR + 2 * i)}, {v(DR + 2 * i + 1)}")
            a(f"ds_write_b64 {v(vKFW)}, {v(DR, 2)}")
        if T == 0:
            a(f"s_waitcnt vmcnt({nbg3})")
        self.fine(f"{l}:r_done")
        self.bg_now(bgn[4])
        a.wait(lg=0)
        a("s_barrier")
        self.ts(f"{l}:bar3")
        KF, ZF, DEN, O = 0, 16, RG + 6, LG
        def rk(j):
            a(f"ds_read_b128 {v(KF + 4 * j, 4)}, {v(vKFR)} offset:{KS * j}", lg=f"kf{j}")
        def rz(j):
            a(f"ds_read_b128 {v(ZF + 4 * j, 4)}, {v(vZR)} offset:{(j >> 1) * 64 + (j & 1) * 16}", lg=f"zf{j}")

        def dots(j):
            for d in range(4):
                a(f"v_dot2c_f32_bf16 {v(DEN)}, {v(ZF + 4 * j + d)}, {v(PK + 4 * j + d)}")

        def num(j):
            a.wait(lg=f"kf{j}")
            a(f"v_mfma_f32_32x32x16_bf16 {v(AV, 16)}, {v(KF + 4 * j, 4)}, {v(PK + 4 * j, 4)}, {v(AV, 16) if j else 0}")

        def rw1(i, t_, u):
            a(f"ds_read_b64_tr_b16 {v(WR + (i % DW) * 16 + 4 * t_ + 2 * u, 2)}, {v(WA[t_])} offset:{t_ * 16384 + i * 1024 + u * 512}", lg=f"wo{i}")
        rest = [(i, t_, u) for i in range(DW) for t_ in range(4) for u in range(2)]
        if cfg["nmode"] == 0:
            for j in range(NJ):
                rz(j)
            if NJ == 2:
                rk(0); rk(1)
            for j in range(NJ):
                if j % 2 == 0:
                    a.wait(lg=f"zf{j + 1}")
                dots(j)
                if NJ == 4:
                    rk(j)
            self.fine(f"{l}:n_dot")
            for j in range(NJ):
                num(j)
        else:
            q_ = [(rk, j) for j in range(NJ)] + [(rz, j) for j in range(NJ)]
            for f_, j in q_[:3]:
                f_(j)
            del q_[:3]
            for j in range(NJ):
                num(j)
                for f_, k in q_[:2]:
                    f_(k)
                del q_[:2]
            self.fine(f"{l}:n_dot")
            a.wait(lg=0)
            for j in range(NJ):
                dots(j)
        a(f"v_rcp_f32 {v(DEN)}, {v(DEN)}")
        self.fine(f"{l}:n_mfma")
        ol = []
        for h in range(2):
            ol += [f"v_pk_mul_f32 {v(AV + 2 * i, 2)}, {v(AV + 2 * i, 2)}, {v(DEN, 2)} op_sel_hi:[1,0]" for i in range(4 * h, 4 * h + 4)]
            ol += [f"v_cvt_pk_bf16_f32 {v(O + i)}, {v(AV + 2 * i)}, {v(AV + 2 * i + 1)}" for i in range(4 * h, 4 * h + 4)]
            ol += [f"buffer_store_dwordx4 {v(O + 4 * h, 4)}, {v(vOST)}, {s(sWS, 4)}, {s(sOST)} offen offset:{256 * h}"]
        self.moded(ol, tag="ost", wt=l == 0 and not cfg["otouch"] and not cfg["oinit"][0])
        self.dump("o", l, list(range(O, O + 8)), PK)
        self.ts(f"{l}:ostore")
        self.bg_now(bgn[5])
        NO = cfg["no0"]

        def ldo(i):
            if i % 4 == 0 and i:
                a(f"s_add_u32 {s(sT3)}, {s(sOLD)}, {i * 1024}")
            a(f"buffer_load_dwordx4 {v(4 * i, 4)}, {v(vL16)}, {s(sWS, 4)}, {s(sT3 if i >= 4 else sOLD)} offen offset:{(i % 4) * 1024} sc1", vm=f"o{i}")
        late = list(range(NP, 16))

        def window(np_, nr):
            for _ in range(min(len(late), np_)):
                self.put_wo(T, late.pop(0))
            for _ in range(min(len(rest), nr)):
                rw1(*rest.pop(0))
        ow = cfg["owin"][first]
        window(*ow[0])
        self.fine(f"{l}:o_pre")
        self.flag(sFOS, RG + 19, "ost")
        self.fine(f"{l}:oflag")
        self.spin_more(wo_, f"o{l}")
        if last and cfg["fin_lds"]:
            for t_ in self.tile_addr(PK, PK + 3):
                a(t_)
        window(*ow[1])
        self.probe(wo_, vPR)
        window(*ow[2])
        self.spin(wo_, f"o{l}")
        self.ts(f"{l}:opoll")
        for i in range(4):
            ldo(i)
        window(16, 0)
        if NP < 16:
            a.wait(lg="putwo")
            a("s_barrier")
        per = -(-len(rest) // (NO - 4))
        for i in range(4, NO):
            window(0, per)
            ldo(i)
        assert not rest
        self.fine(f"{l}:o_iss")
        todo = [(i, t_, u) for i in range(DW, 16) for t_ in range(4) for u in range(2)]
        done = 0
        self.bg_region(bgn[6], NO)
        for i in range(16):
            for t_ in range(4):
                if t_ == 0:
                    a.wait(vm=f"o{i}", lg=f"wo{i}")
                    self.fine(f"{l}:o{i}")
                a(f"v_mfma_f32_16x16x32_bf16 {v(XR + 4 * t_, 4)}, {v(WR + (i % DW) * 16 + 4 * t_, 4)}, {v(4 * i, 4)}, {v(XR + 4 * t_, 4)}")
                if t_ == 0:
                    if i + NO < 16:
                        ldo(i + NO)
                    else:
                        self.bg_tick()
                for _ in range(cfg["ord"][i + NO >= 16][t_]):
                    if done < len(todo) and done // 2 <= 4 * i + t_:
                        assert todo[done][0] > i
                        rw1(*todo[done]); done += 1
        assert done == len(todo) and not self.bg
        self.ts(f"{l}:ogemm")
        if last:
            return
        self.dump("x", l, list(range(XR, XR + 16)), PK)
        N = 1 - T
        for st in self.x_steps(0, XR, AK, par=N):
            st()
        self.fine(f"{l}:xst")
        a("s_barrier")
        self.fine(f"{l}:bar5")
        if l == 0:
            self.sel_read(AV)
        n1, n2 = cfg["xputs"]
        self.put_wkv(N, 0, n1)
        a(f"s_add_u32 {s(sKVT)}, {s(sKVT)}, {KVP[l + 1] - KVP[l]}")
        self.flag(sFXS, RG + 19, "xst" if cfg["spar"] else "sst")
        self.ts(f"{l}:xflag")
        self.spin_more(wx, f"x{l + 1}")
        if l == 0:
            a.wait(lg="sel")
        for i in range(n1, n2):
            if i == n1 + cfg["xprobe_at"]:
                self.probe(wx, vPR)
            self.put_wkv(N, i, i + 1)
            if l == 0:
                for k in range((i - n1) * 16 // (n2 - n1), (i - n1 + 1) * 16 // (n2 - n1)):
                    self.cs_kv_step(1, k, AV, AV + 4)
        if l == 0:
            self.cs_kv_fin(1, AV + 4, AV + 8)
        self.puts_left = list(range(n2, 16))

    def prologue(self):
        cfg = self.cfg
        a = self.a
        a(f"s_cmp_ge_u32 {s(sID)}, 256")
        a("s_cbranch_scc1 L_end")
        self.ts("start")
        a(f"s_load_dwordx16 {s(4, 16)}, s[0:1], 0")
        a(f"s_load_dwordx4 {s(20, 4)}, s[0:1], 64")
        a(f"s_getpc_b64 {s(sSAVE, 2)}")
        a.label("L_pc")
        NCL = cfg["codepf"]
        a(f"s_bfe_u32 {s(sT0)}, {s(sID)}, {3 | (3 << 16)}")
        a(f"s_mul_i32 {s(sT0)}, {s(sT0)}, {NCL}")
        a(f"v_min_u32 v1, {NCL - 1}, v0")
        a(f"v_add_u32 v1, {s(sT0)}, v1")
        a("v_lshlrev_b32 v1, 7, v1")
        if cfg["pads"]:
            a("v_lshlrev_b32 v2, 12, v0")
            a("v_add_u32 v2, L_layer0-L_pc-64*4096, v2")
            a("v_cmp_le_u32 vcc, 64, v0")
            a("v_cndmask_b32 v1, v1, v2, vcc")
        a(f"v_min_u32 v1, L_codeend-L_pc, v1")
        a(f"global_load_dword v2, v1, {s(sSAVE, 2)}")
        if cfg["ts"]:
            a(f"s_mov_b32 {s(sTSI)}, 0")
            a(f"s_mov_b32 {s(sLAY)}, 0")
            a(f"v_mov_b32 {v(vTS)}, 0")
            a(f"s_memrealtime s[78:79]")
        L = 3
        a(f"v_lshrrev_b32 v1, 6, v0")
        a(f"v_and_b32 {v(L)}, 63, v0")
        a(f"v_readfirstlane_b32 {s(sW)}, v1")
        a(f"v_lshlrev_b32 {v(vL16)}, 4, {v(L)}")
        a(f"s_bfe_u32 {s(sC)}, {s(sID)}, {3 | (4 << 16)}")
        a(f"s_lshr_b32 {s(sT0)}, {s(sID)}, 7")
        a(f"s_and_b32 {s(sR)}, {s(sID)}, 7")
        a(f"s_lshl1_add_u32 {s(sR)}, {s(sR)}, {s(sT0)}")
        sBP, sSUB, sCG, sB = 99, 100, 101, sCNT
        a(f"s_lshr_b32 {s(sT0)}, {s(sC)}, 3")
        a(f"s_lshr_b32 {s(sT3)}, {s(sW)}, 1")
        a(f"s_lshl1_add_u32 {s(sT0)}, {s(sT0)}, {s(sT3)}")
        a(f"s_lshl2_add_u32 {s(sBP)}, {s(sR)}, {s(sT0)}")
        a(f"s_lshl2_add_u32 {s(sB)}, {s(sR)}, {s(sW)}")
        a(f"s_and_b32 {s(sSUB)}, {s(sW)}, 1")
        a(f"s_and_b32 {s(sCG)}, {s(sC)}, 7")
        a(f"s_lshl1_add_u32 {s(sT0)}, {s(sBP)}, {s(sSUB)}")
        a(f"s_lshl_b32 {s(sOLD)}, {s(sT0)}, 14")
        a(f"s_lshl_b32 {s(sT0)}, {s(sCG)}, 7")
        a(f"s_add_u32 {s(sFIN)}, {s(sOLD)}, {s(sT0)}")
        a(f"s_lshl3_add_u32 {s(sT0)}, {s(sBP)}, {s(sCG)}")
        a(f"s_lshl4_add_u32 {s(sT0)}, {s(sT0)}, {s(sSUB)}")
        a(f"s_lshl_b32 {s(sXST)}, {s(sT0)}, 8")
        if cfg["x0_lds"]:
            for t_ in self.tile_addr(52, 5)[-5::3]:
                a(t_)
            a(self.tile_addr(52, 5)[-1])
            a(f"s_add_u32 {s(sT1)}, {s(sFIN)}, 8192")
        else:
            self.rowmajor_voff(4, 5)
        a(f"s_lshl_b32 {s(sT0)}, {s(sC)}, 6")
        a(f"s_mul_i32 {s(sWOFF)}, {s(sT3)}, {16 * 3072}")
        a(f"s_add_u32 {s(sWOFF)}, {s(sWOFF)}, {s(sT0)}")
        a(f"s_lshl_b32 {s(sT0)}, {s(sSUB)}, 10")
        a(f"s_add_u32 {s(sWOFF)}, {s(sWOFF)}, {s(sT0)}")
        a(f"s_add_u32 {s(sWOFF)}, {s(sWOFF)}, 1024")
        self.w_voff(5)
        a(f"s_mov_b32 {s(sTMP + 3)}, 0x20000")
        a(f"s_mov_b32 {s(sSW[0] + 3)}, 0x20000")
        a(f"s_mov_b32 {s(sTMP + 2)}, 0x200000")
        a(f"s_mov_b32 {s(sSW[0] + 2)}, {512 * 3072}")
        a(f"s_lshr_b32 {s(sT2)}, {s(sID)}, 3")
        a(f"s_lshl_b32 {s(sSTLD)}, {s(sB)}, 11")
        a(f"s_lshl_b32 {s(sT0)}, {s(sB)}, 7")
        a(f"s_add_u32 {s(sFXP)}, {s(sT0)}, {FLAGX}")
        a(f"s_add_u32 {s(sFOS)}, {s(sT0)}, {FLAGO}")
        a(f"s_lshl_b32 {s(sHEL)}, {s(sC)}, 7")
        a(f"s_add_u32 {s(sHEL)}, {s(sHEL)}, {s(sSTLD)}")
        a("s_waitcnt lgkmcnt(0)")
        self.ts("kernarg")
        a(f"s_mov_b64 {s(sTMP, 2)}, {s(sPX, 2)}")
        a(f"s_mov_b64 {s(sSW[0], 2)}, {s(sPWA, 2)}")
        for i in range(2):
            if cfg["x0_lds"]:
                a(f"buffer_load_dwordx4 {v(8 + 4 * i, 4)}, v54, {s(sTMP, 4)}, {s((sFIN, sT1)[i])} offen", vm="x0")
            else:
                a(f"buffer_load_dwordx4 {v(8 + 4 * i, 4)}, v4, {s(sTMP, 4)}, {s(sFIN)} offen offset:{64 * i}", vm="x0")
        a(f"s_lshl2_add_u32 {s(sPF)}, {s(sT2)}, {s(sW)}")

        def mall_pf():
            a0 = self.a
            a0(f"s_cmp_eq_u32 {s(sSUB)}, 0")
            a0(f"s_cselect_b64 {s(sTMP, 2)}, {s(sPWA, 2)}, {s(sPWB, 2)}")
            a0(f"s_cselect_b64 {s(sLN2, 2)}, {s(sPWOA, 2)}, {s(sPWOB, 2)}")
            a0(f"s_cmp_lt_u32 {s(sW)}, 2")
            a0(f"s_cselect_b64 {s(sTMP, 2)}, {s(sTMP, 2)}, {s(sLN2, 2)}")
            a0(f"s_cselect_b32 {s(sT1)}, 3, 1")
            a0(f"s_lshl_b32 {s(sT1)}, {s(sT1)}, 11")
            a0(f"s_mul_i32 {s(sT2)}, {s(sID)}, {s(sT1)}")
            a0(f"s_sub_u32 {s(sT0)}, {s(sT1)}, 128")
            a0(f"v_lshlrev_b32 v7, 3, {v(vL16)}")
            a0(f"v_min_u32 v7, {s(sT0)}, v7")
            a0(f"s_lshl_b32 {s(sTMP + 2)}, {s(sT1)}, 8")
            a0(f"buffer_load_dword v7, v7, {s(sTMP, 4)}, {s(sT2)} offen")
        def l2_pf():
            a(f"s_mul_i32 {s(sT0)}, {s(sPF)}, {4 * 3072 // cfg['l2div']}")
            a(f"s_add_u32 {s(sT0)}, {s(sT0)}, {512 * 3072 - 512 * 3072 // cfg['l2div']}")
            a(f"v_lshrrev_b32 v51, 8, {v(vL16)}")
            a(f"v_lshlrev_b32 v51, 10, v51")
            a(f"v_lshl_add_u32 v51, {v(vL16)}, 3, v51")
            if cfg["l2div"] == 2:
                a("s_mov_b32 exec_hi, 0")
            a(f"buffer_load_dword v51, v51, {s(sSW[0], 4)}, {s(sT0)} offen offset:1024")
            if cfg["l2div"] == 2:
                a("s_mov_b32 exec_hi, -1")
        if cfg["l2pf"] == 1:
            l2_pf()
        if cfg["mallpf"] == 1:
            mall_pf()
        if cfg["l2pf"] == 2:
            l2_pf()
        if cfg["mallpf"] in (4, 6):
            with self.only_if(f"s_cmp_eq_u32 {s(sW)}, 0"):
                mall_pf()
        if cfg["mallpf"] == 5:
            with self.only_if(f"s_cmp_eq_u32 {s(sSUB)}, 0"):
                mall_pf()
        if cfg["mallpf"] == 7:
            with self.only_if(f"s_cmp_lg_u32 {s(sW)}, 3"):
                mall_pf()
        if cfg["slow0"]:
            self.slow_pf(sSW[0], 12, 6)
        for i in range(cfg["n0"]):
            self.ld_wkv(0, i, 5)
        if cfg["mallpf"] == 2:
            mall_pf()
        a(f"s_add_u32 {s(sPBX)}, {s(sPWS)}, {s(sHEL)}")
        a(f"s_addc_u32 {s(sPBX + 1)}, {s(sPWS + 1)}, 0")

        def scalar_loads():
            a(f"s_load_dword {s(sEP)}, {s(sPWS, 2)}, 0")
            if cfg["touch"]:
                a(f"s_load_dword {s(sTG)}, {s(sPWS, 2)}, {s(sFXP)}")
                a(f"s_load_dword {s(sTG)}, {s(sPWS, 2)}, {s(sFOS)}")
                a(f"s_load_dword {s(sTG)}, {s(sPBX, 2)}, {STATS[0]}")
                a(f"s_load_dword {s(sTG)}, {s(sPBX, 2)}, {STATS[0] + 64}")
        if cfg["x0_lds"] != 2:
            scalar_loads()
        self.ts("p_issue")

        def o_touch(at):
            if cfg["otouch"] != at:
                return
            a0 = self.a
            a0(f"s_lshl_b32 {s(sT0)}, {s(sB)}, 5")
            a0(f"s_add_u32 {s(sT0)}, {s(sT0)}, {s(sC)}")
            a0(f"s_lshl_b32 {s(sT0)}, {s(sT0)}, 10")
            a0(f"s_add_u32 {s(sT0)}, {s(sT0)}, {OB[0]}")
            a0(f"v_bfe_u32 v50, {v(vL16)}, 7, 1")
            a0(f"v_mul_u32_u24 v50, {(16384 - 1024) // 8}, v50")
            a0(f"v_add_lshl_u32 v50, v50, {v(vL16)}, 3")
            a0("s_mov_b64 exec, 0xffff")
            a0(f"buffer_load_dword v52, v50, {s(sWS, 4)}, {s(sT0)} offen")
            a0("s_mov_b64 exec, -1")
        a(f"s_mov_b64 {s(sWS, 2)}, {s(sPWS, 2)}")
        a(f"s_mov_b64 {s(sOUT, 2)}, {s(sPOUT, 2)}")
        for r_ in (sWS, sOUT):
            a(f"s_mov_b32 {s(r_ + 3)}, 0x20000")
        a(f"s_mov_b32 {s(sWS + 2)}, {WS_SIZE:#x}")
        a(f"s_mov_b32 {s(sOUT + 2)}, 0x200000")
        o_touch(101)
        a(f"s_mov_b32 {s(sROW)}, 0xffff")
        a(f"s_mov_b32 {s(sROW + 1)}, 0xffff")
        a(f"s_mov_b32 {s(sMODE)}, 0")
        a(f"s_lshr_b32 {s(sT0)}, {s(sCG)}, 2")
        a(f"s_lshl2_add_u32 {s(sT0)}, {s(sBP)}, {s(sT0)}")
        a(f"s_lshl1_add_u32 {s(sT0)}, {s(sT0)}, {s(sSUB)}")
        a(f"s_lshl_b32 {s(sT0)}, {s(sT0)}, 8")
        a(f"s_and_b32 {s(sT1)}, {s(sCG)}, 3")
        a(f"s_lshl2_add_u32 {s(sSTST)}, {s(sT1)}, {s(sT0)}")
        a(f"s_add_u32 {s(sSTST)}, {s(sSTST)}, {STATS[0]}")
        a(f"s_lshl4_add_u32 {s(sT0)}, {s(sW)}, {s(sC)}")
        a(f"s_lshl_b32 {s(sKVT)}, {s(sT0)}, 10")
        a(f"s_add_u32 {s(sKVT)}, {s(sKVT)}, {KVP[0]}")
        a(f"s_lshl_b32 {s(sHEL)}, {s(sT0)}, 11")
        a(f"s_add_u32 {s(sHEL)}, {s(sHEL)}, {HELLO}")
        a(f"s_mov_b32 {s(sHI)}, 0")
        a(f"s_mov_b32 {s(sHI + 1)}, -1")
        a(f"s_lshl_b32 {s(sXLD)}, {s(sB)}, 15")
        i16, g, half, q, jj, t0, t1 = 20, 21, 22, 23, 24, 25, 26
        a(f"v_and_b32 {v(i16)}, 15, {v(L)}")
        a(f"v_lshrrev_b32 {v(g)}, 4, {v(L)}")
        a(f"v_lshrrev_b32 {v(half)}, 5, {v(L)}")
        a(f"v_and_b32 {v(q)}, 3, {v(L)}")
        a(f"v_bfe_u32 {v(jj)}, {v(L)}, 2, 2")
        a(f"v_lshlrev_b32 {v(vPOLL)}, 2, {v(i16)}")
        a(f"v_lshlrev_b32 {v(t0)}, 4, {v(i16)}")
        a(f"v_lshl_add_u32 {v(vXST)}, {v(g)}, 10, {v(t0)}")
        a(f"v_lshl_add_u32 {v(vSST)}, {v(half)}, 10, {v(t0)}")
        a(f"v_lshl_add_u32 {v(vSLD)}, {v(half)}, 9, {v(vL16)}")
        a(f"s_lshr_b32 {s(sT0)}, {s(sR)}, 1")
        a(f"s_lshl_b32 {s(sT0)}, {s(sT0)}, 7")
        a(f"s_and_b32 {s(sT1)}, {s(sR)}, 1")
        a(f"s_add_u32 {s(sT0)}, {s(sT0)}, {s(sT1)}")
        a(f"s_lshl_b32 {s(sT0)}, {s(sT0)}, 9")
        a(f"v_lshl_add_u32 {v(vPST)}, {v(half)}, 8, {v(t0)}")
        a(f"v_add_u32 {v(vPST)}, {s(sT0)}, {v(vPST)}")
        a(f"s_lshl_b32 {s(sT1)}, {s(sR)}, 6")
        a(f"s_add_u32 {s(sT1)}, {s(sT1)}, {8 * 65536}")
        a(f"v_lshl_add_u32 {v(vZST)}, {v(g)}, 4, {s(sT1)}")
        a(f"v_add_u32 v49, {s(sT0)}, {v(vL16)}")
        a(f"v_lshl_add_u32 v27, {v(q)}, 4, {s(sT1)}")
        a(f"v_cndmask_b32 v49, v49, v27, {s(sHI, 2)}")
        for i in range(4):
            a(f"v_mov_b32 {v(28 + i)}, -1")
        if cfg["warm_at"] == 0:
            self.warm(0)
        if cfg["x0_lds"]:
            for t_ in self.tile_addr(52, 55)[:10]:
                a(t_)
        self.ts("p_lane")
        a.wait(vm="x0")
        self.ts("x0")
        if cfg["x0_lds"]:
            for i in range(2):
                a(f"ds_write_b128 v53, {v(8 + 4 * i, 4)} offset:{1152 * i}")
            for i in range(2):
                a(f"ds_read2_b64 {v(8 + 4 * i, 4)}, v52 offset0:{8 * i} offset1:{8 * i + 4}")
            a("s_waitcnt lgkmcnt(0)")
            if cfg["x0_lds"] == 2:
                scalar_loads()
        else:
            for i in range(2):
                for d in range(2):
                    a(f"v_permlane16_swap_b32 {v(8 + 4 * i + d)}, {v(8 + 4 * i + 2 + d)}")
        for i in range(8):
            a(f"v_lshlrev_b32 {v(XR + 2 * i)}, 16, {v(8 + i)}")
            a(f"v_and_b32 {v(XR + 2 * i + 1)}, 0xffff0000, {v(8 + i)}")
        for st in self.x_steps(0, XR, AK, wt=cfg["x_wt"]):
            st()
        with self.only_if(f"s_cmp_lt_u32 {s(sW)}, 2"):
            a("s_mov_b32 exec_hi, 15")
            a(f"buffer_store_dwordx4 v[28:31], v49, {s(sWS, 4)}, {s(sKVT)} offen sc1")
            a("s_mov_b32 exec_hi, -1")
        self.srd_tmp(sPPHI, 16384)
        a(f"s_lshl_b32 {s(sT0)}, {s(sC)}, 10")
        a(f"buffer_load_dwordx4 v[16:19], {v(vL16)}, {s(sTMP, 4)}, {s(sT0)} offen", vm="phi")
        if cfg["mallpf"] == 3:
            mall_pf()
        if cfg["mallpf"] == 4:
            with self.only_if(f"s_cmp_lg_u32 {s(sW)}, 0"):
                mall_pf()
        o_touch(102)
        self.ts("p_xpub")
        self.nw, cnt, a0 = cfg["n0"], [0], a

        def a(text, **kw):
            if cnt[0] % cfg["w_every"] == 0 and self.nw < cfg["n1"]:
                self.ld_wkv(0, self.nw, 5, sT3)
                self.nw += 1
            cnt[0] += 1
            a0(text, **kw)
        a(f"s_getreg_b32 {s(sXCC)}, hwreg(HW_REG_XCC_ID, 0, 4)")
        a(f"s_lshl_b32 {s(sW13)}, {s(sW)}, 13")
        a(f"s_mov_b32 {s(sCNT)}, 0x40000")
        a(f"s_lshl_b32 {s(sT0)}, {s(sC)}, 10")
        a(f"s_add_u32 {s(sOST)}, {s(sXLD)}, {s(sT0)}")
        a(f"s_add_u32 {s(sOST)}, {s(sOST)}, {OB[0]}")
        a(f"s_add_u32 {s(sOLD)}, {s(sOLD)}, {OB[0]}")
        a(f"s_add_u32 {s(sSTLD)}, {s(sSTLD)}, {STATS[0]}")
        a(f"s_lshl2_add_u32 {s(sFOS)}, {s(sC)}, {s(sFOS)}")
        a(f"s_lshl_b32 {s(sT0)}, {s(sBP)}, 7")
        a(f"s_add_u32 {s(sFOP)}, {s(sT0)}, {FLAGO}")
        a(f"s_lshl1_add_u32 {s(sT1)}, {s(sCG)}, {s(sSUB)}")
        a(f"s_lshl2_add_u32 {s(sFXS)}, {s(sT1)}, {s(sT0)}")
        a(f"s_add_u32 {s(sFXS)}, {s(sFXS)}, {FLAGX}")
        a(f"s_lshl_b32 {s(sT0)}, {s(sC)}, 6")
        a(f"s_mul_i32 {s(sQOFF)}, {s(sW)}, {128 * 3072}")
        a(f"s_add_u32 {s(sQOFF)}, {s(sQOFF)}, {s(sT0)}")
        a(f"s_lshl_b32 {s(sOOFF)}, {s(sW)}, 13")
        a(f"s_lshl_b32 {s(sT0)}, {s(sCG)}, 7")
        a(f"s_add_u32 {s(sOOFF)}, {s(sOOFF)}, {s(sT0)}")

        def late_srds(a):
            a(f"s_mov_b64 {s(sSW[1], 2)}, {s(sPWB, 2)}")
            a(f"s_mov_b32 {s(sSW[1] + 2)}, {512 * 3072}")
            a(f"s_mov_b32 {s(sSW[1] + 3)}, 0x20000")
            for T in range(2):
                a(f"s_mov_b64 {s(sSO[T], 2)}, {s([sPWOA, sPWOB][T], 2)}")
                a(f"s_mov_b32 {s(sSO[T] + 2)}, {512 * 1024}")
                a(f"s_mov_b32 {s(sSO[T] + 3)}, 0x20000")
        if not cfg["pfine"]:
            late_srds(a)
        a(f"s_mov_b32 {s(sCOL)}, 0x10001")
        a(f"s_mov_b32 {s(sCOL + 1)}, 0x10001")
        a(f"s_mov_b32 {s(sLN2)}, {LN2:#x}")
        a(f"s_mov_b32 {s(sLN2b)}, {LN2:#x}")
        a(f"s_mov_b32 {s(sDELTA)}, {DELTA:#x}")
        a(f"s_lshl_b32 {s(sANN)}, {s(sR)}, 7")
        a(f"s_add_u32 {s(sANN)}, {s(sANN)}, {ANN}")
        a(f"s_lshl4_add_u32 {s(sGW)}, {s(sR)}, {s(sC)}")
        a(f"s_lshl2_add_u32 {s(sGW)}, {s(sGW)}, {s(sW)}")
        a(f"v_and_b32 {v(t1)}, 1, {v(g)}")
        a(f"v_lshl_add_u32 {v(vOST)}, {v(t1)}, 14, {v(t0)}")
        a(f"v_lshl_add_u32 {v(vOST)}, {v(half)}, 9, {v(vOST)}")
        a(f"v_lshlrev_b32 {v(vWRD)}, 11, {v(half)}")
        a(f"v_lshl_add_u32 {v(vWRD)}, {v(jj)}, 6, {v(vWRD)}")
        a(f"v_lshl_add_u32 {v(vWRD)}, {v(t1)}, 4, {v(vWRD)}")
        a(f"v_and_b32 v27, 1, {v(q)}")
        a(f"v_lshrrev_b32 v32, 1, {v(q)}")
        a(f"v_lshl_add_u32 {v(vWRD)}, v27, 5, {v(vWRD)}")
        a(f"v_lshl_add_u32 {v(vWRD)}, v32, 3, {v(vWRD)}")
        a(f"v_lshlrev_b32 {v(vSTR)}, 8, {v(half)}")
        a(f"v_lshl_add_u32 {v(vSTR)}, v32, 7, {v(vSTR)}")
        a(f"v_lshl_add_u32 {v(vSTR)}, {v(t1)}, 6, {v(vSTR)}")
        a(f"v_lshl_add_u32 {v(vSTR)}, {v(jj)}, 4, {v(vSTR)}")
        a(f"v_lshl_add_u32 {v(vSTR)}, v27, 3, {v(vSTR)}")
        a(f"s_lshl_b32 {s(sT0)}, {s(sSUB)}, 12")
        a(f"s_add_u32 {s(sT0)}, {s(sT0)}, {L_STG + 0x4000}")
        a(f"v_add_u32 {v(vSTR2)}, {s(sT0)}, {v(vSTR)}")
        a(f"s_lshl_b32 {s(sT0)}, {s(sW)}, 12")
        a(f"s_add_u32 {s(sT0)}, {s(sT0)}, {L_STG}")
        a(f"v_add_u32 {v(vSTR)}, {s(sT0)}, {v(vSTR)}")
        a(f"v_bfe_u32 v33, {v(L)}, 3, 2")
        a(f"v_and_b32 {v(vSTW)}, 0x70, {v(vL16)}")
        a(f"v_lshl_add_u32 {v(vSTW)}, v33, 8, {v(vSTW)}")
        a(f"v_lshl_add_u32 {v(vSTW)}, {v(half)}, 12, {v(vSTW)}")
        a(f"s_lshl_b32 {s(sT0)}, {s(sW)}, 10")
        a(f"s_add_u32 {s(sT0)}, {s(sT0)}, {L_STG}")
        a(f"v_add_u32 {v(vSTW)}, {s(sT0)}, {v(vSTW)}")
        a(f"v_bfe_u32 v34, {v(L)}, 1, 2")
        a(f"v_xor_b32 v33, v33, v34")
        a(f"v_lshlrev_b32 {v(vWOW)}, 14, v34")
        a(f"v_lshl_add_u32 {v(vWOW)}, v33, 5, {v(vWOW)}")
        a(f"v_lshl_add_u32 {v(vWOW)}, {v(half)}, 9, {v(vWOW)}")
        a(f"v_lshl_add_u32 {v(vWOW)}, v27, 4, {v(vWOW)}")
        a(f"s_lshl_b32 {s(sT0)}, {s(sW)}, 7")
        a(f"v_add_u32 {v(vWOW)}, {s(sT0)}, {v(vWOW)}")
        a(f"v_lshlrev_b32 {v(vWOR)}, 3, {v(L)}")
        a(f"s_lshl_b32 {s(sT0)}, {s(sSUB)}, 15")
        a(f"s_and_b32 {s(sT1)}, {s(sW)}, 2")
        a(f"s_lshl_b32 {s(sT2)}, {s(sT1)}, 9")
        a(f"s_add_u32 {s(sT0)}, {s(sT0)}, {s(sT2)}")
        a(f"v_add_u32 {v(vWKW)}, {s(sT0)}, {v(vL16)}")
        a(f"v_and_b32 v33, 0x1f0, {v(vL16)}")
        a(f"v_add_u32 {v(vCSR)}, {L_CSP:#x}, v33")
        a(f"v_and_b32 v34, 1, {v(jj)}")
        a(f"v_cmp_eq_u32 vcc, v34, {v(half)}")
        a(f"v_lshlrev_b32 v35, 6, {v(half)}")
        a(f"v_sub_u32 v35, 576, v35")
        a(f"v_cndmask_b32 {v(vKFR)}, v35, v33, vcc")
        a(f"v_add_u32 {v(vKFR)}, {L_KVF:#x}, {v(vKFR)}")
        a(f"s_mul_i32 {s(sT0)}, {s(sT1)}, {KS}")
        a(f"s_lshl_b32 {s(sT2)}, {s(sSUB)}, 6")
        a(f"s_add_u32 {s(sT0)}, {s(sT0)}, {s(sT2)}")
        a(f"s_add_u32 {s(sT0)}, {s(sT0)}, {L_KVF}")
        a(f"v_mul_u32_u24 {v(vKFW)}, {KS}, {v(half)}")
        a(f"v_lshl_add_u32 {v(vKFW)}, {v(q)}, 4, {v(vKFW)}")
        a(f"v_lshl_add_u32 {v(vKFW)}, {v(jj)}, 7, {v(vKFW)}")
        a(f"v_lshl_add_u32 {v(vKFW)}, {v(t1)}, 3, {v(vKFW)}")
        a(f"v_add_u32 {v(vKFW)}, {s(sT0)}, {v(vKFW)}")
        a(f"s_lshl_b32 {s(sT0)}, {s(sW)}, 5")
        a(f"s_add_u32 {s(sT0)}, {s(sT0)}, {L_ZB}")
        a(f"v_lshl_add_u32 {v(vZW)}, {v(q)}, 2, {v(g)}")
        a(f"v_lshl_add_u32 {v(vZW)}, {v(vZW)}, 1, {s(sT0)}")
        a(f"v_mov_b32 v35, {L_ZB:#x}")
        a(f"v_lshl_add_u32 {v(vZR)}, {v(half)}, 5, v35")
        a(f"v_mov_b32 v36, 0x3f80")
        a(f"v_lshlrev_b32 v37, 4, v27")
        a(f"v_lshlrev_b32 v36, v37, v36")
        a(f"v_lshrrev_b32 v37, 1, {v(i16)}")
        a(f"v_lshlrev_b32 v38, 2, {v(t1)}")
        a(f"v_sub_u32 v37, v37, v38")
        for d in range(4):
            a(f"v_cmp_eq_u32 vcc, {d}, v37")
            a(f"v_cndmask_b32 {v(40 + d)}, 0, v36, vcc")
        a(f"v_add_u32 v33, {L_SEL:#x}, v33")
        a(f"ds_write_b128 v33, v[40:43]")
        for i in range(4):
            a(f"v_mov_b32 {v(44 + i)}, 0")
        a(f"v_min_u32 v33, 5, {v(i16)}")
        a(f"v_mul_u32_u24 v33, {KS}, v33")
        a(f"v_lshl_add_u32 v33, {v(half)}, 6, v33")
        a(f"v_add_u32 v33, {L_KVF + 512:#x}, v33")
        a(f"ds_write_b128 v33, v[44:47]")
        a = a0
        self.ts("p_setup")
        while self.nw < cfg["n1"]:
            self.ld_wkv(0, self.nw, 5)
            self.nw += 1
        if cfg["warm_at"] == 1:
            self.warm(0)
        a("s_waitcnt lgkmcnt(0)")
        a.lg.clear()
        a(f"s_mul_i32 {s(sTAG)}, {s(sEP)}, 0x9e3779b1")
        a(f"s_add_u32 {s(sTAG)}, {s(sTAG)}, 0x7f4a7c15")
        a(f"s_and_b32 {s(sTAG)}, {s(sTAG)}, 0xffffff00")
        a(f"s_or_b32 {s(sT1)}, {s(sTAG)}, 0xf0")
        a(f"s_or_b32 {s(sXCC)}, {s(sTAG)}, {s(sXCC)}")
        a(f"v_mov_b32 v34, {s(sXCC)}")
        a(f"v_mov_b32 v35, {s(sT1)}")
        a(f"v_lshrrev_b32 v37, 2, {v(vL16)}")
        a("s_mov_b64 exec, 1")
        a.wait(vm="sst")
        self.fine("p_ack")
        a(f"buffer_store_dword v34, off, {s(sWS, 4)}, {s(sFXS)}")
        with self.only_if(f"s_cmp_eq_u32 {s(sW)}, 3"):
            a(f"s_lshl2_add_u32 {s(sT0)}, {s(sC)}, {s(sANN)}")
            a(f"buffer_store_dword v34, off, {s(sWS, 4)}, {s(sT0)} sc1")
        a("s_mov_b32 exec_lo, -1")
        with self.only_if(f"s_cmp_lt_u32 {s(sW)}, 2"):
            a(f"s_lshl_b32 {s(sT0)}, {s(sR)}, 7")
            a(f"s_add_u32 {s(sT0)}, {s(sT0)}, {s(sHEL)}")
            a(f"buffer_store_dword v35, v37, {s(sWS, 4)}, {s(sT0)} offen sc1")
        a("s_mov_b32 exec_hi, -1")
        a(f"s_and_b32 {s(sHEL)}, {s(sHEL)}, 0xfffeffff")
        self.ts("flag0")
        for i in range(self.nw, 16):
            self.ld_wkv(0, i, 5)
        a(f"v_and_b32 v38, 0x100, {v(vL16)}")
        a(f"v_add_u32 v38, v38, {v(vPOLL)}")
        a(f"s_and_b32 {s(sT2)}, {s(sFXP)}, 0xfffffeff")
        look = lambda: a(f"buffer_load_dword v34, v38, {s(sWS, 4)}, {s(sT2)} offen sc1", vm="f0")
        if cfg["f0_at"] < 0:
            look()
        if cfg["warm_at"] == 2:
            self.warm(0)
        a(f"s_lshl_b32 {s(sT0)}, {s(sW)}, 10")
        a(f"s_add_u32 {s(sT0)}, {s(sT0)}, {L_STG + 0x3000}")
        a(f"v_add_u32 v33, {s(sT0)}, {v(vL16)}")
        a.wait(vm="phi")
        a(f"ds_write_b128 v33, v[16:19]", lg="ph")
        a(f"v_lshlrev_b32 v33, 9, v27")
        a(f"v_lshl_add_u32 v33, {v(half)}, 8, v33")
        a(f"v_lshl_add_u32 v33, {v(jj)}, 5, v33")
        a(f"v_lshl_add_u32 v33, {v(t1)}, 4, v33")
        a(f"v_lshl_add_u32 v33, v32, 3, v33")
        a(f"v_add_u32 v33, {s(sT0)}, v33")
        a(f"v_mul_u32_u24 v39, {KS - 512}, {v(half)}")
        a(f"v_add_u32 v39, v39, {v(vL16)}")
        a(f"v_add_u32 v39, {L_WPF:#x}, v39")
        a.wait(lg="ph")
        a(f"ds_read_b64_tr_b16 v[16:17], v33")
        a(f"ds_read_b64_tr_b16 v[18:19], v33 offset:128", lg="ph2")
        self.ts("p_phi")
        for i in range(16):
            a.wait(vm=f"wkv{i}")
            self.fine(f"p_w{i}")
            if i == cfg["f0_at"]:
                look()
            self.put_wkv(0, i, i + 1)
            self.cs_kv_step(0, i, 40, 44)
            if i == 1:
                a.wait(lg="ph2")
                a(f"ds_write_b128 v39, v[16:19]")
        self.puts_left = []
        self.cs_kv_fin(0, 44, 50)
        self.ts("wkv0")
        a.wait(vm="f0")
        a(f"v_cmp_ne_u32 vcc, {s(sXCC)}, v34")
        a("s_branch L_global" if cfg["force_global"] else "s_cbranch_vccnz L_poll0")
        a.label("L_enter")
        with self.outofline():
            a.label("L_poll0")
            a(f"buffer_load_dword v34, v38, {s(sWS, 4)}, {s(sT2)} offen sc1")
            self.countdown()
            a("s_waitcnt vmcnt(0)")
            a(f"v_cmp_ne_u32 vcc, {s(sXCC)}, v34")
            a("s_cbranch_vccz L_enter")
            a(f"s_and_b32 {s(sT1)}, {s(sCNT)}, 15")
            a("s_cbranch_scc1 L_poll0")
            a(f"buffer_load_dword v34, {v(vPOLL)}, {s(sWS, 4)}, {s(sANN)} offen sc1")
            a("s_waitcnt vmcnt(0)")
            a(f"v_xor_b32 v34, {s(sXCC)}, v34")
            a(f"v_add_u32 v34, -1, v34")
            a(f"v_cmp_gt_u32 vcc, 15, v34")
            a("s_cbranch_vccz L_poll0")
            a.label("L_global")
            a(f"s_mov_b32 {s(sMODE)}, 1")
            a(f"s_add_u32 {s(sFXS)}, {s(sFXS)}, {FLAGX2 - FLAGX}")
            a(f"s_add_u32 {s(sFXP)}, {s(sFXP)}, {FLAGX2 - FLAGX}")
            a(f"s_mov_b32 {s(sTG)}, {s(sTAG)}")
            for r_ in (sSTST, sSTLD):
                a(f"s_add_u32 {s(r_)}, {s(r_)}, {STATS_G}")
            for st in self.x_steps(0, XR, AK, wt=True):
                st()
            a(f"v_mov_b32 v16, {s(sTG)}")
            self.flag(sFXS, 16)
            self.poll(vPOLL, sFXP, 34)
            a("s_branch L_enter")
        self.ts("poll0")
        if cfg["pfine"]:
            a("s_waitcnt lgkmcnt(0)")
            for k in range(len(cfg["pfine"])):
                a(f"v_writelane_b32 {v(vTS)}, {s(84 + 2 * k)}, {48 + k}")
            late_srds(a)

    def rowmajor_voff(self, d, t):
        a = self.a
        a(f"v_and_b32 {v(d)}, 0xf0, {v(vL16)}")
        a(f"v_lshlrev_b32 {v(d)}, 6, {v(d)}")
        a(f"v_bfe_u32 {v(t)}, {v(vL16)}, 8, 1")
        a(f"v_lshl_add_u32 {v(d)}, {v(t)}, 5, {v(d)}")
        a(f"v_lshrrev_b32 {v(t)}, 9, {v(vL16)}")
        a(f"v_lshl_add_u32 {v(d)}, {v(t)}, 4, {v(d)}")

    def tile_addr(self, d, t):
        return [f"s_mul_i32 {s(sT0)}, {s(sW)}, 2304",
                f"s_add_u32 {s(sT0)}, {s(sT0)}, {L_STG}",
                f"v_bfe_u32 {v(t)}, {v(vL16)}, 4, 4",
                f"v_mul_u32_u24 {v(d)}, 144, {v(t)}",
                f"v_lshrrev_b32 {v(t)}, 8, {v(vL16)}",
                f"v_lshl_add_u32 {v(d)}, {v(t)}, 3, {v(d)}",
                f"v_add_u32 {v(d)}, {s(sT0)}, {v(d)}",
                f"v_lshrrev_b32 {v(t)}, 7, {v(vL16)}",
                f"v_lshl_add_u32 {v(d + 1)}, {v(t)}, 4, {v(vL16)}",
                f"v_add_u32 {v(d + 1)}, {s(sT0)}, {v(d + 1)}",
                f"v_mul_u32_u24 {v(d + 2)}, {1024 - 128}, {v(t)}",
                f"v_add_u32 {v(d + 2)}, {v(d + 2)}, {v(vL16)}"]

    def final(self):
        a = self.a
        X = AK
        if self.cfg["fin_lds"]:
            a(f"s_add_u32 {s(sT1)}, {s(sFIN)}, 8192")
            for i in range(8):
                a(f"v_cvt_pk_bf16_f32 {v(X + i)}, {v(XR + 2 * i)}, {v(XR + 2 * i + 1)}")
                if i % 4 == 3:
                    a(f"ds_write2_b64 {v(PK)}, {v(X + i - 3, 2)}, {v(X + i - 1, 2)} offset0:{(i >> 2) * 8} offset1:{(i >> 2) * 8 + 4}")
            for i in range(2):
                a(f"ds_read_b128 {v(X + 8 + 4 * i, 4)}, {v(PK + 1)} offset:{1152 * i}")
            for i in range(2):
                a(f"s_waitcnt lgkmcnt({1 - i})")
                a(f"buffer_store_dwordx4 {v(X + 8 + 4 * i, 4)}, {v(PK + 2)}, {s(sOUT, 4)}, {s((sFIN, sT1)[i])} offen{self.cfg['finflag']}")
        else:
            self.rowmajor_voff(PK, PK + 1)
            for i in range(8):
                a(f"v_cvt_pk_bf16_f32 {v(X + i)}, {v(XR + 2 * i)}, {v(XR + 2 * i + 1)}")
            for i in range(2):
                for d in range(2):
                    a(f"v_permlane16_swap_b32 {v(X + 4 * i + d)}, {v(X + 4 * i + 2 + d)}")
            for i in range(2):
                a(f"buffer_store_dwordx4 {v(X + 4 * i, 4)}, {v(PK)}, {s(sOUT, 4)}, {s(sFIN)} offen offset:{64 * i}{self.cfg['finflag']}")
        with self.only_if(f"s_cmp_eq_u32 {s(sGW)}, 0"):
            a(f"s_add_u32 {s(sEP)}, {s(sEP)}, 1")
            a(f"v_mov_b32 v0, {s(sEP)}")
            a("s_mov_b64 exec, 1")
            a(f"buffer_store_dword v0, off, {s(sWS, 4)}, 0 sc1")
            a("s_mov_b64 exec, -1")
        if self.cfg["amp"]:
            amp = self.cfg["amp"]
            self.ts("end")
            a("s_sub_u32 s72, s78, s72")
            a(f"s_mul_i32 s72, s72, {amp[2]}")
            if amp[3]:
                a("s_lshr_b32 s72, s72, 5")
            a("s_min_u32 s72, s72, 100000")
            if self.cfg.get("amp_one") is not None:
                a(f"s_cmp_eq_u32 {s(sGW)}, {self.cfg['amp_one']}")
                a("s_cselect_b32 s72, s72, 0")
            a("s_memrealtime s[78:79]")
            a("s_waitcnt lgkmcnt(0)")
            a("s_mov_b32 s73, s78")
            a.label("L_amp")
            a("s_memrealtime s[78:79]")
            a("s_waitcnt lgkmcnt(0)")
            a("s_sub_u32 s78, s78, s73")
            a("s_cmp_lt_u32 s78, s72")
            a("s_cbranch_scc1 L_amp")
        if self.cfg["ts"]:
            a("s_waitcnt vmcnt(0)")
            self.ts("end")
            a("s_memrealtime s[72:73]")
            a("s_waitcnt lgkmcnt(0)")
            for k in range(len(self.cfg["fine"])):
                a(f"v_writelane_b32 {v(vTS)}, {s(FINE[k])}, {48 + k}")
            a(f"v_writelane_b32 {v(vTS)}, {s(sLAY)}, 58")
            a(f"v_writelane_b32 {v(vTS)}, {s(sTSI)}, 59")
            a(f"v_writelane_b32 {v(vTS)}, {s(sCNT)}, 60")
            a(f"v_writelane_b32 {v(vTS)}, s78, 61")
            a(f"v_writelane_b32 {v(vTS)}, s72, 62")
            a(f"v_writelane_b32 {v(vTS)}, {s(sMODE)}, 63")
            a(f"s_lshl_b32 {s(sT0)}, {s(sGW)}, 8")
            a(f"s_add_u32 {s(sT0)}, {s(sT0)}, {DBG + 0x2000000}")
            a(f"v_lshrrev_b32 v0, 2, {v(vL16)}")
            a(f"buffer_store_dword {v(vTS)}, v0, {s(sWS, 4)}, {s(sT0)} offen")
        a.label("L_timeout")
        a.label("L_end")
        a("s_endpgm")

    def place(self):
        a = self.a
        if not self.cfg["pads"]:
            self.stat = a.layout(self.cfg["align"])
            return
        keep = list(a.ins)
        for k in range(12):
            a.ins.append(Ins(f"L_pad{k}:"))
        cnt = [0]

        def probe(k):
            cnt[0] += 1
            return f"L_tmp{cnt[0]}", "s_nop 0"
        a.layout(self.cfg["align"], probe)
        n = cnt[0]
        a.ins = keep + [Ins(f"L_pad{k}:") for k in range(12)]
        cnt[0] = 0

        def pad(_):
            k = cnt[0]
            cnt[0] += 1
            return f"L_pad{k}", f"s_cbranch_execz {self.pad_back[k]}"
        self.stat = a.layout(self.cfg["align"], pad)
        del a.ins[-12:]
        assert cnt[0] == n <= 12
        for k in range(n, 12):
            i = [x.label for x in a.ins].index(self.pad_back[k])
            a.ins.insert(i, Ins(f"L_pad{k}:"))

    def build(self):
        a = self.a
        self.prologue()
        if self.cfg["pads"]:
            a("s_branch L_layer0")
            a(".p2align 12")
            self.nook = a.ins[-1]
        for l in range(4):
            self.layer(l)
        self.final()
        hot = [k for k, x in enumerate(self.tail) if x.label and x.label.startswith("L_again")]
        blocks, rest_, k = [], [], 0
        while k < len(self.tail):
            e = k
            while self.tail[e].op != "s_branch":
                e += 1
            (blocks if k in hot else rest_).extend(self.tail[k:e + 1])
            k = e + 1
        blocks[1].pad_here = True
        a.raw(blocks + rest_)
        a.label("L_codeend")
        a("s_endpgm")
        nops = a.pad_hazards()
        self.place()
        head = open(f"cdna_kernels/{NAME}.s.ref").read().split("; Override launch")[0]
        out = head + f"; @launch grid=(256,1,1) block=(256,1,1) lds={LDS_SIZE}\n"
        out += f""".amdgcn_target "amdgcn-amd-amdhsa--gfx950"
.text
.globl {NAME}_kernel
.p2align 8
.type {NAME}_kernel,@function
{NAME}_kernel:
"""
        out += a.text()
        out += f""".section .rodata,"a"
.p2align 6
.amdhsa_kernel {NAME}_kernel
  .amdhsa_next_free_vgpr 512
  .amdhsa_next_free_sgpr 102
  .amdhsa_accum_offset 256
  .amdhsa_group_segment_fixed_size 0
  .amdhsa_kernarg_size 80
  .amdhsa_user_sgpr_count 2
  .amdhsa_user_sgpr_kernarg_segment_ptr 1
  .amdhsa_system_sgpr_workgroup_id_x 1
.end_amdhsa_kernel
"""
        self.nops = nops
        return out


if __name__ == "__main__":
    import ast
    kw = {}
    out = sys.argv[1]
    for x in sys.argv[2:]:
        k, val = x.split("=", 1)
        kw[k] = ast.literal_eval(val)
    g = Gen(**kw)
    txt = g.build()
    open(out, "w").write(txt)
    print(f"wrote {out}: {len(g.a.ins)} lines, {g.nops} pad states, layout {g.stat}", file=sys.stderr)
```

```python
import sys
import contextlib
from asmlib import Asm, Ins

NAME = "interleave_layers__linear_attn_block__linear_kernel_hedgehog__prompt"

CFG = dict(
    ts=0, rt=0,
    dump=None,
    amp=None,
    force_global=0, fine=(), pfine=(),
    n0=5, w_every=20, n1=10, warm_at=2, latepf=(0, ''), fin_lds=1, x0_lds=0, tlb='', sl_first=0, l2pf=0, l2div=1, slow0=1, f0_at=10, codepf=14, slowpf=1, align=99, pads=1, mallpf=1, x_wt=1, x_ann=1,
    hx='ffff', ho='ffff', touch=1,
    bg=((4, 6, 14, 8, 0, 0, 8), (4, 10, 10, 0, 0, 0, 0)),
    pl_step=(26, 24, 22, 20), pl_gap=(1, 1, 1, 2),
    nx0=8, nx1=4, xmix=1, otouch=0, oinit=(0, -1), nmode=1, no0=8,
    wo_every=(8, 10), qputs=(8, 8), qearly=0, pdepth=2,
    np=8, owin=(((6, 0), (2, 8), (0, 20)), ((0, 32), (4, 0), (4, 0))), ord=((0, 2, 1, 1), (2, 2, 2, 1)),
    xputs=(4, 12), spar=1, xprobe_at=5,
    finflag="", jit=0,
)

FLAGX, FLAGO, FLAGX2, ANN, HELLO = 0x1000, 0x3000, 0x7000, 0x9000, 0xA0000
STATS, STATS_G = [0x10000, 0x30000], 0x40000
XB = [0, 0x800000]
OB = [0x400000, 0x600000]
KVP = [0xC0000 + 0x90000 * l for l in range(4)]
DBG = 0x1000000
WS_SIZE = 0x8000000
L_P, L_WQ, L_STG = 0x0, [0x10000, 0x18000], 0x20000
L_KVF = 0x26000
KS = 592
L_WPF = L_KVF + 4 * KS
L_ZB = L_WPF + 2 * KS
L_CSP = L_ZB + 128
L_SEL = L_CSP + 3072
LDS_SIZE = 0x28000
XF, AK, AV, RG, LG, XR, PK = 0, 128, 144, 160, 192, 208, 224
vSTR, vSTR2, vPST, vZST, vKFW, vZW, vZR, vOST = range(184, 192)
vL16, vWRD, vSTW, vKFR, vS, vRS, vM, vXST, vSST, vSLD, vPOLL, vWOR, vWOW, vWKW, vCSR, vTS = range(240, 256)
A_WKV, A_WO = [0, 64], [128, 192]
sID = 2
sPX, sPWA, sPWOA, sPBX, sPWB, sPPHI, sPWOB, sPOUT, sPDBG, sPWS = range(4, 24, 2)
sWS, sOUT, sTMP = 24, 28, 32
XS = [sOUT, sWS]
(sW, sC, sR, sXLD, sSTLD, sFXP, sOST, sFOS, sOLD, sFOP, sXST, sSTST, sFXS, sKVT, sTAG, sMODE, sPASS,
 sEP, sXCC, sT0, sT1, sT2, sT3, sCNT, sWOFF, sQOFF, sOOFF, sHEL, sLN2, sLN2b, sDELTA, sFIN) = range(36, 68)
sHI = 68
sSAVE = 70
sTSA = 72
sTSI = 74
sGW = 75
sLAY = 76
sANN = 77
sW13 = 98
sSKIP = 3
sPF = 0
sTG = 1
sPM = 96
sSW, sSO = [80, 84], [88, 92]
vBW, vBO, vHL = RG + 20, RG + 21, RG + 22
vPR, vPB, vPA, vCK = PK + 10, PK + 11, PK + 7, PK + 6
sROW = sPM
sCOL = sPBX
assert sLN2 % 2 == 0

FINE = [4, 6, 8, 12, 14, 16, 18, 20, 22, 32]
LOG2E = 0x3FB8AA3B
LN2 = 0x3F317218
DELTA = 0x35C1A4C3
import struct
def f2u(x): return struct.unpack("<I", struct.pack("<f", x))[0]
DELTA = f2u(1e-6 * 1.4426950408889634)


def v(a, n=1): return f"v{a}" if n == 1 else f"v[{a}:{a + n - 1}]"
def ar(a, n=1): return f"a{a}" if n == 1 else f"a[{a}:{a + n - 1}]"
def s(a, n=1): return f"s{a}" if n == 1 else f"s[{a}:{a + n - 1}]"


class Gen:
    def __init__(self, **kw):
        self.cfg = dict(CFG)
        self.cfg.update(kw)
        self.a = Asm()
        self.tail = []
        self.nts = 0
        self.tsnames = []
        self.side = []
        self.side_every = 1
        self.pad_back = {}
        self.xb, self.ob = [0], [0]
        assert self.cfg["hx"][0] == "f" and self.cfg["ho"][0] == "f"
        for l in range(1, 4):
            self.xb.append(self.xb[-1] ^ (self.cfg["hx"][l] == "s"))
            self.ob.append(self.ob[-1] ^ (self.cfg["ho"][l] == "s"))

    @contextlib.contextmanager
    def uncounted(self):
        a = self.a
        vm, lg = list(a.vm), list(a.lg)
        yield
        a.vm, a.lg = vm, lg

    @contextlib.contextmanager
    def only_if(self, cmp):
        a = self.a
        l = a.newlabel("skip")
        a(cmp)
        a(f"s_cbranch_scc0 {l}")
        with self.uncounted():
            yield
        a.label(l)

    @contextlib.contextmanager
    def outofline(self):
        a = self.a
        n0 = len(a.ins)
        with self.uncounted():
            yield
        self.tail += a.ins[n0:]
        del a.ins[n0:]

    def code_pf(self, lo, hi, t):
        a = self.a
        n = f"(({hi}-{lo})/1024+1)"
        a(f"s_bfe_u32 {s(sT0)}, {s(sID)}, {3 | (3 << 16)}")
        a(f"s_mul_i32 {s(sT0)}, {s(sT0)}, {n}*128")
        a(f"s_add_u32 {s(sT0)}, {s(sT0)}, {lo}-L_pc")
        a(f"v_lshlrev_b32 {v(t)}, 3, {v(vL16)}")
        a(f"v_min_u32 {v(t)}, ({n}-1)*128, {v(t)}")
        a(f"v_add_u32 {v(t)}, {s(sT0)}, {v(t)}")
        a(f"v_min_u32 {v(t)}, L_codeend-L_pc, {v(t)}")
        a(f"global_load_dword {v(t)}, {v(t)}, {s(sSAVE, 2)}")

    def warm(self, g):
        a = self.a
        if not self.cfg["pads"]:
            return
        a("s_mov_b64 exec, 0")
        for k in range(3):
            a(f"s_cmp_eq_u32 {s(sW)}, {k}")
            a(f"s_cbranch_scc1 L_pad{4 * g + k}")
        a(f"s_branch L_pad{4 * g + 3}")
        a.label(f"L_warmed{g}")
        a("s_mov_b64 exec, -1")
        for k in range(4):
            self.pad_back[4 * g + k] = f"L_warmed{g}"

    @contextlib.contextmanager
    def waves01(self, pads):
        a = self.a
        if not self.cfg["pads"]:
            with self.only_if(f"s_cmp_lt_u32 {s(sW)}, 2"):
                yield
                a("s_mov_b64 exec, -1")
            return
        st, back = a.newlabel("stub"), a.newlabel("back")
        a(f"s_cmp_lt_u32 {s(sW)}, 2")
        a(f"s_cbranch_scc0 {st}")
        with self.uncounted():
            yield
        a.label(back)
        a("s_mov_b64 exec, -1")
        i = a.ins.index(self.nook)
        a.ins[i:i] = [Ins(x) for x in (f"{st}:", "s_mov_b64 exec, 0", f"s_cmp_eq_u32 {s(sW)}, 2", f"s_cbranch_scc1 L_pad{pads[0]}", f"s_branch L_pad{pads[1]}")]
        for x in a.ins[i:i + 5] + a.ins[-1:]:
            x.nopad = True
        for k in pads:
            self.pad_back[k] = back

    def countdown(self):
        self.a(f"s_sub_u32 {s(sCNT)}, {s(sCNT)}, 1")
        self.a("s_cbranch_scc1 L_timeout")

    def bg_region(self, n, slots):
        n = min(n, len(self.bg))
        self.bg_slot = 0
        self.bg_at = [(k * slots) // n for k in range(n)]

    def bg_tick(self):
        for _ in range(self.bg_at.count(self.bg_slot)):
            self.bg.pop(0)()
        self.bg_slot += 1

    def bg_now(self, n):
        for _ in range(min(n, len(self.bg))):
            self.bg.pop(0)()

    def ticker(self):
        def e(text, **kw):
            if self.side and self.bg_slot % self.side_every == 0:
                self.side.pop(0)()
            self.bg_tick()
            self.a(text, **kw)
        return e

    def moded(self, lines, tag=None, reg=sMODE, wt=False, cmp=True):
        a = self.a
        if wt:
            for l in lines:
                a(l + (" sc1" if l.startswith("buffer_store") else ""), vm=tag)
            return
        lg, lj = a.newlabel("glob"), a.newlabel("join")
        if cmp:
            a(f"s_cmp_eq_u32 {s(reg)}, 0")
        a(f"s_cbranch_scc0 {lg}")
        for l in lines:
            a(l, vm=tag)
        a.label(lj)
        t = [Ins(lg + ":")] + [Ins(l + (" sc1" if l.startswith("buffer_store") else "")) for l in lines] + [Ins(f"s_branch {lj}")]
        self.tail += t

    def srd_tmp(self, ptr, size):
        a = self.a
        a(f"s_mov_b32 {s(sTMP)}, {s(ptr)}")
        a(f"s_mov_b32 {s(sTMP + 1)}, {s(ptr + 1)}")
        a(f"s_mov_b32 {s(sTMP + 2)}, {size}")

    def ts(self, name):
        a = self.a
        self.fine(name)
        amp = self.cfg["amp"]
        if amp:
            for k in range(2):
                if amp[k] == name:
                    a(f"{'s_memtime' if amp[3] else 's_memrealtime'} {s(72 + 6 * k, 2)}")
                    if name != "start":
                        a("s_waitcnt lgkmcnt(0)")
        if not self.cfg["ts"] or name == "start":
            return
        if self.cfg["ts"] == 1 and name.startswith("p_"):
            return
        if self.cfg["ts"] == 4 and name not in ("kernarg", "end"):
            return
        if self.cfg["ts"] == 3 and name not in ("x0", "flag0", "poll0", "end") and name[2:] not in ("kvgemm", "ogemm"):
            return
        if self.cfg["ts"] == 2 and ":" in name and name[2:] not in ("kvgemm", "bar3", "ogemm"):
            return
        a(f"{'s_memrealtime' if self.cfg['rt'] else 's_memtime'} {s(sTSA, 2)}")
        a("s_waitcnt lgkmcnt(0)")
        a.lg.clear()
        a(f"v_writelane_b32 {v(vTS)}, {s(sTSA)}, {len(self.tsnames)}")
        self.tsnames.append(name)
        assert len(self.tsnames) <= 56

    def fine(self, name):
        if name in self.cfg["pfine"]:
            self.a(f"s_memtime {s(84 + 2 * list(self.cfg['pfine']).index(name), 2)}")
        if name in self.cfg["fine"]:
            self.a(f"s_memtime {s(FINE[list(self.cfg['fine']).index(name)], 2)}")

    def dump(self, point, l, regs, tmp):
        if self.cfg["dump"] != (point, l):
            return
        a = self.a
        with self.uncounted():
            a("s_waitcnt vmcnt(0) lgkmcnt(0)")
            a("s_nop 15")
            a(f"v_lshrrev_b32 {v(tmp)}, 2, {v(vL16)}")
            a(f"s_mul_i32 {s(sT0)}, {s(sGW)}, {64 * 256}")
            a(f"s_add_u32 {s(sT0)}, {s(sT0)}, {DBG}")
            for i, r in enumerate(regs):
                a(f"buffer_store_dword {v(r)}, {v(tmp)}, {s(sWS, 4)}, {s(sT0)} offen")
                a(f"s_add_u32 {s(sT0)}, {s(sT0)}, 256")
            a("s_waitcnt vmcnt(0)")

    def poll(self, voff, soff, tmp, tag=sTG):
        a = self.a
        l = a.newlabel("poll")
        a.label(l)
        a(f"buffer_load_dword {v(tmp)}, {v(voff)}, {s(sWS, 4)}, {s(soff)} offen sc1")
        self.countdown()
        a.wait(vm=0)
        a(f"v_cmp_ne_u32 vcc, {s(tag)}, {v(tmp)}")
        a(f"s_cbranch_vccnz {l}")

    def flag(self, soff, tmp, after=0):
        a = self.a
        a("s_mov_b64 exec, 1")
        self.moded(a.wait_text(vm=after) + [f"buffer_store_dword {v(tmp)}, off, {s(sWS, 4)}, {s(soff)}"])
        a("s_mov_b64 exec, -1")

    def w_voff(self, t):
        a = self.a
        a(f"v_lshrrev_b32 {v(t)}, 6, {v(vL16)}")
        a(f"v_mul_u32_u24 {v(t)}, {3072 - 64}, {v(t)}")
        a(f"v_add_u32 {v(t)}, {v(t)}, {v(vL16)}")

    def ld_wkv(self, T, i, t, st=sT0):
        a = self.a
        a(f"s_add_u32 {s(st)}, {s(sWOFF)}, {i * 32 * 3072}")
        a(f"buffer_load_dwordx4 {ar(A_WKV[T] + 4 * i, 4)}, {v(t)}, {s(sSW[T], 4)}, {s(st)} offen", vm=f"wkv{i}")

    def ld_wq(self, T, i):
        a = self.a
        a(f"s_add_u32 m0, {s(sW13)}, {L_WQ[T] + i * 1024}")
        a(f"s_add_u32 {s(sT0)}, {s(sQOFF)}, {i * 16 * 3072}")
        a(f"buffer_load_dwordx4 {v(self.bw)}, {s(sSW[T], 4)}, {s(sT0)} offen lds", vm="wq")

    def ld_wo(self, T, i):
        a = self.a
        a(f"s_add_u32 {s(sT0)}, {s(sOOFF)}, {i * 32 * 1024}")
        a(f"buffer_load_dwordx4 {ar(A_WO[T] + 4 * i, 4)}, {v(vBO)}, {s(sSO[T], 4)}, {s(sT0)} offen", vm=f"wo{i}")

    def slow_pf(self, srd, n, t):
        a = self.a
        if not self.cfg["slowpf"]:
            return
        a(f"s_sub_u32 {s(sT0)}, 0x180, {s(srd)}")
        a(f"s_and_b32 {s(sT0)}, {s(sT0)}, 0x380")
        a(f"s_mul_i32 {s(sT1)}, {s(sPF)}, {n * 1024}")
        a(f"s_add_u32 {s(sT0)}, {s(sT0)}, {s(sT1)}")
        a(f"v_lshlrev_b32 {v(t)}, 6, {v(vL16)}")
        a(f"s_mov_b64 exec, {(1 << n) - 1:#x}")
        a(f"buffer_load_dword {v(t)}, {v(t)}, {s(srd, 4)}, {s(sT0)} offen")
        a("s_mov_b64 exec, -1")

    def chip_pf(self, srd, n, t):
        a = self.a
        a(f"s_lshl2_add_u32 {s(sT0)}, {s(sID)}, {s(sW)}")
        a(f"s_mul_i32 {s(sT0)}, {s(sT0)}, {n * 128}")
        a(f"v_lshlrev_b32 {v(t)}, 3, {v(vL16)}")
        a(f"s_mov_b64 exec, {(1 << n) - 1:#x}")
        a(f"buffer_load_dword a255, {v(t)}, {s(srd, 4)}, {s(sT0)} offen")
        a("s_mov_b64 exec, -1")

    def bg_setup(self, T):
        self.bg = [(lambda i=i: self.ld_wq(T, i)) for i in range(8)] + [(lambda i=i: self.ld_wo(T, i)) for i in range(16)]
        if T == 0:
            self.bg += [(lambda i=i: self.ld_wkv(1, i, vBW)) for i in range(16)]
            at, which = self.cfg["latepf"]
            old = self.bg[at]

            def both():
                t = RG + 23 if self.bw == vBW else PK + 8
                for c_ in which:
                    self.chip_pf(*{"a": (sSW[0], 12), "b": (sSW[1], 12), "A": (sSO[0], 4), "B": (sSO[1], 4)}[c_], t)
                old()
            self.bg[at] = both

    def put_wkv(self, T, lo, hi, waits=False):
        for i in range(lo, hi):
            if waits:
                self.a.wait(vm=f"wkv{i}")
            self.a(f"ds_write_b128 {v(vWKW)}, {ar(A_WKV[T] + 4 * i, 4)} offset:{i * 2048}", lg="put")

    def put_wo(self, T, i):
        self.a(f"ds_write_b128 {v(vWOW)}, {ar(A_WO[T] + 4 * i, 4)} offset:{i * 1024}", lg="putwo")

    @staticmethod
    def woff(j, u):
        return (j >> 2) * 4096 + u * 1024 + (j & 3) * 256

    def cs_kv_step(self, T, i, sel, d):
        self.a(f"v_mfma_f32_16x16x32_bf16 {v(d, 4)}, {v(sel, 4)}, {ar(A_WKV[T] + 4 * i, 4)}, {v(d, 4) if i else 0}")

    def cs_q_fin(self, T, d, t):
        o = [f"s_lshl_b32 {s(sT2)}, {s(sW)}, 2\ns_add_u32 {s(sT2)}, {s(sT2)}, {L_CSP + T * 1536 + 1024}",
             f"v_lshrrev_b32 {v(t)}, 9, {v(vL16)}\nv_lshl_add_u32 {v(t)}, {v(t)}, 5, {s(sT2)}"]
        for bit, sh in ((4, 8), (8, 7), (5, 6)):
            o.append(f"v_bfe_u32 {v(t + 1)}, {v(vL16)}, {bit}, 1\nv_lshl_add_u32 {v(t)}, {v(t + 1)}, {sh}, {v(t)}")
        f = [f"v_permlane32_swap_b32 {v(d)}, {v(d + 2)}", f"v_permlane32_swap_b32 {v(d + 1)}, {v(d + 3)}",
             f"v_add_f32 {v(d)}, {v(d)}, {v(d + 2)}\nv_add_f32 {v(d + 1)}, {v(d + 1)}, {v(d + 3)}"]
        for ror in (4, 8):
            f.append(f"v_add_f32 {v(d)}, {v(d)}, {v(d)} row_ror:{ror}\nv_add_f32 {v(d + 1)}, {v(d + 1)}, {v(d + 1)} row_ror:{ror}")
        f.append(lambda: self.a(f"ds_write2_b32 {v(t)}, {v(d)}, {v(d + 1)} offset0:0 offset1:4", lg="csw"))
        return o, f

    def cs_kv_fin(self, T, d, t):
        a = self.a
        a(f"s_and_b32 {s(sT0)}, {s(sW)}, 1")
        a(f"s_lshl_b32 {s(sT0)}, {s(sT0)}, 9")
        a(f"s_and_b32 {s(sT1)}, {s(sW)}, 2")
        a(f"s_lshl_b32 {s(sT1)}, {s(sT1)}, 2")
        a(f"s_add_u32 {s(sT0)}, {s(sT0)}, {s(sT1)}")
        a(f"s_add_u32 {s(sT0)}, {s(sT0)}, {L_CSP + T * 1536}")
        a(f"v_lshrrev_b32 {v(t)}, 9, {v(vL16)}")
        a(f"v_lshl_add_u32 {v(t)}, {v(t)}, 2, {s(sT0)}")
        a(f"v_bfe_u32 {v(t + 1)}, {v(vL16)}, 4, 1")
        a(f"v_lshl_add_u32 {v(t)}, {v(t + 1)}, 8, {v(t)}")
        a(f"v_bfe_u32 {v(t + 1)}, {v(vL16)}, 8, 1")
        a(f"v_lshl_add_u32 {v(t)}, {v(t + 1)}, 7, {v(t)}")
        a(f"v_bfe_u32 {v(t + 1)}, {v(vL16)}, 5, 1")
        a(f"v_lshl_add_u32 {v(t)}, {v(t + 1)}, 6, {v(t)}")
        for ror in (4, 8):
            for i in range(4):
                a(f"v_add_f32 {v(d + i)}, {v(d + i)}, {v(d + i)} row_ror:{ror}")
        a(f"ds_write2_b32 {v(t)}, {v(d)}, {v(d + 1)} offset0:0 offset1:4")
        a(f"ds_write2_b32 {v(t)}, {v(d + 2)}, {v(d + 3)} offset0:8 offset1:12")

    def mark_slot(self, delta, ones):
        a = self.a
        a(f"s_add_u32 {s(sT2)}, {s(sKVT)}, {delta}")
        a(f"s_mov_b64 exec, {s(sROW, 2)}")
        a(f"buffer_store_dwordx4 {v(ones, 4)}, {v(vPST)}, {s(sWS, 4)}, {s(sT2)} offen sc1", vm="mark")
        a(f"s_mov_b64 exec, {s(sCOL, 2)}")
        a(f"buffer_store_dwordx4 {v(ones, 4)}, {v(vZST)}, {s(sWS, 4)}, {s(sT2)} offen sc1", vm="mark")
        a("s_mov_b64 exec, -1")

    def sel_read(self, sel):
        a = self.a
        a(f"v_and_b32 {v(sel)}, 0x1f0, {v(vL16)}")
        a(f"v_add_u32 {v(sel)}, {L_SEL:#x}, {v(sel)}")
        a(f"ds_read_b128 {v(sel, 4)}, {v(sel)}", lg="sel")

    @staticmethod
    def cs_pack(src, dst):
        return [
            f"v_add_f32 {v(src)}, {v(src)}, {v(src + 2)}",
            f"v_add_f32 {v(src + 1)}, {v(src + 1)}, {v(src + 3)}",
            f"v_add_f32 {v(src)}, {v(src)}, {v(src + 1)}",
            f"v_cvt_pk_bf16_f32 {v(src + 1)}, {v(src)}, {v(src)}",
            f"v_and_b32 {v(src + 1)}, 0xffff0000, {v(src + 1)}",
            f"v_sub_f32 {v(src)}, {v(src)}, {v(src + 1)}",
            f"v_cvt_pk_bf16_f32 {v(dst)}, {v(src + 1)}, {v(src)}",
        ]

    def x_steps(self, B, src, X, wt=False, par=0):
        a = self.a
        t = X + 8
        st = []
        E = lambda txt: st.append(lambda: a(txt))
        xl = []
        for h in range(2):
            xl += [f"v_cvt_pk_bf16_f32 {v(X + i)}, {v(src + 2 * i)}, {v(src + 2 * i + 1)}" for i in range(4 * h, 4 * h + 4)]
            xl += [f"buffer_store_dwordx4 {v(X + 4 * h, 4)}, {v(vXST)}, {s(XS[B], 4)}, {s(sXST)} offen offset:{h * 512}"]
        st.append(lambda: self.moded(xl, tag="xst", wt=wt))
        E(f"v_pk_add_f32 {v(t, 2)}, {v(src, 2)}, {v(src + 2, 2)}")
        E(f"v_pk_mul_f32 {v(t + 2, 2)}, {v(src, 2)}, {v(src, 2)}")
        E(f"v_pk_fma_f32 {v(t + 2, 2)}, {v(src + 2, 2)}, {v(src + 2, 2)}, {v(t + 2, 2)}")
        for i in range(2, 8):
            E(f"v_pk_add_f32 {v(t, 2)}, {v(t, 2)}, {v(src + 2 * i, 2)}")
            E(f"v_pk_fma_f32 {v(t + 2, 2)}, {v(src + 2 * i, 2)}, {v(src + 2 * i, 2)}, {v(t + 2, 2)}")
        E(f"v_add_f32 {v(t)}, {v(t)}, {v(t + 1)}")
        E(f"v_add_f32 {v(t + 2)}, {v(t + 2)}, {v(t + 3)}")
        E(f"v_permlane32_swap_b32 {v(t)}, {v(t + 2)}")
        E(f"v_add_f32 {v(t)}, {v(t)}, {v(t + 2)}")
        E(f"v_mov_b32 {v(t + 1)}, {v(t)}")

        def stat():
            self.moded([f"v_permlane16_swap_b32 {v(t)}, {v(t + 1)}", f"s_mov_b64 exec, {s(sROW, 2)}", f"v_add_f32 {v(t)}, {v(t)}, {v(t + 1)}",
                        f"v_or_b32 {v(t)}, 1, {v(t)}" if par else f"v_and_b32 {v(t)}, -2, {v(t)}",
                        f"buffer_store_dword {v(t)}, {v(vSST)}, {s(sWS, 4)}, {s(sSTST)} offen"], tag="sst")
            a("s_mov_b64 exec, -1")
        st.append(stat)
        return st

    def ldx(self, B, j):
        a = self.a
        if j % 4 == 0 and j:
            a(f"s_add_u32 {s(sT3)}, {s(sXLD)}, {XB[B] + j * 1024}")
        a(f"buffer_load_dwordx4 {v(XF + 4 * j, 4)}, {v(vL16)}, {s(XS[B], 4)}, {s(sT3 if j >= 4 else sXLD)} offen offset:{(j % 4) * 1024} sc1", vm=f"x{j}")

    def probe(self, what, reg, setexec=True):
        a = self.a
        voff, srd, soff, off, _ = what
        if setexec:
            a("s_mov_b64 exec, 0xffff")
        a(f"buffer_load_dword {v(reg)}, {v(voff)}, {s(srd, 4)}, {s(soff)} offen offset:{off} sc1", vm="probe")
        if setexec:
            a("s_mov_b64 exec, -1")

    def spin_more(self, what, name):
        a = self.a
        a(f"s_branch L_over{name}")
        a.label(f"L_more{name}")
        with self.uncounted():
            self.probe(what, vPR, False)
            self.countdown()
            a("s_waitcnt vmcnt(1)")
            a(f"{what[4]}, {v(vPB)}")
            a(f"s_cbranch_vccz L_go{name}")
            a(f"s_branch L_spin{name}")
        a.label(f"L_over{name}")
        self.nook = a.ins[-1]

    def spin(self, what, name):
        a = self.a
        a("s_mov_b64 exec, 0xffff")
        a.label(f"L_spin{name}")
        self.probe(what, vPB, False)
        a("s_waitcnt vmcnt(1)")
        a(f"{what[4]}, {v(vPR)}")
        a(f"s_cbranch_vccnz L_more{name}")
        a.label(f"L_go{name}")
        a("s_mov_b64 exec, -1")
        a.vm.clear()

    def what_x(self, l):
        if self.cfg["hx"][l] == "s":
            return (vPA, XS[self.xb[l]], sT3, 3824, "v_cmp_eq_u32 vcc, -1")
        return (vPOLL, sWS, sFXP, 0, f"v_cmp_ne_u32 vcc, {s(sTG)}")

    def what_o(self, l):
        if self.cfg["ho"][l] == "s":
            return (vPA, sWS, sT3, 1008, "v_cmp_eq_u32 vcc, -1")
        return (vPOLL, sWS, sFOP, 0, f"v_cmp_ne_u32 vcc, {s(sTG)}")

    def x_probe_addr(self):
        return [f"v_and_b32 {v(vPR)}, 4, {v(vPOLL)}",
                f"v_mul_u32_u24 {v(vPR)}, 448, {v(vPR)}",
                f"v_lshlrev_b32 {v(vPA)}, 9, {v(vPOLL)}",
                f"v_sub_u32 {v(vPA)}, {v(vPA)}, {v(vPR)}"]

    def phi_a(self, acc, tmp, after=None):
        a = self.ticker()
        for i in range(8):
            a(f"v_pk_mul_f32 {v(acc + 2 * i, 2)}, {v(acc + 2 * i, 2)}, {v(vS, 2)} op_sel_hi:[1,0]")
        for i in range(16):
            a(f"v_exp_f32_e64 {v(tmp + i)}, {v(acc + i)} clamp")
            a(f"v_max_f32 {v(acc + i)}, {s(sDELTA)}, {v(acc + i)}")
        for h in range(2):
            for i in range(4 * h, 4 * h + 4):
                a(f"v_pk_fma_f32 {v(acc + 2 * i, 2)}, {v(acc + 2 * i, 2)}, {s(sLN2, 2)}, {v(tmp + 2 * i, 2)}")
            for i in range(4 * h, 4 * h + 4):
                a(f"v_cvt_pk_bf16_f32 {v(PK + i)}, {v(acc + 2 * i)}, {v(acc + 2 * i + 1)}")
            if after:
                after(h)

    def logits(self, between=None):
        a = self.a
        a.wait(lg="wp")
        for i in range(6):
            a(f"v_cvt_pk_bf16_f32 {v(PK + i)}, {v(AK + 2 * i)}, {v(AK + 2 * i + 1)}")
        a(f"v_mfma_f32_32x32x16_bf16 {v(LG, 16)}, {v(PK + 8, 4)}, {v(PK, 4)}, 0")
        for i in range(6, 8):
            a(f"v_cvt_pk_bf16_f32 {v(PK + i)}, {v(AK + 2 * i)}, {v(AK + 2 * i + 1)}")
        if between:
            between()
        a(f"v_mfma_f32_32x32x16_bf16 {v(LG, 16)}, {v(PK + 12, 4)}, {v(PK + 4, 4)}, {v(LG, 16)}")

    def softmax2(self, t, isq, after=None):
        a = self.ticker()
        a(f"v_max3_f32 {v(t)}, {v(LG)}, {v(LG + 1)}, {v(LG + 2)}")
        a(f"v_min3_f32 {v(t + 1)}, {v(LG)}, {v(LG + 1)}, {v(LG + 2)}")
        for i in range(3, 15, 2):
            a(f"v_max3_f32 {v(t)}, {v(t)}, {v(LG + i)}, {v(LG + i + 1)}")
            a(f"v_min3_f32 {v(t + 1)}, {v(t + 1)}, {v(LG + i)}, {v(LG + i + 1)}")
        a(f"v_max_f32 {v(t)}, {v(t)}, {v(LG + 15)}")
        a(f"v_min_f32 {v(t + 1)}, {v(t + 1)}, {v(LG + 15)}")
        a(f"v_pk_mul_f32 {v(t, 2)}, {v(t, 2)}, {v(vS, 2)} op_sel_hi:[1,0]")
        for sg, E in ((0, AK), (1, LG)):
            for i in range(8):
                if sg == 0:
                    a(f"v_pk_fma_f32 {v(E + 2 * i, 2)}, {v(LG + 2 * i, 2)}, {v(vS, 2)}, {v(t, 2)} op_sel_hi:[1,0,0] neg_lo:[0,0,1] neg_hi:[0,0,1]")
                else:
                    a(f"v_pk_fma_f32 {v(E + 2 * i, 2)}, {v(LG + 2 * i, 2)}, {v(vS, 2)}, {v(t, 2)} op_sel:[0,0,1] op_sel_hi:[1,0,1] neg_lo:[1,0,0] neg_hi:[1,0,0]")
            for i in range(16):
                a(f"v_exp_f32 {v(E + i)}, {v(E + i)}")
            S = t + 2 + 2 * sg
            a(f"v_pk_add_f32 {v(S, 2)}, {v(E, 2)}, {v(E + 2, 2)}")
            for i in range(2, 8):
                a(f"v_pk_add_f32 {v(S, 2)}, {v(S, 2)}, {v(E + 2 * i, 2)}")
            a(f"v_add_f32 {v(S)}, {v(S)}, {v(S + 1)}")
            if not (isq and sg == 0):
                a(f"v_rcp_f32 {v(S)}, {v(S)}")
                if isq:
                    a(f"v_mul_f32 {v(t + 6)}, {f2u(1e-6):#x}, {v(t + 2)}")
                    a(f"v_mul_f32 {v(S)}, {v(S)}, {v(t + 2)}")
            for h in range(2):
                for i in range(4 * h, 4 * h + 4):
                    if not (isq and sg == 0):
                        a(f"v_pk_mul_f32 {v(E + 2 * i, 2)}, {v(E + 2 * i, 2)}, {v(S, 2)} op_sel_hi:[1,0]")
                for i in range(4 * h, 4 * h + 4):
                    a(f"v_cvt_pk_bf16_f32 {v(PK + 8 * sg + i)}, {v(E + 2 * i)}, {v(E + 2 * i + 1)}")
                if after:
                    after(2 * sg + h)

    def layer(self, l):
        a, cfg = self.a, self.cfg
        T, first, last = l & 1, l < 2, l == 3
        NJ = 2 if T == 0 else 4
        skip23 = (lambda: self.only_if(f"s_cmp_lt_u32 {s(sW)}, 2")) if T == 0 else contextlib.nullcontext
        bgn = cfg["bg"][l] if first else (0,) * 7
        self.bg = []
        if first:
            self.bg_setup(T)
            assert sum(bgn) >= len(self.bg) and bgn[0] + bgn[1] >= 8 and sum(bgn[:3]) >= 8 + cfg['np'] and sum(bgn[:5]) >= 24 and bgn[0] <= 8 and bgn[6] <= 8
        NX = cfg["nx0"]
        wx = (vPOLL, sWS, sFXP, 0, f"v_cmp_ne_u32 vcc, {s(sTG)}")
        wo_ = (vPOLL, sWS, sFOP, 0, f"v_cmp_ne_u32 vcc, {s(sTG)}")
        a.label(f"L_layer{l}")
        if l:
            self.spin(wx, f"x{l}")
        a.vm.clear()
        self.ts(f"{l}:xpoll")
        ST = LG
        CS = LG + 8
        CSA, MB = PK, PK + 2
        D = 3

        def rd(j, p):
            for u in range(2):
                a(f"ds_read_b64_tr_b16 {v(RG + (j % D) * 8 + 4 * p + 2 * u, 2)}, {v(vWRD)} offset:{p * 32768 + self.woff(j, u)}", lg=f"w{j}")

        def ldx(j):
            self.ldx(0, j)
            if j == max(NX, 9):
                a(f"buffer_load_dwordx4 {v(ST, 4)}, {v(vSLD)}, {s(sWS, 4)}, {s(sSTLD)} offen sc1", vm="st")
            if j == max(NX, 9) + 2:
                a(f"buffer_load_dwordx4 {v(ST + 4, 4)}, {v(vSLD)}, {s(sWS, 4)}, {s(sSTLD)} offen offset:512 sc1", vm="st")
        nx1 = cfg["nx1"]
        for j in range(nx1):
            ldx(j)
        for i in self.puts_left:
            self.put_wkv(T, i, i + 1)
            if nx1 < NX and cfg["xmix"]:
                ldx(nx1)
                nx1 += 1
        a.wait(lg=0)
        a("s_barrier")
        self.ts(f"{l}:bar1")
        pre = [(j, p) for j in range(D) for p in range(2)]
        for j in range(nx1, NX):
            for _ in range(2):
                if pre:
                    rd(*pre.pop(0))
            ldx(j)
        while pre:
            rd(*pre.pop(0))
        a(f"ds_read_b128 {v(CS, 4)}, {v(vCSR)} offset:{T * 1536}", lg="cs")
        a(f"ds_read_b128 {v(CS + 4, 4)}, {v(vCSR)} offset:{T * 1536 + 512}", lg="cs")
        t, u_ = ST, ST + 1
        stat = []
        if l and cfg["spar"]:
            CK = PK + 6
            op = "0x80" if T else "0xfe"
            stat = [f"L_sums{l}:\nv_bitop3_b32 {v(CK)}, {v(ST)}, {v(ST + 1)}, {v(ST + 2)} bitop3:{op}",
                    f"v_bitop3_b32 {v(CK)}, {v(CK)}, {v(ST + 3)}, {v(ST + 4)} bitop3:{op}\n"
                    f"v_bitop3_b32 {v(CK)}, {v(CK)}, {v(ST + 5)}, {v(ST + 6)} bitop3:{op}\n"
                    f"v_bitop3_b32 {v(CK)}, {v(CK)}, {v(ST + 7)}, 1 bitop3:{'0x80' if T else '0xa8'}\n"
                    f"v_cmp_ne_u32 vcc, {T}, {v(CK)}\n"
                    f"s_cbranch_vccnz L_sumsre{l}"]
            stat = [None, stat[0] + "\n" + stat[1]]
            with self.outofline():
                a.label(f"L_sumsre{l}")
                self.countdown()
                for i in range(2):
                    a(f"buffer_load_dwordx4 {v(ST + 4 * i, 4)}, {v(vSLD)}, {s(sWS, 4)}, {s(sSTLD)} offen offset:{512 * i} sc1")
                a("s_waitcnt vmcnt(0)")
                a(f"s_branch L_sums{l}")
        stat += [
            f"v_add_f32 {v(ST)}, {v(ST)}, {v(ST + 2)}",
            f"v_add_f32 {v(ST + 1)}, {v(ST + 1)}, {v(ST + 3)}",
            f"v_add_f32 {v(ST + 4)}, {v(ST + 4)}, {v(ST + 6)}",
            f"v_add_f32 {v(ST + 5)}, {v(ST + 5)}, {v(ST + 7)}",
            f"v_add_f32 {v(ST)}, {v(ST)}, {v(ST + 4)}",
            f"v_add_f32 {v(ST + 1)}, {v(ST + 1)}, {v(ST + 5)}",
            f"v_add_f32 {v(t)}, {v(ST)}, {v(ST + 1)}",
            f"v_mul_f32 {v(t)}, {f2u(1 / 512):#x}, {v(t)}",
            f"v_mov_b32 {v(u_)}, {v(t)}",
            f"v_permlane32_swap_b32 {v(t)}, {v(u_)}",
            f"v_fma_f32 {v(u_)}, -{v(t)}, {v(t)}, {v(u_)}",
            f"v_max_f32 {v(u_)}, 0, {v(u_)}",
            f"v_cvt_pk_bf16_f32 {v(vM)}, -{v(t)}, -{v(t)}",
            f"v_cvt_pk_bf16_f32 {v(u_)}, {v(u_)}, {v(u_)}",
            f"v_and_b32 {v(u_)}, 0xffff0000, {v(u_)}",
            f"v_add_f32 {v(u_)}, {f2u(1e-5):#x}, {v(u_)}",
            f"v_cvt_pk_bf16_f32 {v(u_)}, {v(u_)}, {v(u_)}",
            f"v_and_b32 {v(u_)}, 0xffff0000, {v(u_)}",
            f"v_sqrt_f32 {v(u_)}, {v(u_)}",
            f"v_cndmask_b32 {v(vM)}, {v(vM)}, 0, {s(sHI, 2)}",
            f"v_cvt_pk_bf16_f32 {v(u_)}, {v(u_)}, {v(u_)}",
            f"v_and_b32 {v(u_)}, 0xffff0000, {v(u_)}",
            f"v_rcp_f32 {v(vRS)}, {v(u_)}",
            f"v_mov_b32 {v(MB)}, {v(vM)}",
            f"v_mul_f32 {v(vS)}, {LOG2E:#x}, {v(vRS)}",
            f"v_mov_b32 {v(MB + 3)}, {v(vM)}",
        ]
        js = max(NX, 9) + 3
        fill = [f"v_mov_b32 {v(MB + 1)}, 0", f"v_mov_b32 {v(MB + 2)}, 0"]
        if l == 0:
            fill += [f"v_mov_b32 {v(PK + 12 + i)}, -1" for i in range(4)]
        fill += [None] * (2 * D - len(fill)) + self.cs_pack(CS, CSA) + self.cs_pack(CS + 4, CSA + 1)
        self.bw = CS + 2
        if first:
            fill += [f"v_lshrrev_b32 {v(self.bw)}, 6, {v(vL16)}", f"v_mul_u32_u24 {v(self.bw)}, {3072 - 64}, {v(self.bw)}",
                     f"v_add_u32 {v(self.bw)}, {v(self.bw)}, {v(vL16)}"]
        fill += [None] * (2 * js - len(fill)) + stat
        jc = (len(fill) + 1) // 2 + 1
        assert jc <= 31
        self.bg_region(bgn[0], NX)
        for j in range(32):
            a.wait(vm=f"x{j}", lg=f"w{j}")
            self.fine(f"{l}:x{j}")
            if j == jc:
                a(f"v_mfma_f32_32x32x8_bf16 {v(AK, 16)}, {v(CSA, 2)}, {v(MB, 2)}, {v(AK, 16)}")
                a(f"v_mfma_f32_32x32x8_bf16 {v(AV, 16)}, {v(CSA, 2)}, {v(MB + 2, 2)}, {v(AV, 16)}")
            for p, acc in ((0, AK), (1, AV)):
                c = v(acc, 16) if j else "0"
                a(f"v_mfma_f32_32x32x16_bf16 {v(acc, 16)}, {v(RG + (j % D) * 8 + 4 * p, 4)}, {v(XF + 4 * j, 4)}, {c}")
                if p == 0:
                    if j + NX < 32:
                        ldx(j + NX)
                    if l == 0 and j + NX == 32:
                        self.mark_slot(KVP[1] - KVP[0], PK + 12)
                    if l == 0 and j == cfg["oinit"][0]:
                        for i in range(2):
                            a(f"buffer_store_dwordx4 {v(PK + 12, 4)}, {v(vOST)}, {s(sWS, 4)}, {s(sOST)} offen offset:{256 * i} sc1", vm="oinit")
                    if l == 0 and cfg["otouch"] and j == cfg["otouch"]:
                        t_ = PK + 8
                        a(f"v_bfe_u32 {v(t_)}, {v(vL16)}, 7, 1")
                        a(f"v_mul_u32_u24 {v(t_)}, {(16384 - 1024) // 8}, {v(t_)}")
                        a(f"v_add_lshl_u32 {v(t_)}, {v(t_)}, {v(vL16)}, 3")
                        a("s_mov_b64 exec, 0xffff")
                        a(f"buffer_load_dword {v(RG + 23)}, {v(t_)}, {s(sWS, 4)}, {s(sOST)} offen sc1")
                        a("s_mov_b64 exec, -1")
                    if j + NX >= 32:
                        self.bg_tick()
                    if j == 31 and not first:
                        a("s_nop 5")
                    if first and j == 30:
                        a(f"v_mov_b32 {v(vBW)}, {v(self.bw)}")
                        a(f"v_lshrrev_b32 {v(vBO)}, 7, {v(vL16)}")
                        a(f"v_mul_u32_u24 {v(vBO)}, {1024 - 128}, {v(vBO)}")
                        a(f"v_add_u32 {v(vBO)}, {v(vBO)}, {v(vL16)}")
                if p and fill and fill[0] and fill[1:] and fill[1]:
                    a(fill[0]); fill[0] = None
                if j + D < 32:
                    rd(j + D, p)
                if T == 1 and j == 29:
                    a(f"ds_read_b128 {v(PK + 8 + 4 * p, 4)}, {v(vKFR)} offset:{L_WPF - L_KVF + KS * p}", lg="wp")
                for _ in range(2 if p else 0):
                    f_ = fill.pop(0) if fill else None
                    if f_:
                        a(f_)
        self.bw = vBW
        if first:
            self.slow_pf(sSO[T], 4, RG + 23)
        self.ts(f"{l}:kvgemm")
        self.dump("kv", l, list(range(AK, AK + 32)) + [vS, vRS, vM], RG)

        def v_steps(e):
            st = []
            for h in range(2):
                for i in range(4 * h, 4 * h + 4):
                    if T == 0:
                        st.append(lambda i=i: e(f"v_pk_mul_f32 {v(AV + 2 * i, 2)}, {v(AV + 2 * i, 2)}, {v(vS, 2)} op_sel:[0,1]"))
                    else:
                        st.append(lambda i=i: e(f"v_mul_f32 {v(AV + 2 * i)}, {v(AV + 2 * i)}, {v(vRS)}"))
                        st.append(lambda i=i: e(f"v_mul_f32 {v(AV + 2 * i + 1)}, {v(AV + 2 * i + 1)}, {v(vRS)}"))
                for i in range(4 * h, 4 * h + 4):
                    st.append(lambda i=i: e(f"v_cvt_pk_bf16_f32 {v(AV + i)}, {v(AV + 2 * i)}, {v(AV + 2 * i + 1)}"))
                st.append(lambda h=h: a(f"ds_write_b128 {v(vSTW)}, {v(AV + 4 * h, 4)} offset:{0x4000 + 128 * h}"))
            return st

        def stage(k):
            a(f"ds_write_b128 {v(vSTW)}, {v(PK + 4 * k, 4)} offset:{(k >> 1) * 8192 + 128 * (k & 1)}")
        vst = v_steps(self.ticker())
        if T == 0:
            self.bg_region(bgn[1], 72)
            self.phi_a(AK, LG, stage)
            for st in vst:
                st()
        else:
            self.bg_region(bgn[1], 125)
            self.logits(lambda: [vst.pop(0)() for _ in range(4)])
            for st in vst:
                st()
            self.softmax2(RG, False, stage)
        self.dump("pk", l, list(range(PK, PK + 16)) + list(range(AV, AV + 8)), RG)
        ONE, DK, DZ, PB, QA = AK, AV + 8, AV + 12, AV + 4, AV + 3
        for i in range(4):
            a(f"v_mov_b32 {v(ONE + i)}, 0x3f803f80")
        D = 5 if first else 6

        def rq(j):
            for u in range(2):
                a(f"ds_read_b64_tr_b16 {v(RG + (j % D) * 4 + 2 * u, 2)}, {v(QA)} offset:{self.woff(j, u)}", lg=f"q{j}")
        a.wait(vm="mark", lg=0)
        a("s_barrier")
        a(f"v_add_u32 {v(QA)}, {L_WQ[T]:#x}, {v(vWRD)}")
        self.ts(f"{l}:bar2")
        early = False
        w01 = (lambda k: self.waves01(((4, 5), (6, 9), (7, 8), (10, 11))[l + k])) if T == 0 else (lambda k: contextlib.nullcontext())
        with w01(0):
            def rp(st, k):
                for u in range(2):
                    a(f"ds_read_b64_tr_b16 {v((LG, PK)[k] + 4 * st + 2 * u, 2)}, {v((vSTR, vSTR2)[k])} offset:{st * 1024 + u * 512}", lg=f"p{st}")
            PD = cfg["pdepth"]
            for st in range(PD):
                rp(st, 0); rp(st, 1)
            for st in range(4):
                a.wait(lg=f"p{st}")
                a(f"v_mfma_f32_16x16x32_bf16 {v(DK, 4)}, {v(LG + 4 * st, 4)}, {v(PK + 4 * st, 4)}, {v(DK, 4) if st else 0}")
                if st + PD < 4:
                    rp(st + PD, 0)
                a(f"v_mfma_f32_16x16x32_bf16 {v(DZ, 4)}, {v(LG + 4 * st, 4)}, {v(ONE, 4)}, {v(DZ, 4) if st else 0}")
                if st + PD < 4:
                    rp(st + PD, 1)
            self.fine(f"{l}:p_mfma")
            for i in range(2):
                a(f"v_cvt_pk_bf16_f32 {v(PB + i)}, {v(DK + 2 * i)}, {v(DK + 2 * i + 1)}")
            for i in range(2):
                a(f"v_cvt_pk_bf16_f32 {v(PB + 2 + i)}, {v(DK + 2 * i)}, {v(DK + 2 * i + 1)}")
            a(f"v_min_u32 {v(DZ)}, -2, {v(DZ)}")
            for i in range(2):
                a(f"v_permlane16_swap_b32 {v(PB + i)}, {v(PB + 2 + i)}")
            a(f"v_min_u32 {v(PB)}, -2, {v(PB)}")
            a(f"s_mov_b64 exec, {s(sROW, 2)}")
            a(f"buffer_store_dwordx4 {v(PB, 4)}, {v(vPST)}, {s(sWS, 4)}, {s(sKVT)} offen sc1")
            a(f"s_mov_b64 exec, {s(sCOL, 2)}")
            a(f"buffer_store_dwordx4 {v(DZ, 4)}, {v(vZST)}, {s(sWS, 4)}, {s(sKVT)} offen sc1")
            if T:
                a("s_mov_b64 exec, -1")
        if cfg["jit"] and l < 3:
            with self.only_if(f"s_cmp_eq_u32 {s(sW)}, 3"):
                self.code_pf(f"L_layer{l + 1}", f"L_layer{l + 2}" if l < 2 else "L_end", AV + 8)
        self.ts(f"{l}:publish")
        if l == 0:
            a(f"v_lshlrev_b32 {v(vHL)}, 5, {v(vPOLL)}")
            a(f"s_or_b32 {s(sTG)}, {s(sTAG)}, 0xf0")
            a(f"buffer_load_dword {v(AV + 9)}, {v(vHL)}, {s(sWS, 4)}, {s(sHEL)} offen sc1", vm="hl")
            self.slow_pf(sSW[1], 12, AV + 10)
        if first:
            a.wait(vm="wq")
            self.fine(f"{l}:wq")
            a("s_barrier")
            self.fine(f"{l}:barx")
        CS, CSA, MB, M1 = LG + 4, LG + 8, LG + 10, LG + 12
        PL, SEL, DR = 0, 36, 40

        def partial_load(i):
            i = (i + 8) % 9
            a(f"s_add_u32 {s(sT1)}, {s(sKVT)}, {i * 65536}")
            a(f"buffer_load_dwordx4 {v(PL + 4 * i, 4)}, {v(vL16)}, {s(sWS, 4)}, {s(sT1)} offen sc1", vm="pl")
        if not early:
            for j in range(D):
                rq(j)
        cs_read = lambda: a(f"ds_read_b128 {v(CS, 4)}, {v(vCSR)} offset:{T * 1536 + 1024}", lg="cs")
        fill = []
        if first:
            SQ, DQ, RQ, TQ = PK, PK + 4, PK + 8, LG
            self.sel_read(SQ)
            a(f"s_add_u32 {s(sT2)}, {s(sW13)}, {L_WQ[T]}")
            a(f"v_add_u32 {v(TQ + 2)}, {s(sT2)}, {v(vL16)}")
            rc = lambda i: a(f"ds_read_b128 {v(RQ + 4 * (i & 1), 4)}, {v(TQ + 2)} offset:{i * 1024}", lg=f"c{i}")
            rc(0); rc(1)
            addr, fin = self.cs_q_fin(T, DQ, TQ)

            def step(i):
                a.wait(lg=f"c{i}")
                a(f"v_mfma_f32_16x16x32_bf16 {v(DQ, 4)}, {v(SQ, 4)}, {v(RQ + 4 * (i & 1), 4)}, {v(DQ, 4) if i else 0}")
                if i + 2 < 8:
                    rc(i + 2)
                if addr:
                    a(addr.pop(0))

            def mark():
                with skip23():
                    self.mark_slot(KVP[l + 2] - KVP[l], M1)

            def sync():
                a.wait(lg="csw")
                a("s_barrier")
                cs_read()
            fill += [(lambda i=i: step(i)) for i in range(8)]
            fill += [f"v_mov_b32 {v(M1)}, -1\nv_mov_b32 {v(M1 + 1)}, -1\nv_mov_b32 {v(M1 + 2)}, -1\nv_mov_b32 {v(M1 + 3)}, -1", mark]
            fill += fin + [None, None, sync, None, None, lambda: a.wait(lg="cs")]
        else:
            cs_read()
            fill += [None] * D
        pk = self.cs_pack(CS, CSA) + [f"v_mov_b32 {v(CSA + 1)}, 0", f"v_mov_b32 {v(MB)}, {v(vM)}", f"v_mov_b32 {v(MB + 1)}, 0"]
        fill += [pk[i] + "\n" + pk[i + 1] for i in range(0, 10, 2)]
        jc = len(fill) + 1
        assert jc <= 31
        PS, PG = cfg["pl_step"][l], cfg["pl_gap"][l]
        assert PS >= 10
        G = 3 if T == 0 else 1

        def pl_group(k):
            with skip23():
                for i in range(G * k, G * k + G):
                    partial_load(i)
        pl_at = [PS + G * PG * k for k in range(9 // G)]
        if first:
            pl_at = [min(x, 31) for x in pl_at]
        self.bg_region(bgn[2], min(PS, 32))
        NP = cfg["np"]
        puts = list(range(NP))
        nq = 0 if first else min(NP, cfg["qputs"][T])
        put_at = [1 + (k * 30) // nq for k in range(nq)]
        for j in range(32):
            a.wait(lg=f"q{j}")
            if j == jc:
                a(f"v_mfma_f32_32x32x8_bf16 {v(AK, 16)}, {v(CSA, 2)}, {v(MB, 2)}, {v(AK, 16)}")
            a(f"v_mfma_f32_32x32x16_bf16 {v(AK, 16)}, {v(RG + (j % D) * 4, 4)}, {v(XF + 4 * j, 4)}, {v(AK, 16) if j else 0}")
            self.bg_tick()
            if l == 0 and j == cfg["oinit"][1]:
                t_ = RG + 23
                a(f"v_bfe_u32 {v(t_)}, {v(vL16)}, 7, 1")
                a(f"v_mul_u32_u24 {v(t_)}, {(16384 - 1024) // 8}, {v(t_)}")
                a(f"v_add_lshl_u32 {v(t_)}, {v(t_)}, {v(vL16)}, 3")
                a("s_mov_b64 exec, 0xffff")
                a(f"buffer_load_dword a255, {v(t_)}, {s(sWS, 4)}, {s(sOST)} offen sc1")
                a("s_mov_b64 exec, -1")
            if l == 0 and j == pl_at[0] - 1:
                a.wait(vm="hl")
                a(f"v_cmp_ne_u32 vcc, {s(sTG)}, {v(AV + 9)}")
                a("s_cbranch_vccnz L_hello")
                a.label("L_hello_ok")
                with self.outofline():
                    a.label("L_hello")
                    self.poll(vHL, sHEL, AV + 9)
                    a("s_branch L_hello_ok")
            for k, x in enumerate(pl_at):
                if x == j:
                    pl_group(k)
            if j + D < 32:
                rq(j + D)
            if j in put_at:
                self.put_wo(T, puts.pop(0))
            if j == 27:
                self.sel_read(SEL)
            if T == 1 and j in (28, 29):
                a(f"ds_read_b128 {v(PK + 8 + 4 * (j - 28), 4)}, {v(vKFR)} offset:{L_WPF - L_KVF + KS * (j - 28)}", lg="wp")
            if fill:
                f_ = fill.pop(0)
                if callable(f_):
                    f_()
                elif f_:
                    a(f_)
        self.ts(f"{l}:qgemm")
        self.dump("q", l, list(range(AK, AK + 16)), RG)
        EPS = RG + 6
        if first:
            if T == 0:
                n = len(a.vm) - 1 - max(i for i, t_ in enumerate(a.vm) if t_ == f"wo{NP - 1}")
                a(f"s_waitcnt vmcnt({n + 9})")
                with self.only_if(f"s_cmp_ge_u32 {s(sW)}, 2"):
                    a.wait(vm=f"wo{NP - 1}")
            else:
                a.wait(vm=f"wo{NP - 1}")
        nbg3 = min(bgn[3], len(self.bg))
        slots = 56 if T == 0 else 100
        self.bg_region(bgn[3], slots)
        if not first:
            late = [k for k, x in enumerate(pl_at) if x >= 32]
            self.bg = [(lambda k=k: pl_group(k)) for k in late]
            self.bg_at = [min(slots - 1, (pl_at[k] - 32) * 6) for k in late]
        self.side = [(lambda i=i: self.put_wo(T, i)) for i in puts]
        self.side_every = cfg["wo_every"][T]
        pop = lambda: self.side.pop(0)() if self.side else None
        pop()
        if T == 0:
            self.phi_a(AK, LG)
            a(f"v_mov_b32 {v(EPS)}, {f2u(1e-6):#x}")
        else:
            self.logits(pop)
            pop()
            self.softmax2(RG, True)
        while self.side:
            pop()
        self.dump("pq", l, list(range(PK, PK + 16)), AV)
        self.ts(f"{l}:phiq")
        WR, DW = 64, 7
        WA = [vWOR, RG + 16, RG + 17, RG + 18]
        for t_ in range(1, 4):
            a(f"v_xor_b32 {v(WA[t_])}, {32 * t_}, {v(vWOR)}")
        a(f"s_add_u32 {s(sTG)}, {s(sTAG)}, {16 * (l + 1)}")
        a(f"v_mov_b32 {v(RG + 19)}, {s(sTG)}")
        a.wait(lg="sel")
        self.fine(f"{l}:r_wait")
        with w01(1):
            a.label(f"L_chk{l}")
            m, Z = 44, PL + 32
            gaps = [[f"v_max3_u32 {v(m)}, {v(Z)}, {v(PL)}, {v(PL + 4)}", f"v_permlane16_swap_b32 {v(Z)}, {v(Z + 1)}"],
                    [f"v_permlane16_swap_b32 {v(Z + 2)}, {v(Z + 3)}"],
                    [f"v_add_f32 {v(Z)}, {v(Z)}, {v(Z + 1)}", f"v_add_f32 {v(Z + 2)}, {v(Z + 2)}, {v(Z + 3)}"],
                    [f"v_max3_u32 {v(m)}, {v(m)}, {v(PL + 8)}, {v(PL + 12)}", f"v_permlane32_swap_b32 {v(Z)}, {v(Z + 2)}"],
                    [f"v_add_f32 {v(Z)}, {v(Z)}, {v(Z + 2)}", f"v_max3_u32 {v(m)}, {v(m)}, {v(PL + 16)}, {v(PL + 20)}"],
                    [f"v_add_f32 {v(Z)}, {v(Z)}, {v(Z)} row_ror:4"],
                    [f"v_add_f32 {v(Z)}, {v(Z)}, {v(Z)} row_ror:8", f"v_max3_u32 {v(m)}, {v(m)}, {v(PL + 24)}, {v(PL + 28)}"],
                    [f"v_cmp_eq_u32 vcc, -1, {v(m)}", f"v_cvt_pk_bf16_f32 {v(Z)}, {v(Z)}, {v(Z)}", f"ds_write_b16 {v(vZW)}, {v(Z)}"]]
            for i in range(8):
                if i % 2 == 0:
                    a(f"s_waitcnt vmcnt({nbg3 + 6 - i})")
                a(f"v_mfma_f32_16x16x32_bf16 {v(DR, 4)}, {v(SEL, 4)}, {v(PL + 4 * i, 4)}, {v(DR, 4) if i else 0}")
                for g_ in gaps[i]:
                    a(g_)
            a(f"s_cbranch_vccnz L_again{l}")
            with self.outofline():
                a.label(f"L_again{l}")
                self.countdown()
                if cfg["ts"]:
                    a(f"s_add_u32 {s(sTSI)}, {s(sTSI)}, {1 << (8 * l)}")
                for i in range(9):
                    partial_load(i)
                if nbg3:
                    a("s_waitcnt vmcnt(0)")
                a(f"s_branch L_chk{l}")
            for i in range(2):
                a(f"v_cvt_pk_bf16_f32 {v(DR + i)}, {v(DR + 2 * i)}, {v(DR + 2 * i + 1)}")
            a(f"ds_write_b64 {v(vKFW)}, {v(DR, 2)}")
        if T == 0:
            a(f"s_waitcnt vmcnt({nbg3})")
        self.fine(f"{l}:r_done")
        self.bg_now(bgn[4])
        a.wait(lg=0)
        a("s_barrier")
        self.ts(f"{l}:bar3")
        KF, ZF, DEN, O = 0, 16, RG + 6, LG
        def rk(j):
            a(f"ds_read_b128 {v(KF + 4 * j, 4)}, {v(vKFR)} offset:{KS * j}", lg=f"kf{j}")
        def rz(j):
            a(f"ds_read_b128 {v(ZF + 4 * j, 4)}, {v(vZR)} offset:{(j >> 1) * 64 + (j & 1) * 16}", lg=f"zf{j}")

        def dots(j):
            for d in range(4):
                a(f"v_dot2c_f32_bf16 {v(DEN)}, {v(ZF + 4 * j + d)}, {v(PK + 4 * j + d)}")

        def num(j):
            a.wait(lg=f"kf{j}")
            a(f"v_mfma_f32_32x32x16_bf16 {v(AV, 16)}, {v(KF + 4 * j, 4)}, {v(PK + 4 * j, 4)}, {v(AV, 16) if j else 0}")

        def rw1(i, t_, u):
            a(f"ds_read_b64_tr_b16 {v(WR + (i % DW) * 16 + 4 * t_ + 2 * u, 2)}, {v(WA[t_])} offset:{t_ * 16384 + i * 1024 + u * 512}", lg=f"wo{i}")
        rest = [(i, t_, u) for i in range(DW) for t_ in range(4) for u in range(2)]
        if cfg["nmode"] == 0:
            for j in range(NJ):
                rz(j)
            if NJ == 2:
                rk(0); rk(1)
            for j in range(NJ):
                if j % 2 == 0:
                    a.wait(lg=f"zf{j + 1}")
                dots(j)
                if NJ == 4:
                    rk(j)
            self.fine(f"{l}:n_dot")
            for j in range(NJ):
                num(j)
        else:
            q_ = [(rk, j) for j in range(NJ)] + [(rz, j) for j in range(NJ)]
            for f_, j in q_[:3]:
                f_(j)
            del q_[:3]
            for j in range(NJ):
                num(j)
                for f_, k in q_[:2]:
                    f_(k)
                del q_[:2]
            self.fine(f"{l}:n_dot")
            a.wait(lg=0)
            for j in range(NJ):
                dots(j)
        a(f"v_rcp_f32 {v(DEN)}, {v(DEN)}")
        self.fine(f"{l}:n_mfma")
        ol = []
        for h in range(2):
            ol += [f"v_pk_mul_f32 {v(AV + 2 * i, 2)}, {v(AV + 2 * i, 2)}, {v(DEN, 2)} op_sel_hi:[1,0]" for i in range(4 * h, 4 * h + 4)]
            ol += [f"v_cvt_pk_bf16_f32 {v(O + i)}, {v(AV + 2 * i)}, {v(AV + 2 * i + 1)}" for i in range(4 * h, 4 * h + 4)]
            ol += [f"buffer_store_dwordx4 {v(O + 4 * h, 4)}, {v(vOST)}, {s(sWS, 4)}, {s(sOST)} offen offset:{256 * h}"]
        self.moded(ol, tag="ost", wt=l == 0 and not cfg["otouch"] and not cfg["oinit"][0])
        self.dump("o", l, list(range(O, O + 8)), PK)
        self.ts(f"{l}:ostore")
        self.bg_now(bgn[5])
        NO = cfg["no0"]

        def ldo(i):
            if i % 4 == 0 and i:
                a(f"s_add_u32 {s(sT3)}, {s(sOLD)}, {i * 1024}")
            a(f"buffer_load_dwordx4 {v(4 * i, 4)}, {v(vL16)}, {s(sWS, 4)}, {s(sT3 if i >= 4 else sOLD)} offen offset:{(i % 4) * 1024} sc1", vm=f"o{i}")
        late = list(range(NP, 16))

        def window(np_, nr):
            for _ in range(min(len(late), np_)):
                self.put_wo(T, late.pop(0))
            for _ in range(min(len(rest), nr)):
                rw1(*rest.pop(0))
        ow = cfg["owin"][first]
        window(*ow[0])
        self.fine(f"{l}:o_pre")
        self.flag(sFOS, RG + 19, "ost")
        self.fine(f"{l}:oflag")
        self.spin_more(wo_, f"o{l}")
        if last and cfg["fin_lds"]:
            for t_ in self.tile_addr(PK, PK + 3):
                a(t_)
        window(*ow[1])
        self.probe(wo_, vPR)
        window(*ow[2])
        self.spin(wo_, f"o{l}")
        self.ts(f"{l}:opoll")
        for i in range(4):
            ldo(i)
        window(16, 0)
        if NP < 16:
            a.wait(lg="putwo")
            a("s_barrier")
        per = -(-len(rest) // (NO - 4))
        for i in range(4, NO):
            window(0, per)
            ldo(i)
        assert not rest
        self.fine(f"{l}:o_iss")
        todo = [(i, t_, u) for i in range(DW, 16) for t_ in range(4) for u in range(2)]
        done = 0
        self.bg_region(bgn[6], NO)
        for i in range(16):
            for t_ in range(4):
                if t_ == 0:
                    a.wait(vm=f"o{i}", lg=f"wo{i}")
                    self.fine(f"{l}:o{i}")
                a(f"v_mfma_f32_16x16x32_bf16 {v(XR + 4 * t_, 4)}, {v(WR + (i % DW) * 16 + 4 * t_, 4)}, {v(4 * i, 4)}, {v(XR + 4 * t_, 4)}")
                if t_ == 0:
                    if i + NO < 16:
                        ldo(i + NO)
                    else:
                        self.bg_tick()
                for _ in range(cfg["ord"][i + NO >= 16][t_]):
                    if done < len(todo) and done // 2 <= 4 * i + t_:
                        assert todo[done][0] > i
                        rw1(*todo[done]); done += 1
        assert done == len(todo) and not self.bg
        self.ts(f"{l}:ogemm")
        if last:
            return
        self.dump("x", l, list(range(XR, XR + 16)), PK)
        N = 1 - T
        for st in self.x_steps(0, XR, AK, par=N):
            st()
        self.fine(f"{l}:xst")
        a("s_barrier")
        self.fine(f"{l}:bar5")
        if l == 0:
            self.sel_read(AV)
        n1, n2 = cfg["xputs"]
        self.put_wkv(N, 0, n1)
        a(f"s_add_u32 {s(sKVT)}, {s(sKVT)}, {KVP[l + 1] - KVP[l]}")
        self.flag(sFXS, RG + 19, "xst" if cfg["spar"] else "sst")
        self.ts(f"{l}:xflag")
        self.spin_more(wx, f"x{l + 1}")
        if l == 0:
            a.wait(lg="sel")
        for i in range(n1, n2):
            if i == n1 + cfg["xprobe_at"]:
                self.probe(wx, vPR)
            self.put_wkv(N, i, i + 1)
            if l == 0:
                for k in range((i - n1) * 16 // (n2 - n1), (i - n1 + 1) * 16 // (n2 - n1)):
                    self.cs_kv_step(1, k, AV, AV + 4)
        if l == 0:
            self.cs_kv_fin(1, AV + 4, AV + 8)
        self.puts_left = list(range(n2, 16))

    def prologue(self):
        cfg = self.cfg
        a = self.a
        a(f"s_cmp_ge_u32 {s(sID)}, 256")
        a("s_cbranch_scc1 L_end")
        self.ts("start")
        a(f"s_load_dwordx16 {s(4, 16)}, s[0:1], 0")
        a(f"s_load_dwordx4 {s(20, 4)}, s[0:1], 64")
        a(f"s_getpc_b64 {s(sSAVE, 2)}")
        a.label("L_pc")
        NCL = cfg["codepf"]
        a(f"s_bfe_u32 {s(sT0)}, {s(sID)}, {3 | (3 << 16)}")
        a(f"s_mul_i32 {s(sT0)}, {s(sT0)}, {NCL}")
        a(f"v_min_u32 v1, {NCL - 1}, v0")
        a(f"v_add_u32 v1, {s(sT0)}, v1")
        a("v_lshlrev_b32 v1, 7, v1")
        if cfg["pads"]:
            a("v_lshlrev_b32 v2, 12, v0")
            a("v_add_u32 v2, L_layer0-L_pc-64*4096, v2")
            a("v_cmp_le_u32 vcc, 64, v0")
            a("v_cndmask_b32 v1, v1, v2, vcc")
        a(f"v_min_u32 v1, L_codeend-L_pc, v1")
        a(f"global_load_dword v2, v1, {s(sSAVE, 2)}")
        if cfg["ts"]:
            a(f"s_mov_b32 {s(sTSI)}, 0")
            a(f"s_mov_b32 {s(sLAY)}, 0")
            a(f"v_mov_b32 {v(vTS)}, 0")
            a(f"s_memrealtime s[78:79]")
        L = 3
        a(f"v_lshrrev_b32 v1, 6, v0")
        a(f"v_and_b32 {v(L)}, 63, v0")
        a(f"v_readfirstlane_b32 {s(sW)}, v1")
        a(f"v_lshlrev_b32 {v(vL16)}, 4, {v(L)}")
        a(f"s_bfe_u32 {s(sC)}, {s(sID)}, {3 | (4 << 16)}")
        a(f"s_lshr_b32 {s(sT0)}, {s(sID)}, 7")
        a(f"s_and_b32 {s(sR)}, {s(sID)}, 7")
        a(f"s_lshl1_add_u32 {s(sR)}, {s(sR)}, {s(sT0)}")
        sBP, sSUB, sCG, sB = 99, 100, 101, sCNT
        a(f"s_lshr_b32 {s(sT0)}, {s(sC)}, 3")
        a(f"s_lshr_b32 {s(sT3)}, {s(sW)}, 1")
        a(f"s_lshl1_add_u32 {s(sT0)}, {s(sT0)}, {s(sT3)}")
        a(f"s_lshl2_add_u32 {s(sBP)}, {s(sR)}, {s(sT0)}")
        a(f"s_lshl2_add_u32 {s(sB)}, {s(sR)}, {s(sW)}")
        a(f"s_and_b32 {s(sSUB)}, {s(sW)}, 1")
        a(f"s_and_b32 {s(sCG)}, {s(sC)}, 7")
        a(f"s_lshl1_add_u32 {s(sT0)}, {s(sBP)}, {s(sSUB)}")
        a(f"s_lshl_b32 {s(sOLD)}, {s(sT0)}, 14")
        a(f"s_lshl_b32 {s(sT0)}, {s(sCG)}, 7")
        a(f"s_add_u32 {s(sFIN)}, {s(sOLD)}, {s(sT0)}")
        a(f"s_lshl3_add_u32 {s(sT0)}, {s(sBP)}, {s(sCG)}")
        a(f"s_lshl4_add_u32 {s(sT0)}, {s(sT0)}, {s(sSUB)}")
        a(f"s_lshl_b32 {s(sXST)}, {s(sT0)}, 8")
        if cfg["x0_lds"]:
            for t_ in self.tile_addr(52, 5)[-5::3]:
                a(t_)
            a(self.tile_addr(52, 5)[-1])
            a(f"s_add_u32 {s(sT1)}, {s(sFIN)}, 8192")
        else:
            self.rowmajor_voff(4, 5)
        a(f"s_lshl_b32 {s(sT0)}, {s(sC)}, 6")
        a(f"s_mul_i32 {s(sWOFF)}, {s(sT3)}, {16 * 3072}")
        a(f"s_add_u32 {s(sWOFF)}, {s(sWOFF)}, {s(sT0)}")
        a(f"s_lshl_b32 {s(sT0)}, {s(sSUB)}, 10")
        a(f"s_add_u32 {s(sWOFF)}, {s(sWOFF)}, {s(sT0)}")
        a(f"s_add_u32 {s(sWOFF)}, {s(sWOFF)}, 1024")
        self.w_voff(5)
        a(f"s_mov_b32 {s(sTMP + 3)}, 0x20000")
        a(f"s_mov_b32 {s(sSW[0] + 3)}, 0x20000")
        a(f"s_mov_b32 {s(sTMP + 2)}, 0x200000")
        a(f"s_mov_b32 {s(sSW[0] + 2)}, {512 * 3072}")
        a(f"s_lshr_b32 {s(sT2)}, {s(sID)}, 3")
        a(f"s_lshl_b32 {s(sSTLD)}, {s(sB)}, 11")
        a(f"s_lshl_b32 {s(sT0)}, {s(sB)}, 7")
        a(f"s_add_u32 {s(sFXP)}, {s(sT0)}, {FLAGX}")
        a(f"s_add_u32 {s(sFOS)}, {s(sT0)}, {FLAGO}")
        a(f"s_lshl_b32 {s(sHEL)}, {s(sC)}, 7")
        a(f"s_add_u32 {s(sHEL)}, {s(sHEL)}, {s(sSTLD)}")
        a("s_waitcnt lgkmcnt(0)")
        self.ts("kernarg")
        a(f"s_mov_b64 {s(sTMP, 2)}, {s(sPX, 2)}")
        a(f"s_mov_b64 {s(sSW[0], 2)}, {s(sPWA, 2)}")
        for i in range(2):
            if cfg["x0_lds"]:
                a(f"buffer_load_dwordx4 {v(8 + 4 * i, 4)}, v54, {s(sTMP, 4)}, {s((sFIN, sT1)[i])} offen", vm="x0")
            else:
                a(f"buffer_load_dwordx4 {v(8 + 4 * i, 4)}, v4, {s(sTMP, 4)}, {s(sFIN)} offen offset:{64 * i}", vm="x0")
        a(f"s_lshl2_add_u32 {s(sPF)}, {s(sT2)}, {s(sW)}")
        a(f"s_add_u32 {s(sPBX)}, {s(sPWS)}, {s(sHEL)}")
        a(f"s_addc_u32 {s(sPBX + 1)}, {s(sPWS + 1)}, 0")

        def scalar_loads():
            a(f"s_load_dword {s(sEP)}, {s(sPWS, 2)}, 0")
            if "o" in cfg["tlb"]:
                a(f"s_load_dword {s(sTG)}, {s(sPOUT, 2)}, 0")
            if "p" in cfg["tlb"]:
                a(f"s_load_dword {s(sTG)}, {s(sPPHI, 2)}, 0")
            if "w" in cfg["tlb"]:
                for off in (0x200000, 0x400000):
                    a(f"s_mov_b32 {s(sT0)}, {off:#x}")
                    a(f"s_load_dword {s(sTG)}, {s(sPWS, 2)}, {s(sT0)}")
            if cfg["touch"]:
                a(f"s_load_dword {s(sTG)}, {s(sPWS, 2)}, {s(sFXP)}")
                a(f"s_load_dword {s(sTG)}, {s(sPWS, 2)}, {s(sFOS)}")
                a(f"s_load_dword {s(sTG)}, {s(sPBX, 2)}, {STATS[0]}")
                a(f"s_load_dword {s(sTG)}, {s(sPBX, 2)}, {STATS[0] + 64}")
        if cfg["sl_first"]:
            scalar_loads()

        def mall_pf():
            a0 = self.a
            a0(f"s_cmp_eq_u32 {s(sSUB)}, 0")
            a0(f"s_cselect_b64 {s(sTMP, 2)}, {s(sPWA, 2)}, {s(sPWB, 2)}")
            a0(f"s_cselect_b64 {s(sLN2, 2)}, {s(sPWOA, 2)}, {s(sPWOB, 2)}")
            a0(f"s_cmp_lt_u32 {s(sW)}, 2")
            a0(f"s_cselect_b64 {s(sTMP, 2)}, {s(sTMP, 2)}, {s(sLN2, 2)}")
            a0(f"s_cselect_b32 {s(sT1)}, 3, 1")
            a0(f"s_lshl_b32 {s(sT1)}, {s(sT1)}, 11")
            a0(f"s_mul_i32 {s(sT2)}, {s(sID)}, {s(sT1)}")
            a0(f"s_sub_u32 {s(sT0)}, {s(sT1)}, 128")
            a0(f"v_lshlrev_b32 v7, 3, {v(vL16)}")
            a0(f"v_min_u32 v7, {s(sT0)}, v7")
            a0(f"s_lshl_b32 {s(sTMP + 2)}, {s(sT1)}, 8")
            a0(f"buffer_load_dword v7, v7, {s(sTMP, 4)}, {s(sT2)} offen")
        def l2_pf():
            a(f"s_mul_i32 {s(sT0)}, {s(sPF)}, {4 * 3072 // cfg['l2div']}")
            a(f"s_add_u32 {s(sT0)}, {s(sT0)}, {512 * 3072 - 512 * 3072 // cfg['l2div']}")
            a(f"v_lshrrev_b32 v51, 8, {v(vL16)}")
            a(f"v_lshlrev_b32 v51, 10, v51")
            a(f"v_lshl_add_u32 v51, {v(vL16)}, 3, v51")
            if cfg["l2div"] == 2:
                a("s_mov_b32 exec_hi, 0")
            a(f"buffer_load_dword v51, v51, {s(sSW[0], 4)}, {s(sT0)} offen offset:1024")
            if cfg["l2div"] == 2:
                a("s_mov_b32 exec_hi, -1")
        if cfg["l2pf"] == 1:
            l2_pf()
        if cfg["mallpf"] == 1:
            mall_pf()
        if cfg["l2pf"] == 2:
            l2_pf()
        if cfg["mallpf"] in (4, 6):
            with self.only_if(f"s_cmp_eq_u32 {s(sW)}, 0"):
                mall_pf()
        if cfg["mallpf"] == 5:
            with self.only_if(f"s_cmp_eq_u32 {s(sSUB)}, 0"):
                mall_pf()
        if cfg["mallpf"] == 7:
            with self.only_if(f"s_cmp_lg_u32 {s(sW)}, 3"):
                mall_pf()
        if cfg["slow0"]:
            self.slow_pf(sSW[0], 12, 6)
        for i in range(cfg["n0"]):
            self.ld_wkv(0, i, 5)
        if cfg["mallpf"] == 2:
            mall_pf()
        if cfg["x0_lds"] != 2 and not cfg["sl_first"]:
            scalar_loads()
        self.ts("p_issue")

        def o_touch(at):
            if cfg["otouch"] != at:
                return
            a0 = self.a
            a0(f"s_lshl_b32 {s(sT0)}, {s(sB)}, 5")
            a0(f"s_add_u32 {s(sT0)}, {s(sT0)}, {s(sC)}")
            a0(f"s_lshl_b32 {s(sT0)}, {s(sT0)}, 10")
            a0(f"s_add_u32 {s(sT0)}, {s(sT0)}, {OB[0]}")
            a0(f"v_bfe_u32 v50, {v(vL16)}, 7, 1")
            a0(f"v_mul_u32_u24 v50, {(16384 - 1024) // 8}, v50")
            a0(f"v_add_lshl_u32 v50, v50, {v(vL16)}, 3")
            a0("s_mov_b64 exec, 0xffff")
            a0(f"buffer_load_dword v52, v50, {s(sWS, 4)}, {s(sT0)} offen")
            a0("s_mov_b64 exec, -1")
        a(f"s_mov_b64 {s(sWS, 2)}, {s(sPWS, 2)}")
        a(f"s_mov_b64 {s(sOUT, 2)}, {s(sPOUT, 2)}")
        for r_ in (sWS, sOUT):
            a(f"s_mov_b32 {s(r_ + 3)}, 0x20000")
        a(f"s_mov_b32 {s(sWS + 2)}, {WS_SIZE:#x}")
        a(f"s_mov_b32 {s(sOUT + 2)}, 0x200000")
        o_touch(101)
        a(f"s_mov_b32 {s(sROW)}, 0xffff")
        a(f"s_mov_b32 {s(sROW + 1)}, 0xffff")
        a(f"s_mov_b32 {s(sMODE)}, 0")
        a(f"s_lshr_b32 {s(sT0)}, {s(sCG)}, 2")
        a(f"s_lshl2_add_u32 {s(sT0)}, {s(sBP)}, {s(sT0)}")
        a(f"s_lshl1_add_u32 {s(sT0)}, {s(sT0)}, {s(sSUB)}")
        a(f"s_lshl_b32 {s(sT0)}, {s(sT0)}, 8")
        a(f"s_and_b32 {s(sT1)}, {s(sCG)}, 3")
        a(f"s_lshl2_add_u32 {s(sSTST)}, {s(sT1)}, {s(sT0)}")
        a(f"s_add_u32 {s(sSTST)}, {s(sSTST)}, {STATS[0]}")
        a(f"s_lshl4_add_u32 {s(sT0)}, {s(sW)}, {s(sC)}")
        a(f"s_lshl_b32 {s(sKVT)}, {s(sT0)}, 10")
        a(f"s_add_u32 {s(sKVT)}, {s(sKVT)}, {KVP[0]}")
        a(f"s_lshl_b32 {s(sHEL)}, {s(sT0)}, 11")
        a(f"s_add_u32 {s(sHEL)}, {s(sHEL)}, {HELLO}")
        a(f"s_mov_b32 {s(sHI)}, 0")
        a(f"s_mov_b32 {s(sHI + 1)}, -1")
        a(f"s_lshl_b32 {s(sXLD)}, {s(sB)}, 15")
        i16, g, half, q, jj, t0, t1 = 20, 21, 22, 23, 24, 25, 26
        a(f"v_and_b32 {v(i16)}, 15, {v(L)}")
        a(f"v_lshrrev_b32 {v(g)}, 4, {v(L)}")
        a(f"v_lshrrev_b32 {v(half)}, 5, {v(L)}")
        a(f"v_and_b32 {v(q)}, 3, {v(L)}")
        a(f"v_bfe_u32 {v(jj)}, {v(L)}, 2, 2")
        a(f"v_lshlrev_b32 {v(vPOLL)}, 2, {v(i16)}")
        a(f"v_lshlrev_b32 {v(t0)}, 4, {v(i16)}")
        a(f"v_lshl_add_u32 {v(vXST)}, {v(g)}, 10, {v(t0)}")
        a(f"v_lshl_add_u32 {v(vSST)}, {v(half)}, 10, {v(t0)}")
        a(f"v_lshl_add_u32 {v(vSLD)}, {v(half)}, 9, {v(vL16)}")
        a(f"s_lshr_b32 {s(sT0)}, {s(sR)}, 1")
        a(f"s_lshl_b32 {s(sT0)}, {s(sT0)}, 7")
        a(f"s_and_b32 {s(sT1)}, {s(sR)}, 1")
        a(f"s_add_u32 {s(sT0)}, {s(sT0)}, {s(sT1)}")
        a(f"s_lshl_b32 {s(sT0)}, {s(sT0)}, 9")
        a(f"v_lshl_add_u32 {v(vPST)}, {v(half)}, 8, {v(t0)}")
        a(f"v_add_u32 {v(vPST)}, {s(sT0)}, {v(vPST)}")
        a(f"s_lshl_b32 {s(sT1)}, {s(sR)}, 6")
        a(f"s_add_u32 {s(sT1)}, {s(sT1)}, {8 * 65536}")
        a(f"v_lshl_add_u32 {v(vZST)}, {v(g)}, 4, {s(sT1)}")
        a(f"v_add_u32 v49, {s(sT0)}, {v(vL16)}")
        a(f"v_lshl_add_u32 v27, {v(q)}, 4, {s(sT1)}")
        a(f"v_cndmask_b32 v49, v49, v27, {s(sHI, 2)}")
        for i in range(4):
            a(f"v_mov_b32 {v(28 + i)}, -1")
        if cfg["warm_at"] == 0:
            self.warm(0)
        if cfg["x0_lds"]:
            for t_ in self.tile_addr(52, 55)[:10]:
                a(t_)
        self.ts("p_lane")
        a.wait(vm="x0")
        self.ts("x0")
        if cfg["x0_lds"]:
            for i in range(2):
                a(f"ds_write_b128 v53, {v(8 + 4 * i, 4)} offset:{1152 * i}")
            for i in range(2):
                a(f"ds_read2_b64 {v(8 + 4 * i, 4)}, v52 offset0:{8 * i} offset1:{8 * i + 4}")
            a("s_waitcnt lgkmcnt(0)")
            if cfg["x0_lds"] == 2:
                scalar_loads()
        else:
            for i in range(2):
                for d in range(2):
                    a(f"v_permlane16_swap_b32 {v(8 + 4 * i + d)}, {v(8 + 4 * i + 2 + d)}")
        for i in range(8):
            a(f"v_lshlrev_b32 {v(XR + 2 * i)}, 16, {v(8 + i)}")
            a(f"v_and_b32 {v(XR + 2 * i + 1)}, 0xffff0000, {v(8 + i)}")
        for st in self.x_steps(0, XR, AK, wt=cfg["x_wt"]):
            st()
        with self.only_if(f"s_cmp_lt_u32 {s(sW)}, 2"):
            a("s_mov_b32 exec_hi, 15")
            a(f"buffer_store_dwordx4 v[28:31], v49, {s(sWS, 4)}, {s(sKVT)} offen sc1")
            a("s_mov_b32 exec_hi, -1")
        self.srd_tmp(sPPHI, 16384)
        a(f"s_lshl_b32 {s(sT0)}, {s(sC)}, 10")
        a(f"buffer_load_dwordx4 v[16:19], {v(vL16)}, {s(sTMP, 4)}, {s(sT0)} offen", vm="phi")
        if cfg["mallpf"] == 3:
            mall_pf()
        if cfg["mallpf"] == 4:
            with self.only_if(f"s_cmp_lg_u32 {s(sW)}, 0"):
                mall_pf()
        o_touch(102)
        self.ts("p_xpub")
        self.nw, cnt, a0 = cfg["n0"], [0], a

        def a(text, **kw):
            if cnt[0] % cfg["w_every"] == 0 and self.nw < cfg["n1"]:
                self.ld_wkv(0, self.nw, 5, sT3)
                self.nw += 1
            cnt[0] += 1
            a0(text, **kw)
        a(f"s_getreg_b32 {s(sXCC)}, hwreg(HW_REG_XCC_ID, 0, 4)")
        a(f"s_lshl_b32 {s(sW13)}, {s(sW)}, 13")
        a(f"s_mov_b32 {s(sCNT)}, 0x40000")
        a(f"s_lshl_b32 {s(sT0)}, {s(sC)}, 10")
        a(f"s_add_u32 {s(sOST)}, {s(sXLD)}, {s(sT0)}")
        a(f"s_add_u32 {s(sOST)}, {s(sOST)}, {OB[0]}")
        a(f"s_add_u32 {s(sOLD)}, {s(sOLD)}, {OB[0]}")
        a(f"s_add_u32 {s(sSTLD)}, {s(sSTLD)}, {STATS[0]}")
        a(f"s_lshl2_add_u32 {s(sFOS)}, {s(sC)}, {s(sFOS)}")
        a(f"s_lshl_b32 {s(sT0)}, {s(sBP)}, 7")
        a(f"s_add_u32 {s(sFOP)}, {s(sT0)}, {FLAGO}")
        a(f"s_lshl1_add_u32 {s(sT1)}, {s(sCG)}, {s(sSUB)}")
        a(f"s_lshl2_add_u32 {s(sFXS)}, {s(sT1)}, {s(sT0)}")
        a(f"s_add_u32 {s(sFXS)}, {s(sFXS)}, {FLAGX}")
        a(f"s_lshl_b32 {s(sT0)}, {s(sC)}, 6")
        a(f"s_mul_i32 {s(sQOFF)}, {s(sW)}, {128 * 3072}")
        a(f"s_add_u32 {s(sQOFF)}, {s(sQOFF)}, {s(sT0)}")
        a(f"s_lshl_b32 {s(sOOFF)}, {s(sW)}, 13")
        a(f"s_lshl_b32 {s(sT0)}, {s(sCG)}, 7")
        a(f"s_add_u32 {s(sOOFF)}, {s(sOOFF)}, {s(sT0)}")

        def late_srds(a):
            a(f"s_mov_b64 {s(sSW[1], 2)}, {s(sPWB, 2)}")
            a(f"s_mov_b32 {s(sSW[1] + 2)}, {512 * 3072}")
            a(f"s_mov_b32 {s(sSW[1] + 3)}, 0x20000")
            for T in range(2):
                a(f"s_mov_b64 {s(sSO[T], 2)}, {s([sPWOA, sPWOB][T], 2)}")
                a(f"s_mov_b32 {s(sSO[T] + 2)}, {512 * 1024}")
                a(f"s_mov_b32 {s(sSO[T] + 3)}, 0x20000")
        if not cfg["pfine"]:
            late_srds(a)
        a(f"s_mov_b32 {s(sCOL)}, 0x10001")
        a(f"s_mov_b32 {s(sCOL + 1)}, 0x10001")
        a(f"s_mov_b32 {s(sLN2)}, {LN2:#x}")
        a(f"s_mov_b32 {s(sLN2b)}, {LN2:#x}")
        a(f"s_mov_b32 {s(sDELTA)}, {DELTA:#x}")
        a(f"s_lshl_b32 {s(sANN)}, {s(sR)}, 7")
        a(f"s_add_u32 {s(sANN)}, {s(sANN)}, {ANN}")
        a(f"s_lshl4_add_u32 {s(sGW)}, {s(sR)}, {s(sC)}")
        a(f"s_lshl2_add_u32 {s(sGW)}, {s(sGW)}, {s(sW)}")
        a(f"v_and_b32 {v(t1)}, 1, {v(g)}")
        a(f"v_lshl_add_u32 {v(vOST)}, {v(t1)}, 14, {v(t0)}")
        a(f"v_lshl_add_u32 {v(vOST)}, {v(half)}, 9, {v(vOST)}")
        a(f"v_lshlrev_b32 {v(vWRD)}, 11, {v(half)}")
        a(f"v_lshl_add_u32 {v(vWRD)}, {v(jj)}, 6, {v(vWRD)}")
        a(f"v_lshl_add_u32 {v(vWRD)}, {v(t1)}, 4, {v(vWRD)}")
        a(f"v_and_b32 v27, 1, {v(q)}")
        a(f"v_lshrrev_b32 v32, 1, {v(q)}")
        a(f"v_lshl_add_u32 {v(vWRD)}, v27, 5, {v(vWRD)}")
        a(f"v_lshl_add_u32 {v(vWRD)}, v32, 3, {v(vWRD)}")
        a(f"v_lshlrev_b32 {v(vSTR)}, 8, {v(half)}")
        a(f"v_lshl_add_u32 {v(vSTR)}, v32, 7, {v(vSTR)}")
        a(f"v_lshl_add_u32 {v(vSTR)}, {v(t1)}, 6, {v(vSTR)}")
        a(f"v_lshl_add_u32 {v(vSTR)}, {v(jj)}, 4, {v(vSTR)}")
        a(f"v_lshl_add_u32 {v(vSTR)}, v27, 3, {v(vSTR)}")
        a(f"s_lshl_b32 {s(sT0)}, {s(sSUB)}, 12")
        a(f"s_add_u32 {s(sT0)}, {s(sT0)}, {L_STG + 0x4000}")
        a(f"v_add_u32 {v(vSTR2)}, {s(sT0)}, {v(vSTR)}")
        a(f"s_lshl_b32 {s(sT0)}, {s(sW)}, 12")
        a(f"s_add_u32 {s(sT0)}, {s(sT0)}, {L_STG}")
        a(f"v_add_u32 {v(vSTR)}, {s(sT0)}, {v(vSTR)}")
        a(f"v_bfe_u32 v33, {v(L)}, 3, 2")
        a(f"v_and_b32 {v(vSTW)}, 0x70, {v(vL16)}")
        a(f"v_lshl_add_u32 {v(vSTW)}, v33, 8, {v(vSTW)}")
        a(f"v_lshl_add_u32 {v(vSTW)}, {v(half)}, 12, {v(vSTW)}")
        a(f"s_lshl_b32 {s(sT0)}, {s(sW)}, 10")
        a(f"s_add_u32 {s(sT0)}, {s(sT0)}, {L_STG}")
        a(f"v_add_u32 {v(vSTW)}, {s(sT0)}, {v(vSTW)}")
        a(f"v_bfe_u32 v34, {v(L)}, 1, 2")
        a(f"v_xor_b32 v33, v33, v34")
        a(f"v_lshlrev_b32 {v(vWOW)}, 14, v34")
        a(f"v_lshl_add_u32 {v(vWOW)}, v33, 5, {v(vWOW)}")
        a(f"v_lshl_add_u32 {v(vWOW)}, {v(half)}, 9, {v(vWOW)}")
        a(f"v_lshl_add_u32 {v(vWOW)}, v27, 4, {v(vWOW)}")
        a(f"s_lshl_b32 {s(sT0)}, {s(sW)}, 7")
        a(f"v_add_u32 {v(vWOW)}, {s(sT0)}, {v(vWOW)}")
        a(f"v_lshlrev_b32 {v(vWOR)}, 3, {v(L)}")
        a(f"s_lshl_b32 {s(sT0)}, {s(sSUB)}, 15")
        a(f"s_and_b32 {s(sT1)}, {s(sW)}, 2")
        a(f"s_lshl_b32 {s(sT2)}, {s(sT1)}, 9")
        a(f"s_add_u32 {s(sT0)}, {s(sT0)}, {s(sT2)}")
        a(f"v_add_u32 {v(vWKW)}, {s(sT0)}, {v(vL16)}")
        a(f"v_and_b32 v33, 0x1f0, {v(vL16)}")
        a(f"v_add_u32 {v(vCSR)}, {L_CSP:#x}, v33")
        a(f"v_and_b32 v34, 1, {v(jj)}")
        a(f"v_cmp_eq_u32 vcc, v34, {v(half)}")
        a(f"v_lshlrev_b32 v35, 6, {v(half)}")
        a(f"v_sub_u32 v35, 576, v35")
        a(f"v_cndmask_b32 {v(vKFR)}, v35, v33, vcc")
        a(f"v_add_u32 {v(vKFR)}, {L_KVF:#x}, {v(vKFR)}")
        a(f"s_mul_i32 {s(sT0)}, {s(sT1)}, {KS}")
        a(f"s_lshl_b32 {s(sT2)}, {s(sSUB)}, 6")
        a(f"s_add_u32 {s(sT0)}, {s(sT0)}, {s(sT2)}")
        a(f"s_add_u32 {s(sT0)}, {s(sT0)}, {L_KVF}")
        a(f"v_mul_u32_u24 {v(vKFW)}, {KS}, {v(half)}")
        a(f"v_lshl_add_u32 {v(vKFW)}, {v(q)}, 4, {v(vKFW)}")
        a(f"v_lshl_add_u32 {v(vKFW)}, {v(jj)}, 7, {v(vKFW)}")
        a(f"v_lshl_add_u32 {v(vKFW)}, {v(t1)}, 3, {v(vKFW)}")
        a(f"v_add_u32 {v(vKFW)}, {s(sT0)}, {v(vKFW)}")
        a(f"s_lshl_b32 {s(sT0)}, {s(sW)}, 5")
        a(f"s_add_u32 {s(sT0)}, {s(sT0)}, {L_ZB}")
        a(f"v_lshl_add_u32 {v(vZW)}, {v(q)}, 2, {v(g)}")
        a(f"v_lshl_add_u32 {v(vZW)}, {v(vZW)}, 1, {s(sT0)}")
        a(f"v_mov_b32 v35, {L_ZB:#x}")
        a(f"v_lshl_add_u32 {v(vZR)}, {v(half)}, 5, v35")
        a(f"v_mov_b32 v36, 0x3f80")
        a(f"v_lshlrev_b32 v37, 4, v27")
        a(f"v_lshlrev_b32 v36, v37, v36")
        a(f"v_lshrrev_b32 v37, 1, {v(i16)}")
        a(f"v_lshlrev_b32 v38, 2, {v(t1)}")
        a(f"v_sub_u32 v37, v37, v38")
        for d in range(4):
            a(f"v_cmp_eq_u32 vcc, {d}, v37")
            a(f"v_cndmask_b32 {v(40 + d)}, 0, v36, vcc")
        a(f"v_add_u32 v33, {L_SEL:#x}, v33")
        a(f"ds_write_b128 v33, v[40:43]")
        for i in range(4):
            a(f"v_mov_b32 {v(44 + i)}, 0")
        a(f"v_min_u32 v33, 5, {v(i16)}")
        a(f"v_mul_u32_u24 v33, {KS}, v33")
        a(f"v_lshl_add_u32 v33, {v(half)}, 6, v33")
        a(f"v_add_u32 v33, {L_KVF + 512:#x}, v33")
        a(f"ds_write_b128 v33, v[44:47]")
        a = a0
        self.ts("p_setup")
        while self.nw < cfg["n1"]:
            self.ld_wkv(0, self.nw, 5)
            self.nw += 1
        if cfg["warm_at"] == 1:
            self.warm(0)
        a("s_waitcnt lgkmcnt(0)")
        a.lg.clear()
        a(f"s_mul_i32 {s(sTAG)}, {s(sEP)}, 0x9e3779b1")
        a(f"s_add_u32 {s(sTAG)}, {s(sTAG)}, 0x7f4a7c15")
        a(f"s_and_b32 {s(sTAG)}, {s(sTAG)}, 0xffffff00")
        a(f"s_or_b32 {s(sT1)}, {s(sTAG)}, 0xf0")
        a(f"s_or_b32 {s(sXCC)}, {s(sTAG)}, {s(sXCC)}")
        a(f"v_mov_b32 v34, {s(sXCC)}")
        a(f"v_mov_b32 v35, {s(sT1)}")
        a(f"v_lshrrev_b32 v37, 2, {v(vL16)}")
        a("s_mov_b64 exec, 1")
        a.wait(vm="sst")
        self.fine("p_ack")
        a(f"buffer_store_dword v34, off, {s(sWS, 4)}, {s(sFXS)}")
        with self.only_if(f"s_cmp_eq_u32 {s(sW)}, 3"):
            a(f"s_lshl2_add_u32 {s(sT0)}, {s(sC)}, {s(sANN)}")
            a(f"buffer_store_dword v34, off, {s(sWS, 4)}, {s(sT0)} sc1")
        a("s_mov_b32 exec_lo, -1")
        with self.only_if(f"s_cmp_lt_u32 {s(sW)}, 2"):
            a(f"s_lshl_b32 {s(sT0)}, {s(sR)}, 7")
            a(f"s_add_u32 {s(sT0)}, {s(sT0)}, {s(sHEL)}")
            a(f"buffer_store_dword v35, v37, {s(sWS, 4)}, {s(sT0)} offen sc1")
        a("s_mov_b32 exec_hi, -1")
        a(f"s_and_b32 {s(sHEL)}, {s(sHEL)}, 0xfffeffff")
        self.ts("flag0")
        for i in range(self.nw, 16):
            self.ld_wkv(0, i, 5)
        a(f"v_and_b32 v38, 0x100, {v(vL16)}")
        a(f"v_add_u32 v38, v38, {v(vPOLL)}")
        a(f"s_and_b32 {s(sT2)}, {s(sFXP)}, 0xfffffeff")
        look = lambda: a(f"buffer_load_dword v34, v38, {s(sWS, 4)}, {s(sT2)} offen sc1", vm="f0")
        if cfg["f0_at"] < 0:
            look()
        if cfg["warm_at"] == 2:
            self.warm(0)
        a(f"s_lshl_b32 {s(sT0)}, {s(sW)}, 10")
        a(f"s_add_u32 {s(sT0)}, {s(sT0)}, {L_STG + 0x3000}")
        a(f"v_add_u32 v33, {s(sT0)}, {v(vL16)}")
        a.wait(vm="phi")
        a(f"ds_write_b128 v33, v[16:19]", lg="ph")
        a(f"v_lshlrev_b32 v33, 9, v27")
        a(f"v_lshl_add_u32 v33, {v(half)}, 8, v33")
        a(f"v_lshl_add_u32 v33, {v(jj)}, 5, v33")
        a(f"v_lshl_add_u32 v33, {v(t1)}, 4, v33")
        a(f"v_lshl_add_u32 v33, v32, 3, v33")
        a(f"v_add_u32 v33, {s(sT0)}, v33")
        a(f"v_mul_u32_u24 v39, {KS - 512}, {v(half)}")
        a(f"v_add_u32 v39, v39, {v(vL16)}")
        a(f"v_add_u32 v39, {L_WPF:#x}, v39")
        a.wait(lg="ph")
        a(f"ds_read_b64_tr_b16 v[16:17], v33")
        a(f"ds_read_b64_tr_b16 v[18:19], v33 offset:128", lg="ph2")
        self.ts("p_phi")
        for i in range(16):
            a.wait(vm=f"wkv{i}")
            self.fine(f"p_w{i}")
            if i == cfg["f0_at"]:
                look()
            self.put_wkv(0, i, i + 1)
            self.cs_kv_step(0, i, 40, 44)
            if i == 1:
                a.wait(lg="ph2")
                a(f"ds_write_b128 v39, v[16:19]")
        self.puts_left = []
        self.cs_kv_fin(0, 44, 50)
        self.ts("wkv0")
        a.wait(vm="f0")
        a(f"v_cmp_ne_u32 vcc, {s(sXCC)}, v34")
        a("s_branch L_global" if cfg["force_global"] else "s_cbranch_vccnz L_poll0")
        a.label("L_enter")
        with self.outofline():
            a.label("L_poll0")
            a(f"buffer_load_dword v34, v38, {s(sWS, 4)}, {s(sT2)} offen sc1")
            self.countdown()
            a("s_waitcnt vmcnt(0)")
            a(f"v_cmp_ne_u32 vcc, {s(sXCC)}, v34")
            a("s_cbranch_vccz L_enter")
            a(f"s_and_b32 {s(sT1)}, {s(sCNT)}, 15")
            a("s_cbranch_scc1 L_poll0")
            a(f"buffer_load_dword v34, {v(vPOLL)}, {s(sWS, 4)}, {s(sANN)} offen sc1")
            a("s_waitcnt vmcnt(0)")
            a(f"v_xor_b32 v34, {s(sXCC)}, v34")
            a(f"v_add_u32 v34, -1, v34")
            a(f"v_cmp_gt_u32 vcc, 15, v34")
            a("s_cbranch_vccz L_poll0")
            a.label("L_global")
            a(f"s_mov_b32 {s(sMODE)}, 1")
            a(f"s_add_u32 {s(sFXS)}, {s(sFXS)}, {FLAGX2 - FLAGX}")
            a(f"s_add_u32 {s(sFXP)}, {s(sFXP)}, {FLAGX2 - FLAGX}")
            a(f"s_mov_b32 {s(sTG)}, {s(sTAG)}")
            for r_ in (sSTST, sSTLD):
                a(f"s_add_u32 {s(r_)}, {s(r_)}, {STATS_G}")
            for st in self.x_steps(0, XR, AK, wt=True):
                st()
            a(f"v_mov_b32 v16, {s(sTG)}")
            self.flag(sFXS, 16)
            self.poll(vPOLL, sFXP, 34)
            a("s_branch L_enter")
        self.ts("poll0")
        if cfg["pfine"]:
            a("s_waitcnt lgkmcnt(0)")
            for k in range(len(cfg["pfine"])):
                a(f"v_writelane_b32 {v(vTS)}, {s(84 + 2 * k)}, {48 + k}")
            late_srds(a)

    def rowmajor_voff(self, d, t):
        a = self.a
        a(f"v_and_b32 {v(d)}, 0xf0, {v(vL16)}")
        a(f"v_lshlrev_b32 {v(d)}, 6, {v(d)}")
        a(f"v_bfe_u32 {v(t)}, {v(vL16)}, 8, 1")
        a(f"v_lshl_add_u32 {v(d)}, {v(t)}, 5, {v(d)}")
        a(f"v_lshrrev_b32 {v(t)}, 9, {v(vL16)}")
        a(f"v_lshl_add_u32 {v(d)}, {v(t)}, 4, {v(d)}")

    def tile_addr(self, d, t):
        return [f"s_mul_i32 {s(sT0)}, {s(sW)}, 2304",
                f"s_add_u32 {s(sT0)}, {s(sT0)}, {L_STG}",
                f"v_bfe_u32 {v(t)}, {v(vL16)}, 4, 4",
                f"v_mul_u32_u24 {v(d)}, 144, {v(t)}",
                f"v_lshrrev_b32 {v(t)}, 8, {v(vL16)}",
                f"v_lshl_add_u32 {v(d)}, {v(t)}, 3, {v(d)}",
                f"v_add_u32 {v(d)}, {s(sT0)}, {v(d)}",
                f"v_lshrrev_b32 {v(t)}, 7, {v(vL16)}",
                f"v_lshl_add_u32 {v(d + 1)}, {v(t)}, 4, {v(vL16)}",
                f"v_add_u32 {v(d + 1)}, {s(sT0)}, {v(d + 1)}",
                f"v_mul_u32_u24 {v(d + 2)}, {1024 - 128}, {v(t)}",
                f"v_add_u32 {v(d + 2)}, {v(d + 2)}, {v(vL16)}"]

    def final(self):
        a = self.a
        X = AK
        if self.cfg["fin_lds"]:
            a(f"s_add_u32 {s(sT1)}, {s(sFIN)}, 8192")
            for i in range(8):
                a(f"v_cvt_pk_bf16_f32 {v(X + i)}, {v(XR + 2 * i)}, {v(XR + 2 * i + 1)}")
                if i % 4 == 3:
                    a(f"ds_write2_b64 {v(PK)}, {v(X + i - 3, 2)}, {v(X + i - 1, 2)} offset0:{(i >> 2) * 8} offset1:{(i >> 2) * 8 + 4}")
            for i in range(2):
                a(f"ds_read_b128 {v(X + 8 + 4 * i, 4)}, {v(PK + 1)} offset:{1152 * i}")
            for i in range(2):
                a(f"s_waitcnt lgkmcnt({1 - i})")
                a(f"buffer_store_dwordx4 {v(X + 8 + 4 * i, 4)}, {v(PK + 2)}, {s(sOUT, 4)}, {s((sFIN, sT1)[i])} offen{self.cfg['finflag']}")
        else:
            self.rowmajor_voff(PK, PK + 1)
            for i in range(8):
                a(f"v_cvt_pk_bf16_f32 {v(X + i)}, {v(XR + 2 * i)}, {v(XR + 2 * i + 1)}")
            for i in range(2):
                for d in range(2):
                    a(f"v_permlane16_swap_b32 {v(X + 4 * i + d)}, {v(X + 4 * i + 2 + d)}")
            for i in range(2):
                a(f"buffer_store_dwordx4 {v(X + 4 * i, 4)}, {v(PK)}, {s(sOUT, 4)}, {s(sFIN)} offen offset:{64 * i}{self.cfg['finflag']}")
        with self.only_if(f"s_cmp_eq_u32 {s(sGW)}, 0"):
            a(f"s_add_u32 {s(sEP)}, {s(sEP)}, 1")
            a(f"v_mov_b32 v0, {s(sEP)}")
            a("s_mov_b64 exec, 1")
            a(f"buffer_store_dword v0, off, {s(sWS, 4)}, 0 sc1")
            a("s_mov_b64 exec, -1")
        if self.cfg["amp"]:
            amp = self.cfg["amp"]
            self.ts("end")
            a("s_sub_u32 s72, s78, s72")
            a(f"s_mul_i32 s72, s72, {amp[2]}")
            if amp[3]:
                a("s_lshr_b32 s72, s72, 5")
            a("s_min_u32 s72, s72, 100000")
            if self.cfg.get("amp_one") is not None:
                a(f"s_cmp_eq_u32 {s(sGW)}, {self.cfg['amp_one']}")
                a("s_cselect_b32 s72, s72, 0")
            a("s_memrealtime s[78:79]")
            a("s_waitcnt lgkmcnt(0)")
            a("s_mov_b32 s73, s78")
            a.label("L_amp")
            a("s_memrealtime s[78:79]")
            a("s_waitcnt lgkmcnt(0)")
            a("s_sub_u32 s78, s78, s73")
            a("s_cmp_lt_u32 s78, s72")
            a("s_cbranch_scc1 L_amp")
        if self.cfg["ts"]:
            a("s_waitcnt vmcnt(0)")
            self.ts("end")
            a("s_memrealtime s[72:73]")
            a("s_waitcnt lgkmcnt(0)")
            for k in range(len(self.cfg["fine"])):
                a(f"v_writelane_b32 {v(vTS)}, {s(FINE[k])}, {48 + k}")
            a(f"v_writelane_b32 {v(vTS)}, {s(sLAY)}, 58")
            a(f"v_writelane_b32 {v(vTS)}, {s(sTSI)}, 59")
            a(f"v_writelane_b32 {v(vTS)}, {s(sCNT)}, 60")
            a(f"v_writelane_b32 {v(vTS)}, s78, 61")
            a(f"v_writelane_b32 {v(vTS)}, s72, 62")
            a(f"v_writelane_b32 {v(vTS)}, {s(sMODE)}, 63")
            a(f"s_lshl_b32 {s(sT0)}, {s(sGW)}, 8")
            a(f"s_add_u32 {s(sT0)}, {s(sT0)}, {DBG + 0x2000000}")
            a(f"v_lshrrev_b32 v0, 2, {v(vL16)}")
            a(f"buffer_store_dword {v(vTS)}, v0, {s(sWS, 4)}, {s(sT0)} offen")
        a.label("L_timeout")
        a.label("L_end")
        a("s_endpgm")

    def place(self):
        a = self.a
        if not self.cfg["pads"]:
            self.stat = a.layout(self.cfg["align"])
            return
        keep = list(a.ins)
        for k in range(12):
            a.ins.append(Ins(f"L_pad{k}:"))
        cnt = [0]

        def probe(k):
            cnt[0] += 1
            return f"L_tmp{cnt[0]}", "s_nop 0"
        a.layout(self.cfg["align"], probe)
        n = cnt[0]
        a.ins = keep + [Ins(f"L_pad{k}:") for k in range(12)]
        cnt[0] = 0

        def pad(_):
            k = cnt[0]
            cnt[0] += 1
            return f"L_pad{k}", f"s_cbranch_execz {self.pad_back[k]}"
        self.stat = a.layout(self.cfg["align"], pad)
        del a.ins[-12:]
        assert cnt[0] == n <= 12
        for k in range(n, 12):
            i = [x.label for x in a.ins].index(self.pad_back[k])
            a.ins.insert(i, Ins(f"L_pad{k}:"))

    def build(self):
        a = self.a
        self.prologue()
        if self.cfg["pads"]:
            a("s_branch L_layer0")
            a(".p2align 12")
            self.nook = a.ins[-1]
        for l in range(4):
            self.layer(l)
        self.final()
        hot = [k for k, x in enumerate(self.tail) if x.label and x.label.startswith("L_again")]
        blocks, rest_, k = [], [], 0
        while k < len(self.tail):
            e = k
            while self.tail[e].op != "s_branch":
                e += 1
            (blocks if k in hot else rest_).extend(self.tail[k:e + 1])
            k = e + 1
        blocks[1].pad_here = True
        a.raw(blocks + rest_)
        a.label("L_codeend")
        a("s_endpgm")
        nops = a.pad_hazards()
        self.place()
        head = open(f"cdna_kernels/{NAME}.s.ref").read().split("; Override launch")[0]
        out = head + f"; @launch grid=(256,1,1) block=(256,1,1) lds={LDS_SIZE}\n"
        out += f""".amdgcn_target "amdgcn-amd-amdhsa--gfx950"
.text
.globl {NAME}_kernel
.p2align 8
.type {NAME}_kernel,@function
{NAME}_kernel:
"""
        out += a.text()
        out += f""".section .rodata,"a"
.p2align 6
.amdhsa_kernel {NAME}_kernel
  .amdhsa_next_free_vgpr 512
  .amdhsa_next_free_sgpr 102
  .amdhsa_accum_offset 256
  .amdhsa_group_segment_fixed_size 0
  .amdhsa_kernarg_size 80
  .amdhsa_user_sgpr_count 2
  .amdhsa_user_sgpr_kernarg_segment_ptr 1
  .amdhsa_system_sgpr_workgroup_id_x 1
.end_amdhsa_kernel
"""
        self.nops = nops
        return out


if __name__ == "__main__":
    import ast
    kw = {}
    out = sys.argv[1]
    for x in sys.argv[2:]:
        k, val = x.split("=", 1)
        kw[k] = ast.literal_eval(val)
    g = Gen(**kw)
    txt = g.build()
    open(out, "w").write(txt)
    print(f"wrote {out}: {len(g.a.ins)} lines, {g.nops} pad states, layout {g.stat}", file=sys.stderr)
```

```python
import sys
import contextlib
from asmlib import Asm, Ins

NAME = "interleave_layers__linear_attn_block__linear_kernel_hedgehog__prompt"

CFG = dict(
    ts=0, rt=0,
    dump=None,
    amp=None,
    force_global=0, fine=(), pfine=(),
    n0=4, w_every=20, n1=9, warm_at=2, latepf=(0, ''), fin_lds=1, x0_lds=1, tlb='', sl_first=1, l2pf=0, l2div=1, slow0=1, f0_at=10, codepf=14, slowpf=1, align=99, pads=1, mallpf=1, x_wt=1, x_ann=1,
    hx='ffff', ho='ffff', touch=1,
    bg=((4, 6, 14, 8, 0, 0, 8), (4, 10, 10, 0, 0, 0, 0)),
    pl_step=(26, 24, 22, 20), pl_gap=(1, 1, 1, 2),
    nx0=8, nx1=4, xmix=1, x_qskip=0, x_st=0, ppf=(-1, -1, -1, -1), zlast=0, zst1=0, otouch=0, oinit=(0, -1), nmode=1, no0=8,
    wo_every=(8, 10), qputs=(8, 8), qearly=0, pdepth=2,
    np=8, owin=(((6, 0), (2, 8), (0, 20)), ((0, 32), (4, 0), (4, 0))), ord=((0, 2, 1, 1), (2, 2, 2, 1)),
    xputs=(4, 12), spar=1, xprobe_at=5,
    finflag="", jit=0,
)

FLAGX, FLAGO, FLAGX2, ANN, HELLO = 0x1000, 0x3000, 0x7000, 0x9000, 0xA0000
STATS, STATS_G = [0x10000, 0x30000], 0x40000
XB = [0, 0x800000]
OB = [0x400000, 0x600000]
KVP = [0xC0000 + 0x90000 * l for l in range(4)]
DBG = 0x1000000
WS_SIZE = 0x8000000
L_P, L_WQ, L_STG = 0x0, [0x10000, 0x18000], 0x20000
L_KVF = 0x26000
KS = 592
L_WPF = L_KVF + 4 * KS
L_ZB = L_WPF + 2 * KS
L_CSP = L_ZB + 128
L_SEL = L_CSP + 3072
LDS_SIZE = 0x28000
XF, AK, AV, RG, LG, XR, PK = 0, 128, 144, 160, 192, 208, 224
vSTR, vSTR2, vPST, vZST, vKFW, vZW, vZR, vOST = range(184, 192)
vL16, vWRD, vSTW, vKFR, vS, vRS, vM, vXST, vSST, vSLD, vPOLL, vWOR, vWOW, vWKW, vCSR, vTS = range(240, 256)
A_WKV, A_WO = [0, 64], [128, 192]
sID = 2
sPX, sPWA, sPWOA, sPBX, sPWB, sPPHI, sPWOB, sPOUT, sPDBG, sPWS = range(4, 24, 2)
sWS, sOUT, sTMP = 24, 28, 32
XS = [sOUT, sWS]
(sW, sC, sR, sXLD, sSTLD, sFXP, sOST, sFOS, sOLD, sFOP, sXST, sSTST, sFXS, sKVT, sTAG, sMODE, sPASS,
 sEP, sXCC, sT0, sT1, sT2, sT3, sCNT, sWOFF, sQOFF, sOOFF, sHEL, sLN2, sLN2b, sDELTA, sFIN) = range(36, 68)
sHI = 68
sSAVE = 70
sTSA = 72
sTSI = 74
sGW = 75
sLAY = 76
sANN = 77
sW13 = 98
sSKIP = 3
sPF = 0
sTG = 1
sPM = 96
sSW, sSO = [80, 84], [88, 92]
vBW, vBO, vHL = RG + 20, RG + 21, RG + 22
vPR, vPB, vPA, vCK = PK + 10, PK + 11, PK + 7, PK + 6
sROW = sPM
sCOL = sPBX
assert sLN2 % 2 == 0

FINE = [4, 6, 8, 12, 14, 16, 18, 20, 22, 32]
LOG2E = 0x3FB8AA3B
LN2 = 0x3F317218
DELTA = 0x35C1A4C3
import struct
def f2u(x): return struct.unpack("<I", struct.pack("<f", x))[0]
DELTA = f2u(1e-6 * 1.4426950408889634)


def v(a, n=1): return f"v{a}" if n == 1 else f"v[{a}:{a + n - 1}]"
def ar(a, n=1): return f"a{a}" if n == 1 else f"a[{a}:{a + n - 1}]"
def s(a, n=1): return f"s{a}" if n == 1 else f"s[{a}:{a + n - 1}]"


class Gen:
    def __init__(self, **kw):
        self.cfg = dict(CFG)
        self.cfg.update(kw)
        self.a = Asm()
        self.tail = []
        self.nts = 0
        self.tsnames = []
        self.side = []
        self.side_every = 1
        self.pad_back = {}
        self.xb, self.ob = [0], [0]
        assert self.cfg["hx"][0] == "f" and self.cfg["ho"][0] == "f"
        for l in range(1, 4):
            self.xb.append(self.xb[-1] ^ (self.cfg["hx"][l] == "s"))
            self.ob.append(self.ob[-1] ^ (self.cfg["ho"][l] == "s"))

    @contextlib.contextmanager
    def uncounted(self):
        a = self.a
        vm, lg = list(a.vm), list(a.lg)
        yield
        a.vm, a.lg = vm, lg

    @contextlib.contextmanager
    def only_if(self, cmp):
        a = self.a
        l = a.newlabel("skip")
        a(cmp)
        a(f"s_cbranch_scc0 {l}")
        with self.uncounted():
            yield
        a.label(l)

    @contextlib.contextmanager
    def outofline(self):
        a = self.a
        n0 = len(a.ins)
        with self.uncounted():
            yield
        self.tail += a.ins[n0:]
        del a.ins[n0:]

    def code_pf(self, lo, hi, t):
        a = self.a
        n = f"(({hi}-{lo})/1024+1)"
        a(f"s_bfe_u32 {s(sT0)}, {s(sID)}, {3 | (3 << 16)}")
        a(f"s_mul_i32 {s(sT0)}, {s(sT0)}, {n}*128")
        a(f"s_add_u32 {s(sT0)}, {s(sT0)}, {lo}-L_pc")
        a(f"v_lshlrev_b32 {v(t)}, 3, {v(vL16)}")
        a(f"v_min_u32 {v(t)}, ({n}-1)*128, {v(t)}")
        a(f"v_add_u32 {v(t)}, {s(sT0)}, {v(t)}")
        a(f"v_min_u32 {v(t)}, L_codeend-L_pc, {v(t)}")
        a(f"global_load_dword {v(t)}, {v(t)}, {s(sSAVE, 2)}")

    def warm(self, g):
        a = self.a
        if not self.cfg["pads"]:
            return
        a("s_mov_b64 exec, 0")
        for k in range(3):
            a(f"s_cmp_eq_u32 {s(sW)}, {k}")
            a(f"s_cbranch_scc1 L_pad{4 * g + k}")
        a(f"s_branch L_pad{4 * g + 3}")
        a.label(f"L_warmed{g}")
        a("s_mov_b64 exec, -1")
        for k in range(4):
            self.pad_back[4 * g + k] = f"L_warmed{g}"

    @contextlib.contextmanager
    def waves01(self, pads):
        a = self.a
        if not self.cfg["pads"]:
            with self.only_if(f"s_cmp_lt_u32 {s(sW)}, 2"):
                yield
                a("s_mov_b64 exec, -1")
            return
        st, back = a.newlabel("stub"), a.newlabel("back")
        a(f"s_cmp_lt_u32 {s(sW)}, 2")
        a(f"s_cbranch_scc0 {st}")
        with self.uncounted():
            yield
        a.label(back)
        a("s_mov_b64 exec, -1")
        i = a.ins.index(self.nook)
        a.ins[i:i] = [Ins(x) for x in (f"{st}:", "s_mov_b64 exec, 0", f"s_cmp_eq_u32 {s(sW)}, 2", f"s_cbranch_scc1 L_pad{pads[0]}", f"s_branch L_pad{pads[1]}")]
        for x in a.ins[i:i + 5] + a.ins[-1:]:
            x.nopad = True
        for k in pads:
            self.pad_back[k] = back

    def countdown(self):
        self.a(f"s_sub_u32 {s(sCNT)}, {s(sCNT)}, 1")
        self.a("s_cbranch_scc1 L_timeout")

    def bg_region(self, n, slots):
        n = min(n, len(self.bg))
        self.bg_slot = 0
        self.bg_at = [(k * slots) // n for k in range(n)]

    def bg_tick(self):
        for _ in range(self.bg_at.count(self.bg_slot)):
            self.bg.pop(0)()
        self.bg_slot += 1

    def bg_now(self, n):
        for _ in range(min(n, len(self.bg))):
            self.bg.pop(0)()

    def ticker(self):
        def e(text, **kw):
            if self.side and self.bg_slot % self.side_every == 0:
                self.side.pop(0)()
            self.bg_tick()
            self.a(text, **kw)
        return e

    def moded(self, lines, tag=None, reg=sMODE, wt=False, cmp=True):
        a = self.a
        if wt:
            for l in lines:
                a(l + (" sc1" if l.startswith("buffer_store") else ""), vm=tag)
            return
        lg, lj = a.newlabel("glob"), a.newlabel("join")
        if cmp:
            a(f"s_cmp_eq_u32 {s(reg)}, 0")
        a(f"s_cbranch_scc0 {lg}")
        for l in lines:
            a(l, vm=tag)
        a.label(lj)
        t = [Ins(lg + ":")] + [Ins(l + (" sc1" if l.startswith("buffer_store") else "")) for l in lines] + [Ins(f"s_branch {lj}")]
        self.tail += t

    def srd_tmp(self, ptr, size):
        a = self.a
        a(f"s_mov_b32 {s(sTMP)}, {s(ptr)}")
        a(f"s_mov_b32 {s(sTMP + 1)}, {s(ptr + 1)}")
        a(f"s_mov_b32 {s(sTMP + 2)}, {size}")

    def ts(self, name):
        a = self.a
        self.fine(name)
        amp = self.cfg["amp"]
        if amp:
            for k in range(2):
                if amp[k] == name:
                    a(f"{'s_memtime' if amp[3] else 's_memrealtime'} {s(72 + 6 * k, 2)}")
                    if name != "start":
                        a("s_waitcnt lgkmcnt(0)")
        if not self.cfg["ts"] or name == "start":
            return
        if self.cfg["ts"] == 1 and name.startswith("p_"):
            return
        if self.cfg["ts"] == 4 and name not in ("kernarg", "end"):
            return
        if self.cfg["ts"] == 3 and name not in ("x0", "flag0", "poll0", "end") and name[2:] not in ("kvgemm", "ogemm"):
            return
        if self.cfg["ts"] == 2 and ":" in name and name[2:] not in ("kvgemm", "bar3", "ogemm"):
            return
        a(f"{'s_memrealtime' if self.cfg['rt'] else 's_memtime'} {s(sTSA, 2)}")
        a("s_waitcnt lgkmcnt(0)")
        a.lg.clear()
        a(f"v_writelane_b32 {v(vTS)}, {s(sTSA)}, {len(self.tsnames)}")
        self.tsnames.append(name)
        assert len(self.tsnames) <= 56

    def fine(self, name):
        if name in self.cfg["pfine"]:
            self.a(f"s_memtime {s(84 + 2 * list(self.cfg['pfine']).index(name), 2)}")
        if name in self.cfg["fine"]:
            self.a(f"s_memtime {s(FINE[list(self.cfg['fine']).index(name)], 2)}")

    def dump(self, point, l, regs, tmp):
        if self.cfg["dump"] != (point, l):
            return
        a = self.a
        with self.uncounted():
            a("s_waitcnt vmcnt(0) lgkmcnt(0)")
            a("s_nop 15")
            a(f"v_lshrrev_b32 {v(tmp)}, 2, {v(vL16)}")
            a(f"s_mul_i32 {s(sT0)}, {s(sGW)}, {64 * 256}")
            a(f"s_add_u32 {s(sT0)}, {s(sT0)}, {DBG}")
            for i, r in enumerate(regs):
                a(f"buffer_store_dword {v(r)}, {v(tmp)}, {s(sWS, 4)}, {s(sT0)} offen")
                a(f"s_add_u32 {s(sT0)}, {s(sT0)}, 256")
            a("s_waitcnt vmcnt(0)")

    def poll(self, voff, soff, tmp, tag=sTG):
        a = self.a
        l = a.newlabel("poll")
        a.label(l)
        a(f"buffer_load_dword {v(tmp)}, {v(voff)}, {s(sWS, 4)}, {s(soff)} offen sc1")
        self.countdown()
        a.wait(vm=0)
        a(f"v_cmp_ne_u32 vcc, {s(tag)}, {v(tmp)}")
        a(f"s_cbranch_vccnz {l}")

    def flag(self, soff, tmp, after=0):
        a = self.a
        a("s_mov_b64 exec, 1")
        self.moded(a.wait_text(vm=after) + [f"buffer_store_dword {v(tmp)}, off, {s(sWS, 4)}, {s(soff)}"])
        a("s_mov_b64 exec, -1")

    def w_voff(self, t):
        a = self.a
        a(f"v_lshrrev_b32 {v(t)}, 6, {v(vL16)}")
        a(f"v_mul_u32_u24 {v(t)}, {3072 - 64}, {v(t)}")
        a(f"v_add_u32 {v(t)}, {v(t)}, {v(vL16)}")

    def ld_wkv(self, T, i, t, st=sT0):
        a = self.a
        a(f"s_add_u32 {s(st)}, {s(sWOFF)}, {i * 32 * 3072}")
        a(f"buffer_load_dwordx4 {ar(A_WKV[T] + 4 * i, 4)}, {v(t)}, {s(sSW[T], 4)}, {s(st)} offen", vm=f"wkv{i}")

    def ld_wq(self, T, i):
        a = self.a
        a(f"s_add_u32 m0, {s(sW13)}, {L_WQ[T] + i * 1024}")
        a(f"s_add_u32 {s(sT0)}, {s(sQOFF)}, {i * 16 * 3072}")
        a(f"buffer_load_dwordx4 {v(self.bw)}, {s(sSW[T], 4)}, {s(sT0)} offen lds", vm="wq")

    def ld_wo(self, T, i):
        a = self.a
        a(f"s_add_u32 {s(sT0)}, {s(sOOFF)}, {i * 32 * 1024}")
        a(f"buffer_load_dwordx4 {ar(A_WO[T] + 4 * i, 4)}, {v(vBO)}, {s(sSO[T], 4)}, {s(sT0)} offen", vm=f"wo{i}")

    def slow_pf(self, srd, n, t):
        a = self.a
        if not self.cfg["slowpf"]:
            return
        a(f"s_sub_u32 {s(sT0)}, 0x180, {s(srd)}")
        a(f"s_and_b32 {s(sT0)}, {s(sT0)}, 0x380")
        a(f"s_mul_i32 {s(sT1)}, {s(sPF)}, {n * 1024}")
        a(f"s_add_u32 {s(sT0)}, {s(sT0)}, {s(sT1)}")
        a(f"v_lshlrev_b32 {v(t)}, 6, {v(vL16)}")
        a(f"s_mov_b64 exec, {(1 << n) - 1:#x}")
        a(f"buffer_load_dword {v(t)}, {v(t)}, {s(srd, 4)}, {s(sT0)} offen")
        a("s_mov_b64 exec, -1")

    def chip_pf(self, srd, n, t):
        a = self.a
        a(f"s_lshl2_add_u32 {s(sT0)}, {s(sID)}, {s(sW)}")
        a(f"s_mul_i32 {s(sT0)}, {s(sT0)}, {n * 128}")
        a(f"v_lshlrev_b32 {v(t)}, 3, {v(vL16)}")
        a(f"s_mov_b64 exec, {(1 << n) - 1:#x}")
        a(f"buffer_load_dword a255, {v(t)}, {s(srd, 4)}, {s(sT0)} offen")
        a("s_mov_b64 exec, -1")

    def bg_setup(self, T):
        self.bg = [(lambda i=i: self.ld_wq(T, i)) for i in range(8)] + [(lambda i=i: self.ld_wo(T, i)) for i in range(16)]
        if T == 0:
            self.bg += [(lambda i=i: self.ld_wkv(1, i, vBW)) for i in range(16)]
            at, which = self.cfg["latepf"]
            old = self.bg[at]

            def both():
                t = RG + 23 if self.bw == vBW else PK + 8
                for c_ in which:
                    self.chip_pf(*{"a": (sSW[0], 12), "b": (sSW[1], 12), "A": (sSO[0], 4), "B": (sSO[1], 4)}[c_], t)
                old()
            self.bg[at] = both

    def put_wkv(self, T, lo, hi, waits=False):
        for i in range(lo, hi):
            if waits:
                self.a.wait(vm=f"wkv{i}")
            self.a(f"ds_write_b128 {v(vWKW)}, {ar(A_WKV[T] + 4 * i, 4)} offset:{i * 2048}", lg="put")

    def put_wo(self, T, i):
        self.a(f"ds_write_b128 {v(vWOW)}, {ar(A_WO[T] + 4 * i, 4)} offset:{i * 1024}", lg="putwo")

    @staticmethod
    def woff(j, u):
        return (j >> 2) * 4096 + u * 1024 + (j & 3) * 256

    def cs_kv_step(self, T, i, sel, d):
        self.a(f"v_mfma_f32_16x16x32_bf16 {v(d, 4)}, {v(sel, 4)}, {ar(A_WKV[T] + 4 * i, 4)}, {v(d, 4) if i else 0}")

    def cs_q_fin(self, T, d, t):
        o = [f"s_lshl_b32 {s(sT2)}, {s(sW)}, 2\ns_add_u32 {s(sT2)}, {s(sT2)}, {L_CSP + T * 1536 + 1024}",
             f"v_lshrrev_b32 {v(t)}, 9, {v(vL16)}\nv_lshl_add_u32 {v(t)}, {v(t)}, 5, {s(sT2)}"]
        for bit, sh in ((4, 8), (8, 7), (5, 6)):
            o.append(f"v_bfe_u32 {v(t + 1)}, {v(vL16)}, {bit}, 1\nv_lshl_add_u32 {v(t)}, {v(t + 1)}, {sh}, {v(t)}")
        f = [f"v_permlane32_swap_b32 {v(d)}, {v(d + 2)}", f"v_permlane32_swap_b32 {v(d + 1)}, {v(d + 3)}",
             f"v_add_f32 {v(d)}, {v(d)}, {v(d + 2)}\nv_add_f32 {v(d + 1)}, {v(d + 1)}, {v(d + 3)}"]
        for ror in (4, 8):
            f.append(f"v_add_f32 {v(d)}, {v(d)}, {v(d)} row_ror:{ror}\nv_add_f32 {v(d + 1)}, {v(d + 1)}, {v(d + 1)} row_ror:{ror}")
        f.append(lambda: self.a(f"ds_write2_b32 {v(t)}, {v(d)}, {v(d + 1)} offset0:0 offset1:4", lg="csw"))
        return o, f

    def cs_kv_fin(self, T, d, t):
        a = self.a
        a(f"s_and_b32 {s(sT0)}, {s(sW)}, 1")
        a(f"s_lshl_b32 {s(sT0)}, {s(sT0)}, 9")
        a(f"s_and_b32 {s(sT1)}, {s(sW)}, 2")
        a(f"s_lshl_b32 {s(sT1)}, {s(sT1)}, 2")
        a(f"s_add_u32 {s(sT0)}, {s(sT0)}, {s(sT1)}")
        a(f"s_add_u32 {s(sT0)}, {s(sT0)}, {L_CSP + T * 1536}")
        a(f"v_lshrrev_b32 {v(t)}, 9, {v(vL16)}")
        a(f"v_lshl_add_u32 {v(t)}, {v(t)}, 2, {s(sT0)}")
        a(f"v_bfe_u32 {v(t + 1)}, {v(vL16)}, 4, 1")
        a(f"v_lshl_add_u32 {v(t)}, {v(t + 1)}, 8, {v(t)}")
        a(f"v_bfe_u32 {v(t + 1)}, {v(vL16)}, 8, 1")
        a(f"v_lshl_add_u32 {v(t)}, {v(t + 1)}, 7, {v(t)}")
        a(f"v_bfe_u32 {v(t + 1)}, {v(vL16)}, 5, 1")
        a(f"v_lshl_add_u32 {v(t)}, {v(t + 1)}, 6, {v(t)}")
        for ror in (4, 8):
            for i in range(4):
                a(f"v_add_f32 {v(d + i)}, {v(d + i)}, {v(d + i)} row_ror:{ror}")
        a(f"ds_write2_b32 {v(t)}, {v(d)}, {v(d + 1)} offset0:0 offset1:4")
        a(f"ds_write2_b32 {v(t)}, {v(d + 2)}, {v(d + 3)} offset0:8 offset1:12")

    def mark_slot(self, delta, ones):
        a = self.a
        a(f"s_add_u32 {s(sT2)}, {s(sKVT)}, {delta}")
        a(f"s_mov_b64 exec, {s(sROW, 2)}")
        a(f"buffer_store_dwordx4 {v(ones, 4)}, {v(vPST)}, {s(sWS, 4)}, {s(sT2)} offen sc1", vm="mark")
        a(f"s_mov_b64 exec, {s(sCOL, 2)}")
        a(f"buffer_store_dwordx4 {v(ones, 4)}, {v(vZST)}, {s(sWS, 4)}, {s(sT2)} offen sc1", vm="mark")
        a("s_mov_b64 exec, -1")

    def sel_read(self, sel):
        a = self.a
        a(f"v_and_b32 {v(sel)}, 0x1f0, {v(vL16)}")
        a(f"v_add_u32 {v(sel)}, {L_SEL:#x}, {v(sel)}")
        a(f"ds_read_b128 {v(sel, 4)}, {v(sel)}", lg="sel")

    @staticmethod
    def cs_pack(src, dst):
        return [
            f"v_add_f32 {v(src)}, {v(src)}, {v(src + 2)}",
            f"v_add_f32 {v(src + 1)}, {v(src + 1)}, {v(src + 3)}",
            f"v_add_f32 {v(src)}, {v(src)}, {v(src + 1)}",
            f"v_cvt_pk_bf16_f32 {v(src + 1)}, {v(src)}, {v(src)}",
            f"v_and_b32 {v(src + 1)}, 0xffff0000, {v(src + 1)}",
            f"v_sub_f32 {v(src)}, {v(src)}, {v(src + 1)}",
            f"v_cvt_pk_bf16_f32 {v(dst)}, {v(src + 1)}, {v(src)}",
        ]

    def x_steps(self, B, src, X, wt=False, par=0):
        a = self.a
        t = X + 8
        st = []
        E = lambda txt: st.append(lambda: a(txt))
        xl = []
        for h in range(2):
            xl += [f"v_cvt_pk_bf16_f32 {v(X + i)}, {v(src + 2 * i)}, {v(src + 2 * i + 1)}" for i in range(4 * h, 4 * h + 4)]
            xl += [f"buffer_store_dwordx4 {v(X + 4 * h, 4)}, {v(vXST)}, {s(XS[B], 4)}, {s(sXST)} offen offset:{h * 512}"]
        st.append(lambda: self.moded(xl, tag="xst", wt=wt))
        E(f"v_pk_add_f32 {v(t, 2)}, {v(src, 2)}, {v(src + 2, 2)}")
        E(f"v_pk_mul_f32 {v(t + 2, 2)}, {v(src, 2)}, {v(src, 2)}")
        E(f"v_pk_fma_f32 {v(t + 2, 2)}, {v(src + 2, 2)}, {v(src + 2, 2)}, {v(t + 2, 2)}")
        for i in range(2, 8):
            E(f"v_pk_add_f32 {v(t, 2)}, {v(t, 2)}, {v(src + 2 * i, 2)}")
            E(f"v_pk_fma_f32 {v(t + 2, 2)}, {v(src + 2 * i, 2)}, {v(src + 2 * i, 2)}, {v(t + 2, 2)}")
        E(f"v_add_f32 {v(t)}, {v(t)}, {v(t + 1)}")
        E(f"v_add_f32 {v(t + 2)}, {v(t + 2)}, {v(t + 3)}")
        E(f"v_permlane32_swap_b32 {v(t)}, {v(t + 2)}")
        E(f"v_add_f32 {v(t)}, {v(t)}, {v(t + 2)}")
        E(f"v_mov_b32 {v(t + 1)}, {v(t)}")

        def stat():
            self.moded([f"v_permlane16_swap_b32 {v(t)}, {v(t + 1)}", f"s_mov_b64 exec, {s(sROW, 2)}", f"v_add_f32 {v(t)}, {v(t)}, {v(t + 1)}",
                        f"v_or_b32 {v(t)}, 1, {v(t)}" if par else f"v_and_b32 {v(t)}, -2, {v(t)}",
                        f"buffer_store_dword {v(t)}, {v(vSST)}, {s(sWS, 4)}, {s(sSTST)} offen"], tag="sst")
            a("s_mov_b64 exec, -1")
        st.append(stat)
        return st

    def ldx(self, B, j):
        a = self.a
        if j % 4 == 0 and j:
            a(f"s_add_u32 {s(sT3)}, {s(sXLD)}, {XB[B] + j * 1024}")
        a(f"buffer_load_dwordx4 {v(XF + 4 * j, 4)}, {v(vL16)}, {s(XS[B], 4)}, {s(sT3 if j >= 4 else sXLD)} offen offset:{(j % 4) * 1024} sc1", vm=f"x{j}")

    def probe(self, what, reg, setexec=True):
        a = self.a
        voff, srd, soff, off, _ = what
        if setexec:
            a("s_mov_b64 exec, 0xffff")
        a(f"buffer_load_dword {v(reg)}, {v(voff)}, {s(srd, 4)}, {s(soff)} offen offset:{off} sc1", vm="probe")
        if setexec:
            a("s_mov_b64 exec, -1")

    def spin_more(self, what, name):
        a = self.a
        a(f"s_branch L_over{name}")
        a.label(f"L_more{name}")
        with self.uncounted():
            self.probe(what, vPR, False)
            self.countdown()
            a("s_waitcnt vmcnt(1)")
            a(f"{what[4]}, {v(vPB)}")
            a(f"s_cbranch_vccz L_go{name}")
            a(f"s_branch L_spin{name}")
        a.label(f"L_over{name}")
        self.nook = a.ins[-1]

    def spin(self, what, name):
        a = self.a
        a("s_mov_b64 exec, 0xffff")
        a.label(f"L_spin{name}")
        self.probe(what, vPB, False)
        a("s_waitcnt vmcnt(1)")
        a(f"{what[4]}, {v(vPR)}")
        a(f"s_cbranch_vccnz L_more{name}")
        a.label(f"L_go{name}")
        a("s_mov_b64 exec, -1")
        a.vm.clear()

    def what_x(self, l):
        if self.cfg["hx"][l] == "s":
            return (vPA, XS[self.xb[l]], sT3, 3824, "v_cmp_eq_u32 vcc, -1")
        return (vPOLL, sWS, sFXP, 0, f"v_cmp_ne_u32 vcc, {s(sTG)}")

    def what_o(self, l):
        if self.cfg["ho"][l] == "s":
            return (vPA, sWS, sT3, 1008, "v_cmp_eq_u32 vcc, -1")
        return (vPOLL, sWS, sFOP, 0, f"v_cmp_ne_u32 vcc, {s(sTG)}")

    def x_probe_addr(self):
        return [f"v_and_b32 {v(vPR)}, 4, {v(vPOLL)}",
                f"v_mul_u32_u24 {v(vPR)}, 448, {v(vPR)}",
                f"v_lshlrev_b32 {v(vPA)}, 9, {v(vPOLL)}",
                f"v_sub_u32 {v(vPA)}, {v(vPA)}, {v(vPR)}"]

    def phi_a(self, acc, tmp, after=None):
        a = self.ticker()
        for i in range(8):
            a(f"v_pk_mul_f32 {v(acc + 2 * i, 2)}, {v(acc + 2 * i, 2)}, {v(vS, 2)} op_sel_hi:[1,0]")
        for i in range(16):
            a(f"v_exp_f32_e64 {v(tmp + i)}, {v(acc + i)} clamp")
            a(f"v_max_f32 {v(acc + i)}, {s(sDELTA)}, {v(acc + i)}")
        for h in range(2):
            for i in range(4 * h, 4 * h + 4):
                a(f"v_pk_fma_f32 {v(acc + 2 * i, 2)}, {v(acc + 2 * i, 2)}, {s(sLN2, 2)}, {v(tmp + 2 * i, 2)}")
            for i in range(4 * h, 4 * h + 4):
                a(f"v_cvt_pk_bf16_f32 {v(PK + i)}, {v(acc + 2 * i)}, {v(acc + 2 * i + 1)}")
            if after:
                after(h)

    def logits(self, between=None):
        a = self.a
        a.wait(lg="wp")
        for i in range(6):
            a(f"v_cvt_pk_bf16_f32 {v(PK + i)}, {v(AK + 2 * i)}, {v(AK + 2 * i + 1)}")
        a(f"v_mfma_f32_32x32x16_bf16 {v(LG, 16)}, {v(PK + 8, 4)}, {v(PK, 4)}, 0")
        for i in range(6, 8):
            a(f"v_cvt_pk_bf16_f32 {v(PK + i)}, {v(AK + 2 * i)}, {v(AK + 2 * i + 1)}")
        if between:
            between()
        a(f"v_mfma_f32_32x32x16_bf16 {v(LG, 16)}, {v(PK + 12, 4)}, {v(PK + 4, 4)}, {v(LG, 16)}")

    def softmax2(self, t, isq, after=None):
        a = self.ticker()
        a(f"v_max3_f32 {v(t)}, {v(LG)}, {v(LG + 1)}, {v(LG + 2)}")
        a(f"v_min3_f32 {v(t + 1)}, {v(LG)}, {v(LG + 1)}, {v(LG + 2)}")
        for i in range(3, 15, 2):
            a(f"v_max3_f32 {v(t)}, {v(t)}, {v(LG + i)}, {v(LG + i + 1)}")
            a(f"v_min3_f32 {v(t + 1)}, {v(t + 1)}, {v(LG + i)}, {v(LG + i + 1)}")
        a(f"v_max_f32 {v(t)}, {v(t)}, {v(LG + 15)}")
        a(f"v_min_f32 {v(t + 1)}, {v(t + 1)}, {v(LG + 15)}")
        a(f"v_pk_mul_f32 {v(t, 2)}, {v(t, 2)}, {v(vS, 2)} op_sel_hi:[1,0]")
        for sg, E in ((0, AK), (1, LG)):
            for i in range(8):
                if sg == 0:
                    a(f"v_pk_fma_f32 {v(E + 2 * i, 2)}, {v(LG + 2 * i, 2)}, {v(vS, 2)}, {v(t, 2)} op_sel_hi:[1,0,0] neg_lo:[0,0,1] neg_hi:[0,0,1]")
                else:
                    a(f"v_pk_fma_f32 {v(E + 2 * i, 2)}, {v(LG + 2 * i, 2)}, {v(vS, 2)}, {v(t, 2)} op_sel:[0,0,1] op_sel_hi:[1,0,1] neg_lo:[1,0,0] neg_hi:[1,0,0]")
            for i in range(16):
                a(f"v_exp_f32 {v(E + i)}, {v(E + i)}")
            S = t + 2 + 2 * sg
            a(f"v_pk_add_f32 {v(S, 2)}, {v(E, 2)}, {v(E + 2, 2)}")
            for i in range(2, 8):
                a(f"v_pk_add_f32 {v(S, 2)}, {v(S, 2)}, {v(E + 2 * i, 2)}")
            a(f"v_add_f32 {v(S)}, {v(S)}, {v(S + 1)}")
            if not (isq and sg == 0):
                a(f"v_rcp_f32 {v(S)}, {v(S)}")
                if isq:
                    a(f"v_mul_f32 {v(t + 6)}, {f2u(1e-6):#x}, {v(t + 2)}")
                    a(f"v_mul_f32 {v(S)}, {v(S)}, {v(t + 2)}")
            for h in range(2):
                for i in range(4 * h, 4 * h + 4):
                    if not (isq and sg == 0):
                        a(f"v_pk_mul_f32 {v(E + 2 * i, 2)}, {v(E + 2 * i, 2)}, {v(S, 2)} op_sel_hi:[1,0]")
                for i in range(4 * h, 4 * h + 4):
                    a(f"v_cvt_pk_bf16_f32 {v(PK + 8 * sg + i)}, {v(E + 2 * i)}, {v(E + 2 * i + 1)}")
                if after:
                    after(2 * sg + h)

    def layer(self, l):
        a, cfg = self.a, self.cfg
        T, first, last = l & 1, l < 2, l == 3
        NJ = 2 if T == 0 else 4
        skip23 = (lambda: self.only_if(f"s_cmp_lt_u32 {s(sW)}, 2")) if T == 0 else contextlib.nullcontext
        bgn = cfg["bg"][l] if first else (0,) * 7
        self.bg = []
        if first:
            self.bg_setup(T)
            assert sum(bgn) >= len(self.bg) and bgn[0] + bgn[1] >= 8 and sum(bgn[:3]) >= 8 + cfg['np'] and sum(bgn[:5]) >= 24 and bgn[0] <= 8 and bgn[6] <= 8
        NX = cfg["nx0"]
        wx = (vPOLL, sWS, sFXP, 0, f"v_cmp_ne_u32 vcc, {s(sTG)}")
        wo_ = (vPOLL, sWS, sFOP, 0, f"v_cmp_ne_u32 vcc, {s(sTG)}")
        a.label(f"L_layer{l}")
        if l:
            self.spin(wx, f"x{l}")
        a.vm.clear()
        self.ts(f"{l}:xpoll")
        ST = LG
        CS = LG + 8
        CSA, MB = PK, PK + 2
        D = 3

        def rd(j, p):
            for u in range(2):
                a(f"ds_read_b64_tr_b16 {v(RG + (j % D) * 8 + 4 * p + 2 * u, 2)}, {v(vWRD)} offset:{p * 32768 + self.woff(j, u)}", lg=f"w{j}")

        def ldx(j):
            self.ldx(0, j)
            if j == max(NX, 9):
                a(f"buffer_load_dwordx4 {v(ST, 4)}, {v(vSLD)}, {s(sWS, 4)}, {s(sSTLD)} offen sc1", vm="st")
            if j == max(NX, 9) + 2 and cfg["x_st"]:
                for i_ in range(4):
                    a(f"v_mov_b32 {v(ST + 4 + i_)}, {T}")
            elif j == max(NX, 9) + 2:
                a(f"buffer_load_dwordx4 {v(ST + 4, 4)}, {v(vSLD)}, {s(sWS, 4)}, {s(sSTLD)} offen offset:512 sc1", vm="st")
        nx1 = cfg["nx1"]
        for j in range(nx1):
            ldx(j)
        for i in self.puts_left:
            self.put_wkv(T, i, i + 1)
            if nx1 < NX and cfg["xmix"]:
                ldx(nx1)
                nx1 += 1
        a.wait(lg=0)
        a("s_barrier")
        self.ts(f"{l}:bar1")
        pre = [(j, p) for j in range(D) for p in range(2)]
        for j in range(nx1, NX):
            for _ in range(2):
                if pre:
                    rd(*pre.pop(0))
            ldx(j)
        while pre:
            rd(*pre.pop(0))
        a(f"ds_read_b128 {v(CS, 4)}, {v(vCSR)} offset:{T * 1536}", lg="cs")
        a(f"ds_read_b128 {v(CS + 4, 4)}, {v(vCSR)} offset:{T * 1536 + 512}", lg="cs")
        t, u_ = ST, ST + 1
        stat = []
        if l and cfg["spar"]:
            CK = PK + 6
            op = "0x80" if T else "0xfe"
            stat = [f"L_sums{l}:\nv_bitop3_b32 {v(CK)}, {v(ST)}, {v(ST + 1)}, {v(ST + 2)} bitop3:{op}",
                    f"v_bitop3_b32 {v(CK)}, {v(CK)}, {v(ST + 3)}, {v(ST + 4)} bitop3:{op}\n"
                    f"v_bitop3_b32 {v(CK)}, {v(CK)}, {v(ST + 5)}, {v(ST + 6)} bitop3:{op}\n"
                    f"v_bitop3_b32 {v(CK)}, {v(CK)}, {v(ST + 7)}, 1 bitop3:{'0x80' if T else '0xa8'}\n"
                    f"v_cmp_ne_u32 vcc, {T}, {v(CK)}\n"
                    f"s_cbranch_vccnz L_sumsre{l}"]
            stat = [None, stat[0] + "\n" + stat[1]]
            with self.outofline():
                a.label(f"L_sumsre{l}")
                self.countdown()
                for i in range(2):
                    a(f"buffer_load_dwordx4 {v(ST + 4 * i, 4)}, {v(vSLD)}, {s(sWS, 4)}, {s(sSTLD)} offen offset:{512 * i} sc1")
                a("s_waitcnt vmcnt(0)")
                a(f"s_branch L_sums{l}")
        stat += [
            f"v_add_f32 {v(ST)}, {v(ST)}, {v(ST + 2)}",
            f"v_add_f32 {v(ST + 1)}, {v(ST + 1)}, {v(ST + 3)}",
            f"v_add_f32 {v(ST + 4)}, {v(ST + 4)}, {v(ST + 6)}",
            f"v_add_f32 {v(ST + 5)}, {v(ST + 5)}, {v(ST + 7)}",
            f"v_add_f32 {v(ST)}, {v(ST)}, {v(ST + 4)}",
            f"v_add_f32 {v(ST + 1)}, {v(ST + 1)}, {v(ST + 5)}",
            f"v_add_f32 {v(t)}, {v(ST)}, {v(ST + 1)}",
            f"v_mul_f32 {v(t)}, {f2u(1 / 512):#x}, {v(t)}",
            f"v_mov_b32 {v(u_)}, {v(t)}",
            f"v_permlane32_swap_b32 {v(t)}, {v(u_)}",
            f"v_fma_f32 {v(u_)}, -{v(t)}, {v(t)}, {v(u_)}",
            f"v_max_f32 {v(u_)}, 0, {v(u_)}",
            f"v_cvt_pk_bf16_f32 {v(vM)}, -{v(t)}, -{v(t)}",
            f"v_cvt_pk_bf16_f32 {v(u_)}, {v(u_)}, {v(u_)}",
            f"v_and_b32 {v(u_)}, 0xffff0000, {v(u_)}",
            f"v_add_f32 {v(u_)}, {f2u(1e-5):#x}, {v(u_)}",
            f"v_cvt_pk_bf16_f32 {v(u_)}, {v(u_)}, {v(u_)}",
            f"v_and_b32 {v(u_)}, 0xffff0000, {v(u_)}",
            f"v_sqrt_f32 {v(u_)}, {v(u_)}",
            f"v_cndmask_b32 {v(vM)}, {v(vM)}, 0, {s(sHI, 2)}",
            f"v_cvt_pk_bf16_f32 {v(u_)}, {v(u_)}, {v(u_)}",
            f"v_and_b32 {v(u_)}, 0xffff0000, {v(u_)}",
            f"v_rcp_f32 {v(vRS)}, {v(u_)}",
            f"v_mov_b32 {v(MB)}, {v(vM)}",
            f"v_mul_f32 {v(vS)}, {LOG2E:#x}, {v(vRS)}",
            f"v_mov_b32 {v(MB + 3)}, {v(vM)}",
        ]
        js = max(NX, 9) + 3
        fill = [f"v_mov_b32 {v(MB + 1)}, 0", f"v_mov_b32 {v(MB + 2)}, 0"]
        if l == 0:
            fill += [f"v_mov_b32 {v(PK + 12 + i)}, -1" for i in range(4)]
        fill += [None] * (2 * D - len(fill)) + self.cs_pack(CS, CSA) + self.cs_pack(CS + 4, CSA + 1)
        self.bw = CS + 2
        if first:
            fill += [f"v_lshrrev_b32 {v(self.bw)}, 6, {v(vL16)}", f"v_mul_u32_u24 {v(self.bw)}, {3072 - 64}, {v(self.bw)}",
                     f"v_add_u32 {v(self.bw)}, {v(self.bw)}, {v(vL16)}"]
        fill += [None] * (2 * js - len(fill)) + stat
        jc = (len(fill) + 1) // 2 + 1
        assert jc <= 31
        self.bg_region(bgn[0], NX)
        for j in range(32):
            a.wait(vm=f"x{j}", lg=f"w{j}")
            self.fine(f"{l}:x{j}")
            if j == jc:
                a(f"v_mfma_f32_32x32x8_bf16 {v(AK, 16)}, {v(CSA, 2)}, {v(MB, 2)}, {v(AK, 16)}")
                a(f"v_mfma_f32_32x32x8_bf16 {v(AV, 16)}, {v(CSA, 2)}, {v(MB + 2, 2)}, {v(AV, 16)}")
            for p, acc in ((0, AK), (1, AV)):
                c = v(acc, 16) if j else "0"
                a(f"v_mfma_f32_32x32x16_bf16 {v(acc, 16)}, {v(RG + (j % D) * 8 + 4 * p, 4)}, {v(XF + 4 * j, 4)}, {c}")
                if p == 0:
                    if j + NX < 32:
                        ldx(j + NX)
                    if l == 0 and j + NX == 32:
                        self.mark_slot(KVP[1] - KVP[0], PK + 12)
                    if l == 0 and j and j == cfg["oinit"][0]:
                        for i in range(2):
                            a(f"buffer_store_dwordx4 {v(PK + 12, 4)}, {v(vOST)}, {s(sWS, 4)}, {s(sOST)} offen offset:{256 * i} sc1", vm="oinit")
                    if l == 0 and cfg["otouch"] and j == cfg["otouch"]:
                        t_ = PK + 8
                        a(f"v_bfe_u32 {v(t_)}, {v(vL16)}, 7, 1")
                        a(f"v_mul_u32_u24 {v(t_)}, {(16384 - 1024) // 8}, {v(t_)}")
                        a(f"v_add_lshl_u32 {v(t_)}, {v(t_)}, {v(vL16)}, 3")
                        a("s_mov_b64 exec, 0xffff")
                        a(f"buffer_load_dword {v(RG + 23)}, {v(t_)}, {s(sWS, 4)}, {s(sOST)} offen sc1")
                        a("s_mov_b64 exec, -1")
                    if j + NX >= 32:
                        self.bg_tick()
                    if j == 31 and not first:
                        a("s_nop 5")
                    if first and j == 30:
                        a(f"v_mov_b32 {v(vBW)}, {v(self.bw)}")
                        a(f"v_lshrrev_b32 {v(vBO)}, 7, {v(vL16)}")
                        a(f"v_mul_u32_u24 {v(vBO)}, {1024 - 128}, {v(vBO)}")
                        a(f"v_add_u32 {v(vBO)}, {v(vBO)}, {v(vL16)}")
                if p and fill and fill[0] and fill[1:] and fill[1]:
                    a(fill[0]); fill[0] = None
                if j + D < 32:
                    rd(j + D, p)
                if T == 1 and j == 29:
                    a(f"ds_read_b128 {v(PK + 8 + 4 * p, 4)}, {v(vKFR)} offset:{L_WPF - L_KVF + KS * p}", lg="wp")
                for _ in range(2 if p else 0):
                    f_ = fill.pop(0) if fill else None
                    if f_:
                        a(f_)
        self.bw = vBW
        if first:
            self.slow_pf(sSO[T], 4, RG + 23)
        self.ts(f"{l}:kvgemm")
        self.dump("kv", l, list(range(AK, AK + 32)) + [vS, vRS, vM], RG)

        def v_steps(e):
            st = []
            for h in range(2):
                for i in range(4 * h, 4 * h + 4):
                    if T == 0:
                        st.append(lambda i=i: e(f"v_pk_mul_f32 {v(AV + 2 * i, 2)}, {v(AV + 2 * i, 2)}, {v(vS, 2)} op_sel:[0,1]"))
                    else:
                        st.append(lambda i=i: e(f"v_mul_f32 {v(AV + 2 * i)}, {v(AV + 2 * i)}, {v(vRS)}"))
                        st.append(lambda i=i: e(f"v_mul_f32 {v(AV + 2 * i + 1)}, {v(AV + 2 * i + 1)}, {v(vRS)}"))
                for i in range(4 * h, 4 * h + 4):
                    st.append(lambda i=i: e(f"v_cvt_pk_bf16_f32 {v(AV + i)}, {v(AV + 2 * i)}, {v(AV + 2 * i + 1)}"))
                st.append(lambda h=h: a(f"ds_write_b128 {v(vSTW)}, {v(AV + 4 * h, 4)} offset:{0x4000 + 128 * h}"))
            return st

        def stage(k):
            a(f"ds_write_b128 {v(vSTW)}, {v(PK + 4 * k, 4)} offset:{(k >> 1) * 8192 + 128 * (k & 1)}")
        vst = v_steps(self.ticker())
        if T == 0:
            self.bg_region(bgn[1], 72)
            self.phi_a(AK, LG, stage)
            for st in vst:
                st()
        else:
            self.bg_region(bgn[1], 125)
            self.logits(lambda: [vst.pop(0)() for _ in range(4)])
            for st in vst:
                st()
            self.softmax2(RG, False, stage)
        self.dump("pk", l, list(range(PK, PK + 16)) + list(range(AV, AV + 8)), RG)
        ONE, DK, DZ, PB, QA = AK, AV + 8, AV + 12, AV + 4, AV + 3
        for i in range(4):
            a(f"v_mov_b32 {v(ONE + i)}, 0x3f803f80")
        D = 5 if first else 6

        def rq(j):
            for u in range(2 if first or j == 0 or j > cfg["x_qskip"] else 0):
                a(f"ds_read_b64_tr_b16 {v(RG + (j % D) * 4 + 2 * u, 2)}, {v(QA)} offset:{self.woff(j, u)}", lg=f"q{j}")
        a.wait(vm="mark", lg=0)
        a("s_barrier")
        a(f"v_add_u32 {v(QA)}, {L_WQ[T]:#x}, {v(vWRD)}")
        self.ts(f"{l}:bar2")
        early = False
        w01 = (lambda k: self.waves01(((4, 5), (6, 9), (7, 8), (10, 11))[l + k])) if T == 0 else (lambda k: contextlib.nullcontext())
        with w01(0):
            def rp(st, k):
                for u in range(2):
                    a(f"ds_read_b64_tr_b16 {v((LG, PK)[k] + 4 * st + 2 * u, 2)}, {v((vSTR, vSTR2)[k])} offset:{st * 1024 + u * 512}", lg=f"p{st}")
            PD = cfg["pdepth"]
            for st in range(PD):
                rp(st, 0); rp(st, 1)
            for st in range(4):
                a.wait(lg=f"p{st}")
                mm = [f"v_mfma_f32_16x16x32_bf16 {v(DK, 4)}, {v(LG + 4 * st, 4)}, {v(PK + 4 * st, 4)}, {v(DK, 4) if st else 0}",
                      f"v_mfma_f32_16x16x32_bf16 {v(DZ, 4)}, {v(LG + 4 * st, 4)}, {v(ONE, 4)}, {v(DZ, 4) if st else 0}"]
                a(mm[cfg["zst1"]])
                if st + PD < 4:
                    rp(st + PD, 0)
                a(mm[1 - cfg["zst1"]])
                if st + PD < 4:
                    rp(st + PD, 1)
            self.fine(f"{l}:p_mfma")
            if cfg["zst1"]:
                a(f"s_mov_b64 exec, {s(sCOL, 2)}")
                a(f"v_min_u32 {v(DZ)}, -2, {v(DZ)}")
                a(f"buffer_store_dwordx4 {v(DZ, 4)}, {v(vZST)}, {s(sWS, 4)}, {s(sKVT)} offen sc1")
                a("s_mov_b64 exec, -1")
            for i in range(2):
                a(f"v_cvt_pk_bf16_f32 {v(PB + i)}, {v(DK + 2 * i)}, {v(DK + 2 * i + 1)}")
            for i in range(2):
                a(f"v_cvt_pk_bf16_f32 {v(PB + 2 + i)}, {v(DK + 2 * i)}, {v(DK + 2 * i + 1)}")
            if not cfg["zst1"]:
                a(f"v_min_u32 {v(DZ)}, -2, {v(DZ)}")
            for i in range(2):
                a(f"v_permlane16_swap_b32 {v(PB + i)}, {v(PB + 2 + i)}")
            a(f"v_min_u32 {v(PB)}, -2, {v(PB)}")
            a(f"s_mov_b64 exec, {s(sROW, 2)}")
            a(f"buffer_store_dwordx4 {v(PB, 4)}, {v(vPST)}, {s(sWS, 4)}, {s(sKVT)} offen sc1")
            if not cfg["zst1"]:
                a(f"s_mov_b64 exec, {s(sCOL, 2)}")
                a(f"buffer_store_dwordx4 {v(DZ, 4)}, {v(vZST)}, {s(sWS, 4)}, {s(sKVT)} offen sc1")
            if T:
                a("s_mov_b64 exec, -1")
        if cfg["jit"] and l < 3:
            with self.only_if(f"s_cmp_eq_u32 {s(sW)}, 3"):
                self.code_pf(f"L_layer{l + 1}", f"L_layer{l + 2}" if l < 2 else "L_end", AV + 8)
        self.ts(f"{l}:publish")
        if l == 0:
            a(f"v_lshlrev_b32 {v(vHL)}, 5, {v(vPOLL)}")
            a(f"s_or_b32 {s(sTG)}, {s(sTAG)}, 0xf0")
            a(f"buffer_load_dword {v(AV + 9)}, {v(vHL)}, {s(sWS, 4)}, {s(sHEL)} offen sc1", vm="hl")
            self.slow_pf(sSW[1], 12, AV + 10)
        if first:
            a.wait(vm="wq")
            self.fine(f"{l}:wq")
            a("s_barrier")
            self.fine(f"{l}:barx")
        CS, CSA, MB, M1 = LG + 4, LG + 8, LG + 10, LG + 12
        PL, SEL, DR = 0, 36, 40

        def partial_load(i):
            if not cfg["zlast"]:
                i = (i + 8) % 9
            a(f"s_add_u32 {s(sT1)}, {s(sKVT)}, {i * 65536}")
            a(f"buffer_load_dwordx4 {v(PL + 4 * i, 4)}, {v(vL16)}, {s(sWS, 4)}, {s(sT1)} offen sc1", vm="pl")
        if not early:
            for j in range(D):
                rq(j)
        cs_read = lambda: a(f"ds_read_b128 {v(CS, 4)}, {v(vCSR)} offset:{T * 1536 + 1024}", lg="cs")
        fill = []
        if first:
            SQ, DQ, RQ, TQ = PK, PK + 4, PK + 8, LG
            self.sel_read(SQ)
            a(f"s_add_u32 {s(sT2)}, {s(sW13)}, {L_WQ[T]}")
            a(f"v_add_u32 {v(TQ + 2)}, {s(sT2)}, {v(vL16)}")
            rc = lambda i: a(f"ds_read_b128 {v(RQ + 4 * (i & 1), 4)}, {v(TQ + 2)} offset:{i * 1024}", lg=f"c{i}")
            rc(0); rc(1)
            addr, fin = self.cs_q_fin(T, DQ, TQ)

            def step(i):
                a.wait(lg=f"c{i}")
                a(f"v_mfma_f32_16x16x32_bf16 {v(DQ, 4)}, {v(SQ, 4)}, {v(RQ + 4 * (i & 1), 4)}, {v(DQ, 4) if i else 0}")
                if i + 2 < 8:
                    rc(i + 2)
                if addr:
                    a(addr.pop(0))

            def mark():
                with skip23():
                    self.mark_slot(KVP[l + 2] - KVP[l], M1)

            def sync():
                a.wait(lg="csw")
                a("s_barrier")
                cs_read()
            fill += [(lambda i=i: step(i)) for i in range(8)]
            fill += [f"v_mov_b32 {v(M1)}, -1\nv_mov_b32 {v(M1 + 1)}, -1\nv_mov_b32 {v(M1 + 2)}, -1\nv_mov_b32 {v(M1 + 3)}, -1", mark]
            fill += fin + [None, None, sync, None, None, lambda: a.wait(lg="cs")]
        else:
            cs_read()
            fill += [None] * D
        pk = self.cs_pack(CS, CSA) + [f"v_mov_b32 {v(CSA + 1)}, 0", f"v_mov_b32 {v(MB)}, {v(vM)}", f"v_mov_b32 {v(MB + 1)}, 0"]
        fill += [pk[i] + "\n" + pk[i + 1] for i in range(0, 10, 2)]
        jc = len(fill) + 1
        assert jc <= 31
        PS, PG = cfg["pl_step"][l], cfg["pl_gap"][l]
        assert PS >= 10
        G = 3 if T == 0 else 1

        def pl_group(k):
            with skip23():
                for i in range(G * k, G * k + G):
                    partial_load(i)
        pl_at = [PS + G * PG * k for k in range(9 // G)]
        if first:
            pl_at = [min(x, 31) for x in pl_at]
        self.bg_region(bgn[2], min(PS, 32))
        NP = cfg["np"]
        puts = list(range(NP))
        nq = 0 if first else min(NP, cfg["qputs"][T])
        put_at = [1 + (k * 30) // nq for k in range(nq)]
        for j in range(32):
            a.wait(lg=f"q{j}")
            if j == jc:
                a(f"v_mfma_f32_32x32x8_bf16 {v(AK, 16)}, {v(CSA, 2)}, {v(MB, 2)}, {v(AK, 16)}")
            if first or j == 0 or j > cfg["x_qskip"]:
                a(f"v_mfma_f32_32x32x16_bf16 {v(AK, 16)}, {v(RG + (j % D) * 4, 4)}, {v(XF + 4 * j, 4)}, {v(AK, 16) if j else 0}")
            self.bg_tick()
            if l == 0 and j == cfg["oinit"][1]:
                t_ = RG + 23
                a(f"v_bfe_u32 {v(t_)}, {v(vL16)}, 7, 1")
                a(f"v_mul_u32_u24 {v(t_)}, {(16384 - 1024) // 8}, {v(t_)}")
                a(f"v_add_lshl_u32 {v(t_)}, {v(t_)}, {v(vL16)}, 3")
                a("s_mov_b64 exec, 0xffff")
                a(f"buffer_load_dword a255, {v(t_)}, {s(sWS, 4)}, {s(sOST)} offen sc1")
                a("s_mov_b64 exec, -1")
            if l == 0 and j == pl_at[0] - 1:
                a.wait(vm="hl")
                a(f"v_cmp_ne_u32 vcc, {s(sTG)}, {v(AV + 9)}")
                a("s_cbranch_vccnz L_hello")
                a.label("L_hello_ok")
                with self.outofline():
                    a.label("L_hello")
                    self.poll(vHL, sHEL, AV + 9)
                    a("s_branch L_hello_ok")
            if j == cfg["ppf"][l]:
                assert l and j < pl_at[0]
                with skip23():
                    a(f"v_lshrrev_b32 {v(AV + 11)}, 7, {v(vL16)}")
                    a(f"v_mul_u32_u24 {v(AV + 11)}, {(65536 - 1024) // 8}, {v(AV + 11)}")
                    a(f"v_add_lshl_u32 {v(AV + 11)}, {v(AV + 11)}, {v(vL16)}, 3")
                    a(f"buffer_load_dword {v(AV + 11)}, {v(AV + 11)}, {s(sWS, 4)}, {s(sKVT)} offen sc1")
            for k, x in enumerate(pl_at):
                if x == j:
                    pl_group(k)
            if j + D < 32:
                rq(j + D)
            if j in put_at:
                self.put_wo(T, puts.pop(0))
            if j == 27:
                self.sel_read(SEL)
            if T == 1 and j in (28, 29):
                a(f"ds_read_b128 {v(PK + 8 + 4 * (j - 28), 4)}, {v(vKFR)} offset:{L_WPF - L_KVF + KS * (j - 28)}", lg="wp")
            if fill:
                f_ = fill.pop(0)
                if callable(f_):
                    f_()
                elif f_:
                    a(f_)
        self.ts(f"{l}:qgemm")
        self.dump("q", l, list(range(AK, AK + 16)), RG)
        EPS = RG + 6
        if first:
            if T == 0:
                n = len(a.vm) - 1 - max(i for i, t_ in enumerate(a.vm) if t_ == f"wo{NP - 1}")
                a(f"s_waitcnt vmcnt({n + 9})")
                with self.only_if(f"s_cmp_ge_u32 {s(sW)}, 2"):
                    a.wait(vm=f"wo{NP - 1}")
            else:
                a.wait(vm=f"wo{NP - 1}")
        nbg3 = min(bgn[3], len(self.bg))
        slots = 56 if T == 0 else 100
        self.bg_region(bgn[3], slots)
        if not first:
            late = [k for k, x in enumerate(pl_at) if x >= 32]
            self.bg = [(lambda k=k: pl_group(k)) for k in late]
            self.bg_at = [min(slots - 1, (pl_at[k] - 32) * 6) for k in late]
        self.side = [(lambda i=i: self.put_wo(T, i)) for i in puts]
        self.side_every = cfg["wo_every"][T]
        pop = lambda: self.side.pop(0)() if self.side else None
        pop()
        if T == 0:
            self.phi_a(AK, LG)
            a(f"v_mov_b32 {v(EPS)}, {f2u(1e-6):#x}")
        else:
            self.logits(pop)
            pop()
            self.softmax2(RG, True)
        while self.side:
            pop()
        self.dump("pq", l, list(range(PK, PK + 16)), AV)
        self.ts(f"{l}:phiq")
        WR, DW = 64, 7
        WA = [vWOR, RG + 16, RG + 17, RG + 18]
        for t_ in range(1, 4):
            a(f"v_xor_b32 {v(WA[t_])}, {32 * t_}, {v(vWOR)}")
        a(f"s_add_u32 {s(sTG)}, {s(sTAG)}, {16 * (l + 1)}")
        a(f"v_mov_b32 {v(RG + 19)}, {s(sTG)}")
        a.wait(lg="sel")
        self.fine(f"{l}:r_wait")
        with w01(1):
            a.label(f"L_chk{l}")
            m, Z = 44, PL + 32
            gaps = [[f"v_max3_u32 {v(m)}, {v(Z)}, {v(PL)}, {v(PL + 4)}", f"v_permlane16_swap_b32 {v(Z)}, {v(Z + 1)}"],
                    [f"v_permlane16_swap_b32 {v(Z + 2)}, {v(Z + 3)}"],
                    [f"v_add_f32 {v(Z)}, {v(Z)}, {v(Z + 1)}", f"v_add_f32 {v(Z + 2)}, {v(Z + 2)}, {v(Z + 3)}"],
                    [f"v_max3_u32 {v(m)}, {v(m)}, {v(PL + 8)}, {v(PL + 12)}", f"v_permlane32_swap_b32 {v(Z)}, {v(Z + 2)}"],
                    [f"v_add_f32 {v(Z)}, {v(Z)}, {v(Z + 2)}", f"v_max3_u32 {v(m)}, {v(m)}, {v(PL + 16)}, {v(PL + 20)}"],
                    [f"v_add_f32 {v(Z)}, {v(Z)}, {v(Z)} row_ror:4"],
                    [f"v_add_f32 {v(Z)}, {v(Z)}, {v(Z)} row_ror:8", f"v_max3_u32 {v(m)}, {v(m)}, {v(PL + 24)}, {v(PL + 28)}"],
                    [f"v_cmp_eq_u32 vcc, -1, {v(m)}", f"v_cvt_pk_bf16_f32 {v(Z)}, {v(Z)}, {v(Z)}", f"ds_write_b16 {v(vZW)}, {v(Z)}"]]
            for i in range(8):
                if cfg["zlast"]:
                    if i == 0:
                        a(f"s_waitcnt vmcnt({nbg3})")
                elif i % 2 == 0:
                    a(f"s_waitcnt vmcnt({nbg3 + 6 - i})")
                a(f"v_mfma_f32_16x16x32_bf16 {v(DR, 4)}, {v(SEL, 4)}, {v(PL + 4 * i, 4)}, {v(DR, 4) if i else 0}")
                for g_ in gaps[i]:
                    a(g_)
            a(f"s_cbranch_vccnz L_again{l}")
            with self.outofline():
                a.label(f"L_again{l}")
                self.countdown()
                if cfg["ts"]:
                    a(f"s_add_u32 {s(sTSI)}, {s(sTSI)}, {1 << (8 * l)}")
                for i in range(9):
                    partial_load(i)
                if nbg3:
                    a("s_waitcnt vmcnt(0)")
                a(f"s_branch L_chk{l}")
            for i in range(2):
                a(f"v_cvt_pk_bf16_f32 {v(DR + i)}, {v(DR + 2 * i)}, {v(DR + 2 * i + 1)}")
            a(f"ds_write_b64 {v(vKFW)}, {v(DR, 2)}")
        if T == 0:
            a(f"s_waitcnt vmcnt({nbg3})")
        self.fine(f"{l}:r_done")
        self.bg_now(bgn[4])
        a.wait(lg=0)
        a("s_barrier")
        self.ts(f"{l}:bar3")
        KF, ZF, DEN, O = 0, 16, RG + 6, LG
        def rk(j):
            a(f"ds_read_b128 {v(KF + 4 * j, 4)}, {v(vKFR)} offset:{KS * j}", lg=f"kf{j}")
        def rz(j):
            a(f"ds_read_b128 {v(ZF + 4 * j, 4)}, {v(vZR)} offset:{(j >> 1) * 64 + (j & 1) * 16}", lg=f"zf{j}")

        def dots(j):
            for d in range(4):
                a(f"v_dot2c_f32_bf16 {v(DEN)}, {v(ZF + 4 * j + d)}, {v(PK + 4 * j + d)}")

        def num(j):
            a.wait(lg=f"kf{j}")
            a(f"v_mfma_f32_32x32x16_bf16 {v(AV, 16)}, {v(KF + 4 * j, 4)}, {v(PK + 4 * j, 4)}, {v(AV, 16) if j else 0}")

        def rw1(i, t_, u):
            a(f"ds_read_b64_tr_b16 {v(WR + (i % DW) * 16 + 4 * t_ + 2 * u, 2)}, {v(WA[t_])} offset:{t_ * 16384 + i * 1024 + u * 512}", lg=f"wo{i}")
        rest = [(i, t_, u) for i in range(DW) for t_ in range(4) for u in range(2)]
        if cfg["nmode"] == 0:
            for j in range(NJ):
                rz(j)
            if NJ == 2:
                rk(0); rk(1)
            for j in range(NJ):
                if j % 2 == 0:
                    a.wait(lg=f"zf{j + 1}")
                dots(j)
                if NJ == 4:
                    rk(j)
            self.fine(f"{l}:n_dot")
            for j in range(NJ):
                num(j)
        else:
            q_ = [(rk, j) for j in range(NJ)] + [(rz, j) for j in range(NJ)]
            for f_, j in q_[:3]:
                f_(j)
            del q_[:3]
            for j in range(NJ):
                num(j)
                for f_, k in q_[:2]:
                    f_(k)
                del q_[:2]
            self.fine(f"{l}:n_dot")
            a.wait(lg=0)
            for j in range(NJ):
                dots(j)
        a(f"v_rcp_f32 {v(DEN)}, {v(DEN)}")
        self.fine(f"{l}:n_mfma")
        ol = []
        for h in range(2):
            ol += [f"v_pk_mul_f32 {v(AV + 2 * i, 2)}, {v(AV + 2 * i, 2)}, {v(DEN, 2)} op_sel_hi:[1,0]" for i in range(4 * h, 4 * h + 4)]
            ol += [f"v_cvt_pk_bf16_f32 {v(O + i)}, {v(AV + 2 * i)}, {v(AV + 2 * i + 1)}" for i in range(4 * h, 4 * h + 4)]
            ol += [f"buffer_store_dwordx4 {v(O + 4 * h, 4)}, {v(vOST)}, {s(sWS, 4)}, {s(sOST)} offen offset:{256 * h}"]
        self.moded(ol, tag="ost", wt=l == 0 and not cfg["otouch"] and not cfg["oinit"][0])
        self.dump("o", l, list(range(O, O + 8)), PK)
        self.ts(f"{l}:ostore")
        self.bg_now(bgn[5])
        NO = cfg["no0"]

        def ldo(i):
            if i % 4 == 0 and i:
                a(f"s_add_u32 {s(sT3)}, {s(sOLD)}, {i * 1024}")
            a(f"buffer_load_dwordx4 {v(4 * i, 4)}, {v(vL16)}, {s(sWS, 4)}, {s(sT3 if i >= 4 else sOLD)} offen offset:{(i % 4) * 1024} sc1", vm=f"o{i}")
        late = list(range(NP, 16))

        def window(np_, nr):
            for _ in range(min(len(late), np_)):
                self.put_wo(T, late.pop(0))
            for _ in range(min(len(rest), nr)):
                rw1(*rest.pop(0))
        ow = cfg["owin"][first]
        window(*ow[0])
        self.fine(f"{l}:o_pre")
        self.flag(sFOS, RG + 19, "ost")
        self.fine(f"{l}:oflag")
        self.spin_more(wo_, f"o{l}")
        if last and cfg["fin_lds"]:
            for t_ in self.tile_addr(PK, PK + 3):
                a(t_)
        window(*ow[1])
        self.probe(wo_, vPR)
        window(*ow[2])
        self.spin(wo_, f"o{l}")
        self.ts(f"{l}:opoll")
        for i in range(4):
            ldo(i)
        window(16, 0)
        if NP < 16:
            a.wait(lg="putwo")
            a("s_barrier")
        per = -(-len(rest) // (NO - 4))
        for i in range(4, NO):
            window(0, per)
            ldo(i)
        assert not rest
        self.fine(f"{l}:o_iss")
        todo = [(i, t_, u) for i in range(DW, 16) for t_ in range(4) for u in range(2)]
        done = 0
        self.bg_region(bgn[6], NO)
        for i in range(16):
            for t_ in range(4):
                if t_ == 0:
                    a.wait(vm=f"o{i}", lg=f"wo{i}")
                    self.fine(f"{l}:o{i}")
                a(f"v_mfma_f32_16x16x32_bf16 {v(XR + 4 * t_, 4)}, {v(WR + (i % DW) * 16 + 4 * t_, 4)}, {v(4 * i, 4)}, {v(XR + 4 * t_, 4)}")
                if t_ == 0:
                    if i + NO < 16:
                        ldo(i + NO)
                    else:
                        self.bg_tick()
                for _ in range(cfg["ord"][i + NO >= 16][t_]):
                    if done < len(todo) and done // 2 <= 4 * i + t_:
                        assert todo[done][0] > i
                        rw1(*todo[done]); done += 1
        assert done == len(todo) and not self.bg
        self.ts(f"{l}:ogemm")
        if last:
            return
        self.dump("x", l, list(range(XR, XR + 16)), PK)
        N = 1 - T
        for st in self.x_steps(0, XR, AK, par=N):
            st()
        self.fine(f"{l}:xst")
        a("s_barrier")
        self.fine(f"{l}:bar5")
        if l == 0:
            self.sel_read(AV)
        n1, n2 = cfg["xputs"]
        self.put_wkv(N, 0, n1)
        a(f"s_add_u32 {s(sKVT)}, {s(sKVT)}, {KVP[l + 1] - KVP[l]}")
        self.flag(sFXS, RG + 19, "xst" if cfg["spar"] else "sst")
        self.ts(f"{l}:xflag")
        self.spin_more(wx, f"x{l + 1}")
        if l == 0:
            a.wait(lg="sel")
        for i in range(n1, n2):
            if i == n1 + cfg["xprobe_at"]:
                self.probe(wx, vPR)
            self.put_wkv(N, i, i + 1)
            if l == 0:
                for k in range((i - n1) * 16 // (n2 - n1), (i - n1 + 1) * 16 // (n2 - n1)):
                    self.cs_kv_step(1, k, AV, AV + 4)
        if l == 0:
            self.cs_kv_fin(1, AV + 4, AV + 8)
        self.puts_left = list(range(n2, 16))

    def prologue(self):
        cfg = self.cfg
        a = self.a
        a(f"s_cmp_ge_u32 {s(sID)}, 256")
        a("s_cbranch_scc1 L_end")
        self.ts("start")
        a(f"s_load_dwordx16 {s(4, 16)}, s[0:1], 0")
        a(f"s_load_dwordx4 {s(20, 4)}, s[0:1], 64")
        a(f"s_getpc_b64 {s(sSAVE, 2)}")
        a.label("L_pc")
        NCL = cfg["codepf"]
        a(f"s_bfe_u32 {s(sT0)}, {s(sID)}, {3 | (3 << 16)}")
        a(f"s_mul_i32 {s(sT0)}, {s(sT0)}, {NCL}")
        a(f"v_min_u32 v1, {NCL - 1}, v0")
        a(f"v_add_u32 v1, {s(sT0)}, v1")
        a("v_lshlrev_b32 v1, 7, v1")
        if cfg["pads"]:
            a("v_lshlrev_b32 v2, 12, v0")
            a("v_add_u32 v2, L_layer0-L_pc-64*4096, v2")
            a("v_cmp_le_u32 vcc, 64, v0")
            a("v_cndmask_b32 v1, v1, v2, vcc")
        a(f"v_min_u32 v1, L_codeend-L_pc, v1")
        a(f"global_load_dword v2, v1, {s(sSAVE, 2)}")
        if cfg["ts"]:
            a(f"s_mov_b32 {s(sTSI)}, 0")
            a(f"s_mov_b32 {s(sLAY)}, 0")
            a(f"v_mov_b32 {v(vTS)}, 0")
            a(f"s_memrealtime s[78:79]")
        L = 3
        a(f"v_lshrrev_b32 v1, 6, v0")
        a(f"v_and_b32 {v(L)}, 63, v0")
        a(f"v_readfirstlane_b32 {s(sW)}, v1")
        a(f"v_lshlrev_b32 {v(vL16)}, 4, {v(L)}")
        a(f"s_bfe_u32 {s(sC)}, {s(sID)}, {3 | (4 << 16)}")
        a(f"s_lshr_b32 {s(sT0)}, {s(sID)}, 7")
        a(f"s_and_b32 {s(sR)}, {s(sID)}, 7")
        a(f"s_lshl1_add_u32 {s(sR)}, {s(sR)}, {s(sT0)}")
        sBP, sSUB, sCG, sB = 99, 100, 101, sCNT
        a(f"s_lshr_b32 {s(sT0)}, {s(sC)}, 3")
        a(f"s_lshr_b32 {s(sT3)}, {s(sW)}, 1")
        a(f"s_lshl1_add_u32 {s(sT0)}, {s(sT0)}, {s(sT3)}")
        a(f"s_lshl2_add_u32 {s(sBP)}, {s(sR)}, {s(sT0)}")
        a(f"s_lshl2_add_u32 {s(sB)}, {s(sR)}, {s(sW)}")
        a(f"s_and_b32 {s(sSUB)}, {s(sW)}, 1")
        a(f"s_and_b32 {s(sCG)}, {s(sC)}, 7")
        a(f"s_lshl1_add_u32 {s(sT0)}, {s(sBP)}, {s(sSUB)}")
        a(f"s_lshl_b32 {s(sOLD)}, {s(sT0)}, 14")
        a(f"s_lshl_b32 {s(sT0)}, {s(sCG)}, 7")
        a(f"s_add_u32 {s(sFIN)}, {s(sOLD)}, {s(sT0)}")
        a(f"s_lshl3_add_u32 {s(sT0)}, {s(sBP)}, {s(sCG)}")
        a(f"s_lshl4_add_u32 {s(sT0)}, {s(sT0)}, {s(sSUB)}")
        a(f"s_lshl_b32 {s(sXST)}, {s(sT0)}, 8")
        if cfg["x0_lds"]:
            for t_ in self.tile_addr(52, 5)[-5::3]:
                a(t_)
            a(self.tile_addr(52, 5)[-1])
            a(f"s_add_u32 {s(sT1)}, {s(sFIN)}, 8192")
        else:
            self.rowmajor_voff(4, 5)
        a(f"s_lshl_b32 {s(sT0)}, {s(sC)}, 6")
        a(f"s_mul_i32 {s(sWOFF)}, {s(sT3)}, {16 * 3072}")
        a(f"s_add_u32 {s(sWOFF)}, {s(sWOFF)}, {s(sT0)}")
        a(f"s_lshl_b32 {s(sT0)}, {s(sSUB)}, 10")
        a(f"s_add_u32 {s(sWOFF)}, {s(sWOFF)}, {s(sT0)}")
        a(f"s_add_u32 {s(sWOFF)}, {s(sWOFF)}, 1024")
        self.w_voff(5)
        a(f"s_mov_b32 {s(sTMP + 3)}, 0x20000")
        a(f"s_mov_b32 {s(sSW[0] + 3)}, 0x20000")
        a(f"s_mov_b32 {s(sTMP + 2)}, 0x200000")
        a(f"s_mov_b32 {s(sSW[0] + 2)}, {512 * 3072}")
        a(f"s_lshr_b32 {s(sT2)}, {s(sID)}, 3")
        a(f"s_lshl_b32 {s(sSTLD)}, {s(sB)}, 11")
        a(f"s_lshl_b32 {s(sT0)}, {s(sB)}, 7")
        a(f"s_add_u32 {s(sFXP)}, {s(sT0)}, {FLAGX}")
        a(f"s_add_u32 {s(sFOS)}, {s(sT0)}, {FLAGO}")
        a(f"s_lshl_b32 {s(sHEL)}, {s(sC)}, 7")
        a(f"s_add_u32 {s(sHEL)}, {s(sHEL)}, {s(sSTLD)}")
        a("s_waitcnt lgkmcnt(0)")
        self.ts("kernarg")
        a(f"s_mov_b64 {s(sTMP, 2)}, {s(sPX, 2)}")
        a(f"s_mov_b64 {s(sSW[0], 2)}, {s(sPWA, 2)}")
        for i in range(2):
            if cfg["x0_lds"]:
                a(f"buffer_load_dwordx4 {v(8 + 4 * i, 4)}, v54, {s(sTMP, 4)}, {s((sFIN, sT1)[i])} offen", vm="x0")
            else:
                a(f"buffer_load_dwordx4 {v(8 + 4 * i, 4)}, v4, {s(sTMP, 4)}, {s(sFIN)} offen offset:{64 * i}", vm="x0")
        a(f"s_lshl2_add_u32 {s(sPF)}, {s(sT2)}, {s(sW)}")
        a(f"s_add_u32 {s(sPBX)}, {s(sPWS)}, {s(sHEL)}")
        a(f"s_addc_u32 {s(sPBX + 1)}, {s(sPWS + 1)}, 0")

        def scalar_loads():
            a(f"s_load_dword {s(sEP)}, {s(sPWS, 2)}, 0")
            if "o" in cfg["tlb"]:
                a(f"s_load_dword {s(sTG)}, {s(sPOUT, 2)}, 0")
            if "p" in cfg["tlb"]:
                a(f"s_load_dword {s(sTG)}, {s(sPPHI, 2)}, 0")
            if "w" in cfg["tlb"]:
                for off in (0x200000, 0x400000):
                    a(f"s_mov_b32 {s(sT0)}, {off:#x}")
                    a(f"s_load_dword {s(sTG)}, {s(sPWS, 2)}, {s(sT0)}")
            if cfg["touch"]:
                a(f"s_load_dword {s(sTG)}, {s(sPWS, 2)}, {s(sFXP)}")
                a(f"s_load_dword {s(sTG)}, {s(sPWS, 2)}, {s(sFOS)}")
                a(f"s_load_dword {s(sTG)}, {s(sPBX, 2)}, {STATS[0]}")
                a(f"s_load_dword {s(sTG)}, {s(sPBX, 2)}, {STATS[0] + 64}")
        if cfg["sl_first"]:
            scalar_loads()

        def mall_pf():
            a0 = self.a
            a0(f"s_cmp_eq_u32 {s(sSUB)}, 0")
            a0(f"s_cselect_b64 {s(sTMP, 2)}, {s(sPWA, 2)}, {s(sPWB, 2)}")
            a0(f"s_cselect_b64 {s(sLN2, 2)}, {s(sPWOA, 2)}, {s(sPWOB, 2)}")
            a0(f"s_cmp_lt_u32 {s(sW)}, 2")
            a0(f"s_cselect_b64 {s(sTMP, 2)}, {s(sTMP, 2)}, {s(sLN2, 2)}")
            a0(f"s_cselect_b32 {s(sT1)}, 3, 1")
            a0(f"s_lshl_b32 {s(sT1)}, {s(sT1)}, 11")
            a0(f"s_mul_i32 {s(sT2)}, {s(sID)}, {s(sT1)}")
            a0(f"s_sub_u32 {s(sT0)}, {s(sT1)}, 128")
            a0(f"v_lshlrev_b32 v7, 3, {v(vL16)}")
            a0(f"v_min_u32 v7, {s(sT0)}, v7")
            a0(f"s_lshl_b32 {s(sTMP + 2)}, {s(sT1)}, 8")
            a0(f"buffer_load_dword v7, v7, {s(sTMP, 4)}, {s(sT2)} offen")
        def l2_pf():
            a(f"s_mul_i32 {s(sT0)}, {s(sPF)}, {4 * 3072 // cfg['l2div']}")
            a(f"s_add_u32 {s(sT0)}, {s(sT0)}, {512 * 3072 - 512 * 3072 // cfg['l2div']}")
            a(f"v_lshrrev_b32 v51, 8, {v(vL16)}")
            a(f"v_lshlrev_b32 v51, 10, v51")
            a(f"v_lshl_add_u32 v51, {v(vL16)}, 3, v51")
            if cfg["l2div"] == 2:
                a("s_mov_b32 exec_hi, 0")
            a(f"buffer_load_dword v51, v51, {s(sSW[0], 4)}, {s(sT0)} offen offset:1024")
            if cfg["l2div"] == 2:
                a("s_mov_b32 exec_hi, -1")
        if cfg["l2pf"] == 1:
            l2_pf()
        if cfg["mallpf"] == 1:
            mall_pf()
        if cfg["l2pf"] == 2:
            l2_pf()
        if cfg["mallpf"] in (4, 6):
            with self.only_if(f"s_cmp_eq_u32 {s(sW)}, 0"):
                mall_pf()
        if cfg["mallpf"] == 5:
            with self.only_if(f"s_cmp_eq_u32 {s(sSUB)}, 0"):
                mall_pf()
        if cfg["mallpf"] == 7:
            with self.only_if(f"s_cmp_lg_u32 {s(sW)}, 3"):
                mall_pf()
        if cfg["slow0"]:
            self.slow_pf(sSW[0], 12, 6)
        for i in range(cfg["n0"]):
            self.ld_wkv(0, i, 5)
        if cfg["mallpf"] == 2:
            mall_pf()
        if cfg["x0_lds"] != 2 and not cfg["sl_first"]:
            scalar_loads()
        self.ts("p_issue")

        def o_touch(at):
            if cfg["otouch"] != at:
                return
            a0 = self.a
            a0(f"s_lshl_b32 {s(sT0)}, {s(sB)}, 5")
            a0(f"s_add_u32 {s(sT0)}, {s(sT0)}, {s(sC)}")
            a0(f"s_lshl_b32 {s(sT0)}, {s(sT0)}, 10")
            a0(f"s_add_u32 {s(sT0)}, {s(sT0)}, {OB[0]}")
            a0(f"v_bfe_u32 v50, {v(vL16)}, 7, 1")
            a0(f"v_mul_u32_u24 v50, {(16384 - 1024) // 8}, v50")
            a0(f"v_add_lshl_u32 v50, v50, {v(vL16)}, 3")
            a0("s_mov_b64 exec, 0xffff")
            a0(f"buffer_load_dword v52, v50, {s(sWS, 4)}, {s(sT0)} offen")
            a0("s_mov_b64 exec, -1")
        a(f"s_mov_b64 {s(sWS, 2)}, {s(sPWS, 2)}")
        a(f"s_mov_b64 {s(sOUT, 2)}, {s(sPOUT, 2)}")
        for r_ in (sWS, sOUT):
            a(f"s_mov_b32 {s(r_ + 3)}, 0x20000")
        a(f"s_mov_b32 {s(sWS + 2)}, {WS_SIZE:#x}")
        a(f"s_mov_b32 {s(sOUT + 2)}, 0x200000")
        o_touch(101)
        a(f"s_mov_b32 {s(sROW)}, 0xffff")
        a(f"s_mov_b32 {s(sROW + 1)}, 0xffff")
        a(f"s_mov_b32 {s(sMODE)}, 0")
        a(f"s_lshr_b32 {s(sT0)}, {s(sCG)}, 2")
        a(f"s_lshl2_add_u32 {s(sT0)}, {s(sBP)}, {s(sT0)}")
        a(f"s_lshl1_add_u32 {s(sT0)}, {s(sT0)}, {s(sSUB)}")
        a(f"s_lshl_b32 {s(sT0)}, {s(sT0)}, 8")
        a(f"s_and_b32 {s(sT1)}, {s(sCG)}, 3")
        a(f"s_lshl2_add_u32 {s(sSTST)}, {s(sT1)}, {s(sT0)}")
        a(f"s_add_u32 {s(sSTST)}, {s(sSTST)}, {STATS[0]}")
        a(f"s_lshl4_add_u32 {s(sT0)}, {s(sW)}, {s(sC)}")
        a(f"s_lshl_b32 {s(sKVT)}, {s(sT0)}, 10")
        a(f"s_add_u32 {s(sKVT)}, {s(sKVT)}, {KVP[0]}")
        a(f"s_lshl_b32 {s(sHEL)}, {s(sT0)}, 11")
        a(f"s_add_u32 {s(sHEL)}, {s(sHEL)}, {HELLO}")
        a(f"s_mov_b32 {s(sHI)}, 0")
        a(f"s_mov_b32 {s(sHI + 1)}, -1")
        a(f"s_lshl_b32 {s(sXLD)}, {s(sB)}, 15")
        i16, g, half, q, jj, t0, t1 = 20, 21, 22, 23, 24, 25, 26
        a(f"v_and_b32 {v(i16)}, 15, {v(L)}")
        a(f"v_lshrrev_b32 {v(g)}, 4, {v(L)}")
        a(f"v_lshrrev_b32 {v(half)}, 5, {v(L)}")
        a(f"v_and_b32 {v(q)}, 3, {v(L)}")
        a(f"v_bfe_u32 {v(jj)}, {v(L)}, 2, 2")
        a(f"v_lshlrev_b32 {v(vPOLL)}, 2, {v(i16)}")
        a(f"v_lshlrev_b32 {v(t0)}, 4, {v(i16)}")
        a(f"v_lshl_add_u32 {v(vXST)}, {v(g)}, 10, {v(t0)}")
        a(f"v_lshl_add_u32 {v(vSST)}, {v(half)}, 10, {v(t0)}")
        a(f"v_lshl_add_u32 {v(vSLD)}, {v(half)}, 9, {v(vL16)}")
        a(f"s_lshr_b32 {s(sT0)}, {s(sR)}, 1")
        a(f"s_lshl_b32 {s(sT0)}, {s(sT0)}, 7")
        a(f"s_and_b32 {s(sT1)}, {s(sR)}, 1")
        a(f"s_add_u32 {s(sT0)}, {s(sT0)}, {s(sT1)}")
        a(f"s_lshl_b32 {s(sT0)}, {s(sT0)}, 9")
        a(f"v_lshl_add_u32 {v(vPST)}, {v(half)}, 8, {v(t0)}")
        a(f"v_add_u32 {v(vPST)}, {s(sT0)}, {v(vPST)}")
        a(f"s_lshl_b32 {s(sT1)}, {s(sR)}, 6")
        a(f"s_add_u32 {s(sT1)}, {s(sT1)}, {8 * 65536}")
        a(f"v_lshl_add_u32 {v(vZST)}, {v(g)}, 4, {s(sT1)}")
        a(f"v_add_u32 v49, {s(sT0)}, {v(vL16)}")
        a(f"v_lshl_add_u32 v27, {v(q)}, 4, {s(sT1)}")
        a(f"v_cndmask_b32 v49, v49, v27, {s(sHI, 2)}")
        for i in range(4):
            a(f"v_mov_b32 {v(28 + i)}, -1")
        if cfg["warm_at"] == 0:
            self.warm(0)
        if cfg["x0_lds"]:
            for t_ in self.tile_addr(52, 55)[:10]:
                a(t_)
        self.ts("p_lane")
        a.wait(vm="x0")
        self.ts("x0")
        if cfg["x0_lds"]:
            for i in range(2):
                a(f"ds_write_b128 v53, {v(8 + 4 * i, 4)} offset:{1152 * i}")
            for i in range(2):
                a(f"ds_read2_b64 {v(8 + 4 * i, 4)}, v52 offset0:{8 * i} offset1:{8 * i + 4}")
            a("s_waitcnt lgkmcnt(0)")
            if cfg["x0_lds"] == 2:
                scalar_loads()
        else:
            for i in range(2):
                for d in range(2):
                    a(f"v_permlane16_swap_b32 {v(8 + 4 * i + d)}, {v(8 + 4 * i + 2 + d)}")
        for i in range(8):
            a(f"v_lshlrev_b32 {v(XR + 2 * i)}, 16, {v(8 + i)}")
            a(f"v_and_b32 {v(XR + 2 * i + 1)}, 0xffff0000, {v(8 + i)}")
        for st in self.x_steps(0, XR, AK, wt=cfg["x_wt"]):
            st()
        with self.only_if(f"s_cmp_lt_u32 {s(sW)}, 2"):
            a("s_mov_b32 exec_hi, 15")
            a(f"buffer_store_dwordx4 v[28:31], v49, {s(sWS, 4)}, {s(sKVT)} offen sc1")
            a("s_mov_b32 exec_hi, -1")
        self.srd_tmp(sPPHI, 16384)
        a(f"s_lshl_b32 {s(sT0)}, {s(sC)}, 10")
        a(f"buffer_load_dwordx4 v[16:19], {v(vL16)}, {s(sTMP, 4)}, {s(sT0)} offen", vm="phi")
        if cfg["mallpf"] == 3:
            mall_pf()
        if cfg["mallpf"] == 4:
            with self.only_if(f"s_cmp_lg_u32 {s(sW)}, 0"):
                mall_pf()
        o_touch(102)
        self.ts("p_xpub")
        self.nw, cnt, a0 = cfg["n0"], [0], a

        def a(text, **kw):
            if cnt[0] % cfg["w_every"] == 0 and self.nw < cfg["n1"]:
                self.ld_wkv(0, self.nw, 5, sT3)
                self.nw += 1
            cnt[0] += 1
            a0(text, **kw)
        a(f"s_getreg_b32 {s(sXCC)}, hwreg(HW_REG_XCC_ID, 0, 4)")
        a(f"s_lshl_b32 {s(sW13)}, {s(sW)}, 13")
        a(f"s_mov_b32 {s(sCNT)}, 0x40000")
        a(f"s_lshl_b32 {s(sT0)}, {s(sC)}, 10")
        a(f"s_add_u32 {s(sOST)}, {s(sXLD)}, {s(sT0)}")
        a(f"s_add_u32 {s(sOST)}, {s(sOST)}, {OB[0]}")
        a(f"s_add_u32 {s(sOLD)}, {s(sOLD)}, {OB[0]}")
        a(f"s_add_u32 {s(sSTLD)}, {s(sSTLD)}, {STATS[0]}")
        a(f"s_lshl2_add_u32 {s(sFOS)}, {s(sC)}, {s(sFOS)}")
        a(f"s_lshl_b32 {s(sT0)}, {s(sBP)}, 7")
        a(f"s_add_u32 {s(sFOP)}, {s(sT0)}, {FLAGO}")
        a(f"s_lshl1_add_u32 {s(sT1)}, {s(sCG)}, {s(sSUB)}")
        a(f"s_lshl2_add_u32 {s(sFXS)}, {s(sT1)}, {s(sT0)}")
        a(f"s_add_u32 {s(sFXS)}, {s(sFXS)}, {FLAGX}")
        a(f"s_lshl_b32 {s(sT0)}, {s(sC)}, 6")
        a(f"s_mul_i32 {s(sQOFF)}, {s(sW)}, {128 * 3072}")
        a(f"s_add_u32 {s(sQOFF)}, {s(sQOFF)}, {s(sT0)}")
        a(f"s_lshl_b32 {s(sOOFF)}, {s(sW)}, 13")
        a(f"s_lshl_b32 {s(sT0)}, {s(sCG)}, 7")
        a(f"s_add_u32 {s(sOOFF)}, {s(sOOFF)}, {s(sT0)}")

        def late_srds(a):
            a(f"s_mov_b64 {s(sSW[1], 2)}, {s(sPWB, 2)}")
            a(f"s_mov_b32 {s(sSW[1] + 2)}, {512 * 3072}")
            a(f"s_mov_b32 {s(sSW[1] + 3)}, 0x20000")
            for T in range(2):
                a(f"s_mov_b64 {s(sSO[T], 2)}, {s([sPWOA, sPWOB][T], 2)}")
                a(f"s_mov_b32 {s(sSO[T] + 2)}, {512 * 1024}")
                a(f"s_mov_b32 {s(sSO[T] + 3)}, 0x20000")
        if not cfg["pfine"]:
            late_srds(a)
        a(f"s_mov_b32 {s(sCOL)}, 0x10001")
        a(f"s_mov_b32 {s(sCOL + 1)}, 0x10001")
        a(f"s_mov_b32 {s(sLN2)}, {LN2:#x}")
        a(f"s_mov_b32 {s(sLN2b)}, {LN2:#x}")
        a(f"s_mov_b32 {s(sDELTA)}, {DELTA:#x}")
        a(f"s_lshl_b32 {s(sANN)}, {s(sR)}, 7")
        a(f"s_add_u32 {s(sANN)}, {s(sANN)}, {ANN}")
        a(f"s_lshl4_add_u32 {s(sGW)}, {s(sR)}, {s(sC)}")
        a(f"s_lshl2_add_u32 {s(sGW)}, {s(sGW)}, {s(sW)}")
        a(f"v_and_b32 {v(t1)}, 1, {v(g)}")
        a(f"v_lshl_add_u32 {v(vOST)}, {v(t1)}, 14, {v(t0)}")
        a(f"v_lshl_add_u32 {v(vOST)}, {v(half)}, 9, {v(vOST)}")
        a(f"v_lshlrev_b32 {v(vWRD)}, 11, {v(half)}")
        a(f"v_lshl_add_u32 {v(vWRD)}, {v(jj)}, 6, {v(vWRD)}")
        a(f"v_lshl_add_u32 {v(vWRD)}, {v(t1)}, 4, {v(vWRD)}")
        a(f"v_and_b32 v27, 1, {v(q)}")
        a(f"v_lshrrev_b32 v32, 1, {v(q)}")
        a(f"v_lshl_add_u32 {v(vWRD)}, v27, 5, {v(vWRD)}")
        a(f"v_lshl_add_u32 {v(vWRD)}, v32, 3, {v(vWRD)}")
        a(f"v_lshlrev_b32 {v(vSTR)}, 8, {v(half)}")
        a(f"v_lshl_add_u32 {v(vSTR)}, v32, 7, {v(vSTR)}")
        a(f"v_lshl_add_u32 {v(vSTR)}, {v(t1)}, 6, {v(vSTR)}")
        a(f"v_lshl_add_u32 {v(vSTR)}, {v(jj)}, 4, {v(vSTR)}")
        a(f"v_lshl_add_u32 {v(vSTR)}, v27, 3, {v(vSTR)}")
        a(f"s_lshl_b32 {s(sT0)}, {s(sSUB)}, 12")
        a(f"s_add_u32 {s(sT0)}, {s(sT0)}, {L_STG + 0x4000}")
        a(f"v_add_u32 {v(vSTR2)}, {s(sT0)}, {v(vSTR)}")
        a(f"s_lshl_b32 {s(sT0)}, {s(sW)}, 12")
        a(f"s_add_u32 {s(sT0)}, {s(sT0)}, {L_STG}")
        a(f"v_add_u32 {v(vSTR)}, {s(sT0)}, {v(vSTR)}")
        a(f"v_bfe_u32 v33, {v(L)}, 3, 2")
        a(f"v_and_b32 {v(vSTW)}, 0x70, {v(vL16)}")
        a(f"v_lshl_add_u32 {v(vSTW)}, v33, 8, {v(vSTW)}")
        a(f"v_lshl_add_u32 {v(vSTW)}, {v(half)}, 12, {v(vSTW)}")
        a(f"s_lshl_b32 {s(sT0)}, {s(sW)}, 10")
        a(f"s_add_u32 {s(sT0)}, {s(sT0)}, {L_STG}")
        a(f"v_add_u32 {v(vSTW)}, {s(sT0)}, {v(vSTW)}")
        a(f"v_bfe_u32 v34, {v(L)}, 1, 2")
        a(f"v_xor_b32 v33, v33, v34")
        a(f"v_lshlrev_b32 {v(vWOW)}, 14, v34")
        a(f"v_lshl_add_u32 {v(vWOW)}, v33, 5, {v(vWOW)}")
        a(f"v_lshl_add_u32 {v(vWOW)}, {v(half)}, 9, {v(vWOW)}")
        a(f"v_lshl_add_u32 {v(vWOW)}, v27, 4, {v(vWOW)}")
        a(f"s_lshl_b32 {s(sT0)}, {s(sW)}, 7")
        a(f"v_add_u32 {v(vWOW)}, {s(sT0)}, {v(vWOW)}")
        a(f"v_lshlrev_b32 {v(vWOR)}, 3, {v(L)}")
        a(f"s_lshl_b32 {s(sT0)}, {s(sSUB)}, 15")
        a(f"s_and_b32 {s(sT1)}, {s(sW)}, 2")
        a(f"s_lshl_b32 {s(sT2)}, {s(sT1)}, 9")
        a(f"s_add_u32 {s(sT0)}, {s(sT0)}, {s(sT2)}")
        a(f"v_add_u32 {v(vWKW)}, {s(sT0)}, {v(vL16)}")
        a(f"v_and_b32 v33, 0x1f0, {v(vL16)}")
        a(f"v_add_u32 {v(vCSR)}, {L_CSP:#x}, v33")
        a(f"v_and_b32 v34, 1, {v(jj)}")
        a(f"v_cmp_eq_u32 vcc, v34, {v(half)}")
        a(f"v_lshlrev_b32 v35, 6, {v(half)}")
        a(f"v_sub_u32 v35, 576, v35")
        a(f"v_cndmask_b32 {v(vKFR)}, v35, v33, vcc")
        a(f"v_add_u32 {v(vKFR)}, {L_KVF:#x}, {v(vKFR)}")
        a(f"s_mul_i32 {s(sT0)}, {s(sT1)}, {KS}")
        a(f"s_lshl_b32 {s(sT2)}, {s(sSUB)}, 6")
        a(f"s_add_u32 {s(sT0)}, {s(sT0)}, {s(sT2)}")
        a(f"s_add_u32 {s(sT0)}, {s(sT0)}, {L_KVF}")
        a(f"v_mul_u32_u24 {v(vKFW)}, {KS}, {v(half)}")
        a(f"v_lshl_add_u32 {v(vKFW)}, {v(q)}, 4, {v(vKFW)}")
        a(f"v_lshl_add_u32 {v(vKFW)}, {v(jj)}, 7, {v(vKFW)}")
        a(f"v_lshl_add_u32 {v(vKFW)}, {v(t1)}, 3, {v(vKFW)}")
        a(f"v_add_u32 {v(vKFW)}, {s(sT0)}, {v(vKFW)}")
        a(f"s_lshl_b32 {s(sT0)}, {s(sW)}, 5")
        a(f"s_add_u32 {s(sT0)}, {s(sT0)}, {L_ZB}")
        a(f"v_lshl_add_u32 {v(vZW)}, {v(q)}, 2, {v(g)}")
        a(f"v_lshl_add_u32 {v(vZW)}, {v(vZW)}, 1, {s(sT0)}")
        a(f"v_mov_b32 v35, {L_ZB:#x}")
        a(f"v_lshl_add_u32 {v(vZR)}, {v(half)}, 5, v35")
        a(f"v_mov_b32 v36, 0x3f80")
        a(f"v_lshlrev_b32 v37, 4, v27")
        a(f"v_lshlrev_b32 v36, v37, v36")
        a(f"v_lshrrev_b32 v37, 1, {v(i16)}")
        a(f"v_lshlrev_b32 v38, 2, {v(t1)}")
        a(f"v_sub_u32 v37, v37, v38")
        for d in range(4):
            a(f"v_cmp_eq_u32 vcc, {d}, v37")
            a(f"v_cndmask_b32 {v(40 + d)}, 0, v36, vcc")
        a(f"v_add_u32 v33, {L_SEL:#x}, v33")
        a(f"ds_write_b128 v33, v[40:43]")
        for i in range(4):
            a(f"v_mov_b32 {v(44 + i)}, 0")
        a(f"v_min_u32 v33, 5, {v(i16)}")
        a(f"v_mul_u32_u24 v33, {KS}, v33")
        a(f"v_lshl_add_u32 v33, {v(half)}, 6, v33")
        a(f"v_add_u32 v33, {L_KVF + 512:#x}, v33")
        a(f"ds_write_b128 v33, v[44:47]")
        a = a0
        self.ts("p_setup")
        while self.nw < cfg["n1"]:
            self.ld_wkv(0, self.nw, 5)
            self.nw += 1
        if cfg["warm_at"] == 1:
            self.warm(0)
        a("s_waitcnt lgkmcnt(0)")
        a.lg.clear()
        a(f"s_mul_i32 {s(sTAG)}, {s(sEP)}, 0x9e3779b1")
        a(f"s_add_u32 {s(sTAG)}, {s(sTAG)}, 0x7f4a7c15")
        a(f"s_and_b32 {s(sTAG)}, {s(sTAG)}, 0xffffff00")
        a(f"s_or_b32 {s(sT1)}, {s(sTAG)}, 0xf0")
        a(f"s_or_b32 {s(sXCC)}, {s(sTAG)}, {s(sXCC)}")
        a(f"v_mov_b32 v34, {s(sXCC)}")
        a(f"v_mov_b32 v35, {s(sT1)}")
        a(f"v_lshrrev_b32 v37, 2, {v(vL16)}")
        a("s_mov_b64 exec, 1")
        a.wait(vm="sst")
        self.fine("p_ack")
        a(f"buffer_store_dword v34, off, {s(sWS, 4)}, {s(sFXS)}")
        with self.only_if(f"s_cmp_eq_u32 {s(sW)}, 3"):
            a(f"s_lshl2_add_u32 {s(sT0)}, {s(sC)}, {s(sANN)}")
            a(f"buffer_store_dword v34, off, {s(sWS, 4)}, {s(sT0)} sc1")
        a("s_mov_b32 exec_lo, -1")
        with self.only_if(f"s_cmp_lt_u32 {s(sW)}, 2"):
            a(f"s_lshl_b32 {s(sT0)}, {s(sR)}, 7")
            a(f"s_add_u32 {s(sT0)}, {s(sT0)}, {s(sHEL)}")
            a(f"buffer_store_dword v35, v37, {s(sWS, 4)}, {s(sT0)} offen sc1")
        a("s_mov_b32 exec_hi, -1")
        a(f"s_and_b32 {s(sHEL)}, {s(sHEL)}, 0xfffeffff")
        self.ts("flag0")
        for i in range(self.nw, 16):
            self.ld_wkv(0, i, 5)
        a(f"v_and_b32 v38, 0x100, {v(vL16)}")
        a(f"v_add_u32 v38, v38, {v(vPOLL)}")
        a(f"s_and_b32 {s(sT2)}, {s(sFXP)}, 0xfffffeff")
        look = lambda: a(f"buffer_load_dword v34, v38, {s(sWS, 4)}, {s(sT2)} offen sc1", vm="f0")
        if cfg["f0_at"] < 0:
            look()
        if cfg["warm_at"] == 2:
            self.warm(0)
        a(f"s_lshl_b32 {s(sT0)}, {s(sW)}, 10")
        a(f"s_add_u32 {s(sT0)}, {s(sT0)}, {L_STG + 0x3000}")
        a(f"v_add_u32 v33, {s(sT0)}, {v(vL16)}")
        a.wait(vm="phi")
        a(f"ds_write_b128 v33, v[16:19]", lg="ph")
        a(f"v_lshlrev_b32 v33, 9, v27")
        a(f"v_lshl_add_u32 v33, {v(half)}, 8, v33")
        a(f"v_lshl_add_u32 v33, {v(jj)}, 5, v33")
        a(f"v_lshl_add_u32 v33, {v(t1)}, 4, v33")
        a(f"v_lshl_add_u32 v33, v32, 3, v33")
        a(f"v_add_u32 v33, {s(sT0)}, v33")
        a(f"v_mul_u32_u24 v39, {KS - 512}, {v(half)}")
        a(f"v_add_u32 v39, v39, {v(vL16)}")
        a(f"v_add_u32 v39, {L_WPF:#x}, v39")
        a.wait(lg="ph")
        a(f"ds_read_b64_tr_b16 v[16:17], v33")
        a(f"ds_read_b64_tr_b16 v[18:19], v33 offset:128", lg="ph2")
        self.ts("p_phi")
        for i in range(16):
            a.wait(vm=f"wkv{i}")
            self.fine(f"p_w{i}")
            if i == cfg["f0_at"]:
                look()
            self.put_wkv(0, i, i + 1)
            self.cs_kv_step(0, i, 40, 44)
            if i == 1:
                a.wait(lg="ph2")
                a(f"ds_write_b128 v39, v[16:19]")
        self.puts_left = []
        self.cs_kv_fin(0, 44, 50)
        self.ts("wkv0")
        a.wait(vm="f0")
        a(f"v_cmp_ne_u32 vcc, {s(sXCC)}, v34")
        a("s_branch L_global" if cfg["force_global"] else "s_cbranch_vccnz L_poll0")
        a.label("L_enter")
        with self.outofline():
            a.label("L_poll0")
            a(f"buffer_load_dword v34, v38, {s(sWS, 4)}, {s(sT2)} offen sc1")
            self.countdown()
            a("s_waitcnt vmcnt(0)")
            a(f"v_cmp_ne_u32 vcc, {s(sXCC)}, v34")
            a("s_cbranch_vccz L_enter")
            a(f"s_and_b32 {s(sT1)}, {s(sCNT)}, 15")
            a("s_cbranch_scc1 L_poll0")
            a(f"buffer_load_dword v34, {v(vPOLL)}, {s(sWS, 4)}, {s(sANN)} offen sc1")
            a("s_waitcnt vmcnt(0)")
            a(f"v_xor_b32 v34, {s(sXCC)}, v34")
            a(f"v_add_u32 v34, -1, v34")
            a(f"v_cmp_gt_u32 vcc, 15, v34")
            a("s_cbranch_vccz L_poll0")
            a.label("L_global")
            a(f"s_mov_b32 {s(sMODE)}, 1")
            a(f"s_add_u32 {s(sFXS)}, {s(sFXS)}, {FLAGX2 - FLAGX}")
            a(f"s_add_u32 {s(sFXP)}, {s(sFXP)}, {FLAGX2 - FLAGX}")
            a(f"s_mov_b32 {s(sTG)}, {s(sTAG)}")
            for r_ in (sSTST, sSTLD):
                a(f"s_add_u32 {s(r_)}, {s(r_)}, {STATS_G}")
            for st in self.x_steps(0, XR, AK, wt=True):
                st()
            a(f"v_mov_b32 v16, {s(sTG)}")
            self.flag(sFXS, 16)
            self.poll(vPOLL, sFXP, 34)
            a("s_branch L_enter")
        self.ts("poll0")
        if cfg["pfine"]:
            a("s_waitcnt lgkmcnt(0)")
            for k in range(len(cfg["pfine"])):
                a(f"v_writelane_b32 {v(vTS)}, {s(84 + 2 * k)}, {48 + k}")
            late_srds(a)

    def rowmajor_voff(self, d, t):
        a = self.a
        a(f"v_and_b32 {v(d)}, 0xf0, {v(vL16)}")
        a(f"v_lshlrev_b32 {v(d)}, 6, {v(d)}")
        a(f"v_bfe_u32 {v(t)}, {v(vL16)}, 8, 1")
        a(f"v_lshl_add_u32 {v(d)}, {v(t)}, 5, {v(d)}")
        a(f"v_lshrrev_b32 {v(t)}, 9, {v(vL16)}")
        a(f"v_lshl_add_u32 {v(d)}, {v(t)}, 4, {v(d)}")

    def tile_addr(self, d, t):
        return [f"s_mul_i32 {s(sT0)}, {s(sW)}, 2304",
                f"s_add_u32 {s(sT0)}, {s(sT0)}, {L_STG}",
                f"v_bfe_u32 {v(t)}, {v(vL16)}, 4, 4",
                f"v_mul_u32_u24 {v(d)}, 144, {v(t)}",
                f"v_lshrrev_b32 {v(t)}, 8, {v(vL16)}",
                f"v_lshl_add_u32 {v(d)}, {v(t)}, 3, {v(d)}",
                f"v_add_u32 {v(d)}, {s(sT0)}, {v(d)}",
                f"v_lshrrev_b32 {v(t)}, 7, {v(vL16)}",
                f"v_lshl_add_u32 {v(d + 1)}, {v(t)}, 4, {v(vL16)}",
                f"v_add_u32 {v(d + 1)}, {s(sT0)}, {v(d + 1)}",
                f"v_mul_u32_u24 {v(d + 2)}, {1024 - 128}, {v(t)}",
                f"v_add_u32 {v(d + 2)}, {v(d + 2)}, {v(vL16)}"]

    def final(self):
        a = self.a
        X = AK
        if self.cfg["fin_lds"]:
            a(f"s_add_u32 {s(sT1)}, {s(sFIN)}, 8192")
            for i in range(8):
                a(f"v_cvt_pk_bf16_f32 {v(X + i)}, {v(XR + 2 * i)}, {v(XR + 2 * i + 1)}")
                if i % 4 == 3:
                    a(f"ds_write2_b64 {v(PK)}, {v(X + i - 3, 2)}, {v(X + i - 1, 2)} offset0:{(i >> 2) * 8} offset1:{(i >> 2) * 8 + 4}")
            for i in range(2):
                a(f"ds_read_b128 {v(X + 8 + 4 * i, 4)}, {v(PK + 1)} offset:{1152 * i}")
            for i in range(2):
                a(f"s_waitcnt lgkmcnt({1 - i})")
                a(f"buffer_store_dwordx4 {v(X + 8 + 4 * i, 4)}, {v(PK + 2)}, {s(sOUT, 4)}, {s((sFIN, sT1)[i])} offen{self.cfg['finflag']}")
        else:
            self.rowmajor_voff(PK, PK + 1)
            for i in range(8):
                a(f"v_cvt_pk_bf16_f32 {v(X + i)}, {v(XR + 2 * i)}, {v(XR + 2 * i + 1)}")
            for i in range(2):
                for d in range(2):
                    a(f"v_permlane16_swap_b32 {v(X + 4 * i + d)}, {v(X + 4 * i + 2 + d)}")
            for i in range(2):
                a(f"buffer_store_dwordx4 {v(X + 4 * i, 4)}, {v(PK)}, {s(sOUT, 4)}, {s(sFIN)} offen offset:{64 * i}{self.cfg['finflag']}")
        with self.only_if(f"s_cmp_eq_u32 {s(sGW)}, 0"):
            a(f"s_add_u32 {s(sEP)}, {s(sEP)}, 1")
            a(f"v_mov_b32 v0, {s(sEP)}")
            a("s_mov_b64 exec, 1")
            a(f"buffer_store_dword v0, off, {s(sWS, 4)}, 0 sc1")
            a("s_mov_b64 exec, -1")
        if self.cfg["amp"]:
            amp = self.cfg["amp"]
            self.ts("end")
            a("s_sub_u32 s72, s78, s72")
            a(f"s_mul_i32 s72, s72, {amp[2]}")
            if amp[3]:
                a("s_lshr_b32 s72, s72, 5")
            a("s_min_u32 s72, s72, 100000")
            if self.cfg.get("amp_one") is not None:
                a(f"s_cmp_eq_u32 {s(sGW)}, {self.cfg['amp_one']}")
                a("s_cselect_b32 s72, s72, 0")
            a("s_memrealtime s[78:79]")
            a("s_waitcnt lgkmcnt(0)")
            a("s_mov_b32 s73, s78")
            a.label("L_amp")
            a("s_memrealtime s[78:79]")
            a("s_waitcnt lgkmcnt(0)")
            a("s_sub_u32 s78, s78, s73")
            a("s_cmp_lt_u32 s78, s72")
            a("s_cbranch_scc1 L_amp")
        if self.cfg["ts"]:
            a("s_waitcnt vmcnt(0)")
            self.ts("end")
            a("s_memrealtime s[72:73]")
            a("s_waitcnt lgkmcnt(0)")
            for k in range(len(self.cfg["fine"])):
                a(f"v_writelane_b32 {v(vTS)}, {s(FINE[k])}, {48 + k}")
            a(f"v_writelane_b32 {v(vTS)}, {s(sLAY)}, 58")
            a(f"v_writelane_b32 {v(vTS)}, {s(sTSI)}, 59")
            a(f"v_writelane_b32 {v(vTS)}, {s(sCNT)}, 60")
            a(f"v_writelane_b32 {v(vTS)}, s78, 61")
            a(f"v_writelane_b32 {v(vTS)}, s72, 62")
            a(f"v_writelane_b32 {v(vTS)}, {s(sMODE)}, 63")
            a(f"s_lshl_b32 {s(sT0)}, {s(sGW)}, 8")
            a(f"s_add_u32 {s(sT0)}, {s(sT0)}, {DBG + 0x2000000}")
            a(f"v_lshrrev_b32 v0, 2, {v(vL16)}")
            a(f"buffer_store_dword {v(vTS)}, v0, {s(sWS, 4)}, {s(sT0)} offen")
        a.label("L_timeout")
        a.label("L_end")
        a("s_endpgm")

    def place(self):
        a = self.a
        if not self.cfg["pads"]:
            self.stat = a.layout(self.cfg["align"])
            return
        keep = list(a.ins)
        for k in range(12):
            a.ins.append(Ins(f"L_pad{k}:"))
        cnt = [0]

        def probe(k):
            cnt[0] += 1
            return f"L_tmp{cnt[0]}", "s_nop 0"
        a.layout(self.cfg["align"], probe)
        n = cnt[0]
        a.ins = keep + [Ins(f"L_pad{k}:") for k in range(12)]
        cnt[0] = 0

        def pad(_):
            k = cnt[0]
            cnt[0] += 1
            return f"L_pad{k}", f"s_cbranch_execz {self.pad_back[k]}"
        self.stat = a.layout(self.cfg["align"], pad)
        del a.ins[-12:]
        assert cnt[0] == n <= 12
        for k in range(n, 12):
            i = [x.label for x in a.ins].index(self.pad_back[k])
            a.ins.insert(i, Ins(f"L_pad{k}:"))

    def build(self):
        a = self.a
        self.prologue()
        if self.cfg["pads"]:
            a("s_branch L_layer0")
            a(".p2align 12")
            self.nook = a.ins[-1]
        for l in range(4):
            self.layer(l)
        self.final()
        hot = [k for k, x in enumerate(self.tail) if x.label and x.label.startswith("L_again")]
        blocks, rest_, k = [], [], 0
        while k < len(self.tail):
            e = k
            while self.tail[e].op != "s_branch":
                e += 1
            (blocks if k in hot else rest_).extend(self.tail[k:e + 1])
            k = e + 1
        blocks[1].pad_here = True
        a.raw(blocks + rest_)
        a.label("L_codeend")
        a("s_endpgm")
        nops = a.pad_hazards()
        self.place()
        head = open(f"cdna_kernels/{NAME}.s.ref").read().split("; Override launch")[0]
        out = head + f"; @launch grid=(256,1,1) block=(256,1,1) lds={LDS_SIZE}\n"
        out += f""".amdgcn_target "amdgcn-amd-amdhsa--gfx950"
.text
.globl {NAME}_kernel
.p2align 8
.type {NAME}_kernel,@function
{NAME}_kernel:
"""
        out += a.text()
        out += f""".section .rodata,"a"
.p2align 6
.amdhsa_kernel {NAME}_kernel
  .amdhsa_next_free_vgpr 512
  .amdhsa_next_free_sgpr 102
  .amdhsa_accum_offset 256
  .amdhsa_group_segment_fixed_size 0
  .amdhsa_kernarg_size 80
  .amdhsa_user_sgpr_count 2
  .amdhsa_user_sgpr_kernarg_segment_ptr 1
  .amdhsa_system_sgpr_workgroup_id_x 1
.end_amdhsa_kernel
"""
        self.nops = nops
        return out


if __name__ == "__main__":
    import ast
    kw = {}
    out = sys.argv[1]
    for x in sys.argv[2:]:
        k, val = x.split("=", 1)
        kw[k] = ast.literal_eval(val)
    g = Gen(**kw)
    txt = g.build()
    open(out, "w").write(txt)
    print(f"wrote {out}: {len(g.a.ins)} lines, {g.nops} pad states, layout {g.stat}", file=sys.stderr)
```

```python
import sys
import contextlib
from asmlib import Asm, Ins

NAME = "interleave_layers__linear_attn_block__linear_kernel_hedgehog__prompt"

CFG = dict(
    ts=0, rt=0,
    dump=None,
    amp=None,
    force_global=0, fine=(), pfine=(),
    n0=4, n0b=(2, 2), w_every=20, n1=12, hello_late=0, x_noack='', x_16=0, limit=0x40000, jitter=None, x_noput=0, owin2=((0, 0), (4, 0), (2, 8)), xputs2=(0, 6), xprobe_at2=2, warm_at=2, nw=8, latepf=(8, 'bB'), fin_lds=1, xr_at=10, r_num=1, r_y=1, tlb='', sl_first=1, l2pf=0, l2div=1, slow0=1, f0_at=10, codepf=12, slowpf=1, align=99, pads=1, mallpf=5, x_wt=1, x_ann=1,
    hx='ffff', ho='ffff', touch=1,
    bg=((6, 4, 14, 8, 0, 0, 8), (4, 10, 10, 0, 0, 0, 0)),
    pl_step=(26, 24, 22, 20), pl_gap=(1, 1, 1, 2),
    nx0=8, nx1=4, xmix=1, x_qskip=0, x_st=0, ppf=(-1, -1, -1, -1), zlast=0, zst1=0, otouch=0, oinit=(0, -1), nmode=1, no0=8,
    wo_every=(8, 10), qputs=(8, 8), qearly=0, pdepth=2,
    np=8, owin=(((6, 0), (2, 8), (0, 20)), ((0, 32), (4, 0), (4, 0))), ord=((0, 2, 1, 1), (2, 2, 2, 1)),
    xputs=(4, 12), spar=1, xprobe_at=5,
    finflag="", jit=0,
)

FLAGX, FLAGO, FLAGX2, ANN, HELLO = 0x1000, 0x3000, 0x7000, 0x9000, 0xA0000
STATS, STATS_G = [0x10000, 0x30000], 0x40000
XB = [0, 0x800000]
OB = [0x400000, 0x600000]
KVP = [0xC0000 + 0x90000 * l for l in range(4)]
DBG = 0x1000000
WS_SIZE = 0x8000000
L_P, L_WQ, L_STG = 0x0, [0x10000, 0x18000], 0x20000
L_KVF = 0x26000
KS = 592
L_WPF = L_KVF + 4 * KS
L_ZB = L_WPF + 2 * KS
L_CSP = L_ZB + 128
L_SEL = L_CSP + 3072
LDS_SIZE = 0x28000
XF, AK, AV, RG, LG, XR, PK = 0, 128, 144, 160, 192, 208, 224
vSTR, vSTR2, vPST, vZST, vKFW, vZW, vZR, vOST = range(184, 192)
vL16, vWRD, vSTW, vKFR, vS, vRS, vM, vXST, vSST, vSLD, vPOLL, vWOR, vWOW, vWKW, vCSR, vTS = range(240, 256)
A_WKV, A_WO = [0, 64], [128, 192]
sID = 2
sPX, sPWA, sPWOA, sPBX, sPWB, sPPHI, sPWOB, sPOUT, sPDBG, sPWS = range(4, 24, 2)
sWS, sOUT, sTMP = 24, 28, 32
XS = [sOUT, sWS]
(sW, sC, sR, sXLD, sSTLD, sFXP, sOST, sFOS, sOLD, sFOP, sXST, sSTST, sFXS, sKVT, sTAG, sMODE, sPASS,
 sEP, sXCC, sT0, sT1, sT2, sT3, sCNT, sWOFF, sQOFF, sOOFF, sHEL, sLN2, sLN2b, sDELTA, sFIN) = range(36, 68)
sHI = 68
sSAVE = 70
sTSA = 72
sTSI = 74
sGW = 75
sLAY = 76
sANN = 77
sW13 = 98
sF0 = 3
sPF = 0
sTG = 1
sPM = 96
sSW, sSO = [80, 84], [88, 92]
vBW, vBO, vHL = RG + 20, RG + 21, RG + 22
vPR, vPB, vPA, vCK = PK + 10, PK + 11, PK + 7, PK + 6
sROW = sPM
sCOL = sPBX
assert sLN2 % 2 == 0

FINE = [4, 6, 8, 12, 14, 16, 18, 20, 22, 32]
LOG2E = 0x3FB8AA3B
LN2 = 0x3F317218
DELTA = 0x35C1A4C3
import struct
def f2u(x): return struct.unpack("<I", struct.pack("<f", x))[0]
DELTA = f2u(1e-6 * 1.4426950408889634)


def v(a, n=1): return f"v{a}" if n == 1 else f"v[{a}:{a + n - 1}]"
def ar(a, n=1): return f"a{a}" if n == 1 else f"a[{a}:{a + n - 1}]"
def s(a, n=1): return f"s{a}" if n == 1 else f"s[{a}:{a + n - 1}]"


class Gen:
    def __init__(self, **kw):
        self.cfg = dict(CFG)
        self.cfg.update(kw)
        self.a = Asm()
        self.tail = []
        self.nts = 0
        self.tsnames = []
        self.side = []
        self.side_every = 1
        self.pad_back = {}
        self.xb, self.ob = [0], [0]
        assert self.cfg["hx"][0] == "f" and self.cfg["ho"][0] == "f"
        for l in range(1, 4):
            self.xb.append(self.xb[-1] ^ (self.cfg["hx"][l] == "s"))
            self.ob.append(self.ob[-1] ^ (self.cfg["ho"][l] == "s"))

    @contextlib.contextmanager
    def uncounted(self):
        a = self.a
        vm, lg = list(a.vm), list(a.lg)
        yield
        a.vm, a.lg = vm, lg

    @contextlib.contextmanager
    def only_if(self, cmp):
        a = self.a
        l = a.newlabel("skip")
        a(cmp)
        a(f"s_cbranch_scc0 {l}")
        with self.uncounted():
            yield
        a.label(l)

    @contextlib.contextmanager
    def outofline(self):
        a = self.a
        n0 = len(a.ins)
        with self.uncounted():
            yield
        self.tail += a.ins[n0:]
        del a.ins[n0:]

    def code_pf(self, lo, hi, t):
        a = self.a
        n = f"(({hi}-{lo})/1024+1)"
        a(f"s_bfe_u32 {s(sT0)}, {s(sID)}, {3 | (3 << 16)}")
        a(f"s_mul_i32 {s(sT0)}, {s(sT0)}, {n}*128")
        a(f"s_add_u32 {s(sT0)}, {s(sT0)}, {lo}-L_pc")
        a(f"v_lshlrev_b32 {v(t)}, 3, {v(vL16)}")
        a(f"v_min_u32 {v(t)}, ({n}-1)*128, {v(t)}")
        a(f"v_add_u32 {v(t)}, {s(sT0)}, {v(t)}")
        a(f"v_min_u32 {v(t)}, L_codeend-L_pc, {v(t)}")
        a(f"global_load_dword {v(t)}, {v(t)}, {s(sSAVE, 2)}")

    def warm(self, g):
        a = self.a
        if not self.cfg["pads"]:
            return
        n0 = len(a.ins)
        a("s_mov_b64 exec, 0")
        for k in range(3):
            a(f"s_cmp_eq_u32 {s(sW)}, {k}")
            a(f"s_cbranch_scc1 L_pad{4 * g + k}")
        a(f"s_branch L_pad{4 * g + 3}")
        a.label(f"L_warmed{g}")
        a("s_mov_b64 exec, -1")
        for x in a.ins[n0:]:
            x.nopad = True
        for k in range(4):
            self.pad_back[4 * g + k] = f"L_warmed{g}"

    @contextlib.contextmanager
    def waves01(self, pads):
        a = self.a
        if not self.cfg["pads"]:
            with self.only_if(f"s_cmp_lt_u32 {s(sW)}, 2"):
                yield
                a("s_mov_b64 exec, -1")
            return
        st, back = a.newlabel("stub"), a.newlabel("back")
        a(f"s_cmp_lt_u32 {s(sW)}, 2")
        a(f"s_cbranch_scc0 {st}")
        with self.uncounted():
            yield
        a.label(back)
        a("s_mov_b64 exec, -1")
        i = a.ins.index(self.nook)
        a.ins[i:i] = [Ins(x) for x in (f"{st}:", "s_mov_b64 exec, 0", f"s_cmp_eq_u32 {s(sW)}, 2", f"s_cbranch_scc1 L_pad{pads[0]}", f"s_branch L_pad{pads[1]}")]
        for x in a.ins[i:i + 5] + a.ins[-1:]:
            x.nopad = True
        for k in pads:
            self.pad_back[k] = back

    def countdown(self):
        self.a(f"s_sub_u32 {s(sCNT)}, {s(sCNT)}, 1")
        self.a("s_cbranch_scc1 L_timeout")

    def bg_region(self, n, slots):
        n = min(n, len(self.bg))
        self.bg_slot = 0
        self.bg_at = [(k * slots) // n for k in range(n)]

    def bg_tick(self):
        for _ in range(self.bg_at.count(self.bg_slot)):
            self.bg.pop(0)()
        self.bg_slot += 1

    def bg_now(self, n):
        for _ in range(min(n, len(self.bg))):
            self.bg.pop(0)()

    def ticker(self):
        def e(text, **kw):
            if self.side and self.bg_slot % self.side_every == 0:
                self.side.pop(0)()
            self.bg_tick()
            self.a(text, **kw)
        return e

    def moded(self, lines, tag=None, reg=sMODE, wt=False, cmp=True):
        a = self.a
        if wt:
            for l in lines:
                a(l + (" sc1" if l.startswith("buffer_store") else ""), vm=tag)
            return
        lg, lj = a.newlabel("glob"), a.newlabel("join")
        if cmp:
            a(f"s_cmp_eq_u32 {s(reg)}, 0")
        a(f"s_cbranch_scc0 {lg}")
        for l in lines:
            a(l, vm=tag)
        a.label(lj)
        t = [Ins(lg + ":")] + [Ins(l + (" sc1" if l.startswith("buffer_store") else "")) for l in lines] + [Ins(f"s_branch {lj}")]
        self.tail += t

    def srd_tmp(self, ptr, size):
        a = self.a
        a(f"s_mov_b32 {s(sTMP)}, {s(ptr)}")
        a(f"s_mov_b32 {s(sTMP + 1)}, {s(ptr + 1)}")
        a(f"s_mov_b32 {s(sTMP + 2)}, {size}")

    def ts(self, name):
        a = self.a
        self.fine(name)
        amp = self.cfg["amp"]
        if amp:
            for k in range(2):
                if amp[k] == name:
                    a(f"{'s_memtime' if amp[3] else 's_memrealtime'} {s(72 + 6 * k, 2)}")
                    if name != "start":
                        a("s_waitcnt lgkmcnt(0)")
        if not self.cfg["ts"] or name == "start":
            return
        if self.cfg["ts"] == 1 and name.startswith("p_"):
            return
        if self.cfg["ts"] == 4 and name not in ("kernarg", "end"):
            return
        if self.cfg["ts"] == 3 and name not in ("x0", "flag0", "poll0", "end") and name[2:] not in ("kvgemm", "ogemm"):
            return
        if self.cfg["ts"] == 2 and ":" in name and name[2:] not in ("kvgemm", "bar3", "ogemm"):
            return
        a(f"{'s_memrealtime' if self.cfg['rt'] else 's_memtime'} {s(sTSA, 2)}")
        a("s_waitcnt lgkmcnt(0)")
        a.lg.clear()
        a(f"v_writelane_b32 {v(vTS)}, {s(sTSA)}, {len(self.tsnames)}")
        self.tsnames.append(name)
        assert len(self.tsnames) <= 56

    def fine(self, name):
        if self.cfg["jitter"] and name not in ("start", "kernarg") and not name.endswith(("p_mfma",)):
            seed, mask, every = self.cfg["jitter"]
            self.njit = getattr(self, "njit", 0) + 1
            if (self.njit * 7 + seed) % every == 0:
                a = self.a
                l = a.newlabel("jit")
                a(f"s_lshl2_add_u32 s72, {s(sID)}, {s(sW)}")
                a(f"s_add_u32 s72, s72, {(self.njit * 2654435761 + seed * 40503) & 0xffff}")
                a(f"s_mul_i32 s72, s72, 0x9e3779b1")
                a(f"s_lshr_b32 s73, s72, 15")
                a(f"s_xor_b32 s72, s72, s73")
                a(f"s_mul_i32 s72, s72, 0x85ebca6b")
                a(f"s_lshr_b32 s73, s72, 20")
                a(f"s_lshr_b32 s72, s72, 8")
                a(f"s_and_b32 s72, s72, s73")
                a(f"s_and_b32 s72, s72, {mask}")
                a.label(l)
                a("s_sleep 2")
                a("s_sub_u32 s72, s72, 1")
                a(f"s_cbranch_scc0 {l}")
        if name in self.cfg["pfine"]:
            self.a(f"s_memtime {s(84 + 2 * list(self.cfg['pfine']).index(name), 2)}")
        if name in self.cfg["fine"]:
            self.a(f"s_memtime {s(FINE[list(self.cfg['fine']).index(name)], 2)}")

    def dump(self, point, l, regs, tmp):
        if self.cfg["dump"] != (point, l):
            return
        a = self.a
        with self.uncounted():
            a("s_waitcnt vmcnt(0) lgkmcnt(0)")
            a("s_nop 15")
            a(f"v_lshrrev_b32 {v(tmp)}, 2, {v(vL16)}")
            a(f"s_mul_i32 {s(sT0)}, {s(sGW)}, {64 * 256}")
            a(f"s_add_u32 {s(sT0)}, {s(sT0)}, {DBG}")
            for i, r in enumerate(regs):
                a(f"buffer_store_dword {v(r)}, {v(tmp)}, {s(sWS, 4)}, {s(sT0)} offen")
                a(f"s_add_u32 {s(sT0)}, {s(sT0)}, 256")
            a("s_waitcnt vmcnt(0)")

    def poll(self, voff, soff, tmp, tag=sTG):
        a = self.a
        l = a.newlabel("poll")
        a.label(l)
        a(f"buffer_load_dword {v(tmp)}, {v(voff)}, {s(sWS, 4)}, {s(soff)} offen sc1")
        self.countdown()
        a.wait(vm=0)
        a(f"v_cmp_ne_u32 vcc, {s(tag)}, {v(tmp)}")
        a(f"s_cbranch_vccnz {l}")

    def flag(self, soff, tmp, after=0):
        a = self.a
        a("s_mov_b64 exec, 1")
        self.moded(a.wait_text(vm=after) + [f"buffer_store_dword {v(tmp)}, off, {s(sWS, 4)}, {s(soff)}"])
        a("s_mov_b64 exec, -1")

    def w_voff(self, t):
        a = self.a
        a(f"v_lshrrev_b32 {v(t)}, 6, {v(vL16)}")
        a(f"v_mul_u32_u24 {v(t)}, {3072 - 64}, {v(t)}")
        a(f"v_add_u32 {v(t)}, {v(t)}, {v(vL16)}")

    def ld_wkv(self, T, i, t, st=sT0):
        a = self.a
        a(f"s_add_u32 {s(st)}, {s(sWOFF)}, {i * 32 * 3072}")
        a(f"buffer_load_dwordx4 {ar(A_WKV[T] + 4 * i, 4)}, {v(t)}, {s(sSW[T], 4)}, {s(st)} offen", vm=f"wkv{i}")

    def ld_wq(self, T, i):
        a = self.a
        a(f"s_add_u32 m0, {s(sW13)}, {L_WQ[T] + i * 1024}")
        a(f"s_add_u32 {s(sT0)}, {s(sQOFF)}, {i * 16 * 3072}")
        a(f"buffer_load_dwordx4 {v(self.bw)}, {s(sSW[T], 4)}, {s(sT0)} offen lds", vm="wq")

    def ld_wo(self, T, i):
        a = self.a
        a(f"s_add_u32 {s(sT0)}, {s(sOOFF)}, {i * 32 * 1024}")
        a(f"buffer_load_dwordx4 {ar(A_WO[T] + 4 * i, 4)}, {v(vBO)}, {s(sSO[T], 4)}, {s(sT0)} offen", vm=f"wo{i}")

    def slow_pf(self, srd, n, t):
        a = self.a
        if not self.cfg["slowpf"]:
            return
        a(f"s_sub_u32 {s(sT0)}, 0x180, {s(srd)}")
        a(f"s_and_b32 {s(sT0)}, {s(sT0)}, 0x380")
        a(f"s_mul_i32 {s(sT1)}, {s(sPF)}, {n * 1024}")
        a(f"s_add_u32 {s(sT0)}, {s(sT0)}, {s(sT1)}")
        a(f"v_lshlrev_b32 {v(t)}, 6, {v(vL16)}")
        a(f"s_mov_b64 exec, {(1 << n) - 1:#x}")
        a(f"buffer_load_dword {v(t)}, {v(t)}, {s(srd, 4)}, {s(sT0)} offen")
        a("s_mov_b64 exec, -1")

    def chip_pf(self, srd, n, t):
        a = self.a
        a(f"s_lshl2_add_u32 {s(sT0)}, {s(sID)}, {s(sW)}")
        a(f"s_mul_i32 {s(sT0)}, {s(sT0)}, {n * 128}")
        a(f"v_lshlrev_b32 {v(t)}, 3, {v(vL16)}")
        a(f"s_mov_b64 exec, {(1 << n) - 1:#x}")
        a(f"buffer_load_dword a255, {v(t)}, {s(srd, 4)}, {s(sT0)} offen")
        a("s_mov_b64 exec, -1")

    def bg_setup(self, T):
        self.bg = [(lambda i=i: self.ld_wq(T, i)) for i in range(8)] + [(lambda i=i: self.ld_wo(T, i)) for i in range(16)]
        if T == 0:
            self.bg += [(lambda i=i: self.ld_wkv(1, i, vBW)) for i in range(16)]
            old2 = self.bg[self.cfg["xr_at"]]

            def xr():
                a = self.a
                assert self.bw == vBW
                self.srd_tmp(sPX, 0x200000)
                a(f"s_add_u32 {s(sT0)}, {s(sFIN)}, 8192")
                for i in range(2):
                    a(f"buffer_load_dwordx4 {v(XR + 4 * i, 4)}, {v(vBO)}, {s(sTMP, 4)}, {s((sFIN, sT0)[i])} offen", vm="xr")
                old2()
            self.bg[self.cfg["xr_at"]] = xr
            at, which = self.cfg["latepf"]
            old = self.bg[at]

            def both():
                t = RG + 23 if self.bw == vBW else PK + 8
                for c_ in which:
                    self.chip_pf(*{"a": (sSW[0], 12), "b": (sSW[1], 12), "A": (sSO[0], 4), "B": (sSO[1], 4)}[c_], t)
                old()
            self.bg[at] = both

    def put_wkv(self, T, lo, hi, waits=False):
        for i in range(lo, hi):
            if self.cfg["x_noput"] & 1 and getattr(self, "cur", 0) and self.cur > 0.5:
                continue
            if waits:
                self.a.wait(vm=f"wkv{i}")
            self.a(f"ds_write_b128 {v(vWKW)}, {ar(A_WKV[T] + 4 * i, 4)} offset:{i * 2048}", lg="put")

    def put_wo(self, T, i):
        if self.cfg["x_noput"] & 2 and self.cur > 0 and i >= self.cfg["np"]:
            return
        self.a(f"ds_write_b128 {v(vWOW)}, {ar(A_WO[T] + 4 * i, 4)} offset:{i * 1024}", lg="putwo")

    def woff(self, j, u):
        if self.lay == 0:
            return j * 1024 + u * 256
        return (j >> 2) * 4096 + u * 1024 + (j & 3) * 256

    def cs_kv_step(self, T, i, sel, d):
        self.a(f"v_mfma_f32_16x16x32_bf16 {v(d, 4)}, {v(sel, 4)}, {ar(A_WKV[T] + 4 * i, 4)}, {v(d, 4) if i else 0}")

    def cs_q_fin(self, T, d, t):
        o = [f"s_lshl_b32 {s(sT2)}, {s(sW)}, 2\ns_add_u32 {s(sT2)}, {s(sT2)}, {L_CSP + T * 1536 + 1024}",
             f"v_lshrrev_b32 {v(t)}, 9, {v(vL16)}\nv_lshl_add_u32 {v(t)}, {v(t)}, 5, {s(sT2)}"]
        for bit, sh in ((4, 8), (8, 7), (5, 6)):
            o.append(f"v_bfe_u32 {v(t + 1)}, {v(vL16)}, {bit}, 1\nv_lshl_add_u32 {v(t)}, {v(t + 1)}, {sh}, {v(t)}")
        f = [f"v_permlane32_swap_b32 {v(d)}, {v(d + 2)}", f"v_permlane32_swap_b32 {v(d + 1)}, {v(d + 3)}",
             f"v_add_f32 {v(d)}, {v(d)}, {v(d + 2)}\nv_add_f32 {v(d + 1)}, {v(d + 1)}, {v(d + 3)}"]
        for ror in (4, 8):
            f.append(f"v_add_f32 {v(d)}, {v(d)}, {v(d)} row_ror:{ror}\nv_add_f32 {v(d + 1)}, {v(d + 1)}, {v(d + 1)} row_ror:{ror}")
        f.append(lambda: self.a(f"ds_write2_b32 {v(t)}, {v(d)}, {v(d + 1)} offset0:0 offset1:4", lg="csw"))
        return o, f

    def cs_kv_fin(self, T, d, t):
        a = self.a
        a(f"s_and_b32 {s(sT0)}, {s(sW)}, 1")
        a(f"s_lshl_b32 {s(sT0)}, {s(sT0)}, 9")
        a(f"s_and_b32 {s(sT1)}, {s(sW)}, 2")
        a(f"s_lshl_b32 {s(sT1)}, {s(sT1)}, 2")
        a(f"s_add_u32 {s(sT0)}, {s(sT0)}, {s(sT1)}")
        a(f"s_add_u32 {s(sT0)}, {s(sT0)}, {L_CSP + T * 1536}")
        a(f"v_lshrrev_b32 {v(t)}, 9, {v(vL16)}")
        a(f"v_lshl_add_u32 {v(t)}, {v(t)}, 2, {s(sT0)}")
        a(f"v_bfe_u32 {v(t + 1)}, {v(vL16)}, 4, 1")
        a(f"v_lshl_add_u32 {v(t)}, {v(t + 1)}, 8, {v(t)}")
        a(f"v_bfe_u32 {v(t + 1)}, {v(vL16)}, 8, 1")
        a(f"v_lshl_add_u32 {v(t)}, {v(t + 1)}, 7, {v(t)}")
        a(f"v_bfe_u32 {v(t + 1)}, {v(vL16)}, 5, 1")
        a(f"v_lshl_add_u32 {v(t)}, {v(t + 1)}, 6, {v(t)}")
        for ror in (4, 8):
            for i in range(4):
                a(f"v_add_f32 {v(d + i)}, {v(d + i)}, {v(d + i)} row_ror:{ror}")
        a(f"ds_write2_b32 {v(t)}, {v(d)}, {v(d + 1)} offset0:0 offset1:4")
        a(f"ds_write2_b32 {v(t)}, {v(d + 2)}, {v(d + 3)} offset0:8 offset1:12")

    def hello(self, d, t):
        a = self.a
        with self.only_if(f"s_cmp_lt_u32 {s(sW)}, 2"):
            a(f"s_or_b32 {s(sT1)}, {s(sTAG)}, 0xf0")
            a(f"v_mov_b32 {v(d)}, {s(sT1)}")
            a(f"v_lshrrev_b32 {v(t)}, 2, {v(vL16)}")
            a(f"s_lshl_b32 {s(sT0)}, {s(sR)}, 7")
            a(f"s_add_u32 {s(sT0)}, {s(sT0)}, {s(sHEL)}")
            a("s_mov_b32 exec_hi, 0")
            a(f"buffer_store_dword {v(d)}, {v(t)}, {s(sWS, 4)}, {s(sT0)} offen sc1")
            a("s_mov_b32 exec_hi, -1")

    def mark_slot(self, delta, ones):
        a = self.a
        a(f"s_add_u32 {s(sT2)}, {s(sKVT)}, {delta}")
        a(f"s_mov_b64 exec, {s(sROW, 2)}")
        a(f"buffer_store_dwordx4 {v(ones, 4)}, {v(vPST)}, {s(sWS, 4)}, {s(sT2)} offen sc1", vm="mark")
        a(f"s_mov_b64 exec, {s(sCOL, 2)}")
        a(f"buffer_store_dwordx4 {v(ones, 4)}, {v(vZST)}, {s(sWS, 4)}, {s(sT2)} offen sc1", vm="mark")
        a("s_mov_b64 exec, -1")

    def sel_read(self, sel):
        a = self.a
        a(f"v_and_b32 {v(sel)}, 0x1f0, {v(vL16)}")
        a(f"v_add_u32 {v(sel)}, {L_SEL:#x}, {v(sel)}")
        a(f"ds_read_b128 {v(sel, 4)}, {v(sel)}", lg="sel")

    @staticmethod
    def cs_pack(src, dst):
        return [
            f"v_add_f32 {v(src)}, {v(src)}, {v(src + 2)}",
            f"v_add_f32 {v(src + 1)}, {v(src + 1)}, {v(src + 3)}",
            f"v_add_f32 {v(src)}, {v(src)}, {v(src + 1)}",
            f"v_cvt_pk_bf16_f32 {v(src + 1)}, {v(src)}, {v(src)}",
            f"v_and_b32 {v(src + 1)}, 0xffff0000, {v(src + 1)}",
            f"v_sub_f32 {v(src)}, {v(src)}, {v(src + 1)}",
            f"v_cvt_pk_bf16_f32 {v(dst)}, {v(src + 1)}, {v(src)}",
        ]

    def x_steps(self, B, src, X, wt=False, par=0):
        a = self.a
        t = X + 8
        st = []
        E = lambda txt: st.append(lambda: a(txt))
        xl = []
        for h in range(2):
            xl += [f"v_cvt_pk_bf16_f32 {v(X + i)}, {v(src + 2 * i)}, {v(src + 2 * i + 1)}" for i in range(4 * h, 4 * h + 4)]
            xl += [f"buffer_store_dwordx4 {v(X + 4 * h, 4)}, {v(vXST)}, {s(XS[B], 4)}, {s(sXST)} offen offset:{h * 512}"]
        st.append(lambda: self.moded(xl, tag="xst", wt=wt))
        E(f"v_pk_add_f32 {v(t, 2)}, {v(src, 2)}, {v(src + 2, 2)}")
        E(f"v_pk_mul_f32 {v(t + 2, 2)}, {v(src, 2)}, {v(src, 2)}")
        E(f"v_pk_fma_f32 {v(t + 2, 2)}, {v(src + 2, 2)}, {v(src + 2, 2)}, {v(t + 2, 2)}")
        for i in range(2, 8):
            E(f"v_pk_add_f32 {v(t, 2)}, {v(t, 2)}, {v(src + 2 * i, 2)}")
            E(f"v_pk_fma_f32 {v(t + 2, 2)}, {v(src + 2 * i, 2)}, {v(src + 2 * i, 2)}, {v(t + 2, 2)}")
        E(f"v_add_f32 {v(t)}, {v(t)}, {v(t + 1)}")
        E(f"v_add_f32 {v(t + 2)}, {v(t + 2)}, {v(t + 3)}")
        E(f"v_permlane32_swap_b32 {v(t)}, {v(t + 2)}")
        E(f"v_add_f32 {v(t)}, {v(t)}, {v(t + 2)}")
        E(f"v_mov_b32 {v(t + 1)}, {v(t)}")

        def stat():
            self.moded([f"v_permlane16_swap_b32 {v(t)}, {v(t + 1)}", f"s_mov_b64 exec, {s(sROW, 2)}", f"v_add_f32 {v(t)}, {v(t)}, {v(t + 1)}",
                        f"v_or_b32 {v(t)}, 1, {v(t)}" if par else f"v_and_b32 {v(t)}, -2, {v(t)}",
                        f"buffer_store_dword {v(t)}, {v(vSST)}, {s(sWS, 4)}, {s(sSTST)} offen"], tag="sst")
            a("s_mov_b64 exec, -1")
        st.append(stat)
        return st

    def ldx(self, B, j):
        a = self.a
        if j % 4 == 0 and j:
            a(f"s_add_u32 {s(sT3)}, {s(sXLD)}, {XB[B] + j * 1024}")
        a(f"buffer_load_dwordx4 {v(XF + 4 * j, 4)}, {v(vL16)}, {s(XS[B], 4)}, {s(sT3 if j >= 4 else sXLD)} offen offset:{(j % 4) * 1024} sc1", vm=f"x{j}")

    def probe(self, what, reg, setexec=True):
        a = self.a
        voff, srd, soff, off, _ = what
        if setexec:
            a("s_mov_b64 exec, 0xffff")
        a(f"buffer_load_dword {v(reg)}, {v(voff)}, {s(srd, 4)}, {s(soff)} offen offset:{off} sc1", vm="probe")
        if setexec:
            a("s_mov_b64 exec, -1")

    def spin_more(self, what, name):
        a = self.a
        a(f"s_branch L_over{name}")
        a.label(f"L_more{name}")
        with self.uncounted():
            self.probe(what, vPR, False)
            self.countdown()
            a("s_waitcnt vmcnt(1)")
            a(f"{what[4]}, {v(vPB)}")
            a(f"s_cbranch_vccz L_go{name}")
            a(f"s_branch L_spin{name}")
        a.label(f"L_over{name}")
        self.nook = a.ins[-1]

    def spin(self, what, name):
        a = self.a
        a("s_mov_b64 exec, 0xffff")
        a.label(f"L_spin{name}")
        self.probe(what, vPB, False)
        a("s_waitcnt vmcnt(1)")
        a(f"{what[4]}, {v(vPR)}")
        a(f"s_cbranch_vccnz L_more{name}")
        a.label(f"L_go{name}")
        a("s_mov_b64 exec, -1")
        a.vm.clear()

    def what_x(self, l):
        if self.cfg["hx"][l] == "s":
            return (vPA, XS[self.xb[l]], sT3, 3824, "v_cmp_eq_u32 vcc, -1")
        return (vPOLL, sWS, sFXP, 0, f"v_cmp_ne_u32 vcc, {s(sTG)}")

    def what_o(self, l):
        if self.cfg["ho"][l] == "s":
            return (vPA, sWS, sT3, 1008, "v_cmp_eq_u32 vcc, -1")
        return (vPOLL, sWS, sFOP, 0, f"v_cmp_ne_u32 vcc, {s(sTG)}")

    def x_probe_addr(self):
        return [f"v_and_b32 {v(vPR)}, 4, {v(vPOLL)}",
                f"v_mul_u32_u24 {v(vPR)}, 448, {v(vPR)}",
                f"v_lshlrev_b32 {v(vPA)}, 9, {v(vPOLL)}",
                f"v_sub_u32 {v(vPA)}, {v(vPA)}, {v(vPR)}"]

    def phi_a(self, acc, tmp, after=None):
        a = self.ticker()
        if self.lay == 0:
            for i in range(8):
                a(f"v_cvt_pk_bf16_f32 {v(PK + i)}, {v(acc + 2 * i)}, {v(acc + 2 * i + 1)}")
            for i in range(8):
                a(f"v_lshlrev_b32 {v(acc + 2 * i)}, 16, {v(PK + i)}")
                a(f"v_and_b32 {v(acc + 2 * i + 1)}, 0xffff0000, {v(PK + i)}")
            for i in range(8):
                a(f"v_pk_mul_f32 {v(tmp + 2 * i, 2)}, {v(acc + 2 * i, 2)}, {v(vS, 2)} op_sel_hi:[1,0]")
            for i in range(16):
                a(f"v_exp_f32_e64 {v(tmp + i)}, {v(tmp + i)} clamp")
                a(f"v_max_f32 {v(acc + i)}, {s(sDELTA)}, {v(acc + i)}")
            for h in range(2):
                for i in range(4 * h, 4 * h + 4):
                    a(f"v_pk_add_f32 {v(acc + 2 * i, 2)}, {v(acc + 2 * i, 2)}, {v(tmp + 2 * i, 2)}")
                for i in range(4 * h, 4 * h + 4):
                    a(f"v_cvt_pk_bf16_f32 {v(PK + i)}, {v(acc + 2 * i)}, {v(acc + 2 * i + 1)}")
                if after:
                    after(h)
            return
        for i in range(8):
            a(f"v_pk_mul_f32 {v(acc + 2 * i, 2)}, {v(acc + 2 * i, 2)}, {v(vS, 2)} op_sel_hi:[1,0]")
        for i in range(16):
            a(f"v_exp_f32_e64 {v(tmp + i)}, {v(acc + i)} clamp")
            a(f"v_max_f32 {v(acc + i)}, {s(sDELTA)}, {v(acc + i)}")
        for h in range(2):
            for i in range(4 * h, 4 * h + 4):
                a(f"v_pk_fma_f32 {v(acc + 2 * i, 2)}, {v(acc + 2 * i, 2)}, {s(sLN2, 2)}, {v(tmp + 2 * i, 2)}")
            for i in range(4 * h, 4 * h + 4):
                a(f"v_cvt_pk_bf16_f32 {v(PK + i)}, {v(acc + 2 * i)}, {v(acc + 2 * i + 1)}")
            if after:
                after(h)

    def logits(self, between=None):
        a = self.a
        a.wait(lg="wp")
        for i in range(6):
            a(f"v_cvt_pk_bf16_f32 {v(PK + i)}, {v(AK + 2 * i)}, {v(AK + 2 * i + 1)}")
        a(f"v_mfma_f32_32x32x16_bf16 {v(LG, 16)}, {v(PK + 8, 4)}, {v(PK, 4)}, 0")
        for i in range(6, 8):
            a(f"v_cvt_pk_bf16_f32 {v(PK + i)}, {v(AK + 2 * i)}, {v(AK + 2 * i + 1)}")
        if between:
            between()
        a(f"v_mfma_f32_32x32x16_bf16 {v(LG, 16)}, {v(PK + 12, 4)}, {v(PK + 4, 4)}, {v(LG, 16)}")

    def softmax2(self, t, isq, after=None):
        a = self.ticker()
        a(f"v_max3_f32 {v(t)}, {v(LG)}, {v(LG + 1)}, {v(LG + 2)}")
        a(f"v_min3_f32 {v(t + 1)}, {v(LG)}, {v(LG + 1)}, {v(LG + 2)}")
        for i in range(3, 15, 2):
            a(f"v_max3_f32 {v(t)}, {v(t)}, {v(LG + i)}, {v(LG + i + 1)}")
            a(f"v_min3_f32 {v(t + 1)}, {v(t + 1)}, {v(LG + i)}, {v(LG + i + 1)}")
        a(f"v_max_f32 {v(t)}, {v(t)}, {v(LG + 15)}")
        a(f"v_min_f32 {v(t + 1)}, {v(t + 1)}, {v(LG + 15)}")
        a(f"v_pk_mul_f32 {v(t, 2)}, {v(t, 2)}, {v(vS, 2)} op_sel_hi:[1,0]")
        for sg, E in ((0, AK), (1, LG)):
            for i in range(8):
                if sg == 0:
                    a(f"v_pk_fma_f32 {v(E + 2 * i, 2)}, {v(LG + 2 * i, 2)}, {v(vS, 2)}, {v(t, 2)} op_sel_hi:[1,0,0] neg_lo:[0,0,1] neg_hi:[0,0,1]")
                else:
                    a(f"v_pk_fma_f32 {v(E + 2 * i, 2)}, {v(LG + 2 * i, 2)}, {v(vS, 2)}, {v(t, 2)} op_sel:[0,0,1] op_sel_hi:[1,0,1] neg_lo:[1,0,0] neg_hi:[1,0,0]")
            for i in range(16):
                a(f"v_exp_f32 {v(E + i)}, {v(E + i)}")
            S = t + 2 + 2 * sg
            a(f"v_pk_add_f32 {v(S, 2)}, {v(E, 2)}, {v(E + 2, 2)}")
            for i in range(2, 8):
                a(f"v_pk_add_f32 {v(S, 2)}, {v(S, 2)}, {v(E + 2 * i, 2)}")
            a(f"v_add_f32 {v(S)}, {v(S)}, {v(S + 1)}")
            if not (isq and sg == 0):
                a(f"v_rcp_f32 {v(S)}, {v(S)}")
                if isq:
                    a(f"v_mul_f32 {v(t + 6)}, {f2u(1e-6):#x}, {v(t + 2)}")
                    a(f"v_mul_f32 {v(S)}, {v(S)}, {v(t + 2)}")
            for h in range(2):
                for i in range(4 * h, 4 * h + 4):
                    if not (isq and sg == 0):
                        a(f"v_pk_mul_f32 {v(E + 2 * i, 2)}, {v(E + 2 * i, 2)}, {v(S, 2)} op_sel_hi:[1,0]")
                for i in range(4 * h, 4 * h + 4):
                    a(f"v_cvt_pk_bf16_f32 {v(PK + 8 * sg + i)}, {v(E + 2 * i)}, {v(E + 2 * i + 1)}")
                if after:
                    after(2 * sg + h)

    def layer(self, l):
        a, cfg = self.a, self.cfg
        T, first, last = l & 1, l < 2, l == 3
        self.lay = l
        NJ = 2 if T == 0 else 4
        skip23 = (lambda: self.only_if(f"s_cmp_lt_u32 {s(sW)}, 2")) if T == 0 else contextlib.nullcontext
        bgn = cfg["bg"][l] if first else (0,) * 7
        self.bg = []
        if first:
            self.bg_setup(T)
            assert sum(bgn) >= len(self.bg) and bgn[0] + bgn[1] >= 8 and sum(bgn[:3]) >= 8 + cfg['np'] and sum(bgn[:5]) >= 24 and bgn[0] <= 8 and bgn[6] <= 8
        NX = cfg["nx0"]
        wx = (vPOLL, sWS, sFXP, 0, f"v_cmp_ne_u32 vcc, {s(sTG)}")
        wo_ = (vPOLL, sWS, sFOP, 0, f"v_cmp_ne_u32 vcc, {s(sTG)}")
        a.label(f"L_layer{l}")
        if l:
            self.spin(wx, f"x{l}")
        a.vm.clear()
        self.ts(f"{l}:xpoll")
        ST = LG
        CS = LG + 8
        CSA, MB = PK, PK + 2
        D = 3

        def rd(j, p):
            for u in range(2):
                a(f"ds_read_b64_tr_b16 {v(RG + (j % D) * 8 + 4 * p + 2 * u, 2)}, {v(vWRD)} offset:{p * 32768 + self.woff(j, u)}", lg=f"w{j}")

        def ldx(j):
            self.ldx(0, j)
            if l == 0:
                return
            if j == max(NX, 9):
                a(f"buffer_load_dwordx4 {v(ST, 4)}, {v(vSLD)}, {s(sWS, 4)}, {s(sSTLD)} offen sc1", vm="st")
            if j == max(NX, 9) + 2 and cfg["x_st"]:
                for i_ in range(4):
                    a(f"v_mov_b32 {v(ST + 4 + i_)}, {T}")
            elif j == max(NX, 9) + 2:
                a(f"buffer_load_dwordx4 {v(ST + 4, 4)}, {v(vSLD)}, {s(sWS, 4)}, {s(sSTLD)} offen offset:512 sc1", vm="st")
        nx1 = cfg["nx1"]
        for j in range(nx1):
            ldx(j)
        for i in self.puts_left:
            self.put_wkv(T, i, i + 1)
            if nx1 < NX and cfg["xmix"]:
                ldx(nx1)
                nx1 += 1
        a.wait(lg=0)
        a("s_barrier")
        self.cur = l
        self.ts(f"{l}:bar1")
        pre = [(j, p) for j in range(D) for p in range(2)]
        for j in range(nx1, NX):
            for _ in range(2):
                if pre:
                    rd(*pre.pop(0))
            ldx(j)
        while pre:
            rd(*pre.pop(0))
        if l:
            a(f"ds_read_b128 {v(CS, 4)}, {v(vCSR)} offset:{T * 1536}", lg="cs")
            a(f"ds_read_b128 {v(CS + 4, 4)}, {v(vCSR)} offset:{T * 1536 + 512}", lg="cs")
        t, u_ = ST, ST + 1
        stat = []
        if l > 1 and cfg["spar"]:
            CK = PK + 6
            op = "0x80" if T else "0xfe"
            stat = [f"L_sums{l}:\nv_bitop3_b32 {v(CK)}, {v(ST)}, {v(ST + 1)}, {v(ST + 2)} bitop3:{op}",
                    f"v_bitop3_b32 {v(CK)}, {v(CK)}, {v(ST + 3)}, {v(ST + 4)} bitop3:{op}\n"
                    f"v_bitop3_b32 {v(CK)}, {v(CK)}, {v(ST + 5)}, {v(ST + 6)} bitop3:{op}\n"
                    f"v_bitop3_b32 {v(CK)}, {v(CK)}, {v(ST + 7)}, 1 bitop3:{'0x80' if T else '0xa8'}\n"
                    f"v_cmp_ne_u32 vcc, {T}, {v(CK)}\n"
                    f"s_cbranch_vccnz L_sumsre{l}"]
            stat = [None, stat[0] + "\n" + stat[1]]
            with self.outofline():
                a.label(f"L_sumsre{l}")
                self.countdown()
                if cfg["ts"]:
                    a(f"s_add_u32 {s(sLAY)}, {s(sLAY)}, 1")
                for i in range(2):
                    a(f"buffer_load_dwordx4 {v(ST + 4 * i, 4)}, {v(vSLD)}, {s(sWS, 4)}, {s(sSTLD)} offen offset:{512 * i} sc1")
                a("s_waitcnt vmcnt(0)")
                a(f"s_branch L_sums{l}")
        stat += [
            f"v_add_f32 {v(ST)}, {v(ST)}, {v(ST + 2)}",
            f"v_add_f32 {v(ST + 1)}, {v(ST + 1)}, {v(ST + 3)}",
            f"v_add_f32 {v(ST + 4)}, {v(ST + 4)}, {v(ST + 6)}",
            f"v_add_f32 {v(ST + 5)}, {v(ST + 5)}, {v(ST + 7)}",
            f"v_add_f32 {v(ST)}, {v(ST)}, {v(ST + 4)}",
            f"v_add_f32 {v(ST + 1)}, {v(ST + 1)}, {v(ST + 5)}",
            f"v_add_f32 {v(t)}, {v(ST)}, {v(ST + 1)}",
            f"v_mul_f32 {v(t)}, {f2u(1 / 512):#x}, {v(t)}",
            f"v_mov_b32 {v(u_)}, {v(t)}",
            f"v_permlane32_swap_b32 {v(t)}, {v(u_)}",
            f"v_fma_f32 {v(u_)}, -{v(t)}, {v(t)}, {v(u_)}",
            f"v_max_f32 {v(u_)}, 0, {v(u_)}",
            f"v_cvt_pk_bf16_f32 {v(vM)}, -{v(t)}, -{v(t)}",
            f"v_cvt_pk_bf16_f32 {v(u_)}, {v(u_)}, {v(u_)}",
            f"v_and_b32 {v(u_)}, 0xffff0000, {v(u_)}",
            f"v_add_f32 {v(u_)}, {f2u(1e-5):#x}, {v(u_)}",
            f"v_cvt_pk_bf16_f32 {v(u_)}, {v(u_)}, {v(u_)}",
            f"v_and_b32 {v(u_)}, 0xffff0000, {v(u_)}",
            f"v_sqrt_f32 {v(u_)}, {v(u_)}",
            f"v_cndmask_b32 {v(vM)}, {v(vM)}, 0, {s(sHI, 2)}",
            f"v_cvt_pk_bf16_f32 {v(u_)}, {v(u_)}, {v(u_)}",
            f"v_and_b32 {v(u_)}, 0xffff0000, {v(u_)}",
            f"v_rcp_f32 {v(vRS)}, {v(u_)}",
            f"v_mov_b32 {v(MB)}, {v(vM)}",
            f"v_mul_f32 {v(vS)}, {LOG2E:#x}, {v(vRS)}",
            f"v_mov_b32 {v(MB + 3)}, {v(vM)}",
        ]
        js = max(NX, 9) + 3
        fill = [f"v_mov_b32 {v(MB + 1)}, 0", f"v_mov_b32 {v(MB + 2)}, 0"]
        if l == 0:
            fill += [f"v_mov_b32 {v(PK + 12 + i)}, -1" for i in range(4)]
        fill += [None] * (2 * D - len(fill)) + self.cs_pack(CS, CSA) + self.cs_pack(CS + 4, CSA + 1)
        self.bw = CS + 2
        if first:
            fill += [f"v_lshrrev_b32 {v(self.bw)}, 6, {v(vL16)}", f"v_mul_u32_u24 {v(self.bw)}, {3072 - 64}, {v(self.bw)}",
                     f"v_add_u32 {v(self.bw)}, {v(self.bw)}, {v(vL16)}"]
        fill += [None] * (2 * js - len(fill)) + stat
        jc = (len(fill) + 1) // 2 + 1
        assert jc <= 31
        if l == 0:
            fill = fill[2:6] + fill[20:23] + [f"v_mov_b32 {v(vS)}, {LOG2E:#x}"]
            assert all(fill) and str(self.bw) in fill[4]
            jc = -1
        self.bg_region(bgn[0], NX)
        for j in range(32):
            a.wait(vm=f"x{j}", lg=f"w{j}")
            self.fine(f"{l}:x{j}")
            if j == jc:
                a(f"v_mfma_f32_32x32x8_bf16 {v(AK, 16)}, {v(CSA, 2)}, {v(MB, 2)}, {v(AK, 16)}")
                a(f"v_mfma_f32_32x32x8_bf16 {v(AV, 16)}, {v(CSA, 2)}, {v(MB + 2, 2)}, {v(AV, 16)}")
            for p, acc in ((0, AK), (1, AV)):
                c = v(acc, 16) if j else "0"
                a(f"v_mfma_f32_32x32x16_bf16 {v(acc, 16)}, {v(RG + (j % D) * 8 + 4 * p, 4)}, {v(XF + 4 * j, 4)}, {c}")
                if p == 0:
                    if j + NX < 32:
                        ldx(j + NX)
                    if l == 0 and j + NX == 32:
                        self.mark_slot(KVP[1] - KVP[0], PK + 12)
                    if l == 0 and j and j == cfg["oinit"][0]:
                        for i in range(2):
                            a(f"buffer_store_dwordx4 {v(PK + 12, 4)}, {v(vOST)}, {s(sWS, 4)}, {s(sOST)} offen offset:{256 * i} sc1", vm="oinit")
                    if l == 0 and cfg["otouch"] and j == cfg["otouch"]:
                        t_ = PK + 8
                        a(f"v_bfe_u32 {v(t_)}, {v(vL16)}, 7, 1")
                        a(f"v_mul_u32_u24 {v(t_)}, {(16384 - 1024) // 8}, {v(t_)}")
                        a(f"v_add_lshl_u32 {v(t_)}, {v(t_)}, {v(vL16)}, 3")
                        a("s_mov_b64 exec, 0xffff")
                        a(f"buffer_load_dword {v(RG + 23)}, {v(t_)}, {s(sWS, 4)}, {s(sOST)} offen sc1")
                        a("s_mov_b64 exec, -1")
                    if j + NX >= 32:
                        self.bg_tick()
                    if j == 31 and not first:
                        a("s_nop 5")
                    if first and j == 30:
                        a(f"v_mov_b32 {v(vBW)}, {v(self.bw)}")
                        a(f"v_lshrrev_b32 {v(vBO)}, 7, {v(vL16)}")
                        a(f"v_mul_u32_u24 {v(vBO)}, {1024 - 128}, {v(vBO)}")
                        a(f"v_add_u32 {v(vBO)}, {v(vBO)}, {v(vL16)}")
                if p and fill and fill[0] and fill[1:] and fill[1]:
                    a(fill[0]); fill[0] = None
                if j + D < 32:
                    rd(j + D, p)
                if T == 1 and j == 29:
                    a(f"ds_read_b128 {v(PK + 8 + 4 * p, 4)}, {v(vKFR)} offset:{L_WPF - L_KVF + KS * p}", lg="wp")
                for _ in range(2 if p else 0):
                    f_ = fill.pop(0) if fill else None
                    if f_:
                        a(f_)
        self.bw = vBW
        if l == 0 and cfg["hello_late"]:
            self.hello(PK + 8, PK + 9)
        if first:
            self.slow_pf(sSO[T], 4, RG + 23)
        self.ts(f"{l}:kvgemm")
        self.dump("kv", l, list(range(AK, AK + 32)) + [vS, vRS, vM], RG)

        def v_steps(e):
            st = []
            for h in range(2):
                for i in range(4 * h, 4 * h + 4):
                    if l == 0:
                        pass
                    elif T == 0:
                        st.append(lambda i=i: e(f"v_pk_mul_f32 {v(AV + 2 * i, 2)}, {v(AV + 2 * i, 2)}, {v(vS, 2)} op_sel:[0,1]"))
                    else:
                        st.append(lambda i=i: e(f"v_mul_f32 {v(AV + 2 * i)}, {v(AV + 2 * i)}, {v(vRS)}"))
                        st.append(lambda i=i: e(f"v_mul_f32 {v(AV + 2 * i + 1)}, {v(AV + 2 * i + 1)}, {v(vRS)}"))
                for i in range(4 * h, 4 * h + 4):
                    st.append(lambda i=i: e(f"v_cvt_pk_bf16_f32 {v(AV + i)}, {v(AV + 2 * i)}, {v(AV + 2 * i + 1)}"))
                st.append(lambda h=h: a(f"ds_write_b128 {v(vSTW)}, {v(AV + 4 * h, 4)} offset:{0x4000 + 128 * h}"))
            return st

        def stage(k):
            a(f"ds_write_b128 {v(vSTW)}, {v(PK + 4 * k, 4)} offset:{(k >> 1) * 8192 + 128 * (k & 1)}")
        vst = v_steps(self.ticker())
        if T == 0:
            self.bg_region(bgn[1], 72)
            self.phi_a(AK, LG, stage)
            for st in vst:
                st()
        else:
            self.bg_region(bgn[1], 125)
            self.logits(lambda: [vst.pop(0)() for _ in range(4)])
            for st in vst:
                st()
            self.softmax2(RG, False, stage)
        self.dump("pk", l, list(range(PK, PK + 16)) + list(range(AV, AV + 8)), RG)
        ONE, DK, DZ, PB, QA = AK, AV + 8, AV + 12, AV + 4, AV + 3
        for i in range(4):
            a(f"v_mov_b32 {v(ONE + i)}, 0x3f803f80")
        D = 5 if first else 6

        def rq(j):
            for u in range(2 if first or j == 0 or j > cfg["x_qskip"] else 0):
                a(f"ds_read_b64_tr_b16 {v(RG + (j % D) * 4 + 2 * u, 2)}, {v(QA)} offset:{self.woff(j, u)}", lg=f"q{j}")
        a.wait(vm="mark", lg=0)
        a("s_barrier")
        a(f"v_add_u32 {v(QA)}, {L_WQ[T]:#x}, {v(vWRD)}")
        self.ts(f"{l}:bar2")
        early = False
        w01 = (lambda k: self.waves01(((4, 5), (6, 9), (7, 8), (10, 11))[l + k])) if T == 0 else (lambda k: contextlib.nullcontext())
        with w01(0):
            def rp(st, k):
                for u in range(2):
                    a(f"ds_read_b64_tr_b16 {v((LG, PK)[k] + 4 * st + 2 * u, 2)}, {v((vSTR, vSTR2)[k])} offset:{st * 1024 + u * 512}", lg=f"p{st}")
            PD = cfg["pdepth"]
            for st in range(PD):
                rp(st, 0); rp(st, 1)
            for st in range(4):
                a.wait(lg=f"p{st}")
                mm = [f"v_mfma_f32_16x16x32_bf16 {v(DK, 4)}, {v(LG + 4 * st, 4)}, {v(PK + 4 * st, 4)}, {v(DK, 4) if st else 0}",
                      f"v_mfma_f32_16x16x32_bf16 {v(DZ, 4)}, {v(LG + 4 * st, 4)}, {v(ONE, 4)}, {v(DZ, 4) if st else 0}"]
                a(mm[cfg["zst1"]])
                if st + PD < 4:
                    rp(st + PD, 0)
                a(mm[1 - cfg["zst1"]])
                if st + PD < 4:
                    rp(st + PD, 1)
            self.fine(f"{l}:p_mfma")
            if cfg["zst1"]:
                a(f"s_mov_b64 exec, {s(sCOL, 2)}")
                a(f"v_min_u32 {v(DZ)}, -2, {v(DZ)}")
                a(f"buffer_store_dwordx4 {v(DZ, 4)}, {v(vZST)}, {s(sWS, 4)}, {s(sKVT)} offen sc1")
                a("s_mov_b64 exec, -1")
            for i in range(2):
                a(f"v_cvt_pk_bf16_f32 {v(PB + i)}, {v(DK + 2 * i)}, {v(DK + 2 * i + 1)}")
            for i in range(2):
                a(f"v_cvt_pk_bf16_f32 {v(PB + 2 + i)}, {v(DK + 2 * i)}, {v(DK + 2 * i + 1)}")
            if not cfg["zst1"]:
                a(f"v_min_u32 {v(DZ)}, -2, {v(DZ)}")
            for i in range(2):
                a(f"v_permlane16_swap_b32 {v(PB + i)}, {v(PB + 2 + i)}")
            a(f"v_min_u32 {v(PB)}, -2, {v(PB)}")
            a(f"s_mov_b64 exec, {s(sROW, 2)}")
            a(f"buffer_store_dwordx4 {v(PB, 4)}, {v(vPST)}, {s(sWS, 4)}, {s(sKVT)} offen sc1")
            if not cfg["zst1"]:
                a(f"s_mov_b64 exec, {s(sCOL, 2)}")
                a(f"buffer_store_dwordx4 {v(DZ, 4)}, {v(vZST)}, {s(sWS, 4)}, {s(sKVT)} offen sc1")
            if T:
                a("s_mov_b64 exec, -1")
        if cfg["jit"] and l < 3:
            with self.only_if(f"s_cmp_eq_u32 {s(sW)}, 3"):
                self.code_pf(f"L_layer{l + 1}", f"L_layer{l + 2}" if l < 2 else "L_end", AV + 8)
        self.ts(f"{l}:publish")
        if l == 0:
            a(f"v_lshlrev_b32 {v(vHL)}, 5, {v(vPOLL)}")
            a(f"s_or_b32 {s(sTG)}, {s(sTAG)}, 0xf0")
            a(f"v_mov_b32 {v(AV + 9)}, {s(sTG)}")
            with skip23():
                a("s_mov_b64 exec, 0xffff")
                a(f"buffer_load_dword {v(AV + 9)}, {v(vHL)}, {s(sWS, 4)}, {s(sHEL)} offen sc1")
                a("s_mov_b64 exec, -1")
            self.slow_pf(sSW[1], 12, AV + 10)
            assert cfg["slowpf"]
            a.vm[-1] = "hl"
        if first:
            if T == 0:
                n = len(a.vm) - 1 - max(i for i, t_ in enumerate(a.vm) if t_ == "wq")
                with self.only_if(f"s_cmp_ge_u32 {s(sW)}, 2"):
                    a.wait(vm="wq")
                a(f"s_waitcnt vmcnt({n + 3})")
            else:
                a.wait(vm="wq")
            self.fine(f"{l}:wq")
            a("s_barrier")
            self.fine(f"{l}:barx")
        CS, CSA, MB, M1 = LG + 4, LG + 8, LG + 10, LG + 12
        PL, SEL, DR = 0, 36, 40

        def partial_load(i):
            if not cfg["zlast"]:
                i = (i + 8) % 9
            a(f"s_add_u32 {s(sT1)}, {s(sKVT)}, {i * 65536}")
            a(f"buffer_load_dwordx4 {v(PL + 4 * i, 4)}, {v(vL16)}, {s(sWS, 4)}, {s(sT1)} offen sc1", vm="pl")
        if not early:
            for j in range(D):
                rq(j)
        cs_read = lambda: a(f"ds_read_b128 {v(CS, 4)}, {v(vCSR)} offset:{T * 1536 + 1024}", lg="cs")
        fill = []
        if first:
            SQ, DQ, RQ, TQ = PK, PK + 4, PK + 8, LG
            self.sel_read(SQ)
            a(f"s_add_u32 {s(sT2)}, {s(sW13)}, {L_WQ[T]}")
            a(f"v_add_u32 {v(TQ + 2)}, {s(sT2)}, {v(vL16)}")
            rc = lambda i: a(f"ds_read_b128 {v(RQ + 4 * (i & 1), 4)}, {v(TQ + 2)} offset:{i * 1024}", lg=f"c{i}")
            rc(0); rc(1)
            addr, fin = self.cs_q_fin(T, DQ, TQ)

            def step(i):
                a.wait(lg=f"c{i}")
                a(f"v_mfma_f32_16x16x32_bf16 {v(DQ, 4)}, {v(SQ, 4)}, {v(RQ + 4 * (i & 1), 4)}, {v(DQ, 4) if i else 0}")
                if i + 2 < 8:
                    rc(i + 2)
                if addr:
                    a(addr.pop(0))

            def mark():
                with skip23():
                    self.mark_slot(KVP[l + 2] - KVP[l], M1)

            def sync():
                a.wait(lg="csw")
                a("s_barrier")
                cs_read()
            fill += [(lambda i=i: step(i)) for i in range(8)]
            fill += [f"v_mov_b32 {v(M1)}, -1\nv_mov_b32 {v(M1 + 1)}, -1\nv_mov_b32 {v(M1 + 2)}, -1\nv_mov_b32 {v(M1 + 3)}, -1", mark]
            fill += fin
            if l:
                fill += [None, None, sync, None, None, lambda: a.wait(lg="cs")]
        else:
            cs_read()
            fill += [None] * D
        pk = self.cs_pack(CS, CSA) + [f"v_mov_b32 {v(CSA + 1)}, 0", f"v_mov_b32 {v(MB)}, {v(vM)}", f"v_mov_b32 {v(MB + 1)}, 0"]
        if l:
            fill += [pk[i] + "\n" + pk[i + 1] for i in range(0, 10, 2)]
        jc = len(fill) + 1 if l else -1
        assert jc <= 31
        PS, PG = cfg["pl_step"][l], cfg["pl_gap"][l]
        assert PS >= 10
        G = 3 if T == 0 else 1

        def pl_group(k):
            with skip23():
                for i in range(G * k, G * k + G):
                    partial_load(i)
        pl_at = [PS + G * PG * k for k in range(9 // G)]
        if first:
            pl_at = [min(x, 31) for x in pl_at]
        self.bg_region(bgn[2], min(PS, 32))
        NP = cfg["np"]
        puts = list(range(NP))
        nq = 0 if first else min(NP, cfg["qputs"][T])
        put_at = [1 + (k * 30) // nq for k in range(nq)]
        for j in range(32):
            a.wait(lg=f"q{j}")
            if j == jc:
                a(f"v_mfma_f32_32x32x8_bf16 {v(AK, 16)}, {v(CSA, 2)}, {v(MB, 2)}, {v(AK, 16)}")
            if first or j == 0 or j > cfg["x_qskip"]:
                a(f"v_mfma_f32_32x32x16_bf16 {v(AK, 16)}, {v(RG + (j % D) * 4, 4)}, {v(XF + 4 * j, 4)}, {v(AK, 16) if j else 0}")
            self.bg_tick()
            if l == 0 and j == cfg["oinit"][1]:
                t_ = RG + 23
                a(f"v_bfe_u32 {v(t_)}, {v(vL16)}, 7, 1")
                a(f"v_mul_u32_u24 {v(t_)}, {(16384 - 1024) // 8}, {v(t_)}")
                a(f"v_add_lshl_u32 {v(t_)}, {v(t_)}, {v(vL16)}, 3")
                a("s_mov_b64 exec, 0xffff")
                a(f"buffer_load_dword a255, {v(t_)}, {s(sWS, 4)}, {s(sOST)} offen sc1")
                a("s_mov_b64 exec, -1")
            if l == 0 and j == pl_at[0] - 1:
                a.wait(vm="hl")
                a(f"v_cmp_ne_u32 vcc, {s(sTG)}, {v(AV + 9)}")
                a("s_cbranch_vccnz L_hello")
                a.label("L_hello_ok")
                with self.outofline():
                    a.label("L_hello")
                    self.poll(vHL, sHEL, AV + 9)
                    a("s_branch L_hello_ok")
            if j == cfg["ppf"][l]:
                assert l and j < pl_at[0]
                with skip23():
                    a(f"v_lshrrev_b32 {v(AV + 11)}, 7, {v(vL16)}")
                    a(f"v_mul_u32_u24 {v(AV + 11)}, {(65536 - 1024) // 8}, {v(AV + 11)}")
                    a(f"v_add_lshl_u32 {v(AV + 11)}, {v(AV + 11)}, {v(vL16)}, 3")
                    a(f"buffer_load_dword {v(AV + 11)}, {v(AV + 11)}, {s(sWS, 4)}, {s(sKVT)} offen sc1")
            for k, x in enumerate(pl_at):
                if x == j:
                    pl_group(k)
            if j + D < 32:
                rq(j + D)
            if j in put_at:
                self.put_wo(T, puts.pop(0))
            if j == 27:
                self.sel_read(SEL)
            if T == 1 and j in (28, 29):
                a(f"ds_read_b128 {v(PK + 8 + 4 * (j - 28), 4)}, {v(vKFR)} offset:{L_WPF - L_KVF + KS * (j - 28)}", lg="wp")
            if fill:
                f_ = fill.pop(0)
                if callable(f_):
                    f_()
                elif f_:
                    a(f_)
        self.ts(f"{l}:qgemm")
        self.dump("q", l, list(range(AK, AK + 16)), RG)
        EPS = RG + 6
        if first:
            if T == 0:
                n = len(a.vm) - 1 - max(i for i, t_ in enumerate(a.vm) if t_ == f"wo{NP - 1}")
                a(f"s_waitcnt vmcnt({n + 9})")
                with self.only_if(f"s_cmp_ge_u32 {s(sW)}, 2"):
                    a.wait(vm=f"wo{NP - 1}")
            else:
                a.wait(vm=f"wo{NP - 1}")
        nbg3 = min(bgn[3], len(self.bg))
        slots = 56 if T == 0 else 100
        self.bg_region(bgn[3], slots)
        if not first:
            late = [k for k, x in enumerate(pl_at) if x >= 32]
            self.bg = [(lambda k=k: pl_group(k)) for k in late]
            self.bg_at = [min(slots - 1, (pl_at[k] - 32) * 6) for k in late]
        self.side = [(lambda i=i: self.put_wo(T, i)) for i in puts]
        self.side_every = cfg["wo_every"][T]
        pop = lambda: self.side.pop(0)() if self.side else None
        pop()
        if T == 0:
            self.phi_a(AK, LG)
            a(f"v_mov_b32 {v(EPS)}, {f2u(1e-6) if l else 0:#x}")
            if l == 0:
                a(f"s_mov_b32 {s(sDELTA)}, {DELTA:#x}")
                a(f"v_lshrrev_b32 {v(LG)}, 9, {v(vL16)}")
                a(f"v_mul_u32_u24 {v(LG)}, {2048 - 512}, {v(LG)}")
                a(f"v_add_u32 {v(vWRD)}, {v(vWRD)}, {v(LG)}")
        else:
            self.logits(pop)
            pop()
            self.softmax2(RG, True)
        while self.side:
            pop()
        self.dump("pq", l, list(range(PK, PK + 16)), AV)
        self.ts(f"{l}:phiq")
        WR, DW = 64, 7
        WA = [vWOR, RG + 16, RG + 17, RG + 18]
        for t_ in range(1, 4):
            a(f"v_xor_b32 {v(WA[t_])}, {32 * t_}, {v(vWOR)}")
        a(f"s_add_u32 {s(sTG)}, {s(sTAG)}, {16 * (l + 1)}")
        a(f"v_mov_b32 {v(RG + 19)}, {s(sTG)}")
        a.wait(lg="sel")
        self.fine(f"{l}:r_wait")
        with w01(1):
            a.label(f"L_chk{l}")
            m, Z = 44, PL + 32
            gaps = [[f"v_max3_u32 {v(m)}, {v(Z)}, {v(PL)}, {v(PL + 4)}", f"v_permlane16_swap_b32 {v(Z)}, {v(Z + 1)}"],
                    [f"v_permlane16_swap_b32 {v(Z + 2)}, {v(Z + 3)}"],
                    [f"v_add_f32 {v(Z)}, {v(Z)}, {v(Z + 1)}", f"v_add_f32 {v(Z + 2)}, {v(Z + 2)}, {v(Z + 3)}"],
                    [f"v_max3_u32 {v(m)}, {v(m)}, {v(PL + 8)}, {v(PL + 12)}", f"v_permlane32_swap_b32 {v(Z)}, {v(Z + 2)}"],
                    [f"v_add_f32 {v(Z)}, {v(Z)}, {v(Z + 2)}", f"v_max3_u32 {v(m)}, {v(m)}, {v(PL + 16)}, {v(PL + 20)}"],
                    [f"v_add_f32 {v(Z)}, {v(Z)}, {v(Z)} row_ror:4"],
                    [f"v_add_f32 {v(Z)}, {v(Z)}, {v(Z)} row_ror:8", f"v_max3_u32 {v(m)}, {v(m)}, {v(PL + 24)}, {v(PL + 28)}"],
                    [f"v_cmp_eq_u32 vcc, -1, {v(m)}", f"v_cvt_pk_bf16_f32 {v(Z)}, {v(Z)}, {v(Z)}", f"ds_write_b16 {v(vZW)}, {v(Z)}"]]
            for i in range(8):
                if cfg["zlast"]:
                    if i == 0:
                        a(f"s_waitcnt vmcnt({nbg3})")
                elif i % 2 == 0:
                    a(f"s_waitcnt vmcnt({nbg3 + 6 - i})")
                a(f"v_mfma_f32_16x16x32_bf16 {v(DR, 4)}, {v(SEL, 4)}, {v(PL + 4 * i, 4)}, {v(DR, 4) if i else 0}")
                for g_ in gaps[i]:
                    a(g_)
            a(f"s_cbranch_vccnz L_again{l}")
            with self.outofline():
                a.label(f"L_again{l}")
                self.countdown()
                if cfg["ts"]:
                    a(f"s_add_u32 {s(sTSI)}, {s(sTSI)}, {1 << (8 * l)}")
                for i in range(9):
                    partial_load(i)
                if nbg3:
                    a("s_waitcnt vmcnt(0)")
                a(f"s_branch L_chk{l}")
            for i in range(2):
                a(f"v_cvt_pk_bf16_f32 {v(DR + i)}, {v(DR + 2 * i)}, {v(DR + 2 * i + 1)}")
            a(f"ds_write_b64 {v(vKFW)}, {v(DR, 2)}")
        if T == 0:
            a(f"s_waitcnt vmcnt({nbg3})")
        self.fine(f"{l}:r_done")
        self.bg_now(bgn[4])
        a.wait(lg=0)
        a("s_barrier")
        self.ts(f"{l}:bar3")
        KF, ZF, DEN, O = 0, 16, RG + 6, LG
        def rk(j):
            a(f"ds_read_b128 {v(KF + 4 * j, 4)}, {v(vKFR)} offset:{KS * j}", lg=f"kf{j}")
        def rz(j):
            a(f"ds_read_b128 {v(ZF + 4 * j, 4)}, {v(vZR)} offset:{(j >> 1) * 64 + (j & 1) * 16}", lg=f"zf{j}")

        def dots(j):
            for d in range(4):
                a(f"v_dot2c_f32_bf16 {v(DEN)}, {v(ZF + 4 * j + d)}, {v(PK + 4 * j + d)}")

        def num(j):
            a.wait(lg=f"kf{j}")
            a(f"v_mfma_f32_32x32x16_bf16 {v(AV, 16)}, {v(KF + 4 * j, 4)}, {v(PK + 4 * j, 4)}, {v(AV, 16) if j else 0}")

        def rw1(i, t_, u):
            a(f"ds_read_b64_tr_b16 {v(WR + (i % DW) * 16 + 4 * t_ + 2 * u, 2)}, {v(WA[t_])} offset:{t_ * 16384 + i * 1024 + u * 512}", lg=f"wo{i}")
        rest = [(i, t_, u) for i in range(DW) for t_ in range(4) for u in range(2)]
        if cfg["nmode"] == 0:
            for j in range(NJ):
                rz(j)
            if NJ == 2:
                rk(0); rk(1)
            for j in range(NJ):
                if j % 2 == 0:
                    a.wait(lg=f"zf{j + 1}")
                dots(j)
                if NJ == 4:
                    rk(j)
            self.fine(f"{l}:n_dot")
            for j in range(NJ):
                num(j)
        else:
            q_ = [(rk, j) for j in range(NJ)] + [(rz, j) for j in range(NJ)]
            for f_, j in q_[:3]:
                f_(j)
            del q_[:3]
            for j in range(NJ):
                num(j)
                for f_, k in q_[:2]:
                    f_(k)
                del q_[:2]
            self.fine(f"{l}:n_dot")
            a.wait(lg=0)
            for j in range(NJ):
                dots(j)
        if l == 0:
            if cfg["r_num"]:
                for i in range(8):
                    a(f"v_cvt_pk_bf16_f32 {v(O + i)}, {v(AV + 2 * i)}, {v(AV + 2 * i + 1)}")
            a(f"v_cvt_pk_bf16_f32 {v(DEN)}, {v(DEN)}, {v(DEN)}")
            a(f"v_and_b32 {v(DEN)}, 0xffff0000, {v(DEN)}")
            a(f"v_add_f32 {v(DEN)}, {f2u(1e-6):#x}, {v(DEN)}")
            a(f"v_cvt_pk_bf16_f32 {v(DEN)}, {v(DEN)}, {v(DEN)}")
            a(f"v_and_b32 {v(DEN)}, 0xffff0000, {v(DEN)}")
        a(f"v_rcp_f32 {v(DEN)}, {v(DEN)}")
        if l == 0 and cfg["r_num"]:
            for i in range(8):
                a(f"v_lshlrev_b32 {v(AV + 2 * i)}, 16, {v(O + i)}")
                a(f"v_and_b32 {v(AV + 2 * i + 1)}, 0xffff0000, {v(O + i)}")
        self.fine(f"{l}:n_mfma")
        ol = []
        for h in range(2):
            ol += [f"v_pk_mul_f32 {v(AV + 2 * i, 2)}, {v(AV + 2 * i, 2)}, {v(DEN, 2)} op_sel_hi:[1,0]" for i in range(4 * h, 4 * h + 4)]
            ol += [f"v_cvt_pk_bf16_f32 {v(O + i)}, {v(AV + 2 * i)}, {v(AV + 2 * i + 1)}" for i in range(4 * h, 4 * h + 4)]
            ol += [f"buffer_store_dwordx4 {v(O + 4 * h, 4)}, {v(vOST)}, {s(sWS, 4)}, {s(sOST)} offen offset:{256 * h}"]
        self.moded(ol, tag="ost", wt=l == 0 and not cfg["otouch"] and not cfg["oinit"][0])
        self.dump("o", l, list(range(O, O + 8)), PK)
        self.ts(f"{l}:ostore")
        self.bg_now(bgn[5])
        if l == 0:
            for t_ in self.tile_addr(PK, PK + 3)[:10]:
                a(t_)
            a.wait(vm="xr")
            for i in range(2):
                a(f"ds_write_b128 {v(PK + 1)}, {v(XR + 4 * i, 4)} offset:{1152 * i}")
            for i in range(2):
                a(f"ds_read2_b64 {v(4 * i, 4)}, {v(PK)} offset0:{8 * i} offset1:{8 * i + 4}")
            a.wait(lg=0)
            for i in range(8):
                a(f"v_lshlrev_b32 {v(XR + 2 * i)}, 16, {v(i)}")
                a(f"v_and_b32 {v(XR + 2 * i + 1)}, 0xffff0000, {v(i)}")
        NO = cfg["no0"]

        def ldo(i):
            if i % 4 == 0 and i:
                a(f"s_add_u32 {s(sT3)}, {s(sOLD)}, {i * 1024}")
            a(f"buffer_load_dwordx4 {v(4 * i, 4)}, {v(vL16)}, {s(sWS, 4)}, {s(sT3 if i >= 4 else sOLD)} offen offset:{(i % 4) * 1024} sc1", vm=f"o{i}")
        late = list(range(NP, 16))

        def window(np_, nr):
            for _ in range(min(len(late), np_)):
                self.put_wo(T, late.pop(0))
            for _ in range(min(len(rest), nr)):
                rw1(*rest.pop(0))
        ow = cfg["owin"][first]
        na = "o" in cfg["x_noack"] and l > 0
        if na:
            ow = cfg["owin2"]
        window(*ow[0])
        self.fine(f"{l}:o_pre")
        self.flag(sFOS, RG + 19, "none" if na else "ost")
        self.fine(f"{l}:oflag")
        self.spin_more(wo_, f"o{l}")
        if last and cfg["fin_lds"]:
            for t_ in self.tile_addr(PK, PK + 3):
                a(t_)
        window(*ow[1])
        self.probe(wo_, vPR)
        window(*ow[2])
        self.spin(wo_, f"o{l}")
        self.ts(f"{l}:opoll")
        for i in range(4):
            ldo(i)
        window(16, 0)
        if NP < 16:
            a.wait(lg="putwo")
            a("s_barrier")
        per = -(-len(rest) // (NO - 4))
        for i in range(4, NO):
            window(0, per)
            ldo(i)
        assert not rest
        self.fine(f"{l}:o_iss")
        todo = [(i, t_, u) for i in range(DW, 16) for t_ in range(4) for u in range(2)]
        done = 0
        self.bg_region(bgn[6], NO)
        ry = l == 0 and cfg["r_y"]
        for i in range(16):
            for t_ in range(4):
                if t_ == 0:
                    a.wait(vm=f"o{i}", lg=f"wo{i}")
                    self.fine(f"{l}:o{i}")
                a(f"v_mfma_f32_16x16x32_bf16 {v(XR + 4 * t_, 4)}, {v(WR + (i % DW) * 16 + 4 * t_, 4)}, {v(4 * i, 4)}, {v(XR + 4 * t_, 4)}".replace(v(XR + 4 * t_, 4), v(LG + 4 * t_, 4) if ry else v(XR + 4 * t_, 4)).rsplit(", ", 1)[0] + ", " + (("0" if i == 0 else v(LG + 4 * t_, 4)) if ry else v(XR + 4 * t_, 4)))
                if t_ == 0:
                    if i + NO < 16:
                        ldo(i + NO)
                    else:
                        self.bg_tick()
                for _ in range(cfg["ord"][i + NO >= 16][t_]):
                    if done < len(todo) and done // 2 <= 4 * i + t_:
                        assert todo[done][0] > i
                        rw1(*todo[done]); done += 1
        assert done == len(todo) and not self.bg
        self.ts(f"{l}:ogemm")
        if last:
            return
        if ry:
            for i in range(8):
                a(f"v_cvt_pk_bf16_f32 {v(AV + i)}, {v(LG + 2 * i)}, {v(LG + 2 * i + 1)}")
            for i in range(8):
                a(f"v_lshlrev_b32 {v(LG + 2 * i)}, 16, {v(AV + i)}")
                a(f"v_and_b32 {v(LG + 2 * i + 1)}, 0xffff0000, {v(AV + i)}")
            for i in range(8):
                a(f"v_pk_add_f32 {v(XR + 2 * i, 2)}, {v(XR + 2 * i, 2)}, {v(LG + 2 * i, 2)}")
        self.dump("x", l, list(range(XR, XR + 16)), PK)
        N = 1 - T
        na = "x" in cfg["x_noack"] and l > 0
        for k_, st in enumerate(self.x_steps(0, XR, AK, par=N)):
            st()
            if na and k_ == 0:
                self.flag(sFXS, RG + 19, "xst" if "t" in cfg["x_noack"] else "none")
                if "t" in cfg["x_noack"]:
                    with self.only_if(f"s_bitcmp1_b32 {s(sID)}, {3 + l}"):
                        a("s_sleep 60")
        self.fine(f"{l}:xst")
        a("s_barrier")
        self.fine(f"{l}:bar5")
        if l == 0:
            self.sel_read(AV)
        n1, n2 = cfg["xputs2" if na else "xputs"]
        self.put_wkv(N, 0, n1)
        a(f"s_add_u32 {s(sKVT)}, {s(sKVT)}, {KVP[l + 1] - KVP[l]}")
        if not na:
            self.flag(sFXS, RG + 19, "xst" if cfg["spar"] and l else "sst")
        self.ts(f"{l}:xflag")
        self.spin_more(wx, f"x{l + 1}")
        if l == 0:
            a.wait(lg="sel")
        for i in range(n1, n2):
            if i == n1 + cfg["xprobe_at2" if na else "xprobe_at"]:
                self.probe(wx, vPR)
            self.put_wkv(N, i, i + 1)
            if l == 0:
                for k in range((i - n1) * 16 // (n2 - n1), (i - n1 + 1) * 16 // (n2 - n1)):
                    self.cs_kv_step(1, k, AV, AV + 4)
        if l == 0:
            self.cs_kv_fin(1, AV + 4, AV + 8)
        self.puts_left = list(range(n2, 16))

    def prologue(self):
        cfg = self.cfg
        a = self.a
        a(f"s_cmp_ge_u32 {s(sID)}, 256")
        a("s_cbranch_scc1 L_end")
        self.ts("start")
        a(f"s_load_dwordx16 {s(4, 16)}, s[0:1], 0")
        a(f"s_load_dwordx4 {s(20, 4)}, s[0:1], 64")
        a(f"s_getpc_b64 {s(sSAVE, 2)}")
        a.label("L_pc")
        NCL = cfg["codepf"]
        a(f"s_bfe_u32 {s(sT0)}, {s(sID)}, {3 | (3 << 16)}")
        a(f"s_mul_i32 {s(sT0)}, {s(sT0)}, {NCL}")
        a(f"v_min_u32 v1, {NCL - 1}, v0")
        a(f"v_add_u32 v1, {s(sT0)}, v1")
        a("v_lshlrev_b32 v1, 7, v1")
        if cfg["pads"]:
            a("v_add_u32 v1, L_page0-L_pc, v1")
            a("v_lshlrev_b32 v2, 12, v0")
            a("v_add_u32 v2, L_page0-L_pc-64*4096, v2")
            a("v_cmp_le_u32 vcc, 64, v0")
            a("v_cndmask_b32 v1, v1, v2, vcc")
        a(f"v_min_u32 v1, L_codeend-L_pc, v1")
        a(f"global_load_dword v2, v1, {s(sSAVE, 2)}")
        if cfg["ts"]:
            a(f"s_mov_b32 {s(sTSI)}, 0")
            a(f"s_mov_b32 {s(sLAY)}, 0")
            a(f"v_mov_b32 {v(vTS)}, 0")
            a(f"s_memrealtime s[78:79]")
        L = 3
        a(f"v_lshrrev_b32 v1, 6, v0")
        a(f"v_and_b32 {v(L)}, 63, v0")
        a(f"v_readfirstlane_b32 {s(sW)}, v1")
        a(f"v_lshlrev_b32 {v(vL16)}, 4, {v(L)}")
        a(f"s_bfe_u32 {s(sC)}, {s(sID)}, {3 | (4 << 16)}")
        a(f"s_lshr_b32 {s(sT0)}, {s(sID)}, 7")
        a(f"s_and_b32 {s(sR)}, {s(sID)}, 7")
        a(f"s_lshl1_add_u32 {s(sR)}, {s(sR)}, {s(sT0)}")
        sBP, sSUB, sCG, sB = 99, 100, 101, sCNT
        a(f"s_lshr_b32 {s(sT0)}, {s(sC)}, 3")
        a(f"s_lshr_b32 {s(sT3)}, {s(sW)}, 1")
        a(f"s_lshl1_add_u32 {s(sT0)}, {s(sT0)}, {s(sT3)}")
        a(f"s_lshl2_add_u32 {s(sBP)}, {s(sR)}, {s(sT0)}")
        a(f"s_lshl2_add_u32 {s(sB)}, {s(sR)}, {s(sW)}")
        a(f"s_and_b32 {s(sSUB)}, {s(sW)}, 1")
        a(f"s_and_b32 {s(sCG)}, {s(sC)}, 7")
        a(f"s_lshl1_add_u32 {s(sT0)}, {s(sBP)}, {s(sSUB)}")
        a(f"s_lshl_b32 {s(sOLD)}, {s(sT0)}, 14")
        a(f"s_lshl_b32 {s(sT0)}, {s(sCG)}, 7")
        a(f"s_add_u32 {s(sFIN)}, {s(sOLD)}, {s(sT0)}")
        a(f"s_lshl3_add_u32 {s(sT0)}, {s(sBP)}, {s(sCG)}")
        a(f"s_lshl4_add_u32 {s(sT0)}, {s(sT0)}, {s(sSUB)}")
        a(f"s_lshl_b32 {s(sXST)}, {s(sT0)}, 8")
        a(f"s_lshl4_add_u32 {s(sT1)}, {s(sR)}, {s(sC)}")
        a(f"s_lshl_b32 {s(sT1)}, {s(sT1)}, 5")
        a(f"s_add_u32 {s(sT1)}, {s(sT1)}, {s(sW)}")
        a(f"s_lshl_b32 {s(sT1)}, {s(sT1)}, 8")
        a(f"v_and_b32 v52, 7, {v(L)}")
        a(f"v_lshrrev_b32 v53, 3, {v(L)}")
        a(f"v_lshlrev_b32 v4, 4, v53")
        a(f"v_lshl_add_u32 v4, v52, 10, v4")
        a(f"s_lshl_b32 {s(sT0)}, {s(sC)}, 6")
        a(f"s_mul_i32 {s(sWOFF)}, {s(sT3)}, {16 * 3072}")
        a(f"s_add_u32 {s(sWOFF)}, {s(sWOFF)}, {s(sT0)}")
        a(f"s_lshl_b32 {s(sT0)}, {s(sSUB)}, 10")
        a(f"s_add_u32 {s(sWOFF)}, {s(sWOFF)}, {s(sT0)}")
        a(f"s_add_u32 {s(sWOFF)}, {s(sWOFF)}, 1024")
        self.w_voff(5)
        a(f"s_mov_b32 {s(sTMP + 3)}, 0x20000")
        a(f"s_mov_b32 {s(sSW[0] + 3)}, 0x20000")
        a(f"s_mov_b32 {s(sTMP + 2)}, 0x200000")
        a(f"s_mov_b32 {s(sSW[0] + 2)}, {512 * 3072}")
        a(f"s_lshr_b32 {s(sT2)}, {s(sID)}, 3")
        a(f"s_lshl_b32 {s(sSTLD)}, {s(sB)}, 11")
        a(f"s_lshl_b32 {s(sT0)}, {s(sB)}, 7")
        a(f"s_add_u32 {s(sFXP)}, {s(sT0)}, {FLAGX}")
        a(f"s_add_u32 {s(sFOS)}, {s(sT0)}, {FLAGO}")
        a(f"s_lshl_b32 {s(sHEL)}, {s(sC)}, 7")
        a(f"s_add_u32 {s(sHEL)}, {s(sHEL)}, {s(sSTLD)}")
        a("s_waitcnt lgkmcnt(0)")
        self.ts("kernarg")
        a(f"s_mov_b64 {s(sTMP, 2)}, {s(sPX, 2)}")
        a(f"s_mov_b64 {s(sSW[0], 2)}, {s(sPWA, 2)}")
        for i in range(2):
            a(f"buffer_load_dwordx4 {v(8 + 4 * i, 4)}, v4, {s(sTMP, 4)}, {s(sT1)} offen offset:{128 * i}", vm="x0")
        a(f"s_lshl2_add_u32 {s(sPF)}, {s(sT2)}, {s(sW)}")
        a(f"s_add_u32 {s(sPBX)}, {s(sPWS)}, {s(sHEL)}")
        a(f"s_addc_u32 {s(sPBX + 1)}, {s(sPWS + 1)}, 0")

        def scalar_loads():
            a(f"s_load_dword {s(sEP)}, {s(sPWS, 2)}, 0")
            if "o" in cfg["tlb"]:
                a(f"s_load_dword {s(sTG)}, {s(sPOUT, 2)}, 0")
            if "p" in cfg["tlb"]:
                a(f"s_load_dword {s(sTG)}, {s(sPPHI, 2)}, 0")
            if "w" in cfg["tlb"]:
                for off in (0x200000, 0x400000):
                    a(f"s_mov_b32 {s(sT0)}, {off:#x}")
                    a(f"s_load_dword {s(sTG)}, {s(sPWS, 2)}, {s(sT0)}")
            if cfg["touch"]:
                a(f"s_load_dword {s(sTG)}, {s(sPWS, 2)}, {s(sFXP)}")
                a(f"s_load_dword {s(sTG)}, {s(sPWS, 2)}, {s(sFOS)}")
                a(f"s_load_dword {s(sTG)}, {s(sPBX, 2)}, {STATS[0]}")
                a(f"s_load_dword {s(sTG)}, {s(sPBX, 2)}, {STATS[0] + 64}")
        if cfg["sl_first"]:
            scalar_loads()

        def mall_pf():
            a0 = self.a
            a0(f"s_cmp_eq_u32 {s(sSUB)}, 0")
            a0(f"s_cselect_b64 {s(sTMP, 2)}, {s(sPWA, 2)}, {s(sPWB, 2)}")
            a0(f"s_cselect_b64 {s(sLN2, 2)}, {s(sPWOA, 2)}, {s(sPWOB, 2)}")
            a0(f"s_cmp_lt_u32 {s(sW)}, 2")
            a0(f"s_cselect_b64 {s(sTMP, 2)}, {s(sTMP, 2)}, {s(sLN2, 2)}")
            a0(f"s_cselect_b32 {s(sT1)}, 3, 1")
            a0(f"s_lshl_b32 {s(sT1)}, {s(sT1)}, 11")
            a0(f"s_mul_i32 {s(sT2)}, {s(sID)}, {s(sT1)}")
            a0(f"s_sub_u32 {s(sT0)}, {s(sT1)}, 128")
            a0(f"v_lshlrev_b32 v7, 3, {v(vL16)}")
            a0(f"v_min_u32 v7, {s(sT0)}, v7")
            a0(f"s_lshl_b32 {s(sTMP + 2)}, {s(sT1)}, 8")
            a0(f"buffer_load_dword v7, v7, {s(sTMP, 4)}, {s(sT2)} offen")
        def l2_pf():
            a(f"s_mul_i32 {s(sT0)}, {s(sPF)}, {4 * 3072 // cfg['l2div']}")
            a(f"s_add_u32 {s(sT0)}, {s(sT0)}, {512 * 3072 - 512 * 3072 // cfg['l2div']}")
            a(f"v_lshrrev_b32 v51, 8, {v(vL16)}")
            a(f"v_lshlrev_b32 v51, 10, v51")
            a(f"v_lshl_add_u32 v51, {v(vL16)}, 3, v51")
            if cfg["l2div"] == 2:
                a("s_mov_b32 exec_hi, 0")
            a(f"buffer_load_dword v51, v51, {s(sSW[0], 4)}, {s(sT0)} offen offset:1024")
            if cfg["l2div"] == 2:
                a("s_mov_b32 exec_hi, -1")
        if cfg["l2pf"] == 1:
            l2_pf()
        if cfg["mallpf"] == 1:
            mall_pf()
        if cfg["l2pf"] == 2:
            l2_pf()
        if cfg["mallpf"] == 8:
            with self.only_if(f"s_bitcmp0_b32 {s(sID)}, 2"):
                a(f"s_and_b32 {s(sT0)}, {s(sPF)}, 7")
                a(f"s_lshr_b32 {s(sT1)}, {s(sPF)}, 3")
                a(f"s_and_b32 {s(sT2)}, {s(sID)}, 3")
                a(f"s_lshl2_add_u32 {s(sT1)}, {s(sT1)}, {s(sT2)}")
                a(f"s_bitcmp0_b32 {s(sT0)}, 0")
                a(f"s_cselect_b64 {s(sTMP, 2)}, {s(sPWA, 2)}, {s(sPWB, 2)}")
                a(f"s_cselect_b64 {s(sLN2, 2)}, {s(sPWOA, 2)}, {s(sPWOB, 2)}")
                a(f"s_lshr_b32 {s(sT0)}, {s(sT0)}, 1")
                a(f"s_mul_i32 {s(sT2)}, {s(sT1)}, 3")
                a(f"s_add_u32 {s(sT2)}, {s(sT2)}, {s(sT0)}")
                a(f"s_cmp_lt_u32 {s(sT0)}, 3")
                a(f"s_cselect_b64 {s(sTMP, 2)}, {s(sTMP, 2)}, {s(sLN2, 2)}")
                a(f"s_cselect_b32 {s(sT2)}, {s(sT2)}, {s(sT1)}")
                a(f"s_cselect_b32 {s(sT1)}, 3, 1")
                a(f"s_lshl_b32 {s(sTMP + 2)}, {s(sT1)}, 19")
                a(f"s_lshl_b32 {s(sT2)}, {s(sT2)}, 13")
                a(f"v_lshlrev_b32 v7, 3, {v(vL16)}")
                a(f"buffer_load_dword v7, v7, {s(sTMP, 4)}, {s(sT2)} offen")
        if cfg["mallpf"] in (4, 6):
            with self.only_if(f"s_cmp_eq_u32 {s(sW)}, 0"):
                mall_pf()
        if cfg["mallpf"] == 5:
            with self.only_if(f"s_cmp_eq_u32 {s(sSUB)}, 0"):
                mall_pf()
        if cfg["mallpf"] == 7:
            with self.only_if(f"s_cmp_lg_u32 {s(sW)}, 3"):
                mall_pf()
        if cfg["slow0"]:
            self.slow_pf(sSW[0], 12, 6)
        self.srd_tmp(sPPHI, 16384)
        a(f"s_lshl_b32 {s(sT0)}, {s(sC)}, 10")
        a(f"buffer_load_dwordx4 v[16:19], {v(vL16)}, {s(sTMP, 4)}, {s(sT0)} offen", vm="phi")
        for i in range(cfg["n0"]):
            self.ld_wkv(0, i, 5)
        if cfg["mallpf"] == 2:
            mall_pf()
        if not cfg["sl_first"]:
            scalar_loads()
        self.ts("p_issue")

        def o_touch(at):
            if cfg["otouch"] != at:
                return
            a0 = self.a
            a0(f"s_lshl_b32 {s(sT0)}, {s(sB)}, 5")
            a0(f"s_add_u32 {s(sT0)}, {s(sT0)}, {s(sC)}")
            a0(f"s_lshl_b32 {s(sT0)}, {s(sT0)}, 10")
            a0(f"s_add_u32 {s(sT0)}, {s(sT0)}, {OB[0]}")
            a0(f"v_bfe_u32 v50, {v(vL16)}, 7, 1")
            a0(f"v_mul_u32_u24 v50, {(16384 - 1024) // 8}, v50")
            a0(f"v_add_lshl_u32 v50, v50, {v(vL16)}, 3")
            a0("s_mov_b64 exec, 0xffff")
            a0(f"buffer_load_dword v52, v50, {s(sWS, 4)}, {s(sT0)} offen")
            a0("s_mov_b64 exec, -1")
        a(f"s_mov_b64 {s(sWS, 2)}, {s(sPWS, 2)}")
        a(f"s_mov_b64 {s(sOUT, 2)}, {s(sPOUT, 2)}")
        for r_ in (sWS, sOUT):
            a(f"s_mov_b32 {s(r_ + 3)}, 0x20000")
        a(f"s_mov_b32 {s(sWS + 2)}, {WS_SIZE:#x}")
        a(f"s_mov_b32 {s(sOUT + 2)}, 0x200000")
        o_touch(101)
        a(f"s_mov_b32 {s(sROW)}, 0xffff")
        a(f"s_mov_b32 {s(sROW + 1)}, 0xffff")
        a(f"s_mov_b32 {s(sMODE)}, 0")
        a(f"s_lshr_b32 {s(sT0)}, {s(sCG)}, 2")
        a(f"s_lshl2_add_u32 {s(sT0)}, {s(sBP)}, {s(sT0)}")
        a(f"s_lshl1_add_u32 {s(sT0)}, {s(sT0)}, {s(sSUB)}")
        a(f"s_lshl_b32 {s(sT0)}, {s(sT0)}, 8")
        a(f"s_and_b32 {s(sT1)}, {s(sCG)}, 3")
        a(f"s_lshl2_add_u32 {s(sSTST)}, {s(sT1)}, {s(sT0)}")
        a(f"s_add_u32 {s(sSTST)}, {s(sSTST)}, {STATS[0]}")
        a(f"s_lshl4_add_u32 {s(sT0)}, {s(sW)}, {s(sC)}")
        a(f"s_lshl_b32 {s(sKVT)}, {s(sT0)}, 10")
        a(f"s_add_u32 {s(sKVT)}, {s(sKVT)}, {KVP[0]}")
        a(f"s_lshl_b32 {s(sHEL)}, {s(sT0)}, 11")
        a(f"s_add_u32 {s(sHEL)}, {s(sHEL)}, {HELLO}")
        a(f"s_mov_b32 {s(sHI)}, 0")
        a(f"s_mov_b32 {s(sHI + 1)}, -1")
        a(f"s_lshl_b32 {s(sXLD)}, {s(sB)}, 15")
        i16, g, half, q, jj, t0, t1 = 20, 21, 22, 23, 24, 25, 26
        a(f"v_and_b32 {v(i16)}, 15, {v(L)}")
        a(f"v_lshrrev_b32 {v(g)}, 4, {v(L)}")
        a(f"v_lshrrev_b32 {v(half)}, 5, {v(L)}")
        a(f"v_and_b32 {v(q)}, 3, {v(L)}")
        a(f"v_bfe_u32 {v(jj)}, {v(L)}, 2, 2")
        a(f"v_lshlrev_b32 {v(vPOLL)}, 2, {v(i16)}")
        a(f"v_lshlrev_b32 {v(t0)}, 4, {v(i16)}")
        a(f"v_lshl_add_u32 {v(vXST)}, {v(g)}, 10, {v(t0)}")
        a(f"v_lshl_add_u32 {v(vSST)}, {v(half)}, 10, {v(t0)}")
        a(f"v_lshl_add_u32 {v(vSLD)}, {v(half)}, 9, {v(vL16)}")
        a(f"s_lshr_b32 {s(sT0)}, {s(sR)}, 1")
        a(f"s_lshl_b32 {s(sT0)}, {s(sT0)}, 7")
        a(f"s_and_b32 {s(sT1)}, {s(sR)}, 1")
        a(f"s_add_u32 {s(sT0)}, {s(sT0)}, {s(sT1)}")
        a(f"s_lshl_b32 {s(sT0)}, {s(sT0)}, 9")
        a(f"v_lshl_add_u32 {v(vPST)}, {v(half)}, 8, {v(t0)}")
        a(f"v_add_u32 {v(vPST)}, {s(sT0)}, {v(vPST)}")
        a(f"s_lshl_b32 {s(sT1)}, {s(sR)}, 6")
        a(f"s_add_u32 {s(sT1)}, {s(sT1)}, {8 * 65536}")
        a(f"v_lshl_add_u32 {v(vZST)}, {v(g)}, 4, {s(sT1)}")
        a(f"v_add_u32 v49, {s(sT0)}, {v(vL16)}")
        a(f"v_lshl_add_u32 v27, {v(q)}, 4, {s(sT1)}")
        a(f"v_cndmask_b32 v49, v49, v27, {s(sHI, 2)}")
        for i in range(4):
            a(f"v_mov_b32 {v(28 + i)}, -1")
        if cfg["warm_at"] == 0:
            self.warm(0)
        a(f"v_lshlrev_b32 v54, 5, v52")
        a(f"v_add_u32 v54, {L_STG:#x}, v54")
        a(f"s_lshl_b32 {s(sT0)}, {s(sW)}, 2")
        a(f"v_lshl_add_u32 v55, {v(half)}, 4, {s(sT0)}")
        a(f"v_add_u32 v55, v55, v54")
        a(f"v_lshlrev_b32 v53, 9, v53")
        a(f"v_lshl_add_u32 v53, v52, 4, v53")
        a(f"s_lshr_b32 {s(sT0)}, {s(sC)}, 2")
        a(f"s_lshl2_add_u32 {s(sT0)}, {s(sR)}, {s(sT0)}")
        a(f"s_and_b32 {s(sT1)}, {s(sC)}, 3")
        a(f"s_lshl3_add_u32 {s(sF0)}, {s(sT0)}, {s(sT1)}")
        a(f"s_lshl2_add_u32 {s(sF0)}, {s(sF0)}, {s(sW)}")
        a(f"s_lshl2_add_u32 {s(sF0)}, {s(sF0)}, {FLAGX}")
        a(f"s_lshl2_add_u32 {s(sT0)}, {s(sT0)}, {s(sW)}")
        a(f"s_lshl_b32 {s(sT0)}, {s(sT0)}, 6")
        a(f"s_add_u32 {s(sT0)}, {s(sT0)}, {s(sT1)}")
        a(f"s_lshl_b32 {s(sT0)}, {s(sT0)}, 7")
        a(f"s_add_u32 {s(sT1)}, {s(sT0)}, 4096")
        if cfg["pads"]:
            a("s_branch L_page0")
            a(".p2align 12")
            self.nook = a.ins[-1]
            a.label("L_page0")
        self.ts("p_lane")
        a.wait(vm="x0")
        self.ts("x0")
        X, t = AK, AV
        for i in range(8):
            a(f"v_lshlrev_b32 {v(X + 2 * i)}, 16, {v(8 + i)}")
            a(f"v_and_b32 {v(X + 2 * i + 1)}, 0xffff0000, {v(8 + i)}")
        a(f"v_pk_add_f32 {v(t, 2)}, {v(X, 2)}, {v(X + 2, 2)}")
        a(f"v_pk_mul_f32 {v(t + 2, 2)}, {v(X, 2)}, {v(X, 2)}")
        a(f"v_pk_fma_f32 {v(t + 2, 2)}, {v(X + 2, 2)}, {v(X + 2, 2)}, {v(t + 2, 2)}")
        for i in range(2, 8):
            a(f"v_pk_add_f32 {v(t, 2)}, {v(t, 2)}, {v(X + 2 * i, 2)}")
            a(f"v_pk_fma_f32 {v(t + 2, 2)}, {v(X + 2 * i, 2)}, {v(X + 2 * i, 2)}, {v(t + 2, 2)}")
        a(f"v_add_f32 {v(t)}, {v(t)}, {v(t + 1)}")
        a(f"v_add_f32 {v(t + 2)}, {v(t + 2)}, {v(t + 3)}")
        a(f"v_permlane32_swap_b32 {v(t)}, {v(t + 2)}")
        a(f"v_add_f32 {v(t)}, {v(t)}, {v(t + 2)}")
        a(f"v_mov_b32 {v(t + 1)}, {v(t)}")
        a(f"v_permlane16_swap_b32 {v(t)}, {v(t + 1)}")
        a(f"v_add_f32 {v(t)}, {v(t)}, {v(t + 1)}")
        a(f"v_add_f32 {v(t)}, {v(t)}, {v(t)} row_ror:8")
        a(f"ds_write_b32 v55, {v(t)}")
        for i in range(cfg["n0"], cfg["n0"] + cfg["n0b"][0]):
            self.ld_wkv(0, i, 5, sT3)
        a("s_waitcnt lgkmcnt(0)")
        a("s_barrier")
        a(f"ds_read_b128 {v(t, 4)}, v54")
        a(f"ds_read_b128 {v(t + 4, 4)}, v54 offset:16")
        for i in range(cfg["n0"] + cfg["n0b"][0], cfg["n0"] + sum(cfg["n0b"])):
            self.ld_wkv(0, i, 5, sT3)
        cfg["n0"] += sum(cfg["n0b"])
        a("s_waitcnt lgkmcnt(0)")
        a.lg.clear()
        m_, u_ = t, t + 4
        for l_ in [f"v_pk_add_f32 {v(t, 2)}, {v(t, 2)}, {v(t + 2, 2)}",
                   f"v_pk_add_f32 {v(t + 4, 2)}, {v(t + 4, 2)}, {v(t + 6, 2)}",
                   f"v_add_f32 {v(m_)}, {v(t)}, {v(t + 1)}",
                   f"v_add_f32 {v(u_)}, {v(t + 4)}, {v(t + 5)}",
                   f"v_mul_f32 {v(m_)}, {f2u(1 / 512):#x}, {v(m_)}",
                   f"v_mul_f32 {v(u_)}, {f2u(1 / 512):#x}, {v(u_)}",
                   f"v_fma_f32 {v(u_)}, -{v(m_)}, {v(m_)}, {v(u_)}",
                   f"v_max_f32 {v(u_)}, 0, {v(u_)}",
                   f"v_cvt_pk_bf16_f32 {v(u_)}, {v(m_)}, {v(u_)}",
                   f"v_lshlrev_b32 {v(m_)}, 16, {v(u_)}",
                   f"v_and_b32 {v(u_)}, 0xffff0000, {v(u_)}",
                   f"v_add_f32 {v(u_)}, {f2u(1e-5):#x}, {v(u_)}",
                   f"v_cvt_pk_bf16_f32 {v(u_)}, {v(u_)}, {v(u_)}",
                   f"v_and_b32 {v(u_)}, 0xffff0000, {v(u_)}",
                   f"v_sqrt_f32 {v(u_)}, {v(u_)}"]:
            a(l_)
        for i in range(8):
            a(f"v_pk_add_f32 {v(X + 2 * i, 2)}, {v(X + 2 * i, 2)}, {v(m_, 2)} op_sel_hi:[1,0] neg_lo:[0,1] neg_hi:[0,1]")
        a(f"v_cvt_pk_bf16_f32 {v(u_)}, {v(u_)}, {v(u_)}")
        a(f"v_and_b32 {v(u_)}, 0xffff0000, {v(u_)}")
        a(f"v_rcp_f32 {v(u_)}, {v(u_)}")
        for h in range(2):
            R = range(4 * h, 4 * h + 4)
            for i in R:
                a(f"v_cvt_pk_bf16_f32 {v(8 + i)}, {v(X + 2 * i)}, {v(X + 2 * i + 1)}")
            for i in R:
                a(f"v_lshlrev_b32 {v(X + 2 * i)}, 16, {v(8 + i)}")
                a(f"v_and_b32 {v(X + 2 * i + 1)}, 0xffff0000, {v(8 + i)}")
            for i in R:
                a(f"v_pk_mul_f32 {v(X + 2 * i, 2)}, {v(X + 2 * i, 2)}, {v(u_, 2)} op_sel_hi:[1,0]")
            for i in R:
                a(f"v_cvt_pk_bf16_f32 {v(8 + i)}, {v(X + 2 * i)}, {v(X + 2 * i + 1)}")
            a(f"buffer_store_dwordx4 {v(8 + 4 * h, 4)}, v53, {s(sOUT, 4)}, {s((sT0, sT1)[h])} offen sc1", vm="sst")
        with self.only_if(f"s_cmp_lt_u32 {s(sW)}, 2"):
            a("s_mov_b32 exec_hi, 15")
            a(f"buffer_store_dwordx4 v[28:31], v49, {s(sWS, 4)}, {s(sKVT)} offen sc1")
            a("s_mov_b32 exec_hi, -1")
        if cfg["mallpf"] == 3:
            mall_pf()
        if cfg["mallpf"] == 4:
            with self.only_if(f"s_cmp_lg_u32 {s(sW)}, 0"):
                mall_pf()
        o_touch(102)
        self.ts("p_xpub")
        self.nw, cnt, a0 = cfg["n0"], [0], a

        def a(text, **kw):
            if cnt[0] % cfg["w_every"] == 0 and self.nw < cfg["n1"]:
                self.ld_wkv(0, self.nw, 5, sT3)
                self.nw += 1
            cnt[0] += 1
            a0(text, **kw)
        a(f"s_getreg_b32 {s(sXCC)}, hwreg(HW_REG_XCC_ID, 0, 4)")
        a(f"s_lshl_b32 {s(sW13)}, {s(sW)}, 13")
        a(f"s_mov_b32 {s(sCNT)}, {cfg['limit']:#x}")
        a(f"s_lshl_b32 {s(sT0)}, {s(sC)}, 10")
        a(f"s_add_u32 {s(sOST)}, {s(sXLD)}, {s(sT0)}")
        a(f"s_add_u32 {s(sOST)}, {s(sOST)}, {OB[0]}")
        a(f"s_add_u32 {s(sOLD)}, {s(sOLD)}, {OB[0]}")
        a(f"s_add_u32 {s(sSTLD)}, {s(sSTLD)}, {STATS[0]}")
        a(f"s_lshl2_add_u32 {s(sFOS)}, {s(sC)}, {s(sFOS)}")
        a(f"s_lshl_b32 {s(sT0)}, {s(sBP)}, 7")
        a(f"s_add_u32 {s(sFOP)}, {s(sT0)}, {FLAGO}")
        a(f"s_lshl1_add_u32 {s(sT1)}, {s(sCG)}, {s(sSUB)}")
        a(f"s_lshl2_add_u32 {s(sFXS)}, {s(sT1)}, {s(sT0)}")
        a(f"s_add_u32 {s(sFXS)}, {s(sFXS)}, {FLAGX}")
        a(f"s_lshl_b32 {s(sT0)}, {s(sC)}, 6")
        a(f"s_mul_i32 {s(sQOFF)}, {s(sW)}, {128 * 3072}")
        a(f"s_add_u32 {s(sQOFF)}, {s(sQOFF)}, {s(sT0)}")
        a(f"s_lshl_b32 {s(sOOFF)}, {s(sW)}, 13")
        a(f"s_lshl_b32 {s(sT0)}, {s(sCG)}, 7")
        a(f"s_add_u32 {s(sOOFF)}, {s(sOOFF)}, {s(sT0)}")

        def late_srds(a):
            a(f"s_mov_b64 {s(sSW[1], 2)}, {s(sPWB, 2)}")
            a(f"s_mov_b32 {s(sSW[1] + 2)}, {512 * 3072}")
            a(f"s_mov_b32 {s(sSW[1] + 3)}, 0x20000")
            for T in range(2):
                a(f"s_mov_b64 {s(sSO[T], 2)}, {s([sPWOA, sPWOB][T], 2)}")
                a(f"s_mov_b32 {s(sSO[T] + 2)}, {512 * 1024}")
                a(f"s_mov_b32 {s(sSO[T] + 3)}, 0x20000")
        if not cfg["pfine"]:
            late_srds(a)
        a(f"s_mov_b32 {s(sCOL)}, 0x10001")
        a(f"s_mov_b32 {s(sCOL + 1)}, 0x10001")
        a(f"s_mov_b32 {s(sLN2)}, {LN2:#x}")
        a(f"s_mov_b32 {s(sLN2b)}, {LN2:#x}")
        a(f"s_mov_b32 {s(sDELTA)}, {f2u(1e-6):#x}")
        a(f"s_lshl_b32 {s(sANN)}, {s(sR)}, 7")
        a(f"s_add_u32 {s(sANN)}, {s(sANN)}, {ANN}")
        a(f"s_lshl4_add_u32 {s(sGW)}, {s(sR)}, {s(sC)}")
        a(f"s_lshl2_add_u32 {s(sGW)}, {s(sGW)}, {s(sW)}")
        a(f"v_and_b32 {v(t1)}, 1, {v(g)}")
        a(f"v_lshl_add_u32 {v(vOST)}, {v(t1)}, 14, {v(t0)}")
        a(f"v_lshl_add_u32 {v(vOST)}, {v(half)}, 9, {v(vOST)}")
        a(f"v_lshlrev_b32 {v(vWRD)}, 9, {v(half)}")
        a(f"v_lshl_add_u32 {v(vWRD)}, {v(jj)}, 6, {v(vWRD)}")
        a(f"v_lshl_add_u32 {v(vWRD)}, {v(t1)}, 4, {v(vWRD)}")
        a(f"v_and_b32 v27, 1, {v(q)}")
        a(f"v_lshrrev_b32 v32, 1, {v(q)}")
        a(f"v_lshl_add_u32 {v(vWRD)}, v27, 5, {v(vWRD)}")
        a(f"v_lshl_add_u32 {v(vWRD)}, v32, 3, {v(vWRD)}")
        a(f"v_lshlrev_b32 {v(vSTR)}, 8, {v(half)}")
        a(f"v_lshl_add_u32 {v(vSTR)}, v32, 7, {v(vSTR)}")
        a(f"v_lshl_add_u32 {v(vSTR)}, {v(t1)}, 6, {v(vSTR)}")
        a(f"v_lshl_add_u32 {v(vSTR)}, {v(jj)}, 4, {v(vSTR)}")
        a(f"v_lshl_add_u32 {v(vSTR)}, v27, 3, {v(vSTR)}")
        a(f"s_lshl_b32 {s(sT0)}, {s(sSUB)}, 12")
        a(f"s_add_u32 {s(sT0)}, {s(sT0)}, {L_STG + 0x4000}")
        a(f"v_add_u32 {v(vSTR2)}, {s(sT0)}, {v(vSTR)}")
        a(f"s_lshl_b32 {s(sT0)}, {s(sW)}, 12")
        a(f"s_add_u32 {s(sT0)}, {s(sT0)}, {L_STG}")
        a(f"v_add_u32 {v(vSTR)}, {s(sT0)}, {v(vSTR)}")
        a(f"v_bfe_u32 v33, {v(L)}, 3, 2")
        a(f"v_and_b32 {v(vSTW)}, 0x70, {v(vL16)}")
        a(f"v_lshl_add_u32 {v(vSTW)}, v33, 8, {v(vSTW)}")
        a(f"v_lshl_add_u32 {v(vSTW)}, {v(half)}, 12, {v(vSTW)}")
        a(f"s_lshl_b32 {s(sT0)}, {s(sW)}, 10")
        a(f"s_add_u32 {s(sT0)}, {s(sT0)}, {L_STG}")
        a(f"v_add_u32 {v(vSTW)}, {s(sT0)}, {v(vSTW)}")
        a(f"v_bfe_u32 v34, {v(L)}, 1, 2")
        a(f"v_xor_b32 v33, v33, v34")
        a(f"v_lshlrev_b32 {v(vWOW)}, 14, v34")
        a(f"v_lshl_add_u32 {v(vWOW)}, v33, 5, {v(vWOW)}")
        a(f"v_lshl_add_u32 {v(vWOW)}, {v(half)}, 9, {v(vWOW)}")
        a(f"v_lshl_add_u32 {v(vWOW)}, v27, 4, {v(vWOW)}")
        a(f"s_lshl_b32 {s(sT0)}, {s(sW)}, 7")
        a(f"v_add_u32 {v(vWOW)}, {s(sT0)}, {v(vWOW)}")
        a(f"v_lshlrev_b32 {v(vWOR)}, 3, {v(L)}")
        a(f"s_lshl_b32 {s(sT0)}, {s(sSUB)}, 15")
        a(f"s_and_b32 {s(sT1)}, {s(sW)}, 2")
        a(f"s_lshl_b32 {s(sT2)}, {s(sT1)}, 9")
        a(f"s_add_u32 {s(sT0)}, {s(sT0)}, {s(sT2)}")
        a(f"v_add_u32 {v(vWKW)}, {s(sT0)}, {v(vL16)}")
        a(f"v_and_b32 v33, 0x1f0, {v(vL16)}")
        a(f"v_add_u32 {v(vCSR)}, {L_CSP:#x}, v33")
        a(f"v_and_b32 v34, 1, {v(jj)}")
        a(f"v_cmp_eq_u32 vcc, v34, {v(half)}")
        a(f"v_lshlrev_b32 v35, 6, {v(half)}")
        a(f"v_sub_u32 v35, 576, v35")
        a(f"v_cndmask_b32 {v(vKFR)}, v35, v33, vcc")
        a(f"v_add_u32 {v(vKFR)}, {L_KVF:#x}, {v(vKFR)}")
        a(f"s_mul_i32 {s(sT0)}, {s(sT1)}, {KS}")
        a(f"s_lshl_b32 {s(sT2)}, {s(sSUB)}, 6")
        a(f"s_add_u32 {s(sT0)}, {s(sT0)}, {s(sT2)}")
        a(f"s_add_u32 {s(sT0)}, {s(sT0)}, {L_KVF}")
        a(f"v_mul_u32_u24 {v(vKFW)}, {KS}, {v(half)}")
        a(f"v_lshl_add_u32 {v(vKFW)}, {v(q)}, 4, {v(vKFW)}")
        a(f"v_lshl_add_u32 {v(vKFW)}, {v(jj)}, 7, {v(vKFW)}")
        a(f"v_lshl_add_u32 {v(vKFW)}, {v(t1)}, 3, {v(vKFW)}")
        a(f"v_add_u32 {v(vKFW)}, {s(sT0)}, {v(vKFW)}")
        a(f"s_lshl_b32 {s(sT0)}, {s(sW)}, 5")
        a(f"s_add_u32 {s(sT0)}, {s(sT0)}, {L_ZB}")
        a(f"v_lshl_add_u32 {v(vZW)}, {v(q)}, 2, {v(g)}")
        a(f"v_lshl_add_u32 {v(vZW)}, {v(vZW)}, 1, {s(sT0)}")
        a(f"v_mov_b32 v35, {L_ZB:#x}")
        a(f"v_lshl_add_u32 {v(vZR)}, {v(half)}, 5, v35")
        a(f"v_mov_b32 v36, 0x3f80")
        a(f"v_lshlrev_b32 v37, 4, v27")
        a(f"v_lshlrev_b32 v36, v37, v36")
        a(f"v_lshrrev_b32 v37, 1, {v(i16)}")
        a(f"v_lshlrev_b32 v38, 2, {v(t1)}")
        a(f"v_sub_u32 v37, v37, v38")
        for d in range(4):
            a(f"v_cmp_eq_u32 vcc, {d}, v37")
            a(f"v_cndmask_b32 {v(40 + d)}, 0, v36, vcc")
        a(f"v_add_u32 v33, {L_SEL:#x}, v33")
        a(f"ds_write_b128 v33, v[40:43]")
        for i in range(4):
            a(f"v_mov_b32 {v(44 + i)}, 0")
        a(f"v_min_u32 v33, 5, {v(i16)}")
        a(f"v_mul_u32_u24 v33, {KS}, v33")
        a(f"v_lshl_add_u32 v33, {v(half)}, 6, v33")
        a(f"v_add_u32 v33, {L_KVF + 512:#x}, v33")
        a(f"ds_write_b128 v33, v[44:47]")
        a = a0
        self.ts("p_setup")
        while self.nw < cfg["n1"]:
            self.ld_wkv(0, self.nw, 5)
            self.nw += 1
        if cfg["warm_at"] == 1:
            self.warm(0)
        a("s_waitcnt lgkmcnt(0)")
        a.lg.clear()
        a(f"s_lshl_b32 {s(sT0)}, {s(sW)}, 10")
        a(f"s_add_u32 {s(sT0)}, {s(sT0)}, {L_STG + 0x3000}")
        a(f"v_add_u32 v33, {s(sT0)}, {v(vL16)}")
        a.wait(vm="phi")
        a(f"ds_write_b128 v33, v[16:19]", lg="ph")
        a(f"v_lshlrev_b32 v33, 9, v27")
        a(f"v_lshl_add_u32 v33, {v(half)}, 8, v33")
        a(f"v_lshl_add_u32 v33, {v(jj)}, 5, v33")
        a(f"v_lshl_add_u32 v33, {v(t1)}, 4, v33")
        a(f"v_lshl_add_u32 v33, v32, 3, v33")
        a(f"v_add_u32 v33, {s(sT0)}, v33")
        a(f"v_mul_u32_u24 v39, {KS - 512}, {v(half)}")
        a(f"v_add_u32 v39, v39, {v(vL16)}")
        a(f"v_add_u32 v39, {L_WPF:#x}, v39")
        a.wait(lg="ph")
        a(f"ds_read_b64_tr_b16 v[16:17], v33")
        a(f"ds_read_b64_tr_b16 v[18:19], v33 offset:128", lg="ph2")

        def take(i):
            a.wait(vm=f"wkv{i}")
            self.fine(f"p_w{i}")
            self.put_wkv(0, i, i + 1)
            self.cs_kv_step(0, i, 40, 44)
        for i in range(cfg["n0"]):
            take(i)
        a.wait(lg="ph2")
        a(f"ds_write_b128 v39, v[16:19]")
        a(f"s_mul_i32 {s(sTAG)}, {s(sEP)}, 0x9e3779b1")
        a(f"s_add_u32 {s(sTAG)}, {s(sTAG)}, 0x7f4a7c15")
        a(f"s_and_b32 {s(sTAG)}, {s(sTAG)}, 0xffffff00")
        a(f"s_or_b32 {s(sXCC)}, {s(sTAG)}, {s(sXCC)}")
        a(f"v_mov_b32 v34, {s(sXCC)}")
        a("s_mov_b64 exec, 1")
        a.wait(vm="sst")
        self.fine("p_ack")
        a(f"buffer_store_dword v34, off, {s(sWS, 4)}, {s(sF0)}")
        a("s_mov_b64 exec, -1")
        if not cfg["hello_late"]:
            self.hello(35, 37)
        self.ts("flag0")
        a(f"v_lshl_add_u32 v38, {v(g)}, 7, {v(vPOLL)}")
        a(f"s_and_b32 {s(sT2)}, {s(sFXP)}, 0xfffffe7f")
        for i in range(cfg["n0"], 16):
            while self.nw < min(16, i + cfg["nw"]):
                self.ld_wkv(0, self.nw, 5)
                self.nw += 1
            if i == cfg["f0_at"]:
                assert self.nw == 16
                a(f"buffer_load_dword v34, v38, {s(sWS, 4)}, {s(sT2)} offen sc1", vm="f0")
                if cfg["warm_at"] == 2:
                    self.warm(0)
            take(i)
        self.puts_left = []
        self.cs_kv_fin(0, 44, 50)
        self.ts("wkv0")
        a.wait(vm="f0")
        a(f"v_cmp_ne_u32 vcc, {s(sXCC)}, v34")
        a("s_branch L_global" if cfg["force_global"] else "s_cbranch_vccnz L_poll0")
        a.label("L_enter")
        with self.outofline():
            a.label("L_poll0")
            a(f"buffer_load_dword v34, v38, {s(sWS, 4)}, {s(sT2)} offen sc1")
            self.countdown()
            a("s_waitcnt vmcnt(0)")
            a(f"v_cmp_ne_u32 vcc, {s(sXCC)}, v34")
            a("s_cbranch_vccz L_enter")
            a(f"s_and_b32 {s(sT1)}, {s(sCNT)}, 15")
            a("s_cbranch_scc1 L_poll0")
            a(f"v_mov_b32 v35, {s(sXCC)}")
            a(f"s_lshl2_add_u32 {s(sT0)}, {s(sC)}, {s(sANN)}")
            a("s_mov_b64 exec, 1")
            a(f"buffer_store_dword v35, off, {s(sWS, 4)}, {s(sT0)} sc1")
            a("s_mov_b64 exec, -1")
            a(f"buffer_load_dword v34, {v(vPOLL)}, {s(sWS, 4)}, {s(sANN)} offen sc1")
            a("s_waitcnt vmcnt(0)")
            a(f"v_xor_b32 v34, {s(sXCC)}, v34")
            a(f"v_add_u32 v34, -1, v34")
            a(f"v_cmp_gt_u32 vcc, 15, v34")
            a("s_cbranch_vccz L_poll0")
            a.label("L_global")
            a(f"s_mov_b32 {s(sMODE)}, 1")
            a(f"s_add_u32 {s(sFXS)}, {s(sFXS)}, {FLAGX2 - FLAGX}")
            a(f"s_add_u32 {s(sFXP)}, {s(sFXP)}, {FLAGX2 - FLAGX}")
            a(f"s_mov_b32 {s(sTG)}, {s(sTAG)}")
            a(f"s_add_u32 {s(sF0)}, {s(sF0)}, {FLAGX2 - FLAGX}")
            a(f"v_mov_b32 v16, {s(sTG)}")
            self.flag(sF0, 16)
            self.poll(vPOLL, sFXP, 34)
            a("s_branch L_enter")
        self.ts("poll0")
        if cfg["pfine"]:
            a("s_waitcnt lgkmcnt(0)")
            for k in range(len(cfg["pfine"])):
                a(f"v_writelane_b32 {v(vTS)}, {s(84 + 2 * k)}, {48 + k}")
            late_srds(a)

    def rowmajor_voff(self, d, t):
        a = self.a
        a(f"v_and_b32 {v(d)}, 0xf0, {v(vL16)}")
        a(f"v_lshlrev_b32 {v(d)}, 6, {v(d)}")
        a(f"v_bfe_u32 {v(t)}, {v(vL16)}, 8, 1")
        a(f"v_lshl_add_u32 {v(d)}, {v(t)}, 5, {v(d)}")
        a(f"v_lshrrev_b32 {v(t)}, 9, {v(vL16)}")
        a(f"v_lshl_add_u32 {v(d)}, {v(t)}, 4, {v(d)}")

    def tile_addr(self, d, t):
        return [f"s_mul_i32 {s(sT0)}, {s(sW)}, 2304",
                f"s_add_u32 {s(sT0)}, {s(sT0)}, {L_STG}",
                f"v_bfe_u32 {v(t)}, {v(vL16)}, 4, 4",
                f"v_mul_u32_u24 {v(d)}, 144, {v(t)}",
                f"v_lshrrev_b32 {v(t)}, 8, {v(vL16)}",
                f"v_lshl_add_u32 {v(d)}, {v(t)}, 3, {v(d)}",
                f"v_add_u32 {v(d)}, {s(sT0)}, {v(d)}",
                f"v_lshrrev_b32 {v(t)}, 7, {v(vL16)}",
                f"v_lshl_add_u32 {v(d + 1)}, {v(t)}, 4, {v(vL16)}",
                f"v_add_u32 {v(d + 1)}, {s(sT0)}, {v(d + 1)}",
                f"v_mul_u32_u24 {v(d + 2)}, {1024 - 128}, {v(t)}",
                f"v_add_u32 {v(d + 2)}, {v(d + 2)}, {v(vL16)}"]

    def final(self):
        a = self.a
        X = AK
        if self.cfg["fin_lds"]:
            a(f"s_add_u32 {s(sT1)}, {s(sFIN)}, 8192")
            for i in range(8):
                a(f"v_cvt_pk_bf16_f32 {v(X + i)}, {v(XR + 2 * i)}, {v(XR + 2 * i + 1)}")
                if i % 4 == 3:
                    a(f"ds_write2_b64 {v(PK)}, {v(X + i - 3, 2)}, {v(X + i - 1, 2)} offset0:{(i >> 2) * 8} offset1:{(i >> 2) * 8 + 4}")
            for i in range(2):
                a(f"ds_read_b128 {v(X + 8 + 4 * i, 4)}, {v(PK + 1)} offset:{1152 * i}")
            for i in range(2):
                a(f"s_waitcnt lgkmcnt({1 - i})")
                a(f"buffer_store_dwordx4 {v(X + 8 + 4 * i, 4)}, {v(PK + 2)}, {s(sOUT, 4)}, {s((sFIN, sT1)[i])} offen{self.cfg['finflag']}")
        else:
            self.rowmajor_voff(PK, PK + 1)
            for i in range(8):
                a(f"v_cvt_pk_bf16_f32 {v(X + i)}, {v(XR + 2 * i)}, {v(XR + 2 * i + 1)}")
            for i in range(2):
                for d in range(2):
                    a(f"v_permlane16_swap_b32 {v(X + 4 * i + d)}, {v(X + 4 * i + 2 + d)}")
            for i in range(2):
                a(f"buffer_store_dwordx4 {v(X + 4 * i, 4)}, {v(PK)}, {s(sOUT, 4)}, {s(sFIN)} offen offset:{64 * i}{self.cfg['finflag']}")
        with self.only_if(f"s_cmp_eq_u32 {s(sGW)}, 0"):
            a(f"s_add_u32 {s(sEP)}, {s(sEP)}, 1")
            a(f"v_mov_b32 v0, {s(sEP)}")
            a("s_mov_b64 exec, 1")
            a(f"buffer_store_dword v0, off, {s(sWS, 4)}, 0 sc1")
            a("s_mov_b64 exec, -1")
        if self.cfg["amp"]:
            amp = self.cfg["amp"]
            self.ts("end")
            a("s_sub_u32 s72, s78, s72")
            a(f"s_mul_i32 s72, s72, {amp[2]}")
            if amp[3]:
                a("s_lshr_b32 s72, s72, 5")
            a("s_min_u32 s72, s72, 100000")
            if self.cfg.get("amp_one") is not None:
                a(f"s_cmp_eq_u32 {s(sGW)}, {self.cfg['amp_one']}")
                a("s_cselect_b32 s72, s72, 0")
            a("s_memrealtime s[78:79]")
            a("s_waitcnt lgkmcnt(0)")
            a("s_mov_b32 s73, s78")
            a.label("L_amp")
            a("s_memrealtime s[78:79]")
            a("s_waitcnt lgkmcnt(0)")
            a("s_sub_u32 s78, s78, s73")
            a("s_cmp_lt_u32 s78, s72")
            a("s_cbranch_scc1 L_amp")
        if self.cfg["ts"]:
            a("s_waitcnt vmcnt(0)")
            self.ts("end")
            a("s_memrealtime s[72:73]")
            a("s_waitcnt lgkmcnt(0)")
            for k in range(len(self.cfg["fine"])):
                a(f"v_writelane_b32 {v(vTS)}, {s(FINE[k])}, {48 + k}")
            a(f"v_writelane_b32 {v(vTS)}, {s(sLAY)}, 58")
            a(f"v_writelane_b32 {v(vTS)}, {s(sTSI)}, 59")
            a(f"v_writelane_b32 {v(vTS)}, {s(sCNT)}, 60")
            a(f"v_writelane_b32 {v(vTS)}, s78, 61")
            a(f"v_writelane_b32 {v(vTS)}, s72, 62")
            a(f"v_writelane_b32 {v(vTS)}, {s(sMODE)}, 63")
            a(f"s_lshl_b32 {s(sT0)}, {s(sGW)}, 8")
            a(f"s_add_u32 {s(sT0)}, {s(sT0)}, {DBG + 0x2000000}")
            a(f"v_lshrrev_b32 v0, 2, {v(vL16)}")
            a(f"buffer_store_dword {v(vTS)}, v0, {s(sWS, 4)}, {s(sT0)} offen")
        a.label("L_timeout")
        a.label("L_end")
        a("s_endpgm")

    def place(self):
        a = self.a
        if not self.cfg["pads"]:
            self.stat = a.layout(self.cfg["align"])
            return
        keep = list(a.ins)
        for k in range(12):
            a.ins.append(Ins(f"L_pad{k}:"))
        cnt = [0]

        def probe(k):
            cnt[0] += 1
            return f"L_tmp{cnt[0]}", "s_nop 0"
        a.layout(self.cfg["align"], probe, 1)
        n = cnt[0]
        a.ins = keep + [Ins(f"L_pad{k}:") for k in range(12)]
        cnt[0] = 0

        def pad(_):
            k = cnt[0]
            cnt[0] += 1
            return f"L_pad{k}", f"s_cbranch_execz {self.pad_back[k]}"
        self.stat = a.layout(self.cfg["align"], pad, 1)
        del a.ins[-12:]
        assert cnt[0] == n <= 12
        for k in range(n, 12):
            i = [x.label for x in a.ins].index(self.pad_back[k])
            a.ins.insert(i, Ins(f"L_pad{k}:"))

    def build(self):
        a = self.a
        self.prologue()
        for l in range(4):
            self.layer(l)
        self.final()
        hot = [k for k, x in enumerate(self.tail) if x.label and x.label.startswith("L_again")]
        blocks, rest_, k = [], [], 0
        while k < len(self.tail):
            e = k
            while self.tail[e].op != "s_branch":
                e += 1
            (blocks if k in hot else rest_).extend(self.tail[k:e + 1])
            k = e + 1
        blocks[1].pad_here = True
        a.raw(blocks + rest_)
        a.label("L_codeend")
        a("s_endpgm")
        if self.cfg["x_16"]:
            out, k, ins = [], 0, a.ins
            i = 0
            while i < len(ins):
                x = ins[i]
                if x.op == "v_mfma_f32_32x32x16_bf16" and min(n for _, n in x.B) < 128 and RG <= min(n for _, n in x.A) < RG + 24:
                    d = min(n for _, n in x.w); j = min(n for _, n in x.B) // 4
                    mk = lambda q: Ins(f"v_mfma_f32_16x16x32_bf16 {v(d + 4 * q, 4)}, {x.ops[1]}, {x.ops[2]}, {v(d + 4 * q, 4) if j > 1 else 0}")
                    e = i + 1
                    while ins[e].kind != "mfma" if ins[e].op else False:
                        if ins[e].op.startswith(("s_cbranch", "s_cmp", "s_mov_b64", "s_waitcnt", "v_cmp", "s_barrier")) or e - i > 3:
                            break
                        e += 1
                    mid = i + 1 + (1 if e > i + 1 and ins[i + 1].op != "s_add_u32" else min(2, e - i - 1))
                    out += [mk(2 * (j & 1))] + ins[i + 1:mid] + [mk(2 * (j & 1) + 1)]
                    i = mid
                    continue
                out.append(x)
                i += 1
            a.ins = out
        nops = a.pad_hazards()
        self.place()
        head = open(f"cdna_kernels/{NAME}.s.ref").read().split("; Override launch")[0]
        out = head + f"; @launch grid=(256,1,1) block=(256,1,1) lds={LDS_SIZE}\n"
        out += f""".amdgcn_target "amdgcn-amd-amdhsa--gfx950"
.text
.globl {NAME}_kernel
.p2align 8
.type {NAME}_kernel,@function
{NAME}_kernel:
"""
        out += a.text()
        out += f""".section .rodata,"a"
.p2align 6
.amdhsa_kernel {NAME}_kernel
  .amdhsa_next_free_vgpr 512
  .amdhsa_next_free_sgpr 102
  .amdhsa_accum_offset 256
  .amdhsa_group_segment_fixed_size 0
  .amdhsa_kernarg_size 80
  .amdhsa_user_sgpr_count 2
  .amdhsa_user_sgpr_kernarg_segment_ptr 1
  .amdhsa_system_sgpr_workgroup_id_x 1
.end_amdhsa_kernel
"""
        self.nops = nops
        return out


if __name__ == "__main__":
    import ast
    kw = {}
    out = sys.argv[1]
    for x in sys.argv[2:]:
        k, val = x.split("=", 1)
        kw[k] = ast.literal_eval(val)
    g = Gen(**kw)
    txt = g.build()
    open(out, "w").write(txt)
    print(f"wrote {out}: {len(g.a.ins)} lines, {g.nops} pad states, layout {g.stat}", file=sys.stderr)
```

```python
import sys
import contextlib
from asmlib import Asm, Ins

NAME = "interleave_layers__linear_attn_block__linear_kernel_hedgehog__prompt"

CFG = dict(
    ts=0, rt=0,
    dump=None,
    amp=None,
    force_global=0, fine=(), pfine=(),
    n0=4, n0b=(2, 2), w_every=20, n1=12, hello_late=0, x_noack='', x_16=0, limit=0x200000, jitter=None, x_noput=0, owin2=((0, 0), (4, 0), (2, 8)), xputs2=(0, 6), xprobe_at2=2, warm_at=2, nw=6, latepf=(8, 'bB'), fin_lds=1, xr_at=10, r_num=1, r_y=1, tlb='', sl_first=1, l2pf=0, l2div=1, slow0=1, f0_at=11, codepf=12, slowpf=1, align=99, pads=1, mallpf=5, x_wt=1, x_ann=1,
    hx='ffff', ho='ffff', touch=1,
    bg=((6, 4, 14, 8, 0, 0, 8), (4, 10, 10, 0, 0, 0, 0)),
    pl_step=(26, 24, 22, 20), pl_gap=(1, 1, 1, 2),
    nx0=8, nx1=4, xmix=1, x_qskip=0, x_st=0, ppf=(-1, -1, -1, -1), zlast=0, zst1=0, otouch=0, oinit=(0, -1), nmode=1, no0=8,
    wo_every=(8, 10), qputs=(8, 8), qearly=0, pdepth=2,
    np=8, owin=(((6, 0), (2, 8), (0, 20)), ((0, 32), (4, 0), (4, 0))), ord=((0, 2, 1, 1), (2, 2, 2, 1)),
    xputs=(4, 12), xputs0=(8, 12), x_h=0, x_lin=0, rot=0, rotq=0, roto=0, spar=1, xprobe_at=5,
    finflag="", jit=0,
)

FLAGX, FLAGO, FLAGX2, ANN, HELLO = 0x1000, 0x3000, 0x7000, 0x9000, 0xA0000
STATS, STATS_G = [0x10000, 0x30000], 0x40000
XB = [0, 0x800000]
OB = [0x400000, 0x600000]
KVP = [0xC0000 + 0x90000 * l for l in range(4)]
DBG = 0x1000000
WS_SIZE = 0x8000000
L_P, L_WQ, L_STG = 0x0, [0x10000, 0x18000], 0x20000
L_KVF = 0x26000
KS = 592
L_WPF = L_KVF + 4 * KS
L_ZB = L_WPF + 2 * KS
L_CSP = L_ZB + 128
L_SEL = L_CSP + 3072
LDS_SIZE = 0x28000
XF, AK, AV, RG, LG, XR, PK = 0, 128, 144, 160, 192, 208, 224
vSTR, vSTR2, vPST, vZST, vKFW, vZW, vZR, vOST = range(184, 192)
vL16, vWRD, vSTW, vKFR, vS, vRS, vM, vXST, vSST, vSLD, vPOLL, vWOR, vWOW, vWKW, vCSR, vTS = range(240, 256)
A_WKV, A_WO = [0, 64], [128, 192]
sID = 2
sPX, sPWA, sPWOA, sPBX, sPWB, sPPHI, sPWOB, sPOUT, sPDBG, sPWS = range(4, 24, 2)
sWS, sOUT, sTMP = 24, 28, 32
XS = [sOUT, sWS]
(sW, sC, sR, sXLD, sSTLD, sFXP, sOST, sFOS, sOLD, sFOP, sXST, sSTST, sFXS, sKVT, sTAG, sMODE, sPASS,
 sEP, sXCC, sT0, sT1, sT2, sT3, sCNT, sWOFF, sQOFF, sOOFF, sHEL, sLN2, sLN2b, sDELTA, sFIN) = range(36, 68)
sHI = 68
sSAVE = 70
sTSA = 72
sTSI = 74
sGW = 75
sLAY = 76
sANN = 77
sW13 = 98
sF0 = 3
sPF = 0
sTG = 1
sPM = 96
sSW, sSO = [80, 84], [88, 92]
vBW, vBO, vHL = RG + 20, RG + 21, RG + 22
vPR, vPB, vPA, vCK = PK + 10, PK + 11, PK + 7, PK + 6
sROT = sPASS
sWQM = 21
sROW = sPM
sCOL = sPBX
assert sLN2 % 2 == 0

FINE = [4, 6, 8, 12, 14, 16, 18, 20, 22, 32]
LOG2E = 0x3FB8AA3B
LN2 = 0x3F317218
DELTA = 0x35C1A4C3
import struct
def f2u(x): return struct.unpack("<I", struct.pack("<f", x))[0]
DELTA = f2u(1e-6 * 1.4426950408889634)


def v(a, n=1): return f"v{a}" if n == 1 else f"v[{a}:{a + n - 1}]"
def ar(a, n=1): return f"a{a}" if n == 1 else f"a[{a}:{a + n - 1}]"
def s(a, n=1): return f"s{a}" if n == 1 else f"s[{a}:{a + n - 1}]"


NOTES = dict(
    start="ids, offsets, code prefetch", kernarg="first loads: x rows, prefetches, k/v weights", p_issue="descriptors and lane constants",
    x0="first layer norm (8 tokens per workgroup), published as MFMA fragments", p_xpub="remaining set-up",
    p_setup="w_phi fragments, weights to LDS, first flag", flag0="rest of the k/v weights", wkv0="first hand-off: same die or not",
    xpoll="gather x fragments", bar1="k, v projection", kvgemm="feature map of k, staging of k and v", bar2="partial kv / z of 128 tokens, published to the column",
    publish="q projection", qgemm="feature map of q", phiq="sum of the 16 partials", bar3="numerator / denominator, publish o",
    ostore="o hand-off", opoll="output projection on top of the residual", ogemm="publish x (or store the result)", xflag="x hand-off")
HEADER = """; One persistent launch, 256 workgroups of 4 waves. Workgroup (r, c): row group r = 128 tokens, column c = heads 2c, 2c+1
; for the q/k/v projection, and a 64 x 64 tile of the output projection. All weights stay on the CU (AGPRs + LDS).
; Per layer: gather x -> k, v -> feature map -> partial kv/z exchanged along the column (write-through stores, marker words)
; Row-group hand-offs use plain stores when all 16 workgroups report the same die, write-through stores otherwise.
; Flags carry a tag derived from a launch counter kept in the workspace.
"""


class Gen:
    def __init__(self, **kw):
        self.cfg = dict(CFG)
        self.cfg.update(kw)
        self.a = Asm()
        self.tail = []
        self.nts = 0
        self.tsnames = []
        self.side = []
        self.side_every = 1
        self.pad_back = {}
        self.xb, self.ob = [0], [0]
        assert self.cfg["hx"][0] == "f" and self.cfg["ho"][0] == "f"
        for l in range(1, 4):
            self.xb.append(self.xb[-1] ^ (self.cfg["hx"][l] == "s"))
            self.ob.append(self.ob[-1] ^ (self.cfg["ho"][l] == "s"))

    @contextlib.contextmanager
    def uncounted(self):
        a = self.a
        vm, lg = list(a.vm), list(a.lg)
        yield
        a.vm, a.lg = vm, lg

    @contextlib.contextmanager
    def only_if(self, cmp):
        a = self.a
        l = a.newlabel("skip")
        a(cmp)
        a(f"s_cbranch_scc0 {l}")
        with self.uncounted():
            yield
        a.label(l)

    @contextlib.contextmanager
    def outofline(self):
        a = self.a
        n0 = len(a.ins)
        with self.uncounted():
            yield
        self.tail += a.ins[n0:]
        del a.ins[n0:]

    def code_pf(self, lo, hi, t):
        a = self.a
        n = f"(({hi}-{lo})/1024+1)"
        a(f"s_bfe_u32 {s(sT0)}, {s(sID)}, {3 | (3 << 16)}")
        a(f"s_mul_i32 {s(sT0)}, {s(sT0)}, {n}*128")
        a(f"s_add_u32 {s(sT0)}, {s(sT0)}, {lo}-L_pc")
        a(f"v_lshlrev_b32 {v(t)}, 3, {v(vL16)}")
        a(f"v_min_u32 {v(t)}, ({n}-1)*128, {v(t)}")
        a(f"v_add_u32 {v(t)}, {s(sT0)}, {v(t)}")
        a(f"v_min_u32 {v(t)}, L_codeend-L_pc, {v(t)}")
        a(f"global_load_dword {v(t)}, {v(t)}, {s(sSAVE, 2)}")

    def warm(self, g):
        a = self.a
        if not self.cfg["pads"]:
            return
        n0 = len(a.ins)
        a("s_mov_b64 exec, 0")
        for k in range(3):
            a(f"s_cmp_eq_u32 {s(sW)}, {k}")
            a(f"s_cbranch_scc1 L_pad{4 * g + k}")
        a(f"s_branch L_pad{4 * g + 3}")
        a.label(f"L_warmed{g}")
        a("s_mov_b64 exec, -1")
        for x in a.ins[n0:]:
            x.nopad = True
        for k in range(4):
            self.pad_back[4 * g + k] = f"L_warmed{g}"

    @contextlib.contextmanager
    def waves01(self, pads):
        a = self.a
        if not self.cfg["pads"]:
            with self.only_if(f"s_cmp_lt_u32 {s(sW)}, 2"):
                yield
                a("s_mov_b64 exec, -1")
            return
        st, back = a.newlabel("stub"), a.newlabel("back")
        a(f"s_cmp_lt_u32 {s(sW)}, 2")
        a(f"s_cbranch_scc0 {st}")
        with self.uncounted():
            yield
        a.label(back)
        a("s_mov_b64 exec, -1")
        i = a.ins.index(self.nook)
        a.ins[i:i] = [Ins(x) for x in (f"{st}:", "s_mov_b64 exec, 0", f"s_cmp_eq_u32 {s(sW)}, 2", f"s_cbranch_scc1 L_pad{pads[0]}", f"s_branch L_pad{pads[1]}")]
        for x in a.ins[i:i + 5] + a.ins[-1:]:
            x.nopad = True
        for k in pads:
            self.pad_back[k] = back

    def countdown(self):
        self.a(f"s_sub_u32 {s(sCNT)}, {s(sCNT)}, 1")
        self.a("s_cbranch_scc1 L_timeout")

    def bg_region(self, n, slots):
        n = min(n, len(self.bg))
        self.bg_slot = 0
        self.bg_at = [(k * slots) // n for k in range(n)]

    def bg_tick(self):
        for _ in range(self.bg_at.count(self.bg_slot)):
            self.bg.pop(0)()
        self.bg_slot += 1

    def bg_now(self, n):
        for _ in range(min(n, len(self.bg))):
            self.bg.pop(0)()

    def ticker(self):
        def e(text, **kw):
            if self.side and self.bg_slot % self.side_every == 0:
                self.side.pop(0)()
            self.bg_tick()
            self.a(text, **kw)
        return e

    def moded(self, lines, tag=None, reg=sMODE, wt=False, cmp=True):
        a = self.a
        if wt:
            for l in lines:
                a(l + (" sc1" if l.startswith("buffer_store") else ""), vm=tag)
            return
        lg, lj = a.newlabel("glob"), a.newlabel("join")
        if cmp:
            a(f"s_cmp_eq_u32 {s(reg)}, 0")
        a(f"s_cbranch_scc0 {lg}")
        for l in lines:
            a(l, vm=tag)
        a.label(lj)
        t = [Ins(lg + ":")] + [Ins(l + (" sc1" if l.startswith("buffer_store") else "")) for l in lines] + [Ins(f"s_branch {lj}")]
        self.tail += t

    def srd_tmp(self, ptr, size):
        a = self.a
        a(f"s_mov_b32 {s(sTMP)}, {s(ptr)}")
        a(f"s_mov_b32 {s(sTMP + 1)}, {s(ptr + 1)}")
        a(f"s_mov_b32 {s(sTMP + 2)}, {size}")

    def ts(self, name):
        a = self.a
        what = NOTES.get(name.split(":")[-1])
        if what:
            a.ins.append(Ins("; ---- " + (f"layer {name[0]}: " if ":" in name else "") + what))
        self.fine(name)
        amp = self.cfg["amp"]
        if amp:
            for k in range(2):
                if amp[k] == name:
                    a(f"{'s_memtime' if amp[3] else 's_memrealtime'} {s(72 + 6 * k, 2)}")
                    if name != "start":
                        a("s_waitcnt lgkmcnt(0)")
        if not self.cfg["ts"] or name == "start":
            return
        if self.cfg["ts"] == 1 and name.startswith("p_"):
            return
        if self.cfg["ts"] == 4 and name not in ("kernarg", "end"):
            return
        if self.cfg["ts"] == 3 and name not in ("x0", "flag0", "poll0", "end") and name[2:] not in ("kvgemm", "ogemm"):
            return
        if self.cfg["ts"] == 2 and ":" in name and name[2:] not in ("kvgemm", "bar3", "ogemm"):
            return
        a(f"{'s_memrealtime' if self.cfg['rt'] else 's_memtime'} {s(sTSA, 2)}")
        a("s_waitcnt lgkmcnt(0)")
        a.lg.clear()
        a(f"v_writelane_b32 {v(vTS)}, {s(sTSA)}, {len(self.tsnames)}")
        self.tsnames.append(name)
        assert len(self.tsnames) <= 56

    def fine(self, name):
        if self.cfg["jitter"] and name not in ("start", "kernarg") and not name.endswith(("p_mfma",)):
            seed, mask, every = self.cfg["jitter"]
            self.njit = getattr(self, "njit", 0) + 1
            if (self.njit * 7 + seed) % every == 0:
                a = self.a
                l = a.newlabel("jit")
                a(f"s_lshl2_add_u32 s72, {s(sID)}, {s(sW)}")
                a(f"s_add_u32 s72, s72, {(self.njit * 2654435761 + seed * 40503) & 0xffff}")
                a(f"s_mul_i32 s72, s72, 0x9e3779b1")
                a(f"s_lshr_b32 s73, s72, 15")
                a(f"s_xor_b32 s72, s72, s73")
                a(f"s_mul_i32 s72, s72, 0x85ebca6b")
                a(f"s_lshr_b32 s73, s72, 20")
                a(f"s_lshr_b32 s72, s72, 8")
                a(f"s_and_b32 s72, s72, s73")
                a(f"s_and_b32 s72, s72, {mask}")
                a.label(l)
                a("s_sleep 2")
                a("s_sub_u32 s72, s72, 1")
                a(f"s_cbranch_scc0 {l}")
        if name in self.cfg["pfine"]:
            self.a(f"s_memtime {s(84 + 2 * list(self.cfg['pfine']).index(name), 2)}")
        if name in self.cfg["fine"]:
            self.a(f"s_memtime {s(FINE[list(self.cfg['fine']).index(name)], 2)}")

    def dump(self, point, l, regs, tmp):
        if self.cfg["dump"] != (point, l):
            return
        a = self.a
        with self.uncounted():
            a("s_waitcnt vmcnt(0) lgkmcnt(0)")
            a("s_nop 15")
            a(f"v_lshrrev_b32 {v(tmp)}, 2, {v(vL16)}")
            a(f"s_mul_i32 {s(sT0)}, {s(sGW)}, {64 * 256}")
            a(f"s_add_u32 {s(sT0)}, {s(sT0)}, {DBG}")
            for i, r in enumerate(regs):
                a(f"buffer_store_dword {v(r)}, {v(tmp)}, {s(sWS, 4)}, {s(sT0)} offen")
                a(f"s_add_u32 {s(sT0)}, {s(sT0)}, 256")
            a("s_waitcnt vmcnt(0)")

    def poll(self, voff, soff, tmp, tag=sTG):
        a = self.a
        l = a.newlabel("poll")
        a.label(l)
        a(f"buffer_load_dword {v(tmp)}, {v(voff)}, {s(sWS, 4)}, {s(soff)} offen sc1")
        self.countdown()
        a.wait(vm=0)
        a(f"v_cmp_ne_u32 vcc, {s(tag)}, {v(tmp)}")
        a(f"s_cbranch_vccnz {l}")

    def flag(self, soff, tmp, after=0):
        a = self.a
        a("s_mov_b64 exec, 1")
        self.moded(a.wait_text(vm=after) + [f"buffer_store_dword {v(tmp)}, off, {s(sWS, 4)}, {s(soff)}"])
        a("s_mov_b64 exec, -1")

    def w_voff(self, t):
        a = self.a
        a(f"v_lshrrev_b32 {v(t)}, 6, {v(vL16)}")
        a(f"v_mul_u32_u24 {v(t)}, {3072 - 64}, {v(t)}")
        a(f"v_add_u32 {v(t)}, {v(t)}, {v(vL16)}")

    def ld_wkv(self, T, i, t, st=sT0):
        a = self.a
        if self.cfg["x_lin"] & (1 << T):
            a(f"s_lshl2_add_u32 {s(st)}, {s(sC)}, {s(sW)}")
            a(f"s_lshl_b32 {s(st)}, {s(st)}, 10")
            a(f"s_add_u32 {s(st)}, {s(st)}, {i * 65536}")
            a(f"buffer_load_dwordx4 {ar(A_WKV[T] + 4 * i, 4)}, {v(vL16)}, {s(sSW[T], 4)}, {s(st)} offen", vm=f"wkv{i}")
            return
        if self.cfg["rot"]:
            a(f"s_xor_b32 {s(st)}, {s(sROT)}, {i}")
            a(f"s_mul_i32 {s(st)}, {s(st)}, {32 * 3072}")
            a(f"s_add_u32 {s(st)}, {s(st)}, {s(sWOFF)}")
        else:
            a(f"s_add_u32 {s(st)}, {s(sWOFF)}, {i * 32 * 3072}")
        a(f"buffer_load_dwordx4 {ar(A_WKV[T] + 4 * i, 4)}, {v(t)}, {s(sSW[T], 4)}, {s(st)} offen", vm=f"wkv{i}")

    def ld_wq(self, T, i):
        a = self.a
        if self.cfg["x_lin"] & 4:
            a(f"s_add_u32 m0, {s(sW13)}, {L_WQ[T] + i * 1024}")
            a(f"s_lshl2_add_u32 {s(sT0)}, {s(sC)}, {s(sW)}")
            a(f"s_lshl_b32 {s(sT0)}, {s(sT0)}, 10")
            a(f"s_add_u32 {s(sT0)}, {s(sT0)}, {(16 + i) * 65536}")
            a(f"buffer_load_dwordx4 {v(vL16)}, {s(sSW[T], 4)}, {s(sT0)} offen lds", vm="wq")
            return
        if self.cfg["rotq"]:
            a(f"s_xor_b32 m0, {s(sWQM)}, {L_WQ[T] + i * 1024}")
        else:
            a(f"s_add_u32 m0, {s(sW13)}, {L_WQ[T] + i * 1024}")
        if self.cfg["rot"]:
            a(f"s_xor_b32 {s(sT0)}, {s(sQOFF)}, {i}")
            a(f"s_mul_i32 {s(sT0)}, {s(sT0)}, {16 * 48}")
            a(f"s_add_u32 {s(sT0)}, {s(sT0)}, {s(sC)}")
            a(f"s_lshl_b32 {s(sT0)}, {s(sT0)}, 6")
        else:
            a(f"s_add_u32 {s(sT0)}, {s(sQOFF)}, {i * 16 * 3072}")
        a(f"buffer_load_dwordx4 {v(self.bw)}, {s(sSW[T], 4)}, {s(sT0)} offen lds", vm="wq")

    def ld_wo(self, T, i):
        a = self.a
        a(f"s_xor_b32 {s(sT0)}, {s(sOOFF)}, {i * 32 * 1024}")
        a(f"buffer_load_dwordx4 {ar(A_WO[T] + 4 * i, 4)}, {v(vBO)}, {s(sSO[T], 4)}, {s(sT0)} offen", vm=f"wo{i}")

    def slow_pf(self, srd, n, t):
        a = self.a
        if not self.cfg["slowpf"]:
            return
        a(f"s_sub_u32 {s(sT0)}, 0x180, {s(srd)}")
        a(f"s_and_b32 {s(sT0)}, {s(sT0)}, 0x380")
        a(f"s_mul_i32 {s(sT1)}, {s(sPF)}, {n * 1024}")
        a(f"s_add_u32 {s(sT0)}, {s(sT0)}, {s(sT1)}")
        a(f"v_lshlrev_b32 {v(t)}, 6, {v(vL16)}")
        a(f"s_mov_b64 exec, {(1 << n) - 1:#x}")
        a(f"buffer_load_dword {v(t)}, {v(t)}, {s(srd, 4)}, {s(sT0)} offen")
        a("s_mov_b64 exec, -1")

    def chip_pf(self, srd, n, t):
        a = self.a
        a(f"s_lshl2_add_u32 {s(sT0)}, {s(sID)}, {s(sW)}")
        a(f"s_mul_i32 {s(sT0)}, {s(sT0)}, {n * 128}")
        a(f"v_lshlrev_b32 {v(t)}, 3, {v(vL16)}")
        a(f"s_mov_b64 exec, {(1 << n) - 1:#x}")
        a(f"buffer_load_dword a255, {v(t)}, {s(srd, 4)}, {s(sT0)} offen")
        a("s_mov_b64 exec, -1")

    def bg_setup(self, T):
        self.bg = [(lambda i=i: self.ld_wq(T, i)) for i in range(8)] + [(lambda i=i: self.ld_wo(T, i)) for i in range(16)]
        if T == 0:
            self.bg += [(lambda i=i: self.ld_wkv(1, i, vBW)) for i in range(16)]
            old2 = self.bg[self.cfg["xr_at"]]

            def xr():
                a = self.a
                assert self.bw == vBW
                self.srd_tmp(sPX, 0x200000)
                a(f"s_add_u32 {s(sT0)}, {s(sFIN)}, 8192")
                for i in range(2):
                    a(f"buffer_load_dwordx4 {v(XR + 4 * i, 4)}, {v(vBO)}, {s(sTMP, 4)}, {s((sFIN, sT0)[i])} offen", vm="xr")
                old2()
            self.bg[self.cfg["xr_at"]] = xr
            at, which = self.cfg["latepf"]
            old = self.bg[at]

            def both():
                t = RG + 23 if self.bw == vBW else PK + 8
                for c_ in which:
                    self.chip_pf(*{"a": (sSW[0], 12), "b": (sSW[1], 12), "A": (sSO[0], 4), "B": (sSO[1], 4)}[c_], t)
                old()
            self.bg[at] = both

    def put_wkv(self, T, lo, hi, waits=False):
        for i in range(lo, hi):
            if self.cfg["x_noput"] & 1 and getattr(self, "cur", 0) and self.cur > 0.5:
                continue
            if waits:
                self.a.wait(vm=f"wkv{i}")
            self.a(f"ds_write_b128 {v(vWKW)}, {ar(A_WKV[T] + 4 * i, 4)} offset:{i * 2048}", lg="put")

    def put_wo(self, T, i):
        if self.cfg["x_noput"] & 2 and self.cur > 0 and i >= self.cfg["np"]:
            return
        self.a(f"ds_write_b128 {v(vWOW)}, {ar(A_WO[T] + 4 * i, 4)} offset:{i * 1024}", lg="putwo")

    def woff(self, j, u):
        if self.lay == 0:
            return j * 1024 + u * 256
        return (j >> 2) * 4096 + u * 1024 + (j & 3) * 256

    def cs_kv_step(self, T, i, sel, d):
        return (f"v_mfma_f32_16x16x32_bf16 {v(d, 4)}, {v(sel, 4)}, {ar(A_WKV[T] + 4 * i, 4)}, {v(d, 4) if i else 0}")

    def cs_q_fin(self, T, d, t):
        o = [f"s_lshl_b32 {s(sT2)}, {s(sW)}, 2\ns_add_u32 {s(sT2)}, {s(sT2)}, {L_CSP + T * 1536 + 1024}",
             f"v_lshrrev_b32 {v(t)}, 9, {v(vL16)}\nv_lshl_add_u32 {v(t)}, {v(t)}, 5, {s(sT2)}"]
        for bit, sh in ((4, 8), (8, 7), (5, 6)):
            o.append(f"v_bfe_u32 {v(t + 1)}, {v(vL16)}, {bit}, 1\nv_lshl_add_u32 {v(t)}, {v(t + 1)}, {sh}, {v(t)}")
        f = [f"v_permlane32_swap_b32 {v(d)}, {v(d + 2)}", f"v_permlane32_swap_b32 {v(d + 1)}, {v(d + 3)}",
             f"v_add_f32 {v(d)}, {v(d)}, {v(d + 2)}\nv_add_f32 {v(d + 1)}, {v(d + 1)}, {v(d + 3)}"]
        for ror in (4, 8):
            f.append(f"v_add_f32 {v(d)}, {v(d)}, {v(d)} row_ror:{ror}\nv_add_f32 {v(d + 1)}, {v(d + 1)}, {v(d + 1)} row_ror:{ror}")
        f.append(lambda: self.a(f"ds_write2_b32 {v(t)}, {v(d)}, {v(d + 1)} offset0:0 offset1:4", lg="csw"))
        return o, f

    def cs_kv_fin(self, T, d, t):
        o = [f"s_and_b32 {s(sT2)}, {s(sW)}, 1",
             f"s_lshl_b32 {s(sT2)}, {s(sT2)}, 9",
             f"s_and_b32 {s(sT1)}, {s(sW)}, 2",
             f"s_lshl2_add_u32 {s(sT2)}, {s(sT1)}, {s(sT2)}",
             f"s_add_u32 {s(sT2)}, {s(sT2)}, {L_CSP + T * 1536}",
             f"v_lshrrev_b32 {v(t)}, 9, {v(vL16)}",
             f"v_lshl_add_u32 {v(t)}, {v(t)}, 2, {s(sT2)}"]
        for bit, sh in ((4, 8), (8, 7), (5, 6)):
            o += [f"v_bfe_u32 {v(t + 1)}, {v(vL16)}, {bit}, 1", f"v_lshl_add_u32 {v(t)}, {v(t + 1)}, {sh}, {v(t)}"]
        f = [f"v_add_f32 {v(d + i)}, {v(d + i)}, {v(d + i)} row_ror:{ror}" for ror in (4, 8) for i in range(4)]
        f += [f"ds_write2_b32 {v(t)}, {v(d)}, {v(d + 1)} offset0:0 offset1:4", f"ds_write2_b32 {v(t)}, {v(d + 2)}, {v(d + 3)} offset0:8 offset1:12"]
        return o, f

    def hello(self, d, t):
        a = self.a
        with self.only_if(f"s_cmp_lt_u32 {s(sW)}, 2"):
            a(f"s_or_b32 {s(sT1)}, {s(sTAG)}, 0xf0")
            a(f"v_mov_b32 {v(d)}, {s(sT1)}")
            a(f"v_lshrrev_b32 {v(t)}, 2, {v(vL16)}")
            a(f"s_lshl_b32 {s(sT0)}, {s(sR)}, 7")
            a(f"s_add_u32 {s(sT0)}, {s(sT0)}, {s(sHEL)}")
            a("s_mov_b32 exec_hi, 0")
            a(f"buffer_store_dword {v(d)}, {v(t)}, {s(sWS, 4)}, {s(sT0)} offen sc1")
            a("s_mov_b32 exec_hi, -1")

    def mark_slot(self, delta, ones):
        a = self.a
        a(f"s_add_u32 {s(sT2)}, {s(sKVT)}, {delta}")
        a(f"s_mov_b64 exec, {s(sROW, 2)}")
        a(f"buffer_store_dwordx4 {v(ones, 4)}, {v(vPST)}, {s(sWS, 4)}, {s(sT2)} offen sc1", vm="mark")
        a(f"s_mov_b64 exec, {s(sCOL, 2)}")
        a(f"buffer_store_dwordx4 {v(ones, 4)}, {v(vZST)}, {s(sWS, 4)}, {s(sT2)} offen sc1", vm="mark")
        a("s_mov_b64 exec, -1")

    def sel_read(self, sel):
        a = self.a
        a(f"v_and_b32 {v(sel)}, 0x1f0, {v(vL16)}")
        a(f"v_add_u32 {v(sel)}, {L_SEL:#x}, {v(sel)}")
        a(f"ds_read_b128 {v(sel, 4)}, {v(sel)}", lg="sel")

    @staticmethod
    def cs_pack(src, dst):
        return [
            f"v_add_f32 {v(src)}, {v(src)}, {v(src + 2)}",
            f"v_add_f32 {v(src + 1)}, {v(src + 1)}, {v(src + 3)}",
            f"v_add_f32 {v(src)}, {v(src)}, {v(src + 1)}",
            f"v_cvt_pk_bf16_f32 {v(src + 1)}, {v(src)}, {v(src)}",
            f"v_and_b32 {v(src + 1)}, 0xffff0000, {v(src + 1)}",
            f"v_sub_f32 {v(src)}, {v(src)}, {v(src + 1)}",
            f"v_cvt_pk_bf16_f32 {v(dst)}, {v(src + 1)}, {v(src)}",
        ]

    def x_steps(self, B, src, X, wt=False, par=0):
        a = self.a
        t = X + 8
        st = []
        E = lambda txt: st.append(lambda: a(txt))
        xl = []
        for h in range(2):
            xl += [f"v_cvt_pk_bf16_f32 {v(X + i)}, {v(src + 2 * i)}, {v(src + 2 * i + 1)}" for i in range(4 * h, 4 * h + 4)]
            xl += [f"buffer_store_dwordx4 {v(X + 4 * h, 4)}, {v(vXST)}, {s(XS[B], 4)}, {s(sXST)} offen offset:{h * 512}"]
        st.append(lambda: self.moded(xl, tag="xst", wt=wt))
        E(f"v_pk_add_f32 {v(t, 2)}, {v(src, 2)}, {v(src + 2, 2)}")
        E(f"v_pk_mul_f32 {v(t + 2, 2)}, {v(src, 2)}, {v(src, 2)}")
        E(f"v_pk_fma_f32 {v(t + 2, 2)}, {v(src + 2, 2)}, {v(src + 2, 2)}, {v(t + 2, 2)}")
        for i in range(2, 8):
            E(f"v_pk_add_f32 {v(t, 2)}, {v(t, 2)}, {v(src + 2 * i, 2)}")
            E(f"v_pk_fma_f32 {v(t + 2, 2)}, {v(src + 2 * i, 2)}, {v(src + 2 * i, 2)}, {v(t + 2, 2)}")
        E(f"v_add_f32 {v(t)}, {v(t)}, {v(t + 1)}")
        E(f"v_add_f32 {v(t + 2)}, {v(t + 2)}, {v(t + 3)}")
        E(f"v_permlane32_swap_b32 {v(t)}, {v(t + 2)}")
        E(f"v_add_f32 {v(t)}, {v(t)}, {v(t + 2)}")
        E(f"v_mov_b32 {v(t + 1)}, {v(t)}")

        def stat():
            self.moded([f"v_permlane16_swap_b32 {v(t)}, {v(t + 1)}", f"s_mov_b64 exec, {s(sROW, 2)}", f"v_add_f32 {v(t)}, {v(t)}, {v(t + 1)}",
                        f"v_or_b32 {v(t)}, 1, {v(t)}" if par else f"v_and_b32 {v(t)}, -2, {v(t)}",
                        f"buffer_store_dword {v(t)}, {v(vSST)}, {s(sWS, 4)}, {s(sSTST)} offen"], tag="sst")
            a("s_mov_b64 exec, -1")
        st.append(stat)
        return st

    def ldx(self, B, j):
        a = self.a
        if self.cfg["x_h"] & 1 and self.lay and j in (29, 30):
            return
        if j % 4 == 0 and j:
            a(f"s_xor_b32 {s(sT3)}, {s(sXLD)}, {j * 1024}")
        a(f"buffer_load_dwordx4 {v(XF + 4 * j, 4)}, {v(vL16)}, {s(XS[B], 4)}, {s(sT3 if j >= 4 else sXLD)} offen offset:{(j % 4) * 1024} sc1", vm=f"x{j}")

    def probe(self, what, reg, setexec=True):
        a = self.a
        voff, srd, soff, off, _ = what
        if setexec:
            a("s_mov_b64 exec, 0xffff")
        a(f"buffer_load_dword {v(reg)}, {v(voff)}, {s(srd, 4)}, {s(soff)} offen offset:{off} sc1", vm="probe")
        if setexec:
            a("s_mov_b64 exec, -1")

    def spin_more(self, what, name):
        a = self.a
        a(f"s_branch L_over{name}")
        a.label(f"L_more{name}")
        with self.uncounted():
            self.probe(what, vPR, False)
            self.countdown()
            a("s_waitcnt vmcnt(1)")
            a(f"{what[4]}, {v(vPB)}")
            a(f"s_cbranch_vccz L_go{name}")
            a(f"s_branch L_spin{name}")
        a.label(f"L_over{name}")
        self.nook = a.ins[-1]

    def spin(self, what, name):
        a = self.a
        a("s_mov_b64 exec, 0xffff")
        a.label(f"L_spin{name}")
        self.probe(what, vPB, False)
        a("s_waitcnt vmcnt(1)")
        a(f"{what[4]}, {v(vPR)}")
        a(f"s_cbranch_vccnz L_more{name}")
        a.label(f"L_go{name}")
        a("s_mov_b64 exec, -1")
        a.vm.clear()

    def what_x(self, l):
        if self.cfg["hx"][l] == "s":
            return (vPA, XS[self.xb[l]], sT3, 3824, "v_cmp_eq_u32 vcc, -1")
        return (vPOLL, sWS, sFXP, 0, f"v_cmp_ne_u32 vcc, {s(sTG)}")

    def what_o(self, l):
        if self.cfg["ho"][l] == "s":
            return (vPA, sWS, sT3, 1008, "v_cmp_eq_u32 vcc, -1")
        return (vPOLL, sWS, sFOP, 0, f"v_cmp_ne_u32 vcc, {s(sTG)}")

    def x_probe_addr(self):
        return [f"v_and_b32 {v(vPR)}, 4, {v(vPOLL)}",
                f"v_mul_u32_u24 {v(vPR)}, 448, {v(vPR)}",
                f"v_lshlrev_b32 {v(vPA)}, 9, {v(vPOLL)}",
                f"v_sub_u32 {v(vPA)}, {v(vPA)}, {v(vPR)}"]

    def phi_a(self, acc, tmp, after=None):
        a = self.ticker()
        if self.lay == 0:
            for i in range(8):
                a(f"v_cvt_pk_bf16_f32 {v(PK + i)}, {v(acc + 2 * i)}, {v(acc + 2 * i + 1)}")
            for i in range(8):
                a(f"v_lshlrev_b32 {v(acc + 2 * i)}, 16, {v(PK + i)}")
                a(f"v_and_b32 {v(acc + 2 * i + 1)}, 0xffff0000, {v(PK + i)}")
            for i in range(8):
                a(f"v_pk_mul_f32 {v(tmp + 2 * i, 2)}, {v(acc + 2 * i, 2)}, {v(vS, 2)} op_sel_hi:[1,0]")
            for i in range(16):
                a(f"v_exp_f32_e64 {v(tmp + i)}, {v(tmp + i)} clamp")
                a(f"v_max_f32 {v(acc + i)}, {s(sDELTA)}, {v(acc + i)}")
            for h in range(2):
                for i in range(4 * h, 4 * h + 4):
                    a(f"v_pk_add_f32 {v(acc + 2 * i, 2)}, {v(acc + 2 * i, 2)}, {v(tmp + 2 * i, 2)}")
                for i in range(4 * h, 4 * h + 4):
                    a(f"v_cvt_pk_bf16_f32 {v(PK + i)}, {v(acc + 2 * i)}, {v(acc + 2 * i + 1)}")
                if after:
                    after(h)
            return
        for i in range(8):
            a(f"v_pk_mul_f32 {v(acc + 2 * i, 2)}, {v(acc + 2 * i, 2)}, {v(vS, 2)} op_sel_hi:[1,0]")
        for i in range(16):
            a(f"v_exp_f32_e64 {v(tmp + i)}, {v(acc + i)} clamp")
            a(f"v_max_f32 {v(acc + i)}, {s(sDELTA)}, {v(acc + i)}")
        for h in range(2):
            for i in range(4 * h, 4 * h + 4):
                a(f"v_pk_fma_f32 {v(acc + 2 * i, 2)}, {v(acc + 2 * i, 2)}, {s(sLN2, 2)}, {v(tmp + 2 * i, 2)}")
            for i in range(4 * h, 4 * h + 4):
                a(f"v_cvt_pk_bf16_f32 {v(PK + i)}, {v(acc + 2 * i)}, {v(acc + 2 * i + 1)}")
            if after:
                after(h)

    def logits(self, between=None):
        a = self.a
        a.wait(lg="wp")
        for i in range(6):
            a(f"v_cvt_pk_bf16_f32 {v(PK + i)}, {v(AK + 2 * i)}, {v(AK + 2 * i + 1)}")
        a(f"v_mfma_f32_32x32x16_bf16 {v(LG, 16)}, {v(PK + 8, 4)}, {v(PK, 4)}, 0")
        for i in range(6, 8):
            a(f"v_cvt_pk_bf16_f32 {v(PK + i)}, {v(AK + 2 * i)}, {v(AK + 2 * i + 1)}")
        if between:
            between()
        a(f"v_mfma_f32_32x32x16_bf16 {v(LG, 16)}, {v(PK + 12, 4)}, {v(PK + 4, 4)}, {v(LG, 16)}")

    def softmax2(self, t, isq, after=None):
        a = self.ticker()
        a(f"v_max3_f32 {v(t)}, {v(LG)}, {v(LG + 1)}, {v(LG + 2)}")
        a(f"v_min3_f32 {v(t + 1)}, {v(LG)}, {v(LG + 1)}, {v(LG + 2)}")
        for i in range(3, 15, 2):
            a(f"v_max3_f32 {v(t)}, {v(t)}, {v(LG + i)}, {v(LG + i + 1)}")
            a(f"v_min3_f32 {v(t + 1)}, {v(t + 1)}, {v(LG + i)}, {v(LG + i + 1)}")
        a(f"v_max_f32 {v(t)}, {v(t)}, {v(LG + 15)}")
        a(f"v_min_f32 {v(t + 1)}, {v(t + 1)}, {v(LG + 15)}")
        a(f"v_pk_mul_f32 {v(t, 2)}, {v(t, 2)}, {v(vS, 2)} op_sel_hi:[1,0]")
        for sg, E in ((0, AK), (1, LG)):
            for i in range(8):
                if sg == 0:
                    a(f"v_pk_fma_f32 {v(E + 2 * i, 2)}, {v(LG + 2 * i, 2)}, {v(vS, 2)}, {v(t, 2)} op_sel_hi:[1,0,0] neg_lo:[0,0,1] neg_hi:[0,0,1]")
                else:
                    a(f"v_pk_fma_f32 {v(E + 2 * i, 2)}, {v(LG + 2 * i, 2)}, {v(vS, 2)}, {v(t, 2)} op_sel:[0,0,1] op_sel_hi:[1,0,1] neg_lo:[1,0,0] neg_hi:[1,0,0]")
            for i in range(16):
                a(f"v_exp_f32 {v(E + i)}, {v(E + i)}")
            if self.cfg["x_h"] & 2 and not isq:
                a("s_nop 12")
            S = t + 2 + 2 * sg
            a(f"v_pk_add_f32 {v(S, 2)}, {v(E, 2)}, {v(E + 2, 2)}")
            for i in range(2, 8):
                a(f"v_pk_add_f32 {v(S, 2)}, {v(S, 2)}, {v(E + 2 * i, 2)}")
            a(f"v_add_f32 {v(S)}, {v(S)}, {v(S + 1)}")
            if not (isq and sg == 0):
                a(f"v_rcp_f32 {v(S)}, {v(S)}")
                if isq:
                    a(f"v_mul_f32 {v(t + 6)}, {f2u(1e-6):#x}, {v(t + 2)}")
                    a(f"v_mul_f32 {v(S)}, {v(S)}, {v(t + 2)}")
            for h in range(2):
                for i in range(4 * h, 4 * h + 4):
                    if not (isq and sg == 0):
                        a(f"v_pk_mul_f32 {v(E + 2 * i, 2)}, {v(E + 2 * i, 2)}, {v(S, 2)} op_sel_hi:[1,0]")
                for i in range(4 * h, 4 * h + 4):
                    a(f"v_cvt_pk_bf16_f32 {v(PK + 8 * sg + i)}, {v(E + 2 * i)}, {v(E + 2 * i + 1)}")
                if after:
                    after(2 * sg + h)

    def layer(self, l):
        a, cfg = self.a, self.cfg
        T, first, last = l & 1, l < 2, l == 3
        self.lay = l
        NJ = 2 if T == 0 else 4
        skip23 = (lambda: self.only_if(f"s_cmp_lt_u32 {s(sW)}, 2")) if T == 0 else contextlib.nullcontext
        bgn = cfg["bg"][l] if first else (0,) * 7
        self.bg = []
        if first:
            self.bg_setup(T)
            assert sum(bgn) >= len(self.bg) and bgn[0] + bgn[1] >= 8 and sum(bgn[:3]) >= 8 + cfg['np'] and sum(bgn[:5]) >= 24 and bgn[0] <= 8 and bgn[6] <= 8
        NX = cfg["nx0"]
        wx = (vPOLL, sWS, sFXP, 0, f"v_cmp_ne_u32 vcc, {s(sTG)}")
        wo_ = (vPOLL, sWS, sFOP, 0, f"v_cmp_ne_u32 vcc, {s(sTG)}")
        a.label(f"L_layer{l}")
        if l:
            self.spin(wx, f"x{l}")
        a.vm.clear()
        self.ts(f"{l}:xpoll")
        ST = LG
        CS = LG + 8
        CSA, MB = PK, PK + 2
        D = 3

        def rd(j, p):
            for u in range(2):
                a(f"ds_read_b64_tr_b16 {v(RG + (j % D) * 8 + 4 * p + 2 * u, 2)}, {v(vWRD)} offset:{p * 32768 + self.woff(j, u)}", lg=f"w{j}")

        def ldx(j):
            self.ldx(0, j)
            if l == 0:
                return
            if j == max(NX, 9):
                a(f"buffer_load_dwordx4 {v(ST, 4)}, {v(vSLD)}, {s(sWS, 4)}, {s(sSTLD)} offen sc1", vm="st")
            if j == max(NX, 9) + 2 and cfg["x_st"]:
                for i_ in range(4):
                    a(f"v_mov_b32 {v(ST + 4 + i_)}, {T}")
            elif j == max(NX, 9) + 2:
                a(f"buffer_load_dwordx4 {v(ST + 4, 4)}, {v(vSLD)}, {s(sWS, 4)}, {s(sSTLD)} offen offset:512 sc1", vm="st")
        nx1 = cfg["nx1"]
        for j in range(nx1):
            ldx(j)
        for i in self.puts_left:
            self.put_wkv(T, i, i + 1)
            if nx1 < NX and cfg["xmix"]:
                ldx(nx1)
                nx1 += 1
        a.wait(lg=0)
        a("s_barrier")
        self.cur = l
        self.ts(f"{l}:bar1")
        pre = [(j, p) for j in range(D) for p in range(2)]
        for j in range(nx1, NX):
            for _ in range(2):
                if pre:
                    rd(*pre.pop(0))
            ldx(j)
        while pre:
            rd(*pre.pop(0))
        if l:
            a(f"ds_read_b128 {v(CS, 4)}, {v(vCSR)} offset:{T * 1536}", lg="cs")
            a(f"ds_read_b128 {v(CS + 4, 4)}, {v(vCSR)} offset:{T * 1536 + 512}", lg="cs")
        t, u_ = ST, ST + 1
        stat = []
        if l > 1 and cfg["spar"]:
            CK = PK + 6
            op = "0x80" if T else "0xfe"
            stat = [f"L_sums{l}:\nv_bitop3_b32 {v(CK)}, {v(ST)}, {v(ST + 1)}, {v(ST + 2)} bitop3:{op}",
                    f"v_bitop3_b32 {v(CK)}, {v(CK)}, {v(ST + 3)}, {v(ST + 4)} bitop3:{op}\n"
                    f"v_bitop3_b32 {v(CK)}, {v(CK)}, {v(ST + 5)}, {v(ST + 6)} bitop3:{op}\n"
                    f"v_bitop3_b32 {v(CK)}, {v(CK)}, {v(ST + 7)}, 1 bitop3:{'0x80' if T else '0xa8'}\n"
                    f"v_cmp_ne_u32 vcc, {T}, {v(CK)}\n"
                    f"s_cbranch_vccnz L_sumsre{l}"]
            stat = [None, stat[0] + "\n" + stat[1]]
            with self.outofline():
                a.label(f"L_sumsre{l}")
                self.countdown()
                if cfg["ts"]:
                    a(f"s_add_u32 {s(sLAY)}, {s(sLAY)}, 1")
                for i in range(2):
                    a(f"buffer_load_dwordx4 {v(ST + 4 * i, 4)}, {v(vSLD)}, {s(sWS, 4)}, {s(sSTLD)} offen offset:{512 * i} sc1")
                a("s_waitcnt vmcnt(0)")
                a(f"s_branch L_sums{l}")
        stat += [
            f"v_add_f32 {v(ST)}, {v(ST)}, {v(ST + 2)}",
            f"v_add_f32 {v(ST + 1)}, {v(ST + 1)}, {v(ST + 3)}",
            f"v_add_f32 {v(ST + 4)}, {v(ST + 4)}, {v(ST + 6)}",
            f"v_add_f32 {v(ST + 5)}, {v(ST + 5)}, {v(ST + 7)}",
            f"v_add_f32 {v(ST)}, {v(ST)}, {v(ST + 4)}",
            f"v_add_f32 {v(ST + 1)}, {v(ST + 1)}, {v(ST + 5)}",
            f"v_add_f32 {v(t)}, {v(ST)}, {v(ST + 1)}",
            f"v_mul_f32 {v(t)}, {f2u(1 / 512):#x}, {v(t)}",
            f"v_mov_b32 {v(u_)}, {v(t)}",
            f"v_permlane32_swap_b32 {v(t)}, {v(u_)}",
            f"v_fma_f32 {v(u_)}, -{v(t)}, {v(t)}, {v(u_)}",
            f"v_max_f32 {v(u_)}, 0, {v(u_)}",
            f"v_cvt_pk_bf16_f32 {v(vM)}, -{v(t)}, -{v(t)}",
            f"v_cvt_pk_bf16_f32 {v(u_)}, {v(u_)}, {v(u_)}",
            f"v_and_b32 {v(u_)}, 0xffff0000, {v(u_)}",
            f"v_add_f32 {v(u_)}, {f2u(1e-5):#x}, {v(u_)}",
            f"v_cvt_pk_bf16_f32 {v(u_)}, {v(u_)}, {v(u_)}",
            f"v_and_b32 {v(u_)}, 0xffff0000, {v(u_)}",
            f"v_sqrt_f32 {v(u_)}, {v(u_)}",
            f"v_cndmask_b32 {v(vM)}, {v(vM)}, 0, {s(sHI, 2)}",
            f"v_cvt_pk_bf16_f32 {v(u_)}, {v(u_)}, {v(u_)}",
            f"v_and_b32 {v(u_)}, 0xffff0000, {v(u_)}",
            f"v_rcp_f32 {v(vRS)}, {v(u_)}",
            f"v_mov_b32 {v(MB)}, {v(vM)}",
            f"v_mul_f32 {v(vS)}, {LOG2E:#x}, {v(vRS)}",
            f"v_mov_b32 {v(MB + 3)}, {v(vM)}",
        ]
        js = max(NX, 9) + 3
        fill = [f"v_mov_b32 {v(MB + 1)}, 0", f"v_mov_b32 {v(MB + 2)}, 0"]
        if l == 0:
            fill += [f"v_mov_b32 {v(PK + 12 + i)}, -1" for i in range(4)]
        fill += [None] * (2 * D - len(fill)) + self.cs_pack(CS, CSA) + self.cs_pack(CS + 4, CSA + 1)
        self.bw = CS + 2
        if first:
            fill += [f"v_lshrrev_b32 {v(self.bw)}, 6, {v(vL16)}", f"v_mul_u32_u24 {v(self.bw)}, {3072 - 64}, {v(self.bw)}",
                     f"v_add_u32 {v(self.bw)}, {v(self.bw)}, {v(vL16)}"]
        fill += [None] * (2 * js - len(fill)) + stat
        jc = (len(fill) + 1) // 2 + 1
        assert jc <= 31
        if l == 0:
            fill = fill[2:6] + fill[20:23] + [f"v_mov_b32 {v(vS)}, {LOG2E:#x}"]
            assert all(fill) and str(self.bw) in fill[4]
            self.sel_read(PK)
            addr, fin = self.cs_kv_fin(0, PK + 4, LG)
            for i in range(16):
                fill += [addr.pop(0) if addr else None, self.cs_kv_step(0, i, PK, PK + 4)]
            fill += [None] * 4 + fin
            jc = -1
        self.bg_region(bgn[0], NX)
        for j in range(32):
            a.wait(vm=f"x{j}", lg=f"w{j}")
            self.fine(f"{l}:x{j}")
            if j == jc:
                a(f"v_mfma_f32_32x32x8_bf16 {v(AK, 16)}, {v(CSA, 2)}, {v(MB, 2)}, {v(AK, 16)}")
                a(f"v_mfma_f32_32x32x8_bf16 {v(AV, 16)}, {v(CSA, 2)}, {v(MB + 2, 2)}, {v(AV, 16)}")
            for p, acc in ((0, AK), (1, AV)):
                c = v(acc, 16) if j else "0"
                a(f"v_mfma_f32_32x32x16_bf16 {v(acc, 16)}, {v(RG + (j % D) * 8 + 4 * p, 4)}, {v(XF + 4 * j, 4)}, {c}")
                if p == 0:
                    if j + NX < 32:
                        ldx(j + NX)
                    if l == 0 and j + NX == 32:
                        self.mark_slot(KVP[1] - KVP[0], PK + 12)
                    if l == 0 and j and j == cfg["oinit"][0]:
                        for i in range(2):
                            a(f"buffer_store_dwordx4 {v(PK + 12, 4)}, {v(vOST)}, {s(sWS, 4)}, {s(sOST)} offen offset:{256 * i} sc1", vm="oinit")
                    if l == 0 and cfg["otouch"] and j == cfg["otouch"]:
                        t_ = PK + 8
                        a(f"v_bfe_u32 {v(t_)}, {v(vL16)}, 7, 1")
                        a(f"v_mul_u32_u24 {v(t_)}, {(16384 - 1024) // 8}, {v(t_)}")
                        a(f"v_add_lshl_u32 {v(t_)}, {v(t_)}, {v(vL16)}, 3")
                        a("s_mov_b64 exec, 0xffff")
                        a(f"buffer_load_dword {v(RG + 23)}, {v(t_)}, {s(sWS, 4)}, {s(sOST)} offen sc1")
                        a("s_mov_b64 exec, -1")
                    if j + NX >= 32:
                        self.bg_tick()
                    if j == 31 and not first:
                        a("s_nop 5")
                    if first and j == 30:
                        a(f"v_mov_b32 {v(vBW)}, {v(self.bw)}")
                        a(f"v_lshrrev_b32 {v(vBO)}, 7, {v(vL16)}")
                        a(f"v_mul_u32_u24 {v(vBO)}, {1024 - 128}, {v(vBO)}")
                        a(f"v_add_u32 {v(vBO)}, {v(vBO)}, {v(vL16)}")
                if p and fill and fill[0] and fill[1:] and fill[1]:
                    a(fill[0]); fill[0] = None
                if j + D < 32:
                    rd(j + D, p)
                if T == 1 and j == 29:
                    a(f"ds_read_b128 {v(PK + 8 + 4 * p, 4)}, {v(vKFR)} offset:{L_WPF - L_KVF + KS * p}", lg="wp")
                for _ in range(2 if p else 0):
                    f_ = fill.pop(0) if fill else None
                    if f_:
                        a(f_)
        self.bw = vBW
        if l == 0 and cfg["hello_late"]:
            self.hello(PK + 8, PK + 9)
        if first:
            self.slow_pf(sSO[T], 4, RG + 23)
        self.ts(f"{l}:kvgemm")
        self.dump("kv", l, list(range(AK, AK + 32)) + [vS, vRS, vM], RG)

        def v_steps(e):
            st = []
            for h in range(2):
                for i in range(4 * h, 4 * h + 4):
                    if l == 0:
                        pass
                    elif T == 0:
                        st.append(lambda i=i: e(f"v_pk_mul_f32 {v(AV + 2 * i, 2)}, {v(AV + 2 * i, 2)}, {v(vS, 2)} op_sel:[0,1]"))
                    else:
                        st.append(lambda i=i: e(f"v_mul_f32 {v(AV + 2 * i)}, {v(AV + 2 * i)}, {v(vRS)}"))
                        st.append(lambda i=i: e(f"v_mul_f32 {v(AV + 2 * i + 1)}, {v(AV + 2 * i + 1)}, {v(vRS)}"))
                for i in range(4 * h, 4 * h + 4):
                    st.append(lambda i=i: e(f"v_cvt_pk_bf16_f32 {v(AV + i)}, {v(AV + 2 * i)}, {v(AV + 2 * i + 1)}"))
                st.append(lambda h=h: a(f"ds_write_b128 {v(vSTW)}, {v(AV + 4 * h, 4)} offset:{0x4000 + 128 * h}"))
            return st

        def stage(k):
            a(f"ds_write_b128 {v(vSTW)}, {v(PK + 4 * k, 4)} offset:{(k >> 1) * 8192 + 128 * (k & 1)}")
        vst = v_steps(self.ticker())
        if T == 0:
            self.bg_region(bgn[1], 72)
            self.phi_a(AK, LG, stage)
            for st in vst:
                st()
        else:
            self.bg_region(bgn[1], 125)
            self.logits(lambda: [vst.pop(0)() for _ in range(4)])
            for st in vst:
                st()
            self.softmax2(RG, False, stage)
        self.dump("pk", l, list(range(PK, PK + 16)) + list(range(AV, AV + 8)), RG)
        ONE, DK, DZ, PB, QA = AK, AV + 8, AV + 12, AV + 4, AV + 3
        for i in range(4):
            a(f"v_mov_b32 {v(ONE + i)}, 0x3f803f80")
        D = 5 if first else 6

        def rq(j):
            for u in range(2 if first or j == 0 or j > cfg["x_qskip"] else 0):
                a(f"ds_read_b64_tr_b16 {v(RG + (j % D) * 4 + 2 * u, 2)}, {v(QA)} offset:{self.woff(j, u)}", lg=f"q{j}")
        a.wait(vm="mark", lg=0)
        a("s_barrier")
        a(f"v_add_u32 {v(QA)}, {L_WQ[T]:#x}, {v(vWRD)}")
        self.ts(f"{l}:bar2")
        early = False
        w01 = (lambda k: self.waves01(((4, 5), (6, 9), (7, 8), (10, 11))[l + k])) if T == 0 else (lambda k: contextlib.nullcontext())
        with w01(0):
            def rp(st, k):
                for u in range(2):
                    a(f"ds_read_b64_tr_b16 {v((LG, PK)[k] + 4 * st + 2 * u, 2)}, {v((vSTR, vSTR2)[k])} offset:{st * 1024 + u * 512}", lg=f"p{st}")
            PD = cfg["pdepth"]
            for st in range(PD):
                rp(st, 0); rp(st, 1)
            for st in range(4):
                a.wait(lg=f"p{st}")
                mm = [f"v_mfma_f32_16x16x32_bf16 {v(DK, 4)}, {v(LG + 4 * st, 4)}, {v(PK + 4 * st, 4)}, {v(DK, 4) if st else 0}",
                      f"v_mfma_f32_16x16x32_bf16 {v(DZ, 4)}, {v(LG + 4 * st, 4)}, {v(ONE, 4)}, {v(DZ, 4) if st else 0}"]
                a(mm[cfg["zst1"]])
                if st + PD < 4:
                    rp(st + PD, 0)
                a(mm[1 - cfg["zst1"]])
                if st + PD < 4:
                    rp(st + PD, 1)
            self.fine(f"{l}:p_mfma")
            if cfg["zst1"]:
                a(f"s_mov_b64 exec, {s(sCOL, 2)}")
                a(f"v_min_u32 {v(DZ)}, -2, {v(DZ)}")
                a(f"buffer_store_dwordx4 {v(DZ, 4)}, {v(vZST)}, {s(sWS, 4)}, {s(sKVT)} offen sc1")
                a("s_mov_b64 exec, -1")
            for i in range(2):
                a(f"v_cvt_pk_bf16_f32 {v(PB + i)}, {v(DK + 2 * i)}, {v(DK + 2 * i + 1)}")
            for i in range(2):
                a(f"v_cvt_pk_bf16_f32 {v(PB + 2 + i)}, {v(DK + 2 * i)}, {v(DK + 2 * i + 1)}")
            if not cfg["zst1"]:
                a(f"v_min_u32 {v(DZ)}, -2, {v(DZ)}")
            for i in range(2):
                a(f"v_permlane16_swap_b32 {v(PB + i)}, {v(PB + 2 + i)}")
            a(f"v_min_u32 {v(PB)}, -2, {v(PB)}")
            a(f"s_mov_b64 exec, {s(sROW, 2)}")
            a(f"buffer_store_dwordx4 {v(PB, 4)}, {v(vPST)}, {s(sWS, 4)}, {s(sKVT)} offen sc1")
            if not cfg["zst1"]:
                a(f"s_mov_b64 exec, {s(sCOL, 2)}")
                a(f"buffer_store_dwordx4 {v(DZ, 4)}, {v(vZST)}, {s(sWS, 4)}, {s(sKVT)} offen sc1")
            if T:
                a("s_mov_b64 exec, -1")
        if cfg["jit"] and l < 3:
            with self.only_if(f"s_cmp_eq_u32 {s(sW)}, 3"):
                self.code_pf(f"L_layer{l + 1}", f"L_layer{l + 2}" if l < 2 else "L_end", AV + 8)
        self.ts(f"{l}:publish")
        if l == 0:
            a(f"v_lshlrev_b32 {v(vHL)}, 5, {v(vPOLL)}")
            a(f"s_or_b32 {s(sTG)}, {s(sTAG)}, 0xf0")
            a(f"v_mov_b32 {v(AV + 9)}, {s(sTG)}")
            with skip23():
                a("s_mov_b64 exec, 0xffff")
                a(f"buffer_load_dword {v(AV + 9)}, {v(vHL)}, {s(sWS, 4)}, {s(sHEL)} offen sc1")
                a("s_mov_b64 exec, -1")
            self.slow_pf(sSW[1], 12, AV + 10)
            assert cfg["slowpf"]
            a.vm[-1] = "hl"
        if first:
            if T == 0:
                n = len(a.vm) - 1 - max(i for i, t_ in enumerate(a.vm) if t_ == "wq")
                with self.only_if(f"s_cmp_ge_u32 {s(sW)}, 2"):
                    a.wait(vm="wq")
                a(f"s_waitcnt vmcnt({n + 3})")
            else:
                a.wait(vm="wq")
            self.fine(f"{l}:wq")
            a("s_barrier")
            self.fine(f"{l}:barx")
        CS, CSA, MB, M1 = LG + 4, LG + 8, LG + 10, LG + 12
        PL, SEL, DR = 0, 36, 40

        def partial_load(i):
            if not cfg["zlast"]:
                i = (i + 8) % 9
            a(f"s_add_u32 {s(sT1)}, {s(sKVT)}, {i * 65536}")
            a(f"buffer_load_dwordx4 {v(PL + 4 * i, 4)}, {v(vL16)}, {s(sWS, 4)}, {s(sT1)} offen sc1", vm="pl")
        if not early:
            for j in range(D):
                rq(j)
        cs_read = lambda: a(f"ds_read_b128 {v(CS, 4)}, {v(vCSR)} offset:{T * 1536 + 1024}", lg="cs")
        fill = []
        if first:
            SQ, DQ, RQ, TQ = PK, PK + 4, PK + 8, LG
            self.sel_read(SQ)
            a(f"s_add_u32 {s(sT2)}, {s(sW13)}, {L_WQ[T]}")
            a(f"v_add_u32 {v(TQ + 2)}, {s(sT2)}, {v(vL16)}")
            rc = lambda i: a(f"ds_read_b128 {v(RQ + 4 * (i & 1), 4)}, {v(TQ + 2)} offset:{i * 1024}", lg=f"c{i}")
            rc(0); rc(1)
            addr, fin = self.cs_q_fin(T, DQ, TQ)

            def step(i):
                a.wait(lg=f"c{i}")
                a(f"v_mfma_f32_16x16x32_bf16 {v(DQ, 4)}, {v(SQ, 4)}, {v(RQ + 4 * (i & 1), 4)}, {v(DQ, 4) if i else 0}")
                if i + 2 < 8:
                    rc(i + 2)
                if addr:
                    a(addr.pop(0))

            def mark():
                with skip23():
                    self.mark_slot(KVP[l + 2] - KVP[l], M1)

            def sync():
                a.wait(lg="csw")
                a("s_barrier")
                cs_read()
            fill += [(lambda i=i: step(i)) for i in range(8)]
            fill += [f"v_mov_b32 {v(M1)}, -1\nv_mov_b32 {v(M1 + 1)}, -1\nv_mov_b32 {v(M1 + 2)}, -1\nv_mov_b32 {v(M1 + 3)}, -1", mark]
            fill += fin
            if l:
                fill += [None, None, sync, None, None, lambda: a.wait(lg="cs")]
        else:
            cs_read()
            fill += [None] * D
        pk = self.cs_pack(CS, CSA) + [f"v_mov_b32 {v(CSA + 1)}, 0", f"v_mov_b32 {v(MB)}, {v(vM)}", f"v_mov_b32 {v(MB + 1)}, 0"]
        if l:
            fill += [pk[i] + "\n" + pk[i + 1] for i in range(0, 10, 2)]
        jc = len(fill) + 1 if l else -1
        assert jc <= 31
        PS, PG = cfg["pl_step"][l], cfg["pl_gap"][l]
        assert PS >= 10
        G = 3 if T == 0 else 1

        def pl_group(k):
            with skip23():
                for i in range(G * k, G * k + G):
                    partial_load(i)
        pl_at = [PS + G * PG * k for k in range(9 // G)]
        if first:
            pl_at = [min(x, 31) for x in pl_at]
        self.bg_region(bgn[2], min(PS, 32))
        NP = cfg["np"]
        puts = list(range(NP))
        nq = 0 if first else min(NP, cfg["qputs"][T])
        put_at = [1 + (k * 30) // nq for k in range(nq)]
        for j in range(32):
            a.wait(lg=f"q{j}")
            if j == jc:
                a(f"v_mfma_f32_32x32x8_bf16 {v(AK, 16)}, {v(CSA, 2)}, {v(MB, 2)}, {v(AK, 16)}")
            if first or j == 0 or j > cfg["x_qskip"]:
                a(f"v_mfma_f32_32x32x16_bf16 {v(AK, 16)}, {v(RG + (j % D) * 4, 4)}, {v(XF + 4 * j, 4)}, {v(AK, 16) if j else 0}")
            self.bg_tick()
            if l == 0 and j == cfg["oinit"][1]:
                t_ = RG + 23
                a(f"v_bfe_u32 {v(t_)}, {v(vL16)}, 7, 1")
                a(f"v_mul_u32_u24 {v(t_)}, {(16384 - 1024) // 8}, {v(t_)}")
                a(f"v_add_lshl_u32 {v(t_)}, {v(t_)}, {v(vL16)}, 3")
                a("s_mov_b64 exec, 0xffff")
                a(f"buffer_load_dword a255, {v(t_)}, {s(sWS, 4)}, {s(sOST)} offen sc1")
                a("s_mov_b64 exec, -1")
            if l == 0 and j == pl_at[0] - 1:
                a.wait(vm="hl")
                a(f"v_cmp_ne_u32 vcc, {s(sTG)}, {v(AV + 9)}")
                a("s_cbranch_vccnz L_hello")
                a.label("L_hello_ok")
                with self.outofline():
                    a.label("L_hello")
                    self.poll(vHL, sHEL, AV + 9)
                    a("s_branch L_hello_ok")
            if j == cfg["ppf"][l]:
                assert l and j < pl_at[0]
                with skip23():
                    a(f"v_lshrrev_b32 {v(AV + 11)}, 7, {v(vL16)}")
                    a(f"v_mul_u32_u24 {v(AV + 11)}, {(65536 - 1024) // 8}, {v(AV + 11)}")
                    a(f"v_add_lshl_u32 {v(AV + 11)}, {v(AV + 11)}, {v(vL16)}, 3")
                    a(f"buffer_load_dword {v(AV + 11)}, {v(AV + 11)}, {s(sWS, 4)}, {s(sKVT)} offen sc1")
            for k, x in enumerate(pl_at):
                if x == j:
                    pl_group(k)
            if j + D < 32:
                rq(j + D)
            if j in put_at:
                self.put_wo(T, puts.pop(0))
            if j == 27:
                self.sel_read(SEL)
            if T == 1 and j in (28, 29):
                a(f"ds_read_b128 {v(PK + 8 + 4 * (j - 28), 4)}, {v(vKFR)} offset:{L_WPF - L_KVF + KS * (j - 28)}", lg="wp")
            if fill:
                f_ = fill.pop(0)
                if callable(f_):
                    f_()
                elif f_:
                    a(f_)
        self.ts(f"{l}:qgemm")
        self.dump("q", l, list(range(AK, AK + 16)), RG)
        EPS = RG + 6
        if first:
            if T == 0:
                n = len(a.vm) - 1 - max(i for i, t_ in enumerate(a.vm) if t_ == f"wo{NP - 1}")
                a(f"s_waitcnt vmcnt({n + 9})")
                with self.only_if(f"s_cmp_ge_u32 {s(sW)}, 2"):
                    a.wait(vm=f"wo{NP - 1}")
            else:
                a.wait(vm=f"wo{NP - 1}")
        nbg3 = min(bgn[3], len(self.bg))
        slots = 56 if T == 0 else 100
        self.bg_region(bgn[3], slots)
        if not first:
            late = [k for k, x in enumerate(pl_at) if x >= 32]
            self.bg = [(lambda k=k: pl_group(k)) for k in late]
            self.bg_at = [min(slots - 1, (pl_at[k] - 32) * 6) for k in late]
        self.side = [(lambda i=i: self.put_wo(T, i)) for i in puts]
        self.side_every = cfg["wo_every"][T]
        pop = lambda: self.side.pop(0)() if self.side else None
        pop()
        if T == 0:
            self.phi_a(AK, LG)
            a(f"v_mov_b32 {v(EPS)}, {f2u(1e-6) if l else 0:#x}")
            if l == 0:
                a(f"s_mov_b32 {s(sDELTA)}, {DELTA:#x}")
                a(f"v_lshrrev_b32 {v(LG)}, 9, {v(vL16)}")
                a(f"v_mul_u32_u24 {v(LG)}, {2048 - 512}, {v(LG)}")
                a(f"v_add_u32 {v(vWRD)}, {v(vWRD)}, {v(LG)}")
        else:
            self.logits(pop)
            pop()
            self.softmax2(RG, True)
        while self.side:
            pop()
        self.dump("pq", l, list(range(PK, PK + 16)), AV)
        self.ts(f"{l}:phiq")
        WR, DW = 64, 7
        WA = [vWOR, RG + 16, RG + 17, RG + 18]
        for t_ in range(1, 4):
            a(f"v_xor_b32 {v(WA[t_])}, {32 * t_}, {v(vWOR)}")
        a(f"s_add_u32 {s(sTG)}, {s(sTAG)}, {16 * (l + 1)}")
        a(f"v_mov_b32 {v(RG + 19)}, {s(sTG)}")
        a.wait(lg="sel")
        self.fine(f"{l}:r_wait")
        with w01(1):
            a.label(f"L_chk{l}")
            m, Z = 44, PL + 32
            gaps = [[f"v_max3_u32 {v(m)}, {v(Z)}, {v(PL)}, {v(PL + 4)}", f"v_permlane16_swap_b32 {v(Z)}, {v(Z + 1)}"],
                    [f"v_permlane16_swap_b32 {v(Z + 2)}, {v(Z + 3)}"],
                    [f"v_add_f32 {v(Z)}, {v(Z)}, {v(Z + 1)}", f"v_add_f32 {v(Z + 2)}, {v(Z + 2)}, {v(Z + 3)}"],
                    [f"v_max3_u32 {v(m)}, {v(m)}, {v(PL + 8)}, {v(PL + 12)}", f"v_permlane32_swap_b32 {v(Z)}, {v(Z + 2)}"],
                    [f"v_add_f32 {v(Z)}, {v(Z)}, {v(Z + 2)}", f"v_max3_u32 {v(m)}, {v(m)}, {v(PL + 16)}, {v(PL + 20)}"],
                    [f"v_add_f32 {v(Z)}, {v(Z)}, {v(Z)} row_ror:4"],
                    [f"v_add_f32 {v(Z)}, {v(Z)}, {v(Z)} row_ror:8", f"v_max3_u32 {v(m)}, {v(m)}, {v(PL + 24)}, {v(PL + 28)}"],
                    [f"v_cmp_eq_u32 vcc, -1, {v(m)}", f"v_cvt_pk_bf16_f32 {v(Z)}, {v(Z)}, {v(Z)}", f"ds_write_b16 {v(vZW)}, {v(Z)}"]]
            for i in range(8):
                if cfg["zlast"]:
                    if i == 0:
                        a(f"s_waitcnt vmcnt({nbg3})")
                elif i % 2 == 0:
                    a(f"s_waitcnt vmcnt({nbg3 + 6 - i})")
                a(f"v_mfma_f32_16x16x32_bf16 {v(DR, 4)}, {v(SEL, 4)}, {v(PL + 4 * i, 4)}, {v(DR, 4) if i else 0}")
                for g_ in gaps[i]:
                    a(g_)
            a(f"s_cbranch_vccnz L_again{l}")
            with self.outofline():
                a.label(f"L_again{l}")
                self.countdown()
                if cfg["ts"]:
                    a(f"s_add_u32 {s(sTSI)}, {s(sTSI)}, {1 << (8 * l)}")
                for i in range(9):
                    partial_load(i)
                if nbg3:
                    a("s_waitcnt vmcnt(0)")
                a(f"s_branch L_chk{l}")
            for i in range(2):
                a(f"v_cvt_pk_bf16_f32 {v(DR + i)}, {v(DR + 2 * i)}, {v(DR + 2 * i + 1)}")
            a(f"ds_write_b64 {v(vKFW)}, {v(DR, 2)}")
        if T == 0:
            a(f"s_waitcnt vmcnt({nbg3})")
        self.fine(f"{l}:r_done")
        self.bg_now(bgn[4])
        a.wait(lg=0)
        a("s_barrier")
        self.ts(f"{l}:bar3")
        KF, ZF, DEN, O = 0, 16, RG + 6, LG
        def rk(j):
            a(f"ds_read_b128 {v(KF + 4 * j, 4)}, {v(vKFR)} offset:{KS * j}", lg=f"kf{j}")
        def rz(j):
            a(f"ds_read_b128 {v(ZF + 4 * j, 4)}, {v(vZR)} offset:{(j >> 1) * 64 + (j & 1) * 16}", lg=f"zf{j}")

        def dots(j):
            for d in range(4):
                a(f"v_dot2c_f32_bf16 {v(DEN)}, {v(ZF + 4 * j + d)}, {v(PK + 4 * j + d)}")

        def num(j):
            a.wait(lg=f"kf{j}")
            a(f"v_mfma_f32_32x32x16_bf16 {v(AV, 16)}, {v(KF + 4 * j, 4)}, {v(PK + 4 * j, 4)}, {v(AV, 16) if j else 0}")

        def rw1(i, t_, u):
            a(f"ds_read_b64_tr_b16 {v(WR + (i % DW) * 16 + 4 * t_ + 2 * u, 2)}, {v(WA[t_])} offset:{t_ * 16384 + i * 1024 + u * 512}", lg=f"wo{i}")
        rest = [(i, t_, u) for i in range(DW) for t_ in range(4) for u in range(2)]
        if cfg["nmode"] == 0:
            for j in range(NJ):
                rz(j)
            if NJ == 2:
                rk(0); rk(1)
            for j in range(NJ):
                if j % 2 == 0:
                    a.wait(lg=f"zf{j + 1}")
                dots(j)
                if NJ == 4:
                    rk(j)
            self.fine(f"{l}:n_dot")
            for j in range(NJ):
                num(j)
        else:
            q_ = [(rk, j) for j in range(NJ)] + [(rz, j) for j in range(NJ)]
            for f_, j in q_[:3]:
                f_(j)
            del q_[:3]
            for j in range(NJ):
                num(j)
                for f_, k in q_[:2]:
                    f_(k)
                del q_[:2]
            self.fine(f"{l}:n_dot")
            a.wait(lg=0)
            for j in range(NJ):
                dots(j)
        if l == 0:
            if cfg["r_num"]:
                for i in range(8):
                    a(f"v_cvt_pk_bf16_f32 {v(O + i)}, {v(AV + 2 * i)}, {v(AV + 2 * i + 1)}")
            a(f"v_cvt_pk_bf16_f32 {v(DEN)}, {v(DEN)}, {v(DEN)}")
            a(f"v_and_b32 {v(DEN)}, 0xffff0000, {v(DEN)}")
            a(f"v_add_f32 {v(DEN)}, {f2u(1e-6):#x}, {v(DEN)}")
            a(f"v_cvt_pk_bf16_f32 {v(DEN)}, {v(DEN)}, {v(DEN)}")
            a(f"v_and_b32 {v(DEN)}, 0xffff0000, {v(DEN)}")
        a(f"v_rcp_f32 {v(DEN)}, {v(DEN)}")
        if l == 0 and cfg["r_num"]:
            for i in range(8):
                a(f"v_lshlrev_b32 {v(AV + 2 * i)}, 16, {v(O + i)}")
                a(f"v_and_b32 {v(AV + 2 * i + 1)}, 0xffff0000, {v(O + i)}")
        if cfg["x_h"] & 8:
            a("s_nop 12")
            a("s_nop 11")
        self.fine(f"{l}:n_mfma")
        ol = []
        for h in range(2):
            ol += [f"v_pk_mul_f32 {v(AV + 2 * i, 2)}, {v(AV + 2 * i, 2)}, {v(DEN, 2)} op_sel_hi:[1,0]" for i in range(4 * h, 4 * h + 4)]
            ol += [f"v_cvt_pk_bf16_f32 {v(O + i)}, {v(AV + 2 * i)}, {v(AV + 2 * i + 1)}" for i in range(4 * h, 4 * h + 4)]
            ol += [f"buffer_store_dwordx4 {v(O + 4 * h, 4)}, {v(vOST)}, {s(sWS, 4)}, {s(sOST)} offen offset:{256 * h}"]
        self.moded(ol, tag="ost", wt=l == 0 and not cfg["otouch"] and not cfg["oinit"][0])
        self.dump("o", l, list(range(O, O + 8)), PK)
        self.ts(f"{l}:ostore")
        self.bg_now(bgn[5])
        if l == 0:
            for t_ in self.tile_addr(PK, PK + 3)[:10]:
                a(t_)
            a.wait(vm="xr")
            for i in range(2):
                a(f"ds_write_b128 {v(PK + 1)}, {v(XR + 4 * i, 4)} offset:{1152 * i}")
            for i in range(2):
                a(f"ds_read2_b64 {v(4 * i, 4)}, {v(PK)} offset0:{8 * i} offset1:{8 * i + 4}")
            a.wait(lg=0)
            for i in range(8):
                a(f"v_lshlrev_b32 {v(XR + 2 * i)}, 16, {v(i)}")
                a(f"v_and_b32 {v(XR + 2 * i + 1)}, 0xffff0000, {v(i)}")
        NO = cfg["no0"]

        def ldo(i):
            if cfg["x_h"] & 4 and i == 14:
                return
            G_ = 2 if cfg["roto"] & 2 else 4
            if i % G_ == 0 and i:
                a(f"s_xor_b32 {s(sT3)}, {s(sOLD)}, {i * 1024}")
            a(f"buffer_load_dwordx4 {v(4 * i, 4)}, {v(vL16)}, {s(sWS, 4)}, {s(sT3 if i >= G_ else sOLD)} offen offset:{(i % G_) * 1024} sc1", vm=f"o{i}")
        late = list(range(NP, 16))

        def window(np_, nr):
            for _ in range(min(len(late), np_)):
                self.put_wo(T, late.pop(0))
            for _ in range(min(len(rest), nr)):
                rw1(*rest.pop(0))
        ow = cfg["owin"][first]
        na = "o" in cfg["x_noack"] and l > 0
        if na:
            ow = cfg["owin2"]
        window(*ow[0])
        self.fine(f"{l}:o_pre")
        self.flag(sFOS, RG + 19, "none" if na else "ost")
        self.fine(f"{l}:oflag")
        self.spin_more(wo_, f"o{l}")
        if last and cfg["fin_lds"]:
            for t_ in self.tile_addr(PK, PK + 3):
                a(t_)
        window(*ow[1])
        self.probe(wo_, vPR)
        window(*ow[2])
        self.spin(wo_, f"o{l}")
        self.ts(f"{l}:opoll")
        for i in range(4):
            ldo(i)
        window(16, 0)
        if NP < 16:
            a.wait(lg="putwo")
            a("s_barrier")
        per = -(-len(rest) // (NO - 4))
        for i in range(4, NO):
            window(0, per)
            ldo(i)
        assert not rest
        self.fine(f"{l}:o_iss")
        todo = [(i, t_, u) for i in range(DW, 16) for t_ in range(4) for u in range(2)]
        done = 0
        self.bg_region(bgn[6], NO)
        ry = l == 0 and cfg["r_y"]
        for i in range(16):
            for t_ in range(4):
                if t_ == 0:
                    a.wait(vm=f"o{i}", lg=f"wo{i}")
                    self.fine(f"{l}:o{i}")
                a(f"v_mfma_f32_16x16x32_bf16 {v(XR + 4 * t_, 4)}, {v(WR + (i % DW) * 16 + 4 * t_, 4)}, {v(4 * i, 4)}, {v(XR + 4 * t_, 4)}".replace(v(XR + 4 * t_, 4), v(LG + 4 * t_, 4) if ry else v(XR + 4 * t_, 4)).rsplit(", ", 1)[0] + ", " + (("0" if i == 0 else v(LG + 4 * t_, 4)) if ry else v(XR + 4 * t_, 4)))
                if t_ == 0:
                    if i + NO < 16:
                        ldo(i + NO)
                    else:
                        self.bg_tick()
                for _ in range(cfg["ord"][i + NO >= 16][t_]):
                    if done < len(todo) and done // 2 <= 4 * i + t_:
                        assert todo[done][0] > i
                        rw1(*todo[done]); done += 1
        assert done == len(todo) and not self.bg
        self.ts(f"{l}:ogemm")
        if last:
            return
        if ry:
            for i in range(8):
                a(f"v_cvt_pk_bf16_f32 {v(AV + i)}, {v(LG + 2 * i)}, {v(LG + 2 * i + 1)}")
            for i in range(8):
                a(f"v_lshlrev_b32 {v(LG + 2 * i)}, 16, {v(AV + i)}")
                a(f"v_and_b32 {v(LG + 2 * i + 1)}, 0xffff0000, {v(AV + i)}")
            for i in range(8):
                a(f"v_pk_add_f32 {v(XR + 2 * i, 2)}, {v(XR + 2 * i, 2)}, {v(LG + 2 * i, 2)}")
        self.dump("x", l, list(range(XR, XR + 16)), PK)
        N = 1 - T
        na = "x" in cfg["x_noack"] and l > 0
        for k_, st in enumerate(self.x_steps(0, XR, AK, par=N)):
            st()
            if na and k_ == 0:
                self.flag(sFXS, RG + 19, "xst" if "t" in cfg["x_noack"] else "none")
                if "t" in cfg["x_noack"]:
                    with self.only_if(f"s_bitcmp1_b32 {s(sID)}, {3 + l}"):
                        a("s_sleep 60")
        self.fine(f"{l}:xst")
        a("s_barrier")
        self.fine(f"{l}:bar5")
        n1, n2 = cfg["xputs2" if na else "xputs0" if l == 0 else "xputs"]
        ne = 16 - bgn[6]
        if l == 0:
            assert n1 <= ne
            self.sel_read(AV)
            addr, fin = self.cs_kv_fin(1, AV + 4, AV + 8)
            for t_ in addr:
                a(t_)
            a.wait(lg="sel")
        for i in range(n1):
            self.put_wkv(N, i, i + 1)
            if l == 0:
                for k in range(i * ne // n1, (i + 1) * ne // n1):
                    a(self.cs_kv_step(1, k, AV, AV + 4))
        a(f"s_add_u32 {s(sKVT)}, {s(sKVT)}, {KVP[l + 1] - KVP[l]}")
        if not na:
            self.flag(sFXS, RG + 19, "xst" if cfg["spar"] and l else "sst")
        self.ts(f"{l}:xflag")
        self.spin_more(wx, f"x{l + 1}")
        for i in range(n1, n2):
            if i == min(n2 - 1, n1 + cfg["xprobe_at2" if na else "xprobe_at"]):
                self.probe(wx, vPR)
            self.put_wkv(N, i, i + 1)
            if l == 0:
                for k in range(ne + min(4, i - n1) * (16 - ne) // 4, ne + min(4, i - n1 + 1) * (16 - ne) // 4):
                    a(self.cs_kv_step(1, k, AV, AV + 4))
        if l == 0:
            assert n2 - n1 >= 4
            for t_ in fin:
                a(t_)
        self.puts_left = list(range(n2, 16))

    def prologue(self):
        cfg = self.cfg
        a = self.a
        a(f"s_cmp_ge_u32 {s(sID)}, 256")
        a("s_cbranch_scc1 L_end")
        self.ts("start")
        a(f"s_load_dwordx16 {s(4, 16)}, s[0:1], 0")
        a(f"s_load_dwordx4 {s(20, 4)}, s[0:1], 64")
        a(f"s_getpc_b64 {s(sSAVE, 2)}")
        a.label("L_pc")
        NCL = cfg["codepf"]
        a(f"s_bfe_u32 {s(sT0)}, {s(sID)}, {3 | (3 << 16)}")
        a(f"s_mul_i32 {s(sT0)}, {s(sT0)}, {NCL}")
        a(f"v_min_u32 v1, {NCL - 1}, v0")
        a(f"v_add_u32 v1, {s(sT0)}, v1")
        a("v_lshlrev_b32 v1, 7, v1")
        if cfg["pads"]:
            a("v_add_u32 v1, L_page0-L_pc, v1")
            a("v_lshlrev_b32 v2, 12, v0")
            a("v_add_u32 v2, L_page0-L_pc-64*4096, v2")
            a("v_cmp_le_u32 vcc, 64, v0")
            a("v_cndmask_b32 v1, v1, v2, vcc")
        a(f"v_min_u32 v1, L_codeend-L_pc, v1")
        a(f"global_load_dword v2, v1, {s(sSAVE, 2)}")
        if cfg["ts"]:
            a(f"s_mov_b32 {s(sTSI)}, 0")
            a(f"s_mov_b32 {s(sLAY)}, 0")
            a(f"v_mov_b32 {v(vTS)}, 0")
            a(f"s_memrealtime s[78:79]")
        L = 3
        a(f"v_lshrrev_b32 v1, 6, v0")
        a(f"v_and_b32 {v(L)}, 63, v0")
        a(f"v_readfirstlane_b32 {s(sW)}, v1")
        a(f"v_lshlrev_b32 {v(vL16)}, 4, {v(L)}")
        a(f"s_bfe_u32 {s(sC)}, {s(sID)}, {3 | (4 << 16)}")
        a(f"s_lshr_b32 {s(sT0)}, {s(sID)}, 7")
        a(f"s_and_b32 {s(sR)}, {s(sID)}, 7")
        a(f"s_lshl1_add_u32 {s(sR)}, {s(sR)}, {s(sT0)}")
        a(f"s_and_b32 {s(sROT)}, {s(sR)}, {cfg['rot']}")
        sBP, sSUB, sCG, sB = 99, 100, 101, sCNT
        a(f"s_lshr_b32 {s(sT0)}, {s(sC)}, 3")
        a(f"s_lshr_b32 {s(sT3)}, {s(sW)}, 1")
        a(f"s_lshl1_add_u32 {s(sT0)}, {s(sT0)}, {s(sT3)}")
        a(f"s_lshl2_add_u32 {s(sBP)}, {s(sR)}, {s(sT0)}")
        a(f"s_lshl2_add_u32 {s(sB)}, {s(sR)}, {s(sW)}")
        a(f"s_and_b32 {s(sSUB)}, {s(sW)}, 1")
        a(f"s_and_b32 {s(sCG)}, {s(sC)}, 7")
        a(f"s_lshl1_add_u32 {s(sT0)}, {s(sBP)}, {s(sSUB)}")
        a(f"s_lshl_b32 {s(sOLD)}, {s(sT0)}, 14")
        a(f"s_lshl_b32 {s(sT0)}, {s(sCG)}, 7")
        a(f"s_add_u32 {s(sFIN)}, {s(sOLD)}, {s(sT0)}")
        a(f"s_lshl3_add_u32 {s(sT0)}, {s(sBP)}, {s(sCG)}")
        a(f"s_lshl4_add_u32 {s(sT0)}, {s(sT0)}, {s(sSUB)}")
        a(f"s_lshl_b32 {s(sXST)}, {s(sT0)}, 8")
        a(f"s_lshl4_add_u32 {s(sT1)}, {s(sR)}, {s(sC)}")
        a(f"s_lshl_b32 {s(sT1)}, {s(sT1)}, 5")
        a(f"s_add_u32 {s(sT1)}, {s(sT1)}, {s(sW)}")
        a(f"s_lshl_b32 {s(sT1)}, {s(sT1)}, 8")
        a(f"v_and_b32 v52, 7, {v(L)}")
        a(f"v_lshrrev_b32 v53, 3, {v(L)}")
        a(f"v_lshlrev_b32 v4, 4, v53")
        a(f"v_lshl_add_u32 v4, v52, 10, v4")
        a(f"s_lshl_b32 {s(sT0)}, {s(sC)}, 6")
        a(f"s_mul_i32 {s(sWOFF)}, {s(sT3)}, {16 * 3072}")
        a(f"s_add_u32 {s(sWOFF)}, {s(sWOFF)}, {s(sT0)}")
        a(f"s_lshl_b32 {s(sT0)}, {s(sSUB)}, 10")
        a(f"s_add_u32 {s(sWOFF)}, {s(sWOFF)}, {s(sT0)}")
        a(f"s_add_u32 {s(sWOFF)}, {s(sWOFF)}, 1024")
        self.w_voff(5)
        a(f"s_mov_b32 {s(sTMP + 3)}, 0x20000")
        a(f"s_mov_b32 {s(sSW[0] + 3)}, 0x20000")
        a(f"s_mov_b32 {s(sTMP + 2)}, 0x200000")
        a(f"s_mov_b32 {s(sSW[0] + 2)}, {512 * 3072}")
        a(f"s_lshr_b32 {s(sT2)}, {s(sID)}, 3")
        a(f"s_lshl_b32 {s(sSTLD)}, {s(sB)}, 11")
        a(f"s_lshl_b32 {s(sT0)}, {s(sB)}, 7")
        a(f"s_add_u32 {s(sFXP)}, {s(sT0)}, {FLAGX}")
        a(f"s_add_u32 {s(sFOS)}, {s(sT0)}, {FLAGO}")
        a(f"s_lshl_b32 {s(sHEL)}, {s(sC)}, 7")
        a(f"s_add_u32 {s(sHEL)}, {s(sHEL)}, {s(sSTLD)}")
        a("s_waitcnt lgkmcnt(0)")
        self.ts("kernarg")
        a(f"s_mov_b64 {s(sTMP, 2)}, {s(sPX, 2)}")
        a(f"s_mov_b64 {s(sSW[0], 2)}, {s(sPWA, 2)}")
        for i in range(2):
            a(f"buffer_load_dwordx4 {v(8 + 4 * i, 4)}, v4, {s(sTMP, 4)}, {s(sT1)} offen offset:{128 * i}", vm="x0")
        a(f"s_lshl2_add_u32 {s(sPF)}, {s(sT2)}, {s(sW)}")
        a(f"s_add_u32 {s(sPBX)}, {s(sPWS)}, {s(sHEL)}")
        a(f"s_addc_u32 {s(sPBX + 1)}, {s(sPWS + 1)}, 0")

        def scalar_loads():
            a(f"s_load_dword {s(sEP)}, {s(sPWS, 2)}, 0")
            if "o" in cfg["tlb"]:
                a(f"s_load_dword {s(sTG)}, {s(sPOUT, 2)}, 0")
            if "p" in cfg["tlb"]:
                a(f"s_load_dword {s(sTG)}, {s(sPPHI, 2)}, 0")
            if "w" in cfg["tlb"]:
                for off in (0x200000, 0x400000):
                    a(f"s_mov_b32 {s(sT0)}, {off:#x}")
                    a(f"s_load_dword {s(sTG)}, {s(sPWS, 2)}, {s(sT0)}")
            if cfg["touch"]:
                a(f"s_load_dword {s(sTG)}, {s(sPWS, 2)}, {s(sFXP)}")
                a(f"s_load_dword {s(sTG)}, {s(sPWS, 2)}, {s(sFOS)}")
                a(f"s_load_dword {s(sTG)}, {s(sPBX, 2)}, {STATS[0]}")
                a(f"s_load_dword {s(sTG)}, {s(sPBX, 2)}, {STATS[0] + 64}")
        if cfg["sl_first"]:
            scalar_loads()

        def mall_pf():
            a0 = self.a
            a0(f"s_cmp_eq_u32 {s(sSUB)}, 0")
            a0(f"s_cselect_b64 {s(sTMP, 2)}, {s(sPWA, 2)}, {s(sPWB, 2)}")
            a0(f"s_cselect_b64 {s(sLN2, 2)}, {s(sPWOA, 2)}, {s(sPWOB, 2)}")
            a0(f"s_cmp_lt_u32 {s(sW)}, 2")
            a0(f"s_cselect_b64 {s(sTMP, 2)}, {s(sTMP, 2)}, {s(sLN2, 2)}")
            a0(f"s_cselect_b32 {s(sT1)}, 3, 1")
            a0(f"s_lshl_b32 {s(sT1)}, {s(sT1)}, 11")
            a0(f"s_mul_i32 {s(sT2)}, {s(sID)}, {s(sT1)}")
            a0(f"s_sub_u32 {s(sT0)}, {s(sT1)}, 128")
            a0(f"v_lshlrev_b32 v7, 3, {v(vL16)}")
            a0(f"v_min_u32 v7, {s(sT0)}, v7")
            a0(f"s_lshl_b32 {s(sTMP + 2)}, {s(sT1)}, 8")
            a0(f"buffer_load_dword v7, v7, {s(sTMP, 4)}, {s(sT2)} offen")
        def l2_pf():
            a(f"s_mul_i32 {s(sT0)}, {s(sPF)}, {4 * 3072 // cfg['l2div']}")
            a(f"s_add_u32 {s(sT0)}, {s(sT0)}, {512 * 3072 - 512 * 3072 // cfg['l2div']}")
            a(f"v_lshrrev_b32 v51, 8, {v(vL16)}")
            a(f"v_lshlrev_b32 v51, 10, v51")
            a(f"v_lshl_add_u32 v51, {v(vL16)}, 3, v51")
            if cfg["l2div"] == 2:
                a("s_mov_b32 exec_hi, 0")
            a(f"buffer_load_dword v51, v51, {s(sSW[0], 4)}, {s(sT0)} offen offset:1024")
            if cfg["l2div"] == 2:
                a("s_mov_b32 exec_hi, -1")
        if cfg["l2pf"] == 1:
            l2_pf()
        if cfg["mallpf"] == 1:
            mall_pf()
        if cfg["l2pf"] == 2:
            l2_pf()
        if cfg["mallpf"] == 8:
            with self.only_if(f"s_bitcmp0_b32 {s(sID)}, 2"):
                a(f"s_and_b32 {s(sT0)}, {s(sPF)}, 7")
                a(f"s_lshr_b32 {s(sT1)}, {s(sPF)}, 3")
                a(f"s_and_b32 {s(sT2)}, {s(sID)}, 3")
                a(f"s_lshl2_add_u32 {s(sT1)}, {s(sT1)}, {s(sT2)}")
                a(f"s_bitcmp0_b32 {s(sT0)}, 0")
                a(f"s_cselect_b64 {s(sTMP, 2)}, {s(sPWA, 2)}, {s(sPWB, 2)}")
                a(f"s_cselect_b64 {s(sLN2, 2)}, {s(sPWOA, 2)}, {s(sPWOB, 2)}")
                a(f"s_lshr_b32 {s(sT0)}, {s(sT0)}, 1")
                a(f"s_mul_i32 {s(sT2)}, {s(sT1)}, 3")
                a(f"s_add_u32 {s(sT2)}, {s(sT2)}, {s(sT0)}")
                a(f"s_cmp_lt_u32 {s(sT0)}, 3")
                a(f"s_cselect_b64 {s(sTMP, 2)}, {s(sTMP, 2)}, {s(sLN2, 2)}")
                a(f"s_cselect_b32 {s(sT2)}, {s(sT2)}, {s(sT1)}")
                a(f"s_cselect_b32 {s(sT1)}, 3, 1")
                a(f"s_lshl_b32 {s(sTMP + 2)}, {s(sT1)}, 19")
                a(f"s_lshl_b32 {s(sT2)}, {s(sT2)}, 13")
                a(f"v_lshlrev_b32 v7, 3, {v(vL16)}")
                a(f"buffer_load_dword v7, v7, {s(sTMP, 4)}, {s(sT2)} offen")
        if cfg["mallpf"] in (4, 6):
            with self.only_if(f"s_cmp_eq_u32 {s(sW)}, 0"):
                mall_pf()
        if cfg["mallpf"] == 5:
            with self.only_if(f"s_cmp_eq_u32 {s(sSUB)}, 0"):
                mall_pf()
        if cfg["mallpf"] == 9:
            with self.only_if(f"s_cmp_eq_u32 {s(sW)}, 2"):
                mall_pf()
        if cfg["mallpf"] == 7:
            with self.only_if(f"s_cmp_lg_u32 {s(sW)}, 3"):
                mall_pf()
        if cfg["slow0"]:
            self.slow_pf(sSW[0], 12, 6)
        self.srd_tmp(sPPHI, 16384)
        a(f"s_lshl_b32 {s(sT0)}, {s(sC)}, 10")
        a(f"buffer_load_dwordx4 v[16:19], {v(vL16)}, {s(sTMP, 4)}, {s(sT0)} offen", vm="phi")
        for i in range(cfg["n0"]):
            self.ld_wkv(0, i, 5)
        if cfg["mallpf"] == 2:
            mall_pf()
        if not cfg["sl_first"]:
            scalar_loads()
        self.ts("p_issue")

        def o_touch(at):
            if cfg["otouch"] != at:
                return
            a0 = self.a
            a0(f"s_lshl_b32 {s(sT0)}, {s(sB)}, 5")
            a0(f"s_add_u32 {s(sT0)}, {s(sT0)}, {s(sC)}")
            a0(f"s_lshl_b32 {s(sT0)}, {s(sT0)}, 10")
            a0(f"s_add_u32 {s(sT0)}, {s(sT0)}, {OB[0]}")
            a0(f"v_bfe_u32 v50, {v(vL16)}, 7, 1")
            a0(f"v_mul_u32_u24 v50, {(16384 - 1024) // 8}, v50")
            a0(f"v_add_lshl_u32 v50, v50, {v(vL16)}, 3")
            a0("s_mov_b64 exec, 0xffff")
            a0(f"buffer_load_dword v52, v50, {s(sWS, 4)}, {s(sT0)} offen")
            a0("s_mov_b64 exec, -1")
        a(f"s_mov_b64 {s(sWS, 2)}, {s(sPWS, 2)}")
        a(f"s_mov_b64 {s(sOUT, 2)}, {s(sPOUT, 2)}")
        for r_ in (sWS, sOUT):
            a(f"s_mov_b32 {s(r_ + 3)}, 0x20000")
        a(f"s_mov_b32 {s(sWS + 2)}, {WS_SIZE:#x}")
        a(f"s_mov_b32 {s(sOUT + 2)}, 0x200000")
        o_touch(101)
        a(f"s_mov_b32 {s(sROW)}, 0xffff")
        a(f"s_mov_b32 {s(sROW + 1)}, 0xffff")
        a(f"s_mov_b32 {s(sMODE)}, 0")
        a(f"s_lshr_b32 {s(sT0)}, {s(sCG)}, 2")
        a(f"s_lshl2_add_u32 {s(sT0)}, {s(sBP)}, {s(sT0)}")
        a(f"s_lshl1_add_u32 {s(sT0)}, {s(sT0)}, {s(sSUB)}")
        a(f"s_lshl_b32 {s(sT0)}, {s(sT0)}, 8")
        a(f"s_and_b32 {s(sT1)}, {s(sCG)}, 3")
        a(f"s_lshl2_add_u32 {s(sSTST)}, {s(sT1)}, {s(sT0)}")
        a(f"s_add_u32 {s(sSTST)}, {s(sSTST)}, {STATS[0]}")
        a(f"s_lshl4_add_u32 {s(sT0)}, {s(sW)}, {s(sC)}")
        a(f"s_lshl_b32 {s(sKVT)}, {s(sT0)}, 10")
        a(f"s_add_u32 {s(sKVT)}, {s(sKVT)}, {KVP[0]}")
        a(f"s_lshl_b32 {s(sHEL)}, {s(sT0)}, 11")
        a(f"s_add_u32 {s(sHEL)}, {s(sHEL)}, {HELLO}")
        a(f"s_mov_b32 {s(sHI)}, 0")
        a(f"s_mov_b32 {s(sHI + 1)}, -1")
        a(f"s_lshl_b32 {s(sXLD)}, {s(sB)}, 15")
        i16, g, half, q, jj, t0, t1 = 20, 21, 22, 23, 24, 25, 26
        a(f"v_and_b32 {v(i16)}, 15, {v(L)}")
        a(f"v_lshrrev_b32 {v(g)}, 4, {v(L)}")
        a(f"v_lshrrev_b32 {v(half)}, 5, {v(L)}")
        a(f"v_and_b32 {v(q)}, 3, {v(L)}")
        a(f"v_bfe_u32 {v(jj)}, {v(L)}, 2, 2")
        a(f"v_lshlrev_b32 {v(vPOLL)}, 2, {v(i16)}")
        a(f"v_lshlrev_b32 {v(t0)}, 4, {v(i16)}")
        a(f"v_lshl_add_u32 {v(vXST)}, {v(g)}, 10, {v(t0)}")
        a(f"v_lshl_add_u32 {v(vSST)}, {v(half)}, 10, {v(t0)}")
        a(f"v_lshl_add_u32 {v(vSLD)}, {v(half)}, 9, {v(vL16)}")
        a(f"s_lshr_b32 {s(sT0)}, {s(sR)}, 1")
        a(f"s_lshl_b32 {s(sT0)}, {s(sT0)}, 7")
        a(f"s_and_b32 {s(sT1)}, {s(sR)}, 1")
        a(f"s_add_u32 {s(sT0)}, {s(sT0)}, {s(sT1)}")
        a(f"s_lshl_b32 {s(sT0)}, {s(sT0)}, 9")
        a(f"v_lshl_add_u32 {v(vPST)}, {v(half)}, 8, {v(t0)}")
        a(f"v_add_u32 {v(vPST)}, {s(sT0)}, {v(vPST)}")
        a(f"s_lshl_b32 {s(sT1)}, {s(sR)}, 6")
        a(f"s_add_u32 {s(sT1)}, {s(sT1)}, {8 * 65536}")
        a(f"v_lshl_add_u32 {v(vZST)}, {v(g)}, 4, {s(sT1)}")
        a(f"v_add_u32 v49, {s(sT0)}, {v(vL16)}")
        a(f"v_lshl_add_u32 v27, {v(q)}, 4, {s(sT1)}")
        a(f"v_cndmask_b32 v49, v49, v27, {s(sHI, 2)}")
        for i in range(4):
            a(f"v_mov_b32 {v(28 + i)}, -1")
        if cfg["warm_at"] == 0:
            self.warm(0)
        a(f"v_lshlrev_b32 v54, 5, v52")
        a(f"v_add_u32 v54, {L_STG:#x}, v54")
        a(f"s_lshl_b32 {s(sT0)}, {s(sW)}, 2")
        a(f"v_lshl_add_u32 v55, {v(half)}, 4, {s(sT0)}")
        a(f"v_add_u32 v55, v55, v54")
        a(f"v_lshlrev_b32 v53, 9, v53")
        a(f"v_lshl_add_u32 v53, v52, 4, v53")
        a(f"s_lshr_b32 {s(sT0)}, {s(sC)}, 2")
        a(f"s_lshl2_add_u32 {s(sT0)}, {s(sR)}, {s(sT0)}")
        a(f"s_and_b32 {s(sT1)}, {s(sC)}, 3")
        a(f"s_lshl3_add_u32 {s(sF0)}, {s(sT0)}, {s(sT1)}")
        a(f"s_lshl2_add_u32 {s(sF0)}, {s(sF0)}, {s(sW)}")
        a(f"s_lshl2_add_u32 {s(sF0)}, {s(sF0)}, {FLAGX}")
        a(f"s_lshl2_add_u32 {s(sT0)}, {s(sT0)}, {s(sW)}")
        a(f"s_lshl_b32 {s(sT0)}, {s(sT0)}, 6")
        a(f"s_add_u32 {s(sT0)}, {s(sT0)}, {s(sT1)}")
        a(f"s_lshl_b32 {s(sT0)}, {s(sT0)}, 7")
        a(f"s_add_u32 {s(sT1)}, {s(sT0)}, 4096")
        if cfg["pads"]:
            a("s_branch L_page0")
            a(".p2align 12")
            self.nook = a.ins[-1]
            a.label("L_page0")
        self.ts("p_lane")
        a.wait(vm="x0")
        self.ts("x0")
        X, t = AK, AV
        for i in range(8):
            a(f"v_lshlrev_b32 {v(X + 2 * i)}, 16, {v(8 + i)}")
            a(f"v_and_b32 {v(X + 2 * i + 1)}, 0xffff0000, {v(8 + i)}")
        a(f"v_pk_add_f32 {v(t, 2)}, {v(X, 2)}, {v(X + 2, 2)}")
        a(f"v_pk_mul_f32 {v(t + 2, 2)}, {v(X, 2)}, {v(X, 2)}")
        a(f"v_pk_fma_f32 {v(t + 2, 2)}, {v(X + 2, 2)}, {v(X + 2, 2)}, {v(t + 2, 2)}")
        for i in range(2, 8):
            a(f"v_pk_add_f32 {v(t, 2)}, {v(t, 2)}, {v(X + 2 * i, 2)}")
            a(f"v_pk_fma_f32 {v(t + 2, 2)}, {v(X + 2 * i, 2)}, {v(X + 2 * i, 2)}, {v(t + 2, 2)}")
        a(f"v_add_f32 {v(t)}, {v(t)}, {v(t + 1)}")
        a(f"v_add_f32 {v(t + 2)}, {v(t + 2)}, {v(t + 3)}")
        a(f"v_permlane32_swap_b32 {v(t)}, {v(t + 2)}")
        a(f"v_add_f32 {v(t)}, {v(t)}, {v(t + 2)}")
        a(f"v_mov_b32 {v(t + 1)}, {v(t)}")
        a(f"v_permlane16_swap_b32 {v(t)}, {v(t + 1)}")
        a(f"v_add_f32 {v(t)}, {v(t)}, {v(t + 1)}")
        a(f"v_add_f32 {v(t)}, {v(t)}, {v(t)} row_ror:8")
        a(f"ds_write_b32 v55, {v(t)}")
        for i in range(cfg["n0"], cfg["n0"] + cfg["n0b"][0]):
            self.ld_wkv(0, i, 5, sT3)
        a("s_waitcnt lgkmcnt(0)")
        a("s_barrier")
        a(f"ds_read_b128 {v(t, 4)}, v54")
        a(f"ds_read_b128 {v(t + 4, 4)}, v54 offset:16")
        for i in range(cfg["n0"] + cfg["n0b"][0], cfg["n0"] + sum(cfg["n0b"])):
            self.ld_wkv(0, i, 5, sT3)
        cfg["n0"] += sum(cfg["n0b"])
        a("s_waitcnt lgkmcnt(0)")
        a.lg.clear()
        m_, u_ = t, t + 4
        for l_ in [f"v_pk_add_f32 {v(t, 2)}, {v(t, 2)}, {v(t + 2, 2)}",
                   f"v_pk_add_f32 {v(t + 4, 2)}, {v(t + 4, 2)}, {v(t + 6, 2)}",
                   f"v_add_f32 {v(m_)}, {v(t)}, {v(t + 1)}",
                   f"v_add_f32 {v(u_)}, {v(t + 4)}, {v(t + 5)}",
                   f"v_mul_f32 {v(m_)}, {f2u(1 / 512):#x}, {v(m_)}",
                   f"v_mul_f32 {v(u_)}, {f2u(1 / 512):#x}, {v(u_)}",
                   f"v_fma_f32 {v(u_)}, -{v(m_)}, {v(m_)}, {v(u_)}",
                   f"v_max_f32 {v(u_)}, 0, {v(u_)}",
                   f"v_cvt_pk_bf16_f32 {v(u_)}, {v(m_)}, {v(u_)}",
                   f"v_lshlrev_b32 {v(m_)}, 16, {v(u_)}",
                   f"v_and_b32 {v(u_)}, 0xffff0000, {v(u_)}",
                   f"v_add_f32 {v(u_)}, {f2u(1e-5):#x}, {v(u_)}",
                   f"v_cvt_pk_bf16_f32 {v(u_)}, {v(u_)}, {v(u_)}",
                   f"v_and_b32 {v(u_)}, 0xffff0000, {v(u_)}",
                   f"v_sqrt_f32 {v(u_)}, {v(u_)}"]:
            a(l_)
        for i in range(8):
            a(f"v_pk_add_f32 {v(X + 2 * i, 2)}, {v(X + 2 * i, 2)}, {v(m_, 2)} op_sel_hi:[1,0] neg_lo:[0,1] neg_hi:[0,1]")
        a(f"v_cvt_pk_bf16_f32 {v(u_)}, {v(u_)}, {v(u_)}")
        a(f"v_and_b32 {v(u_)}, 0xffff0000, {v(u_)}")
        a(f"v_rcp_f32 {v(u_)}, {v(u_)}")
        for h in range(2):
            R = range(4 * h, 4 * h + 4)
            for i in R:
                a(f"v_cvt_pk_bf16_f32 {v(8 + i)}, {v(X + 2 * i)}, {v(X + 2 * i + 1)}")
            for i in R:
                a(f"v_lshlrev_b32 {v(X + 2 * i)}, 16, {v(8 + i)}")
                a(f"v_and_b32 {v(X + 2 * i + 1)}, 0xffff0000, {v(8 + i)}")
            for i in R:
                a(f"v_pk_mul_f32 {v(X + 2 * i, 2)}, {v(X + 2 * i, 2)}, {v(u_, 2)} op_sel_hi:[1,0]")
            for i in R:
                a(f"v_cvt_pk_bf16_f32 {v(8 + i)}, {v(X + 2 * i)}, {v(X + 2 * i + 1)}")
            a(f"buffer_store_dwordx4 {v(8 + 4 * h, 4)}, v53, {s(sOUT, 4)}, {s((sT0, sT1)[h])} offen sc1", vm="sst")
        with self.only_if(f"s_cmp_lt_u32 {s(sW)}, 2"):
            a("s_mov_b32 exec_hi, 15")
            a(f"buffer_store_dwordx4 v[28:31], v49, {s(sWS, 4)}, {s(sKVT)} offen sc1")
            a("s_mov_b32 exec_hi, -1")
        if cfg["mallpf"] == 3:
            mall_pf()
        if cfg["mallpf"] == 4:
            with self.only_if(f"s_cmp_lg_u32 {s(sW)}, 0"):
                mall_pf()
        o_touch(102)
        self.ts("p_xpub")
        self.nw, cnt, a0 = cfg["n0"], [0], a

        def a(text, **kw):
            if cnt[0] % cfg["w_every"] == 0 and self.nw < cfg["n1"]:
                self.ld_wkv(0, self.nw, 5, sT3)
                self.nw += 1
            cnt[0] += 1
            a0(text, **kw)
        a(f"s_getreg_b32 {s(sXCC)}, hwreg(HW_REG_XCC_ID, 0, 4)")
        a(f"s_lshl_b32 {s(sW13)}, {s(sW)}, 13")
        a(f"s_mov_b32 {s(sCNT)}, {cfg['limit']:#x}")
        a(f"s_lshl_b32 {s(sT0)}, {s(sC)}, 10")
        a(f"s_add_u32 {s(sOST)}, {s(sXLD)}, {s(sT0)}")
        a(f"s_add_u32 {s(sOST)}, {s(sOST)}, {OB[0]}")
        a(f"s_add_u32 {s(sOLD)}, {s(sOLD)}, {OB[0]}")
        a(f"s_add_u32 {s(sSTLD)}, {s(sSTLD)}, {STATS[0]}")
        a(f"s_lshl2_add_u32 {s(sFOS)}, {s(sC)}, {s(sFOS)}")
        a(f"s_lshl_b32 {s(sT0)}, {s(sBP)}, 7")
        a(f"s_add_u32 {s(sFOP)}, {s(sT0)}, {FLAGO}")
        a(f"s_lshl1_add_u32 {s(sT1)}, {s(sCG)}, {s(sSUB)}")
        a(f"s_lshl2_add_u32 {s(sFXS)}, {s(sT1)}, {s(sT0)}")
        a(f"s_add_u32 {s(sFXS)}, {s(sFXS)}, {FLAGX}")
        a(f"s_lshl_b32 {s(sT0)}, {s(sC)}, 6")
        if cfg["rot"]:
            a(f"s_lshl_b32 {s(sQOFF)}, {s(sW)}, 2")
            a(f"s_xor_b32 {s(sQOFF)}, {s(sQOFF)}, {s(sROT)}")
            a(f"s_lshl_b32 {s(sQOFF)}, {s(sQOFF)}, 1")
            if cfg["rotq"]:
                a(f"s_lshr_b32 {s(sT0)}, {s(sROT)}, 1")
                a(f"s_xor_b32 {s(sQOFF)}, {s(sQOFF)}, {s(sT0)}")
                a(f"s_lshl_b32 {s(sT0)}, {s(sROT)}, 9")
                a(f"s_add_u32 {s(sWQM)}, {s(sW13)}, {s(sT0)}")
            a(f"s_lshl_b32 {s(sT0)}, {s(sROT)}, 11")
            a(f"s_add_u32 {s(sXLD)}, {s(sXLD)}, {s(sT0)}")
        else:
            a(f"s_mul_i32 {s(sQOFF)}, {s(sW)}, {128 * 3072}")
            a(f"s_add_u32 {s(sQOFF)}, {s(sQOFF)}, {s(sT0)}")
        a(f"s_lshl_b32 {s(sOOFF)}, {s(sW)}, 13")
        a(f"s_lshl_b32 {s(sT0)}, {s(sCG)}, 7")
        a(f"s_add_u32 {s(sOOFF)}, {s(sOOFF)}, {s(sT0)}")
        if cfg["roto"]:
            a(f"s_and_b32 {s(sT0)}, {s(sR)}, {cfg['roto']}")
            a(f"s_lshl_b32 {s(sT1)}, {s(sT0)}, 15")
            a(f"s_add_u32 {s(sOOFF)}, {s(sOOFF)}, {s(sT1)}")
            a(f"s_lshl_b32 {s(sT1)}, {s(sT0)}, 10")
            a(f"s_add_u32 {s(sOLD)}, {s(sOLD)}, {s(sT1)}")

        def late_srds(a):
            a(f"s_mov_b64 {s(sSW[1], 2)}, {s(sPWB, 2)}")
            a(f"s_mov_b32 {s(sSW[1] + 2)}, {512 * 3072}")
            a(f"s_mov_b32 {s(sSW[1] + 3)}, 0x20000")
            for T in range(2):
                a(f"s_mov_b64 {s(sSO[T], 2)}, {s([sPWOA, sPWOB][T], 2)}")
                a(f"s_mov_b32 {s(sSO[T] + 2)}, {512 * 1024}")
                a(f"s_mov_b32 {s(sSO[T] + 3)}, 0x20000")
        if not cfg["pfine"]:
            late_srds(a)
        a(f"s_mov_b32 {s(sCOL)}, 0x10001")
        a(f"s_mov_b32 {s(sCOL + 1)}, 0x10001")
        a(f"s_mov_b32 {s(sLN2)}, {LN2:#x}")
        a(f"s_mov_b32 {s(sLN2b)}, {LN2:#x}")
        a(f"s_mov_b32 {s(sDELTA)}, {f2u(1e-6):#x}")
        a(f"s_lshl_b32 {s(sANN)}, {s(sR)}, 7")
        a(f"s_add_u32 {s(sANN)}, {s(sANN)}, {ANN}")
        a(f"s_lshl4_add_u32 {s(sGW)}, {s(sR)}, {s(sC)}")
        a(f"s_lshl2_add_u32 {s(sGW)}, {s(sGW)}, {s(sW)}")
        a(f"v_and_b32 {v(t1)}, 1, {v(g)}")
        a(f"v_lshl_add_u32 {v(vOST)}, {v(t1)}, 14, {v(t0)}")
        a(f"v_lshl_add_u32 {v(vOST)}, {v(half)}, 9, {v(vOST)}")
        a(f"v_lshlrev_b32 {v(vWRD)}, 9, {v(half)}")
        a(f"v_lshl_add_u32 {v(vWRD)}, {v(jj)}, 6, {v(vWRD)}")
        a(f"v_lshl_add_u32 {v(vWRD)}, {v(t1)}, 4, {v(vWRD)}")
        a(f"v_and_b32 v27, 1, {v(q)}")
        a(f"v_lshrrev_b32 v32, 1, {v(q)}")
        a(f"v_lshl_add_u32 {v(vWRD)}, v27, 5, {v(vWRD)}")
        a(f"v_lshl_add_u32 {v(vWRD)}, v32, 3, {v(vWRD)}")
        a(f"v_lshlrev_b32 {v(vSTR)}, 8, {v(half)}")
        a(f"v_lshl_add_u32 {v(vSTR)}, v32, 7, {v(vSTR)}")
        a(f"v_lshl_add_u32 {v(vSTR)}, {v(t1)}, 6, {v(vSTR)}")
        a(f"v_lshl_add_u32 {v(vSTR)}, {v(jj)}, 4, {v(vSTR)}")
        a(f"v_lshl_add_u32 {v(vSTR)}, v27, 3, {v(vSTR)}")
        a(f"s_lshl_b32 {s(sT0)}, {s(sSUB)}, 12")
        a(f"s_add_u32 {s(sT0)}, {s(sT0)}, {L_STG + 0x4000}")
        a(f"v_add_u32 {v(vSTR2)}, {s(sT0)}, {v(vSTR)}")
        a(f"s_lshl_b32 {s(sT0)}, {s(sW)}, 12")
        a(f"s_add_u32 {s(sT0)}, {s(sT0)}, {L_STG}")
        a(f"v_add_u32 {v(vSTR)}, {s(sT0)}, {v(vSTR)}")
        a(f"v_bfe_u32 v33, {v(L)}, 3, 2")
        a(f"v_and_b32 {v(vSTW)}, 0x70, {v(vL16)}")
        a(f"v_lshl_add_u32 {v(vSTW)}, v33, 8, {v(vSTW)}")
        a(f"v_lshl_add_u32 {v(vSTW)}, {v(half)}, 12, {v(vSTW)}")
        a(f"s_lshl_b32 {s(sT0)}, {s(sW)}, 10")
        a(f"s_add_u32 {s(sT0)}, {s(sT0)}, {L_STG}")
        a(f"v_add_u32 {v(vSTW)}, {s(sT0)}, {v(vSTW)}")
        a(f"v_bfe_u32 v34, {v(L)}, 1, 2")
        a(f"v_xor_b32 v33, v33, v34")
        a(f"v_lshlrev_b32 {v(vWOW)}, 14, v34")
        a(f"v_lshl_add_u32 {v(vWOW)}, v33, 5, {v(vWOW)}")
        a(f"v_lshl_add_u32 {v(vWOW)}, {v(half)}, 9, {v(vWOW)}")
        a(f"v_lshl_add_u32 {v(vWOW)}, v27, 4, {v(vWOW)}")
        a(f"s_lshl_b32 {s(sT0)}, {s(sW)}, 7")
        a(f"v_add_u32 {v(vWOW)}, {s(sT0)}, {v(vWOW)}")
        a(f"v_lshlrev_b32 {v(vWOR)}, 3, {v(L)}")
        a(f"s_lshl_b32 {s(sT0)}, {s(sSUB)}, 15")
        a(f"s_and_b32 {s(sT1)}, {s(sW)}, 2")
        a(f"s_lshl_b32 {s(sT2)}, {s(sT1)}, 9")
        a(f"s_add_u32 {s(sT0)}, {s(sT0)}, {s(sT2)}")
        a(f"v_add_u32 {v(vWKW)}, {s(sT0)}, {v(vL16)}")
        a(f"v_and_b32 v33, 0x1f0, {v(vL16)}")
        a(f"v_add_u32 {v(vCSR)}, {L_CSP:#x}, v33")
        a(f"v_and_b32 v34, 1, {v(jj)}")
        a(f"v_cmp_eq_u32 vcc, v34, {v(half)}")
        a(f"v_lshlrev_b32 v35, 6, {v(half)}")
        a(f"v_sub_u32 v35, 576, v35")
        a(f"v_cndmask_b32 {v(vKFR)}, v35, v33, vcc")
        a(f"v_add_u32 {v(vKFR)}, {L_KVF:#x}, {v(vKFR)}")
        a(f"s_mul_i32 {s(sT0)}, {s(sT1)}, {KS}")
        a(f"s_lshl_b32 {s(sT2)}, {s(sSUB)}, 6")
        a(f"s_add_u32 {s(sT0)}, {s(sT0)}, {s(sT2)}")
        a(f"s_add_u32 {s(sT0)}, {s(sT0)}, {L_KVF}")
        a(f"v_mul_u32_u24 {v(vKFW)}, {KS}, {v(half)}")
        a(f"v_lshl_add_u32 {v(vKFW)}, {v(q)}, 4, {v(vKFW)}")
        a(f"v_lshl_add_u32 {v(vKFW)}, {v(jj)}, 7, {v(vKFW)}")
        a(f"v_lshl_add_u32 {v(vKFW)}, {v(t1)}, 3, {v(vKFW)}")
        a(f"v_add_u32 {v(vKFW)}, {s(sT0)}, {v(vKFW)}")
        a(f"s_lshl_b32 {s(sT0)}, {s(sW)}, 5")
        a(f"s_add_u32 {s(sT0)}, {s(sT0)}, {L_ZB}")
        a(f"v_lshl_add_u32 {v(vZW)}, {v(q)}, 2, {v(g)}")
        a(f"v_lshl_add_u32 {v(vZW)}, {v(vZW)}, 1, {s(sT0)}")
        a(f"v_mov_b32 v35, {L_ZB:#x}")
        a(f"v_lshl_add_u32 {v(vZR)}, {v(half)}, 5, v35")
        a(f"v_mov_b32 v36, 0x3f80")
        a(f"v_lshlrev_b32 v37, 4, v27")
        a(f"v_lshlrev_b32 v36, v37, v36")
        a(f"v_lshrrev_b32 v37, 1, {v(i16)}")
        a(f"v_lshlrev_b32 v38, 2, {v(t1)}")
        a(f"v_sub_u32 v37, v37, v38")
        for d in range(4):
            a(f"v_cmp_eq_u32 vcc, {d}, v37")
            a(f"v_cndmask_b32 {v(40 + d)}, 0, v36, vcc")
        a(f"v_add_u32 v33, {L_SEL:#x}, v33")
        a(f"ds_write_b128 v33, v[40:43]")
        for i in range(4):
            a(f"v_mov_b32 {v(44 + i)}, 0")
        a(f"v_min_u32 v33, 5, {v(i16)}")
        a(f"v_mul_u32_u24 v33, {KS}, v33")
        a(f"v_lshl_add_u32 v33, {v(half)}, 6, v33")
        a(f"v_add_u32 v33, {L_KVF + 512:#x}, v33")
        a(f"ds_write_b128 v33, v[44:47]")
        a = a0
        self.ts("p_setup")
        while self.nw < cfg["n1"]:
            self.ld_wkv(0, self.nw, 5)
            self.nw += 1
        if cfg["warm_at"] == 1:
            self.warm(0)
        a("s_waitcnt lgkmcnt(0)")
        a.lg.clear()
        a(f"s_lshl_b32 {s(sT0)}, {s(sW)}, 10")
        a(f"s_add_u32 {s(sT0)}, {s(sT0)}, {L_STG + 0x3000}")
        a(f"v_add_u32 v33, {s(sT0)}, {v(vL16)}")
        a.wait(vm="phi")
        a(f"ds_write_b128 v33, v[16:19]", lg="ph")
        a(f"v_lshlrev_b32 v33, 9, v27")
        a(f"v_lshl_add_u32 v33, {v(half)}, 8, v33")
        a(f"v_lshl_add_u32 v33, {v(jj)}, 5, v33")
        a(f"v_lshl_add_u32 v33, {v(t1)}, 4, v33")
        a(f"v_lshl_add_u32 v33, v32, 3, v33")
        a(f"v_add_u32 v33, {s(sT0)}, v33")
        a(f"v_mul_u32_u24 v39, {KS - 512}, {v(half)}")
        a(f"v_add_u32 v39, v39, {v(vL16)}")
        a(f"v_add_u32 v39, {L_WPF:#x}, v39")
        a.wait(lg="ph")
        a(f"ds_read_b64_tr_b16 v[16:17], v33")
        a(f"ds_read_b64_tr_b16 v[18:19], v33 offset:128", lg="ph2")

        def take(i):
            a.wait(vm=f"wkv{i}")
            self.fine(f"p_w{i}")
            self.put_wkv(0, i, i + 1)
        for i in range(cfg["n0"]):
            take(i)
        a.wait(lg="ph2")
        a(f"ds_write_b128 v39, v[16:19]")
        a(f"s_mul_i32 {s(sTAG)}, {s(sEP)}, 0x9e3779b1")
        a(f"s_add_u32 {s(sTAG)}, {s(sTAG)}, 0x7f4a7c15")
        a(f"s_and_b32 {s(sTAG)}, {s(sTAG)}, 0xffffff00")
        a(f"s_or_b32 {s(sXCC)}, {s(sTAG)}, {s(sXCC)}")
        a(f"v_mov_b32 v34, {s(sXCC)}")
        a("s_mov_b64 exec, 1")
        a.wait(vm="sst")
        self.fine("p_ack")
        a(f"buffer_store_dword v34, off, {s(sWS, 4)}, {s(sF0)}")
        a("s_mov_b64 exec, -1")
        if not cfg["hello_late"]:
            self.hello(35, 37)
        self.ts("flag0")
        a(f"v_lshl_add_u32 v38, {v(g)}, 7, {v(vPOLL)}")
        a(f"s_and_b32 {s(sT2)}, {s(sFXP)}, 0xfffffe7f")
        for i in range(cfg["n0"], 16):
            while self.nw < min(16, i + cfg["nw"]):
                self.ld_wkv(0, self.nw, 5)
                self.nw += 1
            if i == cfg["f0_at"]:
                assert self.nw == 16
                a(f"buffer_load_dword v34, v38, {s(sWS, 4)}, {s(sT2)} offen sc1", vm="f0")
                if cfg["warm_at"] == 2:
                    self.warm(0)
            take(i)
        self.puts_left = []
        self.ts("wkv0")
        a.wait(vm="f0")
        a(f"v_cmp_ne_u32 vcc, {s(sXCC)}, v34")
        a("s_branch L_global" if cfg["force_global"] else "s_cbranch_vccnz L_poll0")
        a.label("L_enter")
        with self.outofline():
            a.label("L_poll0")
            a(f"buffer_load_dword v34, v38, {s(sWS, 4)}, {s(sT2)} offen sc1")
            self.countdown()
            a("s_waitcnt vmcnt(0)")
            a(f"v_cmp_ne_u32 vcc, {s(sXCC)}, v34")
            a("s_cbranch_vccz L_enter")
            a(f"s_and_b32 {s(sT1)}, {s(sCNT)}, 15")
            a("s_cbranch_scc1 L_poll0")
            a(f"v_mov_b32 v35, {s(sXCC)}")
            a(f"s_lshl2_add_u32 {s(sT0)}, {s(sC)}, {s(sANN)}")
            a("s_mov_b64 exec, 1")
            a(f"buffer_store_dword v35, off, {s(sWS, 4)}, {s(sT0)} sc1")
            a("s_mov_b64 exec, -1")
            a(f"buffer_load_dword v34, {v(vPOLL)}, {s(sWS, 4)}, {s(sANN)} offen sc1")
            a("s_waitcnt vmcnt(0)")
            a(f"v_xor_b32 v34, {s(sXCC)}, v34")
            a(f"v_add_u32 v34, -1, v34")
            a(f"v_cmp_gt_u32 vcc, 15, v34")
            a("s_cbranch_vccz L_poll0")
            a.label("L_global")
            a(f"s_mov_b32 {s(sMODE)}, 1")
            a(f"s_add_u32 {s(sFXS)}, {s(sFXS)}, {FLAGX2 - FLAGX}")
            a(f"s_add_u32 {s(sFXP)}, {s(sFXP)}, {FLAGX2 - FLAGX}")
            a(f"s_mov_b32 {s(sTG)}, {s(sTAG)}")
            a(f"s_add_u32 {s(sF0)}, {s(sF0)}, {FLAGX2 - FLAGX}")
            a(f"v_mov_b32 v16, {s(sTG)}")
            self.flag(sF0, 16)
            self.poll(vPOLL, sFXP, 34)
            a("s_branch L_enter")
        self.ts("poll0")
        if cfg["pfine"]:
            a("s_waitcnt lgkmcnt(0)")
            for k in range(len(cfg["pfine"])):
                a(f"v_writelane_b32 {v(vTS)}, {s(84 + 2 * k)}, {48 + k}")
            late_srds(a)

    def rowmajor_voff(self, d, t):
        a = self.a
        a(f"v_and_b32 {v(d)}, 0xf0, {v(vL16)}")
        a(f"v_lshlrev_b32 {v(d)}, 6, {v(d)}")
        a(f"v_bfe_u32 {v(t)}, {v(vL16)}, 8, 1")
        a(f"v_lshl_add_u32 {v(d)}, {v(t)}, 5, {v(d)}")
        a(f"v_lshrrev_b32 {v(t)}, 9, {v(vL16)}")
        a(f"v_lshl_add_u32 {v(d)}, {v(t)}, 4, {v(d)}")

    def tile_addr(self, d, t):
        return [f"s_mul_i32 {s(sT0)}, {s(sW)}, 2304",
                f"s_add_u32 {s(sT0)}, {s(sT0)}, {L_STG}",
                f"v_bfe_u32 {v(t)}, {v(vL16)}, 4, 4",
                f"v_mul_u32_u24 {v(d)}, 144, {v(t)}",
                f"v_lshrrev_b32 {v(t)}, 8, {v(vL16)}",
                f"v_lshl_add_u32 {v(d)}, {v(t)}, 3, {v(d)}",
                f"v_add_u32 {v(d)}, {s(sT0)}, {v(d)}",
                f"v_lshrrev_b32 {v(t)}, 7, {v(vL16)}",
                f"v_lshl_add_u32 {v(d + 1)}, {v(t)}, 4, {v(vL16)}",
                f"v_add_u32 {v(d + 1)}, {s(sT0)}, {v(d + 1)}",
                f"v_mul_u32_u24 {v(d + 2)}, {1024 - 128}, {v(t)}",
                f"v_add_u32 {v(d + 2)}, {v(d + 2)}, {v(vL16)}"]

    def final(self):
        a = self.a
        X = AK
        if self.cfg["fin_lds"]:
            a(f"s_add_u32 {s(sT1)}, {s(sFIN)}, 8192")
            for i in range(8):
                a(f"v_cvt_pk_bf16_f32 {v(X + i)}, {v(XR + 2 * i)}, {v(XR + 2 * i + 1)}")
                if i % 4 == 3:
                    a(f"ds_write2_b64 {v(PK)}, {v(X + i - 3, 2)}, {v(X + i - 1, 2)} offset0:{(i >> 2) * 8} offset1:{(i >> 2) * 8 + 4}")
            for i in range(2):
                a(f"ds_read_b128 {v(X + 8 + 4 * i, 4)}, {v(PK + 1)} offset:{1152 * i}")
            for i in range(2):
                a(f"s_waitcnt lgkmcnt({1 - i})")
                a(f"buffer_store_dwordx4 {v(X + 8 + 4 * i, 4)}, {v(PK + 2)}, {s(sOUT, 4)}, {s((sFIN, sT1)[i])} offen{self.cfg['finflag']}")
        else:
            self.rowmajor_voff(PK, PK + 1)
            for i in range(8):
                a(f"v_cvt_pk_bf16_f32 {v(X + i)}, {v(XR + 2 * i)}, {v(XR + 2 * i + 1)}")
            for i in range(2):
                for d in range(2):
                    a(f"v_permlane16_swap_b32 {v(X + 4 * i + d)}, {v(X + 4 * i + 2 + d)}")
            for i in range(2):
                a(f"buffer_store_dwordx4 {v(X + 4 * i, 4)}, {v(PK)}, {s(sOUT, 4)}, {s(sFIN)} offen offset:{64 * i}{self.cfg['finflag']}")
        with self.only_if(f"s_cmp_eq_u32 {s(sGW)}, 0"):
            a(f"s_add_u32 {s(sEP)}, {s(sEP)}, 1")
            a(f"v_mov_b32 v0, {s(sEP)}")
            a("s_mov_b64 exec, 1")
            a(f"buffer_store_dword v0, off, {s(sWS, 4)}, 0 sc1")
            a("s_mov_b64 exec, -1")
        if self.cfg["amp"]:
            amp = self.cfg["amp"]
            self.ts("end")
            a("s_sub_u32 s72, s78, s72")
            a(f"s_mul_i32 s72, s72, {amp[2]}")
            if amp[3]:
                a("s_lshr_b32 s72, s72, 5")
            a("s_min_u32 s72, s72, 100000")
            if self.cfg.get("amp_one") is not None:
                a(f"s_cmp_eq_u32 {s(sGW)}, {self.cfg['amp_one']}")
                a("s_cselect_b32 s72, s72, 0")
            a("s_memrealtime s[78:79]")
            a("s_waitcnt lgkmcnt(0)")
            a("s_mov_b32 s73, s78")
            a.label("L_amp")
            a("s_memrealtime s[78:79]")
            a("s_waitcnt lgkmcnt(0)")
            a("s_sub_u32 s78, s78, s73")
            a("s_cmp_lt_u32 s78, s72")
            a("s_cbranch_scc1 L_amp")
        if self.cfg["ts"]:
            a("s_waitcnt vmcnt(0)")
            self.ts("end")
            a("s_memrealtime s[72:73]")
            a("s_waitcnt lgkmcnt(0)")
            for k in range(len(self.cfg["fine"])):
                a(f"v_writelane_b32 {v(vTS)}, {s(FINE[k])}, {48 + k}")
            a(f"v_writelane_b32 {v(vTS)}, {s(sLAY)}, 58")
            a(f"v_writelane_b32 {v(vTS)}, {s(sTSI)}, 59")
            a(f"v_writelane_b32 {v(vTS)}, {s(sCNT)}, 60")
            a(f"v_writelane_b32 {v(vTS)}, s78, 61")
            a(f"v_writelane_b32 {v(vTS)}, s72, 62")
            a(f"v_writelane_b32 {v(vTS)}, {s(sMODE)}, 63")
            a(f"s_lshl_b32 {s(sT0)}, {s(sGW)}, 8")
            a(f"s_add_u32 {s(sT0)}, {s(sT0)}, {DBG + 0x2000000}")
            a(f"v_lshrrev_b32 v0, 2, {v(vL16)}")
            a(f"buffer_store_dword {v(vTS)}, v0, {s(sWS, 4)}, {s(sT0)} offen")
        a.label("L_timeout")
        a.label("L_end")
        a("s_endpgm")

    def place(self):
        a = self.a
        if not self.cfg["pads"]:
            self.stat = a.layout(self.cfg["align"])
            return
        keep = list(a.ins)
        for k in range(12):
            a.ins.append(Ins(f"L_pad{k}:"))
        cnt = [0]

        def probe(k):
            cnt[0] += 1
            return f"L_tmp{cnt[0]}", "s_nop 0"
        a.layout(self.cfg["align"], probe, 1)
        n = cnt[0]
        a.ins = keep + [Ins(f"L_pad{k}:") for k in range(12)]
        cnt[0] = 0

        def pad(_):
            k = cnt[0]
            cnt[0] += 1
            return f"L_pad{k}", f"s_cbranch_execz {self.pad_back[k]}"
        self.stat = a.layout(self.cfg["align"], pad, 1)
        del a.ins[-12:]
        assert cnt[0] == n <= 12
        for k in range(n, 12):
            i = [x.label for x in a.ins].index(self.pad_back[k])
            a.ins.insert(i, Ins(f"L_pad{k}:"))

    def build(self):
        a = self.a
        self.prologue()
        for l in range(4):
            self.layer(l)
        self.final()
        hot = [k for k, x in enumerate(self.tail) if x.label and x.label.startswith("L_again")]
        blocks, rest_, k = [], [], 0
        while k < len(self.tail):
            e = k
            while self.tail[e].op != "s_branch":
                e += 1
            (blocks if k in hot else rest_).extend(self.tail[k:e + 1])
            k = e + 1
        blocks[1].pad_here = True
        a.raw(blocks + rest_)
        a.label("L_codeend")
        a("s_endpgm")
        if self.cfg["x_16"]:
            out, k, ins = [], 0, a.ins
            i = 0
            while i < len(ins):
                x = ins[i]
                if x.op == "v_mfma_f32_32x32x16_bf16" and min(n for _, n in x.B) < 128 and RG <= min(n for _, n in x.A) < RG + 24:
                    d = min(n for _, n in x.w); j = min(n for _, n in x.B) // 4
                    mk = lambda q: Ins(f"v_mfma_f32_16x16x32_bf16 {v(d + 4 * q, 4)}, {x.ops[1]}, {x.ops[2]}, {v(d + 4 * q, 4) if j > 1 else 0}")
                    e = i + 1
                    while ins[e].kind != "mfma" if ins[e].op else False:
                        if ins[e].op.startswith(("s_cbranch", "s_cmp", "s_mov_b64", "s_waitcnt", "v_cmp", "s_barrier")) or e - i > 3:
                            break
                        e += 1
                    mid = i + 1 + (1 if e > i + 1 and ins[i + 1].op != "s_add_u32" else min(2, e - i - 1))
                    out += [mk(2 * (j & 1))] + ins[i + 1:mid] + [mk(2 * (j & 1) + 1)]
                    i = mid
                    continue
                out.append(x)
                i += 1
            a.ins = out
        nops = a.pad_hazards()
        self.place()
        head = open(f"cdna_kernels/{NAME}.s.ref").read().split("; Override launch")[0]
        out = head + HEADER + f"; @launch grid=(256,1,1) block=(256,1,1) lds={LDS_SIZE}\n"
        out += f""".amdgcn_target "amdgcn-amd-amdhsa--gfx950"
.text
.globl {NAME}_kernel
.p2align 8
.type {NAME}_kernel,@function
{NAME}_kernel:
"""
        out += a.text()
        out += f""".section .rodata,"a"
.p2align 6
.amdhsa_kernel {NAME}_kernel
  .amdhsa_next_free_vgpr 512
  .amdhsa_next_free_sgpr 102
  .amdhsa_accum_offset 256
  .amdhsa_group_segment_fixed_size 0
  .amdhsa_kernarg_size 80
  .amdhsa_user_sgpr_count 2
  .amdhsa_user_sgpr_kernarg_segment_ptr 1
  .amdhsa_system_sgpr_workgroup_id_x 1
.end_amdhsa_kernel
"""
        self.nops = nops
        return out


if __name__ == "__main__":
    import ast
    kw = {}
    out = sys.argv[1]
    for x in sys.argv[2:]:
        k, val = x.split("=", 1)
        kw[k] = ast.literal_eval(val)
    g = Gen(**kw)
    txt = g.build()
    open(out, "w").write(txt)
    print(f"wrote {out}: {len(g.a.ins)} lines, {g.nops} pad states, layout {g.stat}", file=sys.stderr)
```

```python
import sys
import contextlib
from asmlib import Asm, Ins

NAME = "interleave_layers__linear_attn_block__linear_kernel_hedgehog__prompt"

CFG = dict(
    ts=0, rt=0,
    dump=None,
    amp=None,
    force_global=0, fine=(), pfine=(),
    n0=3, n0b=(2, 2), w_every=50, n1=0, hello_late=0, x_noack='', x_16=0, limit=0x200000, jitter=None, x_noput=0, owin2=((0, 0), (4, 0), (2, 8)), xputs2=(0, 6), xprobe_at2=2, warm_at=2, nw=6, latepf=(8, 'bB'), fin_lds=1, xr_at=10, r_num=1, r_y=1, tlb='', sl_first=1, l2pf=0, l2div=1, slow0=1, f0_at=11, codepf=12, slowpf=1, align=99, pads=1, mallpf=5, x_wt=1, x_ann=1,
    hx='ffff', ho='ffff', touch=1,
    bg=((6, 4, 14, 8, 0, 0, 8), (4, 10, 10, 0, 0, 0, 0)),
    pl_step=(26, 24, 22, 20), pl_gap=(1, 1, 1, 2),
    nx0=8, nx1=4, xmix=1, x_qskip=0, x_st=0, ppf=(-1, -1, -1, -1), zlast=0, zst1=0, otouch=0, oinit=(0, -1), nmode=1, no0=8,
    wo_every=(8, 10), qputs=(8, 8), qearly=0, pdepth=2,
    np=8, owin=(((6, 0), (2, 8), (0, 20)), ((0, 32), (4, 0), (4, 0))), ord=((0, 2, 1, 1), (2, 2, 2, 1)),
    xputs=(4, 12), xputs0=(8, 12), x_h=0, x_lin=0, x_allw=0, nw0=6, phi_at=12, qp1=None, trim=0, early_setup=1, brk=1, n0s=3, rot=0, rotq=0, roto=0, spar=1, xprobe_at=5,
    finflag="", jit=0,
)

FLAGX, FLAGO, FLAGX2, ANN, HELLO = 0x1000, 0x3000, 0x7000, 0x9000, 0xA0000
STATS, STATS_G = [0x10000, 0x30000], 0x40000
XB = [0, 0x800000]
OB = [0x400000, 0x600000]
KVP = [0xC0000 + 0x90000 * l for l in range(4)]
DBG = 0x1000000
WS_SIZE = 0x8000000
L_P, L_WQ, L_STG = 0x0, [0x10000, 0x18000], 0x20000
L_KVF = 0x26000
KS = 592
L_WPF = L_KVF + 4 * KS
L_ZB = L_WPF + 2 * KS
L_CSP = L_ZB + 128
L_SEL = L_CSP + 3072
LDS_SIZE = 0x28000
XF, AK, AV, RG, LG, XR, PK = 0, 128, 144, 160, 192, 208, 224
vSTR, vSTR2, vPST, vZST, vKFW, vZW, vZR, vOST = range(184, 192)
vL16, vWRD, vSTW, vKFR, vS, vRS, vM, vXST, vSST, vSLD, vPOLL, vWOR, vWOW, vWKW, vCSR, vTS = range(240, 256)
A_WKV, A_WO = [0, 64], [128, 192]
sID = 2
sPX, sPWA, sPWOA, sPBX, sPWB, sPPHI, sPWOB, sPOUT, sPDBG, sPWS = range(4, 24, 2)
sWS, sOUT, sTMP = 24, 28, 32
XS = [sOUT, sWS]
(sW, sC, sR, sXLD, sSTLD, sFXP, sOST, sFOS, sOLD, sFOP, sXST, sSTST, sFXS, sKVT, sTAG, sMODE, sPASS,
 sEP, sXCC, sT0, sT1, sT2, sT3, sCNT, sWOFF, sQOFF, sOOFF, sHEL, sLN2, sLN2b, sDELTA, sFIN) = range(36, 68)
sHI = 68
sSAVE = 70
sTSA = 72
sTSI = 74
sGW = 75
sLAY = 76
sANN = 77
sW13 = 98
sF0 = 3
sPF = 0
sTG = 1
sPM = 96
sSW, sSO = [80, 84], [88, 92]
vBW, vBO, vHL = RG + 20, RG + 21, RG + 22
vPR, vPB, vPA, vCK = PK + 10, PK + 11, PK + 7, PK + 6
sROT = sPASS
sWQM = 21
sROW = sPM
sCOL = sPBX
assert sLN2 % 2 == 0

FINE = [6, 8, 12, 14, 16, 18, 20, 22]
LOG2E = 0x3FB8AA3B
LN2 = 0x3F317218
DELTA = 0x35C1A4C3
import struct
def f2u(x): return struct.unpack("<I", struct.pack("<f", x))[0]
DELTA = f2u(1e-6 * 1.4426950408889634)


def v(a, n=1): return f"v{a}" if n == 1 else f"v[{a}:{a + n - 1}]"
def ar(a, n=1): return f"a{a}" if n == 1 else f"a[{a}:{a + n - 1}]"
def s(a, n=1): return f"s{a}" if n == 1 else f"s[{a}:{a + n - 1}]"


NOTES = dict(
    start="ids, offsets, code prefetch", kernarg="first loads: x rows, prefetches, k/v weights", p_issue="descriptors and lane constants",
    x0="first layer norm (8 tokens per workgroup), published as MFMA fragments", p_xpub="remaining set-up",
    p_setup="w_phi fragments, weights to LDS, first flag", flag0="rest of the k/v weights", wkv0="first hand-off: same die or not",
    xpoll="gather x fragments", bar1="k, v projection", kvgemm="feature map of k, staging of k and v", bar2="partial kv / z of 128 tokens, published to the column",
    publish="q projection", qgemm="feature map of q", phiq="sum of the 16 partials", bar3="numerator / denominator, publish o",
    ostore="o hand-off", opoll="output projection on top of the residual", ogemm="publish x (or store the result)", xflag="x hand-off")
HEADER = """; One persistent launch, 256 workgroups of 4 waves. Workgroup (r, c): row group r = 128 tokens, column c = heads 2c, 2c+1
; for the q/k/v projection, and a 64 x 64 tile of the output projection. All weights stay on the CU (AGPRs + LDS).
; Per layer: gather x -> k, v -> feature map -> partial kv/z exchanged along the column (write-through stores, marker words)
; Row-group hand-offs use plain stores when all 16 workgroups report the same die, write-through stores otherwise.
; Flags carry a tag derived from a launch counter kept in the workspace.
"""


class Gen:
    def __init__(self, **kw):
        self.cfg = dict(CFG)
        self.cfg.update(kw)
        self.a = Asm()
        self.tail = []
        self.nts = 0
        self.tsnames = []
        self.side = []
        self.side_every = 1
        self.pad_back = {}
        self.xb, self.ob = [0], [0]
        assert self.cfg["hx"][0] == "f" and self.cfg["ho"][0] == "f"
        for l in range(1, 4):
            self.xb.append(self.xb[-1] ^ (self.cfg["hx"][l] == "s"))
            self.ob.append(self.ob[-1] ^ (self.cfg["ho"][l] == "s"))

    @contextlib.contextmanager
    def uncounted(self):
        a = self.a
        vm, lg = list(a.vm), list(a.lg)
        yield
        a.vm, a.lg = vm, lg

    @contextlib.contextmanager
    def only_if(self, cmp):
        a = self.a
        l = a.newlabel("skip")
        a(cmp)
        a(f"s_cbranch_scc0 {l}")
        with self.uncounted():
            yield
        a.label(l)

    @contextlib.contextmanager
    def outofline(self):
        a = self.a
        n0 = len(a.ins)
        with self.uncounted():
            yield
        self.tail += a.ins[n0:]
        del a.ins[n0:]

    def code_pf(self, lo, hi, t):
        a = self.a
        n = f"(({hi}-{lo})/1024+1)"
        a(f"s_bfe_u32 {s(sT0)}, {s(sID)}, {3 | (3 << 16)}")
        a(f"s_mul_i32 {s(sT0)}, {s(sT0)}, {n}*128")
        a(f"s_add_u32 {s(sT0)}, {s(sT0)}, {lo}-L_pc")
        a(f"v_lshlrev_b32 {v(t)}, 3, {v(vL16)}")
        a(f"v_min_u32 {v(t)}, ({n}-1)*128, {v(t)}")
        a(f"v_add_u32 {v(t)}, {s(sT0)}, {v(t)}")
        a(f"v_min_u32 {v(t)}, L_codeend-L_pc, {v(t)}")
        a(f"global_load_dword {v(t)}, {v(t)}, {s(sSAVE, 2)}")

    def warm(self, g):
        a = self.a
        if not self.cfg["pads"]:
            return
        n0 = len(a.ins)
        a("s_mov_b64 exec, 0")
        for k in range(3):
            a(f"s_cmp_eq_u32 {s(sW)}, {k}")
            a(f"s_cbranch_scc1 L_pad{4 * g + k}")
        a(f"s_branch L_pad{4 * g + 3}")
        a.label(f"L_warmed{g}")
        a("s_mov_b64 exec, -1")
        for x in a.ins[n0:]:
            x.nopad = True
        for k in range(4):
            self.pad_back[4 * g + k] = f"L_warmed{g}"

    @contextlib.contextmanager
    def waves01(self, pads):
        a = self.a
        if not self.cfg["pads"]:
            with self.only_if(f"s_cmp_lt_u32 {s(sW)}, 2"):
                yield
                a("s_mov_b64 exec, -1")
            return
        st, back = a.newlabel("stub"), a.newlabel("back")
        a(f"s_cmp_lt_u32 {s(sW)}, 2")
        a(f"s_cbranch_scc0 {st}")
        with self.uncounted():
            yield
        a.label(back)
        a("s_mov_b64 exec, -1")
        i = a.ins.index(self.nook)
        a.ins[i:i] = [Ins(x) for x in (f"{st}:", "s_mov_b64 exec, 0", f"s_cmp_eq_u32 {s(sW)}, 2", f"s_cbranch_scc1 L_pad{pads[0]}", f"s_branch L_pad{pads[1]}")]
        for x in a.ins[i:i + 5] + a.ins[-1:]:
            x.nopad = True
        for k in pads:
            self.pad_back[k] = back

    def countdown(self):
        self.a(f"s_sub_u32 {s(sCNT)}, {s(sCNT)}, 1")
        self.a("s_cbranch_scc1 L_timeout")

    def bg_region(self, n, slots):
        n = min(n, len(self.bg))
        self.bg_slot = 0
        self.bg_at = [(k * slots) // n for k in range(n)]

    def bg_tick(self):
        for _ in range(self.bg_at.count(self.bg_slot)):
            self.bg.pop(0)()
        self.bg_slot += 1

    def bg_now(self, n):
        for _ in range(min(n, len(self.bg))):
            self.bg.pop(0)()

    def ticker(self):
        def e(text, **kw):
            if self.side and self.bg_slot % self.side_every == 0:
                self.side.pop(0)()
            self.bg_tick()
            self.a(text, **kw)
        return e

    def moded(self, lines, tag=None, reg=sMODE, wt=False, cmp=True):
        a = self.a
        if wt:
            for l in lines:
                a(l + (" sc1" if l.startswith("buffer_store") else ""), vm=tag)
            return
        lg, lj = a.newlabel("glob"), a.newlabel("join")
        if cmp:
            a(f"s_cmp_eq_u32 {s(reg)}, 0")
        a(f"s_cbranch_scc0 {lg}")
        for l in lines:
            a(l, vm=tag)
        a.label(lj)
        t = [Ins(lg + ":")] + [Ins(l + (" sc1" if l.startswith("buffer_store") else "")) for l in lines] + [Ins(f"s_branch {lj}")]
        self.tail += t

    def srd_tmp(self, ptr, size):
        a = self.a
        a(f"s_mov_b32 {s(sTMP)}, {s(ptr)}")
        a(f"s_mov_b32 {s(sTMP + 1)}, {s(ptr + 1)}")
        a(f"s_mov_b32 {s(sTMP + 2)}, {size}")

    def ts(self, name):
        a = self.a
        what = NOTES.get(name.split(":")[-1])
        if what:
            a.ins.append(Ins("; ---- " + (f"layer {name[0]}: " if ":" in name else "") + what))
        self.fine(name)
        amp = self.cfg["amp"]
        if amp:
            for k in range(2):
                if amp[k] == name:
                    a(f"{'s_memtime' if amp[3] else 's_memrealtime'} {s(72 + 6 * k, 2)}")
                    if name != "start":
                        a("s_waitcnt lgkmcnt(0)")
        if not self.cfg["ts"] or name == "start":
            return
        if self.cfg["ts"] == 1 and name.startswith("p_"):
            return
        if self.cfg["ts"] == 4 and name not in ("kernarg", "end"):
            return
        if self.cfg["ts"] == 3 and name not in ("x0", "flag0", "poll0", "end") and name[2:] not in ("kvgemm", "ogemm"):
            return
        if self.cfg["ts"] == 2 and ":" in name and name[2:] not in ("kvgemm", "bar3", "ogemm"):
            return
        a(f"{'s_memrealtime' if self.cfg['rt'] else 's_memtime'} {s(sTSA, 2)}")
        a("s_waitcnt lgkmcnt(0)")
        a.lg.clear()
        a(f"v_writelane_b32 {v(vTS)}, {s(sTSA)}, {len(self.tsnames)}")
        self.tsnames.append(name)
        assert len(self.tsnames) <= 56

    def fine(self, name):
        if self.cfg["jitter"] and name not in ("start", "kernarg") and not name.endswith(("p_mfma",)):
            seed, mask, every = self.cfg["jitter"]
            self.njit = getattr(self, "njit", 0) + 1
            if (self.njit * 7 + seed) % every == 0:
                a = self.a
                l = a.newlabel("jit")
                a(f"s_lshl2_add_u32 s72, {s(sID)}, {s(sW)}")
                a(f"s_add_u32 s72, s72, {(self.njit * 2654435761 + seed * 40503) & 0xffff}")
                a(f"s_mul_i32 s72, s72, 0x9e3779b1")
                a(f"s_lshr_b32 s73, s72, 15")
                a(f"s_xor_b32 s72, s72, s73")
                a(f"s_mul_i32 s72, s72, 0x85ebca6b")
                a(f"s_lshr_b32 s73, s72, 20")
                a(f"s_lshr_b32 s72, s72, 8")
                a(f"s_and_b32 s72, s72, s73")
                a(f"s_and_b32 s72, s72, {mask}")
                a.label(l)
                a("s_sleep 2")
                a("s_sub_u32 s72, s72, 1")
                a(f"s_cbranch_scc0 {l}")
        if name in self.cfg["pfine"]:
            self.a(f"s_memtime {s(84 + 2 * list(self.cfg['pfine']).index(name), 2)}")
        if name in self.cfg["fine"]:
            self.a(f"s_memtime {s(FINE[list(self.cfg['fine']).index(name)], 2)}")

    def dump(self, point, l, regs, tmp):
        if self.cfg["dump"] != (point, l):
            return
        a = self.a
        with self.uncounted():
            a("s_waitcnt vmcnt(0) lgkmcnt(0)")
            a("s_nop 15")
            a(f"v_lshrrev_b32 {v(tmp)}, 2, {v(vL16)}")
            a(f"s_mul_i32 {s(sT0)}, {s(sGW)}, {64 * 256}")
            a(f"s_add_u32 {s(sT0)}, {s(sT0)}, {DBG}")
            for i, r in enumerate(regs):
                a(f"buffer_store_dword {v(r)}, {v(tmp)}, {s(sWS, 4)}, {s(sT0)} offen")
                a(f"s_add_u32 {s(sT0)}, {s(sT0)}, 256")
            a("s_waitcnt vmcnt(0)")

    def poll(self, voff, soff, tmp, tag=sTG):
        a = self.a
        l = a.newlabel("poll")
        a.label(l)
        a(f"buffer_load_dword {v(tmp)}, {v(voff)}, {s(sWS, 4)}, {s(soff)} offen sc1")
        self.countdown()
        a.wait(vm=0)
        a(f"v_cmp_ne_u32 vcc, {s(tag)}, {v(tmp)}")
        a(f"s_cbranch_vccnz {l}")

    def flag(self, soff, tmp, after=0):
        a = self.a
        a("s_mov_b64 exec, 1")
        self.moded(a.wait_text(vm=after) + [f"buffer_store_dword {v(tmp)}, off, {s(sWS, 4)}, {s(soff)}"])
        a("s_mov_b64 exec, -1")

    def w_voff(self, t):
        a = self.a
        a(f"v_lshrrev_b32 {v(t)}, 6, {v(vL16)}")
        a(f"v_mul_u32_u24 {v(t)}, {3072 - 64}, {v(t)}")
        a(f"v_add_u32 {v(t)}, {v(t)}, {v(vL16)}")

    def ld_wkv(self, T, i, t, st=sT0):
        a = self.a
        if self.cfg["x_lin"] & (1 << T):
            a(f"s_lshl2_add_u32 {s(st)}, {s(sC)}, {s(sW)}")
            a(f"s_lshl_b32 {s(st)}, {s(st)}, 10")
            a(f"s_add_u32 {s(st)}, {s(st)}, {i * 65536}")
            a(f"buffer_load_dwordx4 {ar(A_WKV[T] + 4 * i, 4)}, {v(vL16)}, {s(sSW[T], 4)}, {s(st)} offen", vm=f"wkv{i}")
            return
        if self.cfg["rot"]:
            a(f"s_xor_b32 {s(st)}, {s(sROT)}, {i}")
            a(f"s_mul_i32 {s(st)}, {s(st)}, {32 * 3072}")
            a(f"s_add_u32 {s(st)}, {s(st)}, {s(sWOFF)}")
        else:
            a(f"s_add_u32 {s(st)}, {s(sWOFF)}, {i * 32 * 3072}")
        a(f"buffer_load_dwordx4 {ar(A_WKV[T] + 4 * i, 4)}, {v(t)}, {s(sSW[T], 4)}, {s(st)} offen", vm=f"wkv{i}")

    def ld_wq(self, T, i):
        a = self.a
        if self.cfg["x_lin"] & 4:
            a(f"s_add_u32 m0, {s(sW13)}, {L_WQ[T] + i * 1024}")
            a(f"s_lshl2_add_u32 {s(sT0)}, {s(sC)}, {s(sW)}")
            a(f"s_lshl_b32 {s(sT0)}, {s(sT0)}, 10")
            a(f"s_add_u32 {s(sT0)}, {s(sT0)}, {(16 + i) * 65536}")
            a(f"buffer_load_dwordx4 {v(vL16)}, {s(sSW[T], 4)}, {s(sT0)} offen lds", vm="wq")
            return
        if self.cfg["rotq"]:
            a(f"s_xor_b32 m0, {s(sWQM)}, {L_WQ[T] + i * 1024}")
        else:
            a(f"s_add_u32 m0, {s(sW13)}, {L_WQ[T] + i * 1024}")
        if self.cfg["rot"]:
            a(f"s_xor_b32 {s(sT0)}, {s(sQOFF)}, {i}")
            a(f"s_mul_i32 {s(sT0)}, {s(sT0)}, {16 * 48}")
            a(f"s_add_u32 {s(sT0)}, {s(sT0)}, {s(sC)}")
            a(f"s_lshl_b32 {s(sT0)}, {s(sT0)}, 6")
        else:
            a(f"s_add_u32 {s(sT0)}, {s(sQOFF)}, {i * 16 * 3072}")
        a(f"buffer_load_dwordx4 {v(self.bw)}, {s(sSW[T], 4)}, {s(sT0)} offen lds", vm="wq")

    def ld_wo(self, T, i):
        a = self.a
        a(f"s_xor_b32 {s(sT0)}, {s(sOOFF)}, {i * 32 * 1024}")
        a(f"buffer_load_dwordx4 {ar(A_WO[T] + 4 * i, 4)}, {v(vBO)}, {s(sSO[T], 4)}, {s(sT0)} offen", vm=f"wo{i}")

    def slow_pf(self, srd, n, t):
        a = self.a
        if not self.cfg["slowpf"]:
            return
        a(f"s_sub_u32 {s(sT0)}, 0x180, {s(srd)}")
        a(f"s_and_b32 {s(sT0)}, {s(sT0)}, 0x380")
        a(f"s_mul_i32 {s(sT1)}, {s(sPF)}, {n * 1024}")
        a(f"s_add_u32 {s(sT0)}, {s(sT0)}, {s(sT1)}")
        a(f"v_lshlrev_b32 {v(t)}, 6, {v(vL16)}")
        a(f"s_mov_b64 exec, {(1 << n) - 1:#x}")
        a(f"buffer_load_dword {v(t)}, {v(t)}, {s(srd, 4)}, {s(sT0)} offen")
        a("s_mov_b64 exec, -1")

    def chip_pf(self, srd, n, t):
        a = self.a
        a(f"s_lshl2_add_u32 {s(sT0)}, {s(sID)}, {s(sW)}")
        a(f"s_mul_i32 {s(sT0)}, {s(sT0)}, {n * 128}")
        a(f"v_lshlrev_b32 {v(t)}, 3, {v(vL16)}")
        a(f"s_mov_b64 exec, {(1 << n) - 1:#x}")
        a(f"buffer_load_dword a255, {v(t)}, {s(srd, 4)}, {s(sT0)} offen")
        a("s_mov_b64 exec, -1")

    def bg_setup(self, T):
        self.bg = [(lambda i=i: self.ld_wq(T, i)) for i in range(8)] + [(lambda i=i: self.ld_wo(T, i)) for i in range(16)]
        if T == 0:
            self.bg += [(lambda i=i: self.ld_wkv(1, i, vBW)) for i in range(16)]
            old2 = self.bg[self.cfg["xr_at"]]

            def xr():
                a = self.a
                assert self.bw == vBW
                self.srd_tmp(sPX, 0x200000)
                a(f"s_add_u32 {s(sT0)}, {s(sFIN)}, 8192")
                for i in range(2):
                    a(f"buffer_load_dwordx4 {v(XR + 4 * i, 4)}, {v(vBO)}, {s(sTMP, 4)}, {s((sFIN, sT0)[i])} offen", vm="xr")
                old2()
            self.bg[self.cfg["xr_at"]] = xr
            at, which = self.cfg["latepf"]
            old = self.bg[at]

            def both():
                t = RG + 23 if self.bw == vBW else PK + 8
                for c_ in which:
                    self.chip_pf(*{"a": (sSW[0], 12), "b": (sSW[1], 12), "A": (sSO[0], 4), "B": (sSO[1], 4)}[c_], t)
                old()
            self.bg[at] = both

    def put_wkv(self, T, lo, hi, waits=False):
        for i in range(lo, hi):
            if self.cfg["x_noput"] & 1 and getattr(self, "cur", 0) and self.cur > 0.5:
                continue
            if waits:
                self.a.wait(vm=f"wkv{i}")
            self.a(f"ds_write_b128 {v(vWKW)}, {ar(A_WKV[T] + 4 * i, 4)} offset:{i * 2048}", lg="put")

    def put_wo(self, T, i):
        if self.cfg["x_noput"] & 2 and self.cur > 0 and i >= self.cfg["np"]:
            return
        self.a(f"ds_write_b128 {v(vWOW)}, {ar(A_WO[T] + 4 * i, 4)} offset:{i * 1024}", lg="putwo")

    def woff(self, j, u):
        if self.lay == 0:
            return j * 1024 + u * 256
        return (j >> 2) * 4096 + u * 1024 + (j & 3) * 256

    def cs_kv_step(self, T, i, sel, d):
        return (f"v_mfma_f32_16x16x32_bf16 {v(d, 4)}, {v(sel, 4)}, {ar(A_WKV[T] + 4 * i, 4)}, {v(d, 4) if i else 0}")

    def cs_q_fin(self, T, d, t):
        o = [f"s_lshl_b32 {s(sT2)}, {s(sW)}, 2\ns_add_u32 {s(sT2)}, {s(sT2)}, {L_CSP + T * 1536 + 1024}",
             f"v_lshrrev_b32 {v(t)}, 9, {v(vL16)}\nv_lshl_add_u32 {v(t)}, {v(t)}, 5, {s(sT2)}"]
        for bit, sh in ((4, 8), (8, 7), (5, 6)):
            o.append(f"v_bfe_u32 {v(t + 1)}, {v(vL16)}, {bit}, 1\nv_lshl_add_u32 {v(t)}, {v(t + 1)}, {sh}, {v(t)}")
        f = [f"v_permlane32_swap_b32 {v(d)}, {v(d + 2)}", f"v_permlane32_swap_b32 {v(d + 1)}, {v(d + 3)}",
             f"v_add_f32 {v(d)}, {v(d)}, {v(d + 2)}\nv_add_f32 {v(d + 1)}, {v(d + 1)}, {v(d + 3)}"]
        for ror in (4, 8):
            f.append(f"v_add_f32 {v(d)}, {v(d)}, {v(d)} row_ror:{ror}\nv_add_f32 {v(d + 1)}, {v(d + 1)}, {v(d + 1)} row_ror:{ror}")
        f.append(lambda: self.a(f"ds_write2_b32 {v(t)}, {v(d)}, {v(d + 1)} offset0:0 offset1:4", lg="csw"))
        return o, f

    def cs_kv_fin(self, T, d, t):
        o = [f"s_and_b32 {s(sT2)}, {s(sW)}, 1",
             f"s_lshl_b32 {s(sT2)}, {s(sT2)}, 9",
             f"s_and_b32 {s(sT1)}, {s(sW)}, 2",
             f"s_lshl2_add_u32 {s(sT2)}, {s(sT1)}, {s(sT2)}",
             f"s_add_u32 {s(sT2)}, {s(sT2)}, {L_CSP + T * 1536}",
             f"v_lshrrev_b32 {v(t)}, 9, {v(vL16)}",
             f"v_lshl_add_u32 {v(t)}, {v(t)}, 2, {s(sT2)}"]
        for bit, sh in ((4, 8), (8, 7), (5, 6)):
            o += [f"v_bfe_u32 {v(t + 1)}, {v(vL16)}, {bit}, 1", f"v_lshl_add_u32 {v(t)}, {v(t + 1)}, {sh}, {v(t)}"]
        f = [f"v_add_f32 {v(d + i)}, {v(d + i)}, {v(d + i)} row_ror:{ror}" for ror in (4, 8) for i in range(4)]
        f += [f"ds_write2_b32 {v(t)}, {v(d)}, {v(d + 1)} offset0:0 offset1:4", f"ds_write2_b32 {v(t)}, {v(d + 2)}, {v(d + 3)} offset0:8 offset1:12"]
        return o, f

    def hello(self, d, t):
        a = self.a
        with self.only_if(f"s_cmp_lt_u32 {s(sW)}, 2"):
            a(f"s_or_b32 {s(sT1)}, {s(sTAG)}, 0xf0")
            a(f"v_mov_b32 {v(d)}, {s(sT1)}")
            a(f"v_lshrrev_b32 {v(t)}, 2, {v(vL16)}")
            a(f"s_lshl_b32 {s(sT0)}, {s(sR)}, 7")
            a(f"s_add_u32 {s(sT0)}, {s(sT0)}, {s(sHEL)}")
            a("s_mov_b32 exec_hi, 0")
            a(f"buffer_store_dword {v(d)}, {v(t)}, {s(sWS, 4)}, {s(sT0)} offen sc1")
            a("s_mov_b32 exec_hi, -1")

    def mark_slot(self, delta, ones):
        a = self.a
        a(f"s_add_u32 {s(sT2)}, {s(sKVT)}, {delta}")
        a(f"s_mov_b64 exec, {s(sROW, 2)}")
        a(f"buffer_store_dwordx4 {v(ones, 4)}, {v(vPST)}, {s(sWS, 4)}, {s(sT2)} offen sc1", vm="mark")
        a(f"s_mov_b64 exec, {s(sCOL, 2)}")
        a(f"buffer_store_dwordx4 {v(ones, 4)}, {v(vZST)}, {s(sWS, 4)}, {s(sT2)} offen sc1", vm="mark")
        a("s_mov_b64 exec, -1")

    def sel_read(self, sel):
        a = self.a
        a(f"v_and_b32 {v(sel)}, 0x1f0, {v(vL16)}")
        a(f"v_add_u32 {v(sel)}, {L_SEL:#x}, {v(sel)}")
        a(f"ds_read_b128 {v(sel, 4)}, {v(sel)}", lg="sel")

    @staticmethod
    def cs_pack(src, dst):
        return [
            f"v_add_f32 {v(src)}, {v(src)}, {v(src + 2)}",
            f"v_add_f32 {v(src + 1)}, {v(src + 1)}, {v(src + 3)}",
            f"v_add_f32 {v(src)}, {v(src)}, {v(src + 1)}",
            f"v_cvt_pk_bf16_f32 {v(src + 1)}, {v(src)}, {v(src)}",
            f"v_and_b32 {v(src + 1)}, 0xffff0000, {v(src + 1)}",
            f"v_sub_f32 {v(src)}, {v(src)}, {v(src + 1)}",
            f"v_cvt_pk_bf16_f32 {v(dst)}, {v(src + 1)}, {v(src)}",
        ]

    def x_steps(self, B, src, X, wt=False, par=0):
        a = self.a
        t = X + 8
        st = []
        E = lambda txt: st.append(lambda: a(txt))
        xl = []
        for h in range(2):
            xl += [f"v_cvt_pk_bf16_f32 {v(X + i)}, {v(src + 2 * i)}, {v(src + 2 * i + 1)}" for i in range(4 * h, 4 * h + 4)]
            xl += [f"buffer_store_dwordx4 {v(X + 4 * h, 4)}, {v(vXST)}, {s(XS[B], 4)}, {s(sXST)} offen offset:{h * 512}"]
        st.append(lambda: self.moded(xl, tag="xst", wt=wt))
        E(f"v_pk_add_f32 {v(t, 2)}, {v(src, 2)}, {v(src + 2, 2)}")
        E(f"v_pk_mul_f32 {v(t + 2, 2)}, {v(src, 2)}, {v(src, 2)}")
        E(f"v_pk_fma_f32 {v(t + 2, 2)}, {v(src + 2, 2)}, {v(src + 2, 2)}, {v(t + 2, 2)}")
        for i in range(2, 8):
            E(f"v_pk_add_f32 {v(t, 2)}, {v(t, 2)}, {v(src + 2 * i, 2)}")
            E(f"v_pk_fma_f32 {v(t + 2, 2)}, {v(src + 2 * i, 2)}, {v(src + 2 * i, 2)}, {v(t + 2, 2)}")
        E(f"v_add_f32 {v(t)}, {v(t)}, {v(t + 1)}")
        E(f"v_add_f32 {v(t + 2)}, {v(t + 2)}, {v(t + 3)}")
        E(f"v_permlane32_swap_b32 {v(t)}, {v(t + 2)}")
        E(f"v_add_f32 {v(t)}, {v(t)}, {v(t + 2)}")
        E(f"v_mov_b32 {v(t + 1)}, {v(t)}")

        def stat():
            self.moded([f"v_permlane16_swap_b32 {v(t)}, {v(t + 1)}", f"s_mov_b64 exec, {s(sROW, 2)}", f"v_add_f32 {v(t)}, {v(t)}, {v(t + 1)}",
                        f"v_or_b32 {v(t)}, 1, {v(t)}" if par else f"v_and_b32 {v(t)}, -2, {v(t)}",
                        f"buffer_store_dword {v(t)}, {v(vSST)}, {s(sWS, 4)}, {s(sSTST)} offen"], tag="sst")
            a("s_mov_b64 exec, -1")
        st.append(stat)
        return st

    def ldx(self, B, j):
        a = self.a
        if self.cfg["x_h"] & 1 and self.lay and j in (29, 30):
            return
        if j % 4 == 0 and j:
            a(f"s_xor_b32 {s(sT3)}, {s(sXLD)}, {j * 1024}")
        a(f"buffer_load_dwordx4 {v(XF + 4 * j, 4)}, {v(vL16)}, {s(XS[B], 4)}, {s(sT3 if j >= 4 else sXLD)} offen offset:{(j % 4) * 1024} sc1", vm=f"x{j}")

    def probe(self, what, reg, setexec=True):
        a = self.a
        voff, srd, soff, off, _ = what
        if setexec:
            a("s_mov_b64 exec, 0xffff")
        a(f"buffer_load_dword {v(reg)}, {v(voff)}, {s(srd, 4)}, {s(soff)} offen offset:{off} sc1", vm="probe")
        if setexec:
            a("s_mov_b64 exec, -1")

    def spin_more(self, what, name):
        a = self.a
        a(f"s_branch L_over{name}")
        a.label(f"L_more{name}")
        with self.uncounted():
            self.probe(what, vPR, False)
            self.countdown()
            a("s_waitcnt vmcnt(1)")
            a(f"{what[4]}, {v(vPB)}")
            a(f"s_cbranch_vccz L_go{name}")
            a(f"s_branch L_spin{name}")
        a.label(f"L_over{name}")
        self.nook = a.ins[-1]

    def spin(self, what, name):
        a = self.a
        a("s_mov_b64 exec, 0xffff")
        a.label(f"L_spin{name}")
        self.probe(what, vPB, False)
        a("s_waitcnt vmcnt(1)")
        a(f"{what[4]}, {v(vPR)}")
        a(f"s_cbranch_vccnz L_more{name}")
        a.label(f"L_go{name}")
        a("s_mov_b64 exec, -1")
        a.vm.clear()

    def what_x(self, l):
        if self.cfg["hx"][l] == "s":
            return (vPA, XS[self.xb[l]], sT3, 3824, "v_cmp_eq_u32 vcc, -1")
        return (vPOLL, sWS, sFXP, 0, f"v_cmp_ne_u32 vcc, {s(sTG)}")

    def what_o(self, l):
        if self.cfg["ho"][l] == "s":
            return (vPA, sWS, sT3, 1008, "v_cmp_eq_u32 vcc, -1")
        return (vPOLL, sWS, sFOP, 0, f"v_cmp_ne_u32 vcc, {s(sTG)}")

    def x_probe_addr(self):
        return [f"v_and_b32 {v(vPR)}, 4, {v(vPOLL)}",
                f"v_mul_u32_u24 {v(vPR)}, 448, {v(vPR)}",
                f"v_lshlrev_b32 {v(vPA)}, 9, {v(vPOLL)}",
                f"v_sub_u32 {v(vPA)}, {v(vPA)}, {v(vPR)}"]

    def phi_a(self, acc, tmp, after=None):
        a = self.ticker()
        if self.lay == 0:
            for i in range(8):
                a(f"v_cvt_pk_bf16_f32 {v(PK + i)}, {v(acc + 2 * i)}, {v(acc + 2 * i + 1)}")
            for i in range(8):
                a(f"v_lshlrev_b32 {v(acc + 2 * i)}, 16, {v(PK + i)}")
                a(f"v_and_b32 {v(acc + 2 * i + 1)}, 0xffff0000, {v(PK + i)}")
            for i in range(8):
                a(f"v_pk_mul_f32 {v(tmp + 2 * i, 2)}, {v(acc + 2 * i, 2)}, {v(vS, 2)} op_sel_hi:[1,0]")
            for i in range(16):
                a(f"v_exp_f32_e64 {v(tmp + i)}, {v(tmp + i)} clamp")
                a(f"v_max_f32 {v(acc + i)}, {s(sDELTA)}, {v(acc + i)}")
            for h in range(2):
                for i in range(4 * h, 4 * h + 4):
                    a(f"v_pk_add_f32 {v(acc + 2 * i, 2)}, {v(acc + 2 * i, 2)}, {v(tmp + 2 * i, 2)}")
                for i in range(4 * h, 4 * h + 4):
                    a(f"v_cvt_pk_bf16_f32 {v(PK + i)}, {v(acc + 2 * i)}, {v(acc + 2 * i + 1)}")
                if after:
                    after(h)
            return
        for i in range(8):
            a(f"v_pk_mul_f32 {v(acc + 2 * i, 2)}, {v(acc + 2 * i, 2)}, {v(vS, 2)} op_sel_hi:[1,0]")
        for i in range(16):
            a(f"v_exp_f32_e64 {v(tmp + i)}, {v(acc + i)} clamp")
            a(f"v_max_f32 {v(acc + i)}, {s(sDELTA)}, {v(acc + i)}")
        for h in range(2):
            for i in range(4 * h, 4 * h + 4):
                a(f"v_pk_fma_f32 {v(acc + 2 * i, 2)}, {v(acc + 2 * i, 2)}, {s(sLN2, 2)}, {v(tmp + 2 * i, 2)}")
            for i in range(4 * h, 4 * h + 4):
                a(f"v_cvt_pk_bf16_f32 {v(PK + i)}, {v(acc + 2 * i)}, {v(acc + 2 * i + 1)}")
            if after:
                after(h)

    def logits(self, between=None):
        a = self.a
        a.wait(lg="wp")
        for i in range(6):
            a(f"v_cvt_pk_bf16_f32 {v(PK + i)}, {v(AK + 2 * i)}, {v(AK + 2 * i + 1)}")
        a(f"v_mfma_f32_32x32x16_bf16 {v(LG, 16)}, {v(PK + 8, 4)}, {v(PK, 4)}, 0")
        for i in range(6, 8):
            a(f"v_cvt_pk_bf16_f32 {v(PK + i)}, {v(AK + 2 * i)}, {v(AK + 2 * i + 1)}")
        if between:
            between()
        a(f"v_mfma_f32_32x32x16_bf16 {v(LG, 16)}, {v(PK + 12, 4)}, {v(PK + 4, 4)}, {v(LG, 16)}")

    def softmax2(self, t, isq, after=None):
        a = self.ticker()
        a(f"v_max3_f32 {v(t)}, {v(LG)}, {v(LG + 1)}, {v(LG + 2)}")
        a(f"v_min3_f32 {v(t + 1)}, {v(LG)}, {v(LG + 1)}, {v(LG + 2)}")
        for i in range(3, 15, 2):
            a(f"v_max3_f32 {v(t)}, {v(t)}, {v(LG + i)}, {v(LG + i + 1)}")
            a(f"v_min3_f32 {v(t + 1)}, {v(t + 1)}, {v(LG + i)}, {v(LG + i + 1)}")
        a(f"v_max_f32 {v(t)}, {v(t)}, {v(LG + 15)}")
        a(f"v_min_f32 {v(t + 1)}, {v(t + 1)}, {v(LG + 15)}")
        a(f"v_pk_mul_f32 {v(t, 2)}, {v(t, 2)}, {v(vS, 2)} op_sel_hi:[1,0]")
        for sg, E in ((0, AK), (1, LG)):
            for i in range(8):
                if sg == 0:
                    a(f"v_pk_fma_f32 {v(E + 2 * i, 2)}, {v(LG + 2 * i, 2)}, {v(vS, 2)}, {v(t, 2)} op_sel_hi:[1,0,0] neg_lo:[0,0,1] neg_hi:[0,0,1]")
                else:
                    a(f"v_pk_fma_f32 {v(E + 2 * i, 2)}, {v(LG + 2 * i, 2)}, {v(vS, 2)}, {v(t, 2)} op_sel:[0,0,1] op_sel_hi:[1,0,1] neg_lo:[1,0,0] neg_hi:[1,0,0]")
            for i in range(16):
                a(f"v_exp_f32 {v(E + i)}, {v(E + i)}")
            if self.cfg["x_h"] & 2 and not isq:
                a("s_nop 12")
            S = t + 2 + 2 * sg
            a(f"v_pk_add_f32 {v(S, 2)}, {v(E, 2)}, {v(E + 2, 2)}")
            for i in range(2, 8):
                a(f"v_pk_add_f32 {v(S, 2)}, {v(S, 2)}, {v(E + 2 * i, 2)}")
            a(f"v_add_f32 {v(S)}, {v(S)}, {v(S + 1)}")
            if not (isq and sg == 0):
                a(f"v_rcp_f32 {v(S)}, {v(S)}")
                if isq:
                    a(f"v_mul_f32 {v(t + 6)}, {f2u(1e-6):#x}, {v(t + 2)}")
                    a(f"v_mul_f32 {v(S)}, {v(S)}, {v(t + 2)}")
            for h in range(2):
                for i in range(4 * h, 4 * h + 4):
                    if not (isq and sg == 0):
                        a(f"v_pk_mul_f32 {v(E + 2 * i, 2)}, {v(E + 2 * i, 2)}, {v(S, 2)} op_sel_hi:[1,0]")
                for i in range(4 * h, 4 * h + 4):
                    a(f"v_cvt_pk_bf16_f32 {v(PK + 8 * sg + i)}, {v(E + 2 * i)}, {v(E + 2 * i + 1)}")
                if after:
                    after(2 * sg + h)

    def layer(self, l):
        a, cfg = self.a, self.cfg
        T, first, last = l & 1, l < 2, l == 3
        self.lay = l
        NJ = 2 if T == 0 else 4
        skip23 = (lambda: self.only_if(f"s_cmp_lt_u32 {s(sW)}, 2")) if T == 0 else contextlib.nullcontext
        bgn = cfg["bg"][l] if first else (0,) * 7
        self.bg = []
        if first:
            self.bg_setup(T)
            assert sum(bgn) >= len(self.bg) and bgn[0] + bgn[1] >= 8 and sum(bgn[:3]) >= 8 + cfg['np'] and sum(bgn[:5]) >= 24 and bgn[0] <= 8 and bgn[6] <= 8
        NX = cfg["nx0"]
        wx = (vPOLL, sWS, sFXP, 0, f"v_cmp_ne_u32 vcc, {s(sTG)}")
        wo_ = (vPOLL, sWS, sFOP, 0, f"v_cmp_ne_u32 vcc, {s(sTG)}")
        a.label(f"L_layer{l}")
        if l:
            self.spin(wx, f"x{l}")
        a.vm.clear()
        self.ts(f"{l}:xpoll")
        ST = LG
        CS = LG + 8
        CSA, MB = PK, PK + 2
        D = 3

        def rd(j, p):
            for u in range(2):
                a(f"ds_read_b64_tr_b16 {v(RG + (j % D) * 8 + 4 * p + 2 * u, 2)}, {v(vWRD)} offset:{p * 32768 + self.woff(j, u)}", lg=f"w{j}")

        def ldx(j):
            self.ldx(0, j)
            if l == 0:
                return
            if j == max(NX, 9):
                a(f"buffer_load_dwordx4 {v(ST, 4)}, {v(vSLD)}, {s(sWS, 4)}, {s(sSTLD)} offen sc1", vm="st")
            if j == max(NX, 9) + 2 and cfg["x_st"]:
                for i_ in range(4):
                    a(f"v_mov_b32 {v(ST + 4 + i_)}, {T}")
            elif j == max(NX, 9) + 2:
                a(f"buffer_load_dwordx4 {v(ST + 4, 4)}, {v(vSLD)}, {s(sWS, 4)}, {s(sSTLD)} offen offset:512 sc1", vm="st")
        nx1 = cfg["nx1"]
        for j in range(nx1):
            ldx(j)
        for i in self.puts_left:
            self.put_wkv(T, i, i + 1)
            if nx1 < NX and cfg["xmix"]:
                ldx(nx1)
                nx1 += 1
        a.wait(lg=0)
        a("s_barrier")
        self.cur = l
        self.ts(f"{l}:bar1")
        pre = [(j, p) for j in range(D) for p in range(2)]
        for j in range(nx1, NX):
            for _ in range(2):
                if pre:
                    rd(*pre.pop(0))
            ldx(j)
        while pre:
            rd(*pre.pop(0))
        if l:
            a(f"ds_read_b128 {v(CS, 4)}, {v(vCSR)} offset:{T * 1536}", lg="cs")
            a(f"ds_read_b128 {v(CS + 4, 4)}, {v(vCSR)} offset:{T * 1536 + 512}", lg="cs")
        t, u_ = ST, ST + 1
        stat = []
        if l > 1 and cfg["spar"]:
            CK = PK + 6
            op = "0x80" if T else "0xfe"
            stat = [f"L_sums{l}:\nv_bitop3_b32 {v(CK)}, {v(ST)}, {v(ST + 1)}, {v(ST + 2)} bitop3:{op}",
                    f"v_bitop3_b32 {v(CK)}, {v(CK)}, {v(ST + 3)}, {v(ST + 4)} bitop3:{op}\n"
                    f"v_bitop3_b32 {v(CK)}, {v(CK)}, {v(ST + 5)}, {v(ST + 6)} bitop3:{op}\n"
                    f"v_bitop3_b32 {v(CK)}, {v(CK)}, {v(ST + 7)}, 1 bitop3:{'0x80' if T else '0xa8'}\n"
                    f"v_cmp_ne_u32 vcc, {T}, {v(CK)}\n"
                    f"s_cbranch_vccnz L_sumsre{l}"]
            stat = [None, stat[0] + "\n" + stat[1]]
            with self.outofline():
                a.label(f"L_sumsre{l}")
                self.countdown()
                if cfg["ts"]:
                    a(f"s_add_u32 {s(sLAY)}, {s(sLAY)}, 1")
                for i in range(2):
                    a(f"buffer_load_dwordx4 {v(ST + 4 * i, 4)}, {v(vSLD)}, {s(sWS, 4)}, {s(sSTLD)} offen offset:{512 * i} sc1")
                a("s_waitcnt vmcnt(0)")
                a(f"s_branch L_sums{l}")
        stat += [
            f"v_add_f32 {v(ST)}, {v(ST)}, {v(ST + 2)}",
            f"v_add_f32 {v(ST + 1)}, {v(ST + 1)}, {v(ST + 3)}",
            f"v_add_f32 {v(ST + 4)}, {v(ST + 4)}, {v(ST + 6)}",
            f"v_add_f32 {v(ST + 5)}, {v(ST + 5)}, {v(ST + 7)}",
            f"v_add_f32 {v(ST)}, {v(ST)}, {v(ST + 4)}",
            f"v_add_f32 {v(ST + 1)}, {v(ST + 1)}, {v(ST + 5)}",
            f"v_add_f32 {v(t)}, {v(ST)}, {v(ST + 1)}",
            f"v_mul_f32 {v(t)}, {f2u(1 / 512):#x}, {v(t)}",
            f"v_mov_b32 {v(u_)}, {v(t)}",
            f"v_permlane32_swap_b32 {v(t)}, {v(u_)}",
            f"v_fma_f32 {v(u_)}, -{v(t)}, {v(t)}, {v(u_)}",
            f"v_max_f32 {v(u_)}, 0, {v(u_)}",
            f"v_cvt_pk_bf16_f32 {v(vM)}, -{v(t)}, -{v(t)}",
            f"v_cvt_pk_bf16_f32 {v(u_)}, {v(u_)}, {v(u_)}",
            f"v_and_b32 {v(u_)}, 0xffff0000, {v(u_)}",
            f"v_add_f32 {v(u_)}, {f2u(1e-5):#x}, {v(u_)}",
            f"v_cvt_pk_bf16_f32 {v(u_)}, {v(u_)}, {v(u_)}",
            f"v_and_b32 {v(u_)}, 0xffff0000, {v(u_)}",
            f"v_sqrt_f32 {v(u_)}, {v(u_)}",
            f"v_cndmask_b32 {v(vM)}, {v(vM)}, 0, {s(sHI, 2)}",
            f"v_cvt_pk_bf16_f32 {v(u_)}, {v(u_)}, {v(u_)}",
            f"v_and_b32 {v(u_)}, 0xffff0000, {v(u_)}",
            f"v_rcp_f32 {v(vRS)}, {v(u_)}",
            f"v_mov_b32 {v(MB)}, {v(vM)}",
            f"v_mul_f32 {v(vS)}, {LOG2E:#x}, {v(vRS)}",
            f"v_mov_b32 {v(MB + 3)}, {v(vM)}",
        ]
        js = max(NX, 9) + 3
        fill = [f"v_mov_b32 {v(MB + 1)}, 0", f"v_mov_b32 {v(MB + 2)}, 0"]
        if l == 0:
            fill += [f"v_mov_b32 {v(PK + 12 + i)}, -1" for i in range(4)]
        fill += [None] * (2 * D - len(fill)) + self.cs_pack(CS, CSA) + self.cs_pack(CS + 4, CSA + 1)
        self.bw = CS + 2
        if first:
            fill += [f"v_lshrrev_b32 {v(self.bw)}, 6, {v(vL16)}", f"v_mul_u32_u24 {v(self.bw)}, {3072 - 64}, {v(self.bw)}",
                     f"v_add_u32 {v(self.bw)}, {v(self.bw)}, {v(vL16)}"]
        fill += [None] * (2 * js - len(fill)) + stat
        jc = (len(fill) + 1) // 2 + 1
        assert jc <= 31
        if l == 0:
            fill = fill[2:6] + fill[20:23] + [f"v_mov_b32 {v(vS)}, {LOG2E:#x}"]
            assert all(fill) and str(self.bw) in fill[4]
            self.sel_read(PK)
            addr, fin = self.cs_kv_fin(0, PK + 4, LG)
            for i in range(16):
                fill += [addr.pop(0) if addr else None, self.cs_kv_step(0, i, PK, PK + 4)]
            fill += [None] * 4 + fin
            jc = -1
        self.bg_region(bgn[0], NX)
        vfirst = T == 0 and cfg["trim"]
        for j in range(32):
            a.wait(vm=f"x{j}", lg=f"w{j}")
            self.fine(f"{l}:x{j}")
            if j == jc:
                a(f"v_mfma_f32_32x32x8_bf16 {v(AK, 16)}, {v(CSA, 2)}, {v(MB, 2)}, {v(AK, 16)}")
                a(f"v_mfma_f32_32x32x8_bf16 {v(AV, 16)}, {v(CSA, 2)}, {v(MB + 2, 2)}, {v(AV, 16)}")
            for p, acc in ((0, AK), (1, AV)):
                c = v(acc, 16) if j else "0"
                if j == 31 and vfirst:
                    a(f"v_mfma_f32_32x32x16_bf16 {v(AK + AV - acc, 16)}, {v(RG + (j % D) * 8 + 4 * (1 - p), 4)}, {v(XF + 4 * j, 4)}, {v(AK + AV - acc, 16)}")
                else:
                    a(f"v_mfma_f32_32x32x16_bf16 {v(acc, 16)}, {v(RG + (j % D) * 8 + 4 * p, 4)}, {v(XF + 4 * j, 4)}, {c}")
                if p == 0:
                    if j + NX < 32:
                        ldx(j + NX)
                    if l == 0 and j + NX == 32:
                        self.mark_slot(KVP[1] - KVP[0], PK + 12)
                    if l == 0 and j and j == cfg["oinit"][0]:
                        for i in range(2):
                            a(f"buffer_store_dwordx4 {v(PK + 12, 4)}, {v(vOST)}, {s(sWS, 4)}, {s(sOST)} offen offset:{256 * i} sc1", vm="oinit")
                    if l == 0 and cfg["otouch"] and j == cfg["otouch"]:
                        t_ = PK + 8
                        a(f"v_bfe_u32 {v(t_)}, {v(vL16)}, 7, 1")
                        a(f"v_mul_u32_u24 {v(t_)}, {(16384 - 1024) // 8}, {v(t_)}")
                        a(f"v_add_lshl_u32 {v(t_)}, {v(t_)}, {v(vL16)}, 3")
                        a("s_mov_b64 exec, 0xffff")
                        a(f"buffer_load_dword {v(RG + 23)}, {v(t_)}, {s(sWS, 4)}, {s(sOST)} offen sc1")
                        a("s_mov_b64 exec, -1")
                    if j + NX >= 32:
                        self.bg_tick()
                    if j == 31 and not first:
                        a("s_nop 5")
                    if first and j == 30:
                        a(f"v_mov_b32 {v(vBW)}, {v(self.bw)}")
                        a(f"v_lshrrev_b32 {v(vBO)}, 7, {v(vL16)}")
                        a(f"v_mul_u32_u24 {v(vBO)}, {1024 - 128}, {v(vBO)}")
                        a(f"v_add_u32 {v(vBO)}, {v(vBO)}, {v(vL16)}")
                if p and fill and fill[0] and fill[1:] and fill[1]:
                    a(fill[0]); fill[0] = None
                if j + D < 32:
                    rd(j + D, p)
                if T == 1 and j == 29:
                    a(f"ds_read_b128 {v(PK + 8 + 4 * p, 4)}, {v(vKFR)} offset:{L_WPF - L_KVF + KS * p}", lg="wp")
                for _ in range(2 if p else 0):
                    f_ = fill.pop(0) if fill else None
                    if f_:
                        a(f_)
        self.bw = vBW
        if l == 0 and cfg["hello_late"]:
            self.hello(PK + 8, PK + 9)
        if first:
            self.slow_pf(sSO[T], 4, RG + 23)
        self.ts(f"{l}:kvgemm")
        self.dump("kv", l, list(range(AK, AK + 32)) + [vS, vRS, vM], RG)

        def v_steps(e):
            st = []
            for h in range(2):
                for i in range(4 * h, 4 * h + 4):
                    if l == 0:
                        pass
                    elif (T == 0 and not vfirst) or (h and cfg["trim"]):
                        st.append(lambda i=i: e(f"v_pk_mul_f32 {v(AV + 2 * i, 2)}, {v(AV + 2 * i, 2)}, {v(vS, 2)} op_sel:[0,1]"))
                    else:
                        st.append(lambda i=i: e(f"v_mul_f32 {v(AV + 2 * i)}, {v(AV + 2 * i)}, {v(vRS)}"))
                        st.append(lambda i=i: e(f"v_mul_f32 {v(AV + 2 * i + 1)}, {v(AV + 2 * i + 1)}, {v(vRS)}"))
                for i in range(4 * h, 4 * h + 4):
                    st.append(lambda i=i: e(f"v_cvt_pk_bf16_f32 {v(AV + i)}, {v(AV + 2 * i)}, {v(AV + 2 * i + 1)}"))
                st.append(lambda h=h: a(f"ds_write_b128 {v(vSTW)}, {v(AV + 4 * h, 4)} offset:{0x4000 + 128 * h}"))
            return st

        def stage(k):
            a(f"ds_write_b128 {v(vSTW)}, {v(PK + 4 * k, 4)} offset:{(k >> 1) * 8192 + 128 * (k & 1)}")
        vst = v_steps(self.ticker())
        if T == 0:
            self.bg_region(bgn[1], 72)
            while vfirst and vst:
                vst.pop(0)()
            self.phi_a(AK, LG, stage)
            for st in vst:
                st()
        else:
            self.bg_region(bgn[1], 125)
            self.logits(lambda: [vst.pop(0)() for _ in range(4)])
            for st in vst:
                st()
            self.softmax2(RG, False, stage)
        self.dump("pk", l, list(range(PK, PK + 16)) + list(range(AV, AV + 8)), RG)
        ONE, DK, DZ, PB, QA = AK, AV + 8, AV + 12, AV + 4, AV + 3
        for i in range(4):
            a(f"v_mov_b32 {v(ONE + i)}, 0x3f803f80")
        D = 5 if first else 6

        def rq(j):
            for u in range(2 if first or j == 0 or j > cfg["x_qskip"] else 0):
                a(f"ds_read_b64_tr_b16 {v(RG + (j % D) * 4 + 2 * u, 2)}, {v(QA)} offset:{self.woff(j, u)}", lg=f"q{j}")
        a.wait(vm="mark", lg=0)
        a("s_barrier")
        self.ts(f"{l}:bar2")
        early = False
        w01 = (lambda k: self.waves01(((4, 5), (6, 9), (7, 8), (10, 11))[l + k])) if T == 0 else (lambda k: contextlib.nullcontext())
        with w01(0):
            def rp(st, k):
                for u in range(2):
                    a(f"ds_read_b64_tr_b16 {v((LG, PK)[k] + 4 * st + 2 * u, 2)}, {v((vSTR, vSTR2)[k])} offset:{st * 1024 + u * 512}", lg=f"p{st}")
            PD = cfg["pdepth"]
            for st in range(PD):
                rp(st, 0); rp(st, 1)
            for st in range(4):
                a.wait(lg=f"p{st}")
                mm = [f"v_mfma_f32_16x16x32_bf16 {v(DK, 4)}, {v(LG + 4 * st, 4)}, {v(PK + 4 * st, 4)}, {v(DK, 4) if st else 0}",
                      f"v_mfma_f32_16x16x32_bf16 {v(DZ, 4)}, {v(LG + 4 * st, 4)}, {v(ONE, 4)}, {v(DZ, 4) if st else 0}"]
                z1 = int(cfg["zst1"] or (cfg["trim"] and st == 3))
                a(mm[z1])
                if st + PD < 4:
                    rp(st + PD, 0)
                a(mm[1 - z1])
                if st + PD < 4:
                    rp(st + PD, 1)
            self.fine(f"{l}:p_mfma")
            if cfg["zst1"]:
                a(f"s_mov_b64 exec, {s(sCOL, 2)}")
                a(f"v_min_u32 {v(DZ)}, -2, {v(DZ)}")
                a(f"buffer_store_dwordx4 {v(DZ, 4)}, {v(vZST)}, {s(sWS, 4)}, {s(sKVT)} offen sc1")
                a("s_mov_b64 exec, -1")
            for i in range(2):
                a(f"v_cvt_pk_bf16_f32 {v(PB + i)}, {v(DK + 2 * i)}, {v(DK + 2 * i + 1)}")
            for i in range(2):
                a(f"v_cvt_pk_bf16_f32 {v(PB + 2 + i)}, {v(DK + 2 * i)}, {v(DK + 2 * i + 1)}")
            if not cfg["zst1"]:
                a(f"v_min_u32 {v(DZ)}, -2, {v(DZ)}")
            for i in range(2):
                a(f"v_permlane16_swap_b32 {v(PB + i)}, {v(PB + 2 + i)}")
            a(f"v_min_u32 {v(PB)}, -2, {v(PB)}")
            a(f"s_mov_b64 exec, {s(sROW, 2)}")
            a(f"buffer_store_dwordx4 {v(PB, 4)}, {v(vPST)}, {s(sWS, 4)}, {s(sKVT)} offen sc1")
            if not cfg["zst1"]:
                a(f"s_mov_b64 exec, {s(sCOL, 2)}")
                a(f"buffer_store_dwordx4 {v(DZ, 4)}, {v(vZST)}, {s(sWS, 4)}, {s(sKVT)} offen sc1")
            if T:
                a("s_mov_b64 exec, -1")
        if cfg["jit"] and l < 3:
            with self.only_if(f"s_cmp_eq_u32 {s(sW)}, 3"):
                self.code_pf(f"L_layer{l + 1}", f"L_layer{l + 2}" if l < 2 else "L_end", AV + 8)
        self.ts(f"{l}:publish")
        if l == 0:
            a(f"v_lshlrev_b32 {v(vHL)}, 5, {v(vPOLL)}")
            a(f"s_or_b32 {s(sTG)}, {s(sTAG)}, 0xf0")
            a(f"v_mov_b32 {v(AV + 9)}, {s(sTG)}")
            with skip23():
                a("s_mov_b64 exec, 0xffff")
                a(f"buffer_load_dword {v(AV + 9)}, {v(vHL)}, {s(sWS, 4)}, {s(sHEL)} offen sc1")
                a("s_mov_b64 exec, -1")
            self.slow_pf(sSW[1], 12, AV + 10)
            assert cfg["slowpf"]
            a.vm[-1] = "hl"
        if first:
            if T == 0:
                n = len(a.vm) - 1 - max(i for i, t_ in enumerate(a.vm) if t_ == "wq")
                with self.only_if(f"s_cmp_ge_u32 {s(sW)}, 2"):
                    a.wait(vm="wq")
                a(f"s_waitcnt vmcnt({n + 3})")
            else:
                a.wait(vm="wq")
            self.fine(f"{l}:wq")
            a("s_barrier")
            self.fine(f"{l}:barx")
        a(f"v_add_u32 {v(QA)}, {L_WQ[T]:#x}, {v(vWRD)}")
        CS, CSA, MB, M1 = LG + 4, LG + 8, LG + 10, LG + 12
        PL, SEL, DR = 0, 36, 40

        def partial_load(i):
            if not cfg["zlast"]:
                i = (i + 8) % 9
            a(f"s_add_u32 {s(sT1)}, {s(sKVT)}, {i * 65536}")
            a(f"buffer_load_dwordx4 {v(PL + 4 * i, 4)}, {v(vL16)}, {s(sWS, 4)}, {s(sT1)} offen sc1", vm="pl")
        if not early:
            for j in range(D):
                rq(j)
        cs_read = lambda: a(f"ds_read_b128 {v(CS, 4)}, {v(vCSR)} offset:{T * 1536 + 1024}", lg="cs")
        fill = []
        if first:
            SQ, DQ, RQ, TQ = PK, PK + 4, PK + 8, LG
            self.sel_read(SQ)
            a(f"s_add_u32 {s(sT2)}, {s(sW13)}, {L_WQ[T]}")
            a(f"v_add_u32 {v(TQ + 2)}, {s(sT2)}, {v(vL16)}")
            rc = lambda i: a(f"ds_read_b128 {v(RQ + 4 * (i & 1), 4)}, {v(TQ + 2)} offset:{i * 1024}", lg=f"c{i}")
            rc(0); rc(1)
            addr, fin = self.cs_q_fin(T, DQ, TQ)

            def step(i):
                a.wait(lg=f"c{i}")
                a(f"v_mfma_f32_16x16x32_bf16 {v(DQ, 4)}, {v(SQ, 4)}, {v(RQ + 4 * (i & 1), 4)}, {v(DQ, 4) if i else 0}")
                if i + 2 < 8:
                    rc(i + 2)
                if addr:
                    a(addr.pop(0))

            def mark():
                with skip23():
                    self.mark_slot(KVP[l + 2] - KVP[l], M1)

            def sync():
                a.wait(lg="csw")
                a("s_barrier")
                cs_read()
            fill += [(lambda i=i: step(i)) for i in range(8)]
            fill += [f"v_mov_b32 {v(M1)}, -1\nv_mov_b32 {v(M1 + 1)}, -1\nv_mov_b32 {v(M1 + 2)}, -1\nv_mov_b32 {v(M1 + 3)}, -1", mark]
            fill += fin
            if l:
                fill += [None, None, sync, None, None, lambda: a.wait(lg="cs")]
        else:
            cs_read()
            fill += [None] * D
        pk = self.cs_pack(CS, CSA) + [f"v_mov_b32 {v(CSA + 1)}, 0", f"v_mov_b32 {v(MB)}, {v(vM)}", f"v_mov_b32 {v(MB + 1)}, 0"]
        if l:
            fill += [pk[i] + "\n" + pk[i + 1] for i in range(0, 10, 2)]
        jc = len(fill) + 1 if l else -1
        assert jc <= 31
        PS, PG = cfg["pl_step"][l], cfg["pl_gap"][l]
        assert PS >= 10
        G = 3 if T == 0 else 1

        def pl_group(k):
            with skip23():
                for i in range(G * k, G * k + G):
                    partial_load(i)
        pl_at = [PS + G * PG * k for k in range(9 // G)]
        if first:
            pl_at = [min(x, 31) for x in pl_at]
        self.bg_region(bgn[2], min(PS, 32))
        NP = cfg["np"]
        puts = list(range(NP))
        nq = 0 if first else min(NP, cfg["qputs"][T])
        put_at = [1 + (k * 30) // nq for k in range(nq)]
        if l == 1 and cfg["qp1"]:
            put_at = list(range(*cfg["qp1"]))
        for j in range(32):
            a.wait(lg=f"q{j}")
            if j == jc:
                a(f"v_mfma_f32_32x32x8_bf16 {v(AK, 16)}, {v(CSA, 2)}, {v(MB, 2)}, {v(AK, 16)}")
            if first or j == 0 or j > cfg["x_qskip"]:
                a(f"v_mfma_f32_32x32x16_bf16 {v(AK, 16)}, {v(RG + (j % D) * 4, 4)}, {v(XF + 4 * j, 4)}, {v(AK, 16) if j else 0}")
            self.bg_tick()
            if l == 0 and j == cfg["oinit"][1]:
                t_ = RG + 23
                a(f"v_bfe_u32 {v(t_)}, {v(vL16)}, 7, 1")
                a(f"v_mul_u32_u24 {v(t_)}, {(16384 - 1024) // 8}, {v(t_)}")
                a(f"v_add_lshl_u32 {v(t_)}, {v(t_)}, {v(vL16)}, 3")
                a("s_mov_b64 exec, 0xffff")
                a(f"buffer_load_dword a255, {v(t_)}, {s(sWS, 4)}, {s(sOST)} offen sc1")
                a("s_mov_b64 exec, -1")
            if l == 0 and j == pl_at[0] - 1:
                a.wait(vm="hl")
                a(f"v_cmp_ne_u32 vcc, {s(sTG)}, {v(AV + 9)}")
                a("s_cbranch_vccnz L_hello")
                a.label("L_hello_ok")
                with self.outofline():
                    a.label("L_hello")
                    self.poll(vHL, sHEL, AV + 9)
                    a("s_branch L_hello_ok")
            if j == cfg["ppf"][l]:
                assert l and j < pl_at[0]
                with skip23():
                    a(f"v_lshrrev_b32 {v(AV + 11)}, 7, {v(vL16)}")
                    a(f"v_mul_u32_u24 {v(AV + 11)}, {(65536 - 1024) // 8}, {v(AV + 11)}")
                    a(f"v_add_lshl_u32 {v(AV + 11)}, {v(AV + 11)}, {v(vL16)}, 3")
                    a(f"buffer_load_dword {v(AV + 11)}, {v(AV + 11)}, {s(sWS, 4)}, {s(sKVT)} offen sc1")
            for k, x in enumerate(pl_at):
                if x == j:
                    pl_group(k)
            if j + D < 32:
                rq(j + D)
            if j in put_at and puts:
                if first:
                    assert len(self.bg) < 16 - puts[0]
                    a.wait(vm=f"wo{puts[0]}")
                self.put_wo(T, puts.pop(0))
            if j == 27:
                self.sel_read(SEL)
            if T == 1 and j in (28, 29):
                a(f"ds_read_b128 {v(PK + 8 + 4 * (j - 28), 4)}, {v(vKFR)} offset:{L_WPF - L_KVF + KS * (j - 28)}", lg="wp")
            if fill:
                f_ = fill.pop(0)
                if callable(f_):
                    f_()
                elif f_:
                    a(f_)
        self.ts(f"{l}:qgemm")
        self.dump("q", l, list(range(AK, AK + 16)), RG)
        EPS = RG + 6
        if first:
            if T == 0:
                n = len(a.vm) - 1 - max(i for i, t_ in enumerate(a.vm) if t_ == f"wo{NP - 1}")
                a(f"s_waitcnt vmcnt({n + 9})")
                with self.only_if(f"s_cmp_ge_u32 {s(sW)}, 2"):
                    a.wait(vm=f"wo{NP - 1}")
            else:
                a.wait(vm=f"wo{NP - 1}")
        nbg3 = min(bgn[3], len(self.bg))
        slots = 56 if T == 0 else 100
        self.bg_region(bgn[3], slots)
        if not first:
            late = [k for k, x in enumerate(pl_at) if x >= 32]
            self.bg = [(lambda k=k: pl_group(k)) for k in late]
            self.bg_at = [min(slots - 1, (pl_at[k] - 32) * 6) for k in late]
        self.side = [(lambda i=i: self.put_wo(T, i)) for i in puts]
        self.side_every = cfg["wo_every"][T]
        pop = lambda: self.side.pop(0)() if self.side else None
        pop()
        if T == 0:
            self.phi_a(AK, LG)
            a(f"v_mov_b32 {v(EPS)}, {f2u(1e-6) if l else 0:#x}")
            if l == 0:
                a(f"s_mov_b32 {s(sDELTA)}, {DELTA:#x}")
                a(f"v_lshrrev_b32 {v(LG)}, 9, {v(vL16)}")
                a(f"v_mul_u32_u24 {v(LG)}, {2048 - 512}, {v(LG)}")
                a(f"v_add_u32 {v(vWRD)}, {v(vWRD)}, {v(LG)}")
        else:
            self.logits(pop)
            pop()
            self.softmax2(RG, True)
        while self.side:
            pop()
        self.dump("pq", l, list(range(PK, PK + 16)), AV)
        self.ts(f"{l}:phiq")
        WR, DW = 64, 7
        WA = [vWOR, RG + 16, RG + 17, RG + 18]
        for t_ in range(1, 4):
            a(f"v_xor_b32 {v(WA[t_])}, {32 * t_}, {v(vWOR)}")
        a(f"s_add_u32 {s(sTG)}, {s(sTAG)}, {16 * (l + 1)}")
        a(f"v_mov_b32 {v(RG + 19)}, {s(sTG)}")
        a.wait(lg="sel")
        self.fine(f"{l}:r_wait")
        with w01(1):
            a.label(f"L_chk{l}")
            m, Z = 44, PL + 32
            gaps = [[f"v_max3_u32 {v(m)}, {v(Z)}, {v(PL)}, {v(PL + 4)}", f"v_permlane16_swap_b32 {v(Z)}, {v(Z + 1)}"],
                    [f"v_permlane16_swap_b32 {v(Z + 2)}, {v(Z + 3)}"],
                    [f"v_add_f32 {v(Z)}, {v(Z)}, {v(Z + 1)}", f"v_add_f32 {v(Z + 2)}, {v(Z + 2)}, {v(Z + 3)}"],
                    [f"v_max3_u32 {v(m)}, {v(m)}, {v(PL + 8)}, {v(PL + 12)}", f"v_permlane32_swap_b32 {v(Z)}, {v(Z + 2)}"],
                    [f"v_add_f32 {v(Z)}, {v(Z)}, {v(Z + 2)}", f"v_max3_u32 {v(m)}, {v(m)}, {v(PL + 16)}, {v(PL + 20)}"],
                    [f"v_add_f32 {v(Z)}, {v(Z)}, {v(Z)} row_ror:4"],
                    [f"v_add_f32 {v(Z)}, {v(Z)}, {v(Z)} row_ror:8", f"v_max3_u32 {v(m)}, {v(m)}, {v(PL + 24)}, {v(PL + 28)}"],
                    [f"v_cmp_eq_u32 vcc, -1, {v(m)}", f"v_cvt_pk_bf16_f32 {v(Z)}, {v(Z)}, {v(Z)}", f"ds_write_b16 {v(vZW)}, {v(Z)}"]]
            for i in range(8):
                if cfg["zlast"]:
                    if i == 0:
                        a(f"s_waitcnt vmcnt({nbg3})")
                elif i % 2 == 0:
                    a(f"s_waitcnt vmcnt({nbg3 + 6 - i})")
                a(f"v_mfma_f32_16x16x32_bf16 {v(DR, 4)}, {v(SEL, 4)}, {v(PL + 4 * i, 4)}, {v(DR, 4) if i else 0}")
                for g_ in gaps[i]:
                    a(g_)
            a(f"s_cbranch_vccnz L_again{l}")
            with self.outofline():
                a.label(f"L_again{l}")
                self.countdown()
                if cfg["ts"]:
                    a(f"s_add_u32 {s(sTSI)}, {s(sTSI)}, {1 << (8 * l)}")
                for i in range(9):
                    partial_load(i)
                if nbg3:
                    a("s_waitcnt vmcnt(0)")
                a(f"s_branch L_chk{l}")
            for i in range(2):
                a(f"v_cvt_pk_bf16_f32 {v(DR + i)}, {v(DR + 2 * i)}, {v(DR + 2 * i + 1)}")
            a(f"ds_write_b64 {v(vKFW)}, {v(DR, 2)}")
        if T == 0:
            a(f"s_waitcnt vmcnt({nbg3})")
        self.fine(f"{l}:r_done")
        self.bg_now(bgn[4])
        a.wait(lg=0)
        a("s_barrier")
        self.ts(f"{l}:bar3")
        KF, ZF, DEN, O = 0, 16, RG + 6, LG
        def rk(j):
            a(f"ds_read_b128 {v(KF + 4 * j, 4)}, {v(vKFR)} offset:{KS * j}", lg=f"kf{j}")
        def rz(j):
            a(f"ds_read_b128 {v(ZF + 4 * j, 4)}, {v(vZR)} offset:{(j >> 1) * 64 + (j & 1) * 16}", lg=f"zf{j}")

        def dots(j):
            for d in range(4):
                a(f"v_dot2c_f32_bf16 {v(DEN)}, {v(ZF + 4 * j + d)}, {v(PK + 4 * j + d)}")

        def num(j):
            a.wait(lg=f"kf{j}")
            a(f"v_mfma_f32_32x32x16_bf16 {v(AV, 16)}, {v(KF + 4 * j, 4)}, {v(PK + 4 * j, 4)}, {v(AV, 16) if j else 0}")

        def rw1(i, t_, u):
            a(f"ds_read_b64_tr_b16 {v(WR + (i % DW) * 16 + 4 * t_ + 2 * u, 2)}, {v(WA[t_])} offset:{t_ * 16384 + i * 1024 + u * 512}", lg=f"wo{i}")
        rest = [(i, t_, u) for i in range(DW) for t_ in range(4) for u in range(2)]
        if cfg["nmode"] == 0:
            for j in range(NJ):
                rz(j)
            if NJ == 2:
                rk(0); rk(1)
            for j in range(NJ):
                if j % 2 == 0:
                    a.wait(lg=f"zf{j + 1}")
                dots(j)
                if NJ == 4:
                    rk(j)
            self.fine(f"{l}:n_dot")
            for j in range(NJ):
                num(j)
        else:
            q_ = [(rk, j) for j in range(NJ)] + [(rz, j) for j in range(NJ)]
            for f_, j in q_[:3]:
                f_(j)
            del q_[:3]
            for j in range(NJ):
                num(j)
                for f_, k in q_[:2]:
                    f_(k)
                del q_[:2]
            self.fine(f"{l}:n_dot")
            a.wait(lg=0)
            for j in range(NJ):
                dots(j)
        if l == 0:
            if cfg["r_num"]:
                for i in range(8):
                    a(f"v_cvt_pk_bf16_f32 {v(O + i)}, {v(AV + 2 * i)}, {v(AV + 2 * i + 1)}")
            a(f"v_cvt_pk_bf16_f32 {v(DEN)}, {v(DEN)}, {v(DEN)}")
            a(f"v_and_b32 {v(DEN)}, 0xffff0000, {v(DEN)}")
            a(f"v_add_f32 {v(DEN)}, {f2u(1e-6):#x}, {v(DEN)}")
            a(f"v_cvt_pk_bf16_f32 {v(DEN)}, {v(DEN)}, {v(DEN)}")
            a(f"v_and_b32 {v(DEN)}, 0xffff0000, {v(DEN)}")
        pre_cmp = l > 0 and cfg["trim"]
        if pre_cmp:
            a(f"s_cmp_eq_u32 {s(sMODE)}, 0")
        a(f"v_rcp_f32 {v(DEN)}, {v(DEN)}")
        if l == 0 and cfg["r_num"]:
            for i in range(8):
                a(f"v_lshlrev_b32 {v(AV + 2 * i)}, 16, {v(O + i)}")
                a(f"v_and_b32 {v(AV + 2 * i + 1)}, 0xffff0000, {v(O + i)}")
        if cfg["x_h"] & 8:
            a("s_nop 12")
            a("s_nop 11")
        self.fine(f"{l}:n_mfma")
        ol = []
        for h in range(2):
            ol += [f"v_pk_mul_f32 {v(AV + 2 * i, 2)}, {v(AV + 2 * i, 2)}, {v(DEN, 2)} op_sel_hi:[1,0]" for i in range(4 * h, 4 * h + 4)]
            ol += [f"v_cvt_pk_bf16_f32 {v(O + i)}, {v(AV + 2 * i)}, {v(AV + 2 * i + 1)}" for i in range(4 * h, 4 * h + 4)]
            ol += [f"buffer_store_dwordx4 {v(O + 4 * h, 4)}, {v(vOST)}, {s(sWS, 4)}, {s(sOST)} offen offset:{256 * h}"]
        self.moded(ol, tag="ost", cmp=not pre_cmp, wt=l == 0 and not cfg["otouch"] and not cfg["oinit"][0])
        self.dump("o", l, list(range(O, O + 8)), PK)
        self.ts(f"{l}:ostore")
        self.bg_now(bgn[5])
        if l == 0:
            for t_ in self.tile_addr(PK, PK + 3)[:10]:
                a(t_)
            a.wait(vm="xr")
            for i in range(2):
                a(f"ds_write_b128 {v(PK + 1)}, {v(XR + 4 * i, 4)} offset:{1152 * i}")
            for i in range(2):
                a(f"ds_read2_b64 {v(4 * i, 4)}, {v(PK)} offset0:{8 * i} offset1:{8 * i + 4}")
            a.wait(lg=0)
            for i in range(8):
                a(f"v_lshlrev_b32 {v(XR + 2 * i)}, 16, {v(i)}")
                a(f"v_and_b32 {v(XR + 2 * i + 1)}, 0xffff0000, {v(i)}")
        NO = cfg["no0"]

        def ldo(i):
            if cfg["x_h"] & 4 and i == 14:
                return
            G_ = 2 if cfg["roto"] & 2 else 4
            if i % G_ == 0 and i:
                a(f"s_xor_b32 {s(sT3)}, {s(sOLD)}, {i * 1024}")
            a(f"buffer_load_dwordx4 {v(4 * i, 4)}, {v(vL16)}, {s(sWS, 4)}, {s(sT3 if i >= G_ else sOLD)} offen offset:{(i % G_) * 1024} sc1", vm=f"o{i}")
        late = list(range(NP, 16))

        def window(np_, nr):
            for _ in range(min(len(late), np_)):
                self.put_wo(T, late.pop(0))
            for _ in range(min(len(rest), nr)):
                rw1(*rest.pop(0))
        ow = cfg["owin"][first]
        na = "o" in cfg["x_noack"] and l > 0
        if na:
            ow = cfg["owin2"]
        window(*ow[0])
        self.fine(f"{l}:o_pre")
        self.flag(sFOS, RG + 19, "none" if na else "ost")
        self.fine(f"{l}:oflag")
        self.spin_more(wo_, f"o{l}")
        if last and cfg["fin_lds"]:
            for t_ in self.tile_addr(PK, PK + 3):
                a(t_)
        window(*ow[1])
        self.probe(wo_, vPR)
        window(*ow[2])
        self.spin(wo_, f"o{l}")
        self.ts(f"{l}:opoll")
        for i in range(4):
            ldo(i)
        window(16, 0)
        if NP < 16:
            a.wait(lg="putwo")
            a("s_barrier")
        per = -(-len(rest) // (NO - 4))
        for i in range(4, NO):
            window(0, per)
            ldo(i)
        assert not rest
        self.fine(f"{l}:o_iss")
        todo = [(i, t_, u) for i in range(DW, 16) for t_ in range(4) for u in range(2)]
        done = 0
        self.bg_region(bgn[6], NO)
        ry = l == 0 and cfg["r_y"]
        for i in range(16):
            for t_ in range(4):
                if t_ == 0:
                    a.wait(vm=f"o{i}", lg=f"wo{i}")
                    self.fine(f"{l}:o{i}")
                a(f"v_mfma_f32_16x16x32_bf16 {v(XR + 4 * t_, 4)}, {v(WR + (i % DW) * 16 + 4 * t_, 4)}, {v(4 * i, 4)}, {v(XR + 4 * t_, 4)}".replace(v(XR + 4 * t_, 4), v(LG + 4 * t_, 4) if ry else v(XR + 4 * t_, 4)).rsplit(", ", 1)[0] + ", " + (("0" if i == 0 else v(LG + 4 * t_, 4)) if ry else v(XR + 4 * t_, 4)))
                if t_ == 0:
                    if i + NO < 16:
                        ldo(i + NO)
                    else:
                        self.bg_tick()
                for _ in range(cfg["ord"][i + NO >= 16][t_]):
                    if done < len(todo) and done // 2 <= 4 * i + t_:
                        assert todo[done][0] > i
                        rw1(*todo[done]); done += 1
        assert done == len(todo) and not self.bg
        self.ts(f"{l}:ogemm")
        if last:
            return
        if ry:
            for i in range(8):
                a(f"v_cvt_pk_bf16_f32 {v(AV + i)}, {v(LG + 2 * i)}, {v(LG + 2 * i + 1)}")
            for i in range(8):
                a(f"v_lshlrev_b32 {v(LG + 2 * i)}, 16, {v(AV + i)}")
                a(f"v_and_b32 {v(LG + 2 * i + 1)}, 0xffff0000, {v(AV + i)}")
            for i in range(8):
                a(f"v_pk_add_f32 {v(XR + 2 * i, 2)}, {v(XR + 2 * i, 2)}, {v(LG + 2 * i, 2)}")
        self.dump("x", l, list(range(XR, XR + 16)), PK)
        N = 1 - T
        na = "x" in cfg["x_noack"] and l > 0
        for k_, st in enumerate(self.x_steps(0, XR, AK, par=N)):
            st()
            if na and k_ == 0:
                self.flag(sFXS, RG + 19, "xst" if "t" in cfg["x_noack"] else "none")
                if "t" in cfg["x_noack"]:
                    with self.only_if(f"s_bitcmp1_b32 {s(sID)}, {3 + l}"):
                        a("s_sleep 60")
        self.fine(f"{l}:xst")
        a("s_barrier")
        self.fine(f"{l}:bar5")
        n1, n2 = cfg["xputs2" if na else "xputs0" if l == 0 else "xputs"]
        ne = 16 - bgn[6]
        if l == 0:
            assert n1 <= ne
            self.sel_read(AV)
            addr, fin = self.cs_kv_fin(1, AV + 4, AV + 8)
            for t_ in addr:
                a(t_)
            a.wait(lg="sel")
        for i in range(n1):
            self.put_wkv(N, i, i + 1)
            if l == 0:
                for k in range(i * ne // n1, (i + 1) * ne // n1):
                    a(self.cs_kv_step(1, k, AV, AV + 4))
        a(f"s_add_u32 {s(sKVT)}, {s(sKVT)}, {KVP[l + 1] - KVP[l]}")
        if not na:
            self.flag(sFXS, RG + 19, "xst" if cfg["spar"] and l else "sst")
        self.ts(f"{l}:xflag")
        self.spin_more(wx, f"x{l + 1}")
        for i in range(n1, n2):
            if i == min(n2 - 1, n1 + cfg["xprobe_at2" if na else "xprobe_at"]):
                self.probe(wx, vPR)
            self.put_wkv(N, i, i + 1)
            if l == 0:
                for k in range(ne + min(4, i - n1) * (16 - ne) // 4, ne + min(4, i - n1 + 1) * (16 - ne) // 4):
                    a(self.cs_kv_step(1, k, AV, AV + 4))
        if l == 0:
            assert n2 - n1 >= 4
            for t_ in fin:
                a(t_)
        self.puts_left = list(range(n2, 16))

    def prologue(self):
        cfg = self.cfg
        a = self.a
        a(f"s_cmp_ge_u32 {s(sID)}, 256")
        a("s_cbranch_scc1 L_end")
        self.ts("start")
        a(f"s_load_dwordx16 {s(4, 16)}, s[0:1], 0")
        a(f"s_load_dwordx4 {s(20, 4)}, s[0:1], 64")
        a(f"s_getpc_b64 {s(sSAVE, 2)}")
        a.label("L_pc")
        NCL = cfg["codepf"]
        a(f"s_bfe_u32 {s(sT0)}, {s(sID)}, {3 | (3 << 16)}")
        a(f"s_mul_i32 {s(sT0)}, {s(sT0)}, {NCL}")
        a(f"v_min_u32 v1, {NCL - 1}, v0")
        a(f"v_add_u32 v1, {s(sT0)}, v1")
        a("v_lshlrev_b32 v1, 7, v1")
        if cfg["pads"]:
            a("v_add_u32 v1, L_page0-L_pc, v1")
            a("v_lshlrev_b32 v2, 12, v0")
            a("v_add_u32 v2, L_page0-L_pc-64*4096, v2")
            a("v_cmp_le_u32 vcc, 64, v0")
            a("v_cndmask_b32 v1, v1, v2, vcc")
            if cfg["early_setup"] or cfg["brk"]:
                a(f"v_and_b32 v2, {15 if cfg['brk'] else 7}, v0")
                a("v_lshl_add_u32 v2, v2, 7, 64")
                a("v_add_u32 v2, 0x340, v2")
                a("v_cmp_le_u32 vcc, 128, v0")
                a("v_cndmask_b32 v1, v1, v2, vcc")
        a(f"v_min_u32 v1, L_codeend-L_pc, v1")
        a(f"global_load_dword v2, v1, {s(sSAVE, 2)}")
        if cfg["ts"]:
            a(f"s_mov_b32 {s(sTSI)}, 0")
            a(f"s_mov_b32 {s(sLAY)}, 0")
            a(f"v_mov_b32 {v(vTS)}, 0")
            a(f"s_memrealtime s[78:79]")
        L = 3
        a(f"v_lshrrev_b32 v1, 6, v0")
        a(f"v_and_b32 {v(L)}, 63, v0")
        a(f"v_readfirstlane_b32 {s(sW)}, v1")
        a(f"v_lshlrev_b32 {v(vL16)}, 4, {v(L)}")
        a(f"s_bfe_u32 {s(sC)}, {s(sID)}, {3 | (4 << 16)}")
        a(f"s_lshr_b32 {s(sT0)}, {s(sID)}, 7")
        a(f"s_and_b32 {s(sR)}, {s(sID)}, 7")
        a(f"s_lshl1_add_u32 {s(sR)}, {s(sR)}, {s(sT0)}")
        a(f"s_and_b32 {s(sROT)}, {s(sR)}, {cfg['rot']}")
        sBP, sSUB, sCG, sB = 99, 100, 101, sCNT
        a(f"s_lshr_b32 {s(sT0)}, {s(sC)}, 3")
        a(f"s_lshr_b32 {s(sT3)}, {s(sW)}, 1")
        a(f"s_lshl1_add_u32 {s(sT0)}, {s(sT0)}, {s(sT3)}")
        a(f"s_lshl2_add_u32 {s(sBP)}, {s(sR)}, {s(sT0)}")
        a(f"s_lshl2_add_u32 {s(sB)}, {s(sR)}, {s(sW)}")
        a(f"s_and_b32 {s(sSUB)}, {s(sW)}, 1")
        a(f"s_and_b32 {s(sCG)}, {s(sC)}, 7")
        a(f"s_lshl1_add_u32 {s(sT0)}, {s(sBP)}, {s(sSUB)}")
        a(f"s_lshl_b32 {s(sOLD)}, {s(sT0)}, 14")
        a(f"s_lshl_b32 {s(sT0)}, {s(sCG)}, 7")
        a(f"s_add_u32 {s(sFIN)}, {s(sOLD)}, {s(sT0)}")
        a(f"s_lshl3_add_u32 {s(sT0)}, {s(sBP)}, {s(sCG)}")
        a(f"s_lshl4_add_u32 {s(sT0)}, {s(sT0)}, {s(sSUB)}")
        a(f"s_lshl_b32 {s(sXST)}, {s(sT0)}, 8")
        a(f"s_lshl4_add_u32 {s(sT1)}, {s(sR)}, {s(sC)}")
        a(f"s_lshl_b32 {s(sT1)}, {s(sT1)}, 5")
        a(f"s_add_u32 {s(sT1)}, {s(sT1)}, {s(sW)}")
        a(f"s_lshl_b32 {s(sT1)}, {s(sT1)}, 8")
        a(f"v_and_b32 v52, 7, {v(L)}")
        a(f"v_lshrrev_b32 v53, 3, {v(L)}")
        a(f"v_lshlrev_b32 v4, 4, v53")
        a(f"v_lshl_add_u32 v4, v52, 10, v4")
        a(f"s_lshl_b32 {s(sT0)}, {s(sC)}, 6")
        a(f"s_mul_i32 {s(sWOFF)}, {s(sT3)}, {16 * 3072}")
        a(f"s_add_u32 {s(sWOFF)}, {s(sWOFF)}, {s(sT0)}")
        a(f"s_lshl_b32 {s(sT0)}, {s(sSUB)}, 10")
        a(f"s_add_u32 {s(sWOFF)}, {s(sWOFF)}, {s(sT0)}")
        a(f"s_add_u32 {s(sWOFF)}, {s(sWOFF)}, 1024")
        self.w_voff(5)
        a(f"s_mov_b32 {s(sTMP + 3)}, 0x20000")
        a(f"s_mov_b32 {s(sSW[0] + 3)}, 0x20000")
        a(f"s_mov_b32 {s(sTMP + 2)}, 0x200000")
        a(f"s_mov_b32 {s(sSW[0] + 2)}, {512 * 3072}")
        a(f"s_lshr_b32 {s(sT2)}, {s(sID)}, 3")
        a(f"s_lshl_b32 {s(sSTLD)}, {s(sB)}, 11")
        a(f"s_lshl_b32 {s(sT0)}, {s(sB)}, 7")
        a(f"s_add_u32 {s(sFXP)}, {s(sT0)}, {FLAGX}")
        a(f"s_add_u32 {s(sFOS)}, {s(sT0)}, {FLAGO}")
        a(f"s_lshl_b32 {s(sHEL)}, {s(sC)}, 7")
        a(f"s_add_u32 {s(sHEL)}, {s(sHEL)}, {s(sSTLD)}")
        a("s_waitcnt lgkmcnt(0)")
        self.ts("kernarg")
        a(f"s_mov_b64 {s(sTMP, 2)}, {s(sPX, 2)}")
        a(f"s_mov_b64 {s(sSW[0], 2)}, {s(sPWA, 2)}")
        for i in range(2):
            a(f"buffer_load_dwordx4 {v(8 + 4 * i, 4)}, v4, {s(sTMP, 4)}, {s(sT1)} offen offset:{128 * i}", vm="x0")
        a(f"s_lshl2_add_u32 {s(sPF)}, {s(sT2)}, {s(sW)}")
        a(f"s_add_u32 {s(sPBX)}, {s(sPWS)}, {s(sHEL)}")
        a(f"s_addc_u32 {s(sPBX + 1)}, {s(sPWS + 1)}, 0")

        def scalar_loads():
            a(f"s_load_dword {s(sEP)}, {s(sPWS, 2)}, 0")
            if "o" in cfg["tlb"]:
                a(f"s_load_dword {s(sTG)}, {s(sPOUT, 2)}, 0")
            if "p" in cfg["tlb"]:
                a(f"s_load_dword {s(sTG)}, {s(sPPHI, 2)}, 0")
            if "w" in cfg["tlb"]:
                for off in (0x200000, 0x400000):
                    a(f"s_mov_b32 {s(sT0)}, {off:#x}")
                    a(f"s_load_dword {s(sTG)}, {s(sPWS, 2)}, {s(sT0)}")
            if cfg["touch"]:
                a(f"s_load_dword {s(sTG)}, {s(sPWS, 2)}, {s(sFXP)}")
                a(f"s_load_dword {s(sTG)}, {s(sPWS, 2)}, {s(sFOS)}")
                a(f"s_load_dword {s(sTG)}, {s(sPBX, 2)}, {STATS[0]}")
                a(f"s_load_dword {s(sTG)}, {s(sPBX, 2)}, {STATS[0] + 64}")
        if cfg["sl_first"]:
            scalar_loads()

        def mall_pf():
            a0 = self.a
            a0(f"s_cmp_eq_u32 {s(sSUB)}, 0")
            a0(f"s_cselect_b64 {s(sTMP, 2)}, {s(sPWA, 2)}, {s(sPWB, 2)}")
            a0(f"s_cselect_b64 {s(sLN2, 2)}, {s(sPWOA, 2)}, {s(sPWOB, 2)}")
            a0(f"s_cmp_lt_u32 {s(sW)}, 2")
            a0(f"s_cselect_b64 {s(sTMP, 2)}, {s(sTMP, 2)}, {s(sLN2, 2)}")
            a0(f"s_cselect_b32 {s(sT1)}, 3, 1")
            a0(f"s_lshl_b32 {s(sT1)}, {s(sT1)}, 11")
            a0(f"s_mul_i32 {s(sT2)}, {s(sID)}, {s(sT1)}")
            a0(f"s_sub_u32 {s(sT0)}, {s(sT1)}, 128")
            a0(f"v_lshlrev_b32 v7, 3, {v(vL16)}")
            a0(f"v_min_u32 v7, {s(sT0)}, v7")
            a0(f"s_lshl_b32 {s(sTMP + 2)}, {s(sT1)}, 8")
            a0(f"buffer_load_dword v7, v7, {s(sTMP, 4)}, {s(sT2)} offen")
        def l2_pf():
            a(f"s_mul_i32 {s(sT0)}, {s(sPF)}, {4 * 3072 // cfg['l2div']}")
            a(f"s_add_u32 {s(sT0)}, {s(sT0)}, {512 * 3072 - 512 * 3072 // cfg['l2div']}")
            a(f"v_lshrrev_b32 v51, 8, {v(vL16)}")
            a(f"v_lshlrev_b32 v51, 10, v51")
            a(f"v_lshl_add_u32 v51, {v(vL16)}, 3, v51")
            if cfg["l2div"] == 2:
                a("s_mov_b32 exec_hi, 0")
            a(f"buffer_load_dword v51, v51, {s(sSW[0], 4)}, {s(sT0)} offen offset:1024")
            if cfg["l2div"] == 2:
                a("s_mov_b32 exec_hi, -1")
        if cfg["l2pf"] == 1:
            l2_pf()
        if cfg["mallpf"] == 1:
            mall_pf()
        if cfg["l2pf"] == 2:
            l2_pf()
        if cfg["mallpf"] == 8:
            with self.only_if(f"s_bitcmp0_b32 {s(sID)}, 2"):
                a(f"s_and_b32 {s(sT0)}, {s(sPF)}, 7")
                a(f"s_lshr_b32 {s(sT1)}, {s(sPF)}, 3")
                a(f"s_and_b32 {s(sT2)}, {s(sID)}, 3")
                a(f"s_lshl2_add_u32 {s(sT1)}, {s(sT1)}, {s(sT2)}")
                a(f"s_bitcmp0_b32 {s(sT0)}, 0")
                a(f"s_cselect_b64 {s(sTMP, 2)}, {s(sPWA, 2)}, {s(sPWB, 2)}")
                a(f"s_cselect_b64 {s(sLN2, 2)}, {s(sPWOA, 2)}, {s(sPWOB, 2)}")
                a(f"s_lshr_b32 {s(sT0)}, {s(sT0)}, 1")
                a(f"s_mul_i32 {s(sT2)}, {s(sT1)}, 3")
                a(f"s_add_u32 {s(sT2)}, {s(sT2)}, {s(sT0)}")
                a(f"s_cmp_lt_u32 {s(sT0)}, 3")
                a(f"s_cselect_b64 {s(sTMP, 2)}, {s(sTMP, 2)}, {s(sLN2, 2)}")
                a(f"s_cselect_b32 {s(sT2)}, {s(sT2)}, {s(sT1)}")
                a(f"s_cselect_b32 {s(sT1)}, 3, 1")
                a(f"s_lshl_b32 {s(sTMP + 2)}, {s(sT1)}, 19")
                a(f"s_lshl_b32 {s(sT2)}, {s(sT2)}, 13")
                a(f"v_lshlrev_b32 v7, 3, {v(vL16)}")
                a(f"buffer_load_dword v7, v7, {s(sTMP, 4)}, {s(sT2)} offen")
        if cfg["mallpf"] in (4, 6):
            with self.only_if(f"s_cmp_eq_u32 {s(sW)}, 0"):
                mall_pf()
        if cfg["mallpf"] == 5:
            with self.only_if(f"s_cmp_eq_u32 {s(sSUB)}, 0"):
                mall_pf()
        if cfg["mallpf"] == 9:
            with self.only_if(f"s_cmp_eq_u32 {s(sW)}, 2"):
                mall_pf()
        if cfg["mallpf"] == 7:
            with self.only_if(f"s_cmp_lg_u32 {s(sW)}, 3"):
                mall_pf()
        if cfg["slow0"]:
            self.slow_pf(sSW[0], 12, 6)
        self.srd_tmp(sPPHI, 16384)
        a(f"s_lshl_b32 {s(sT0)}, {s(sC)}, 10")
        a(f"buffer_load_dwordx4 v[16:19], {v(vL16)}, {s(sTMP, 4)}, {s(sT0)} offen", vm="phi")
        for i in range(cfg["n0"]):
            self.ld_wkv(0, i, 5)
        if cfg["mallpf"] == 2:
            mall_pf()
        if not cfg["sl_first"]:
            scalar_loads()
        self.ts("p_issue")
        if cfg["x_allw"]:
            a("s_waitcnt vmcnt(0)")
            self.fine("p_allw")

        def o_touch(at):
            if cfg["otouch"] != at:
                return
            a0 = self.a
            a0(f"s_lshl_b32 {s(sT0)}, {s(sB)}, 5")
            a0(f"s_add_u32 {s(sT0)}, {s(sT0)}, {s(sC)}")
            a0(f"s_lshl_b32 {s(sT0)}, {s(sT0)}, 10")
            a0(f"s_add_u32 {s(sT0)}, {s(sT0)}, {OB[0]}")
            a0(f"v_bfe_u32 v50, {v(vL16)}, 7, 1")
            a0(f"v_mul_u32_u24 v50, {(16384 - 1024) // 8}, v50")
            a0(f"v_add_lshl_u32 v50, v50, {v(vL16)}, 3")
            a0("s_mov_b64 exec, 0xffff")
            a0(f"buffer_load_dword v52, v50, {s(sWS, 4)}, {s(sT0)} offen")
            a0("s_mov_b64 exec, -1")
        a(f"s_mov_b64 {s(sWS, 2)}, {s(sPWS, 2)}")
        a(f"s_mov_b64 {s(sOUT, 2)}, {s(sPOUT, 2)}")
        for r_ in (sWS, sOUT):
            a(f"s_mov_b32 {s(r_ + 3)}, 0x20000")
        a(f"s_mov_b32 {s(sWS + 2)}, {WS_SIZE:#x}")
        a(f"s_mov_b32 {s(sOUT + 2)}, 0x200000")
        o_touch(101)
        a(f"s_mov_b32 {s(sROW)}, 0xffff")
        a(f"s_mov_b32 {s(sROW + 1)}, 0xffff")
        a(f"s_mov_b32 {s(sMODE)}, 0")
        a(f"s_lshr_b32 {s(sT0)}, {s(sCG)}, 2")
        a(f"s_lshl2_add_u32 {s(sT0)}, {s(sBP)}, {s(sT0)}")
        a(f"s_lshl1_add_u32 {s(sT0)}, {s(sT0)}, {s(sSUB)}")
        a(f"s_lshl_b32 {s(sT0)}, {s(sT0)}, 8")
        a(f"s_and_b32 {s(sT1)}, {s(sCG)}, 3")
        a(f"s_lshl2_add_u32 {s(sSTST)}, {s(sT1)}, {s(sT0)}")
        a(f"s_add_u32 {s(sSTST)}, {s(sSTST)}, {STATS[0]}")
        a(f"s_lshl4_add_u32 {s(sT0)}, {s(sW)}, {s(sC)}")
        a(f"s_lshl_b32 {s(sKVT)}, {s(sT0)}, 10")
        a(f"s_add_u32 {s(sKVT)}, {s(sKVT)}, {KVP[0]}")
        a(f"s_lshl_b32 {s(sHEL)}, {s(sT0)}, 11")
        a(f"s_add_u32 {s(sHEL)}, {s(sHEL)}, {HELLO}")
        a(f"s_mov_b32 {s(sHI)}, 0")
        a(f"s_mov_b32 {s(sHI + 1)}, -1")
        a(f"s_lshl_b32 {s(sXLD)}, {s(sB)}, 15")
        i16, g, half, q, jj, t0, t1 = 20, 21, 22, 23, 24, 25, 26
        a(f"v_and_b32 {v(i16)}, 15, {v(L)}")
        a(f"v_lshrrev_b32 {v(g)}, 4, {v(L)}")
        a(f"v_lshrrev_b32 {v(half)}, 5, {v(L)}")
        a(f"v_and_b32 {v(q)}, 3, {v(L)}")
        a(f"v_bfe_u32 {v(jj)}, {v(L)}, 2, 2")
        a(f"v_lshlrev_b32 {v(vPOLL)}, 2, {v(i16)}")
        a(f"v_lshlrev_b32 {v(t0)}, 4, {v(i16)}")
        a(f"v_lshl_add_u32 {v(vXST)}, {v(g)}, 10, {v(t0)}")
        a(f"v_lshl_add_u32 {v(vSST)}, {v(half)}, 10, {v(t0)}")
        a(f"v_lshl_add_u32 {v(vSLD)}, {v(half)}, 9, {v(vL16)}")
        a(f"s_lshr_b32 {s(sT0)}, {s(sR)}, 1")
        a(f"s_lshl_b32 {s(sT0)}, {s(sT0)}, 7")
        a(f"s_and_b32 {s(sT1)}, {s(sR)}, 1")
        a(f"s_add_u32 {s(sT0)}, {s(sT0)}, {s(sT1)}")
        a(f"s_lshl_b32 {s(sT0)}, {s(sT0)}, 9")
        a(f"v_lshl_add_u32 {v(vPST)}, {v(half)}, 8, {v(t0)}")
        a(f"v_add_u32 {v(vPST)}, {s(sT0)}, {v(vPST)}")
        a(f"s_lshl_b32 {s(sT1)}, {s(sR)}, 6")
        a(f"s_add_u32 {s(sT1)}, {s(sT1)}, {8 * 65536}")
        a(f"v_lshl_add_u32 {v(vZST)}, {v(g)}, 4, {s(sT1)}")
        a(f"v_add_u32 v49, {s(sT0)}, {v(vL16)}")
        a(f"v_lshl_add_u32 v27, {v(q)}, 4, {s(sT1)}")
        a(f"v_cndmask_b32 v49, v49, v27, {s(sHI, 2)}")
        for i in range(4):
            a(f"v_mov_b32 {v(28 + i)}, -1")
        def setup(upto):
            cnt, a0 = [0], self.a

            def a(text, **kw):
                if cnt[0] % cfg["w_every"] == 0 and self.nw < upto:
                    self.ld_wkv(0, self.nw, 5, sT3)
                    self.nw += 1
                cnt[0] += 1
                a0(text, **kw)
            a(f"s_getreg_b32 {s(sXCC)}, hwreg(HW_REG_XCC_ID, 0, 4)")
            a(f"s_lshl_b32 {s(sW13)}, {s(sW)}, 13")
            a(f"s_mov_b32 {s(sCNT)}, {cfg['limit']:#x}")
            a(f"s_lshl_b32 {s(sT0)}, {s(sC)}, 10")
            a(f"s_add_u32 {s(sOST)}, {s(sXLD)}, {s(sT0)}")
            a(f"s_add_u32 {s(sOST)}, {s(sOST)}, {OB[0]}")
            a(f"s_add_u32 {s(sOLD)}, {s(sOLD)}, {OB[0]}")
            a(f"s_add_u32 {s(sSTLD)}, {s(sSTLD)}, {STATS[0]}")
            a(f"s_lshl2_add_u32 {s(sFOS)}, {s(sC)}, {s(sFOS)}")
            a(f"s_lshl_b32 {s(sT0)}, {s(sBP)}, 7")
            a(f"s_add_u32 {s(sFOP)}, {s(sT0)}, {FLAGO}")
            a(f"s_lshl1_add_u32 {s(sT1)}, {s(sCG)}, {s(sSUB)}")
            a(f"s_lshl2_add_u32 {s(sFXS)}, {s(sT1)}, {s(sT0)}")
            a(f"s_add_u32 {s(sFXS)}, {s(sFXS)}, {FLAGX}")
            a(f"s_lshl_b32 {s(sT0)}, {s(sC)}, 6")
            if cfg["rot"]:
                a(f"s_lshl_b32 {s(sQOFF)}, {s(sW)}, 2")
                a(f"s_xor_b32 {s(sQOFF)}, {s(sQOFF)}, {s(sROT)}")
                a(f"s_lshl_b32 {s(sQOFF)}, {s(sQOFF)}, 1")
                if cfg["rotq"]:
                    a(f"s_lshr_b32 {s(sT0)}, {s(sROT)}, 1")
                    a(f"s_xor_b32 {s(sQOFF)}, {s(sQOFF)}, {s(sT0)}")
                    a(f"s_lshl_b32 {s(sT0)}, {s(sROT)}, 9")
                    a(f"s_add_u32 {s(sWQM)}, {s(sW13)}, {s(sT0)}")
                a(f"s_lshl_b32 {s(sT0)}, {s(sROT)}, 11")
                a(f"s_add_u32 {s(sXLD)}, {s(sXLD)}, {s(sT0)}")
            else:
                a(f"s_mul_i32 {s(sQOFF)}, {s(sW)}, {128 * 3072}")
                a(f"s_add_u32 {s(sQOFF)}, {s(sQOFF)}, {s(sT0)}")
            a(f"s_lshl_b32 {s(sOOFF)}, {s(sW)}, 13")
            a(f"s_lshl_b32 {s(sT0)}, {s(sCG)}, 7")
            a(f"s_add_u32 {s(sOOFF)}, {s(sOOFF)}, {s(sT0)}")
            if cfg["roto"]:
                a(f"s_and_b32 {s(sT0)}, {s(sR)}, {cfg['roto']}")
                a(f"s_lshl_b32 {s(sT1)}, {s(sT0)}, 15")
                a(f"s_add_u32 {s(sOOFF)}, {s(sOOFF)}, {s(sT1)}")
                a(f"s_lshl_b32 {s(sT1)}, {s(sT0)}, 10")
                a(f"s_add_u32 {s(sOLD)}, {s(sOLD)}, {s(sT1)}")

            def late_srds(a):
                a(f"s_mov_b64 {s(sSW[1], 2)}, {s(sPWB, 2)}")
                a(f"s_mov_b32 {s(sSW[1] + 2)}, {512 * 3072}")
                a(f"s_mov_b32 {s(sSW[1] + 3)}, 0x20000")
                for T in range(2):
                    a(f"s_mov_b64 {s(sSO[T], 2)}, {s([sPWOA, sPWOB][T], 2)}")
                    a(f"s_mov_b32 {s(sSO[T] + 2)}, {512 * 1024}")
                    a(f"s_mov_b32 {s(sSO[T] + 3)}, 0x20000")
            if not cfg["pfine"]:
                late_srds(a)
            a(f"s_mov_b32 {s(sCOL)}, 0x10001")
            a(f"s_mov_b32 {s(sCOL + 1)}, 0x10001")
            a(f"s_mov_b32 {s(sLN2)}, {LN2:#x}")
            a(f"s_mov_b32 {s(sLN2b)}, {LN2:#x}")
            a(f"s_mov_b32 {s(sDELTA)}, {f2u(1e-6):#x}")
            a(f"s_lshl_b32 {s(sANN)}, {s(sR)}, 7")
            a(f"s_add_u32 {s(sANN)}, {s(sANN)}, {ANN}")
            a(f"s_lshl4_add_u32 {s(sGW)}, {s(sR)}, {s(sC)}")
            a(f"s_lshl2_add_u32 {s(sGW)}, {s(sGW)}, {s(sW)}")
            a(f"v_and_b32 {v(t1)}, 1, {v(g)}")
            a(f"v_lshl_add_u32 {v(vOST)}, {v(t1)}, 14, {v(t0)}")
            a(f"v_lshl_add_u32 {v(vOST)}, {v(half)}, 9, {v(vOST)}")
            a(f"v_lshlrev_b32 {v(vWRD)}, 9, {v(half)}")
            a(f"v_lshl_add_u32 {v(vWRD)}, {v(jj)}, 6, {v(vWRD)}")
            a(f"v_lshl_add_u32 {v(vWRD)}, {v(t1)}, 4, {v(vWRD)}")
            a(f"v_and_b32 v27, 1, {v(q)}")
            a(f"v_lshrrev_b32 v32, 1, {v(q)}")
            a(f"v_lshl_add_u32 {v(vWRD)}, v27, 5, {v(vWRD)}")
            a(f"v_lshl_add_u32 {v(vWRD)}, v32, 3, {v(vWRD)}")
            a(f"v_lshlrev_b32 {v(vSTR)}, 8, {v(half)}")
            a(f"v_lshl_add_u32 {v(vSTR)}, v32, 7, {v(vSTR)}")
            a(f"v_lshl_add_u32 {v(vSTR)}, {v(t1)}, 6, {v(vSTR)}")
            a(f"v_lshl_add_u32 {v(vSTR)}, {v(jj)}, 4, {v(vSTR)}")
            a(f"v_lshl_add_u32 {v(vSTR)}, v27, 3, {v(vSTR)}")
            a(f"s_lshl_b32 {s(sT0)}, {s(sSUB)}, 12")
            a(f"s_add_u32 {s(sT0)}, {s(sT0)}, {L_STG + 0x4000}")
            a(f"v_add_u32 {v(vSTR2)}, {s(sT0)}, {v(vSTR)}")
            a(f"s_lshl_b32 {s(sT0)}, {s(sW)}, 12")
            a(f"s_add_u32 {s(sT0)}, {s(sT0)}, {L_STG}")
            a(f"v_add_u32 {v(vSTR)}, {s(sT0)}, {v(vSTR)}")
            a(f"v_bfe_u32 v33, {v(L)}, 3, 2")
            a(f"v_and_b32 {v(vSTW)}, 0x70, {v(vL16)}")
            a(f"v_lshl_add_u32 {v(vSTW)}, v33, 8, {v(vSTW)}")
            a(f"v_lshl_add_u32 {v(vSTW)}, {v(half)}, 12, {v(vSTW)}")
            a(f"s_lshl_b32 {s(sT0)}, {s(sW)}, 10")
            a(f"s_add_u32 {s(sT0)}, {s(sT0)}, {L_STG}")
            a(f"v_add_u32 {v(vSTW)}, {s(sT0)}, {v(vSTW)}")
            a(f"v_bfe_u32 v34, {v(L)}, 1, 2")
            a(f"v_xor_b32 v33, v33, v34")
            a(f"v_lshlrev_b32 {v(vWOW)}, 14, v34")
            a(f"v_lshl_add_u32 {v(vWOW)}, v33, 5, {v(vWOW)}")
            a(f"v_lshl_add_u32 {v(vWOW)}, {v(half)}, 9, {v(vWOW)}")
            a(f"v_lshl_add_u32 {v(vWOW)}, v27, 4, {v(vWOW)}")
            a(f"s_lshl_b32 {s(sT0)}, {s(sW)}, 7")
            a(f"v_add_u32 {v(vWOW)}, {s(sT0)}, {v(vWOW)}")
            a(f"v_lshlrev_b32 {v(vWOR)}, 3, {v(L)}")
            a(f"s_lshl_b32 {s(sT0)}, {s(sSUB)}, 15")
            a(f"s_and_b32 {s(sT1)}, {s(sW)}, 2")
            a(f"s_lshl_b32 {s(sT2)}, {s(sT1)}, 9")
            a(f"s_add_u32 {s(sT0)}, {s(sT0)}, {s(sT2)}")
            a(f"v_add_u32 {v(vWKW)}, {s(sT0)}, {v(vL16)}")
            a(f"v_and_b32 v33, 0x1f0, {v(vL16)}")
            a(f"v_add_u32 {v(vCSR)}, {L_CSP:#x}, v33")
            a(f"v_and_b32 v34, 1, {v(jj)}")
            a(f"v_cmp_eq_u32 vcc, v34, {v(half)}")
            a(f"v_lshlrev_b32 v35, 6, {v(half)}")
            a(f"v_sub_u32 v35, 576, v35")
            a(f"v_cndmask_b32 {v(vKFR)}, v35, v33, vcc")
            a(f"v_add_u32 {v(vKFR)}, {L_KVF:#x}, {v(vKFR)}")
            a(f"s_mul_i32 {s(sT0)}, {s(sT1)}, {KS}")
            a(f"s_lshl_b32 {s(sT2)}, {s(sSUB)}, 6")
            a(f"s_add_u32 {s(sT0)}, {s(sT0)}, {s(sT2)}")
            a(f"s_add_u32 {s(sT0)}, {s(sT0)}, {L_KVF}")
            a(f"v_mul_u32_u24 {v(vKFW)}, {KS}, {v(half)}")
            a(f"v_lshl_add_u32 {v(vKFW)}, {v(q)}, 4, {v(vKFW)}")
            a(f"v_lshl_add_u32 {v(vKFW)}, {v(jj)}, 7, {v(vKFW)}")
            a(f"v_lshl_add_u32 {v(vKFW)}, {v(t1)}, 3, {v(vKFW)}")
            a(f"v_add_u32 {v(vKFW)}, {s(sT0)}, {v(vKFW)}")
            a(f"s_lshl_b32 {s(sT0)}, {s(sW)}, 5")
            a(f"s_add_u32 {s(sT0)}, {s(sT0)}, {L_ZB}")
            a(f"v_lshl_add_u32 {v(vZW)}, {v(q)}, 2, {v(g)}")
            a(f"v_lshl_add_u32 {v(vZW)}, {v(vZW)}, 1, {s(sT0)}")
            a(f"v_mov_b32 v35, {L_ZB:#x}")
            a(f"v_lshl_add_u32 {v(vZR)}, {v(half)}, 5, v35")
            self.fine("p_b")
            a(f"v_mov_b32 v36, 0x3f80")
            a(f"v_lshlrev_b32 v37, 4, v27")
            a(f"v_lshlrev_b32 v36, v37, v36")
            a(f"v_lshrrev_b32 v37, 1, {v(i16)}")
            a(f"v_lshlrev_b32 v38, 2, {v(t1)}")
            a(f"v_sub_u32 v37, v37, v38")
            for d in range(4):
                a(f"v_cmp_eq_u32 vcc, {d}, v37")
                a(f"v_cndmask_b32 {v(40 + d)}, 0, v36, vcc")
            a(f"v_add_u32 v33, {L_SEL:#x}, v33")
            a(f"ds_write_b128 v33, v[40:43]")
            for i in range(4):
                a(f"v_mov_b32 {v(44 + i)}, 0")
            a(f"v_min_u32 v33, 5, {v(i16)}")
            a(f"v_mul_u32_u24 v33, {KS}, v33")
            a(f"v_lshl_add_u32 v33, {v(half)}, 6, v33")
            a(f"v_add_u32 v33, {L_KVF + 512:#x}, v33")
            a(f"ds_write_b128 v33, v[44:47]")
            return late_srds
        self.fine("p_a")
        if cfg["early_setup"]:
            self.nw = cfg["n0"]
            late_srds = setup(cfg["n0s"])
            cfg["n0"] = self.nw
        if cfg["warm_at"] == 0:
            self.warm(0)
        a(f"v_lshlrev_b32 v54, 5, v52")
        a(f"v_add_u32 v54, {L_STG:#x}, v54")
        a(f"s_lshl_b32 {s(sT0)}, {s(sW)}, 2")
        a(f"v_lshl_add_u32 v55, {v(half)}, 4, {s(sT0)}")
        a(f"v_add_u32 v55, v55, v54")
        a(f"v_lshlrev_b32 v53, 9, v53")
        a(f"v_lshl_add_u32 v53, v52, 4, v53")
        a(f"s_lshr_b32 {s(sT0)}, {s(sC)}, 2")
        a(f"s_lshl2_add_u32 {s(sT0)}, {s(sR)}, {s(sT0)}")
        a(f"s_and_b32 {s(sT1)}, {s(sC)}, 3")
        a(f"s_lshl3_add_u32 {s(sF0)}, {s(sT0)}, {s(sT1)}")
        a(f"s_lshl2_add_u32 {s(sF0)}, {s(sF0)}, {s(sW)}")
        a(f"s_lshl2_add_u32 {s(sF0)}, {s(sF0)}, {FLAGX}")
        a(f"s_lshl2_add_u32 {s(sT0)}, {s(sT0)}, {s(sW)}")
        a(f"s_lshl_b32 {s(sT0)}, {s(sT0)}, 6")
        a(f"s_add_u32 {s(sT0)}, {s(sT0)}, {s(sT1)}")
        a(f"s_lshl_b32 {s(sT0)}, {s(sT0)}, 7")
        a(f"s_add_u32 {s(sT1)}, {s(sT0)}, 4096")
        self.fine("p_c")

        def page_break():
            if cfg["pads"]:
                a("s_branch L_page0")
                a(".p2align 12")
                self.nook = a.ins[-1]
                a.label("L_page0")
        if cfg["brk"] == 0:
            page_break()
        self.ts("p_lane")
        a.wait(vm="x0")
        self.ts("x0")
        X, t = AK, AV
        for i in range(8):
            a(f"v_lshlrev_b32 {v(X + 2 * i)}, 16, {v(8 + i)}")
            a(f"v_and_b32 {v(X + 2 * i + 1)}, 0xffff0000, {v(8 + i)}")
        a(f"v_pk_add_f32 {v(t, 2)}, {v(X, 2)}, {v(X + 2, 2)}")
        a(f"v_pk_mul_f32 {v(t + 2, 2)}, {v(X, 2)}, {v(X, 2)}")
        a(f"v_pk_fma_f32 {v(t + 2, 2)}, {v(X + 2, 2)}, {v(X + 2, 2)}, {v(t + 2, 2)}")
        for i in range(2, 8):
            a(f"v_pk_add_f32 {v(t, 2)}, {v(t, 2)}, {v(X + 2 * i, 2)}")
            a(f"v_pk_fma_f32 {v(t + 2, 2)}, {v(X + 2 * i, 2)}, {v(X + 2 * i, 2)}, {v(t + 2, 2)}")
        a(f"v_add_f32 {v(t)}, {v(t)}, {v(t + 1)}")
        a(f"v_add_f32 {v(t + 2)}, {v(t + 2)}, {v(t + 3)}")
        a(f"v_permlane32_swap_b32 {v(t)}, {v(t + 2)}")
        a(f"v_add_f32 {v(t)}, {v(t)}, {v(t + 2)}")
        a(f"v_mov_b32 {v(t + 1)}, {v(t)}")
        a(f"v_permlane16_swap_b32 {v(t)}, {v(t + 1)}")
        a(f"v_add_f32 {v(t)}, {v(t)}, {v(t + 1)}")
        a(f"v_add_f32 {v(t)}, {v(t)}, {v(t)} row_ror:8")
        a(f"ds_write_b32 v55, {v(t)}")
        for i in range(cfg["n0"], cfg["n0"] + cfg["n0b"][0]):
            self.ld_wkv(0, i, 5, sT3)
        a("s_waitcnt lgkmcnt(0)")
        a("s_barrier")
        a(f"ds_read_b128 {v(t, 4)}, v54")
        a(f"ds_read_b128 {v(t + 4, 4)}, v54 offset:16")
        for i in range(cfg["n0"] + cfg["n0b"][0], cfg["n0"] + sum(cfg["n0b"])):
            self.ld_wkv(0, i, 5, sT3)
        cfg["n0"] += sum(cfg["n0b"])
        a("s_waitcnt lgkmcnt(0)")
        a.lg.clear()
        m_, u_ = t, t + 4
        for l_ in [f"v_pk_add_f32 {v(t, 2)}, {v(t, 2)}, {v(t + 2, 2)}",
                   f"v_pk_add_f32 {v(t + 4, 2)}, {v(t + 4, 2)}, {v(t + 6, 2)}",
                   f"v_add_f32 {v(m_)}, {v(t)}, {v(t + 1)}",
                   f"v_add_f32 {v(u_)}, {v(t + 4)}, {v(t + 5)}",
                   f"v_mul_f32 {v(m_)}, {f2u(1 / 512):#x}, {v(m_)}",
                   f"v_mul_f32 {v(u_)}, {f2u(1 / 512):#x}, {v(u_)}",
                   f"v_fma_f32 {v(u_)}, -{v(m_)}, {v(m_)}, {v(u_)}",
                   f"v_max_f32 {v(u_)}, 0, {v(u_)}",
                   f"v_cvt_pk_bf16_f32 {v(u_)}, {v(m_)}, {v(u_)}",
                   f"v_lshlrev_b32 {v(m_)}, 16, {v(u_)}",
                   f"v_and_b32 {v(u_)}, 0xffff0000, {v(u_)}",
                   f"v_add_f32 {v(u_)}, {f2u(1e-5):#x}, {v(u_)}",
                   f"v_cvt_pk_bf16_f32 {v(u_)}, {v(u_)}, {v(u_)}",
                   f"v_and_b32 {v(u_)}, 0xffff0000, {v(u_)}",
                   f"v_sqrt_f32 {v(u_)}, {v(u_)}"]:
            a(l_)
        for i in range(8):
            a(f"v_pk_add_f32 {v(X + 2 * i, 2)}, {v(X + 2 * i, 2)}, {v(m_, 2)} op_sel_hi:[1,0] neg_lo:[0,1] neg_hi:[0,1]")
        a(f"v_cvt_pk_bf16_f32 {v(u_)}, {v(u_)}, {v(u_)}")
        a(f"v_and_b32 {v(u_)}, 0xffff0000, {v(u_)}")
        a(f"v_rcp_f32 {v(u_)}, {v(u_)}")
        for h in range(2):
            R = range(4 * h, 4 * h + 4)
            for i in R:
                a(f"v_cvt_pk_bf16_f32 {v(8 + i)}, {v(X + 2 * i)}, {v(X + 2 * i + 1)}")
            for i in R:
                a(f"v_lshlrev_b32 {v(X + 2 * i)}, 16, {v(8 + i)}")
                a(f"v_and_b32 {v(X + 2 * i + 1)}, 0xffff0000, {v(8 + i)}")
            for i in R:
                a(f"v_pk_mul_f32 {v(X + 2 * i, 2)}, {v(X + 2 * i, 2)}, {v(u_, 2)} op_sel_hi:[1,0]")
            for i in R:
                a(f"v_cvt_pk_bf16_f32 {v(8 + i)}, {v(X + 2 * i)}, {v(X + 2 * i + 1)}")
            a(f"buffer_store_dwordx4 {v(8 + 4 * h, 4)}, v53, {s(sOUT, 4)}, {s((sT0, sT1)[h])} offen sc1", vm="sst")
        with self.only_if(f"s_cmp_lt_u32 {s(sW)}, 2"):
            a("s_mov_b32 exec_hi, 15")
            a(f"buffer_store_dwordx4 v[28:31], v49, {s(sWS, 4)}, {s(sKVT)} offen sc1")
            a("s_mov_b32 exec_hi, -1")
        if cfg["mallpf"] == 3:
            mall_pf()
        if cfg["mallpf"] == 4:
            with self.only_if(f"s_cmp_lg_u32 {s(sW)}, 0"):
                mall_pf()
        o_touch(102)
        self.ts("p_xpub")
        self.nw = cfg["n0"]
        if not cfg["early_setup"]:
            late_srds = setup(cfg["n1"])
        self.ts("p_setup")
        while self.nw < cfg["n1"]:
            self.ld_wkv(0, self.nw, 5)
            self.nw += 1
        if cfg["brk"] == 1:
            page_break()
        if cfg["warm_at"] == 1:
            self.warm(0)
        a("s_waitcnt lgkmcnt(0)")
        a.lg.clear()
        def phi_frag():
            a(f"s_lshl_b32 {s(sT0)}, {s(sW)}, 10")
            a(f"s_add_u32 {s(sT0)}, {s(sT0)}, {L_STG + 0x3000}")
            a(f"v_add_u32 v33, {s(sT0)}, {v(vL16)}")
            a.wait(vm="phi")
            a(f"ds_write_b128 v33, v[16:19]", lg="ph")
            a(f"v_lshlrev_b32 v33, 9, v27")
            a(f"v_lshl_add_u32 v33, {v(half)}, 8, v33")
            a(f"v_lshl_add_u32 v33, {v(jj)}, 5, v33")
            a(f"v_lshl_add_u32 v33, {v(t1)}, 4, v33")
            a(f"v_lshl_add_u32 v33, v32, 3, v33")
            a(f"v_add_u32 v33, {s(sT0)}, v33")
            a(f"v_mul_u32_u24 v39, {KS - 512}, {v(half)}")
            a(f"v_add_u32 v39, v39, {v(vL16)}")
            a(f"v_add_u32 v39, {L_WPF:#x}, v39")
            a.wait(lg="ph")
            a(f"ds_read_b64_tr_b16 v[16:17], v33")
            a(f"ds_read_b64_tr_b16 v[18:19], v33 offset:128", lg="ph2")

        def phi_put():
            a.wait(lg="ph2")
            a(f"ds_write_b128 v39, v[16:19]")
        if cfg["phi_at"] < 0:
            phi_frag()

        def take(i):
            a.wait(vm=f"wkv{i}")
            self.fine(f"p_w{i}")
            self.put_wkv(0, i, i + 1)
        for i in range(cfg["n0"]):
            while self.nw < min(16, i + cfg["nw0"]):
                self.ld_wkv(0, self.nw, 5)
                self.nw += 1
            take(i)
        if cfg["phi_at"] < 0:
            phi_put()
        a(f"s_mul_i32 {s(sTAG)}, {s(sEP)}, 0x9e3779b1")
        a(f"s_add_u32 {s(sTAG)}, {s(sTAG)}, 0x7f4a7c15")
        a(f"s_and_b32 {s(sTAG)}, {s(sTAG)}, 0xffffff00")
        a(f"s_or_b32 {s(sXCC)}, {s(sTAG)}, {s(sXCC)}")
        a(f"v_mov_b32 v34, {s(sXCC)}")
        a("s_mov_b64 exec, 1")
        a.wait(vm="sst")
        self.fine("p_ack")
        a(f"buffer_store_dword v34, off, {s(sWS, 4)}, {s(sF0)}")
        a("s_mov_b64 exec, -1")
        if not cfg["hello_late"]:
            self.hello(35, 37)
        self.ts("flag0")
        a(f"v_lshl_add_u32 v38, {v(g)}, 7, {v(vPOLL)}")
        a(f"s_and_b32 {s(sT2)}, {s(sFXP)}, 0xfffffe7f")
        for i in range(cfg["n0"], 16):
            while self.nw < min(16, i + cfg["nw"]):
                self.ld_wkv(0, self.nw, 5)
                self.nw += 1
            if i == cfg["f0_at"]:
                assert self.nw == 16
                a(f"buffer_load_dword v34, v38, {s(sWS, 4)}, {s(sT2)} offen sc1", vm="f0")
                if cfg["warm_at"] == 2:
                    self.warm(0)
            if i == cfg["phi_at"]:
                phi_frag()
            take(i)
            if i == cfg["phi_at"]:
                phi_put()
        self.puts_left = []
        self.ts("wkv0")
        a.wait(vm="f0")
        a(f"v_cmp_ne_u32 vcc, {s(sXCC)}, v34")
        a("s_branch L_global" if cfg["force_global"] else "s_cbranch_vccnz L_poll0")
        a.label("L_enter")
        with self.outofline():
            a.label("L_poll0")
            a(f"buffer_load_dword v34, v38, {s(sWS, 4)}, {s(sT2)} offen sc1")
            self.countdown()
            a("s_waitcnt vmcnt(0)")
            a(f"v_cmp_ne_u32 vcc, {s(sXCC)}, v34")
            a("s_cbranch_vccz L_enter")
            a(f"s_and_b32 {s(sT1)}, {s(sCNT)}, 15")
            a("s_cbranch_scc1 L_poll0")
            a(f"v_mov_b32 v35, {s(sXCC)}")
            a(f"s_lshl2_add_u32 {s(sT0)}, {s(sC)}, {s(sANN)}")
            a("s_mov_b64 exec, 1")
            a(f"buffer_store_dword v35, off, {s(sWS, 4)}, {s(sT0)} sc1")
            a("s_mov_b64 exec, -1")
            a(f"buffer_load_dword v34, {v(vPOLL)}, {s(sWS, 4)}, {s(sANN)} offen sc1")
            a("s_waitcnt vmcnt(0)")
            a(f"v_xor_b32 v34, {s(sXCC)}, v34")
            a(f"v_add_u32 v34, -1, v34")
            a(f"v_cmp_gt_u32 vcc, 15, v34")
            a("s_cbranch_vccz L_poll0")
            a.label("L_global")
            a(f"s_mov_b32 {s(sMODE)}, 1")
            a(f"s_add_u32 {s(sFXS)}, {s(sFXS)}, {FLAGX2 - FLAGX}")
            a(f"s_add_u32 {s(sFXP)}, {s(sFXP)}, {FLAGX2 - FLAGX}")
            a(f"s_mov_b32 {s(sTG)}, {s(sTAG)}")
            a(f"s_add_u32 {s(sF0)}, {s(sF0)}, {FLAGX2 - FLAGX}")
            a(f"v_mov_b32 v16, {s(sTG)}")
            self.flag(sF0, 16)
            self.poll(vPOLL, sFXP, 34)
            a("s_branch L_enter")
        self.ts("poll0")
        if cfg["pfine"]:
            a("s_waitcnt lgkmcnt(0)")
            for k in range(len(cfg["pfine"])):
                a(f"v_writelane_b32 {v(vTS)}, {s(84 + 2 * k)}, {48 + k}")
            late_srds(a)

    def rowmajor_voff(self, d, t):
        a = self.a
        a(f"v_and_b32 {v(d)}, 0xf0, {v(vL16)}")
        a(f"v_lshlrev_b32 {v(d)}, 6, {v(d)}")
        a(f"v_bfe_u32 {v(t)}, {v(vL16)}, 8, 1")
        a(f"v_lshl_add_u32 {v(d)}, {v(t)}, 5, {v(d)}")
        a(f"v_lshrrev_b32 {v(t)}, 9, {v(vL16)}")
        a(f"v_lshl_add_u32 {v(d)}, {v(t)}, 4, {v(d)}")

    def tile_addr(self, d, t):
        return [f"s_mul_i32 {s(sT0)}, {s(sW)}, 2304",
                f"s_add_u32 {s(sT0)}, {s(sT0)}, {L_STG}",
                f"v_bfe_u32 {v(t)}, {v(vL16)}, 4, 4",
                f"v_mul_u32_u24 {v(d)}, 144, {v(t)}",
                f"v_lshrrev_b32 {v(t)}, 8, {v(vL16)}",
                f"v_lshl_add_u32 {v(d)}, {v(t)}, 3, {v(d)}",
                f"v_add_u32 {v(d)}, {s(sT0)}, {v(d)}",
                f"v_lshrrev_b32 {v(t)}, 7, {v(vL16)}",
                f"v_lshl_add_u32 {v(d + 1)}, {v(t)}, 4, {v(vL16)}",
                f"v_add_u32 {v(d + 1)}, {s(sT0)}, {v(d + 1)}",
                f"v_mul_u32_u24 {v(d + 2)}, {1024 - 128}, {v(t)}",
                f"v_add_u32 {v(d + 2)}, {v(d + 2)}, {v(vL16)}"]

    def final(self):
        a = self.a
        X = AK
        if self.cfg["fin_lds"]:
            a(f"s_add_u32 {s(sT1)}, {s(sFIN)}, 8192")
            for i in range(8):
                a(f"v_cvt_pk_bf16_f32 {v(X + i)}, {v(XR + 2 * i)}, {v(XR + 2 * i + 1)}")
                if i % 4 == 3:
                    a(f"ds_write2_b64 {v(PK)}, {v(X + i - 3, 2)}, {v(X + i - 1, 2)} offset0:{(i >> 2) * 8} offset1:{(i >> 2) * 8 + 4}")
            for i in range(2):
                a(f"ds_read_b128 {v(X + 8 + 4 * i, 4)}, {v(PK + 1)} offset:{1152 * i}")
            for i in range(2):
                a(f"s_waitcnt lgkmcnt({1 - i})")
                a(f"buffer_store_dwordx4 {v(X + 8 + 4 * i, 4)}, {v(PK + 2)}, {s(sOUT, 4)}, {s((sFIN, sT1)[i])} offen{self.cfg['finflag']}")
        else:
            self.rowmajor_voff(PK, PK + 1)
            for i in range(8):
                a(f"v_cvt_pk_bf16_f32 {v(X + i)}, {v(XR + 2 * i)}, {v(XR + 2 * i + 1)}")
            for i in range(2):
                for d in range(2):
                    a(f"v_permlane16_swap_b32 {v(X + 4 * i + d)}, {v(X + 4 * i + 2 + d)}")
            for i in range(2):
                a(f"buffer_store_dwordx4 {v(X + 4 * i, 4)}, {v(PK)}, {s(sOUT, 4)}, {s(sFIN)} offen offset:{64 * i}{self.cfg['finflag']}")
        with self.only_if(f"s_cmp_eq_u32 {s(sGW)}, 0"):
            a(f"s_add_u32 {s(sEP)}, {s(sEP)}, 1")
            a(f"v_mov_b32 v0, {s(sEP)}")
            a("s_mov_b64 exec, 1")
            a(f"buffer_store_dword v0, off, {s(sWS, 4)}, 0 sc1")
            a("s_mov_b64 exec, -1")
        if self.cfg["amp"]:
            amp = self.cfg["amp"]
            self.ts("end")
            a("s_sub_u32 s72, s78, s72")
            a(f"s_mul_i32 s72, s72, {amp[2]}")
            if amp[3]:
                a("s_lshr_b32 s72, s72, 5")
            a("s_min_u32 s72, s72, 100000")
            if self.cfg.get("amp_one") is not None:
                a(f"s_cmp_eq_u32 {s(sGW)}, {self.cfg['amp_one']}")
                a("s_cselect_b32 s72, s72, 0")
            a("s_memrealtime s[78:79]")
            a("s_waitcnt lgkmcnt(0)")
            a("s_mov_b32 s73, s78")
            a.label("L_amp")
            a("s_memrealtime s[78:79]")
            a("s_waitcnt lgkmcnt(0)")
            a("s_sub_u32 s78, s78, s73")
            a("s_cmp_lt_u32 s78, s72")
            a("s_cbranch_scc1 L_amp")
        if self.cfg["ts"]:
            a("s_waitcnt vmcnt(0)")
            self.ts("end")
            a("s_memrealtime s[72:73]")
            a("s_waitcnt lgkmcnt(0)")
            for k in range(len(self.cfg["fine"])):
                a(f"v_writelane_b32 {v(vTS)}, {s(FINE[k])}, {48 + k}")
            a(f"v_writelane_b32 {v(vTS)}, {s(sLAY)}, 58")
            a(f"v_writelane_b32 {v(vTS)}, {s(sTSI)}, 59")
            a(f"v_writelane_b32 {v(vTS)}, {s(sCNT)}, 60")
            a(f"v_writelane_b32 {v(vTS)}, s78, 61")
            a(f"v_writelane_b32 {v(vTS)}, s72, 62")
            a(f"v_writelane_b32 {v(vTS)}, {s(sMODE)}, 63")
            a(f"s_lshl_b32 {s(sT0)}, {s(sGW)}, 8")
            a(f"s_add_u32 {s(sT0)}, {s(sT0)}, {DBG + 0x2000000}")
            a(f"v_lshrrev_b32 v0, 2, {v(vL16)}")
            a(f"buffer_store_dword {v(vTS)}, v0, {s(sWS, 4)}, {s(sT0)} offen")
        a.label("L_timeout")
        a.label("L_end")
        a("s_endpgm")

    def place(self):
        a = self.a
        if not self.cfg["pads"]:
            self.stat = a.layout(self.cfg["align"])
            return
        keep = list(a.ins)
        for k in range(12):
            a.ins.append(Ins(f"L_pad{k}:"))
        cnt = [0]

        def probe(k):
            cnt[0] += 1
            return f"L_tmp{cnt[0]}", "s_nop 0"
        a.layout(self.cfg["align"], probe, 1)
        n = cnt[0]
        a.ins = keep + [Ins(f"L_pad{k}:") for k in range(12)]
        cnt[0] = 0

        def pad(_):
            k = cnt[0]
            cnt[0] += 1
            return f"L_pad{k}", f"s_cbranch_execz {self.pad_back[k]}"
        self.stat = a.layout(self.cfg["align"], pad, 1)
        del a.ins[-12:]
        assert cnt[0] == n <= 12
        for k in range(n, 12):
            i = [x.label for x in a.ins].index(self.pad_back[k])
            a.ins.insert(i, Ins(f"L_pad{k}:"))

    def build(self):
        a = self.a
        self.prologue()
        for l in range(4):
            self.layer(l)
        self.final()
        hot = [k for k, x in enumerate(self.tail) if x.label and x.label.startswith("L_again")]
        blocks, rest_, k = [], [], 0
        while k < len(self.tail):
            e = k
            while self.tail[e].op != "s_branch":
                e += 1
            (blocks if k in hot else rest_).extend(self.tail[k:e + 1])
            k = e + 1
        blocks[1].pad_here = True
        a.raw(blocks + rest_)
        a.label("L_codeend")
        a("s_endpgm")
        if self.cfg["x_16"]:
            out, k, ins = [], 0, a.ins
            i = 0
            while i < len(ins):
                x = ins[i]
                if x.op == "v_mfma_f32_32x32x16_bf16" and min(n for _, n in x.B) < 128 and RG <= min(n for _, n in x.A) < RG + 24:
                    d = min(n for _, n in x.w); j = min(n for _, n in x.B) // 4
                    mk = lambda q: Ins(f"v_mfma_f32_16x16x32_bf16 {v(d + 4 * q, 4)}, {x.ops[1]}, {x.ops[2]}, {v(d + 4 * q, 4) if j > 1 else 0}")
                    e = i + 1
                    while ins[e].kind != "mfma" if ins[e].op else False:
                        if ins[e].op.startswith(("s_cbranch", "s_cmp", "s_mov_b64", "s_waitcnt", "v_cmp", "s_barrier")) or e - i > 3:
                            break
                        e += 1
                    mid = i + 1 + (1 if e > i + 1 and ins[i + 1].op != "s_add_u32" else min(2, e - i - 1))
                    out += [mk(2 * (j & 1))] + ins[i + 1:mid] + [mk(2 * (j & 1) + 1)]
                    i = mid
                    continue
                out.append(x)
                i += 1
            a.ins = out
        nops = a.pad_hazards()
        self.place()
        head = open(f"cdna_kernels/{NAME}.s.ref").read().split("; Override launch")[0]
        out = head + HEADER + f"; @launch grid=(256,1,1) block=(256,1,1) lds={LDS_SIZE}\n"
        out += f""".amdgcn_target "amdgcn-amd-amdhsa--gfx950"
.text
.globl {NAME}_kernel
.p2align 8
.type {NAME}_kernel,@function
{NAME}_kernel:
"""
        out += a.text()
        out += f""".section .rodata,"a"
.p2align 6
.amdhsa_kernel {NAME}_kernel
  .amdhsa_next_free_vgpr 512
  .amdhsa_next_free_sgpr 102
  .amdhsa_accum_offset 256
  .amdhsa_group_segment_fixed_size 0
  .amdhsa_kernarg_size 80
  .amdhsa_user_sgpr_count 2
  .amdhsa_user_sgpr_kernarg_segment_ptr 1
  .amdhsa_system_sgpr_workgroup_id_x 1
.end_amdhsa_kernel
"""
        self.nops = nops
        return out


if __name__ == "__main__":
    import ast
    kw = {}
    out = sys.argv[1]
    for x in sys.argv[2:]:
        k, val = x.split("=", 1)
        kw[k] = ast.literal_eval(val)
    g = Gen(**kw)
    txt = g.build()
    open(out, "w").write(txt)
    print(f"wrote {out}: {len(g.a.ins)} lines, {g.nops} pad states, layout {g.stat}", file=sys.stderr)
```

```python
import sys
import contextlib
from asmlib import Asm, Ins

NAME = "interleave_layers__linear_attn_block__linear_kernel_hedgehog__prompt"

CFG = dict(
    ts=0, rt=0,
    dump=None,
    amp=None,
    force_global=0, fine=(), pfine=(),
    n0=3, n0b=(2, 2), w_every=50, n1=0, hello_late=0, x_noack='', x_16=0, limit=0x200000, jitter=None, x_noput=0, owin2=((0, 0), (4, 0), (2, 8)), xputs2=(0, 6), xprobe_at2=2, warm_at=2, nw=6, latepf=(8, 'bB'), fin_lds=1, xr_at=10, r_num=1, r_y=1, tlb='', sl_first=1, l2pf=0, l2div=1, slow0=1, f0_at=11, codepf=12, slowpf=1, align=99, pads=1, mallpf=5, x_wt=1, x_ann=1,
    hx='ffff', ho='ffff', touch=1,
    bg=((6, 4, 14, 8, 0, 0, 8), (4, 10, 10, 0, 0, 0, 0)),
    pl_step=(26, 24, 22, 20), pl_gap=(1, 1, 1, 2),
    nx0=8, nx1=4, xmix=1, x_qskip=0, x_st=0, ppf=(-1, -1, -1, -1), zlast=0, zst1=0, otouch=0, oinit=(0, -1), nmode=1, no0=8,
    wo_every=(8, 10), qputs=(8, 8), qearly=0, pdepth=2,
    np=8, owin=(((6, 0), (2, 8), (0, 20)), ((0, 32), (4, 0), (4, 0))), ord=((0, 2, 1, 1), (2, 2, 2, 1)),
    xputs=(4, 12), xputs0=(8, 12), x_h=0, x_lin=0, x_allw=0, st_at=5, fper=3, ssplit=3, x_nofirst=0, mark1=24, ep_early=1, ep_flag=' sc1', nw0=6, phi_at=12, qp1=None, trim=1, early_setup=1, brk=1, n0s=3, rot=0, rotq=0, roto=0, spar=1, xprobe_at=5,
    finflag="", jit=0,
)

FLAGX, FLAGO, FLAGX2, ANN, HELLO = 0x1000, 0x3000, 0x7000, 0x9000, 0xA0000
STATS, STATS_G = [0x10000, 0x30000], 0x40000
XB = [0, 0x800000]
OB = [0x400000, 0x600000]
KVP = [0xC0000 + 0x90000 * l for l in range(4)]
DBG = 0x1000000
WS_SIZE = 0x8000000
L_P, L_WQ, L_STG = 0x0, [0x10000, 0x18000], 0x20000
L_KVF = 0x26000
KS = 592
L_WPF = L_KVF + 4 * KS
L_ZB = L_WPF + 2 * KS
L_CSP = L_ZB + 128
L_SEL = L_CSP + 3072
LDS_SIZE = 0x28000
XF, AK, AV, RG, LG, XR, PK = 0, 128, 144, 160, 192, 208, 224
vSTR, vSTR2, vPST, vZST, vKFW, vZW, vZR, vOST = range(184, 192)
vL16, vWRD, vSTW, vKFR, vS, vRS, vM, vXST, vSST, vSLD, vPOLL, vWOR, vWOW, vWKW, vCSR, vTS = range(240, 256)
A_WKV, A_WO = [0, 64], [128, 192]
sID = 2
sPX, sPWA, sPWOA, sPBX, sPWB, sPPHI, sPWOB, sPOUT, sPDBG, sPWS = range(4, 24, 2)
sWS, sOUT, sTMP = 24, 28, 32
XS = [sOUT, sWS]
(sW, sC, sR, sXLD, sSTLD, sFXP, sOST, sFOS, sOLD, sFOP, sXST, sSTST, sFXS, sKVT, sTAG, sMODE, sPASS,
 sEP, sXCC, sT0, sT1, sT2, sT3, sCNT, sWOFF, sQOFF, sOOFF, sHEL, sLN2, sLN2b, sDELTA, sFIN) = range(36, 68)
sHI = 68
sSAVE = 70
sTSA = 72
sTSI = 74
sGW = 75
sLAY = 76
sANN = 77
sW13 = 98
sF0 = 3
sPF = 0
sTG = 1
sPM = 96
sSW, sSO = [80, 84], [88, 92]
vBW, vBO, vHL = RG + 20, RG + 21, RG + 22
vPR, vPB, vPA, vCK = PK + 10, PK + 11, PK + 7, PK + 6
sROT = sPASS
sWQM = 21
sROW = sPM
sCOL = sPBX
assert sLN2 % 2 == 0

FINE = [6, 8, 12, 14, 16, 18, 20, 22]
LOG2E = 0x3FB8AA3B
LN2 = 0x3F317218
DELTA = 0x35C1A4C3
import struct
def f2u(x): return struct.unpack("<I", struct.pack("<f", x))[0]
DELTA = f2u(1e-6 * 1.4426950408889634)


def v(a, n=1): return f"v{a}" if n == 1 else f"v[{a}:{a + n - 1}]"
def ar(a, n=1): return f"a{a}" if n == 1 else f"a[{a}:{a + n - 1}]"
def s(a, n=1): return f"s{a}" if n == 1 else f"s[{a}:{a + n - 1}]"


NOTES = dict(
    start="ids, offsets, code prefetch", kernarg="first loads: x rows, prefetches, k/v weights", p_issue="descriptors and lane constants",
    x0="first layer norm (8 tokens per workgroup), published as MFMA fragments", p_xpub="remaining set-up",
    p_setup="w_phi fragments, weights to LDS, first flag", flag0="rest of the k/v weights", wkv0="first hand-off: same die or not",
    xpoll="gather x fragments", bar1="k, v projection", kvgemm="feature map of k, staging of k and v", bar2="partial kv / z of 128 tokens, published to the column",
    publish="q projection", qgemm="feature map of q", phiq="sum of the 16 partials", bar3="numerator / denominator, publish o",
    ostore="o hand-off", opoll="output projection on top of the residual", ogemm="publish x (or store the result)", xflag="x hand-off")
HEADER = """; One persistent launch, 256 workgroups of 4 waves. Workgroup (r, c): row group r = 128 tokens, column c = heads 2c, 2c+1
; for the q/k/v projection, and a 64 x 64 tile of the output projection. All weights stay on the CU (AGPRs + LDS).
; Per layer: gather x -> k, v -> feature map -> partial kv/z exchanged along the column (write-through stores, marker words)
; Row-group hand-offs use plain stores when all 16 workgroups report the same die, write-through stores otherwise.
; Flags carry a tag derived from a launch counter kept in the workspace.
"""


class Gen:
    def __init__(self, **kw):
        self.cfg = dict(CFG)
        self.cfg.update(kw)
        self.a = Asm()
        self.tail = []
        self.nts = 0
        self.tsnames = []
        self.side = []
        self.side_every = 1
        self.pad_back = {}
        self.xb, self.ob = [0], [0]
        assert self.cfg["hx"][0] == "f" and self.cfg["ho"][0] == "f"
        for l in range(1, 4):
            self.xb.append(self.xb[-1] ^ (self.cfg["hx"][l] == "s"))
            self.ob.append(self.ob[-1] ^ (self.cfg["ho"][l] == "s"))

    @contextlib.contextmanager
    def uncounted(self):
        a = self.a
        vm, lg = list(a.vm), list(a.lg)
        yield
        a.vm, a.lg = vm, lg

    @contextlib.contextmanager
    def only_if(self, cmp):
        a = self.a
        l = a.newlabel("skip")
        a(cmp)
        a(f"s_cbranch_scc0 {l}")
        with self.uncounted():
            yield
        a.label(l)

    @contextlib.contextmanager
    def outofline(self):
        a = self.a
        n0 = len(a.ins)
        with self.uncounted():
            yield
        self.tail += a.ins[n0:]
        del a.ins[n0:]

    def code_pf(self, lo, hi, t):
        a = self.a
        n = f"(({hi}-{lo})/1024+1)"
        a(f"s_bfe_u32 {s(sT0)}, {s(sID)}, {3 | (3 << 16)}")
        a(f"s_mul_i32 {s(sT0)}, {s(sT0)}, {n}*128")
        a(f"s_add_u32 {s(sT0)}, {s(sT0)}, {lo}-L_pc")
        a(f"v_lshlrev_b32 {v(t)}, 3, {v(vL16)}")
        a(f"v_min_u32 {v(t)}, ({n}-1)*128, {v(t)}")
        a(f"v_add_u32 {v(t)}, {s(sT0)}, {v(t)}")
        a(f"v_min_u32 {v(t)}, L_codeend-L_pc, {v(t)}")
        a(f"global_load_dword {v(t)}, {v(t)}, {s(sSAVE, 2)}")

    def warm(self, g):
        a = self.a
        if not self.cfg["pads"]:
            return
        n0 = len(a.ins)
        a("s_mov_b64 exec, 0")
        for k in range(3):
            a(f"s_cmp_eq_u32 {s(sW)}, {k}")
            a(f"s_cbranch_scc1 L_pad{4 * g + k}")
        a(f"s_branch L_pad{4 * g + 3}")
        a.label(f"L_warmed{g}")
        a("s_mov_b64 exec, -1")
        for x in a.ins[n0:]:
            x.nopad = True
        for k in range(4):
            self.pad_back[4 * g + k] = f"L_warmed{g}"

    @contextlib.contextmanager
    def waves01(self, pads):
        a = self.a
        if not self.cfg["pads"]:
            with self.only_if(f"s_cmp_lt_u32 {s(sW)}, 2"):
                yield
                a("s_mov_b64 exec, -1")
            return
        st, back = a.newlabel("stub"), a.newlabel("back")
        a(f"s_cmp_lt_u32 {s(sW)}, 2")
        a(f"s_cbranch_scc0 {st}")
        with self.uncounted():
            yield
        a.label(back)
        a("s_mov_b64 exec, -1")
        i = a.ins.index(self.nook)
        a.ins[i:i] = [Ins(x) for x in (f"{st}:", "s_mov_b64 exec, 0", f"s_cmp_eq_u32 {s(sW)}, 2", f"s_cbranch_scc1 L_pad{pads[0]}", f"s_branch L_pad{pads[1]}")]
        for x in a.ins[i:i + 5] + a.ins[-1:]:
            x.nopad = True
        for k in pads:
            self.pad_back[k] = back

    def countdown(self):
        self.a(f"s_sub_u32 {s(sCNT)}, {s(sCNT)}, 1")
        self.a("s_cbranch_scc1 L_timeout")

    def bg_region(self, n, slots):
        n = min(n, len(self.bg))
        self.bg_slot = 0
        self.bg_at = [(k * slots) // n for k in range(n)]

    def bg_tick(self):
        for _ in range(self.bg_at.count(self.bg_slot)):
            self.bg.pop(0)()
        self.bg_slot += 1

    def bg_now(self, n):
        for _ in range(min(n, len(self.bg))):
            self.bg.pop(0)()

    def ticker(self):
        def e(text, **kw):
            if self.side and self.bg_slot % self.side_every == 0:
                self.side.pop(0)()
            self.bg_tick()
            self.a(text, **kw)
        return e

    def moded(self, lines, tag=None, reg=sMODE, wt=False, cmp=True):
        a = self.a
        if wt:
            for l in lines:
                a(l + (" sc1" if l.startswith("buffer_store") else ""), vm=tag)
            return
        lg, lj = a.newlabel("glob"), a.newlabel("join")
        if cmp:
            a(f"s_cmp_eq_u32 {s(reg)}, 0")
        a(f"s_cbranch_scc0 {lg}")
        for l in lines:
            a(l, vm=tag)
        a.label(lj)
        t = [Ins(lg + ":")] + [Ins(l + (" sc1" if l.startswith("buffer_store") else "")) for l in lines] + [Ins(f"s_branch {lj}")]
        self.tail += t

    def srd_tmp(self, ptr, size):
        a = self.a
        a(f"s_mov_b32 {s(sTMP)}, {s(ptr)}")
        a(f"s_mov_b32 {s(sTMP + 1)}, {s(ptr + 1)}")
        a(f"s_mov_b32 {s(sTMP + 2)}, {size}")

    def ts(self, name):
        a = self.a
        what = NOTES.get(name.split(":")[-1])
        if what:
            a.ins.append(Ins("; ---- " + (f"layer {name[0]}: " if ":" in name else "") + what))
        self.fine(name)
        amp = self.cfg["amp"]
        if amp:
            for k in range(2):
                if amp[k] == name:
                    a(f"{'s_memtime' if amp[3] else 's_memrealtime'} {s(72 + 6 * k, 2)}")
                    if name != "start":
                        a("s_waitcnt lgkmcnt(0)")
        if not self.cfg["ts"] or name == "start":
            return
        if self.cfg["ts"] == 1 and name.startswith("p_"):
            return
        if self.cfg["ts"] == 4 and name not in ("kernarg", "end"):
            return
        if self.cfg["ts"] == 3 and name not in ("x0", "flag0", "poll0", "end") and name[2:] not in ("kvgemm", "ogemm"):
            return
        if self.cfg["ts"] == 2 and ":" in name and name[2:] not in ("kvgemm", "bar3", "ogemm"):
            return
        a(f"{'s_memrealtime' if self.cfg['rt'] else 's_memtime'} {s(sTSA, 2)}")
        a("s_waitcnt lgkmcnt(0)")
        a.lg.clear()
        a(f"v_writelane_b32 {v(vTS)}, {s(sTSA)}, {len(self.tsnames)}")
        self.tsnames.append(name)
        assert len(self.tsnames) <= 56

    def fine(self, name):
        if self.cfg["jitter"] and name not in ("start", "kernarg") and not name.endswith(("p_mfma",)):
            seed, mask, every = self.cfg["jitter"]
            self.njit = getattr(self, "njit", 0) + 1
            if (self.njit * 7 + seed) % every == 0:
                a = self.a
                l = a.newlabel("jit")
                a(f"s_lshl2_add_u32 s72, {s(sID)}, {s(sW)}")
                a(f"s_add_u32 s72, s72, {(self.njit * 2654435761 + seed * 40503) & 0xffff}")
                a(f"s_mul_i32 s72, s72, 0x9e3779b1")
                a(f"s_lshr_b32 s73, s72, 15")
                a(f"s_xor_b32 s72, s72, s73")
                a(f"s_mul_i32 s72, s72, 0x85ebca6b")
                a(f"s_lshr_b32 s73, s72, 20")
                a(f"s_lshr_b32 s72, s72, 8")
                a(f"s_and_b32 s72, s72, s73")
                a(f"s_and_b32 s72, s72, {mask}")
                a.label(l)
                a("s_sleep 2")
                a("s_sub_u32 s72, s72, 1")
                a(f"s_cbranch_scc0 {l}")
        if name in self.cfg["pfine"]:
            self.a(f"s_memtime {s(84 + 2 * list(self.cfg['pfine']).index(name), 2)}")
        if name in self.cfg["fine"]:
            self.a(f"s_memtime {s(FINE[list(self.cfg['fine']).index(name)], 2)}")

    def dump(self, point, l, regs, tmp):
        if self.cfg["dump"] != (point, l):
            return
        a = self.a
        with self.uncounted():
            a("s_waitcnt vmcnt(0) lgkmcnt(0)")
            a("s_nop 15")
            a(f"v_lshrrev_b32 {v(tmp)}, 2, {v(vL16)}")
            a(f"s_mul_i32 {s(sT0)}, {s(sGW)}, {64 * 256}")
            a(f"s_add_u32 {s(sT0)}, {s(sT0)}, {DBG}")
            for i, r in enumerate(regs):
                a(f"buffer_store_dword {v(r)}, {v(tmp)}, {s(sWS, 4)}, {s(sT0)} offen")
                a(f"s_add_u32 {s(sT0)}, {s(sT0)}, 256")
            a("s_waitcnt vmcnt(0)")

    def poll(self, voff, soff, tmp, tag=sTG):
        a = self.a
        l = a.newlabel("poll")
        a.label(l)
        a(f"buffer_load_dword {v(tmp)}, {v(voff)}, {s(sWS, 4)}, {s(soff)} offen sc1")
        self.countdown()
        a.wait(vm=0)
        a(f"v_cmp_ne_u32 vcc, {s(tag)}, {v(tmp)}")
        a(f"s_cbranch_vccnz {l}")

    def flag(self, soff, tmp, after=0):
        a = self.a
        a("s_mov_b64 exec, 1")
        self.moded(a.wait_text(vm=after) + [f"buffer_store_dword {v(tmp)}, off, {s(sWS, 4)}, {s(soff)}"])
        a("s_mov_b64 exec, -1")

    def w_voff(self, t):
        a = self.a
        a(f"v_lshrrev_b32 {v(t)}, 6, {v(vL16)}")
        a(f"v_mul_u32_u24 {v(t)}, {3072 - 64}, {v(t)}")
        a(f"v_add_u32 {v(t)}, {v(t)}, {v(vL16)}")

    def ld_wkv(self, T, i, t, st=sT0):
        a = self.a
        if self.cfg["x_lin"] & (1 << T):
            a(f"s_lshl2_add_u32 {s(st)}, {s(sC)}, {s(sW)}")
            a(f"s_lshl_b32 {s(st)}, {s(st)}, 10")
            a(f"s_add_u32 {s(st)}, {s(st)}, {i * 65536}")
            a(f"buffer_load_dwordx4 {ar(A_WKV[T] + 4 * i, 4)}, {v(vL16)}, {s(sSW[T], 4)}, {s(st)} offen", vm=f"wkv{i}")
            return
        if self.cfg["rot"]:
            a(f"s_xor_b32 {s(st)}, {s(sROT)}, {i}")
            a(f"s_mul_i32 {s(st)}, {s(st)}, {32 * 3072}")
            a(f"s_add_u32 {s(st)}, {s(st)}, {s(sWOFF)}")
        else:
            a(f"s_add_u32 {s(st)}, {s(sWOFF)}, {i * 32 * 3072}")
        a(f"buffer_load_dwordx4 {ar(A_WKV[T] + 4 * i, 4)}, {v(t)}, {s(sSW[T], 4)}, {s(st)} offen", vm=f"wkv{i}")

    def ld_wq(self, T, i):
        a = self.a
        if self.cfg["x_lin"] & 4:
            a(f"s_add_u32 m0, {s(sW13)}, {L_WQ[T] + i * 1024}")
            a(f"s_lshl2_add_u32 {s(sT0)}, {s(sC)}, {s(sW)}")
            a(f"s_lshl_b32 {s(sT0)}, {s(sT0)}, 10")
            a(f"s_add_u32 {s(sT0)}, {s(sT0)}, {(16 + i) * 65536}")
            a(f"buffer_load_dwordx4 {v(vL16)}, {s(sSW[T], 4)}, {s(sT0)} offen lds", vm="wq")
            return
        if self.cfg["rotq"]:
            a(f"s_xor_b32 m0, {s(sWQM)}, {L_WQ[T] + i * 1024}")
        else:
            a(f"s_add_u32 m0, {s(sW13)}, {L_WQ[T] + i * 1024}")
        if self.cfg["rot"]:
            a(f"s_xor_b32 {s(sT0)}, {s(sQOFF)}, {i}")
            a(f"s_mul_i32 {s(sT0)}, {s(sT0)}, {16 * 48}")
            a(f"s_add_u32 {s(sT0)}, {s(sT0)}, {s(sC)}")
            a(f"s_lshl_b32 {s(sT0)}, {s(sT0)}, 6")
        else:
            a(f"s_add_u32 {s(sT0)}, {s(sQOFF)}, {i * 16 * 3072}")
        a(f"buffer_load_dwordx4 {v(self.bw)}, {s(sSW[T], 4)}, {s(sT0)} offen lds", vm="wq")

    def ld_wo(self, T, i):
        a = self.a
        a(f"s_xor_b32 {s(sT0)}, {s(sOOFF)}, {i * 32 * 1024}")
        a(f"buffer_load_dwordx4 {ar(A_WO[T] + 4 * i, 4)}, {v(vBO)}, {s(sSO[T], 4)}, {s(sT0)} offen", vm=f"wo{i}")

    def slow_pf(self, srd, n, t):
        a = self.a
        if not self.cfg["slowpf"]:
            return
        a(f"s_sub_u32 {s(sT0)}, 0x180, {s(srd)}")
        a(f"s_and_b32 {s(sT0)}, {s(sT0)}, 0x380")
        a(f"s_mul_i32 {s(sT1)}, {s(sPF)}, {n * 1024}")
        a(f"s_add_u32 {s(sT0)}, {s(sT0)}, {s(sT1)}")
        a(f"v_lshlrev_b32 {v(t)}, 6, {v(vL16)}")
        a(f"s_mov_b64 exec, {(1 << n) - 1:#x}")
        a(f"buffer_load_dword {v(t)}, {v(t)}, {s(srd, 4)}, {s(sT0)} offen")
        a("s_mov_b64 exec, -1")

    def chip_pf(self, srd, n, t):
        a = self.a
        a(f"s_lshl2_add_u32 {s(sT0)}, {s(sID)}, {s(sW)}")
        a(f"s_mul_i32 {s(sT0)}, {s(sT0)}, {n * 128}")
        a(f"v_lshlrev_b32 {v(t)}, 3, {v(vL16)}")
        a(f"s_mov_b64 exec, {(1 << n) - 1:#x}")
        a(f"buffer_load_dword a255, {v(t)}, {s(srd, 4)}, {s(sT0)} offen")
        a("s_mov_b64 exec, -1")

    def bg_setup(self, T):
        self.bg = [(lambda i=i: self.ld_wq(T, i)) for i in range(8)] + [(lambda i=i: self.ld_wo(T, i)) for i in range(16)]
        if T == 0:
            self.bg += [(lambda i=i: self.ld_wkv(1, i, vBW) if self.cfg["x_nofirst"] < 2 else None) for i in range(16)]
            old2 = self.bg[self.cfg["xr_at"]]

            def xr():
                a = self.a
                assert self.bw == vBW
                self.srd_tmp(sPX, 0x200000)
                a(f"s_add_u32 {s(sT0)}, {s(sFIN)}, 8192")
                for i in range(2):
                    a(f"buffer_load_dwordx4 {v(XR + 4 * i, 4)}, {v(vBO)}, {s(sTMP, 4)}, {s((sFIN, sT0)[i])} offen", vm="xr")
                old2()
            self.bg[self.cfg["xr_at"]] = xr
            at, which = self.cfg["latepf"]
            old = self.bg[at]

            def both():
                t = RG + 23 if self.bw == vBW else PK + 8
                for c_ in which:
                    self.chip_pf(*{"a": (sSW[0], 12), "b": (sSW[1], 12), "A": (sSO[0], 4), "B": (sSO[1], 4)}[c_], t)
                old()
            self.bg[at] = both

    def put_wkv(self, T, lo, hi, waits=False):
        if self.cfg["x_nofirst"] >= 2:
            T = 0
        for i in range(lo, hi):
            if self.cfg["x_noput"] & 1 and getattr(self, "cur", 0) and self.cur > 0.5:
                continue
            if waits:
                self.a.wait(vm=f"wkv{i}")
            self.a(f"ds_write_b128 {v(vWKW)}, {ar(A_WKV[T] + 4 * i, 4)} offset:{i * 2048}", lg="put")

    def put_wo(self, T, i):
        if self.cfg["x_nofirst"]:
            T = 0
        if self.cfg["x_noput"] & 2 and self.cur > 0 and i >= self.cfg["np"]:
            return
        self.a(f"ds_write_b128 {v(vWOW)}, {ar(A_WO[T] + 4 * i, 4)} offset:{i * 1024}", lg="putwo")

    def woff(self, j, u):
        if self.lay == 0:
            return j * 1024 + u * 256
        return (j >> 2) * 4096 + u * 1024 + (j & 3) * 256

    def cs_kv_step(self, T, i, sel, d):
        if self.cfg["x_nofirst"] >= 2:
            T = 0
        return (f"v_mfma_f32_16x16x32_bf16 {v(d, 4)}, {v(sel, 4)}, {ar(A_WKV[T] + 4 * i, 4)}, {v(d, 4) if i else 0}")

    def cs_q_fin(self, T, d, t):
        o = [f"s_lshl_b32 {s(sT2)}, {s(sW)}, 2\ns_add_u32 {s(sT2)}, {s(sT2)}, {L_CSP + T * 1536 + 1024}",
             f"v_lshrrev_b32 {v(t)}, 9, {v(vL16)}\nv_lshl_add_u32 {v(t)}, {v(t)}, 5, {s(sT2)}"]
        for bit, sh in ((4, 8), (8, 7), (5, 6)):
            o.append(f"v_bfe_u32 {v(t + 1)}, {v(vL16)}, {bit}, 1\nv_lshl_add_u32 {v(t)}, {v(t + 1)}, {sh}, {v(t)}")
        f = [f"v_permlane32_swap_b32 {v(d)}, {v(d + 2)}", f"v_permlane32_swap_b32 {v(d + 1)}, {v(d + 3)}",
             f"v_add_f32 {v(d)}, {v(d)}, {v(d + 2)}\nv_add_f32 {v(d + 1)}, {v(d + 1)}, {v(d + 3)}"]
        for ror in (4, 8):
            f.append(f"v_add_f32 {v(d)}, {v(d)}, {v(d)} row_ror:{ror}\nv_add_f32 {v(d + 1)}, {v(d + 1)}, {v(d + 1)} row_ror:{ror}")
        f.append(lambda: self.a(f"ds_write2_b32 {v(t)}, {v(d)}, {v(d + 1)} offset0:0 offset1:4", lg="csw"))
        return o, f

    def cs_kv_fin(self, T, d, t):
        o = [f"s_and_b32 {s(sT2)}, {s(sW)}, 1",
             f"s_lshl_b32 {s(sT2)}, {s(sT2)}, 9",
             f"s_and_b32 {s(sT1)}, {s(sW)}, 2",
             f"s_lshl2_add_u32 {s(sT2)}, {s(sT1)}, {s(sT2)}",
             f"s_add_u32 {s(sT2)}, {s(sT2)}, {L_CSP + T * 1536}",
             f"v_lshrrev_b32 {v(t)}, 9, {v(vL16)}",
             f"v_lshl_add_u32 {v(t)}, {v(t)}, 2, {s(sT2)}"]
        for bit, sh in ((4, 8), (8, 7), (5, 6)):
            o += [f"v_bfe_u32 {v(t + 1)}, {v(vL16)}, {bit}, 1", f"v_lshl_add_u32 {v(t)}, {v(t + 1)}, {sh}, {v(t)}"]
        f = [f"v_add_f32 {v(d + i)}, {v(d + i)}, {v(d + i)} row_ror:{ror}" for ror in (4, 8) for i in range(4)]
        f += [f"ds_write2_b32 {v(t)}, {v(d)}, {v(d + 1)} offset0:0 offset1:4", f"ds_write2_b32 {v(t)}, {v(d + 2)}, {v(d + 3)} offset0:8 offset1:12"]
        return o, f

    def epoch(self, t):
        a = self.a
        l, b = a.newlabel("ep"), a.newlabel("epb")
        a(f"s_cmp_eq_u32 {s(sGW)}, 3")
        a(f"s_cbranch_scc1 {l}")
        a.label(b)
        n0 = len(a.ins)
        with self.uncounted():
            a.label(l)
            a(f"s_add_u32 {s(sEP)}, {s(sEP)}, 1")
            a(f"v_mov_b32 {v(t)}, {s(sEP)}")
            a("s_mov_b64 exec, 1")
            a(f"buffer_store_dword {v(t)}, off, {s(sWS, 4)}, 0{self.cfg['ep_flag']}")
            a("s_mov_b64 exec, -1")
            a(f"s_branch {b}")
        blk = a.ins[n0:]
        del a.ins[n0:]
        i = a.ins.index(self.nook)
        a.ins[i:i] = blk

    def hello(self, d, t):
        a = self.a
        with self.only_if(f"s_cmp_lt_u32 {s(sW)}, 2"):
            a(f"s_or_b32 {s(sT1)}, {s(sTAG)}, 0xf0")
            a(f"v_mov_b32 {v(d)}, {s(sT1)}")
            a(f"v_lshrrev_b32 {v(t)}, 2, {v(vL16)}")
            a(f"s_lshl_b32 {s(sT0)}, {s(sR)}, 7")
            a(f"s_add_u32 {s(sT0)}, {s(sT0)}, {s(sHEL)}")
            a("s_mov_b32 exec_hi, 0")
            a(f"buffer_store_dword {v(d)}, {v(t)}, {s(sWS, 4)}, {s(sT0)} offen sc1")
            a("s_mov_b32 exec_hi, -1")

    def mark_slot(self, delta, ones):
        a = self.a
        a(f"s_add_u32 {s(sT2)}, {s(sKVT)}, {delta}")
        a(f"s_mov_b64 exec, {s(sROW, 2)}")
        a(f"buffer_store_dwordx4 {v(ones, 4)}, {v(vPST)}, {s(sWS, 4)}, {s(sT2)} offen sc1", vm="mark")
        a(f"s_mov_b64 exec, {s(sCOL, 2)}")
        a(f"buffer_store_dwordx4 {v(ones, 4)}, {v(vZST)}, {s(sWS, 4)}, {s(sT2)} offen sc1", vm="mark")
        a("s_mov_b64 exec, -1")

    def sel_read(self, sel):
        a = self.a
        a(f"v_and_b32 {v(sel)}, 0x1f0, {v(vL16)}")
        a(f"v_add_u32 {v(sel)}, {L_SEL:#x}, {v(sel)}")
        a(f"ds_read_b128 {v(sel, 4)}, {v(sel)}", lg="sel")

    @staticmethod
    def cs_pack(src, dst):
        return [
            f"v_add_f32 {v(src)}, {v(src)}, {v(src + 2)}",
            f"v_add_f32 {v(src + 1)}, {v(src + 1)}, {v(src + 3)}",
            f"v_add_f32 {v(src)}, {v(src)}, {v(src + 1)}",
            f"v_cvt_pk_bf16_f32 {v(src + 1)}, {v(src)}, {v(src)}",
            f"v_and_b32 {v(src + 1)}, 0xffff0000, {v(src + 1)}",
            f"v_sub_f32 {v(src)}, {v(src)}, {v(src + 1)}",
            f"v_cvt_pk_bf16_f32 {v(dst)}, {v(src + 1)}, {v(src)}",
        ]

    def x_steps(self, B, src, X, wt=False, par=0):
        a = self.a
        t = X + 8
        st = []
        E = lambda txt: st.append(lambda: a(txt))
        xl = []
        for h in range(2):
            xl += [f"v_cvt_pk_bf16_f32 {v(X + i)}, {v(src + 2 * i)}, {v(src + 2 * i + 1)}" for i in range(4 * h, 4 * h + 4)]
            xl += [f"buffer_store_dwordx4 {v(X + 4 * h, 4)}, {v(vXST)}, {s(XS[B], 4)}, {s(sXST)} offen offset:{h * 512}"]
        if not self.cfg["ssplit"] & 2:
            xl.sort(key=lambda t_: t_.startswith("buffer"))
        st.append(lambda: self.moded(xl, tag="xst", wt=wt))
        E(f"v_pk_add_f32 {v(t, 2)}, {v(src, 2)}, {v(src + 2, 2)}")
        E(f"v_pk_mul_f32 {v(t + 2, 2)}, {v(src, 2)}, {v(src, 2)}")
        E(f"v_pk_fma_f32 {v(t + 2, 2)}, {v(src + 2, 2)}, {v(src + 2, 2)}, {v(t + 2, 2)}")
        for i in range(2, 8):
            E(f"v_pk_add_f32 {v(t, 2)}, {v(t, 2)}, {v(src + 2 * i, 2)}")
            E(f"v_pk_fma_f32 {v(t + 2, 2)}, {v(src + 2 * i, 2)}, {v(src + 2 * i, 2)}, {v(t + 2, 2)}")
        E(f"v_add_f32 {v(t)}, {v(t)}, {v(t + 1)}")
        E(f"v_add_f32 {v(t + 2)}, {v(t + 2)}, {v(t + 3)}")
        E(f"v_permlane32_swap_b32 {v(t)}, {v(t + 2)}")
        E(f"v_add_f32 {v(t)}, {v(t)}, {v(t + 2)}")
        E(f"v_mov_b32 {v(t + 1)}, {v(t)}")

        def stat():
            self.moded([f"v_permlane16_swap_b32 {v(t)}, {v(t + 1)}", f"s_mov_b64 exec, {s(sROW, 2)}", f"v_add_f32 {v(t)}, {v(t)}, {v(t + 1)}",
                        f"v_or_b32 {v(t)}, 1, {v(t)}" if par else f"v_and_b32 {v(t)}, -2, {v(t)}",
                        f"buffer_store_dword {v(t)}, {v(vSST)}, {s(sWS, 4)}, {s(sSTST)} offen"], tag="sst")
            a("s_mov_b64 exec, -1")
        st.append(stat)
        return st

    def ldx(self, B, j):
        a = self.a
        if self.cfg["x_h"] & 1 and self.lay and j in (29, 30):
            return
        if j % 4 == 0 and j:
            a(f"s_xor_b32 {s(sT3)}, {s(sXLD)}, {j * 1024}")
        a(f"buffer_load_dwordx4 {v(XF + 4 * j, 4)}, {v(vL16)}, {s(XS[B], 4)}, {s(sT3 if j >= 4 else sXLD)} offen offset:{(j % 4) * 1024} sc1", vm=f"x{j}")

    def probe(self, what, reg, setexec=True):
        a = self.a
        voff, srd, soff, off, _ = what
        if setexec:
            a("s_mov_b64 exec, 0xffff")
        a(f"buffer_load_dword {v(reg)}, {v(voff)}, {s(srd, 4)}, {s(soff)} offen offset:{off} sc1", vm="probe")
        if setexec:
            a("s_mov_b64 exec, -1")

    def spin_more(self, what, name):
        a = self.a
        a(f"s_branch L_over{name}")
        a.label(f"L_more{name}")
        with self.uncounted():
            self.probe(what, vPR, False)
            self.countdown()
            a("s_waitcnt vmcnt(1)")
            a(f"{what[4]}, {v(vPB)}")
            a(f"s_cbranch_vccz L_go{name}")
            a(f"s_branch L_spin{name}")
        a.label(f"L_over{name}")
        self.nook = a.ins[-1]

    def spin(self, what, name):
        a = self.a
        a("s_mov_b64 exec, 0xffff")
        a.label(f"L_spin{name}")
        self.probe(what, vPB, False)
        a("s_waitcnt vmcnt(1)")
        a(f"{what[4]}, {v(vPR)}")
        a(f"s_cbranch_vccnz L_more{name}")
        a.label(f"L_go{name}")
        a("s_mov_b64 exec, -1")
        a.vm.clear()

    def what_x(self, l):
        if self.cfg["hx"][l] == "s":
            return (vPA, XS[self.xb[l]], sT3, 3824, "v_cmp_eq_u32 vcc, -1")
        return (vPOLL, sWS, sFXP, 0, f"v_cmp_ne_u32 vcc, {s(sTG)}")

    def what_o(self, l):
        if self.cfg["ho"][l] == "s":
            return (vPA, sWS, sT3, 1008, "v_cmp_eq_u32 vcc, -1")
        return (vPOLL, sWS, sFOP, 0, f"v_cmp_ne_u32 vcc, {s(sTG)}")

    def x_probe_addr(self):
        return [f"v_and_b32 {v(vPR)}, 4, {v(vPOLL)}",
                f"v_mul_u32_u24 {v(vPR)}, 448, {v(vPR)}",
                f"v_lshlrev_b32 {v(vPA)}, 9, {v(vPOLL)}",
                f"v_sub_u32 {v(vPA)}, {v(vPA)}, {v(vPR)}"]

    def phi_a(self, acc, tmp, after=None):
        a = self.ticker()
        if self.lay == 0:
            for i in range(8):
                a(f"v_cvt_pk_bf16_f32 {v(PK + i)}, {v(acc + 2 * i)}, {v(acc + 2 * i + 1)}")
            for i in range(8):
                a(f"v_lshlrev_b32 {v(acc + 2 * i)}, 16, {v(PK + i)}")
                a(f"v_and_b32 {v(acc + 2 * i + 1)}, 0xffff0000, {v(PK + i)}")
            for i in range(8):
                a(f"v_pk_mul_f32 {v(tmp + 2 * i, 2)}, {v(acc + 2 * i, 2)}, {v(vS, 2)} op_sel_hi:[1,0]")
            for i in range(16):
                a(f"v_exp_f32_e64 {v(tmp + i)}, {v(tmp + i)} clamp")
                a(f"v_max_f32 {v(acc + i)}, {s(sDELTA)}, {v(acc + i)}")
            for h in range(2):
                for i in range(4 * h, 4 * h + 4):
                    a(f"v_pk_add_f32 {v(acc + 2 * i, 2)}, {v(acc + 2 * i, 2)}, {v(tmp + 2 * i, 2)}")
                for i in range(4 * h, 4 * h + 4):
                    a(f"v_cvt_pk_bf16_f32 {v(PK + i)}, {v(acc + 2 * i)}, {v(acc + 2 * i + 1)}")
                if after:
                    after(h)
            return
        for i in range(8):
            a(f"v_pk_mul_f32 {v(acc + 2 * i, 2)}, {v(acc + 2 * i, 2)}, {v(vS, 2)} op_sel_hi:[1,0]")
        for i in range(16):
            a(f"v_exp_f32_e64 {v(tmp + i)}, {v(acc + i)} clamp")
            a(f"v_max_f32 {v(acc + i)}, {s(sDELTA)}, {v(acc + i)}")
        for h in range(2):
            for i in range(4 * h, 4 * h + 4):
                a(f"v_pk_fma_f32 {v(acc + 2 * i, 2)}, {v(acc + 2 * i, 2)}, {s(sLN2, 2)}, {v(tmp + 2 * i, 2)}")
            for i in range(4 * h, 4 * h + 4):
                a(f"v_cvt_pk_bf16_f32 {v(PK + i)}, {v(acc + 2 * i)}, {v(acc + 2 * i + 1)}")
            if after:
                after(h)

    def logits(self, between=None):
        a = self.a
        a.wait(lg="wp")
        for i in range(6):
            a(f"v_cvt_pk_bf16_f32 {v(PK + i)}, {v(AK + 2 * i)}, {v(AK + 2 * i + 1)}")
        a(f"v_mfma_f32_32x32x16_bf16 {v(LG, 16)}, {v(PK + 8, 4)}, {v(PK, 4)}, 0")
        for i in range(6, 8):
            a(f"v_cvt_pk_bf16_f32 {v(PK + i)}, {v(AK + 2 * i)}, {v(AK + 2 * i + 1)}")
        if between:
            between()
        a(f"v_mfma_f32_32x32x16_bf16 {v(LG, 16)}, {v(PK + 12, 4)}, {v(PK + 4, 4)}, {v(LG, 16)}")

    def softmax2(self, t, isq, after=None):
        a = self.ticker()
        a(f"v_max3_f32 {v(t)}, {v(LG)}, {v(LG + 1)}, {v(LG + 2)}")
        a(f"v_min3_f32 {v(t + 1)}, {v(LG)}, {v(LG + 1)}, {v(LG + 2)}")
        for i in range(3, 15, 2):
            a(f"v_max3_f32 {v(t)}, {v(t)}, {v(LG + i)}, {v(LG + i + 1)}")
            a(f"v_min3_f32 {v(t + 1)}, {v(t + 1)}, {v(LG + i)}, {v(LG + i + 1)}")
        a(f"v_max_f32 {v(t)}, {v(t)}, {v(LG + 15)}")
        a(f"v_min_f32 {v(t + 1)}, {v(t + 1)}, {v(LG + 15)}")
        a(f"v_pk_mul_f32 {v(t, 2)}, {v(t, 2)}, {v(vS, 2)} op_sel_hi:[1,0]")
        for sg, E in ((0, AK), (1, LG)):
            for i in range(8):
                if sg == 0:
                    a(f"v_pk_fma_f32 {v(E + 2 * i, 2)}, {v(LG + 2 * i, 2)}, {v(vS, 2)}, {v(t, 2)} op_sel_hi:[1,0,0] neg_lo:[0,0,1] neg_hi:[0,0,1]")
                else:
                    a(f"v_pk_fma_f32 {v(E + 2 * i, 2)}, {v(LG + 2 * i, 2)}, {v(vS, 2)}, {v(t, 2)} op_sel:[0,0,1] op_sel_hi:[1,0,1] neg_lo:[1,0,0] neg_hi:[1,0,0]")
            for i in range(16):
                a(f"v_exp_f32 {v(E + i)}, {v(E + i)}")
            if self.cfg["x_h"] & 2 and not isq:
                a("s_nop 12")
            S = t + 2 + 2 * sg
            a(f"v_pk_add_f32 {v(S, 2)}, {v(E, 2)}, {v(E + 2, 2)}")
            for i in range(2, 8):
                a(f"v_pk_add_f32 {v(S, 2)}, {v(S, 2)}, {v(E + 2 * i, 2)}")
            a(f"v_add_f32 {v(S)}, {v(S)}, {v(S + 1)}")
            if not (isq and sg == 0):
                a(f"v_rcp_f32 {v(S)}, {v(S)}")
                if isq:
                    a(f"v_mul_f32 {v(t + 6)}, {f2u(1e-6):#x}, {v(t + 2)}")
                    a(f"v_mul_f32 {v(S)}, {v(S)}, {v(t + 2)}")
            for h in range(2):
                for i in range(4 * h, 4 * h + 4):
                    if not (isq and sg == 0):
                        a(f"v_pk_mul_f32 {v(E + 2 * i, 2)}, {v(E + 2 * i, 2)}, {v(S, 2)} op_sel_hi:[1,0]")
                for i in range(4 * h, 4 * h + 4):
                    a(f"v_cvt_pk_bf16_f32 {v(PK + 8 * sg + i)}, {v(E + 2 * i)}, {v(E + 2 * i + 1)}")
                if after:
                    after(2 * sg + h)

    def layer(self, l):
        a, cfg = self.a, self.cfg
        T, first, last = l & 1, l < 2, l == 3
        if cfg["x_nofirst"] and l == 1:
            first = False
        self.lay = l
        NJ = 2 if T == 0 else 4
        skip23 = (lambda: self.only_if(f"s_cmp_lt_u32 {s(sW)}, 2")) if T == 0 else contextlib.nullcontext
        bgn = cfg["bg"][l] if first else (0,) * 7
        self.bg = []
        if first:
            self.bg_setup(T)
            assert sum(bgn) >= len(self.bg) and bgn[0] + bgn[1] >= 8 and sum(bgn[:3]) >= 8 + cfg['np'] and sum(bgn[:5]) >= 24 and bgn[0] <= 8 and bgn[6] <= 8
        NX = cfg["nx0"]
        SA, FP = cfg["st_at"], cfg["fper"] if l else 2
        wx = (vPOLL, sWS, sFXP, 0, f"v_cmp_ne_u32 vcc, {s(sTG)}")
        wo_ = (vPOLL, sWS, sFOP, 0, f"v_cmp_ne_u32 vcc, {s(sTG)}")
        a.label(f"L_layer{l}")
        if l:
            self.spin(wx, f"x{l}")
        a.vm.clear()
        self.ts(f"{l}:xpoll")
        ST = LG
        CS = LG + 8
        CSA, MB = PK, PK + 2
        D = 3

        def rd(j, p):
            for u in range(2):
                a(f"ds_read_b64_tr_b16 {v(RG + (j % D) * 8 + 4 * p + 2 * u, 2)}, {v(vWRD)} offset:{p * 32768 + self.woff(j, u)}", lg=f"w{j}")

        def ldx(j):
            self.ldx(0, j)
            if l == 0:
                return
            if j == SA:
                a(f"buffer_load_dwordx4 {v(ST, 4)}, {v(vSLD)}, {s(sWS, 4)}, {s(sSTLD)} offen sc1", vm="st")
            if j == SA + 2 and cfg["x_st"]:
                for i_ in range(4):
                    a(f"v_mov_b32 {v(ST + 4 + i_)}, {T}")
            elif j == SA + 2:
                a(f"buffer_load_dwordx4 {v(ST + 4, 4)}, {v(vSLD)}, {s(sWS, 4)}, {s(sSTLD)} offen offset:512 sc1", vm="st")
        nx1 = cfg["nx1"]
        for j in range(nx1):
            ldx(j)
        for i in self.puts_left:
            self.put_wkv(T, i, i + 1)
            if nx1 < NX and cfg["xmix"]:
                ldx(nx1)
                nx1 += 1
        a.wait(lg=0)
        a("s_barrier")
        self.cur = l
        self.ts(f"{l}:bar1")
        pre = [(j, p) for j in range(D) for p in range(2)]
        for j in range(nx1, NX):
            for _ in range(2):
                if pre:
                    rd(*pre.pop(0))
            ldx(j)
        while pre:
            rd(*pre.pop(0))
        if l:
            a(f"ds_read_b128 {v(CS, 4)}, {v(vCSR)} offset:{T * 1536}", lg="cs")
            a(f"ds_read_b128 {v(CS + 4, 4)}, {v(vCSR)} offset:{T * 1536 + 512}", lg="cs")
        t, u_ = ST, ST + 1
        stat = []
        if l > 1 and cfg["spar"]:
            CK = PK + 6
            op = "0x80" if T else "0xfe"
            stat = [f"L_sums{l}:\nv_bitop3_b32 {v(CK)}, {v(ST)}, {v(ST + 1)}, {v(ST + 2)} bitop3:{op}",
                    f"v_bitop3_b32 {v(CK)}, {v(CK)}, {v(ST + 3)}, {v(ST + 4)} bitop3:{op}\n"
                    f"v_bitop3_b32 {v(CK)}, {v(CK)}, {v(ST + 5)}, {v(ST + 6)} bitop3:{op}\n"
                    f"v_bitop3_b32 {v(CK)}, {v(CK)}, {v(ST + 7)}, 1 bitop3:{'0x80' if T else '0xa8'}\n"
                    f"v_cmp_ne_u32 vcc, {T}, {v(CK)}\n"
                    f"s_cbranch_vccnz L_sumsre{l}"]
            stat = [None, stat[0] + "\n" + stat[1]]
            with self.outofline():
                a.label(f"L_sumsre{l}")
                self.countdown()
                if cfg["ts"]:
                    a(f"s_add_u32 {s(sLAY)}, {s(sLAY)}, 1")
                for i in range(2):
                    a(f"buffer_load_dwordx4 {v(ST + 4 * i, 4)}, {v(vSLD)}, {s(sWS, 4)}, {s(sSTLD)} offen offset:{512 * i} sc1")
                a("s_waitcnt vmcnt(0)")
                a(f"s_branch L_sums{l}")
        stat += [
            f"v_add_f32 {v(ST)}, {v(ST)}, {v(ST + 2)}",
            f"v_add_f32 {v(ST + 1)}, {v(ST + 1)}, {v(ST + 3)}",
            f"v_add_f32 {v(ST + 4)}, {v(ST + 4)}, {v(ST + 6)}",
            f"v_add_f32 {v(ST + 5)}, {v(ST + 5)}, {v(ST + 7)}",
            f"v_add_f32 {v(ST)}, {v(ST)}, {v(ST + 4)}",
            f"v_add_f32 {v(ST + 1)}, {v(ST + 1)}, {v(ST + 5)}",
            f"v_add_f32 {v(t)}, {v(ST)}, {v(ST + 1)}",
            f"v_mul_f32 {v(t)}, {f2u(1 / 512):#x}, {v(t)}",
            f"v_mov_b32 {v(u_)}, {v(t)}",
            f"v_permlane32_swap_b32 {v(t)}, {v(u_)}",
            f"v_fma_f32 {v(u_)}, -{v(t)}, {v(t)}, {v(u_)}",
            f"v_max_f32 {v(u_)}, 0, {v(u_)}",
            f"v_cvt_pk_bf16_f32 {v(vM)}, -{v(t)}, -{v(t)}",
            f"v_cvt_pk_bf16_f32 {v(u_)}, {v(u_)}, {v(u_)}",
            f"v_and_b32 {v(u_)}, 0xffff0000, {v(u_)}",
            f"v_add_f32 {v(u_)}, {f2u(1e-5):#x}, {v(u_)}",
            f"v_cvt_pk_bf16_f32 {v(u_)}, {v(u_)}, {v(u_)}",
            f"v_and_b32 {v(u_)}, 0xffff0000, {v(u_)}",
            f"v_sqrt_f32 {v(u_)}, {v(u_)}",
            f"v_cndmask_b32 {v(vM)}, {v(vM)}, 0, {s(sHI, 2)}",
            f"v_cvt_pk_bf16_f32 {v(u_)}, {v(u_)}, {v(u_)}",
            f"v_and_b32 {v(u_)}, 0xffff0000, {v(u_)}",
            f"v_rcp_f32 {v(vRS)}, {v(u_)}",
            f"v_mov_b32 {v(MB)}, {v(vM)}",
            f"v_mul_f32 {v(vS)}, {LOG2E:#x}, {v(vRS)}",
            f"v_mov_b32 {v(MB + 3)}, {v(vM)}",
        ]
        js = SA + 3
        fill = [f"v_mov_b32 {v(MB + 1)}, 0", f"v_mov_b32 {v(MB + 2)}, 0"]
        if l == 0:
            fill += [f"v_mov_b32 {v(PK + 12 + i)}, -1" for i in range(4)]
        fill += [None] * (FP * D - len(fill)) + self.cs_pack(CS, CSA) + self.cs_pack(CS + 4, CSA + 1)
        self.bw = CS + 2
        bwf = [f"v_lshrrev_b32 {v(self.bw)}, 6, {v(vL16)}", f"v_mul_u32_u24 {v(self.bw)}, {3072 - 64}, {v(self.bw)}",
               f"v_add_u32 {v(self.bw)}, {v(self.bw)}, {v(vL16)}"]
        if l == 0:
            fill += bwf
        fill += [None] * (FP * js - len(fill))
        fill += [None] * (-len(fill) % FP) + stat
        jc = -(-len(fill) // FP) + 1
        if l == 1:
            if jc + 2 <= 32 - NX:
                fill += bwf
            else:
                k_ = fill.index(None, FP * D + 14)
                assert fill[k_:k_ + 3] == [None] * 3
                fill[k_:k_ + 3] = bwf
        assert jc <= 31
        if l == 0:
            fill = fill[2:6] + fill[20:23] + [f"v_mov_b32 {v(vS)}, {LOG2E:#x}"]
            assert all(fill) and str(self.bw) in fill[4]
            self.sel_read(PK)
            addr, fin = self.cs_kv_fin(0, PK + 4, LG)
            for i in range(16):
                fill += [addr.pop(0) if addr else None, self.cs_kv_step(0, i, PK, PK + 4)]
            fill += [None] * 4 + fin
            jc = -1
        self.bg_region(bgn[0], NX)
        vfirst = T == 0 and cfg["trim"]
        for j in range(32):
            a.wait(vm=f"x{j}", lg=f"w{j}")
            self.fine(f"{l}:x{j}")
            if j == jc:
                a(f"v_mfma_f32_32x32x8_bf16 {v(AK, 16)}, {v(CSA, 2)}, {v(MB, 2)}, {v(AK, 16)}")
                a(f"v_mfma_f32_32x32x8_bf16 {v(AV, 16)}, {v(CSA, 2)}, {v(MB + 2, 2)}, {v(AV, 16)}")
            for p, acc in ((0, AK), (1, AV)):
                c = v(acc, 16) if j else "0"
                if j == 31 and vfirst:
                    a(f"v_mfma_f32_32x32x16_bf16 {v(AK + AV - acc, 16)}, {v(RG + (j % D) * 8 + 4 * (1 - p), 4)}, {v(XF + 4 * j, 4)}, {v(AK + AV - acc, 16)}")
                else:
                    a(f"v_mfma_f32_32x32x16_bf16 {v(acc, 16)}, {v(RG + (j % D) * 8 + 4 * p, 4)}, {v(XF + 4 * j, 4)}, {c}")
                if p == 0:
                    if j + NX < 32:
                        ldx(j + NX)
                    if l == 0 and j == cfg["mark1"]:
                        self.mark_slot(KVP[1] - KVP[0], PK + 12)
                    if l == 0 and j and j == cfg["oinit"][0]:
                        for i in range(2):
                            a(f"buffer_store_dwordx4 {v(PK + 12, 4)}, {v(vOST)}, {s(sWS, 4)}, {s(sOST)} offen offset:{256 * i} sc1", vm="oinit")
                    if l == 0 and cfg["otouch"] and j == cfg["otouch"]:
                        t_ = PK + 8
                        a(f"v_bfe_u32 {v(t_)}, {v(vL16)}, 7, 1")
                        a(f"v_mul_u32_u24 {v(t_)}, {(16384 - 1024) // 8}, {v(t_)}")
                        a(f"v_add_lshl_u32 {v(t_)}, {v(t_)}, {v(vL16)}, 3")
                        a("s_mov_b64 exec, 0xffff")
                        a(f"buffer_load_dword {v(RG + 23)}, {v(t_)}, {s(sWS, 4)}, {s(sOST)} offen sc1")
                        a("s_mov_b64 exec, -1")
                    if j + NX >= 32:
                        self.bg_tick()
                    if j == 31 and not first:
                        a("s_nop 5")
                    if first and j == 30:
                        a(f"v_mov_b32 {v(vBW)}, {v(self.bw)}")
                        a(f"v_lshrrev_b32 {v(vBO)}, 7, {v(vL16)}")
                        a(f"v_mul_u32_u24 {v(vBO)}, {1024 - 128}, {v(vBO)}")
                        a(f"v_add_u32 {v(vBO)}, {v(vBO)}, {v(vL16)}")
                if p and fill and fill[0] and fill[1:] and fill[1]:
                    a(fill[0]); fill[0] = None
                if j + D < 32:
                    rd(j + D, p)
                if T == 1 and j == 29:
                    a(f"ds_read_b128 {v(PK + 8 + 4 * p, 4)}, {v(vKFR)} offset:{L_WPF - L_KVF + KS * p}", lg="wp")
                for _ in range(FP if p else 0):
                    f_ = fill.pop(0) if fill else None
                    if f_:
                        a(f_)
        self.bw = vBW
        if l == 0 and cfg["hello_late"]:
            self.hello(PK + 8, PK + 9)
        if first:
            self.slow_pf(sSO[T], 4, RG + 23)
        self.ts(f"{l}:kvgemm")
        self.dump("kv", l, list(range(AK, AK + 32)) + [vS, vRS, vM], RG)

        def v_steps(e):
            st = []
            for h in range(2):
                for i in range(4 * h, 4 * h + 4):
                    if l == 0:
                        pass
                    elif (T == 0 and not vfirst) or (h and cfg["trim"]):
                        st.append(lambda i=i: e(f"v_pk_mul_f32 {v(AV + 2 * i, 2)}, {v(AV + 2 * i, 2)}, {v(vS, 2)} op_sel:[0,1]"))
                    else:
                        st.append(lambda i=i: e(f"v_mul_f32 {v(AV + 2 * i)}, {v(AV + 2 * i)}, {v(vRS)}"))
                        st.append(lambda i=i: e(f"v_mul_f32 {v(AV + 2 * i + 1)}, {v(AV + 2 * i + 1)}, {v(vRS)}"))
                for i in range(4 * h, 4 * h + 4):
                    st.append(lambda i=i: e(f"v_cvt_pk_bf16_f32 {v(AV + i)}, {v(AV + 2 * i)}, {v(AV + 2 * i + 1)}"))
                st.append(lambda h=h: a(f"ds_write_b128 {v(vSTW)}, {v(AV + 4 * h, 4)} offset:{0x4000 + 128 * h}"))
            return st

        def stage(k):
            a(f"ds_write_b128 {v(vSTW)}, {v(PK + 4 * k, 4)} offset:{(k >> 1) * 8192 + 128 * (k & 1)}")
        vst = v_steps(self.ticker())
        if T == 0:
            self.bg_region(bgn[1], 72)
            while vfirst and vst:
                vst.pop(0)()
            self.phi_a(AK, LG, stage)
            for st in vst:
                st()
        else:
            self.bg_region(bgn[1], 125)
            self.logits(lambda: [vst.pop(0)() for _ in range(4)])
            for st in vst:
                st()
            self.softmax2(RG, False, stage)
        self.dump("pk", l, list(range(PK, PK + 16)) + list(range(AV, AV + 8)), RG)
        ONE, DK, DZ, PB, QA = AK, AV + 8, AV + 12, AV + 4, AV + 3
        for i in range(4):
            a(f"v_mov_b32 {v(ONE + i)}, 0x3f803f80")
        D = 5 if first else 6

        def rq(j):
            for u in range(2 if first or j == 0 or j > cfg["x_qskip"] else 0):
                a(f"ds_read_b64_tr_b16 {v(RG + (j % D) * 4 + 2 * u, 2)}, {v(QA)} offset:{self.woff(j, u)}", lg=f"q{j}")
        a.wait(vm="mark", lg=0)
        a("s_barrier")
        self.ts(f"{l}:bar2")
        early = False
        w01 = (lambda k: self.waves01(((4, 5), (6, 9), (7, 8), (10, 11))[l + k])) if T == 0 else (lambda k: contextlib.nullcontext())
        with w01(0):
            def rp(st, k):
                for u in range(2):
                    a(f"ds_read_b64_tr_b16 {v((LG, PK)[k] + 4 * st + 2 * u, 2)}, {v((vSTR, vSTR2)[k])} offset:{st * 1024 + u * 512}", lg=f"p{st}")
            PD = cfg["pdepth"]
            for st in range(PD):
                rp(st, 0); rp(st, 1)
            for st in range(4):
                a.wait(lg=f"p{st}")
                mm = [f"v_mfma_f32_16x16x32_bf16 {v(DK, 4)}, {v(LG + 4 * st, 4)}, {v(PK + 4 * st, 4)}, {v(DK, 4) if st else 0}",
                      f"v_mfma_f32_16x16x32_bf16 {v(DZ, 4)}, {v(LG + 4 * st, 4)}, {v(ONE, 4)}, {v(DZ, 4) if st else 0}"]
                z1 = int(cfg["zst1"] or (cfg["trim"] and st == 3))
                a(mm[z1])
                if st + PD < 4:
                    rp(st + PD, 0)
                a(mm[1 - z1])
                if st + PD < 4:
                    rp(st + PD, 1)
            self.fine(f"{l}:p_mfma")
            if cfg["zst1"]:
                a(f"s_mov_b64 exec, {s(sCOL, 2)}")
                a(f"v_min_u32 {v(DZ)}, -2, {v(DZ)}")
                a(f"buffer_store_dwordx4 {v(DZ, 4)}, {v(vZST)}, {s(sWS, 4)}, {s(sKVT)} offen sc1")
                a("s_mov_b64 exec, -1")
            for i in range(2):
                a(f"v_cvt_pk_bf16_f32 {v(PB + i)}, {v(DK + 2 * i)}, {v(DK + 2 * i + 1)}")
            for i in range(2):
                a(f"v_cvt_pk_bf16_f32 {v(PB + 2 + i)}, {v(DK + 2 * i)}, {v(DK + 2 * i + 1)}")
            if not cfg["zst1"]:
                a(f"v_min_u32 {v(DZ)}, -2, {v(DZ)}")
            for i in range(2):
                a(f"v_permlane16_swap_b32 {v(PB + i)}, {v(PB + 2 + i)}")
            a(f"v_min_u32 {v(PB)}, -2, {v(PB)}")
            a(f"s_mov_b64 exec, {s(sROW, 2)}")
            a(f"buffer_store_dwordx4 {v(PB, 4)}, {v(vPST)}, {s(sWS, 4)}, {s(sKVT)} offen sc1")
            if not cfg["zst1"]:
                a(f"s_mov_b64 exec, {s(sCOL, 2)}")
                a(f"buffer_store_dwordx4 {v(DZ, 4)}, {v(vZST)}, {s(sWS, 4)}, {s(sKVT)} offen sc1")
            if T:
                a("s_mov_b64 exec, -1")
        if cfg["jit"] and l < 3:
            with self.only_if(f"s_cmp_eq_u32 {s(sW)}, 3"):
                self.code_pf(f"L_layer{l + 1}", f"L_layer{l + 2}" if l < 2 else "L_end", AV + 8)
        if l == 2 and cfg["ep_early"]:
            self.epoch(AV + 9)
        self.ts(f"{l}:publish")
        if l == 0:
            a(f"v_lshlrev_b32 {v(vHL)}, 5, {v(vPOLL)}")
            a(f"s_or_b32 {s(sTG)}, {s(sTAG)}, 0xf0")
            a(f"v_mov_b32 {v(AV + 9)}, {s(sTG)}")
            with skip23():
                a("s_mov_b64 exec, 0xffff")
                a(f"buffer_load_dword {v(AV + 9)}, {v(vHL)}, {s(sWS, 4)}, {s(sHEL)} offen sc1")
                a("s_mov_b64 exec, -1")
            self.slow_pf(sSW[1], 12, AV + 10)
            assert cfg["slowpf"]
            a.vm[-1] = "hl"
        if first:
            if T == 0:
                n = len(a.vm) - 1 - max(i for i, t_ in enumerate(a.vm) if t_ == "wq")
                with self.only_if(f"s_cmp_ge_u32 {s(sW)}, 2"):
                    a.wait(vm="wq")
                a(f"s_waitcnt vmcnt({n + 3})")
            else:
                a.wait(vm="wq")
            self.fine(f"{l}:wq")
            a("s_barrier")
            self.fine(f"{l}:barx")
        a(f"v_add_u32 {v(QA)}, {L_WQ[0 if cfg['x_nofirst'] else T]:#x}, {v(vWRD)}")
        CS, CSA, MB, M1 = LG + 4, LG + 8, LG + 10, LG + 12
        PL, SEL, DR = 0, 36, 40

        def partial_load(i):
            if not cfg["zlast"]:
                i = (i + 8) % 9
            a(f"s_add_u32 {s(sT1)}, {s(sKVT)}, {i * 65536}")
            a(f"buffer_load_dwordx4 {v(PL + 4 * i, 4)}, {v(vL16)}, {s(sWS, 4)}, {s(sT1)} offen sc1", vm="pl")
        if not early:
            for j in range(D):
                rq(j)
        cs_read = lambda: a(f"ds_read_b128 {v(CS, 4)}, {v(vCSR)} offset:{(0 if cfg['x_nofirst'] else T) * 1536 + 1024}", lg="cs")
        fill = []
        if first:
            SQ, DQ, RQ, TQ = PK, PK + 4, PK + 8, LG
            self.sel_read(SQ)
            a(f"s_add_u32 {s(sT2)}, {s(sW13)}, {L_WQ[T]}")
            a(f"v_add_u32 {v(TQ + 2)}, {s(sT2)}, {v(vL16)}")
            rc = lambda i: a(f"ds_read_b128 {v(RQ + 4 * (i & 1), 4)}, {v(TQ + 2)} offset:{i * 1024}", lg=f"c{i}")
            rc(0); rc(1)
            addr, fin = self.cs_q_fin(T, DQ, TQ)

            def step(i):
                a.wait(lg=f"c{i}")
                a(f"v_mfma_f32_16x16x32_bf16 {v(DQ, 4)}, {v(SQ, 4)}, {v(RQ + 4 * (i & 1), 4)}, {v(DQ, 4) if i else 0}")
                if i + 2 < 8:
                    rc(i + 2)
                if addr:
                    a(addr.pop(0))

            def mark():
                if l == 1 and cfg["mark1"] == -2:
                    return
                with skip23():
                    self.mark_slot(KVP[l + 2] - KVP[l], M1)

            def sync():
                a.wait(lg="csw")
                a("s_barrier")
                cs_read()
            fill += [(lambda i=i: step(i)) for i in range(8)]
            fill += [f"v_mov_b32 {v(M1)}, -1\nv_mov_b32 {v(M1 + 1)}, -1\nv_mov_b32 {v(M1 + 2)}, -1\nv_mov_b32 {v(M1 + 3)}, -1", mark]
            fill += fin
            if l:
                fill += [None, None, sync, None, None, lambda: a.wait(lg="cs")]
        else:
            cs_read()
            fill += [None] * D
        pk = self.cs_pack(CS, CSA) + [f"v_mov_b32 {v(CSA + 1)}, 0", f"v_mov_b32 {v(MB)}, {v(vM)}", f"v_mov_b32 {v(MB + 1)}, 0"]
        if l:
            fill += [pk[i] + "\n" + pk[i + 1] for i in range(0, 10, 2)]
        jc = len(fill) + 1 if l else -1
        assert jc <= 31
        PS, PG = cfg["pl_step"][l], cfg["pl_gap"][l]
        assert PS >= 10
        G = 3 if T == 0 else 1

        def pl_group(k):
            with skip23():
                for i in range(G * k, G * k + G):
                    partial_load(i)
        pl_at = [PS + G * PG * k for k in range(9 // G)]
        if first:
            pl_at = [min(x, 31) for x in pl_at]
        self.bg_region(bgn[2], min(PS, 32))
        NP = cfg["np"]
        puts = list(range(NP))
        nq = 0 if first else min(NP, cfg["qputs"][T])
        put_at = [1 + (k * 30) // nq for k in range(nq)]
        if l == 1 and cfg["qp1"]:
            put_at = list(range(*cfg["qp1"]))
        for j in range(32):
            a.wait(lg=f"q{j}")
            if j == jc:
                a(f"v_mfma_f32_32x32x8_bf16 {v(AK, 16)}, {v(CSA, 2)}, {v(MB, 2)}, {v(AK, 16)}")
            if first or j == 0 or j > cfg["x_qskip"]:
                a(f"v_mfma_f32_32x32x16_bf16 {v(AK, 16)}, {v(RG + (j % D) * 4, 4)}, {v(XF + 4 * j, 4)}, {v(AK, 16) if j else 0}")
            self.bg_tick()
            if l == 0 and j == cfg["oinit"][1]:
                t_ = RG + 23
                a(f"v_bfe_u32 {v(t_)}, {v(vL16)}, 7, 1")
                a(f"v_mul_u32_u24 {v(t_)}, {(16384 - 1024) // 8}, {v(t_)}")
                a(f"v_add_lshl_u32 {v(t_)}, {v(t_)}, {v(vL16)}, 3")
                a("s_mov_b64 exec, 0xffff")
                a(f"buffer_load_dword a255, {v(t_)}, {s(sWS, 4)}, {s(sOST)} offen sc1")
                a("s_mov_b64 exec, -1")
            if l == 0 and j == pl_at[0] - 1:
                a.wait(vm="hl")
                a(f"v_cmp_ne_u32 vcc, {s(sTG)}, {v(AV + 9)}")
                a("s_cbranch_vccnz L_hello")
                a.label("L_hello_ok")
                with self.outofline():
                    a.label("L_hello")
                    self.poll(vHL, sHEL, AV + 9)
                    a("s_branch L_hello_ok")
            if j == cfg["ppf"][l]:
                assert l and j < pl_at[0]
                with skip23():
                    a(f"v_lshrrev_b32 {v(AV + 11)}, 7, {v(vL16)}")
                    a(f"v_mul_u32_u24 {v(AV + 11)}, {(65536 - 1024) // 8}, {v(AV + 11)}")
                    a(f"v_add_lshl_u32 {v(AV + 11)}, {v(AV + 11)}, {v(vL16)}, 3")
                    a(f"buffer_load_dword {v(AV + 11)}, {v(AV + 11)}, {s(sWS, 4)}, {s(sKVT)} offen sc1")
            for k, x in enumerate(pl_at):
                if x == j:
                    pl_group(k)
            if j + D < 32:
                rq(j + D)
            if j in put_at and puts:
                if first:
                    assert len(self.bg) < 16 - puts[0]
                    a.wait(vm=f"wo{puts[0]}")
                self.put_wo(T, puts.pop(0))
            if j == 27:
                self.sel_read(SEL)
            if T == 1 and j in (28, 29):
                a(f"ds_read_b128 {v(PK + 8 + 4 * (j - 28), 4)}, {v(vKFR)} offset:{L_WPF - L_KVF + KS * (j - 28)}", lg="wp")
            if fill:
                f_ = fill.pop(0)
                if callable(f_):
                    f_()
                elif f_:
                    a(f_)
        self.ts(f"{l}:qgemm")
        self.dump("q", l, list(range(AK, AK + 16)), RG)
        EPS = RG + 6
        if first:
            if T == 0:
                n = len(a.vm) - 1 - max(i for i, t_ in enumerate(a.vm) if t_ == f"wo{NP - 1}")
                a(f"s_waitcnt vmcnt({n + 9})")
                with self.only_if(f"s_cmp_ge_u32 {s(sW)}, 2"):
                    a.wait(vm=f"wo{NP - 1}")
            else:
                a.wait(vm=f"wo{NP - 1}")
        nbg3 = min(bgn[3], len(self.bg))
        slots = 56 if T == 0 else 100
        self.bg_region(bgn[3], slots)
        if not first:
            late = [k for k, x in enumerate(pl_at) if x >= 32]
            self.bg = [(lambda k=k: pl_group(k)) for k in late]
            self.bg_at = [min(slots - 1, (pl_at[k] - 32) * 6) for k in late]
        self.side = [(lambda i=i: self.put_wo(T, i)) for i in puts]
        self.side_every = cfg["wo_every"][T]
        pop = lambda: self.side.pop(0)() if self.side else None
        pop()
        if T == 0:
            self.phi_a(AK, LG)
            a(f"v_mov_b32 {v(EPS)}, {f2u(1e-6) if l else 0:#x}")
            if l == 0:
                a(f"s_mov_b32 {s(sDELTA)}, {DELTA:#x}")
                a(f"v_lshrrev_b32 {v(LG)}, 9, {v(vL16)}")
                a(f"v_mul_u32_u24 {v(LG)}, {2048 - 512}, {v(LG)}")
                a(f"v_add_u32 {v(vWRD)}, {v(vWRD)}, {v(LG)}")
        else:
            self.logits(pop)
            pop()
            self.softmax2(RG, True)
        while self.side:
            pop()
        self.dump("pq", l, list(range(PK, PK + 16)), AV)
        self.ts(f"{l}:phiq")
        WR, DW = 64, 7
        WA = [vWOR, RG + 16, RG + 17, RG + 18]
        for t_ in range(1, 4):
            a(f"v_xor_b32 {v(WA[t_])}, {32 * t_}, {v(vWOR)}")
        a(f"s_add_u32 {s(sTG)}, {s(sTAG)}, {16 * (l + 1)}")
        a(f"v_mov_b32 {v(RG + 19)}, {s(sTG)}")
        a.wait(lg="sel")
        self.fine(f"{l}:r_wait")
        with w01(1):
            a.label(f"L_chk{l}")
            m, Z = 44, PL + 32
            gaps = [[f"v_max3_u32 {v(m)}, {v(Z)}, {v(PL)}, {v(PL + 4)}", f"v_permlane16_swap_b32 {v(Z)}, {v(Z + 1)}"],
                    [f"v_permlane16_swap_b32 {v(Z + 2)}, {v(Z + 3)}"],
                    [f"v_add_f32 {v(Z)}, {v(Z)}, {v(Z + 1)}", f"v_add_f32 {v(Z + 2)}, {v(Z + 2)}, {v(Z + 3)}"],
                    [f"v_max3_u32 {v(m)}, {v(m)}, {v(PL + 8)}, {v(PL + 12)}", f"v_permlane32_swap_b32 {v(Z)}, {v(Z + 2)}"],
                    [f"v_add_f32 {v(Z)}, {v(Z)}, {v(Z + 2)}", f"v_max3_u32 {v(m)}, {v(m)}, {v(PL + 16)}, {v(PL + 20)}"],
                    [f"v_add_f32 {v(Z)}, {v(Z)}, {v(Z)} row_ror:4"],
                    [f"v_add_f32 {v(Z)}, {v(Z)}, {v(Z)} row_ror:8", f"v_max3_u32 {v(m)}, {v(m)}, {v(PL + 24)}, {v(PL + 28)}"],
                    [f"v_cmp_eq_u32 vcc, -1, {v(m)}", f"v_cvt_pk_bf16_f32 {v(Z)}, {v(Z)}, {v(Z)}", f"ds_write_b16 {v(vZW)}, {v(Z)}"]]
            for i in range(8):
                if cfg["zlast"]:
                    if i == 0:
                        a(f"s_waitcnt vmcnt({nbg3})")
                elif i % 2 == 0:
                    a(f"s_waitcnt vmcnt({nbg3 + 6 - i})")
                a(f"v_mfma_f32_16x16x32_bf16 {v(DR, 4)}, {v(SEL, 4)}, {v(PL + 4 * i, 4)}, {v(DR, 4) if i else 0}")
                for g_ in gaps[i]:
                    a(g_)
            a(f"s_cbranch_vccnz L_again{l}")
            with self.outofline():
                a.label(f"L_again{l}")
                self.countdown()
                if cfg["ts"]:
                    a(f"s_add_u32 {s(sTSI)}, {s(sTSI)}, {1 << (8 * l)}")
                for i in range(9):
                    partial_load(i)
                if nbg3:
                    a("s_waitcnt vmcnt(0)")
                a(f"s_branch L_chk{l}")
            for i in range(2):
                a(f"v_cvt_pk_bf16_f32 {v(DR + i)}, {v(DR + 2 * i)}, {v(DR + 2 * i + 1)}")
            a(f"ds_write_b64 {v(vKFW)}, {v(DR, 2)}")
        if T == 0:
            a(f"s_waitcnt vmcnt({nbg3})")
        self.fine(f"{l}:r_done")
        self.bg_now(bgn[4])
        a.wait(lg=0)
        a("s_barrier")
        self.ts(f"{l}:bar3")
        KF, ZF, DEN, O = 0, 16, RG + 6, LG
        def rk(j):
            a(f"ds_read_b128 {v(KF + 4 * j, 4)}, {v(vKFR)} offset:{KS * j}", lg=f"kf{j}")
        def rz(j):
            a(f"ds_read_b128 {v(ZF + 4 * j, 4)}, {v(vZR)} offset:{(j >> 1) * 64 + (j & 1) * 16}", lg=f"zf{j}")

        def dots(j):
            for d in range(4):
                a(f"v_dot2c_f32_bf16 {v(DEN)}, {v(ZF + 4 * j + d)}, {v(PK + 4 * j + d)}")

        def num(j):
            a.wait(lg=f"kf{j}")
            a(f"v_mfma_f32_32x32x16_bf16 {v(AV, 16)}, {v(KF + 4 * j, 4)}, {v(PK + 4 * j, 4)}, {v(AV, 16) if j else 0}")

        def rw1(i, t_, u):
            a(f"ds_read_b64_tr_b16 {v(WR + (i % DW) * 16 + 4 * t_ + 2 * u, 2)}, {v(WA[t_])} offset:{t_ * 16384 + i * 1024 + u * 512}", lg=f"wo{i}")
        rest = [(i, t_, u) for i in range(DW) for t_ in range(4) for u in range(2)]
        if cfg["nmode"] == 0:
            for j in range(NJ):
                rz(j)
            if NJ == 2:
                rk(0); rk(1)
            for j in range(NJ):
                if j % 2 == 0:
                    a.wait(lg=f"zf{j + 1}")
                dots(j)
                if NJ == 4:
                    rk(j)
            self.fine(f"{l}:n_dot")
            for j in range(NJ):
                num(j)
        else:
            q_ = [(rk, j) for j in range(NJ)] + [(rz, j) for j in range(NJ)]
            for f_, j in q_[:3]:
                f_(j)
            del q_[:3]
            for j in range(NJ):
                num(j)
                for f_, k in q_[:2]:
                    f_(k)
                del q_[:2]
            self.fine(f"{l}:n_dot")
            a.wait(lg=0)
            for j in range(NJ):
                dots(j)
        if l == 0:
            if cfg["r_num"]:
                for i in range(8):
                    a(f"v_cvt_pk_bf16_f32 {v(O + i)}, {v(AV + 2 * i)}, {v(AV + 2 * i + 1)}")
            a(f"v_cvt_pk_bf16_f32 {v(DEN)}, {v(DEN)}, {v(DEN)}")
            a(f"v_and_b32 {v(DEN)}, 0xffff0000, {v(DEN)}")
            a(f"v_add_f32 {v(DEN)}, {f2u(1e-6):#x}, {v(DEN)}")
            a(f"v_cvt_pk_bf16_f32 {v(DEN)}, {v(DEN)}, {v(DEN)}")
            a(f"v_and_b32 {v(DEN)}, 0xffff0000, {v(DEN)}")
        pre_cmp = l > 0 and cfg["trim"]
        if pre_cmp:
            a(f"s_cmp_eq_u32 {s(sMODE)}, 0")
        a(f"v_rcp_f32 {v(DEN)}, {v(DEN)}")
        if l == 0 and cfg["r_num"]:
            for i in range(8):
                a(f"v_lshlrev_b32 {v(AV + 2 * i)}, 16, {v(O + i)}")
                a(f"v_and_b32 {v(AV + 2 * i + 1)}, 0xffff0000, {v(O + i)}")
        if cfg["x_h"] & 8:
            a("s_nop 12")
            a("s_nop 11")
        self.fine(f"{l}:n_mfma")
        ol = []
        for h in range(2):
            ol += [f"v_pk_mul_f32 {v(AV + 2 * i, 2)}, {v(AV + 2 * i, 2)}, {v(DEN, 2)} op_sel_hi:[1,0]" for i in range(4 * h, 4 * h + 4)]
            ol += [f"v_cvt_pk_bf16_f32 {v(O + i)}, {v(AV + 2 * i)}, {v(AV + 2 * i + 1)}" for i in range(4 * h, 4 * h + 4)]
            ol += [f"buffer_store_dwordx4 {v(O + 4 * h, 4)}, {v(vOST)}, {s(sWS, 4)}, {s(sOST)} offen offset:{256 * h}"]
        if not cfg["ssplit"] & 1:
            ol.sort(key=lambda t_: t_.startswith("buffer"))
        self.moded(ol, tag="ost", cmp=not pre_cmp, wt=l == 0 and not cfg["otouch"] and not cfg["oinit"][0])
        self.dump("o", l, list(range(O, O + 8)), PK)
        self.ts(f"{l}:ostore")
        self.bg_now(bgn[5])
        if l == 0:
            for t_ in self.tile_addr(PK, PK + 3)[:10]:
                a(t_)
            a.wait(vm="xr")
            for i in range(2):
                a(f"ds_write_b128 {v(PK + 1)}, {v(XR + 4 * i, 4)} offset:{1152 * i}")
            for i in range(2):
                a(f"ds_read2_b64 {v(4 * i, 4)}, {v(PK)} offset0:{8 * i} offset1:{8 * i + 4}")
            a.wait(lg=0)
            for i in range(8):
                a(f"v_lshlrev_b32 {v(XR + 2 * i)}, 16, {v(i)}")
                a(f"v_and_b32 {v(XR + 2 * i + 1)}, 0xffff0000, {v(i)}")
        NO = cfg["no0"]

        def ldo(i):
            if cfg["x_h"] & 4 and i == 14:
                return
            G_ = 2 if cfg["roto"] & 2 else 4
            if i % G_ == 0 and i:
                a(f"s_xor_b32 {s(sT3)}, {s(sOLD)}, {i * 1024}")
            a(f"buffer_load_dwordx4 {v(4 * i, 4)}, {v(vL16)}, {s(sWS, 4)}, {s(sT3 if i >= G_ else sOLD)} offen offset:{(i % G_) * 1024} sc1", vm=f"o{i}")
        late = list(range(NP, 16))

        def window(np_, nr):
            for _ in range(min(len(late), np_)):
                self.put_wo(T, late.pop(0))
            for _ in range(min(len(rest), nr)):
                rw1(*rest.pop(0))
        ow = cfg["owin"][first]
        na = "o" in cfg["x_noack"] and l > 0
        if na:
            ow = cfg["owin2"]
        window(*ow[0])
        self.fine(f"{l}:o_pre")
        self.flag(sFOS, RG + 19, "none" if na else "ost")
        self.fine(f"{l}:oflag")
        self.spin_more(wo_, f"o{l}")
        if last and cfg["fin_lds"]:
            for t_ in self.tile_addr(PK, PK + 3):
                a(t_)
        window(*ow[1])
        self.probe(wo_, vPR)
        window(*ow[2])
        self.spin(wo_, f"o{l}")
        self.ts(f"{l}:opoll")
        for i in range(4):
            ldo(i)
        window(16, 0)
        if NP < 16:
            a.wait(lg="putwo")
            a("s_barrier")
        per = -(-len(rest) // (NO - 4))
        for i in range(4, NO):
            window(0, per)
            ldo(i)
        assert not rest
        self.fine(f"{l}:o_iss")
        todo = [(i, t_, u) for i in range(DW, 16) for t_ in range(4) for u in range(2)]
        done = 0
        self.bg_region(bgn[6], NO)
        ry = l == 0 and cfg["r_y"]
        for i in range(16):
            for t_ in range(4):
                if t_ == 0:
                    a.wait(vm=f"o{i}", lg=f"wo{i}")
                    self.fine(f"{l}:o{i}")
                a(f"v_mfma_f32_16x16x32_bf16 {v(XR + 4 * t_, 4)}, {v(WR + (i % DW) * 16 + 4 * t_, 4)}, {v(4 * i, 4)}, {v(XR + 4 * t_, 4)}".replace(v(XR + 4 * t_, 4), v(LG + 4 * t_, 4) if ry else v(XR + 4 * t_, 4)).rsplit(", ", 1)[0] + ", " + (("0" if i == 0 else v(LG + 4 * t_, 4)) if ry else v(XR + 4 * t_, 4)))
                if t_ == 0:
                    if i + NO < 16:
                        ldo(i + NO)
                    else:
                        self.bg_tick()
                for _ in range(cfg["ord"][i + NO >= 16][t_]):
                    if done < len(todo) and done // 2 <= 4 * i + t_:
                        assert todo[done][0] > i
                        rw1(*todo[done]); done += 1
        assert done == len(todo) and not self.bg
        self.ts(f"{l}:ogemm")
        if last:
            return
        if ry:
            for i in range(8):
                a(f"v_cvt_pk_bf16_f32 {v(AV + i)}, {v(LG + 2 * i)}, {v(LG + 2 * i + 1)}")
            for i in range(8):
                a(f"v_lshlrev_b32 {v(LG + 2 * i)}, 16, {v(AV + i)}")
                a(f"v_and_b32 {v(LG + 2 * i + 1)}, 0xffff0000, {v(AV + i)}")
            for i in range(8):
                a(f"v_pk_add_f32 {v(XR + 2 * i, 2)}, {v(XR + 2 * i, 2)}, {v(LG + 2 * i, 2)}")
        self.dump("x", l, list(range(XR, XR + 16)), PK)
        N = 1 - T
        na = "x" in cfg["x_noack"] and l > 0
        for k_, st in enumerate(self.x_steps(0, XR, AK, par=N)):
            st()
            if na and k_ == 0:
                self.flag(sFXS, RG + 19, "xst" if "t" in cfg["x_noack"] else "none")
                if "t" in cfg["x_noack"]:
                    with self.only_if(f"s_bitcmp1_b32 {s(sID)}, {3 + l}"):
                        a("s_sleep 60")
        self.fine(f"{l}:xst")
        a("s_barrier")
        self.fine(f"{l}:bar5")
        n1, n2 = cfg["xputs2" if na else "xputs0" if l == 0 else "xputs"]
        ne = 16 - bgn[6]
        if l == 0:
            assert n1 <= ne
            self.sel_read(AV)
            addr, fin = self.cs_kv_fin(1, AV + 4, AV + 8)
            for t_ in addr:
                a(t_)
            a.wait(lg="sel")
        for i in range(n1):
            self.put_wkv(N, i, i + 1)
            if l == 0:
                for k in range(i * ne // n1, (i + 1) * ne // n1):
                    a(self.cs_kv_step(1, k, AV, AV + 4))
        a(f"s_add_u32 {s(sKVT)}, {s(sKVT)}, {KVP[l + 1] - KVP[l]}")
        if not na:
            self.flag(sFXS, RG + 19, "xst" if cfg["spar"] and l else "sst")
        self.ts(f"{l}:xflag")
        self.spin_more(wx, f"x{l + 1}")
        for i in range(n1, n2):
            if i == min(n2 - 1, n1 + cfg["xprobe_at2" if na else "xprobe_at"]):
                self.probe(wx, vPR)
            self.put_wkv(N, i, i + 1)
            if l == 0:
                for k in range(ne + min(4, i - n1) * (16 - ne) // 4, ne + min(4, i - n1 + 1) * (16 - ne) // 4):
                    a(self.cs_kv_step(1, k, AV, AV + 4))
        if l == 0:
            assert n2 - n1 >= 4
            for t_ in fin:
                a(t_)
        self.puts_left = list(range(n2, 16))

    def prologue(self):
        cfg = self.cfg
        a = self.a
        a(f"s_cmp_ge_u32 {s(sID)}, 256")
        a("s_cbranch_scc1 L_end")
        self.ts("start")
        a(f"s_load_dwordx16 {s(4, 16)}, s[0:1], 0")
        a(f"s_load_dwordx4 {s(20, 4)}, s[0:1], 64")
        a(f"s_getpc_b64 {s(sSAVE, 2)}")
        a.label("L_pc")
        NCL = cfg["codepf"]
        a(f"s_bfe_u32 {s(sT0)}, {s(sID)}, {3 | (3 << 16)}")
        a(f"s_mul_i32 {s(sT0)}, {s(sT0)}, {NCL}")
        a(f"v_min_u32 v1, {NCL - 1}, v0")
        a(f"v_add_u32 v1, {s(sT0)}, v1")
        a("v_lshlrev_b32 v1, 7, v1")
        if cfg["pads"]:
            a("v_add_u32 v1, L_page0-L_pc, v1")
            a("v_lshlrev_b32 v2, 12, v0")
            a("v_add_u32 v2, L_page0-L_pc-64*4096, v2")
            a("v_cmp_le_u32 vcc, 64, v0")
            a("v_cndmask_b32 v1, v1, v2, vcc")
            if cfg["early_setup"] or cfg["brk"]:
                a(f"v_and_b32 v2, {15 if cfg['brk'] else 7}, v0")
                a("v_lshl_add_u32 v2, v2, 7, 64")
                a("v_add_u32 v2, 0x340, v2")
                a("v_cmp_le_u32 vcc, 128, v0")
                a("v_cndmask_b32 v1, v1, v2, vcc")
        a(f"v_min_u32 v1, L_codeend-L_pc, v1")
        a(f"global_load_dword v2, v1, {s(sSAVE, 2)}")
        if cfg["ts"]:
            a(f"s_mov_b32 {s(sTSI)}, 0")
            a(f"s_mov_b32 {s(sLAY)}, 0")
            a(f"v_mov_b32 {v(vTS)}, 0")
            a(f"s_memrealtime s[78:79]")
        L = 3
        a(f"v_lshrrev_b32 v1, 6, v0")
        a(f"v_and_b32 {v(L)}, 63, v0")
        a(f"v_readfirstlane_b32 {s(sW)}, v1")
        a(f"v_lshlrev_b32 {v(vL16)}, 4, {v(L)}")
        a(f"s_bfe_u32 {s(sC)}, {s(sID)}, {3 | (4 << 16)}")
        a(f"s_lshr_b32 {s(sT0)}, {s(sID)}, 7")
        a(f"s_and_b32 {s(sR)}, {s(sID)}, 7")
        a(f"s_lshl1_add_u32 {s(sR)}, {s(sR)}, {s(sT0)}")
        a(f"s_and_b32 {s(sROT)}, {s(sR)}, {cfg['rot']}")
        sBP, sSUB, sCG, sB = 99, 100, 101, sCNT
        a(f"s_lshr_b32 {s(sT0)}, {s(sC)}, 3")
        a(f"s_lshr_b32 {s(sT3)}, {s(sW)}, 1")
        a(f"s_lshl1_add_u32 {s(sT0)}, {s(sT0)}, {s(sT3)}")
        a(f"s_lshl2_add_u32 {s(sBP)}, {s(sR)}, {s(sT0)}")
        a(f"s_lshl2_add_u32 {s(sB)}, {s(sR)}, {s(sW)}")
        a(f"s_and_b32 {s(sSUB)}, {s(sW)}, 1")
        a(f"s_and_b32 {s(sCG)}, {s(sC)}, 7")
        a(f"s_lshl1_add_u32 {s(sT0)}, {s(sBP)}, {s(sSUB)}")
        a(f"s_lshl_b32 {s(sOLD)}, {s(sT0)}, 14")
        a(f"s_lshl_b32 {s(sT0)}, {s(sCG)}, 7")
        a(f"s_add_u32 {s(sFIN)}, {s(sOLD)}, {s(sT0)}")
        a(f"s_lshl3_add_u32 {s(sT0)}, {s(sBP)}, {s(sCG)}")
        a(f"s_lshl4_add_u32 {s(sT0)}, {s(sT0)}, {s(sSUB)}")
        a(f"s_lshl_b32 {s(sXST)}, {s(sT0)}, 8")
        a(f"s_lshl4_add_u32 {s(sT1)}, {s(sR)}, {s(sC)}")
        a(f"s_lshl_b32 {s(sT1)}, {s(sT1)}, 5")
        a(f"s_add_u32 {s(sT1)}, {s(sT1)}, {s(sW)}")
        a(f"s_lshl_b32 {s(sT1)}, {s(sT1)}, 8")
        a(f"v_and_b32 v52, 7, {v(L)}")
        a(f"v_lshrrev_b32 v53, 3, {v(L)}")
        a(f"v_lshlrev_b32 v4, 4, v53")
        a(f"v_lshl_add_u32 v4, v52, 10, v4")
        a(f"s_lshl_b32 {s(sT0)}, {s(sC)}, 6")
        a(f"s_mul_i32 {s(sWOFF)}, {s(sT3)}, {16 * 3072}")
        a(f"s_add_u32 {s(sWOFF)}, {s(sWOFF)}, {s(sT0)}")
        a(f"s_lshl_b32 {s(sT0)}, {s(sSUB)}, 10")
        a(f"s_add_u32 {s(sWOFF)}, {s(sWOFF)}, {s(sT0)}")
        a(f"s_add_u32 {s(sWOFF)}, {s(sWOFF)}, 1024")
        self.w_voff(5)
        a(f"s_mov_b32 {s(sTMP + 3)}, 0x20000")
        a(f"s_mov_b32 {s(sSW[0] + 3)}, 0x20000")
        a(f"s_mov_b32 {s(sTMP + 2)}, 0x200000")
        a(f"s_mov_b32 {s(sSW[0] + 2)}, {512 * 3072}")
        a(f"s_lshr_b32 {s(sT2)}, {s(sID)}, 3")
        a(f"s_lshl_b32 {s(sSTLD)}, {s(sB)}, 11")
        a(f"s_lshl_b32 {s(sT0)}, {s(sB)}, 7")
        a(f"s_add_u32 {s(sFXP)}, {s(sT0)}, {FLAGX}")
        a(f"s_add_u32 {s(sFOS)}, {s(sT0)}, {FLAGO}")
        a(f"s_lshl_b32 {s(sHEL)}, {s(sC)}, 7")
        a(f"s_add_u32 {s(sHEL)}, {s(sHEL)}, {s(sSTLD)}")
        a("s_waitcnt lgkmcnt(0)")
        self.ts("kernarg")
        a(f"s_mov_b64 {s(sTMP, 2)}, {s(sPX, 2)}")
        a(f"s_mov_b64 {s(sSW[0], 2)}, {s(sPWA, 2)}")
        for i in range(2):
            a(f"buffer_load_dwordx4 {v(8 + 4 * i, 4)}, v4, {s(sTMP, 4)}, {s(sT1)} offen offset:{128 * i}", vm="x0")
        a(f"s_lshl2_add_u32 {s(sPF)}, {s(sT2)}, {s(sW)}")
        a(f"s_add_u32 {s(sPBX)}, {s(sPWS)}, {s(sHEL)}")
        a(f"s_addc_u32 {s(sPBX + 1)}, {s(sPWS + 1)}, 0")

        def scalar_loads():
            a(f"s_load_dword {s(sEP)}, {s(sPWS, 2)}, 0")
            if "o" in cfg["tlb"]:
                a(f"s_load_dword {s(sTG)}, {s(sPOUT, 2)}, 0")
            if "p" in cfg["tlb"]:
                a(f"s_load_dword {s(sTG)}, {s(sPPHI, 2)}, 0")
            if "w" in cfg["tlb"]:
                for off in (0x200000, 0x400000):
                    a(f"s_mov_b32 {s(sT0)}, {off:#x}")
                    a(f"s_load_dword {s(sTG)}, {s(sPWS, 2)}, {s(sT0)}")
            if cfg["touch"]:
                a(f"s_load_dword {s(sTG)}, {s(sPWS, 2)}, {s(sFXP)}")
                a(f"s_load_dword {s(sTG)}, {s(sPWS, 2)}, {s(sFOS)}")
                a(f"s_load_dword {s(sTG)}, {s(sPBX, 2)}, {STATS[0]}")
                a(f"s_load_dword {s(sTG)}, {s(sPBX, 2)}, {STATS[0] + 64}")
        if cfg["sl_first"]:
            scalar_loads()

        def mall_pf():
            a0 = self.a
            a0(f"s_cmp_eq_u32 {s(sSUB)}, 0")
            a0(f"s_cselect_b64 {s(sTMP, 2)}, {s(sPWA, 2)}, {s(sPWB, 2)}")
            a0(f"s_cselect_b64 {s(sLN2, 2)}, {s(sPWOA, 2)}, {s(sPWOB, 2)}")
            a0(f"s_cmp_lt_u32 {s(sW)}, 2")
            a0(f"s_cselect_b64 {s(sTMP, 2)}, {s(sTMP, 2)}, {s(sLN2, 2)}")
            a0(f"s_cselect_b32 {s(sT1)}, 3, 1")
            a0(f"s_lshl_b32 {s(sT1)}, {s(sT1)}, 11")
            a0(f"s_mul_i32 {s(sT2)}, {s(sID)}, {s(sT1)}")
            a0(f"s_sub_u32 {s(sT0)}, {s(sT1)}, 128")
            a0(f"v_lshlrev_b32 v7, 3, {v(vL16)}")
            a0(f"v_min_u32 v7, {s(sT0)}, v7")
            a0(f"s_lshl_b32 {s(sTMP + 2)}, {s(sT1)}, 8")
            a0(f"buffer_load_dword v7, v7, {s(sTMP, 4)}, {s(sT2)} offen")
        def l2_pf():
            a(f"s_mul_i32 {s(sT0)}, {s(sPF)}, {4 * 3072 // cfg['l2div']}")
            a(f"s_add_u32 {s(sT0)}, {s(sT0)}, {512 * 3072 - 512 * 3072 // cfg['l2div']}")
            a(f"v_lshrrev_b32 v51, 8, {v(vL16)}")
            a(f"v_lshlrev_b32 v51, 10, v51")
            a(f"v_lshl_add_u32 v51, {v(vL16)}, 3, v51")
            if cfg["l2div"] == 2:
                a("s_mov_b32 exec_hi, 0")
            a(f"buffer_load_dword v51, v51, {s(sSW[0], 4)}, {s(sT0)} offen offset:1024")
            if cfg["l2div"] == 2:
                a("s_mov_b32 exec_hi, -1")
        if cfg["l2pf"] == 1:
            l2_pf()
        if cfg["mallpf"] == 1:
            mall_pf()
        if cfg["l2pf"] == 2:
            l2_pf()
        if cfg["mallpf"] == 8:
            with self.only_if(f"s_bitcmp0_b32 {s(sID)}, 2"):
                a(f"s_and_b32 {s(sT0)}, {s(sPF)}, 7")
                a(f"s_lshr_b32 {s(sT1)}, {s(sPF)}, 3")
                a(f"s_and_b32 {s(sT2)}, {s(sID)}, 3")
                a(f"s_lshl2_add_u32 {s(sT1)}, {s(sT1)}, {s(sT2)}")
                a(f"s_bitcmp0_b32 {s(sT0)}, 0")
                a(f"s_cselect_b64 {s(sTMP, 2)}, {s(sPWA, 2)}, {s(sPWB, 2)}")
                a(f"s_cselect_b64 {s(sLN2, 2)}, {s(sPWOA, 2)}, {s(sPWOB, 2)}")
                a(f"s_lshr_b32 {s(sT0)}, {s(sT0)}, 1")
                a(f"s_mul_i32 {s(sT2)}, {s(sT1)}, 3")
                a(f"s_add_u32 {s(sT2)}, {s(sT2)}, {s(sT0)}")
                a(f"s_cmp_lt_u32 {s(sT0)}, 3")
                a(f"s_cselect_b64 {s(sTMP, 2)}, {s(sTMP, 2)}, {s(sLN2, 2)}")
                a(f"s_cselect_b32 {s(sT2)}, {s(sT2)}, {s(sT1)}")
                a(f"s_cselect_b32 {s(sT1)}, 3, 1")
                a(f"s_lshl_b32 {s(sTMP + 2)}, {s(sT1)}, 19")
                a(f"s_lshl_b32 {s(sT2)}, {s(sT2)}, 13")
                a(f"v_lshlrev_b32 v7, 3, {v(vL16)}")
                a(f"buffer_load_dword v7, v7, {s(sTMP, 4)}, {s(sT2)} offen")
        if cfg["mallpf"] in (4, 6):
            with self.only_if(f"s_cmp_eq_u32 {s(sW)}, 0"):
                mall_pf()
        if cfg["mallpf"] == 5:
            with self.only_if(f"s_cmp_eq_u32 {s(sSUB)}, 0"):
                mall_pf()
        if cfg["mallpf"] == 9:
            with self.only_if(f"s_cmp_eq_u32 {s(sW)}, 2"):
                mall_pf()
        if cfg["mallpf"] == 7:
            with self.only_if(f"s_cmp_lg_u32 {s(sW)}, 3"):
                mall_pf()
        if cfg["slow0"]:
            self.slow_pf(sSW[0], 12, 6)
        self.srd_tmp(sPPHI, 16384)
        a(f"s_lshl_b32 {s(sT0)}, {s(sC)}, 10")
        a(f"buffer_load_dwordx4 v[16:19], {v(vL16)}, {s(sTMP, 4)}, {s(sT0)} offen", vm="phi")
        for i in range(cfg["n0"]):
            self.ld_wkv(0, i, 5)
        if cfg["mallpf"] == 2:
            mall_pf()
        if not cfg["sl_first"]:
            scalar_loads()
        self.ts("p_issue")
        if cfg["x_allw"]:
            a("s_waitcnt vmcnt(0)")
            self.fine("p_allw")

        def o_touch(at):
            if cfg["otouch"] != at:
                return
            a0 = self.a
            a0(f"s_lshl_b32 {s(sT0)}, {s(sB)}, 5")
            a0(f"s_add_u32 {s(sT0)}, {s(sT0)}, {s(sC)}")
            a0(f"s_lshl_b32 {s(sT0)}, {s(sT0)}, 10")
            a0(f"s_add_u32 {s(sT0)}, {s(sT0)}, {OB[0]}")
            a0(f"v_bfe_u32 v50, {v(vL16)}, 7, 1")
            a0(f"v_mul_u32_u24 v50, {(16384 - 1024) // 8}, v50")
            a0(f"v_add_lshl_u32 v50, v50, {v(vL16)}, 3")
            a0("s_mov_b64 exec, 0xffff")
            a0(f"buffer_load_dword v52, v50, {s(sWS, 4)}, {s(sT0)} offen")
            a0("s_mov_b64 exec, -1")
        a(f"s_mov_b64 {s(sWS, 2)}, {s(sPWS, 2)}")
        a(f"s_mov_b64 {s(sOUT, 2)}, {s(sPOUT, 2)}")
        for r_ in (sWS, sOUT):
            a(f"s_mov_b32 {s(r_ + 3)}, 0x20000")
        a(f"s_mov_b32 {s(sWS + 2)}, {WS_SIZE:#x}")
        a(f"s_mov_b32 {s(sOUT + 2)}, 0x200000")
        o_touch(101)
        a(f"s_mov_b32 {s(sROW)}, 0xffff")
        a(f"s_mov_b32 {s(sROW + 1)}, 0xffff")
        a(f"s_mov_b32 {s(sMODE)}, 0")
        a(f"s_lshr_b32 {s(sT0)}, {s(sCG)}, 2")
        a(f"s_lshl2_add_u32 {s(sT0)}, {s(sBP)}, {s(sT0)}")
        a(f"s_lshl1_add_u32 {s(sT0)}, {s(sT0)}, {s(sSUB)}")
        a(f"s_lshl_b32 {s(sT0)}, {s(sT0)}, 8")
        a(f"s_and_b32 {s(sT1)}, {s(sCG)}, 3")
        a(f"s_lshl2_add_u32 {s(sSTST)}, {s(sT1)}, {s(sT0)}")
        a(f"s_add_u32 {s(sSTST)}, {s(sSTST)}, {STATS[0]}")
        a(f"s_lshl4_add_u32 {s(sT0)}, {s(sW)}, {s(sC)}")
        a(f"s_lshl_b32 {s(sKVT)}, {s(sT0)}, 10")
        a(f"s_add_u32 {s(sKVT)}, {s(sKVT)}, {KVP[0]}")
        a(f"s_lshl_b32 {s(sHEL)}, {s(sT0)}, 11")
        a(f"s_add_u32 {s(sHEL)}, {s(sHEL)}, {HELLO}")
        a(f"s_mov_b32 {s(sHI)}, 0")
        a(f"s_mov_b32 {s(sHI + 1)}, -1")
        a(f"s_lshl_b32 {s(sXLD)}, {s(sB)}, 15")
        i16, g, half, q, jj, t0, t1 = 20, 21, 22, 23, 24, 25, 26
        a(f"v_and_b32 {v(i16)}, 15, {v(L)}")
        a(f"v_lshrrev_b32 {v(g)}, 4, {v(L)}")
        a(f"v_lshrrev_b32 {v(half)}, 5, {v(L)}")
        a(f"v_and_b32 {v(q)}, 3, {v(L)}")
        a(f"v_bfe_u32 {v(jj)}, {v(L)}, 2, 2")
        a(f"v_lshlrev_b32 {v(vPOLL)}, 2, {v(i16)}")
        a(f"v_lshlrev_b32 {v(t0)}, 4, {v(i16)}")
        a(f"v_lshl_add_u32 {v(vXST)}, {v(g)}, 10, {v(t0)}")
        a(f"v_lshl_add_u32 {v(vSST)}, {v(half)}, 10, {v(t0)}")
        a(f"v_lshl_add_u32 {v(vSLD)}, {v(half)}, 9, {v(vL16)}")
        a(f"s_lshr_b32 {s(sT0)}, {s(sR)}, 1")
        a(f"s_lshl_b32 {s(sT0)}, {s(sT0)}, 7")
        a(f"s_and_b32 {s(sT1)}, {s(sR)}, 1")
        a(f"s_add_u32 {s(sT0)}, {s(sT0)}, {s(sT1)}")
        a(f"s_lshl_b32 {s(sT0)}, {s(sT0)}, 9")
        a(f"v_lshl_add_u32 {v(vPST)}, {v(half)}, 8, {v(t0)}")
        a(f"v_add_u32 {v(vPST)}, {s(sT0)}, {v(vPST)}")
        a(f"s_lshl_b32 {s(sT1)}, {s(sR)}, 6")
        a(f"s_add_u32 {s(sT1)}, {s(sT1)}, {8 * 65536}")
        a(f"v_lshl_add_u32 {v(vZST)}, {v(g)}, 4, {s(sT1)}")
        a(f"v_add_u32 v49, {s(sT0)}, {v(vL16)}")
        a(f"v_lshl_add_u32 v27, {v(q)}, 4, {s(sT1)}")
        a(f"v_cndmask_b32 v49, v49, v27, {s(sHI, 2)}")
        for i in range(4):
            a(f"v_mov_b32 {v(28 + i)}, -1")
        def setup(upto):
            cnt, a0 = [0], self.a

            def a(text, **kw):
                if cnt[0] % cfg["w_every"] == 0 and self.nw < upto:
                    self.ld_wkv(0, self.nw, 5, sT3)
                    self.nw += 1
                cnt[0] += 1
                a0(text, **kw)
            a(f"s_getreg_b32 {s(sXCC)}, hwreg(HW_REG_XCC_ID, 0, 4)")
            a(f"s_lshl_b32 {s(sW13)}, {s(sW)}, 13")
            a(f"s_mov_b32 {s(sCNT)}, {cfg['limit']:#x}")
            a(f"s_lshl_b32 {s(sT0)}, {s(sC)}, 10")
            a(f"s_add_u32 {s(sOST)}, {s(sXLD)}, {s(sT0)}")
            a(f"s_add_u32 {s(sOST)}, {s(sOST)}, {OB[0]}")
            a(f"s_add_u32 {s(sOLD)}, {s(sOLD)}, {OB[0]}")
            a(f"s_add_u32 {s(sSTLD)}, {s(sSTLD)}, {STATS[0]}")
            a(f"s_lshl2_add_u32 {s(sFOS)}, {s(sC)}, {s(sFOS)}")
            a(f"s_lshl_b32 {s(sT0)}, {s(sBP)}, 7")
            a(f"s_add_u32 {s(sFOP)}, {s(sT0)}, {FLAGO}")
            a(f"s_lshl1_add_u32 {s(sT1)}, {s(sCG)}, {s(sSUB)}")
            a(f"s_lshl2_add_u32 {s(sFXS)}, {s(sT1)}, {s(sT0)}")
            a(f"s_add_u32 {s(sFXS)}, {s(sFXS)}, {FLAGX}")
            a(f"s_lshl_b32 {s(sT0)}, {s(sC)}, 6")
            if cfg["rot"]:
                a(f"s_lshl_b32 {s(sQOFF)}, {s(sW)}, 2")
                a(f"s_xor_b32 {s(sQOFF)}, {s(sQOFF)}, {s(sROT)}")
                a(f"s_lshl_b32 {s(sQOFF)}, {s(sQOFF)}, 1")
                if cfg["rotq"]:
                    a(f"s_lshr_b32 {s(sT0)}, {s(sROT)}, 1")
                    a(f"s_xor_b32 {s(sQOFF)}, {s(sQOFF)}, {s(sT0)}")
                    a(f"s_lshl_b32 {s(sT0)}, {s(sROT)}, 9")
                    a(f"s_add_u32 {s(sWQM)}, {s(sW13)}, {s(sT0)}")
                a(f"s_lshl_b32 {s(sT0)}, {s(sROT)}, 11")
                a(f"s_add_u32 {s(sXLD)}, {s(sXLD)}, {s(sT0)}")
            else:
                a(f"s_mul_i32 {s(sQOFF)}, {s(sW)}, {128 * 3072}")
                a(f"s_add_u32 {s(sQOFF)}, {s(sQOFF)}, {s(sT0)}")
            a(f"s_lshl_b32 {s(sOOFF)}, {s(sW)}, 13")
            a(f"s_lshl_b32 {s(sT0)}, {s(sCG)}, 7")
            a(f"s_add_u32 {s(sOOFF)}, {s(sOOFF)}, {s(sT0)}")
            if cfg["roto"]:
                a(f"s_and_b32 {s(sT0)}, {s(sR)}, {cfg['roto']}")
                a(f"s_lshl_b32 {s(sT1)}, {s(sT0)}, 15")
                a(f"s_add_u32 {s(sOOFF)}, {s(sOOFF)}, {s(sT1)}")
                a(f"s_lshl_b32 {s(sT1)}, {s(sT0)}, 10")
                a(f"s_add_u32 {s(sOLD)}, {s(sOLD)}, {s(sT1)}")

            def late_srds(a):
                a(f"s_mov_b64 {s(sSW[1], 2)}, {s(sPWB, 2)}")
                a(f"s_mov_b32 {s(sSW[1] + 2)}, {512 * 3072}")
                a(f"s_mov_b32 {s(sSW[1] + 3)}, 0x20000")
                for T in range(2):
                    a(f"s_mov_b64 {s(sSO[T], 2)}, {s([sPWOA, sPWOB][T], 2)}")
                    a(f"s_mov_b32 {s(sSO[T] + 2)}, {512 * 1024}")
                    a(f"s_mov_b32 {s(sSO[T] + 3)}, 0x20000")
            if not cfg["pfine"]:
                late_srds(a)
            a(f"s_mov_b32 {s(sCOL)}, 0x10001")
            a(f"s_mov_b32 {s(sCOL + 1)}, 0x10001")
            a(f"s_mov_b32 {s(sLN2)}, {LN2:#x}")
            a(f"s_mov_b32 {s(sLN2b)}, {LN2:#x}")
            a(f"s_mov_b32 {s(sDELTA)}, {f2u(1e-6):#x}")
            a(f"s_lshl_b32 {s(sANN)}, {s(sR)}, 7")
            a(f"s_add_u32 {s(sANN)}, {s(sANN)}, {ANN}")
            a(f"s_lshl4_add_u32 {s(sGW)}, {s(sR)}, {s(sC)}")
            a(f"s_lshl2_add_u32 {s(sGW)}, {s(sGW)}, {s(sW)}")
            a(f"v_and_b32 {v(t1)}, 1, {v(g)}")
            a(f"v_lshl_add_u32 {v(vOST)}, {v(t1)}, 14, {v(t0)}")
            a(f"v_lshl_add_u32 {v(vOST)}, {v(half)}, 9, {v(vOST)}")
            a(f"v_lshlrev_b32 {v(vWRD)}, 9, {v(half)}")
            a(f"v_lshl_add_u32 {v(vWRD)}, {v(jj)}, 6, {v(vWRD)}")
            a(f"v_lshl_add_u32 {v(vWRD)}, {v(t1)}, 4, {v(vWRD)}")
            a(f"v_and_b32 v27, 1, {v(q)}")
            a(f"v_lshrrev_b32 v32, 1, {v(q)}")
            a(f"v_lshl_add_u32 {v(vWRD)}, v27, 5, {v(vWRD)}")
            a(f"v_lshl_add_u32 {v(vWRD)}, v32, 3, {v(vWRD)}")
            a(f"v_lshlrev_b32 {v(vSTR)}, 8, {v(half)}")
            a(f"v_lshl_add_u32 {v(vSTR)}, v32, 7, {v(vSTR)}")
            a(f"v_lshl_add_u32 {v(vSTR)}, {v(t1)}, 6, {v(vSTR)}")
            a(f"v_lshl_add_u32 {v(vSTR)}, {v(jj)}, 4, {v(vSTR)}")
            a(f"v_lshl_add_u32 {v(vSTR)}, v27, 3, {v(vSTR)}")
            a(f"s_lshl_b32 {s(sT0)}, {s(sSUB)}, 12")
            a(f"s_add_u32 {s(sT0)}, {s(sT0)}, {L_STG + 0x4000}")
            a(f"v_add_u32 {v(vSTR2)}, {s(sT0)}, {v(vSTR)}")
            a(f"s_lshl_b32 {s(sT0)}, {s(sW)}, 12")
            a(f"s_add_u32 {s(sT0)}, {s(sT0)}, {L_STG}")
            a(f"v_add_u32 {v(vSTR)}, {s(sT0)}, {v(vSTR)}")
            a(f"v_bfe_u32 v33, {v(L)}, 3, 2")
            a(f"v_and_b32 {v(vSTW)}, 0x70, {v(vL16)}")
            a(f"v_lshl_add_u32 {v(vSTW)}, v33, 8, {v(vSTW)}")
            a(f"v_lshl_add_u32 {v(vSTW)}, {v(half)}, 12, {v(vSTW)}")
            a(f"s_lshl_b32 {s(sT0)}, {s(sW)}, 10")
            a(f"s_add_u32 {s(sT0)}, {s(sT0)}, {L_STG}")
            a(f"v_add_u32 {v(vSTW)}, {s(sT0)}, {v(vSTW)}")
            a(f"v_bfe_u32 v34, {v(L)}, 1, 2")
            a(f"v_xor_b32 v33, v33, v34")
            a(f"v_lshlrev_b32 {v(vWOW)}, 14, v34")
            a(f"v_lshl_add_u32 {v(vWOW)}, v33, 5, {v(vWOW)}")
            a(f"v_lshl_add_u32 {v(vWOW)}, {v(half)}, 9, {v(vWOW)}")
            a(f"v_lshl_add_u32 {v(vWOW)}, v27, 4, {v(vWOW)}")
            a(f"s_lshl_b32 {s(sT0)}, {s(sW)}, 7")
            a(f"v_add_u32 {v(vWOW)}, {s(sT0)}, {v(vWOW)}")
            a(f"v_lshlrev_b32 {v(vWOR)}, 3, {v(L)}")
            a(f"s_lshl_b32 {s(sT0)}, {s(sSUB)}, 15")
            a(f"s_and_b32 {s(sT1)}, {s(sW)}, 2")
            a(f"s_lshl_b32 {s(sT2)}, {s(sT1)}, 9")
            a(f"s_add_u32 {s(sT0)}, {s(sT0)}, {s(sT2)}")
            a(f"v_add_u32 {v(vWKW)}, {s(sT0)}, {v(vL16)}")
            a(f"v_and_b32 v33, 0x1f0, {v(vL16)}")
            a(f"v_add_u32 {v(vCSR)}, {L_CSP:#x}, v33")
            a(f"v_and_b32 v34, 1, {v(jj)}")
            a(f"v_cmp_eq_u32 vcc, v34, {v(half)}")
            a(f"v_lshlrev_b32 v35, 6, {v(half)}")
            a(f"v_sub_u32 v35, 576, v35")
            a(f"v_cndmask_b32 {v(vKFR)}, v35, v33, vcc")
            a(f"v_add_u32 {v(vKFR)}, {L_KVF:#x}, {v(vKFR)}")
            a(f"s_mul_i32 {s(sT0)}, {s(sT1)}, {KS}")
            a(f"s_lshl_b32 {s(sT2)}, {s(sSUB)}, 6")
            a(f"s_add_u32 {s(sT0)}, {s(sT0)}, {s(sT2)}")
            a(f"s_add_u32 {s(sT0)}, {s(sT0)}, {L_KVF}")
            a(f"v_mul_u32_u24 {v(vKFW)}, {KS}, {v(half)}")
            a(f"v_lshl_add_u32 {v(vKFW)}, {v(q)}, 4, {v(vKFW)}")
            a(f"v_lshl_add_u32 {v(vKFW)}, {v(jj)}, 7, {v(vKFW)}")
            a(f"v_lshl_add_u32 {v(vKFW)}, {v(t1)}, 3, {v(vKFW)}")
            a(f"v_add_u32 {v(vKFW)}, {s(sT0)}, {v(vKFW)}")
            a(f"s_lshl_b32 {s(sT0)}, {s(sW)}, 5")
            a(f"s_add_u32 {s(sT0)}, {s(sT0)}, {L_ZB}")
            a(f"v_lshl_add_u32 {v(vZW)}, {v(q)}, 2, {v(g)}")
            a(f"v_lshl_add_u32 {v(vZW)}, {v(vZW)}, 1, {s(sT0)}")
            a(f"v_mov_b32 v35, {L_ZB:#x}")
            a(f"v_lshl_add_u32 {v(vZR)}, {v(half)}, 5, v35")
            self.fine("p_b")
            a(f"v_mov_b32 v36, 0x3f80")
            a(f"v_lshlrev_b32 v37, 4, v27")
            a(f"v_lshlrev_b32 v36, v37, v36")
            a(f"v_lshrrev_b32 v37, 1, {v(i16)}")
            a(f"v_lshlrev_b32 v38, 2, {v(t1)}")
            a(f"v_sub_u32 v37, v37, v38")
            for d in range(4):
                a(f"v_cmp_eq_u32 vcc, {d}, v37")
                a(f"v_cndmask_b32 {v(40 + d)}, 0, v36, vcc")
            a(f"v_add_u32 v33, {L_SEL:#x}, v33")
            a(f"ds_write_b128 v33, v[40:43]")
            for i in range(4):
                a(f"v_mov_b32 {v(44 + i)}, 0")
            a(f"v_min_u32 v33, 5, {v(i16)}")
            a(f"v_mul_u32_u24 v33, {KS}, v33")
            a(f"v_lshl_add_u32 v33, {v(half)}, 6, v33")
            a(f"v_add_u32 v33, {L_KVF + 512:#x}, v33")
            a(f"ds_write_b128 v33, v[44:47]")
            return late_srds
        self.fine("p_a")
        if cfg["early_setup"]:
            self.nw = cfg["n0"]
            late_srds = setup(cfg["n0s"])
            cfg["n0"] = self.nw
        if cfg["warm_at"] == 0:
            self.warm(0)
        a(f"v_lshlrev_b32 v54, 5, v52")
        a(f"v_add_u32 v54, {L_STG:#x}, v54")
        a(f"s_lshl_b32 {s(sT0)}, {s(sW)}, 2")
        a(f"v_lshl_add_u32 v55, {v(half)}, 4, {s(sT0)}")
        a(f"v_add_u32 v55, v55, v54")
        a(f"v_lshlrev_b32 v53, 9, v53")
        a(f"v_lshl_add_u32 v53, v52, 4, v53")
        a(f"s_lshr_b32 {s(sT0)}, {s(sC)}, 2")
        a(f"s_lshl2_add_u32 {s(sT0)}, {s(sR)}, {s(sT0)}")
        a(f"s_and_b32 {s(sT1)}, {s(sC)}, 3")
        a(f"s_lshl3_add_u32 {s(sF0)}, {s(sT0)}, {s(sT1)}")
        a(f"s_lshl2_add_u32 {s(sF0)}, {s(sF0)}, {s(sW)}")
        a(f"s_lshl2_add_u32 {s(sF0)}, {s(sF0)}, {FLAGX}")
        a(f"s_lshl2_add_u32 {s(sT0)}, {s(sT0)}, {s(sW)}")
        a(f"s_lshl_b32 {s(sT0)}, {s(sT0)}, 6")
        a(f"s_add_u32 {s(sT0)}, {s(sT0)}, {s(sT1)}")
        a(f"s_lshl_b32 {s(sT0)}, {s(sT0)}, 7")
        a(f"s_add_u32 {s(sT1)}, {s(sT0)}, 4096")
        self.fine("p_c")

        def page_break():
            if cfg["pads"]:
                a("s_branch L_page0")
                a(".p2align 12")
                self.nook = a.ins[-1]
                a.label("L_page0")
        if cfg["brk"] == 0:
            page_break()
        self.ts("p_lane")
        a.wait(vm="x0")
        self.ts("x0")
        X, t = AK, AV
        for i in range(8):
            a(f"v_lshlrev_b32 {v(X + 2 * i)}, 16, {v(8 + i)}")
            a(f"v_and_b32 {v(X + 2 * i + 1)}, 0xffff0000, {v(8 + i)}")
        a(f"v_pk_add_f32 {v(t, 2)}, {v(X, 2)}, {v(X + 2, 2)}")
        a(f"v_pk_mul_f32 {v(t + 2, 2)}, {v(X, 2)}, {v(X, 2)}")
        a(f"v_pk_fma_f32 {v(t + 2, 2)}, {v(X + 2, 2)}, {v(X + 2, 2)}, {v(t + 2, 2)}")
        for i in range(2, 8):
            a(f"v_pk_add_f32 {v(t, 2)}, {v(t, 2)}, {v(X + 2 * i, 2)}")
            a(f"v_pk_fma_f32 {v(t + 2, 2)}, {v(X + 2 * i, 2)}, {v(X + 2 * i, 2)}, {v(t + 2, 2)}")
        a(f"v_add_f32 {v(t)}, {v(t)}, {v(t + 1)}")
        a(f"v_add_f32 {v(t + 2)}, {v(t + 2)}, {v(t + 3)}")
        a(f"v_permlane32_swap_b32 {v(t)}, {v(t + 2)}")
        a(f"v_add_f32 {v(t)}, {v(t)}, {v(t + 2)}")
        a(f"v_mov_b32 {v(t + 1)}, {v(t)}")
        a(f"v_permlane16_swap_b32 {v(t)}, {v(t + 1)}")
        a(f"v_add_f32 {v(t)}, {v(t)}, {v(t + 1)}")
        a(f"v_add_f32 {v(t)}, {v(t)}, {v(t)} row_ror:8")
        a(f"ds_write_b32 v55, {v(t)}")
        for i in range(cfg["n0"], cfg["n0"] + cfg["n0b"][0]):
            self.ld_wkv(0, i, 5, sT3)
        a("s_waitcnt lgkmcnt(0)")
        a("s_barrier")
        a(f"ds_read_b128 {v(t, 4)}, v54")
        a(f"ds_read_b128 {v(t + 4, 4)}, v54 offset:16")
        for i in range(cfg["n0"] + cfg["n0b"][0], cfg["n0"] + sum(cfg["n0b"])):
            self.ld_wkv(0, i, 5, sT3)
        cfg["n0"] += sum(cfg["n0b"])
        a("s_waitcnt lgkmcnt(0)")
        a.lg.clear()
        m_, u_ = t, t + 4
        for l_ in [f"v_pk_add_f32 {v(t, 2)}, {v(t, 2)}, {v(t + 2, 2)}",
                   f"v_pk_add_f32 {v(t + 4, 2)}, {v(t + 4, 2)}, {v(t + 6, 2)}",
                   f"v_add_f32 {v(m_)}, {v(t)}, {v(t + 1)}",
                   f"v_add_f32 {v(u_)}, {v(t + 4)}, {v(t + 5)}",
                   f"v_mul_f32 {v(m_)}, {f2u(1 / 512):#x}, {v(m_)}",
                   f"v_mul_f32 {v(u_)}, {f2u(1 / 512):#x}, {v(u_)}",
                   f"v_fma_f32 {v(u_)}, -{v(m_)}, {v(m_)}, {v(u_)}",
                   f"v_max_f32 {v(u_)}, 0, {v(u_)}",
                   f"v_cvt_pk_bf16_f32 {v(u_)}, {v(m_)}, {v(u_)}",
                   f"v_lshlrev_b32 {v(m_)}, 16, {v(u_)}",
                   f"v_and_b32 {v(u_)}, 0xffff0000, {v(u_)}",
                   f"v_add_f32 {v(u_)}, {f2u(1e-5):#x}, {v(u_)}",
                   f"v_cvt_pk_bf16_f32 {v(u_)}, {v(u_)}, {v(u_)}",
                   f"v_and_b32 {v(u_)}, 0xffff0000, {v(u_)}",
                   f"v_sqrt_f32 {v(u_)}, {v(u_)}"]:
            a(l_)
        for i in range(8):
            a(f"v_pk_add_f32 {v(X + 2 * i, 2)}, {v(X + 2 * i, 2)}, {v(m_, 2)} op_sel_hi:[1,0] neg_lo:[0,1] neg_hi:[0,1]")
        a(f"v_cvt_pk_bf16_f32 {v(u_)}, {v(u_)}, {v(u_)}")
        a(f"v_and_b32 {v(u_)}, 0xffff0000, {v(u_)}")
        a(f"v_rcp_f32 {v(u_)}, {v(u_)}")
        for h in range(2):
            R = range(4 * h, 4 * h + 4)
            for i in R:
                a(f"v_cvt_pk_bf16_f32 {v(8 + i)}, {v(X + 2 * i)}, {v(X + 2 * i + 1)}")
            for i in R:
                a(f"v_lshlrev_b32 {v(X + 2 * i)}, 16, {v(8 + i)}")
                a(f"v_and_b32 {v(X + 2 * i + 1)}, 0xffff0000, {v(8 + i)}")
            for i in R:
                a(f"v_pk_mul_f32 {v(X + 2 * i, 2)}, {v(X + 2 * i, 2)}, {v(u_, 2)} op_sel_hi:[1,0]")
            for i in R:
                a(f"v_cvt_pk_bf16_f32 {v(8 + i)}, {v(X + 2 * i)}, {v(X + 2 * i + 1)}")
            a(f"buffer_store_dwordx4 {v(8 + 4 * h, 4)}, v53, {s(sOUT, 4)}, {s((sT0, sT1)[h])} offen sc1", vm="sst")
        if cfg["mark1"] < 0:
            a("s_mov_b32 exec_hi, 15")
            for k_ in range(-cfg["mark1"]):
                a(f"s_add_u32 {s(sT0)}, {s(sKVT)}, {KVP[1 + 2 * k_] - KVP[0]}")
                a(f"buffer_store_dwordx4 v[28:31], v49, {s(sWS, 4)}, {s(sT0)} offen sc1", vm="sst")
            a("s_mov_b32 exec_hi, -1")
        with self.only_if(f"s_cmp_lt_u32 {s(sW)}, 2"):
            a("s_mov_b32 exec_hi, 15")
            a(f"buffer_store_dwordx4 v[28:31], v49, {s(sWS, 4)}, {s(sKVT)} offen sc1")
            a("s_mov_b32 exec_hi, -1")
        if cfg["mallpf"] == 3:
            mall_pf()
        if cfg["mallpf"] == 4:
            with self.only_if(f"s_cmp_lg_u32 {s(sW)}, 0"):
                mall_pf()
        o_touch(102)
        self.ts("p_xpub")
        self.nw = cfg["n0"]
        if not cfg["early_setup"]:
            late_srds = setup(cfg["n1"])
        self.ts("p_setup")
        while self.nw < cfg["n1"]:
            self.ld_wkv(0, self.nw, 5)
            self.nw += 1
        if cfg["brk"] == 1:
            page_break()
        if cfg["warm_at"] == 1:
            self.warm(0)
        a("s_waitcnt lgkmcnt(0)")
        a.lg.clear()
        def phi_frag():
            a(f"s_lshl_b32 {s(sT0)}, {s(sW)}, 10")
            a(f"s_add_u32 {s(sT0)}, {s(sT0)}, {L_STG + 0x3000}")
            a(f"v_add_u32 v33, {s(sT0)}, {v(vL16)}")
            a.wait(vm="phi")
            a(f"ds_write_b128 v33, v[16:19]", lg="ph")
            a(f"v_lshlrev_b32 v33, 9, v27")
            a(f"v_lshl_add_u32 v33, {v(half)}, 8, v33")
            a(f"v_lshl_add_u32 v33, {v(jj)}, 5, v33")
            a(f"v_lshl_add_u32 v33, {v(t1)}, 4, v33")
            a(f"v_lshl_add_u32 v33, v32, 3, v33")
            a(f"v_add_u32 v33, {s(sT0)}, v33")
            a(f"v_mul_u32_u24 v39, {KS - 512}, {v(half)}")
            a(f"v_add_u32 v39, v39, {v(vL16)}")
            a(f"v_add_u32 v39, {L_WPF:#x}, v39")
            a.wait(lg="ph")
            a(f"ds_read_b64_tr_b16 v[16:17], v33")
            a(f"ds_read_b64_tr_b16 v[18:19], v33 offset:128", lg="ph2")

        def phi_put():
            a.wait(lg="ph2")
            a(f"ds_write_b128 v39, v[16:19]")
        if cfg["phi_at"] < 0:
            phi_frag()

        def take(i):
            a.wait(vm=f"wkv{i}")
            self.fine(f"p_w{i}")
            self.put_wkv(0, i, i + 1)
        for i in range(cfg["n0"]):
            while self.nw < min(16, i + cfg["nw0"]):
                self.ld_wkv(0, self.nw, 5)
                self.nw += 1
            take(i)
        if cfg["phi_at"] < 0:
            phi_put()
        a(f"s_mul_i32 {s(sTAG)}, {s(sEP)}, 0x9e3779b1")
        a(f"s_add_u32 {s(sTAG)}, {s(sTAG)}, 0x7f4a7c15")
        a(f"s_and_b32 {s(sTAG)}, {s(sTAG)}, 0xffffff00")
        a(f"s_or_b32 {s(sXCC)}, {s(sTAG)}, {s(sXCC)}")
        a(f"v_mov_b32 v34, {s(sXCC)}")
        a("s_mov_b64 exec, 1")
        a.wait(vm="sst")
        self.fine("p_ack")
        a(f"buffer_store_dword v34, off, {s(sWS, 4)}, {s(sF0)}")
        a("s_mov_b64 exec, -1")
        if not cfg["hello_late"]:
            self.hello(35, 37)
        self.ts("flag0")
        a(f"v_lshl_add_u32 v38, {v(g)}, 7, {v(vPOLL)}")
        a(f"s_and_b32 {s(sT2)}, {s(sFXP)}, 0xfffffe7f")
        for i in range(cfg["n0"], 16):
            while self.nw < min(16, i + cfg["nw"]):
                self.ld_wkv(0, self.nw, 5)
                self.nw += 1
            if i == cfg["f0_at"]:
                assert self.nw == 16
                a(f"buffer_load_dword v34, v38, {s(sWS, 4)}, {s(sT2)} offen sc1", vm="f0")
                if cfg["warm_at"] == 2:
                    self.warm(0)
            if i == cfg["phi_at"]:
                phi_frag()
            take(i)
            if i == cfg["phi_at"]:
                phi_put()
        self.puts_left = []
        self.ts("wkv0")
        a.wait(vm="f0")
        a(f"v_cmp_ne_u32 vcc, {s(sXCC)}, v34")
        a("s_branch L_global" if cfg["force_global"] else "s_cbranch_vccnz L_poll0")
        a.label("L_enter")
        with self.outofline():
            a.label("L_poll0")
            a(f"buffer_load_dword v34, v38, {s(sWS, 4)}, {s(sT2)} offen sc1")
            self.countdown()
            a("s_waitcnt vmcnt(0)")
            a(f"v_cmp_ne_u32 vcc, {s(sXCC)}, v34")
            a("s_cbranch_vccz L_enter")
            a(f"s_and_b32 {s(sT1)}, {s(sCNT)}, 15")
            a("s_cbranch_scc1 L_poll0")
            a(f"v_mov_b32 v35, {s(sXCC)}")
            a(f"s_lshl2_add_u32 {s(sT0)}, {s(sC)}, {s(sANN)}")
            a("s_mov_b64 exec, 1")
            a(f"buffer_store_dword v35, off, {s(sWS, 4)}, {s(sT0)} sc1")
            a("s_mov_b64 exec, -1")
            a(f"buffer_load_dword v34, {v(vPOLL)}, {s(sWS, 4)}, {s(sANN)} offen sc1")
            a("s_waitcnt vmcnt(0)")
            a(f"v_xor_b32 v34, {s(sXCC)}, v34")
            a(f"v_add_u32 v34, -1, v34")
            a(f"v_cmp_gt_u32 vcc, 15, v34")
            a("s_cbranch_vccz L_poll0")
            a.label("L_global")
            a(f"s_mov_b32 {s(sMODE)}, 1")
            a(f"s_add_u32 {s(sFXS)}, {s(sFXS)}, {FLAGX2 - FLAGX}")
            a(f"s_add_u32 {s(sFXP)}, {s(sFXP)}, {FLAGX2 - FLAGX}")
            a(f"s_mov_b32 {s(sTG)}, {s(sTAG)}")
            a(f"s_add_u32 {s(sF0)}, {s(sF0)}, {FLAGX2 - FLAGX}")
            a(f"v_mov_b32 v16, {s(sTG)}")
            self.flag(sF0, 16)
            self.poll(vPOLL, sFXP, 34)
            a("s_branch L_enter")
        self.ts("poll0")
        if cfg["pfine"]:
            a("s_waitcnt lgkmcnt(0)")
            for k in range(len(cfg["pfine"])):
                a(f"v_writelane_b32 {v(vTS)}, {s(84 + 2 * k)}, {48 + k}")
            late_srds(a)

    def rowmajor_voff(self, d, t):
        a = self.a
        a(f"v_and_b32 {v(d)}, 0xf0, {v(vL16)}")
        a(f"v_lshlrev_b32 {v(d)}, 6, {v(d)}")
        a(f"v_bfe_u32 {v(t)}, {v(vL16)}, 8, 1")
        a(f"v_lshl_add_u32 {v(d)}, {v(t)}, 5, {v(d)}")
        a(f"v_lshrrev_b32 {v(t)}, 9, {v(vL16)}")
        a(f"v_lshl_add_u32 {v(d)}, {v(t)}, 4, {v(d)}")

    def tile_addr(self, d, t):
        return [f"s_mul_i32 {s(sT0)}, {s(sW)}, 2304",
                f"s_add_u32 {s(sT0)}, {s(sT0)}, {L_STG}",
                f"v_bfe_u32 {v(t)}, {v(vL16)}, 4, 4",
                f"v_mul_u32_u24 {v(d)}, 144, {v(t)}",
                f"v_lshrrev_b32 {v(t)}, 8, {v(vL16)}",
                f"v_lshl_add_u32 {v(d)}, {v(t)}, 3, {v(d)}",
                f"v_add_u32 {v(d)}, {s(sT0)}, {v(d)}",
                f"v_lshrrev_b32 {v(t)}, 7, {v(vL16)}",
                f"v_lshl_add_u32 {v(d + 1)}, {v(t)}, 4, {v(vL16)}",
                f"v_add_u32 {v(d + 1)}, {s(sT0)}, {v(d + 1)}",
                f"v_mul_u32_u24 {v(d + 2)}, {1024 - 128}, {v(t)}",
                f"v_add_u32 {v(d + 2)}, {v(d + 2)}, {v(vL16)}"]

    def final(self):
        a = self.a
        X = AK
        if self.cfg["fin_lds"]:
            a(f"s_add_u32 {s(sT1)}, {s(sFIN)}, 8192")
            for i in range(8):
                a(f"v_cvt_pk_bf16_f32 {v(X + i)}, {v(XR + 2 * i)}, {v(XR + 2 * i + 1)}")
                if i % 4 == 3:
                    a(f"ds_write2_b64 {v(PK)}, {v(X + i - 3, 2)}, {v(X + i - 1, 2)} offset0:{(i >> 2) * 8} offset1:{(i >> 2) * 8 + 4}")
            for i in range(2):
                a(f"ds_read_b128 {v(X + 8 + 4 * i, 4)}, {v(PK + 1)} offset:{1152 * i}")
            for i in range(2):
                a(f"s_waitcnt lgkmcnt({1 - i})")
                a(f"buffer_store_dwordx4 {v(X + 8 + 4 * i, 4)}, {v(PK + 2)}, {s(sOUT, 4)}, {s((sFIN, sT1)[i])} offen{self.cfg['finflag']}")
        else:
            self.rowmajor_voff(PK, PK + 1)
            for i in range(8):
                a(f"v_cvt_pk_bf16_f32 {v(X + i)}, {v(XR + 2 * i)}, {v(XR + 2 * i + 1)}")
            for i in range(2):
                for d in range(2):
                    a(f"v_permlane16_swap_b32 {v(X + 4 * i + d)}, {v(X + 4 * i + 2 + d)}")
            for i in range(2):
                a(f"buffer_store_dwordx4 {v(X + 4 * i, 4)}, {v(PK)}, {s(sOUT, 4)}, {s(sFIN)} offen offset:{64 * i}{self.cfg['finflag']}")
        if not self.cfg["ep_early"]:
            self.epoch(0)
        if self.cfg["amp"]:
            amp = self.cfg["amp"]
            self.ts("end")
            a("s_sub_u32 s72, s78, s72")
            a(f"s_mul_i32 s72, s72, {amp[2]}")
            if amp[3]:
                a("s_lshr_b32 s72, s72, 5")
            a("s_min_u32 s72, s72, 100000")
            if self.cfg.get("amp_one") is not None:
                a(f"s_cmp_eq_u32 {s(sGW)}, {self.cfg['amp_one']}")
                a("s_cselect_b32 s72, s72, 0")
            a("s_memrealtime s[78:79]")
            a("s_waitcnt lgkmcnt(0)")
            a("s_mov_b32 s73, s78")
            a.label("L_amp")
            a("s_memrealtime s[78:79]")
            a("s_waitcnt lgkmcnt(0)")
            a("s_sub_u32 s78, s78, s73")
            a("s_cmp_lt_u32 s78, s72")
            a("s_cbranch_scc1 L_amp")
        if self.cfg["ts"]:
            a("s_waitcnt vmcnt(0)")
            self.ts("end")
            a("s_memrealtime s[72:73]")
            a("s_waitcnt lgkmcnt(0)")
            for k in range(len(self.cfg["fine"])):
                a(f"v_writelane_b32 {v(vTS)}, {s(FINE[k])}, {48 + k}")
            a(f"v_writelane_b32 {v(vTS)}, {s(sLAY)}, 58")
            a(f"v_writelane_b32 {v(vTS)}, {s(sTSI)}, 59")
            a(f"v_writelane_b32 {v(vTS)}, {s(sCNT)}, 60")
            a(f"v_writelane_b32 {v(vTS)}, s78, 61")
            a(f"v_writelane_b32 {v(vTS)}, s72, 62")
            a(f"v_writelane_b32 {v(vTS)}, {s(sMODE)}, 63")
            a(f"s_lshl_b32 {s(sT0)}, {s(sGW)}, 8")
            a(f"s_add_u32 {s(sT0)}, {s(sT0)}, {DBG + 0x2000000}")
            a(f"v_lshrrev_b32 v0, 2, {v(vL16)}")
            a(f"buffer_store_dword {v(vTS)}, v0, {s(sWS, 4)}, {s(sT0)} offen")
        a.label("L_timeout")
        a.label("L_end")
        a("s_endpgm")

    def place(self):
        a = self.a
        if not self.cfg["pads"]:
            self.stat = a.layout(self.cfg["align"])
            return
        keep = list(a.ins)
        for k in range(12):
            a.ins.append(Ins(f"L_pad{k}:"))
        cnt = [0]

        def probe(k):
            cnt[0] += 1
            return f"L_tmp{cnt[0]}", "s_nop 0"
        a.layout(self.cfg["align"], probe, 1)
        n = cnt[0]
        a.ins = keep + [Ins(f"L_pad{k}:") for k in range(12)]
        cnt[0] = 0

        def pad(_):
            k = cnt[0]
            cnt[0] += 1
            return f"L_pad{k}", f"s_cbranch_execz {self.pad_back[k]}"
        self.stat = a.layout(self.cfg["align"], pad, 1)
        del a.ins[-12:]
        assert cnt[0] == n <= 12
        for k in range(n, 12):
            i = [x.label for x in a.ins].index(self.pad_back[k])
            a.ins.insert(i, Ins(f"L_pad{k}:"))

    def build(self):
        a = self.a
        self.prologue()
        for l in range(4):
            self.layer(l)
        self.final()
        hot = [k for k, x in enumerate(self.tail) if x.label and x.label.startswith("L_again")]
        blocks, rest_, k = [], [], 0
        while k < len(self.tail):
            e = k
            while self.tail[e].op != "s_branch":
                e += 1
            (blocks if k in hot else rest_).extend(self.tail[k:e + 1])
            k = e + 1
        blocks[1].pad_here = True
        a.raw(blocks + rest_)
        a.label("L_codeend")
        a("s_endpgm")
        if self.cfg["x_16"]:
            out, k, ins = [], 0, a.ins
            i = 0
            while i < len(ins):
                x = ins[i]
                if x.op == "v_mfma_f32_32x32x16_bf16" and min(n for _, n in x.B) < 128 and RG <= min(n for _, n in x.A) < RG + 24:
                    d = min(n for _, n in x.w); j = min(n for _, n in x.B) // 4
                    mk = lambda q: Ins(f"v_mfma_f32_16x16x32_bf16 {v(d + 4 * q, 4)}, {x.ops[1]}, {x.ops[2]}, {v(d + 4 * q, 4) if j > 1 else 0}")
                    e = i + 1
                    while ins[e].kind != "mfma" if ins[e].op else False:
                        if ins[e].op.startswith(("s_cbranch", "s_cmp", "s_mov_b64", "s_waitcnt", "v_cmp", "s_barrier")) or e - i > 3:
                            break
                        e += 1
                    mid = i + 1 + (1 if e > i + 1 and ins[i + 1].op != "s_add_u32" else min(2, e - i - 1))
                    out += [mk(2 * (j & 1))] + ins[i + 1:mid] + [mk(2 * (j & 1) + 1)]
                    i = mid
                    continue
                out.append(x)
                i += 1
            a.ins = out
        nops = a.pad_hazards()
        self.place()
        head = open(f"cdna_kernels/{NAME}.s.ref").read().split("; Override launch")[0]
        out = head + HEADER + f"; @launch grid=(256,1,1) block=(256,1,1) lds={LDS_SIZE}\n"
        out += f""".amdgcn_target "amdgcn-amd-amdhsa--gfx950"
.text
.globl {NAME}_kernel
.p2align 8
.type {NAME}_kernel,@function
{NAME}_kernel:
"""
        out += a.text()
        out += f""".section .rodata,"a"
.p2align 6
.amdhsa_kernel {NAME}_kernel
  .amdhsa_next_free_vgpr 512
  .amdhsa_next_free_sgpr 102
  .amdhsa_accum_offset 256
  .amdhsa_group_segment_fixed_size 0
  .amdhsa_kernarg_size 80
  .amdhsa_user_sgpr_count 2
  .amdhsa_user_sgpr_kernarg_segment_ptr 1
  .amdhsa_system_sgpr_workgroup_id_x 1
.end_amdhsa_kernel
"""
        self.nops = nops
        return out


if __name__ == "__main__":
    import ast
    kw = {}
    out = sys.argv[1]
    for x in sys.argv[2:]:
        k, val = x.split("=", 1)
        kw[k] = ast.literal_eval(val)
    g = Gen(**kw)
    txt = g.build()
    open(out, "w").write(txt)
    print(f"wrote {out}: {len(g.a.ins)} lines, {g.nops} pad states, layout {g.stat}", file=sys.stderr)
```
